```python
import torch

def _softmax(x, axis=-1):
    return torch.softmax(x, dim=axis)
def _gelu(x):
    return torch.nn.functional.gelu(x, approximate="tanh")
def _silu(x):
    return torch.nn.functional.silu(x)
def _sigmoid(x):
    return torch.sigmoid(x)
def _layernorm(x, axis=-1, eps=1e-5):
    m = x.mean(dim=axis, keepdim=True)
    v = x.var(dim=axis, keepdim=True, unbiased=False)
    return (x - m) / torch.sqrt(v + eps)
def _scatter_add(tgt, idx, src, axis=0):
    return tgt.clone().index_add_(axis, idx, src)
def _segment_sum(src, seg, n):
    out = torch.zeros((n,) + src.shape[1:], dtype=src.dtype)
    return out.index_add_(0, seg, src)
def _pad(x, pw):
    flat = tuple(v for pair in reversed(pw) for v in pair)
    return torch.nn.functional.pad(x, flat)

kernel_name = 'sequential_preLN__mha_block__dense_activation_squared_relu__prompt'

def setup_inputs():

    _w = (lambda a: (lambda t: t.to(torch.bfloat16) if t.is_floating_point() else t)(torch.as_tensor(a)))
    def _A_setup():
        B, S, D, H = 1, 2048, 640, 32
        return {
            "x": _w((lambda *s: torch.randn(*s, dtype=torch.bfloat16) * 0.05)(B, S, D)),
            "wqkv": _w((lambda *s: torch.randn(*s, dtype=torch.bfloat16) * 0.05)(D, 3 * D)),
            "wo": _w((lambda *s: torch.randn(*s, dtype=torch.bfloat16) * 0.05)(D, D)),
        }
    _A_in = _A_setup()

    def _B_setup():
        B, S, D, F = 1, 2048, 640, 1728
        return {
            "x": _w((lambda *s: torch.randn(*s, dtype=torch.bfloat16) * 0.05)(B, S, D)),
            "w1": _w((lambda *s: torch.randn(*s, dtype=torch.bfloat16) * 0.05)(D, F)),
            "b1": _w((lambda *s: torch.randn(*s, dtype=torch.bfloat16) * 0.4)(F)),
            "w2": _w((lambda *s: torch.randn(*s, dtype=torch.bfloat16) * 0.05)(F, D)),
            "b2": _w((lambda *s: torch.randn(*s, dtype=torch.bfloat16) * 3.2)(D)),
        }
    _B_in = _B_setup()

    return {
        "A_x": _A_in["x"],
        "A_wqkv": _A_in["wqkv"],
        "A_wo": _A_in["wo"],
        "B_x": _B_in["x"],
        "B_w1": _B_in["w1"],
        "B_b1": _B_in["b1"],
        "B_w2": _B_in["w2"],
        "B_b2": _B_in["b2"],
    }

def reference(A_x, A_wqkv, A_wo, B_x, B_w1, B_b1, B_w2, B_b2):
    def _A_ref(x, wqkv, wo):
        B, S, D = x.shape
        H = 32
        Dh = D // H
        qkv = (lambda x, *d: x.permute(*d))((x @ wqkv).reshape(B, S, 3, H, Dh), 2, 0, 3, 1, 4)
        q, k, v = qkv[0], qkv[1], qkv[2]
        scores = torch.einsum("bhqd,bhkd->bhqk", q, k) * (Dh ** -0.5)
        p = _softmax(scores, axis=-1)
        o = torch.einsum("bhqk,bhkd->bhqd", p, v)
        return (lambda x, *d: x.permute(*d))(o, 0, 2, 1, 3).reshape(B, S, D) @ wo

    def _B_ref(x, w1, b1, w2, b2):
        h = torch.einsum("bsd,df->bsf", x, w1) + b1
        zero = torch.zeros_like(h)
        r = torch.where(h > zero, h, zero)
        h = r * r
        out = torch.einsum("bsf,fd->bsd", h, w2) + b2
        return out

    x = A_x
    h = x + _A_ref(_layernorm(x, axis=-1), A_wqkv, A_wo)
    h2 = h + _B_ref(_layernorm(h, axis=-1), B_w1, B_b1, B_w2, B_b2)
    return h2
```

```python
import re

class Asm:
    def __init__(self):
        self.L = []
        self.nlabel = 0
    def __call__(self, s):
        for line in s.split("\n"):
            line = line.strip()
            if line:
                self.L.append(line)
    def label(self, name=None):
        if name is None:
            self.nlabel += 1
            name = f"L{self.nlabel}"
        return name
    def put(self, name):
        self.L.append(name + ":")
    def text(self):
        out = []
        for l in self.L:
            if l.endswith(":") or l.startswith("."):
                out.append(l)
            else:
                out.append("    " + l)
        return "\n".join(out) + "\n"

def vr(b, n=1):
    return f"v{b}" if n == 1 else f"v[{b}:{b+n-1}]"
def sr(b, n=1):
    return f"s{b}" if n == 1 else f"s[{b}:{b+n-1}]"

TRANS = ("v_exp_f32", "v_log_f32", "v_rcp_f32", "v_rsq_f32", "v_sqrt_f32", "v_sin_f32", "v_cos_f32", "v_exp_f16", "v_rcp_iflag_f32")
REG_RE = re.compile(r"\b([vsa])(\d+)\b|\b([vsa])\[(\d+):(\d+)\]|\b(vcc_lo|vcc_hi|vcc|exec_lo|exec_hi|exec|m0|scc)\b")

def regs_of(tok):
    out = []
    for m in REG_RE.finditer(tok):
        if m.group(1):
            out.append((m.group(1), int(m.group(2))))
        elif m.group(3):
            for i in range(int(m.group(4)), int(m.group(5)) + 1):
                out.append((m.group(3), i))
        else:
            out.append((m.group(6).replace("_lo","").replace("_hi",""), 0))
    return out

class Ins:
    pass

def parse(line):
    line = line.split(";")[0].strip()
    if not line or line.endswith(":") or line.startswith("."):
        return None
    parts = line.split(None, 1)
    op = parts[0]
    ops = []
    if len(parts) > 1:
        depth = 0; cur = ""
        for ch in parts[1]:
            if ch == "[": depth += 1
            if ch == "]": depth -= 1
            if ch == "," and depth == 0:
                ops.append(cur.strip()); cur = ""
            else:
                cur += ch
        ops.append(cur.strip())
    I = Ins(); I.op = op; I.ops = ops; I.text = line
    I.w = []; I.r = []
    base = op.replace("_e32", "").replace("_e64", "").replace("_dpp", "").replace("_sdwa", "")
    I.base = base
    I.kind = "other"
    if base.startswith("v_mfma"):
        I.kind = "mfma"; I.passes = 8 if ("32x32x16" in base or "32x32x8" in base) else (4 if "16x16x32" in base else 16)
        I.w = regs_of(ops[0]); I.A = regs_of(ops[1]); I.B = regs_of(ops[2]); I.C = regs_of(ops[3].split()[0])
        I.r = I.A + I.B + I.C
    elif base.startswith("v_cmp"):
        I.kind = "valu"; I.w = regs_of(ops[0]); I.r = sum((regs_of(o) for o in ops[1:]), [])
        if base.startswith("v_cmpx"): I.w.append(("exec", 0))
    elif base in ("v_readfirstlane_b32", "v_readlane_b32"):
        I.kind = "valu"; I.w = regs_of(ops[0]); I.r = sum((regs_of(o) for o in ops[1:]), [])
    elif base.startswith("v_permlane"):
        I.kind = "valu"; I.w = regs_of(ops[0]) + regs_of(ops[1]); I.r = list(I.w)
    elif base.startswith("v_"):
        I.kind = "valu"; I.w = regs_of(ops[0])
        rest = ops[1:]
        if base in ("v_add_co_u32", "v_addc_co_u32", "v_sub_co_u32", "v_subb_co_u32"):
            I.w += regs_of(ops[1]); rest = ops[2:]
        I.r = sum((regs_of(o.split()[0]) if o else [] for o in rest), [])
        if base in ("v_fmac_f32", "v_dot2c_f32_bf16", "v_mac_f32") or "dst_unused:UNUSED_PRESERVE" in line:
            I.r += regs_of(ops[0])
        if base == "v_cndmask_b32" and len(ops) == 3:
            I.r.append(("vcc", 0))
    elif base.startswith("ds_"):
        I.kind = "ds"
        if base.startswith("ds_read") or base.startswith("ds_bpermute") or base.startswith("ds_permute") or base.startswith("ds_swizzle"):
            I.w = regs_of(ops[0]); I.r = sum((regs_of(o.split()[0]) for o in ops[1:]), [])
        else:
            I.r = sum((regs_of(o.split()[0]) for o in ops), [])
    elif base.startswith("buffer_") or base.startswith("global_"):
        I.kind = "vmem"
        toks = ops
        lds = " lds" in line
        if "load" in base and not lds:
            I.w = regs_of(ops[0]); I.r = sum((regs_of(o.split()[0]) for o in ops[1:]), [])
        elif "atomic" in base:
            I.r = sum((regs_of(o.split()[0]) for o in ops), [])
            if "sc0" in line: I.w = regs_of(ops[0])
        elif base in ("buffer_wbl2", "buffer_inv"):
            pass
        else:
            I.r = sum((regs_of(o.split()[0]) for o in ops if o), [])
            if lds: I.r.append(("m0", 0))
            I.store = "store" in base
            if I.store: I.data = regs_of(ops[0]) if base.startswith("buffer") else regs_of(ops[1])
        I.lds = lds
    elif base.startswith("s_"):
        I.kind = "salu"
        if base in ("s_nop",):
            I.kind = "nop"; I.n = int(ops[0], 0) + 1
        elif base in ("s_waitcnt", "s_barrier", "s_endpgm", "s_branch", "s_sleep", "s_setprio") or base.startswith("s_cbranch"):
            I.kind = "ctl"
        elif base.startswith("s_cmp") or base.startswith("s_bitcmp"):
            I.r = sum((regs_of(o) for o in ops), [])
        elif base.startswith("s_load") or base.startswith("s_memtime") or base.startswith("s_memrealtime"):
            I.kind = "smem"; I.w = regs_of(ops[0]); I.r = sum((regs_of(o) for o in ops[1:]), [])
        else:
            I.w = regs_of(ops[0]); I.r = sum((regs_of(o) for o in ops[1:]), [])
            if "saveexec" in base: I.w.append(("exec", 0))
    return I

def states(I):
    return I.n if I.kind == "nop" else 1

def check_seq(seq, report):
    n = len(seq)
    for i, P in enumerate(seq):
        dist = 0
        for j in range(i + 1, min(n, i + 40)):
            Cn = seq[j]
            need = 0; why = ""
            W = set(P.w)
            R = set(Cn.r); CW = set(Cn.w)
            vW = {x for x in W if x[0] in ("v", "a")}
            sW = {x for x in W if x[0] in ("s", "vcc")}
            if P.kind == "valu":
                if Cn.kind == "mfma" and vW & R: need, why = 2, "VALU->MFMA read"
                if P.base in TRANS and Cn.kind in ("valu", "mfma") and Cn.base not in TRANS and vW & R: need, why = max(need, 1), "trans->VALU"
                if P.base in TRANS and Cn.kind == "valu" and Cn.base in TRANS and vW & R: pass
                if Cn.base in ("v_readfirstlane_b32", "v_readlane_b32") and vW & R: need, why = max(need, 1), "VALU->readlane"
                if Cn.base.startswith("v_permlane") and vW & R: need, why = max(need, 2), "VALU->permlane"
                if Cn.kind == "vmem" and sW & R: need, why = max(need, 5), "VALU sgpr->VMEM"
                if Cn.kind == "valu" and sW & R: need, why = max(need, 2), "VALU sgpr->VALU read"
                if "_dpp" in Cn.op and vW & R: need, why = max(need, 2), "VALU->DPP"
                if P.base.startswith("v_dot2") and Cn.kind in ("valu", "mfma", "vmem", "ds") and (vW & (R | CW)):
                    if not (Cn.base == P.base and vW & set(regs_of(Cn.ops[0])) and not (vW & set(sum((regs_of(o) for o in Cn.ops[1:]), [])))):
                        need, why = max(need, 3), "dot2->use"
                if ("exec", 0) in W and Cn.kind == "mfma": need, why = max(need, 4), "VALU exec->MFMA"
            if P.kind == "mfma":
                p = P.passes
                tbl = {4: (0, 6, 8, 8), 8: (0, 10, 12, 12), 16: (0, 18, 20, 20)}[p]
                if Cn.kind == "mfma":
                    if vW & set(Cn.C):
                        if set(Cn.C) == vW and Cn.passes == p: need = 0
                        else: need, why = tbl[1], "MFMA D->C overlap"
                    if vW & (set(Cn.A) | set(Cn.B)): need, why = max(need, tbl[2]), "MFMA D->A/B"
                    if (vW & CW) and not (vW & set(Cn.C)):
                        pass
                elif Cn.kind in ("valu", "ds", "vmem") and (vW & (R | CW)):
                    need, why = tbl[3], "MFMA D->VALU/mem"
                if Cn.kind == "valu" and (set(P.C) & CW) and not (vW & CW):
                    need, why = max(need, {4: 3, 8: 7, 16: 15}[p]), "MFMA C WAR"
                if Cn.kind == "valu" and (set(P.C) & CW):
                    need, why = max(need, {4: 3, 8: 7, 16: 15}[p]), "MFMA C WAR"
            if P.kind == "vmem" and getattr(P, "store", False) and len(P.data) >= 3:
                if Cn.kind == "valu" and set(P.data) & CW: need, why = max(need, 2), "store data WAR"
                elif set(P.data) & CW: need, why = max(need, 1), "store data WAR"
            if P.kind == "salu" and ("m0", 0) in W and Cn.kind == "vmem" and getattr(Cn, "lds", False):
                need, why = max(need, 1), "m0->lds dma"
            if need > dist:
                report.append(f"HAZARD {why}: need {need} have {dist}: [{P.text}] -> [{Cn.text}]")
            dist += states(Cn)
            if dist > 21: break

def check(lines):
    ins = []; labels = {}
    for l in lines:
        t = l.split(";")[0].strip()
        if t.endswith(":"):
            labels[t[:-1]] = len(ins); continue
        I = parse(l)
        if I is not None: ins.append(I)
    report = []
    check_seq(ins, report)
    for i, I in enumerate(ins):
        if I.base.startswith("s_cbranch") or I.base == "s_branch":
            t = labels.get(I.ops[0])
            if t is None: continue
            seq = ins[max(0, i - 30): i + 1] + ins[t: t + 40]
            check_seq(seq, report)
    seen = set(); out = []
    for r in report:
        if r not in seen:
            seen.add(r); out.append(r)
    return out
```

```python
import sys, math
sys.path.insert(0, "gen")
from asmlib import Asm, vr, sr, check

NAME = "sequential_preLN__mha_block__dense_activation_squared_relu__prompt_kernel"

OFF_EPOCH = 0
OFF_GB    = 4096
OFF_MB1   = 65536
OFF_Q     = 0x100000
OFF_KV    = 0x400000
OFF_O     = 0xA00000
OFF_H     = 0xD00000
OFF_R     = 0x1000000
OFF_WOP   = 0x1700000
OFF_W2P   = 0x1800000
SZ_Q = 32*64*1280
SZ_KV = 32*64*2560
SZ_O = 32*20*4096
SZ_H = 2048*1280
SZ_R = 32*54*4096
SZ_WOP = 20*40*1024
SZ_W2P = 54*40*1024

S_KA = 0; S_WG = 2; S_W = 3
S_X = 4; S_WQKV = 6; S_WO = 8; S_W1 = 12; S_B1 = 14; S_W2 = 16; S_B2 = 18; S_OUT = 20; S_DBG = 22; S_WS = 24
S_TAG = 26; S_GX = 27
SRD_A = 28; SRD_W = 32; SRD_O = 36; SRD_F = 40; SRD_T = 44
S_GI = 48
S_MT = 49; S_NT = 50; S_KK = 51; S_CNT = 52; S_SLOT = 53
S_SA = 54; S_SW = 55; S_T0 = 56; S_T1 = 57; S_T2 = 58; S_T3 = 59; S_T4 = 60; S_T5 = 61
S_M0A = 62; S_WM = 63; S_WN = 64; S_DELTA = 65; S_ONES = 66; S_ROT4 = 67; S_RLW = 68; S_RSLOT = 69
S_STAMP = 70
S_SAVE = 90

LDS_STATS = 131072
ST_PX, ST_PQ, ST_PC, ST_AA, ST_BB, ST_CS, ST_B1 = 0, 4096, 8192, 9216, 9728, 10240, 10752
LDS_RL = LDS_STATS + 12288

class Gen:
    def __init__(self, stop_after=None, stamps=False, opt=()):
        self.opt = set(opt)
        self.a = Asm()
        self.stop_after = stop_after
        self.stamps = stamps
        self.nstamp = 0

    def srd(self, dst, base_s, off, size):
        a = self.a
        if off:
            a(f"s_add_u32 s{dst}, s{base_s}, {hex(off)}")
            a(f"s_addc_u32 s{dst+1}, s{base_s+1}, 0")
        else:
            a(f"s_mov_b32 s{dst}, s{base_s}")
            a(f"s_mov_b32 s{dst+1}, s{base_s+1}")
        a(f"s_mov_b32 s{dst+2}, {hex(size)}")
        a(f"s_mov_b32 s{dst+3}, 0x20000")

    def csel(self, dst, x, y):
        self.a(f"s_mov_b32 s{dst}, {y}")
        self.a(f"s_cselect_b32 s{dst}, {x}, s{dst}")

    def set_exec(self, mask):
        mask = int(str(mask), 0) & 0xFFFFFFFFFFFFFFFF
        if mask == 0xFFFFFFFFFFFFFFFF: self.a("s_mov_b64 exec, -1")
        elif mask < 0x80000000: self.a(f"s_mov_b64 exec, {hex(mask)}")
        else:
            self.a(f"s_mov_b32 exec_lo, {hex(mask & 0xffffffff)}")
            self.a(f"s_mov_b32 exec_hi, {hex(mask >> 32)}")

    def stamp(self, i=None):
        if not self.stamps: return
        if i is None: return
        self.nstamp = max(self.nstamp, i + 1)
        self.a(f"s_memtime s[100:101]")
        self.a(f"s_waitcnt lgkmcnt(0)")
        self.a(f"s_mov_b32 s{S_STAMP+i}, s100")

    def prologue(self):
        a = self.a
        a(f"s_cmp_ge_u32 s2, 256")
        a(f"s_cbranch_scc1 L_end")
        self.stamp(0)
        if self.stamps: a(f"s_memrealtime s[96:97]")
        a(f"s_load_dwordx16 s[4:19], s[0:1], 0")
        a(f"s_load_dwordx4 s[20:23], s[0:1], 64")
        a(f"s_load_dwordx2 s[24:25], s[0:1], 80")
        a(f"v_lshrrev_b32 v2, 6, v0")
        a(f"v_and_b32 v1, 63, v0")
        a(f"v_readfirstlane_b32 s{S_W}, v2")
        a(f"s_and_b32 s{S_GX}, s2, 7")
        a(f"s_lshr_b32 s{S_GI}, s2, 3")
        a(f"s_mov_b32 s{S_ONES}, 0x3f803f80")
        a(f"s_lshr_b32 s{S_WM}, s{S_W}, 2")
        a(f"s_and_b32 s{S_WN}, s{S_W}, 3")

    def finish_tag(self):
        a = self.a
        a(f"s_waitcnt lgkmcnt(0)")
        a(f"s_mul_i32 s{S_TAG}, s{S_TAG}, 0x9E3779B1")
        a(f"s_add_u32 s{S_TAG}, s{S_TAG}, 0x7F4A7C15")

    V_OFFA = 2; V_OFFW = 3
    V_AA = 4
    V_AWA = 8; V_AWB = 9
    V_CSA = 12
    V_CSD = 16
    V_FR = 20
    V_ACC = 84
    V_T = 148
    V_LA = 4
    V_LS = 8
    V_LD = 20
    V_LU = 40
    NSLOT = 4

    def g1_setup_loader(self, WS):
        a = self.a
        T = self.V_T
        a(f"s_sub_u32 s{S_T4}, s{S_W}, 4")
        a(f"v_lshrrev_b32 v{T}, 4, v1")
        a(f"s_lshl_b32 s{S_T0}, s{S_T4}, 2")
        a(f"v_add_u32 v{T+1}, s{S_T0}, v{T}")
        a(f"v_and_b32 v{T+1}, 7, v{T+1}")
        a(f"v_and_b32 v{T+2}, 7, v1")
        a(f"v_xor_b32 v{T+1}, v{T+1}, v{T+2}")
        a(f"v_lshlrev_b32 v{T+1}, 4, v{T+1}")
        a(f"v_lshrrev_b32 v{T+2}, 3, v1")
        a(f"v_mul_u32_u24 v{T+2}, 1280, v{T+2}")
        a(f"v_add_u32 v{self.V_OFFA}, v{T+1}, v{T+2}")
        a(f"v_lshlrev_b32 v{T+1}, 2, v{T}")
        a(f"v_and_b32 v{T+2}, 15, v1")
        a(f"v_xor_b32 v{T+1}, v{T+1}, v{T+2}")
        a(f"v_lshlrev_b32 v{T+1}, 4, v{T+1}")
        a(f"v_mul_u32_u24 v{T+2}, {WS}, v{T}")
        a(f"v_add_u32 v{self.V_OFFW}, v{T+1}, v{T+2}")
        a(f"s_lshl_b32 s{S_T0}, s{S_MT}, 7")
        a(f"s_lshl_b32 s{S_T1}, s{S_T4}, 3")
        a(f"s_add_u32 s{S_T0}, s{S_T0}, s{S_T1}")
        a(f"s_mul_i32 s{S_SA}, s{S_T0}, 1280")
        a(f"s_mul_i32 s{S_T0}, s{S_T4}, {4*WS}")
        a(f"s_lshl_b32 s{S_T1}, s{S_NT}, 8")
        a(f"s_add_u32 s{S_SW}, s{S_T0}, s{S_T1}")
        a(f"s_lshl_b32 s{S_M0A}, s{S_T4}, 10")
        a(f"s_mov_b32 s{S_SLOT}, 0")

    def g1_setup_loader2(self):
        a = self.a
        T = self.V_T
        a(f"v_and_b32 v{T}, 31, v1")
        a(f"s_sub_u32 s{S_T4}, s{S_W}, 4")
        a(f"s_lshl_b32 s{S_T0}, s{S_T4}, 5")
        a(f"v_add_u32 v{T+1}, s{S_T0}, v{T}")
        a(f"v_lshlrev_b32 v{T+1}, 7, v{T+1}")
        a(f"v_bfe_u32 v{T+2}, v{T}, 1, 3")
        a(f"v_lshrrev_b32 v{T+3}, 5, v1")
        a(f"v_lshlrev_b32 v{T+3}, 2, v{T+3}")
        a(f"v_xor_b32 v{T+2}, v{T+2}, v{T+3}")
        for q in range(4):
            a(f"v_xor_b32 v{self.V_LA+q}, {q}, v{T+2}")
            a(f"v_lshlrev_b32 v{self.V_LA+q}, 4, v{self.V_LA+q}")
            a(f"v_add_u32 v{self.V_LA+q}, v{self.V_LA+q}, v{T+1}")
            a(f"v_mov_b32 v{self.V_LS+q}, 0")

    def g1_dma1(self, WS, q):
        a = self.a
        if q == 0:
            a(f"s_lshl_b32 s{S_T2}, s{S_KK}, 7")
            a(f"s_add_u32 s{S_T2}, s{S_T2}, s{S_SA}")
            a(f"s_add_u32 m0, s{S_SLOT}, s{S_M0A}")
            a(f"s_mul_i32 s{S_T3}, s{S_KK}, {64*WS}")
        elif q == 4:
            a(f"s_add_u32 s{S_T2}, s{S_T3}, s{S_SW}")
            a(f"s_add_u32 m0, m0, 4096")
            a(f"s_nop 0")
        else:
            a(f"s_add_u32 m0, m0, 4096")
            a(f"s_add_u32 s{S_T2}, s{S_T2}, {32*1280 if q < 4 else 16*WS}")
        if q < 4:
            a(f"buffer_load_dwordx4 v{self.V_OFFA}, s[{SRD_A}:{SRD_A+3}], s{S_T2} offen {self.aux_A} lds")
        else:
            a(f"buffer_load_dwordx4 v{self.V_OFFW}, s[{SRD_W}:{SRD_W+3}], s{S_T2} offen lds")
        if q == 7:
            a(f"s_add_u32 s{S_KK}, s{S_KK}, 1")
            a(f"s_cmp_eq_u32 s{S_KK}, 10")
            a(f"s_cselect_b32 s{S_KK}, 0, s{S_KK}")
            a(f"s_add_u32 s{S_SLOT}, s{S_SLOT}, 32768")
            a(f"s_cmp_eq_u32 s{S_SLOT}, {self.NSLOT*32768}")
            a(f"s_cselect_b32 s{S_SLOT}, 0, s{S_SLOT}")

    def g1_dma_stage(self, WS):
        for q in range(8): self.g1_dma1(WS, q)

    def g1_lstat_reads(self):
        if "nolstat" in self.opt: return
        a = self.a
        for q in range(4):
            a(f"ds_read_b128 v[{self.V_LD+4*q}:{self.V_LD+4*q+3}], v{self.V_LA+q}")
    def g1_lstat_adv(self, sreg):
        a = self.a
        for q in range(4):
            a(f"v_add_u32 v{self.V_LA+q}, s{sreg}, v{self.V_LA+q}")
    def g1_lstat_calc(self, r0, r1):
        if "nolstat" in self.opt: return
        a = self.a
        S = self.V_LS
        for r in range(r0, r1):
            U = self.V_LU + 2*(r % 2)
            a(f"v_lshlrev_b32 v{U}, 16, v{self.V_LD+r}")
            a(f"v_and_b32 v{U+1}, 0xffff0000, v{self.V_LD+r}")
            a(f"v_add_f32 v{S}, v{S}, v{U}")
            a(f"v_fmac_f32 v{S+2}, v{U}, v{U}")
            a(f"v_add_f32 v{S+1}, v{S+1}, v{U+1}")
            a(f"v_fmac_f32 v{S+3}, v{U+1}, v{U+1}")

    def slot_next(self):
        a = self.a
        a(f"s_add_u32 s{S_RSLOT}, s{S_RSLOT}, 1")
        a(f"s_cmp_eq_u32 s{S_RSLOT}, {self.NSLOT}")
        a(f"s_cselect_b32 s{S_RSLOT}, 0, s{S_RSLOT}")
        a(f"s_cmp_eq_u32 s{S_RSLOT}, {self.NSLOT-1}")
        self.csel(S_DELTA, hex((-(self.NSLOT-1)*32768) & 0xffffffff), 32768)

    def g1_loader(self, WS, tag):
        a = self.a
        pre = self.NSLOT - 1
        self.g1_setup_loader2()
        a(f"s_waitcnt vmcnt({8*(pre-1)})")
        a(f"s_barrier")
        self.g1_lstat_reads()
        a(f"s_mov_b32 s{S_DELTA}, 32768")
        self.g1_lstat_adv(S_DELTA)
        a(f"s_mov_b32 s{S_CNT}, 0")
        a(f"s_mov_b32 s{S_RSLOT}, 0")
        a(f"s_waitcnt lgkmcnt(0)")
        self.g1_lstat_calc(0, 16)
        L1 = f"L_{tag}_lloop"
        a.put(L1)
        a(f"s_add_u32 s{S_CNT}, s{S_CNT}, 1")
        self.slot_next()
        a(f"s_waitcnt vmcnt({8*(pre-2)})")
        a(f"s_barrier")
        self.g1_lstat_reads()
        self.g1_lstat_adv(S_DELTA)
        for q in range(8):
            self.g1_dma1(WS, q)
            if q == 0: a(f"s_waitcnt lgkmcnt(0)")
            self.g1_lstat_calc(2*q, 2*q+2)
        a(f"s_cmp_lt_u32 s{S_CNT}, {10-pre}")
        a(f"s_cbranch_scc1 {L1}")
        L2 = f"L_{tag}_ltl"; L3 = f"L_{tag}_ltw"; L4 = f"L_{tag}_lts"
        a.put(L2)
        a(f"s_add_u32 s{S_CNT}, s{S_CNT}, 1")
        self.slot_next()
        a(f"s_cmp_lt_u32 s{S_CNT}, 9")
        a(f"s_cbranch_scc1 {L3}")
        a(f"s_waitcnt vmcnt(0)")
        a.put(L3)
        a(f"s_waitcnt vmcnt(8)")
        a(f"s_barrier")
        a(f"s_cmp_eq_u32 s{S_CNT}, 10")
        a(f"s_cbranch_scc1 {L4}")
        self.g1_lstat_reads()
        self.g1_lstat_adv(S_DELTA)
        a(f"s_waitcnt lgkmcnt(0)")
        self.g1_lstat_calc(0, 16)
        a(f"s_branch {L2}")
        a.put(L4)
        T = self.V_T; S = self.V_LS
        a(f"v_add_f32 v{S}, v{S}, v{S+1}")
        a(f"v_add_f32 v{S+2}, v{S+2}, v{S+3}")
        a(f"v_mov_b32 v{T}, v{S}")
        a(f"v_mov_b32 v{T+1}, v{S+2}")
        a(f"s_nop 1")
        a(f"v_permlane32_swap_b32 v{T}, v{S}")
        a(f"v_permlane32_swap_b32 v{T+1}, v{S+2}")
        a(f"s_nop 1")
        a(f"v_add_f32 v{S}, v{S}, v{T}")
        a(f"v_add_f32 v{S+2}, v{S+2}, v{T+1}")
        a(f"v_mul_f32 v{T+1}, {hex(f32(1.0/640))}, v{S}")
        a(f"v_mul_f32 v{T+2}, {hex(f32(1.0/640))}, v{S+2}")
        a(f"v_fma_f32 v{T+2}, -v{T+1}, v{T+1}, v{T+2}")
        a(f"v_max_f32 v{T+2}, 0, v{T+2}")
        a(f"v_add_f32 v{T+2}, {hex(f32(1e-5))}, v{T+2}")
        a(f"v_rsq_f32 v{T+2}, v{T+2}")
        a(f"v_and_b32 v{T}, 31, v1")
        a(f"s_sub_u32 s{S_T4}, s{S_W}, 4")
        a(f"s_lshl_b32 s{S_T0}, s{S_T4}, 5")
        a(f"v_add_u32 v{T}, s{S_T0}, v{T}")
        a(f"v_mul_f32 v{T+1}, v{T+1}, v{T+2}")
        a(f"v_lshlrev_b32 v{T}, 2, v{T}")
        a(f"v_sub_f32 v{T+1}, 0, v{T+1}")
        a(f"v_add_u32 v{T}, {LDS_STATS}, v{T}")
        a(f"ds_write_b32 v{T}, v{T+2} offset:{ST_AA}")
        a(f"ds_write_b32 v{T}, v{T+1} offset:{ST_BB}")
        if getattr(self, "b1_hook", False):
            a(f"v_lshlrev_b32 v{T+12}, 16, v{T+12}")
            a(f"ds_write_b32 v{T}, v{T+12} offset:{ST_B1}")
        a(f"s_waitcnt lgkmcnt(0)")
        a(f"s_barrier")

    def g1_setup_compute(self):
        a = self.a
        T = self.V_T
        a(f"s_lshr_b32 s{S_WM}, s{S_W}, 1")
        a(f"s_and_b32 s{S_WN}, s{S_W}, 1")
        a(f"v_and_b32 v{T}, 31, v1")
        a(f"s_lshl_b32 s{S_T0}, s{S_WM}, 6")
        a(f"v_add_u32 v{T+1}, s{S_T0}, v{T}")
        a(f"v_lshlrev_b32 v{T+1}, 7, v{T+1}")
        a(f"v_bfe_u32 v{T+2}, v{T}, 1, 3")
        a(f"v_lshrrev_b32 v{T+3}, 5, v1")
        a(f"v_xor_b32 v{T+2}, v{T+2}, v{T+3}")
        for j in range(4):
            a(f"v_xor_b32 v{self.V_AA+j}, {2*j}, v{T+2}")
            a(f"v_lshlrev_b32 v{self.V_AA+j}, 4, v{self.V_AA+j}")
            a(f"v_add_u32 v{self.V_AA+j}, v{self.V_AA+j}, v{T+1}")
        a(f"v_and_b32 v{T+4}, 15, v1")
        a(f"v_lshrrev_b32 v{T+5}, 2, v{T+4}")
        a(f"v_lshlrev_b32 v{T+6}, 3, v{T+3}")
        a(f"v_add_u32 v{T+6}, v{T+6}, v{T+5}")
        a(f"v_lshlrev_b32 v{T+6}, 8, v{T+6}")
        a(f"v_bfe_u32 v{T+7}, v1, 4, 1")
        a(f"v_lshlrev_b32 v{T+7}, 1, v{T+7}")
        a(f"v_bfe_u32 v{T+8}, v1, 1, 1")
        a(f"v_add_u32 v{T+7}, v{T+7}, v{T+8}")
        a(f"s_lshl_b32 s{S_T0}, s{S_WN}, 3")
        a(f"s_lshl_b32 s{S_T1}, s{S_WM}, 2")
        a(f"s_add_u32 s{S_T0}, s{S_T0}, s{S_T1}")
        a(f"v_add_u32 v{T+7}, s{S_T0}, v{T+7}")
        a(f"v_lshlrev_b32 v{T+5}, 2, v{T+5}")
        a(f"v_xor_b32 v{T+7}, v{T+7}, v{T+5}")
        a(f"v_lshlrev_b32 v{T+7}, 4, v{T+7}")
        a(f"v_and_b32 v{T+8}, 1, v1")
        a(f"v_lshlrev_b32 v{T+8}, 3, v{T+8}")
        a(f"v_add_u32 v{T+6}, v{T+6}, v{T+7}")
        a(f"v_add_u32 v{T+6}, v{T+6}, v{T+8}")
        a(f"v_add_u32 v{self.V_AWA}, 16384, v{T+6}")
        a(f"v_xor_b32 v{self.V_AWB}, 64, v{self.V_AWA}")
        a(f"v_and_b32 v{T}, 15, v1")
        a(f"v_bfe_u32 v{T+1}, v1, 4, 1")
        a(f"v_cmp_eq_u32 vcc, v{T}, v{T+1}")
        a(f"v_mov_b32 v{T+2}, 0x3f803f80")
        a(f"s_nop 1")
        a(f"v_cndmask_b32 v{self.V_CSA}, 0, v{T+2}, vcc")
        for r in range(1, 4):
            a(f"v_mov_b32 v{self.V_CSA+r}, v{self.V_CSA}")
        for r in range(4):
            a(f"v_mov_b32 v{self.V_CSD+r}, 0")
        for r in range(64):
            a(f"v_mov_b32 v{self.V_ACC+r}, 0")

    def g1_read1(self, j, q):
        if "noreads" in self.opt: return
        a = self.a
        F = self.V_FR + 16*j
        if q == 0: a(f"ds_read_b128 v[{F}:{F+3}], v{self.V_AA+j}")
        elif q == 1: a(f"ds_read_b128 v[{F+4}:{F+7}], v{self.V_AA+j} offset:4096")
        else:
            ad = self.V_AWA if q == 2 else self.V_AWB
            R = F + 8 + 4*(q-2)
            a(f"ds_read_b64_tr_b16 v[{R}:{R+1}], v{ad} offset:{4096*j}")
            a(f"ds_read_b64_tr_b16 v[{R+2}:{R+3}], v{ad} offset:{4096*j+1024}")

    def g1_mfma1(self, j, orient, tt, q):
        if "nomfma" in self.opt: return
        a = self.a
        F = self.V_FR + 16*j
        X = f"v[{F+4*tt}:{F+4*tt+3}]"; W = f"v[{F+8+4*q}:{F+11+4*q}]"
        A = self.V_ACC + 16*(2*tt+q)
        D = f"v[{A}:{A+15}]"
        if orient == "T": a(f"v_mfma_f32_32x32x16_bf16 {D}, {W}, {X}, {D}")
        else:             a(f"v_mfma_f32_32x32x16_bf16 {D}, {X}, {W}, {D}")

    def g1_colsum(self, j):
        if "nostats" in self.opt: return
        F = self.V_FR + 16*j; D = self.V_CSD
        self.a(f"v_mfma_f32_16x16x32_bf16 v[{D}:{D+3}], v[{self.V_CSA}:{self.V_CSA+3}], v[{F+8}:{F+11}], v[{D}:{D+3}]")

    def g1_adv(self):
        a = self.a
        for r in list(range(self.V_AA, self.V_AA+4)) + [self.V_AWA, self.V_AWB]:
            a(f"v_add_u32 v{r}, s{S_DELTA}, v{r}")

    def g1_cstep(self, j, orient, with_reads):
        a = self.a
        self.g1_mfma1(j, orient, 0, 0)
        self.g1_colsum(j)
        self.g1_mfma1(j, orient, 1, 0)
        if with_reads: self.g1_read1(j, 2)
        self.g1_mfma1(j, orient, 0, 1)
        if with_reads: self.g1_read1(j, 0)
        self.g1_mfma1(j, orient, 1, 1)
        if with_reads:
            self.g1_read1(j, 1); self.g1_read1(j, 3)

    def g1_compute(self, orient, tag):
        a = self.a
        self.g1_setup_compute()
        a(f"s_barrier")
        self.stamp(self.st1)
        for j in range(4):
            for q in range(4): self.g1_read1(j, q)
        a(f"s_mov_b32 s{S_DELTA}, 32768")
        self.g1_adv()
        a(f"s_mov_b32 s{S_CNT}, 0")
        a(f"s_mov_b32 s{S_RSLOT}, 0")
        L1 = f"L_{tag}_cloop"
        a.put(L1)
        a(f"s_waitcnt lgkmcnt(12)")
        self.g1_cstep(0, orient, False)
        a(f"s_add_u32 s{S_CNT}, s{S_CNT}, 1")
        self.slot_next()
        a(f"s_barrier")
        for q in (2, 0, 1, 3): self.g1_read1(0, q)
        self.g1_cstep(1, orient, True)
        a(f"s_waitcnt lgkmcnt(12)")
        self.g1_cstep(2, orient, True)
        self.g1_cstep(3, orient, True)
        self.g1_adv()
        a(f"s_cmp_lt_u32 s{S_CNT}, 10")
        a(f"s_cbranch_scc1 {L1}")
        a(f"s_waitcnt lgkmcnt(0)")
        T = self.V_T
        a(f"s_lshl_b32 s{S_T0}, s{S_WN}, 8")
        a(f"s_lshl_b32 s{S_T1}, s{S_WM}, 7")
        a(f"s_add_u32 s{S_T0}, s{S_T0}, s{S_T1}")
        a(f"s_add_u32 s{S_T0}, s{S_T0}, {LDS_STATS+ST_CS}")
        a(f"v_lshlrev_b32 v{T}, 2, v1")
        a(f"v_add_u32 v{T}, s{S_T0}, v{T}")
        a(f"s_nop 4")
        a(f"s_mov_b64 exec, 0xffff")
        a(f"ds_write_b32 v{T}, v{self.V_CSD}")
        a(f"ds_write_b32 v{T}, v{self.V_CSD+1} offset:64")
        a(f"s_mov_b64 exec, -1")
        a(f"s_waitcnt lgkmcnt(0)")
        a(f"s_barrier")

    def magic_div5(self, dst, src):
        self.a(f"v_mul_u32_u24 v{dst}, 52429, v{src}")
        self.a(f"v_lshrrev_b32 v{dst}, 18, v{dst}")
    def magic_div20(self, dst, src):
        self.a(f"v_mul_u32_u24 v{dst}, 52429, v{src}")
        self.a(f"v_lshrrev_b32 v{dst}, 20, v{dst}")

    def epi_T_common(self):
        a = self.a
        T = self.V_T; CSR = self.V_FR
        a(f"v_and_b32 v{T}, 31, v1")
        a(f"s_lshl_b32 s{S_T0}, s{S_WM}, 6")
        a(f"v_add_u32 v{T+1}, s{S_T0}, v{T}")
        a(f"v_lshlrev_b32 v{T+1}, 2, v{T+1}")
        a(f"v_add_u32 v{T+1}, {LDS_STATS}, v{T+1}")
        a(f"ds_read_b32 v{T+2}, v{T+1} offset:{ST_AA}")
        a(f"ds_read_b32 v{T+3}, v{T+1} offset:{ST_BB}")
        a(f"ds_read_b32 v{T+4}, v{T+1} offset:{ST_AA+128}")
        a(f"ds_read_b32 v{T+5}, v{T+1} offset:{ST_BB+128}")
        a(f"v_lshrrev_b32 v{T+6}, 5, v1")
        a(f"s_lshl_b32 s{S_T0}, s{S_WN}, 8")
        a(f"s_lshl_b32 s{S_T1}, s{S_WM}, 7")
        a(f"s_add_u32 s{S_T0}, s{S_T0}, s{S_T1}")
        a(f"s_add_u32 s{S_T0}, s{S_T0}, {LDS_STATS+ST_CS}")
        a(f"v_lshlrev_b32 v{T+7}, 4, v{T+6}")
        a(f"v_add_u32 v{T+7}, s{S_T0}, v{T+7}")
        a(f"v_xor_b32 v{T+1}, 128, v{T+7}")
        for g in range(4):
            a(f"ds_read_b128 v[{CSR+4*g}:{CSR+4*g+3}], v{T+7} offset:{32*g}")
        for g in range(4):
            a(f"ds_read_b128 v[{CSR+16+4*g}:{CSR+16+4*g+3}], v{T+1} offset:{32*g}")

    def p1_epi_T(self):
        a = self.a
        T = self.V_T; A = self.V_ACC; CSR = self.V_FR
        self.epi_T_common()
        a(f"s_cmp_lt_u32 s{S_NT}, 5")
        a(f"s_cselect_b32 s{S_T0}, {hex(f32(math.log2(math.e)/math.sqrt(20.0)))}, 1.0")
        self.csel(S_T1, 81920, 163840)
        self.csel(S_T2, 1280, 2560)
        a(f"s_cselect_b32 s{S_T3}, 0, 5")
        self.csel(S_T4, hex(OFF_Q), hex(OFF_KV))
        self.csel(S_T5, hex(SZ_Q), hex(SZ_KV))
        a(f"s_add_u32 s{SRD_O}, s{S_WS}, s{S_T4}")
        a(f"s_addc_u32 s{SRD_O+1}, s{S_WS+1}, 0")
        a(f"s_mov_b32 s{SRD_O+2}, s{S_T5}")
        a(f"s_mov_b32 s{SRD_O+3}, 0x20000")
        a(f"s_sub_u32 s{S_T3}, s{S_NT}, s{S_T3}")
        a(f"s_lshl_b32 s{S_T3}, s{S_T3}, 5")
        a(f"s_lshl_b32 s{S_T4}, s{S_WN}, 4")
        a(f"s_add_u32 s{S_T3}, s{S_T3}, s{S_T4}")
        a(f"s_lshl_b32 s{S_T4}, s{S_WM}, 3")
        AD = T + 8
        for q in range(2):
            for g in range(4):
                if q == 0:
                    a(f"s_add_u32 s{S_T5}, s{S_T3}, s{S_T4}")
                else:
                    a(f"s_xor_b32 s{S_T5}, s{S_T4}, 8")
                    a(f"s_add_u32 s{S_T5}, s{S_T5}, s{S_T3}")
                a(f"s_add_u32 s{S_T5}, s{S_T5}, {2*g}")
                a(f"v_add_u32 v{T+16}, s{S_T5}, v{T+6}")
                self.magic_div5(T+17, T+16)
                a(f"v_mul_u32_u24 v{T+18}, 5, v{T+17}")
                a(f"v_sub_u32 v{T+18}, v{T+16}, v{T+18}")
                a(f"v_mul_lo_u32 v{T+17}, v{T+17}, s{S_T1}")
                a(f"v_lshlrev_b32 v{T+18}, 8, v{T+18}")
                a(f"v_add_u32 v{T+17}, v{T+17}, v{T+18}")
                a(f"v_lshl_add_u32 v{AD+4*q+g}, v{T}, 3, v{T+17}")
        a(f"s_lshl_b32 s{S_T4}, s{S_MT}, 2")
        a(f"s_lshl_b32 s{S_T5}, s{S_WM}, 1")
        a(f"s_add_u32 s{S_T4}, s{S_T4}, s{S_T5}")
        a(f"s_mul_i32 s{S_T4}, s{S_T4}, s{S_T2}")
        a(f"s_add_u32 s{S_T5}, s{S_T4}, s{S_T2}")
        a(f"s_waitcnt lgkmcnt(0)")
        for tt in range(2):
            a(f"v_mul_f32 v{T+2+2*tt}, s{S_T0}, v{T+2+2*tt}")
            a(f"v_mul_f32 v{T+3+2*tt}, s{S_T0}, v{T+3+2*tt}")
        for tt in range(2):
            for q in range(2):
                for g in range(4):
                    for i in range(4):
                        r = A + 16*(2*tt+q) + 4*g + i
                        a(f"v_mul_f32 v{r}, v{T+2+2*tt}, v{r}")
                        a(f"v_fmac_f32 v{r}, v{T+3+2*tt}, v{CSR+16*q+4*g+i}")
                    r = A + 16*(2*tt+q) + 4*g
                    a(f"v_cvt_pk_bf16_f32 v{r}, v{r}, v{r+1}")
                    a(f"v_cvt_pk_bf16_f32 v{r+1}, v{r+2}, v{r+3}")
                    a(f"buffer_store_dwordx2 v[{r}:{r+1}], v{AD+4*q+g}, s[{SRD_O}:{SRD_O+3}], s{S_T4+tt} offen sc1")

    def p1_epi_N(self):
        a = self.a
        T = self.V_T; A = self.V_ACC
        AB = self.V_FR; BB = self.V_FR + 16
        a(f"v_and_b32 v{T}, 31, v1")
        a(f"v_lshrrev_b32 v{T+6}, 5, v1")
        a(f"s_lshl_b32 s{S_T0}, s{S_WM}, 8")
        a(f"v_lshlrev_b32 v{T+4}, 4, v{T+6}")
        a(f"v_add_u32 v{T+4}, s{S_T0}, v{T+4}")
        a(f"v_add_u32 v{T+4}, {LDS_STATS}, v{T+4}")
        a(f"s_mov_b32 s{S_T2}, 163840")
        for q in range(2):
            a(f"s_xor_b32 s{S_T0}, s{S_WM}, {q}")
            a(f"s_lshl_b32 s{S_T0}, s{S_T0}, 5")
            a(f"s_lshl_b32 s{S_T1}, s{S_WN}, 6")
            a(f"s_add_u32 s{S_T0}, s{S_T0}, s{S_T1}")
            a(f"v_add_u32 v{T+1}, s{S_T0}, v{T}")
            a(f"v_lshlrev_b32 v{T+2}, 2, v{T+1}")
            a(f"v_add_u32 v{T+2}, {LDS_STATS+ST_CS}, v{T+2}")
            a(f"ds_read_b32 v{T+10+q}, v{T+2}")
            a(f"s_sub_u32 s{S_T1}, s{S_NT}, 10")
            a(f"s_lshl_b32 s{S_T1}, s{S_T1}, 7")
            a(f"v_add_u32 v{T+7}, s{S_T1}, v{T+1}")
            self.magic_div20(T+8, T+7)
            a(f"v_mul_u32_u24 v{T+9}, 20, v{T+8}")
            a(f"v_sub_u32 v{T+9}, v{T+7}, v{T+9}")
            a(f"v_mul_lo_u32 v{T+8}, v{T+8}, s{S_T2}")
            a(f"v_lshlrev_b32 v{T+9}, 4, v{T+9}")
            a(f"v_add_u32 v{T+8}, v{T+8}, v{T+9}")
            a(f"v_mul_u32_u24 v{T+9}, 320, v{T+6}")
            a(f"v_add_u32 v{T+8}, v{T+8}, v{T+9}")
            a(f"v_add_u32 v{T+12+q}, 1280, v{T+8}")
        self.srd(SRD_O, S_WS, OFF_KV, SZ_KV)
        a(f"s_lshl_b32 s{S_T4}, s{S_MT}, 2")
        a(f"s_lshl_b32 s{S_T5}, s{S_WM}, 1")
        a(f"s_add_u32 s{S_T4}, s{S_T4}, s{S_T5}")
        a(f"s_mul_i32 s{S_T4}, s{S_T4}, 2560")
        a(f"s_add_u32 s{S_T5}, s{S_T4}, 2560")
        for tt in range(2):
            for g in range(4):
                a(f"ds_read_b128 v[{AB+4*g}:{AB+4*g+3}], v{T+4} offset:{ST_AA + 128*tt + 32*g}")
                a(f"ds_read_b128 v[{BB+4*g}:{BB+4*g+3}], v{T+4} offset:{ST_BB + 128*tt + 32*g}")
            a(f"s_waitcnt lgkmcnt(0)")
            for q in range(2):
                for r in range(16):
                    R = A + 16*(2*tt+q) + r
                    a(f"v_mul_f32 v{R}, v{AB+r}, v{R}")
                    a(f"v_fmac_f32 v{R}, v{BB+r}, v{T+10+q}")
                for st in range(2):
                    R = A + 16*(2*tt+q) + 8*st
                    for z in range(4):
                        a(f"v_cvt_pk_bf16_f32 v{R+z}, v{R+2*z}, v{R+2*z+1}")
                    a(f"buffer_store_dwordx4 v[{R}:{R+3}], v{T+12+q}, s[{SRD_O}:{SRD_O+3}], s{S_T4+tt} offen offset:{640*st} sc1")

    def relayout_unit(self):
        pass

    def relayout_load(self):
        a = self.a
        T = self.V_T
        Lskip = "L_rl_skip1"
        a(f"s_mul_i32 s{S_T0}, s2, 3")
        a(f"s_sub_u32 s{S_T5}, s{S_W}, 4")
        a(f"s_add_u32 s{S_T0}, s{S_T0}, s{S_T5}")
        a(f"s_cmp_ge_u32 s{S_T5}, 3")
        a(f"s_cbranch_scc1 {Lskip}")
        a(f"s_cmp_ge_u32 s{S_T0}, 740")
        a(f"s_cbranch_scc1 {Lskip}")
        a(f"s_cmp_lt_u32 s{S_T0}, 540")
        a(f"s_cselect_b32 s{S_T1}, 0, 540")
        a(f"s_cselect_b32 s{SRD_T}, s{S_W2}, s{S_WO}")
        a(f"s_cselect_b32 s{SRD_T+1}, s{S_W2+1}, s{S_WO+1}")
        self.csel(SRD_T+2, 1728*1280, 640*1280)
        a(f"s_mov_b32 s{SRD_T+3}, 0x20000")
        a(f"s_sub_u32 s{S_T1}, s{S_T0}, s{S_T1}")
        a(f"s_mul_hi_u32 s{S_T2}, s{S_T1}, {hex((2**32+9)//10)}")
        a(f"s_mul_i32 s{S_T3}, s{S_T2}, 10")
        a(f"s_sub_u32 s{S_T3}, s{S_T1}, s{S_T3}")
        a(f"v_lshrrev_b32 v{T}, 3, v1")
        a(f"v_mul_u32_u24 v{T}, 1280, v{T}")
        a(f"v_and_b32 v{T+1}, 7, v1")
        a(f"v_lshl_add_u32 v{T}, v{T+1}, 4, v{T}")
        a(f"s_mul_i32 s{S_T2}, s{S_T2}, {32*1280}")
        a(f"s_lshl_b32 s{S_T3}, s{S_T3}, 7")
        a(f"s_add_u32 s{S_T2}, s{S_T2}, s{S_T3}")
        a(f"s_lshl_b32 s{S_T3}, s{S_T5}, 12")
        a(f"s_add_u32 m0, s{S_T3}, {LDS_RL}")
        for jj in range(4):
            a(f"s_nop 0")
            a(f"buffer_load_dwordx4 v{T}, s[{SRD_T}:{SRD_T+3}], s{S_T2} offen lds")
            if jj < 3:
                a(f"s_add_u32 m0, m0, 1024")
                a(f"s_add_u32 s{S_T2}, s{S_T2}, {8*1280}")
        a.put(Lskip)

    def relayout_store(self):
        a = self.a
        T = self.V_T
        Lskip = "L_rl_skip2"
        a(f"s_mul_i32 s{S_T0}, s2, 3")
        a(f"s_sub_u32 s{S_RLW}, s{S_W}, 4")
        a(f"s_add_u32 s{S_T0}, s{S_T0}, s{S_RLW}")
        a(f"s_cmp_ge_u32 s{S_RLW}, 3")
        a(f"s_cbranch_scc1 {Lskip}")
        a(f"s_cmp_ge_u32 s{S_T0}, 740")
        a(f"s_cbranch_scc1 {Lskip}")
        a(f"s_cmp_lt_u32 s{S_T0}, 540")
        a(f"s_cselect_b32 s{S_T1}, 0, 540")
        self.csel(S_T4, hex(OFF_W2P), hex(OFF_WOP))
        self.csel(S_T5, hex(SZ_W2P), hex(SZ_WOP))
        a(f"s_sub_u32 s{S_T1}, s{S_T0}, s{S_T1}")
        a(f"s_add_u32 s{SRD_T}, s{S_WS}, s{S_T4}")
        a(f"s_addc_u32 s{SRD_T+1}, s{S_WS+1}, 0")
        a(f"s_mov_b32 s{SRD_T+2}, s{S_T5}")
        a(f"s_mov_b32 s{SRD_T+3}, 0x20000")
        a(f"s_mul_hi_u32 s{S_T2}, s{S_T1}, {hex((2**32+9)//10)}")
        a(f"s_mul_i32 s{S_T3}, s{S_T2}, 10")
        a(f"s_sub_u32 s{S_T3}, s{S_T1}, s{S_T3}")
        a(f"s_mul_i32 s{S_T2}, s{S_T2}, 40")
        a(f"s_lshl_b32 s{S_T3}, s{S_T3}, 2")
        a(f"s_add_u32 s{S_T2}, s{S_T2}, s{S_T3}")
        a(f"s_lshl_b32 s{S_T2}, s{S_T2}, 10")
        a(f"v_lshrrev_b32 v{T}, 4, v1")
        a(f"v_lshlrev_b32 v{T}, 3, v{T}")
        a(f"v_bfe_u32 v{T+1}, v1, 2, 2")
        a(f"v_add_u32 v{T}, v{T}, v{T+1}")
        a(f"v_lshlrev_b32 v{T}, 7, v{T}")
        a(f"v_and_b32 v{T+1}, 3, v1")
        a(f"v_lshl_add_u32 v{T}, v{T+1}, 3, v{T}")
        a(f"s_lshl_b32 s{S_T3}, s{S_RLW}, 12")
        a(f"s_add_u32 s{S_T3}, s{S_T3}, {LDS_RL}")
        a(f"v_add_u32 v{T}, s{S_T3}, v{T}")
        a(f"v_lshlrev_b32 v{T+1}, 4, v1")
        O = T + 4
        for tq in range(4):
            a(f"ds_read_b64_tr_b16 v[{O+4*tq}:{O+4*tq+1}], v{T} offset:{32*tq}")
            a(f"ds_read_b64_tr_b16 v[{O+4*tq+2}:{O+4*tq+3}], v{T} offset:{32*tq+512}")
        a(f"s_waitcnt lgkmcnt(0)")
        for tq in range(4):
            a(f"buffer_store_dwordx4 v[{O+4*tq}:{O+4*tq+3}], v{T+1}, s[{SRD_T}:{SRD_T+3}], s{S_T2} offen offset:{1024*tq} sc1")
        a.put(Lskip)

    def p1(self):
        a = self.a
        a(f"s_and_b32 s{S_T0}, s{S_GX}, 3")
        a(f"s_lshl_b32 s{S_T0}, s{S_T0}, 2")
        a(f"s_and_b32 s{S_T1}, s{S_GI}, 3")
        a(f"s_add_u32 s{S_MT}, s{S_T0}, s{S_T1}")
        a(f"s_lshr_b32 s{S_T0}, s{S_GX}, 2")
        a(f"s_lshl_b32 s{S_T0}, s{S_T0}, 3")
        a(f"s_lshr_b32 s{S_T2}, s{S_GI}, 2")
        a(f"s_add_u32 s{S_NT}, s{S_T0}, s{S_T2}")
        a(f"s_mul_i32 s{S_T1}, s{S_T1}, 3")
        a(f"s_add_u32 s{S_KK}, s{S_T1}, s{S_T2}")
        a(f"s_cmp_ge_u32 s{S_KK}, 10")
        a(f"s_cselect_b32 s{S_T0}, 10, 0")
        a(f"s_sub_u32 s{S_KK}, s{S_KK}, s{S_T0}")
        self.aux_A = ""
        self.st1 = 1
        a(f"s_cmp_lt_u32 s{S_W}, 4")
        a(f"s_cbranch_scc1 L_p1_compute")
        self.g1_setup_loader(3840)
        a(f"s_waitcnt lgkmcnt(0)")
        self.srd(SRD_A, S_X, 0, 2048*1280)
        self.srd(SRD_W, S_WQKV, 0, 640*3840)
        a(f"s_cmp_ge_u32 s{S_NT}, 15")
        a(f"s_cbranch_scc1 L_p1_null0")
        self.g1_dma_stage(3840)
        a.put("L_p1_null0")
        self.relayout_load()
        a(f"s_load_dword s{S_TAG}, s[{S_WS}:{S_WS+1}], {OFF_EPOCH}")
        self.srd(SRD_F, S_WS, 0, 0x100000)
        a(f"s_cmp_ge_u32 s{S_NT}, 15")
        a(f"s_cbranch_scc1 L_p1_lnull")
        for s_ in range(self.NSLOT - 2):
            self.g1_dma_stage(3840)
        a(f"s_waitcnt lgkmcnt(0)")
        self.g1_loader(3840, "p1")
        a.put("L_p1_lnull")
        a(f"s_waitcnt vmcnt(0)")
        self.relayout_store()
        a(f"s_branch L_p1_done")
        a.put("L_p1_compute")
        a(f"s_waitcnt lgkmcnt(0)")
        a(f"s_load_dword s{S_TAG}, s[{S_WS}:{S_WS+1}], {OFF_EPOCH}")
        self.srd(SRD_F, S_WS, 0, 0x100000)
        a(f"s_cmp_ge_u32 s{S_NT}, 15")
        a(f"s_cbranch_scc1 L_p1_done")
        a(f"s_cmp_ge_u32 s{S_NT}, 10")
        a(f"s_cbranch_scc1 L_p1_N")
        self.g1_compute("T", "p1T")
        self.stamp(2)
        self.p1_epi_T()
        a(f"s_branch L_p1_done")
        a.put("L_p1_N")
        self.g1_compute("N", "p1N")
        self.stamp(2)
        self.p1_epi_N()
        a.put("L_p1_done")
        self.stamp(3)
        a(f"s_waitcnt vmcnt(0)")
        self.stamp(4)

    def poll(self, addr_regs, masks, tagname):
        a = self.a
        T = self.V_T
        L = f"L_{tagname}_poll"; Lo = f"L_{tagname}_pollok"
        a(f"s_mov_b32 s{S_T0}, 0")
        a.put(L)
        for k, (ar, mk) in enumerate(zip(addr_regs, masks)):
            self.set_exec(mk)
            a(f"buffer_load_dword v{T+20+k}, v{ar}, s[{SRD_F}:{SRD_F+3}], 0 offen sc1")
        a(f"s_waitcnt vmcnt(0)")
        a(f"s_mov_b64 s[{S_SAVE}:{S_SAVE+1}], 0")
        for k, (ar, mk) in enumerate(zip(addr_regs, masks)):
            self.set_exec(mk)
            a(f"v_cmp_ne_u32 vcc, s{S_TAG}, v{T+20+k}")
            a(f"s_or_b64 s[{S_SAVE}:{S_SAVE+1}], s[{S_SAVE}:{S_SAVE+1}], vcc")
        a(f"s_mov_b64 exec, -1")
        a(f"s_cmp_eq_u64 s[{S_SAVE}:{S_SAVE+1}], 0")
        a(f"s_cbranch_scc1 {Lo}")
        a(f"s_add_u32 s{S_T0}, s{S_T0}, 1")
        a(f"s_cmp_lt_u32 s{S_T0}, 0x40000")
        a(f"s_cbranch_scc1 {L}")
        a.put(Lo)

    def p1_signal(self):
        a = self.a
        T = self.V_T
        a(f"s_waitcnt vmcnt(0) lgkmcnt(0)")
        a(f"s_barrier")
        self.finish_tag_once()
        Ls = "L_p1sig_skip"
        a(f"s_cmp_lg_u32 s{S_W}, 0")
        a(f"s_cbranch_scc1 {Ls}")
        a(f"v_lshrrev_b32 v{T}, 3, v1")
        a(f"v_and_b32 v{T+1}, 7, v1")
        Ln = "L_p1sig_null"; Lj = "L_p1sig_join"
        a(f"s_cmp_eq_u32 s{S_NT}, 15")
        a(f"s_cbranch_scc1 {Ln}")
        a(f"s_cmp_ge_u32 s{S_NT}, 10")
        a(f"s_cselect_b32 s{S_T0}, 10, 5")
        a(f"s_cmp_lt_u32 s{S_NT}, 5")
        a(f"s_cselect_b32 s{S_T0}, 0, s{S_T0}")
        a(f"s_sub_u32 s{S_T0}, s{S_NT}, s{S_T0}")
        a(f"s_lshl_b32 s{S_T0}, s{S_T0}, 7")
        a(f"s_mul_i32 s{S_T1}, s{S_T0}, 52429")
        a(f"s_lshr_b32 s{S_T1}, s{S_T1}, 20")
        a(f"s_add_u32 s{S_T2}, s{S_T0}, 127")
        a(f"s_mul_i32 s{S_T2}, s{S_T2}, 52429")
        a(f"s_lshr_b32 s{S_T2}, s{S_T2}, 20")
        a(f"s_min_u32 s{S_T2}, s{S_T2}, 31")
        a(f"v_add_u32 v{T+2}, s{S_T1}, v{T}")
        a(f"v_cmp_ge_u32 vcc, s{S_T2}, v{T+2}")
        a(f"s_mov_b64 s[{S_SAVE}:{S_SAVE+1}], vcc")
        a(f"s_cmp_lt_u32 s{S_NT}, 5")
        a(f"s_cbranch_scc0 {Lj}")
        a(f"s_lshr_b32 s{S_T3}, s{S_MT}, 1")
        a(f"v_cmp_eq_u32 vcc, s{S_T3}, v{T+1}")
        a(f"s_and_b64 s[{S_SAVE}:{S_SAVE+1}], s[{S_SAVE}:{S_SAVE+1}], vcc")
        a(f"s_branch {Lj}")
        a.put(Ln)
        a(f"v_lshlrev_b32 v{T+2}, 4, v{T}")
        a(f"v_add_u32 v{T+2}, s{S_MT}, v{T+2}")
        a(f"v_cmp_gt_u32 vcc, 2, v{T}")
        a(f"s_mov_b64 s[{S_SAVE}:{S_SAVE+1}], vcc")
        a.put(Lj)
        a(f"v_lshl_add_u32 v{T+2}, v{T+2}, 3, v{T+1}")
        a(f"v_lshlrev_b32 v{T+2}, 10, v{T+2}")
        a(f"s_lshl_b32 s{S_T0}, s2, 2")
        a(f"s_add_u32 s{S_T0}, s{S_T0}, {OFF_MB1}")
        a(f"v_add_u32 v{T+2}, s{S_T0}, v{T+2}")
        a(f"v_mov_b32 v{T+3}, s{S_TAG}")
        a(f"s_mov_b64 exec, s[{S_SAVE}:{S_SAVE+1}]")
        a(f"buffer_store_dword v{T+3}, v{T+2}, s[{SRD_F}:{SRD_F+3}], 0 offen sc1")
        a(f"s_mov_b64 exec, -1")
        a.put(Ls)

    def finish_tag_once(self):
        a = self.a
        a(f"s_mul_i32 s{S_TAG}, s{S_TAG}, 0x9E3779B1")
        a(f"s_add_u32 s{S_TAG}, s{S_TAG}, 0x7F4A7C15")

    def p2_wait(self):
        a = self.a
        T = self.V_T
        Ls = "L_p2w_skip"
        a(f"s_cmp_lg_u32 s{S_W}, 0")
        a(f"s_cbranch_scc1 {Ls}")
        a(f"s_mul_i32 s{S_T1}, s{S_GI}, 20")
        a(f"v_bfe_u32 v{T}, v1, 4, 1")
        a(f"v_mul_u32_u24 v{T}, 19, v{T}")
        a(f"v_add_u32 v{T}, s{S_T1}, v{T}")
        a(f"v_lshrrev_b32 v{T}, 7, v{T}")
        a(f"v_lshrrev_b32 v{T+1}, 5, v1")
        a(f"v_mul_u32_u24 v{T+1}, 5, v{T+1}")
        a(f"v_add_u32 v{T+2}, v{T}, v{T+1}")
        a(f"v_add_u32 v{T+2}, 5, v{T+2}")
        a(f"v_and_b32 v{T+3}, 15, v1")
        self.vprod(T+4, T+3, T+2, T+8)
        a(f"v_bfe_u32 v{T}, v1, 1, 1")
        a(f"v_mul_u32_u24 v{T}, 19, v{T}")
        a(f"v_add_u32 v{T}, s{S_T1}, v{T}")
        a(f"v_lshrrev_b32 v{T+2}, 7, v{T}")
        a(f"v_and_b32 v{T+3}, 1, v1")
        a(f"s_lshl_b32 s{S_T2}, s{S_GX}, 1")
        a(f"v_add_u32 v{T+3}, s{S_T2}, v{T+3}")
        a(f"v_cmp_eq_u32 vcc, 4, v1")
        a(f"s_and_b32 s{S_T2}, s{S_GI}, 15")
        a(f"v_mov_b32 v{T+6}, s{S_T2}")
        a(f"v_mov_b32 v{T+7}, 15")
        a(f"v_cndmask_b32 v{T+3}, v{T+3}, v{T+6}, vcc")
        a(f"v_cndmask_b32 v{T+2}, v{T+2}, v{T+7}, vcc")
        self.vprod(T+5, T+3, T+2, T+8)
        a(f"s_lshl_b32 s{S_T2}, s2, 10")
        a(f"s_add_u32 s{S_T2}, s{S_T2}, {OFF_MB1}")
        for r in (T+4, T+5):
            a(f"v_lshlrev_b32 v{r}, 2, v{r}")
            a(f"v_add_u32 v{r}, s{S_T2}, v{r}")
        self.poll([T+4, T+5], ["-1", "0x1f"], "p2w")
        a.put(Ls)
        a(f"s_barrier")

    def vprod(self, dst, mt, nt, tmp):
        a = self.a
        a(f"v_and_b32 v{dst}, 3, v{mt}")
        a(f"v_and_b32 v{tmp}, 7, v{nt}")
        a(f"v_lshl_add_u32 v{dst}, v{tmp}, 2, v{dst}")
        a(f"v_lshlrev_b32 v{dst}, 3, v{dst}")
        a(f"v_lshrrev_b32 v{tmp}, 2, v{mt}")
        a(f"v_add_u32 v{dst}, v{dst}, v{tmp}")
        a(f"v_lshrrev_b32 v{tmp}, 3, v{nt}")
        a(f"v_lshl_add_u32 v{dst}, v{tmp}, 2, v{dst}")

    def group_barrier(self, phase, tagname):
        a = self.a
        T = self.V_T
        a(f"s_waitcnt vmcnt(0) lgkmcnt(0)")
        a(f"s_barrier")
        Ls = f"L_{tagname}_gskip"
        a(f"s_cmp_lg_u32 s{S_W}, 0")
        a(f"s_cbranch_scc1 {Ls}")
        a(f"s_lshl_b32 s{S_T0}, s{S_GX}, 8")
        a(f"s_add_u32 s{S_T0}, s{S_T0}, {OFF_GB + phase*2048}")
        a(f"s_lshl_b32 s{S_T1}, s{S_GI}, 2")
        a(f"s_add_u32 s{S_T1}, s{S_T1}, s{S_T0}")
        a(f"v_mov_b32 v{T}, s{S_T1}")
        a(f"v_mov_b32 v{T+1}, s{S_TAG}")
        a(f"s_mov_b64 exec, 1")
        a(f"buffer_store_dword v{T+1}, v{T}, s[{SRD_F}:{SRD_F+3}], 0 offen sc1")
        a(f"s_mov_b64 exec, -1")
        a(f"v_lshlrev_b32 v{T+2}, 2, v1")
        a(f"v_add_u32 v{T+2}, s{S_T0}, v{T+2}")
        self.poll([T+2], ["0xffffffff"], tagname)
        a.put(Ls)
        a(f"s_barrier")

    A_QA = 4; A_QB = 12
    A_K = 20
    A_V1 = 36; A_V2 = 40
    A_SA = 44; A_SB = 60; A_P = 76; A_OA = 84; A_OB = 100; A_AK = 116; A_AV = 117; A_DV = 118; A_T = 120
    S_VMASK = 92
    S_NEXTB = 94; S_DSO = 95

    def p2_kreads(self, kb, toff):
        a = self.a
        K = self.A_K + 8*kb
        a(f"ds_read_b64 v[{K}:{K+1}], v{self.A_AK} offset:{toff}")
        a(f"ds_read_b64 v[{K+2}:{K+3}], v{self.A_AK} offset:{toff+256}")
        a(f"ds_read_b64 v[{K+4}:{K+5}], v{self.A_AK} offset:{toff+1024}")
    def p2_vread(self, which, toff):
        a = self.a
        R = self.A_V1 if which == 0 else self.A_V2
        a(f"s_mov_b64 exec, s[{self.S_VMASK}:{self.S_VMASK+1}]")
        a(f"ds_read_b128 v[{R}:{R+3}], v{self.A_AV} offset:{toff+640*which}")
        a(f"s_mov_b64 exec, -1")
    def p2_smfma(self, which, S, kb, Q):
        a = self.a
        K = self.A_K + 8*kb
        if which == 0:
            a(f"v_mfma_f32_32x32x16_bf16 v[{S}:{S+15}], v[{K}:{K+3}], v[{Q}:{Q+3}], 0")
        else:
            a(f"v_mfma_f32_32x32x16_bf16 v[{S}:{S+15}], v[{K+4}:{K+7}], v[{Q+4}:{Q+7}], v[{S}:{S+15}]")

    def p2_sub(self, stream, u):
        a = self.a
        P = self.A_P
        Sc, Sn = (self.A_SA, self.A_SB) if stream == 0 else (self.A_SB, self.A_SA)
        Oc, Op = (self.A_OA, self.A_OB) if stream == 0 else (self.A_OB, self.A_OA)
        Qn = self.A_QB if stream == 0 else self.A_QA
        kb = u if stream == 0 else 1 - u
        ex = lambda i: a(f"v_exp_f32 v{Sc+i}, v{Sc+i}")
        cv = lambda k: a(f"v_cvt_pk_bf16_f32 v{P+k}, v{Sc+2*k}, v{Sc+2*k+1}")
        cvp = lambda k: a(f"v_cvt_pk_bf16_f32 v{P+k}, v{Sn+2*k}, v{Sn+2*k+1}")
        if "p2prio" in self.opt:
            a(f"s_setprio {self.prio_reg(stream)}")
        ex(0); cvp(6); ex(1); ex(2); cvp(7); ex(3)
        if stream == 1: a(f"s_waitcnt lgkmcnt(1)")
        self.p2_smfma(0, Sn, kb, Qn)
        ex(4); cv(0); ex(5); ex(6); cv(1); ex(7)
        self.p2_smfma(1, Sn, kb, Qn)
        if stream == 0:
            pass
        ex(8); cv(2); ex(9); ex(10); cv(3); ex(11)
        if stream == 1: a(f"s_waitcnt lgkmcnt(0)")
        a(f"v_mfma_f32_32x32x16_bf16 v[{Op}:{Op+15}], v[{self.A_V2}:{self.A_V2+3}], v[{P+4}:{P+7}], v[{Op}:{Op+15}]")
        if stream == 0:
            self.p2_vread(1, u*2560)
        ex(12); cv(4); ex(13); ex(14); cv(5); ex(15)
        if stream == 0: a(f"s_waitcnt lgkmcnt(1)")
        a(f"v_mfma_f32_32x32x16_bf16 v[{Oc}:{Oc+15}], v[{self.A_V1}:{self.A_V1+3}], v[{P}:{P+3}], v[{Oc}:{Oc+15}]")
        if stream == 1:
            self.p2_vread(0, (u+1)*2560)
            self.p2_kreads(u, (u+2)*2560)

    def prio_reg(self, stream):
        return self._prio[stream]

    def p2_dma(self, n):
        a = self.a
        for i in range(n):
            a(f"s_mov_b32 m0, s{self.S_DSO}")
            a(f"s_nop 0")
            a(f"buffer_load_dwordx4 v{self.A_DV}, s[{SRD_A}:{SRD_A+3}], s{self.S_DSO} offen sc1 lds")
            a(f"s_add_u32 s{self.S_DSO}, s{self.S_DSO}, 4096")

    def p2(self):
        a = self.a
        T = self.A_T
        self.stamp(5)
        self.p2_wait()
        self.stamp(6)
        a(f"s_mul_i32 s{S_T0}, s{S_GI}, 163840")
        a(f"s_add_u32 s{S_T0}, s{S_T0}, {hex(OFF_KV)}")
        a(f"s_add_u32 s{SRD_A}, s{S_WS}, s{S_T0}")
        a(f"s_addc_u32 s{SRD_A+1}, s{S_WS+1}, 0")
        a(f"s_mov_b32 s{SRD_A+2}, 163840")
        a(f"s_mov_b32 s{SRD_A+3}, 0x20000")
        a(f"s_lshl_b32 s{S_T0}, s{S_GI}, 6")
        a(f"s_lshl_b32 s{S_T1}, s{S_GX}, 3")
        a(f"s_add_u32 s{S_T0}, s{S_T0}, s{S_T1}")
        a(f"s_and_b32 s{S_T1}, s{S_W}, 3")
        a(f"s_lshl_b32 s{S_T1}, s{S_T1}, 1")
        a(f"s_add_u32 s{S_T0}, s{S_T0}, s{S_T1}")
        a(f"s_mul_i32 s{S_T0}, s{S_T0}, 1280")
        a(f"s_add_u32 s{S_T0}, s{S_T0}, {hex(OFF_Q)}")
        a(f"s_add_u32 s{SRD_W}, s{S_WS}, s{S_T0}")
        a(f"s_addc_u32 s{SRD_W+1}, s{S_WS+1}, 0")
        a(f"s_mov_b32 s{SRD_W+2}, 2560")
        a(f"s_mov_b32 s{SRD_W+3}, 0x20000")
        a(f"v_and_b32 v{T}, 31, v1")
        a(f"v_lshrrev_b32 v{T+1}, 5, v1")
        a(f"v_lshlrev_b32 v{T+2}, 3, v{T}")
        a(f"v_lshl_add_u32 v{self.A_AK}, v{T+1}, 9, v{T+2}")
        a(f"v_lshlrev_b32 v{T+3}, 12, v{T+1}")
        a(f"v_add_u32 v{T+3}, v{T+3}, v{T+2}")
        for qi, Q in enumerate((self.A_QA, self.A_QB)):
            a(f"buffer_load_dwordx2 v[{Q}:{Q+1}], v{self.A_AK}, s[{SRD_W}:{SRD_W+3}], 0 offen offset:{1280*qi} sc1")
            a(f"buffer_load_dwordx2 v[{Q+2}:{Q+3}], v{self.A_AK}, s[{SRD_W}:{SRD_W+3}], 0 offen offset:{1280*qi+256} sc1")
            a(f"buffer_load_dwordx2 v[{Q+4}:{Q+5}], v{T+3}, s[{SRD_W}:{SRD_W+3}], 0 offen offset:{1280*qi+1024} sc1")
        a(f"v_lshlrev_b32 v{self.A_DV}, 4, v1")
        a(f"s_lshr_b32 s{S_T0}, s{S_W}, 2")
        a(f"s_mul_i32 s{S_T0}, s{S_T0}, 81920")
        a(f"s_and_b32 s{S_T1}, s{S_W}, 3")
        a(f"s_lshl_b32 s{S_T1}, s{S_T1}, 10")
        a(f"s_add_u32 s{self.S_DSO}, s{S_T0}, s{S_T1}")
        self.p2_dma(7)
        for Q in (self.A_QA, self.A_QB):
            a(f"v_mov_b32 v{Q+6}, 0"); a(f"v_mov_b32 v{Q+7}, 0")
        for kb in range(2):
            a(f"v_mov_b32 v{self.A_K+8*kb+6}, 0"); a(f"v_mov_b32 v{self.A_K+8*kb+7}, 0")
        a(f"v_cmp_eq_u32 vcc, 20, v{T}")
        a(f"v_mov_b32 v{T+5}, 0x3f803f80")
        a(f"v_mul_u32_u24 v{T+6}, 320, v{T+1}")
        a(f"v_cndmask_b32 v{self.A_V1}, 0, v{T+5}, vcc")
        for r in range(1, 8):
            a(f"v_mov_b32 v{self.A_V1+r}, v{self.A_V1}")
        a(f"v_lshl_add_u32 v{self.A_AV}, v{T}, 4, v{T+6}")
        a(f"v_add_u32 v{self.A_AV}, 1280, v{self.A_AV}")
        a(f"v_add_u32 v{self.A_AK}, s{S_T0}, v{self.A_AK}")
        a(f"v_add_u32 v{self.A_AV}, s{S_T0}, v{self.A_AV}")
        a(f"s_mov_b32 s{self.S_VMASK}, 0xfffff")
        a(f"s_mov_b32 s{self.S_VMASK+1}, 0xfffff")
        for r in range(16):
            a(f"v_mov_b32 v{self.A_OA+r}, 0"); a(f"v_mov_b32 v{self.A_OB+r}, 0")
        for r in range(8):
            a(f"v_mov_b32 v{self.A_P+r}, 0")
        for r in range(12, 16):
            a(f"v_mov_b32 v{self.A_SB+r}, 0")
        a(f"s_waitcnt vmcnt(3)")
        a(f"s_barrier")
        self.stamp(7)
        self.p2_dma(2)
        self.p2_kreads(0, 0)
        self.p2_kreads(1, 2560)
        self.p2_vread(0, 0)
        self.p2_vread(1, 0)
        a(f"s_waitcnt lgkmcnt(0)")
        self.p2_smfma(0, self.A_SA, 0, self.A_QA); self.p2_smfma(1, self.A_SA, 0, self.A_QA)
        a(f"s_mov_b32 s{S_CNT}, 0")
        a(f"s_mov_b32 s{self.S_NEXTB}, 2")
        a(f"s_nop 7"); a(f"s_nop 3")
        self._prio = (1, 0)
        a.put("L_p2_loop")
        if "p2nobar" not in self.opt:
            a(f"s_cmp_eq_u32 s{S_CNT}, s{self.S_NEXTB}")
            a(f"s_cbranch_scc1 L_p2_wait")
        a.put("L_p2_back")
        if "p2prio" in self.opt:
            pass
        for u in range(2):
            self.p2_sub(0, u)
            self.p2_sub(1, u)
        a(f"v_add_u32 v{self.A_AK}, 5120, v{self.A_AK}")
        a(f"v_add_u32 v{self.A_AV}, 5120, v{self.A_AV}")
        a(f"s_add_u32 s{S_CNT}, s{S_CNT}, 1")
        a(f"s_cmp_lt_u32 s{S_CNT}, 16")
        a(f"s_cbranch_scc1 L_p2_loop")
        a(f"s_branch L_p2_done")
        a.put("L_p2_wait")
        plan = ((2, 2, 3), (4, 3, 2), (6, 2, 3), (8, 3, 2), (10, 2, 1), (12, 1, 0), (14, 0, 0))
        for (cnt, vm, nd) in plan:
            Ln = f"L_p2_w{cnt}"
            a(f"s_cmp_lg_u32 s{S_CNT}, {cnt}")
            a(f"s_cbranch_scc1 {Ln}")
            a(f"s_waitcnt vmcnt({vm})")
            a(f"s_barrier")
            self.p2_dma(nd)
            a(f"s_add_u32 s{self.S_NEXTB}, s{self.S_NEXTB}, 2")
            a(f"s_branch L_p2_back")
            a.put(Ln)
        a(f"s_branch L_p2_back")
        a.put("L_p2_done")
        P = self.A_P; SBr = self.A_SB
        a(f"s_waitcnt lgkmcnt(0)")
        a(f"v_cvt_pk_bf16_f32 v{P+6}, v{SBr+12}, v{SBr+13}")
        a(f"v_cvt_pk_bf16_f32 v{P+7}, v{SBr+14}, v{SBr+15}")
        a(f"s_nop 1")
        a(f"v_mfma_f32_32x32x16_bf16 v[{self.A_OB}:{self.A_OB+15}], v[{self.A_V2}:{self.A_V2+3}], v[{P+4}:{P+7}], v[{self.A_OB}:{self.A_OB+15}]")
        self.stamp(8)
        self.p2_epilogue()

    def p2_epilogue(self):
        a = self.a
        T = self.A_T
        a(f"s_nop 7"); a(f"s_nop 3")
        a(f"s_barrier")
        a(f"s_and_b32 s{S_T0}, s{S_W}, 3")
        a(f"s_lshr_b32 s{S_T1}, s{S_W}, 2")
        a(f"s_lshl_b32 s{S_T0}, s{S_T0}, 1")
        a(f"s_add_u32 s{S_T2}, s{S_T0}, s{S_T1}")
        a(f"s_xor_b32 s{S_T3}, s{S_T2}, 1")
        a(f"s_mul_i32 s{S_T2}, s{S_T2}, 3072")
        a(f"s_mul_i32 s{S_T3}, s{S_T3}, 3072")
        a(f"v_lshlrev_b32 v{T}, 4, v1")
        a(f"v_add_u32 v{T+1}, s{S_T2}, v{T}")
        a(f"v_add_u32 v{T+2}, s{S_T3}, v{T}")
        Lk1 = "L_p2e_k1"; Lj = "L_p2e_j"
        a(f"s_cmp_eq_u32 s{S_T1}, 1")
        a(f"s_cbranch_scc1 {Lk1}")
        for g in range(3):
            a(f"ds_write_b128 v{T+1}, v[{self.A_OB+4*g}:{self.A_OB+4*g+3}] offset:{1024*g}")
        a(f"s_branch {Lj}")
        a.put(Lk1)
        for g in range(3):
            a(f"ds_write_b128 v{T+1}, v[{self.A_OA+4*g}:{self.A_OA+4*g+3}] offset:{1024*g}")
        for r in range(12):
            a(f"v_mov_b32 v{self.A_OA+r}, v{self.A_OB+r}")
        a.put(Lj)
        a(f"s_waitcnt lgkmcnt(0)")
        a(f"s_barrier")
        O = self.A_OA; X = self.A_SA
        for g in range(3):
            a(f"ds_read_b128 v[{X+4*g}:{X+4*g+3}], v{T+2} offset:{1024*g}")
        a(f"s_waitcnt lgkmcnt(0)")
        for r in range(12):
            a(f"v_add_f32 v{O+r}, v{O+r}, v{X+r}")
        a(f"v_mov_b32 v{T}, v{O+8}")
        a(f"v_mov_b32 v{T+1}, v{O+8}")
        a(f"s_nop 1")
        a(f"v_permlane32_swap_b32 v{T}, v{T+1}")
        a(f"s_nop 1")
        a(f"v_rcp_f32 v{T+2}, v{T+1}")
        a(f"s_nop 0")
        for r in range(12):
            a(f"v_mul_f32 v{O+r}, v{T+2}, v{O+r}")
        for g in range(3):
            a(f"v_cvt_pk_bf16_f32 v{O+4*g}, v{O+4*g}, v{O+4*g+1}")
            a(f"v_cvt_pk_bf16_f32 v{O+4*g+1}, v{O+4*g+2}, v{O+4*g+3}")
        self.srd(SRD_O, S_WS, OFF_O, SZ_O)
        a(f"s_and_b32 s{S_T2}, s{S_W}, 3")
        a(f"s_lshr_b32 s{S_T3}, s{S_W}, 2")
        a(f"s_lshl_b32 s{S_T0}, s{S_GX}, 2")
        a(f"s_add_u32 s{S_T0}, s{S_T0}, s{S_T2}")
        a(f"s_mul_i32 s{S_T0}, s{S_T0}, 81920")
        a(f"s_lshl_b32 s{S_T1}, s{S_T3}, 11")
        a(f"s_add_u32 s{S_T0}, s{S_T0}, s{S_T1}")
        a(f"v_bfe_u32 v{T+3}, v1, 4, 1")
        a(f"v_lshlrev_b32 v{T+3}, 10, v{T+3}")
        a(f"v_and_b32 v{T+4}, 15, v1")
        a(f"v_lshl_add_u32 v{T+3}, v{T+4}, 4, v{T+3}")
        a(f"v_lshrrev_b32 v{T+5}, 5, v1")
        a(f"s_mul_i32 s{S_T1}, s{S_GI}, 20")
        for g in range(3):
            a(f"v_lshlrev_b32 v{T+6}, 2, v{T+5}")
            a(f"s_add_u32 s{S_T2}, s{S_T1}, {8*g}")
            a(f"v_add_u32 v{T+6}, s{S_T2}, v{T+6}")
            a(f"v_lshrrev_b32 v{T+7}, 5, v{T+6}")
            a(f"v_lshlrev_b32 v{T+7}, 12, v{T+7}")
            a(f"v_bfe_u32 v{T+8}, v{T+6}, 3, 2")
            a(f"v_lshl_add_u32 v{T+7}, v{T+8}, 8, v{T+7}")
            a(f"v_and_b32 v{T+8}, 7, v{T+6}")
            a(f"v_lshl_add_u32 v{T+7}, v{T+8}, 1, v{T+7}")
            a(f"v_add_u32 v{T+7}, v{T+7}, v{T+3}")
            if g == 2: self.set_exec(0xffffffff)
            a(f"buffer_store_dwordx2 v[{O+4*g}:{O+4*g+1}], v{T+7}, s[{SRD_O}:{SRD_O+3}], s{S_T0} offen sc1")
            if g == 2: a(f"s_mov_b64 exec, -1")

    G_ACC = 4
    G_ACT = 52
    G_AL = 84; G_AH = 85; G_WV = 86; G_DV = 87
    G_W = 88
    S_RB = 49; S_J = 50

    def g2_wload(self, NT, step):
        a = self.a
        for t in range(NT):
            R = self.G_W + 4*(step*NT + t)
            off = step*4*40*1024 + t*1024
            a(f"s_add_u32 s{S_T2}, s{S_SW}, {off}")
            a(f"buffer_load_dwordx4 v[{R}:{R+3}], v{self.G_WV}, s[{SRD_W}:{SRD_W+3}], s{S_T2} offen sc1")

    def g2_adma(self, stage):
        a = self.a
        slot = (stage % 4) * 32768
        for q in range(4):
            a(f"s_add_u32 m0, s{S_M0A}, {slot + q*8192}")
            a(f"s_add_u32 s{S_T2}, s{S_M0A}, {stage*32768 + q*8192}")
            a(f"buffer_load_dwordx4 v{self.G_DV}, s[{SRD_A}:{SRD_A+3}], s{S_T2} offen sc1 lds")

    def g2_reads(self, stage, u, st):
        a = self.a
        slot = stage % 4
        base = self.G_AL if slot < 2 else self.G_AH
        off = (slot % 2) * 32768 + u*16384
        for m in range(4):
            R = self.G_ACT + 16*st + 4*m
            a(f"ds_read_b128 v[{R}:{R+3}], v{base} offset:{off + m*1024}")

    def g2_mfma(self, NT, step, st):
        a = self.a
        for t in range(NT):
            W = self.G_W + 4*(step*NT + t)
            for m in range(4):
                A = self.G_ACC + 4*(m*3 + t)
                X = self.G_ACT + 16*st + 4*m
                a(f"v_mfma_f32_16x16x32_bf16 v[{A}:{A+3}], v[{W}:{W+3}], v[{X}:{X+3}], v[{A}:{A+3}]")

    def g2_main(self, NT, NSTG):
        a = self.a
        per = 2*NT + 4
        pre = min(3, NSTG)
        for sg in range(pre):
            self.g2_wload(NT, 2*sg); self.g2_wload(NT, 2*sg+1)
            self.g2_adma(sg)
        for r in range(48):
            a(f"v_mov_b32 v{self.G_ACC+r}, 0")
        a(f"s_waitcnt vmcnt({per*(pre-1)})")
        a(f"s_barrier")
        self.g2_reads(0, 0, 0)
        for sg in range(NSTG):
            if sg + 1 < NSTG:
                out = per * max(0, min(NSTG, sg + pre) - (sg + 2))
                a(f"s_waitcnt vmcnt({out})")
            a(f"s_barrier")
            self.g2_reads(sg, 1, 1)
            a(f"s_waitcnt lgkmcnt(4)")
            self.g2_mfma(NT, 2*sg, 0)
            if sg + pre < NSTG:
                self.g2_wload(NT, 2*(sg+pre)); self.g2_wload(NT, 2*(sg+pre)+1)
                self.g2_adma(sg + pre)
            if sg + 1 < NSTG:
                self.g2_reads(sg+1, 0, 0)
                a(f"s_waitcnt lgkmcnt(4)")
            else:
                a(f"s_waitcnt lgkmcnt(0)")
            self.g2_mfma(NT, 2*sg+1, 1)

    def g2_reduce(self, NT):
        a = self.a
        T = self.G_ACT
        a(f"s_nop 7")
        a(f"s_barrier")
        a(f"s_lshr_b32 s{S_T0}, s{S_W}, 2")
        a(f"s_and_b32 s{S_T1}, s{S_W}, 3")
        a(f"s_mul_i32 s{S_T2}, s{S_T0}, {16*3072}")
        a(f"s_mul_i32 s{S_T3}, s{S_T1}, 3072")
        a(f"s_add_u32 s{S_T3}, s{S_T3}, s{S_T2}")
        a(f"v_lshlrev_b32 v{T}, 4, v1")
        a(f"v_add_u32 v{T+1}, s{S_T3}, v{T}")
        for m in range(4):
            for t in range(NT):
                A = self.G_ACC + 4*(m*3 + t)
                a(f"ds_write_b128 v{T+1}, v[{A}:{A+3}] offset:{m*4*3072 + t*1024}")
        a(f"s_mul_i32 s{S_T3}, s{S_T1}, {4*3072}")
        a(f"s_add_u32 s{S_T3}, s{S_T3}, s{S_T2}")
        a(f"v_add_u32 v{T+2}, s{S_T3}, v{T}")
        a(f"s_waitcnt lgkmcnt(0)")
        a(f"s_barrier")
        for src in range(4):
            for t in range(NT):
                A = self.G_ACC + 4*(src*3 + t)
                a(f"ds_read_b128 v[{A}:{A+3}], v{T+2} offset:{src*3072 + t*1024}")
        a(f"s_waitcnt lgkmcnt(0)")
        for t in range(NT):
            for i in range(4):
                A = self.G_ACC + 4*t + i
                a(f"v_add_f32 v{A}, v{A}, v{A+12}")
                a(f"v_add_f32 v{A+24}, v{A+24}, v{A+36}")
            for i in range(4):
                A = self.G_ACC + 4*t + i
                a(f"v_add_f32 v{A}, v{A}, v{A+24}")

    def g2_setup(self, phase):
        a = self.a
        T = self.G_ACT
        a(f"s_lshr_b32 s{S_T0}, s{S_GI}, 3")
        a(f"s_lshl_b32 s{S_T1}, s{S_GX}, 2")
        a(f"s_add_u32 s{self.S_RB}, s{S_T0}, s{S_T1}")
        a(f"s_and_b32 s{self.S_J}, s{S_GI}, 7")
        if phase == 3:
            off, per, woff, wsz = OFF_O, 81920, OFF_WOP, SZ_WOP
        else:
            off, per, woff, wsz = OFF_R, 54*4096, OFF_W2P, SZ_W2P
        a(f"s_mul_i32 s{S_T0}, s{self.S_RB}, {per}")
        a(f"s_add_u32 s{S_T0}, s{S_T0}, {hex(off)}")
        a(f"s_add_u32 s{SRD_A}, s{S_WS}, s{S_T0}")
        a(f"s_addc_u32 s{SRD_A+1}, s{S_WS+1}, 0")
        a(f"s_mov_b32 s{SRD_A+2}, {per}")
        a(f"s_mov_b32 s{SRD_A+3}, 0x20000")
        self.srd(SRD_W, S_WS, woff, wsz)
        a(f"s_and_b32 s{S_T0}, s{S_W}, 3")
        a(f"s_mul_i32 s{S_T1}, s{S_T0}, 40")
        a(f"s_mul_i32 s{S_T2}, s{self.S_J}, 5")
        a(f"s_add_u32 s{S_T1}, s{S_T1}, s{S_T2}")
        a(f"s_lshr_b32 s{S_T2}, s{S_W}, 2")
        a(f"s_mul_i32 s{S_T2}, s{S_T2}, 3")
        a(f"s_add_u32 s{S_T1}, s{S_T1}, s{S_T2}")
        a(f"s_lshl_b32 s{S_SW}, s{S_T1}, 10")
        a(f"s_lshl_b32 s{S_M0A}, s{S_W}, 10")
        a(f"v_lshlrev_b32 v{self.G_WV}, 4, v1")
        a(f"v_mov_b32 v{self.G_DV}, v{self.G_WV}")
        a(f"s_lshl_b32 s{S_T0}, s{S_T0}, 12")
        a(f"v_add_u32 v{self.G_AL}, s{S_T0}, v{self.G_WV}")
        a(f"v_add_u32 v{self.G_AH}, 0x10000, v{self.G_AL}")

    def g2_epi(self, phase, NT):
        a = self.a
        T = self.G_ACT; A = self.G_ACC
        a(f"s_lshl_b32 s{S_T0}, s{self.S_RB}, 6")
        a(f"s_and_b32 s{S_T1}, s{S_W}, 3")
        a(f"s_lshl_b32 s{S_T1}, s{S_T1}, 4")
        a(f"s_add_u32 s{S_T0}, s{S_T0}, s{S_T1}")
        a(f"v_and_b32 v{T}, 15, v1")
        a(f"v_add_u32 v{T}, s{S_T0}, v{T}")
        a(f"v_mul_u32_u24 v{T}, 1280, v{T}")
        a(f"s_mul_i32 s{S_T0}, s{self.S_J}, 160")
        a(f"s_lshr_b32 s{S_T1}, s{S_W}, 2")
        a(f"s_mul_i32 s{S_T1}, s{S_T1}, 96")
        a(f"s_add_u32 s{S_T0}, s{S_T0}, s{S_T1}")
        a(f"v_lshrrev_b32 v{T+1}, 4, v1")
        a(f"v_lshlrev_b32 v{T+1}, 3, v{T+1}")
        a(f"v_add_u32 v{T+1}, s{S_T0}, v{T+1}")
        a(f"v_add_u32 v{T}, v{T}, v{T+1}")
        if phase == 3:
            self.srd(SRD_T, S_X, 0, 2048*1280)
            self.srd(SRD_O, S_WS, OFF_H, SZ_H)
            aux_r, aux_w = "", "sc1"
        else:
            self.srd(SRD_T, S_WS, OFF_H, SZ_H)
            self.srd(SRD_O, S_OUT, 0, 2048*1280)
            aux_r, aux_w = "sc1", ""
        for t in range(NT):
            a(f"buffer_load_dwordx2 v[{T+4+2*t}:{T+5+2*t}], v{T}, s[{SRD_T}:{SRD_T+3}], 0 offen offset:{32*t} {aux_r}")
        if phase == 5:
            self.srd(SRD_W, S_B2, 0, 1280)
            for t in range(NT):
                a(f"buffer_load_dwordx2 v[{T+12+2*t}:{T+13+2*t}], v{T+1}, s[{SRD_W}:{SRD_W+3}], 0 offen offset:{32*t}")
        a(f"s_waitcnt vmcnt(0)")
        for t in range(NT):
            for half in range(2):
                R = T + 4 + 2*t + half
                a(f"v_lshlrev_b32 v{T+20}, 16, v{R}")
                a(f"v_and_b32 v{T+21}, 0xffff0000, v{R}")
                a(f"v_add_f32 v{A+4*t+2*half}, v{A+4*t+2*half}, v{T+20}")
                a(f"v_add_f32 v{A+4*t+2*half+1}, v{A+4*t+2*half+1}, v{T+21}")
                if phase == 5:
                    R = T + 12 + 2*t + half
                    a(f"v_lshlrev_b32 v{T+20}, 16, v{R}")
                    a(f"v_and_b32 v{T+21}, 0xffff0000, v{R}")
                    a(f"v_add_f32 v{A+4*t+2*half}, v{A+4*t+2*half}, v{T+20}")
                    a(f"v_add_f32 v{A+4*t+2*half+1}, v{A+4*t+2*half+1}, v{T+21}")
            a(f"v_cvt_pk_bf16_f32 v{A+4*t}, v{A+4*t}, v{A+4*t+1}")
            a(f"v_cvt_pk_bf16_f32 v{A+4*t+1}, v{A+4*t+2}, v{A+4*t+3}")
            a(f"buffer_store_dwordx2 v[{A+4*t}:{A+4*t+1}], v{T}, s[{SRD_O}:{SRD_O+3}], 0 offen offset:{32*t} {aux_w}")

    def g2(self, phase):
        a = self.a
        NSTG = 3 if phase == 3 else 7
        self.g2_setup(phase)
        L1 = f"L_g2p{phase}_n1"; Lj = f"L_g2p{phase}_j"
        a(f"s_cmp_ge_u32 s{S_W}, 4")
        a(f"s_cbranch_scc1 {L1}")
        self.g2_main(3, NSTG); self.g2_reduce(3); self.g2_epi(phase, 3)
        a(f"s_branch {Lj}")
        a.put(L1)
        self.g2_main(2, NSTG); self.g2_reduce(2); self.g2_epi(phase, 2)
        a.put(Lj)

    def p4_epi(self):
        a = self.a
        T = self.V_T; A = self.V_ACC; CSR = self.V_FR
        B1R = self.V_FR + 32
        a(f"s_cmp_eq_u32 s{S_NT}, 13")
        a(f"s_cselect_b32 s{S_T0}, s{S_WN}, 0")
        a(f"s_cmp_eq_u32 s{S_T0}, 1")
        a(f"s_cbranch_scc1 L_p4_skip")
        self.epi_T_common()
        for g in range(4):
            a(f"ds_read_b128 v[{B1R+4*g}:{B1R+4*g+3}], v{T+7} offset:{ST_B1-ST_CS+32*g}")
        for g in range(4):
            a(f"ds_read_b128 v[{B1R+16+4*g}:{B1R+16+4*g+3}], v{T+1} offset:{ST_B1-ST_CS+32*g}")
        self.srd(SRD_O, S_WS, OFF_R, SZ_R)
        a(f"s_lshl_b32 s{S_T0}, s{S_MT}, 1")
        a(f"s_add_u32 s{S_T0}, s{S_T0}, s{S_WM}")
        a(f"s_mul_i32 s{S_T0}, s{S_T0}, {54*4096}")
        a(f"s_lshl_b32 s{S_T1}, s{S_NT}, 2")
        a(f"s_lshl_b32 s{S_T2}, s{S_WN}, 1")
        a(f"s_add_u32 s{S_T1}, s{S_T1}, s{S_T2}")
        a(f"s_add_u32 s{S_T2}, s{S_T1}, s{S_WM}")
        a(f"s_xor_b32 s{S_T3}, s{S_WM}, 1")
        a(f"s_add_u32 s{S_T3}, s{S_T1}, s{S_T3}")
        a(f"s_lshl_b32 s{S_T2}, s{S_T2}, 12")
        a(f"s_lshl_b32 s{S_T3}, s{S_T3}, 12")
        a(f"s_add_u32 s{S_T4}, s{S_T0}, s{S_T2}")
        a(f"s_add_u32 s{S_T5}, s{S_T0}, s{S_T3}")
        a(f"v_bfe_u32 v{T+8}, v1, 4, 1")
        a(f"v_lshlrev_b32 v{T+8}, 10, v{T+8}")
        a(f"v_and_b32 v{T+9}, 15, v1")
        a(f"v_lshl_add_u32 v{T+8}, v{T+9}, 4, v{T+8}")
        a(f"v_lshl_add_u32 v{T+8}, v{T+6}, 3, v{T+8}")
        a(f"s_waitcnt lgkmcnt(0)")
        for tt in range(2):
            for q in range(2):
                for g in range(4):
                    for i in range(4):
                        r = A + 16*(2*tt+q) + 4*g + i
                        a(f"v_fma_f32 v{r}, v{T+2+2*tt}, v{r}, v{B1R+16*q+4*g+i}")
                        a(f"v_fmac_f32 v{r}, v{T+3+2*tt}, v{CSR+16*q+4*g+i}")
                        a(f"v_max_f32 v{r}, 0, v{r}")
                        a(f"v_mul_f32 v{r}, v{r}, v{r}")
                    r = A + 16*(2*tt+q) + 4*g
                    a(f"v_cvt_pk_bf16_f32 v{r}, v{r}, v{r+1}")
                    a(f"v_cvt_pk_bf16_f32 v{r+1}, v{r+2}, v{r+3}")
                    a(f"buffer_store_dwordx2 v[{r}:{r+1}], v{T+8}, s[{SRD_O}:{SRD_O+3}], s{S_T4+q} offen offset:{2048*tt + 256*g} sc1")
        a.put("L_p4_skip")

    def p4(self):
        a = self.a
        a(f"s_cmp_ge_u32 s{S_GI}, 28")
        a(f"s_cbranch_scc1 L_p4_done")
        a(f"s_cmp_ge_u32 s{S_GI}, 14")
        a(f"s_cselect_b32 s{S_T0}, 1, 0")
        a(f"s_cselect_b32 s{S_T1}, 14, 0")
        a(f"s_sub_u32 s{S_NT}, s{S_GI}, s{S_T1}")
        a(f"s_lshl_b32 s{S_MT}, s{S_GX}, 1")
        a(f"s_add_u32 s{S_MT}, s{S_MT}, s{S_T0}")
        a(f"s_cmp_ge_u32 s{S_NT}, 10")
        a(f"s_cselect_b32 s{S_T0}, 10, 0")
        a(f"s_sub_u32 s{S_KK}, s{S_NT}, s{S_T0}")
        self.aux_A = "sc1"
        self.st1 = None
        a(f"s_cmp_lt_u32 s{S_W}, 4")
        a(f"s_cbranch_scc1 L_p4_compute")
        self.g1_setup_loader(3456)
        self.srd(SRD_A, S_WS, OFF_H, SZ_H)
        self.srd(SRD_W, S_W1, 0, 640*3456)
        for s_ in range(self.NSLOT - 1):
            self.g1_dma_stage(3456)
        T = self.V_T
        self.srd(SRD_T, S_B1, 0, 1728*2)
        a(f"s_sub_u32 s{S_T4}, s{S_W}, 4")
        a(f"s_lshl_b32 s{S_T4}, s{S_T4}, 5")
        a(f"v_and_b32 v{T+10}, 31, v1")
        a(f"v_add_u32 v{T+10}, s{S_T4}, v{T+10}")
        a(f"s_lshl_b32 s{S_T4}, s{S_NT}, 7")
        a(f"v_add_u32 v{T+11}, s{S_T4}, v{T+10}")
        a(f"v_lshlrev_b32 v{T+11}, 1, v{T+11}")
        a(f"buffer_load_ushort v{T+12}, v{T+11}, s[{SRD_T}:{SRD_T+3}], 0 offen")
        self.b1_hook = True
        self.g1_loader(3456, "p4")
        self.b1_hook = False
        a(f"s_branch L_p4_done")
        a.put("L_p4_compute")
        self.g1_compute("T", "p4")
        self.p4_epi()
        a.put("L_p4_done")

    def epoch_update(self):
        a = self.a
        a(f"s_or_b32 s{S_T0}, s2, s{S_W}")
        a(f"s_cmp_lg_u32 s{S_T0}, 0")
        a(f"s_cbranch_scc1 L_noepoch")
        a(f"v_mov_b32 v2, {OFF_EPOCH}")
        a(f"v_mov_b32 v3, s{S_TAG}")
        a(f"s_mov_b64 exec, 1")
        a(f"buffer_store_dword v3, v2, s[{SRD_F}:{SRD_F+3}], 0 offen sc1")
        a(f"s_mov_b64 exec, -1")
        a.put("L_noepoch")

    def epilogue_stamps(self):
        if not self.stamps: return
        a = self.a
        a(f"s_waitcnt lgkmcnt(0)")
        a(f"s_lshl_b32 s{S_T0}, s2, 3")
        a(f"s_add_u32 s{S_T0}, s{S_T0}, s{S_W}")
        a(f"s_lshl_b32 s{S_T0}, s{S_T0}, 7")
        a(f"s_add_u32 s{S_T0}, s{S_T0}, 0x80000")
        a(f"v_mov_b32 v3, s{S_T0}")
        a(f"s_mov_b64 exec, 1")
        a(f"s_memrealtime s[98:99]")
        a(f"s_waitcnt lgkmcnt(0)")
        a(f"s_sub_u32 s{S_T1}, s98, s96")
        a(f"v_mov_b32 v2, s{S_T1}")
        a(f"buffer_store_dword v2, v3, s[{SRD_F}:{SRD_F+3}], 0 offen offset:{4*31}")
        a(f"v_mov_b32 v2, s96")
        a(f"buffer_store_dword v2, v3, s[{SRD_F}:{SRD_F+3}], 0 offen offset:{4*30}")
        for i in range(self.nstamp):
            a(f"s_sub_u32 s{S_T1}, s{S_STAMP+i}, s{S_STAMP}")
            a(f"v_mov_b32 v2, s{S_T1}")
            a(f"buffer_store_dword v2, v3, s[{SRD_F}:{SRD_F+3}], 0 offen offset:{4*i}")
            a(f"s_nop 1")
        a(f"s_mov_b64 exec, -1")

    def build(self):
        a = self.a
        self.prologue()
        self.p1()
        self.p1_signal()
        if self.stop_after != "p1":
            self.p2()
            if self.stop_after != "p2":
                self.group_barrier(0, "gb23")
                self.stamp(9)
                self.g2(3)
                self.stamp(10)
                if self.stop_after != "p3":
                    self.group_barrier(1, "gb34")
                    self.stamp(11)
                    self.p4()
                    self.stamp(12)
                    if self.stop_after != "p4":
                        self.group_barrier(2, "gb45")
                        self.stamp(13)
                        self.g2(5)
            a(f"s_waitcnt vmcnt(0)")
            self.stamp(14)
        self.epoch_update()
        self.epilogue_stamps()
        a(f"s_waitcnt vmcnt(0)")
        a.put("L_end")
        a("s_endpgm")
        return a

import struct
def f32(x):
    return struct.unpack("<I", struct.pack("<f", x))[0]

HEADER = open("sequential_preLN__mha_block__dense_activation_squared_relu__prompt.s.ref").read().split("; Override launch geometry")[0]

def wrap(body, lds=163840, vgpr=256):
    s = HEADER
    s += f"; @launch grid=(256,1,1) block=(512,1,1) lds={lds}\n"
    s += '.amdgcn_target "amdgcn-amd-amdhsa--gfx950"\n.text\n'
    s += f".globl {NAME}\n.p2align 8\n.type {NAME},@function\n{NAME}:\n"
    s += body
    s += f"""
.section .rodata,"a"
.p2align 6
.amdhsa_kernel {NAME}
  .amdhsa_next_free_vgpr {vgpr}
  .amdhsa_next_free_sgpr 102
  .amdhsa_accum_offset {vgpr}
  .amdhsa_group_segment_fixed_size 0
  .amdhsa_kernarg_size 88
  .amdhsa_user_sgpr_count 2
  .amdhsa_user_sgpr_kernarg_segment_ptr 1
  .amdhsa_system_sgpr_workgroup_id_x 1
.end_amdhsa_kernel
"""
    return s

if __name__ == "__main__":
    import argparse
    ap = argparse.ArgumentParser()
    ap.add_argument("-o", default="out.s")
    ap.add_argument("--stop", default=None)
    ap.add_argument("--stamps", action="store_true")
    ap.add_argument("--opt", default="")
    args = ap.parse_args()
    g = Gen(stop_after=args.stop, stamps=args.stamps, opt=[o for o in args.opt.split(',') if o])
    a = g.build()
    rep = check(a.L)
    for r in rep: print(r)
    open(args.o, "w").write(wrap(a.text()))
    print("wrote", args.o, len(a.L), "lines;", len(rep), "hazards")
```

```python
import sys, math
sys.path.insert(0, "gen")
from asmlib import Asm, vr, sr, check

NAME = "sequential_preLN__mha_block__dense_activation_squared_relu__prompt_kernel"

OFF_EPOCH = 0
OFF_GB    = 0x50000
OFF_MB1   = 65536
OFF_Q     = 0x100000
OFF_KV    = 0x400000
OFF_O     = 0xA00000
OFF_H     = 0xD00000
OFF_R     = 0x1000000
OFF_WOP   = 0x1700000
OFF_W2P   = 0x1800000
SZ_Q = 32*64*1280
SZ_KV = 32*64*2560
SZ_O = 32*20*4096
SZ_H = 2048*1280
SZ_R = 32*54*4096
SZ_WOP = 20*40*1024
SZ_W2P = 54*40*1024

S_KA = 0; S_WG = 2; S_W = 3
S_X = 4; S_WQKV = 6; S_WO = 8; S_W1 = 12; S_B1 = 14; S_W2 = 16; S_B2 = 18; S_OUT = 20; S_DBG = 22; S_WS = 24
S_TAG = 26; S_GX = 27
SRD_A = 28; SRD_W = 32; SRD_O = 36; SRD_F = 40; SRD_T = 44
S_GI = 48
S_MT = 49; S_NT = 50; S_KK = 51; S_CNT = 52; S_SLOT = 53
S_SA = 54; S_SW = 55; S_T0 = 56; S_T1 = 57; S_T2 = 58; S_T3 = 59; S_T4 = 60; S_T5 = 61
S_M0A = 62; S_WM = 63; S_WN = 64; S_DELTA = 65; S_ONES = 66; S_ROT4 = 67; S_RLW = 68; S_RSLOT = 69
S_STAMP = 70
S_SAVE = 90

LDS_STATS = 131072
ST_PX, ST_PQ, ST_PC, ST_AA, ST_BB, ST_CS, ST_B1 = 0, 4096, 8192, 9216, 9728, 10240, 10752
LDS_RL = LDS_STATS + 12288

class Gen:
    def __init__(self, stop_after=None, stamps=False, opt=()):
        self.opt = set(opt)
        self.a = Asm()
        self.stop_after = stop_after
        self.stamps = stamps
        self.nstamp = 0
        self.code_rounds = 2
        self.opt_g2 = "3" if "g2s3" in self.opt else ("5" if "g2s5" in self.opt else "")
        self.ld_aux = "" if "plainld" in self.opt else "sc1"

    def srd(self, dst, base_s, off, size):
        a = self.a
        if off:
            a(f"s_add_u32 s{dst}, s{base_s}, {hex(off)}")
            a(f"s_addc_u32 s{dst+1}, s{base_s+1}, 0")
        else:
            a(f"s_mov_b32 s{dst}, s{base_s}")
            a(f"s_mov_b32 s{dst+1}, s{base_s+1}")
        a(f"s_mov_b32 s{dst+2}, {hex(size)}")
        a(f"s_mov_b32 s{dst+3}, 0x20000")

    def csel(self, dst, x, y):
        self.a(f"s_mov_b32 s{dst}, {y}")
        self.a(f"s_cselect_b32 s{dst}, {x}, s{dst}")

    def set_exec(self, mask):
        mask = int(str(mask), 0) & 0xFFFFFFFFFFFFFFFF
        if mask == 0xFFFFFFFFFFFFFFFF: self.a("s_mov_b64 exec, -1")
        elif mask < 0x80000000: self.a(f"s_mov_b64 exec, {hex(mask)}")
        else:
            self.a(f"s_mov_b32 exec_lo, {hex(mask & 0xffffffff)}")
            self.a(f"s_mov_b32 exec_hi, {hex(mask >> 32)}")

    def stamp(self, i=None):
        if not self.stamps: return
        if i is None: return
        self.nstamp = max(self.nstamp, i + 1)
        self.a(f"s_memtime s[100:101]")
        self.a(f"s_waitcnt lgkmcnt(0)")
        self.a(f"s_mov_b32 s{S_STAMP+i}, s100")

    def prologue(self):
        a = self.a
        a(f"s_cmp_ge_u32 s2, 256")
        a(f"s_cbranch_scc1 L_end")
        self.stamp(0)
        if self.stamps: a(f"s_memrealtime s[96:97]")
        a(f"s_load_dwordx16 s[4:19], s[0:1], 0")
        a(f"s_load_dwordx4 s[20:23], s[0:1], 64")
        a(f"s_load_dwordx2 s[24:25], s[0:1], 80")
        a(f"v_lshrrev_b32 v2, 6, v0")
        a(f"v_and_b32 v1, 63, v0")
        a(f"v_readfirstlane_b32 s{S_W}, v2")
        a(f"s_and_b32 s{S_GX}, s2, 7")
        a(f"s_lshr_b32 s{S_GI}, s2, 3")
        a(f"s_mov_b32 s{S_ONES}, 0x3f803f80")
        a(f"s_lshr_b32 s{S_WM}, s{S_W}, 2")
        a(f"s_and_b32 s{S_WN}, s{S_W}, 3")

    def finish_tag(self):
        a = self.a
        a(f"s_waitcnt lgkmcnt(0)")
        a(f"s_mul_i32 s{S_TAG}, s{S_TAG}, 0x9E3779B1")
        a(f"s_add_u32 s{S_TAG}, s{S_TAG}, 0x7F4A7C15")

    V_OFFA = 2; V_OFFW = 3
    V_AA = 4
    V_AWA = 8; V_AWB = 9
    V_CSA = 12
    V_CSD = 16
    V_FR = 20
    V_ACC = 84
    V_T = 148
    V_LA = 4
    V_LS = 8
    V_LD = 20
    V_LU = 40
    NSLOT = 4

    def g1_setup_loader(self, WS):
        a = self.a
        T = self.V_T
        a(f"s_sub_u32 s{S_T4}, s{S_W}, 4")
        a(f"v_lshrrev_b32 v{T}, 4, v1")
        a(f"s_lshl_b32 s{S_T0}, s{S_T4}, 2")
        a(f"v_add_u32 v{T+1}, s{S_T0}, v{T}")
        a(f"v_and_b32 v{T+1}, 7, v{T+1}")
        a(f"v_and_b32 v{T+2}, 7, v1")
        a(f"v_xor_b32 v{T+1}, v{T+1}, v{T+2}")
        a(f"v_lshlrev_b32 v{T+1}, 4, v{T+1}")
        a(f"v_lshrrev_b32 v{T+2}, 3, v1")
        a(f"v_mul_u32_u24 v{T+2}, 1280, v{T+2}")
        a(f"v_add_u32 v{self.V_OFFA}, v{T+1}, v{T+2}")
        a(f"v_lshlrev_b32 v{T+1}, 2, v{T}")
        a(f"v_and_b32 v{T+2}, 15, v1")
        a(f"v_xor_b32 v{T+1}, v{T+1}, v{T+2}")
        a(f"v_lshlrev_b32 v{T+1}, 4, v{T+1}")
        a(f"v_mul_u32_u24 v{T+2}, {WS}, v{T}")
        a(f"v_add_u32 v{self.V_OFFW}, v{T+1}, v{T+2}")
        a(f"s_lshl_b32 s{S_T0}, s{S_MT}, 7")
        a(f"s_lshl_b32 s{S_T1}, s{S_T4}, 3")
        a(f"s_add_u32 s{S_T0}, s{S_T0}, s{S_T1}")
        a(f"s_mul_i32 s{S_SA}, s{S_T0}, 1280")
        a(f"s_mul_i32 s{S_T0}, s{S_T4}, {4*WS}")
        a(f"s_lshl_b32 s{S_T1}, s{S_NT}, 8")
        a(f"s_add_u32 s{S_SW}, s{S_T0}, s{S_T1}")
        a(f"s_lshl_b32 s{S_M0A}, s{S_T4}, 10")
        a(f"s_mov_b32 s{S_SLOT}, 0")

    def g1_setup_loader2(self):
        a = self.a
        T = self.V_T
        a(f"v_and_b32 v{T}, 31, v1")
        a(f"s_sub_u32 s{S_T4}, s{S_W}, 4")
        a(f"s_lshl_b32 s{S_T0}, s{S_T4}, 5")
        a(f"v_add_u32 v{T+1}, s{S_T0}, v{T}")
        a(f"v_lshlrev_b32 v{T+1}, 7, v{T+1}")
        a(f"v_bfe_u32 v{T+2}, v{T}, 1, 3")
        a(f"v_lshrrev_b32 v{T+3}, 5, v1")
        a(f"v_lshlrev_b32 v{T+3}, 2, v{T+3}")
        a(f"v_xor_b32 v{T+2}, v{T+2}, v{T+3}")
        for q in range(4):
            a(f"v_xor_b32 v{self.V_LA+q}, {q}, v{T+2}")
            a(f"v_lshlrev_b32 v{self.V_LA+q}, 4, v{self.V_LA+q}")
            a(f"v_add_u32 v{self.V_LA+q}, v{self.V_LA+q}, v{T+1}")
            a(f"v_mov_b32 v{self.V_LS+q}, 0")

    def g1_dma1(self, WS, q):
        a = self.a
        if q == 0:
            a(f"s_lshl_b32 s{S_T2}, s{S_KK}, 7")
            a(f"s_add_u32 s{S_T2}, s{S_T2}, s{S_SA}")
            a(f"s_add_u32 m0, s{S_SLOT}, s{S_M0A}")
            a(f"s_mul_i32 s{S_T3}, s{S_KK}, {64*WS}")
        elif q == 4:
            a(f"s_add_u32 s{S_T2}, s{S_T3}, s{S_SW}")
            a(f"s_add_u32 m0, m0, 4096")
            a(f"s_nop 0")
        else:
            a(f"s_add_u32 m0, m0, 4096")
            a(f"s_add_u32 s{S_T2}, s{S_T2}, {32*1280 if q < 4 else 16*WS}")
        if q < 4:
            a(f"buffer_load_dwordx4 v{self.V_OFFA}, s[{SRD_A}:{SRD_A+3}], s{S_T2} offen {self.aux_A} lds")
        else:
            a(f"buffer_load_dwordx4 v{self.V_OFFW}, s[{SRD_W}:{SRD_W+3}], s{S_T2} offen lds")
        if q == 7:
            a(f"s_add_u32 s{S_KK}, s{S_KK}, 1")
            a(f"s_cmp_eq_u32 s{S_KK}, 10")
            a(f"s_cselect_b32 s{S_KK}, 0, s{S_KK}")
            a(f"s_add_u32 s{S_SLOT}, s{S_SLOT}, 32768")
            a(f"s_cmp_eq_u32 s{S_SLOT}, {self.NSLOT*32768}")
            a(f"s_cselect_b32 s{S_SLOT}, 0, s{S_SLOT}")

    def g1_dma_stage(self, WS):
        for q in range(8): self.g1_dma1(WS, q)

    def g1_lstat_reads(self):
        if "nolstat" in self.opt: return
        a = self.a
        for q in range(4):
            a(f"ds_read_b128 v[{self.V_LD+4*q}:{self.V_LD+4*q+3}], v{self.V_LA+q}")
    def g1_lstat_adv(self, sreg):
        a = self.a
        for q in range(4):
            a(f"v_add_u32 v{self.V_LA+q}, s{sreg}, v{self.V_LA+q}")
    def g1_lstat_calc(self, r0, r1):
        if "nolstat" in self.opt: return
        a = self.a
        S = self.V_LS
        for r in range(r0, r1):
            U = self.V_LU + 2*(r % 2)
            a(f"v_lshlrev_b32 v{U}, 16, v{self.V_LD+r}")
            a(f"v_and_b32 v{U+1}, 0xffff0000, v{self.V_LD+r}")
            a(f"v_add_f32 v{S}, v{S}, v{U}")
            a(f"v_fmac_f32 v{S+2}, v{U}, v{U}")
            a(f"v_add_f32 v{S+1}, v{S+1}, v{U+1}")
            a(f"v_fmac_f32 v{S+3}, v{U+1}, v{U+1}")

    def slot_next(self):
        a = self.a
        a(f"s_add_u32 s{S_RSLOT}, s{S_RSLOT}, 1")
        a(f"s_cmp_eq_u32 s{S_RSLOT}, {self.NSLOT}")
        a(f"s_cselect_b32 s{S_RSLOT}, 0, s{S_RSLOT}")
        a(f"s_cmp_eq_u32 s{S_RSLOT}, {self.NSLOT-1}")
        self.csel(S_DELTA, hex((-(self.NSLOT-1)*32768) & 0xffffffff), 32768)

    def g1_loader(self, WS, tag):
        a = self.a
        pre = self.NSLOT - 1
        self.g1_setup_loader2()
        a(f"s_waitcnt vmcnt({8*(pre-1)})")
        if "p1s" in self.opt and tag == "p1": self.stamp(18)
        a(f"s_barrier")
        self.g1_lstat_reads()
        a(f"s_mov_b32 s{S_DELTA}, 32768")
        self.g1_lstat_adv(S_DELTA)
        a(f"s_mov_b32 s{S_CNT}, 0")
        a(f"s_mov_b32 s{S_RSLOT}, 0")
        a(f"s_waitcnt lgkmcnt(0)")
        self.g1_lstat_calc(0, 16)
        L1 = f"L_{tag}_lloop"
        a.put(L1)
        a(f"s_add_u32 s{S_CNT}, s{S_CNT}, 1")
        self.slot_next()
        a(f"s_waitcnt vmcnt({8*(pre-2)})")
        a(f"s_barrier")
        self.g1_lstat_reads()
        self.g1_lstat_adv(S_DELTA)
        for q in range(8):
            self.g1_dma1(WS, q)
            if q == 0: a(f"s_waitcnt lgkmcnt(0)")
            self.g1_lstat_calc(2*q, 2*q+2)
        a(f"s_cmp_lt_u32 s{S_CNT}, {10-pre}")
        a(f"s_cbranch_scc1 {L1}")
        L2 = f"L_{tag}_ltl"; L3 = f"L_{tag}_ltw"; L4 = f"L_{tag}_lts"
        a.put(L2)
        a(f"s_add_u32 s{S_CNT}, s{S_CNT}, 1")
        self.slot_next()
        a(f"s_cmp_lt_u32 s{S_CNT}, 9")
        a(f"s_cbranch_scc1 {L3}")
        a(f"s_waitcnt vmcnt(0)")
        a.put(L3)
        a(f"s_waitcnt vmcnt(8)")
        a(f"s_barrier")
        a(f"s_cmp_eq_u32 s{S_CNT}, 10")
        a(f"s_cbranch_scc1 {L4}")
        self.g1_lstat_reads()
        self.g1_lstat_adv(S_DELTA)
        a(f"s_waitcnt lgkmcnt(0)")
        self.g1_lstat_calc(0, 16)
        a(f"s_branch {L2}")
        a.put(L4)
        T = self.V_T; S = self.V_LS
        a(f"v_add_f32 v{S}, v{S}, v{S+1}")
        a(f"v_add_f32 v{S+2}, v{S+2}, v{S+3}")
        a(f"v_mov_b32 v{T}, v{S}")
        a(f"v_mov_b32 v{T+1}, v{S+2}")
        a(f"s_nop 1")
        a(f"v_permlane32_swap_b32 v{T}, v{S}")
        a(f"v_permlane32_swap_b32 v{T+1}, v{S+2}")
        a(f"s_nop 1")
        a(f"v_add_f32 v{S}, v{S}, v{T}")
        a(f"v_add_f32 v{S+2}, v{S+2}, v{T+1}")
        a(f"v_mul_f32 v{T+1}, {hex(f32(1.0/640))}, v{S}")
        a(f"v_mul_f32 v{T+2}, {hex(f32(1.0/640))}, v{S+2}")
        a(f"v_fma_f32 v{T+2}, -v{T+1}, v{T+1}, v{T+2}")
        a(f"v_max_f32 v{T+2}, 0, v{T+2}")
        a(f"v_add_f32 v{T+2}, {hex(f32(1e-5))}, v{T+2}")
        a(f"v_rsq_f32 v{T+2}, v{T+2}")
        a(f"v_and_b32 v{T}, 31, v1")
        a(f"s_sub_u32 s{S_T4}, s{S_W}, 4")
        a(f"s_lshl_b32 s{S_T0}, s{S_T4}, 5")
        a(f"v_add_u32 v{T}, s{S_T0}, v{T}")
        a(f"v_mul_f32 v{T+1}, v{T+1}, v{T+2}")
        a(f"v_lshlrev_b32 v{T}, 2, v{T}")
        a(f"v_sub_f32 v{T+1}, 0, v{T+1}")
        a(f"v_add_u32 v{T}, {LDS_STATS}, v{T}")
        a(f"ds_write_b32 v{T}, v{T+2} offset:{ST_AA}")
        a(f"ds_write_b32 v{T}, v{T+1} offset:{ST_BB}")
        if getattr(self, "b1_hook", False):
            a(f"v_lshlrev_b32 v{T+12}, 16, v{T+12}")
            a(f"ds_write_b32 v{T}, v{T+12} offset:{ST_B1}")
        a(f"s_waitcnt lgkmcnt(0)")
        a(f"s_barrier")

    def g1_setup_compute(self):
        a = self.a
        T = self.V_T
        a(f"s_lshr_b32 s{S_WM}, s{S_W}, 1")
        a(f"s_and_b32 s{S_WN}, s{S_W}, 1")
        a(f"v_and_b32 v{T}, 31, v1")
        a(f"s_lshl_b32 s{S_T0}, s{S_WM}, 6")
        a(f"v_add_u32 v{T+1}, s{S_T0}, v{T}")
        a(f"v_lshlrev_b32 v{T+1}, 7, v{T+1}")
        a(f"v_bfe_u32 v{T+2}, v{T}, 1, 3")
        a(f"v_lshrrev_b32 v{T+3}, 5, v1")
        a(f"v_xor_b32 v{T+2}, v{T+2}, v{T+3}")
        for j in range(4):
            a(f"v_xor_b32 v{self.V_AA+j}, {2*j}, v{T+2}")
            a(f"v_lshlrev_b32 v{self.V_AA+j}, 4, v{self.V_AA+j}")
            a(f"v_add_u32 v{self.V_AA+j}, v{self.V_AA+j}, v{T+1}")
        a(f"v_and_b32 v{T+4}, 15, v1")
        a(f"v_lshrrev_b32 v{T+5}, 2, v{T+4}")
        a(f"v_lshlrev_b32 v{T+6}, 3, v{T+3}")
        a(f"v_add_u32 v{T+6}, v{T+6}, v{T+5}")
        a(f"v_lshlrev_b32 v{T+6}, 8, v{T+6}")
        a(f"v_bfe_u32 v{T+7}, v1, 4, 1")
        a(f"v_lshlrev_b32 v{T+7}, 1, v{T+7}")
        a(f"v_bfe_u32 v{T+8}, v1, 1, 1")
        a(f"v_add_u32 v{T+7}, v{T+7}, v{T+8}")
        a(f"s_lshl_b32 s{S_T0}, s{S_WN}, 3")
        a(f"s_lshl_b32 s{S_T1}, s{S_WM}, 2")
        a(f"s_add_u32 s{S_T0}, s{S_T0}, s{S_T1}")
        a(f"v_add_u32 v{T+7}, s{S_T0}, v{T+7}")
        a(f"v_lshlrev_b32 v{T+5}, 2, v{T+5}")
        a(f"v_xor_b32 v{T+7}, v{T+7}, v{T+5}")
        a(f"v_lshlrev_b32 v{T+7}, 4, v{T+7}")
        a(f"v_and_b32 v{T+8}, 1, v1")
        a(f"v_lshlrev_b32 v{T+8}, 3, v{T+8}")
        a(f"v_add_u32 v{T+6}, v{T+6}, v{T+7}")
        a(f"v_add_u32 v{T+6}, v{T+6}, v{T+8}")
        a(f"v_add_u32 v{self.V_AWA}, 16384, v{T+6}")
        a(f"v_xor_b32 v{self.V_AWB}, 64, v{self.V_AWA}")
        a(f"v_and_b32 v{T}, 15, v1")
        a(f"v_bfe_u32 v{T+1}, v1, 4, 1")
        a(f"v_cmp_eq_u32 vcc, v{T}, v{T+1}")
        a(f"v_mov_b32 v{T+2}, 0x3f803f80")
        a(f"s_nop 1")
        a(f"v_cndmask_b32 v{self.V_CSA}, 0, v{T+2}, vcc")
        for r in range(1, 4):
            a(f"v_mov_b32 v{self.V_CSA+r}, v{self.V_CSA}")
        for r in range(4):
            a(f"v_mov_b32 v{self.V_CSD+r}, 0")
        for r in range(64):
            a(f"v_mov_b32 v{self.V_ACC+r}, 0")

    def g1_read1(self, j, q):
        if "noreads" in self.opt: return
        a = self.a
        F = self.V_FR + 16*j
        if q == 0: a(f"ds_read_b128 v[{F}:{F+3}], v{self.V_AA+j}")
        elif q == 1: a(f"ds_read_b128 v[{F+4}:{F+7}], v{self.V_AA+j} offset:4096")
        else:
            ad = self.V_AWA if q == 2 else self.V_AWB
            R = F + 8 + 4*(q-2)
            a(f"ds_read_b64_tr_b16 v[{R}:{R+1}], v{ad} offset:{4096*j}")
            a(f"ds_read_b64_tr_b16 v[{R+2}:{R+3}], v{ad} offset:{4096*j+1024}")

    def g1_mfma1(self, j, orient, tt, q):
        if "nomfma" in self.opt: return
        a = self.a
        F = self.V_FR + 16*j
        X = f"v[{F+4*tt}:{F+4*tt+3}]"; W = f"v[{F+8+4*q}:{F+11+4*q}]"
        A = self.V_ACC + 16*(2*tt+q)
        D = f"v[{A}:{A+15}]"
        if orient == "T": a(f"v_mfma_f32_32x32x16_bf16 {D}, {W}, {X}, {D}")
        else:             a(f"v_mfma_f32_32x32x16_bf16 {D}, {X}, {W}, {D}")

    def g1_colsum(self, j):
        if "nostats" in self.opt: return
        F = self.V_FR + 16*j; D = self.V_CSD
        self.a(f"v_mfma_f32_16x16x32_bf16 v[{D}:{D+3}], v[{self.V_CSA}:{self.V_CSA+3}], v[{F+8}:{F+11}], v[{D}:{D+3}]")

    def g1_adv(self):
        a = self.a
        for r in list(range(self.V_AA, self.V_AA+4)) + [self.V_AWA, self.V_AWB]:
            a(f"v_add_u32 v{r}, s{S_DELTA}, v{r}")

    def g1_cstep(self, j, orient, with_reads):
        a = self.a
        self.g1_mfma1(j, orient, 0, 0)
        self.g1_colsum(j)
        self.g1_mfma1(j, orient, 1, 0)
        if with_reads: self.g1_read1(j, 2)
        self.g1_mfma1(j, orient, 0, 1)
        if with_reads: self.g1_read1(j, 0)
        self.g1_mfma1(j, orient, 1, 1)
        if with_reads:
            self.g1_read1(j, 1); self.g1_read1(j, 3)

    def g1_compute(self, orient, tag):
        a = self.a
        self.g1_setup_compute()
        a(f"s_barrier")
        self.stamp(self.st1)
        for j in range(4):
            for q in range(4): self.g1_read1(j, q)
        a(f"s_mov_b32 s{S_DELTA}, 32768")
        self.g1_adv()
        a(f"s_mov_b32 s{S_CNT}, 0")
        a(f"s_mov_b32 s{S_RSLOT}, 0")
        L1 = f"L_{tag}_cloop"
        a.put(L1)
        a(f"s_waitcnt lgkmcnt(12)")
        self.g1_cstep(0, orient, False)
        a(f"s_add_u32 s{S_CNT}, s{S_CNT}, 1")
        self.slot_next()
        a(f"s_barrier")
        for q in (2, 0, 1, 3): self.g1_read1(0, q)
        self.g1_cstep(1, orient, True)
        a(f"s_waitcnt lgkmcnt(12)")
        self.g1_cstep(2, orient, True)
        self.g1_cstep(3, orient, True)
        self.g1_adv()
        a(f"s_cmp_lt_u32 s{S_CNT}, 10")
        a(f"s_cbranch_scc1 {L1}")
        a(f"s_waitcnt lgkmcnt(0)")
        T = self.V_T
        a(f"s_lshl_b32 s{S_T0}, s{S_WN}, 8")
        a(f"s_lshl_b32 s{S_T1}, s{S_WM}, 7")
        a(f"s_add_u32 s{S_T0}, s{S_T0}, s{S_T1}")
        a(f"s_add_u32 s{S_T0}, s{S_T0}, {LDS_STATS+ST_CS}")
        a(f"v_lshlrev_b32 v{T}, 2, v1")
        a(f"v_add_u32 v{T}, s{S_T0}, v{T}")
        a(f"s_nop 4")
        a(f"s_mov_b64 exec, 0xffff")
        a(f"ds_write_b32 v{T}, v{self.V_CSD}")
        a(f"ds_write_b32 v{T}, v{self.V_CSD+1} offset:64")
        a(f"s_mov_b64 exec, -1")
        a(f"s_waitcnt lgkmcnt(0)")
        a(f"s_barrier")

    def magic_div5(self, dst, src):
        self.a(f"v_mul_u32_u24 v{dst}, 52429, v{src}")
        self.a(f"v_lshrrev_b32 v{dst}, 18, v{dst}")
    def magic_div20(self, dst, src):
        self.a(f"v_mul_u32_u24 v{dst}, 52429, v{src}")
        self.a(f"v_lshrrev_b32 v{dst}, 20, v{dst}")

    def epi_T_common(self):
        a = self.a
        T = self.V_T; CSR = self.V_FR
        a(f"v_and_b32 v{T}, 31, v1")
        a(f"s_lshl_b32 s{S_T0}, s{S_WM}, 6")
        a(f"v_add_u32 v{T+1}, s{S_T0}, v{T}")
        a(f"v_lshlrev_b32 v{T+1}, 2, v{T+1}")
        a(f"v_add_u32 v{T+1}, {LDS_STATS}, v{T+1}")
        a(f"ds_read_b32 v{T+2}, v{T+1} offset:{ST_AA}")
        a(f"ds_read_b32 v{T+3}, v{T+1} offset:{ST_BB}")
        a(f"ds_read_b32 v{T+4}, v{T+1} offset:{ST_AA+128}")
        a(f"ds_read_b32 v{T+5}, v{T+1} offset:{ST_BB+128}")
        a(f"v_lshrrev_b32 v{T+6}, 5, v1")
        a(f"s_lshl_b32 s{S_T0}, s{S_WN}, 8")
        a(f"s_lshl_b32 s{S_T1}, s{S_WM}, 7")
        a(f"s_add_u32 s{S_T0}, s{S_T0}, s{S_T1}")
        a(f"s_add_u32 s{S_T0}, s{S_T0}, {LDS_STATS+ST_CS}")
        a(f"v_lshlrev_b32 v{T+7}, 4, v{T+6}")
        a(f"v_add_u32 v{T+7}, s{S_T0}, v{T+7}")
        a(f"v_xor_b32 v{T+1}, 128, v{T+7}")
        for g in range(4):
            a(f"ds_read_b128 v[{CSR+4*g}:{CSR+4*g+3}], v{T+7} offset:{32*g}")
        for g in range(4):
            a(f"ds_read_b128 v[{CSR+16+4*g}:{CSR+16+4*g+3}], v{T+1} offset:{32*g}")

    def p1_epi_T(self):
        a = self.a
        T = self.V_T; A = self.V_ACC; CSR = self.V_FR
        self.epi_T_common()
        a(f"s_cmp_lt_u32 s{S_NT}, 5")
        a(f"s_cselect_b32 s{S_T0}, {hex(f32(math.log2(math.e)/math.sqrt(20.0)))}, 1.0")
        self.csel(S_T1, 81920, 163840)
        self.csel(S_T2, 1280, 2560)
        a(f"s_cselect_b32 s{S_T3}, 0, 5")
        self.csel(S_T4, hex(OFF_Q), hex(OFF_KV))
        self.csel(S_T5, hex(SZ_Q), hex(SZ_KV))
        a(f"s_add_u32 s{SRD_O}, s{S_WS}, s{S_T4}")
        a(f"s_addc_u32 s{SRD_O+1}, s{S_WS+1}, 0")
        a(f"s_mov_b32 s{SRD_O+2}, s{S_T5}")
        a(f"s_mov_b32 s{SRD_O+3}, 0x20000")
        a(f"s_sub_u32 s{S_T3}, s{S_NT}, s{S_T3}")
        a(f"s_lshl_b32 s{S_T3}, s{S_T3}, 5")
        a(f"s_lshl_b32 s{S_T4}, s{S_WN}, 4")
        a(f"s_add_u32 s{S_T3}, s{S_T3}, s{S_T4}")
        a(f"s_lshl_b32 s{S_T4}, s{S_WM}, 3")
        AD = T + 8
        for q in range(2):
            for g in range(4):
                if q == 0:
                    a(f"s_add_u32 s{S_T5}, s{S_T3}, s{S_T4}")
                else:
                    a(f"s_xor_b32 s{S_T5}, s{S_T4}, 8")
                    a(f"s_add_u32 s{S_T5}, s{S_T5}, s{S_T3}")
                a(f"s_add_u32 s{S_T5}, s{S_T5}, {2*g}")
                a(f"v_add_u32 v{T+16}, s{S_T5}, v{T+6}")
                self.magic_div5(T+17, T+16)
                a(f"v_mul_u32_u24 v{T+18}, 5, v{T+17}")
                a(f"v_sub_u32 v{T+18}, v{T+16}, v{T+18}")
                a(f"v_mul_lo_u32 v{T+17}, v{T+17}, s{S_T1}")
                a(f"v_lshlrev_b32 v{T+18}, 8, v{T+18}")
                a(f"v_add_u32 v{T+17}, v{T+17}, v{T+18}")
                a(f"v_lshl_add_u32 v{AD+4*q+g}, v{T}, 3, v{T+17}")
        a(f"s_lshl_b32 s{S_T4}, s{S_MT}, 2")
        a(f"s_lshl_b32 s{S_T5}, s{S_WM}, 1")
        a(f"s_add_u32 s{S_T4}, s{S_T4}, s{S_T5}")
        a(f"s_mul_i32 s{S_T4}, s{S_T4}, s{S_T2}")
        a(f"s_add_u32 s{S_T5}, s{S_T4}, s{S_T2}")
        a(f"s_waitcnt lgkmcnt(0)")
        for tt in range(2):
            a(f"v_mul_f32 v{T+2+2*tt}, s{S_T0}, v{T+2+2*tt}")
            a(f"v_mul_f32 v{T+3+2*tt}, s{S_T0}, v{T+3+2*tt}")
        for tt in range(2):
            for q in range(2):
                for g in range(4):
                    for i in range(4):
                        r = A + 16*(2*tt+q) + 4*g + i
                        a(f"v_mul_f32 v{r}, v{T+2+2*tt}, v{r}")
                        a(f"v_fmac_f32 v{r}, v{T+3+2*tt}, v{CSR+16*q+4*g+i}")
                    r = A + 16*(2*tt+q) + 4*g
                    a(f"v_cvt_pk_bf16_f32 v{r}, v{r}, v{r+1}")
                    a(f"v_cvt_pk_bf16_f32 v{r+1}, v{r+2}, v{r+3}")
                    a(f"buffer_store_dwordx2 v[{r}:{r+1}], v{AD+4*q+g}, s[{SRD_O}:{SRD_O+3}], s{S_T4+tt} offen sc1")

    def p1_epi_N(self):
        a = self.a
        T = self.V_T; A = self.V_ACC
        AB = self.V_FR; BB = self.V_FR + 16
        a(f"v_and_b32 v{T}, 31, v1")
        a(f"v_lshrrev_b32 v{T+6}, 5, v1")
        a(f"s_lshl_b32 s{S_T0}, s{S_WM}, 8")
        a(f"v_lshlrev_b32 v{T+4}, 4, v{T+6}")
        a(f"v_add_u32 v{T+4}, s{S_T0}, v{T+4}")
        a(f"v_add_u32 v{T+4}, {LDS_STATS}, v{T+4}")
        a(f"s_mov_b32 s{S_T2}, 163840")
        for q in range(2):
            a(f"s_xor_b32 s{S_T0}, s{S_WM}, {q}")
            a(f"s_lshl_b32 s{S_T0}, s{S_T0}, 5")
            a(f"s_lshl_b32 s{S_T1}, s{S_WN}, 6")
            a(f"s_add_u32 s{S_T0}, s{S_T0}, s{S_T1}")
            a(f"v_add_u32 v{T+1}, s{S_T0}, v{T}")
            a(f"v_lshlrev_b32 v{T+2}, 2, v{T+1}")
            a(f"v_add_u32 v{T+2}, {LDS_STATS+ST_CS}, v{T+2}")
            a(f"ds_read_b32 v{T+10+q}, v{T+2}")
            a(f"s_sub_u32 s{S_T1}, s{S_NT}, 10")
            a(f"s_lshl_b32 s{S_T1}, s{S_T1}, 7")
            a(f"v_add_u32 v{T+7}, s{S_T1}, v{T+1}")
            self.magic_div20(T+8, T+7)
            a(f"v_mul_u32_u24 v{T+9}, 20, v{T+8}")
            a(f"v_sub_u32 v{T+9}, v{T+7}, v{T+9}")
            a(f"v_mul_lo_u32 v{T+8}, v{T+8}, s{S_T2}")
            a(f"v_lshlrev_b32 v{T+9}, 4, v{T+9}")
            a(f"v_add_u32 v{T+8}, v{T+8}, v{T+9}")
            a(f"v_mul_u32_u24 v{T+9}, 320, v{T+6}")
            a(f"v_add_u32 v{T+8}, v{T+8}, v{T+9}")
            a(f"v_add_u32 v{T+12+q}, 1280, v{T+8}")
        self.srd(SRD_O, S_WS, OFF_KV, SZ_KV)
        a(f"s_lshl_b32 s{S_T4}, s{S_MT}, 2")
        a(f"s_lshl_b32 s{S_T5}, s{S_WM}, 1")
        a(f"s_add_u32 s{S_T4}, s{S_T4}, s{S_T5}")
        a(f"s_mul_i32 s{S_T4}, s{S_T4}, 2560")
        a(f"s_add_u32 s{S_T5}, s{S_T4}, 2560")
        for tt in range(2):
            for g in range(4):
                a(f"ds_read_b128 v[{AB+4*g}:{AB+4*g+3}], v{T+4} offset:{ST_AA + 128*tt + 32*g}")
                a(f"ds_read_b128 v[{BB+4*g}:{BB+4*g+3}], v{T+4} offset:{ST_BB + 128*tt + 32*g}")
            a(f"s_waitcnt lgkmcnt(0)")
            for q in range(2):
                for r in range(16):
                    R = A + 16*(2*tt+q) + r
                    a(f"v_mul_f32 v{R}, v{AB+r}, v{R}")
                    a(f"v_fmac_f32 v{R}, v{BB+r}, v{T+10+q}")
                for st in range(2):
                    R = A + 16*(2*tt+q) + 8*st
                    for z in range(4):
                        a(f"v_cvt_pk_bf16_f32 v{R+z}, v{R+2*z}, v{R+2*z+1}")
                    a(f"buffer_store_dwordx4 v[{R}:{R+3}], v{T+12+q}, s[{SRD_O}:{SRD_O+3}], s{S_T4+tt} offen offset:{640*st} sc1")

    def relayout_unit(self):
        pass

    def relayout_load(self):
        a = self.a
        T = self.V_T
        Lskip = "L_rl_skip1"
        a(f"s_mul_i32 s{S_T0}, s2, 3")
        a(f"s_sub_u32 s{S_T5}, s{S_W}, 4")
        a(f"s_add_u32 s{S_T0}, s{S_T0}, s{S_T5}")
        a(f"s_cmp_ge_u32 s{S_T5}, 3")
        a(f"s_cbranch_scc1 {Lskip}")
        a(f"s_cmp_ge_u32 s{S_T0}, 740")
        a(f"s_cbranch_scc1 {Lskip}")
        a(f"s_cmp_lt_u32 s{S_T0}, 540")
        a(f"s_cselect_b32 s{S_T1}, 0, 540")
        a(f"s_cselect_b32 s{SRD_T}, s{S_W2}, s{S_WO}")
        a(f"s_cselect_b32 s{SRD_T+1}, s{S_W2+1}, s{S_WO+1}")
        self.csel(SRD_T+2, 1728*1280, 640*1280)
        a(f"s_mov_b32 s{SRD_T+3}, 0x20000")
        a(f"s_sub_u32 s{S_T1}, s{S_T0}, s{S_T1}")
        a(f"s_mul_hi_u32 s{S_T2}, s{S_T1}, {hex((2**32+9)//10)}")
        a(f"s_mul_i32 s{S_T3}, s{S_T2}, 10")
        a(f"s_sub_u32 s{S_T3}, s{S_T1}, s{S_T3}")
        a(f"v_lshrrev_b32 v{T}, 3, v1")
        a(f"v_mul_u32_u24 v{T}, 1280, v{T}")
        a(f"v_and_b32 v{T+1}, 7, v1")
        a(f"v_lshl_add_u32 v{T}, v{T+1}, 4, v{T}")
        a(f"s_mul_i32 s{S_T2}, s{S_T2}, {32*1280}")
        a(f"s_lshl_b32 s{S_T3}, s{S_T3}, 7")
        a(f"s_add_u32 s{S_T2}, s{S_T2}, s{S_T3}")
        a(f"s_lshl_b32 s{S_T3}, s{S_T5}, 12")
        a(f"s_add_u32 m0, s{S_T3}, {LDS_RL}")
        for jj in range(4):
            a(f"s_nop 0")
            a(f"buffer_load_dwordx4 v{T}, s[{SRD_T}:{SRD_T+3}], s{S_T2} offen lds")
            if jj < 3:
                a(f"s_add_u32 m0, m0, 1024")
                a(f"s_add_u32 s{S_T2}, s{S_T2}, {8*1280}")
        a.put(Lskip)

    def relayout_store(self):
        a = self.a
        T = self.V_T
        Lskip = "L_rl_skip2"
        a(f"s_mul_i32 s{S_T0}, s2, 3")
        a(f"s_sub_u32 s{S_RLW}, s{S_W}, 4")
        a(f"s_add_u32 s{S_T0}, s{S_T0}, s{S_RLW}")
        a(f"s_cmp_ge_u32 s{S_RLW}, 3")
        a(f"s_cbranch_scc1 {Lskip}")
        a(f"s_cmp_ge_u32 s{S_T0}, 740")
        a(f"s_cbranch_scc1 {Lskip}")
        a(f"s_cmp_lt_u32 s{S_T0}, 540")
        a(f"s_cselect_b32 s{S_T1}, 0, 540")
        self.csel(S_T4, hex(OFF_W2P), hex(OFF_WOP))
        self.csel(S_T5, hex(SZ_W2P), hex(SZ_WOP))
        a(f"s_sub_u32 s{S_T1}, s{S_T0}, s{S_T1}")
        a(f"s_add_u32 s{SRD_T}, s{S_WS}, s{S_T4}")
        a(f"s_addc_u32 s{SRD_T+1}, s{S_WS+1}, 0")
        a(f"s_mov_b32 s{SRD_T+2}, s{S_T5}")
        a(f"s_mov_b32 s{SRD_T+3}, 0x20000")
        a(f"s_mul_hi_u32 s{S_T2}, s{S_T1}, {hex((2**32+9)//10)}")
        a(f"s_mul_i32 s{S_T3}, s{S_T2}, 10")
        a(f"s_sub_u32 s{S_T3}, s{S_T1}, s{S_T3}")
        a(f"s_mul_i32 s{S_T2}, s{S_T2}, 40")
        a(f"s_lshl_b32 s{S_T3}, s{S_T3}, 2")
        a(f"s_add_u32 s{S_T2}, s{S_T2}, s{S_T3}")
        a(f"s_lshl_b32 s{S_T2}, s{S_T2}, 10")
        a(f"v_lshrrev_b32 v{T}, 4, v1")
        a(f"v_lshlrev_b32 v{T}, 3, v{T}")
        a(f"v_bfe_u32 v{T+1}, v1, 2, 2")
        a(f"v_add_u32 v{T}, v{T}, v{T+1}")
        a(f"v_lshlrev_b32 v{T}, 7, v{T}")
        a(f"v_and_b32 v{T+1}, 3, v1")
        a(f"v_lshl_add_u32 v{T}, v{T+1}, 3, v{T}")
        a(f"s_lshl_b32 s{S_T3}, s{S_RLW}, 12")
        a(f"s_add_u32 s{S_T3}, s{S_T3}, {LDS_RL}")
        a(f"v_add_u32 v{T}, s{S_T3}, v{T}")
        a(f"v_lshlrev_b32 v{T+1}, 4, v1")
        O = T + 4
        for tq in range(4):
            a(f"ds_read_b64_tr_b16 v[{O+4*tq}:{O+4*tq+1}], v{T} offset:{32*tq}")
            a(f"ds_read_b64_tr_b16 v[{O+4*tq+2}:{O+4*tq+3}], v{T} offset:{32*tq+512}")
        a(f"s_waitcnt lgkmcnt(0)")
        for tq in range(4):
            a(f"buffer_store_dwordx4 v[{O+4*tq}:{O+4*tq+3}], v{T+1}, s[{SRD_T}:{SRD_T+3}], s{S_T2} offen offset:{1024*tq} sc1")
        a.put(Lskip)

    def p1(self):
        a = self.a
        a(f"s_and_b32 s{S_T0}, s{S_GX}, 3")
        a(f"s_lshl_b32 s{S_T0}, s{S_T0}, 2")
        a(f"s_and_b32 s{S_T1}, s{S_GI}, 3")
        a(f"s_add_u32 s{S_MT}, s{S_T0}, s{S_T1}")
        a(f"s_lshr_b32 s{S_T0}, s{S_GX}, 2")
        a(f"s_lshl_b32 s{S_T0}, s{S_T0}, 3")
        a(f"s_lshr_b32 s{S_T2}, s{S_GI}, 2")
        a(f"s_add_u32 s{S_NT}, s{S_T0}, s{S_T2}")
        a(f"s_mul_i32 s{S_T1}, s{S_T1}, 3")
        a(f"s_add_u32 s{S_KK}, s{S_T1}, s{S_T2}")
        a(f"s_cmp_ge_u32 s{S_KK}, 10")
        a(f"s_cselect_b32 s{S_T0}, 10, 0")
        a(f"s_sub_u32 s{S_KK}, s{S_KK}, s{S_T0}")
        self.aux_A = ""
        self.st1 = 1
        a(f"s_cmp_lt_u32 s{S_W}, 4")
        a(f"s_cbranch_scc1 L_p1_compute")
        self.g1_setup_loader(3840)
        a(f"s_waitcnt lgkmcnt(0)")
        if "p1s" in self.opt: self.stamp(15)
        self.srd(SRD_A, S_X, 0, 2048*1280)
        self.srd(SRD_W, S_WQKV, 0, 640*3840)
        a(f"s_cmp_ge_u32 s{S_NT}, 15")
        a(f"s_cbranch_scc1 L_p1_null0")
        self.g1_dma_stage(3840)
        a.put("L_p1_null0")
        if "p1s" in self.opt: self.stamp(16)
        self.relayout_load()
        a(f"s_load_dword s{S_TAG}, s[{S_WS}:{S_WS+1}], {OFF_EPOCH}")
        self.srd(SRD_F, S_WS, 0, 0x100000)
        a(f"s_cmp_ge_u32 s{S_NT}, 15")
        a(f"s_cbranch_scc1 L_p1_lnull")
        for s_ in range(self.NSLOT - 2):
            self.g1_dma_stage(3840)
        a(f"s_waitcnt lgkmcnt(0)")
        if "p1s" in self.opt: self.stamp(17)
        self.g1_loader(3840, "p1")
        a.put("L_p1_lnull")
        a(f"s_waitcnt vmcnt(0)")
        self.relayout_store()
        a(f"s_branch L_p1_done")
        a.put("L_p1_compute")
        if "nowarm" not in self.opt: self.code_warm()
        a(f"s_waitcnt lgkmcnt(0)")
        a(f"s_load_dword s{S_TAG}, s[{S_WS}:{S_WS+1}], {OFF_EPOCH}")
        self.srd(SRD_F, S_WS, 0, 0x100000)
        a(f"s_cmp_ge_u32 s{S_NT}, 15")
        a(f"s_cbranch_scc1 L_p1_done")
        a(f"s_cmp_ge_u32 s{S_NT}, 10")
        a(f"s_cbranch_scc1 L_p1_N")
        self.g1_compute("T", "p1T")
        self.stamp(2)
        self.p1_epi_T()
        a(f"s_branch L_p1_done")
        a.put("L_p1_N")
        self.g1_compute("N", "p1N")
        self.stamp(2)
        self.p1_epi_N()
        a.put("L_p1_done")
        self.stamp(3)
        a(f"s_waitcnt vmcnt(0)")
        self.stamp(4)

    def poll(self, addr_regs, masks, tagname):
        a = self.a
        T = self.V_T
        L = f"L_{tagname}_poll"; Lo = f"L_{tagname}_pollok"
        a(f"s_mov_b32 s{S_T0}, 0")
        a.put(L)
        for k, (ar, mk) in enumerate(zip(addr_regs, masks)):
            self.set_exec(mk)
            a(f"buffer_load_dword v{T+20+k}, v{ar}, s[{SRD_F}:{SRD_F+3}], 0 offen sc1")
        a(f"s_waitcnt vmcnt(0)")
        a(f"s_mov_b64 s[{S_SAVE}:{S_SAVE+1}], 0")
        for k, (ar, mk) in enumerate(zip(addr_regs, masks)):
            self.set_exec(mk)
            a(f"v_cmp_ne_u32 vcc, s{S_TAG}, v{T+20+k}")
            a(f"s_or_b64 s[{S_SAVE}:{S_SAVE+1}], s[{S_SAVE}:{S_SAVE+1}], vcc")
        a(f"s_mov_b64 exec, -1")
        a(f"s_cmp_eq_u64 s[{S_SAVE}:{S_SAVE+1}], 0")
        a(f"s_cbranch_scc1 {Lo}")
        a(f"s_add_u32 s{S_T0}, s{S_T0}, 1")
        a(f"s_cmp_lt_u32 s{S_T0}, 0x40000")
        a(f"s_cbranch_scc1 {L}")
        a.put(Lo)

    def p1_signal(self):
        a = self.a
        T = self.V_T
        a(f"s_waitcnt vmcnt(0) lgkmcnt(0)")
        a(f"s_barrier")
        self.finish_tag_once()
        Ls = "L_p1sig_skip"
        a(f"s_cmp_lg_u32 s{S_W}, 0")
        a(f"s_cbranch_scc1 {Ls}")
        a(f"v_lshrrev_b32 v{T}, 3, v1")
        a(f"v_and_b32 v{T+1}, 7, v1")
        Ln = "L_p1sig_null"; Lj = "L_p1sig_join"
        a(f"s_cmp_eq_u32 s{S_NT}, 15")
        a(f"s_cbranch_scc1 {Ln}")
        a(f"s_cmp_ge_u32 s{S_NT}, 10")
        a(f"s_cselect_b32 s{S_T0}, 10, 5")
        a(f"s_cmp_lt_u32 s{S_NT}, 5")
        a(f"s_cselect_b32 s{S_T0}, 0, s{S_T0}")
        a(f"s_sub_u32 s{S_T0}, s{S_NT}, s{S_T0}")
        a(f"s_lshl_b32 s{S_T0}, s{S_T0}, 7")
        a(f"s_mul_i32 s{S_T1}, s{S_T0}, 52429")
        a(f"s_lshr_b32 s{S_T1}, s{S_T1}, 20")
        a(f"s_add_u32 s{S_T2}, s{S_T0}, 127")
        a(f"s_mul_i32 s{S_T2}, s{S_T2}, 52429")
        a(f"s_lshr_b32 s{S_T2}, s{S_T2}, 20")
        a(f"s_min_u32 s{S_T2}, s{S_T2}, 31")
        a(f"v_add_u32 v{T+2}, s{S_T1}, v{T}")
        a(f"v_cmp_ge_u32 vcc, s{S_T2}, v{T+2}")
        a(f"s_mov_b64 s[{S_SAVE}:{S_SAVE+1}], vcc")
        a(f"s_cmp_lt_u32 s{S_NT}, 5")
        a(f"s_cbranch_scc0 {Lj}")
        a(f"s_lshr_b32 s{S_T3}, s{S_MT}, 1")
        a(f"v_cmp_eq_u32 vcc, s{S_T3}, v{T+1}")
        a(f"s_and_b64 s[{S_SAVE}:{S_SAVE+1}], s[{S_SAVE}:{S_SAVE+1}], vcc")
        a(f"s_branch {Lj}")
        a.put(Ln)
        a(f"v_lshlrev_b32 v{T+2}, 4, v{T}")
        a(f"v_add_u32 v{T+2}, s{S_MT}, v{T+2}")
        a(f"v_cmp_gt_u32 vcc, 2, v{T}")
        a(f"s_mov_b64 s[{S_SAVE}:{S_SAVE+1}], vcc")
        a.put(Lj)
        a(f"v_lshl_add_u32 v{T+2}, v{T+2}, 3, v{T+1}")
        a(f"v_lshlrev_b32 v{T+2}, 10, v{T+2}")
        a(f"s_lshl_b32 s{S_T0}, s2, 2")
        a(f"s_add_u32 s{S_T0}, s{S_T0}, {OFF_MB1}")
        a(f"v_add_u32 v{T+2}, s{S_T0}, v{T+2}")
        a(f"v_mov_b32 v{T+3}, s{S_TAG}")
        a(f"s_mov_b64 exec, s[{S_SAVE}:{S_SAVE+1}]")
        a(f"buffer_store_dword v{T+3}, v{T+2}, s[{SRD_F}:{SRD_F+3}], 0 offen sc1")
        a(f"s_mov_b64 exec, -1")
        a.put(Ls)

    def finish_tag_once(self):
        a = self.a
        a(f"s_mul_i32 s{S_TAG}, s{S_TAG}, 0x9E3779B1")
        a(f"s_add_u32 s{S_TAG}, s{S_TAG}, 0x7F4A7C15")

    def p2_wait(self):
        a = self.a
        T = self.V_T
        Ls = "L_p2w_skip"
        a(f"s_cmp_lg_u32 s{S_W}, 0")
        a(f"s_cbranch_scc1 {Ls}")
        a(f"s_mul_i32 s{S_T1}, s{S_GI}, 20")
        a(f"v_bfe_u32 v{T}, v1, 4, 1")
        a(f"v_mul_u32_u24 v{T}, 19, v{T}")
        a(f"v_add_u32 v{T}, s{S_T1}, v{T}")
        a(f"v_lshrrev_b32 v{T}, 7, v{T}")
        a(f"v_lshrrev_b32 v{T+1}, 5, v1")
        a(f"v_mul_u32_u24 v{T+1}, 5, v{T+1}")
        a(f"v_add_u32 v{T+2}, v{T}, v{T+1}")
        a(f"v_add_u32 v{T+2}, 5, v{T+2}")
        a(f"v_and_b32 v{T+3}, 15, v1")
        self.vprod(T+4, T+3, T+2, T+8)
        a(f"v_bfe_u32 v{T}, v1, 1, 1")
        a(f"v_mul_u32_u24 v{T}, 19, v{T}")
        a(f"v_add_u32 v{T}, s{S_T1}, v{T}")
        a(f"v_lshrrev_b32 v{T+2}, 7, v{T}")
        a(f"v_and_b32 v{T+3}, 1, v1")
        a(f"s_lshl_b32 s{S_T2}, s{S_GX}, 1")
        a(f"v_add_u32 v{T+3}, s{S_T2}, v{T+3}")
        a(f"v_cmp_eq_u32 vcc, 4, v1")
        a(f"s_and_b32 s{S_T2}, s{S_GI}, 15")
        a(f"v_mov_b32 v{T+6}, s{S_T2}")
        a(f"v_mov_b32 v{T+7}, 15")
        a(f"v_cndmask_b32 v{T+3}, v{T+3}, v{T+6}, vcc")
        a(f"v_cndmask_b32 v{T+2}, v{T+2}, v{T+7}, vcc")
        self.vprod(T+5, T+3, T+2, T+8)
        a(f"s_lshl_b32 s{S_T2}, s2, 10")
        a(f"s_add_u32 s{S_T2}, s{S_T2}, {OFF_MB1}")
        for r in (T+4, T+5):
            a(f"v_lshlrev_b32 v{r}, 2, v{r}")
            a(f"v_add_u32 v{r}, s{S_T2}, v{r}")
        self.poll([T+4, T+5], ["-1", "0x1f"], "p2w")
        a.put(Ls)
        a(f"s_barrier")

    def vprod(self, dst, mt, nt, tmp):
        a = self.a
        a(f"v_and_b32 v{dst}, 3, v{mt}")
        a(f"v_and_b32 v{tmp}, 7, v{nt}")
        a(f"v_lshl_add_u32 v{dst}, v{tmp}, 2, v{dst}")
        a(f"v_lshlrev_b32 v{dst}, 3, v{dst}")
        a(f"v_lshrrev_b32 v{tmp}, 2, v{mt}")
        a(f"v_add_u32 v{dst}, v{dst}, v{tmp}")
        a(f"v_lshrrev_b32 v{tmp}, 3, v{nt}")
        a(f"v_lshl_add_u32 v{dst}, v{tmp}, 2, v{dst}")

    def group_barrier(self, phase, tagname):
        a = self.a
        T = self.V_T
        a(f"s_waitcnt vmcnt(0) lgkmcnt(0)")
        a(f"s_barrier")
        Ls = f"L_{tagname}_gskip"
        a(f"s_cmp_lg_u32 s{S_W}, 0")
        a(f"s_cbranch_scc1 {Ls}")
        a(f"v_lshlrev_b32 v{T}, 3, v1")
        a(f"v_add_u32 v{T}, s{S_GX}, v{T}")
        a(f"v_lshlrev_b32 v{T}, 7, v{T}")
        a(f"s_lshl_b32 s{S_T1}, s{S_GI}, 2")
        a(f"s_add_u32 s{S_T1}, s{S_T1}, {OFF_GB + phase*256*128}")
        a(f"v_add_u32 v{T}, s{S_T1}, v{T}")
        a(f"v_mov_b32 v{T+1}, s{S_TAG}")
        self.set_exec(0xffffffff)
        a(f"buffer_store_dword v{T+1}, v{T}, s[{SRD_F}:{SRD_F+3}], 0 offen sc1")
        a(f"s_mov_b64 exec, -1")
        a(f"s_lshl_b32 s{S_T0}, s2, 7")
        a(f"s_add_u32 s{S_T0}, s{S_T0}, {OFF_GB + phase*256*128}")
        a(f"v_lshlrev_b32 v{T+2}, 2, v1")
        a(f"v_add_u32 v{T+2}, s{S_T0}, v{T+2}")
        self.poll([T+2], ["0xffffffff"], tagname)
        a.put(Ls)
        a(f"s_barrier")

    A_QA = 4; A_QB = 12
    A_K = 20
    A_V1 = 36; A_V2 = 40
    A_SA = 44; A_SB = 60; A_P = 76; A_OA = 84; A_OB = 100; A_AK = 116; A_AV = 117; A_DV = 118; A_T = 120
    S_VMASK = 92
    S_NEXTB = 94; S_DSO = 95

    def p2_kreads(self, kb, toff):
        a = self.a
        K = self.A_K + 8*kb
        a(f"ds_read_b64 v[{K}:{K+1}], v{self.A_AK} offset:{toff}")
        a(f"ds_read_b64 v[{K+2}:{K+3}], v{self.A_AK} offset:{toff+256}")
        a(f"ds_read_b64 v[{K+4}:{K+5}], v{self.A_AK} offset:{toff+1024}")
    def p2_vread(self, which, toff):
        a = self.a
        R = self.A_V1 if which == 0 else self.A_V2
        a(f"s_mov_b64 exec, s[{self.S_VMASK}:{self.S_VMASK+1}]")
        a(f"ds_read_b128 v[{R}:{R+3}], v{self.A_AV} offset:{toff+640*which}")
        a(f"s_mov_b64 exec, -1")
    def p2_smfma(self, which, S, kb, Q):
        a = self.a
        K = self.A_K + 8*kb
        if which == 0:
            a(f"v_mfma_f32_32x32x16_bf16 v[{S}:{S+15}], v[{K}:{K+3}], v[{Q}:{Q+3}], 0")
        else:
            a(f"v_mfma_f32_32x32x16_bf16 v[{S}:{S+15}], v[{K+4}:{K+7}], v[{Q+4}:{Q+7}], v[{S}:{S+15}]")

    def p2_sub(self, stream, u):
        a = self.a
        P = self.A_P
        Sc, Sn = (self.A_SA, self.A_SB) if stream == 0 else (self.A_SB, self.A_SA)
        Oc, Op = (self.A_OA, self.A_OB) if stream == 0 else (self.A_OB, self.A_OA)
        Qn = self.A_QB if stream == 0 else self.A_QA
        kb = u if stream == 0 else 1 - u
        ex = lambda i: a(f"v_exp_f32 v{Sc+i}, v{Sc+i}")
        cv = lambda k: a(f"v_cvt_pk_bf16_f32 v{P+k}, v{Sc+2*k}, v{Sc+2*k+1}")
        cvp = lambda k: a(f"v_cvt_pk_bf16_f32 v{P+k}, v{Sn+2*k}, v{Sn+2*k+1}")
        if "p2prio" in self.opt:
            a(f"s_setprio {self.prio_reg(stream)}")
        ex(0); cvp(6); ex(1); ex(2); cvp(7); ex(3)
        if stream == 1: a(f"s_waitcnt lgkmcnt(1)")
        self.p2_smfma(0, Sn, kb, Qn)
        ex(4); cv(0); ex(5); ex(6); cv(1); ex(7)
        self.p2_smfma(1, Sn, kb, Qn)
        if stream == 0:
            pass
        ex(8); cv(2); ex(9); ex(10); cv(3); ex(11)
        if stream == 1: a(f"s_waitcnt lgkmcnt(0)")
        a(f"v_mfma_f32_32x32x16_bf16 v[{Op}:{Op+15}], v[{self.A_V2}:{self.A_V2+3}], v[{P+4}:{P+7}], v[{Op}:{Op+15}]")
        if stream == 0:
            self.p2_vread(1, u*2560)
        ex(12); cv(4); ex(13); ex(14); cv(5); ex(15)
        if stream == 0: a(f"s_waitcnt lgkmcnt(1)")
        a(f"v_mfma_f32_32x32x16_bf16 v[{Oc}:{Oc+15}], v[{self.A_V1}:{self.A_V1+3}], v[{P}:{P+3}], v[{Oc}:{Oc+15}]")
        if stream == 1:
            self.p2_vread(0, (u+1)*2560)
            self.p2_kreads(u, (u+2)*2560)

    def prio_reg(self, stream):
        return self._prio[stream]

    def p2_dma(self, n):
        a = self.a
        for i in range(n):
            a(f"s_mov_b32 m0, s{self.S_DSO}")
            a(f"s_nop 0")
            a(f"buffer_load_dwordx4 v{self.A_DV}, s[{SRD_A}:{SRD_A+3}], s{self.S_DSO} offen sc1 lds")
            a(f"s_add_u32 s{self.S_DSO}, s{self.S_DSO}, 4096")

    def p2(self):
        a = self.a
        T = self.A_T
        self.stamp(5)
        self.p2_wait()
        self.stamp(6)
        a(f"s_mul_i32 s{S_T0}, s{S_GI}, 163840")
        a(f"s_add_u32 s{S_T0}, s{S_T0}, {hex(OFF_KV)}")
        a(f"s_add_u32 s{SRD_A}, s{S_WS}, s{S_T0}")
        a(f"s_addc_u32 s{SRD_A+1}, s{S_WS+1}, 0")
        a(f"s_mov_b32 s{SRD_A+2}, 163840")
        a(f"s_mov_b32 s{SRD_A+3}, 0x20000")
        a(f"s_lshl_b32 s{S_T0}, s{S_GI}, 6")
        a(f"s_lshl_b32 s{S_T1}, s{S_GX}, 3")
        a(f"s_add_u32 s{S_T0}, s{S_T0}, s{S_T1}")
        a(f"s_and_b32 s{S_T1}, s{S_W}, 3")
        a(f"s_lshl_b32 s{S_T1}, s{S_T1}, 1")
        a(f"s_add_u32 s{S_T0}, s{S_T0}, s{S_T1}")
        a(f"s_mul_i32 s{S_T0}, s{S_T0}, 1280")
        a(f"s_add_u32 s{S_T0}, s{S_T0}, {hex(OFF_Q)}")
        a(f"s_add_u32 s{SRD_W}, s{S_WS}, s{S_T0}")
        a(f"s_addc_u32 s{SRD_W+1}, s{S_WS+1}, 0")
        a(f"s_mov_b32 s{SRD_W+2}, 2560")
        a(f"s_mov_b32 s{SRD_W+3}, 0x20000")
        a(f"v_and_b32 v{T}, 31, v1")
        a(f"v_lshrrev_b32 v{T+1}, 5, v1")
        a(f"v_lshlrev_b32 v{T+2}, 3, v{T}")
        a(f"v_lshl_add_u32 v{self.A_AK}, v{T+1}, 9, v{T+2}")
        a(f"v_lshlrev_b32 v{T+3}, 12, v{T+1}")
        a(f"v_add_u32 v{T+3}, v{T+3}, v{T+2}")
        for qi, Q in enumerate((self.A_QA, self.A_QB)):
            a(f"buffer_load_dwordx2 v[{Q}:{Q+1}], v{self.A_AK}, s[{SRD_W}:{SRD_W+3}], 0 offen offset:{1280*qi} sc1")
            a(f"buffer_load_dwordx2 v[{Q+2}:{Q+3}], v{self.A_AK}, s[{SRD_W}:{SRD_W+3}], 0 offen offset:{1280*qi+256} sc1")
            a(f"buffer_load_dwordx2 v[{Q+4}:{Q+5}], v{T+3}, s[{SRD_W}:{SRD_W+3}], 0 offen offset:{1280*qi+1024} sc1")
        a(f"v_lshlrev_b32 v{self.A_DV}, 4, v1")
        a(f"s_lshr_b32 s{S_T0}, s{S_W}, 2")
        a(f"s_mul_i32 s{S_T0}, s{S_T0}, 81920")
        a(f"s_and_b32 s{S_T1}, s{S_W}, 3")
        a(f"s_lshl_b32 s{S_T1}, s{S_T1}, 10")
        a(f"s_add_u32 s{self.S_DSO}, s{S_T0}, s{S_T1}")
        self.p2_dma(7)
        for Q in (self.A_QA, self.A_QB):
            a(f"v_mov_b32 v{Q+6}, 0"); a(f"v_mov_b32 v{Q+7}, 0")
        for kb in range(2):
            a(f"v_mov_b32 v{self.A_K+8*kb+6}, 0"); a(f"v_mov_b32 v{self.A_K+8*kb+7}, 0")
        a(f"v_cmp_eq_u32 vcc, 20, v{T}")
        a(f"v_mov_b32 v{T+5}, 0x3f803f80")
        a(f"v_mul_u32_u24 v{T+6}, 320, v{T+1}")
        a(f"v_cndmask_b32 v{self.A_V1}, 0, v{T+5}, vcc")
        for r in range(1, 8):
            a(f"v_mov_b32 v{self.A_V1+r}, v{self.A_V1}")
        a(f"v_lshl_add_u32 v{self.A_AV}, v{T}, 4, v{T+6}")
        a(f"v_add_u32 v{self.A_AV}, 1280, v{self.A_AV}")
        a(f"v_add_u32 v{self.A_AK}, s{S_T0}, v{self.A_AK}")
        a(f"v_add_u32 v{self.A_AV}, s{S_T0}, v{self.A_AV}")
        a(f"s_mov_b32 s{self.S_VMASK}, 0xfffff")
        a(f"s_mov_b32 s{self.S_VMASK+1}, 0xfffff")
        for r in range(16):
            a(f"v_mov_b32 v{self.A_OA+r}, 0"); a(f"v_mov_b32 v{self.A_OB+r}, 0")
        for r in range(8):
            a(f"v_mov_b32 v{self.A_P+r}, 0")
        for r in range(12, 16):
            a(f"v_mov_b32 v{self.A_SB+r}, 0")
        a(f"s_waitcnt vmcnt(3)")
        a(f"s_barrier")
        self.stamp(7)
        self.p2_dma(2)
        self.p2_kreads(0, 0)
        self.p2_kreads(1, 2560)
        self.p2_vread(0, 0)
        self.p2_vread(1, 0)
        a(f"s_waitcnt lgkmcnt(0)")
        self.p2_smfma(0, self.A_SA, 0, self.A_QA); self.p2_smfma(1, self.A_SA, 0, self.A_QA)
        a(f"s_mov_b32 s{S_CNT}, 0")
        a(f"s_mov_b32 s{self.S_NEXTB}, 2")
        a(f"s_nop 7"); a(f"s_nop 3")
        self._prio = (1, 0)
        a.put("L_p2_loop")
        if "p2nobar" not in self.opt:
            a(f"s_cmp_eq_u32 s{S_CNT}, s{self.S_NEXTB}")
            a(f"s_cbranch_scc1 L_p2_wait")
        a.put("L_p2_back")
        if "p2prio" in self.opt:
            pass
        for u in range(2):
            self.p2_sub(0, u)
            self.p2_sub(1, u)
        a(f"v_add_u32 v{self.A_AK}, 5120, v{self.A_AK}")
        a(f"v_add_u32 v{self.A_AV}, 5120, v{self.A_AV}")
        a(f"s_add_u32 s{S_CNT}, s{S_CNT}, 1")
        a(f"s_cmp_lt_u32 s{S_CNT}, 16")
        a(f"s_cbranch_scc1 L_p2_loop")
        a(f"s_branch L_p2_done")
        a.put("L_p2_wait")
        plan = ((2, 2, 3), (4, 3, 2), (6, 2, 3), (8, 3, 2), (10, 2, 1), (12, 1, 0), (14, 0, 0))
        for (cnt, vm, nd) in plan:
            Ln = f"L_p2_w{cnt}"
            a(f"s_cmp_lg_u32 s{S_CNT}, {cnt}")
            a(f"s_cbranch_scc1 {Ln}")
            a(f"s_waitcnt vmcnt({vm})")
            a(f"s_barrier")
            self.p2_dma(nd)
            a(f"s_add_u32 s{self.S_NEXTB}, s{self.S_NEXTB}, 2")
            a(f"s_branch L_p2_back")
            a.put(Ln)
        a(f"s_branch L_p2_back")
        a.put("L_p2_done")
        P = self.A_P; SBr = self.A_SB
        a(f"s_waitcnt lgkmcnt(0)")
        a(f"v_cvt_pk_bf16_f32 v{P+6}, v{SBr+12}, v{SBr+13}")
        a(f"v_cvt_pk_bf16_f32 v{P+7}, v{SBr+14}, v{SBr+15}")
        a(f"s_nop 1")
        a(f"v_mfma_f32_32x32x16_bf16 v[{self.A_OB}:{self.A_OB+15}], v[{self.A_V2}:{self.A_V2+3}], v[{P+4}:{P+7}], v[{self.A_OB}:{self.A_OB+15}]")
        self.stamp(8)
        self.p2_epilogue()

    def p2_epilogue(self):
        a = self.a
        T = self.A_T
        a(f"s_nop 7"); a(f"s_nop 3")
        a(f"s_barrier")
        a(f"s_and_b32 s{S_T0}, s{S_W}, 3")
        a(f"s_lshr_b32 s{S_T1}, s{S_W}, 2")
        a(f"s_lshl_b32 s{S_T0}, s{S_T0}, 1")
        a(f"s_add_u32 s{S_T2}, s{S_T0}, s{S_T1}")
        a(f"s_xor_b32 s{S_T3}, s{S_T2}, 1")
        a(f"s_mul_i32 s{S_T2}, s{S_T2}, 3072")
        a(f"s_mul_i32 s{S_T3}, s{S_T3}, 3072")
        a(f"v_lshlrev_b32 v{T}, 4, v1")
        a(f"v_add_u32 v{T+1}, s{S_T2}, v{T}")
        a(f"v_add_u32 v{T+2}, s{S_T3}, v{T}")
        Lk1 = "L_p2e_k1"; Lj = "L_p2e_j"
        a(f"s_cmp_eq_u32 s{S_T1}, 1")
        a(f"s_cbranch_scc1 {Lk1}")
        for g in range(3):
            a(f"ds_write_b128 v{T+1}, v[{self.A_OB+4*g}:{self.A_OB+4*g+3}] offset:{1024*g}")
        a(f"s_branch {Lj}")
        a.put(Lk1)
        for g in range(3):
            a(f"ds_write_b128 v{T+1}, v[{self.A_OA+4*g}:{self.A_OA+4*g+3}] offset:{1024*g}")
        for r in range(12):
            a(f"v_mov_b32 v{self.A_OA+r}, v{self.A_OB+r}")
        a.put(Lj)
        a(f"s_waitcnt lgkmcnt(0)")
        a(f"s_barrier")
        O = self.A_OA; X = self.A_SA
        for g in range(3):
            a(f"ds_read_b128 v[{X+4*g}:{X+4*g+3}], v{T+2} offset:{1024*g}")
        a(f"s_waitcnt lgkmcnt(0)")
        for r in range(12):
            a(f"v_add_f32 v{O+r}, v{O+r}, v{X+r}")
        a(f"v_mov_b32 v{T}, v{O+8}")
        a(f"v_mov_b32 v{T+1}, v{O+8}")
        a(f"s_nop 1")
        a(f"v_permlane32_swap_b32 v{T}, v{T+1}")
        a(f"s_nop 1")
        a(f"v_rcp_f32 v{T+2}, v{T+1}")
        a(f"s_nop 0")
        for r in range(12):
            a(f"v_mul_f32 v{O+r}, v{T+2}, v{O+r}")
        for g in range(3):
            a(f"v_cvt_pk_bf16_f32 v{O+4*g}, v{O+4*g}, v{O+4*g+1}")
            a(f"v_cvt_pk_bf16_f32 v{O+4*g+1}, v{O+4*g+2}, v{O+4*g+3}")
        self.srd(SRD_O, S_WS, OFF_O, SZ_O)
        a(f"s_and_b32 s{S_T2}, s{S_W}, 3")
        a(f"s_lshr_b32 s{S_T3}, s{S_W}, 2")
        a(f"s_lshl_b32 s{S_T0}, s{S_GX}, 2")
        a(f"s_add_u32 s{S_T0}, s{S_T0}, s{S_T2}")
        a(f"s_mul_i32 s{S_T0}, s{S_T0}, 81920")
        a(f"s_lshl_b32 s{S_T1}, s{S_T3}, 11")
        a(f"s_add_u32 s{S_T0}, s{S_T0}, s{S_T1}")
        a(f"v_bfe_u32 v{T+3}, v1, 4, 1")
        a(f"v_lshlrev_b32 v{T+3}, 10, v{T+3}")
        a(f"v_and_b32 v{T+4}, 15, v1")
        a(f"v_lshl_add_u32 v{T+3}, v{T+4}, 4, v{T+3}")
        a(f"v_lshrrev_b32 v{T+5}, 5, v1")
        a(f"s_mul_i32 s{S_T1}, s{S_GI}, 20")
        for g in range(3):
            a(f"v_lshlrev_b32 v{T+6}, 2, v{T+5}")
            a(f"s_add_u32 s{S_T2}, s{S_T1}, {8*g}")
            a(f"v_add_u32 v{T+6}, s{S_T2}, v{T+6}")
            a(f"v_lshrrev_b32 v{T+7}, 5, v{T+6}")
            a(f"v_lshlrev_b32 v{T+7}, 12, v{T+7}")
            a(f"v_bfe_u32 v{T+8}, v{T+6}, 3, 2")
            a(f"v_lshl_add_u32 v{T+7}, v{T+8}, 8, v{T+7}")
            a(f"v_and_b32 v{T+8}, 7, v{T+6}")
            a(f"v_lshl_add_u32 v{T+7}, v{T+8}, 1, v{T+7}")
            a(f"v_add_u32 v{T+7}, v{T+7}, v{T+3}")
            if g == 2: self.set_exec(0xffffffff)
            a(f"buffer_store_dwordx2 v[{O+4*g}:{O+4*g+1}], v{T+7}, s[{SRD_O}:{SRD_O+3}], s{S_T0} offen sc1")
            if g == 2: a(f"s_mov_b64 exec, -1")

    G_ACC = 4
    G_ACT = 52
    G_AL = 84; G_AH = 85; G_WV = 86; G_DV = 87
    G_W = 88
    S_RB = 49; S_J = 50

    def g2_wload(self, NT, step):
        a = self.a
        for t in range(NT):
            R = self.G_W + 4*(step*NT + t)
            off = step*4*40*1024 + t*1024
            a(f"s_add_u32 s{S_T2}, s{S_SW}, {off}")
            a(f"buffer_load_dwordx4 v[{R}:{R+3}], v{self.G_WV}, s[{SRD_W}:{SRD_W+3}], s{S_T2} offen {self.ld_aux}")

    def g2_adma(self, stage):
        a = self.a
        slot = (stage % 4) * 32768
        for q in range(4):
            a(f"s_add_u32 m0, s{S_M0A}, {slot + q*8192}")
            a(f"s_add_u32 s{S_T2}, s{S_M0A}, {stage*32768 + q*8192}")
            a(f"buffer_load_dwordx4 v{self.G_DV}, s[{SRD_A}:{SRD_A+3}], s{S_T2} offen {self.ld_aux} lds")

    def g2_reads(self, stage, u, st):
        a = self.a
        slot = stage % 4
        base = self.G_AL if slot < 2 else self.G_AH
        off = (slot % 2) * 32768 + u*16384
        for m in range(4):
            R = self.G_ACT + 16*st + 4*m
            a(f"ds_read_b128 v[{R}:{R+3}], v{base} offset:{off + m*1024}")

    def g2_mfma(self, NT, step, st):
        a = self.a
        for t in range(NT):
            W = self.G_W + 4*(step*NT + t)
            for m in range(4):
                A = self.G_ACC + 4*(m*3 + t)
                X = self.G_ACT + 16*st + 4*m
                a(f"v_mfma_f32_16x16x32_bf16 v[{A}:{A+3}], v[{W}:{W+3}], v[{X}:{X+3}], v[{A}:{A+3}]")

    def g2_main(self, NT, NSTG):
        a = self.a
        per = 2*NT + 4
        pre = min(3, NSTG)
        for sg in range(pre):
            self.g2_wload(NT, 2*sg); self.g2_wload(NT, 2*sg+1)
            self.g2_adma(sg)
        for r in range(48):
            a(f"v_mov_b32 v{self.G_ACC+r}, 0")
        if self.g2st: self.stamp(self.g2st)
        a(f"s_waitcnt vmcnt({per*(pre-1)})")
        a(f"s_barrier")
        if self.g2st: self.stamp(self.g2st+1)
        self.g2_reads(0, 0, 0)
        for sg in range(NSTG):
            if sg + 1 < NSTG:
                out = per * max(0, min(NSTG, sg + pre) - (sg + 2))
                a(f"s_waitcnt vmcnt({out})")
            a(f"s_barrier")
            self.g2_reads(sg, 1, 1)
            a(f"s_waitcnt lgkmcnt(4)")
            self.g2_mfma(NT, 2*sg, 0)
            if sg + pre < NSTG:
                self.g2_wload(NT, 2*(sg+pre)); self.g2_wload(NT, 2*(sg+pre)+1)
                self.g2_adma(sg + pre)
            if sg + 1 < NSTG:
                self.g2_reads(sg+1, 0, 0)
                a(f"s_waitcnt lgkmcnt(4)")
            else:
                a(f"s_waitcnt lgkmcnt(0)")
            self.g2_mfma(NT, 2*sg+1, 1)

    def g2_reduce(self, NT):
        a = self.a
        T = self.G_ACT
        a(f"s_nop 7")
        a(f"s_barrier")
        a(f"s_lshr_b32 s{S_T0}, s{S_W}, 2")
        a(f"s_and_b32 s{S_T1}, s{S_W}, 3")
        a(f"s_mul_i32 s{S_T2}, s{S_T0}, {16*3072}")
        a(f"s_mul_i32 s{S_T3}, s{S_T1}, 3072")
        a(f"s_add_u32 s{S_T3}, s{S_T3}, s{S_T2}")
        a(f"v_lshlrev_b32 v{T}, 4, v1")
        a(f"v_add_u32 v{T+1}, s{S_T3}, v{T}")
        for m in range(4):
            for t in range(NT):
                A = self.G_ACC + 4*(m*3 + t)
                a(f"ds_write_b128 v{T+1}, v[{A}:{A+3}] offset:{m*4*3072 + t*1024}")
        a(f"s_mul_i32 s{S_T3}, s{S_T1}, {4*3072}")
        a(f"s_add_u32 s{S_T3}, s{S_T3}, s{S_T2}")
        a(f"v_add_u32 v{T+2}, s{S_T3}, v{T}")
        a(f"s_waitcnt lgkmcnt(0)")
        a(f"s_barrier")
        for src in range(4):
            for t in range(NT):
                A = self.G_ACC + 4*(src*3 + t)
                a(f"ds_read_b128 v[{A}:{A+3}], v{T+2} offset:{src*3072 + t*1024}")
        a(f"s_waitcnt lgkmcnt(0)")
        for t in range(NT):
            for i in range(4):
                A = self.G_ACC + 4*t + i
                a(f"v_add_f32 v{A}, v{A}, v{A+12}")
                a(f"v_add_f32 v{A+24}, v{A+24}, v{A+36}")
            for i in range(4):
                A = self.G_ACC + 4*t + i
                a(f"v_add_f32 v{A}, v{A}, v{A+24}")

    def g2_setup(self, phase):
        a = self.a
        T = self.G_ACT
        a(f"s_lshr_b32 s{S_T0}, s{S_GI}, 3")
        a(f"s_lshl_b32 s{S_T1}, s{S_GX}, 2")
        a(f"s_add_u32 s{self.S_RB}, s{S_T0}, s{S_T1}")
        a(f"s_and_b32 s{self.S_J}, s{S_GI}, 7")
        if phase == 3:
            off, per, woff, wsz = OFF_O, 81920, OFF_WOP, SZ_WOP
        else:
            off, per, woff, wsz = OFF_R, 54*4096, OFF_W2P, SZ_W2P
        a(f"s_mul_i32 s{S_T0}, s{self.S_RB}, {per}")
        a(f"s_add_u32 s{S_T0}, s{S_T0}, {hex(off)}")
        a(f"s_add_u32 s{SRD_A}, s{S_WS}, s{S_T0}")
        a(f"s_addc_u32 s{SRD_A+1}, s{S_WS+1}, 0")
        a(f"s_mov_b32 s{SRD_A+2}, {per}")
        a(f"s_mov_b32 s{SRD_A+3}, 0x20000")
        self.srd(SRD_W, S_WS, woff, wsz)
        a(f"s_and_b32 s{S_T0}, s{S_W}, 3")
        a(f"s_mul_i32 s{S_T1}, s{S_T0}, 40")
        a(f"s_mul_i32 s{S_T2}, s{self.S_J}, 5")
        a(f"s_add_u32 s{S_T1}, s{S_T1}, s{S_T2}")
        a(f"s_lshr_b32 s{S_T2}, s{S_W}, 2")
        a(f"s_mul_i32 s{S_T2}, s{S_T2}, 3")
        a(f"s_add_u32 s{S_T1}, s{S_T1}, s{S_T2}")
        a(f"s_lshl_b32 s{S_SW}, s{S_T1}, 10")
        a(f"s_lshl_b32 s{S_M0A}, s{S_W}, 10")
        a(f"v_lshlrev_b32 v{self.G_WV}, 4, v1")
        a(f"v_mov_b32 v{self.G_DV}, v{self.G_WV}")
        a(f"s_lshl_b32 s{S_T0}, s{S_T0}, 12")
        a(f"v_add_u32 v{self.G_AL}, s{S_T0}, v{self.G_WV}")
        a(f"v_add_u32 v{self.G_AH}, 0x10000, v{self.G_AL}")

    def g2_epi(self, phase, NT):
        a = self.a
        T = self.G_ACT; A = self.G_ACC
        a(f"s_lshl_b32 s{S_T0}, s{self.S_RB}, 6")
        a(f"s_and_b32 s{S_T1}, s{S_W}, 3")
        a(f"s_lshl_b32 s{S_T1}, s{S_T1}, 4")
        a(f"s_add_u32 s{S_T0}, s{S_T0}, s{S_T1}")
        a(f"v_and_b32 v{T}, 15, v1")
        a(f"v_add_u32 v{T}, s{S_T0}, v{T}")
        a(f"v_mul_u32_u24 v{T}, 1280, v{T}")
        a(f"s_mul_i32 s{S_T0}, s{self.S_J}, 160")
        a(f"s_lshr_b32 s{S_T1}, s{S_W}, 2")
        a(f"s_mul_i32 s{S_T1}, s{S_T1}, 96")
        a(f"s_add_u32 s{S_T0}, s{S_T0}, s{S_T1}")
        a(f"v_lshrrev_b32 v{T+1}, 4, v1")
        a(f"v_lshlrev_b32 v{T+1}, 3, v{T+1}")
        a(f"v_add_u32 v{T+1}, s{S_T0}, v{T+1}")
        a(f"v_add_u32 v{T}, v{T}, v{T+1}")
        if phase == 3:
            self.srd(SRD_T, S_X, 0, 2048*1280)
            self.srd(SRD_O, S_WS, OFF_H, SZ_H)
            aux_r, aux_w = "", "sc1"
        else:
            self.srd(SRD_T, S_WS, OFF_H, SZ_H)
            self.srd(SRD_O, S_OUT, 0, 2048*1280)
            aux_r, aux_w = "sc1", ""
        for t in range(NT):
            a(f"buffer_load_dwordx2 v[{T+4+2*t}:{T+5+2*t}], v{T}, s[{SRD_T}:{SRD_T+3}], 0 offen offset:{32*t} {aux_r}")
        if phase == 5:
            self.srd(SRD_W, S_B2, 0, 1280)
            for t in range(NT):
                a(f"buffer_load_dwordx2 v[{T+12+2*t}:{T+13+2*t}], v{T+1}, s[{SRD_W}:{SRD_W+3}], 0 offen offset:{32*t}")
        a(f"s_waitcnt vmcnt(0)")
        for t in range(NT):
            for half in range(2):
                R = T + 4 + 2*t + half
                a(f"v_lshlrev_b32 v{T+20}, 16, v{R}")
                a(f"v_and_b32 v{T+21}, 0xffff0000, v{R}")
                a(f"v_add_f32 v{A+4*t+2*half}, v{A+4*t+2*half}, v{T+20}")
                a(f"v_add_f32 v{A+4*t+2*half+1}, v{A+4*t+2*half+1}, v{T+21}")
                if phase == 5:
                    R = T + 12 + 2*t + half
                    a(f"v_lshlrev_b32 v{T+20}, 16, v{R}")
                    a(f"v_and_b32 v{T+21}, 0xffff0000, v{R}")
                    a(f"v_add_f32 v{A+4*t+2*half}, v{A+4*t+2*half}, v{T+20}")
                    a(f"v_add_f32 v{A+4*t+2*half+1}, v{A+4*t+2*half+1}, v{T+21}")
            a(f"v_cvt_pk_bf16_f32 v{A+4*t}, v{A+4*t}, v{A+4*t+1}")
            a(f"v_cvt_pk_bf16_f32 v{A+4*t+1}, v{A+4*t+2}, v{A+4*t+3}")
            a(f"buffer_store_dwordx2 v[{A+4*t}:{A+4*t+1}], v{T}, s[{SRD_O}:{SRD_O+3}], 0 offen offset:{32*t} {aux_w}")

    def g2(self, phase):
        a = self.a
        NSTG = 3 if phase == 3 else 7
        self.g2st = 15 if (str(phase) in self.opt_g2) else None
        self.g2_setup(phase)
        L1 = f"L_g2p{phase}_n1"; Lj = f"L_g2p{phase}_j"
        a(f"s_cmp_ge_u32 s{S_W}, 4")
        a(f"s_cbranch_scc1 {L1}")
        self.g2_main(3, NSTG)
        if self.g2st: self.stamp(self.g2st+2)
        self.g2_reduce(3)
        if self.g2st: self.stamp(self.g2st+3)
        self.g2_epi(phase, 3)
        a(f"s_branch {Lj}")
        a.put(L1)
        self.g2_main(2, NSTG)
        if self.g2st: self.stamp(self.g2st+2)
        self.g2_reduce(2)
        if self.g2st: self.stamp(self.g2st+3)
        self.g2_epi(phase, 2)
        a.put(Lj)

    def p4_epi(self):
        a = self.a
        T = self.V_T; A = self.V_ACC; CSR = self.V_FR
        B1R = self.V_FR + 32
        a(f"s_cmp_eq_u32 s{S_NT}, 13")
        a(f"s_cselect_b32 s{S_T0}, s{S_WN}, 0")
        a(f"s_cmp_eq_u32 s{S_T0}, 1")
        a(f"s_cbranch_scc1 L_p4_skip")
        self.epi_T_common()
        for g in range(4):
            a(f"ds_read_b128 v[{B1R+4*g}:{B1R+4*g+3}], v{T+7} offset:{ST_B1-ST_CS+32*g}")
        for g in range(4):
            a(f"ds_read_b128 v[{B1R+16+4*g}:{B1R+16+4*g+3}], v{T+1} offset:{ST_B1-ST_CS+32*g}")
        self.srd(SRD_O, S_WS, OFF_R, SZ_R)
        a(f"s_lshl_b32 s{S_T0}, s{S_MT}, 1")
        a(f"s_add_u32 s{S_T0}, s{S_T0}, s{S_WM}")
        a(f"s_mul_i32 s{S_T0}, s{S_T0}, {54*4096}")
        a(f"s_lshl_b32 s{S_T1}, s{S_NT}, 2")
        a(f"s_lshl_b32 s{S_T2}, s{S_WN}, 1")
        a(f"s_add_u32 s{S_T1}, s{S_T1}, s{S_T2}")
        a(f"s_add_u32 s{S_T2}, s{S_T1}, s{S_WM}")
        a(f"s_xor_b32 s{S_T3}, s{S_WM}, 1")
        a(f"s_add_u32 s{S_T3}, s{S_T1}, s{S_T3}")
        a(f"s_lshl_b32 s{S_T2}, s{S_T2}, 12")
        a(f"s_lshl_b32 s{S_T3}, s{S_T3}, 12")
        a(f"s_add_u32 s{S_T4}, s{S_T0}, s{S_T2}")
        a(f"s_add_u32 s{S_T5}, s{S_T0}, s{S_T3}")
        a(f"v_bfe_u32 v{T+8}, v1, 4, 1")
        a(f"v_lshlrev_b32 v{T+8}, 10, v{T+8}")
        a(f"v_and_b32 v{T+9}, 15, v1")
        a(f"v_lshl_add_u32 v{T+8}, v{T+9}, 4, v{T+8}")
        a(f"v_lshl_add_u32 v{T+8}, v{T+6}, 3, v{T+8}")
        a(f"s_waitcnt lgkmcnt(0)")
        for tt in range(2):
            for q in range(2):
                for g in range(4):
                    for i in range(4):
                        r = A + 16*(2*tt+q) + 4*g + i
                        a(f"v_fma_f32 v{r}, v{T+2+2*tt}, v{r}, v{B1R+16*q+4*g+i}")
                        a(f"v_fmac_f32 v{r}, v{T+3+2*tt}, v{CSR+16*q+4*g+i}")
                        a(f"v_max_f32 v{r}, 0, v{r}")
                        a(f"v_mul_f32 v{r}, v{r}, v{r}")
                    r = A + 16*(2*tt+q) + 4*g
                    a(f"v_cvt_pk_bf16_f32 v{r}, v{r}, v{r+1}")
                    a(f"v_cvt_pk_bf16_f32 v{r+1}, v{r+2}, v{r+3}")
                    a(f"buffer_store_dwordx2 v[{r}:{r+1}], v{T+8}, s[{SRD_O}:{SRD_O+3}], s{S_T4+q} offen offset:{2048*tt + 256*g} sc1")
        a.put("L_p4_skip")

    def p4(self):
        a = self.a
        a(f"s_cmp_ge_u32 s{S_GI}, 28")
        a(f"s_cbranch_scc1 L_p4_done")
        a(f"s_cmp_ge_u32 s{S_GI}, 14")
        a(f"s_cselect_b32 s{S_T0}, 1, 0")
        a(f"s_cselect_b32 s{S_T1}, 14, 0")
        a(f"s_sub_u32 s{S_NT}, s{S_GI}, s{S_T1}")
        a(f"s_lshl_b32 s{S_MT}, s{S_GX}, 1")
        a(f"s_add_u32 s{S_MT}, s{S_MT}, s{S_T0}")
        a(f"s_cmp_ge_u32 s{S_NT}, 10")
        a(f"s_cselect_b32 s{S_T0}, 10, 0")
        a(f"s_sub_u32 s{S_KK}, s{S_NT}, s{S_T0}")
        self.aux_A = self.ld_aux
        self.st1 = None
        a(f"s_cmp_lt_u32 s{S_W}, 4")
        a(f"s_cbranch_scc1 L_p4_compute")
        self.g1_setup_loader(3456)
        self.srd(SRD_A, S_WS, OFF_H, SZ_H)
        self.srd(SRD_W, S_W1, 0, 640*3456)
        for s_ in range(self.NSLOT - 1):
            self.g1_dma_stage(3456)
        T = self.V_T
        self.srd(SRD_T, S_B1, 0, 1728*2)
        a(f"s_sub_u32 s{S_T4}, s{S_W}, 4")
        a(f"s_lshl_b32 s{S_T4}, s{S_T4}, 5")
        a(f"v_and_b32 v{T+10}, 31, v1")
        a(f"v_add_u32 v{T+10}, s{S_T4}, v{T+10}")
        a(f"s_lshl_b32 s{S_T4}, s{S_NT}, 7")
        a(f"v_add_u32 v{T+11}, s{S_T4}, v{T+10}")
        a(f"v_lshlrev_b32 v{T+11}, 1, v{T+11}")
        a(f"buffer_load_ushort v{T+12}, v{T+11}, s[{SRD_T}:{SRD_T+3}], 0 offen")
        self.b1_hook = True
        self.g1_loader(3456, "p4")
        self.b1_hook = False
        a(f"s_branch L_p4_done")
        a.put("L_p4_compute")
        self.g1_compute("T", "p4")
        self.p4_epi()
        a.put("L_p4_done")

    def code_warm(self):
        a = self.a
        T = self.V_T
        a(f"s_getpc_b64 s[{SRD_T}:{SRD_T+1}]")
        a.put("L_pc_here")
        a(f"s_sub_u32 s{SRD_T}, s{SRD_T}, L_pc_here-{NAME}")
        a(f"s_subb_u32 s{SRD_T+1}, s{SRD_T+1}, 0")
        a(f"s_mov_b32 s{SRD_T+2}, L_end-{NAME}")
        a(f"s_mov_b32 s{SRD_T+3}, 0x20000")
        a(f"v_lshlrev_b32 v{T}, 7, v0")
        for k in range(self.code_rounds):
            a(f"buffer_load_dword v{T+1}, v{T}, s[{SRD_T}:{SRD_T+3}], 0 offen offset:0" if k == 0 else
              f"buffer_load_dword v{T+1}, v{T}, s[{SRD_T}:{SRD_T+3}], s{S_T0} offen")
            a(f"s_mov_b32 s{S_T0}, {32768*(k+1)}")

    def epoch_update(self):
        a = self.a
        a(f"s_or_b32 s{S_T0}, s2, s{S_W}")
        a(f"s_cmp_lg_u32 s{S_T0}, 0")
        a(f"s_cbranch_scc1 L_noepoch")
        a(f"v_mov_b32 v2, {OFF_EPOCH}")
        a(f"v_mov_b32 v3, s{S_TAG}")
        a(f"s_mov_b64 exec, 1")
        a(f"buffer_store_dword v3, v2, s[{SRD_F}:{SRD_F+3}], 0 offen sc1")
        a(f"s_mov_b64 exec, -1")
        a.put("L_noepoch")

    def epilogue_stamps(self):
        if not self.stamps: return
        a = self.a
        a(f"s_waitcnt lgkmcnt(0)")
        a(f"s_lshl_b32 s{S_T0}, s2, 3")
        a(f"s_add_u32 s{S_T0}, s{S_T0}, s{S_W}")
        a(f"s_lshl_b32 s{S_T0}, s{S_T0}, 7")
        a(f"s_add_u32 s{S_T0}, s{S_T0}, 0x80000")
        a(f"v_mov_b32 v3, s{S_T0}")
        a(f"s_mov_b64 exec, 1")
        a(f"s_memrealtime s[98:99]")
        a(f"s_waitcnt lgkmcnt(0)")
        a(f"s_sub_u32 s{S_T1}, s98, s96")
        a(f"v_mov_b32 v2, s{S_T1}")
        a(f"buffer_store_dword v2, v3, s[{SRD_F}:{SRD_F+3}], 0 offen offset:{4*31}")
        a(f"v_mov_b32 v2, s96")
        a(f"buffer_store_dword v2, v3, s[{SRD_F}:{SRD_F+3}], 0 offen offset:{4*30}")
        for i in range(self.nstamp):
            a(f"s_sub_u32 s{S_T1}, s{S_STAMP+i}, s{S_STAMP}")
            a(f"v_mov_b32 v2, s{S_T1}")
            a(f"buffer_store_dword v2, v3, s[{SRD_F}:{SRD_F+3}], 0 offen offset:{4*i}")
            a(f"s_nop 1")
        a(f"s_mov_b64 exec, -1")

    def build(self):
        a = self.a
        self.prologue()
        self.p1()
        self.p1_signal()
        if self.stop_after != "p1":
            self.p2()
            if self.stop_after != "p2":
                self.group_barrier(0, "gb23")
                self.stamp(9)
                self.g2(3)
                self.stamp(10)
                if self.stop_after != "p3":
                    self.group_barrier(1, "gb34")
                    self.stamp(11)
                    self.p4()
                    self.stamp(12)
                    if self.stop_after != "p4":
                        self.group_barrier(2, "gb45")
                        self.stamp(13)
                        self.g2(5)
            a(f"s_waitcnt vmcnt(0)")
            self.stamp(14)
        self.epoch_update()
        self.epilogue_stamps()
        a(f"s_waitcnt vmcnt(0)")
        a.put("L_end")
        a("s_endpgm")
        return a

import struct
def f32(x):
    return struct.unpack("<I", struct.pack("<f", x))[0]

HEADER = open("sequential_preLN__mha_block__dense_activation_squared_relu__prompt.s.ref").read().split("; Override launch geometry")[0]

def wrap(body, lds=163840, vgpr=256):
    s = HEADER
    s += f"; @launch grid=(256,1,1) block=(512,1,1) lds={lds}\n"
    s += '.amdgcn_target "amdgcn-amd-amdhsa--gfx950"\n.text\n'
    s += f".globl {NAME}\n.p2align 8\n.type {NAME},@function\n{NAME}:\n"
    s += body
    s += f"""
.section .rodata,"a"
.p2align 6
.amdhsa_kernel {NAME}
  .amdhsa_next_free_vgpr {vgpr}
  .amdhsa_next_free_sgpr 102
  .amdhsa_accum_offset {vgpr}
  .amdhsa_group_segment_fixed_size 0
  .amdhsa_kernarg_size 88
  .amdhsa_user_sgpr_count 2
  .amdhsa_user_sgpr_kernarg_segment_ptr 1
  .amdhsa_system_sgpr_workgroup_id_x 1
.end_amdhsa_kernel
"""
    return s

if __name__ == "__main__":
    import argparse
    ap = argparse.ArgumentParser()
    ap.add_argument("-o", default="out.s")
    ap.add_argument("--stop", default=None)
    ap.add_argument("--stamps", action="store_true")
    ap.add_argument("--opt", default="")
    args = ap.parse_args()
    g = Gen(stop_after=args.stop, stamps=args.stamps, opt=[o for o in args.opt.split(',') if o])
    a = g.build()
    rep = check(a.L)
    for r in rep: print(r)
    open(args.o, "w").write(wrap(a.text()))
    print("wrote", args.o, len(a.L), "lines;", len(rep), "hazards")
```

```python
import sys, math
sys.path.insert(0, "gen")
from asmlib import Asm, vr, sr, check

NAME = "sequential_preLN__mha_block__dense_activation_squared_relu__prompt_kernel"

OFF_EPOCH = 0
OFF_GB    = 0x50000
OFF_MB1   = 65536
OFF_Q     = 0x100000
OFF_KV    = 0x400000
OFF_O     = 0xA00000
OFF_H     = 0xD00000
OFF_R     = 0x1000000
OFF_WOP   = 0x1700000
OFF_W2P   = 0x1800000
SZ_Q = 32*64*1280
SZ_KV = 32*64*2560
SZ_O = 32*20*4096
SZ_H = 2048*1280
SZ_R = 32*54*4096
SZ_WOP = 20*40*1024
SZ_W2P = 54*40*1024

S_KA = 0; S_WG = 2; S_W = 3
S_X = 4; S_WQKV = 6; S_WO = 8; S_W1 = 12; S_B1 = 14; S_W2 = 16; S_B2 = 18; S_OUT = 20; S_DBG = 22; S_WS = 24
S_TAG = 26; S_GX = 27
SRD_A = 28; SRD_W = 32; SRD_O = 36; SRD_F = 40; SRD_T = 44
S_GI = 48
S_MT = 49; S_NT = 50; S_KK = 51; S_CNT = 52; S_SLOT = 53
S_SA = 54; S_SW = 55; S_T0 = 56; S_T1 = 57; S_T2 = 58; S_T3 = 59; S_T4 = 60; S_T5 = 61
S_M0A = 62; S_WM = 63; S_WN = 64; S_DELTA = 65; S_ONES = 66; S_ROT4 = 67; S_RLW = 68; S_RSLOT = 69
S_STAMP = 70
S_SAVE = 90

LDS_STATS = 131072
ST_PX, ST_PQ, ST_PC, ST_AA, ST_BB, ST_CS, ST_B1 = 0, 4096, 8192, 9216, 9728, 10240, 10752
LDS_RL = LDS_STATS + 12288

class Gen:
    def __init__(self, stop_after=None, stamps=False, opt=()):
        self.opt = set(opt)
        self.a = Asm()
        self.stop_after = stop_after
        self.stamps = stamps
        self.nstamp = 0
        self.code_rounds = 2
        self.opt_g2 = "3" if "g2s3" in self.opt else ("5" if "g2s5" in self.opt else "")
        self.ld_aux = "" if "plainld" in self.opt else "sc1"

    def srd(self, dst, base_s, off, size):
        a = self.a
        if off:
            a(f"s_add_u32 s{dst}, s{base_s}, {hex(off)}")
            a(f"s_addc_u32 s{dst+1}, s{base_s+1}, 0")
        else:
            a(f"s_mov_b32 s{dst}, s{base_s}")
            a(f"s_mov_b32 s{dst+1}, s{base_s+1}")
        a(f"s_mov_b32 s{dst+2}, {hex(size)}")
        a(f"s_mov_b32 s{dst+3}, 0x20000")

    def csel(self, dst, x, y):
        self.a(f"s_mov_b32 s{dst}, {y}")
        self.a(f"s_cselect_b32 s{dst}, {x}, s{dst}")

    def set_exec(self, mask):
        mask = int(str(mask), 0) & 0xFFFFFFFFFFFFFFFF
        if mask == 0xFFFFFFFFFFFFFFFF: self.a("s_mov_b64 exec, -1")
        elif mask < 0x80000000: self.a(f"s_mov_b64 exec, {hex(mask)}")
        else:
            self.a(f"s_mov_b32 exec_lo, {hex(mask & 0xffffffff)}")
            self.a(f"s_mov_b32 exec_hi, {hex(mask >> 32)}")

    def stamp(self, i=None):
        if not self.stamps: return
        if i is None: return
        self.nstamp = max(self.nstamp, i + 1)
        self.a(f"s_memtime s[100:101]")
        self.a(f"s_waitcnt lgkmcnt(0)")
        self.a(f"s_mov_b32 s{S_STAMP+i}, s100")

    def prologue(self):
        a = self.a
        a(f"s_cmp_ge_u32 s2, 256")
        a(f"s_cbranch_scc1 L_end")
        self.stamp(0)
        if self.stamps: a(f"s_memrealtime s[96:97]")
        a(f"s_load_dwordx16 s[4:19], s[0:1], 0")
        a(f"s_load_dwordx4 s[20:23], s[0:1], 64")
        a(f"s_load_dwordx2 s[24:25], s[0:1], 80")
        a(f"v_lshrrev_b32 v2, 6, v0")
        a(f"v_and_b32 v1, 63, v0")
        a(f"v_readfirstlane_b32 s{S_W}, v2")
        a(f"s_and_b32 s{S_GX}, s2, 7")
        a(f"s_lshr_b32 s{S_GI}, s2, 3")
        a(f"s_mov_b32 s{S_ONES}, 0x3f803f80")
        a(f"s_lshr_b32 s{S_WM}, s{S_W}, 2")
        a(f"s_and_b32 s{S_WN}, s{S_W}, 3")

    def finish_tag(self):
        a = self.a
        a(f"s_waitcnt lgkmcnt(0)")
        a(f"s_mul_i32 s{S_TAG}, s{S_TAG}, 0x9E3779B1")
        a(f"s_add_u32 s{S_TAG}, s{S_TAG}, 0x7F4A7C15")

    V_OFFA = 2; V_OFFW = 3
    V_AA = 4
    V_AWA = 8; V_AWB = 9
    V_CSA = 12
    V_CSD = 16
    V_FR = 20
    V_ACC = 84
    V_T = 148
    V_LA = 4
    V_LS = 8
    V_LD = 20
    V_LU = 40
    NSLOT = 4

    def g1_setup_loader(self, WS):
        a = self.a
        T = self.V_T
        a(f"s_sub_u32 s{S_T4}, s{S_W}, 4")
        a(f"v_lshrrev_b32 v{T}, 4, v1")
        a(f"s_lshl_b32 s{S_T0}, s{S_T4}, 2")
        a(f"v_add_u32 v{T+1}, s{S_T0}, v{T}")
        a(f"v_and_b32 v{T+1}, 7, v{T+1}")
        a(f"v_and_b32 v{T+2}, 7, v1")
        a(f"v_xor_b32 v{T+1}, v{T+1}, v{T+2}")
        a(f"v_lshlrev_b32 v{T+1}, 4, v{T+1}")
        a(f"v_lshrrev_b32 v{T+2}, 3, v1")
        a(f"v_mul_u32_u24 v{T+2}, 1280, v{T+2}")
        a(f"v_add_u32 v{self.V_OFFA}, v{T+1}, v{T+2}")
        a(f"v_lshlrev_b32 v{T+1}, 2, v{T}")
        a(f"v_and_b32 v{T+2}, 15, v1")
        a(f"v_xor_b32 v{T+1}, v{T+1}, v{T+2}")
        a(f"v_lshlrev_b32 v{T+1}, 4, v{T+1}")
        a(f"v_mul_u32_u24 v{T+2}, {WS}, v{T}")
        a(f"v_add_u32 v{self.V_OFFW}, v{T+1}, v{T+2}")
        a(f"s_lshl_b32 s{S_T0}, s{S_MT}, 7")
        a(f"s_lshl_b32 s{S_T1}, s{S_T4}, 3")
        a(f"s_add_u32 s{S_T0}, s{S_T0}, s{S_T1}")
        a(f"s_mul_i32 s{S_SA}, s{S_T0}, 1280")
        a(f"s_mul_i32 s{S_T0}, s{S_T4}, {4*WS}")
        a(f"s_lshl_b32 s{S_T1}, s{S_NT}, 8")
        a(f"s_add_u32 s{S_SW}, s{S_T0}, s{S_T1}")
        a(f"s_lshl_b32 s{S_M0A}, s{S_T4}, 10")
        a(f"s_mov_b32 s{S_SLOT}, 0")

    def g1_setup_loader2(self):
        a = self.a
        T = self.V_T
        a(f"v_and_b32 v{T}, 31, v1")
        a(f"s_sub_u32 s{S_T4}, s{S_W}, 4")
        a(f"s_lshl_b32 s{S_T0}, s{S_T4}, 5")
        a(f"v_add_u32 v{T+1}, s{S_T0}, v{T}")
        a(f"v_lshlrev_b32 v{T+1}, 7, v{T+1}")
        a(f"v_bfe_u32 v{T+2}, v{T}, 1, 3")
        a(f"v_lshrrev_b32 v{T+3}, 5, v1")
        a(f"v_lshlrev_b32 v{T+3}, 2, v{T+3}")
        a(f"v_xor_b32 v{T+2}, v{T+2}, v{T+3}")
        for q in range(4):
            a(f"v_xor_b32 v{self.V_LA+q}, {q}, v{T+2}")
            a(f"v_lshlrev_b32 v{self.V_LA+q}, 4, v{self.V_LA+q}")
            a(f"v_add_u32 v{self.V_LA+q}, v{self.V_LA+q}, v{T+1}")
            a(f"v_mov_b32 v{self.V_LS+q}, 0")

    def g1_dma1(self, WS, q):
        a = self.a
        if q == 0:
            a(f"s_lshl_b32 s{S_T2}, s{S_KK}, 7")
            a(f"s_add_u32 s{S_T2}, s{S_T2}, s{S_SA}")
            a(f"s_add_u32 m0, s{S_SLOT}, s{S_M0A}")
            a(f"s_mul_i32 s{S_T3}, s{S_KK}, {64*WS}")
        elif q == 4:
            a(f"s_add_u32 s{S_T2}, s{S_T3}, s{S_SW}")
            a(f"s_add_u32 m0, m0, 4096")
            a(f"s_nop 0")
        else:
            a(f"s_add_u32 m0, m0, 4096")
            a(f"s_add_u32 s{S_T2}, s{S_T2}, {32*1280 if q < 4 else 16*WS}")
        if q < 4:
            a(f"buffer_load_dwordx4 v{self.V_OFFA}, s[{SRD_A}:{SRD_A+3}], s{S_T2} offen {self.aux_A} lds")
        else:
            a(f"buffer_load_dwordx4 v{self.V_OFFW}, s[{SRD_W}:{SRD_W+3}], s{S_T2} offen lds")
        if q == 7:
            a(f"s_add_u32 s{S_KK}, s{S_KK}, 1")
            a(f"s_cmp_eq_u32 s{S_KK}, 10")
            a(f"s_cselect_b32 s{S_KK}, 0, s{S_KK}")
            a(f"s_add_u32 s{S_SLOT}, s{S_SLOT}, 32768")
            a(f"s_cmp_eq_u32 s{S_SLOT}, {self.NSLOT*32768}")
            a(f"s_cselect_b32 s{S_SLOT}, 0, s{S_SLOT}")

    def g1_dma_stage(self, WS):
        for q in range(8): self.g1_dma1(WS, q)

    def g1_lstat_reads(self):
        if "nolstat" in self.opt: return
        a = self.a
        for q in range(4):
            a(f"ds_read_b128 v[{self.V_LD+4*q}:{self.V_LD+4*q+3}], v{self.V_LA+q}")
    def g1_lstat_adv(self, sreg):
        a = self.a
        for q in range(4):
            a(f"v_add_u32 v{self.V_LA+q}, s{sreg}, v{self.V_LA+q}")
    def g1_lstat_calc(self, r0, r1):
        if "nolstat" in self.opt: return
        a = self.a
        S = self.V_LS
        for r in range(r0, r1):
            U = self.V_LU + 2*(r % 2)
            a(f"v_lshlrev_b32 v{U}, 16, v{self.V_LD+r}")
            a(f"v_and_b32 v{U+1}, 0xffff0000, v{self.V_LD+r}")
            a(f"v_add_f32 v{S}, v{S}, v{U}")
            a(f"v_fmac_f32 v{S+2}, v{U}, v{U}")
            a(f"v_add_f32 v{S+1}, v{S+1}, v{U+1}")
            a(f"v_fmac_f32 v{S+3}, v{U+1}, v{U+1}")

    def slot_next(self):
        a = self.a
        a(f"s_add_u32 s{S_RSLOT}, s{S_RSLOT}, 1")
        a(f"s_cmp_eq_u32 s{S_RSLOT}, {self.NSLOT}")
        a(f"s_cselect_b32 s{S_RSLOT}, 0, s{S_RSLOT}")
        a(f"s_cmp_eq_u32 s{S_RSLOT}, {self.NSLOT-1}")
        self.csel(S_DELTA, hex((-(self.NSLOT-1)*32768) & 0xffffffff), 32768)

    def g1_loader(self, WS, tag):
        a = self.a
        pre = self.NSLOT - 1
        self.g1_setup_loader2()
        a(f"s_waitcnt vmcnt({8*(pre-1)})")
        if "p1s" in self.opt and tag == "p1": self.stamp(18)
        a(f"s_barrier")
        self.g1_lstat_reads()
        a(f"s_mov_b32 s{S_DELTA}, 32768")
        self.g1_lstat_adv(S_DELTA)
        a(f"s_mov_b32 s{S_CNT}, 0")
        a(f"s_mov_b32 s{S_RSLOT}, 0")
        a(f"s_waitcnt lgkmcnt(0)")
        self.g1_lstat_calc(0, 16)
        L1 = f"L_{tag}_lloop"
        a.put(L1)
        a(f"s_add_u32 s{S_CNT}, s{S_CNT}, 1")
        self.slot_next()
        a(f"s_waitcnt vmcnt({8*(pre-2)})")
        a(f"s_barrier")
        self.g1_lstat_reads()
        self.g1_lstat_adv(S_DELTA)
        for q in range(8):
            self.g1_dma1(WS, q)
            if q == 0: a(f"s_waitcnt lgkmcnt(0)")
            self.g1_lstat_calc(2*q, 2*q+2)
        a(f"s_cmp_lt_u32 s{S_CNT}, {10-pre}")
        a(f"s_cbranch_scc1 {L1}")
        L2 = f"L_{tag}_ltl"; L3 = f"L_{tag}_ltw"; L4 = f"L_{tag}_lts"
        a.put(L2)
        a(f"s_add_u32 s{S_CNT}, s{S_CNT}, 1")
        self.slot_next()
        a(f"s_cmp_lt_u32 s{S_CNT}, 9")
        a(f"s_cbranch_scc1 {L3}")
        a(f"s_waitcnt vmcnt(0)")
        a.put(L3)
        a(f"s_waitcnt vmcnt(8)")
        a(f"s_barrier")
        a(f"s_cmp_eq_u32 s{S_CNT}, 10")
        a(f"s_cbranch_scc1 {L4}")
        self.g1_lstat_reads()
        self.g1_lstat_adv(S_DELTA)
        a(f"s_waitcnt lgkmcnt(0)")
        self.g1_lstat_calc(0, 16)
        a(f"s_branch {L2}")
        a.put(L4)
        T = self.V_T; S = self.V_LS
        a(f"v_add_f32 v{S}, v{S}, v{S+1}")
        a(f"v_add_f32 v{S+2}, v{S+2}, v{S+3}")
        a(f"v_mov_b32 v{T}, v{S}")
        a(f"v_mov_b32 v{T+1}, v{S+2}")
        a(f"s_nop 1")
        a(f"v_permlane32_swap_b32 v{T}, v{S}")
        a(f"v_permlane32_swap_b32 v{T+1}, v{S+2}")
        a(f"s_nop 1")
        a(f"v_add_f32 v{S}, v{S}, v{T}")
        a(f"v_add_f32 v{S+2}, v{S+2}, v{T+1}")
        a(f"v_mul_f32 v{T+1}, {hex(f32(1.0/640))}, v{S}")
        a(f"v_mul_f32 v{T+2}, {hex(f32(1.0/640))}, v{S+2}")
        a(f"v_fma_f32 v{T+2}, -v{T+1}, v{T+1}, v{T+2}")
        a(f"v_max_f32 v{T+2}, 0, v{T+2}")
        a(f"v_add_f32 v{T+2}, {hex(f32(1e-5))}, v{T+2}")
        a(f"v_rsq_f32 v{T+2}, v{T+2}")
        a(f"v_and_b32 v{T}, 31, v1")
        a(f"s_sub_u32 s{S_T4}, s{S_W}, 4")
        a(f"s_lshl_b32 s{S_T0}, s{S_T4}, 5")
        a(f"v_add_u32 v{T}, s{S_T0}, v{T}")
        a(f"v_mul_f32 v{T+1}, v{T+1}, v{T+2}")
        a(f"v_lshlrev_b32 v{T}, 2, v{T}")
        a(f"v_sub_f32 v{T+1}, 0, v{T+1}")
        a(f"v_add_u32 v{T}, {LDS_STATS}, v{T}")
        a(f"ds_write_b32 v{T}, v{T+2} offset:{ST_AA}")
        a(f"ds_write_b32 v{T}, v{T+1} offset:{ST_BB}")
        if getattr(self, "b1_hook", False):
            a(f"v_lshlrev_b32 v{T+12}, 16, v{T+12}")
            a(f"ds_write_b32 v{T}, v{T+12} offset:{ST_B1}")
        a(f"s_waitcnt lgkmcnt(0)")
        a(f"s_barrier")

    def g1_setup_compute(self):
        a = self.a
        T = self.V_T
        a(f"s_lshr_b32 s{S_WM}, s{S_W}, 1")
        a(f"s_and_b32 s{S_WN}, s{S_W}, 1")
        a(f"v_and_b32 v{T}, 31, v1")
        a(f"s_lshl_b32 s{S_T0}, s{S_WM}, 6")
        a(f"v_add_u32 v{T+1}, s{S_T0}, v{T}")
        a(f"v_lshlrev_b32 v{T+1}, 7, v{T+1}")
        a(f"v_bfe_u32 v{T+2}, v{T}, 1, 3")
        a(f"v_lshrrev_b32 v{T+3}, 5, v1")
        a(f"v_xor_b32 v{T+2}, v{T+2}, v{T+3}")
        for j in range(4):
            a(f"v_xor_b32 v{self.V_AA+j}, {2*j}, v{T+2}")
            a(f"v_lshlrev_b32 v{self.V_AA+j}, 4, v{self.V_AA+j}")
            a(f"v_add_u32 v{self.V_AA+j}, v{self.V_AA+j}, v{T+1}")
        a(f"v_and_b32 v{T+4}, 15, v1")
        a(f"v_lshrrev_b32 v{T+5}, 2, v{T+4}")
        a(f"v_lshlrev_b32 v{T+6}, 3, v{T+3}")
        a(f"v_add_u32 v{T+6}, v{T+6}, v{T+5}")
        a(f"v_lshlrev_b32 v{T+6}, 8, v{T+6}")
        a(f"v_bfe_u32 v{T+7}, v1, 4, 1")
        a(f"v_lshlrev_b32 v{T+7}, 1, v{T+7}")
        a(f"v_bfe_u32 v{T+8}, v1, 1, 1")
        a(f"v_add_u32 v{T+7}, v{T+7}, v{T+8}")
        a(f"s_lshl_b32 s{S_T0}, s{S_WN}, 3")
        a(f"s_lshl_b32 s{S_T1}, s{S_WM}, 2")
        a(f"s_add_u32 s{S_T0}, s{S_T0}, s{S_T1}")
        a(f"v_add_u32 v{T+7}, s{S_T0}, v{T+7}")
        a(f"v_lshlrev_b32 v{T+5}, 2, v{T+5}")
        a(f"v_xor_b32 v{T+7}, v{T+7}, v{T+5}")
        a(f"v_lshlrev_b32 v{T+7}, 4, v{T+7}")
        a(f"v_and_b32 v{T+8}, 1, v1")
        a(f"v_lshlrev_b32 v{T+8}, 3, v{T+8}")
        a(f"v_add_u32 v{T+6}, v{T+6}, v{T+7}")
        a(f"v_add_u32 v{T+6}, v{T+6}, v{T+8}")
        a(f"v_add_u32 v{self.V_AWA}, 16384, v{T+6}")
        a(f"v_xor_b32 v{self.V_AWB}, 64, v{self.V_AWA}")
        a(f"v_and_b32 v{T}, 15, v1")
        a(f"v_bfe_u32 v{T+1}, v1, 4, 1")
        a(f"v_cmp_eq_u32 vcc, v{T}, v{T+1}")
        a(f"v_mov_b32 v{T+2}, 0x3f803f80")
        a(f"s_nop 1")
        a(f"v_cndmask_b32 v{self.V_CSA}, 0, v{T+2}, vcc")
        for r in range(1, 4):
            a(f"v_mov_b32 v{self.V_CSA+r}, v{self.V_CSA}")
        for r in range(4):
            a(f"v_mov_b32 v{self.V_CSD+r}, 0")
        for r in range(64):
            a(f"v_mov_b32 v{self.V_ACC+r}, 0")

    def g1_read1(self, j, q):
        if "noreads" in self.opt: return
        a = self.a
        F = self.V_FR + 16*j
        if q == 0: a(f"ds_read_b128 v[{F}:{F+3}], v{self.V_AA+j}")
        elif q == 1: a(f"ds_read_b128 v[{F+4}:{F+7}], v{self.V_AA+j} offset:4096")
        else:
            ad = self.V_AWA if q == 2 else self.V_AWB
            R = F + 8 + 4*(q-2)
            a(f"ds_read_b64_tr_b16 v[{R}:{R+1}], v{ad} offset:{4096*j}")
            a(f"ds_read_b64_tr_b16 v[{R+2}:{R+3}], v{ad} offset:{4096*j+1024}")

    def g1_mfma1(self, j, orient, tt, q):
        if "nomfma" in self.opt: return
        a = self.a
        F = self.V_FR + 16*j
        X = f"v[{F+4*tt}:{F+4*tt+3}]"; W = f"v[{F+8+4*q}:{F+11+4*q}]"
        A = self.V_ACC + 16*(2*tt+q)
        D = f"v[{A}:{A+15}]"
        if orient == "T": a(f"v_mfma_f32_32x32x16_bf16 {D}, {W}, {X}, {D}")
        else:             a(f"v_mfma_f32_32x32x16_bf16 {D}, {X}, {W}, {D}")

    def g1_colsum(self, j):
        if "nostats" in self.opt: return
        F = self.V_FR + 16*j; D = self.V_CSD
        self.a(f"v_mfma_f32_16x16x32_bf16 v[{D}:{D+3}], v[{self.V_CSA}:{self.V_CSA+3}], v[{F+8}:{F+11}], v[{D}:{D+3}]")

    def g1_adv(self):
        a = self.a
        for r in list(range(self.V_AA, self.V_AA+4)) + [self.V_AWA, self.V_AWB]:
            a(f"v_add_u32 v{r}, s{S_DELTA}, v{r}")

    def g1_cstep(self, j, orient, with_reads):
        a = self.a
        self.g1_mfma1(j, orient, 0, 0)
        self.g1_colsum(j)
        self.g1_mfma1(j, orient, 1, 0)
        if with_reads: self.g1_read1(j, 2)
        self.g1_mfma1(j, orient, 0, 1)
        if with_reads: self.g1_read1(j, 0)
        self.g1_mfma1(j, orient, 1, 1)
        if with_reads:
            self.g1_read1(j, 1); self.g1_read1(j, 3)

    def g1_compute(self, orient, tag):
        a = self.a
        self.g1_setup_compute()
        a(f"s_barrier")
        self.stamp(self.st1)
        for j in range(4):
            for q in range(4): self.g1_read1(j, q)
        a(f"s_mov_b32 s{S_DELTA}, 32768")
        self.g1_adv()
        a(f"s_mov_b32 s{S_CNT}, 0")
        a(f"s_mov_b32 s{S_RSLOT}, 0")
        L1 = f"L_{tag}_cloop"
        a.put(L1)
        a(f"s_waitcnt lgkmcnt(12)")
        self.g1_cstep(0, orient, False)
        a(f"s_add_u32 s{S_CNT}, s{S_CNT}, 1")
        self.slot_next()
        a(f"s_barrier")
        for q in (2, 0, 1, 3): self.g1_read1(0, q)
        self.g1_cstep(1, orient, True)
        a(f"s_waitcnt lgkmcnt(12)")
        self.g1_cstep(2, orient, True)
        self.g1_cstep(3, orient, True)
        self.g1_adv()
        a(f"s_cmp_lt_u32 s{S_CNT}, 10")
        a(f"s_cbranch_scc1 {L1}")
        a(f"s_waitcnt lgkmcnt(0)")
        T = self.V_T
        a(f"s_lshl_b32 s{S_T0}, s{S_WN}, 8")
        a(f"s_lshl_b32 s{S_T1}, s{S_WM}, 7")
        a(f"s_add_u32 s{S_T0}, s{S_T0}, s{S_T1}")
        a(f"s_add_u32 s{S_T0}, s{S_T0}, {LDS_STATS+ST_CS}")
        a(f"v_lshlrev_b32 v{T}, 2, v1")
        a(f"v_add_u32 v{T}, s{S_T0}, v{T}")
        a(f"s_nop 4")
        a(f"s_mov_b64 exec, 0xffff")
        a(f"ds_write_b32 v{T}, v{self.V_CSD}")
        a(f"ds_write_b32 v{T}, v{self.V_CSD+1} offset:64")
        a(f"s_mov_b64 exec, -1")
        a(f"s_waitcnt lgkmcnt(0)")
        a(f"s_barrier")

    def magic_div5(self, dst, src):
        self.a(f"v_mul_u32_u24 v{dst}, 52429, v{src}")
        self.a(f"v_lshrrev_b32 v{dst}, 18, v{dst}")
    def magic_div20(self, dst, src):
        self.a(f"v_mul_u32_u24 v{dst}, 52429, v{src}")
        self.a(f"v_lshrrev_b32 v{dst}, 20, v{dst}")

    def epi_T_common(self):
        a = self.a
        T = self.V_T; CSR = self.V_FR
        a(f"v_and_b32 v{T}, 31, v1")
        a(f"s_lshl_b32 s{S_T0}, s{S_WM}, 6")
        a(f"v_add_u32 v{T+1}, s{S_T0}, v{T}")
        a(f"v_lshlrev_b32 v{T+1}, 2, v{T+1}")
        a(f"v_add_u32 v{T+1}, {LDS_STATS}, v{T+1}")
        a(f"ds_read_b32 v{T+2}, v{T+1} offset:{ST_AA}")
        a(f"ds_read_b32 v{T+3}, v{T+1} offset:{ST_BB}")
        a(f"ds_read_b32 v{T+4}, v{T+1} offset:{ST_AA+128}")
        a(f"ds_read_b32 v{T+5}, v{T+1} offset:{ST_BB+128}")
        a(f"v_lshrrev_b32 v{T+6}, 5, v1")
        a(f"s_lshl_b32 s{S_T0}, s{S_WN}, 8")
        a(f"s_lshl_b32 s{S_T1}, s{S_WM}, 7")
        a(f"s_add_u32 s{S_T0}, s{S_T0}, s{S_T1}")
        a(f"s_add_u32 s{S_T0}, s{S_T0}, {LDS_STATS+ST_CS}")
        a(f"v_lshlrev_b32 v{T+7}, 4, v{T+6}")
        a(f"v_add_u32 v{T+7}, s{S_T0}, v{T+7}")
        a(f"v_xor_b32 v{T+1}, 128, v{T+7}")
        for g in range(4):
            a(f"ds_read_b128 v[{CSR+4*g}:{CSR+4*g+3}], v{T+7} offset:{32*g}")
        for g in range(4):
            a(f"ds_read_b128 v[{CSR+16+4*g}:{CSR+16+4*g+3}], v{T+1} offset:{32*g}")

    def p1_epi_T(self):
        a = self.a
        T = self.V_T; A = self.V_ACC; CSR = self.V_FR
        self.epi_T_common()
        a(f"s_cmp_lt_u32 s{S_NT}, 5")
        a(f"s_cselect_b32 s{S_T0}, {hex(f32(math.log2(math.e)/math.sqrt(20.0)))}, 1.0")
        self.csel(S_T1, 81920, 163840)
        self.csel(S_T2, 1280, 2560)
        a(f"s_cselect_b32 s{S_T3}, 0, 5")
        self.csel(S_T4, hex(OFF_Q), hex(OFF_KV))
        self.csel(S_T5, hex(SZ_Q), hex(SZ_KV))
        a(f"s_add_u32 s{SRD_O}, s{S_WS}, s{S_T4}")
        a(f"s_addc_u32 s{SRD_O+1}, s{S_WS+1}, 0")
        a(f"s_mov_b32 s{SRD_O+2}, s{S_T5}")
        a(f"s_mov_b32 s{SRD_O+3}, 0x20000")
        a(f"s_sub_u32 s{S_T3}, s{S_NT}, s{S_T3}")
        a(f"s_lshl_b32 s{S_T3}, s{S_T3}, 5")
        a(f"s_lshl_b32 s{S_T4}, s{S_WN}, 4")
        a(f"s_add_u32 s{S_T3}, s{S_T3}, s{S_T4}")
        a(f"s_lshl_b32 s{S_T4}, s{S_WM}, 3")
        AD = T + 8
        for q in range(2):
            for g in range(4):
                if q == 0:
                    a(f"s_add_u32 s{S_T5}, s{S_T3}, s{S_T4}")
                else:
                    a(f"s_xor_b32 s{S_T5}, s{S_T4}, 8")
                    a(f"s_add_u32 s{S_T5}, s{S_T5}, s{S_T3}")
                a(f"s_add_u32 s{S_T5}, s{S_T5}, {2*g}")
                a(f"v_add_u32 v{T+16}, s{S_T5}, v{T+6}")
                self.magic_div5(T+17, T+16)
                a(f"v_mul_u32_u24 v{T+18}, 5, v{T+17}")
                a(f"v_sub_u32 v{T+18}, v{T+16}, v{T+18}")
                a(f"v_mul_lo_u32 v{T+17}, v{T+17}, s{S_T1}")
                a(f"v_lshlrev_b32 v{T+18}, 8, v{T+18}")
                a(f"v_add_u32 v{T+17}, v{T+17}, v{T+18}")
                a(f"v_lshl_add_u32 v{AD+4*q+g}, v{T}, 3, v{T+17}")
        a(f"s_lshl_b32 s{S_T4}, s{S_MT}, 2")
        a(f"s_lshl_b32 s{S_T5}, s{S_WM}, 1")
        a(f"s_add_u32 s{S_T4}, s{S_T4}, s{S_T5}")
        a(f"s_mul_i32 s{S_T4}, s{S_T4}, s{S_T2}")
        a(f"s_add_u32 s{S_T5}, s{S_T4}, s{S_T2}")
        a(f"s_waitcnt lgkmcnt(0)")
        for tt in range(2):
            a(f"v_mul_f32 v{T+2+2*tt}, s{S_T0}, v{T+2+2*tt}")
            a(f"v_mul_f32 v{T+3+2*tt}, s{S_T0}, v{T+3+2*tt}")
        for tt in range(2):
            for q in range(2):
                for g in range(4):
                    for i in range(4):
                        r = A + 16*(2*tt+q) + 4*g + i
                        a(f"v_mul_f32 v{r}, v{T+2+2*tt}, v{r}")
                        a(f"v_fmac_f32 v{r}, v{T+3+2*tt}, v{CSR+16*q+4*g+i}")
                    r = A + 16*(2*tt+q) + 4*g
                    a(f"v_cvt_pk_bf16_f32 v{r}, v{r}, v{r+1}")
                    a(f"v_cvt_pk_bf16_f32 v{r+1}, v{r+2}, v{r+3}")
                    a(f"buffer_store_dwordx2 v[{r}:{r+1}], v{AD+4*q+g}, s[{SRD_O}:{SRD_O+3}], s{S_T4+tt} offen sc1")

    def p1_epi_N(self):
        a = self.a
        T = self.V_T; A = self.V_ACC
        AB = self.V_FR; BB = self.V_FR + 16
        a(f"v_and_b32 v{T}, 31, v1")
        a(f"v_lshrrev_b32 v{T+6}, 5, v1")
        a(f"s_lshl_b32 s{S_T0}, s{S_WM}, 8")
        a(f"v_lshlrev_b32 v{T+4}, 4, v{T+6}")
        a(f"v_add_u32 v{T+4}, s{S_T0}, v{T+4}")
        a(f"v_add_u32 v{T+4}, {LDS_STATS}, v{T+4}")
        a(f"s_mov_b32 s{S_T2}, 163840")
        for q in range(2):
            a(f"s_xor_b32 s{S_T0}, s{S_WM}, {q}")
            a(f"s_lshl_b32 s{S_T0}, s{S_T0}, 5")
            a(f"s_lshl_b32 s{S_T1}, s{S_WN}, 6")
            a(f"s_add_u32 s{S_T0}, s{S_T0}, s{S_T1}")
            a(f"v_add_u32 v{T+1}, s{S_T0}, v{T}")
            a(f"v_lshlrev_b32 v{T+2}, 2, v{T+1}")
            a(f"v_add_u32 v{T+2}, {LDS_STATS+ST_CS}, v{T+2}")
            a(f"ds_read_b32 v{T+10+q}, v{T+2}")
            a(f"s_sub_u32 s{S_T1}, s{S_NT}, 10")
            a(f"s_lshl_b32 s{S_T1}, s{S_T1}, 7")
            a(f"v_add_u32 v{T+7}, s{S_T1}, v{T+1}")
            self.magic_div20(T+8, T+7)
            a(f"v_mul_u32_u24 v{T+9}, 20, v{T+8}")
            a(f"v_sub_u32 v{T+9}, v{T+7}, v{T+9}")
            a(f"v_mul_lo_u32 v{T+8}, v{T+8}, s{S_T2}")
            a(f"v_lshlrev_b32 v{T+9}, 4, v{T+9}")
            a(f"v_add_u32 v{T+8}, v{T+8}, v{T+9}")
            a(f"v_mul_u32_u24 v{T+9}, 320, v{T+6}")
            a(f"v_add_u32 v{T+8}, v{T+8}, v{T+9}")
            a(f"v_add_u32 v{T+12+q}, 1280, v{T+8}")
        self.srd(SRD_O, S_WS, OFF_KV, SZ_KV)
        a(f"s_lshl_b32 s{S_T4}, s{S_MT}, 2")
        a(f"s_lshl_b32 s{S_T5}, s{S_WM}, 1")
        a(f"s_add_u32 s{S_T4}, s{S_T4}, s{S_T5}")
        a(f"s_mul_i32 s{S_T4}, s{S_T4}, 2560")
        a(f"s_add_u32 s{S_T5}, s{S_T4}, 2560")
        for tt in range(2):
            for g in range(4):
                a(f"ds_read_b128 v[{AB+4*g}:{AB+4*g+3}], v{T+4} offset:{ST_AA + 128*tt + 32*g}")
                a(f"ds_read_b128 v[{BB+4*g}:{BB+4*g+3}], v{T+4} offset:{ST_BB + 128*tt + 32*g}")
            a(f"s_waitcnt lgkmcnt(0)")
            for q in range(2):
                for r in range(16):
                    R = A + 16*(2*tt+q) + r
                    a(f"v_mul_f32 v{R}, v{AB+r}, v{R}")
                    a(f"v_fmac_f32 v{R}, v{BB+r}, v{T+10+q}")
                for st in range(2):
                    R = A + 16*(2*tt+q) + 8*st
                    for z in range(4):
                        a(f"v_cvt_pk_bf16_f32 v{R+z}, v{R+2*z}, v{R+2*z+1}")
                    a(f"buffer_store_dwordx4 v[{R}:{R+3}], v{T+12+q}, s[{SRD_O}:{SRD_O+3}], s{S_T4+tt} offen offset:{640*st} sc1")

    def relayout_unit(self):
        pass

    def relayout_load(self):
        a = self.a
        T = self.V_T
        Lskip = "L_rl_skip1"
        a(f"s_mul_i32 s{S_T0}, s2, 3")
        a(f"s_sub_u32 s{S_T5}, s{S_W}, 4")
        a(f"s_add_u32 s{S_T0}, s{S_T0}, s{S_T5}")
        a(f"s_cmp_ge_u32 s{S_T5}, 3")
        a(f"s_cbranch_scc1 {Lskip}")
        a(f"s_cmp_ge_u32 s{S_T0}, 740")
        a(f"s_cbranch_scc1 {Lskip}")
        a(f"s_cmp_lt_u32 s{S_T0}, 540")
        a(f"s_cselect_b32 s{S_T1}, 0, 540")
        a(f"s_cselect_b32 s{SRD_T}, s{S_W2}, s{S_WO}")
        a(f"s_cselect_b32 s{SRD_T+1}, s{S_W2+1}, s{S_WO+1}")
        self.csel(SRD_T+2, 1728*1280, 640*1280)
        a(f"s_mov_b32 s{SRD_T+3}, 0x20000")
        a(f"s_sub_u32 s{S_T1}, s{S_T0}, s{S_T1}")
        a(f"s_mul_hi_u32 s{S_T2}, s{S_T1}, {hex((2**32+9)//10)}")
        a(f"s_mul_i32 s{S_T3}, s{S_T2}, 10")
        a(f"s_sub_u32 s{S_T3}, s{S_T1}, s{S_T3}")
        a(f"v_lshrrev_b32 v{T}, 3, v1")
        a(f"v_mul_u32_u24 v{T}, 1280, v{T}")
        a(f"v_and_b32 v{T+1}, 7, v1")
        a(f"v_lshl_add_u32 v{T}, v{T+1}, 4, v{T}")
        a(f"s_mul_i32 s{S_T2}, s{S_T2}, {32*1280}")
        a(f"s_lshl_b32 s{S_T3}, s{S_T3}, 7")
        a(f"s_add_u32 s{S_T2}, s{S_T2}, s{S_T3}")
        a(f"s_lshl_b32 s{S_T3}, s{S_T5}, 12")
        a(f"s_add_u32 m0, s{S_T3}, {LDS_RL}")
        for jj in range(4):
            a(f"s_nop 0")
            a(f"buffer_load_dwordx4 v{T}, s[{SRD_T}:{SRD_T+3}], s{S_T2} offen lds")
            if jj < 3:
                a(f"s_add_u32 m0, m0, 1024")
                a(f"s_add_u32 s{S_T2}, s{S_T2}, {8*1280}")
        a.put(Lskip)

    def relayout_store(self):
        a = self.a
        T = self.V_T
        Lskip = "L_rl_skip2"
        a(f"s_mul_i32 s{S_T0}, s2, 3")
        a(f"s_sub_u32 s{S_RLW}, s{S_W}, 4")
        a(f"s_add_u32 s{S_T0}, s{S_T0}, s{S_RLW}")
        a(f"s_cmp_ge_u32 s{S_RLW}, 3")
        a(f"s_cbranch_scc1 {Lskip}")
        a(f"s_cmp_ge_u32 s{S_T0}, 740")
        a(f"s_cbranch_scc1 {Lskip}")
        a(f"s_cmp_lt_u32 s{S_T0}, 540")
        a(f"s_cselect_b32 s{S_T1}, 0, 540")
        self.csel(S_T4, hex(OFF_W2P), hex(OFF_WOP))
        self.csel(S_T5, hex(SZ_W2P), hex(SZ_WOP))
        a(f"s_sub_u32 s{S_T1}, s{S_T0}, s{S_T1}")
        a(f"s_add_u32 s{SRD_T}, s{S_WS}, s{S_T4}")
        a(f"s_addc_u32 s{SRD_T+1}, s{S_WS+1}, 0")
        a(f"s_mov_b32 s{SRD_T+2}, s{S_T5}")
        a(f"s_mov_b32 s{SRD_T+3}, 0x20000")
        a(f"s_mul_hi_u32 s{S_T2}, s{S_T1}, {hex((2**32+9)//10)}")
        a(f"s_mul_i32 s{S_T3}, s{S_T2}, 10")
        a(f"s_sub_u32 s{S_T3}, s{S_T1}, s{S_T3}")
        a(f"s_mul_i32 s{S_T2}, s{S_T2}, 40")
        a(f"s_lshl_b32 s{S_T3}, s{S_T3}, 2")
        a(f"s_add_u32 s{S_T2}, s{S_T2}, s{S_T3}")
        a(f"s_lshl_b32 s{S_T2}, s{S_T2}, 10")
        a(f"v_lshrrev_b32 v{T}, 4, v1")
        a(f"v_lshlrev_b32 v{T}, 3, v{T}")
        a(f"v_bfe_u32 v{T+1}, v1, 2, 2")
        a(f"v_add_u32 v{T}, v{T}, v{T+1}")
        a(f"v_lshlrev_b32 v{T}, 7, v{T}")
        a(f"v_and_b32 v{T+1}, 3, v1")
        a(f"v_lshl_add_u32 v{T}, v{T+1}, 3, v{T}")
        a(f"s_lshl_b32 s{S_T3}, s{S_RLW}, 12")
        a(f"s_add_u32 s{S_T3}, s{S_T3}, {LDS_RL}")
        a(f"v_add_u32 v{T}, s{S_T3}, v{T}")
        a(f"v_lshlrev_b32 v{T+1}, 4, v1")
        O = T + 4
        for tq in range(4):
            a(f"ds_read_b64_tr_b16 v[{O+4*tq}:{O+4*tq+1}], v{T} offset:{32*tq}")
            a(f"ds_read_b64_tr_b16 v[{O+4*tq+2}:{O+4*tq+3}], v{T} offset:{32*tq+512}")
        a(f"s_waitcnt lgkmcnt(0)")
        for tq in range(4):
            a(f"buffer_store_dwordx4 v[{O+4*tq}:{O+4*tq+3}], v{T+1}, s[{SRD_T}:{SRD_T+3}], s{S_T2} offen offset:{1024*tq} sc1")
        a.put(Lskip)

    def p1(self):
        a = self.a
        a(f"s_and_b32 s{S_T0}, s{S_GX}, 3")
        a(f"s_lshl_b32 s{S_T0}, s{S_T0}, 2")
        a(f"s_and_b32 s{S_T1}, s{S_GI}, 3")
        a(f"s_add_u32 s{S_MT}, s{S_T0}, s{S_T1}")
        a(f"s_lshr_b32 s{S_T0}, s{S_GX}, 2")
        a(f"s_lshl_b32 s{S_T0}, s{S_T0}, 3")
        a(f"s_lshr_b32 s{S_T2}, s{S_GI}, 2")
        a(f"s_add_u32 s{S_NT}, s{S_T0}, s{S_T2}")
        a(f"s_mul_i32 s{S_T1}, s{S_T1}, 3")
        a(f"s_add_u32 s{S_KK}, s{S_T1}, s{S_T2}")
        a(f"s_cmp_ge_u32 s{S_KK}, 10")
        a(f"s_cselect_b32 s{S_T0}, 10, 0")
        a(f"s_sub_u32 s{S_KK}, s{S_KK}, s{S_T0}")
        self.aux_A = ""
        self.st1 = 1
        a(f"s_cmp_lt_u32 s{S_W}, 4")
        a(f"s_cbranch_scc1 L_p1_compute")
        self.g1_setup_loader(3840)
        a(f"s_waitcnt lgkmcnt(0)")
        if "p1s" in self.opt: self.stamp(15)
        self.srd(SRD_A, S_X, 0, 2048*1280)
        self.srd(SRD_W, S_WQKV, 0, 640*3840)
        a(f"s_cmp_ge_u32 s{S_NT}, 15")
        a(f"s_cbranch_scc1 L_p1_null0")
        self.g1_dma_stage(3840)
        a.put("L_p1_null0")
        if "p1s" in self.opt: self.stamp(16)
        self.relayout_load()
        a(f"s_load_dword s{S_TAG}, s[{S_WS}:{S_WS+1}], {OFF_EPOCH}")
        self.srd(SRD_F, S_WS, 0, 0x100000)
        a(f"s_cmp_ge_u32 s{S_NT}, 15")
        a(f"s_cbranch_scc1 L_p1_lnull")
        for s_ in range(self.NSLOT - 2):
            self.g1_dma_stage(3840)
        a(f"s_waitcnt lgkmcnt(0)")
        if "p1s" in self.opt: self.stamp(17)
        self.g1_loader(3840, "p1")
        a.put("L_p1_lnull")
        a(f"s_waitcnt vmcnt(0)")
        self.relayout_store()
        a(f"s_branch L_p1_done")
        a.put("L_p1_compute")
        if "nowarm" not in self.opt: self.code_warm()
        a(f"s_waitcnt lgkmcnt(0)")
        a(f"s_load_dword s{S_TAG}, s[{S_WS}:{S_WS+1}], {OFF_EPOCH}")
        self.srd(SRD_F, S_WS, 0, 0x100000)
        a(f"s_cmp_ge_u32 s{S_NT}, 15")
        a(f"s_cbranch_scc1 L_p1_done")
        a(f"s_cmp_ge_u32 s{S_NT}, 10")
        a(f"s_cbranch_scc1 L_p1_N")
        self.g1_compute("T", "p1T")
        self.stamp(2)
        self.p1_epi_T()
        a(f"s_branch L_p1_done")
        a.put("L_p1_N")
        self.g1_compute("N", "p1N")
        self.stamp(2)
        self.p1_epi_N()
        a.put("L_p1_done")
        self.stamp(3)
        a(f"s_waitcnt vmcnt(0)")
        self.stamp(4)

    def poll(self, addr_regs, masks, tagname):
        a = self.a
        T = self.V_T
        L = f"L_{tagname}_poll"; Lo = f"L_{tagname}_pollok"
        a(f"s_mov_b32 s{S_T0}, 0")
        a.put(L)
        for k, (ar, mk) in enumerate(zip(addr_regs, masks)):
            self.set_exec(mk)
            a(f"buffer_load_dword v{T+20+k}, v{ar}, s[{SRD_F}:{SRD_F+3}], 0 offen sc1")
        a(f"s_waitcnt vmcnt(0)")
        a(f"s_mov_b64 s[{S_SAVE}:{S_SAVE+1}], 0")
        for k, (ar, mk) in enumerate(zip(addr_regs, masks)):
            self.set_exec(mk)
            a(f"v_cmp_ne_u32 vcc, s{S_TAG}, v{T+20+k}")
            a(f"s_or_b64 s[{S_SAVE}:{S_SAVE+1}], s[{S_SAVE}:{S_SAVE+1}], vcc")
        a(f"s_mov_b64 exec, -1")
        a(f"s_cmp_eq_u64 s[{S_SAVE}:{S_SAVE+1}], 0")
        a(f"s_cbranch_scc1 {Lo}")
        a(f"s_add_u32 s{S_T0}, s{S_T0}, 1")
        a(f"s_cmp_lt_u32 s{S_T0}, 0x40000")
        a(f"s_cbranch_scc1 {L}")
        a.put(Lo)

    def p1_signal(self):
        a = self.a
        T = self.V_T
        a(f"s_waitcnt vmcnt(0) lgkmcnt(0)")
        a(f"s_barrier")
        self.finish_tag_once()
        Ls = "L_p1sig_skip"
        a(f"s_cmp_lg_u32 s{S_W}, 0")
        a(f"s_cbranch_scc1 {Ls}")
        a(f"v_lshrrev_b32 v{T}, 3, v1")
        a(f"v_and_b32 v{T+1}, 7, v1")
        Ln = "L_p1sig_null"; Lj = "L_p1sig_join"
        a(f"s_cmp_eq_u32 s{S_NT}, 15")
        a(f"s_cbranch_scc1 {Ln}")
        a(f"s_cmp_ge_u32 s{S_NT}, 10")
        a(f"s_cselect_b32 s{S_T0}, 10, 5")
        a(f"s_cmp_lt_u32 s{S_NT}, 5")
        a(f"s_cselect_b32 s{S_T0}, 0, s{S_T0}")
        a(f"s_sub_u32 s{S_T0}, s{S_NT}, s{S_T0}")
        a(f"s_lshl_b32 s{S_T0}, s{S_T0}, 7")
        a(f"s_mul_i32 s{S_T1}, s{S_T0}, 52429")
        a(f"s_lshr_b32 s{S_T1}, s{S_T1}, 20")
        a(f"s_add_u32 s{S_T2}, s{S_T0}, 127")
        a(f"s_mul_i32 s{S_T2}, s{S_T2}, 52429")
        a(f"s_lshr_b32 s{S_T2}, s{S_T2}, 20")
        a(f"s_min_u32 s{S_T2}, s{S_T2}, 31")
        a(f"v_add_u32 v{T+2}, s{S_T1}, v{T}")
        a(f"v_cmp_ge_u32 vcc, s{S_T2}, v{T+2}")
        a(f"s_mov_b64 s[{S_SAVE}:{S_SAVE+1}], vcc")
        a(f"s_cmp_lt_u32 s{S_NT}, 5")
        a(f"s_cbranch_scc0 {Lj}")
        a(f"s_lshr_b32 s{S_T3}, s{S_MT}, 1")
        a(f"v_cmp_eq_u32 vcc, s{S_T3}, v{T+1}")
        a(f"s_and_b64 s[{S_SAVE}:{S_SAVE+1}], s[{S_SAVE}:{S_SAVE+1}], vcc")
        a(f"s_branch {Lj}")
        a.put(Ln)
        a(f"v_lshlrev_b32 v{T+2}, 4, v{T}")
        a(f"v_add_u32 v{T+2}, s{S_MT}, v{T+2}")
        a(f"v_cmp_gt_u32 vcc, 2, v{T}")
        a(f"s_mov_b64 s[{S_SAVE}:{S_SAVE+1}], vcc")
        a.put(Lj)
        a(f"v_lshl_add_u32 v{T+2}, v{T+2}, 3, v{T+1}")
        a(f"v_lshlrev_b32 v{T+2}, 10, v{T+2}")
        a(f"s_lshl_b32 s{S_T0}, s2, 2")
        a(f"s_add_u32 s{S_T0}, s{S_T0}, {OFF_MB1}")
        a(f"v_add_u32 v{T+2}, s{S_T0}, v{T+2}")
        a(f"v_mov_b32 v{T+3}, s{S_TAG}")
        a(f"s_mov_b64 exec, s[{S_SAVE}:{S_SAVE+1}]")
        a(f"buffer_store_dword v{T+3}, v{T+2}, s[{SRD_F}:{SRD_F+3}], 0 offen sc1")
        a(f"s_mov_b64 exec, -1")
        a.put(Ls)

    def finish_tag_once(self):
        a = self.a
        a(f"s_mul_i32 s{S_TAG}, s{S_TAG}, 0x9E3779B1")
        a(f"s_add_u32 s{S_TAG}, s{S_TAG}, 0x7F4A7C15")

    def p2_wait(self):
        a = self.a
        T = self.V_T
        Ls = "L_p2w_skip"
        a(f"s_cmp_lg_u32 s{S_W}, 0")
        a(f"s_cbranch_scc1 {Ls}")
        a(f"s_mul_i32 s{S_T1}, s{S_GI}, 20")
        a(f"v_bfe_u32 v{T}, v1, 4, 1")
        a(f"v_mul_u32_u24 v{T}, 19, v{T}")
        a(f"v_add_u32 v{T}, s{S_T1}, v{T}")
        a(f"v_lshrrev_b32 v{T}, 7, v{T}")
        a(f"v_lshrrev_b32 v{T+1}, 5, v1")
        a(f"v_mul_u32_u24 v{T+1}, 5, v{T+1}")
        a(f"v_add_u32 v{T+2}, v{T}, v{T+1}")
        a(f"v_add_u32 v{T+2}, 5, v{T+2}")
        a(f"v_and_b32 v{T+3}, 15, v1")
        self.vprod(T+4, T+3, T+2, T+8)
        a(f"v_bfe_u32 v{T}, v1, 1, 1")
        a(f"v_mul_u32_u24 v{T}, 19, v{T}")
        a(f"v_add_u32 v{T}, s{S_T1}, v{T}")
        a(f"v_lshrrev_b32 v{T+2}, 7, v{T}")
        a(f"v_and_b32 v{T+3}, 1, v1")
        a(f"s_lshl_b32 s{S_T2}, s{S_GX}, 1")
        a(f"v_add_u32 v{T+3}, s{S_T2}, v{T+3}")
        a(f"v_cmp_eq_u32 vcc, 4, v1")
        a(f"s_and_b32 s{S_T2}, s{S_GI}, 15")
        a(f"v_mov_b32 v{T+6}, s{S_T2}")
        a(f"v_mov_b32 v{T+7}, 15")
        a(f"v_cndmask_b32 v{T+3}, v{T+3}, v{T+6}, vcc")
        a(f"v_cndmask_b32 v{T+2}, v{T+2}, v{T+7}, vcc")
        self.vprod(T+5, T+3, T+2, T+8)
        a(f"s_lshl_b32 s{S_T2}, s2, 10")
        a(f"s_add_u32 s{S_T2}, s{S_T2}, {OFF_MB1}")
        for r in (T+4, T+5):
            a(f"v_lshlrev_b32 v{r}, 2, v{r}")
            a(f"v_add_u32 v{r}, s{S_T2}, v{r}")
        self.poll([T+4, T+5], ["-1", "0x1f"], "p2w")
        a.put(Ls)
        a(f"s_barrier")

    def vprod(self, dst, mt, nt, tmp):
        a = self.a
        a(f"v_and_b32 v{dst}, 3, v{mt}")
        a(f"v_and_b32 v{tmp}, 7, v{nt}")
        a(f"v_lshl_add_u32 v{dst}, v{tmp}, 2, v{dst}")
        a(f"v_lshlrev_b32 v{dst}, 3, v{dst}")
        a(f"v_lshrrev_b32 v{tmp}, 2, v{mt}")
        a(f"v_add_u32 v{dst}, v{dst}, v{tmp}")
        a(f"v_lshrrev_b32 v{tmp}, 3, v{nt}")
        a(f"v_lshl_add_u32 v{dst}, v{tmp}, 2, v{dst}")

    def group_barrier(self, phase, tagname):
        a = self.a
        T = self.V_T
        a(f"s_waitcnt vmcnt(0) lgkmcnt(0)")
        a(f"s_barrier")
        Ls = f"L_{tagname}_gskip"
        a(f"s_cmp_lg_u32 s{S_W}, 0")
        a(f"s_cbranch_scc1 {Ls}")
        a(f"v_lshlrev_b32 v{T}, 3, v1")
        a(f"v_add_u32 v{T}, s{S_GX}, v{T}")
        a(f"v_lshlrev_b32 v{T}, 7, v{T}")
        a(f"s_lshl_b32 s{S_T1}, s{S_GI}, 2")
        a(f"s_add_u32 s{S_T1}, s{S_T1}, {OFF_GB + phase*256*128}")
        a(f"v_add_u32 v{T}, s{S_T1}, v{T}")
        a(f"v_mov_b32 v{T+1}, s{S_TAG}")
        self.set_exec(0xffffffff)
        a(f"buffer_store_dword v{T+1}, v{T}, s[{SRD_F}:{SRD_F+3}], 0 offen sc1")
        a(f"s_mov_b64 exec, -1")
        a(f"s_lshl_b32 s{S_T0}, s2, 7")
        a(f"s_add_u32 s{S_T0}, s{S_T0}, {OFF_GB + phase*256*128}")
        a(f"v_lshlrev_b32 v{T+2}, 2, v1")
        a(f"v_add_u32 v{T+2}, s{S_T0}, v{T+2}")
        self.poll([T+2], ["0xffffffff"], tagname)
        a.put(Ls)
        a(f"s_barrier")

    A_QA = 4; A_QB = 12
    A_K = 20
    A_V1 = 36; A_V2 = 40
    A_SA = 44; A_SB = 60; A_P = 76; A_OA = 84; A_OB = 100; A_AK = 116; A_AV = 117; A_DV = 118; A_T = 120
    S_VMASK = 92
    S_NEXTB = 94; S_DSO = 95

    def p2_kreads(self, kb, toff):
        a = self.a
        K = self.A_K + 8*kb
        a(f"ds_read_b64 v[{K}:{K+1}], v{self.A_AK} offset:{toff}")
        a(f"ds_read_b64 v[{K+2}:{K+3}], v{self.A_AK} offset:{toff+256}")
        a(f"ds_read_b64 v[{K+4}:{K+5}], v{self.A_AK} offset:{toff+1024}")
    def p2_vread(self, which, toff):
        a = self.a
        R = self.A_V1 if which == 0 else self.A_V2
        a(f"s_mov_b64 exec, s[{self.S_VMASK}:{self.S_VMASK+1}]")
        a(f"ds_read_b128 v[{R}:{R+3}], v{self.A_AV} offset:{toff+640*which}")
        a(f"s_mov_b64 exec, -1")
    def p2_smfma(self, which, S, kb, Q):
        a = self.a
        K = self.A_K + 8*kb
        if which == 0:
            a(f"v_mfma_f32_32x32x16_bf16 v[{S}:{S+15}], v[{K}:{K+3}], v[{Q}:{Q+3}], 0")
        else:
            a(f"v_mfma_f32_32x32x16_bf16 v[{S}:{S+15}], v[{K+4}:{K+7}], v[{Q+4}:{Q+7}], v[{S}:{S+15}]")

    def p2_sub(self, stream, u):
        a = self.a
        P = self.A_P
        Sc, Sn = (self.A_SA, self.A_SB) if stream == 0 else (self.A_SB, self.A_SA)
        Oc, Op = (self.A_OA, self.A_OB) if stream == 0 else (self.A_OB, self.A_OA)
        Qn = self.A_QB if stream == 0 else self.A_QA
        kb = u if stream == 0 else 1 - u
        ex = lambda i: a(f"v_exp_f32 v{Sc+i}, v{Sc+i}")
        cv = lambda k: a(f"v_cvt_pk_bf16_f32 v{P+k}, v{Sc+2*k}, v{Sc+2*k+1}")
        cvp = lambda k: a(f"v_cvt_pk_bf16_f32 v{P+k}, v{Sn+2*k}, v{Sn+2*k+1}")
        if "p2prio" in self.opt:
            a(f"s_setprio {self.prio_reg(stream)}")
        ex(0); cvp(6); ex(1); ex(2); cvp(7); ex(3)
        if stream == 1: a(f"s_waitcnt lgkmcnt(1)")
        self.p2_smfma(0, Sn, kb, Qn)
        ex(4); cv(0); ex(5); ex(6); cv(1); ex(7)
        self.p2_smfma(1, Sn, kb, Qn)
        if stream == 0:
            pass
        ex(8); cv(2); ex(9); ex(10); cv(3); ex(11)
        if stream == 1: a(f"s_waitcnt lgkmcnt(0)")
        a(f"v_mfma_f32_32x32x16_bf16 v[{Op}:{Op+15}], v[{self.A_V2}:{self.A_V2+3}], v[{P+4}:{P+7}], v[{Op}:{Op+15}]")
        if stream == 0:
            self.p2_vread(1, u*2560)
        ex(12); cv(4); ex(13); ex(14); cv(5); ex(15)
        if stream == 0: a(f"s_waitcnt lgkmcnt(1)")
        a(f"v_mfma_f32_32x32x16_bf16 v[{Oc}:{Oc+15}], v[{self.A_V1}:{self.A_V1+3}], v[{P}:{P+3}], v[{Oc}:{Oc+15}]")
        if stream == 1:
            self.p2_vread(0, (u+1)*2560)
            self.p2_kreads(u, (u+2)*2560)

    def prio_reg(self, stream):
        return self._prio[stream]

    def p2_dma(self, n):
        a = self.a
        for i in range(n):
            a(f"s_mov_b32 m0, s{self.S_DSO}")
            a(f"s_nop 0")
            a(f"buffer_load_dwordx4 v{self.A_DV}, s[{SRD_A}:{SRD_A+3}], s{self.S_DSO} offen sc1 lds")
            a(f"s_add_u32 s{self.S_DSO}, s{self.S_DSO}, 4096")

    def p2(self):
        a = self.a
        T = self.A_T
        self.stamp(5)
        self.p2_wait()
        self.stamp(6)
        a(f"s_mul_i32 s{S_T0}, s{S_GI}, 163840")
        a(f"s_add_u32 s{S_T0}, s{S_T0}, {hex(OFF_KV)}")
        a(f"s_add_u32 s{SRD_A}, s{S_WS}, s{S_T0}")
        a(f"s_addc_u32 s{SRD_A+1}, s{S_WS+1}, 0")
        a(f"s_mov_b32 s{SRD_A+2}, 163840")
        a(f"s_mov_b32 s{SRD_A+3}, 0x20000")
        a(f"s_lshl_b32 s{S_T0}, s{S_GI}, 6")
        a(f"s_lshl_b32 s{S_T1}, s{S_GX}, 3")
        a(f"s_add_u32 s{S_T0}, s{S_T0}, s{S_T1}")
        a(f"s_and_b32 s{S_T1}, s{S_W}, 3")
        a(f"s_lshl_b32 s{S_T1}, s{S_T1}, 1")
        a(f"s_add_u32 s{S_T0}, s{S_T0}, s{S_T1}")
        a(f"s_mul_i32 s{S_T0}, s{S_T0}, 1280")
        a(f"s_add_u32 s{S_T0}, s{S_T0}, {hex(OFF_Q)}")
        a(f"s_add_u32 s{SRD_W}, s{S_WS}, s{S_T0}")
        a(f"s_addc_u32 s{SRD_W+1}, s{S_WS+1}, 0")
        a(f"s_mov_b32 s{SRD_W+2}, 2560")
        a(f"s_mov_b32 s{SRD_W+3}, 0x20000")
        a(f"v_and_b32 v{T}, 31, v1")
        a(f"v_lshrrev_b32 v{T+1}, 5, v1")
        a(f"v_lshlrev_b32 v{T+2}, 3, v{T}")
        a(f"v_lshl_add_u32 v{self.A_AK}, v{T+1}, 9, v{T+2}")
        a(f"v_lshlrev_b32 v{T+3}, 12, v{T+1}")
        a(f"v_add_u32 v{T+3}, v{T+3}, v{T+2}")
        for qi, Q in enumerate((self.A_QA, self.A_QB)):
            a(f"buffer_load_dwordx2 v[{Q}:{Q+1}], v{self.A_AK}, s[{SRD_W}:{SRD_W+3}], 0 offen offset:{1280*qi} sc1")
            a(f"buffer_load_dwordx2 v[{Q+2}:{Q+3}], v{self.A_AK}, s[{SRD_W}:{SRD_W+3}], 0 offen offset:{1280*qi+256} sc1")
            a(f"buffer_load_dwordx2 v[{Q+4}:{Q+5}], v{T+3}, s[{SRD_W}:{SRD_W+3}], 0 offen offset:{1280*qi+1024} sc1")
        a(f"v_lshlrev_b32 v{self.A_DV}, 4, v1")
        a(f"s_lshr_b32 s{S_T0}, s{S_W}, 2")
        a(f"s_mul_i32 s{S_T0}, s{S_T0}, 81920")
        a(f"s_and_b32 s{S_T1}, s{S_W}, 3")
        a(f"s_lshl_b32 s{S_T1}, s{S_T1}, 10")
        a(f"s_add_u32 s{self.S_DSO}, s{S_T0}, s{S_T1}")
        self.p2_dma(7)
        for Q in (self.A_QA, self.A_QB):
            a(f"v_mov_b32 v{Q+6}, 0"); a(f"v_mov_b32 v{Q+7}, 0")
        for kb in range(2):
            a(f"v_mov_b32 v{self.A_K+8*kb+6}, 0"); a(f"v_mov_b32 v{self.A_K+8*kb+7}, 0")
        a(f"v_cmp_eq_u32 vcc, 20, v{T}")
        a(f"v_mov_b32 v{T+5}, 0x3f803f80")
        a(f"v_mul_u32_u24 v{T+6}, 320, v{T+1}")
        a(f"v_cndmask_b32 v{self.A_V1}, 0, v{T+5}, vcc")
        for r in range(1, 8):
            a(f"v_mov_b32 v{self.A_V1+r}, v{self.A_V1}")
        a(f"v_lshl_add_u32 v{self.A_AV}, v{T}, 4, v{T+6}")
        a(f"v_add_u32 v{self.A_AV}, 1280, v{self.A_AV}")
        a(f"v_add_u32 v{self.A_AK}, s{S_T0}, v{self.A_AK}")
        a(f"v_add_u32 v{self.A_AV}, s{S_T0}, v{self.A_AV}")
        a(f"s_mov_b32 s{self.S_VMASK}, 0xfffff")
        a(f"s_mov_b32 s{self.S_VMASK+1}, 0xfffff")
        for r in range(16):
            a(f"v_mov_b32 v{self.A_OA+r}, 0"); a(f"v_mov_b32 v{self.A_OB+r}, 0")
        for r in range(8):
            a(f"v_mov_b32 v{self.A_P+r}, 0")
        for r in range(12, 16):
            a(f"v_mov_b32 v{self.A_SB+r}, 0")
        a(f"s_waitcnt vmcnt(3)")
        a(f"s_barrier")
        self.stamp(7)
        self.p2_dma(2)
        self.p2_kreads(0, 0)
        self.p2_kreads(1, 2560)
        self.p2_vread(0, 0)
        self.p2_vread(1, 0)
        a(f"s_waitcnt lgkmcnt(0)")
        self.p2_smfma(0, self.A_SA, 0, self.A_QA); self.p2_smfma(1, self.A_SA, 0, self.A_QA)
        a(f"s_mov_b32 s{S_CNT}, 0")
        a(f"s_mov_b32 s{self.S_NEXTB}, 2")
        a(f"s_nop 7"); a(f"s_nop 3")
        self._prio = (1, 0)
        a.put("L_p2_loop")
        if "p2nobar" not in self.opt:
            a(f"s_cmp_eq_u32 s{S_CNT}, s{self.S_NEXTB}")
            a(f"s_cbranch_scc1 L_p2_wait")
        a.put("L_p2_back")
        if "p2prio" in self.opt:
            pass
        for u in range(2):
            self.p2_sub(0, u)
            self.p2_sub(1, u)
        a(f"v_add_u32 v{self.A_AK}, 5120, v{self.A_AK}")
        a(f"v_add_u32 v{self.A_AV}, 5120, v{self.A_AV}")
        a(f"s_add_u32 s{S_CNT}, s{S_CNT}, 1")
        a(f"s_cmp_lt_u32 s{S_CNT}, 16")
        a(f"s_cbranch_scc1 L_p2_loop")
        a(f"s_branch L_p2_done")
        a.put("L_p2_wait")
        plan = ((2, 2, 3), (4, 3, 2), (6, 2, 3), (8, 3, 2), (10, 2, 1), (12, 1, 0), (14, 0, 0))
        for (cnt, vm, nd) in plan:
            Ln = f"L_p2_w{cnt}"
            a(f"s_cmp_lg_u32 s{S_CNT}, {cnt}")
            a(f"s_cbranch_scc1 {Ln}")
            a(f"s_waitcnt vmcnt({vm})")
            a(f"s_barrier")
            self.p2_dma(nd)
            a(f"s_add_u32 s{self.S_NEXTB}, s{self.S_NEXTB}, 2")
            a(f"s_branch L_p2_back")
            a.put(Ln)
        a(f"s_branch L_p2_back")
        a.put("L_p2_done")
        P = self.A_P; SBr = self.A_SB
        a(f"s_waitcnt lgkmcnt(0)")
        a(f"v_cvt_pk_bf16_f32 v{P+6}, v{SBr+12}, v{SBr+13}")
        a(f"v_cvt_pk_bf16_f32 v{P+7}, v{SBr+14}, v{SBr+15}")
        a(f"s_nop 1")
        a(f"v_mfma_f32_32x32x16_bf16 v[{self.A_OB}:{self.A_OB+15}], v[{self.A_V2}:{self.A_V2+3}], v[{P+4}:{P+7}], v[{self.A_OB}:{self.A_OB+15}]")
        self.stamp(8)
        self.p2_epilogue()

    def p2_epilogue(self):
        a = self.a
        T = self.A_T
        a(f"s_nop 7"); a(f"s_nop 3")
        a(f"s_barrier")
        a(f"s_and_b32 s{S_T0}, s{S_W}, 3")
        a(f"s_lshr_b32 s{S_T1}, s{S_W}, 2")
        a(f"s_lshl_b32 s{S_T0}, s{S_T0}, 1")
        a(f"s_add_u32 s{S_T2}, s{S_T0}, s{S_T1}")
        a(f"s_xor_b32 s{S_T3}, s{S_T2}, 1")
        a(f"s_mul_i32 s{S_T2}, s{S_T2}, 3072")
        a(f"s_mul_i32 s{S_T3}, s{S_T3}, 3072")
        a(f"v_lshlrev_b32 v{T}, 4, v1")
        a(f"v_add_u32 v{T+1}, s{S_T2}, v{T}")
        a(f"v_add_u32 v{T+2}, s{S_T3}, v{T}")
        Lk1 = "L_p2e_k1"; Lj = "L_p2e_j"
        a(f"s_cmp_eq_u32 s{S_T1}, 1")
        a(f"s_cbranch_scc1 {Lk1}")
        for g in range(3):
            a(f"ds_write_b128 v{T+1}, v[{self.A_OB+4*g}:{self.A_OB+4*g+3}] offset:{1024*g}")
        a(f"s_branch {Lj}")
        a.put(Lk1)
        for g in range(3):
            a(f"ds_write_b128 v{T+1}, v[{self.A_OA+4*g}:{self.A_OA+4*g+3}] offset:{1024*g}")
        for r in range(12):
            a(f"v_mov_b32 v{self.A_OA+r}, v{self.A_OB+r}")
        a.put(Lj)
        a(f"s_waitcnt lgkmcnt(0)")
        a(f"s_barrier")
        O = self.A_OA; X = self.A_SA
        for g in range(3):
            a(f"ds_read_b128 v[{X+4*g}:{X+4*g+3}], v{T+2} offset:{1024*g}")
        a(f"s_waitcnt lgkmcnt(0)")
        for r in range(12):
            a(f"v_add_f32 v{O+r}, v{O+r}, v{X+r}")
        a(f"v_mov_b32 v{T}, v{O+8}")
        a(f"v_mov_b32 v{T+1}, v{O+8}")
        a(f"s_nop 1")
        a(f"v_permlane32_swap_b32 v{T}, v{T+1}")
        a(f"s_nop 1")
        a(f"v_rcp_f32 v{T+2}, v{T+1}")
        a(f"s_nop 0")
        for r in range(12):
            a(f"v_mul_f32 v{O+r}, v{T+2}, v{O+r}")
        for g in range(3):
            a(f"v_cvt_pk_bf16_f32 v{O+4*g}, v{O+4*g}, v{O+4*g+1}")
            a(f"v_cvt_pk_bf16_f32 v{O+4*g+1}, v{O+4*g+2}, v{O+4*g+3}")
        self.srd(SRD_O, S_WS, OFF_O, SZ_O)
        a(f"s_and_b32 s{S_T2}, s{S_W}, 3")
        a(f"s_lshr_b32 s{S_T3}, s{S_W}, 2")
        a(f"s_lshl_b32 s{S_T0}, s{S_GX}, 2")
        a(f"s_add_u32 s{S_T0}, s{S_T0}, s{S_T2}")
        a(f"s_mul_i32 s{S_T0}, s{S_T0}, 81920")
        a(f"s_lshl_b32 s{S_T1}, s{S_T3}, 11")
        a(f"s_add_u32 s{S_T0}, s{S_T0}, s{S_T1}")
        a(f"v_bfe_u32 v{T+3}, v1, 4, 1")
        a(f"v_lshlrev_b32 v{T+3}, 10, v{T+3}")
        a(f"v_and_b32 v{T+4}, 15, v1")
        a(f"v_lshl_add_u32 v{T+3}, v{T+4}, 4, v{T+3}")
        a(f"v_lshrrev_b32 v{T+5}, 5, v1")
        a(f"s_mul_i32 s{S_T1}, s{S_GI}, 20")
        for g in range(3):
            a(f"v_lshlrev_b32 v{T+6}, 2, v{T+5}")
            a(f"s_add_u32 s{S_T2}, s{S_T1}, {8*g}")
            a(f"v_add_u32 v{T+6}, s{S_T2}, v{T+6}")
            a(f"v_lshrrev_b32 v{T+7}, 5, v{T+6}")
            a(f"v_lshlrev_b32 v{T+7}, 12, v{T+7}")
            a(f"v_bfe_u32 v{T+8}, v{T+6}, 3, 2")
            a(f"v_lshl_add_u32 v{T+7}, v{T+8}, 8, v{T+7}")
            a(f"v_and_b32 v{T+8}, 7, v{T+6}")
            a(f"v_lshl_add_u32 v{T+7}, v{T+8}, 1, v{T+7}")
            a(f"v_add_u32 v{T+7}, v{T+7}, v{T+3}")
            if g == 2: self.set_exec(0xffffffff)
            a(f"buffer_store_dwordx2 v[{O+4*g}:{O+4*g+1}], v{T+7}, s[{SRD_O}:{SRD_O+3}], s{S_T0} offen sc1")
            if g == 2: a(f"s_mov_b64 exec, -1")

    G_ACC = 4
    G_ACT = 52
    G_AL = 84; G_AH = 85; G_WV = 86; G_DV = 87
    G_W = 88
    S_RB = 49; S_J = 50

    def g2_wload(self, NT, step):
        a = self.a
        for t in range(NT):
            R = self.G_W + 4*(step*NT + t)
            off = step*4*40*1024 + t*1024
            a(f"s_add_u32 s{S_T2}, s{S_SW}, {off}")
            a(f"buffer_load_dwordx4 v[{R}:{R+3}], v{self.G_WV}, s[{SRD_W}:{SRD_W+3}], s{S_T2} offen {self.ld_aux}")

    def g2_adma(self, stage):
        a = self.a
        slot = (stage % 4) * 32768
        for q in range(4):
            a(f"s_add_u32 m0, s{S_M0A}, {slot + q*8192}")
            a(f"s_add_u32 s{S_T2}, s{S_M0A}, {stage*32768 + q*8192}")
            a(f"buffer_load_dwordx4 v{self.G_DV}, s[{SRD_A}:{SRD_A+3}], s{S_T2} offen {self.ld_aux} lds")

    def g2_reads(self, stage, u, st):
        a = self.a
        slot = stage % 4
        base = self.G_AL if slot < 2 else self.G_AH
        off = (slot % 2) * 32768 + u*16384
        for m in range(4):
            R = self.G_ACT + 16*st + 4*m
            a(f"ds_read_b128 v[{R}:{R+3}], v{base} offset:{off + m*1024}")

    def g2_mfma(self, NT, step, st):
        a = self.a
        for t in range(NT):
            W = self.G_W + 4*(step*NT + t)
            for m in range(4):
                A = self.G_ACC + 4*(m*3 + t)
                X = self.G_ACT + 16*st + 4*m
                a(f"v_mfma_f32_16x16x32_bf16 v[{A}:{A+3}], v[{W}:{W+3}], v[{X}:{X+3}], v[{A}:{A+3}]")

    def g2_main(self, NT, NSTG):
        a = self.a
        per = 2*NT + 4
        pre = min(3, NSTG)
        for sg in range(pre):
            self.g2_wload(NT, 2*sg); self.g2_wload(NT, 2*sg+1)
            self.g2_adma(sg)
        for r in range(48):
            a(f"v_mov_b32 v{self.G_ACC+r}, 0")
        if self.g2st: self.stamp(self.g2st)
        a(f"s_waitcnt vmcnt({per*(pre-1)})")
        a(f"s_barrier")
        if self.g2st: self.stamp(self.g2st+1)
        self.g2_reads(0, 0, 0)
        for sg in range(NSTG):
            if sg + 1 < NSTG:
                out = per * max(0, min(NSTG, sg + pre) - (sg + 2))
                a(f"s_waitcnt vmcnt({out})")
            a(f"s_barrier")
            self.g2_reads(sg, 1, 1)
            a(f"s_waitcnt lgkmcnt(4)")
            self.g2_mfma(NT, 2*sg, 0)
            if sg + pre < NSTG:
                self.g2_wload(NT, 2*(sg+pre)); self.g2_wload(NT, 2*(sg+pre)+1)
                self.g2_adma(sg + pre)
            if sg + 1 < NSTG:
                self.g2_reads(sg+1, 0, 0)
                a(f"s_waitcnt lgkmcnt(4)")
            else:
                a(f"s_waitcnt lgkmcnt(0)")
            self.g2_mfma(NT, 2*sg+1, 1)

    def g2_reduce(self, NT):
        a = self.a
        T = self.G_ACT
        a(f"s_nop 7")
        a(f"s_barrier")
        a(f"s_lshr_b32 s{S_T0}, s{S_W}, 2")
        a(f"s_and_b32 s{S_T1}, s{S_W}, 3")
        a(f"s_mul_i32 s{S_T2}, s{S_T0}, {16*3072}")
        a(f"s_mul_i32 s{S_T3}, s{S_T1}, 3072")
        a(f"s_add_u32 s{S_T3}, s{S_T3}, s{S_T2}")
        a(f"v_lshlrev_b32 v{T}, 4, v1")
        a(f"v_add_u32 v{T+1}, s{S_T3}, v{T}")
        for m in range(4):
            for t in range(NT):
                A = self.G_ACC + 4*(m*3 + t)
                a(f"ds_write_b128 v{T+1}, v[{A}:{A+3}] offset:{m*4*3072 + t*1024}")
        a(f"s_mul_i32 s{S_T3}, s{S_T1}, {4*3072}")
        a(f"s_add_u32 s{S_T3}, s{S_T3}, s{S_T2}")
        a(f"v_add_u32 v{T+2}, s{S_T3}, v{T}")
        a(f"s_waitcnt lgkmcnt(0)")
        a(f"s_barrier")
        for src in range(4):
            for t in range(NT):
                A = self.G_ACC + 4*(src*3 + t)
                a(f"ds_read_b128 v[{A}:{A+3}], v{T+2} offset:{src*3072 + t*1024}")
        a(f"s_waitcnt lgkmcnt(0)")
        for t in range(NT):
            for i in range(4):
                A = self.G_ACC + 4*t + i
                a(f"v_add_f32 v{A}, v{A}, v{A+12}")
                a(f"v_add_f32 v{A+24}, v{A+24}, v{A+36}")
            for i in range(4):
                A = self.G_ACC + 4*t + i
                a(f"v_add_f32 v{A}, v{A}, v{A+24}")

    def g2_setup(self, phase):
        a = self.a
        T = self.G_ACT
        a(f"s_lshr_b32 s{S_T0}, s{S_GI}, 3")
        a(f"s_lshl_b32 s{S_T1}, s{S_GX}, 2")
        a(f"s_add_u32 s{self.S_RB}, s{S_T0}, s{S_T1}")
        a(f"s_and_b32 s{self.S_J}, s{S_GI}, 7")
        if phase == 3:
            off, per, woff, wsz = OFF_O, 81920, OFF_WOP, SZ_WOP
        else:
            off, per, woff, wsz = OFF_R, 54*4096, OFF_W2P, SZ_W2P
        a(f"s_mul_i32 s{S_T0}, s{self.S_RB}, {per}")
        a(f"s_add_u32 s{S_T0}, s{S_T0}, {hex(off)}")
        a(f"s_add_u32 s{SRD_A}, s{S_WS}, s{S_T0}")
        a(f"s_addc_u32 s{SRD_A+1}, s{S_WS+1}, 0")
        a(f"s_mov_b32 s{SRD_A+2}, {per}")
        a(f"s_mov_b32 s{SRD_A+3}, 0x20000")
        self.srd(SRD_W, S_WS, woff, wsz)
        a(f"s_and_b32 s{S_T0}, s{S_W}, 3")
        a(f"s_mul_i32 s{S_T1}, s{S_T0}, 40")
        a(f"s_mul_i32 s{S_T2}, s{self.S_J}, 5")
        a(f"s_add_u32 s{S_T1}, s{S_T1}, s{S_T2}")
        a(f"s_lshr_b32 s{S_T2}, s{S_W}, 2")
        a(f"s_mul_i32 s{S_T2}, s{S_T2}, 3")
        a(f"s_add_u32 s{S_T1}, s{S_T1}, s{S_T2}")
        a(f"s_lshl_b32 s{S_SW}, s{S_T1}, 10")
        a(f"s_lshl_b32 s{S_M0A}, s{S_W}, 10")
        a(f"v_lshlrev_b32 v{self.G_WV}, 4, v1")
        a(f"v_mov_b32 v{self.G_DV}, v{self.G_WV}")
        a(f"s_lshl_b32 s{S_T0}, s{S_T0}, 12")
        a(f"v_add_u32 v{self.G_AL}, s{S_T0}, v{self.G_WV}")
        a(f"v_add_u32 v{self.G_AH}, 0x10000, v{self.G_AL}")

    def g2_epi(self, phase, NT):
        a = self.a
        T = self.G_ACT; A = self.G_ACC
        a(f"s_lshl_b32 s{S_T0}, s{self.S_RB}, 6")
        a(f"s_and_b32 s{S_T1}, s{S_W}, 3")
        a(f"s_lshl_b32 s{S_T1}, s{S_T1}, 4")
        a(f"s_add_u32 s{S_T0}, s{S_T0}, s{S_T1}")
        a(f"v_and_b32 v{T}, 15, v1")
        a(f"v_add_u32 v{T}, s{S_T0}, v{T}")
        a(f"v_mul_u32_u24 v{T}, 1280, v{T}")
        a(f"s_mul_i32 s{S_T0}, s{self.S_J}, 160")
        a(f"s_lshr_b32 s{S_T1}, s{S_W}, 2")
        a(f"s_mul_i32 s{S_T1}, s{S_T1}, 96")
        a(f"s_add_u32 s{S_T0}, s{S_T0}, s{S_T1}")
        a(f"v_lshrrev_b32 v{T+1}, 4, v1")
        a(f"v_lshlrev_b32 v{T+1}, 3, v{T+1}")
        a(f"v_add_u32 v{T+1}, s{S_T0}, v{T+1}")
        a(f"v_add_u32 v{T}, v{T}, v{T+1}")
        if phase == 3:
            self.srd(SRD_T, S_X, 0, 2048*1280)
            self.srd(SRD_O, S_WS, OFF_H, SZ_H)
            aux_r, aux_w = "", "sc1"
        else:
            self.srd(SRD_T, S_WS, OFF_H, SZ_H)
            self.srd(SRD_O, S_OUT, 0, 2048*1280)
            aux_r, aux_w = "sc1", ""
        for t in range(NT):
            a(f"buffer_load_dwordx2 v[{T+4+2*t}:{T+5+2*t}], v{T}, s[{SRD_T}:{SRD_T+3}], 0 offen offset:{32*t} {aux_r}")
        if phase == 5:
            self.srd(SRD_W, S_B2, 0, 1280)
            for t in range(NT):
                a(f"buffer_load_dwordx2 v[{T+12+2*t}:{T+13+2*t}], v{T+1}, s[{SRD_W}:{SRD_W+3}], 0 offen offset:{32*t}")
        a(f"s_waitcnt vmcnt(0)")
        for t in range(NT):
            for half in range(2):
                R = T + 4 + 2*t + half
                a(f"v_lshlrev_b32 v{T+20}, 16, v{R}")
                a(f"v_and_b32 v{T+21}, 0xffff0000, v{R}")
                a(f"v_add_f32 v{A+4*t+2*half}, v{A+4*t+2*half}, v{T+20}")
                a(f"v_add_f32 v{A+4*t+2*half+1}, v{A+4*t+2*half+1}, v{T+21}")
                if phase == 5:
                    R = T + 12 + 2*t + half
                    a(f"v_lshlrev_b32 v{T+20}, 16, v{R}")
                    a(f"v_and_b32 v{T+21}, 0xffff0000, v{R}")
                    a(f"v_add_f32 v{A+4*t+2*half}, v{A+4*t+2*half}, v{T+20}")
                    a(f"v_add_f32 v{A+4*t+2*half+1}, v{A+4*t+2*half+1}, v{T+21}")
            a(f"v_cvt_pk_bf16_f32 v{A+4*t}, v{A+4*t}, v{A+4*t+1}")
            a(f"v_cvt_pk_bf16_f32 v{A+4*t+1}, v{A+4*t+2}, v{A+4*t+3}")
            a(f"buffer_store_dwordx2 v[{A+4*t}:{A+4*t+1}], v{T}, s[{SRD_O}:{SRD_O+3}], 0 offen offset:{32*t} {aux_w}")

    def g2(self, phase):
        a = self.a
        NSTG = 3 if phase == 3 else 7
        self.g2st = 15 if (str(phase) in self.opt_g2) else None
        self.g2_setup(phase)
        L1 = f"L_g2p{phase}_n1"; Lj = f"L_g2p{phase}_j"
        a(f"s_cmp_ge_u32 s{S_W}, 4")
        a(f"s_cbranch_scc1 {L1}")
        self.g2_main(3, NSTG)
        if self.g2st: self.stamp(self.g2st+2)
        self.g2_reduce(3)
        if self.g2st: self.stamp(self.g2st+3)
        self.g2_epi(phase, 3)
        a(f"s_branch {Lj}")
        a.put(L1)
        self.g2_main(2, NSTG)
        if self.g2st: self.stamp(self.g2st+2)
        self.g2_reduce(2)
        if self.g2st: self.stamp(self.g2st+3)
        self.g2_epi(phase, 2)
        a.put(Lj)

    def p4_epi(self):
        a = self.a
        T = self.V_T; A = self.V_ACC; CSR = self.V_FR
        B1R = self.V_FR + 32
        a(f"s_cmp_eq_u32 s{S_NT}, 13")
        a(f"s_cselect_b32 s{S_T0}, s{S_WN}, 0")
        a(f"s_cmp_eq_u32 s{S_T0}, 1")
        a(f"s_cbranch_scc1 L_p4_skip")
        self.epi_T_common()
        for g in range(4):
            a(f"ds_read_b128 v[{B1R+4*g}:{B1R+4*g+3}], v{T+7} offset:{ST_B1-ST_CS+32*g}")
        for g in range(4):
            a(f"ds_read_b128 v[{B1R+16+4*g}:{B1R+16+4*g+3}], v{T+1} offset:{ST_B1-ST_CS+32*g}")
        self.srd(SRD_O, S_WS, OFF_R, SZ_R)
        a(f"s_lshl_b32 s{S_T0}, s{S_MT}, 1")
        a(f"s_add_u32 s{S_T0}, s{S_T0}, s{S_WM}")
        a(f"s_mul_i32 s{S_T0}, s{S_T0}, {54*4096}")
        a(f"s_lshl_b32 s{S_T1}, s{S_NT}, 2")
        a(f"s_lshl_b32 s{S_T2}, s{S_WN}, 1")
        a(f"s_add_u32 s{S_T1}, s{S_T1}, s{S_T2}")
        a(f"s_add_u32 s{S_T2}, s{S_T1}, s{S_WM}")
        a(f"s_xor_b32 s{S_T3}, s{S_WM}, 1")
        a(f"s_add_u32 s{S_T3}, s{S_T1}, s{S_T3}")
        a(f"s_lshl_b32 s{S_T2}, s{S_T2}, 12")
        a(f"s_lshl_b32 s{S_T3}, s{S_T3}, 12")
        a(f"s_add_u32 s{S_T4}, s{S_T0}, s{S_T2}")
        a(f"s_add_u32 s{S_T5}, s{S_T0}, s{S_T3}")
        a(f"v_bfe_u32 v{T+8}, v1, 4, 1")
        a(f"v_lshlrev_b32 v{T+8}, 10, v{T+8}")
        a(f"v_and_b32 v{T+9}, 15, v1")
        a(f"v_lshl_add_u32 v{T+8}, v{T+9}, 4, v{T+8}")
        a(f"v_lshl_add_u32 v{T+8}, v{T+6}, 3, v{T+8}")
        a(f"s_waitcnt lgkmcnt(0)")
        for tt in range(2):
            for q in range(2):
                for g in range(4):
                    for i in range(4):
                        r = A + 16*(2*tt+q) + 4*g + i
                        a(f"v_fma_f32 v{r}, v{T+2+2*tt}, v{r}, v{B1R+16*q+4*g+i}")
                        a(f"v_fmac_f32 v{r}, v{T+3+2*tt}, v{CSR+16*q+4*g+i}")
                        a(f"v_max_f32 v{r}, 0, v{r}")
                        a(f"v_mul_f32 v{r}, v{r}, v{r}")
                    r = A + 16*(2*tt+q) + 4*g
                    a(f"v_cvt_pk_bf16_f32 v{r}, v{r}, v{r+1}")
                    a(f"v_cvt_pk_bf16_f32 v{r+1}, v{r+2}, v{r+3}")
                    a(f"buffer_store_dwordx2 v[{r}:{r+1}], v{T+8}, s[{SRD_O}:{SRD_O+3}], s{S_T4+q} offen offset:{2048*tt + 256*g} sc1")
        a.put("L_p4_skip")

    def p4(self):
        a = self.a
        a(f"s_cmp_ge_u32 s{S_GI}, 28")
        a(f"s_cbranch_scc1 L_p4_done")
        a(f"s_cmp_ge_u32 s{S_GI}, 14")
        a(f"s_cselect_b32 s{S_T0}, 1, 0")
        a(f"s_cselect_b32 s{S_T1}, 14, 0")
        a(f"s_sub_u32 s{S_NT}, s{S_GI}, s{S_T1}")
        a(f"s_lshl_b32 s{S_MT}, s{S_GX}, 1")
        a(f"s_add_u32 s{S_MT}, s{S_MT}, s{S_T0}")
        a(f"s_cmp_ge_u32 s{S_NT}, 10")
        a(f"s_cselect_b32 s{S_T0}, 10, 0")
        a(f"s_sub_u32 s{S_KK}, s{S_NT}, s{S_T0}")
        self.aux_A = self.ld_aux
        self.st1 = None
        a(f"s_cmp_lt_u32 s{S_W}, 4")
        a(f"s_cbranch_scc1 L_p4_compute")
        self.g1_setup_loader(3456)
        self.srd(SRD_A, S_WS, OFF_H, SZ_H)
        self.srd(SRD_W, S_W1, 0, 640*3456)
        for s_ in range(self.NSLOT - 1):
            self.g1_dma_stage(3456)
        T = self.V_T
        self.srd(SRD_T, S_B1, 0, 1728*2)
        a(f"s_sub_u32 s{S_T4}, s{S_W}, 4")
        a(f"s_lshl_b32 s{S_T4}, s{S_T4}, 5")
        a(f"v_and_b32 v{T+10}, 31, v1")
        a(f"v_add_u32 v{T+10}, s{S_T4}, v{T+10}")
        a(f"s_lshl_b32 s{S_T4}, s{S_NT}, 7")
        a(f"v_add_u32 v{T+11}, s{S_T4}, v{T+10}")
        a(f"v_lshlrev_b32 v{T+11}, 1, v{T+11}")
        a(f"buffer_load_ushort v{T+12}, v{T+11}, s[{SRD_T}:{SRD_T+3}], 0 offen")
        self.b1_hook = True
        self.g1_loader(3456, "p4")
        self.b1_hook = False
        a(f"s_branch L_p4_done")
        a.put("L_p4_compute")
        self.g1_compute("T", "p4")
        self.p4_epi()
        a.put("L_p4_done")

    def code_warm(self):
        a = self.a
        a(f"s_getpc_b64 s[{SRD_T}:{SRD_T+1}]")
        a.put("L_pc_here")
        a(f"s_sub_u32 s{SRD_T}, s{SRD_T}, L_pc_here-{NAME}")
        a(f"s_subb_u32 s{SRD_T+1}, s{SRD_T+1}, 0")
        a(f"s_mov_b32 s{SRD_T+2}, L_end-{NAME}")
        a(f"s_mov_b32 s{SRD_T+3}, 0x20000")
        a(f"v_lshlrev_b32 v254, 7, v0")
        for k in range(self.code_rounds):
            a(f"s_mov_b32 s{S_T0}, {32768*k}")
            a(f"buffer_load_dword v255, v254, s[{SRD_T}:{SRD_T+3}], s{S_T0} offen")

    def epoch_update(self):
        a = self.a
        a(f"s_or_b32 s{S_T0}, s2, s{S_W}")
        a(f"s_cmp_lg_u32 s{S_T0}, 0")
        a(f"s_cbranch_scc1 L_noepoch")
        a(f"v_mov_b32 v2, {OFF_EPOCH}")
        a(f"v_mov_b32 v3, s{S_TAG}")
        a(f"s_mov_b64 exec, 1")
        a(f"buffer_store_dword v3, v2, s[{SRD_F}:{SRD_F+3}], 0 offen sc1")
        a(f"s_mov_b64 exec, -1")
        a.put("L_noepoch")

    def epilogue_stamps(self):
        if not self.stamps: return
        a = self.a
        a(f"s_waitcnt lgkmcnt(0)")
        a(f"s_lshl_b32 s{S_T0}, s2, 3")
        a(f"s_add_u32 s{S_T0}, s{S_T0}, s{S_W}")
        a(f"s_lshl_b32 s{S_T0}, s{S_T0}, 7")
        a(f"s_add_u32 s{S_T0}, s{S_T0}, 0x80000")
        a(f"v_mov_b32 v3, s{S_T0}")
        a(f"s_mov_b64 exec, 1")
        a(f"s_memrealtime s[98:99]")
        a(f"s_waitcnt lgkmcnt(0)")
        a(f"s_sub_u32 s{S_T1}, s98, s96")
        a(f"v_mov_b32 v2, s{S_T1}")
        a(f"buffer_store_dword v2, v3, s[{SRD_F}:{SRD_F+3}], 0 offen offset:{4*31}")
        a(f"v_mov_b32 v2, s96")
        a(f"buffer_store_dword v2, v3, s[{SRD_F}:{SRD_F+3}], 0 offen offset:{4*30}")
        for i in range(self.nstamp):
            a(f"s_sub_u32 s{S_T1}, s{S_STAMP+i}, s{S_STAMP}")
            a(f"v_mov_b32 v2, s{S_T1}")
            a(f"buffer_store_dword v2, v3, s[{SRD_F}:{SRD_F+3}], 0 offen offset:{4*i}")
            a(f"s_nop 1")
        a(f"s_mov_b64 exec, -1")

    def build(self):
        a = self.a
        self.prologue()
        self.p1()
        self.p1_signal()
        if self.stop_after != "p1":
            self.p2()
            if self.stop_after != "p2":
                self.group_barrier(0, "gb23")
                self.stamp(9)
                self.g2(3)
                self.stamp(10)
                if self.stop_after != "p3":
                    self.group_barrier(1, "gb34")
                    self.stamp(11)
                    self.p4()
                    self.stamp(12)
                    if self.stop_after != "p4":
                        self.group_barrier(2, "gb45")
                        self.stamp(13)
                        self.g2(5)
            a(f"s_waitcnt vmcnt(0)")
            self.stamp(14)
        self.epoch_update()
        self.epilogue_stamps()
        a(f"s_waitcnt vmcnt(0)")
        a.put("L_end")
        a("s_endpgm")
        return a

import struct
def f32(x):
    return struct.unpack("<I", struct.pack("<f", x))[0]

HEADER = open("sequential_preLN__mha_block__dense_activation_squared_relu__prompt.s.ref").read().split("; Override launch geometry")[0]

def wrap(body, lds=163840, vgpr=256):
    s = HEADER
    s += f"; @launch grid=(256,1,1) block=(512,1,1) lds={lds}\n"
    s += '.amdgcn_target "amdgcn-amd-amdhsa--gfx950"\n.text\n'
    s += f".globl {NAME}\n.p2align 8\n.type {NAME},@function\n{NAME}:\n"
    s += body
    s += f"""
.section .rodata,"a"
.p2align 6
.amdhsa_kernel {NAME}
  .amdhsa_next_free_vgpr {vgpr}
  .amdhsa_next_free_sgpr 102
  .amdhsa_accum_offset {vgpr}
  .amdhsa_group_segment_fixed_size 0
  .amdhsa_kernarg_size 88
  .amdhsa_user_sgpr_count 2
  .amdhsa_user_sgpr_kernarg_segment_ptr 1
  .amdhsa_system_sgpr_workgroup_id_x 1
.end_amdhsa_kernel
"""
    return s

if __name__ == "__main__":
    import argparse
    ap = argparse.ArgumentParser()
    ap.add_argument("-o", default="out.s")
    ap.add_argument("--stop", default=None)
    ap.add_argument("--stamps", action="store_true")
    ap.add_argument("--opt", default="")
    args = ap.parse_args()
    g = Gen(stop_after=args.stop, stamps=args.stamps, opt=[o for o in args.opt.split(',') if o])
    a = g.build()
    rep = check(a.L)
    for r in rep: print(r)
    open(args.o, "w").write(wrap(a.text()))
    print("wrote", args.o, len(a.L), "lines;", len(rep), "hazards")
```

```python
import sys, math
sys.path.insert(0, "gen")
from asmlib import Asm, vr, sr, check

NAME = "sequential_preLN__mha_block__dense_activation_squared_relu__prompt_kernel"

OFF_EPOCH = 0
OFF_ALL   = 0x1000
OFF_GB    = 0x50000
OFF_MB1   = 65536
OFF_GR    = 0x68000
OFF_PST   = 0xC0000
OFF_Q     = 0x100000
OFF_KV    = 0x400000
OFF_O     = 0xA00000
OFF_H     = 0xD00000
OFF_R     = 0x1000000
OFF_WOP   = 0x1700000
OFF_W2P   = 0x1800000
SZ_Q = 32*64*1280
SZ_KV = 32*64*2560
SZ_O = 32*20*4096
SZ_H = 2048*1280
SZ_R = 32*54*4096
SZ_WOP = 20*40*1024
SZ_W2P = 54*40*1024

S_KA = 0; S_WG = 2; S_W = 3
S_X = 4; S_WQKV = 6; S_WO = 8; S_W1 = 12; S_B1 = 14; S_W2 = 16; S_B2 = 18; S_OUT = 20; S_DBG = 22; S_WS = 24
S_TAG = 26; S_GX = 27
SRD_A = 28; SRD_W = 32; SRD_O = 36; SRD_F = 40; SRD_T = 44
S_GI = 48
S_MT = 49; S_NT = 50; S_KK = 51; S_CNT = 52; S_SLOT = 53
S_SA = 54; S_SW = 55; S_T0 = 56; S_T1 = 57; S_T2 = 58; S_T3 = 59; S_T4 = 60; S_T5 = 61
S_M0A = 62; S_WM = 63; S_WN = 64; S_DELTA = 65; S_ONES = 66; S_ROT4 = 67; S_RLW = 68; S_RSLOT = 69; S_HEAD = 66; S_QB = 67
S_STAMP = 70
S_SAVE = 90
S_XCC = 10; S_FAST = 11
SRD_P = 96

LDS_STATS = 131072
ST_PX, ST_PQ, ST_PC, ST_AA, ST_BB, ST_CS, ST_B1 = 0, 4096, 8192, 9216, 9728, 10240, 10752
LDS_RL = LDS_STATS + 12288

class Gen:
    def __init__(self, stop_after=None, stamps=False, opt=()):
        self.opt = set(opt)
        self.a = Asm()
        self.stop_after = stop_after
        self.stamps = stamps
        self.nstamp = 0
        self.code_rounds = 2
        self.fast_aux = "nt" if "fnt" in self.opt else ("sc0" if "fsc0" in self.opt else ("sc0 nt" if "fsc0nt" in self.opt else ""))
        self.opt_g2 = "3" if "g2s3" in self.opt else ("5" if "g2s5" in self.opt else "")
        self.ld_aux = "" if "plainld" in self.opt else "sc1"

    def srd(self, dst, base_s, off, size):
        a = self.a
        if off:
            a(f"s_add_u32 s{dst}, s{base_s}, {hex(off)}")
            a(f"s_addc_u32 s{dst+1}, s{base_s+1}, 0")
        else:
            a(f"s_mov_b32 s{dst}, s{base_s}")
            a(f"s_mov_b32 s{dst+1}, s{base_s+1}")
        a(f"s_mov_b32 s{dst+2}, {hex(size)}")
        a(f"s_mov_b32 s{dst+3}, 0x20000")

    def csel(self, dst, x, y):
        self.a(f"s_mov_b32 s{dst}, {y}")
        self.a(f"s_cselect_b32 s{dst}, {x}, s{dst}")

    def withT(self, T, fn, *args, **kw):
        old = self.V_T; self.V_T = T
        r = fn(*args, **kw)
        self.V_T = old
        return r

    def srd_twin(self, base_s, off, size):
        a = self.a
        self.srd(SRD_O, base_s, off, size)
        a(f"s_mov_b32 s{SRD_P}, s{SRD_O}")
        a(f"s_mov_b32 s{SRD_P+1}, s{SRD_O+1}")
        a(f"s_mov_b32 s{SRD_P+3}, 0x20000")
        a(f"s_cmp_eq_u32 s{S_FAST}, 1")
        a(f"s_cselect_b32 s{SRD_P+2}, s{SRD_O+2}, 0")
        a(f"s_cselect_b32 s{SRD_O+2}, 0, s{SRD_O+2}")
    def store_twin(self, op, data, vaddr, soff, extra=""):
        a = self.a
        a(f"{op} {data}, v{vaddr}, s[{SRD_O}:{SRD_O+3}], {soff} offen {extra} sc1")
        a(f"{op} {data}, v{vaddr}, s[{SRD_P}:{SRD_P+3}], {soff} offen {extra} {self.fast_aux}")

    def set_exec(self, mask):
        mask = int(str(mask), 0) & 0xFFFFFFFFFFFFFFFF
        if mask == 0xFFFFFFFFFFFFFFFF: self.a("s_mov_b64 exec, -1")
        elif mask < 0x80000000: self.a(f"s_mov_b64 exec, {hex(mask)}")
        else:
            self.a(f"s_mov_b32 exec_lo, {hex(mask & 0xffffffff)}")
            self.a(f"s_mov_b32 exec_hi, {hex(mask >> 32)}")

    def stamp(self, i=None):
        if not self.stamps: return
        if i is None: return
        self.nstamp = max(self.nstamp, i + 1)
        self.a(f"s_memtime s[100:101]")
        self.a(f"s_waitcnt lgkmcnt(0)")
        self.a(f"s_mov_b32 s{S_STAMP+i}, s100")

    def prologue(self):
        a = self.a
        a(f"s_cmp_ge_u32 s2, 256")
        a(f"s_cbranch_scc1 L_end")
        self.stamp(0)
        if self.stamps: a(f"s_memrealtime s[88:89]")
        a(f"s_load_dwordx16 s[4:19], s[0:1], 0")
        a(f"s_load_dwordx4 s[20:23], s[0:1], 64")
        a(f"s_load_dwordx2 s[24:25], s[0:1], 80")
        a(f"v_lshrrev_b32 v2, 6, v0")
        a(f"v_and_b32 v1, 63, v0")
        a(f"v_readfirstlane_b32 s{S_W}, v2")
        a(f"s_and_b32 s{S_GX}, s2, 7")
        a(f"s_lshr_b32 s{S_GI}, s2, 3")
        a(f"s_mov_b32 s{S_ONES}, 0x3f803f80")
        a(f"s_lshr_b32 s{S_WM}, s{S_W}, 2")
        a(f"s_and_b32 s{S_WN}, s{S_W}, 3")

    def finish_tag(self):
        a = self.a
        a(f"s_waitcnt lgkmcnt(0)")
        a(f"s_mul_i32 s{S_TAG}, s{S_TAG}, 0x9E3779B1")
        a(f"s_add_u32 s{S_TAG}, s{S_TAG}, 0x7F4A7C15")

    V_OFFA = 2; V_OFFW = 3
    V_AA = 2
    V_AWA = 6; V_AWB = 7
    V_CSA = 8
    V_CSD = 12
    V_FR = 16
    V_ACC = 80
    V_T = 148
    V_LA = 4
    V_LS = 8
    V_LD = 20
    V_LU = 40
    NSLOT = 4

    def g1_setup_loader(self, WS):
        a = self.a
        T = self.V_T
        a(f"s_sub_u32 s{S_T4}, s{S_W}, 4")
        a(f"v_lshrrev_b32 v{T}, 4, v1")
        a(f"s_lshl_b32 s{S_T0}, s{S_T4}, 2")
        a(f"v_add_u32 v{T+1}, s{S_T0}, v{T}")
        a(f"v_and_b32 v{T+1}, 7, v{T+1}")
        a(f"v_and_b32 v{T+2}, 7, v1")
        a(f"v_xor_b32 v{T+1}, v{T+1}, v{T+2}")
        a(f"v_lshlrev_b32 v{T+1}, 4, v{T+1}")
        a(f"v_lshrrev_b32 v{T+2}, 3, v1")
        a(f"v_mul_u32_u24 v{T+2}, 1280, v{T+2}")
        a(f"v_add_u32 v{self.V_OFFA}, v{T+1}, v{T+2}")
        a(f"v_lshlrev_b32 v{T+1}, 2, v{T}")
        a(f"v_and_b32 v{T+2}, 15, v1")
        a(f"v_xor_b32 v{T+1}, v{T+1}, v{T+2}")
        a(f"v_lshlrev_b32 v{T+1}, 4, v{T+1}")
        a(f"v_mul_u32_u24 v{T+2}, {WS}, v{T}")
        a(f"v_add_u32 v{self.V_OFFW}, v{T+1}, v{T+2}")
        a(f"s_lshl_b32 s{S_T0}, s{S_MT}, 7")
        a(f"s_lshl_b32 s{S_T1}, s{S_T4}, 3")
        a(f"s_add_u32 s{S_T0}, s{S_T0}, s{S_T1}")
        a(f"s_mul_i32 s{S_SA}, s{S_T0}, 1280")
        a(f"s_mul_i32 s{S_T0}, s{S_T4}, {4*WS}")
        a(f"s_lshl_b32 s{S_T1}, s{S_NT}, 8")
        a(f"s_add_u32 s{S_SW}, s{S_T0}, s{S_T1}")
        a(f"s_lshl_b32 s{S_M0A}, s{S_T4}, 10")
        a(f"s_mov_b32 s{S_SLOT}, 0")

    def g1_dma1(self, WS, q):
        a = self.a
        if q == 0:
            a(f"s_lshl_b32 s{S_T2}, s{S_KK}, 7")
            a(f"s_add_u32 s{S_T2}, s{S_T2}, s{S_SA}")
            a(f"s_add_u32 m0, s{S_SLOT}, s{S_M0A}")
            a(f"s_mul_i32 s{S_T3}, s{S_KK}, {64*WS}")
        elif q == 4:
            a(f"s_add_u32 s{S_T2}, s{S_T3}, s{S_SW}")
            a(f"s_add_u32 m0, m0, 4096")
            a(f"s_nop 0")
        else:
            a(f"s_add_u32 m0, m0, 4096")
            a(f"s_add_u32 s{S_T2}, s{S_T2}, {32*1280 if q < 4 else 16*WS}")
        if q < 4:
            a(f"buffer_load_dwordx4 v{self.V_OFFA}, s[{SRD_A}:{SRD_A+3}], s{S_T2} offen {self.aux_A} lds")
        else:
            a(f"buffer_load_dwordx4 v{self.V_OFFW}, s[{SRD_W}:{SRD_W+3}], s{S_T2} offen lds")
        if q == 7:
            a(f"s_add_u32 s{S_KK}, s{S_KK}, 1")
            a(f"s_cmp_eq_u32 s{S_KK}, 10")
            a(f"s_cselect_b32 s{S_KK}, 0, s{S_KK}")
            a(f"s_add_u32 s{S_SLOT}, s{S_SLOT}, 32768")
            a(f"s_cmp_eq_u32 s{S_SLOT}, {self.NSLOT*32768}")
            a(f"s_cselect_b32 s{S_SLOT}, 0, s{S_SLOT}")

    def g1_dma_stage(self, WS):
        for q in range(8): self.g1_dma1(WS, q)

    def slot_next(self):
        a = self.a
        a(f"s_add_u32 s{S_RSLOT}, s{S_RSLOT}, 1")
        a(f"s_cmp_eq_u32 s{S_RSLOT}, {self.NSLOT}")
        a(f"s_cselect_b32 s{S_RSLOT}, 0, s{S_RSLOT}")
        a(f"s_cmp_eq_u32 s{S_RSLOT}, {self.NSLOT-1}")
        self.csel(S_DELTA, hex((-(self.NSLOT-1)*32768) & 0xffffffff), 32768)

    def g1_loader(self, WS, tag, mode):
        a = self.a
        T = self.V_T
        pre = self.NSLOT - 1
        nx = 1 if mode == "gran" else 4
        a(f"s_waitcnt vmcnt({8*(pre-1)})")
        if "p1s" in self.opt and tag == "p1": self.stamp(18)
        a(f"s_barrier")
        a(f"s_mov_b32 s{S_CNT}, 0")
        L1 = f"L_{tag}_lloop"
        a.put(L1)
        a(f"s_add_u32 s{S_CNT}, s{S_CNT}, 1")
        a(f"s_waitcnt vmcnt({8*(pre-2)})")
        a(f"s_barrier")
        for q in range(8):
            self.g1_dma1(WS, q)
        a(f"s_cmp_lt_u32 s{S_CNT}, {10-pre}")
        a(f"s_cbranch_scc1 {L1}")
        a(f"s_sub_u32 s{S_T4}, s{S_W}, 4")
        a(f"s_lshl_b32 s{S_T0}, s{S_T4}, 5")
        a(f"v_and_b32 v{T}, 31, v1")
        a(f"v_add_u32 v{T}, s{S_T0}, v{T}")
        a(f"s_lshl_b32 s{S_T1}, s{S_MT}, 7")
        a(f"v_add_u32 v{T+1}, s{S_T1}, v{T}")
        if mode == "gran":
            a(f"v_lshlrev_b32 v{T+1}, 4, v{T+1}")
            a(f"v_add_u32 v{T+1}, {hex(OFF_GR)}, v{T+1}")
            a(f"buffer_load_dwordx4 v[{T+4}:{T+7}], v{T+1}, s[{SRD_F}:{SRD_F+3}], 0 offen sc1")
        else:
            a(f"v_lshlrev_b32 v{T+1}, 7, v{T+1}")
            a(f"v_lshrrev_b32 v{T+2}, 5, v1")
            a(f"v_lshl_add_u32 v{T+1}, v{T+2}, 6, v{T+1}")
            a(f"v_add_u32 v{T+1}, {hex(OFF_PST)}, v{T+1}")
            for q in range(4):
                a(f"buffer_load_dwordx4 v[{T+4+4*q}:{T+7+4*q}], v{T+1}, s[{SRD_F}:{SRD_F+3}], 0 offen offset:{16*q} {self.ld_aux}")
        a(f"s_waitcnt vmcnt({8+nx})")
        a(f"s_barrier")
        a(f"s_waitcnt vmcnt({nx})")
        a(f"s_barrier")
        a(f"s_barrier")
        a(f"s_waitcnt vmcnt(0)")
        if mode == "gran":
            Lp = f"L_{tag}_gpoll"; Lo = f"L_{tag}_gok"
            a(f"s_mov_b32 s{S_T0}, 0")
            a.put(Lp)
            a(f"v_cmp_ne_u32 vcc, s{S_TAG}, v{T+6}")
            a(f"v_cmp_ne_u32 s[{S_SAVE}:{S_SAVE+1}], s{S_TAG}, v{T+7}")
            a(f"s_nop 1")
            a(f"s_or_b64 vcc, vcc, s[{S_SAVE}:{S_SAVE+1}]")
            a(f"s_cbranch_vccz {Lo}")
            a(f"s_add_u32 s{S_T0}, s{S_T0}, 1")
            a(f"s_cmp_ge_u32 s{S_T0}, 0x40000")
            a(f"s_cbranch_scc1 {Lo}")
            a(f"buffer_load_dwordx4 v[{T+4}:{T+7}], v{T+1}, s[{SRD_F}:{SRD_F+3}], 0 offen sc1")
            a(f"s_waitcnt vmcnt(0)")
            a(f"s_branch {Lp}")
            a.put(Lo)
            A_, B_ = T+4, T+5
        else:
            for q in range(1, 4):
                for i in range(4):
                    a(f"v_add_f32 v{T+4+i}, v{T+4+i}, v{T+4+4*q+i}")
            a(f"v_add_f32 v{T+4}, v{T+4}, v{T+6}")
            a(f"v_add_f32 v{T+5}, v{T+5}, v{T+7}")
            a(f"v_mov_b32 v{T+6}, v{T+4}")
            a(f"v_mov_b32 v{T+7}, v{T+5}")
            a(f"s_nop 1")
            a(f"v_permlane32_swap_b32 v{T+6}, v{T+4}")
            a(f"v_permlane32_swap_b32 v{T+7}, v{T+5}")
            a(f"s_nop 1")
            a(f"v_add_f32 v{T+4}, v{T+4}, v{T+6}")
            a(f"v_add_f32 v{T+5}, v{T+5}, v{T+7}")
            self.ab_from_sums(T+4, T+5, T+8)
            A_, B_ = T+9, T+8
        a(f"v_lshlrev_b32 v{T}, 2, v{T}")
        a(f"v_add_u32 v{T}, {LDS_STATS}, v{T}")
        a(f"ds_write_b32 v{T}, v{A_} offset:{ST_AA}")
        a(f"ds_write_b32 v{T}, v{B_} offset:{ST_BB}")
        if getattr(self, "b1_hook", False):
            a(f"v_lshlrev_b32 v{T+22}, 16, v{T+22}")
            a(f"ds_write_b32 v{T}, v{T+22} offset:{ST_B1}")
        a(f"s_waitcnt lgkmcnt(0)")
        a(f"s_barrier")

    def ab_from_sums(self, sx, sq, o):
        a = self.a
        a(f"v_mul_f32 v{o}, {hex(f32(1.0/640))}, v{sx}")
        a(f"v_mul_f32 v{o+1}, {hex(f32(1.0/640))}, v{sq}")
        a(f"v_fma_f32 v{o+1}, -v{o}, v{o}, v{o+1}")
        a(f"v_max_f32 v{o+1}, 0, v{o+1}")
        a(f"v_add_f32 v{o+1}, {hex(f32(1e-5))}, v{o+1}")
        a(f"v_rsq_f32 v{o+1}, v{o+1}")
        a(f"s_nop 0")
        a(f"v_mul_f32 v{o}, v{o}, v{o+1}")
        a(f"v_sub_f32 v{o}, 0, v{o}")

    def xstats_publish(self):
        a = self.a
        T = self.V_T
        self.srd(SRD_T, S_X, 0, 2048*1280)
        a(f"s_lshl_b32 s{S_T0}, s2, 3")
        a(f"s_lshl_b32 s{S_T1}, s{S_W}, 1")
        a(f"s_add_u32 s{S_T0}, s{S_T0}, s{S_T1}")
        a(f"v_lshrrev_b32 v{T}, 5, v1")
        a(f"v_add_u32 v{T}, s{S_T0}, v{T}")
        a(f"v_mul_u32_u24 v{T+1}, 1280, v{T}")
        a(f"v_and_b32 v{T+2}, 31, v1")
        a(f"v_lshl_add_u32 v{T+1}, v{T+2}, 3, v{T+1}")
        D = T + 4
        for j in range(5):
            a(f"buffer_load_dwordx2 v[{D+2*j}:{D+2*j+1}], v{T+1}, s[{SRD_T}:{SRD_T+3}], 0 offen offset:{256*j}")
        return D

    def xstats_finish(self, D):
        a = self.a
        T = self.V_T
        S = T + 16
        a(f"v_mov_b32 v{S}, 0"); a(f"v_mov_b32 v{S+1}, 0")
        a(f"s_waitcnt vmcnt(0)")
        for r in range(10):
            a(f"v_lshlrev_b32 v{S+2}, 16, v{D+r}")
            a(f"v_and_b32 v{S+3}, 0xffff0000, v{D+r}")
            a(f"v_add_f32 v{S}, v{S}, v{S+2}")
            a(f"v_fmac_f32 v{S+1}, v{S+2}, v{S+2}")
            a(f"v_add_f32 v{S}, v{S}, v{S+3}")
            a(f"v_fmac_f32 v{S+1}, v{S+3}, v{S+3}")
        for ctl in ("row_shr:1", "row_shr:2", "row_shr:4", "row_shr:8"):
            a(f"s_nop 1")
            a(f"v_add_f32_dpp v{S}, v{S}, v{S} {ctl} row_mask:0xf bank_mask:0xf bound_ctrl:0")
            a(f"v_add_f32_dpp v{S+1}, v{S+1}, v{S+1} {ctl} row_mask:0xf bank_mask:0xf bound_ctrl:0")
        a(f"s_nop 1")
        a(f"v_add_f32_dpp v{S}, v{S}, v{S} row_bcast:15 row_mask:0xa bank_mask:0xf")
        a(f"v_add_f32_dpp v{S+1}, v{S+1}, v{S+1} row_bcast:15 row_mask:0xa bank_mask:0xf")
        a(f"s_nop 1")
        self.ab_from_sums(S, S+1, S+5)
        a(f"v_mov_b32 v{S+8}, v{S+6}")
        a(f"v_mov_b32 v{S+9}, v{S+5}")
        self.tag_ready()
        a(f"v_mov_b32 v{S+10}, s{S_TAG}")
        a(f"v_mov_b32 v{S+11}, s{S_TAG}")
        a(f"v_lshlrev_b32 v{T}, 4, v{T}")
        a(f"v_add_u32 v{T}, {hex(OFF_GR)}, v{T}")
        a(f"s_mov_b32 exec_lo, 0x80000000")
        a(f"s_mov_b32 exec_hi, 0x80000000")
        a(f"buffer_store_dwordx4 v[{S+8}:{S+11}], v{T}, s[{SRD_F}:{SRD_F+3}], 0 offen sc1")
        a(f"s_mov_b64 exec, -1")

    def tag_ready(self):
        a = self.a
        a(f"s_waitcnt lgkmcnt(0)")
        a(f"s_getreg_b32 s{S_XCC}, hwreg(HW_REG_XCC_ID, 0, 4)")
        a(f"s_mov_b32 s{S_FAST}, 0")
        a(f"s_mul_i32 s{S_TAG}, s{S_TAG}, 0x9E3779B1")
        a(f"s_add_u32 s{S_TAG}, s{S_TAG}, 0x7F4A7C15")

    def g1_setup_compute(self):
        a = self.a
        T = self.V_FR
        a(f"s_lshr_b32 s{S_WM}, s{S_W}, 1")
        a(f"s_and_b32 s{S_WN}, s{S_W}, 1")
        a(f"v_and_b32 v{T}, 31, v1")
        a(f"s_lshl_b32 s{S_T0}, s{S_WM}, 6")
        a(f"v_add_u32 v{T+1}, s{S_T0}, v{T}")
        a(f"v_lshlrev_b32 v{T+1}, 7, v{T+1}")
        a(f"v_bfe_u32 v{T+2}, v{T}, 1, 3")
        a(f"v_lshrrev_b32 v{T+3}, 5, v1")
        a(f"v_xor_b32 v{T+2}, v{T+2}, v{T+3}")
        for j in range(4):
            a(f"v_xor_b32 v{self.V_AA+j}, {2*j}, v{T+2}")
            a(f"v_lshlrev_b32 v{self.V_AA+j}, 4, v{self.V_AA+j}")
            a(f"v_add_u32 v{self.V_AA+j}, v{self.V_AA+j}, v{T+1}")
        a(f"v_and_b32 v{T+4}, 15, v1")
        a(f"v_lshrrev_b32 v{T+5}, 2, v{T+4}")
        a(f"v_lshlrev_b32 v{T+6}, 3, v{T+3}")
        a(f"v_add_u32 v{T+6}, v{T+6}, v{T+5}")
        a(f"v_lshlrev_b32 v{T+6}, 8, v{T+6}")
        a(f"v_bfe_u32 v{T+7}, v1, 4, 1")
        a(f"v_lshlrev_b32 v{T+7}, 1, v{T+7}")
        a(f"v_bfe_u32 v{T+8}, v1, 1, 1")
        a(f"v_add_u32 v{T+7}, v{T+7}, v{T+8}")
        a(f"s_lshl_b32 s{S_T0}, s{S_WN}, 3")
        a(f"s_lshl_b32 s{S_T1}, s{S_WM}, 2")
        a(f"s_add_u32 s{S_T0}, s{S_T0}, s{S_T1}")
        a(f"v_add_u32 v{T+7}, s{S_T0}, v{T+7}")
        a(f"v_lshlrev_b32 v{T+5}, 2, v{T+5}")
        a(f"v_xor_b32 v{T+7}, v{T+7}, v{T+5}")
        a(f"v_lshlrev_b32 v{T+7}, 4, v{T+7}")
        a(f"v_and_b32 v{T+8}, 1, v1")
        a(f"v_lshlrev_b32 v{T+8}, 3, v{T+8}")
        a(f"v_add_u32 v{T+6}, v{T+6}, v{T+7}")
        a(f"v_add_u32 v{T+6}, v{T+6}, v{T+8}")
        a(f"v_add_u32 v{self.V_AWA}, 16384, v{T+6}")
        a(f"v_xor_b32 v{self.V_AWB}, 64, v{self.V_AWA}")
        a(f"v_and_b32 v{T}, 15, v1")
        a(f"v_bfe_u32 v{T+1}, v1, 4, 1")
        a(f"v_cmp_eq_u32 vcc, v{T}, v{T+1}")
        a(f"v_mov_b32 v{T+2}, 0x3f803f80")
        a(f"s_nop 1")
        a(f"v_cndmask_b32 v{self.V_CSA}, 0, v{T+2}, vcc")
        for r in range(1, 4):
            a(f"v_mov_b32 v{self.V_CSA+r}, v{self.V_CSA}")
        for r in range(4):
            a(f"v_mov_b32 v{self.V_CSD+r}, 0")
        for r in range(64):
            a(f"v_mov_b32 v{self.V_ACC+r}, 0")

    def g1_read1(self, j, q):
        if "noreads" in self.opt: return
        a = self.a
        F = self.V_FR + 16*j
        if q == 0: a(f"ds_read_b128 v[{F}:{F+3}], v{self.V_AA+j}")
        elif q == 1: a(f"ds_read_b128 v[{F+4}:{F+7}], v{self.V_AA+j} offset:4096")
        else:
            ad = self.V_AWA if q == 2 else self.V_AWB
            R = F + 8 + 4*(q-2)
            a(f"ds_read_b64_tr_b16 v[{R}:{R+1}], v{ad} offset:{4096*j}")
            a(f"ds_read_b64_tr_b16 v[{R+2}:{R+3}], v{ad} offset:{4096*j+1024}")

    def g1_mfma1(self, j, orient, tt, q):
        if "nomfma" in self.opt: return
        a = self.a
        F = self.V_FR + 16*j
        X = f"v[{F+4*tt}:{F+4*tt+3}]"; W = f"v[{F+8+4*q}:{F+11+4*q}]"
        A = self.V_ACC + 16*(2*tt+q)
        D = f"v[{A}:{A+15}]"
        if orient == "T": a(f"v_mfma_f32_32x32x16_bf16 {D}, {W}, {X}, {D}")
        else:             a(f"v_mfma_f32_32x32x16_bf16 {D}, {X}, {W}, {D}")

    def g1_colsum(self, j):
        if "nostats" in self.opt: return
        F = self.V_FR + 16*j; D = self.V_CSD
        self.a(f"v_mfma_f32_16x16x32_bf16 v[{D}:{D+3}], v[{self.V_CSA}:{self.V_CSA+3}], v[{F+8}:{F+11}], v[{D}:{D+3}]")

    def g1_adv(self):
        a = self.a
        for r in list(range(self.V_AA, self.V_AA+4)) + [self.V_AWA, self.V_AWB]:
            a(f"v_add_u32 v{r}, s{S_DELTA}, v{r}")

    def g1_cstep(self, j, orient, with_reads):
        a = self.a
        self.g1_mfma1(j, orient, 0, 0)
        self.g1_colsum(j)
        self.g1_mfma1(j, orient, 1, 0)
        if with_reads: self.g1_read1(j, 2)
        self.g1_mfma1(j, orient, 0, 1)
        if with_reads: self.g1_read1(j, 0)
        self.g1_mfma1(j, orient, 1, 1)
        if with_reads:
            self.g1_read1(j, 1); self.g1_read1(j, 3)

    def g1_compute(self, orient, tag):
        a = self.a
        self.g1_setup_compute()
        a(f"s_barrier")
        self.stamp(self.st1)
        for j in range(4):
            for q in range(4): self.g1_read1(j, q)
        a(f"s_mov_b32 s{S_DELTA}, 32768")
        self.g1_adv()
        a(f"s_mov_b32 s{S_CNT}, 0")
        a(f"s_mov_b32 s{S_RSLOT}, 0")
        L1 = f"L_{tag}_cloop"
        a.put(L1)
        a(f"s_waitcnt lgkmcnt(12)")
        self.g1_cstep(0, orient, False)
        a(f"s_add_u32 s{S_CNT}, s{S_CNT}, 1")
        self.slot_next()
        a(f"s_barrier")
        for q in (2, 0, 1, 3): self.g1_read1(0, q)
        self.g1_cstep(1, orient, True)
        a(f"s_waitcnt lgkmcnt(12)")
        self.g1_cstep(2, orient, True)
        self.g1_cstep(3, orient, True)
        self.g1_adv()
        a(f"s_cmp_lt_u32 s{S_CNT}, 10")
        a(f"s_cbranch_scc1 {L1}")
        a(f"s_waitcnt lgkmcnt(0)")
        T = self.V_FR
        a(f"s_lshl_b32 s{S_T0}, s{S_WN}, 8")
        a(f"s_lshl_b32 s{S_T1}, s{S_WM}, 7")
        a(f"s_add_u32 s{S_T0}, s{S_T0}, s{S_T1}")
        a(f"s_add_u32 s{S_T0}, s{S_T0}, {LDS_STATS+ST_CS}")
        a(f"v_lshlrev_b32 v{T}, 2, v1")
        a(f"v_add_u32 v{T}, s{S_T0}, v{T}")
        a(f"s_nop 4")
        a(f"s_mov_b64 exec, 0xffff")
        a(f"ds_write_b32 v{T}, v{self.V_CSD}")
        a(f"ds_write_b32 v{T}, v{self.V_CSD+1} offset:64")
        a(f"s_mov_b64 exec, -1")
        a(f"s_waitcnt lgkmcnt(0)")
        a(f"s_barrier")

    def magic_div5(self, dst, src):
        self.a(f"v_mul_u32_u24 v{dst}, 52429, v{src}")
        self.a(f"v_lshrrev_b32 v{dst}, 18, v{dst}")
    def magic_div20(self, dst, src):
        self.a(f"v_mul_u32_u24 v{dst}, 52429, v{src}")
        self.a(f"v_lshrrev_b32 v{dst}, 20, v{dst}")

    def epi_T_common(self):
        a = self.a
        T = self.V_T; CSR = self.V_FR
        a(f"v_and_b32 v{T}, 31, v1")
        a(f"s_lshl_b32 s{S_T0}, s{S_WM}, 6")
        a(f"v_add_u32 v{T+1}, s{S_T0}, v{T}")
        a(f"v_lshlrev_b32 v{T+1}, 2, v{T+1}")
        a(f"v_add_u32 v{T+1}, {LDS_STATS}, v{T+1}")
        a(f"ds_read_b32 v{T+2}, v{T+1} offset:{ST_AA}")
        a(f"ds_read_b32 v{T+3}, v{T+1} offset:{ST_BB}")
        a(f"ds_read_b32 v{T+4}, v{T+1} offset:{ST_AA+128}")
        a(f"ds_read_b32 v{T+5}, v{T+1} offset:{ST_BB+128}")
        a(f"v_lshrrev_b32 v{T+6}, 5, v1")
        a(f"s_lshl_b32 s{S_T0}, s{S_WN}, 8")
        a(f"s_lshl_b32 s{S_T1}, s{S_WM}, 7")
        a(f"s_add_u32 s{S_T0}, s{S_T0}, s{S_T1}")
        a(f"s_add_u32 s{S_T0}, s{S_T0}, {LDS_STATS+ST_CS}")
        a(f"v_lshlrev_b32 v{T+7}, 4, v{T+6}")
        a(f"v_add_u32 v{T+7}, s{S_T0}, v{T+7}")
        a(f"v_xor_b32 v{T+1}, 128, v{T+7}")
        for g in range(4):
            a(f"ds_read_b128 v[{CSR+4*g}:{CSR+4*g+3}], v{T+7} offset:{32*g}")
        for g in range(4):
            a(f"ds_read_b128 v[{CSR+16+4*g}:{CSR+16+4*g+3}], v{T+1} offset:{32*g}")

    def p1_epi_T(self):
        a = self.a
        T = self.V_T; A = self.V_ACC; CSR = self.V_FR
        self.epi_T_common()
        a(f"s_cmp_lt_u32 s{S_NT}, 5")
        a(f"s_cselect_b32 s{S_T0}, {hex(f32(math.log2(math.e)/math.sqrt(20.0)))}, 1.0")
        self.csel(S_T1, 81920, 163840)
        self.csel(S_T2, 1280, 2560)
        a(f"s_cselect_b32 s{S_T3}, 0, 5")
        self.csel(S_T4, hex(OFF_Q), hex(OFF_KV))
        self.csel(S_T5, hex(SZ_Q), hex(SZ_KV))
        a(f"s_add_u32 s{SRD_O}, s{S_WS}, s{S_T4}")
        a(f"s_addc_u32 s{SRD_O+1}, s{S_WS+1}, 0")
        a(f"s_mov_b32 s{SRD_O+2}, s{S_T5}")
        a(f"s_mov_b32 s{SRD_O+3}, 0x20000")
        a(f"s_sub_u32 s{S_T3}, s{S_NT}, s{S_T3}")
        a(f"s_lshl_b32 s{S_T3}, s{S_T3}, 5")
        a(f"s_lshl_b32 s{S_T4}, s{S_WN}, 4")
        a(f"s_add_u32 s{S_T3}, s{S_T3}, s{S_T4}")
        a(f"s_lshl_b32 s{S_T4}, s{S_WM}, 3")
        AD = T + 8
        for q in range(2):
            for g in range(4):
                if q == 0:
                    a(f"s_add_u32 s{S_T5}, s{S_T3}, s{S_T4}")
                else:
                    a(f"s_xor_b32 s{S_T5}, s{S_T4}, 8")
                    a(f"s_add_u32 s{S_T5}, s{S_T5}, s{S_T3}")
                a(f"s_add_u32 s{S_T5}, s{S_T5}, {2*g}")
                a(f"v_add_u32 v{T+16}, s{S_T5}, v{T+6}")
                self.magic_div5(T+17, T+16)
                a(f"v_mul_u32_u24 v{T+18}, 5, v{T+17}")
                a(f"v_sub_u32 v{T+18}, v{T+16}, v{T+18}")
                a(f"v_mul_lo_u32 v{T+17}, v{T+17}, s{S_T1}")
                a(f"v_lshlrev_b32 v{T+18}, 8, v{T+18}")
                a(f"v_add_u32 v{T+17}, v{T+17}, v{T+18}")
                a(f"v_lshl_add_u32 v{AD+4*q+g}, v{T}, 3, v{T+17}")
        a(f"s_lshl_b32 s{S_T4}, s{S_MT}, 2")
        a(f"s_lshl_b32 s{S_T5}, s{S_WM}, 1")
        a(f"s_add_u32 s{S_T4}, s{S_T4}, s{S_T5}")
        a(f"s_mul_i32 s{S_T4}, s{S_T4}, s{S_T2}")
        a(f"s_add_u32 s{S_T5}, s{S_T4}, s{S_T2}")
        a(f"s_waitcnt lgkmcnt(0)")
        for tt in range(2):
            a(f"v_mul_f32 v{T+2+2*tt}, s{S_T0}, v{T+2+2*tt}")
            a(f"v_mul_f32 v{T+3+2*tt}, s{S_T0}, v{T+3+2*tt}")
        for tt in range(2):
            for q in range(2):
                for g in range(4):
                    for i in range(4):
                        r = A + 16*(2*tt+q) + 4*g + i
                        a(f"v_mul_f32 v{r}, v{T+2+2*tt}, v{r}")
                        a(f"v_fmac_f32 v{r}, v{T+3+2*tt}, v{CSR+16*q+4*g+i}")
                    r = A + 16*(2*tt+q) + 4*g
                    a(f"v_cvt_pk_bf16_f32 v{r}, v{r}, v{r+1}")
                    a(f"v_cvt_pk_bf16_f32 v{r+1}, v{r+2}, v{r+3}")
                    a(f"buffer_store_dwordx2 v[{r}:{r+1}], v{AD+4*q+g}, s[{SRD_O}:{SRD_O+3}], s{S_T4+tt} offen sc1")

    def p1_epi_N(self):
        a = self.a
        T = self.V_T; A = self.V_ACC
        AB = self.V_FR; BB = self.V_FR + 16
        a(f"v_and_b32 v{T}, 31, v1")
        a(f"v_lshrrev_b32 v{T+6}, 5, v1")
        a(f"s_lshl_b32 s{S_T0}, s{S_WM}, 8")
        a(f"v_lshlrev_b32 v{T+4}, 4, v{T+6}")
        a(f"v_add_u32 v{T+4}, s{S_T0}, v{T+4}")
        a(f"v_add_u32 v{T+4}, {LDS_STATS}, v{T+4}")
        a(f"s_mov_b32 s{S_T2}, 163840")
        for q in range(2):
            a(f"s_xor_b32 s{S_T0}, s{S_WM}, {q}")
            a(f"s_lshl_b32 s{S_T0}, s{S_T0}, 5")
            a(f"s_lshl_b32 s{S_T1}, s{S_WN}, 6")
            a(f"s_add_u32 s{S_T0}, s{S_T0}, s{S_T1}")
            a(f"v_add_u32 v{T+1}, s{S_T0}, v{T}")
            a(f"v_lshlrev_b32 v{T+2}, 2, v{T+1}")
            a(f"v_add_u32 v{T+2}, {LDS_STATS+ST_CS}, v{T+2}")
            a(f"ds_read_b32 v{T+10+q}, v{T+2}")
            a(f"s_sub_u32 s{S_T1}, s{S_NT}, 10")
            a(f"s_lshl_b32 s{S_T1}, s{S_T1}, 7")
            a(f"v_add_u32 v{T+7}, s{S_T1}, v{T+1}")
            self.magic_div20(T+8, T+7)
            a(f"v_mul_u32_u24 v{T+9}, 20, v{T+8}")
            a(f"v_sub_u32 v{T+9}, v{T+7}, v{T+9}")
            a(f"v_mul_lo_u32 v{T+8}, v{T+8}, s{S_T2}")
            a(f"v_lshlrev_b32 v{T+9}, 4, v{T+9}")
            a(f"v_add_u32 v{T+8}, v{T+8}, v{T+9}")
            a(f"v_mul_u32_u24 v{T+9}, 320, v{T+6}")
            a(f"v_add_u32 v{T+8}, v{T+8}, v{T+9}")
            a(f"v_add_u32 v{T+12+q}, 1280, v{T+8}")
        self.srd(SRD_O, S_WS, OFF_KV, SZ_KV)
        a(f"s_lshl_b32 s{S_T4}, s{S_MT}, 2")
        a(f"s_lshl_b32 s{S_T5}, s{S_WM}, 1")
        a(f"s_add_u32 s{S_T4}, s{S_T4}, s{S_T5}")
        a(f"s_mul_i32 s{S_T4}, s{S_T4}, 2560")
        a(f"s_add_u32 s{S_T5}, s{S_T4}, 2560")
        for tt in range(2):
            for g in range(4):
                a(f"ds_read_b128 v[{AB+4*g}:{AB+4*g+3}], v{T+4} offset:{ST_AA + 128*tt + 32*g}")
                a(f"ds_read_b128 v[{BB+4*g}:{BB+4*g+3}], v{T+4} offset:{ST_BB + 128*tt + 32*g}")
            a(f"s_waitcnt lgkmcnt(0)")
            for q in range(2):
                for r in range(16):
                    R = A + 16*(2*tt+q) + r
                    a(f"v_mul_f32 v{R}, v{AB+r}, v{R}")
                    a(f"v_fmac_f32 v{R}, v{BB+r}, v{T+10+q}")
                for st in range(2):
                    R = A + 16*(2*tt+q) + 8*st
                    for z in range(4):
                        a(f"v_cvt_pk_bf16_f32 v{R+z}, v{R+2*z}, v{R+2*z+1}")
                    a(f"buffer_store_dwordx4 v[{R}:{R+3}], v{T+12+q}, s[{SRD_O}:{SRD_O+3}], s{S_T4+tt} offen offset:{640*st} sc1")

    def relayout_unit(self):
        pass

    def relayout_load(self):
        a = self.a
        T = self.V_T
        Lskip = "L_rl_skip1"
        a(f"s_mul_i32 s{S_T0}, s2, 3")
        a(f"s_sub_u32 s{S_T5}, s{S_W}, 4")
        a(f"s_add_u32 s{S_T0}, s{S_T0}, s{S_T5}")
        a(f"s_cmp_ge_u32 s{S_T5}, 3")
        a(f"s_cbranch_scc1 {Lskip}")
        a(f"s_cmp_ge_u32 s{S_T0}, 740")
        a(f"s_cbranch_scc1 {Lskip}")
        a(f"s_cmp_lt_u32 s{S_T0}, 540")
        a(f"s_cselect_b32 s{S_T1}, 0, 540")
        a(f"s_cselect_b32 s{SRD_T}, s{S_W2}, s{S_WO}")
        a(f"s_cselect_b32 s{SRD_T+1}, s{S_W2+1}, s{S_WO+1}")
        self.csel(SRD_T+2, 1728*1280, 640*1280)
        a(f"s_mov_b32 s{SRD_T+3}, 0x20000")
        a(f"s_sub_u32 s{S_T1}, s{S_T0}, s{S_T1}")
        a(f"s_mul_hi_u32 s{S_T2}, s{S_T1}, {hex((2**32+9)//10)}")
        a(f"s_mul_i32 s{S_T3}, s{S_T2}, 10")
        a(f"s_sub_u32 s{S_T3}, s{S_T1}, s{S_T3}")
        a(f"v_lshrrev_b32 v{T}, 3, v1")
        a(f"v_mul_u32_u24 v{T}, 1280, v{T}")
        a(f"v_and_b32 v{T+1}, 7, v1")
        a(f"v_lshl_add_u32 v{T}, v{T+1}, 4, v{T}")
        a(f"s_mul_i32 s{S_T2}, s{S_T2}, {32*1280}")
        a(f"s_lshl_b32 s{S_T3}, s{S_T3}, 7")
        a(f"s_add_u32 s{S_T2}, s{S_T2}, s{S_T3}")
        a(f"s_lshl_b32 s{S_T3}, s{S_T5}, 12")
        a(f"s_add_u32 m0, s{S_T3}, {LDS_RL}")
        for jj in range(4):
            a(f"s_nop 0")
            a(f"buffer_load_dwordx4 v{T}, s[{SRD_T}:{SRD_T+3}], s{S_T2} offen lds")
            if jj < 3:
                a(f"s_add_u32 m0, m0, 1024")
                a(f"s_add_u32 s{S_T2}, s{S_T2}, {8*1280}")
        a.put(Lskip)

    def relayout_store(self):
        a = self.a
        T = self.V_T
        Lskip = "L_rl_skip2"
        a(f"s_mul_i32 s{S_T0}, s2, 3")
        a(f"s_sub_u32 s{S_RLW}, s{S_W}, 4")
        a(f"s_add_u32 s{S_T0}, s{S_T0}, s{S_RLW}")
        a(f"s_cmp_ge_u32 s{S_RLW}, 3")
        a(f"s_cbranch_scc1 {Lskip}")
        a(f"s_cmp_ge_u32 s{S_T0}, 740")
        a(f"s_cbranch_scc1 {Lskip}")
        a(f"s_cmp_lt_u32 s{S_T0}, 540")
        a(f"s_cselect_b32 s{S_T1}, 0, 540")
        self.csel(S_T4, hex(OFF_W2P), hex(OFF_WOP))
        self.csel(S_T5, hex(SZ_W2P), hex(SZ_WOP))
        a(f"s_sub_u32 s{S_T1}, s{S_T0}, s{S_T1}")
        a(f"s_add_u32 s{SRD_T}, s{S_WS}, s{S_T4}")
        a(f"s_addc_u32 s{SRD_T+1}, s{S_WS+1}, 0")
        a(f"s_mov_b32 s{SRD_T+2}, s{S_T5}")
        a(f"s_mov_b32 s{SRD_T+3}, 0x20000")
        a(f"s_mul_hi_u32 s{S_T2}, s{S_T1}, {hex((2**32+9)//10)}")
        a(f"s_mul_i32 s{S_T3}, s{S_T2}, 10")
        a(f"s_sub_u32 s{S_T3}, s{S_T1}, s{S_T3}")
        a(f"s_mul_i32 s{S_T2}, s{S_T2}, 40")
        a(f"s_lshl_b32 s{S_T3}, s{S_T3}, 2")
        a(f"s_add_u32 s{S_T2}, s{S_T2}, s{S_T3}")
        a(f"s_lshl_b32 s{S_T2}, s{S_T2}, 10")
        a(f"v_lshrrev_b32 v{T}, 4, v1")
        a(f"v_lshlrev_b32 v{T}, 3, v{T}")
        a(f"v_bfe_u32 v{T+1}, v1, 2, 2")
        a(f"v_add_u32 v{T}, v{T}, v{T+1}")
        a(f"v_lshlrev_b32 v{T}, 7, v{T}")
        a(f"v_and_b32 v{T+1}, 3, v1")
        a(f"v_lshl_add_u32 v{T}, v{T+1}, 3, v{T}")
        a(f"s_lshl_b32 s{S_T3}, s{S_RLW}, 12")
        a(f"s_add_u32 s{S_T3}, s{S_T3}, {LDS_RL}")
        a(f"v_add_u32 v{T}, s{S_T3}, v{T}")
        a(f"v_lshlrev_b32 v{T+1}, 4, v1")
        O = T + 4
        for tq in range(4):
            a(f"ds_read_b64_tr_b16 v[{O+4*tq}:{O+4*tq+1}], v{T} offset:{32*tq}")
            a(f"ds_read_b64_tr_b16 v[{O+4*tq+2}:{O+4*tq+3}], v{T} offset:{32*tq+512}")
        a(f"s_waitcnt lgkmcnt(0)")
        for tq in range(4):
            a(f"buffer_store_dwordx4 v[{O+4*tq}:{O+4*tq+3}], v{T+1}, s[{SRD_T}:{SRD_T+3}], s{S_T2} offen offset:{1024*tq} sc1")
        a.put(Lskip)

    def p1(self):
        a = self.a
        a(f"s_and_b32 s{S_T0}, s{S_GX}, 3")
        a(f"s_lshl_b32 s{S_T0}, s{S_T0}, 2")
        a(f"s_and_b32 s{S_T1}, s{S_GI}, 3")
        a(f"s_add_u32 s{S_MT}, s{S_T0}, s{S_T1}")
        a(f"s_lshr_b32 s{S_T0}, s{S_GX}, 2")
        a(f"s_lshl_b32 s{S_T0}, s{S_T0}, 3")
        a(f"s_lshr_b32 s{S_T2}, s{S_GI}, 2")
        a(f"s_add_u32 s{S_NT}, s{S_T0}, s{S_T2}")
        a(f"s_mul_i32 s{S_T1}, s{S_T1}, 3")
        a(f"s_add_u32 s{S_KK}, s{S_T1}, s{S_T2}")
        a(f"s_cmp_ge_u32 s{S_KK}, 10")
        a(f"s_cselect_b32 s{S_T0}, 10, 0")
        a(f"s_sub_u32 s{S_KK}, s{S_KK}, s{S_T0}")
        self.aux_A = ""
        self.st1 = 1
        a(f"s_cmp_lt_u32 s{S_W}, 4")
        a(f"s_cbranch_scc1 L_p1_compute")
        self.g1_setup_loader(3840)
        a(f"s_waitcnt lgkmcnt(0)")
        if "p1s" in self.opt: self.stamp(15)
        self.srd(SRD_A, S_X, 0, 2048*1280)
        self.srd(SRD_W, S_WQKV, 0, 640*3840)
        a(f"s_cmp_ge_u32 s{S_NT}, 15")
        a(f"s_cbranch_scc1 L_p1_null0")
        self.g1_dma_stage(3840)
        a.put("L_p1_null0")
        if "p1s" in self.opt: self.stamp(16)
        self.relayout_load()
        a(f"s_load_dword s{S_TAG}, s[{S_WS}:{S_WS+1}], {OFF_EPOCH}")
        self.srd(SRD_F, S_WS, 0, 0x100000)
        a(f"s_cmp_ge_u32 s{S_NT}, 15")
        a(f"s_cbranch_scc1 L_p1_lnull")
        for s_ in range(self.NSLOT - 2):
            self.g1_dma_stage(3840)
        self.tag_ready()
        if "p1s" in self.opt: self.stamp(17)
        self.g1_loader(3840, "p1", "gran")
        a(f"s_branch L_p1_lj")
        a.put("L_p1_lnull")
        self.tag_ready()
        a.put("L_p1_lj")
        a(f"s_waitcnt vmcnt(0)")
        self.relayout_store()
        a(f"s_branch L_p1_done")
        a.put("L_p1_compute")
        if "nowarm" not in self.opt: self.code_warm()
        a(f"s_waitcnt lgkmcnt(0)")
        a(f"s_load_dword s{S_TAG}, s[{S_WS}:{S_WS+1}], {OFF_EPOCH}")
        self.srd(SRD_F, S_WS, 0, 0x100000)
        D = self.xstats_publish()
        self.xstats_finish(D)
        a(f"s_cmp_ge_u32 s{S_NT}, 15")
        a(f"s_cbranch_scc1 L_p1_done")
        a(f"s_cmp_ge_u32 s{S_NT}, 10")
        a(f"s_cbranch_scc1 L_p1_N")
        self.g1_compute("T", "p1T")
        self.stamp(2)
        self.p1_epi_T()
        a(f"s_branch L_p1_done")
        a.put("L_p1_N")
        self.g1_compute("N", "p1N")
        self.stamp(2)
        self.p1_epi_N()
        a.put("L_p1_done")
        self.stamp(3)
        a(f"s_waitcnt vmcnt(0)")
        self.stamp(4)

    def poll(self, addr_regs, masks, tagname):
        a = self.a
        T = 4
        L = f"L_{tagname}_poll"; Lo = f"L_{tagname}_pollok"
        a(f"s_mov_b32 s{S_T0}, 0")
        a.put(L)
        for k, (ar, mk) in enumerate(zip(addr_regs, masks)):
            self.set_exec(mk)
            a(f"buffer_load_dword v{T+20+k}, v{ar}, s[{SRD_F}:{SRD_F+3}], 0 offen sc1")
        a(f"s_waitcnt vmcnt(0)")
        a(f"s_mov_b64 s[{S_SAVE}:{S_SAVE+1}], 0")
        for k, (ar, mk) in enumerate(zip(addr_regs, masks)):
            self.set_exec(mk)
            a(f"v_cmp_ne_u32 vcc, s{S_TAG}, v{T+20+k}")
            a(f"s_or_b64 s[{S_SAVE}:{S_SAVE+1}], s[{S_SAVE}:{S_SAVE+1}], vcc")
        a(f"s_mov_b64 exec, -1")
        a(f"s_cmp_eq_u64 s[{S_SAVE}:{S_SAVE+1}], 0")
        a(f"s_cbranch_scc1 {Lo}")
        a(f"s_add_u32 s{S_T0}, s{S_T0}, 1")
        a(f"s_cmp_lt_u32 s{S_T0}, 0x40000")
        a(f"s_cbranch_scc1 {L}")
        a.put(Lo)

    def p1_signal(self):
        a = self.a
        T = 4
        a(f"s_waitcnt vmcnt(0) lgkmcnt(0)")
        a(f"s_barrier")
        Ls = "L_p1sig_skip"
        a(f"s_cmp_lg_u32 s{S_W}, 0")
        a(f"s_cbranch_scc1 {Ls}")
        a(f"v_lshrrev_b32 v{T}, 3, v1")
        a(f"v_and_b32 v{T+1}, 7, v1")
        Ln = "L_p1sig_null"; Lj = "L_p1sig_join"
        a(f"s_cmp_eq_u32 s{S_NT}, 15")
        a(f"s_cbranch_scc1 {Ln}")
        a(f"s_cmp_ge_u32 s{S_NT}, 10")
        a(f"s_cselect_b32 s{S_T0}, 10, 5")
        a(f"s_cmp_lt_u32 s{S_NT}, 5")
        a(f"s_cselect_b32 s{S_T0}, 0, s{S_T0}")
        a(f"s_sub_u32 s{S_T0}, s{S_NT}, s{S_T0}")
        a(f"s_lshl_b32 s{S_T0}, s{S_T0}, 7")
        a(f"s_mul_i32 s{S_T1}, s{S_T0}, 52429")
        a(f"s_lshr_b32 s{S_T1}, s{S_T1}, 20")
        a(f"s_add_u32 s{S_T2}, s{S_T0}, 127")
        a(f"s_mul_i32 s{S_T2}, s{S_T2}, 52429")
        a(f"s_lshr_b32 s{S_T2}, s{S_T2}, 20")
        a(f"s_min_u32 s{S_T2}, s{S_T2}, 31")
        a(f"v_add_u32 v{T+2}, s{S_T1}, v{T}")
        a(f"v_cmp_ge_u32 vcc, s{S_T2}, v{T+2}")
        a(f"s_mov_b64 s[{S_SAVE}:{S_SAVE+1}], vcc")
        a(f"s_cmp_lt_u32 s{S_NT}, 5")
        a(f"s_cbranch_scc0 {Lj}")
        a(f"s_lshr_b32 s{S_T3}, s{S_MT}, 1")
        a(f"v_cmp_eq_u32 vcc, s{S_T3}, v{T+1}")
        a(f"s_and_b64 s[{S_SAVE}:{S_SAVE+1}], s[{S_SAVE}:{S_SAVE+1}], vcc")
        a(f"s_branch {Lj}")
        a.put(Ln)
        a(f"v_lshlrev_b32 v{T+2}, 4, v{T}")
        a(f"v_add_u32 v{T+2}, s{S_MT}, v{T+2}")
        a(f"v_cmp_gt_u32 vcc, 2, v{T}")
        a(f"s_mov_b64 s[{S_SAVE}:{S_SAVE+1}], vcc")
        a.put(Lj)
        a(f"v_and_b32 v{T+4}, 3, v{T+2}")
        a(f"v_lshl_add_u32 v{T+4}, v{T+1}, 2, v{T+4}")
        a(f"v_lshrrev_b32 v{T+2}, 2, v{T+2}")
        a(f"v_lshl_add_u32 v{T+2}, v{T+4}, 3, v{T+2}")
        a(f"v_lshlrev_b32 v{T+2}, 10, v{T+2}")
        a(f"s_lshl_b32 s{S_T0}, s2, 2")
        a(f"s_add_u32 s{S_T0}, s{S_T0}, {OFF_MB1}")
        a(f"v_add_u32 v{T+2}, s{S_T0}, v{T+2}")
        a(f"v_mov_b32 v{T+3}, s{S_TAG}")
        a(f"s_mov_b64 exec, s[{S_SAVE}:{S_SAVE+1}]")
        a(f"buffer_store_dword v{T+3}, v{T+2}, s[{SRD_F}:{SRD_F+3}], 0 offen sc1")
        a(f"s_mov_b64 exec, 1")
        a(f"s_lshl_b32 s{S_T0}, s2, 2")
        a(f"s_add_u32 s{S_T0}, s{S_T0}, {OFF_ALL}")
        a(f"v_mov_b32 v{T+5}, s{S_T0}")
        a(f"s_add_u32 s{S_T1}, s{S_TAG}, s{S_XCC}")
        a(f"v_mov_b32 v{T+6}, s{S_T1}")
        a(f"buffer_store_dword v{T+6}, v{T+5}, s[{SRD_F}:{SRD_F+3}], 0 offen sc1")
        a(f"s_mov_b64 exec, -1")
        a.put(Ls)

    def finish_tag_once(self):
        a = self.a
        a(f"s_mul_i32 s{S_TAG}, s{S_TAG}, 0x9E3779B1")
        a(f"s_add_u32 s{S_TAG}, s{S_TAG}, 0x7F4A7C15")

    def p2_wait(self):
        a = self.a
        T = 4
        Ls = "L_p2w_skip"
        a(f"s_cmp_lg_u32 s{S_W}, 0")
        a(f"s_cbranch_scc1 {Ls}")
        a(f"s_mul_i32 s{S_T1}, s{S_HEAD}, 20")
        a(f"v_bfe_u32 v{T}, v1, 4, 1")
        a(f"v_mul_u32_u24 v{T}, 19, v{T}")
        a(f"v_add_u32 v{T}, s{S_T1}, v{T}")
        a(f"v_lshrrev_b32 v{T}, 7, v{T}")
        a(f"v_lshrrev_b32 v{T+1}, 5, v1")
        a(f"v_mul_u32_u24 v{T+1}, 5, v{T+1}")
        a(f"v_add_u32 v{T+2}, v{T}, v{T+1}")
        a(f"v_add_u32 v{T+2}, 5, v{T+2}")
        a(f"v_and_b32 v{T+3}, 15, v1")
        self.vprod(T+4, T+3, T+2, T+8)
        a(f"v_bfe_u32 v{T}, v1, 1, 1")
        a(f"v_mul_u32_u24 v{T}, 19, v{T}")
        a(f"v_add_u32 v{T}, s{S_T1}, v{T}")
        a(f"v_lshrrev_b32 v{T+2}, 7, v{T}")
        a(f"v_and_b32 v{T+3}, 1, v1")
        a(f"s_lshl_b32 s{S_T2}, s{S_QB}, 1")
        a(f"v_add_u32 v{T+3}, s{S_T2}, v{T+3}")
        a(f"v_cmp_eq_u32 vcc, 4, v1")
        a(f"s_and_b32 s{S_T2}, s{S_HEAD}, 15")
        a(f"v_mov_b32 v{T+6}, s{S_T2}")
        a(f"v_mov_b32 v{T+7}, 15")
        a(f"v_cndmask_b32 v{T+3}, v{T+3}, v{T+6}, vcc")
        a(f"v_cndmask_b32 v{T+2}, v{T+2}, v{T+7}, vcc")
        self.vprod(T+5, T+3, T+2, T+8)
        a(f"s_lshl_b32 s{S_T2}, s2, 10")
        a(f"s_add_u32 s{S_T2}, s{S_T2}, {OFF_MB1}")
        for r in (T+4, T+5):
            a(f"v_lshlrev_b32 v{r}, 2, v{r}")
            a(f"v_add_u32 v{r}, s{S_T2}, v{r}")
        self.poll([T+4, T+5], ["-1", "0x1f"], "p2w")
        a.put(Ls)
        a(f"s_barrier")

    def vprod(self, dst, mt, nt, tmp):
        a = self.a
        a(f"v_and_b32 v{dst}, 3, v{mt}")
        a(f"v_and_b32 v{tmp}, 7, v{nt}")
        a(f"v_lshl_add_u32 v{dst}, v{tmp}, 2, v{dst}")
        a(f"v_lshlrev_b32 v{dst}, 3, v{dst}")
        a(f"v_lshrrev_b32 v{tmp}, 2, v{mt}")
        a(f"v_add_u32 v{dst}, v{dst}, v{tmp}")
        a(f"v_lshrrev_b32 v{tmp}, 3, v{nt}")
        a(f"v_lshl_add_u32 v{dst}, v{tmp}, 2, v{dst}")

    def group_barrier(self, phase, tagname, tgt=None, slot=None, hook=None, local=False):
        a = self.a
        T = 4
        a(f"s_waitcnt vmcnt(0) lgkmcnt(0)")
        a(f"s_barrier")
        Ls = f"L_{tagname}_gskip"
        a(f"s_cmp_lg_u32 s{S_W}, 0")
        a(f"s_cbranch_scc1 {Ls}0")
        tgt = S_GX if tgt is None else tgt
        slot = S_GI if slot is None else slot
        a(f"v_lshlrev_b32 v{T}, 3, v1")
        a(f"v_add_u32 v{T}, s{tgt}, v{T}")
        a(f"v_lshlrev_b32 v{T}, 7, v{T}")
        a(f"s_lshl_b32 s{S_T1}, s{slot}, 2")
        a(f"s_add_u32 s{S_T1}, s{S_T1}, {OFF_GB + phase*256*128}")
        a(f"v_add_u32 v{T}, s{S_T1}, v{T}")
        a(f"v_mov_b32 v{T+1}, s{S_TAG}")
        self.set_exec(0xffffffff)
        if local:
            a(f"s_cmp_eq_u32 s{S_FAST}, 1")
            a(f"s_cbranch_scc1 {Ls}f")
            a(f"buffer_store_dword v{T+1}, v{T}, s[{SRD_F}:{SRD_F+3}], 0 offen sc1")
            a(f"s_branch {Ls}g")
            a.put(Ls + "f")
            a(f"buffer_store_dword v{T+1}, v{T}, s[{SRD_F}:{SRD_F+3}], 0 offen")
            a.put(Ls + "g")
        else:
            a(f"buffer_store_dword v{T+1}, v{T}, s[{SRD_F}:{SRD_F+3}], 0 offen sc1")
        a(f"s_mov_b64 exec, -1")
        a.put(Ls + "0")
        if hook: hook()
        a(f"s_cmp_lg_u32 s{S_W}, 0")
        a(f"s_cbranch_scc1 {Ls}")
        a(f"s_lshl_b32 s{S_T0}, s2, 7")
        a(f"s_add_u32 s{S_T0}, s{S_T0}, {OFF_GB + phase*256*128}")
        a(f"v_lshlrev_b32 v{T+2}, 2, v1")
        a(f"v_add_u32 v{T+2}, s{S_T0}, v{T+2}")
        self.poll([T+2], ["0xffffffff"], tagname)
        a.put(Ls)
        a(f"s_barrier")

    A_QA = 4; A_QB = 12
    A_K = 20
    A_V1 = 36; A_V2 = 40
    A_SA = 44; A_SB = 60; A_P = 76; A_OA = 84; A_OB = 100; A_AK = 116; A_AV = 117; A_DV = 118; A_ALLA = 119; A_T = 120; A_ALL = 132
    S_VMASK = 92
    S_NEXTB = 94; S_DSO = 95; S_LOW = 65
    p2_nu = 4
    low_tiles = 1

    def p2_kreads(self, kb, toff):
        a = self.a
        K = self.A_K + 8*kb
        a(f"ds_read_b64 v[{K}:{K+1}], v{self.A_AK} offset:{toff}")
        a(f"ds_read_b64 v[{K+2}:{K+3}], v{self.A_AK} offset:{toff+256}")
        a(f"ds_read_b64 v[{K+4}:{K+5}], v{self.A_AK} offset:{toff+1024}")
    def p2_vread(self, which, toff):
        a = self.a
        R = self.A_V1 if which == 0 else self.A_V2
        a(f"s_mov_b64 exec, s[{self.S_VMASK}:{self.S_VMASK+1}]")
        a(f"ds_read_b128 v[{R}:{R+3}], v{self.A_AV} offset:{toff+640*which}")
        a(f"s_mov_b64 exec, -1")
    def p2_smfma(self, which, S, kb, Q):
        a = self.a
        K = self.A_K + 8*kb
        if which == 0:
            a(f"v_mfma_f32_32x32x16_bf16 v[{S}:{S+15}], v[{K}:{K+3}], v[{Q}:{Q+3}], 0")
        else:
            a(f"v_mfma_f32_32x32x16_bf16 v[{S}:{S+15}], v[{K+4}:{K+7}], v[{Q+4}:{Q+7}], v[{S}:{S+15}]")

    A_V2B = 128
    def p2_sub(self, stream, u):
        a = self.a
        P = self.A_P
        p = u & 1
        V2 = (self.A_V2, self.A_V2B)
        Sc, Sn = (self.A_SA, self.A_SB) if stream == 0 else (self.A_SB, self.A_SA)
        Oc, Op = (self.A_OA, self.A_OB) if stream == 0 else (self.A_OB, self.A_OA)
        Qn = self.A_QB if stream == 0 else self.A_QA
        kb = p if stream == 0 else 1 - p
        v2 = V2[1-p] if stream == 0 else V2[p]
        ex = lambda i: a(f"v_exp_f32 v{Sc+i}, v{Sc+i}")
        cv = lambda k: a(f"v_cvt_pk_bf16_f32 v{P+k}, v{Sc+2*k}, v{Sc+2*k+1}")
        cvp = lambda k: a(f"v_cvt_pk_bf16_f32 v{P+k}, v{Sn+2*k}, v{Sn+2*k+1}")
        ex(0); cvp(6); ex(1); ex(2); cvp(7); ex(3)
        self.p2_smfma(0, Sn, kb, Qn)
        ex(4); cv(0); ex(5); ex(6); cv(1); ex(7)
        self.p2_smfma(1, Sn, kb, Qn)
        ex(8); cv(2); ex(9); ex(10); cv(3); ex(11)
        a(f"v_mfma_f32_32x32x16_bf16 v[{Op}:{Op+15}], v[{v2}:{v2+3}], v[{P+4}:{P+7}], v[{Op}:{Op+15}]")
        ex(12); cv(4); ex(13); ex(14); cv(5); ex(15)
        if stream == 0: a(f"s_waitcnt lgkmcnt(0)")
        a(f"v_mfma_f32_32x32x16_bf16 v[{Oc}:{Oc+15}], v[{self.A_V1}:{self.A_V1+3}], v[{P}:{P+3}], v[{Oc}:{Oc+15}]")
        if stream == 1:
            tn = (u+1)*2560
            a(f"s_mov_b64 exec, s[{self.S_VMASK}:{self.S_VMASK+1}]")
            a(f"ds_read_b128 v[{self.A_V1}:{self.A_V1+3}], v{self.A_AV} offset:{tn}")
            R = V2[1-p]
            a(f"ds_read_b128 v[{R}:{R+3}], v{self.A_AV} offset:{tn+640}")
            a(f"s_mov_b64 exec, -1")
            self.p2_kreads(p, (u+2)*2560)

    def prio_reg(self, stream):
        return self._prio[stream]

    def p2_check_all(self):
        a = self.a
        X = self.A_ALL; T = self.A_T
        L = "L_p2_all"; Lo = "L_p2_allok"
        a(f"s_mov_b32 s{S_T0}, 0")
        a.put(L)
        for r in range(4):
            a(f"v_subrev_u32 v{T+r}, s{S_TAG}, v{X+r}")
        a(f"v_cmp_le_u32 vcc, 16, v{T}")
        for r in range(1, 4):
            a(f"v_cmp_le_u32 s[{S_SAVE}:{S_SAVE+1}], 16, v{T+r}")
            a(f"s_nop 0")
            a(f"s_or_b64 vcc, vcc, s[{S_SAVE}:{S_SAVE+1}]")
        a(f"s_cbranch_vccz {Lo}")
        a(f"s_add_u32 s{S_T0}, s{S_T0}, 1")
        a(f"s_cmp_ge_u32 s{S_T0}, 0x40000")
        a(f"s_cbranch_scc1 {Lo}")
        a(f"buffer_load_dwordx4 v[{X}:{X+3}], v{self.A_ALLA}, s[{SRD_F}:{SRD_F+3}], 0 offen sc1")
        a(f"s_waitcnt vmcnt(0)")
        a(f"s_branch {L}")
        a.put(Lo)
        a(f"s_and_b32 s{S_T1}, s{S_GX}, 3")
        for r in range(1, 4):
            a(f"s_cmp_eq_u32 s{S_T1}, {r}")
            a(f"s_cselect_b64 s[{S_SAVE}:{S_SAVE+1}], -1, 0")
            a(f"v_cndmask_b32 v{T}, v{T}, v{T+r}, s[{S_SAVE}:{S_SAVE+1}]")
        a(f"v_cmp_ne_u32 vcc, s{S_XCC}, v{T}")
        a(f"s_mov_b32 s{S_T2}, 0x55555555")
        a(f"s_lshr_b32 s{S_T1}, s{S_GX}, 2")
        a(f"s_lshl_b32 s{S_T2}, s{S_T2}, s{S_T1}")
        a(f"s_and_b32 s{S_T3}, vcc_lo, s{S_T2}")
        a(f"s_and_b32 s{S_T4}, vcc_hi, s{S_T2}")
        a(f"s_or_b32 s{S_T3}, s{S_T3}, s{S_T4}")
        a(f"s_cmp_eq_u32 s{S_T3}, 0")
        a(f"s_cselect_b32 s{S_FAST}, {0 if 'nofast' in self.opt else 1}, 0")

    prio_low = (0, 2, 4, 7)
    def p2_setprio(self, lvl, tag):
        a = self.a
        L = f"L_p2_pr{tag}"
        a(f"s_cmp_ge_u32 s{S_W}, 4")
        a(f"s_cbranch_scc1 {L}")
        a(f"s_setprio {lvl}")
        a.put(L)

    def p2_dma(self, n):
        a = self.a
        for i in range(n):
            a(f"s_mov_b32 m0, s{self.S_DSO}")
            a(f"s_nop 0")
            a(f"buffer_load_dwordx4 v{self.A_DV}, s[{SRD_A}:{SRD_A+3}], s{self.S_DSO} offen sc1 lds")
            a(f"s_add_u32 s{self.S_DSO}, s{self.S_DSO}, 4096")

    def p2(self):
        a = self.a
        T = self.A_T
        a(f"s_lshl_b32 s{S_HEAD}, s{S_GX}, 2")
        a(f"s_and_b32 s{S_T0}, s{S_GI}, 3")
        a(f"s_add_u32 s{S_HEAD}, s{S_HEAD}, s{S_T0}")
        a(f"s_lshr_b32 s{S_QB}, s{S_GI}, 2")
        self.stamp(5)
        self.p2_wait()
        self.stamp(6)
        a(f"s_mul_i32 s{S_T0}, s{S_HEAD}, 163840")
        a(f"s_add_u32 s{S_T0}, s{S_T0}, {hex(OFF_KV)}")
        a(f"s_add_u32 s{SRD_A}, s{S_WS}, s{S_T0}")
        a(f"s_addc_u32 s{SRD_A+1}, s{S_WS+1}, 0")
        a(f"s_mov_b32 s{SRD_A+2}, 163840")
        a(f"s_mov_b32 s{SRD_A+3}, 0x20000")
        a(f"s_lshl_b32 s{S_T0}, s{S_HEAD}, 6")
        a(f"s_lshl_b32 s{S_T1}, s{S_QB}, 3")
        a(f"s_add_u32 s{S_T0}, s{S_T0}, s{S_T1}")
        a(f"s_and_b32 s{S_T1}, s{S_W}, 3")
        a(f"s_lshl_b32 s{S_T1}, s{S_T1}, 1")
        a(f"s_add_u32 s{S_T0}, s{S_T0}, s{S_T1}")
        a(f"s_mul_i32 s{S_T0}, s{S_T0}, 1280")
        a(f"s_add_u32 s{S_T0}, s{S_T0}, {hex(OFF_Q)}")
        a(f"s_add_u32 s{SRD_W}, s{S_WS}, s{S_T0}")
        a(f"s_addc_u32 s{SRD_W+1}, s{S_WS+1}, 0")
        a(f"s_mov_b32 s{SRD_W+2}, 2560")
        a(f"s_mov_b32 s{SRD_W+3}, 0x20000")
        a(f"v_and_b32 v{T}, 31, v1")
        a(f"v_lshrrev_b32 v{T+1}, 5, v1")
        a(f"v_lshlrev_b32 v{T+2}, 3, v{T}")
        a(f"v_lshl_add_u32 v{self.A_AK}, v{T+1}, 9, v{T+2}")
        a(f"v_lshlrev_b32 v{T+3}, 12, v{T+1}")
        a(f"v_add_u32 v{T+3}, v{T+3}, v{T+2}")
        a(f"v_lshlrev_b32 v{self.A_DV}, 4, v1")
        a(f"v_add_u32 v{self.A_ALLA}, {OFF_ALL}, v{self.A_DV}")
        a(f"buffer_load_dwordx4 v[{self.A_ALL}:{self.A_ALL+3}], v{self.A_ALLA}, s[{SRD_F}:{SRD_F+3}], 0 offen sc1")
        for qi, Q in enumerate((self.A_QA, self.A_QB)):
            a(f"buffer_load_dwordx2 v[{Q}:{Q+1}], v{self.A_AK}, s[{SRD_W}:{SRD_W+3}], 0 offen offset:{1280*qi} sc1")
            a(f"buffer_load_dwordx2 v[{Q+2}:{Q+3}], v{self.A_AK}, s[{SRD_W}:{SRD_W+3}], 0 offen offset:{1280*qi+256} sc1")
            a(f"buffer_load_dwordx2 v[{Q+4}:{Q+5}], v{T+3}, s[{SRD_W}:{SRD_W+3}], 0 offen offset:{1280*qi+1024} sc1")
        a(f"v_lshlrev_b32 v{self.A_DV}, 4, v1")
        a(f"s_lshr_b32 s{S_T0}, s{S_W}, 2")
        a(f"s_mul_i32 s{S_T0}, s{S_T0}, 81920")
        a(f"s_and_b32 s{S_T1}, s{S_W}, 3")
        a(f"s_lshl_b32 s{S_T1}, s{S_T1}, 10")
        a(f"s_add_u32 s{self.S_DSO}, s{S_T0}, s{S_T1}")
        self.p2_dma(8)
        for Q in (self.A_QA, self.A_QB):
            a(f"v_mov_b32 v{Q+6}, 0"); a(f"v_mov_b32 v{Q+7}, 0")
        for kb in range(2):
            a(f"v_mov_b32 v{self.A_K+8*kb+6}, 0"); a(f"v_mov_b32 v{self.A_K+8*kb+7}, 0")
        a(f"v_cmp_eq_u32 vcc, 20, v{T}")
        a(f"v_mov_b32 v{T+5}, 0x3f803f80")
        a(f"v_mul_u32_u24 v{T+6}, 320, v{T+1}")
        a(f"v_cndmask_b32 v{self.A_V1}, 0, v{T+5}, vcc")
        for r in range(1, 8):
            a(f"v_mov_b32 v{self.A_V1+r}, v{self.A_V1}")
        for r in range(4):
            a(f"v_mov_b32 v{self.A_V2B+r}, v{self.A_V1}")
        a(f"v_lshl_add_u32 v{self.A_AV}, v{T}, 4, v{T+6}")
        a(f"v_add_u32 v{self.A_AV}, 1280, v{self.A_AV}")
        a(f"v_add_u32 v{self.A_AK}, s{S_T0}, v{self.A_AK}")
        a(f"v_add_u32 v{self.A_AV}, s{S_T0}, v{self.A_AV}")
        a(f"s_mov_b32 s{self.S_VMASK}, 0xfffff")
        a(f"s_mov_b32 s{self.S_VMASK+1}, 0xfffff")
        for r in range(16):
            a(f"v_mov_b32 v{self.A_OA+r}, 0"); a(f"v_mov_b32 v{self.A_OB+r}, 0")
        for r in range(8):
            a(f"v_mov_b32 v{self.A_P+r}, 0")
        for r in range(12, 16):
            a(f"v_mov_b32 v{self.A_SB+r}, 0")
        a(f"s_waitcnt vmcnt(4)")
        a(f"s_barrier")
        self.stamp(7)
        self.p2_dma(1)
        self.p2_kreads(0, 0)
        self.p2_kreads(1, 2560)
        self.p2_vread(0, 0)
        self.p2_vread(1, 0)
        a(f"s_waitcnt lgkmcnt(0)")
        self.p2_smfma(0, self.A_SA, 0, self.A_QA); self.p2_smfma(1, self.A_SA, 0, self.A_QA)
        NU = self.p2_nu
        nit = 32 // NU
        a(f"s_mov_b32 s{S_CNT}, 0")
        a(f"s_mov_b32 s{self.S_NEXTB}, {4//NU if NU <= 4 else 1}")
        lows = list(self.prio_low)
        a(f"s_cmp_lt_u32 s{S_W}, 4")
        a(f"s_cselect_b32 s{self.S_LOW}, {lows[0] if lows else 99}, 99")
        if "noprio" not in self.opt:
            a(f"s_setprio 1")
            self.p2_setprio(2, "init")
        a(f"s_nop 7"); a(f"s_nop 3")
        a(f".p2align 6")
        a.put("L_p2_loop")
        a(f"s_cmp_eq_u32 s{S_CNT}, s{self.S_NEXTB}")
        a(f"s_cbranch_scc1 L_p2_wait")
        a.put("L_p2_back")
        for u in range(NU):
            if u == NU - self.low_tiles and "noprio" not in self.opt:
                a(f"s_cmp_eq_u32 s{S_CNT}, s{self.S_LOW}")
                a(f"s_cbranch_scc1 L_p2_low")
                a.put("L_p2_lowback")
            self.p2_sub(0, u)
            self.p2_sub(1, u)
        a(f"v_add_u32 v{self.A_AK}, {NU*2560}, v{self.A_AK}")
        a(f"v_add_u32 v{self.A_AV}, {NU*2560}, v{self.A_AV}")
        a(f"s_add_u32 s{S_CNT}, s{S_CNT}, 1")
        a(f"s_cmp_lt_u32 s{S_CNT}, {nit}")
        a(f"s_cbranch_scc1 L_p2_loop")
        a(f"s_branch L_p2_done")
        if "noprio" not in self.opt:
            a.put("L_p2_low")
            a(f"s_setprio 0")
            a(f"s_branch L_p2_lowback")
        a.put("L_p2_wait")
        LA = [(s_, t) for s_ in range(5, 14) for t in range(3)]
        LA = LA + [LA[-1]]
        LB = [(s_, t) for s_ in range(14) for t in range(2)]
        wq = 0
        plan = {4: ("kv", 0, 5), 8: ("w",), 12: ("kv", 7, 6), 16: ("w",), 20: ("kv", 7, 0), 24: ("w",), 28: ("w",)}
        evs = sorted(plan)
        kvs = [t for t in evs if plan[t][0] == "kv"]
        for k, tile in enumerate(evs):
            cnt = tile // NU
            Ln = f"L_p2_w{cnt}"
            a(f"s_cmp_lg_u32 s{S_CNT}, {cnt}")
            a(f"s_cbranch_scc1 {Ln}")
            ev = plan[tile]
            if ev[0] == "kv":
                a(f"s_waitcnt vmcnt({ev[1]})")
                if tile == 4:
                    self.p2_check_all()
                    self.g2_wsetup(5, SRD_W, S_SW, self.A_ALLA)
                a(f"s_barrier")
                if "noprio" not in self.opt:
                    self.p2_setprio(2, f"h{cnt}")
                    nl = lows[kvs.index(tile)+1] if kvs.index(tile)+1 < len(lows) else 99
                    a(f"s_cmp_lt_u32 s{S_W}, 4")
                    a(f"s_cselect_b32 s{self.S_LOW}, {nl}, 99")
                self.p2_dma(ev[2])
            elif ev[0] == "w":
                self.g2_wloads_byclass(5, LA[7*wq:7*wq+7], LB[7*wq:7*wq+7], SRD_W, S_SW, self.A_ALLA, f"p2w{cnt}")
                wq += 1
            nxt = evs[k+1]//NU if k + 1 < len(evs) else 99
            a(f"s_mov_b32 s{self.S_NEXTB}, {nxt}")
            a(f"s_branch L_p2_back")
            a.put(Ln)
        a(f"s_branch L_p2_back")
        a.put("L_p2_done")
        a(f"s_setprio 0")
        P = self.A_P; SBr = self.A_SB
        a(f"s_waitcnt lgkmcnt(0)")
        a(f"v_cvt_pk_bf16_f32 v{P+6}, v{SBr+12}, v{SBr+13}")
        a(f"v_cvt_pk_bf16_f32 v{P+7}, v{SBr+14}, v{SBr+15}")
        a(f"s_nop 1")
        a(f"v_mfma_f32_32x32x16_bf16 v[{self.A_OB}:{self.A_OB+15}], v[{self.A_V2B}:{self.A_V2B+3}], v[{P+4}:{P+7}], v[{self.A_OB}:{self.A_OB+15}]")
        self.stamp(8)
        self.p2_epilogue()

    def p2_epilogue(self):
        a = self.a
        T = self.A_T
        a(f"s_nop 7"); a(f"s_nop 3")
        a(f"s_barrier")
        a(f"s_and_b32 s{S_T0}, s{S_W}, 3")
        a(f"s_lshr_b32 s{S_T1}, s{S_W}, 2")
        a(f"s_lshl_b32 s{S_T0}, s{S_T0}, 1")
        a(f"s_add_u32 s{S_T2}, s{S_T0}, s{S_T1}")
        a(f"s_xor_b32 s{S_T3}, s{S_T2}, 1")
        a(f"s_mul_i32 s{S_T2}, s{S_T2}, 3072")
        a(f"s_mul_i32 s{S_T3}, s{S_T3}, 3072")
        a(f"v_lshlrev_b32 v{T}, 4, v1")
        a(f"v_add_u32 v{T+1}, s{S_T2}, v{T}")
        a(f"v_add_u32 v{T+2}, s{S_T3}, v{T}")
        Lk1 = "L_p2e_k1"; Lj = "L_p2e_j"
        a(f"s_cmp_eq_u32 s{S_T1}, 1")
        a(f"s_cbranch_scc1 {Lk1}")
        for g in range(3):
            a(f"ds_write_b128 v{T+1}, v[{self.A_OB+4*g}:{self.A_OB+4*g+3}] offset:{1024*g}")
        a(f"s_branch {Lj}")
        a.put(Lk1)
        for g in range(3):
            a(f"ds_write_b128 v{T+1}, v[{self.A_OA+4*g}:{self.A_OA+4*g+3}] offset:{1024*g}")
        for r in range(12):
            a(f"v_mov_b32 v{self.A_OA+r}, v{self.A_OB+r}")
        a.put(Lj)
        a(f"s_waitcnt lgkmcnt(0)")
        a(f"s_barrier")
        O = self.A_OA; X = self.A_SA
        for g in range(3):
            a(f"ds_read_b128 v[{X+4*g}:{X+4*g+3}], v{T+2} offset:{1024*g}")
        a(f"s_waitcnt lgkmcnt(0)")
        for r in range(12):
            a(f"v_add_f32 v{O+r}, v{O+r}, v{X+r}")
        a(f"v_mov_b32 v{T}, v{O+8}")
        a(f"v_mov_b32 v{T+1}, v{O+8}")
        a(f"s_nop 1")
        a(f"v_permlane32_swap_b32 v{T}, v{T+1}")
        a(f"s_nop 1")
        a(f"v_rcp_f32 v{T+2}, v{T+1}")
        a(f"s_nop 0")
        for r in range(12):
            a(f"v_mul_f32 v{O+r}, v{T+2}, v{O+r}")
        for g in range(3):
            a(f"v_cvt_pk_bf16_f32 v{O+4*g}, v{O+4*g}, v{O+4*g+1}")
            a(f"v_cvt_pk_bf16_f32 v{O+4*g+1}, v{O+4*g+2}, v{O+4*g+3}")
        self.srd(SRD_O, S_WS, OFF_O, SZ_O)
        a(f"s_and_b32 s{S_T2}, s{S_W}, 3")
        a(f"s_lshr_b32 s{S_T3}, s{S_W}, 2")
        a(f"s_lshl_b32 s{S_T0}, s{S_QB}, 2")
        a(f"s_add_u32 s{S_T0}, s{S_T0}, s{S_T2}")
        a(f"s_mul_i32 s{S_T0}, s{S_T0}, 81920")
        a(f"s_lshl_b32 s{S_T1}, s{S_T3}, 11")
        a(f"s_add_u32 s{S_T0}, s{S_T0}, s{S_T1}")
        a(f"v_bfe_u32 v{T+3}, v1, 4, 1")
        a(f"v_lshlrev_b32 v{T+3}, 10, v{T+3}")
        a(f"v_and_b32 v{T+4}, 15, v1")
        a(f"v_lshl_add_u32 v{T+3}, v{T+4}, 4, v{T+3}")
        a(f"v_lshrrev_b32 v{T+5}, 5, v1")
        a(f"s_mul_i32 s{S_T1}, s{S_HEAD}, 20")
        for g in range(3):
            a(f"v_lshlrev_b32 v{T+6}, 2, v{T+5}")
            a(f"s_add_u32 s{S_T2}, s{S_T1}, {8*g}")
            a(f"v_add_u32 v{T+6}, s{S_T2}, v{T+6}")
            a(f"v_lshrrev_b32 v{T+7}, 5, v{T+6}")
            a(f"v_lshlrev_b32 v{T+7}, 12, v{T+7}")
            a(f"v_bfe_u32 v{T+8}, v{T+6}, 3, 2")
            a(f"v_lshl_add_u32 v{T+7}, v{T+8}, 8, v{T+7}")
            a(f"v_and_b32 v{T+8}, 7, v{T+6}")
            a(f"v_lshl_add_u32 v{T+7}, v{T+8}, 1, v{T+7}")
            a(f"v_add_u32 v{T+7}, v{T+7}, v{T+3}")
            if g == 2: self.set_exec(0xffffffff)
            a(f"buffer_store_dwordx2 v[{O+4*g}:{O+4*g+1}], v{T+7}, s[{SRD_O}:{SRD_O+3}], s{S_T0} offen sc1")
            if g == 2: a(f"s_mov_b64 exec, -1")

    G_ACC = 4
    G_ACT = 52
    G_AL = 84; G_AH = 85; G_DV = 86
    S_RB = 49; S_J = 50
    S_WB = 53
    def g2_wbase(self, phase, NT):
        return 88 if (phase == 3 or NT == 3) else 144

    def g2_wsetup(self, phase, srd, sreg, vreg):
        a = self.a
        if phase == 3: self.srd(srd, S_WS, OFF_WOP, SZ_WOP)
        else: self.srd(srd, S_WS, OFF_W2P, SZ_W2P)
        a(f"s_and_b32 s{S_T0}, s{S_W}, 3")
        a(f"s_mul_i32 s{S_T1}, s{S_T0}, 40")
        a(f"s_and_b32 s{S_T2}, s{S_GI}, 7")
        a(f"s_mul_i32 s{S_T2}, s{S_T2}, 5")
        a(f"s_add_u32 s{S_T1}, s{S_T1}, s{S_T2}")
        a(f"s_cmp_lt_u32 s{S_W}, 4")
        a(f"s_cselect_b32 s{S_T2}, 3, 0")
        a(f"s_add_u32 s{S_T1}, s{S_T1}, s{S_T2}")
        a(f"s_lshl_b32 s{sreg}, s{S_T1}, 10")
        a(f"v_lshlrev_b32 v{vreg}, 4, v1")

    def g2_wload1(self, phase, NT, step, t, srd, sreg, vreg):
        a = self.a
        R = self.g2_wbase(phase, NT) + 4*(step*NT + t)
        off = step*4*40*1024 + t*1024
        a(f"s_add_u32 s{S_T2}, s{sreg}, {off}")
        a(f"buffer_load_dwordx4 v[{R}:{R+3}], v{vreg}, s[{srd}:{srd+3}], s{S_T2} offen {self.ld_aux}")

    def g2_wloads_byclass(self, phase, listA, listB, srd, sreg, vreg, tag):
        a = self.a
        LA = f"L_{tag}_A"; LJ = f"L_{tag}_J"
        a(f"s_cmp_ge_u32 s{S_W}, 4")
        a(f"s_cbranch_scc1 {LA}")
        for (st, t) in listB: self.g2_wload1(phase, 2, st, t, srd, sreg, vreg)
        a(f"s_branch {LJ}")
        a.put(LA)
        for (st, t) in listA: self.g2_wload1(phase, 3, st, t, srd, sreg, vreg)
        a.put(LJ)

    def g2_adma(self, stage):
        a = self.a
        slot = (stage % 4) * 32768
        for q in range(4):
            a(f"s_add_u32 m0, s{S_M0A}, {slot + q*8192}")
            a(f"s_add_u32 s{S_T2}, s{S_M0A}, {stage*32768 + q*8192}")
            a(f"buffer_load_dwordx4 v{self.G_DV}, s[{SRD_A}:{SRD_A+3}], s{S_T2} offen {self.ld_aux} lds")

    def g2_reads(self, stage, u, st):
        a = self.a
        slot = stage % 4
        base = self.G_AL if slot < 2 else self.G_AH
        off = (slot % 2) * 32768 + u*16384
        for m in range(4):
            R = self.G_ACT + 16*st + 4*m
            a(f"ds_read_b128 v[{R}:{R+3}], v{base} offset:{off + m*1024}")

    def g2_mfma(self, phase, NT, step, st):
        a = self.a
        for t in range(NT):
            W = self.g2_wbase(phase, NT) + 4*(step*NT + t)
            for m in range(4):
                A = self.G_ACC + 4*(m*3 + t)
                X = self.G_ACT + 16*st + 4*m
                a(f"v_mfma_f32_16x16x32_bf16 v[{A}:{A+3}], v[{W}:{W+3}], v[{X}:{X+3}], v[{A}:{A+3}]")

    def g2_main(self, phase, NT, nsteps):
        a = self.a
        NSTG = (nsteps + 1) // 2
        pre = min(3, NSTG)
        for sg in range(pre):
            self.g2_adma(sg)
        for m in range(4):
            for t in range(NT):
                for i in range(4):
                    a(f"v_mov_b32 v{self.G_ACC+4*(m*3+t)+i}, 0")
        if self.g2st: self.stamp(self.g2st)
        a(f"s_waitcnt vmcnt({4*(pre-1)})")
        a(f"s_barrier")
        if self.g2st: self.stamp(self.g2st+1)
        self.g2_reads(0, 0, 0)
        for sg in range(NSTG):
            two = (2*sg + 1) < nsteps
            if sg + 1 < NSTG:
                out = 4 * max(0, min(NSTG, sg + pre) - (sg + 2))
                a(f"s_waitcnt vmcnt({out})")
                a(f"s_barrier")
            if two:
                self.g2_reads(sg, 1, 1)
                a(f"s_waitcnt lgkmcnt(4)")
            else:
                a(f"s_waitcnt lgkmcnt(0)")
            self.g2_mfma(phase, NT, 2*sg, 0)
            if sg + pre < NSTG:
                self.g2_adma(sg + pre)
            if two:
                if sg + 1 < NSTG:
                    self.g2_reads(sg+1, 0, 0)
                    a(f"s_waitcnt lgkmcnt(4)")
                else:
                    a(f"s_waitcnt lgkmcnt(0)")
                self.g2_mfma(phase, NT, 2*sg+1, 1)

    def g2_reduce(self, NT):
        a = self.a
        T = self.G_ACT
        a(f"s_nop 7")
        a(f"s_barrier")
        a(f"s_lshr_b32 s{S_T0}, s{S_W}, 2")
        a(f"s_and_b32 s{S_T1}, s{S_W}, 3")
        a(f"s_mul_i32 s{S_T2}, s{S_T0}, {16*3072}")
        a(f"s_mul_i32 s{S_T3}, s{S_T1}, 3072")
        a(f"s_add_u32 s{S_T3}, s{S_T3}, s{S_T2}")
        a(f"v_lshlrev_b32 v{T}, 4, v1")
        a(f"v_add_u32 v{T+1}, s{S_T3}, v{T}")
        for m in range(4):
            for t in range(NT):
                A = self.G_ACC + 4*(m*3 + t)
                a(f"ds_write_b128 v{T+1}, v[{A}:{A+3}] offset:{m*4*3072 + t*1024}")
        a(f"s_mul_i32 s{S_T3}, s{S_T1}, {4*3072}")
        a(f"s_add_u32 s{S_T3}, s{S_T3}, s{S_T2}")
        a(f"v_add_u32 v{T+2}, s{S_T3}, v{T}")
        a(f"s_waitcnt lgkmcnt(0)")
        a(f"s_barrier")
        for src in range(4):
            for t in range(NT):
                A = self.G_ACC + 4*(src*3 + t)
                a(f"ds_read_b128 v[{A}:{A+3}], v{T+2} offset:{src*3072 + t*1024}")
        a(f"s_waitcnt lgkmcnt(0)")
        for t in range(NT):
            for i in range(4):
                A = self.G_ACC + 4*t + i
                a(f"v_add_f32 v{A}, v{A}, v{A+12}")
                a(f"v_add_f32 v{A+24}, v{A+24}, v{A+36}")
            for i in range(4):
                A = self.G_ACC + 4*t + i
                a(f"v_add_f32 v{A}, v{A}, v{A+24}")

    def g2_setup(self, phase):
        a = self.a
        a(f"s_lshr_b32 s{S_T0}, s{S_GI}, 3")
        a(f"s_lshl_b32 s{S_T1}, s{S_GX}, 2")
        a(f"s_add_u32 s{self.S_RB}, s{S_T0}, s{S_T1}")
        a(f"s_and_b32 s{self.S_J}, s{S_GI}, 7")
        if phase == 3: off, per = OFF_O, 81920
        else: off, per = OFF_R, 54*4096
        a(f"s_mul_i32 s{S_T0}, s{self.S_RB}, {per}")
        a(f"s_add_u32 s{S_T0}, s{S_T0}, {hex(off)}")
        a(f"s_add_u32 s{SRD_A}, s{S_WS}, s{S_T0}")
        a(f"s_addc_u32 s{SRD_A+1}, s{S_WS+1}, 0")
        a(f"s_mov_b32 s{SRD_A+2}, {per}")
        a(f"s_mov_b32 s{SRD_A+3}, 0x20000")
        a(f"s_lshl_b32 s{S_M0A}, s{S_W}, 10")
        a(f"v_lshlrev_b32 v{self.G_DV}, 4, v1")
        a(f"s_and_b32 s{S_T0}, s{S_W}, 3")
        a(f"s_lshl_b32 s{S_T0}, s{S_T0}, 12")
        a(f"v_add_u32 v{self.G_AL}, s{S_T0}, v{self.G_DV}")
        a(f"v_add_u32 v{self.G_AH}, 0x10000, v{self.G_AL}")

    G_EX = 88
    def g2_epi_loads(self, phase, NT):
        a = self.a
        E = self.G_EX
        a(f"s_lshl_b32 s{S_T0}, s{self.S_RB}, 6")
        a(f"s_and_b32 s{S_T1}, s{S_W}, 3")
        a(f"s_lshl_b32 s{S_T1}, s{S_T1}, 4")
        a(f"s_add_u32 s{S_T0}, s{S_T0}, s{S_T1}")
        a(f"v_and_b32 v{E+12}, 15, v1")
        a(f"v_add_u32 v{E+12}, s{S_T0}, v{E+12}")
        a(f"v_mul_u32_u24 v{E+12}, 1280, v{E+12}")
        a(f"s_mul_i32 s{S_T0}, s{self.S_J}, 160")
        if NT == 2: a(f"s_add_u32 s{S_T0}, s{S_T0}, 96")
        a(f"v_lshrrev_b32 v{E+13}, 4, v1")
        a(f"v_lshlrev_b32 v{E+13}, 3, v{E+13}")
        a(f"v_add_u32 v{E+13}, s{S_T0}, v{E+13}")
        a(f"v_add_u32 v{E+12}, v{E+12}, v{E+13}")
        if phase == 3:
            self.srd(SRD_T, S_X, 0, 2048*1280)
            aux_r = ""
        else:
            self.srd(SRD_T, S_WS, OFF_H, SZ_H)
            aux_r = self.ld_aux
        for t in range(NT):
            a(f"buffer_load_dwordx2 v[{E+2*t}:{E+2*t+1}], v{E+12}, s[{SRD_T}:{SRD_T+3}], 0 offen offset:{32*t} {aux_r}")
        if phase == 5:
            self.srd(SRD_W, S_B2, 0, 1280)
            for t in range(NT):
                a(f"buffer_load_dwordx2 v[{E+6+2*t}:{E+7+2*t}], v{E+13}, s[{SRD_W}:{SRD_W+3}], 0 offen offset:{32*t}")

    def g2_epi(self, phase, NT):
        a = self.a
        T = self.G_ACT; A = self.G_ACC; E = self.G_EX
        if phase == 3:
            self.srd_twin(S_WS, OFF_H, SZ_H)
        else:
            self.srd(SRD_O, S_OUT, 0, 2048*1280)
        a(f"s_waitcnt vmcnt(0)")
        for t in range(NT):
            for half in range(2):
                for base in ([E] if phase == 3 else [E, E+6]):
                    R = base + 2*t + half
                    a(f"v_lshlrev_b32 v{T+20}, 16, v{R}")
                    a(f"v_and_b32 v{T+21}, 0xffff0000, v{R}")
                    a(f"v_add_f32 v{A+4*t+2*half}, v{A+4*t+2*half}, v{T+20}")
                    a(f"v_add_f32 v{A+4*t+2*half+1}, v{A+4*t+2*half+1}, v{T+21}")
            a(f"v_cvt_pk_bf16_f32 v{A+4*t}, v{A+4*t}, v{A+4*t+1}")
            a(f"v_cvt_pk_bf16_f32 v{A+4*t+1}, v{A+4*t+2}, v{A+4*t+3}")
            if phase == 3: self.store_twin("buffer_store_dwordx2", f"v[{A+4*t}:{A+4*t+1}]", E+12, "0", f"offset:{32*t}")
            else: a(f"buffer_store_dwordx2 v[{A+4*t}:{A+4*t+1}], v{E+12}, s[{SRD_O}:{SRD_O+3}], 0 offen offset:{32*t}")
        if phase == 3:
            S = T + 22
            a(f"v_mov_b32 v{S}, 0"); a(f"v_mov_b32 v{S+1}, 0")
            for t in range(NT):
                for half in range(2):
                    R = A + 4*t + half
                    a(f"v_lshlrev_b32 v{T+20}, 16, v{R}")
                    a(f"v_and_b32 v{T+21}, 0xffff0000, v{R}")
                    a(f"v_add_f32 v{S}, v{S}, v{T+20}")
                    a(f"v_fmac_f32 v{S+1}, v{T+20}, v{T+20}")
                    a(f"v_add_f32 v{S}, v{S}, v{T+21}")
                    a(f"v_fmac_f32 v{S+1}, v{T+21}, v{T+21}")
            for op in ("v_permlane32_swap_b32", "v_permlane16_swap_b32"):
                a(f"v_mov_b32 v{S+2}, v{S}")
                a(f"v_mov_b32 v{S+3}, v{S+1}")
                a(f"s_nop 1")
                a(f"{op} v{S+2}, v{S}")
                a(f"{op} v{S+3}, v{S+1}")
                a(f"s_nop 1")
                a(f"v_add_f32 v{S}, v{S}, v{S+2}")
                a(f"v_add_f32 v{S+1}, v{S+1}, v{S+3}")
            a(f"s_lshl_b32 s{S_T0}, s{self.S_RB}, 6")
            a(f"s_and_b32 s{S_T1}, s{S_W}, 3")
            a(f"s_lshl_b32 s{S_T1}, s{S_T1}, 4")
            a(f"s_add_u32 s{S_T0}, s{S_T0}, s{S_T1}")
            a(f"v_and_b32 v{S+2}, 15, v1")
            a(f"v_add_u32 v{S+2}, s{S_T0}, v{S+2}")
            a(f"v_lshlrev_b32 v{S+2}, 7, v{S+2}")
            a(f"s_lshl_b32 s{S_T0}, s{self.S_J}, 4")
            a(f"s_add_u32 s{S_T0}, s{S_T0}, {hex(8 if NT == 2 else 0)}")
            a(f"v_add_u32 v{S+2}, s{S_T0}, v{S+2}")
            self.srd_twin(S_WS, OFF_PST, 2048*128)
            a(f"s_mov_b64 exec, 0xffff")
            self.store_twin("buffer_store_dwordx2", f"v[{S}:{S+1}]", S+2, "0")
            a(f"s_mov_b64 exec, -1")

    def g2(self, phase):
        a = self.a
        nsteps = 5 if phase == 3 else 14
        self.g2st = 15 if (str(phase) in self.opt_g2) else None
        self.g2_setup(phase)
        L1 = f"L_g2p{phase}_n1"; Lj = f"L_g2p{phase}_j"
        a(f"s_cmp_lt_u32 s{S_W}, 4")
        a(f"s_cbranch_scc1 {L1}")
        for NT in (3, 2):
            self.g2_main(phase, NT, nsteps)
            if self.g2st: self.stamp(self.g2st+2)
            self.g2_epi_loads(phase, NT)
            self.g2_reduce(NT)
            if self.g2st: self.stamp(self.g2st+3)
            self.g2_epi(phase, NT)
            if NT == 3:
                a(f"s_branch {Lj}")
                a.put(L1)
        a.put(Lj)

    def prefetch_wo(self):
        self.g2_wsetup(3, SRD_W, S_SW, 2)
        self.g2_wloads_byclass(3, [(s_, t) for s_ in range(5) for t in range(3)], [(s_, t) for s_ in range(5) for t in range(2)], SRD_W, S_SW, 2, "pfwo")
    def prefetch_w2_rest(self):
        self.g2_wsetup(5, SRD_W, S_SW, 2)
        self.g2_wloads_byclass(5, [(s_, t) for s_ in range(5) for t in range(3)], [], SRD_W, S_SW, 2, "pfw2")

    def p4_epi(self):
        a = self.a
        self.V_T = 2
        T = self.V_T; A = self.V_ACC; CSR = self.V_FR
        B1R = self.V_FR + 32
        a(f"s_cmp_eq_u32 s{S_NT}, 13")
        a(f"s_cselect_b32 s{S_T0}, s{S_WN}, 0")
        a(f"s_cmp_eq_u32 s{S_T0}, 1")
        a(f"s_cbranch_scc1 L_p4_skip")
        self.epi_T_common()
        for g in range(4):
            a(f"ds_read_b128 v[{B1R+4*g}:{B1R+4*g+3}], v{T+7} offset:{ST_B1-ST_CS+32*g}")
        for g in range(4):
            a(f"ds_read_b128 v[{B1R+16+4*g}:{B1R+16+4*g+3}], v{T+1} offset:{ST_B1-ST_CS+32*g}")
        if "rsc1" in self.opt: self.srd(SRD_O, S_WS, OFF_R, SZ_R)
        else: self.srd_twin(S_WS, OFF_R, SZ_R)
        a(f"s_lshl_b32 s{S_T0}, s{S_MT}, 1")
        a(f"s_add_u32 s{S_T0}, s{S_T0}, s{S_WM}")
        a(f"s_mul_i32 s{S_T0}, s{S_T0}, {54*4096}")
        a(f"s_lshl_b32 s{S_T1}, s{S_NT}, 2")
        a(f"s_lshl_b32 s{S_T2}, s{S_WN}, 1")
        a(f"s_add_u32 s{S_T1}, s{S_T1}, s{S_T2}")
        a(f"s_add_u32 s{S_T2}, s{S_T1}, s{S_WM}")
        a(f"s_xor_b32 s{S_T3}, s{S_WM}, 1")
        a(f"s_add_u32 s{S_T3}, s{S_T1}, s{S_T3}")
        a(f"s_lshl_b32 s{S_T2}, s{S_T2}, 12")
        a(f"s_lshl_b32 s{S_T3}, s{S_T3}, 12")
        a(f"s_add_u32 s{S_T4}, s{S_T0}, s{S_T2}")
        a(f"s_add_u32 s{S_T5}, s{S_T0}, s{S_T3}")
        a(f"v_bfe_u32 v{T+8}, v1, 4, 1")
        a(f"v_lshlrev_b32 v{T+8}, 10, v{T+8}")
        a(f"v_and_b32 v{T+9}, 15, v1")
        a(f"v_lshl_add_u32 v{T+8}, v{T+9}, 4, v{T+8}")
        a(f"v_lshl_add_u32 v{T+8}, v{T+6}, 8, v{T+8}")
        a(f"s_waitcnt lgkmcnt(0)")
        for tt in range(2):
            for q in range(2):
                for gp in range(2):
                    for g in (2*gp, 2*gp+1):
                        for i in range(4):
                            r = A + 16*(2*tt+q) + 4*g + i
                            a(f"v_fma_f32 v{r}, v{T+2+2*tt}, v{r}, v{B1R+16*q+4*g+i}")
                            a(f"v_fmac_f32 v{r}, v{T+3+2*tt}, v{CSR+16*q+4*g+i}")
                            a(f"v_max_f32 v{r}, 0, v{r}")
                            a(f"v_mul_f32 v{r}, v{r}, v{r}")
                    r = A + 16*(2*tt+q) + 8*gp
                    a(f"v_cvt_pk_bf16_f32 v{r}, v{r}, v{r+1}")
                    a(f"v_cvt_pk_bf16_f32 v{r+1}, v{r+2}, v{r+3}")
                    a(f"v_cvt_pk_bf16_f32 v{r+2}, v{r+4}, v{r+5}")
                    a(f"v_cvt_pk_bf16_f32 v{r+3}, v{r+6}, v{r+7}")
                    a(f"s_nop 1")
                    a(f"v_permlane32_swap_b32 v{r}, v{r+2}")
                    a(f"v_permlane32_swap_b32 v{r+1}, v{r+3}")
                    if "rsc1" in self.opt:
                        a(f"buffer_store_dwordx4 v[{r}:{r+3}], v{T+8}, s[{SRD_O}:{SRD_O+3}], s{S_T4+q} offen offset:{2048*tt + 512*gp} sc1")
                    else:
                        self.store_twin("buffer_store_dwordx4", f"v[{r}:{r+3}]", T+8, f"s{S_T4+q}", f"offset:{2048*tt + 512*gp}")
        a.put("L_p4_skip")
        self.V_T = 148

    def p4(self):
        a = self.a
        a(f"s_cmp_ge_u32 s{S_GI}, 28")
        a(f"s_cbranch_scc1 L_p4_done")
        a(f"s_cmp_ge_u32 s{S_GI}, 14")
        a(f"s_cselect_b32 s{S_T0}, 1, 0")
        a(f"s_cselect_b32 s{S_T1}, 14, 0")
        a(f"s_sub_u32 s{S_NT}, s{S_GI}, s{S_T1}")
        a(f"s_lshl_b32 s{S_MT}, s{S_GX}, 1")
        a(f"s_add_u32 s{S_MT}, s{S_MT}, s{S_T0}")
        a(f"s_cmp_ge_u32 s{S_NT}, 10")
        a(f"s_cselect_b32 s{S_T0}, 10, 0")
        a(f"s_sub_u32 s{S_KK}, s{S_NT}, s{S_T0}")
        self.aux_A = self.ld_aux
        self.st1 = None
        a(f"s_cmp_lt_u32 s{S_W}, 4")
        a(f"s_cbranch_scc1 L_p4_compute")
        self.V_T = 16
        self.g1_setup_loader(3456)
        self.srd(SRD_A, S_WS, OFF_H, SZ_H)
        self.srd(SRD_W, S_W1, 0, 640*3456)
        for s_ in range(self.NSLOT - 1):
            self.g1_dma_stage(3456)
        T = self.V_T
        self.srd(SRD_T, S_B1, 0, 1728*2)
        a(f"s_sub_u32 s{S_T4}, s{S_W}, 4")
        a(f"s_lshl_b32 s{S_T4}, s{S_T4}, 5")
        a(f"v_and_b32 v{T+10}, 31, v1")
        a(f"v_add_u32 v{T+10}, s{S_T4}, v{T+10}")
        a(f"s_lshl_b32 s{S_T4}, s{S_NT}, 7")
        a(f"v_add_u32 v{T+11}, s{S_T4}, v{T+10}")
        a(f"v_lshlrev_b32 v{T+11}, 1, v{T+11}")
        a(f"buffer_load_ushort v{T+22}, v{T+11}, s[{SRD_T}:{SRD_T+3}], 0 offen")
        self.b1_hook = True
        self.g1_loader(3456, "p4", "part")
        self.b1_hook = False
        self.V_T = 148
        a(f"s_branch L_p4_done")
        a.put("L_p4_compute")
        self.g1_compute("T", "p4")
        self.p4_epi()
        a.put("L_p4_done")

    def code_warm(self):
        a = self.a
        a(f"s_getpc_b64 s[{SRD_T}:{SRD_T+1}]")
        a.put("L_pc_here")
        a(f"s_sub_u32 s{SRD_T}, s{SRD_T}, L_pc_here-{NAME}")
        a(f"s_subb_u32 s{SRD_T+1}, s{SRD_T+1}, 0")
        a(f"s_mov_b32 s{SRD_T+2}, L_end-{NAME}")
        a(f"s_mov_b32 s{SRD_T+3}, 0x20000")
        a(f"v_lshlrev_b32 v254, 7, v0")
        for k in range(self.code_rounds):
            a(f"s_mov_b32 s{S_T0}, {32768*k}")
            a(f"buffer_load_dword v255, v254, s[{SRD_T}:{SRD_T+3}], s{S_T0} offen")

    def epoch_update(self):
        a = self.a
        a(f"s_or_b32 s{S_T0}, s2, s{S_W}")
        a(f"s_cmp_lg_u32 s{S_T0}, 0")
        a(f"s_cbranch_scc1 L_noepoch")
        a(f"v_mov_b32 v2, {OFF_EPOCH}")
        a(f"v_mov_b32 v3, s{S_TAG}")
        a(f"s_mov_b64 exec, 1")
        a(f"buffer_store_dword v3, v2, s[{SRD_F}:{SRD_F+3}], 0 offen sc1")
        a(f"s_mov_b64 exec, -1")
        a.put("L_noepoch")

    def epilogue_stamps(self):
        if not self.stamps: return
        a = self.a
        a(f"s_waitcnt lgkmcnt(0)")
        a(f"s_lshl_b32 s{S_T0}, s2, 3")
        a(f"s_add_u32 s{S_T0}, s{S_T0}, s{S_W}")
        a(f"s_lshl_b32 s{S_T0}, s{S_T0}, 7")
        a(f"s_add_u32 s{S_T0}, s{S_T0}, 0x80000")
        a(f"v_mov_b32 v3, s{S_T0}")
        a(f"s_mov_b64 exec, 1")
        a(f"s_memrealtime s[100:101]")
        a(f"s_waitcnt lgkmcnt(0)")
        a(f"s_sub_u32 s{S_T1}, s100, s88")
        a(f"v_mov_b32 v2, s{S_T1}")
        a(f"buffer_store_dword v2, v3, s[{SRD_F}:{SRD_F+3}], 0 offen offset:{4*31}")
        a(f"v_mov_b32 v2, s88")
        a(f"buffer_store_dword v2, v3, s[{SRD_F}:{SRD_F+3}], 0 offen offset:{4*30}")
        for i in range(self.nstamp):
            a(f"s_sub_u32 s{S_T1}, s{S_STAMP+i}, s{S_STAMP}")
            a(f"v_mov_b32 v2, s{S_T1}")
            a(f"buffer_store_dword v2, v3, s[{SRD_F}:{SRD_F+3}], 0 offen offset:{4*i}")
            a(f"s_nop 1")
        a(f"s_mov_b64 exec, -1")

    def build(self):
        a = self.a
        self.prologue()
        self.p1()
        self.p1_signal()
        if self.stop_after != "p1":
            self.p2()
            if self.stop_after != "p2":
                self.group_barrier(0, "gb23", S_QB, S_HEAD, hook=self.prefetch_wo)
                self.stamp(9)
                self.g2(3)
                self.stamp(10)
                if self.stop_after != "p3":
                    self.group_barrier(1, "gb34", hook=self.prefetch_w2_rest, local=True)
                    self.stamp(11)
                    self.p4()
                    self.stamp(12)
                    if self.stop_after != "p4":
                        self.group_barrier(2, "gb45", local=True)
                        self.stamp(13)
                        self.g2(5)
            a(f"s_waitcnt vmcnt(0)")
            self.stamp(14)
        self.epoch_update()
        self.epilogue_stamps()
        a(f"s_waitcnt vmcnt(0)")
        a.put("L_end")
        a("s_endpgm")
        return a

import struct
def f32(x):
    return struct.unpack("<I", struct.pack("<f", x))[0]

HEADER = open("sequential_preLN__mha_block__dense_activation_squared_relu__prompt.s.ref").read().split("; Override launch geometry")[0]

def wrap(body, lds=163840, vgpr=256):
    s = HEADER
    s += f"; @launch grid=(256,1,1) block=(512,1,1) lds={lds}\n"
    s += '.amdgcn_target "amdgcn-amd-amdhsa--gfx950"\n.text\n'
    s += f".globl {NAME}\n.p2align 8\n.type {NAME},@function\n{NAME}:\n"
    s += body
    s += f"""
.section .rodata,"a"
.p2align 6
.amdhsa_kernel {NAME}
  .amdhsa_next_free_vgpr {vgpr}
  .amdhsa_next_free_sgpr 102
  .amdhsa_accum_offset {vgpr}
  .amdhsa_group_segment_fixed_size 0
  .amdhsa_kernarg_size 88
  .amdhsa_user_sgpr_count 2
  .amdhsa_user_sgpr_kernarg_segment_ptr 1
  .amdhsa_system_sgpr_workgroup_id_x 1
.end_amdhsa_kernel
"""
    return s

if __name__ == "__main__":
    import argparse
    ap = argparse.ArgumentParser()
    ap.add_argument("-o", default="out.s")
    ap.add_argument("--stop", default=None)
    ap.add_argument("--stamps", action="store_true")
    ap.add_argument("--opt", default="")
    ap.add_argument("--plow", default=None)
    args = ap.parse_args()
    g = Gen(stop_after=args.stop, stamps=args.stamps, opt=[o for o in args.opt.split(',') if o])
    if "low2" in g.opt: g.low_tiles = 2
    if "low3" in g.opt: g.low_tiles = 3
    if args.plow is not None: g.prio_low = tuple(int(x) for x in args.plow.split(",") if x)
    a = g.build()
    rep = check(a.L)
    for r in rep: print(r)
    open(args.o, "w").write(wrap(a.text()))
    print("wrote", args.o, len(a.L), "lines;", len(rep), "hazards")
```

```python
import sys, math
sys.path.insert(0, "gen")
from asmlib import Asm, vr, sr, check

NAME = "sequential_preLN__mha_block__dense_activation_squared_relu__prompt_kernel"

OFF_EPOCH = 0
OFF_ALL   = 0x1000
OFF_GB    = 0x50000
OFF_MB1   = 65536
OFF_GR    = 0x68000
OFF_PST   = 0xC0000
OFF_Q     = 0x100000
OFF_KV    = 0x400000
OFF_O     = 0xA00000
OFF_H     = 0xD00000
OFF_R     = 0x1000000
OFF_WOP   = 0x1700000
OFF_W2P   = 0x1800000
SZ_Q = 32*64*1280
SZ_KV = 32*64*2560
SZ_O = 32*20*4096
SZ_H = 2048*1280
SZ_R = 32*54*4096
SZ_WOP = 20*40*1024
SZ_W2P = 54*40*1024

S_KA = 0; S_WG = 2; S_W = 3
S_X = 4; S_WQKV = 6; S_WO = 8; S_W1 = 12; S_B1 = 14; S_W2 = 16; S_B2 = 18; S_OUT = 20; S_DBG = 22; S_WS = 24
S_TAG = 26; S_GX = 27
SRD_A = 28; SRD_W = 32; SRD_O = 36; SRD_F = 40; SRD_T = 44
S_GI = 48
S_MT = 49; S_NT = 50; S_KK = 51; S_CNT = 52; S_SLOT = 53
S_SA = 54; S_SW = 55; S_T0 = 56; S_T1 = 57; S_T2 = 58; S_T3 = 59; S_T4 = 60; S_T5 = 61
S_M0A = 62; S_WM = 63; S_WN = 64; S_DELTA = 65; S_ONES = 66; S_ROT4 = 67; S_RLW = 68; S_RSLOT = 69; S_HEAD = 66; S_QB = 67
S_STAMP = 70
S_SAVE = 90
S_XCC = 10; S_FAST = 11
SRD_P = 96

LDS_STATS = 131072
ST_PX, ST_PQ, ST_PC, ST_AA, ST_BB, ST_CS, ST_B1 = 0, 4096, 8192, 9216, 9728, 10240, 10752
LDS_RL = LDS_STATS + 12288

class Gen:
    def __init__(self, stop_after=None, stamps=False, opt=()):
        self.opt = set(opt)
        self.a = Asm()
        self.stop_after = stop_after
        self.stamps = stamps
        self.nstamp = 0
        self.code_rounds = 2
        self.fast_aux = "nt" if "fnt" in self.opt else ("sc0" if "fsc0" in self.opt else ("sc0 nt" if "fsc0nt" in self.opt else ""))
        self.opt_g2 = "3" if "g2s3" in self.opt else ("5" if "g2s5" in self.opt else "")
        self.ld_aux = "" if "plainld" in self.opt else "sc1"

    def srd(self, dst, base_s, off, size):
        a = self.a
        if off:
            a(f"s_add_u32 s{dst}, s{base_s}, {hex(off)}")
            a(f"s_addc_u32 s{dst+1}, s{base_s+1}, 0")
        else:
            a(f"s_mov_b32 s{dst}, s{base_s}")
            a(f"s_mov_b32 s{dst+1}, s{base_s+1}")
        a(f"s_mov_b32 s{dst+2}, {hex(size)}")
        a(f"s_mov_b32 s{dst+3}, 0x20000")

    def csel(self, dst, x, y):
        self.a(f"s_mov_b32 s{dst}, {y}")
        self.a(f"s_cselect_b32 s{dst}, {x}, s{dst}")

    def withT(self, T, fn, *args, **kw):
        old = self.V_T; self.V_T = T
        r = fn(*args, **kw)
        self.V_T = old
        return r

    def srd_twin(self, base_s, off, size):
        a = self.a
        self.srd(SRD_O, base_s, off, size)
        a(f"s_mov_b32 s{SRD_P}, s{SRD_O}")
        a(f"s_mov_b32 s{SRD_P+1}, s{SRD_O+1}")
        a(f"s_mov_b32 s{SRD_P+3}, 0x20000")
        a(f"s_cmp_eq_u32 s{S_FAST}, 1")
        a(f"s_cselect_b32 s{SRD_P+2}, s{SRD_O+2}, 0")
        a(f"s_cselect_b32 s{SRD_O+2}, 0, s{SRD_O+2}")
    def store_twin(self, op, data, vaddr, soff, extra=""):
        a = self.a
        a(f"{op} {data}, v{vaddr}, s[{SRD_O}:{SRD_O+3}], {soff} offen {extra} sc1")
        a(f"{op} {data}, v{vaddr}, s[{SRD_P}:{SRD_P+3}], {soff} offen {extra} {self.fast_aux}")

    def set_exec(self, mask):
        mask = int(str(mask), 0) & 0xFFFFFFFFFFFFFFFF
        if mask == 0xFFFFFFFFFFFFFFFF: self.a("s_mov_b64 exec, -1")
        elif mask < 0x80000000: self.a(f"s_mov_b64 exec, {hex(mask)}")
        else:
            self.a(f"s_mov_b32 exec_lo, {hex(mask & 0xffffffff)}")
            self.a(f"s_mov_b32 exec_hi, {hex(mask >> 32)}")

    def stamp(self, i=None):
        if not self.stamps: return
        if i is None: return
        self.nstamp = max(self.nstamp, i + 1)
        self.a(f"s_memtime s[100:101]")
        self.a(f"s_waitcnt lgkmcnt(0)")
        self.a(f"s_mov_b32 s{S_STAMP+i}, s100")

    def prologue(self):
        a = self.a
        a(f"s_cmp_ge_u32 s2, 256")
        a(f"s_cbranch_scc1 L_end")
        self.stamp(0)
        if self.stamps: a(f"s_memrealtime s[88:89]")
        a(f"s_load_dwordx16 s[4:19], s[0:1], 0")
        a(f"s_load_dwordx4 s[20:23], s[0:1], 64")
        a(f"s_load_dwordx2 s[24:25], s[0:1], 80")
        a(f"v_lshrrev_b32 v2, 6, v0")
        a(f"v_and_b32 v1, 63, v0")
        a(f"v_readfirstlane_b32 s{S_W}, v2")
        a(f"s_and_b32 s{S_GX}, s2, 7")
        a(f"s_lshr_b32 s{S_GI}, s2, 3")
        a(f"s_mov_b32 s{S_ONES}, 0x3f803f80")
        a(f"s_lshr_b32 s{S_WM}, s{S_W}, 2")
        a(f"s_and_b32 s{S_WN}, s{S_W}, 3")

    def finish_tag(self):
        a = self.a
        a(f"s_waitcnt lgkmcnt(0)")
        a(f"s_mul_i32 s{S_TAG}, s{S_TAG}, 0x9E3779B1")
        a(f"s_add_u32 s{S_TAG}, s{S_TAG}, 0x7F4A7C15")

    V_OFFA = 2; V_OFFW = 3
    V_AA = 2
    V_AWA = 6; V_AWB = 7
    V_CSA = 8
    V_CSD = 12
    V_FR = 16
    V_ACC = 80
    V_T = 148
    V_LA = 4
    V_LS = 8
    V_LD = 20
    V_LU = 40
    NSLOT = 4

    def g1_setup_loader(self, WS):
        a = self.a
        T = self.V_T
        a(f"s_sub_u32 s{S_T4}, s{S_W}, 4")
        a(f"v_lshrrev_b32 v{T}, 4, v1")
        a(f"s_lshl_b32 s{S_T0}, s{S_T4}, 2")
        a(f"v_add_u32 v{T+1}, s{S_T0}, v{T}")
        a(f"v_and_b32 v{T+1}, 7, v{T+1}")
        a(f"v_and_b32 v{T+2}, 7, v1")
        a(f"v_xor_b32 v{T+1}, v{T+1}, v{T+2}")
        a(f"v_lshlrev_b32 v{T+1}, 4, v{T+1}")
        a(f"v_lshrrev_b32 v{T+2}, 3, v1")
        a(f"v_mul_u32_u24 v{T+2}, 1280, v{T+2}")
        a(f"v_add_u32 v{self.V_OFFA}, v{T+1}, v{T+2}")
        a(f"v_lshlrev_b32 v{T+1}, 2, v{T}")
        a(f"v_and_b32 v{T+2}, 15, v1")
        a(f"v_xor_b32 v{T+1}, v{T+1}, v{T+2}")
        a(f"v_lshlrev_b32 v{T+1}, 4, v{T+1}")
        a(f"v_mul_u32_u24 v{T+2}, {WS}, v{T}")
        a(f"v_add_u32 v{self.V_OFFW}, v{T+1}, v{T+2}")
        a(f"s_lshl_b32 s{S_T0}, s{S_MT}, 7")
        a(f"s_lshl_b32 s{S_T1}, s{S_T4}, 3")
        a(f"s_add_u32 s{S_T0}, s{S_T0}, s{S_T1}")
        a(f"s_mul_i32 s{S_SA}, s{S_T0}, 1280")
        a(f"s_mul_i32 s{S_T0}, s{S_T4}, {4*WS}")
        a(f"s_lshl_b32 s{S_T1}, s{S_NT}, 8")
        a(f"s_add_u32 s{S_SW}, s{S_T0}, s{S_T1}")
        a(f"s_lshl_b32 s{S_M0A}, s{S_T4}, 10")
        a(f"s_mov_b32 s{S_SLOT}, 0")

    def g1_dma1(self, WS, q):
        a = self.a
        if q == 0:
            a(f"s_lshl_b32 s{S_T2}, s{S_KK}, 7")
            a(f"s_add_u32 s{S_T2}, s{S_T2}, s{S_SA}")
            a(f"s_add_u32 m0, s{S_SLOT}, s{S_M0A}")
            a(f"s_mul_i32 s{S_T3}, s{S_KK}, {64*WS}")
        elif q == 4:
            a(f"s_add_u32 s{S_T2}, s{S_T3}, s{S_SW}")
            a(f"s_add_u32 m0, m0, 4096")
            a(f"s_nop 0")
        else:
            a(f"s_add_u32 m0, m0, 4096")
            a(f"s_add_u32 s{S_T2}, s{S_T2}, {32*1280 if q < 4 else 16*WS}")
        if q < 4:
            a(f"buffer_load_dwordx4 v{self.V_OFFA}, s[{SRD_A}:{SRD_A+3}], s{S_T2} offen {self.aux_A} lds")
        else:
            a(f"buffer_load_dwordx4 v{self.V_OFFW}, s[{SRD_W}:{SRD_W+3}], s{S_T2} offen lds")
        if q == 7:
            a(f"s_add_u32 s{S_KK}, s{S_KK}, 1")
            a(f"s_cmp_eq_u32 s{S_KK}, 10")
            a(f"s_cselect_b32 s{S_KK}, 0, s{S_KK}")
            a(f"s_add_u32 s{S_SLOT}, s{S_SLOT}, 32768")
            a(f"s_cmp_eq_u32 s{S_SLOT}, {self.NSLOT*32768}")
            a(f"s_cselect_b32 s{S_SLOT}, 0, s{S_SLOT}")

    def g1_dma_stage(self, WS):
        for q in range(8): self.g1_dma1(WS, q)

    def slot_next(self):
        a = self.a
        a(f"s_add_u32 s{S_RSLOT}, s{S_RSLOT}, 1")
        a(f"s_cmp_eq_u32 s{S_RSLOT}, {self.NSLOT}")
        a(f"s_cselect_b32 s{S_RSLOT}, 0, s{S_RSLOT}")
        a(f"s_cmp_eq_u32 s{S_RSLOT}, {self.NSLOT-1}")
        self.csel(S_DELTA, hex((-(self.NSLOT-1)*32768) & 0xffffffff), 32768)

    def g1_loader(self, WS, tag, mode):
        a = self.a
        T = self.V_T
        pre = self.NSLOT - 1
        nx = 1 if mode == "gran" else 4
        a(f"s_waitcnt vmcnt({8*(pre-1)})")
        if "p1s" in self.opt and tag == "p1": self.stamp(18)
        a(f"s_barrier")
        a(f"s_mov_b32 s{S_CNT}, 0")
        L1 = f"L_{tag}_lloop"
        a.put(L1)
        a(f"s_add_u32 s{S_CNT}, s{S_CNT}, 1")
        a(f"s_waitcnt vmcnt({8*(pre-2)})")
        a(f"s_barrier")
        for q in range(8):
            self.g1_dma1(WS, q)
        a(f"s_cmp_lt_u32 s{S_CNT}, {10-pre}")
        a(f"s_cbranch_scc1 {L1}")
        a(f"s_sub_u32 s{S_T4}, s{S_W}, 4")
        a(f"s_lshl_b32 s{S_T0}, s{S_T4}, 5")
        a(f"v_and_b32 v{T}, 31, v1")
        a(f"v_add_u32 v{T}, s{S_T0}, v{T}")
        a(f"s_lshl_b32 s{S_T1}, s{S_MT}, 7")
        a(f"v_add_u32 v{T+1}, s{S_T1}, v{T}")
        if mode == "gran":
            a(f"v_lshlrev_b32 v{T+1}, 4, v{T+1}")
            a(f"v_add_u32 v{T+1}, {hex(OFF_GR)}, v{T+1}")
            a(f"buffer_load_dwordx4 v[{T+4}:{T+7}], v{T+1}, s[{SRD_F}:{SRD_F+3}], 0 offen sc1")
        else:
            a(f"v_lshlrev_b32 v{T+1}, 7, v{T+1}")
            a(f"v_lshrrev_b32 v{T+2}, 5, v1")
            a(f"v_lshl_add_u32 v{T+1}, v{T+2}, 6, v{T+1}")
            a(f"v_add_u32 v{T+1}, {hex(OFF_PST)}, v{T+1}")
            for q in range(4):
                a(f"buffer_load_dwordx4 v[{T+4+4*q}:{T+7+4*q}], v{T+1}, s[{SRD_F}:{SRD_F+3}], 0 offen offset:{16*q} {self.ld_aux}")
        a(f"s_waitcnt vmcnt({8+nx})")
        a(f"s_barrier")
        a(f"s_waitcnt vmcnt({nx})")
        a(f"s_barrier")
        a(f"s_barrier")
        a(f"s_waitcnt vmcnt(0)")
        if mode == "gran":
            Lp = f"L_{tag}_gpoll"; Lo = f"L_{tag}_gok"
            a(f"s_mov_b32 s{S_T0}, 0")
            a.put(Lp)
            a(f"v_cmp_ne_u32 vcc, s{S_TAG}, v{T+6}")
            a(f"v_cmp_ne_u32 s[{S_SAVE}:{S_SAVE+1}], s{S_TAG}, v{T+7}")
            a(f"s_nop 1")
            a(f"s_or_b64 vcc, vcc, s[{S_SAVE}:{S_SAVE+1}]")
            a(f"s_cbranch_vccz {Lo}")
            a(f"s_add_u32 s{S_T0}, s{S_T0}, 1")
            a(f"s_cmp_ge_u32 s{S_T0}, 0x40000")
            a(f"s_cbranch_scc1 {Lo}")
            a(f"buffer_load_dwordx4 v[{T+4}:{T+7}], v{T+1}, s[{SRD_F}:{SRD_F+3}], 0 offen sc1")
            a(f"s_waitcnt vmcnt(0)")
            a(f"s_branch {Lp}")
            a.put(Lo)
            A_, B_ = T+4, T+5
        else:
            for q in range(1, 4):
                for i in range(4):
                    a(f"v_add_f32 v{T+4+i}, v{T+4+i}, v{T+4+4*q+i}")
            a(f"v_add_f32 v{T+4}, v{T+4}, v{T+6}")
            a(f"v_add_f32 v{T+5}, v{T+5}, v{T+7}")
            a(f"v_mov_b32 v{T+6}, v{T+4}")
            a(f"v_mov_b32 v{T+7}, v{T+5}")
            a(f"s_nop 1")
            a(f"v_permlane32_swap_b32 v{T+6}, v{T+4}")
            a(f"v_permlane32_swap_b32 v{T+7}, v{T+5}")
            a(f"s_nop 1")
            a(f"v_add_f32 v{T+4}, v{T+4}, v{T+6}")
            a(f"v_add_f32 v{T+5}, v{T+5}, v{T+7}")
            self.ab_from_sums(T+4, T+5, T+8)
            A_, B_ = T+9, T+8
        a(f"v_lshlrev_b32 v{T}, 2, v{T}")
        a(f"v_add_u32 v{T}, {LDS_STATS}, v{T}")
        a(f"ds_write_b32 v{T}, v{A_} offset:{ST_AA}")
        a(f"ds_write_b32 v{T}, v{B_} offset:{ST_BB}")
        if getattr(self, "b1_hook", False):
            a(f"v_lshlrev_b32 v{T+22}, 16, v{T+22}")
            a(f"ds_write_b32 v{T}, v{T+22} offset:{ST_B1}")
        a(f"s_waitcnt lgkmcnt(0)")
        a(f"s_barrier")

    def ab_from_sums(self, sx, sq, o):
        a = self.a
        a(f"v_mul_f32 v{o}, {hex(f32(1.0/640))}, v{sx}")
        a(f"v_mul_f32 v{o+1}, {hex(f32(1.0/640))}, v{sq}")
        a(f"v_fma_f32 v{o+1}, -v{o}, v{o}, v{o+1}")
        a(f"v_max_f32 v{o+1}, 0, v{o+1}")
        a(f"v_add_f32 v{o+1}, {hex(f32(1e-5))}, v{o+1}")
        a(f"v_rsq_f32 v{o+1}, v{o+1}")
        a(f"s_nop 0")
        a(f"v_mul_f32 v{o}, v{o}, v{o+1}")
        a(f"v_sub_f32 v{o}, 0, v{o}")

    def xstats_publish(self):
        a = self.a
        T = self.V_T
        self.srd(SRD_T, S_X, 0, 2048*1280)
        a(f"s_lshl_b32 s{S_T0}, s2, 3")
        a(f"s_lshl_b32 s{S_T1}, s{S_W}, 1")
        a(f"s_add_u32 s{S_T0}, s{S_T0}, s{S_T1}")
        a(f"v_lshrrev_b32 v{T}, 5, v1")
        a(f"v_add_u32 v{T}, s{S_T0}, v{T}")
        a(f"v_mul_u32_u24 v{T+1}, 1280, v{T}")
        a(f"v_and_b32 v{T+2}, 31, v1")
        a(f"v_lshl_add_u32 v{T+1}, v{T+2}, 3, v{T+1}")
        D = T + 4
        for j in range(5):
            a(f"buffer_load_dwordx2 v[{D+2*j}:{D+2*j+1}], v{T+1}, s[{SRD_T}:{SRD_T+3}], 0 offen offset:{256*j}")
        return D

    def xstats_finish(self, D):
        a = self.a
        T = self.V_T
        S = T + 16
        a(f"v_mov_b32 v{S}, 0"); a(f"v_mov_b32 v{S+1}, 0")
        a(f"s_waitcnt vmcnt(0)")
        for r in range(10):
            a(f"v_lshlrev_b32 v{S+2}, 16, v{D+r}")
            a(f"v_and_b32 v{S+3}, 0xffff0000, v{D+r}")
            a(f"v_add_f32 v{S}, v{S}, v{S+2}")
            a(f"v_fmac_f32 v{S+1}, v{S+2}, v{S+2}")
            a(f"v_add_f32 v{S}, v{S}, v{S+3}")
            a(f"v_fmac_f32 v{S+1}, v{S+3}, v{S+3}")
        for ctl in ("row_shr:1", "row_shr:2", "row_shr:4", "row_shr:8"):
            a(f"s_nop 1")
            a(f"v_add_f32_dpp v{S}, v{S}, v{S} {ctl} row_mask:0xf bank_mask:0xf bound_ctrl:0")
            a(f"v_add_f32_dpp v{S+1}, v{S+1}, v{S+1} {ctl} row_mask:0xf bank_mask:0xf bound_ctrl:0")
        a(f"s_nop 1")
        a(f"v_add_f32_dpp v{S}, v{S}, v{S} row_bcast:15 row_mask:0xa bank_mask:0xf")
        a(f"v_add_f32_dpp v{S+1}, v{S+1}, v{S+1} row_bcast:15 row_mask:0xa bank_mask:0xf")
        a(f"s_nop 1")
        self.ab_from_sums(S, S+1, S+5)
        a(f"v_mov_b32 v{S+8}, v{S+6}")
        a(f"v_mov_b32 v{S+9}, v{S+5}")
        self.tag_ready()
        a(f"v_mov_b32 v{S+10}, s{S_TAG}")
        a(f"v_mov_b32 v{S+11}, s{S_TAG}")
        a(f"v_lshlrev_b32 v{T}, 4, v{T}")
        a(f"v_add_u32 v{T}, {hex(OFF_GR)}, v{T}")
        a(f"s_mov_b32 exec_lo, 0x80000000")
        a(f"s_mov_b32 exec_hi, 0x80000000")
        a(f"buffer_store_dwordx4 v[{S+8}:{S+11}], v{T}, s[{SRD_F}:{SRD_F+3}], 0 offen sc1")
        a(f"s_mov_b64 exec, -1")

    def tag_ready(self):
        a = self.a
        a(f"s_waitcnt lgkmcnt(0)")
        a(f"s_getreg_b32 s{S_XCC}, hwreg(HW_REG_XCC_ID, 0, 4)")
        a(f"s_mov_b32 s{S_FAST}, 0")
        a(f"s_mul_i32 s{S_TAG}, s{S_TAG}, 0x9E3779B1")
        a(f"s_add_u32 s{S_TAG}, s{S_TAG}, 0x7F4A7C15")

    def g1_setup_compute(self):
        a = self.a
        T = self.V_FR
        a(f"s_lshr_b32 s{S_WM}, s{S_W}, 1")
        a(f"s_and_b32 s{S_WN}, s{S_W}, 1")
        a(f"v_and_b32 v{T}, 31, v1")
        a(f"s_lshl_b32 s{S_T0}, s{S_WM}, 6")
        a(f"v_add_u32 v{T+1}, s{S_T0}, v{T}")
        a(f"v_lshlrev_b32 v{T+1}, 7, v{T+1}")
        a(f"v_bfe_u32 v{T+2}, v{T}, 1, 3")
        a(f"v_lshrrev_b32 v{T+3}, 5, v1")
        a(f"v_xor_b32 v{T+2}, v{T+2}, v{T+3}")
        for j in range(4):
            a(f"v_xor_b32 v{self.V_AA+j}, {2*j}, v{T+2}")
            a(f"v_lshlrev_b32 v{self.V_AA+j}, 4, v{self.V_AA+j}")
            a(f"v_add_u32 v{self.V_AA+j}, v{self.V_AA+j}, v{T+1}")
        a(f"v_and_b32 v{T+4}, 15, v1")
        a(f"v_lshrrev_b32 v{T+5}, 2, v{T+4}")
        a(f"v_lshlrev_b32 v{T+6}, 3, v{T+3}")
        a(f"v_add_u32 v{T+6}, v{T+6}, v{T+5}")
        a(f"v_lshlrev_b32 v{T+6}, 8, v{T+6}")
        a(f"v_bfe_u32 v{T+7}, v1, 4, 1")
        a(f"v_lshlrev_b32 v{T+7}, 1, v{T+7}")
        a(f"v_bfe_u32 v{T+8}, v1, 1, 1")
        a(f"v_add_u32 v{T+7}, v{T+7}, v{T+8}")
        a(f"s_lshl_b32 s{S_T0}, s{S_WN}, 3")
        a(f"s_lshl_b32 s{S_T1}, s{S_WM}, 2")
        a(f"s_add_u32 s{S_T0}, s{S_T0}, s{S_T1}")
        a(f"v_add_u32 v{T+7}, s{S_T0}, v{T+7}")
        a(f"v_lshlrev_b32 v{T+5}, 2, v{T+5}")
        a(f"v_xor_b32 v{T+7}, v{T+7}, v{T+5}")
        a(f"v_lshlrev_b32 v{T+7}, 4, v{T+7}")
        a(f"v_and_b32 v{T+8}, 1, v1")
        a(f"v_lshlrev_b32 v{T+8}, 3, v{T+8}")
        a(f"v_add_u32 v{T+6}, v{T+6}, v{T+7}")
        a(f"v_add_u32 v{T+6}, v{T+6}, v{T+8}")
        a(f"v_add_u32 v{self.V_AWA}, 16384, v{T+6}")
        a(f"v_xor_b32 v{self.V_AWB}, 64, v{self.V_AWA}")
        a(f"v_and_b32 v{T}, 15, v1")
        a(f"v_bfe_u32 v{T+1}, v1, 4, 1")
        a(f"v_cmp_eq_u32 vcc, v{T}, v{T+1}")
        a(f"v_mov_b32 v{T+2}, 0x3f803f80")
        a(f"s_nop 1")
        a(f"v_cndmask_b32 v{self.V_CSA}, 0, v{T+2}, vcc")
        for r in range(1, 4):
            a(f"v_mov_b32 v{self.V_CSA+r}, v{self.V_CSA}")
        for r in range(4):
            a(f"v_mov_b32 v{self.V_CSD+r}, 0")
        for r in range(64):
            a(f"v_mov_b32 v{self.V_ACC+r}, 0")

    def g1_read1(self, j, q):
        if "noreads" in self.opt: return
        a = self.a
        F = self.V_FR + 16*j
        if q == 0: a(f"ds_read_b128 v[{F}:{F+3}], v{self.V_AA+j}")
        elif q == 1: a(f"ds_read_b128 v[{F+4}:{F+7}], v{self.V_AA+j} offset:4096")
        else:
            ad = self.V_AWA if q == 2 else self.V_AWB
            R = F + 8 + 4*(q-2)
            a(f"ds_read_b64_tr_b16 v[{R}:{R+1}], v{ad} offset:{4096*j}")
            a(f"ds_read_b64_tr_b16 v[{R+2}:{R+3}], v{ad} offset:{4096*j+1024}")

    def g1_mfma1(self, j, orient, tt, q):
        if "nomfma" in self.opt: return
        a = self.a
        F = self.V_FR + 16*j
        X = f"v[{F+4*tt}:{F+4*tt+3}]"; W = f"v[{F+8+4*q}:{F+11+4*q}]"
        A = self.V_ACC + 16*(2*tt+q)
        D = f"v[{A}:{A+15}]"
        if orient == "T": a(f"v_mfma_f32_32x32x16_bf16 {D}, {W}, {X}, {D}")
        else:             a(f"v_mfma_f32_32x32x16_bf16 {D}, {X}, {W}, {D}")

    def g1_colsum(self, j):
        if "nostats" in self.opt: return
        F = self.V_FR + 16*j; D = self.V_CSD
        self.a(f"v_mfma_f32_16x16x32_bf16 v[{D}:{D+3}], v[{self.V_CSA}:{self.V_CSA+3}], v[{F+8}:{F+11}], v[{D}:{D+3}]")

    def g1_adv(self):
        a = self.a
        for r in list(range(self.V_AA, self.V_AA+4)) + [self.V_AWA, self.V_AWB]:
            a(f"v_add_u32 v{r}, s{S_DELTA}, v{r}")

    def g1_cstep(self, j, orient, with_reads):
        a = self.a
        self.g1_mfma1(j, orient, 0, 0)
        self.g1_colsum(j)
        self.g1_mfma1(j, orient, 1, 0)
        if with_reads: self.g1_read1(j, 2)
        self.g1_mfma1(j, orient, 0, 1)
        if with_reads: self.g1_read1(j, 0)
        self.g1_mfma1(j, orient, 1, 1)
        if with_reads:
            self.g1_read1(j, 1); self.g1_read1(j, 3)

    def g1_compute(self, orient, tag):
        a = self.a
        self.g1_setup_compute()
        a(f"s_barrier")
        self.stamp(self.st1)
        for j in range(4):
            for q in range(4): self.g1_read1(j, q)
        a(f"s_mov_b32 s{S_DELTA}, 32768")
        self.g1_adv()
        a(f"s_mov_b32 s{S_CNT}, 0")
        a(f"s_mov_b32 s{S_RSLOT}, 0")
        L1 = f"L_{tag}_cloop"
        a.put(L1)
        a(f"s_waitcnt lgkmcnt(12)")
        self.g1_cstep(0, orient, False)
        a(f"s_add_u32 s{S_CNT}, s{S_CNT}, 1")
        self.slot_next()
        a(f"s_barrier")
        for q in (2, 0, 1, 3): self.g1_read1(0, q)
        self.g1_cstep(1, orient, True)
        a(f"s_waitcnt lgkmcnt(12)")
        self.g1_cstep(2, orient, True)
        self.g1_cstep(3, orient, True)
        self.g1_adv()
        a(f"s_cmp_lt_u32 s{S_CNT}, 10")
        a(f"s_cbranch_scc1 {L1}")
        a(f"s_waitcnt lgkmcnt(0)")
        T = self.V_FR
        a(f"s_lshl_b32 s{S_T0}, s{S_WN}, 8")
        a(f"s_lshl_b32 s{S_T1}, s{S_WM}, 7")
        a(f"s_add_u32 s{S_T0}, s{S_T0}, s{S_T1}")
        a(f"s_add_u32 s{S_T0}, s{S_T0}, {LDS_STATS+ST_CS}")
        a(f"v_lshlrev_b32 v{T}, 2, v1")
        a(f"v_add_u32 v{T}, s{S_T0}, v{T}")
        a(f"s_nop 4")
        a(f"s_mov_b64 exec, 0xffff")
        a(f"ds_write_b32 v{T}, v{self.V_CSD}")
        a(f"ds_write_b32 v{T}, v{self.V_CSD+1} offset:64")
        a(f"s_mov_b64 exec, -1")
        a(f"s_waitcnt lgkmcnt(0)")
        a(f"s_barrier")

    def magic_div5(self, dst, src):
        self.a(f"v_mul_u32_u24 v{dst}, 52429, v{src}")
        self.a(f"v_lshrrev_b32 v{dst}, 18, v{dst}")
    def magic_div20(self, dst, src):
        self.a(f"v_mul_u32_u24 v{dst}, 52429, v{src}")
        self.a(f"v_lshrrev_b32 v{dst}, 20, v{dst}")

    def epi_T_common(self):
        a = self.a
        T = self.V_T; CSR = self.V_FR
        a(f"v_and_b32 v{T}, 31, v1")
        a(f"s_lshl_b32 s{S_T0}, s{S_WM}, 6")
        a(f"v_add_u32 v{T+1}, s{S_T0}, v{T}")
        a(f"v_lshlrev_b32 v{T+1}, 2, v{T+1}")
        a(f"v_add_u32 v{T+1}, {LDS_STATS}, v{T+1}")
        a(f"ds_read_b32 v{T+2}, v{T+1} offset:{ST_AA}")
        a(f"ds_read_b32 v{T+3}, v{T+1} offset:{ST_BB}")
        a(f"ds_read_b32 v{T+4}, v{T+1} offset:{ST_AA+128}")
        a(f"ds_read_b32 v{T+5}, v{T+1} offset:{ST_BB+128}")
        a(f"v_lshrrev_b32 v{T+6}, 5, v1")
        a(f"s_lshl_b32 s{S_T0}, s{S_WN}, 8")
        a(f"s_lshl_b32 s{S_T1}, s{S_WM}, 7")
        a(f"s_add_u32 s{S_T0}, s{S_T0}, s{S_T1}")
        a(f"s_add_u32 s{S_T0}, s{S_T0}, {LDS_STATS+ST_CS}")
        a(f"v_lshlrev_b32 v{T+7}, 4, v{T+6}")
        a(f"v_add_u32 v{T+7}, s{S_T0}, v{T+7}")
        a(f"v_xor_b32 v{T+1}, 128, v{T+7}")
        for g in range(4):
            a(f"ds_read_b128 v[{CSR+4*g}:{CSR+4*g+3}], v{T+7} offset:{32*g}")
        for g in range(4):
            a(f"ds_read_b128 v[{CSR+16+4*g}:{CSR+16+4*g+3}], v{T+1} offset:{32*g}")

    def p1_epi_T(self):
        a = self.a
        T = self.V_T; A = self.V_ACC; CSR = self.V_FR
        self.epi_T_common()
        a(f"s_cmp_lt_u32 s{S_NT}, 5")
        a(f"s_cselect_b32 s{S_T0}, {hex(f32(math.log2(math.e)/math.sqrt(20.0)))}, 1.0")
        self.csel(S_T1, 81920, 163840)
        self.csel(S_T2, 1280, 2560)
        a(f"s_cselect_b32 s{S_T3}, 0, 5")
        self.csel(S_T4, hex(OFF_Q), hex(OFF_KV))
        self.csel(S_T5, hex(SZ_Q), hex(SZ_KV))
        a(f"s_add_u32 s{SRD_O}, s{S_WS}, s{S_T4}")
        a(f"s_addc_u32 s{SRD_O+1}, s{S_WS+1}, 0")
        a(f"s_mov_b32 s{SRD_O+2}, s{S_T5}")
        a(f"s_mov_b32 s{SRD_O+3}, 0x20000")
        a(f"s_sub_u32 s{S_T3}, s{S_NT}, s{S_T3}")
        a(f"s_lshl_b32 s{S_T3}, s{S_T3}, 5")
        a(f"s_lshl_b32 s{S_T4}, s{S_WN}, 4")
        a(f"s_add_u32 s{S_T3}, s{S_T3}, s{S_T4}")
        a(f"s_lshl_b32 s{S_T4}, s{S_WM}, 3")
        AD = T + 8
        for q in range(2):
            for g in range(4):
                if q == 0:
                    a(f"s_add_u32 s{S_T5}, s{S_T3}, s{S_T4}")
                else:
                    a(f"s_xor_b32 s{S_T5}, s{S_T4}, 8")
                    a(f"s_add_u32 s{S_T5}, s{S_T5}, s{S_T3}")
                a(f"s_add_u32 s{S_T5}, s{S_T5}, {2*g}")
                a(f"v_add_u32 v{T+16}, s{S_T5}, v{T+6}")
                self.magic_div5(T+17, T+16)
                a(f"v_mul_u32_u24 v{T+18}, 5, v{T+17}")
                a(f"v_sub_u32 v{T+18}, v{T+16}, v{T+18}")
                a(f"v_mul_lo_u32 v{T+17}, v{T+17}, s{S_T1}")
                a(f"v_lshlrev_b32 v{T+18}, 8, v{T+18}")
                a(f"v_add_u32 v{T+17}, v{T+17}, v{T+18}")
                a(f"v_lshl_add_u32 v{AD+4*q+g}, v{T}, 3, v{T+17}")
        a(f"s_lshl_b32 s{S_T4}, s{S_MT}, 2")
        a(f"s_lshl_b32 s{S_T5}, s{S_WM}, 1")
        a(f"s_add_u32 s{S_T4}, s{S_T4}, s{S_T5}")
        a(f"s_mul_i32 s{S_T4}, s{S_T4}, s{S_T2}")
        a(f"s_add_u32 s{S_T5}, s{S_T4}, s{S_T2}")
        a(f"s_waitcnt lgkmcnt(0)")
        for tt in range(2):
            a(f"v_mul_f32 v{T+2+2*tt}, s{S_T0}, v{T+2+2*tt}")
            a(f"v_mul_f32 v{T+3+2*tt}, s{S_T0}, v{T+3+2*tt}")
        for tt in range(2):
            for q in range(2):
                for g in range(4):
                    for i in range(4):
                        r = A + 16*(2*tt+q) + 4*g + i
                        a(f"v_mul_f32 v{r}, v{T+2+2*tt}, v{r}")
                        a(f"v_fmac_f32 v{r}, v{T+3+2*tt}, v{CSR+16*q+4*g+i}")
                    r = A + 16*(2*tt+q) + 4*g
                    a(f"v_cvt_pk_bf16_f32 v{r}, v{r}, v{r+1}")
                    a(f"v_cvt_pk_bf16_f32 v{r+1}, v{r+2}, v{r+3}")
                    a(f"buffer_store_dwordx2 v[{r}:{r+1}], v{AD+4*q+g}, s[{SRD_O}:{SRD_O+3}], s{S_T4+tt} offen sc1")

    def p1_epi_N(self):
        a = self.a
        T = self.V_T; A = self.V_ACC
        AB = self.V_FR; BB = self.V_FR + 16
        a(f"v_and_b32 v{T}, 31, v1")
        a(f"v_lshrrev_b32 v{T+6}, 5, v1")
        a(f"s_lshl_b32 s{S_T0}, s{S_WM}, 8")
        a(f"v_lshlrev_b32 v{T+4}, 4, v{T+6}")
        a(f"v_add_u32 v{T+4}, s{S_T0}, v{T+4}")
        a(f"v_add_u32 v{T+4}, {LDS_STATS}, v{T+4}")
        a(f"s_mov_b32 s{S_T2}, 163840")
        for q in range(2):
            a(f"s_xor_b32 s{S_T0}, s{S_WM}, {q}")
            a(f"s_lshl_b32 s{S_T0}, s{S_T0}, 5")
            a(f"s_lshl_b32 s{S_T1}, s{S_WN}, 6")
            a(f"s_add_u32 s{S_T0}, s{S_T0}, s{S_T1}")
            a(f"v_add_u32 v{T+1}, s{S_T0}, v{T}")
            a(f"v_lshlrev_b32 v{T+2}, 2, v{T+1}")
            a(f"v_add_u32 v{T+2}, {LDS_STATS+ST_CS}, v{T+2}")
            a(f"ds_read_b32 v{T+10+q}, v{T+2}")
            a(f"s_sub_u32 s{S_T1}, s{S_NT}, 10")
            a(f"s_lshl_b32 s{S_T1}, s{S_T1}, 7")
            a(f"v_add_u32 v{T+7}, s{S_T1}, v{T+1}")
            self.magic_div20(T+8, T+7)
            a(f"v_mul_u32_u24 v{T+9}, 20, v{T+8}")
            a(f"v_sub_u32 v{T+9}, v{T+7}, v{T+9}")
            a(f"v_mul_lo_u32 v{T+8}, v{T+8}, s{S_T2}")
            a(f"v_lshlrev_b32 v{T+9}, 4, v{T+9}")
            a(f"v_add_u32 v{T+8}, v{T+8}, v{T+9}")
            a(f"v_mul_u32_u24 v{T+9}, 320, v{T+6}")
            a(f"v_add_u32 v{T+8}, v{T+8}, v{T+9}")
            a(f"v_add_u32 v{T+12+q}, 1280, v{T+8}")
        self.srd(SRD_O, S_WS, OFF_KV, SZ_KV)
        a(f"s_lshl_b32 s{S_T4}, s{S_MT}, 2")
        a(f"s_lshl_b32 s{S_T5}, s{S_WM}, 1")
        a(f"s_add_u32 s{S_T4}, s{S_T4}, s{S_T5}")
        a(f"s_mul_i32 s{S_T4}, s{S_T4}, 2560")
        a(f"s_add_u32 s{S_T5}, s{S_T4}, 2560")
        for tt in range(2):
            for g in range(4):
                a(f"ds_read_b128 v[{AB+4*g}:{AB+4*g+3}], v{T+4} offset:{ST_AA + 128*tt + 32*g}")
                a(f"ds_read_b128 v[{BB+4*g}:{BB+4*g+3}], v{T+4} offset:{ST_BB + 128*tt + 32*g}")
            a(f"s_waitcnt lgkmcnt(0)")
            for q in range(2):
                for r in range(16):
                    R = A + 16*(2*tt+q) + r
                    a(f"v_mul_f32 v{R}, v{AB+r}, v{R}")
                    a(f"v_fmac_f32 v{R}, v{BB+r}, v{T+10+q}")
                for st in range(2):
                    R = A + 16*(2*tt+q) + 8*st
                    for z in range(4):
                        a(f"v_cvt_pk_bf16_f32 v{R+z}, v{R+2*z}, v{R+2*z+1}")
                    a(f"buffer_store_dwordx4 v[{R}:{R+3}], v{T+12+q}, s[{SRD_O}:{SRD_O+3}], s{S_T4+tt} offen offset:{640*st} sc1")

    def relayout_unit(self):
        pass

    def relayout_load(self):
        a = self.a
        T = self.V_T
        Lskip = "L_rl_skip1"
        a(f"s_mul_i32 s{S_T0}, s2, 3")
        a(f"s_sub_u32 s{S_T5}, s{S_W}, 4")
        a(f"s_add_u32 s{S_T0}, s{S_T0}, s{S_T5}")
        a(f"s_cmp_ge_u32 s{S_T5}, 3")
        a(f"s_cbranch_scc1 {Lskip}")
        a(f"s_cmp_ge_u32 s{S_T0}, 740")
        a(f"s_cbranch_scc1 {Lskip}")
        a(f"s_cmp_lt_u32 s{S_T0}, 540")
        a(f"s_cselect_b32 s{S_T1}, 0, 540")
        a(f"s_cselect_b32 s{SRD_T}, s{S_W2}, s{S_WO}")
        a(f"s_cselect_b32 s{SRD_T+1}, s{S_W2+1}, s{S_WO+1}")
        self.csel(SRD_T+2, 1728*1280, 640*1280)
        a(f"s_mov_b32 s{SRD_T+3}, 0x20000")
        a(f"s_sub_u32 s{S_T1}, s{S_T0}, s{S_T1}")
        a(f"s_mul_hi_u32 s{S_T2}, s{S_T1}, {hex((2**32+9)//10)}")
        a(f"s_mul_i32 s{S_T3}, s{S_T2}, 10")
        a(f"s_sub_u32 s{S_T3}, s{S_T1}, s{S_T3}")
        a(f"v_lshrrev_b32 v{T}, 3, v1")
        a(f"v_mul_u32_u24 v{T}, 1280, v{T}")
        a(f"v_and_b32 v{T+1}, 7, v1")
        a(f"v_lshl_add_u32 v{T}, v{T+1}, 4, v{T}")
        a(f"s_mul_i32 s{S_T2}, s{S_T2}, {32*1280}")
        a(f"s_lshl_b32 s{S_T3}, s{S_T3}, 7")
        a(f"s_add_u32 s{S_T2}, s{S_T2}, s{S_T3}")
        a(f"s_lshl_b32 s{S_T3}, s{S_T5}, 12")
        a(f"s_add_u32 m0, s{S_T3}, {LDS_RL}")
        for jj in range(4):
            a(f"s_nop 0")
            a(f"buffer_load_dwordx4 v{T}, s[{SRD_T}:{SRD_T+3}], s{S_T2} offen lds")
            if jj < 3:
                a(f"s_add_u32 m0, m0, 1024")
                a(f"s_add_u32 s{S_T2}, s{S_T2}, {8*1280}")
        a.put(Lskip)

    def relayout_store(self):
        a = self.a
        T = self.V_T
        Lskip = "L_rl_skip2"
        a(f"s_mul_i32 s{S_T0}, s2, 3")
        a(f"s_sub_u32 s{S_RLW}, s{S_W}, 4")
        a(f"s_add_u32 s{S_T0}, s{S_T0}, s{S_RLW}")
        a(f"s_cmp_ge_u32 s{S_RLW}, 3")
        a(f"s_cbranch_scc1 {Lskip}")
        a(f"s_cmp_ge_u32 s{S_T0}, 740")
        a(f"s_cbranch_scc1 {Lskip}")
        a(f"s_cmp_lt_u32 s{S_T0}, 540")
        a(f"s_cselect_b32 s{S_T1}, 0, 540")
        self.csel(S_T4, hex(OFF_W2P), hex(OFF_WOP))
        self.csel(S_T5, hex(SZ_W2P), hex(SZ_WOP))
        a(f"s_sub_u32 s{S_T1}, s{S_T0}, s{S_T1}")
        a(f"s_add_u32 s{SRD_T}, s{S_WS}, s{S_T4}")
        a(f"s_addc_u32 s{SRD_T+1}, s{S_WS+1}, 0")
        a(f"s_mov_b32 s{SRD_T+2}, s{S_T5}")
        a(f"s_mov_b32 s{SRD_T+3}, 0x20000")
        a(f"s_mul_hi_u32 s{S_T2}, s{S_T1}, {hex((2**32+9)//10)}")
        a(f"s_mul_i32 s{S_T3}, s{S_T2}, 10")
        a(f"s_sub_u32 s{S_T3}, s{S_T1}, s{S_T3}")
        a(f"s_mul_i32 s{S_T2}, s{S_T2}, 40")
        a(f"s_lshl_b32 s{S_T3}, s{S_T3}, 2")
        a(f"s_add_u32 s{S_T2}, s{S_T2}, s{S_T3}")
        a(f"s_lshl_b32 s{S_T2}, s{S_T2}, 10")
        a(f"v_lshrrev_b32 v{T}, 4, v1")
        a(f"v_lshlrev_b32 v{T}, 3, v{T}")
        a(f"v_bfe_u32 v{T+1}, v1, 2, 2")
        a(f"v_add_u32 v{T}, v{T}, v{T+1}")
        a(f"v_lshlrev_b32 v{T}, 7, v{T}")
        a(f"v_and_b32 v{T+1}, 3, v1")
        a(f"v_lshl_add_u32 v{T}, v{T+1}, 3, v{T}")
        a(f"s_lshl_b32 s{S_T3}, s{S_RLW}, 12")
        a(f"s_add_u32 s{S_T3}, s{S_T3}, {LDS_RL}")
        a(f"v_add_u32 v{T}, s{S_T3}, v{T}")
        a(f"v_lshlrev_b32 v{T+1}, 4, v1")
        O = T + 4
        for tq in range(4):
            a(f"ds_read_b64_tr_b16 v[{O+4*tq}:{O+4*tq+1}], v{T} offset:{32*tq}")
            a(f"ds_read_b64_tr_b16 v[{O+4*tq+2}:{O+4*tq+3}], v{T} offset:{32*tq+512}")
        a(f"s_waitcnt lgkmcnt(0)")
        for tq in range(4):
            a(f"buffer_store_dwordx4 v[{O+4*tq}:{O+4*tq+3}], v{T+1}, s[{SRD_T}:{SRD_T+3}], s{S_T2} offen offset:{1024*tq} sc1")
        a.put(Lskip)

    def p1(self):
        a = self.a
        a(f"s_and_b32 s{S_T0}, s{S_GX}, 3")
        a(f"s_lshl_b32 s{S_T0}, s{S_T0}, 2")
        a(f"s_and_b32 s{S_T1}, s{S_GI}, 3")
        a(f"s_add_u32 s{S_MT}, s{S_T0}, s{S_T1}")
        a(f"s_lshr_b32 s{S_T0}, s{S_GX}, 2")
        a(f"s_lshl_b32 s{S_T0}, s{S_T0}, 3")
        a(f"s_lshr_b32 s{S_T2}, s{S_GI}, 2")
        a(f"s_add_u32 s{S_NT}, s{S_T0}, s{S_T2}")
        a(f"s_mul_i32 s{S_T1}, s{S_T1}, 3")
        a(f"s_add_u32 s{S_KK}, s{S_T1}, s{S_T2}")
        a(f"s_cmp_ge_u32 s{S_KK}, 10")
        a(f"s_cselect_b32 s{S_T0}, 10, 0")
        a(f"s_sub_u32 s{S_KK}, s{S_KK}, s{S_T0}")
        self.aux_A = ""
        self.st1 = 1
        a(f"s_cmp_lt_u32 s{S_W}, 4")
        a(f"s_cbranch_scc1 L_p1_compute")
        self.g1_setup_loader(3840)
        a(f"s_waitcnt lgkmcnt(0)")
        if "p1s" in self.opt: self.stamp(15)
        self.srd(SRD_A, S_X, 0, 2048*1280)
        self.srd(SRD_W, S_WQKV, 0, 640*3840)
        a(f"s_cmp_ge_u32 s{S_NT}, 15")
        a(f"s_cbranch_scc1 L_p1_null0")
        self.g1_dma_stage(3840)
        a.put("L_p1_null0")
        if "p1s" in self.opt: self.stamp(16)
        self.relayout_load()
        a(f"s_load_dword s{S_TAG}, s[{S_WS}:{S_WS+1}], {OFF_EPOCH}")
        self.srd(SRD_F, S_WS, 0, 0x100000)
        a(f"s_cmp_ge_u32 s{S_NT}, 15")
        a(f"s_cbranch_scc1 L_p1_lnull")
        for s_ in range(self.NSLOT - 2):
            self.g1_dma_stage(3840)
        self.tag_ready()
        if "p1s" in self.opt: self.stamp(17)
        self.g1_loader(3840, "p1", "gran")
        a(f"s_branch L_p1_lj")
        a.put("L_p1_lnull")
        self.tag_ready()
        a.put("L_p1_lj")
        a(f"s_waitcnt vmcnt(0)")
        self.relayout_store()
        a(f"s_branch L_p1_done")
        a.put("L_p1_compute")
        if "nowarm" not in self.opt: self.code_warm()
        a(f"s_waitcnt lgkmcnt(0)")
        a(f"s_load_dword s{S_TAG}, s[{S_WS}:{S_WS+1}], {OFF_EPOCH}")
        self.srd(SRD_F, S_WS, 0, 0x100000)
        D = self.xstats_publish()
        self.xstats_finish(D)
        a(f"s_cmp_ge_u32 s{S_NT}, 15")
        a(f"s_cbranch_scc1 L_p1_done")
        a(f"s_cmp_ge_u32 s{S_NT}, 10")
        a(f"s_cbranch_scc1 L_p1_N")
        self.g1_compute("T", "p1T")
        self.stamp(2)
        self.p1_epi_T()
        a(f"s_branch L_p1_done")
        a.put("L_p1_N")
        self.g1_compute("N", "p1N")
        self.stamp(2)
        self.p1_epi_N()
        a.put("L_p1_done")
        self.stamp(3)
        a(f"s_waitcnt vmcnt(0)")
        self.stamp(4)

    def poll(self, addr_regs, masks, tagname):
        a = self.a
        T = 4
        L = f"L_{tagname}_poll"; Lo = f"L_{tagname}_pollok"
        a(f"s_mov_b32 s{S_T0}, 0")
        a.put(L)
        for k, (ar, mk) in enumerate(zip(addr_regs, masks)):
            self.set_exec(mk)
            a(f"buffer_load_dword v{T+20+k}, v{ar}, s[{SRD_F}:{SRD_F+3}], 0 offen sc1")
        a(f"s_waitcnt vmcnt(0)")
        a(f"s_mov_b64 s[{S_SAVE}:{S_SAVE+1}], 0")
        for k, (ar, mk) in enumerate(zip(addr_regs, masks)):
            self.set_exec(mk)
            a(f"v_cmp_ne_u32 vcc, s{S_TAG}, v{T+20+k}")
            a(f"s_or_b64 s[{S_SAVE}:{S_SAVE+1}], s[{S_SAVE}:{S_SAVE+1}], vcc")
        a(f"s_mov_b64 exec, -1")
        a(f"s_cmp_eq_u64 s[{S_SAVE}:{S_SAVE+1}], 0")
        a(f"s_cbranch_scc1 {Lo}")
        a(f"s_add_u32 s{S_T0}, s{S_T0}, 1")
        a(f"s_cmp_lt_u32 s{S_T0}, 0x40000")
        a(f"s_cbranch_scc1 {L}")
        a.put(Lo)

    def p1_signal(self):
        a = self.a
        T = 4
        a(f"s_waitcnt vmcnt(0) lgkmcnt(0)")
        a(f"s_barrier")
        Ls = "L_p1sig_skip"
        a(f"s_cmp_lg_u32 s{S_W}, 0")
        a(f"s_cbranch_scc1 {Ls}")
        a(f"v_lshrrev_b32 v{T}, 3, v1")
        a(f"v_and_b32 v{T+1}, 7, v1")
        Ln = "L_p1sig_null"; Lj = "L_p1sig_join"
        a(f"s_cmp_eq_u32 s{S_NT}, 15")
        a(f"s_cbranch_scc1 {Ln}")
        a(f"s_cmp_ge_u32 s{S_NT}, 10")
        a(f"s_cselect_b32 s{S_T0}, 10, 5")
        a(f"s_cmp_lt_u32 s{S_NT}, 5")
        a(f"s_cselect_b32 s{S_T0}, 0, s{S_T0}")
        a(f"s_sub_u32 s{S_T0}, s{S_NT}, s{S_T0}")
        a(f"s_lshl_b32 s{S_T0}, s{S_T0}, 7")
        a(f"s_mul_i32 s{S_T1}, s{S_T0}, 52429")
        a(f"s_lshr_b32 s{S_T1}, s{S_T1}, 20")
        a(f"s_add_u32 s{S_T2}, s{S_T0}, 127")
        a(f"s_mul_i32 s{S_T2}, s{S_T2}, 52429")
        a(f"s_lshr_b32 s{S_T2}, s{S_T2}, 20")
        a(f"s_min_u32 s{S_T2}, s{S_T2}, 31")
        a(f"v_add_u32 v{T+2}, s{S_T1}, v{T}")
        a(f"v_cmp_ge_u32 vcc, s{S_T2}, v{T+2}")
        a(f"s_mov_b64 s[{S_SAVE}:{S_SAVE+1}], vcc")
        a(f"s_cmp_lt_u32 s{S_NT}, 5")
        a(f"s_cbranch_scc0 {Lj}")
        a(f"s_lshr_b32 s{S_T3}, s{S_MT}, 1")
        a(f"v_cmp_eq_u32 vcc, s{S_T3}, v{T+1}")
        a(f"s_and_b64 s[{S_SAVE}:{S_SAVE+1}], s[{S_SAVE}:{S_SAVE+1}], vcc")
        a(f"s_branch {Lj}")
        a.put(Ln)
        a(f"v_lshlrev_b32 v{T+2}, 4, v{T}")
        a(f"v_add_u32 v{T+2}, s{S_MT}, v{T+2}")
        a(f"v_cmp_gt_u32 vcc, 2, v{T}")
        a(f"s_mov_b64 s[{S_SAVE}:{S_SAVE+1}], vcc")
        a.put(Lj)
        a(f"v_and_b32 v{T+4}, 3, v{T+2}")
        a(f"v_lshl_add_u32 v{T+4}, v{T+1}, 2, v{T+4}")
        a(f"v_lshrrev_b32 v{T+2}, 2, v{T+2}")
        a(f"v_lshl_add_u32 v{T+2}, v{T+4}, 3, v{T+2}")
        a(f"v_lshlrev_b32 v{T+2}, 10, v{T+2}")
        a(f"s_lshl_b32 s{S_T0}, s2, 2")
        a(f"s_add_u32 s{S_T0}, s{S_T0}, {OFF_MB1}")
        a(f"v_add_u32 v{T+2}, s{S_T0}, v{T+2}")
        a(f"v_mov_b32 v{T+3}, s{S_TAG}")
        a(f"s_mov_b64 exec, s[{S_SAVE}:{S_SAVE+1}]")
        a(f"buffer_store_dword v{T+3}, v{T+2}, s[{SRD_F}:{SRD_F+3}], 0 offen sc1")
        a(f"s_mov_b64 exec, 1")
        a(f"s_lshl_b32 s{S_T0}, s2, 2")
        a(f"s_add_u32 s{S_T0}, s{S_T0}, {OFF_ALL}")
        a(f"v_mov_b32 v{T+5}, s{S_T0}")
        a(f"s_add_u32 s{S_T1}, s{S_TAG}, s{S_XCC}")
        a(f"v_mov_b32 v{T+6}, s{S_T1}")
        a(f"buffer_store_dword v{T+6}, v{T+5}, s[{SRD_F}:{SRD_F+3}], 0 offen sc1")
        a(f"s_mov_b64 exec, -1")
        a.put(Ls)

    def finish_tag_once(self):
        a = self.a
        a(f"s_mul_i32 s{S_TAG}, s{S_TAG}, 0x9E3779B1")
        a(f"s_add_u32 s{S_TAG}, s{S_TAG}, 0x7F4A7C15")

    def p2_wait(self):
        a = self.a
        T = 4
        Ls = "L_p2w_skip"
        a(f"s_cmp_lg_u32 s{S_W}, 0")
        a(f"s_cbranch_scc1 {Ls}")
        a(f"s_mul_i32 s{S_T1}, s{S_HEAD}, 20")
        a(f"v_bfe_u32 v{T}, v1, 4, 1")
        a(f"v_mul_u32_u24 v{T}, 19, v{T}")
        a(f"v_add_u32 v{T}, s{S_T1}, v{T}")
        a(f"v_lshrrev_b32 v{T}, 7, v{T}")
        a(f"v_lshrrev_b32 v{T+1}, 5, v1")
        a(f"v_mul_u32_u24 v{T+1}, 5, v{T+1}")
        a(f"v_add_u32 v{T+2}, v{T}, v{T+1}")
        a(f"v_add_u32 v{T+2}, 5, v{T+2}")
        a(f"v_and_b32 v{T+3}, 15, v1")
        self.vprod(T+4, T+3, T+2, T+8)
        a(f"v_bfe_u32 v{T}, v1, 1, 1")
        a(f"v_mul_u32_u24 v{T}, 19, v{T}")
        a(f"v_add_u32 v{T}, s{S_T1}, v{T}")
        a(f"v_lshrrev_b32 v{T+2}, 7, v{T}")
        a(f"v_and_b32 v{T+3}, 1, v1")
        a(f"s_lshl_b32 s{S_T2}, s{S_QB}, 1")
        a(f"v_add_u32 v{T+3}, s{S_T2}, v{T+3}")
        a(f"v_cmp_eq_u32 vcc, 4, v1")
        a(f"s_and_b32 s{S_T2}, s{S_HEAD}, 15")
        a(f"v_mov_b32 v{T+6}, s{S_T2}")
        a(f"v_mov_b32 v{T+7}, 15")
        a(f"v_cndmask_b32 v{T+3}, v{T+3}, v{T+6}, vcc")
        a(f"v_cndmask_b32 v{T+2}, v{T+2}, v{T+7}, vcc")
        self.vprod(T+5, T+3, T+2, T+8)
        a(f"s_lshl_b32 s{S_T2}, s2, 10")
        a(f"s_add_u32 s{S_T2}, s{S_T2}, {OFF_MB1}")
        for r in (T+4, T+5):
            a(f"v_lshlrev_b32 v{r}, 2, v{r}")
            a(f"v_add_u32 v{r}, s{S_T2}, v{r}")
        self.poll([T+4, T+5], ["-1", "0x1f"], "p2w")
        a.put(Ls)
        a(f"s_barrier")

    def vprod(self, dst, mt, nt, tmp):
        a = self.a
        a(f"v_and_b32 v{dst}, 3, v{mt}")
        a(f"v_and_b32 v{tmp}, 7, v{nt}")
        a(f"v_lshl_add_u32 v{dst}, v{tmp}, 2, v{dst}")
        a(f"v_lshlrev_b32 v{dst}, 3, v{dst}")
        a(f"v_lshrrev_b32 v{tmp}, 2, v{mt}")
        a(f"v_add_u32 v{dst}, v{dst}, v{tmp}")
        a(f"v_lshrrev_b32 v{tmp}, 3, v{nt}")
        a(f"v_lshl_add_u32 v{dst}, v{tmp}, 2, v{dst}")

    def group_barrier(self, phase, tagname, tgt=None, slot=None, hook=None, local=False):
        a = self.a
        T = 4
        a(f"s_waitcnt vmcnt(0) lgkmcnt(0)")
        a(f"s_barrier")
        Ls = f"L_{tagname}_gskip"
        a(f"s_cmp_lg_u32 s{S_W}, 0")
        a(f"s_cbranch_scc1 {Ls}0")
        tgt = S_GX if tgt is None else tgt
        slot = S_GI if slot is None else slot
        a(f"v_lshlrev_b32 v{T}, 3, v1")
        a(f"v_add_u32 v{T}, s{tgt}, v{T}")
        a(f"v_lshlrev_b32 v{T}, 7, v{T}")
        a(f"s_lshl_b32 s{S_T1}, s{slot}, 2")
        a(f"s_add_u32 s{S_T1}, s{S_T1}, {OFF_GB + phase*256*128}")
        a(f"v_add_u32 v{T}, s{S_T1}, v{T}")
        a(f"v_mov_b32 v{T+1}, s{S_TAG}")
        self.set_exec(0xffffffff)
        if local:
            a(f"s_cmp_eq_u32 s{S_FAST}, 1")
            a(f"s_cbranch_scc1 {Ls}f")
            a(f"buffer_store_dword v{T+1}, v{T}, s[{SRD_F}:{SRD_F+3}], 0 offen sc1")
            a(f"s_branch {Ls}g")
            a.put(Ls + "f")
            a(f"buffer_store_dword v{T+1}, v{T}, s[{SRD_F}:{SRD_F+3}], 0 offen")
            a.put(Ls + "g")
        else:
            a(f"buffer_store_dword v{T+1}, v{T}, s[{SRD_F}:{SRD_F+3}], 0 offen sc1")
        a(f"s_mov_b64 exec, -1")
        a.put(Ls + "0")
        if hook: hook()
        a(f"s_cmp_lg_u32 s{S_W}, 0")
        a(f"s_cbranch_scc1 {Ls}")
        a(f"s_lshl_b32 s{S_T0}, s2, 7")
        a(f"s_add_u32 s{S_T0}, s{S_T0}, {OFF_GB + phase*256*128}")
        a(f"v_lshlrev_b32 v{T+2}, 2, v1")
        a(f"v_add_u32 v{T+2}, s{S_T0}, v{T+2}")
        self.poll([T+2], ["0xffffffff"], tagname)
        a.put(Ls)
        a(f"s_barrier")

    A_QA = 4; A_QB = 12
    A_K = 20
    A_V1 = 36; A_V2 = 40
    A_SA = 44; A_SB = 60; A_P = 76; A_OA = 84; A_OB = 100; A_AK = 116; A_AV = 117; A_DV = 118; A_ALLA = 119; A_T = 120; A_ALL = 132
    S_VMASK = 92
    S_NEXTB = 94; S_DSO = 95; S_LOW = 65
    p2_nu = 4
    low_tiles = 1

    def p2_kreads(self, kb, toff):
        a = self.a
        K = self.A_K + 8*kb
        a(f"ds_read_b64 v[{K}:{K+1}], v{self.A_AK} offset:{toff}")
        a(f"ds_read_b64 v[{K+2}:{K+3}], v{self.A_AK} offset:{toff+256}")
        a(f"ds_read_b64 v[{K+4}:{K+5}], v{self.A_AK} offset:{toff+1024}")
    def p2_vread(self, which, toff):
        a = self.a
        R = self.A_V1 if which == 0 else self.A_V2
        a(f"s_mov_b64 exec, s[{self.S_VMASK}:{self.S_VMASK+1}]")
        a(f"ds_read_b128 v[{R}:{R+3}], v{self.A_AV} offset:{toff+640*which}")
        a(f"s_mov_b64 exec, -1")
    def p2_smfma(self, which, S, kb, Q):
        a = self.a
        K = self.A_K + 8*kb
        if which == 0:
            a(f"v_mfma_f32_32x32x16_bf16 v[{S}:{S+15}], v[{K}:{K+3}], v[{Q}:{Q+3}], 0")
        else:
            a(f"v_mfma_f32_32x32x16_bf16 v[{S}:{S+15}], v[{K+4}:{K+7}], v[{Q+4}:{Q+7}], v[{S}:{S+15}]")

    A_V2B = 128
    def p2_sub(self, stream, u):
        a = self.a
        P = self.A_P
        p = u & 1
        V2 = (self.A_V2, self.A_V2B)
        Sc, Sn = (self.A_SA, self.A_SB) if stream == 0 else (self.A_SB, self.A_SA)
        Oc, Op = (self.A_OA, self.A_OB) if stream == 0 else (self.A_OB, self.A_OA)
        Qn = self.A_QB if stream == 0 else self.A_QA
        kb = p if stream == 0 else 1 - p
        v2 = V2[1-p] if stream == 0 else V2[p]
        ex = lambda i: a(f"v_exp_f32 v{Sc+i}, v{Sc+i}")
        cv = lambda k: a(f"v_cvt_pk_bf16_f32 v{P+k}, v{Sc+2*k}, v{Sc+2*k+1}")
        cvp = lambda k: a(f"v_cvt_pk_bf16_f32 v{P+k}, v{Sn+2*k}, v{Sn+2*k+1}")
        ex(0); cvp(6); ex(1); ex(2); cvp(7); ex(3)
        self.p2_smfma(0, Sn, kb, Qn)
        ex(4); cv(0); ex(5); ex(6); cv(1); ex(7)
        self.p2_smfma(1, Sn, kb, Qn)
        ex(8); cv(2); ex(9); ex(10); cv(3); ex(11)
        a(f"v_mfma_f32_32x32x16_bf16 v[{Op}:{Op+15}], v[{v2}:{v2+3}], v[{P+4}:{P+7}], v[{Op}:{Op+15}]")
        ex(12); cv(4); ex(13); ex(14); cv(5); ex(15)
        if stream == 0: a(f"s_waitcnt lgkmcnt(0)")
        a(f"v_mfma_f32_32x32x16_bf16 v[{Oc}:{Oc+15}], v[{self.A_V1}:{self.A_V1+3}], v[{P}:{P+3}], v[{Oc}:{Oc+15}]")
        if stream == 1:
            tn = (u+1)*2560
            a(f"s_mov_b64 exec, s[{self.S_VMASK}:{self.S_VMASK+1}]")
            a(f"ds_read_b128 v[{self.A_V1}:{self.A_V1+3}], v{self.A_AV} offset:{tn}")
            R = V2[1-p]
            a(f"ds_read_b128 v[{R}:{R+3}], v{self.A_AV} offset:{tn+640}")
            a(f"s_mov_b64 exec, -1")
            self.p2_kreads(p, (u+2)*2560)

    def prio_reg(self, stream):
        return self._prio[stream]

    def p2_check_all(self):
        a = self.a
        X = self.A_ALL; T = self.A_T
        L = "L_p2_all"; Lo = "L_p2_allok"
        a(f"s_mov_b32 s{S_T0}, 0")
        a.put(L)
        for r in range(4):
            a(f"v_subrev_u32 v{T+r}, s{S_TAG}, v{X+r}")
        a(f"v_cmp_le_u32 vcc, 16, v{T}")
        for r in range(1, 4):
            a(f"v_cmp_le_u32 s[{S_SAVE}:{S_SAVE+1}], 16, v{T+r}")
            a(f"s_nop 0")
            a(f"s_or_b64 vcc, vcc, s[{S_SAVE}:{S_SAVE+1}]")
        a(f"s_cbranch_vccz {Lo}")
        a(f"s_add_u32 s{S_T0}, s{S_T0}, 1")
        a(f"s_cmp_ge_u32 s{S_T0}, 0x40000")
        a(f"s_cbranch_scc1 {Lo}")
        a(f"buffer_load_dwordx4 v[{X}:{X+3}], v{self.A_ALLA}, s[{SRD_F}:{SRD_F+3}], 0 offen sc1")
        a(f"s_waitcnt vmcnt(0)")
        a(f"s_branch {L}")
        a.put(Lo)
        a(f"s_and_b32 s{S_T1}, s{S_GX}, 3")
        for r in range(1, 4):
            a(f"s_cmp_eq_u32 s{S_T1}, {r}")
            a(f"s_cselect_b64 s[{S_SAVE}:{S_SAVE+1}], -1, 0")
            a(f"v_cndmask_b32 v{T}, v{T}, v{T+r}, s[{S_SAVE}:{S_SAVE+1}]")
        a(f"v_cmp_ne_u32 vcc, s{S_XCC}, v{T}")
        a(f"s_mov_b32 s{S_T2}, 0x55555555")
        a(f"s_lshr_b32 s{S_T1}, s{S_GX}, 2")
        a(f"s_lshl_b32 s{S_T2}, s{S_T2}, s{S_T1}")
        a(f"s_and_b32 s{S_T3}, vcc_lo, s{S_T2}")
        a(f"s_and_b32 s{S_T4}, vcc_hi, s{S_T2}")
        a(f"s_or_b32 s{S_T3}, s{S_T3}, s{S_T4}")
        a(f"s_cmp_eq_u32 s{S_T3}, 0")
        a(f"s_cselect_b32 s{S_FAST}, {0 if 'nofast' in self.opt else 1}, 0")

    prio_low = (0, 2, 4, 7)
    def p2_setprio(self, lvl, tag):
        a = self.a
        L = f"L_p2_pr{tag}"
        a(f"s_cmp_ge_u32 s{S_W}, 4")
        a(f"s_cbranch_scc1 {L}")
        a(f"s_setprio {lvl}")
        a.put(L)

    def p2_dma(self, n):
        a = self.a
        for i in range(n):
            a(f"s_mov_b32 m0, s{self.S_DSO}")
            a(f"s_nop 0")
            a(f"buffer_load_dwordx4 v{self.A_DV}, s[{SRD_A}:{SRD_A+3}], s{self.S_DSO} offen sc1 lds")
            a(f"s_add_u32 s{self.S_DSO}, s{self.S_DSO}, 4096")

    def p2(self):
        a = self.a
        T = self.A_T
        a(f"s_lshl_b32 s{S_HEAD}, s{S_GX}, 2")
        a(f"s_and_b32 s{S_T0}, s{S_GI}, 3")
        a(f"s_add_u32 s{S_HEAD}, s{S_HEAD}, s{S_T0}")
        a(f"s_lshr_b32 s{S_QB}, s{S_GI}, 2")
        self.stamp(5)
        self.p2_wait()
        self.stamp(6)
        a(f"s_mul_i32 s{S_T0}, s{S_HEAD}, 163840")
        a(f"s_add_u32 s{S_T0}, s{S_T0}, {hex(OFF_KV)}")
        a(f"s_add_u32 s{SRD_A}, s{S_WS}, s{S_T0}")
        a(f"s_addc_u32 s{SRD_A+1}, s{S_WS+1}, 0")
        a(f"s_mov_b32 s{SRD_A+2}, 163840")
        a(f"s_mov_b32 s{SRD_A+3}, 0x20000")
        a(f"s_lshl_b32 s{S_T0}, s{S_HEAD}, 6")
        a(f"s_lshl_b32 s{S_T1}, s{S_QB}, 3")
        a(f"s_add_u32 s{S_T0}, s{S_T0}, s{S_T1}")
        a(f"s_and_b32 s{S_T1}, s{S_W}, 3")
        a(f"s_lshl_b32 s{S_T1}, s{S_T1}, 1")
        a(f"s_add_u32 s{S_T0}, s{S_T0}, s{S_T1}")
        a(f"s_mul_i32 s{S_T0}, s{S_T0}, 1280")
        a(f"s_add_u32 s{S_T0}, s{S_T0}, {hex(OFF_Q)}")
        a(f"s_add_u32 s{SRD_W}, s{S_WS}, s{S_T0}")
        a(f"s_addc_u32 s{SRD_W+1}, s{S_WS+1}, 0")
        a(f"s_mov_b32 s{SRD_W+2}, 2560")
        a(f"s_mov_b32 s{SRD_W+3}, 0x20000")
        a(f"v_and_b32 v{T}, 31, v1")
        a(f"v_lshrrev_b32 v{T+1}, 5, v1")
        a(f"v_lshlrev_b32 v{T+2}, 3, v{T}")
        a(f"v_lshl_add_u32 v{self.A_AK}, v{T+1}, 9, v{T+2}")
        a(f"v_lshlrev_b32 v{T+3}, 12, v{T+1}")
        a(f"v_add_u32 v{T+3}, v{T+3}, v{T+2}")
        a(f"v_lshlrev_b32 v{self.A_DV}, 4, v1")
        a(f"v_add_u32 v{self.A_ALLA}, {OFF_ALL}, v{self.A_DV}")
        a(f"buffer_load_dwordx4 v[{self.A_ALL}:{self.A_ALL+3}], v{self.A_ALLA}, s[{SRD_F}:{SRD_F+3}], 0 offen sc1")
        for qi, Q in enumerate((self.A_QA, self.A_QB)):
            a(f"buffer_load_dwordx2 v[{Q}:{Q+1}], v{self.A_AK}, s[{SRD_W}:{SRD_W+3}], 0 offen offset:{1280*qi} sc1")
            a(f"buffer_load_dwordx2 v[{Q+2}:{Q+3}], v{self.A_AK}, s[{SRD_W}:{SRD_W+3}], 0 offen offset:{1280*qi+256} sc1")
            a(f"buffer_load_dwordx2 v[{Q+4}:{Q+5}], v{T+3}, s[{SRD_W}:{SRD_W+3}], 0 offen offset:{1280*qi+1024} sc1")
        a(f"v_lshlrev_b32 v{self.A_DV}, 4, v1")
        a(f"s_lshr_b32 s{S_T0}, s{S_W}, 2")
        a(f"s_mul_i32 s{S_T0}, s{S_T0}, 81920")
        a(f"s_and_b32 s{S_T1}, s{S_W}, 3")
        a(f"s_lshl_b32 s{S_T1}, s{S_T1}, 10")
        a(f"s_add_u32 s{self.S_DSO}, s{S_T0}, s{S_T1}")
        self.p2_dma(8)
        for Q in (self.A_QA, self.A_QB):
            a(f"v_mov_b32 v{Q+6}, 0"); a(f"v_mov_b32 v{Q+7}, 0")
        for kb in range(2):
            a(f"v_mov_b32 v{self.A_K+8*kb+6}, 0"); a(f"v_mov_b32 v{self.A_K+8*kb+7}, 0")
        a(f"v_cmp_eq_u32 vcc, 20, v{T}")
        a(f"v_mov_b32 v{T+5}, 0x3f803f80")
        a(f"v_mul_u32_u24 v{T+6}, 320, v{T+1}")
        a(f"v_cndmask_b32 v{self.A_V1}, 0, v{T+5}, vcc")
        for r in range(1, 8):
            a(f"v_mov_b32 v{self.A_V1+r}, v{self.A_V1}")
        for r in range(4):
            a(f"v_mov_b32 v{self.A_V2B+r}, v{self.A_V1}")
        a(f"v_lshl_add_u32 v{self.A_AV}, v{T}, 4, v{T+6}")
        a(f"v_add_u32 v{self.A_AV}, 1280, v{self.A_AV}")
        a(f"v_add_u32 v{self.A_AK}, s{S_T0}, v{self.A_AK}")
        a(f"v_add_u32 v{self.A_AV}, s{S_T0}, v{self.A_AV}")
        a(f"s_mov_b32 s{self.S_VMASK}, 0xfffff")
        a(f"s_mov_b32 s{self.S_VMASK+1}, 0xfffff")
        for r in range(16):
            a(f"v_mov_b32 v{self.A_OA+r}, 0"); a(f"v_mov_b32 v{self.A_OB+r}, 0")
        for r in range(8):
            a(f"v_mov_b32 v{self.A_P+r}, 0")
        for r in range(12, 16):
            a(f"v_mov_b32 v{self.A_SB+r}, 0")
        a(f"s_waitcnt vmcnt(4)")
        a(f"s_barrier")
        self.stamp(7)
        self.p2_dma(1)
        self.p2_kreads(0, 0)
        self.p2_kreads(1, 2560)
        self.p2_vread(0, 0)
        self.p2_vread(1, 0)
        a(f"s_waitcnt lgkmcnt(0)")
        self.p2_smfma(0, self.A_SA, 0, self.A_QA); self.p2_smfma(1, self.A_SA, 0, self.A_QA)
        NU = self.p2_nu
        nit = 32 // NU
        a(f"s_mov_b32 s{S_CNT}, 0")
        a(f"s_mov_b32 s{self.S_NEXTB}, {4//NU if NU <= 4 else 1}")
        lows = list(self.prio_low)
        a(f"s_cmp_lt_u32 s{S_W}, 4")
        a(f"s_cselect_b32 s{self.S_LOW}, {lows[0] if lows else 99}, 99")
        if "noprio" not in self.opt:
            a(f"s_setprio 1")
            self.p2_setprio(2, "init")
        a(f"s_nop 7"); a(f"s_nop 3")
        a(f".p2align 6")
        a.put("L_p2_loop")
        a(f"s_cmp_eq_u32 s{S_CNT}, s{self.S_NEXTB}")
        a(f"s_cbranch_scc1 L_p2_wait")
        a.put("L_p2_back")
        for u in range(NU):
            if u == NU - self.low_tiles and "noprio" not in self.opt:
                a(f"s_cmp_eq_u32 s{S_CNT}, s{self.S_LOW}")
                a(f"s_cbranch_scc1 L_p2_low")
                a.put("L_p2_lowback")
            self.p2_sub(0, u)
            self.p2_sub(1, u)
        a(f"v_add_u32 v{self.A_AK}, {NU*2560}, v{self.A_AK}")
        a(f"v_add_u32 v{self.A_AV}, {NU*2560}, v{self.A_AV}")
        a(f"s_add_u32 s{S_CNT}, s{S_CNT}, 1")
        a(f"s_cmp_lt_u32 s{S_CNT}, {nit}")
        a(f"s_cbranch_scc1 L_p2_loop")
        a(f"s_branch L_p2_done")
        if "noprio" not in self.opt:
            a.put("L_p2_low")
            a(f"s_setprio 0")
            a(f"s_branch L_p2_lowback")
        a.put("L_p2_wait")
        LA = [(s_, t) for s_ in range(5, 14) for t in range(3)]
        LA = LA + [LA[-1]]
        LB = [(s_, t) for s_ in range(14) for t in range(2)]
        wq = 0
        plan = {4: ("kv", 0, 5), 8: ("w",), 12: ("kv", 7, 6), 16: ("w",), 20: ("kv", 7, 0), 24: ("w",), 28: ("w",)}
        evs = sorted(plan)
        kvs = [t for t in evs if plan[t][0] == "kv"]
        for k, tile in enumerate(evs):
            cnt = tile // NU
            Ln = f"L_p2_w{cnt}"
            a(f"s_cmp_lg_u32 s{S_CNT}, {cnt}")
            a(f"s_cbranch_scc1 {Ln}")
            ev = plan[tile]
            if ev[0] == "kv":
                a(f"s_waitcnt vmcnt({ev[1]})")
                if tile == 4:
                    self.p2_check_all()
                    self.g2_wsetup(5, SRD_W, S_SW, self.A_ALLA)
                a(f"s_barrier")
                if "noprio" not in self.opt:
                    self.p2_setprio(2, f"h{cnt}")
                    nl = lows[kvs.index(tile)+1] if kvs.index(tile)+1 < len(lows) else 99
                    a(f"s_cmp_lt_u32 s{S_W}, 4")
                    a(f"s_cselect_b32 s{self.S_LOW}, {nl}, 99")
                self.p2_dma(ev[2])
            elif ev[0] == "w":
                self.g2_wloads_byclass(5, LA[7*wq:7*wq+7], LB[7*wq:7*wq+7], SRD_W, S_SW, self.A_ALLA, f"p2w{cnt}")
                wq += 1
            nxt = evs[k+1]//NU if k + 1 < len(evs) else 99
            a(f"s_mov_b32 s{self.S_NEXTB}, {nxt}")
            a(f"s_branch L_p2_back")
            a.put(Ln)
        a(f"s_branch L_p2_back")
        a.put("L_p2_done")
        a(f"s_setprio 0")
        P = self.A_P; SBr = self.A_SB
        a(f"s_waitcnt lgkmcnt(0)")
        a(f"v_cvt_pk_bf16_f32 v{P+6}, v{SBr+12}, v{SBr+13}")
        a(f"v_cvt_pk_bf16_f32 v{P+7}, v{SBr+14}, v{SBr+15}")
        a(f"s_nop 1")
        a(f"v_mfma_f32_32x32x16_bf16 v[{self.A_OB}:{self.A_OB+15}], v[{self.A_V2B}:{self.A_V2B+3}], v[{P+4}:{P+7}], v[{self.A_OB}:{self.A_OB+15}]")
        self.stamp(8)
        self.p2_epilogue()

    def p2_epilogue(self):
        a = self.a
        T = self.A_T
        a(f"s_nop 7"); a(f"s_nop 3")
        a(f"s_barrier")
        a(f"s_and_b32 s{S_T0}, s{S_W}, 3")
        a(f"s_lshr_b32 s{S_T1}, s{S_W}, 2")
        a(f"s_lshl_b32 s{S_T0}, s{S_T0}, 1")
        a(f"s_add_u32 s{S_T2}, s{S_T0}, s{S_T1}")
        a(f"s_xor_b32 s{S_T3}, s{S_T2}, 1")
        a(f"s_mul_i32 s{S_T2}, s{S_T2}, 3072")
        a(f"s_mul_i32 s{S_T3}, s{S_T3}, 3072")
        a(f"v_lshlrev_b32 v{T}, 4, v1")
        a(f"v_add_u32 v{T+1}, s{S_T2}, v{T}")
        a(f"v_add_u32 v{T+2}, s{S_T3}, v{T}")
        Lk1 = "L_p2e_k1"; Lj = "L_p2e_j"
        a(f"s_cmp_eq_u32 s{S_T1}, 1")
        a(f"s_cbranch_scc1 {Lk1}")
        for g in range(3):
            a(f"ds_write_b128 v{T+1}, v[{self.A_OB+4*g}:{self.A_OB+4*g+3}] offset:{1024*g}")
        a(f"s_branch {Lj}")
        a.put(Lk1)
        for g in range(3):
            a(f"ds_write_b128 v{T+1}, v[{self.A_OA+4*g}:{self.A_OA+4*g+3}] offset:{1024*g}")
        for r in range(12):
            a(f"v_mov_b32 v{self.A_OA+r}, v{self.A_OB+r}")
        a.put(Lj)
        a(f"s_waitcnt lgkmcnt(0)")
        a(f"s_barrier")
        O = self.A_OA; X = self.A_SA
        for g in range(3):
            a(f"ds_read_b128 v[{X+4*g}:{X+4*g+3}], v{T+2} offset:{1024*g}")
        a(f"s_waitcnt lgkmcnt(0)")
        for r in range(12):
            a(f"v_add_f32 v{O+r}, v{O+r}, v{X+r}")
        a(f"v_mov_b32 v{T}, v{O+8}")
        a(f"v_mov_b32 v{T+1}, v{O+8}")
        a(f"s_nop 1")
        a(f"v_permlane32_swap_b32 v{T}, v{T+1}")
        a(f"s_nop 1")
        a(f"v_rcp_f32 v{T+2}, v{T+1}")
        a(f"s_nop 0")
        for r in range(12):
            a(f"v_mul_f32 v{O+r}, v{T+2}, v{O+r}")
        for g in range(3):
            a(f"v_cvt_pk_bf16_f32 v{O+4*g}, v{O+4*g}, v{O+4*g+1}")
            a(f"v_cvt_pk_bf16_f32 v{O+4*g+1}, v{O+4*g+2}, v{O+4*g+3}")
        self.srd(SRD_O, S_WS, OFF_O, SZ_O)
        a(f"s_and_b32 s{S_T2}, s{S_W}, 3")
        a(f"s_lshr_b32 s{S_T3}, s{S_W}, 2")
        a(f"s_lshl_b32 s{S_T0}, s{S_QB}, 2")
        a(f"s_add_u32 s{S_T0}, s{S_T0}, s{S_T2}")
        a(f"s_mul_i32 s{S_T0}, s{S_T0}, 81920")
        a(f"s_lshl_b32 s{S_T1}, s{S_T3}, 11")
        a(f"s_add_u32 s{S_T0}, s{S_T0}, s{S_T1}")
        a(f"v_bfe_u32 v{T+3}, v1, 4, 1")
        a(f"v_lshlrev_b32 v{T+3}, 10, v{T+3}")
        a(f"v_and_b32 v{T+4}, 15, v1")
        a(f"v_lshl_add_u32 v{T+3}, v{T+4}, 4, v{T+3}")
        a(f"v_lshrrev_b32 v{T+5}, 5, v1")
        a(f"s_mul_i32 s{S_T1}, s{S_HEAD}, 20")
        for g in range(3):
            a(f"v_lshlrev_b32 v{T+6}, 2, v{T+5}")
            a(f"s_add_u32 s{S_T2}, s{S_T1}, {8*g}")
            a(f"v_add_u32 v{T+6}, s{S_T2}, v{T+6}")
            a(f"v_lshrrev_b32 v{T+7}, 5, v{T+6}")
            a(f"v_lshlrev_b32 v{T+7}, 12, v{T+7}")
            a(f"v_bfe_u32 v{T+8}, v{T+6}, 3, 2")
            a(f"v_lshl_add_u32 v{T+7}, v{T+8}, 8, v{T+7}")
            a(f"v_and_b32 v{T+8}, 7, v{T+6}")
            a(f"v_lshl_add_u32 v{T+7}, v{T+8}, 1, v{T+7}")
            a(f"v_add_u32 v{T+7}, v{T+7}, v{T+3}")
            if g == 2: self.set_exec(0xffffffff)
            a(f"buffer_store_dwordx2 v[{O+4*g}:{O+4*g+1}], v{T+7}, s[{SRD_O}:{SRD_O+3}], s{S_T0} offen sc1")
            if g == 2: a(f"s_mov_b64 exec, -1")

    G_ACC = 4
    G_ACT = 52
    G_AL = 84; G_AH = 85; G_DV = 86
    S_RB = 49; S_J = 50
    S_WB = 53
    def g2_wbase(self, phase, NT):
        return 88 if (phase == 3 or NT == 3) else 144

    def g2_wsetup(self, phase, srd, sreg, vreg):
        a = self.a
        if phase == 3: self.srd(srd, S_WS, OFF_WOP, SZ_WOP)
        else: self.srd(srd, S_WS, OFF_W2P, SZ_W2P)
        a(f"s_and_b32 s{S_T0}, s{S_W}, 3")
        a(f"s_mul_i32 s{S_T1}, s{S_T0}, 40")
        a(f"s_and_b32 s{S_T2}, s{S_GI}, 7")
        a(f"s_mul_i32 s{S_T2}, s{S_T2}, 5")
        a(f"s_add_u32 s{S_T1}, s{S_T1}, s{S_T2}")
        a(f"s_cmp_lt_u32 s{S_W}, 4")
        a(f"s_cselect_b32 s{S_T2}, 3, 0")
        a(f"s_add_u32 s{S_T1}, s{S_T1}, s{S_T2}")
        a(f"s_lshl_b32 s{sreg}, s{S_T1}, 10")
        a(f"v_lshlrev_b32 v{vreg}, 4, v1")

    def g2_wload1(self, phase, NT, step, t, srd, sreg, vreg):
        a = self.a
        R = self.g2_wbase(phase, NT) + 4*(step*NT + t)
        off = step*4*40*1024 + t*1024
        a(f"s_add_u32 s{S_T2}, s{sreg}, {off}")
        a(f"buffer_load_dwordx4 v[{R}:{R+3}], v{vreg}, s[{srd}:{srd+3}], s{S_T2} offen {self.ld_aux}")

    def g2_wloads_byclass(self, phase, listA, listB, srd, sreg, vreg, tag):
        a = self.a
        LA = f"L_{tag}_A"; LJ = f"L_{tag}_J"
        a(f"s_cmp_ge_u32 s{S_W}, 4")
        a(f"s_cbranch_scc1 {LA}")
        for (st, t) in listB: self.g2_wload1(phase, 2, st, t, srd, sreg, vreg)
        a(f"s_branch {LJ}")
        a.put(LA)
        for (st, t) in listA: self.g2_wload1(phase, 3, st, t, srd, sreg, vreg)
        a.put(LJ)

    def g2_adma(self, stage):
        a = self.a
        slot = (stage % 4) * 32768
        for q in range(4):
            a(f"s_add_u32 m0, s{S_M0A}, {slot + q*8192}")
            a(f"s_add_u32 s{S_T2}, s{S_M0A}, {stage*32768 + q*8192}")
            a(f"buffer_load_dwordx4 v{self.G_DV}, s[{SRD_A}:{SRD_A+3}], s{S_T2} offen {self.ld_aux} lds")

    def g2_reads(self, stage, u, st):
        a = self.a
        slot = stage % 4
        base = self.G_AL if slot < 2 else self.G_AH
        off = (slot % 2) * 32768 + u*16384
        for m in range(4):
            R = self.G_ACT + 16*st + 4*m
            a(f"ds_read_b128 v[{R}:{R+3}], v{base} offset:{off + m*1024}")

    def g2_mfma(self, phase, NT, step, st):
        a = self.a
        for t in range(NT):
            W = self.g2_wbase(phase, NT) + 4*(step*NT + t)
            for m in range(4):
                A = self.G_ACC + 4*(m*3 + t)
                X = self.G_ACT + 16*st + 4*m
                a(f"v_mfma_f32_16x16x32_bf16 v[{A}:{A+3}], v[{W}:{W+3}], v[{X}:{X+3}], v[{A}:{A+3}]")

    def g2_main(self, phase, NT, nsteps):
        a = self.a
        NSTG = (nsteps + 1) // 2
        pre = min(3, NSTG)
        for sg in range(pre):
            self.g2_adma(sg)
        for m in range(4):
            for t in range(NT):
                for i in range(4):
                    a(f"v_mov_b32 v{self.G_ACC+4*(m*3+t)+i}, 0")
        if self.g2st: self.stamp(self.g2st)
        a(f"s_waitcnt vmcnt({4*(pre-1)})")
        a(f"s_barrier")
        if self.g2st: self.stamp(self.g2st+1)
        self.g2_reads(0, 0, 0)
        for sg in range(NSTG):
            two = (2*sg + 1) < nsteps
            if sg + 1 < NSTG:
                out = 4 * max(0, min(NSTG, sg + pre) - (sg + 2))
                a(f"s_waitcnt vmcnt({out})")
                a(f"s_barrier")
            if two:
                self.g2_reads(sg, 1, 1)
                a(f"s_waitcnt lgkmcnt(4)")
            else:
                a(f"s_waitcnt lgkmcnt(0)")
            self.g2_mfma(phase, NT, 2*sg, 0)
            if sg + pre < NSTG:
                self.g2_adma(sg + pre)
            if two:
                if sg + 1 < NSTG:
                    self.g2_reads(sg+1, 0, 0)
                    a(f"s_waitcnt lgkmcnt(4)")
                else:
                    a(f"s_waitcnt lgkmcnt(0)")
                self.g2_mfma(phase, NT, 2*sg+1, 1)

    def g2_reduce(self, NT):
        a = self.a
        T = self.G_ACT
        a(f"s_nop 7")
        a(f"s_barrier")
        a(f"s_lshr_b32 s{S_T0}, s{S_W}, 2")
        a(f"s_and_b32 s{S_T1}, s{S_W}, 3")
        a(f"s_mul_i32 s{S_T2}, s{S_T0}, {16*3072}")
        a(f"s_mul_i32 s{S_T3}, s{S_T1}, 3072")
        a(f"s_add_u32 s{S_T3}, s{S_T3}, s{S_T2}")
        a(f"v_lshlrev_b32 v{T}, 4, v1")
        a(f"v_add_u32 v{T+1}, s{S_T3}, v{T}")
        for m in range(4):
            for t in range(NT):
                A = self.G_ACC + 4*(m*3 + t)
                a(f"ds_write_b128 v{T+1}, v[{A}:{A+3}] offset:{m*4*3072 + t*1024}")
        a(f"s_mul_i32 s{S_T3}, s{S_T1}, {4*3072}")
        a(f"s_add_u32 s{S_T3}, s{S_T3}, s{S_T2}")
        a(f"v_add_u32 v{T+2}, s{S_T3}, v{T}")
        a(f"s_waitcnt lgkmcnt(0)")
        a(f"s_barrier")
        for src in range(4):
            for t in range(NT):
                A = self.G_ACC + 4*(src*3 + t)
                a(f"ds_read_b128 v[{A}:{A+3}], v{T+2} offset:{src*3072 + t*1024}")
        a(f"s_waitcnt lgkmcnt(0)")
        for t in range(NT):
            for i in range(4):
                A = self.G_ACC + 4*t + i
                a(f"v_add_f32 v{A}, v{A}, v{A+12}")
                a(f"v_add_f32 v{A+24}, v{A+24}, v{A+36}")
            for i in range(4):
                A = self.G_ACC + 4*t + i
                a(f"v_add_f32 v{A}, v{A}, v{A+24}")

    def g2_setup(self, phase):
        a = self.a
        a(f"s_lshr_b32 s{S_T0}, s{S_GI}, 3")
        a(f"s_lshl_b32 s{S_T1}, s{S_GX}, 2")
        a(f"s_add_u32 s{self.S_RB}, s{S_T0}, s{S_T1}")
        a(f"s_and_b32 s{self.S_J}, s{S_GI}, 7")
        if phase == 3: off, per = OFF_O, 81920
        else: off, per = OFF_R, 54*4096
        a(f"s_mul_i32 s{S_T0}, s{self.S_RB}, {per}")
        a(f"s_add_u32 s{S_T0}, s{S_T0}, {hex(off)}")
        a(f"s_add_u32 s{SRD_A}, s{S_WS}, s{S_T0}")
        a(f"s_addc_u32 s{SRD_A+1}, s{S_WS+1}, 0")
        a(f"s_mov_b32 s{SRD_A+2}, {per}")
        a(f"s_mov_b32 s{SRD_A+3}, 0x20000")
        a(f"s_lshl_b32 s{S_M0A}, s{S_W}, 10")
        a(f"v_lshlrev_b32 v{self.G_DV}, 4, v1")
        a(f"s_and_b32 s{S_T0}, s{S_W}, 3")
        a(f"s_lshl_b32 s{S_T0}, s{S_T0}, 12")
        a(f"v_add_u32 v{self.G_AL}, s{S_T0}, v{self.G_DV}")
        a(f"v_add_u32 v{self.G_AH}, 0x10000, v{self.G_AL}")

    G_EX = 88
    def g2_epi_loads(self, phase, NT):
        a = self.a
        E = self.G_EX
        a(f"s_lshl_b32 s{S_T0}, s{self.S_RB}, 6")
        a(f"s_and_b32 s{S_T1}, s{S_W}, 3")
        a(f"s_lshl_b32 s{S_T1}, s{S_T1}, 4")
        a(f"s_add_u32 s{S_T0}, s{S_T0}, s{S_T1}")
        a(f"v_and_b32 v{E+12}, 15, v1")
        a(f"v_add_u32 v{E+12}, s{S_T0}, v{E+12}")
        a(f"v_mul_u32_u24 v{E+12}, 1280, v{E+12}")
        a(f"s_mul_i32 s{S_T0}, s{self.S_J}, 160")
        if NT == 2: a(f"s_add_u32 s{S_T0}, s{S_T0}, 96")
        a(f"v_lshrrev_b32 v{E+13}, 4, v1")
        a(f"v_lshlrev_b32 v{E+13}, 3, v{E+13}")
        a(f"v_add_u32 v{E+13}, s{S_T0}, v{E+13}")
        a(f"v_add_u32 v{E+12}, v{E+12}, v{E+13}")
        if phase == 3:
            self.srd(SRD_T, S_X, 0, 2048*1280)
            aux_r = ""
        else:
            self.srd(SRD_T, S_WS, OFF_H, SZ_H)
            aux_r = self.ld_aux
        for t in range(NT):
            a(f"buffer_load_dwordx2 v[{E+2*t}:{E+2*t+1}], v{E+12}, s[{SRD_T}:{SRD_T+3}], 0 offen offset:{32*t} {aux_r}")
        if phase == 5:
            self.srd(SRD_W, S_B2, 0, 1280)
            for t in range(NT):
                a(f"buffer_load_dwordx2 v[{E+6+2*t}:{E+7+2*t}], v{E+13}, s[{SRD_W}:{SRD_W+3}], 0 offen offset:{32*t}")

    def g2_epi(self, phase, NT):
        a = self.a
        T = self.G_ACT; A = self.G_ACC; E = self.G_EX
        if phase == 3:
            self.srd_twin(S_WS, OFF_H, SZ_H)
        else:
            self.srd(SRD_O, S_OUT, 0, 2048*1280)
        a(f"s_waitcnt vmcnt(0)")
        for t in range(NT):
            for half in range(2):
                for base in ([E] if phase == 3 else [E, E+6]):
                    R = base + 2*t + half
                    a(f"v_lshlrev_b32 v{T+20}, 16, v{R}")
                    a(f"v_and_b32 v{T+21}, 0xffff0000, v{R}")
                    a(f"v_add_f32 v{A+4*t+2*half}, v{A+4*t+2*half}, v{T+20}")
                    a(f"v_add_f32 v{A+4*t+2*half+1}, v{A+4*t+2*half+1}, v{T+21}")
            a(f"v_cvt_pk_bf16_f32 v{A+4*t}, v{A+4*t}, v{A+4*t+1}")
            a(f"v_cvt_pk_bf16_f32 v{A+4*t+1}, v{A+4*t+2}, v{A+4*t+3}")
            if phase == 3: self.store_twin("buffer_store_dwordx2", f"v[{A+4*t}:{A+4*t+1}]", E+12, "0", f"offset:{32*t}")
            else: a(f"buffer_store_dwordx2 v[{A+4*t}:{A+4*t+1}], v{E+12}, s[{SRD_O}:{SRD_O+3}], 0 offen offset:{32*t}")
        if phase == 3:
            S = T + 22
            a(f"v_mov_b32 v{S}, 0"); a(f"v_mov_b32 v{S+1}, 0")
            for t in range(NT):
                for half in range(2):
                    R = A + 4*t + half
                    a(f"v_lshlrev_b32 v{T+20}, 16, v{R}")
                    a(f"v_and_b32 v{T+21}, 0xffff0000, v{R}")
                    a(f"v_add_f32 v{S}, v{S}, v{T+20}")
                    a(f"v_fmac_f32 v{S+1}, v{T+20}, v{T+20}")
                    a(f"v_add_f32 v{S}, v{S}, v{T+21}")
                    a(f"v_fmac_f32 v{S+1}, v{T+21}, v{T+21}")
            for op in ("v_permlane32_swap_b32", "v_permlane16_swap_b32"):
                a(f"v_mov_b32 v{S+2}, v{S}")
                a(f"v_mov_b32 v{S+3}, v{S+1}")
                a(f"s_nop 1")
                a(f"{op} v{S+2}, v{S}")
                a(f"{op} v{S+3}, v{S+1}")
                a(f"s_nop 1")
                a(f"v_add_f32 v{S}, v{S}, v{S+2}")
                a(f"v_add_f32 v{S+1}, v{S+1}, v{S+3}")
            a(f"s_lshl_b32 s{S_T0}, s{self.S_RB}, 6")
            a(f"s_and_b32 s{S_T1}, s{S_W}, 3")
            a(f"s_lshl_b32 s{S_T1}, s{S_T1}, 4")
            a(f"s_add_u32 s{S_T0}, s{S_T0}, s{S_T1}")
            a(f"v_and_b32 v{S+2}, 15, v1")
            a(f"v_add_u32 v{S+2}, s{S_T0}, v{S+2}")
            a(f"v_lshlrev_b32 v{S+2}, 7, v{S+2}")
            a(f"s_lshl_b32 s{S_T0}, s{self.S_J}, 4")
            a(f"s_add_u32 s{S_T0}, s{S_T0}, {hex(8 if NT == 2 else 0)}")
            a(f"v_add_u32 v{S+2}, s{S_T0}, v{S+2}")
            self.srd_twin(S_WS, OFF_PST, 2048*128)
            a(f"s_mov_b64 exec, 0xffff")
            self.store_twin("buffer_store_dwordx2", f"v[{S}:{S+1}]", S+2, "0")
            a(f"s_mov_b64 exec, -1")

    def g2(self, phase):
        a = self.a
        nsteps = 5 if phase == 3 else 14
        self.g2st = 15 if (str(phase) in self.opt_g2) else None
        self.g2_setup(phase)
        L1 = f"L_g2p{phase}_n1"; Lj = f"L_g2p{phase}_j"
        a(f"s_cmp_lt_u32 s{S_W}, 4")
        a(f"s_cbranch_scc1 {L1}")
        for NT in (3, 2):
            self.g2_main(phase, NT, nsteps)
            if self.g2st: self.stamp(self.g2st+2)
            self.g2_epi_loads(phase, NT)
            self.g2_reduce(NT)
            if self.g2st: self.stamp(self.g2st+3)
            self.g2_epi(phase, NT)
            if NT == 3:
                a(f"s_branch {Lj}")
                a.put(L1)
        a.put(Lj)

    def prefetch_wo(self):
        self.g2_wsetup(3, SRD_W, S_SW, 2)
        self.g2_wloads_byclass(3, [(s_, t) for s_ in range(5) for t in range(3)], [(s_, t) for s_ in range(5) for t in range(2)], SRD_W, S_SW, 2, "pfwo")
    def prefetch_w2_rest(self):
        self.g2_wsetup(5, SRD_W, S_SW, 2)
        self.g2_wloads_byclass(5, [(s_, t) for s_ in range(5) for t in range(3)], [], SRD_W, S_SW, 2, "pfw2")

    def p4_epi(self):
        a = self.a
        self.V_T = 2
        T = self.V_T; A = self.V_ACC; CSR = self.V_FR
        B1R = self.V_FR + 32
        a(f"s_cmp_eq_u32 s{S_NT}, 13")
        a(f"s_cselect_b32 s{S_T0}, s{S_WN}, 0")
        a(f"s_cmp_eq_u32 s{S_T0}, 1")
        a(f"s_cbranch_scc1 L_p4_skip")
        self.epi_T_common()
        for g in range(4):
            a(f"ds_read_b128 v[{B1R+4*g}:{B1R+4*g+3}], v{T+7} offset:{ST_B1-ST_CS+32*g}")
        for g in range(4):
            a(f"ds_read_b128 v[{B1R+16+4*g}:{B1R+16+4*g+3}], v{T+1} offset:{ST_B1-ST_CS+32*g}")
        if "rsc1" in self.opt: self.srd(SRD_O, S_WS, OFF_R, SZ_R)
        else: self.srd_twin(S_WS, OFF_R, SZ_R)
        a(f"s_lshl_b32 s{S_T0}, s{S_MT}, 1")
        a(f"s_add_u32 s{S_T0}, s{S_T0}, s{S_WM}")
        a(f"s_mul_i32 s{S_T0}, s{S_T0}, {54*4096}")
        a(f"s_lshl_b32 s{S_T1}, s{S_NT}, 2")
        a(f"s_lshl_b32 s{S_T2}, s{S_WN}, 1")
        a(f"s_add_u32 s{S_T1}, s{S_T1}, s{S_T2}")
        a(f"s_add_u32 s{S_T2}, s{S_T1}, s{S_WM}")
        a(f"s_xor_b32 s{S_T3}, s{S_WM}, 1")
        a(f"s_add_u32 s{S_T3}, s{S_T1}, s{S_T3}")
        a(f"s_lshl_b32 s{S_T2}, s{S_T2}, 12")
        a(f"s_lshl_b32 s{S_T3}, s{S_T3}, 12")
        a(f"s_add_u32 s{S_T4}, s{S_T0}, s{S_T2}")
        a(f"s_add_u32 s{S_T5}, s{S_T0}, s{S_T3}")
        a(f"v_bfe_u32 v{T+8}, v1, 4, 1")
        a(f"v_lshlrev_b32 v{T+8}, 10, v{T+8}")
        a(f"v_and_b32 v{T+9}, 15, v1")
        a(f"v_lshl_add_u32 v{T+8}, v{T+9}, 4, v{T+8}")
        a(f"v_lshl_add_u32 v{T+8}, v{T+6}, 8, v{T+8}")
        a(f"s_waitcnt lgkmcnt(0)")
        for tt in range(2):
            for q in range(2):
                for gp in range(2):
                    for g in (2*gp, 2*gp+1):
                        for i in range(4):
                            r = A + 16*(2*tt+q) + 4*g + i
                            a(f"v_fma_f32 v{r}, v{T+2+2*tt}, v{r}, v{B1R+16*q+4*g+i}")
                            a(f"v_fmac_f32 v{r}, v{T+3+2*tt}, v{CSR+16*q+4*g+i}")
                            a(f"v_max_f32 v{r}, 0, v{r}")
                            a(f"v_mul_f32 v{r}, v{r}, v{r}")
                    r = A + 16*(2*tt+q) + 8*gp
                    a(f"v_cvt_pk_bf16_f32 v{r}, v{r}, v{r+1}")
                    a(f"v_cvt_pk_bf16_f32 v{r+1}, v{r+2}, v{r+3}")
                    a(f"v_cvt_pk_bf16_f32 v{r+2}, v{r+4}, v{r+5}")
                    a(f"v_cvt_pk_bf16_f32 v{r+3}, v{r+6}, v{r+7}")
                    a(f"s_nop 1")
                    a(f"v_permlane32_swap_b32 v{r}, v{r+2}")
                    a(f"v_permlane32_swap_b32 v{r+1}, v{r+3}")
                    if "rsc1" in self.opt:
                        a(f"buffer_store_dwordx4 v[{r}:{r+3}], v{T+8}, s[{SRD_O}:{SRD_O+3}], s{S_T4+q} offen offset:{2048*tt + 512*gp} sc1")
                    else:
                        self.store_twin("buffer_store_dwordx4", f"v[{r}:{r+3}]", T+8, f"s{S_T4+q}", f"offset:{2048*tt + 512*gp}")
        a.put("L_p4_skip")
        self.V_T = 148

    def p4(self):
        a = self.a
        a(f"s_cmp_ge_u32 s{S_GI}, 28")
        a(f"s_cbranch_scc1 L_p4_done")
        a(f"s_cmp_ge_u32 s{S_GI}, 14")
        a(f"s_cselect_b32 s{S_T0}, 1, 0")
        a(f"s_cselect_b32 s{S_T1}, 14, 0")
        a(f"s_sub_u32 s{S_NT}, s{S_GI}, s{S_T1}")
        a(f"s_lshl_b32 s{S_MT}, s{S_GX}, 1")
        a(f"s_add_u32 s{S_MT}, s{S_MT}, s{S_T0}")
        a(f"s_cmp_ge_u32 s{S_NT}, 10")
        a(f"s_cselect_b32 s{S_T0}, 10, 0")
        a(f"s_sub_u32 s{S_KK}, s{S_NT}, s{S_T0}")
        self.aux_A = self.ld_aux
        self.st1 = None
        a(f"s_cmp_lt_u32 s{S_W}, 4")
        a(f"s_cbranch_scc1 L_p4_compute")
        self.V_T = 16
        self.g1_setup_loader(3456)
        self.srd(SRD_A, S_WS, OFF_H, SZ_H)
        self.srd(SRD_W, S_W1, 0, 640*3456)
        for s_ in range(self.NSLOT - 1):
            self.g1_dma_stage(3456)
        T = self.V_T
        self.srd(SRD_T, S_B1, 0, 1728*2)
        a(f"s_sub_u32 s{S_T4}, s{S_W}, 4")
        a(f"s_lshl_b32 s{S_T4}, s{S_T4}, 5")
        a(f"v_and_b32 v{T+10}, 31, v1")
        a(f"v_add_u32 v{T+10}, s{S_T4}, v{T+10}")
        a(f"s_lshl_b32 s{S_T4}, s{S_NT}, 7")
        a(f"v_add_u32 v{T+11}, s{S_T4}, v{T+10}")
        a(f"v_lshlrev_b32 v{T+11}, 1, v{T+11}")
        a(f"buffer_load_ushort v{T+22}, v{T+11}, s[{SRD_T}:{SRD_T+3}], 0 offen")
        self.b1_hook = True
        self.g1_loader(3456, "p4", "part")
        self.b1_hook = False
        self.V_T = 148
        a(f"s_branch L_p4_done")
        a.put("L_p4_compute")
        self.g1_compute("T", "p4")
        self.p4_epi()
        a.put("L_p4_done")

    def code_warm(self):
        a = self.a
        a(f"s_getpc_b64 s[{SRD_T}:{SRD_T+1}]")
        a.put("L_pc_here")
        a(f"s_sub_u32 s{SRD_T}, s{SRD_T}, L_pc_here-{NAME}")
        a(f"s_subb_u32 s{SRD_T+1}, s{SRD_T+1}, 0")
        a(f"s_mov_b32 s{SRD_T+2}, L_end-{NAME}")
        a(f"s_mov_b32 s{SRD_T+3}, 0x20000")
        a(f"v_lshlrev_b32 v254, 7, v0")
        for k in range(self.code_rounds):
            a(f"s_mov_b32 s{S_T0}, {32768*k}")
            a(f"buffer_load_dword v255, v254, s[{SRD_T}:{SRD_T+3}], s{S_T0} offen")

    def epoch_update(self):
        a = self.a
        a(f"s_or_b32 s{S_T0}, s2, s{S_W}")
        a(f"s_cmp_lg_u32 s{S_T0}, 0")
        a(f"s_cbranch_scc1 L_noepoch")
        a(f"v_mov_b32 v2, {OFF_EPOCH}")
        a(f"v_mov_b32 v3, s{S_TAG}")
        a(f"s_mov_b64 exec, 1")
        a(f"buffer_store_dword v3, v2, s[{SRD_F}:{SRD_F+3}], 0 offen sc1")
        a(f"s_mov_b64 exec, -1")
        a.put("L_noepoch")

    def epilogue_stamps(self):
        if not self.stamps: return
        a = self.a
        if "dbg" in self.opt:
            a(f"s_or_b32 s{S_T0}, s2, s{S_W}")
            a(f"s_cmp_lg_u32 s{S_T0}, 0")
            a(f"s_cbranch_scc1 L_nodbg")
            self.srd(SRD_T, S_DBG, 0, 256)
            a(f"s_memrealtime s[100:101]")
            a(f"s_waitcnt lgkmcnt(0)")
            a(f"s_sub_u32 s{S_STAMP+15}, s100, s88")
            a(f"s_add_u32 s{S_STAMP+15}, s{S_STAMP+15}, s{S_STAMP}")
            a(f"v_mov_b32 v3, 0")
            a(f"s_mov_b64 exec, 1")
            for i in range(16):
                a(f"s_sub_u32 s{S_T1}, s{S_STAMP+i}, s{S_STAMP}")
                a(f"v_mov_b32 v2, s{S_T1}")
                a(f"buffer_store_dword v2, v3, s[{SRD_T}:{SRD_T+3}], 0 offen offset:{4*i}")
                a(f"s_nop 1")
            a(f"s_mov_b64 exec, -1")
            a.put("L_nodbg")
        a(f"s_waitcnt lgkmcnt(0)")
        a(f"s_lshl_b32 s{S_T0}, s2, 3")
        a(f"s_add_u32 s{S_T0}, s{S_T0}, s{S_W}")
        a(f"s_lshl_b32 s{S_T0}, s{S_T0}, 7")
        a(f"s_add_u32 s{S_T0}, s{S_T0}, 0x80000")
        a(f"v_mov_b32 v3, s{S_T0}")
        a(f"s_mov_b64 exec, 1")
        a(f"s_memrealtime s[100:101]")
        a(f"s_waitcnt lgkmcnt(0)")
        a(f"s_sub_u32 s{S_T1}, s100, s88")
        a(f"v_mov_b32 v2, s{S_T1}")
        a(f"buffer_store_dword v2, v3, s[{SRD_F}:{SRD_F+3}], 0 offen offset:{4*31}")
        a(f"v_mov_b32 v2, s88")
        a(f"buffer_store_dword v2, v3, s[{SRD_F}:{SRD_F+3}], 0 offen offset:{4*30}")
        for i in range(self.nstamp):
            a(f"s_sub_u32 s{S_T1}, s{S_STAMP+i}, s{S_STAMP}")
            a(f"v_mov_b32 v2, s{S_T1}")
            a(f"buffer_store_dword v2, v3, s[{SRD_F}:{SRD_F+3}], 0 offen offset:{4*i}")
            a(f"s_nop 1")
        a(f"s_mov_b64 exec, -1")

    def build(self):
        a = self.a
        self.prologue()
        self.p1()
        self.p1_signal()
        if self.stop_after != "p1":
            self.p2()
            if self.stop_after != "p2":
                self.group_barrier(0, "gb23", S_QB, S_HEAD, hook=self.prefetch_wo)
                self.stamp(9)
                self.g2(3)
                self.stamp(10)
                if self.stop_after != "p3":
                    self.group_barrier(1, "gb34", hook=self.prefetch_w2_rest, local=True)
                    self.stamp(11)
                    self.p4()
                    self.stamp(12)
                    if self.stop_after != "p4":
                        self.group_barrier(2, "gb45", local=True)
                        self.stamp(13)
                        self.g2(5)
            a(f"s_waitcnt vmcnt(0)")
            self.stamp(14)
        self.epoch_update()
        self.epilogue_stamps()
        a(f"s_waitcnt vmcnt(0)")
        a.put("L_end")
        a("s_endpgm")
        return a

import struct
def f32(x):
    return struct.unpack("<I", struct.pack("<f", x))[0]

HEADER = open("sequential_preLN__mha_block__dense_activation_squared_relu__prompt.s.ref").read().split("; Override launch geometry")[0]

def wrap(body, lds=163840, vgpr=256):
    s = HEADER
    s += f"; @launch grid=(256,1,1) block=(512,1,1) lds={lds}\n"
    s += '.amdgcn_target "amdgcn-amd-amdhsa--gfx950"\n.text\n'
    s += f".globl {NAME}\n.p2align 8\n.type {NAME},@function\n{NAME}:\n"
    s += body
    s += f"""
.section .rodata,"a"
.p2align 6
.amdhsa_kernel {NAME}
  .amdhsa_next_free_vgpr {vgpr}
  .amdhsa_next_free_sgpr 102
  .amdhsa_accum_offset {vgpr}
  .amdhsa_group_segment_fixed_size 0
  .amdhsa_kernarg_size 88
  .amdhsa_user_sgpr_count 2
  .amdhsa_user_sgpr_kernarg_segment_ptr 1
  .amdhsa_system_sgpr_workgroup_id_x 1
.end_amdhsa_kernel
"""
    return s

if __name__ == "__main__":
    import argparse
    ap = argparse.ArgumentParser()
    ap.add_argument("-o", default="out.s")
    ap.add_argument("--stop", default=None)
    ap.add_argument("--stamps", action="store_true")
    ap.add_argument("--opt", default="")
    ap.add_argument("--plow", default=None)
    args = ap.parse_args()
    g = Gen(stop_after=args.stop, stamps=args.stamps, opt=[o for o in args.opt.split(',') if o])
    if "low2" in g.opt: g.low_tiles = 2
    if "low3" in g.opt: g.low_tiles = 3
    if args.plow is not None: g.prio_low = tuple(int(x) for x in args.plow.split(",") if x)
    a = g.build()
    rep = check(a.L)
    for r in rep: print(r)
    open(args.o, "w").write(wrap(a.text()))
    print("wrote", args.o, len(a.L), "lines;", len(rep), "hazards")
```

```python
import sys, math
sys.path.insert(0, "gen")
from asmlib import Asm, vr, sr, check

NAME = "sequential_preLN__mha_block__dense_activation_squared_relu__prompt_kernel"

OFF_EPOCH = 0
OFF_ALL   = 0x1000
OFF_GB    = 0x50000
OFF_MB1   = 65536
OFF_GR    = 0x68000
OFF_PST   = 0xC0000
OFF_Q     = 0x100000
OFF_KV    = 0x400000
OFF_O     = 0xA00000
OFF_H     = 0xD00000
OFF_R     = 0x1000000
OFF_WOP   = 0x1700000
OFF_W2P   = 0x1800000
SZ_Q = 32*64*1280
SZ_KV = 32*64*2560
SZ_O = 32*20*4096
SZ_H = 2048*1280
SZ_R = 32*54*4096
SZ_WOP = 20*40*1024
SZ_W2P = 54*40*1024

S_KA = 0; S_WG = 2; S_W = 3
S_X = 4; S_WQKV = 6; S_WO = 8; S_W1 = 12; S_B1 = 14; S_W2 = 16; S_B2 = 18; S_OUT = 20; S_DBG = 22; S_WS = 24
S_TAG = 26; S_GX = 27
SRD_A = 28; SRD_W = 32; SRD_O = 36; SRD_F = 40; SRD_T = 44
S_GI = 48
S_MT = 49; S_NT = 50; S_KK = 51; S_CNT = 52; S_SLOT = 53
S_SA = 54; S_SW = 55; S_T0 = 56; S_T1 = 57; S_T2 = 58; S_T3 = 59; S_T4 = 60; S_T5 = 61
S_M0A = 62; S_WM = 63; S_WN = 64; S_DELTA = 65; S_ONES = 66; S_ROT4 = 67; S_RLW = 68; S_RSLOT = 69; S_HEAD = 66; S_QB = 67
S_STAMP = 70
S_SAVE = 90
S_OOB = 53
S_XCC = 10; S_FAST = 11
SRD_P = 96

LDS_STATS = 131072
ST_PX, ST_PQ, ST_PC, ST_AA, ST_BB, ST_CS, ST_B1 = 0, 4096, 8192, 9216, 9728, 10240, 10752
LDS_RL = LDS_STATS + 12288

class Gen:
    def __init__(self, stop_after=None, stamps=False, opt=()):
        self.opt = set(opt)
        self.a = Asm()
        self.stop_after = stop_after
        self.stamps = stamps
        self.nstamp = 0
        self.code_rounds = 2
        self.fast_aux = "nt" if "fnt" in self.opt else ("sc0" if "fsc0" in self.opt else ("sc0 nt" if "fsc0nt" in self.opt else ""))
        self.opt_g2 = "3" if "g2s3" in self.opt else ("5" if "g2s5" in self.opt else "")
        self.ld_aux = "" if "plainld" in self.opt else "sc1"

    def srd(self, dst, base_s, off, size):
        a = self.a
        if off:
            a(f"s_add_u32 s{dst}, s{base_s}, {hex(off)}")
            a(f"s_addc_u32 s{dst+1}, s{base_s+1}, 0")
        else:
            a(f"s_mov_b32 s{dst}, s{base_s}")
            a(f"s_mov_b32 s{dst+1}, s{base_s+1}")
        a(f"s_mov_b32 s{dst+2}, {hex(size)}")
        a(f"s_mov_b32 s{dst+3}, 0x20000")

    def csel(self, dst, x, y):
        self.a(f"s_mov_b32 s{dst}, {y}")
        self.a(f"s_cselect_b32 s{dst}, {x}, s{dst}")

    def withT(self, T, fn, *args, **kw):
        old = self.V_T; self.V_T = T
        r = fn(*args, **kw)
        self.V_T = old
        return r

    def srd_twin(self, base_s, off, size):
        a = self.a
        self.srd(SRD_O, base_s, off, size)
        a(f"s_mov_b32 s{SRD_P}, s{SRD_O}")
        a(f"s_mov_b32 s{SRD_P+1}, s{SRD_O+1}")
        a(f"s_mov_b32 s{SRD_P+3}, 0x20000")
        a(f"s_cmp_eq_u32 s{S_FAST}, 1")
        a(f"s_cselect_b32 s{SRD_P+2}, s{SRD_O+2}, 0")
        a(f"s_cselect_b32 s{SRD_O+2}, 0, s{SRD_O+2}")
    def store_twin(self, op, data, vaddr, soff, extra=""):
        a = self.a
        a(f"{op} {data}, v{vaddr}, s[{SRD_O}:{SRD_O+3}], {soff} offen {extra} sc1")
        a(f"{op} {data}, v{vaddr}, s[{SRD_P}:{SRD_P+3}], {soff} offen {extra} {self.fast_aux}")

    def set_exec(self, mask):
        mask = int(str(mask), 0) & 0xFFFFFFFFFFFFFFFF
        if mask == 0xFFFFFFFFFFFFFFFF: self.a("s_mov_b64 exec, -1")
        elif mask < 0x80000000: self.a(f"s_mov_b64 exec, {hex(mask)}")
        else:
            self.a(f"s_mov_b32 exec_lo, {hex(mask & 0xffffffff)}")
            self.a(f"s_mov_b32 exec_hi, {hex(mask >> 32)}")

    def stamp(self, i=None):
        if not self.stamps: return
        if i is None: return
        self.nstamp = max(self.nstamp, i + 1)
        self.a(f"s_memtime s[100:101]")
        self.a(f"s_waitcnt lgkmcnt(0)")
        self.a(f"s_mov_b32 s{S_STAMP+i}, s100")

    def prologue(self):
        a = self.a
        a(f"s_cmp_ge_u32 s2, 256")
        a(f"s_cbranch_scc1 L_end")
        self.stamp(0)
        if self.stamps: a(f"s_memrealtime s[88:89]")
        a(f"s_load_dwordx16 s[4:19], s[0:1], 0")
        a(f"s_load_dwordx4 s[20:23], s[0:1], 64")
        a(f"s_load_dwordx2 s[24:25], s[0:1], 80")
        a(f"v_lshrrev_b32 v2, 6, v0")
        a(f"v_and_b32 v1, 63, v0")
        a(f"v_readfirstlane_b32 s{S_W}, v2")
        a(f"s_and_b32 s{S_GX}, s2, 7")
        a(f"s_lshr_b32 s{S_GI}, s2, 3")
        a(f"s_mov_b32 s{S_ONES}, 0x3f803f80")
        a(f"s_lshr_b32 s{S_WM}, s{S_W}, 2")
        a(f"s_and_b32 s{S_WN}, s{S_W}, 3")

    def finish_tag(self):
        a = self.a
        a(f"s_waitcnt lgkmcnt(0)")
        a(f"s_mul_i32 s{S_TAG}, s{S_TAG}, 0x9E3779B1")
        a(f"s_add_u32 s{S_TAG}, s{S_TAG}, 0x7F4A7C15")

    V_OFFA = 2; V_OFFW = 3
    V_AA = 2
    V_AWA = 6; V_AWB = 7
    V_AW2A = 0; V_AW2B = 1
    V_CSA = 8
    V_CSD = 12
    V_FR = 16
    V_ACC = 80
    V_T = 148
    V_LA = 4
    V_LS = 8
    V_LD = 20
    V_LU = 40
    NSLOT = 4

    def g1_setup_loader(self, WS):
        a = self.a
        T = self.V_T
        a(f"s_sub_u32 s{S_T4}, s{S_W}, 4")
        a(f"v_lshrrev_b32 v{T}, 4, v1")
        a(f"s_lshl_b32 s{S_T0}, s{S_T4}, 2")
        a(f"v_add_u32 v{T+1}, s{S_T0}, v{T}")
        a(f"v_and_b32 v{T+1}, 7, v{T+1}")
        a(f"v_and_b32 v{T+2}, 7, v1")
        a(f"v_xor_b32 v{T+1}, v{T+1}, v{T+2}")
        a(f"v_lshlrev_b32 v{T+1}, 4, v{T+1}")
        a(f"v_lshrrev_b32 v{T+2}, 3, v1")
        a(f"v_mul_u32_u24 v{T+2}, 1280, v{T+2}")
        a(f"v_add_u32 v{self.V_OFFA}, v{T+1}, v{T+2}")
        a(f"v_lshlrev_b32 v{T+1}, 2, v{T}")
        a(f"v_and_b32 v{T+2}, 15, v1")
        a(f"v_xor_b32 v{T+1}, v{T+1}, v{T+2}")
        a(f"v_lshlrev_b32 v{T+1}, 4, v{T+1}")
        a(f"v_mul_u32_u24 v{T+2}, {WS}, v{T}")
        a(f"v_add_u32 v{self.V_OFFW}, v{T+1}, v{T+2}")
        a(f"s_lshl_b32 s{S_T0}, s{S_MT}, 7")
        a(f"s_lshl_b32 s{S_T1}, s{S_T4}, 3")
        a(f"s_add_u32 s{S_T0}, s{S_T0}, s{S_T1}")
        a(f"s_mul_i32 s{S_SA}, s{S_T0}, 1280")
        a(f"s_mul_i32 s{S_T0}, s{S_T4}, {4*WS}")
        a(f"s_lshl_b32 s{S_T1}, s{S_NT}, 8")
        a(f"s_add_u32 s{S_SW}, s{S_T0}, s{S_T1}")
        a(f"s_lshl_b32 s{S_M0A}, s{S_T4}, 10")
        a(f"s_mov_b32 s{S_SLOT}, 0")

    def g1_dma1(self, WS, q):
        a = self.a
        if q == 0:
            a(f"s_lshl_b32 s{S_T2}, s{S_KK}, 7")
            a(f"s_add_u32 s{S_T2}, s{S_T2}, s{S_SA}")
            a(f"s_add_u32 m0, s{S_SLOT}, s{S_M0A}")
            a(f"s_mul_i32 s{S_T3}, s{S_KK}, {64*WS}")
        elif q == 4:
            a(f"s_add_u32 s{S_T2}, s{S_T3}, s{S_SW}")
            a(f"s_add_u32 m0, m0, 4096")
            a(f"s_nop 0")
        else:
            a(f"s_add_u32 m0, m0, 4096")
            a(f"s_add_u32 s{S_T2}, s{S_T2}, {32*1280 if q < 4 else 16*WS}")
        if q < 4:
            a(f"buffer_load_dwordx4 v{self.V_OFFA}, s[{SRD_A}:{SRD_A+3}], s{S_T2} offen {self.aux_A} lds")
        else:
            a(f"buffer_load_dwordx4 v{self.V_OFFW}, s[{SRD_W}:{SRD_W+3}], s{S_T2} offen lds")
        if q == 7:
            a(f"s_add_u32 s{S_KK}, s{S_KK}, 1")
            a(f"s_cmp_eq_u32 s{S_KK}, 10")
            a(f"s_cselect_b32 s{S_KK}, 2, s{S_KK}")
            a(f"s_add_u32 s{S_SLOT}, s{S_SLOT}, 32768")
            a(f"s_cmp_eq_u32 s{S_SLOT}, {self.NSLOT*32768}")
            a(f"s_cselect_b32 s{S_SLOT}, 0, s{S_SLOT}")

    def g1_dma_stage(self, WS):
        for q in range(8): self.g1_dma1(WS, q)

    def slot_next(self):
        a = self.a
        a(f"s_add_u32 s{S_RSLOT}, s{S_RSLOT}, 1")
        a(f"s_cmp_eq_u32 s{S_RSLOT}, {self.NSLOT}")
        a(f"s_cselect_b32 s{S_RSLOT}, 0, s{S_RSLOT}")
        a(f"s_cmp_eq_u32 s{S_RSLOT}, {self.NSLOT-1}")
        self.csel(S_DELTA, hex((-(self.NSLOT-1)*32768) & 0xffffffff), 32768)

    def g1_loader(self, WS, tag, mode):
        a = self.a
        T = self.V_T
        pre = self.NSLOT - 1
        nx = 1 if mode == "gran" else 4
        xtra = 1 if mode == "part" else 0
        for q in range(8):
            self.g1_dma1(WS, q)
        a(f"s_waitcnt vmcnt({16+xtra})")
        if "p1s" in self.opt and tag == "p1": self.stamp(18)
        a(f"s_barrier")
        if mode == "gran": self.tag_ready()
        a(f"s_mov_b32 s{S_CNT}, 0")
        L1 = f"L_{tag}_lloop"
        a.put(L1)
        a(f"s_add_u32 s{S_CNT}, s{S_CNT}, 1")
        a(f"s_waitcnt vmcnt({8*(pre-2)})")
        a(f"s_barrier")
        for q in range(8):
            if "nodma" not in self.opt: self.g1_dma1(WS, q)
        a(f"s_cmp_lt_u32 s{S_CNT}, {10-pre}")
        a(f"s_cbranch_scc1 {L1}")
        a(f"s_sub_u32 s{S_T4}, s{S_W}, 4")
        a(f"s_lshl_b32 s{S_T0}, s{S_T4}, 5")
        a(f"v_and_b32 v{T}, 31, v1")
        a(f"v_add_u32 v{T}, s{S_T0}, v{T}")
        a(f"s_lshl_b32 s{S_T1}, s{S_MT}, 7")
        a(f"v_add_u32 v{T+1}, s{S_T1}, v{T}")
        if mode == "gran":
            a(f"v_lshlrev_b32 v{T+1}, 4, v{T+1}")
            a(f"v_add_u32 v{T+1}, {hex(OFF_GR)}, v{T+1}")
            a(f"buffer_load_dwordx4 v[{T+4}:{T+7}], v{T+1}, s[{SRD_F}:{SRD_F+3}], 0 offen sc1")
        else:
            a(f"v_lshlrev_b32 v{T+1}, 7, v{T+1}")
            a(f"v_lshrrev_b32 v{T+2}, 5, v1")
            a(f"v_lshl_add_u32 v{T+1}, v{T+2}, 6, v{T+1}")
            a(f"v_add_u32 v{T+1}, {hex(OFF_PST)}, v{T+1}")
            for q in range(4):
                a(f"buffer_load_dwordx4 v[{T+4+4*q}:{T+7+4*q}], v{T+1}, s[{SRD_F}:{SRD_F+3}], 0 offen offset:{16*q} {self.ld_aux}")
        if mode == "gran":
            self.withT(T + 24, self.relayout_load)
            nx += 4
        a(f"s_waitcnt vmcnt({8+nx})")
        a(f"s_barrier")
        a(f"s_waitcnt vmcnt({nx})")
        a(f"s_barrier")
        a(f"s_barrier")
        a(f"s_waitcnt vmcnt(0)")
        if mode == "gran":
            Lp = f"L_{tag}_gpoll"; Lo = f"L_{tag}_gok"
            a(f"s_mov_b32 s{S_T0}, 0")
            a.put(Lp)
            a(f"v_cmp_ne_u32 vcc, s{S_TAG}, v{T+6}")
            a(f"v_cmp_ne_u32 s[{S_SAVE}:{S_SAVE+1}], s{S_TAG}, v{T+7}")
            a(f"s_nop 1")
            a(f"s_or_b64 vcc, vcc, s[{S_SAVE}:{S_SAVE+1}]")
            a(f"s_cbranch_vccz {Lo}")
            a(f"s_add_u32 s{S_T0}, s{S_T0}, 1")
            a(f"s_cmp_ge_u32 s{S_T0}, 0x40000")
            a(f"s_cbranch_scc1 {Lo}")
            a(f"buffer_load_dwordx4 v[{T+4}:{T+7}], v{T+1}, s[{SRD_F}:{SRD_F+3}], 0 offen sc1")
            a(f"s_waitcnt vmcnt(0)")
            a(f"s_branch {Lp}")
            a.put(Lo)
            A_, B_ = T+4, T+5
        else:
            for q in range(1, 4):
                for i in range(4):
                    a(f"v_add_f32 v{T+4+i}, v{T+4+i}, v{T+4+4*q+i}")
            a(f"v_add_f32 v{T+4}, v{T+4}, v{T+6}")
            a(f"v_add_f32 v{T+5}, v{T+5}, v{T+7}")
            a(f"v_mov_b32 v{T+6}, v{T+4}")
            a(f"v_mov_b32 v{T+7}, v{T+5}")
            a(f"s_nop 1")
            a(f"v_permlane32_swap_b32 v{T+6}, v{T+4}")
            a(f"v_permlane32_swap_b32 v{T+7}, v{T+5}")
            a(f"s_nop 1")
            a(f"v_add_f32 v{T+4}, v{T+4}, v{T+6}")
            a(f"v_add_f32 v{T+5}, v{T+5}, v{T+7}")
            self.ab_from_sums(T+4, T+5, T+8)
            A_, B_ = T+9, T+8
        a(f"v_lshlrev_b32 v{T}, 2, v{T}")
        a(f"v_add_u32 v{T}, {LDS_STATS}, v{T}")
        a(f"ds_write_b32 v{T}, v{A_} offset:{ST_AA}")
        a(f"ds_write_b32 v{T}, v{B_} offset:{ST_BB}")
        if getattr(self, "b1_hook", False):
            a(f"v_lshlrev_b32 v{T+22}, 16, v{T+22}")
            a(f"ds_write_b32 v{T}, v{T+22} offset:{ST_B1}")
        a(f"s_waitcnt lgkmcnt(0)")
        a(f"s_barrier")

    def ab_from_sums(self, sx, sq, o):
        a = self.a
        a(f"v_mul_f32 v{o}, {hex(f32(1.0/640))}, v{sx}")
        a(f"v_mul_f32 v{o+1}, {hex(f32(1.0/640))}, v{sq}")
        a(f"v_fma_f32 v{o+1}, -v{o}, v{o}, v{o+1}")
        a(f"v_max_f32 v{o+1}, 0, v{o+1}")
        a(f"v_add_f32 v{o+1}, {hex(f32(1e-5))}, v{o+1}")
        a(f"v_rsq_f32 v{o+1}, v{o+1}")
        a(f"s_nop 0")
        a(f"v_mul_f32 v{o}, v{o}, v{o+1}")
        a(f"v_sub_f32 v{o}, 0, v{o}")

    V_WRM = 252
    S_WRM = 62; S_WRMD = 54
    def p1_l2warm(self):
        a = self.a
        T = self.V_T; V = self.V_WRM
        LW = "L_warm_w"; LJ = "L_warm_j"
        a(f"s_bitcmp1_b32 s{S_W}, 0")
        a(f"s_cbranch_scc1 {LW}")
        self.srd(SRD_T, S_X, 0, 2048*1280)
        a(f"s_and_b32 s{S_T0}, s{S_GX}, 3")
        a(f"s_lshl_b32 s{S_T0}, s{S_T0}, 9")
        a(f"s_lshl_b32 s{S_T1}, s{S_GI}, 4")
        a(f"s_add_u32 s{S_T0}, s{S_T0}, s{S_T1}")
        a(f"v_add_u32 v{T}, s{S_T0}, v1")
        a(f"v_mul_u32_u24 v{V}, 1280, v{T}")
        a(f"v_cmp_gt_u32 vcc, 16, v1")
        a(f"s_mov_b32 s{self.S_WRMD}, 128")
        a(f"s_branch {LJ}a")
        a.put(LW)
        self.srd(SRD_T, S_WQKV, 0, 640*3840)
        a(f"v_lshrrev_b32 v{T}, 4, v1")
        a(f"s_lshl_b32 s{S_T0}, s{S_GI}, 1")
        a(f"v_add_u32 v{T}, s{S_T0}, v{T}")
        a(f"v_mul_u32_u24 v{V}, 3840, v{T}")
        a(f"v_and_b32 v{T+1}, 15, v1")
        a(f"v_lshl_add_u32 v{V}, v{T+1}, 7, v{V}")
        a(f"s_lshr_b32 s{S_T0}, s{S_GX}, 2")
        a(f"s_lshl_b32 s{S_T0}, s{S_T0}, 11")
        a(f"v_add_u32 v{V}, s{S_T0}, v{V}")
        a(f"v_cmp_gt_u32 vcc, 32, v1")
        a(f"s_mov_b32 s{self.S_WRMD}, {64*3840}")
        a.put(LJ + "a")
        a(f"s_cmp_ge_u32 s{S_W}, 2")
        a(f"s_cselect_b64 s[{S_SAVE}:{S_SAVE+1}], 0, vcc")
        a(f"v_mov_b32 v{T+1}, 0x7f000000")
        a(f"s_nop 0")
        a(f"v_cndmask_b32 v{V}, v{T+1}, v{V}, s[{S_SAVE}:{S_SAVE+1}]")
        a(f"s_mul_i32 s{self.S_WRM}, s{self.S_WRMD}, 3")
        for c in range(3):
            self.warm1()

    def warm1(self):
        a = self.a
        a(f"buffer_load_dword v253, v{self.V_WRM}, s[{SRD_T}:{SRD_T+3}], s{self.S_WRM} offen")
        a(f"s_add_u32 s{self.S_WRM}, s{self.S_WRM}, s{self.S_WRMD}")

    def w1_l2warm(self):
        a = self.a
        V = self.A_ALL + 1
        self.srd(SRD_T, S_W1, 0, 640*3456)
        a(f"s_mul_i32 s{S_T0}, s{S_GI}, 540")
        a(f"s_lshl_b32 s{S_T1}, s{S_W}, 6")
        a(f"s_add_u32 s{S_T0}, s{S_T0}, s{S_T1}")
        a(f"v_add_u32 v{V}, s{S_T0}, v1")
        a(f"v_lshlrev_b32 v{V}, 7, v{V}")
        a(f"buffer_load_dword v{V+1}, v{V}, s[{SRD_T}:{SRD_T+3}], 0 offen")
        L = "L_w1w_skip"
        a(f"s_cmp_lg_u32 s{S_W}, 0")
        a(f"s_cbranch_scc1 {L}")
        self.set_exec((1 << 28) - 1)
        a(f"s_mov_b32 s{S_T1}, {512*128}")
        a(f"buffer_load_dword v{V+1}, v{V}, s[{SRD_T}:{SRD_T+3}], s{S_T1} offen")
        a(f"s_mov_b64 exec, -1")
        a(f"v_lshlrev_b32 v{V+2}, 7, v1")
        self.srd(SRD_T, S_B1, 0, 3456)
        a(f"buffer_load_dword v{V+1}, v{V+2}, s[{SRD_T}:{SRD_T+3}], 0 offen")
        self.srd(SRD_T, S_B2, 0, 1280)
        a(f"buffer_load_dword v{V+1}, v{V+2}, s[{SRD_T}:{SRD_T+3}], 0 offen")
        a.put(L)

    def dst_l2warm(self):
        a = self.a
        V = self.A_ALL + 1
        L = "L_dstw_skip"
        a(f"s_cmp_eq_u32 s{S_FAST}, 0")
        a(f"s_cbranch_scc1 {L}")
        self.srd(SRD_T, S_WS, 0, 0x1B00000)
        a(f"s_lshl_b32 s{S_T0}, s{S_W}, 6")
        a(f"v_add_u32 v{V}, s{S_T0}, v1")
        a(f"s_mul_i32 s{S_T0}, s{S_GX}, 2560")
        a(f"s_mul_i32 s{S_T1}, s{S_GI}, 80")
        a(f"s_add_u32 s{S_T0}, s{S_T0}, s{S_T1}")
        a(f"s_add_u32 s{S_T0}, s{S_T0}, {OFF_H//128}")
        a(f"s_mul_i32 s{S_T1}, s{S_GX}, 6912")
        a(f"s_mul_i32 s{S_T2}, s{S_GI}, 216")
        a(f"s_add_u32 s{S_T1}, s{S_T1}, s{S_T2}")
        a(f"s_add_u32 s{S_T1}, s{S_T1}, {OFF_R//128 - 80}")
        a(f"s_lshl_b32 s{S_T2}, s{S_GX}, 8")
        a(f"s_lshl_b32 s{S_T3}, s{S_GI}, 3")
        a(f"s_add_u32 s{S_T2}, s{S_T2}, s{S_T3}")
        a(f"s_add_u32 s{S_T2}, s{S_T2}, {OFF_PST//128 - 296}")
        a(f"v_mov_b32 v{V+2}, s{S_T2}")
        a(f"v_mov_b32 v{V+1}, s{S_T1}")
        a(f"v_cmp_gt_u32 vcc, 296, v{V}")
        a(f"s_nop 1")
        a(f"v_cndmask_b32 v{V+2}, v{V+2}, v{V+1}, vcc")
        a(f"v_mov_b32 v{V+1}, s{S_T0}")
        a(f"v_cmp_gt_u32 vcc, 80, v{V}")
        a(f"s_nop 1")
        a(f"v_cndmask_b32 v{V+2}, v{V+2}, v{V+1}, vcc")
        a(f"v_add_u32 v{V+2}, v{V+2}, v{V}")
        a(f"v_lshlrev_b32 v{V+2}, 7, v{V+2}")
        a(f"v_cmp_gt_u32 vcc, 304, v{V}")
        a(f"s_and_saveexec_b64 s[{S_SAVE}:{S_SAVE+1}], vcc")
        a(f"s_cbranch_execz {L}x")
        a(f"buffer_load_dword v{V+1}, v{V+2}, s[{SRD_T}:{SRD_T+3}], 0 offen")
        a.put(L + "x")
        a(f"s_mov_b64 exec, -1")
        a.put(L)

    def xstats_publish(self):
        a = self.a
        T = self.V_T
        self.srd(SRD_O, S_X, 0, 2048*1280)
        a(f"s_lshl_b32 s{S_T0}, s2, 3")
        a(f"s_lshl_b32 s{S_T1}, s{S_W}, 1")
        a(f"s_add_u32 s{S_T0}, s{S_T0}, s{S_T1}")
        a(f"v_lshrrev_b32 v{T}, 5, v1")
        a(f"v_add_u32 v{T}, s{S_T0}, v{T}")
        a(f"v_mul_u32_u24 v{T+1}, 1280, v{T}")
        a(f"v_and_b32 v{T+2}, 31, v1")
        a(f"v_lshl_add_u32 v{T+1}, v{T+2}, 3, v{T+1}")
        D = T + 4
        for j in range(5):
            a(f"buffer_load_dwordx2 v[{D+2*j}:{D+2*j+1}], v{T+1}, s[{SRD_O}:{SRD_O+3}], 0 offen offset:{256*j}")
        return D

    def xstats_finish(self, D):
        a = self.a
        T = self.V_T
        S = T + 16
        a(f"v_mov_b32 v{S}, 0"); a(f"v_mov_b32 v{S+1}, 0")
        a(f"s_waitcnt vmcnt(0)")
        for r in range(10):
            a(f"v_lshlrev_b32 v{S+2}, 16, v{D+r}")
            a(f"v_and_b32 v{S+3}, 0xffff0000, v{D+r}")
            a(f"v_add_f32 v{S}, v{S}, v{S+2}")
            a(f"v_fmac_f32 v{S+1}, v{S+2}, v{S+2}")
            a(f"v_add_f32 v{S}, v{S}, v{S+3}")
            a(f"v_fmac_f32 v{S+1}, v{S+3}, v{S+3}")
        for ctl in ("row_shr:1", "row_shr:2", "row_shr:4", "row_shr:8"):
            a(f"s_nop 1")
            a(f"v_add_f32_dpp v{S}, v{S}, v{S} {ctl} row_mask:0xf bank_mask:0xf bound_ctrl:0")
            a(f"v_add_f32_dpp v{S+1}, v{S+1}, v{S+1} {ctl} row_mask:0xf bank_mask:0xf bound_ctrl:0")
        a(f"s_nop 1")
        a(f"v_add_f32_dpp v{S}, v{S}, v{S} row_bcast:15 row_mask:0xa bank_mask:0xf")
        a(f"v_add_f32_dpp v{S+1}, v{S+1}, v{S+1} row_bcast:15 row_mask:0xa bank_mask:0xf")
        a(f"s_nop 1")
        self.ab_from_sums(S, S+1, S+5)
        a(f"v_mov_b32 v{S+8}, v{S+6}")
        a(f"v_mov_b32 v{S+9}, v{S+5}")
        self.tag_ready()
        a(f"v_mov_b32 v{S+10}, s{S_TAG}")
        a(f"v_mov_b32 v{S+11}, s{S_TAG}")
        a(f"v_lshlrev_b32 v{T}, 4, v{T}")
        a(f"v_add_u32 v{T}, {hex(OFF_GR)}, v{T}")
        a(f"s_mov_b32 exec_lo, 0x80000000")
        a(f"s_mov_b32 exec_hi, 0x80000000")
        a(f"buffer_store_dwordx4 v[{S+8}:{S+11}], v{T}, s[{SRD_F}:{SRD_F+3}], 0 offen sc1")
        a(f"s_mov_b64 exec, -1")

    def tag_ready(self):
        a = self.a
        a(f"s_waitcnt lgkmcnt(0)")
        a(f"s_getreg_b32 s{S_XCC}, hwreg(HW_REG_XCC_ID, 0, 4)")
        a(f"s_mov_b32 s{S_FAST}, 0")
        a(f"s_mul_i32 s{S_TAG}, s{S_TAG}, 0x9E3779B1")
        a(f"s_add_u32 s{S_TAG}, s{S_TAG}, 0x7F4A7C15")

    def g1_setup_compute(self):
        a = self.a
        T = self.V_FR
        a(f"s_lshr_b32 s{S_WM}, s{S_W}, 1")
        a(f"s_and_b32 s{S_WN}, s{S_W}, 1")
        a(f"v_and_b32 v{T}, 31, v1")
        a(f"s_lshl_b32 s{S_T0}, s{S_WM}, 6")
        a(f"v_add_u32 v{T+1}, s{S_T0}, v{T}")
        a(f"v_lshlrev_b32 v{T+1}, 7, v{T+1}")
        a(f"v_bfe_u32 v{T+2}, v{T}, 1, 3")
        a(f"v_lshrrev_b32 v{T+3}, 5, v1")
        a(f"v_xor_b32 v{T+2}, v{T+2}, v{T+3}")
        for j in range(4):
            a(f"v_xor_b32 v{self.V_AA+j}, {2*j}, v{T+2}")
            a(f"v_lshlrev_b32 v{self.V_AA+j}, 4, v{self.V_AA+j}")
            a(f"v_add_u32 v{self.V_AA+j}, v{self.V_AA+j}, v{T+1}")
        a(f"v_and_b32 v{T+4}, 15, v1")
        a(f"v_lshrrev_b32 v{T+5}, 2, v{T+4}")
        a(f"v_lshlrev_b32 v{T+6}, 3, v{T+3}")
        a(f"v_add_u32 v{T+6}, v{T+6}, v{T+5}")
        a(f"v_lshlrev_b32 v{T+6}, 8, v{T+6}")
        a(f"v_bfe_u32 v{T+7}, v1, 4, 1")
        a(f"v_lshlrev_b32 v{T+7}, 1, v{T+7}")
        a(f"v_bfe_u32 v{T+8}, v1, 1, 1")
        a(f"v_add_u32 v{T+7}, v{T+7}, v{T+8}")
        a(f"s_lshl_b32 s{S_T0}, s{S_WN}, 3")
        a(f"s_lshl_b32 s{S_T1}, s{S_WM}, 2")
        a(f"s_add_u32 s{S_T0}, s{S_T0}, s{S_T1}")
        a(f"v_add_u32 v{T+7}, s{S_T0}, v{T+7}")
        a(f"v_lshlrev_b32 v{T+5}, 2, v{T+5}")
        a(f"v_xor_b32 v{T+7}, v{T+7}, v{T+5}")
        a(f"v_lshlrev_b32 v{T+7}, 4, v{T+7}")
        a(f"v_and_b32 v{T+8}, 1, v1")
        a(f"v_lshlrev_b32 v{T+8}, 3, v{T+8}")
        a(f"v_add_u32 v{T+6}, v{T+6}, v{T+7}")
        a(f"v_add_u32 v{T+6}, v{T+6}, v{T+8}")
        a(f"v_add_u32 v{self.V_AWA}, 16384, v{T+6}")
        a(f"v_xor_b32 v{self.V_AWB}, 64, v{self.V_AWA}")
        a(f"v_and_b32 v{T}, 15, v1")
        a(f"v_bfe_u32 v{T+1}, v1, 4, 1")
        a(f"v_cmp_eq_u32 vcc, v{T}, v{T+1}")
        a(f"v_mov_b32 v{T+2}, 0x3f803f80")
        a(f"s_nop 1")
        a(f"v_cndmask_b32 v{self.V_CSA}, 0, v{T+2}, vcc")
        for r in range(1, 4):
            a(f"v_mov_b32 v{self.V_CSA+r}, v{self.V_CSA}")
        for r in range(4):
            a(f"v_mov_b32 v{self.V_CSD+r}, 0")
        for r in range(64):
            a(f"v_mov_b32 v{self.V_ACC+r}, 0")

    def g1_read1(self, j, q):
        if "noreads" in self.opt: return
        a = self.a
        F = self.V_FR + 16*j
        if q == 0: a(f"ds_read_b128 v[{F}:{F+3}], v{self.V_AA+j}")
        elif q == 1: a(f"ds_read_b128 v[{F+4}:{F+7}], v{self.V_AA+j} offset:4096")
        else:
            ad = (self.V_AWA if q == 2 else self.V_AWB) if j != 3 else (self.V_AW2A if q == 2 else self.V_AW2B)
            R = F + 8 + 4*(q-2)
            a(f"ds_read_b64_tr_b16 v[{R}:{R+1}], v{ad} offset:{4096*j}")
            a(f"ds_read_b64_tr_b16 v[{R+2}:{R+3}], v{ad} offset:{4096*j+1024}")

    def g1_mfma1(self, j, orient, tt, q):
        if "nomfma" in self.opt: return
        a = self.a
        F = self.V_FR + 16*j
        X = f"v[{F+4*tt}:{F+4*tt+3}]"; W = f"v[{F+8+4*q}:{F+11+4*q}]"
        A = self.V_ACC + 16*(2*tt+q)
        D = f"v[{A}:{A+15}]"
        if orient == "T": a(f"v_mfma_f32_32x32x16_bf16 {D}, {W}, {X}, {D}")
        else:             a(f"v_mfma_f32_32x32x16_bf16 {D}, {X}, {W}, {D}")

    def g1_colsum(self, j):
        if "nostats" in self.opt: return
        F = self.V_FR + 16*j; D = self.V_CSD
        self.a(f"v_mfma_f32_16x16x32_bf16 v[{D}:{D+3}], v[{self.V_CSA}:{self.V_CSA+3}], v[{F+8}:{F+11}], v[{D}:{D+3}]")

    def g1_adv(self):
        a = self.a
        for r in list(range(self.V_AA, self.V_AA+4)) + [self.V_AWA, self.V_AWB]:
            a(f"v_add_u32 v{r}, s{S_DELTA}, v{r}")

    def g1_cstep(self, j, orient, rset, fill=((), (), (), ())):
        a = self.a
        order = (2, 0, 1, 3)
        cp = getattr(self, "cprof", False)
        if cp: a(f"s_memtime s[{72+4*j}:{73+4*j}]")
        a(f"s_waitcnt lgkmcnt(12)")
        if cp: a(f"s_memtime s[{74+4*j}:{75+4*j}]")
        for k, (tt, q) in enumerate(((0, 0), (1, 0), (0, 1), (1, 1))):
            self.g1_mfma1(j, orient, tt, q)
            if k == 0: self.g1_colsum(j)
            self.g1_read1(rset, order[k])
            for f in fill[k]: a(f)

    def g1_compute(self, orient, tag):
        a = self.a
        self.g1_setup_compute()
        AA = self.V_AA
        a(f"v_mov_b32 v{self.V_AW2A}, v{self.V_AWA}")
        a(f"v_mov_b32 v{self.V_AW2B}, v{self.V_AWB}")
        a(f"s_barrier")
        self.stamp(self.st1)
        for j in range(3):
            for q in (2, 0, 1, 3): self.g1_read1(j, q)
        DA, DB = S_DELTA, S_T5
        a(f"s_mov_b32 s{S_CNT}, 0")
        a(f"s_mov_b32 s{S_RSLOT}, 1")
        a(f"s_mov_b32 s{DA}, 32768")
        a(f"v_add_u32 v{AA}, s{DA}, v{AA}")
        a(f"v_add_u32 v{AA+1}, s{DA}, v{AA+1}")
        wrap = hex((-(self.NSLOT-1)*32768) & 0xffffffff)
        L1 = f"L_{tag}_cloop"
        a(f".p2align 5")
        a.put(L1)
        self.g1_cstep(0, orient, 3, ((f"v_add_u32 v{AA+2}, s{DA}, v{AA+2}",), (f"v_add_u32 v{self.V_AWA}, s{DA}, v{self.V_AWA}",),
                                     (f"v_add_u32 v{self.V_AWB}, s{DA}, v{self.V_AWB}",), ()))
        a(f"s_barrier")
        self.g1_cstep(1, orient, 0, ((f"v_add_u32 v{AA+3}, s{DA}, v{AA+3}", f"s_cmp_eq_u32 s{S_RSLOT}, {self.NSLOT-1}"),
                                     (f"s_mov_b32 s{DB}, 32768", f"s_cselect_b32 s{DB}, {wrap}, s{DB}"),
                                     (f"v_mov_b32 v{self.V_AW2A}, v{self.V_AWA}", f"s_cselect_b32 s{S_RSLOT}, -1, s{S_RSLOT}"),
                                     (f"v_mov_b32 v{self.V_AW2B}, v{self.V_AWB}", f"s_add_u32 s{S_RSLOT}, s{S_RSLOT}, 1")))
        wf = ()
        if getattr(self, "warm_fill", False):
            wf = (f"s_cmp_eq_u32 s{S_CNT}, 3", f"s_cselect_b32 s{self.S_WRMD}, s{self.S_WRM}, s{S_OOB}", f"buffer_load_dword v253, v{self.V_WRM}, s[{SRD_T}:{SRD_T+3}], s{self.S_WRMD} offen")
        self.g1_cstep(2, orient, 1, ((f"v_add_u32 v{AA}, s{DB}, v{AA}",), (f"s_add_u32 s{S_CNT}, s{S_CNT}, 1",), wf, ()))
        self.g1_cstep(3, orient, 2, ((f"v_add_u32 v{AA+1}, s{DB}, v{AA+1}",), (f"s_mov_b32 s{DA}, s{DB}",), (f"s_cmp_lt_u32 s{S_CNT}, 10",), ()))
        a(f"s_cbranch_scc1 {L1}")
        a(f"s_waitcnt lgkmcnt(0)")
        a(f"v_mbcnt_lo_u32_b32 v1, -1, 0")
        a(f"v_mbcnt_hi_u32_b32 v1, -1, v1")
        T = self.V_FR
        a(f"s_lshl_b32 s{S_T0}, s{S_WN}, 8")
        a(f"s_lshl_b32 s{S_T1}, s{S_WM}, 7")
        a(f"s_add_u32 s{S_T0}, s{S_T0}, s{S_T1}")
        a(f"s_add_u32 s{S_T0}, s{S_T0}, {LDS_STATS+ST_CS}")
        a(f"v_lshlrev_b32 v{T}, 2, v1")
        a(f"v_add_u32 v{T}, s{S_T0}, v{T}")
        a(f"s_nop 4")
        a(f"s_mov_b64 exec, 0xffff")
        a(f"ds_write_b32 v{T}, v{self.V_CSD}")
        a(f"ds_write_b32 v{T}, v{self.V_CSD+1} offset:64")
        a(f"s_mov_b64 exec, -1")
        a(f"s_waitcnt lgkmcnt(0)")
        a(f"s_barrier")

    def magic_div5(self, dst, src):
        self.a(f"v_mul_u32_u24 v{dst}, 52429, v{src}")
        self.a(f"v_lshrrev_b32 v{dst}, 18, v{dst}")
    def magic_div20(self, dst, src):
        self.a(f"v_mul_u32_u24 v{dst}, 52429, v{src}")
        self.a(f"v_lshrrev_b32 v{dst}, 20, v{dst}")

    def epi_T_common(self):
        a = self.a
        T = self.V_T; CSR = self.V_FR
        a(f"v_and_b32 v{T}, 31, v1")
        a(f"s_lshl_b32 s{S_T0}, s{S_WM}, 6")
        a(f"v_add_u32 v{T+1}, s{S_T0}, v{T}")
        a(f"v_lshlrev_b32 v{T+1}, 2, v{T+1}")
        a(f"v_add_u32 v{T+1}, {LDS_STATS}, v{T+1}")
        a(f"ds_read_b32 v{T+2}, v{T+1} offset:{ST_AA}")
        a(f"ds_read_b32 v{T+3}, v{T+1} offset:{ST_BB}")
        a(f"ds_read_b32 v{T+4}, v{T+1} offset:{ST_AA+128}")
        a(f"ds_read_b32 v{T+5}, v{T+1} offset:{ST_BB+128}")
        a(f"v_lshrrev_b32 v{T+6}, 5, v1")
        a(f"s_lshl_b32 s{S_T0}, s{S_WN}, 8")
        a(f"s_lshl_b32 s{S_T1}, s{S_WM}, 7")
        a(f"s_add_u32 s{S_T0}, s{S_T0}, s{S_T1}")
        a(f"s_add_u32 s{S_T0}, s{S_T0}, {LDS_STATS+ST_CS}")
        a(f"v_lshlrev_b32 v{T+7}, 4, v{T+6}")
        a(f"v_add_u32 v{T+7}, s{S_T0}, v{T+7}")
        a(f"v_xor_b32 v{T+1}, 128, v{T+7}")
        for g in range(4):
            a(f"ds_read_b128 v[{CSR+4*g}:{CSR+4*g+3}], v{T+7} offset:{32*g}")
        for g in range(4):
            a(f"ds_read_b128 v[{CSR+16+4*g}:{CSR+16+4*g+3}], v{T+1} offset:{32*g}")

    def p1_epi_T(self):
        a = self.a
        T = self.V_T; A = self.V_ACC; CSR = self.V_FR
        self.epi_T_common()
        a(f"s_cmp_lt_u32 s{S_NT}, 5")
        a(f"s_cselect_b32 s{S_T0}, {hex(f32(math.log2(math.e)/math.sqrt(20.0)))}, 1.0")
        self.csel(S_T1, 81920, 163840)
        self.csel(S_T2, 1280, 2560)
        a(f"s_cselect_b32 s{S_T3}, 0, 5")
        self.csel(S_T4, hex(OFF_Q), hex(OFF_KV))
        self.csel(S_T5, hex(SZ_Q), hex(SZ_KV))
        a(f"s_add_u32 s{SRD_O}, s{S_WS}, s{S_T4}")
        a(f"s_addc_u32 s{SRD_O+1}, s{S_WS+1}, 0")
        a(f"s_mov_b32 s{SRD_O+2}, s{S_T5}")
        a(f"s_mov_b32 s{SRD_O+3}, 0x20000")
        a(f"s_sub_u32 s{S_T3}, s{S_NT}, s{S_T3}")
        a(f"s_lshl_b32 s{S_T3}, s{S_T3}, 5")
        a(f"s_lshl_b32 s{S_T4}, s{S_WN}, 4")
        a(f"s_add_u32 s{S_T3}, s{S_T3}, s{S_T4}")
        a(f"s_lshl_b32 s{S_T4}, s{S_WM}, 3")
        AD = T + 8
        for q in range(2):
            for g in range(4):
                if q == 0:
                    a(f"s_add_u32 s{S_T5}, s{S_T3}, s{S_T4}")
                else:
                    a(f"s_xor_b32 s{S_T5}, s{S_T4}, 8")
                    a(f"s_add_u32 s{S_T5}, s{S_T5}, s{S_T3}")
                a(f"s_add_u32 s{S_T5}, s{S_T5}, {2*g}")
                a(f"v_add_u32 v{T+16}, s{S_T5}, v{T+6}")
                self.magic_div5(T+17, T+16)
                a(f"v_mul_u32_u24 v{T+18}, 5, v{T+17}")
                a(f"v_sub_u32 v{T+18}, v{T+16}, v{T+18}")
                a(f"v_mul_lo_u32 v{T+17}, v{T+17}, s{S_T1}")
                a(f"v_lshlrev_b32 v{T+18}, 8, v{T+18}")
                a(f"v_add_u32 v{T+17}, v{T+17}, v{T+18}")
                a(f"v_lshl_add_u32 v{AD+4*q+g}, v{T}, 3, v{T+17}")
        a(f"s_lshl_b32 s{S_T4}, s{S_MT}, 2")
        a(f"s_lshl_b32 s{S_T5}, s{S_WM}, 1")
        a(f"s_add_u32 s{S_T4}, s{S_T4}, s{S_T5}")
        a(f"s_mul_i32 s{S_T4}, s{S_T4}, s{S_T2}")
        a(f"s_add_u32 s{S_T5}, s{S_T4}, s{S_T2}")
        a(f"s_waitcnt lgkmcnt(0)")
        for tt in range(2):
            a(f"v_mul_f32 v{T+2+2*tt}, s{S_T0}, v{T+2+2*tt}")
            a(f"v_mul_f32 v{T+3+2*tt}, s{S_T0}, v{T+3+2*tt}")
        for tt in range(2):
            for q in range(2):
                for g in range(4):
                    for i in range(4):
                        r = A + 16*(2*tt+q) + 4*g + i
                        a(f"v_mul_f32 v{r}, v{T+2+2*tt}, v{r}")
                        a(f"v_fmac_f32 v{r}, v{T+3+2*tt}, v{CSR+16*q+4*g+i}")
                    r = A + 16*(2*tt+q) + 4*g
                    a(f"v_cvt_pk_bf16_f32 v{r}, v{r}, v{r+1}")
                    a(f"v_cvt_pk_bf16_f32 v{r+1}, v{r+2}, v{r+3}")
                    a(f"buffer_store_dwordx2 v[{r}:{r+1}], v{AD+4*q+g}, s[{SRD_O}:{SRD_O+3}], s{S_T4+tt} offen sc1")

    def p1_epi_N(self):
        a = self.a
        T = self.V_T; A = self.V_ACC
        AB = self.V_FR; BB = self.V_FR + 16
        a(f"v_and_b32 v{T}, 31, v1")
        a(f"v_lshrrev_b32 v{T+6}, 5, v1")
        a(f"s_lshl_b32 s{S_T0}, s{S_WM}, 8")
        a(f"v_lshlrev_b32 v{T+4}, 4, v{T+6}")
        a(f"v_add_u32 v{T+4}, s{S_T0}, v{T+4}")
        a(f"v_add_u32 v{T+4}, {LDS_STATS}, v{T+4}")
        a(f"s_mov_b32 s{S_T2}, 163840")
        for q in range(2):
            a(f"s_xor_b32 s{S_T0}, s{S_WM}, {q}")
            a(f"s_lshl_b32 s{S_T0}, s{S_T0}, 5")
            a(f"s_lshl_b32 s{S_T1}, s{S_WN}, 6")
            a(f"s_add_u32 s{S_T0}, s{S_T0}, s{S_T1}")
            a(f"v_add_u32 v{T+1}, s{S_T0}, v{T}")
            a(f"v_lshlrev_b32 v{T+2}, 2, v{T+1}")
            a(f"v_add_u32 v{T+2}, {LDS_STATS+ST_CS}, v{T+2}")
            a(f"ds_read_b32 v{T+10+q}, v{T+2}")
            a(f"s_sub_u32 s{S_T1}, s{S_NT}, 10")
            a(f"s_lshl_b32 s{S_T1}, s{S_T1}, 7")
            a(f"v_add_u32 v{T+7}, s{S_T1}, v{T+1}")
            self.magic_div20(T+8, T+7)
            a(f"v_mul_u32_u24 v{T+9}, 20, v{T+8}")
            a(f"v_sub_u32 v{T+9}, v{T+7}, v{T+9}")
            a(f"v_mul_lo_u32 v{T+8}, v{T+8}, s{S_T2}")
            a(f"v_lshlrev_b32 v{T+9}, 4, v{T+9}")
            a(f"v_add_u32 v{T+8}, v{T+8}, v{T+9}")
            a(f"v_mul_u32_u24 v{T+9}, 320, v{T+6}")
            a(f"v_add_u32 v{T+8}, v{T+8}, v{T+9}")
            a(f"v_add_u32 v{T+12+q}, 1280, v{T+8}")
        self.srd(SRD_O, S_WS, OFF_KV, SZ_KV)
        a(f"s_lshl_b32 s{S_T4}, s{S_MT}, 2")
        a(f"s_lshl_b32 s{S_T5}, s{S_WM}, 1")
        a(f"s_add_u32 s{S_T4}, s{S_T4}, s{S_T5}")
        a(f"s_mul_i32 s{S_T4}, s{S_T4}, 2560")
        a(f"s_add_u32 s{S_T5}, s{S_T4}, 2560")
        for tt in range(2):
            for g in range(4):
                a(f"ds_read_b128 v[{AB+4*g}:{AB+4*g+3}], v{T+4} offset:{ST_AA + 128*tt + 32*g}")
                a(f"ds_read_b128 v[{BB+4*g}:{BB+4*g+3}], v{T+4} offset:{ST_BB + 128*tt + 32*g}")
            a(f"s_waitcnt lgkmcnt(0)")
            for q in range(2):
                for r in range(16):
                    R = A + 16*(2*tt+q) + r
                    a(f"v_mul_f32 v{R}, v{AB+r}, v{R}")
                    a(f"v_fmac_f32 v{R}, v{BB+r}, v{T+10+q}")
                for st in range(2):
                    R = A + 16*(2*tt+q) + 8*st
                    for z in range(4):
                        a(f"v_cvt_pk_bf16_f32 v{R+z}, v{R+2*z}, v{R+2*z+1}")
                    a(f"buffer_store_dwordx4 v[{R}:{R+3}], v{T+12+q}, s[{SRD_O}:{SRD_O+3}], s{S_T4+tt} offen offset:{640*st} sc1")

    def relayout_unit(self):
        pass

    def rl_unit(self):
        a = self.a
        a(f"s_lshl_b32 s{S_T0}, s2, 2")
        a(f"s_and_b32 s{S_T5}, s{S_W}, 3")
        a(f"s_add_u32 s{S_T0}, s{S_T0}, s{S_T5}")

    def rl_src(self, srd):
        a = self.a
        self.rl_unit()
        a(f"s_cmp_lt_u32 s{S_T0}, 540")
        a(f"s_cselect_b32 s{S_T1}, 0, 540")
        a(f"s_cselect_b32 s{srd}, s{S_W2}, s{S_WO}")
        a(f"s_cselect_b32 s{srd+1}, s{S_W2+1}, s{S_WO+1}")
        self.csel(srd+2, 1728*1280, 640*1280)
        a(f"s_mov_b32 s{srd+3}, 0x20000")
        a(f"s_sub_u32 s{S_T1}, s{S_T0}, s{S_T1}")
        a(f"s_mul_hi_u32 s{S_T2}, s{S_T1}, {hex((2**32+9)//10)}")
        a(f"s_mul_i32 s{S_T3}, s{S_T2}, 10")
        a(f"s_sub_u32 s{S_T3}, s{S_T1}, s{S_T3}")
        a(f"s_mul_i32 s{S_T2}, s{S_T2}, {32*1280}")
        a(f"s_lshl_b32 s{S_T3}, s{S_T3}, 7")
        a(f"s_add_u32 s{S_T2}, s{S_T2}, s{S_T3}")
        a(f"s_cmp_ge_u32 s{S_T0}, 740")
        a(f"s_cselect_b32 s{S_T2}, 0x70000000, s{S_T2}")

    def relayout_load(self):
        a = self.a
        T = self.V_T
        self.rl_src(SRD_T)
        a(f"v_lshrrev_b32 v{T}, 3, v1")
        a(f"v_mul_u32_u24 v{T}, 1280, v{T}")
        a(f"v_and_b32 v{T+1}, 7, v1")
        a(f"v_lshl_add_u32 v{T}, v{T+1}, 4, v{T}")
        a(f"s_lshl_b32 s{S_T3}, s{S_T5}, 12")
        a(f"s_add_u32 m0, s{S_T3}, {LDS_RL}")
        for jj in range(4):
            a(f"s_nop 0")
            a(f"buffer_load_dwordx4 v{T}, s[{SRD_T}:{SRD_T+3}], s{S_T2} offen lds")
            if jj < 3:
                a(f"s_add_u32 m0, m0, 1024")
                a(f"s_add_u32 s{S_T2}, s{S_T2}, {8*1280}")

    def relayout_warm_setup(self):
        a = self.a
        V = self.V_WRM
        self.rl_src(SRD_T)
        a(f"s_mov_b32 s{self.S_WRM}, s{S_T2}")
        a(f"s_mov_b32 s{S_OOB}, 0x70000000")
        a(f"v_mul_u32_u24 v{V}, 1280, v1")
        a(f"v_cmp_gt_u32 vcc, 32, v1")
        a(f"v_mov_b32 v{V-1}, 0x7f000000")
        a(f"s_nop 0")
        a(f"v_cndmask_b32 v{V}, v{V-1}, v{V}, vcc")

    def relayout_store(self):
        a = self.a
        T = self.V_T
        Lskip = "L_rl_skip2"
        self.rl_unit()
        a(f"s_cmp_ge_u32 s{S_T0}, 740")
        a(f"s_cbranch_scc1 {Lskip}")
        a(f"s_cmp_lt_u32 s{S_T0}, 540")
        a(f"s_cselect_b32 s{S_T1}, 0, 540")
        self.csel(S_T4, hex(OFF_W2P), hex(OFF_WOP))
        self.csel(S_T3, hex(SZ_W2P), hex(SZ_WOP))
        a(f"s_mov_b32 s{SRD_T+2}, s{S_T3}")
        a(f"s_sub_u32 s{S_T1}, s{S_T0}, s{S_T1}")
        a(f"s_add_u32 s{SRD_T}, s{S_WS}, s{S_T4}")
        a(f"s_addc_u32 s{SRD_T+1}, s{S_WS+1}, 0")
        a(f"s_mov_b32 s{SRD_T+3}, 0x20000")
        a(f"s_mul_hi_u32 s{S_T2}, s{S_T1}, {hex((2**32+9)//10)}")
        a(f"s_mul_i32 s{S_T3}, s{S_T2}, 10")
        a(f"s_sub_u32 s{S_T3}, s{S_T1}, s{S_T3}")
        a(f"s_mul_i32 s{S_T2}, s{S_T2}, 40")
        a(f"s_lshl_b32 s{S_T3}, s{S_T3}, 2")
        a(f"s_add_u32 s{S_T2}, s{S_T2}, s{S_T3}")
        a(f"s_lshl_b32 s{S_T2}, s{S_T2}, 10")
        a(f"v_lshrrev_b32 v{T}, 4, v1")
        a(f"v_lshlrev_b32 v{T}, 3, v{T}")
        a(f"v_bfe_u32 v{T+1}, v1, 2, 2")
        a(f"v_add_u32 v{T}, v{T}, v{T+1}")
        a(f"v_lshlrev_b32 v{T}, 7, v{T}")
        a(f"v_and_b32 v{T+1}, 3, v1")
        a(f"v_lshl_add_u32 v{T}, v{T+1}, 3, v{T}")
        a(f"s_lshl_b32 s{S_T3}, s{S_T5}, 12")
        a(f"s_add_u32 s{S_T3}, s{S_T3}, {LDS_RL}")
        a(f"v_add_u32 v{T}, s{S_T3}, v{T}")
        a(f"v_lshlrev_b32 v{T+1}, 4, v1")
        O = T + 4
        for tq in range(4):
            a(f"ds_read_b64_tr_b16 v[{O+4*tq}:{O+4*tq+1}], v{T} offset:{32*tq}")
            a(f"ds_read_b64_tr_b16 v[{O+4*tq+2}:{O+4*tq+3}], v{T} offset:{32*tq+512}")
        a(f"s_waitcnt lgkmcnt(0)")
        for tq in range(4):
            a(f"buffer_store_dwordx4 v[{O+4*tq}:{O+4*tq+3}], v{T+1}, s[{SRD_T}:{SRD_T+3}], s{S_T2} offen offset:{1024*tq} sc1")
        a.put(Lskip)

    def p1(self):
        a = self.a
        a(f"s_and_b32 s{S_T0}, s{S_GX}, 3")
        a(f"s_lshl_b32 s{S_T0}, s{S_T0}, 2")
        a(f"s_and_b32 s{S_T1}, s{S_GI}, 3")
        a(f"s_add_u32 s{S_MT}, s{S_T0}, s{S_T1}")
        a(f"s_lshr_b32 s{S_T0}, s{S_GX}, 2")
        a(f"s_lshl_b32 s{S_T0}, s{S_T0}, 3")
        a(f"s_lshr_b32 s{S_T2}, s{S_GI}, 2")
        a(f"s_add_u32 s{S_NT}, s{S_T0}, s{S_T2}")
        a(f"s_lshl_b32 s{S_T1}, s{S_T1}, 1")
        a(f"s_add_u32 s{S_RLW}, s{S_T1}, s{S_T2}")
        a(f"s_and_b32 s{S_RLW}, s{S_RLW}, 7")
        a(f"s_mov_b32 s{S_KK}, 0")
        self.aux_A = ""
        self.st1 = 1
        a(f"s_cmp_lt_u32 s{S_W}, 4")
        a(f"s_cbranch_scc1 L_p1_compute")
        self.g1_setup_loader(3840)
        a(f"s_waitcnt lgkmcnt(0)")
        if "p1s" in self.opt: self.stamp(15)
        self.srd(SRD_A, S_X, 0, 2048*1280)
        self.srd(SRD_W, S_WQKV, 0, 640*3840)
        a(f"s_load_dword s{S_TAG}, s[{S_WS}:{S_WS+1}], {OFF_EPOCH}")
        a(f"s_cmp_ge_u32 s{S_NT}, 15")
        a(f"s_cbranch_scc1 L_p1_lnull")
        self.g1_dma_stage(3840)
        if "p1s" in self.opt: self.stamp(16)
        self.g1_dma_stage(3840)
        if "norot" not in self.opt: a(f"s_add_u32 s{S_KK}, s{S_RLW}, 2")
        self.srd(SRD_F, S_WS, 0, 0x100000)
        if "p1s" in self.opt: self.stamp(17)
        self.g1_loader(3840, "p1", "gran")
        a(f"s_branch L_p1_lj")
        a.put("L_p1_lnull")
        self.srd(SRD_F, S_WS, 0, 0x100000)
        self.tag_ready()
        self.relayout_load()
        a.put("L_p1_lj")
        a(f"s_waitcnt vmcnt(0)")
        self.relayout_store()
        a(f"s_branch L_p1_done")
        a.put("L_p1_compute")
        if "nowarm" not in self.opt: self.code_warm()
        a(f"s_waitcnt lgkmcnt(0)")
        a(f"s_load_dword s{S_TAG}, s[{S_WS}:{S_WS+1}], {OFF_EPOCH}")
        self.srd(SRD_F, S_WS, 0, 0x100000)
        D = self.xstats_publish()
        self.relayout_warm_setup()
        self.xstats_finish(D)
        a(f"s_cmp_ge_u32 s{S_NT}, 15")
        a(f"s_cbranch_scc1 L_p1_done")
        a(f"s_cmp_ge_u32 s{S_NT}, 10")
        a(f"s_cbranch_scc1 L_p1_N")
        self.warm_fill = True
        self.g1_compute("T", "p1T")
        self.stamp(2)
        self.p1_epi_T()
        a(f"s_branch L_p1_done")
        a.put("L_p1_N")
        self.g1_compute("N", "p1N")
        self.warm_fill = False
        self.stamp(2)
        self.p1_epi_N()
        a.put("L_p1_done")
        self.stamp(3)
        a(f"s_waitcnt vmcnt(0)")
        self.stamp(4)

    def poll(self, addr_regs, masks, tagname):
        a = self.a
        T = 4
        L = f"L_{tagname}_poll"; Lo = f"L_{tagname}_pollok"
        a(f"s_mov_b32 s{S_T0}, 0")
        a.put(L)
        for k, (ar, mk) in enumerate(zip(addr_regs, masks)):
            self.set_exec(mk)
            a(f"buffer_load_dword v{T+20+k}, v{ar}, s[{SRD_F}:{SRD_F+3}], 0 offen sc1")
        a(f"s_waitcnt vmcnt(0)")
        a(f"s_mov_b64 s[{S_SAVE}:{S_SAVE+1}], 0")
        for k, (ar, mk) in enumerate(zip(addr_regs, masks)):
            self.set_exec(mk)
            a(f"v_cmp_ne_u32 vcc, s{S_TAG}, v{T+20+k}")
            a(f"s_or_b64 s[{S_SAVE}:{S_SAVE+1}], s[{S_SAVE}:{S_SAVE+1}], vcc")
        a(f"s_mov_b64 exec, -1")
        a(f"s_cmp_eq_u64 s[{S_SAVE}:{S_SAVE+1}], 0")
        a(f"s_cbranch_scc1 {Lo}")
        a(f"s_add_u32 s{S_T0}, s{S_T0}, 1")
        a(f"s_cmp_lt_u32 s{S_T0}, 0x40000")
        a(f"s_cbranch_scc1 {L}")
        a.put(Lo)

    def p1_signal(self):
        a = self.a
        T = 4
        a(f"s_waitcnt vmcnt(0) lgkmcnt(0)")
        a(f"s_barrier")
        Ls = "L_p1sig_skip"
        a(f"s_cmp_lg_u32 s{S_W}, 0")
        a(f"s_cbranch_scc1 {Ls}")
        a(f"v_lshrrev_b32 v{T}, 3, v1")
        a(f"v_and_b32 v{T+1}, 7, v1")
        Ln = "L_p1sig_null"; Lj = "L_p1sig_join"
        a(f"s_cmp_eq_u32 s{S_NT}, 15")
        a(f"s_cbranch_scc1 {Ln}")
        a(f"s_cmp_ge_u32 s{S_NT}, 10")
        a(f"s_cselect_b32 s{S_T0}, 10, 5")
        a(f"s_cmp_lt_u32 s{S_NT}, 5")
        a(f"s_cselect_b32 s{S_T0}, 0, s{S_T0}")
        a(f"s_sub_u32 s{S_T0}, s{S_NT}, s{S_T0}")
        a(f"s_lshl_b32 s{S_T0}, s{S_T0}, 7")
        a(f"s_mul_i32 s{S_T1}, s{S_T0}, 52429")
        a(f"s_lshr_b32 s{S_T1}, s{S_T1}, 20")
        a(f"s_add_u32 s{S_T2}, s{S_T0}, 127")
        a(f"s_mul_i32 s{S_T2}, s{S_T2}, 52429")
        a(f"s_lshr_b32 s{S_T2}, s{S_T2}, 20")
        a(f"s_min_u32 s{S_T2}, s{S_T2}, 31")
        a(f"v_add_u32 v{T+2}, s{S_T1}, v{T}")
        a(f"v_cmp_ge_u32 vcc, s{S_T2}, v{T+2}")
        a(f"s_mov_b64 s[{S_SAVE}:{S_SAVE+1}], vcc")
        a(f"s_cmp_lt_u32 s{S_NT}, 5")
        a(f"s_cbranch_scc0 {Lj}")
        a(f"s_lshr_b32 s{S_T3}, s{S_MT}, 1")
        a(f"v_cmp_eq_u32 vcc, s{S_T3}, v{T+1}")
        a(f"s_and_b64 s[{S_SAVE}:{S_SAVE+1}], s[{S_SAVE}:{S_SAVE+1}], vcc")
        a(f"s_branch {Lj}")
        a.put(Ln)
        a(f"v_lshlrev_b32 v{T+2}, 4, v{T}")
        a(f"v_add_u32 v{T+2}, s{S_MT}, v{T+2}")
        a(f"v_cmp_gt_u32 vcc, 2, v{T}")
        a(f"s_mov_b64 s[{S_SAVE}:{S_SAVE+1}], vcc")
        a.put(Lj)
        a(f"v_and_b32 v{T+4}, 3, v{T+2}")
        a(f"v_lshl_add_u32 v{T+4}, v{T+1}, 2, v{T+4}")
        a(f"v_lshrrev_b32 v{T+2}, 2, v{T+2}")
        a(f"v_lshl_add_u32 v{T+2}, v{T+4}, 3, v{T+2}")
        a(f"v_lshlrev_b32 v{T+2}, 10, v{T+2}")
        a(f"s_lshl_b32 s{S_T0}, s2, 2")
        a(f"s_add_u32 s{S_T0}, s{S_T0}, {OFF_MB1}")
        a(f"v_add_u32 v{T+2}, s{S_T0}, v{T+2}")
        a(f"v_mov_b32 v{T+3}, s{S_TAG}")
        a(f"s_mov_b64 exec, s[{S_SAVE}:{S_SAVE+1}]")
        a(f"buffer_store_dword v{T+3}, v{T+2}, s[{SRD_F}:{SRD_F+3}], 0 offen sc1")
        a(f"s_mov_b64 exec, 1")
        a(f"s_lshl_b32 s{S_T0}, s2, 2")
        a(f"s_add_u32 s{S_T0}, s{S_T0}, {OFF_ALL}")
        a(f"v_mov_b32 v{T+5}, s{S_T0}")
        a(f"s_add_u32 s{S_T1}, s{S_TAG}, s{S_XCC}")
        a(f"v_mov_b32 v{T+6}, s{S_T1}")
        a(f"buffer_store_dword v{T+6}, v{T+5}, s[{SRD_F}:{SRD_F+3}], 0 offen sc1")
        a(f"s_mov_b64 exec, -1")
        a.put(Ls)

    def finish_tag_once(self):
        a = self.a
        a(f"s_mul_i32 s{S_TAG}, s{S_TAG}, 0x9E3779B1")
        a(f"s_add_u32 s{S_TAG}, s{S_TAG}, 0x7F4A7C15")

    def p2_wait(self):
        a = self.a
        T = 4
        Ls = "L_p2w_skip"
        a(f"s_cmp_lg_u32 s{S_W}, 0")
        a(f"s_cbranch_scc1 {Ls}")
        a(f"s_mul_i32 s{S_T1}, s{S_HEAD}, 20")
        a(f"v_bfe_u32 v{T}, v1, 4, 1")
        a(f"v_mul_u32_u24 v{T}, 19, v{T}")
        a(f"v_add_u32 v{T}, s{S_T1}, v{T}")
        a(f"v_lshrrev_b32 v{T}, 7, v{T}")
        a(f"v_lshrrev_b32 v{T+1}, 5, v1")
        a(f"v_mul_u32_u24 v{T+1}, 5, v{T+1}")
        a(f"v_add_u32 v{T+2}, v{T}, v{T+1}")
        a(f"v_add_u32 v{T+2}, 5, v{T+2}")
        a(f"v_and_b32 v{T+3}, 15, v1")
        self.vprod(T+4, T+3, T+2, T+8)
        a(f"v_bfe_u32 v{T}, v1, 1, 1")
        a(f"v_mul_u32_u24 v{T}, 19, v{T}")
        a(f"v_add_u32 v{T}, s{S_T1}, v{T}")
        a(f"v_lshrrev_b32 v{T+2}, 7, v{T}")
        a(f"v_and_b32 v{T+3}, 1, v1")
        a(f"s_lshl_b32 s{S_T2}, s{S_QB}, 1")
        a(f"v_add_u32 v{T+3}, s{S_T2}, v{T+3}")
        a(f"v_cmp_eq_u32 vcc, 4, v1")
        a(f"s_and_b32 s{S_T2}, s{S_HEAD}, 15")
        a(f"v_mov_b32 v{T+6}, s{S_T2}")
        a(f"v_mov_b32 v{T+7}, 15")
        a(f"v_cndmask_b32 v{T+3}, v{T+3}, v{T+6}, vcc")
        a(f"v_cndmask_b32 v{T+2}, v{T+2}, v{T+7}, vcc")
        self.vprod(T+5, T+3, T+2, T+8)
        a(f"s_lshl_b32 s{S_T2}, s2, 10")
        a(f"s_add_u32 s{S_T2}, s{S_T2}, {OFF_MB1}")
        for r in (T+4, T+5):
            a(f"v_lshlrev_b32 v{r}, 2, v{r}")
            a(f"v_add_u32 v{r}, s{S_T2}, v{r}")
        self.poll([T+4, T+5], ["-1", "0x1f"], "p2w")
        a.put(Ls)
        a(f"s_barrier")

    def vprod(self, dst, mt, nt, tmp):
        a = self.a
        a(f"v_and_b32 v{dst}, 3, v{mt}")
        a(f"v_and_b32 v{tmp}, 7, v{nt}")
        a(f"v_lshl_add_u32 v{dst}, v{tmp}, 2, v{dst}")
        a(f"v_lshlrev_b32 v{dst}, 3, v{dst}")
        a(f"v_lshrrev_b32 v{tmp}, 2, v{mt}")
        a(f"v_add_u32 v{dst}, v{dst}, v{tmp}")
        a(f"v_lshrrev_b32 v{tmp}, 3, v{nt}")
        a(f"v_lshl_add_u32 v{dst}, v{tmp}, 2, v{dst}")

    def group_barrier(self, phase, tagname, tgt=None, slot=None, hook=None, local=False):
        a = self.a
        T = 4
        a(f"s_waitcnt vmcnt(0) lgkmcnt(0)")
        a(f"s_barrier")
        Ls = f"L_{tagname}_gskip"
        a(f"s_cmp_lg_u32 s{S_W}, 0")
        a(f"s_cbranch_scc1 {Ls}0")
        tgt = S_GX if tgt is None else tgt
        slot = S_GI if slot is None else slot
        a(f"v_lshlrev_b32 v{T}, 3, v1")
        a(f"v_add_u32 v{T}, s{tgt}, v{T}")
        a(f"v_lshlrev_b32 v{T}, 7, v{T}")
        a(f"s_lshl_b32 s{S_T1}, s{slot}, 2")
        a(f"s_add_u32 s{S_T1}, s{S_T1}, {OFF_GB + phase*256*128}")
        a(f"v_add_u32 v{T}, s{S_T1}, v{T}")
        a(f"v_mov_b32 v{T+1}, s{S_TAG}")
        self.set_exec(0xffffffff)
        if local:
            a(f"s_cmp_eq_u32 s{S_FAST}, 1")
            a(f"s_cbranch_scc1 {Ls}f")
            a(f"buffer_store_dword v{T+1}, v{T}, s[{SRD_F}:{SRD_F+3}], 0 offen sc1")
            a(f"s_branch {Ls}g")
            a.put(Ls + "f")
            a(f"buffer_store_dword v{T+1}, v{T}, s[{SRD_F}:{SRD_F+3}], 0 offen")
            a.put(Ls + "g")
        else:
            a(f"buffer_store_dword v{T+1}, v{T}, s[{SRD_F}:{SRD_F+3}], 0 offen sc1")
        a(f"s_mov_b64 exec, -1")
        a.put(Ls + "0")
        if hook: hook()
        a(f"s_cmp_lg_u32 s{S_W}, 0")
        a(f"s_cbranch_scc1 {Ls}")
        a(f"s_lshl_b32 s{S_T0}, s2, 7")
        a(f"s_add_u32 s{S_T0}, s{S_T0}, {OFF_GB + phase*256*128}")
        a(f"v_lshlrev_b32 v{T+2}, 2, v1")
        a(f"v_add_u32 v{T+2}, s{S_T0}, v{T+2}")
        self.poll([T+2], ["0xffffffff"], tagname)
        a.put(Ls)
        a(f"s_barrier")

    A_QA = 4; A_QB = 12
    A_K = 20
    A_V1 = 36; A_V2 = 40
    A_SA = 44; A_SB = 60; A_P = 76; A_OA = 84; A_OB = 100; A_AK = 116; A_AV = 117; A_DV = 118; A_ALLA = 119; A_T = 120; A_ALL = 132
    S_VMASK = 92
    S_NEXTB = 94; S_DSO = 95; S_LOW = 65
    p2_nu = 4
    low_tiles = 1

    def p2_kreads(self, kb, toff):
        a = self.a
        K = self.A_K + 8*kb
        a(f"ds_read_b64 v[{K}:{K+1}], v{self.A_AK} offset:{toff}")
        a(f"ds_read_b64 v[{K+2}:{K+3}], v{self.A_AK} offset:{toff+256}")
        a(f"ds_read_b64 v[{K+4}:{K+5}], v{self.A_AK} offset:{toff+1024}")
    def p2_vread(self, which, toff):
        a = self.a
        R = self.A_V1 if which == 0 else self.A_V2
        a(f"s_mov_b64 exec, s[{self.S_VMASK}:{self.S_VMASK+1}]")
        a(f"ds_read_b128 v[{R}:{R+3}], v{self.A_AV} offset:{toff+640*which}")
        a(f"s_mov_b64 exec, -1")
    def p2_smfma(self, which, S, kb, Q):
        a = self.a
        K = self.A_K + 8*kb
        if which == 0:
            a(f"v_mfma_f32_32x32x16_bf16 v[{S}:{S+15}], v[{K}:{K+3}], v[{Q}:{Q+3}], 0")
        else:
            a(f"v_mfma_f32_32x32x16_bf16 v[{S}:{S+15}], v[{K+4}:{K+7}], v[{Q+4}:{Q+7}], v[{S}:{S+15}]")

    A_V2B = 128
    def p2_sub(self, stream, u):
        a = self.a
        P = self.A_P
        p = u & 1
        V2 = (self.A_V2, self.A_V2B)
        Sc, Sn = (self.A_SA, self.A_SB) if stream == 0 else (self.A_SB, self.A_SA)
        Oc, Op = (self.A_OA, self.A_OB) if stream == 0 else (self.A_OB, self.A_OA)
        Qn = self.A_QB if stream == 0 else self.A_QA
        kb = p if stream == 0 else 1 - p
        v2 = V2[1-p] if stream == 0 else V2[p]
        ex = lambda i: a(f"v_exp_f32 v{Sc+i}, v{Sc+i}")
        cv = lambda k: a(f"v_cvt_pk_bf16_f32 v{P+k}, v{Sc+2*k}, v{Sc+2*k+1}")
        cvp = lambda k: a(f"v_cvt_pk_bf16_f32 v{P+k}, v{Sn+2*k}, v{Sn+2*k+1}")
        ex(0); cvp(6); ex(1); ex(2); cvp(7); ex(3)
        self.p2_smfma(0, Sn, kb, Qn)
        ex(4); cv(0); ex(5); ex(6); cv(1); ex(7)
        self.p2_smfma(1, Sn, kb, Qn)
        ex(8); cv(2); ex(9); ex(10); cv(3); ex(11)
        a(f"v_mfma_f32_32x32x16_bf16 v[{Op}:{Op+15}], v[{v2}:{v2+3}], v[{P+4}:{P+7}], v[{Op}:{Op+15}]")
        ex(12); cv(4); ex(13); ex(14); cv(5); ex(15)
        if stream == 0: a(f"s_waitcnt lgkmcnt(0)")
        a(f"v_mfma_f32_32x32x16_bf16 v[{Oc}:{Oc+15}], v[{self.A_V1}:{self.A_V1+3}], v[{P}:{P+3}], v[{Oc}:{Oc+15}]")
        if stream == 1:
            tn = (u+1)*2560
            a(f"s_mov_b64 exec, s[{self.S_VMASK}:{self.S_VMASK+1}]")
            a(f"ds_read_b128 v[{self.A_V1}:{self.A_V1+3}], v{self.A_AV} offset:{tn}")
            R = V2[1-p]
            a(f"ds_read_b128 v[{R}:{R+3}], v{self.A_AV} offset:{tn+640}")
            a(f"s_mov_b64 exec, -1")
            self.p2_kreads(p, (u+2)*2560)

    def prio_reg(self, stream):
        return self._prio[stream]

    def p2_check_all(self):
        a = self.a
        X = self.A_ALL; T = self.A_T
        L = "L_p2_all"; Lo = "L_p2_allok"
        a(f"s_mov_b32 s{S_T0}, 0")
        a.put(L)
        for r in range(4):
            a(f"v_subrev_u32 v{T+r}, s{S_TAG}, v{X+r}")
        a(f"v_cmp_le_u32 vcc, 16, v{T}")
        for r in range(1, 4):
            a(f"v_cmp_le_u32 s[{S_SAVE}:{S_SAVE+1}], 16, v{T+r}")
            a(f"s_nop 0")
            a(f"s_or_b64 vcc, vcc, s[{S_SAVE}:{S_SAVE+1}]")
        a(f"s_cbranch_vccz {Lo}")
        a(f"s_add_u32 s{S_T0}, s{S_T0}, 1")
        a(f"s_cmp_ge_u32 s{S_T0}, 0x40000")
        a(f"s_cbranch_scc1 {Lo}")
        a(f"buffer_load_dwordx4 v[{X}:{X+3}], v{self.A_ALLA}, s[{SRD_F}:{SRD_F+3}], 0 offen sc1")
        a(f"s_waitcnt vmcnt(0)")
        a(f"s_branch {L}")
        a.put(Lo)
        a(f"s_and_b32 s{S_T1}, s{S_GX}, 3")
        for r in range(1, 4):
            a(f"s_cmp_eq_u32 s{S_T1}, {r}")
            a(f"s_cselect_b64 s[{S_SAVE}:{S_SAVE+1}], -1, 0")
            a(f"v_cndmask_b32 v{T}, v{T}, v{T+r}, s[{S_SAVE}:{S_SAVE+1}]")
        a(f"v_cmp_ne_u32 vcc, s{S_XCC}, v{T}")
        a(f"s_mov_b32 s{S_T2}, 0x55555555")
        a(f"s_lshr_b32 s{S_T1}, s{S_GX}, 2")
        a(f"s_lshl_b32 s{S_T2}, s{S_T2}, s{S_T1}")
        a(f"s_and_b32 s{S_T3}, vcc_lo, s{S_T2}")
        a(f"s_and_b32 s{S_T4}, vcc_hi, s{S_T2}")
        a(f"s_or_b32 s{S_T3}, s{S_T3}, s{S_T4}")
        a(f"s_cmp_eq_u32 s{S_T3}, 0")
        a(f"s_cselect_b32 s{S_FAST}, {0 if 'nofast' in self.opt else 1}, 0")

    prio_low = (0, 2, 4, 7)
    def p2_setprio(self, lvl, tag):
        a = self.a
        L = f"L_p2_pr{tag}"
        a(f"s_cmp_ge_u32 s{S_W}, 4")
        a(f"s_cbranch_scc1 {L}")
        a(f"s_setprio {lvl}")
        a.put(L)

    def p2_dma(self, n):
        a = self.a
        for i in range(n):
            a(f"s_mov_b32 m0, s{self.S_DSO}")
            a(f"s_nop 0")
            a(f"buffer_load_dwordx4 v{self.A_DV}, s[{SRD_A}:{SRD_A+3}], s{self.S_DSO} offen sc1 lds")
            a(f"s_add_u32 s{self.S_DSO}, s{self.S_DSO}, 4096")

    def p2(self):
        a = self.a
        T = self.A_T
        a(f"s_lshl_b32 s{S_HEAD}, s{S_GX}, 2")
        a(f"s_and_b32 s{S_T0}, s{S_GI}, 3")
        a(f"s_add_u32 s{S_HEAD}, s{S_HEAD}, s{S_T0}")
        a(f"s_lshr_b32 s{S_QB}, s{S_GI}, 2")
        self.stamp(5)
        self.p2_wait()
        self.stamp(6)
        a(f"s_mul_i32 s{S_T0}, s{S_HEAD}, 163840")
        a(f"s_add_u32 s{S_T0}, s{S_T0}, {hex(OFF_KV)}")
        a(f"s_add_u32 s{SRD_A}, s{S_WS}, s{S_T0}")
        a(f"s_addc_u32 s{SRD_A+1}, s{S_WS+1}, 0")
        a(f"s_mov_b32 s{SRD_A+2}, 163840")
        a(f"s_mov_b32 s{SRD_A+3}, 0x20000")
        a(f"s_lshl_b32 s{S_T0}, s{S_HEAD}, 6")
        a(f"s_lshl_b32 s{S_T1}, s{S_QB}, 3")
        a(f"s_add_u32 s{S_T0}, s{S_T0}, s{S_T1}")
        a(f"s_and_b32 s{S_T1}, s{S_W}, 3")
        a(f"s_lshl_b32 s{S_T1}, s{S_T1}, 1")
        a(f"s_add_u32 s{S_T0}, s{S_T0}, s{S_T1}")
        a(f"s_mul_i32 s{S_T0}, s{S_T0}, 1280")
        a(f"s_add_u32 s{S_T0}, s{S_T0}, {hex(OFF_Q)}")
        a(f"s_add_u32 s{SRD_W}, s{S_WS}, s{S_T0}")
        a(f"s_addc_u32 s{SRD_W+1}, s{S_WS+1}, 0")
        a(f"s_mov_b32 s{SRD_W+2}, 2560")
        a(f"s_mov_b32 s{SRD_W+3}, 0x20000")
        a(f"v_and_b32 v{T}, 31, v1")
        a(f"v_lshrrev_b32 v{T+1}, 5, v1")
        a(f"v_lshlrev_b32 v{T+2}, 3, v{T}")
        a(f"v_lshl_add_u32 v{self.A_AK}, v{T+1}, 9, v{T+2}")
        a(f"v_lshlrev_b32 v{T+3}, 12, v{T+1}")
        a(f"v_add_u32 v{T+3}, v{T+3}, v{T+2}")
        a(f"v_lshlrev_b32 v{self.A_DV}, 4, v1")
        a(f"v_add_u32 v{self.A_ALLA}, {OFF_ALL}, v{self.A_DV}")
        a(f"buffer_load_dwordx4 v[{self.A_ALL}:{self.A_ALL+3}], v{self.A_ALLA}, s[{SRD_F}:{SRD_F+3}], 0 offen sc1")
        for qi, Q in enumerate((self.A_QA, self.A_QB)):
            a(f"buffer_load_dwordx2 v[{Q}:{Q+1}], v{self.A_AK}, s[{SRD_W}:{SRD_W+3}], 0 offen offset:{1280*qi} sc1")
            a(f"buffer_load_dwordx2 v[{Q+2}:{Q+3}], v{self.A_AK}, s[{SRD_W}:{SRD_W+3}], 0 offen offset:{1280*qi+256} sc1")
            a(f"buffer_load_dwordx2 v[{Q+4}:{Q+5}], v{T+3}, s[{SRD_W}:{SRD_W+3}], 0 offen offset:{1280*qi+1024} sc1")
        a(f"v_lshlrev_b32 v{self.A_DV}, 4, v1")
        a(f"s_lshr_b32 s{S_T0}, s{S_W}, 2")
        a(f"s_mul_i32 s{S_T0}, s{S_T0}, 81920")
        a(f"s_and_b32 s{S_T1}, s{S_W}, 3")
        a(f"s_lshl_b32 s{S_T1}, s{S_T1}, 10")
        a(f"s_add_u32 s{self.S_DSO}, s{S_T0}, s{S_T1}")
        self.p2_dma(8)
        for Q in (self.A_QA, self.A_QB):
            a(f"v_mov_b32 v{Q+6}, 0"); a(f"v_mov_b32 v{Q+7}, 0")
        for kb in range(2):
            a(f"v_mov_b32 v{self.A_K+8*kb+6}, 0"); a(f"v_mov_b32 v{self.A_K+8*kb+7}, 0")
        a(f"v_cmp_eq_u32 vcc, 20, v{T}")
        a(f"v_mov_b32 v{T+5}, 0x3f803f80")
        a(f"v_mul_u32_u24 v{T+6}, 320, v{T+1}")
        a(f"v_cndmask_b32 v{self.A_V1}, 0, v{T+5}, vcc")
        for r in range(1, 8):
            a(f"v_mov_b32 v{self.A_V1+r}, v{self.A_V1}")
        for r in range(4):
            a(f"v_mov_b32 v{self.A_V2B+r}, v{self.A_V1}")
        a(f"v_lshl_add_u32 v{self.A_AV}, v{T}, 4, v{T+6}")
        a(f"v_add_u32 v{self.A_AV}, 1280, v{self.A_AV}")
        a(f"v_add_u32 v{self.A_AK}, s{S_T0}, v{self.A_AK}")
        a(f"v_add_u32 v{self.A_AV}, s{S_T0}, v{self.A_AV}")
        a(f"s_mov_b32 s{self.S_VMASK}, 0xfffff")
        a(f"s_mov_b32 s{self.S_VMASK+1}, 0xfffff")
        for r in range(16):
            a(f"v_mov_b32 v{self.A_OA+r}, 0"); a(f"v_mov_b32 v{self.A_OB+r}, 0")
        for r in range(8):
            a(f"v_mov_b32 v{self.A_P+r}, 0")
        for r in range(12, 16):
            a(f"v_mov_b32 v{self.A_SB+r}, 0")
        a(f"s_waitcnt vmcnt(4)")
        a(f"s_barrier")
        self.stamp(7)
        self.p2_dma(1)
        self.p2_kreads(0, 0)
        self.p2_kreads(1, 2560)
        self.p2_vread(0, 0)
        self.p2_vread(1, 0)
        a(f"s_waitcnt lgkmcnt(0)")
        self.p2_smfma(0, self.A_SA, 0, self.A_QA); self.p2_smfma(1, self.A_SA, 0, self.A_QA)
        NU = self.p2_nu
        nit = 32 // NU
        a(f"s_mov_b32 s{S_CNT}, 0")
        a(f"s_mov_b32 s{self.S_NEXTB}, {4//NU if NU <= 4 else 1}")
        lows = list(self.prio_low)
        a(f"s_cmp_lt_u32 s{S_W}, 4")
        a(f"s_cselect_b32 s{self.S_LOW}, {lows[0] if lows else 99}, 99")
        if "noprio" not in self.opt:
            a(f"s_setprio 1")
            self.p2_setprio(2, "init")
        a(f"s_nop 7"); a(f"s_nop 3")
        a(f".p2align 6")
        a.put("L_p2_loop")
        a(f"s_cmp_eq_u32 s{S_CNT}, s{self.S_NEXTB}")
        a(f"s_cbranch_scc1 L_p2_wait")
        a.put("L_p2_back")
        for u in range(NU):
            if u == NU - self.low_tiles and "noprio" not in self.opt:
                a(f"s_cmp_eq_u32 s{S_CNT}, s{self.S_LOW}")
                a(f"s_cbranch_scc1 L_p2_low")
                a.put("L_p2_lowback")
            self.p2_sub(0, u)
            self.p2_sub(1, u)
        a(f"v_add_u32 v{self.A_AK}, {NU*2560}, v{self.A_AK}")
        a(f"v_add_u32 v{self.A_AV}, {NU*2560}, v{self.A_AV}")
        a(f"s_add_u32 s{S_CNT}, s{S_CNT}, 1")
        a(f"s_cmp_lt_u32 s{S_CNT}, {nit}")
        a(f"s_cbranch_scc1 L_p2_loop")
        a(f"s_branch L_p2_done")
        if "noprio" not in self.opt:
            a.put("L_p2_low")
            a(f"s_setprio 0")
            a(f"s_branch L_p2_lowback")
        a.put("L_p2_wait")
        LA = [(s_, t) for s_ in range(5, 14) for t in range(3)]
        LA = LA + [LA[-1]]
        LB = [(s_, t) for s_ in range(14) for t in range(2)]
        wq = 0
        plan = {4: ("kv", 0, 5), 8: ("w",), 12: ("kv", 7, 6), 16: ("w",), 20: ("kv", 7, 0), 24: ("w",), 28: ("w",)}
        evs = sorted(plan)
        kvs = [t for t in evs if plan[t][0] == "kv"]
        for k, tile in enumerate(evs):
            cnt = tile // NU
            Ln = f"L_p2_w{cnt}"
            a(f"s_cmp_lg_u32 s{S_CNT}, {cnt}")
            a(f"s_cbranch_scc1 {Ln}")
            ev = plan[tile]
            if ev[0] == "kv":
                a(f"s_waitcnt vmcnt({ev[1]})")
                if tile == 4:
                    self.p2_check_all()
                    self.g2_wsetup(5, SRD_W, S_SW, self.A_ALLA)
                a(f"s_barrier")
                if "noprio" not in self.opt:
                    self.p2_setprio(2, f"h{cnt}")
                    nl = lows[kvs.index(tile)+1] if kvs.index(tile)+1 < len(lows) else 99
                    a(f"s_cmp_lt_u32 s{S_W}, 4")
                    a(f"s_cselect_b32 s{self.S_LOW}, {nl}, 99")
                self.p2_dma(ev[2])
            elif ev[0] == "w":
                self.g2_wloads_byclass(5, LA[7*wq:7*wq+7], LB[7*wq:7*wq+7], SRD_W, S_SW, self.A_ALLA, f"p2w{cnt}")
                wq += 1
                if tile == 28 and "now1w" not in self.opt: self.w1_l2warm()
                if tile == 24 and "nodstw" not in self.opt: self.dst_l2warm()
            nxt = evs[k+1]//NU if k + 1 < len(evs) else 99
            a(f"s_mov_b32 s{self.S_NEXTB}, {nxt}")
            a(f"s_branch L_p2_back")
            a.put(Ln)
        a(f"s_branch L_p2_back")
        a.put("L_p2_done")
        a(f"s_setprio 0")
        P = self.A_P; SBr = self.A_SB
        a(f"s_waitcnt lgkmcnt(0)")
        a(f"v_cvt_pk_bf16_f32 v{P+6}, v{SBr+12}, v{SBr+13}")
        a(f"v_cvt_pk_bf16_f32 v{P+7}, v{SBr+14}, v{SBr+15}")
        a(f"s_nop 1")
        a(f"v_mfma_f32_32x32x16_bf16 v[{self.A_OB}:{self.A_OB+15}], v[{self.A_V2B}:{self.A_V2B+3}], v[{P+4}:{P+7}], v[{self.A_OB}:{self.A_OB+15}]")
        self.stamp(8)
        self.p2_epilogue()

    def p2_epilogue(self):
        a = self.a
        T = self.A_T
        a(f"s_nop 7"); a(f"s_nop 3")
        a(f"s_barrier")
        a(f"s_and_b32 s{S_T0}, s{S_W}, 3")
        a(f"s_lshr_b32 s{S_T1}, s{S_W}, 2")
        a(f"s_lshl_b32 s{S_T0}, s{S_T0}, 1")
        a(f"s_add_u32 s{S_T2}, s{S_T0}, s{S_T1}")
        a(f"s_xor_b32 s{S_T3}, s{S_T2}, 1")
        a(f"s_mul_i32 s{S_T2}, s{S_T2}, 3072")
        a(f"s_mul_i32 s{S_T3}, s{S_T3}, 3072")
        a(f"v_lshlrev_b32 v{T}, 4, v1")
        a(f"v_add_u32 v{T+1}, s{S_T2}, v{T}")
        a(f"v_add_u32 v{T+2}, s{S_T3}, v{T}")
        Lk1 = "L_p2e_k1"; Lj = "L_p2e_j"
        a(f"s_cmp_eq_u32 s{S_T1}, 1")
        a(f"s_cbranch_scc1 {Lk1}")
        for g in range(3):
            a(f"ds_write_b128 v{T+1}, v[{self.A_OB+4*g}:{self.A_OB+4*g+3}] offset:{1024*g}")
        a(f"s_branch {Lj}")
        a.put(Lk1)
        for g in range(3):
            a(f"ds_write_b128 v{T+1}, v[{self.A_OA+4*g}:{self.A_OA+4*g+3}] offset:{1024*g}")
        for r in range(12):
            a(f"v_mov_b32 v{self.A_OA+r}, v{self.A_OB+r}")
        a.put(Lj)
        a(f"s_waitcnt lgkmcnt(0)")
        a(f"s_barrier")
        O = self.A_OA; X = self.A_SA
        for g in range(3):
            a(f"ds_read_b128 v[{X+4*g}:{X+4*g+3}], v{T+2} offset:{1024*g}")
        a(f"s_waitcnt lgkmcnt(0)")
        for r in range(12):
            a(f"v_add_f32 v{O+r}, v{O+r}, v{X+r}")
        a(f"v_mov_b32 v{T}, v{O+8}")
        a(f"v_mov_b32 v{T+1}, v{O+8}")
        a(f"s_nop 1")
        a(f"v_permlane32_swap_b32 v{T}, v{T+1}")
        a(f"s_nop 1")
        a(f"v_rcp_f32 v{T+2}, v{T+1}")
        a(f"s_nop 0")
        for r in range(12):
            a(f"v_mul_f32 v{O+r}, v{T+2}, v{O+r}")
        for g in range(3):
            a(f"v_cvt_pk_bf16_f32 v{O+4*g}, v{O+4*g}, v{O+4*g+1}")
            a(f"v_cvt_pk_bf16_f32 v{O+4*g+1}, v{O+4*g+2}, v{O+4*g+3}")
        self.srd(SRD_O, S_WS, OFF_O, SZ_O)
        a(f"s_and_b32 s{S_T2}, s{S_W}, 3")
        a(f"s_lshr_b32 s{S_T3}, s{S_W}, 2")
        a(f"s_lshl_b32 s{S_T0}, s{S_QB}, 2")
        a(f"s_add_u32 s{S_T0}, s{S_T0}, s{S_T2}")
        a(f"s_mul_i32 s{S_T0}, s{S_T0}, 81920")
        a(f"s_lshl_b32 s{S_T1}, s{S_T3}, 11")
        a(f"s_add_u32 s{S_T0}, s{S_T0}, s{S_T1}")
        a(f"v_bfe_u32 v{T+3}, v1, 4, 1")
        a(f"v_lshlrev_b32 v{T+3}, 10, v{T+3}")
        a(f"v_and_b32 v{T+4}, 15, v1")
        a(f"v_lshl_add_u32 v{T+3}, v{T+4}, 4, v{T+3}")
        a(f"v_lshrrev_b32 v{T+5}, 5, v1")
        a(f"s_mul_i32 s{S_T1}, s{S_HEAD}, 20")
        for g in range(3):
            a(f"v_lshlrev_b32 v{T+6}, 2, v{T+5}")
            a(f"s_add_u32 s{S_T2}, s{S_T1}, {8*g}")
            a(f"v_add_u32 v{T+6}, s{S_T2}, v{T+6}")
            a(f"v_lshrrev_b32 v{T+7}, 5, v{T+6}")
            a(f"v_lshlrev_b32 v{T+7}, 12, v{T+7}")
            a(f"v_bfe_u32 v{T+8}, v{T+6}, 3, 2")
            a(f"v_lshl_add_u32 v{T+7}, v{T+8}, 8, v{T+7}")
            a(f"v_and_b32 v{T+8}, 7, v{T+6}")
            a(f"v_lshl_add_u32 v{T+7}, v{T+8}, 1, v{T+7}")
            a(f"v_add_u32 v{T+7}, v{T+7}, v{T+3}")
            if g == 2: self.set_exec(0xffffffff)
            a(f"buffer_store_dwordx2 v[{O+4*g}:{O+4*g+1}], v{T+7}, s[{SRD_O}:{SRD_O+3}], s{S_T0} offen sc1")
            if g == 2: a(f"s_mov_b64 exec, -1")

    G_ACC = 4
    G_ACT = 52
    G_AL = 84; G_AH = 85; G_DV = 86
    S_RB = 49; S_J = 50
    S_WB = 53
    def g2_wbase(self, phase, NT):
        return 88 if (phase == 3 or NT == 3) else 144

    def g2_wsetup(self, phase, srd, sreg, vreg):
        a = self.a
        if phase == 3: self.srd(srd, S_WS, OFF_WOP, SZ_WOP)
        else: self.srd(srd, S_WS, OFF_W2P, SZ_W2P)
        a(f"s_and_b32 s{S_T0}, s{S_W}, 3")
        a(f"s_mul_i32 s{S_T1}, s{S_T0}, 40")
        a(f"s_and_b32 s{S_T2}, s{S_GI}, 7")
        a(f"s_mul_i32 s{S_T2}, s{S_T2}, 5")
        a(f"s_add_u32 s{S_T1}, s{S_T1}, s{S_T2}")
        a(f"s_cmp_lt_u32 s{S_W}, 4")
        a(f"s_cselect_b32 s{S_T2}, 3, 0")
        a(f"s_add_u32 s{S_T1}, s{S_T1}, s{S_T2}")
        a(f"s_lshl_b32 s{sreg}, s{S_T1}, 10")
        a(f"v_lshlrev_b32 v{vreg}, 4, v1")

    def g2_wload1(self, phase, NT, step, t, srd, sreg, vreg):
        a = self.a
        R = self.g2_wbase(phase, NT) + 4*(step*NT + t)
        off = step*4*40*1024 + t*1024
        a(f"s_add_u32 s{S_T2}, s{sreg}, {off}")
        a(f"buffer_load_dwordx4 v[{R}:{R+3}], v{vreg}, s[{srd}:{srd+3}], s{S_T2} offen {self.ld_aux}")

    def g2_wloads_byclass(self, phase, listA, listB, srd, sreg, vreg, tag):
        a = self.a
        LA = f"L_{tag}_A"; LJ = f"L_{tag}_J"
        a(f"s_cmp_ge_u32 s{S_W}, 4")
        a(f"s_cbranch_scc1 {LA}")
        for (st, t) in listB: self.g2_wload1(phase, 2, st, t, srd, sreg, vreg)
        a(f"s_branch {LJ}")
        a.put(LA)
        for (st, t) in listA: self.g2_wload1(phase, 3, st, t, srd, sreg, vreg)
        a.put(LJ)

    def g2_adma(self, stage):
        a = self.a
        slot = (stage % 4) * 32768
        for q in range(4):
            a(f"s_add_u32 m0, s{S_M0A}, {slot + q*8192}")
            a(f"s_add_u32 s{S_T2}, s{S_M0A}, {stage*32768 + q*8192}")
            a(f"buffer_load_dwordx4 v{self.G_DV}, s[{SRD_A}:{SRD_A+3}], s{S_T2} offen {self.ld_aux} lds")

    def g2_reads(self, stage, u, st):
        a = self.a
        slot = stage % 4
        base = self.G_AL if slot < 2 else self.G_AH
        off = (slot % 2) * 32768 + u*16384
        for m in range(4):
            R = self.G_ACT + 16*st + 4*m
            a(f"ds_read_b128 v[{R}:{R+3}], v{base} offset:{off + m*1024}")

    def g2_mfma(self, phase, NT, step, st):
        a = self.a
        for t in range(NT):
            W = self.g2_wbase(phase, NT) + 4*(step*NT + t)
            for m in range(4):
                A = self.G_ACC + 4*(m*3 + t)
                X = self.G_ACT + 16*st + 4*m
                a(f"v_mfma_f32_16x16x32_bf16 v[{A}:{A+3}], v[{W}:{W+3}], v[{X}:{X+3}], v[{A}:{A+3}]")

    def g2_main(self, phase, NT, nsteps):
        a = self.a
        NSTG = (nsteps + 1) // 2
        pre = min(3, NSTG)
        for sg in range(pre):
            self.g2_adma(sg)
        for m in range(4):
            for t in range(NT):
                for i in range(4):
                    a(f"v_mov_b32 v{self.G_ACC+4*(m*3+t)+i}, 0")
        if self.g2st: self.stamp(self.g2st)
        a(f"s_waitcnt vmcnt({4*(pre-1)})")
        a(f"s_barrier")
        if self.g2st: self.stamp(self.g2st+1)
        self.g2_reads(0, 0, 0)
        for sg in range(NSTG):
            two = (2*sg + 1) < nsteps
            if sg + 1 < NSTG:
                out = 4 * max(0, min(NSTG, sg + pre) - (sg + 2))
                a(f"s_waitcnt vmcnt({out})")
                a(f"s_barrier")
            if two:
                self.g2_reads(sg, 1, 1)
                a(f"s_waitcnt lgkmcnt(4)")
            else:
                a(f"s_waitcnt lgkmcnt(0)")
            self.g2_mfma(phase, NT, 2*sg, 0)
            if sg + pre < NSTG:
                self.g2_adma(sg + pre)
            if two:
                if sg + 1 < NSTG:
                    self.g2_reads(sg+1, 0, 0)
                    a(f"s_waitcnt lgkmcnt(4)")
                else:
                    a(f"s_waitcnt lgkmcnt(0)")
                self.g2_mfma(phase, NT, 2*sg+1, 1)

    def g2_reduce(self, NT):
        a = self.a
        T = self.G_ACT
        a(f"s_nop 7")
        a(f"s_barrier")
        a(f"s_lshr_b32 s{S_T0}, s{S_W}, 2")
        a(f"s_and_b32 s{S_T1}, s{S_W}, 3")
        a(f"s_mul_i32 s{S_T2}, s{S_T0}, {16*3072}")
        a(f"s_mul_i32 s{S_T3}, s{S_T1}, 3072")
        a(f"s_add_u32 s{S_T3}, s{S_T3}, s{S_T2}")
        a(f"v_lshlrev_b32 v{T}, 4, v1")
        a(f"v_add_u32 v{T+1}, s{S_T3}, v{T}")
        for m in range(4):
            for t in range(NT):
                A = self.G_ACC + 4*(m*3 + t)
                a(f"ds_write_b128 v{T+1}, v[{A}:{A+3}] offset:{m*4*3072 + t*1024}")
        a(f"s_mul_i32 s{S_T3}, s{S_T1}, {4*3072}")
        a(f"s_add_u32 s{S_T3}, s{S_T3}, s{S_T2}")
        a(f"v_add_u32 v{T+2}, s{S_T3}, v{T}")
        a(f"s_waitcnt lgkmcnt(0)")
        a(f"s_barrier")
        for src in range(4):
            for t in range(NT):
                A = self.G_ACC + 4*(src*3 + t)
                a(f"ds_read_b128 v[{A}:{A+3}], v{T+2} offset:{src*3072 + t*1024}")
        a(f"s_waitcnt lgkmcnt(0)")
        for t in range(NT):
            for i in range(4):
                A = self.G_ACC + 4*t + i
                a(f"v_add_f32 v{A}, v{A}, v{A+12}")
                a(f"v_add_f32 v{A+24}, v{A+24}, v{A+36}")
            for i in range(4):
                A = self.G_ACC + 4*t + i
                a(f"v_add_f32 v{A}, v{A}, v{A+24}")

    def g2_setup(self, phase):
        a = self.a
        a(f"s_lshr_b32 s{S_T0}, s{S_GI}, 3")
        a(f"s_lshl_b32 s{S_T1}, s{S_GX}, 2")
        a(f"s_add_u32 s{self.S_RB}, s{S_T0}, s{S_T1}")
        a(f"s_and_b32 s{self.S_J}, s{S_GI}, 7")
        if phase == 3: off, per = OFF_O, 81920
        else: off, per = OFF_R, 54*4096
        a(f"s_mul_i32 s{S_T0}, s{self.S_RB}, {per}")
        a(f"s_add_u32 s{S_T0}, s{S_T0}, {hex(off)}")
        a(f"s_add_u32 s{SRD_A}, s{S_WS}, s{S_T0}")
        a(f"s_addc_u32 s{SRD_A+1}, s{S_WS+1}, 0")
        a(f"s_mov_b32 s{SRD_A+2}, {per}")
        a(f"s_mov_b32 s{SRD_A+3}, 0x20000")
        a(f"s_lshl_b32 s{S_M0A}, s{S_W}, 10")
        a(f"v_lshlrev_b32 v{self.G_DV}, 4, v1")
        a(f"s_and_b32 s{S_T0}, s{S_W}, 3")
        a(f"s_lshl_b32 s{S_T0}, s{S_T0}, 12")
        a(f"v_add_u32 v{self.G_AL}, s{S_T0}, v{self.G_DV}")
        a(f"v_add_u32 v{self.G_AH}, 0x10000, v{self.G_AL}")

    G_EX = 88
    def g2_epi_loads(self, phase, NT):
        a = self.a
        E = self.G_EX
        a(f"s_lshl_b32 s{S_T0}, s{self.S_RB}, 6")
        a(f"s_and_b32 s{S_T1}, s{S_W}, 3")
        a(f"s_lshl_b32 s{S_T1}, s{S_T1}, 4")
        a(f"s_add_u32 s{S_T0}, s{S_T0}, s{S_T1}")
        a(f"v_and_b32 v{E+12}, 15, v1")
        a(f"v_add_u32 v{E+12}, s{S_T0}, v{E+12}")
        a(f"v_mul_u32_u24 v{E+12}, 1280, v{E+12}")
        a(f"s_mul_i32 s{S_T0}, s{self.S_J}, 160")
        if NT == 2: a(f"s_add_u32 s{S_T0}, s{S_T0}, 96")
        a(f"v_lshrrev_b32 v{E+13}, 4, v1")
        a(f"v_lshlrev_b32 v{E+13}, 3, v{E+13}")
        a(f"v_add_u32 v{E+13}, s{S_T0}, v{E+13}")
        a(f"v_add_u32 v{E+12}, v{E+12}, v{E+13}")
        if phase == 3:
            self.srd(SRD_T, S_X, 0, 2048*1280)
            aux_r = ""
        else:
            self.srd(SRD_T, S_WS, OFF_H, SZ_H)
            aux_r = self.ld_aux
        for t in range(NT):
            a(f"buffer_load_dwordx2 v[{E+2*t}:{E+2*t+1}], v{E+12}, s[{SRD_T}:{SRD_T+3}], 0 offen offset:{32*t} {aux_r}")
        if phase == 5:
            self.srd(SRD_W, S_B2, 0, 1280)
            for t in range(NT):
                a(f"buffer_load_dwordx2 v[{E+6+2*t}:{E+7+2*t}], v{E+13}, s[{SRD_W}:{SRD_W+3}], 0 offen offset:{32*t}")

    def g2_epi(self, phase, NT):
        a = self.a
        T = self.G_ACT; A = self.G_ACC; E = self.G_EX
        if phase == 3:
            self.srd_twin(S_WS, OFF_H, SZ_H)
        else:
            self.srd(SRD_O, S_OUT, 0, 2048*1280)
        a(f"s_waitcnt vmcnt(0)")
        for t in range(NT):
            for half in range(2):
                for base in ([E] if phase == 3 else [E, E+6]):
                    R = base + 2*t + half
                    a(f"v_lshlrev_b32 v{T+20}, 16, v{R}")
                    a(f"v_and_b32 v{T+21}, 0xffff0000, v{R}")
                    a(f"v_add_f32 v{A+4*t+2*half}, v{A+4*t+2*half}, v{T+20}")
                    a(f"v_add_f32 v{A+4*t+2*half+1}, v{A+4*t+2*half+1}, v{T+21}")
            a(f"v_cvt_pk_bf16_f32 v{A+4*t}, v{A+4*t}, v{A+4*t+1}")
            a(f"v_cvt_pk_bf16_f32 v{A+4*t+1}, v{A+4*t+2}, v{A+4*t+3}")
            if phase == 3: self.store_twin("buffer_store_dwordx2", f"v[{A+4*t}:{A+4*t+1}]", E+12, "0", f"offset:{32*t}")
            else: a(f"buffer_store_dwordx2 v[{A+4*t}:{A+4*t+1}], v{E+12}, s[{SRD_O}:{SRD_O+3}], 0 offen offset:{32*t}")
        if phase == 3:
            S = T + 22
            a(f"v_mov_b32 v{S}, 0"); a(f"v_mov_b32 v{S+1}, 0")
            for t in range(NT):
                for half in range(2):
                    R = A + 4*t + half
                    a(f"v_lshlrev_b32 v{T+20}, 16, v{R}")
                    a(f"v_and_b32 v{T+21}, 0xffff0000, v{R}")
                    a(f"v_add_f32 v{S}, v{S}, v{T+20}")
                    a(f"v_fmac_f32 v{S+1}, v{T+20}, v{T+20}")
                    a(f"v_add_f32 v{S}, v{S}, v{T+21}")
                    a(f"v_fmac_f32 v{S+1}, v{T+21}, v{T+21}")
            for op in ("v_permlane32_swap_b32", "v_permlane16_swap_b32"):
                a(f"v_mov_b32 v{S+2}, v{S}")
                a(f"v_mov_b32 v{S+3}, v{S+1}")
                a(f"s_nop 1")
                a(f"{op} v{S+2}, v{S}")
                a(f"{op} v{S+3}, v{S+1}")
                a(f"s_nop 1")
                a(f"v_add_f32 v{S}, v{S}, v{S+2}")
                a(f"v_add_f32 v{S+1}, v{S+1}, v{S+3}")
            a(f"s_lshl_b32 s{S_T0}, s{self.S_RB}, 6")
            a(f"s_and_b32 s{S_T1}, s{S_W}, 3")
            a(f"s_lshl_b32 s{S_T1}, s{S_T1}, 4")
            a(f"s_add_u32 s{S_T0}, s{S_T0}, s{S_T1}")
            a(f"v_and_b32 v{S+2}, 15, v1")
            a(f"v_add_u32 v{S+2}, s{S_T0}, v{S+2}")
            a(f"v_lshlrev_b32 v{S+2}, 7, v{S+2}")
            a(f"s_lshl_b32 s{S_T0}, s{self.S_J}, 4")
            a(f"s_add_u32 s{S_T0}, s{S_T0}, {hex(8 if NT == 2 else 0)}")
            a(f"v_add_u32 v{S+2}, s{S_T0}, v{S+2}")
            self.srd_twin(S_WS, OFF_PST, 2048*128)
            a(f"s_mov_b64 exec, 0xffff")
            self.store_twin("buffer_store_dwordx2", f"v[{S}:{S+1}]", S+2, "0")
            a(f"s_mov_b64 exec, -1")

    def g2(self, phase):
        a = self.a
        nsteps = 5 if phase == 3 else 14
        self.g2st = 15 if (str(phase) in self.opt_g2) else None
        self.g2_setup(phase)
        L1 = f"L_g2p{phase}_n1"; Lj = f"L_g2p{phase}_j"
        a(f"s_cmp_lt_u32 s{S_W}, 4")
        a(f"s_cbranch_scc1 {L1}")
        for NT in (3, 2):
            self.g2_main(phase, NT, nsteps)
            if self.g2st: self.stamp(self.g2st+2)
            self.g2_epi_loads(phase, NT)
            self.g2_reduce(NT)
            if self.g2st: self.stamp(self.g2st+3)
            self.g2_epi(phase, NT)
            if NT == 3:
                a(f"s_branch {Lj}")
                a.put(L1)
        a.put(Lj)

    def prefetch_wo(self):
        self.g2_wsetup(3, SRD_W, S_SW, 2)
        self.g2_wloads_byclass(3, [(s_, t) for s_ in range(5) for t in range(3)], [(s_, t) for s_ in range(5) for t in range(2)], SRD_W, S_SW, 2, "pfwo")
    def prefetch_w2_rest(self):
        self.g2_wsetup(5, SRD_W, S_SW, 2)
        self.g2_wloads_byclass(5, [(s_, t) for s_ in range(5) for t in range(3)], [], SRD_W, S_SW, 2, "pfw2")

    def p4_epi(self):
        a = self.a
        self.V_T = 2
        T = self.V_T; A = self.V_ACC; CSR = self.V_FR
        B1R = self.V_FR + 32
        a(f"s_cmp_eq_u32 s{S_NT}, 13")
        a(f"s_cselect_b32 s{S_T0}, s{S_WN}, 0")
        a(f"s_cmp_eq_u32 s{S_T0}, 1")
        a(f"s_cbranch_scc1 L_p4_skip")
        self.epi_T_common()
        for g in range(4):
            a(f"ds_read_b128 v[{B1R+4*g}:{B1R+4*g+3}], v{T+7} offset:{ST_B1-ST_CS+32*g}")
        for g in range(4):
            a(f"ds_read_b128 v[{B1R+16+4*g}:{B1R+16+4*g+3}], v{T+1} offset:{ST_B1-ST_CS+32*g}")
        if "rsc1" in self.opt: self.srd(SRD_O, S_WS, OFF_R, SZ_R)
        else: self.srd_twin(S_WS, OFF_R, SZ_R)
        a(f"s_lshl_b32 s{S_T0}, s{S_MT}, 1")
        a(f"s_add_u32 s{S_T0}, s{S_T0}, s{S_WM}")
        a(f"s_mul_i32 s{S_T0}, s{S_T0}, {54*4096}")
        a(f"s_lshl_b32 s{S_T1}, s{S_NT}, 2")
        a(f"s_lshl_b32 s{S_T2}, s{S_WN}, 1")
        a(f"s_add_u32 s{S_T1}, s{S_T1}, s{S_T2}")
        a(f"s_add_u32 s{S_T2}, s{S_T1}, s{S_WM}")
        a(f"s_xor_b32 s{S_T3}, s{S_WM}, 1")
        a(f"s_add_u32 s{S_T3}, s{S_T1}, s{S_T3}")
        a(f"s_lshl_b32 s{S_T2}, s{S_T2}, 12")
        a(f"s_lshl_b32 s{S_T3}, s{S_T3}, 12")
        a(f"s_add_u32 s{S_T4}, s{S_T0}, s{S_T2}")
        a(f"s_add_u32 s{S_T5}, s{S_T0}, s{S_T3}")
        a(f"v_bfe_u32 v{T+8}, v1, 4, 1")
        a(f"v_lshlrev_b32 v{T+8}, 10, v{T+8}")
        a(f"v_and_b32 v{T+9}, 15, v1")
        a(f"v_lshl_add_u32 v{T+8}, v{T+9}, 4, v{T+8}")
        a(f"v_lshl_add_u32 v{T+8}, v{T+6}, 8, v{T+8}")
        a(f"s_waitcnt lgkmcnt(0)")
        for tt in range(2):
            for q in range(2):
                for gp in range(2):
                    for g in (2*gp, 2*gp+1):
                        for i in range(4):
                            r = A + 16*(2*tt+q) + 4*g + i
                            a(f"v_fma_f32 v{r}, v{T+2+2*tt}, v{r}, v{B1R+16*q+4*g+i}")
                            a(f"v_fmac_f32 v{r}, v{T+3+2*tt}, v{CSR+16*q+4*g+i}")
                            a(f"v_max_f32 v{r}, 0, v{r}")
                            a(f"v_mul_f32 v{r}, v{r}, v{r}")
                    r = A + 16*(2*tt+q) + 8*gp
                    a(f"v_cvt_pk_bf16_f32 v{r}, v{r}, v{r+1}")
                    a(f"v_cvt_pk_bf16_f32 v{r+1}, v{r+2}, v{r+3}")
                    a(f"v_cvt_pk_bf16_f32 v{r+2}, v{r+4}, v{r+5}")
                    a(f"v_cvt_pk_bf16_f32 v{r+3}, v{r+6}, v{r+7}")
                    a(f"s_nop 1")
                    a(f"v_permlane32_swap_b32 v{r}, v{r+2}")
                    a(f"v_permlane32_swap_b32 v{r+1}, v{r+3}")
                    if "rsc1" in self.opt:
                        a(f"buffer_store_dwordx4 v[{r}:{r+3}], v{T+8}, s[{SRD_O}:{SRD_O+3}], s{S_T4+q} offen offset:{2048*tt + 512*gp} sc1")
                    else:
                        self.store_twin("buffer_store_dwordx4", f"v[{r}:{r+3}]", T+8, f"s{S_T4+q}", f"offset:{2048*tt + 512*gp}")
        a.put("L_p4_skip")
        self.V_T = 148

    def p4(self):
        a = self.a
        a(f"s_cmp_ge_u32 s{S_GI}, 28")
        a(f"s_cbranch_scc1 L_p4_done")
        a(f"s_cmp_ge_u32 s{S_GI}, 14")
        a(f"s_cselect_b32 s{S_T0}, 1, 0")
        a(f"s_cselect_b32 s{S_T1}, 14, 0")
        a(f"s_sub_u32 s{S_NT}, s{S_GI}, s{S_T1}")
        a(f"s_lshl_b32 s{S_MT}, s{S_GX}, 1")
        a(f"s_add_u32 s{S_MT}, s{S_MT}, s{S_T0}")
        a(f"s_cmp_ge_u32 s{S_NT}, 10")
        a(f"s_cselect_b32 s{S_T0}, 10, 0")
        a(f"s_sub_u32 s{S_KK}, s{S_NT}, s{S_T0}")
        if "rot4" not in self.opt: a(f"s_mov_b32 s{S_KK}, 0")
        self.aux_A = self.ld_aux
        self.st1 = 15 if "p4s" in self.opt else None
        a(f"s_cmp_lt_u32 s{S_W}, 4")
        a(f"s_cbranch_scc1 L_p4_compute")
        self.V_T = 16
        self.g1_setup_loader(3456)
        self.srd(SRD_A, S_WS, OFF_H, SZ_H)
        self.srd(SRD_W, S_W1, 0, 640*3456)
        for s_ in range(2):
            self.g1_dma_stage(3456)
        T = self.V_T
        self.srd(SRD_T, S_B1, 0, 1728*2)
        a(f"s_sub_u32 s{S_T4}, s{S_W}, 4")
        a(f"s_lshl_b32 s{S_T4}, s{S_T4}, 5")
        a(f"v_and_b32 v{T+10}, 31, v1")
        a(f"v_add_u32 v{T+10}, s{S_T4}, v{T+10}")
        a(f"s_lshl_b32 s{S_T4}, s{S_NT}, 7")
        a(f"v_add_u32 v{T+11}, s{S_T4}, v{T+10}")
        a(f"v_lshlrev_b32 v{T+11}, 1, v{T+11}")
        a(f"buffer_load_ushort v{T+22}, v{T+11}, s[{SRD_T}:{SRD_T+3}], 0 offen")
        self.b1_hook = True
        self.g1_loader(3456, "p4", "part")
        self.b1_hook = False
        self.V_T = 148
        a(f"s_branch L_p4_done")
        a.put("L_p4_compute")
        self.cprof = "cprof" in self.opt
        self.g1_compute("T", "p4")
        self.cprof = False
        if "cprof" in self.opt:
            a(f"s_waitcnt lgkmcnt(0)")
            for k in range(8): a(f"s_mov_b32 s{S_STAMP+1+k}, s{72+2*k}")
            self.stamps = False; self.freeze = True
        if "p4s" in self.opt: self.stamp(16)
        self.p4_epi()
        if "p4s" in self.opt: self.stamp(17)
        a.put("L_p4_done")

    def code_warm(self):
        a = self.a
        a(f"s_getpc_b64 s[{SRD_T}:{SRD_T+1}]")
        a.put("L_pc_here")
        a(f"s_sub_u32 s{SRD_T}, s{SRD_T}, L_pc_here-{NAME}")
        a(f"s_subb_u32 s{SRD_T+1}, s{SRD_T+1}, 0")
        a(f"s_mov_b32 s{SRD_T+2}, L_end-{NAME}")
        a(f"s_mov_b32 s{SRD_T+3}, 0x20000")
        a(f"v_lshlrev_b32 v254, 7, v0")
        for k in range(self.code_rounds):
            a(f"s_mov_b32 s{S_T0}, {32768*k}")
            a(f"buffer_load_dword v255, v254, s[{SRD_T}:{SRD_T+3}], s{S_T0} offen")

    def epoch_update(self):
        a = self.a
        a(f"s_or_b32 s{S_T0}, s2, s{S_W}")
        a(f"s_cmp_lg_u32 s{S_T0}, 0")
        a(f"s_cbranch_scc1 L_noepoch")
        a(f"v_mov_b32 v2, {OFF_EPOCH}")
        a(f"v_mov_b32 v3, s{S_TAG}")
        a(f"s_mov_b64 exec, 1")
        a(f"buffer_store_dword v3, v2, s[{SRD_F}:{SRD_F+3}], 0 offen sc1")
        a(f"s_mov_b64 exec, -1")
        a.put("L_noepoch")

    def epilogue_stamps(self):
        if getattr(self, "freeze", False): self.stamps = True
        if not self.stamps: return
        a = self.a
        if "dbg" in self.opt:
            a(f"s_or_b32 s{S_T0}, s2, s{S_W}")
            a(f"s_cmp_lg_u32 s{S_T0}, 0")
            a(f"s_cbranch_scc1 L_nodbg")
            self.srd(SRD_T, S_DBG, 0, 256)
            a(f"s_memrealtime s[100:101]")
            a(f"s_waitcnt lgkmcnt(0)")
            a(f"s_sub_u32 s{S_STAMP+15}, s100, s88")
            a(f"s_add_u32 s{S_STAMP+15}, s{S_STAMP+15}, s{S_STAMP}")
            a(f"v_mov_b32 v3, 0")
            a(f"s_mov_b64 exec, 1")
            for i in range(16):
                a(f"s_sub_u32 s{S_T1}, s{S_STAMP+i}, s{S_STAMP}")
                a(f"v_mov_b32 v2, s{S_T1}")
                a(f"buffer_store_dword v2, v3, s[{SRD_T}:{SRD_T+3}], 0 offen offset:{4*i}")
                a(f"s_nop 1")
            a(f"s_mov_b64 exec, -1")
            a.put("L_nodbg")
        a(f"s_waitcnt lgkmcnt(0)")
        a(f"s_lshl_b32 s{S_T0}, s2, 3")
        a(f"s_add_u32 s{S_T0}, s{S_T0}, s{S_W}")
        a(f"s_lshl_b32 s{S_T0}, s{S_T0}, 7")
        a(f"s_add_u32 s{S_T0}, s{S_T0}, 0x80000")
        a(f"v_mov_b32 v3, s{S_T0}")
        a(f"s_mov_b64 exec, 1")
        a(f"s_memrealtime s[100:101]")
        a(f"s_waitcnt lgkmcnt(0)")
        a(f"s_sub_u32 s{S_T1}, s100, s88")
        a(f"v_mov_b32 v2, s{S_T1}")
        a(f"buffer_store_dword v2, v3, s[{SRD_F}:{SRD_F+3}], 0 offen offset:{4*31}")
        a(f"v_mov_b32 v2, s88")
        a(f"buffer_store_dword v2, v3, s[{SRD_F}:{SRD_F+3}], 0 offen offset:{4*30}")
        for i in range(self.nstamp):
            a(f"s_sub_u32 s{S_T1}, s{S_STAMP+i}, s{S_STAMP}")
            a(f"v_mov_b32 v2, s{S_T1}")
            a(f"buffer_store_dword v2, v3, s[{SRD_F}:{SRD_F+3}], 0 offen offset:{4*i}")
            a(f"s_nop 1")
        a(f"s_mov_b64 exec, -1")

    def build(self):
        a = self.a
        self.prologue()
        self.p1()
        self.p1_signal()
        if self.stop_after != "p1":
            self.p2()
            if self.stop_after != "p2":
                self.group_barrier(0, "gb23", S_QB, S_HEAD, hook=self.prefetch_wo)
                self.stamp(9)
                self.g2(3)
                self.stamp(10)
                if self.stop_after != "p3":
                    self.group_barrier(1, "gb34", hook=self.prefetch_w2_rest, local=True)
                    self.stamp(11)
                    self.p4()
                    self.stamp(12)
                    if self.stop_after != "p4":
                        self.group_barrier(2, "gb45", local=True)
                        self.stamp(13)
                        self.g2(5)
            a(f"s_waitcnt vmcnt(0)")
            self.stamp(14)
        self.epoch_update()
        self.epilogue_stamps()
        a(f"s_waitcnt vmcnt(0)")
        a.put("L_end")
        a("s_endpgm")
        return a

import struct
def f32(x):
    return struct.unpack("<I", struct.pack("<f", x))[0]

HEADER = open("sequential_preLN__mha_block__dense_activation_squared_relu__prompt.s.ref").read().split("; Override launch geometry")[0]

def wrap(body, lds=163840, vgpr=256):
    s = HEADER
    s += f"; @launch grid=(256,1,1) block=(512,1,1) lds={lds}\n"
    s += '.amdgcn_target "amdgcn-amd-amdhsa--gfx950"\n.text\n'
    s += f".globl {NAME}\n.p2align 8\n.type {NAME},@function\n{NAME}:\n"
    s += body
    s += f"""
.section .rodata,"a"
.p2align 6
.amdhsa_kernel {NAME}
  .amdhsa_next_free_vgpr {vgpr}
  .amdhsa_next_free_sgpr 102
  .amdhsa_accum_offset {vgpr}
  .amdhsa_group_segment_fixed_size 0
  .amdhsa_kernarg_size 88
  .amdhsa_user_sgpr_count 2
  .amdhsa_user_sgpr_kernarg_segment_ptr 1
  .amdhsa_system_sgpr_workgroup_id_x 1
.end_amdhsa_kernel
"""
    return s

if __name__ == "__main__":
    import argparse
    ap = argparse.ArgumentParser()
    ap.add_argument("-o", default="out.s")
    ap.add_argument("--stop", default=None)
    ap.add_argument("--stamps", action="store_true")
    ap.add_argument("--opt", default="")
    ap.add_argument("--plow", default=None)
    args = ap.parse_args()
    g = Gen(stop_after=args.stop, stamps=args.stamps, opt=[o for o in args.opt.split(',') if o])
    if "low2" in g.opt: g.low_tiles = 2
    if "low3" in g.opt: g.low_tiles = 3
    if args.plow is not None: g.prio_low = tuple(int(x) for x in args.plow.split(",") if x)
    a = g.build()
    rep = check(a.L)
    for r in rep: print(r)
    open(args.o, "w").write(wrap(a.text()))
    print("wrote", args.o, len(a.L), "lines;", len(rep), "hazards")
```

```python
import sys, math
sys.path.insert(0, "gen")
from asmlib import Asm, vr, sr, check

NAME = "sequential_preLN__mha_block__dense_activation_squared_relu__prompt_kernel"

OFF_EPOCH = 0
OFF_ALL   = 0x1000
OFF_GB    = 0x50000
OFF_MB1   = 65536
OFF_GR    = 0x68000
OFF_PST   = 0xC0000
OFF_Q     = 0x100000
OFF_KV    = 0x400000
OFF_O     = 0xA00000
OFF_H     = 0xD00000
OFF_R     = 0x1000000
OFF_WOP   = 0x1700000
OFF_W2P   = 0x1800000
SZ_Q = 32*64*1280
SZ_KV = 32*64*2560
SZ_O = 32*20*4096
SZ_H = 2048*1280
SZ_R = 32*54*4096
SZ_WOP = 20*40*1024
SZ_W2P = 54*40*1024

S_KA = 0; S_WG = 2; S_W = 3
S_X = 4; S_WQKV = 6; S_WO = 8; S_W1 = 12; S_B1 = 14; S_W2 = 16; S_B2 = 18; S_OUT = 20; S_DBG = 22; S_WS = 24
S_TAG = 26; S_GX = 27
SRD_A = 28; SRD_W = 32; SRD_O = 36; SRD_F = 40; SRD_T = 44
S_GI = 48
S_MT = 49; S_NT = 50; S_KK = 51; S_CNT = 52; S_SLOT = 53
S_SA = 54; S_SW = 55; S_T0 = 56; S_T1 = 57; S_T2 = 58; S_T3 = 59; S_T4 = 60; S_T5 = 61
S_M0A = 62; S_WM = 63; S_WN = 64; S_DELTA = 65; S_ONES = 66; S_ROT4 = 67; S_RLW = 68; S_RSLOT = 69; S_HEAD = 66; S_QB = 67
S_STAMP = 70
S_SAVE = 90
S_OOB = 53
S_XCC = 10; S_FAST = 11
SRD_P = 96

LDS_STATS = 0
ST_PX, ST_PQ, ST_PC, ST_AA, ST_BB, ST_CS, ST_B1 = 0, 4096, 8192, 9216, 9728, 10240, 10752
LDS_RL = 32768

class Gen:
    def __init__(self, stop_after=None, stamps=False, opt=()):
        self.opt = set(opt)
        self.a = Asm()
        self.stop_after = stop_after
        self.stamps = stamps
        self.nstamp = 0
        self.code_rounds = 2
        self.kk_wrap = 2
        global LDS_STATS, LDS_RL
        if "ns5" not in self.opt:
            self.NSLOT = 4; LDS_STATS = 131072; LDS_RL = 131072 + 12288
        else:
            self.NSLOT = 5; LDS_STATS = 0; LDS_RL = 32768
        self.fast_aux = "nt" if "fnt" in self.opt else ("sc0" if "fsc0" in self.opt else ("sc0 nt" if "fsc0nt" in self.opt else ""))
        self.opt_g2 = "3" if "g2s3" in self.opt else ("5" if "g2s5" in self.opt else "")
        self.ld_aux = "" if "plainld" in self.opt else "sc1"

    def srd(self, dst, base_s, off, size):
        a = self.a
        if off:
            a(f"s_add_u32 s{dst}, s{base_s}, {hex(off)}")
            a(f"s_addc_u32 s{dst+1}, s{base_s+1}, 0")
        else:
            a(f"s_mov_b32 s{dst}, s{base_s}")
            a(f"s_mov_b32 s{dst+1}, s{base_s+1}")
        a(f"s_mov_b32 s{dst+2}, {hex(size)}")
        a(f"s_mov_b32 s{dst+3}, 0x20000")

    def csel(self, dst, x, y):
        self.a(f"s_mov_b32 s{dst}, {y}")
        self.a(f"s_cselect_b32 s{dst}, {x}, s{dst}")

    def withT(self, T, fn, *args, **kw):
        old = self.V_T; self.V_T = T
        r = fn(*args, **kw)
        self.V_T = old
        return r

    def srd_twin(self, base_s, off, size):
        a = self.a
        self.srd(SRD_O, base_s, off, size)
        a(f"s_mov_b32 s{SRD_P}, s{SRD_O}")
        a(f"s_mov_b32 s{SRD_P+1}, s{SRD_O+1}")
        a(f"s_mov_b32 s{SRD_P+3}, 0x20000")
        a(f"s_cmp_eq_u32 s{S_FAST}, 1")
        a(f"s_cselect_b32 s{SRD_P+2}, s{SRD_O+2}, 0")
        a(f"s_cselect_b32 s{SRD_O+2}, 0, s{SRD_O+2}")
    def store_twin(self, op, data, vaddr, soff, extra=""):
        a = self.a
        a(f"{op} {data}, v{vaddr}, s[{SRD_O}:{SRD_O+3}], {soff} offen {extra} sc1")
        a(f"{op} {data}, v{vaddr}, s[{SRD_P}:{SRD_P+3}], {soff} offen {extra} {self.fast_aux}")

    def set_exec(self, mask):
        mask = int(str(mask), 0) & 0xFFFFFFFFFFFFFFFF
        if mask == 0xFFFFFFFFFFFFFFFF: self.a("s_mov_b64 exec, -1")
        elif mask < 0x80000000: self.a(f"s_mov_b64 exec, {hex(mask)}")
        else:
            self.a(f"s_mov_b32 exec_lo, {hex(mask & 0xffffffff)}")
            self.a(f"s_mov_b32 exec_hi, {hex(mask >> 32)}")

    def stamp(self, i=None):
        if not self.stamps: return
        if i is None: return
        self.nstamp = max(self.nstamp, i + 1)
        self.a(f"s_memtime s[100:101]")
        self.a(f"s_waitcnt lgkmcnt(0)")
        self.a(f"s_mov_b32 s{S_STAMP+i}, s100")

    def prologue(self):
        a = self.a
        a(f"s_cmp_ge_u32 s2, 256")
        a(f"s_cbranch_scc1 L_end")
        self.stamp(0)
        if self.stamps: a(f"s_memrealtime s[88:89]")
        a(f"s_load_dwordx16 s[4:19], s[0:1], 0")
        a(f"s_load_dwordx4 s[20:23], s[0:1], 64")
        a(f"s_load_dwordx2 s[24:25], s[0:1], 80")
        a(f"v_lshrrev_b32 v2, 6, v0")
        a(f"v_and_b32 v1, 63, v0")
        a(f"v_readfirstlane_b32 s{S_W}, v2")
        a(f"s_and_b32 s{S_GX}, s2, 7")
        a(f"s_lshr_b32 s{S_GI}, s2, 3")
        a(f"s_mov_b32 s{S_ONES}, 0x3f803f80")
        a(f"s_lshr_b32 s{S_WM}, s{S_W}, 2")
        a(f"s_and_b32 s{S_WN}, s{S_W}, 3")

    def finish_tag(self):
        a = self.a
        a(f"s_waitcnt lgkmcnt(0)")
        a(f"s_mul_i32 s{S_TAG}, s{S_TAG}, 0x9E3779B1")
        a(f"s_add_u32 s{S_TAG}, s{S_TAG}, 0x7F4A7C15")

    V_OFFA = 2; V_OFFW = 3
    V_AA = 2
    V_AWA = 6; V_AWB = 7
    V_AW2A = 0; V_AW2B = 1
    V_CSA = 8
    V_CSD = 12
    V_FR = 16
    V_ACC = 80
    V_T = 148
    V_S = 136
    POLLW = 0
    V_LA = 4
    V_LS = 8
    V_LD = 20
    V_LU = 40
    NSLOT = 5

    def g1_setup_loader(self, WS):
        a = self.a
        T = self.V_T
        a(f"s_sub_u32 s{S_T4}, s{S_W}, 4")
        a(f"v_lshrrev_b32 v{T}, 4, v1")
        a(f"s_lshl_b32 s{S_T0}, s{S_T4}, 2")
        a(f"v_add_u32 v{T+1}, s{S_T0}, v{T}")
        a(f"v_and_b32 v{T+1}, 7, v{T+1}")
        a(f"v_and_b32 v{T+2}, 7, v1")
        a(f"v_xor_b32 v{T+1}, v{T+1}, v{T+2}")
        a(f"v_lshlrev_b32 v{T+1}, 4, v{T+1}")
        a(f"v_lshrrev_b32 v{T+2}, 3, v1")
        a(f"v_mul_u32_u24 v{T+2}, 1280, v{T+2}")
        a(f"v_add_u32 v{self.V_OFFA}, v{T+1}, v{T+2}")
        a(f"v_lshlrev_b32 v{T+1}, 2, v{T}")
        a(f"v_and_b32 v{T+2}, 15, v1")
        a(f"v_xor_b32 v{T+1}, v{T+1}, v{T+2}")
        a(f"v_lshlrev_b32 v{T+1}, 4, v{T+1}")
        a(f"v_mul_u32_u24 v{T+2}, {WS}, v{T}")
        a(f"v_add_u32 v{self.V_OFFW}, v{T+1}, v{T+2}")
        a(f"s_lshl_b32 s{S_T0}, s{S_MT}, 7")
        a(f"s_lshl_b32 s{S_T1}, s{S_T4}, 3")
        a(f"s_add_u32 s{S_T0}, s{S_T0}, s{S_T1}")
        a(f"s_mul_i32 s{S_SA}, s{S_T0}, 1280")
        a(f"s_mul_i32 s{S_T0}, s{S_T4}, {4*WS}")
        a(f"s_lshl_b32 s{S_T1}, s{S_NT}, 8")
        a(f"s_add_u32 s{S_SW}, s{S_T0}, s{S_T1}")
        a(f"s_lshl_b32 s{S_M0A}, s{S_T4}, 10")
        a(f"s_mov_b32 s{S_SLOT}, 0")

    def g1_dma1(self, WS, q):
        a = self.a
        if q == 0:
            a(f"s_lshl_b32 s{S_T2}, s{S_KK}, 7")
            a(f"s_add_u32 s{S_T2}, s{S_T2}, s{S_SA}")
            a(f"s_add_u32 m0, s{S_SLOT}, s{S_M0A}")
            a(f"s_mul_i32 s{S_T3}, s{S_KK}, {64*WS}")
        elif q == 4:
            a(f"s_add_u32 s{S_T2}, s{S_T3}, s{S_SW}")
            a(f"s_add_u32 m0, m0, 4096")
            a(f"s_nop 0")
        else:
            a(f"s_add_u32 m0, m0, 4096")
            a(f"s_add_u32 s{S_T2}, s{S_T2}, {32*1280 if q < 4 else 16*WS}")
        if q < 4:
            a(f"buffer_load_dwordx4 v{self.V_OFFA}, s[{SRD_A}:{SRD_A+3}], s{S_T2} offen {self.aux_A} lds")
        else:
            a(f"buffer_load_dwordx4 v{self.V_OFFW}, s[{SRD_W}:{SRD_W+3}], s{S_T2} offen lds")
        if q == 7:
            a(f"s_add_u32 s{S_KK}, s{S_KK}, 1")
            a(f"s_cmp_eq_u32 s{S_KK}, 10")
            a(f"s_cselect_b32 s{S_KK}, {self.kk_wrap}, s{S_KK}")
            a(f"s_add_u32 s{S_SLOT}, s{S_SLOT}, 32768")
            a(f"s_cmp_eq_u32 s{S_SLOT}, {self.NSLOT*32768}")
            a(f"s_cselect_b32 s{S_SLOT}, 0, s{S_SLOT}")

    def g1_dma_stage(self, WS):
        for q in range(8): self.g1_dma1(WS, q)

    def slot_next(self):
        a = self.a
        a(f"s_add_u32 s{S_RSLOT}, s{S_RSLOT}, 1")
        a(f"s_cmp_eq_u32 s{S_RSLOT}, {self.NSLOT}")
        a(f"s_cselect_b32 s{S_RSLOT}, 0, s{S_RSLOT}")
        a(f"s_cmp_eq_u32 s{S_RSLOT}, {self.NSLOT-1}")
        self.csel(S_DELTA, hex((-(self.NSLOT-1)*32768) & 0xffffffff), 32768)

    def g1_loader(self, WS, tag, mode):
        a = self.a
        T = self.V_T
        pre = self.NSLOT - 1
        nx = 1 if mode == "gran" else 4
        if mode == "gran":
            for q in range(8):
                self.g1_dma1(WS, q)
            a(f"s_waitcnt vmcnt(16)")
            if "p1s" in self.opt: self.stamp(18)
            a(f"s_barrier")
            if pre == 4:
                for q in range(8):
                    self.g1_dma1(WS, q)
            self.tag_ready()
        else:
            a(f"s_waitcnt vmcnt(8)")
            a(f"s_barrier")
            if pre == 4:
                for q in range(8):
                    self.g1_dma1(WS, q)
                a(f"s_waitcnt vmcnt(8)")
            else:
                a(f"s_waitcnt vmcnt(4)")
        a(f"s_mov_b32 s{S_CNT}, 0")
        L1 = f"L_{tag}_lloop"
        a.put(L1)
        a(f"s_add_u32 s{S_CNT}, s{S_CNT}, 1")
        a(f"s_waitcnt vmcnt({8*(pre-2)})")
        a(f"s_barrier")
        for q in range(8):
            if "nodma" not in self.opt: self.g1_dma1(WS, q)
        a(f"s_cmp_lt_u32 s{S_CNT}, {10-pre}")
        a(f"s_cbranch_scc1 {L1}")
        a(f"s_sub_u32 s{S_T4}, s{S_W}, 4")
        a(f"s_lshl_b32 s{S_T0}, s{S_T4}, 5")
        a(f"v_and_b32 v{T}, 31, v1")
        a(f"v_add_u32 v{T}, s{S_T0}, v{T}")
        a(f"s_lshl_b32 s{S_T1}, s{S_MT}, 7")
        a(f"v_add_u32 v{T+1}, s{S_T1}, v{T}")
        if mode == "gran":
            a(f"v_lshlrev_b32 v{T+1}, 4, v{T+1}")
            a(f"v_add_u32 v{T+1}, {hex(OFF_GR)}, v{T+1}")
            a(f"buffer_load_dwordx4 v[{T+4}:{T+7}], v{T+1}, s[{SRD_F}:{SRD_F+3}], 0 offen sc1")
        else:
            a(f"v_lshlrev_b32 v{T+1}, 7, v{T+1}")
            a(f"v_lshrrev_b32 v{T+2}, 5, v1")
            a(f"v_lshl_add_u32 v{T+1}, v{T+2}, 6, v{T+1}")
            a(f"v_add_u32 v{T+1}, {hex(OFF_PST)}, v{T+1}")
            for q in range(4):
                a(f"buffer_load_dwordx4 v[{T+4+4*q}:{T+7+4*q}], v{T+1}, s[{SRD_F}:{SRD_F+3}], 0 offen offset:{16*q} {self.ld_aux}")
        late = 0
        if pre == 4:
            a(f"s_waitcnt vmcnt({16+nx})")
            a(f"s_barrier")
        a(f"s_waitcnt vmcnt({8+nx})")
        a(f"s_barrier")
        rl = 0
        if mode == "gran":
            self.withT(T + 24, self.relayout_load)
            rl = 4
        a(f"s_waitcnt vmcnt({nx+rl})")
        a(f"s_barrier")
        if mode != "gran" and "now2rest" not in self.opt:
            self.g2_wsetup(5, SRD_T, S_SW, T + 24)
            for s_ in range(5):
                for t in range(3):
                    self.g2_wload1(5, 3, s_, t, SRD_T, S_SW, T + 24)
            late = 15
        a(f"s_barrier")
        a(f"s_waitcnt vmcnt({late+rl})")
        if mode == "gran":
            Lp = f"L_{tag}_gpoll"; Lo = f"L_{tag}_gok"
            a(f"s_mov_b32 s{S_T0}, 0")
            a.put(Lp)
            a(f"v_cmp_ne_u32 vcc, s{S_TAG}, v{T+6}")
            a(f"v_cmp_ne_u32 s[{S_SAVE}:{S_SAVE+1}], s{S_TAG}, v{T+7}")
            a(f"s_nop 1")
            a(f"s_or_b64 vcc, vcc, s[{S_SAVE}:{S_SAVE+1}]")
            a(f"s_cbranch_vccz {Lo}")
            a(f"s_add_u32 s{S_T0}, s{S_T0}, 1")
            a(f"s_cmp_ge_u32 s{S_T0}, 0x40000")
            a(f"s_cbranch_scc1 {Lo}")
            a(f"buffer_load_dwordx4 v[{T+4}:{T+7}], v{T+1}, s[{SRD_F}:{SRD_F+3}], 0 offen sc1")
            a(f"s_waitcnt vmcnt(0)")
            a(f"s_branch {Lp}")
            a.put(Lo)
            A_, B_ = T+4, T+5
        else:
            for q in range(1, 4):
                for i in range(4):
                    a(f"v_add_f32 v{T+4+i}, v{T+4+i}, v{T+4+4*q+i}")
            a(f"v_add_f32 v{T+4}, v{T+4}, v{T+6}")
            a(f"v_add_f32 v{T+5}, v{T+5}, v{T+7}")
            a(f"v_mov_b32 v{T+6}, v{T+4}")
            a(f"v_mov_b32 v{T+7}, v{T+5}")
            a(f"s_nop 1")
            a(f"v_permlane32_swap_b32 v{T+6}, v{T+4}")
            a(f"v_permlane32_swap_b32 v{T+7}, v{T+5}")
            a(f"s_nop 1")
            a(f"v_add_f32 v{T+4}, v{T+4}, v{T+6}")
            a(f"v_add_f32 v{T+5}, v{T+5}, v{T+7}")
            self.ab_from_sums(T+4, T+5, T+8)
            A_, B_ = T+9, T+8
        a(f"v_lshlrev_b32 v{T}, 2, v{T}")
        a(f"v_add_u32 v{T}, {LDS_STATS}, v{T}")
        a(f"ds_write_b32 v{T}, v{A_} offset:{ST_AA}")
        a(f"ds_write_b32 v{T}, v{B_} offset:{ST_BB}")
        if getattr(self, "b1_hook", False):
            a(f"v_lshlrev_b32 v{T+22}, 16, v{T+22}")
            a(f"ds_write_b32 v{T}, v{T+22} offset:{ST_B1}")
        a(f"s_waitcnt lgkmcnt(0)")
        a(f"s_barrier")

    def ab_from_sums(self, sx, sq, o):
        a = self.a
        a(f"v_mul_f32 v{o}, {hex(f32(1.0/640))}, v{sx}")
        a(f"v_mul_f32 v{o+1}, {hex(f32(1.0/640))}, v{sq}")
        a(f"v_fma_f32 v{o+1}, -v{o}, v{o}, v{o+1}")
        a(f"v_max_f32 v{o+1}, 0, v{o+1}")
        a(f"v_add_f32 v{o+1}, {hex(f32(1e-5))}, v{o+1}")
        a(f"v_rsq_f32 v{o+1}, v{o+1}")
        a(f"s_nop 0")
        a(f"v_mul_f32 v{o}, v{o}, v{o+1}")
        a(f"v_sub_f32 v{o}, 0, v{o}")

    V_WRM = 252
    S_WRM = 62; S_WRMD = 54
    def p1_l2warm(self):
        a = self.a
        T = self.V_T; V = self.V_WRM
        LW = "L_warm_w"; LJ = "L_warm_j"
        a(f"s_bitcmp1_b32 s{S_W}, 0")
        a(f"s_cbranch_scc1 {LW}")
        self.srd(SRD_T, S_X, 0, 2048*1280)
        a(f"s_and_b32 s{S_T0}, s{S_GX}, 3")
        a(f"s_lshl_b32 s{S_T0}, s{S_T0}, 9")
        a(f"s_lshl_b32 s{S_T1}, s{S_GI}, 4")
        a(f"s_add_u32 s{S_T0}, s{S_T0}, s{S_T1}")
        a(f"v_add_u32 v{T}, s{S_T0}, v1")
        a(f"v_mul_u32_u24 v{V}, 1280, v{T}")
        a(f"v_cmp_gt_u32 vcc, 16, v1")
        a(f"s_mov_b32 s{self.S_WRMD}, 128")
        a(f"s_branch {LJ}a")
        a.put(LW)
        self.srd(SRD_T, S_WQKV, 0, 640*3840)
        a(f"v_lshrrev_b32 v{T}, 4, v1")
        a(f"s_lshl_b32 s{S_T0}, s{S_GI}, 1")
        a(f"v_add_u32 v{T}, s{S_T0}, v{T}")
        a(f"v_mul_u32_u24 v{V}, 3840, v{T}")
        a(f"v_and_b32 v{T+1}, 15, v1")
        a(f"v_lshl_add_u32 v{V}, v{T+1}, 7, v{V}")
        a(f"s_lshr_b32 s{S_T0}, s{S_GX}, 2")
        a(f"s_lshl_b32 s{S_T0}, s{S_T0}, 11")
        a(f"v_add_u32 v{V}, s{S_T0}, v{V}")
        a(f"v_cmp_gt_u32 vcc, 32, v1")
        a(f"s_mov_b32 s{self.S_WRMD}, {64*3840}")
        a.put(LJ + "a")
        a(f"s_cmp_ge_u32 s{S_W}, 2")
        a(f"s_cselect_b64 s[{S_SAVE}:{S_SAVE+1}], 0, vcc")
        a(f"v_mov_b32 v{T+1}, 0x7f000000")
        a(f"s_nop 0")
        a(f"v_cndmask_b32 v{V}, v{T+1}, v{V}, s[{S_SAVE}:{S_SAVE+1}]")
        a(f"s_mul_i32 s{self.S_WRM}, s{self.S_WRMD}, 3")
        for c in range(3):
            self.warm1()

    def warm1(self):
        a = self.a
        a(f"buffer_load_dword v253, v{self.V_WRM}, s[{SRD_T}:{SRD_T+3}], s{self.S_WRM} offen")
        a(f"s_add_u32 s{self.S_WRM}, s{self.S_WRM}, s{self.S_WRMD}")

    def w1_l2warm_keepT(self):
        self.w1_l2warm()

    def w1_l2warm(self):
        a = self.a
        V = self.A_ALL + 1
        self.srd(SRD_T, S_W1, 0, 640*3456)
        a(f"s_mul_i32 s{S_T0}, s{S_GI}, 540")
        a(f"s_lshl_b32 s{S_T1}, s{S_W}, 6")
        a(f"s_add_u32 s{S_T0}, s{S_T0}, s{S_T1}")
        a(f"v_add_u32 v{V}, s{S_T0}, v1")
        a(f"v_lshlrev_b32 v{V}, 7, v{V}")
        a(f"buffer_load_dword v{V+1}, v{V}, s[{SRD_T}:{SRD_T+3}], 0 offen")
        L = "L_w1w_skip"
        a(f"s_cmp_lg_u32 s{S_W}, 0")
        a(f"s_cbranch_scc1 {L}")
        self.set_exec((1 << 28) - 1)
        a(f"s_mov_b32 s{S_T1}, {512*128}")
        a(f"buffer_load_dword v{V+1}, v{V}, s[{SRD_T}:{SRD_T+3}], s{S_T1} offen")
        a(f"s_mov_b64 exec, -1")
        a(f"v_lshlrev_b32 v{V+2}, 7, v1")
        self.srd(SRD_T, S_B1, 0, 3456)
        a(f"buffer_load_dword v{V+1}, v{V+2}, s[{SRD_T}:{SRD_T+3}], 0 offen")
        self.srd(SRD_T, S_B2, 0, 1280)
        a(f"buffer_load_dword v{V+1}, v{V+2}, s[{SRD_T}:{SRD_T+3}], 0 offen")
        a.put(L)

    def dst_l2warm(self):
        a = self.a
        V = self.A_ALL + 1
        L = "L_dstw_skip"
        a(f"s_cmp_eq_u32 s{S_FAST}, 0")
        a(f"s_cbranch_scc1 {L}")
        self.srd(SRD_T, S_WS, 0, 0x1B00000)
        a(f"s_lshl_b32 s{S_T0}, s{S_W}, 6")
        a(f"v_add_u32 v{V}, s{S_T0}, v1")
        a(f"s_mul_i32 s{S_T0}, s{S_GX}, 2560")
        a(f"s_mul_i32 s{S_T1}, s{S_GI}, 80")
        a(f"s_add_u32 s{S_T0}, s{S_T0}, s{S_T1}")
        a(f"s_add_u32 s{S_T0}, s{S_T0}, {OFF_H//128}")
        a(f"s_mul_i32 s{S_T1}, s{S_GX}, 6912")
        a(f"s_mul_i32 s{S_T2}, s{S_GI}, 216")
        a(f"s_add_u32 s{S_T1}, s{S_T1}, s{S_T2}")
        a(f"s_add_u32 s{S_T1}, s{S_T1}, {OFF_R//128 - 80}")
        a(f"s_lshl_b32 s{S_T2}, s{S_GX}, 8")
        a(f"s_lshl_b32 s{S_T3}, s{S_GI}, 3")
        a(f"s_add_u32 s{S_T2}, s{S_T2}, s{S_T3}")
        a(f"s_add_u32 s{S_T2}, s{S_T2}, {OFF_PST//128 - 296}")
        a(f"v_mov_b32 v{V+2}, s{S_T2}")
        a(f"v_mov_b32 v{V+1}, s{S_T1}")
        a(f"v_cmp_gt_u32 vcc, 296, v{V}")
        a(f"s_nop 1")
        a(f"v_cndmask_b32 v{V+2}, v{V+2}, v{V+1}, vcc")
        a(f"v_mov_b32 v{V+1}, s{S_T0}")
        a(f"v_cmp_gt_u32 vcc, 80, v{V}")
        a(f"s_nop 1")
        a(f"v_cndmask_b32 v{V+2}, v{V+2}, v{V+1}, vcc")
        a(f"v_add_u32 v{V+2}, v{V+2}, v{V}")
        a(f"v_lshlrev_b32 v{V+2}, 7, v{V+2}")
        a(f"v_cmp_gt_u32 vcc, 304, v{V}")
        a(f"s_and_saveexec_b64 s[{S_SAVE}:{S_SAVE+1}], vcc")
        a(f"s_cbranch_execz {L}x")
        a(f"buffer_load_dword v{V+1}, v{V+2}, s[{SRD_T}:{SRD_T+3}], 0 offen")
        a.put(L + "x")
        a(f"s_mov_b64 exec, -1")
        a.put(L)

    def wp_l2warm(self):
        a = self.a
        V = self.A_ALL + 1
        a(f"s_cmp_lt_u32 s{S_W}, 4")
        self.csel(S_T0, hex(OFF_WOP), hex(OFF_W2P))
        a(f"s_add_u32 s{SRD_T}, s{S_WS}, s{S_T0}")
        a(f"s_addc_u32 s{SRD_T+1}, s{S_WS+1}, 0")
        a(f"s_mov_b32 s{SRD_T+2}, {SZ_WOP}")
        a(f"s_mov_b32 s{SRD_T+3}, 0x20000")
        a(f"s_and_b32 s{S_T0}, s{S_W}, 3")
        a(f"s_lshl_b32 s{S_T0}, s{S_T0}, 6")
        a(f"v_add_u32 v{V}, s{S_T0}, v1")
        a(f"v_cmp_gt_u32 vcc, 200, v{V}")
        a(f"s_mul_i32 s{S_T0}, s{S_GI}, 200")
        a(f"v_add_u32 v{V}, s{S_T0}, v{V}")
        a(f"v_lshlrev_b32 v{V}, 7, v{V}")
        a(f"s_and_saveexec_b64 s[{S_SAVE}:{S_SAVE+1}], vcc")
        a(f"s_cbranch_execz L_wpw_x")
        a(f"buffer_load_dword v{V+1}, v{V}, s[{SRD_T}:{SRD_T+3}], 0 offen")
        a.put("L_wpw_x")
        a(f"s_mov_b64 exec, -1")

    def xstats_publish(self):
        a = self.a
        T = self.V_T
        self.srd(SRD_O, S_X, 0, 2048*1280)
        a(f"s_lshl_b32 s{S_T0}, s2, 3")
        a(f"s_lshl_b32 s{S_T1}, s{S_W}, 1")
        a(f"s_add_u32 s{S_T0}, s{S_T0}, s{S_T1}")
        a(f"v_lshrrev_b32 v{T}, 5, v1")
        a(f"v_add_u32 v{T}, s{S_T0}, v{T}")
        a(f"v_mul_u32_u24 v{T+1}, 1280, v{T}")
        a(f"v_and_b32 v{T+2}, 31, v1")
        a(f"v_lshl_add_u32 v{T+1}, v{T+2}, 3, v{T+1}")
        D = T + 4
        for j in range(5):
            a(f"buffer_load_dwordx2 v[{D+2*j}:{D+2*j+1}], v{T+1}, s[{SRD_O}:{SRD_O+3}], 0 offen offset:{256*j}")
        return D

    def xstats_finish(self, D):
        a = self.a
        T = self.V_T
        S = T + 16
        a(f"v_mov_b32 v{S}, 0"); a(f"v_mov_b32 v{S+1}, 0")
        a(f"s_waitcnt vmcnt(0)")
        for r in range(10):
            a(f"v_lshlrev_b32 v{S+2}, 16, v{D+r}")
            a(f"v_and_b32 v{S+3}, 0xffff0000, v{D+r}")
            a(f"v_add_f32 v{S}, v{S}, v{S+2}")
            a(f"v_fmac_f32 v{S+1}, v{S+2}, v{S+2}")
            a(f"v_add_f32 v{S}, v{S}, v{S+3}")
            a(f"v_fmac_f32 v{S+1}, v{S+3}, v{S+3}")
        for ctl in ("row_shr:1", "row_shr:2", "row_shr:4", "row_shr:8"):
            a(f"s_nop 1")
            a(f"v_add_f32_dpp v{S}, v{S}, v{S} {ctl} row_mask:0xf bank_mask:0xf bound_ctrl:0")
            a(f"v_add_f32_dpp v{S+1}, v{S+1}, v{S+1} {ctl} row_mask:0xf bank_mask:0xf bound_ctrl:0")
        a(f"s_nop 1")
        a(f"v_add_f32_dpp v{S}, v{S}, v{S} row_bcast:15 row_mask:0xa bank_mask:0xf")
        a(f"v_add_f32_dpp v{S+1}, v{S+1}, v{S+1} row_bcast:15 row_mask:0xa bank_mask:0xf")
        a(f"s_nop 1")
        self.ab_from_sums(S, S+1, S+5)
        a(f"v_mov_b32 v{S+8}, v{S+6}")
        a(f"v_mov_b32 v{S+9}, v{S+5}")
        self.tag_ready()
        a(f"v_mov_b32 v{S+10}, s{S_TAG}")
        a(f"v_mov_b32 v{S+11}, s{S_TAG}")
        a(f"v_lshlrev_b32 v{T}, 4, v{T}")
        a(f"v_add_u32 v{T}, {hex(OFF_GR)}, v{T}")
        a(f"s_mov_b32 exec_lo, 0x80000000")
        a(f"s_mov_b32 exec_hi, 0x80000000")
        a(f"buffer_store_dwordx4 v[{S+8}:{S+11}], v{T}, s[{SRD_F}:{SRD_F+3}], 0 offen sc1")
        a(f"s_mov_b64 exec, -1")

    def tag_ready(self):
        a = self.a
        a(f"s_waitcnt lgkmcnt(0)")
        a(f"s_getreg_b32 s{S_XCC}, hwreg(HW_REG_XCC_ID, 0, 4)")
        a(f"s_mov_b32 s{S_FAST}, 0")
        a(f"s_mul_i32 s{S_TAG}, s{S_TAG}, 0x9E3779B1")
        a(f"s_add_u32 s{S_TAG}, s{S_TAG}, 0x7F4A7C15")

    def g1_setup_compute(self):
        a = self.a
        T = self.V_FR
        a(f"s_lshr_b32 s{S_WM}, s{S_W}, 1")
        a(f"s_and_b32 s{S_WN}, s{S_W}, 1")
        a(f"v_and_b32 v{T}, 31, v1")
        a(f"s_lshl_b32 s{S_T0}, s{S_WM}, 6")
        a(f"v_add_u32 v{T+1}, s{S_T0}, v{T}")
        a(f"v_lshlrev_b32 v{T+1}, 7, v{T+1}")
        a(f"v_bfe_u32 v{T+2}, v{T}, 1, 3")
        a(f"v_lshrrev_b32 v{T+3}, 5, v1")
        a(f"v_xor_b32 v{T+2}, v{T+2}, v{T+3}")
        for j in range(4):
            a(f"v_xor_b32 v{self.V_AA+j}, {2*j}, v{T+2}")
            a(f"v_lshlrev_b32 v{self.V_AA+j}, 4, v{self.V_AA+j}")
            a(f"v_add_u32 v{self.V_AA+j}, v{self.V_AA+j}, v{T+1}")
        a(f"v_and_b32 v{T+4}, 15, v1")
        a(f"v_lshrrev_b32 v{T+5}, 2, v{T+4}")
        a(f"v_lshlrev_b32 v{T+6}, 3, v{T+3}")
        a(f"v_add_u32 v{T+6}, v{T+6}, v{T+5}")
        a(f"v_lshlrev_b32 v{T+6}, 8, v{T+6}")
        a(f"v_bfe_u32 v{T+7}, v1, 4, 1")
        a(f"v_lshlrev_b32 v{T+7}, 1, v{T+7}")
        a(f"v_bfe_u32 v{T+8}, v1, 1, 1")
        a(f"v_add_u32 v{T+7}, v{T+7}, v{T+8}")
        a(f"s_lshl_b32 s{S_T0}, s{S_WN}, 3")
        a(f"s_lshl_b32 s{S_T1}, s{S_WM}, 2")
        a(f"s_add_u32 s{S_T0}, s{S_T0}, s{S_T1}")
        a(f"v_add_u32 v{T+7}, s{S_T0}, v{T+7}")
        a(f"v_lshlrev_b32 v{T+5}, 2, v{T+5}")
        a(f"v_xor_b32 v{T+7}, v{T+7}, v{T+5}")
        a(f"v_lshlrev_b32 v{T+7}, 4, v{T+7}")
        a(f"v_and_b32 v{T+8}, 1, v1")
        a(f"v_lshlrev_b32 v{T+8}, 3, v{T+8}")
        a(f"v_add_u32 v{T+6}, v{T+6}, v{T+7}")
        a(f"v_add_u32 v{T+6}, v{T+6}, v{T+8}")
        a(f"v_add_u32 v{self.V_AWA}, 16384, v{T+6}")
        a(f"v_xor_b32 v{self.V_AWB}, 64, v{self.V_AWA}")
        a(f"v_and_b32 v{T}, 15, v1")
        a(f"v_bfe_u32 v{T+1}, v1, 4, 1")
        a(f"v_cmp_eq_u32 vcc, v{T}, v{T+1}")
        a(f"v_mov_b32 v{T+2}, 0x3f803f80")
        a(f"s_nop 1")
        a(f"v_cndmask_b32 v{self.V_CSA}, 0, v{T+2}, vcc")
        for r in range(1, 4):
            a(f"v_mov_b32 v{self.V_CSA+r}, v{self.V_CSA}")
        for r in range(4):
            a(f"v_mov_b32 v{self.V_CSD+r}, 0")
        for r in range(64):
            a(f"v_mov_b32 v{self.V_ACC+r}, 0")

    def g1_read1(self, j, q):
        if "noreads" in self.opt: return
        a = self.a
        F = self.V_FR + 16*j
        if q == 0: a(f"ds_read_b128 v[{F}:{F+3}], v{self.V_AA+j}")
        elif q == 1: a(f"ds_read_b128 v[{F+4}:{F+7}], v{self.V_AA+j} offset:4096")
        else:
            ad = (self.V_AWA if q == 2 else self.V_AWB) if j != 3 else (self.V_AW2A if q == 2 else self.V_AW2B)
            R = F + 8 + 4*(q-2)
            a(f"ds_read_b64_tr_b16 v[{R}:{R+1}], v{ad} offset:{4096*j}")
            a(f"ds_read_b64_tr_b16 v[{R+2}:{R+3}], v{ad} offset:{4096*j+1024}")

    def g1_mfma1(self, j, orient, tt, q):
        if "nomfma" in self.opt: return
        a = self.a
        F = self.V_FR + 16*j
        X = f"v[{F+4*tt}:{F+4*tt+3}]"; W = f"v[{F+8+4*q}:{F+11+4*q}]"
        A = self.V_ACC + 16*(2*tt+q)
        D = f"v[{A}:{A+15}]"
        if orient == "T": a(f"v_mfma_f32_32x32x16_bf16 {D}, {W}, {X}, {D}")
        else:             a(f"v_mfma_f32_32x32x16_bf16 {D}, {X}, {W}, {D}")

    def g1_colsum(self, j):
        if "nostats" in self.opt: return
        F = self.V_FR + 16*j; D = self.V_CSD
        self.a(f"v_mfma_f32_16x16x32_bf16 v[{D}:{D+3}], v[{self.V_CSA}:{self.V_CSA+3}], v[{F+8}:{F+11}], v[{D}:{D+3}]")

    def g1_adv(self):
        a = self.a
        for r in list(range(self.V_AA, self.V_AA+4)) + [self.V_AWA, self.V_AWB]:
            a(f"v_add_u32 v{r}, s{S_DELTA}, v{r}")

    def g1_cstep(self, j, orient, rset, fill=((), (), (), ())):
        a = self.a
        order = (2, 0, 1, 3)
        cp = getattr(self, "cprof", False)
        if cp: a(f"s_memtime s[{72+4*j}:{73+4*j}]")
        a(f"s_waitcnt lgkmcnt(12)")
        if cp: a(f"s_memtime s[{74+4*j}:{75+4*j}]")
        for k, (tt, q) in enumerate(((0, 0), (1, 0), (0, 1), (1, 1))):
            self.g1_mfma1(j, orient, tt, q)
            if k == 0: self.g1_colsum(j)
            self.g1_read1(rset, order[k])
            for f in fill[k]: a(f)

    def g1_compute(self, orient, tag, presetup=False):
        a = self.a
        if not presetup: self.g1_setup_compute()
        AA = self.V_AA
        a(f"v_mov_b32 v{self.V_AW2A}, v{self.V_AWA}")
        a(f"v_mov_b32 v{self.V_AW2B}, v{self.V_AWB}")
        a(f"s_barrier")
        self.stamp(self.st1)
        for j in range(3):
            for q in (2, 0, 1, 3): self.g1_read1(j, q)
        DA, DB = S_DELTA, S_T5
        a(f"s_mov_b32 s{S_CNT}, 0")
        a(f"s_mov_b32 s{S_RSLOT}, 1")
        a(f"s_mov_b32 s{DA}, 32768")
        a(f"v_add_u32 v{AA}, s{DA}, v{AA}")
        a(f"v_add_u32 v{AA+1}, s{DA}, v{AA+1}")
        wrap = hex((-(self.NSLOT-1)*32768) & 0xffffffff)
        L1 = f"L_{tag}_cloop"
        a(f".p2align 5")
        a.put(L1)
        self.g1_cstep(0, orient, 3, ((f"v_add_u32 v{AA+2}, s{DA}, v{AA+2}",), (f"v_add_u32 v{self.V_AWA}, s{DA}, v{self.V_AWA}",),
                                     (f"v_add_u32 v{self.V_AWB}, s{DA}, v{self.V_AWB}",), ()))
        a(f"s_barrier")
        self.g1_cstep(1, orient, 0, ((f"v_add_u32 v{AA+3}, s{DA}, v{AA+3}", f"s_cmp_eq_u32 s{S_RSLOT}, {self.NSLOT-1}"),
                                     (f"s_mov_b32 s{DB}, 32768", f"s_cselect_b32 s{DB}, {wrap}, s{DB}"),
                                     (f"v_mov_b32 v{self.V_AW2A}, v{self.V_AWA}", f"s_cselect_b32 s{S_RSLOT}, -1, s{S_RSLOT}"),
                                     (f"v_mov_b32 v{self.V_AW2B}, v{self.V_AWB}", f"s_add_u32 s{S_RSLOT}, s{S_RSLOT}, 1")))
        wf = ()
        if getattr(self, "warm_fill", False):
            wf = (f"s_cmp_eq_u32 s{S_CNT}, 3", f"s_cselect_b32 s{self.S_WRMD}, s{self.S_WRM}, s{S_OOB}", f"buffer_load_dword v253, v{self.V_WRM}, s[{SRD_T}:{SRD_T+3}], s{self.S_WRMD} offen")
        self.g1_cstep(2, orient, 1, ((f"v_add_u32 v{AA}, s{DB}, v{AA}",), (f"s_add_u32 s{S_CNT}, s{S_CNT}, 1",), wf, ()))
        self.g1_cstep(3, orient, 2, ((f"v_add_u32 v{AA+1}, s{DB}, v{AA+1}",), (f"s_mov_b32 s{DA}, s{DB}",), (f"s_cmp_lt_u32 s{S_CNT}, 10",), ()))
        a(f"s_cbranch_scc1 {L1}")
        a(f"s_waitcnt lgkmcnt(0)")
        a(f"v_mbcnt_lo_u32_b32 v1, -1, 0")
        a(f"v_mbcnt_hi_u32_b32 v1, -1, v1")
        T = self.V_FR
        a(f"s_lshl_b32 s{S_T0}, s{S_WN}, 8")
        a(f"s_lshl_b32 s{S_T1}, s{S_WM}, 7")
        a(f"s_add_u32 s{S_T0}, s{S_T0}, s{S_T1}")
        a(f"s_add_u32 s{S_T0}, s{S_T0}, {LDS_STATS+ST_CS}")
        a(f"v_lshlrev_b32 v{T}, 2, v1")
        a(f"v_add_u32 v{T}, s{S_T0}, v{T}")
        a(f"s_nop 4")
        a(f"s_mov_b64 exec, 0xffff")
        a(f"ds_write_b32 v{T}, v{self.V_CSD}")
        a(f"ds_write_b32 v{T}, v{self.V_CSD+1} offset:64")
        a(f"s_mov_b64 exec, -1")
        a(f"s_waitcnt lgkmcnt(0)")
        a(f"s_barrier")

    def magic_div5(self, dst, src):
        self.a(f"v_mul_u32_u24 v{dst}, 52429, v{src}")
        self.a(f"v_lshrrev_b32 v{dst}, 18, v{dst}")
    def magic_div20(self, dst, src):
        self.a(f"v_mul_u32_u24 v{dst}, 52429, v{src}")
        self.a(f"v_lshrrev_b32 v{dst}, 20, v{dst}")

    def epi_T_common(self):
        a = self.a
        T = self.V_T; CSR = self.V_FR
        a(f"v_and_b32 v{T}, 31, v1")
        a(f"s_lshl_b32 s{S_T0}, s{S_WM}, 6")
        a(f"v_add_u32 v{T+1}, s{S_T0}, v{T}")
        a(f"v_lshlrev_b32 v{T+1}, 2, v{T+1}")
        a(f"v_add_u32 v{T+1}, {LDS_STATS}, v{T+1}")
        a(f"ds_read_b32 v{T+2}, v{T+1} offset:{ST_AA}")
        a(f"ds_read_b32 v{T+3}, v{T+1} offset:{ST_BB}")
        a(f"ds_read_b32 v{T+4}, v{T+1} offset:{ST_AA+128}")
        a(f"ds_read_b32 v{T+5}, v{T+1} offset:{ST_BB+128}")
        a(f"v_lshrrev_b32 v{T+6}, 5, v1")
        a(f"s_lshl_b32 s{S_T0}, s{S_WN}, 8")
        a(f"s_lshl_b32 s{S_T1}, s{S_WM}, 7")
        a(f"s_add_u32 s{S_T0}, s{S_T0}, s{S_T1}")
        a(f"s_add_u32 s{S_T0}, s{S_T0}, {LDS_STATS+ST_CS}")
        a(f"v_lshlrev_b32 v{T+7}, 4, v{T+6}")
        a(f"v_add_u32 v{T+7}, s{S_T0}, v{T+7}")
        a(f"v_xor_b32 v{T+1}, 128, v{T+7}")
        for g in range(4):
            a(f"ds_read_b128 v[{CSR+4*g}:{CSR+4*g+3}], v{T+7} offset:{32*g}")
        for g in range(4):
            a(f"ds_read_b128 v[{CSR+16+4*g}:{CSR+16+4*g+3}], v{T+1} offset:{32*g}")

    def p1_epi_T(self):
        a = self.a
        T = self.V_T; A = self.V_ACC; CSR = self.V_FR
        self.epi_T_common()
        a(f"s_cmp_lt_u32 s{S_NT}, 5")
        a(f"s_cselect_b32 s{S_T0}, {hex(f32(math.log2(math.e)/math.sqrt(20.0)))}, 1.0")
        self.csel(S_T1, 81920, 163840)
        self.csel(S_T2, 1280, 2560)
        a(f"s_cselect_b32 s{S_T3}, 0, 5")
        self.csel(S_T4, hex(OFF_Q), hex(OFF_KV))
        self.csel(S_T5, hex(SZ_Q), hex(SZ_KV))
        a(f"s_add_u32 s{SRD_O}, s{S_WS}, s{S_T4}")
        a(f"s_addc_u32 s{SRD_O+1}, s{S_WS+1}, 0")
        a(f"s_mov_b32 s{SRD_O+2}, s{S_T5}")
        a(f"s_mov_b32 s{SRD_O+3}, 0x20000")
        a(f"s_sub_u32 s{S_T3}, s{S_NT}, s{S_T3}")
        a(f"s_lshl_b32 s{S_T3}, s{S_T3}, 5")
        a(f"s_lshl_b32 s{S_T4}, s{S_WN}, 4")
        a(f"s_add_u32 s{S_T3}, s{S_T3}, s{S_T4}")
        a(f"s_lshl_b32 s{S_T4}, s{S_WM}, 3")
        AD = T + 8
        for q in range(2):
            for g in range(4):
                if q == 0:
                    a(f"s_add_u32 s{S_T5}, s{S_T3}, s{S_T4}")
                else:
                    a(f"s_xor_b32 s{S_T5}, s{S_T4}, 8")
                    a(f"s_add_u32 s{S_T5}, s{S_T5}, s{S_T3}")
                a(f"s_add_u32 s{S_T5}, s{S_T5}, {2*g}")
                a(f"v_add_u32 v{T+16}, s{S_T5}, v{T+6}")
                self.magic_div5(T+17, T+16)
                a(f"v_mul_u32_u24 v{T+18}, 5, v{T+17}")
                a(f"v_sub_u32 v{T+18}, v{T+16}, v{T+18}")
                a(f"v_mul_lo_u32 v{T+17}, v{T+17}, s{S_T1}")
                a(f"v_lshlrev_b32 v{T+18}, 8, v{T+18}")
                a(f"v_add_u32 v{T+17}, v{T+17}, v{T+18}")
                a(f"v_lshl_add_u32 v{AD+4*q+g}, v{T}, 3, v{T+17}")
        a(f"s_lshl_b32 s{S_T4}, s{S_MT}, 2")
        a(f"s_lshl_b32 s{S_T5}, s{S_WM}, 1")
        a(f"s_add_u32 s{S_T4}, s{S_T4}, s{S_T5}")
        a(f"s_mul_i32 s{S_T4}, s{S_T4}, s{S_T2}")
        a(f"s_add_u32 s{S_T5}, s{S_T4}, s{S_T2}")
        a(f"s_waitcnt lgkmcnt(0)")
        for tt in range(2):
            a(f"v_mul_f32 v{T+2+2*tt}, s{S_T0}, v{T+2+2*tt}")
            a(f"v_mul_f32 v{T+3+2*tt}, s{S_T0}, v{T+3+2*tt}")
        for tt in range(2):
            for q in range(2):
                for g in range(4):
                    for i in range(4):
                        r = A + 16*(2*tt+q) + 4*g + i
                        a(f"v_mul_f32 v{r}, v{T+2+2*tt}, v{r}")
                        a(f"v_fmac_f32 v{r}, v{T+3+2*tt}, v{CSR+16*q+4*g+i}")
                    r = A + 16*(2*tt+q) + 4*g
                    a(f"v_cvt_pk_bf16_f32 v{r}, v{r}, v{r+1}")
                    a(f"v_cvt_pk_bf16_f32 v{r+1}, v{r+2}, v{r+3}")
                    a(f"buffer_store_dwordx2 v[{r}:{r+1}], v{AD+4*q+g}, s[{SRD_O}:{SRD_O+3}], s{S_T4+tt} offen sc1")

    def p1_epi_N(self):
        a = self.a
        T = self.V_T; A = self.V_ACC
        AB = self.V_FR; BB = self.V_FR + 16
        a(f"v_and_b32 v{T}, 31, v1")
        a(f"v_lshrrev_b32 v{T+6}, 5, v1")
        a(f"s_lshl_b32 s{S_T0}, s{S_WM}, 8")
        a(f"v_lshlrev_b32 v{T+4}, 4, v{T+6}")
        a(f"v_add_u32 v{T+4}, s{S_T0}, v{T+4}")
        a(f"v_add_u32 v{T+4}, {LDS_STATS}, v{T+4}")
        a(f"s_mov_b32 s{S_T2}, 163840")
        for q in range(2):
            a(f"s_xor_b32 s{S_T0}, s{S_WM}, {q}")
            a(f"s_lshl_b32 s{S_T0}, s{S_T0}, 5")
            a(f"s_lshl_b32 s{S_T1}, s{S_WN}, 6")
            a(f"s_add_u32 s{S_T0}, s{S_T0}, s{S_T1}")
            a(f"v_add_u32 v{T+1}, s{S_T0}, v{T}")
            a(f"v_lshlrev_b32 v{T+2}, 2, v{T+1}")
            a(f"v_add_u32 v{T+2}, {LDS_STATS+ST_CS}, v{T+2}")
            a(f"ds_read_b32 v{T+10+q}, v{T+2}")
            a(f"s_sub_u32 s{S_T1}, s{S_NT}, 10")
            a(f"s_lshl_b32 s{S_T1}, s{S_T1}, 7")
            a(f"v_add_u32 v{T+7}, s{S_T1}, v{T+1}")
            self.magic_div20(T+8, T+7)
            a(f"v_mul_u32_u24 v{T+9}, 20, v{T+8}")
            a(f"v_sub_u32 v{T+9}, v{T+7}, v{T+9}")
            a(f"v_mul_lo_u32 v{T+8}, v{T+8}, s{S_T2}")
            a(f"v_lshlrev_b32 v{T+9}, 4, v{T+9}")
            a(f"v_add_u32 v{T+8}, v{T+8}, v{T+9}")
            a(f"v_mul_u32_u24 v{T+9}, 320, v{T+6}")
            a(f"v_add_u32 v{T+8}, v{T+8}, v{T+9}")
            a(f"v_add_u32 v{T+12+q}, 1280, v{T+8}")
        self.srd(SRD_O, S_WS, OFF_KV, SZ_KV)
        a(f"s_lshl_b32 s{S_T4}, s{S_MT}, 2")
        a(f"s_lshl_b32 s{S_T5}, s{S_WM}, 1")
        a(f"s_add_u32 s{S_T4}, s{S_T4}, s{S_T5}")
        a(f"s_mul_i32 s{S_T4}, s{S_T4}, 2560")
        a(f"s_add_u32 s{S_T5}, s{S_T4}, 2560")
        for tt in range(2):
            for g in range(4):
                a(f"ds_read_b128 v[{AB+4*g}:{AB+4*g+3}], v{T+4} offset:{ST_AA + 128*tt + 32*g}")
                a(f"ds_read_b128 v[{BB+4*g}:{BB+4*g+3}], v{T+4} offset:{ST_BB + 128*tt + 32*g}")
            a(f"s_waitcnt lgkmcnt(0)")
            for q in range(2):
                for r in range(16):
                    R = A + 16*(2*tt+q) + r
                    a(f"v_mul_f32 v{R}, v{AB+r}, v{R}")
                    a(f"v_fmac_f32 v{R}, v{BB+r}, v{T+10+q}")
                for st in range(2):
                    R = A + 16*(2*tt+q) + 8*st
                    for z in range(4):
                        a(f"v_cvt_pk_bf16_f32 v{R+z}, v{R+2*z}, v{R+2*z+1}")
                    a(f"buffer_store_dwordx4 v[{R}:{R+3}], v{T+12+q}, s[{SRD_O}:{SRD_O+3}], s{S_T4+tt} offen offset:{640*st} sc1")

    def relayout_unit(self):
        pass

    def rl_unit(self):
        a = self.a
        a(f"s_lshl_b32 s{S_T0}, s2, 2")
        a(f"s_and_b32 s{S_T5}, s{S_W}, 3")
        a(f"s_add_u32 s{S_T0}, s{S_T0}, s{S_T5}")

    def rl_src(self, srd):
        a = self.a
        self.rl_unit()
        a(f"s_cmp_lt_u32 s{S_T0}, 540")
        a(f"s_cselect_b32 s{S_T1}, 0, 540")
        a(f"s_cselect_b32 s{srd}, s{S_W2}, s{S_WO}")
        a(f"s_cselect_b32 s{srd+1}, s{S_W2+1}, s{S_WO+1}")
        self.csel(srd+2, 1728*1280, 640*1280)
        a(f"s_mov_b32 s{srd+3}, 0x20000")
        a(f"s_sub_u32 s{S_T1}, s{S_T0}, s{S_T1}")
        a(f"s_mul_hi_u32 s{S_T2}, s{S_T1}, {hex((2**32+9)//10)}")
        a(f"s_mul_i32 s{S_T3}, s{S_T2}, 10")
        a(f"s_sub_u32 s{S_T3}, s{S_T1}, s{S_T3}")
        a(f"s_mul_i32 s{S_T2}, s{S_T2}, {32*1280}")
        a(f"s_lshl_b32 s{S_T3}, s{S_T3}, 7")
        a(f"s_add_u32 s{S_T2}, s{S_T2}, s{S_T3}")
        a(f"s_cmp_ge_u32 s{S_T0}, 740")
        a(f"s_cselect_b32 s{S_T2}, 0x70000000, s{S_T2}")

    def relayout_load(self):
        a = self.a
        T = self.V_T
        self.rl_src(SRD_T)
        a(f"v_lshrrev_b32 v{T}, 3, v1")
        a(f"v_mul_u32_u24 v{T}, 1280, v{T}")
        a(f"v_and_b32 v{T+1}, 7, v1")
        a(f"v_lshl_add_u32 v{T}, v{T+1}, 4, v{T}")
        a(f"s_lshl_b32 s{S_T3}, s{S_T5}, 12")
        a(f"s_add_u32 m0, s{S_T3}, {LDS_RL}")
        for jj in range(4):
            a(f"s_nop 0")
            a(f"buffer_load_dwordx4 v{T}, s[{SRD_T}:{SRD_T+3}], s{S_T2} offen lds")
            if jj < 3:
                a(f"s_add_u32 m0, m0, 1024")
                a(f"s_add_u32 s{S_T2}, s{S_T2}, {8*1280}")

    def relayout_warm_setup(self):
        a = self.a
        V = self.V_WRM
        self.rl_src(SRD_T)
        a(f"s_mov_b32 s{self.S_WRM}, s{S_T2}")
        a(f"s_mov_b32 s{S_OOB}, 0x70000000")
        a(f"v_mul_u32_u24 v{V}, 1280, v1")
        a(f"v_cmp_gt_u32 vcc, 32, v1")
        a(f"v_mov_b32 v{V-1}, 0x7f000000")
        a(f"s_nop 0")
        a(f"v_cndmask_b32 v{V}, v{V-1}, v{V}, vcc")

    def relayout_store(self):
        a = self.a
        T = self.V_T
        Lskip = "L_rl_skip2"
        self.rl_unit()
        a(f"s_cmp_ge_u32 s{S_T0}, 740")
        a(f"s_cbranch_scc1 {Lskip}")
        a(f"s_cmp_lt_u32 s{S_T0}, 540")
        a(f"s_cselect_b32 s{S_T1}, 0, 540")
        self.csel(S_T4, hex(OFF_W2P), hex(OFF_WOP))
        self.csel(S_T3, hex(SZ_W2P), hex(SZ_WOP))
        a(f"s_mov_b32 s{SRD_T+2}, s{S_T3}")
        a(f"s_sub_u32 s{S_T1}, s{S_T0}, s{S_T1}")
        a(f"s_add_u32 s{SRD_T}, s{S_WS}, s{S_T4}")
        a(f"s_addc_u32 s{SRD_T+1}, s{S_WS+1}, 0")
        a(f"s_mov_b32 s{SRD_T+3}, 0x20000")
        a(f"s_mul_hi_u32 s{S_T2}, s{S_T1}, {hex((2**32+9)//10)}")
        a(f"s_mul_i32 s{S_T3}, s{S_T2}, 10")
        a(f"s_sub_u32 s{S_T3}, s{S_T1}, s{S_T3}")
        a(f"s_mul_i32 s{S_T2}, s{S_T2}, 40")
        a(f"s_lshl_b32 s{S_T3}, s{S_T3}, 2")
        a(f"s_add_u32 s{S_T2}, s{S_T2}, s{S_T3}")
        a(f"s_lshl_b32 s{S_T2}, s{S_T2}, 10")
        a(f"v_lshrrev_b32 v{T}, 4, v1")
        a(f"v_lshlrev_b32 v{T}, 3, v{T}")
        a(f"v_bfe_u32 v{T+1}, v1, 2, 2")
        a(f"v_add_u32 v{T}, v{T}, v{T+1}")
        a(f"v_lshlrev_b32 v{T}, 7, v{T}")
        a(f"v_and_b32 v{T+1}, 3, v1")
        a(f"v_lshl_add_u32 v{T}, v{T+1}, 3, v{T}")
        a(f"s_lshl_b32 s{S_T3}, s{S_T5}, 12")
        a(f"s_add_u32 s{S_T3}, s{S_T3}, {LDS_RL}")
        a(f"v_add_u32 v{T}, s{S_T3}, v{T}")
        a(f"v_lshlrev_b32 v{T+1}, 4, v1")
        O = T + 4
        for tq in range(4):
            a(f"ds_read_b64_tr_b16 v[{O+4*tq}:{O+4*tq+1}], v{T} offset:{32*tq}")
            a(f"ds_read_b64_tr_b16 v[{O+4*tq+2}:{O+4*tq+3}], v{T} offset:{32*tq+512}")
        a(f"s_waitcnt lgkmcnt(0)")
        for tq in range(4):
            a(f"buffer_store_dwordx4 v[{O+4*tq}:{O+4*tq+3}], v{T+1}, s[{SRD_T}:{SRD_T+3}], s{S_T2} offen offset:{1024*tq} sc1")
        a.put(Lskip)

    def p1(self):
        a = self.a
        a(f"s_and_b32 s{S_T0}, s{S_GX}, 3")
        a(f"s_lshl_b32 s{S_T0}, s{S_T0}, 2")
        a(f"s_and_b32 s{S_T1}, s{S_GI}, 3")
        a(f"s_add_u32 s{S_MT}, s{S_T0}, s{S_T1}")
        a(f"s_lshr_b32 s{S_T0}, s{S_GX}, 2")
        a(f"s_lshl_b32 s{S_T0}, s{S_T0}, 3")
        a(f"s_lshr_b32 s{S_T2}, s{S_GI}, 2")
        a(f"s_add_u32 s{S_NT}, s{S_T0}, s{S_T2}")
        a(f"s_lshl_b32 s{S_T1}, s{S_T1}, 1")
        a(f"s_add_u32 s{S_RLW}, s{S_T1}, s{S_T2}")
        a(f"s_and_b32 s{S_RLW}, s{S_RLW}, 7")
        a(f"s_mov_b32 s{S_KK}, 0")
        self.aux_A = ""
        self.st1 = 1
        a(f"s_cmp_lt_u32 s{S_W}, 4")
        a(f"s_cbranch_scc1 L_p1_compute")
        self.g1_setup_loader(3840)
        a(f"s_waitcnt lgkmcnt(0)")
        if "p1s" in self.opt: self.stamp(15)
        self.srd(SRD_A, S_X, 0, 2048*1280)
        self.srd(SRD_W, S_WQKV, 0, 640*3840)
        a(f"s_load_dword s{S_TAG}, s[{S_WS}:{S_WS+1}], {OFF_EPOCH}")
        a(f"s_cmp_ge_u32 s{S_NT}, 15")
        a(f"s_cbranch_scc1 L_p1_lnull")
        self.g1_dma_stage(3840)
        if "p1s" in self.opt: self.stamp(16)
        self.g1_dma_stage(3840)
        if "norot" not in self.opt: a(f"s_add_u32 s{S_KK}, s{S_RLW}, 2")
        self.srd(SRD_F, S_WS, 0, 0x100000)
        if "p1s" in self.opt: self.stamp(17)
        self.g1_loader(3840, "p1", "gran")
        a(f"s_branch L_p1_lj")
        a.put("L_p1_lnull")
        self.srd(SRD_F, S_WS, 0, 0x100000)
        self.tag_ready()
        self.relayout_load()
        a.put("L_p1_lj")
        a(f"s_waitcnt vmcnt(0)")
        self.relayout_store()
        a(f"s_branch L_p1_done")
        a.put("L_p1_compute")
        if "nowarm" not in self.opt: self.code_warm()
        a(f"s_waitcnt lgkmcnt(0)")
        a(f"s_load_dword s{S_TAG}, s[{S_WS}:{S_WS+1}], {OFF_EPOCH}")
        self.srd(SRD_F, S_WS, 0, 0x100000)
        D = self.xstats_publish()
        self.relayout_warm_setup()
        self.xstats_finish(D)
        a(f"s_cmp_ge_u32 s{S_NT}, 15")
        a(f"s_cbranch_scc1 L_p1_done")
        a(f"s_cmp_ge_u32 s{S_NT}, 10")
        a(f"s_cbranch_scc1 L_p1_N")
        self.warm_fill = True
        self.g1_compute("T", "p1T")
        self.stamp(2)
        self.p1_epi_T()
        a(f"s_branch L_p1_done")
        a.put("L_p1_N")
        self.g1_compute("N", "p1N")
        self.warm_fill = False
        self.stamp(2)
        self.p1_epi_N()
        a.put("L_p1_done")
        self.stamp(3)
        a(f"s_waitcnt vmcnt(0)")
        self.stamp(4)

    def poll(self, addr_regs, masks, tagname):
        a = self.a
        T = self.V_S - 8
        L = f"L_{tagname}_poll"; Lo = f"L_{tagname}_pollok"
        a(f"s_mov_b32 s{S_T0}, 0")
        a.put(L)
        for k, (ar, mk) in enumerate(zip(addr_regs, masks)):
            self.set_exec(mk)
            a(f"buffer_load_dword v{T+20+k}, v{ar}, s[{SRD_F}:{SRD_F+3}], 0 offen sc1")
        a(f"s_waitcnt vmcnt(0)")
        a(f"s_mov_b64 s[{S_SAVE}:{S_SAVE+1}], 0")
        for k, (ar, mk) in enumerate(zip(addr_regs, masks)):
            self.set_exec(mk)
            a(f"v_cmp_ne_u32 vcc, s{S_TAG}, v{T+20+k}")
            a(f"s_or_b64 s[{S_SAVE}:{S_SAVE+1}], s[{S_SAVE}:{S_SAVE+1}], vcc")
        a(f"s_mov_b64 exec, -1")
        a(f"s_cmp_eq_u64 s[{S_SAVE}:{S_SAVE+1}], 0")
        a(f"s_cbranch_scc1 {Lo}")
        a(f"s_add_u32 s{S_T0}, s{S_T0}, 1")
        a(f"s_cmp_lt_u32 s{S_T0}, 0x40000")
        a(f"s_cbranch_scc1 {L}")
        a.put(Lo)

    def p1_signal(self):
        a = self.a
        T = self.V_S
        a(f"s_waitcnt vmcnt(0) lgkmcnt(0)")
        a(f"s_barrier")
        Ls = "L_p1sig_skip"
        a(f"s_cmp_lg_u32 s{S_W}, {self.POLLW}")
        a(f"s_cbranch_scc1 {Ls}")
        a(f"v_lshrrev_b32 v{T}, 3, v1")
        a(f"v_and_b32 v{T+1}, 7, v1")
        Ln = "L_p1sig_null"; Lj = "L_p1sig_join"
        a(f"s_cmp_eq_u32 s{S_NT}, 15")
        a(f"s_cbranch_scc1 {Ln}")
        a(f"s_cmp_ge_u32 s{S_NT}, 10")
        a(f"s_cselect_b32 s{S_T0}, 10, 5")
        a(f"s_cmp_lt_u32 s{S_NT}, 5")
        a(f"s_cselect_b32 s{S_T0}, 0, s{S_T0}")
        a(f"s_sub_u32 s{S_T0}, s{S_NT}, s{S_T0}")
        a(f"s_lshl_b32 s{S_T0}, s{S_T0}, 7")
        a(f"s_mul_i32 s{S_T1}, s{S_T0}, 52429")
        a(f"s_lshr_b32 s{S_T1}, s{S_T1}, 20")
        a(f"s_add_u32 s{S_T2}, s{S_T0}, 127")
        a(f"s_mul_i32 s{S_T2}, s{S_T2}, 52429")
        a(f"s_lshr_b32 s{S_T2}, s{S_T2}, 20")
        a(f"s_min_u32 s{S_T2}, s{S_T2}, 31")
        a(f"v_add_u32 v{T+2}, s{S_T1}, v{T}")
        a(f"v_cmp_ge_u32 vcc, s{S_T2}, v{T+2}")
        a(f"s_mov_b64 s[{S_SAVE}:{S_SAVE+1}], vcc")
        a(f"s_cmp_lt_u32 s{S_NT}, 5")
        a(f"s_cbranch_scc0 {Lj}")
        a(f"s_lshr_b32 s{S_T3}, s{S_MT}, 1")
        a(f"v_cmp_eq_u32 vcc, s{S_T3}, v{T+1}")
        a(f"s_and_b64 s[{S_SAVE}:{S_SAVE+1}], s[{S_SAVE}:{S_SAVE+1}], vcc")
        a(f"s_branch {Lj}")
        a.put(Ln)
        a(f"v_lshlrev_b32 v{T+2}, 4, v{T}")
        a(f"v_add_u32 v{T+2}, s{S_MT}, v{T+2}")
        a(f"v_cmp_gt_u32 vcc, 2, v{T}")
        a(f"s_mov_b64 s[{S_SAVE}:{S_SAVE+1}], vcc")
        a.put(Lj)
        a(f"v_and_b32 v{T+4}, 3, v{T+2}")
        a(f"v_lshl_add_u32 v{T+4}, v{T+1}, 2, v{T+4}")
        a(f"v_lshrrev_b32 v{T+2}, 2, v{T+2}")
        a(f"v_lshl_add_u32 v{T+2}, v{T+4}, 3, v{T+2}")
        a(f"v_lshlrev_b32 v{T+2}, 10, v{T+2}")
        a(f"s_lshl_b32 s{S_T0}, s2, 2")
        a(f"s_add_u32 s{S_T0}, s{S_T0}, {OFF_MB1}")
        a(f"v_add_u32 v{T+2}, s{S_T0}, v{T+2}")
        a(f"v_mov_b32 v{T+3}, s{S_TAG}")
        a(f"s_mov_b64 exec, s[{S_SAVE}:{S_SAVE+1}]")
        a(f"buffer_store_dword v{T+3}, v{T+2}, s[{SRD_F}:{SRD_F+3}], 0 offen sc1")
        a(f"s_mov_b64 exec, 1")
        a(f"s_lshl_b32 s{S_T0}, s2, 2")
        a(f"s_add_u32 s{S_T0}, s{S_T0}, {OFF_ALL}")
        a(f"v_mov_b32 v{T+5}, s{S_T0}")
        a(f"s_add_u32 s{S_T1}, s{S_TAG}, s{S_XCC}")
        a(f"v_mov_b32 v{T+6}, s{S_T1}")
        a(f"buffer_store_dword v{T+6}, v{T+5}, s[{SRD_F}:{SRD_F+3}], 0 offen sc1")
        a(f"s_mov_b64 exec, -1")
        a.put(Ls)

    def finish_tag_once(self):
        a = self.a
        a(f"s_mul_i32 s{S_TAG}, s{S_TAG}, 0x9E3779B1")
        a(f"s_add_u32 s{S_TAG}, s{S_TAG}, 0x7F4A7C15")

    def p2_wait(self):
        a = self.a
        T = self.V_S
        Ls = "L_p2w_skip"
        a(f"s_cmp_lg_u32 s{S_W}, {self.POLLW}")
        a(f"s_cbranch_scc1 {Ls}")
        a(f"s_mul_i32 s{S_T1}, s{S_HEAD}, 20")
        a(f"v_bfe_u32 v{T}, v1, 4, 1")
        a(f"v_mul_u32_u24 v{T}, 19, v{T}")
        a(f"v_add_u32 v{T}, s{S_T1}, v{T}")
        a(f"v_lshrrev_b32 v{T}, 7, v{T}")
        a(f"v_lshrrev_b32 v{T+1}, 5, v1")
        a(f"v_mul_u32_u24 v{T+1}, 5, v{T+1}")
        a(f"v_add_u32 v{T+2}, v{T}, v{T+1}")
        a(f"v_add_u32 v{T+2}, 5, v{T+2}")
        a(f"v_and_b32 v{T+3}, 15, v1")
        self.vprod(T+4, T+3, T+2, T+10)
        a(f"v_bfe_u32 v{T}, v1, 1, 1")
        a(f"v_mul_u32_u24 v{T}, 19, v{T}")
        a(f"v_add_u32 v{T}, s{S_T1}, v{T}")
        a(f"v_lshrrev_b32 v{T+2}, 7, v{T}")
        a(f"v_and_b32 v{T+3}, 1, v1")
        a(f"s_lshl_b32 s{S_T2}, s{S_QB}, 1")
        a(f"v_add_u32 v{T+3}, s{S_T2}, v{T+3}")
        a(f"v_cmp_eq_u32 vcc, 4, v1")
        a(f"s_and_b32 s{S_T2}, s{S_HEAD}, 15")
        a(f"v_mov_b32 v{T+6}, s{S_T2}")
        a(f"v_mov_b32 v{T+7}, 15")
        a(f"v_cndmask_b32 v{T+3}, v{T+3}, v{T+6}, vcc")
        a(f"v_cndmask_b32 v{T+2}, v{T+2}, v{T+7}, vcc")
        self.vprod(T+5, T+3, T+2, T+10)
        a(f"s_lshl_b32 s{S_T2}, s2, 10")
        a(f"s_add_u32 s{S_T2}, s{S_T2}, {OFF_MB1}")
        for r in (T+4, T+5):
            a(f"v_lshlrev_b32 v{r}, 2, v{r}")
            a(f"v_add_u32 v{r}, s{S_T2}, v{r}")
        self.poll([T+4, T+5], ["-1", "0x1f"], "p2w")
        a.put(Ls)
        a(f"s_barrier")

    def vprod(self, dst, mt, nt, tmp):
        a = self.a
        a(f"v_and_b32 v{dst}, 3, v{mt}")
        a(f"v_and_b32 v{tmp}, 7, v{nt}")
        a(f"v_lshl_add_u32 v{dst}, v{tmp}, 2, v{dst}")
        a(f"v_lshlrev_b32 v{dst}, 3, v{dst}")
        a(f"v_lshrrev_b32 v{tmp}, 2, v{mt}")
        a(f"v_add_u32 v{dst}, v{dst}, v{tmp}")
        a(f"v_lshrrev_b32 v{tmp}, 3, v{nt}")
        a(f"v_lshl_add_u32 v{dst}, v{tmp}, 2, v{dst}")

    def group_barrier(self, phase, tagname, tgt=None, slot=None, hook=None, local=False):
        a = self.a
        T = self.V_S
        gs = (tagname in self.opt)
        a(f"s_waitcnt vmcnt(0) lgkmcnt(0)")
        if gs: self.stamp(15)
        a(f"s_barrier")
        if gs: self.stamp(16)
        Ls = f"L_{tagname}_gskip"
        a(f"s_cmp_lg_u32 s{S_W}, {self.POLLW}")
        a(f"s_cbranch_scc1 {Ls}0")
        tgt = S_GX if tgt is None else tgt
        slot = S_GI if slot is None else slot
        a(f"v_lshlrev_b32 v{T}, 3, v1")
        a(f"v_add_u32 v{T}, s{tgt}, v{T}")
        a(f"v_lshlrev_b32 v{T}, 7, v{T}")
        a(f"s_lshl_b32 s{S_T1}, s{slot}, 2")
        a(f"s_add_u32 s{S_T1}, s{S_T1}, {OFF_GB + phase*256*128}")
        a(f"v_add_u32 v{T}, s{S_T1}, v{T}")
        a(f"v_mov_b32 v{T+1}, s{S_TAG}")
        self.set_exec(0xffffffff)
        if local:
            a(f"s_cmp_eq_u32 s{S_FAST}, 1")
            a(f"s_cbranch_scc1 {Ls}f")
            a(f"buffer_store_dword v{T+1}, v{T}, s[{SRD_F}:{SRD_F+3}], 0 offen sc1")
            a(f"s_branch {Ls}g")
            a.put(Ls + "f")
            a(f"buffer_store_dword v{T+1}, v{T}, s[{SRD_F}:{SRD_F+3}], 0 offen")
            a.put(Ls + "g")
        else:
            a(f"buffer_store_dword v{T+1}, v{T}, s[{SRD_F}:{SRD_F+3}], 0 offen sc1")
        a(f"s_mov_b64 exec, -1")
        a.put(Ls + "0")
        if hook: hook()
        if gs: self.stamp(17)
        a(f"s_cmp_lg_u32 s{S_W}, {self.POLLW}")
        a(f"s_cbranch_scc1 {Ls}")
        a(f"s_lshl_b32 s{S_T0}, s2, 7")
        a(f"s_add_u32 s{S_T0}, s{S_T0}, {OFF_GB + phase*256*128}")
        a(f"v_lshlrev_b32 v{T+2}, 2, v1")
        a(f"v_add_u32 v{T+2}, s{S_T0}, v{T+2}")
        self.poll([T+2], ["0xffffffff"], tagname)
        a.put(Ls)
        a(f"s_barrier")

    A_QA = 4; A_QB = 12
    A_K = 20
    A_V1 = 36; A_V2 = 40
    A_SA = 44; A_SB = 60; A_P = 76; A_OA = 84; A_OB = 100; A_AK = 116; A_AV = 117; A_DV = 118; A_ALLA = 119; A_T = 120; A_ALL = 132
    S_VMASK = 92
    S_NEXTB = 94; S_DSO = 95; S_LOW = 65
    p2_nu = 4
    low_tiles = 1

    def p2_kreads(self, kb, toff):
        a = self.a
        K = self.A_K + 8*kb
        a(f"ds_read_b64 v[{K}:{K+1}], v{self.A_AK} offset:{toff}")
        a(f"ds_read_b64 v[{K+2}:{K+3}], v{self.A_AK} offset:{toff+256}")
        a(f"ds_read_b64 v[{K+4}:{K+5}], v{self.A_AK} offset:{toff+1024}")
    def p2_vread(self, which, toff):
        a = self.a
        R = self.A_V1 if which == 0 else self.A_V2
        a(f"s_mov_b64 exec, s[{self.S_VMASK}:{self.S_VMASK+1}]")
        a(f"ds_read_b128 v[{R}:{R+3}], v{self.A_AV} offset:{toff+640*which}")
        a(f"s_mov_b64 exec, -1")
    def p2_smfma(self, which, S, kb, Q):
        a = self.a
        K = self.A_K + 8*kb
        if which == 0:
            a(f"v_mfma_f32_32x32x16_bf16 v[{S}:{S+15}], v[{K}:{K+3}], v[{Q}:{Q+3}], 0")
        else:
            a(f"v_mfma_f32_32x32x16_bf16 v[{S}:{S+15}], v[{K+4}:{K+7}], v[{Q+4}:{Q+7}], v[{S}:{S+15}]")

    A_V2B = 128
    def p2_sub(self, stream, u):
        a = self.a
        P = self.A_P
        p = u & 1
        V2 = (self.A_V2, self.A_V2B)
        Sc, Sn = (self.A_SA, self.A_SB) if stream == 0 else (self.A_SB, self.A_SA)
        Oc, Op = (self.A_OA, self.A_OB) if stream == 0 else (self.A_OB, self.A_OA)
        Qn = self.A_QB if stream == 0 else self.A_QA
        kb = p if stream == 0 else 1 - p
        v2 = V2[1-p] if stream == 0 else V2[p]
        ex = lambda i: a(f"v_exp_f32 v{Sc+i}, v{Sc+i}")
        cv = lambda k: a(f"v_cvt_pk_bf16_f32 v{P+k}, v{Sc+2*k}, v{Sc+2*k+1}")
        cvp = lambda k: a(f"v_cvt_pk_bf16_f32 v{P+k}, v{Sn+2*k}, v{Sn+2*k+1}")
        ex(0); cvp(6); ex(1); ex(2); cvp(7); ex(3)
        self.p2_smfma(0, Sn, kb, Qn)
        ex(4); cv(0); ex(5); ex(6); cv(1); ex(7)
        self.p2_smfma(1, Sn, kb, Qn)
        ex(8); cv(2); ex(9); ex(10); cv(3); ex(11)
        a(f"v_mfma_f32_32x32x16_bf16 v[{Op}:{Op+15}], v[{v2}:{v2+3}], v[{P+4}:{P+7}], v[{Op}:{Op+15}]")
        ex(12); cv(4); ex(13); ex(14); cv(5); ex(15)
        if stream == 0: a(f"s_waitcnt lgkmcnt(0)")
        a(f"v_mfma_f32_32x32x16_bf16 v[{Oc}:{Oc+15}], v[{self.A_V1}:{self.A_V1+3}], v[{P}:{P+3}], v[{Oc}:{Oc+15}]")
        if stream == 1:
            tn = (u+1)*2560
            a(f"s_mov_b64 exec, s[{self.S_VMASK}:{self.S_VMASK+1}]")
            a(f"ds_read_b128 v[{self.A_V1}:{self.A_V1+3}], v{self.A_AV} offset:{tn}")
            R = V2[1-p]
            a(f"ds_read_b128 v[{R}:{R+3}], v{self.A_AV} offset:{tn+640}")
            a(f"s_mov_b64 exec, -1")
            self.p2_kreads(p, (u+2)*2560)

    def prio_reg(self, stream):
        return self._prio[stream]

    def p2_check_all(self):
        a = self.a
        X = self.A_ALL; T = self.A_T
        L = "L_p2_all"; Lo = "L_p2_allok"
        a(f"s_mov_b32 s{S_T0}, 0")
        a.put(L)
        for r in range(4):
            a(f"v_subrev_u32 v{T+r}, s{S_TAG}, v{X+r}")
        a(f"v_cmp_le_u32 vcc, 16, v{T}")
        for r in range(1, 4):
            a(f"v_cmp_le_u32 s[{S_SAVE}:{S_SAVE+1}], 16, v{T+r}")
            a(f"s_nop 0")
            a(f"s_or_b64 vcc, vcc, s[{S_SAVE}:{S_SAVE+1}]")
        a(f"s_cbranch_vccz {Lo}")
        a(f"s_add_u32 s{S_T0}, s{S_T0}, 1")
        a(f"s_cmp_ge_u32 s{S_T0}, 0x40000")
        a(f"s_cbranch_scc1 {Lo}")
        a(f"buffer_load_dwordx4 v[{X}:{X+3}], v{self.A_ALLA}, s[{SRD_F}:{SRD_F+3}], 0 offen sc1")
        a(f"s_waitcnt vmcnt(0)")
        a(f"s_branch {L}")
        a.put(Lo)
        a(f"s_and_b32 s{S_T1}, s{S_GX}, 3")
        for r in range(1, 4):
            a(f"s_cmp_eq_u32 s{S_T1}, {r}")
            a(f"s_cselect_b64 s[{S_SAVE}:{S_SAVE+1}], -1, 0")
            a(f"v_cndmask_b32 v{T}, v{T}, v{T+r}, s[{S_SAVE}:{S_SAVE+1}]")
        a(f"v_cmp_ne_u32 vcc, s{S_XCC}, v{T}")
        a(f"s_mov_b32 s{S_T2}, 0x55555555")
        a(f"s_lshr_b32 s{S_T1}, s{S_GX}, 2")
        a(f"s_lshl_b32 s{S_T2}, s{S_T2}, s{S_T1}")
        a(f"s_and_b32 s{S_T3}, vcc_lo, s{S_T2}")
        a(f"s_and_b32 s{S_T4}, vcc_hi, s{S_T2}")
        a(f"s_or_b32 s{S_T3}, s{S_T3}, s{S_T4}")
        a(f"s_cmp_eq_u32 s{S_T3}, 0")
        a(f"s_cselect_b32 s{S_FAST}, {0 if 'nofast' in self.opt else 1}, 0")

    prio_low = (0, 2, 4, 7)
    def p2_setprio(self, lvl, tag):
        a = self.a
        L = f"L_p2_pr{tag}"
        a(f"s_cmp_ge_u32 s{S_W}, 4")
        a(f"s_cbranch_scc1 {L}")
        a(f"s_setprio {lvl}")
        a.put(L)

    def p2_dma(self, n):
        a = self.a
        for i in range(n):
            a(f"s_mov_b32 m0, s{self.S_DSO}")
            a(f"s_nop 0")
            a(f"buffer_load_dwordx4 v{self.A_DV}, s[{SRD_A}:{SRD_A+3}], s{self.S_DSO} offen sc1 lds")
            a(f"s_add_u32 s{self.S_DSO}, s{self.S_DSO}, 4096")

    def p2_setup(self):
        a = self.a
        T = self.A_T
        a(f"s_lshl_b32 s{S_HEAD}, s{S_GX}, 2")
        a(f"s_and_b32 s{S_T0}, s{S_GI}, 3")
        a(f"s_add_u32 s{S_HEAD}, s{S_HEAD}, s{S_T0}")
        a(f"s_lshr_b32 s{S_QB}, s{S_GI}, 2")
        a(f"s_mul_i32 s{S_T0}, s{S_HEAD}, 163840")
        a(f"s_add_u32 s{S_T0}, s{S_T0}, {hex(OFF_KV)}")
        a(f"s_add_u32 s{SRD_A}, s{S_WS}, s{S_T0}")
        a(f"s_addc_u32 s{SRD_A+1}, s{S_WS+1}, 0")
        a(f"s_mov_b32 s{SRD_A+2}, 163840")
        a(f"s_mov_b32 s{SRD_A+3}, 0x20000")
        a(f"s_lshl_b32 s{S_T0}, s{S_HEAD}, 6")
        a(f"s_lshl_b32 s{S_T1}, s{S_QB}, 3")
        a(f"s_add_u32 s{S_T0}, s{S_T0}, s{S_T1}")
        a(f"s_and_b32 s{S_T1}, s{S_W}, 3")
        a(f"s_lshl_b32 s{S_T1}, s{S_T1}, 1")
        a(f"s_add_u32 s{S_T0}, s{S_T0}, s{S_T1}")
        a(f"s_mul_i32 s{S_T0}, s{S_T0}, 1280")
        a(f"s_add_u32 s{S_T0}, s{S_T0}, {hex(OFF_Q)}")
        a(f"s_add_u32 s{SRD_W}, s{S_WS}, s{S_T0}")
        a(f"s_addc_u32 s{SRD_W+1}, s{S_WS+1}, 0")
        a(f"s_mov_b32 s{SRD_W+2}, 2560")
        a(f"s_mov_b32 s{SRD_W+3}, 0x20000")
        a(f"v_and_b32 v{T}, 31, v1")
        a(f"v_lshrrev_b32 v{T+1}, 5, v1")
        a(f"v_lshlrev_b32 v{T+2}, 3, v{T}")
        a(f"v_lshl_add_u32 v{T+4}, v{T+1}, 9, v{T+2}")
        a(f"v_lshlrev_b32 v{T+3}, 12, v{T+1}")
        a(f"v_add_u32 v{T+3}, v{T+3}, v{T+2}")
        a(f"v_lshlrev_b32 v{self.A_DV}, 4, v1")
        a(f"v_add_u32 v{self.A_ALLA}, {OFF_ALL}, v{self.A_DV}")
        a(f"s_lshr_b32 s{S_T0}, s{S_W}, 2")
        a(f"s_mul_i32 s{S_T0}, s{S_T0}, 81920")
        a(f"s_and_b32 s{S_T1}, s{S_W}, 3")
        a(f"s_lshl_b32 s{S_T1}, s{S_T1}, 10")
        a(f"s_add_u32 s{self.S_DSO}, s{S_T0}, s{S_T1}")
        for Q in (self.A_QA, self.A_QB):
            a(f"v_mov_b32 v{Q+6}, 0"); a(f"v_mov_b32 v{Q+7}, 0")
        for kb in range(2):
            a(f"v_mov_b32 v{self.A_K+8*kb+6}, 0"); a(f"v_mov_b32 v{self.A_K+8*kb+7}, 0")
        a(f"v_cmp_eq_u32 vcc, 20, v{T}")
        a(f"v_mov_b32 v{T+5}, 0x3f803f80")
        a(f"v_mul_u32_u24 v{T+6}, 320, v{T+1}")
        a(f"v_cndmask_b32 v{self.A_V1}, 0, v{T+5}, vcc")
        for r in range(1, 8):
            a(f"v_mov_b32 v{self.A_V1+r}, v{self.A_V1}")
        for r in range(4):
            a(f"v_mov_b32 v{self.A_V2B+r}, v{self.A_V1}")
        a(f"v_lshl_add_u32 v{self.A_AV}, v{T}, 4, v{T+6}")
        a(f"v_add_u32 v{self.A_AV}, 1280, v{self.A_AV}")
        a(f"v_add_u32 v{self.A_AK}, s{S_T0}, v{T+4}")
        a(f"v_add_u32 v{self.A_AV}, s{S_T0}, v{self.A_AV}")
        a(f"s_mov_b32 s{self.S_VMASK}, 0xfffff")
        a(f"s_mov_b32 s{self.S_VMASK+1}, 0xfffff")
        for r in range(16):
            a(f"v_mov_b32 v{self.A_OA+r}, 0"); a(f"v_mov_b32 v{self.A_OB+r}, 0")
        for r in range(8):
            a(f"v_mov_b32 v{self.A_P+r}, 0")
        for r in range(12, 16):
            a(f"v_mov_b32 v{self.A_SB+r}, 0")

    def p2(self):
        a = self.a
        T = self.A_T
        self.p2_setup()
        self.stamp(5)
        self.p2_wait()
        self.stamp(6)
        self.p2_dma(2)
        for qi, Q in enumerate((self.A_QA, self.A_QB)):
            a(f"buffer_load_dwordx2 v[{Q}:{Q+1}], v{T+4}, s[{SRD_W}:{SRD_W+3}], 0 offen offset:{1280*qi} sc1")
            a(f"buffer_load_dwordx2 v[{Q+2}:{Q+3}], v{T+4}, s[{SRD_W}:{SRD_W+3}], 0 offen offset:{1280*qi+256} sc1")
            a(f"buffer_load_dwordx2 v[{Q+4}:{Q+5}], v{T+3}, s[{SRD_W}:{SRD_W+3}], 0 offen offset:{1280*qi+1024} sc1")
        self.p2_dma(2)
        a(f"buffer_load_dwordx4 v[{self.A_ALL}:{self.A_ALL+3}], v{self.A_ALLA}, s[{SRD_F}:{SRD_F+3}], 0 offen sc1")
        self.p2_dma(4)
        a(f"s_waitcnt vmcnt(5)")
        a(f"s_barrier")
        self.stamp(7)
        self.p2_dma(1)
        self.p2_kreads(0, 0)
        self.p2_kreads(1, 2560)
        self.p2_vread(0, 0)
        self.p2_vread(1, 0)
        a(f"s_waitcnt lgkmcnt(0)")
        self.p2_smfma(0, self.A_SA, 0, self.A_QA); self.p2_smfma(1, self.A_SA, 0, self.A_QA)
        NU = self.p2_nu
        nit = 32 // NU
        a(f"s_mov_b32 s{S_CNT}, 0")
        a(f"s_mov_b32 s{self.S_NEXTB}, {4//NU if NU <= 4 else 1}")
        lows = list(self.prio_low)
        a(f"s_cmp_lt_u32 s{S_W}, 4")
        a(f"s_cselect_b32 s{self.S_LOW}, {lows[0] if lows else 99}, 99")
        if "noprio" not in self.opt:
            a(f"s_setprio 1")
            self.p2_setprio(2, "init")
        a(f"s_nop 7"); a(f"s_nop 3")
        a(f".p2align 6")
        a.put("L_p2_loop")
        a(f"s_cmp_eq_u32 s{S_CNT}, s{self.S_NEXTB}")
        a(f"s_cbranch_scc1 L_p2_wait")
        a.put("L_p2_back")
        for u in range(NU):
            if u == NU - self.low_tiles and "noprio" not in self.opt:
                a(f"s_cmp_eq_u32 s{S_CNT}, s{self.S_LOW}")
                a(f"s_cbranch_scc1 L_p2_low")
                a.put("L_p2_lowback")
            self.p2_sub(0, u)
            self.p2_sub(1, u)
        a(f"v_add_u32 v{self.A_AK}, {NU*2560}, v{self.A_AK}")
        a(f"v_add_u32 v{self.A_AV}, {NU*2560}, v{self.A_AV}")
        a(f"s_add_u32 s{S_CNT}, s{S_CNT}, 1")
        a(f"s_cmp_lt_u32 s{S_CNT}, {nit}")
        a(f"s_cbranch_scc1 L_p2_loop")
        a(f"s_branch L_p2_done")
        if "noprio" not in self.opt:
            a.put("L_p2_low")
            a(f"s_setprio 0")
            a(f"s_branch L_p2_lowback")
        a.put("L_p2_wait")
        LA = [(s_, t) for s_ in range(5, 14) for t in range(3)]
        LA = LA + [LA[-1]]
        LB = [(s_, t) for s_ in range(14) for t in range(2)]
        wq = 0
        plan = {4: (0, 5, 3, None), 8: (None, 0, 8, None), 12: (11, 6, 2, None), 16: (None, 0, 8, None),
                20: (10, 0, 0, (0, 8)), 24: (None, 0, 0, (8, 15)), 28: (None, 0, 7, None)}
        evs = sorted(plan)
        kvs = [t for t in evs if plan[t][0] is not None]
        for k, tile in enumerate(evs):
            cnt = tile // NU
            Ln = f"L_p2_w{cnt}"
            a(f"s_cmp_lg_u32 s{S_CNT}, {cnt}")
            a(f"s_cbranch_scc1 {Ln}")
            vm, nkv, nw, wo = plan[tile]
            if vm is not None:
                a(f"s_waitcnt vmcnt({vm})")
                if tile == 4:
                    self.p2_check_all()
                    self.g2_wsetup(5, SRD_W, S_SW, self.A_ALLA)
                a(f"s_barrier")
                if "noprio" not in self.opt:
                    self.p2_setprio(2, f"h{cnt}")
                    nl = lows[kvs.index(tile)+1] if kvs.index(tile)+1 < len(lows) else 99
                    a(f"s_cmp_lt_u32 s{S_W}, 4")
                    a(f"s_cselect_b32 s{self.S_LOW}, {nl}, 99")
                self.p2_dma(nkv)
            if nw:
                self.g2_wloads_byclass(5, LA[wq:wq+nw], LB[wq:wq+nw], SRD_W, S_SW, self.A_ALLA, f"p2w{cnt}")
                wq += nw
            if tile == 16 and "nodstw" not in self.opt: self.dst_l2warm()
            if tile == 20: self.wo_setup()
            if wo: self.wo_dma(*wo)
            if tile == 24 and "now1w" not in self.opt: self.w1_l2warm_keepT()
            if tile == 28 and "nowpw" not in self.opt: self.wp_l2warm()
            nxt = evs[k+1]//NU if k + 1 < len(evs) else 99
            a(f"s_mov_b32 s{self.S_NEXTB}, {nxt}")
            a(f"s_branch L_p2_back")
            a.put(Ln)
        a(f"s_branch L_p2_back")
        a.put("L_p2_done")
        a(f"s_setprio 0")
        P = self.A_P; SBr = self.A_SB
        a(f"s_waitcnt lgkmcnt(0)")
        a(f"v_cvt_pk_bf16_f32 v{P+6}, v{SBr+12}, v{SBr+13}")
        a(f"v_cvt_pk_bf16_f32 v{P+7}, v{SBr+14}, v{SBr+15}")
        a(f"s_nop 1")
        a(f"v_mfma_f32_32x32x16_bf16 v[{self.A_OB}:{self.A_OB+15}], v[{self.A_V2B}:{self.A_V2B+3}], v[{P+4}:{P+7}], v[{self.A_OB}:{self.A_OB+15}]")
        self.stamp(8)
        self.p2_epilogue()

    def p2_epilogue(self):
        a = self.a
        T = self.A_T
        a(f"s_nop 7"); a(f"s_nop 3")
        a(f"s_barrier")
        a(f"s_and_b32 s{S_T0}, s{S_W}, 3")
        a(f"s_lshr_b32 s{S_T1}, s{S_W}, 2")
        a(f"s_lshl_b32 s{S_T0}, s{S_T0}, 1")
        a(f"s_add_u32 s{S_T2}, s{S_T0}, s{S_T1}")
        a(f"s_xor_b32 s{S_T3}, s{S_T2}, 1")
        a(f"s_mul_i32 s{S_T2}, s{S_T2}, 3072")
        a(f"s_mul_i32 s{S_T3}, s{S_T3}, 3072")
        a(f"s_add_u32 s{S_T2}, s{S_T2}, 51200")
        a(f"s_add_u32 s{S_T3}, s{S_T3}, 51200")
        a(f"v_lshlrev_b32 v{T}, 4, v1")
        a(f"v_add_u32 v{T+1}, s{S_T2}, v{T}")
        a(f"v_add_u32 v{T+2}, s{S_T3}, v{T}")
        Lk1 = "L_p2e_k1"; Lj = "L_p2e_j"
        a(f"s_cmp_eq_u32 s{S_T1}, 1")
        a(f"s_cbranch_scc1 {Lk1}")
        for g in range(3):
            a(f"ds_write_b128 v{T+1}, v[{self.A_OB+4*g}:{self.A_OB+4*g+3}] offset:{1024*g}")
        a(f"s_branch {Lj}")
        a.put(Lk1)
        for g in range(3):
            a(f"ds_write_b128 v{T+1}, v[{self.A_OA+4*g}:{self.A_OA+4*g+3}] offset:{1024*g}")
        for r in range(12):
            a(f"v_mov_b32 v{self.A_OA+r}, v{self.A_OB+r}")
        a.put(Lj)
        a(f"s_waitcnt lgkmcnt(0)")
        a(f"s_barrier")
        O = self.A_OA; X = self.A_SA
        for g in range(3):
            a(f"ds_read_b128 v[{X+4*g}:{X+4*g+3}], v{T+2} offset:{1024*g}")
        a(f"s_waitcnt lgkmcnt(0)")
        for r in range(12):
            a(f"v_add_f32 v{O+r}, v{O+r}, v{X+r}")
        a(f"v_mov_b32 v{T}, v{O+8}")
        a(f"v_mov_b32 v{T+1}, v{O+8}")
        a(f"s_nop 1")
        a(f"v_permlane32_swap_b32 v{T}, v{T+1}")
        a(f"s_nop 1")
        a(f"v_rcp_f32 v{T+2}, v{T+1}")
        a(f"s_nop 0")
        for r in range(12):
            a(f"v_mul_f32 v{O+r}, v{T+2}, v{O+r}")
        for g in range(3):
            a(f"v_cvt_pk_bf16_f32 v{O+4*g}, v{O+4*g}, v{O+4*g+1}")
            a(f"v_cvt_pk_bf16_f32 v{O+4*g+1}, v{O+4*g+2}, v{O+4*g+3}")
        self.srd(SRD_O, S_WS, OFF_O, SZ_O)
        a(f"s_and_b32 s{S_T2}, s{S_W}, 3")
        a(f"s_lshr_b32 s{S_T3}, s{S_W}, 2")
        a(f"s_lshl_b32 s{S_T0}, s{S_QB}, 2")
        a(f"s_add_u32 s{S_T0}, s{S_T0}, s{S_T2}")
        a(f"s_mul_i32 s{S_T0}, s{S_T0}, 81920")
        a(f"s_lshl_b32 s{S_T1}, s{S_T3}, 11")
        a(f"s_add_u32 s{S_T0}, s{S_T0}, s{S_T1}")
        a(f"v_bfe_u32 v{T+3}, v1, 4, 1")
        a(f"v_lshlrev_b32 v{T+3}, 10, v{T+3}")
        a(f"v_and_b32 v{T+4}, 15, v1")
        a(f"v_lshl_add_u32 v{T+3}, v{T+4}, 4, v{T+3}")
        a(f"v_lshrrev_b32 v{T+5}, 5, v1")
        a(f"s_mul_i32 s{S_T1}, s{S_HEAD}, 20")
        for g in range(3):
            a(f"v_lshlrev_b32 v{T+6}, 2, v{T+5}")
            a(f"s_add_u32 s{S_T2}, s{S_T1}, {8*g}")
            a(f"v_add_u32 v{T+6}, s{S_T2}, v{T+6}")
            a(f"v_lshrrev_b32 v{T+7}, 5, v{T+6}")
            a(f"v_lshlrev_b32 v{T+7}, 12, v{T+7}")
            a(f"v_bfe_u32 v{T+8}, v{T+6}, 3, 2")
            a(f"v_lshl_add_u32 v{T+7}, v{T+8}, 8, v{T+7}")
            a(f"v_and_b32 v{T+8}, 7, v{T+6}")
            a(f"v_lshl_add_u32 v{T+7}, v{T+8}, 1, v{T+7}")
            a(f"v_add_u32 v{T+7}, v{T+7}, v{T+3}")
            if g == 2: self.set_exec(0xffffffff)
            a(f"buffer_store_dwordx2 v[{O+4*g}:{O+4*g+1}], v{T+7}, s[{SRD_O}:{SRD_O+3}], s{S_T0} offen sc1")
            if g == 2: a(f"s_mov_b64 exec, -1")

    G_ACC = 4
    G_ACT = 52
    G_AM = 84
    G_DV = 2
    G_SA = 3
    S_RB = 49; S_J = 50
    def g2_wbase(self, phase, NT):
        return 88 if (phase == 3 or NT == 3) else 144

    def g2_wsetup(self, phase, srd, sreg, vreg):
        a = self.a
        if phase == 3: self.srd(srd, S_WS, OFF_WOP, SZ_WOP)
        else: self.srd(srd, S_WS, OFF_W2P, SZ_W2P)
        a(f"s_and_b32 s{S_T0}, s{S_W}, 3")
        a(f"s_mul_i32 s{S_T1}, s{S_T0}, 40")
        a(f"s_and_b32 s{S_T2}, s{S_GI}, 7")
        a(f"s_mul_i32 s{S_T2}, s{S_T2}, 5")
        a(f"s_add_u32 s{S_T1}, s{S_T1}, s{S_T2}")
        a(f"s_cmp_lt_u32 s{S_W}, 4")
        a(f"s_cselect_b32 s{S_T2}, 3, 0")
        a(f"s_add_u32 s{S_T1}, s{S_T1}, s{S_T2}")
        a(f"s_lshl_b32 s{sreg}, s{S_T1}, 10")
        a(f"v_lshlrev_b32 v{vreg}, 4, v1")

    def g2_wload1(self, phase, NT, step, t, srd, sreg, vreg):
        a = self.a
        R = self.g2_wbase(phase, NT) + 4*(step*NT + t)
        off = step*4*40*1024 + t*1024
        a(f"s_add_u32 s{S_T2}, s{sreg}, {off}")
        a(f"buffer_load_dwordx4 v[{R}:{R+3}], v{vreg}, s[{srd}:{srd+3}], s{S_T2} offen {self.ld_aux}")

    def g2_wloads_byclass(self, phase, listA, listB, srd, sreg, vreg, tag):
        a = self.a
        LA = f"L_{tag}_A"; LJ = f"L_{tag}_J"
        a(f"s_cmp_ge_u32 s{S_W}, 4")
        a(f"s_cbranch_scc1 {LA}")
        for (st, t) in listB: self.g2_wload1(phase, 2, st, t, srd, sreg, vreg)
        a(f"s_branch {LJ}")
        a.put(LA)
        for (st, t) in listA: self.g2_wload1(phase, 3, st, t, srd, sreg, vreg)
        a.put(LJ)

    def g2_adma(self, stage):
        a = self.a
        slot = (stage % 4) * 32768
        for q in range(4):
            a(f"s_add_u32 m0, s{S_M0A}, {slot + q*8192}")
            a(f"s_add_u32 s{S_T2}, s{S_M0A}, {stage*32768 + q*8192}")
            a(f"buffer_load_dwordx4 v{self.G_DV}, s[{SRD_A}:{SRD_A+3}], s{S_T2} offen {self.ld_aux} lds")

    def g2_reads(self, stage, u, st):
        a = self.a
        slot = stage % 4
        hi = slot >= 2
        if hi != self.g2_hi:
            for m in range(4):
                if hi: a(f"v_add_u32 v{self.G_AM+m}, 0x10000, v{self.G_AM+m}")
                else:  a(f"v_subrev_u32 v{self.G_AM+m}, 0x10000, v{self.G_AM+m}")
            self.g2_hi = hi
        off = (slot % 2) * 32768 + u*16384
        for m in range(4):
            R = self.G_ACT + 16*st + 4*m
            a(f"ds_read_b128 v[{R}:{R+3}], v{self.G_AM+m} offset:{off}")

    def g2_mfma(self, phase, NT, step, st):
        a = self.a
        for t in range(NT):
            W = self.g2_wbase(phase, NT) + 4*(step*NT + t)
            for m in range(4):
                A = self.G_ACC + 4*(m*3 + t)
                X = self.G_ACT + 16*st + 4*m
                a(f"v_mfma_f32_16x16x32_bf16 v[{A}:{A+3}], v[{W}:{W+3}], v[{X}:{X+3}], v[{A}:{A+3}]")

    def g2_main(self, phase, NT, nsteps):
        a = self.a
        NSTG = (nsteps + 1) // 2
        pre = min(3, NSTG)
        self.g2_hi = False
        for sg in range(pre):
            self.g2_adma(sg)
        a(f"s_waitcnt vmcnt({4*pre})")
        E = self.G_ACT; A = self.G_ACC
        for t in range(NT):
            for half in range(2):
                R = E + 2*t + half
                a(f"v_lshlrev_b32 v{A+4*t+2*half}, 16, v{R}")
                a(f"v_and_b32 v{A+4*t+2*half+1}, 0xffff0000, v{R}")
                if phase == 5:
                    R2 = E + 6 + 2*t + half
                    a(f"v_lshlrev_b32 v{E+14}, 16, v{R2}")
                    a(f"v_and_b32 v{E+15}, 0xffff0000, v{R2}")
                    a(f"v_add_f32 v{A+4*t+2*half}, v{A+4*t+2*half}, v{E+14}")
                    a(f"v_add_f32 v{A+4*t+2*half+1}, v{A+4*t+2*half+1}, v{E+15}")
        if self.g2st: self.stamp(self.g2st)
        a(f"s_waitcnt vmcnt({4*(pre-1)})")
        a(f"s_barrier")
        if self.g2st: self.stamp(self.g2st+1)
        self.g2_reads(0, 0, 0)
        for sg in range(NSTG):
            two = (2*sg + 1) < nsteps
            if sg + 1 < NSTG:
                out = 4 * max(0, min(NSTG, sg + pre) - (sg + 2))
                a(f"s_waitcnt vmcnt({out})")
                a(f"s_barrier")
            if two:
                self.g2_reads(sg, 1, 1)
                a(f"s_waitcnt lgkmcnt(4)")
            else:
                a(f"s_waitcnt lgkmcnt(0)")
            self.g2_mfma(phase, NT, 2*sg, 0)
            if sg + pre < NSTG:
                self.g2_adma(sg + pre)
            if two:
                if sg + 1 < NSTG:
                    self.g2_reads(sg+1, 0, 0)
                    a(f"s_waitcnt lgkmcnt(4)")
                else:
                    a(f"s_waitcnt lgkmcnt(0)")
                self.g2_mfma(phase, NT, 2*sg+1, 1)

    def g2_reduce(self, NT):
        a = self.a
        T = self.G_ACT
        cls = 0 if NT == 3 else 1
        a(f"s_and_b32 s{S_T1}, s{S_W}, 3")
        for m in range(1, 4):
            a(f"s_add_u32 s{S_T2}, s{S_T1}, {m}")
            a(f"s_and_b32 s{S_T2}, s{S_T2}, 3")
            a(f"s_mul_i32 s{S_T2}, s{S_T2}, 9216")
            a(f"s_add_u32 s{S_T2}, s{S_T2}, {cls*36864 + (m-1)*3072}")
            a(f"v_add_u32 v{T+m}, s{S_T2}, v{self.G_DV}")
        a(f"s_mul_i32 s{S_T2}, s{S_T1}, 9216")
        a(f"s_add_u32 s{S_T2}, s{S_T2}, {cls*36864}")
        a(f"v_add_u32 v{T}, s{S_T2}, v{self.G_DV}")
        a(f"s_barrier")
        for m in range(1, 4):
            for t in range(NT):
                A = self.G_ACC + 4*(m*3 + t)
                a(f"ds_write_b128 v{T+m}, v[{A}:{A+3}] offset:{t*1024}")
        a(f"s_waitcnt lgkmcnt(0)")
        a(f"s_barrier")
        for rel in range(3):
            for t in range(NT):
                A = self.G_ACC + 4*((rel+1)*3 + t)
                a(f"ds_read_b128 v[{A}:{A+3}], v{T} offset:{rel*3072 + t*1024}")
        a(f"s_waitcnt lgkmcnt(0)")
        for t in range(NT):
            for i in range(4):
                A = self.G_ACC + 4*t + i
                a(f"v_add_f32 v{A}, v{A}, v{A+12}")
                a(f"v_add_f32 v{A+24}, v{A+24}, v{A+36}")
            for i in range(4):
                A = self.G_ACC + 4*t + i
                a(f"v_add_f32 v{A}, v{A}, v{A+24}")

    def g2_setup(self, phase):
        a = self.a
        a(f"s_lshr_b32 s{S_T0}, s{S_GI}, 3")
        a(f"s_lshl_b32 s{S_T1}, s{S_GX}, 2")
        a(f"s_add_u32 s{self.S_RB}, s{S_T0}, s{S_T1}")
        a(f"s_and_b32 s{self.S_J}, s{S_GI}, 7")
        if phase == 3: off, per = OFF_O, 81920
        else: off, per = OFF_R, 54*4096
        a(f"s_mul_i32 s{S_T0}, s{self.S_RB}, {per}")
        a(f"s_add_u32 s{S_T0}, s{S_T0}, {hex(off)}")
        a(f"s_add_u32 s{SRD_A}, s{S_WS}, s{S_T0}")
        a(f"s_addc_u32 s{SRD_A+1}, s{S_WS+1}, 0")
        a(f"s_mov_b32 s{SRD_A+2}, {per}")
        a(f"s_mov_b32 s{SRD_A+3}, 0x20000")
        a(f"s_lshl_b32 s{S_M0A}, s{S_W}, 10")
        a(f"v_lshlrev_b32 v{self.G_DV}, 4, v1")
        a(f"s_and_b32 s{S_T0}, s{S_W}, 3")
        for m in range(4):
            a(f"s_add_u32 s{S_T1}, s{S_T0}, {m}")
            a(f"s_and_b32 s{S_T1}, s{S_T1}, 3")
            a(f"s_lshl_b32 s{S_T1}, s{S_T1}, 10")
            a(f"s_lshl_b32 s{S_T2}, s{S_T0}, 12")
            a(f"s_add_u32 s{S_T1}, s{S_T1}, s{S_T2}")
            a(f"v_add_u32 v{self.G_AM+m}, s{S_T1}, v{self.G_DV}")
        E = self.G_ACT
        a(f"s_lshl_b32 s{S_T0}, s{self.S_RB}, 6")
        a(f"s_and_b32 s{S_T1}, s{S_W}, 3")
        a(f"s_lshl_b32 s{S_T1}, s{S_T1}, 4")
        a(f"s_add_u32 s{S_T0}, s{S_T0}, s{S_T1}")
        a(f"v_and_b32 v{self.G_SA}, 15, v1")
        a(f"v_add_u32 v{self.G_SA}, s{S_T0}, v{self.G_SA}")
        a(f"v_mul_u32_u24 v{self.G_SA}, 1280, v{self.G_SA}")
        a(f"s_mul_i32 s{S_T0}, s{self.S_J}, 160")
        a(f"s_cmp_lt_u32 s{S_W}, 4")
        a(f"s_cselect_b32 s{S_T1}, 96, 0")
        a(f"s_add_u32 s{S_T0}, s{S_T0}, s{S_T1}")
        a(f"v_lshrrev_b32 v{E+12}, 4, v1")
        a(f"v_lshlrev_b32 v{E+12}, 3, v{E+12}")
        a(f"v_add_u32 v{E+12}, s{S_T0}, v{E+12}")
        a(f"v_add_u32 v{self.G_SA}, v{self.G_SA}, v{E+12}")
        if phase == 3:
            self.srd(SRD_T, S_X, 0, 2048*1280); aux_r = ""
        else:
            self.srd(SRD_T, S_WS, OFF_H, SZ_H); aux_r = self.ld_aux
        for t in range(3):
            a(f"buffer_load_dwordx2 v[{E+2*t}:{E+2*t+1}], v{self.G_SA}, s[{SRD_T}:{SRD_T+3}], 0 offen offset:{32*t} {aux_r}")
        if phase == 5:
            self.srd(SRD_T, S_B2, 0, 1280)
            for t in range(3):
                a(f"buffer_load_dwordx2 v[{E+6+2*t}:{E+7+2*t}], v{E+12}, s[{SRD_T}:{SRD_T+3}], 0 offen offset:{32*t}")
        for r in range(12, 48):
            a(f"v_mov_b32 v{self.G_ACC+r}, 0")

    def g2_epi(self, phase, NT):
        a = self.a
        T = self.G_ACT; A = self.G_ACC
        if phase == 3:
            self.srd_twin(S_WS, OFF_H, SZ_H)
        else:
            self.srd(SRD_O, S_OUT, 0, 2048*1280)
        for t in range(NT):
            a(f"v_cvt_pk_bf16_f32 v{A+4*t}, v{A+4*t}, v{A+4*t+1}")
            a(f"v_cvt_pk_bf16_f32 v{A+4*t+1}, v{A+4*t+2}, v{A+4*t+3}")
            if phase == 3: self.store_twin("buffer_store_dwordx2", f"v[{A+4*t}:{A+4*t+1}]", self.G_SA, "0", f"offset:{32*t}")
            else: a(f"buffer_store_dwordx2 v[{A+4*t}:{A+4*t+1}], v{self.G_SA}, s[{SRD_O}:{SRD_O+3}], 0 offen offset:{32*t}")
        if phase == 3:
            S = T + 22
            a(f"v_mov_b32 v{S}, 0"); a(f"v_mov_b32 v{S+1}, 0")
            for t in range(NT):
                for half in range(2):
                    R = A + 4*t + half
                    a(f"v_lshlrev_b32 v{T+20}, 16, v{R}")
                    a(f"v_and_b32 v{T+21}, 0xffff0000, v{R}")
                    a(f"v_add_f32 v{S}, v{S}, v{T+20}")
                    a(f"v_fmac_f32 v{S+1}, v{T+20}, v{T+20}")
                    a(f"v_add_f32 v{S}, v{S}, v{T+21}")
                    a(f"v_fmac_f32 v{S+1}, v{T+21}, v{T+21}")
            for op in ("v_permlane32_swap_b32", "v_permlane16_swap_b32"):
                a(f"v_mov_b32 v{S+2}, v{S}")
                a(f"v_mov_b32 v{S+3}, v{S+1}")
                a(f"s_nop 1")
                a(f"{op} v{S+2}, v{S}")
                a(f"{op} v{S+3}, v{S+1}")
                a(f"s_nop 1")
                a(f"v_add_f32 v{S}, v{S}, v{S+2}")
                a(f"v_add_f32 v{S+1}, v{S+1}, v{S+3}")
            a(f"s_lshl_b32 s{S_T0}, s{self.S_RB}, 6")
            a(f"s_and_b32 s{S_T1}, s{S_W}, 3")
            a(f"s_lshl_b32 s{S_T1}, s{S_T1}, 4")
            a(f"s_add_u32 s{S_T0}, s{S_T0}, s{S_T1}")
            a(f"v_and_b32 v{S+2}, 15, v1")
            a(f"v_add_u32 v{S+2}, s{S_T0}, v{S+2}")
            a(f"v_lshlrev_b32 v{S+2}, 7, v{S+2}")
            a(f"s_lshl_b32 s{S_T0}, s{self.S_J}, 4")
            a(f"s_add_u32 s{S_T0}, s{S_T0}, {hex(8 if NT == 2 else 0)}")
            a(f"v_add_u32 v{S+2}, s{S_T0}, v{S+2}")
            self.srd_twin(S_WS, OFF_PST, 2048*128)
            a(f"s_mov_b64 exec, 0xffff")
            self.store_twin("buffer_store_dwordx2", f"v[{S}:{S+1}]", S+2, "0")
            a(f"s_mov_b64 exec, -1")

    def g2(self, phase):
        a = self.a
        nsteps = 5 if phase == 3 else 14
        self.g2st = 15 if (str(phase) in self.opt_g2) else None
        L1 = f"L_g2p{phase}_n1"; Lj = f"L_g2p{phase}_j"
        a(f"s_cmp_lt_u32 s{S_W}, 4")
        a(f"s_cbranch_scc1 {L1}")
        for NT in (3, 2):
            self.g2_main(phase, NT, nsteps)
            if self.g2st: self.stamp(self.g2st+2)
            a(f"s_nop 7")
            self.g2_reduce(NT)
            if self.g2st: self.stamp(self.g2st+3)
            self.g2_epi(phase, NT)
            if NT == 3:
                a(f"s_branch {Lj}")
                a.put(L1)
        a.put(Lj)

    def hook23(self):
        a = self.a
        a(f"v_lshlrev_b32 v{self.G_DV}, 4, v1")
        self.wo_from_lds()
        self.g2_setup(3)
    def hook34(self):
        a = self.a
        a(f"s_cmp_lt_u32 s{S_GI}, 28")
        a(f"s_cbranch_scc1 L_h34_skip")
        self.prefetch_w2_rest()
        a.put("L_h34_skip")
        self.p4_setup()
    def hook45(self):
        self.g2_setup(5)

    def wo_lds_base(self, dst):
        a = self.a
        a(f"s_sub_u32 s{S_T3}, s{S_W}, 4")
        a(f"s_mul_i32 s{S_T3}, s{S_T3}, 15360")
        a(f"s_cmp_eq_u32 s{S_W}, 7")
        a(f"s_cselect_b32 s{S_T3}, 81920, s{S_T3}")
        a(f"s_mul_i32 s{S_T4}, s{S_W}, 10240")
        a(f"s_add_u32 s{S_T4}, s{S_T4}, 97280")
        a(f"s_cmp_eq_u32 s{S_W}, 3")
        a(f"s_cselect_b32 s{S_T4}, 46080, s{S_T4}")
        a(f"s_cmp_lt_u32 s{S_W}, 4")
        a(f"s_cselect_b32 s{dst}, s{S_T4}, s{S_T3}")

    def wo_frag_off(self, NT, idx):
        return idx * 1024

    def wo_dma(self, lo, hi):
        a = self.a
        LA = f"L_wod{lo}_A"; LJ = f"L_wod{lo}_J"
        a(f"s_cmp_ge_u32 s{S_W}, 4")
        a(f"s_cbranch_scc1 {LA}")
        for NT, lab in ((2, None), (3, LA)):
            if lab:
                a(f"s_branch {LJ}")
                a.put(lab)
            for idx in range(lo, min(hi, 5*NT)):
                st, t = divmod(idx, NT)
                base = self.S_WOB if not (NT == 2 and idx >= 5) else self.S_WOB2
                a(f"s_add_u32 m0, s{base}, {idx*1024}")
                a(f"s_add_u32 s{S_T2}, s{self.S_WOS}, {st*4*40*1024 + t*1024}")
                a(f"buffer_load_dwordx4 v{self.A_DV}, s[{SRD_T}:{SRD_T+3}], s{S_T2} offen {self.ld_aux} lds")
        a.put(LJ)

    S_WOB = 63; S_WOB2 = 64; S_WOS = 54
    def wo_setup(self):
        a = self.a
        self.g2_wsetup(3, SRD_T, self.S_WOS, self.A_DV)
        self.wo_lds_base(self.S_WOB)
        a(f"s_cmp_eq_u32 s{S_W}, 3")
        a(f"s_cselect_b32 s{self.S_WOB2}, {128000-5120}, s{self.S_WOB}")

    def wo_from_lds(self):
        a = self.a
        LA = "L_wol_A"; LJ = "L_wol_J"
        a(f"v_add_u32 v{self.G_AM}, s{self.S_WOB}, v{self.G_DV}")
        a(f"v_add_u32 v{self.G_AM+1}, s{self.S_WOB2}, v{self.G_DV}")
        a(f"s_cmp_ge_u32 s{S_W}, 4")
        a(f"s_cbranch_scc1 {LA}")
        for NT, lab in ((2, None), (3, LA)):
            if lab:
                a(f"s_branch {LJ}")
                a.put(lab)
            for idx in range(5*NT):
                R = 88 + 4*idx
                ad = self.G_AM if not (NT == 2 and idx >= 5) else self.G_AM + 1
                a(f"ds_read_b128 v[{R}:{R+3}], v{ad} offset:{idx*1024}")
        a.put(LJ)
        a(f"s_waitcnt lgkmcnt(0)")

    def prefetch_wo(self):
        self.g2_wsetup(3, SRD_W, S_SW, 2)
        self.g2_wloads_byclass(3, [(s_, t) for s_ in range(5) for t in range(3)], [(s_, t) for s_ in range(5) for t in range(2)], SRD_W, S_SW, 2, "pfwo")
    def prefetch_w2_rest(self):
        self.g2_wsetup(5, SRD_W, S_SW, 2)
        self.g2_wloads_byclass(5, [(s_, t) for s_ in range(5) for t in range(3)], [], SRD_W, S_SW, 2, "pfw2")

    def p4_epi(self):
        a = self.a
        self.V_T = 2
        T = self.V_T; A = self.V_ACC; CSR = self.V_FR
        B1R = self.V_FR + 32
        a(f"s_cmp_eq_u32 s{S_NT}, 13")
        a(f"s_cselect_b32 s{S_T0}, s{S_WN}, 0")
        a(f"s_cmp_eq_u32 s{S_T0}, 1")
        a(f"s_cbranch_scc1 L_p4_skip")
        self.epi_T_common()
        for g in range(4):
            a(f"ds_read_b128 v[{B1R+4*g}:{B1R+4*g+3}], v{T+7} offset:{ST_B1-ST_CS+32*g}")
        for g in range(4):
            a(f"ds_read_b128 v[{B1R+16+4*g}:{B1R+16+4*g+3}], v{T+1} offset:{ST_B1-ST_CS+32*g}")
        if "rsc1" in self.opt: self.srd(SRD_O, S_WS, OFF_R, SZ_R)
        else: self.srd_twin(S_WS, OFF_R, SZ_R)
        a(f"s_lshl_b32 s{S_T0}, s{S_MT}, 1")
        a(f"s_add_u32 s{S_T0}, s{S_T0}, s{S_WM}")
        a(f"s_mul_i32 s{S_T0}, s{S_T0}, {54*4096}")
        a(f"s_lshl_b32 s{S_T1}, s{S_NT}, 2")
        a(f"s_lshl_b32 s{S_T2}, s{S_WN}, 1")
        a(f"s_add_u32 s{S_T1}, s{S_T1}, s{S_T2}")
        a(f"s_add_u32 s{S_T2}, s{S_T1}, s{S_WM}")
        a(f"s_xor_b32 s{S_T3}, s{S_WM}, 1")
        a(f"s_add_u32 s{S_T3}, s{S_T1}, s{S_T3}")
        a(f"s_lshl_b32 s{S_T2}, s{S_T2}, 12")
        a(f"s_lshl_b32 s{S_T3}, s{S_T3}, 12")
        a(f"s_add_u32 s{S_T4}, s{S_T0}, s{S_T2}")
        a(f"s_add_u32 s{S_T5}, s{S_T0}, s{S_T3}")
        a(f"v_bfe_u32 v{T+8}, v1, 4, 1")
        a(f"v_lshlrev_b32 v{T+8}, 10, v{T+8}")
        a(f"v_and_b32 v{T+9}, 15, v1")
        a(f"v_lshl_add_u32 v{T+8}, v{T+9}, 4, v{T+8}")
        a(f"v_lshl_add_u32 v{T+8}, v{T+6}, 8, v{T+8}")
        a(f"s_waitcnt lgkmcnt(0)")
        for tt in range(2):
            for q in range(2):
                for gp in range(2):
                    for g in (2*gp, 2*gp+1):
                        for i in range(4):
                            r = A + 16*(2*tt+q) + 4*g + i
                            a(f"v_fma_f32 v{r}, v{T+2+2*tt}, v{r}, v{B1R+16*q+4*g+i}")
                            a(f"v_fmac_f32 v{r}, v{T+3+2*tt}, v{CSR+16*q+4*g+i}")
                            a(f"v_max_f32 v{r}, 0, v{r}")
                            a(f"v_mul_f32 v{r}, v{r}, v{r}")
                    r = A + 16*(2*tt+q) + 8*gp
                    a(f"v_cvt_pk_bf16_f32 v{r}, v{r}, v{r+1}")
                    a(f"v_cvt_pk_bf16_f32 v{r+1}, v{r+2}, v{r+3}")
                    a(f"v_cvt_pk_bf16_f32 v{r+2}, v{r+4}, v{r+5}")
                    a(f"v_cvt_pk_bf16_f32 v{r+3}, v{r+6}, v{r+7}")
                    a(f"s_nop 1")
                    a(f"v_permlane32_swap_b32 v{r}, v{r+2}")
                    a(f"v_permlane32_swap_b32 v{r+1}, v{r+3}")
                    if "rsc1" in self.opt:
                        a(f"buffer_store_dwordx4 v[{r}:{r+3}], v{T+8}, s[{SRD_O}:{SRD_O+3}], s{S_T4+q} offen offset:{2048*tt + 512*gp} sc1")
                    else:
                        self.store_twin("buffer_store_dwordx4", f"v[{r}:{r+3}]", T+8, f"s{S_T4+q}", f"offset:{2048*tt + 512*gp}")
        a.put("L_p4_skip")
        self.V_T = 148

    def p4_setup(self):
        a = self.a
        a(f"s_cmp_ge_u32 s{S_GI}, 28")
        a(f"s_cbranch_scc1 L_p4s_done")
        a(f"s_cmp_ge_u32 s{S_GI}, 14")
        a(f"s_cselect_b32 s{S_T0}, 1, 0")
        a(f"s_cselect_b32 s{S_T1}, 14, 0")
        a(f"s_sub_u32 s{S_NT}, s{S_GI}, s{S_T1}")
        a(f"s_lshl_b32 s{S_MT}, s{S_GX}, 1")
        a(f"s_add_u32 s{S_MT}, s{S_MT}, s{S_T0}")
        a(f"s_cmp_ge_u32 s{S_NT}, 10")
        a(f"s_cselect_b32 s{S_T0}, 10, 0")
        a(f"s_sub_u32 s{S_KK}, s{S_NT}, s{S_T0}")
        if "p4norot" in self.opt: a(f"s_mov_b32 s{S_KK}, 0")
        a(f"s_cmp_lt_u32 s{S_W}, 4")
        a(f"s_cbranch_scc1 L_p4s_compute")
        self.V_T = 16
        self.g1_setup_loader(3456)
        self.srd(SRD_A, S_WS, OFF_H, SZ_H)
        self.srd(SRD_W, S_W1, 0, 640*3456)
        T = self.V_T
        self.srd(SRD_T, S_B1, 0, 1728*2)
        a(f"s_sub_u32 s{S_T4}, s{S_W}, 4")
        a(f"s_lshl_b32 s{S_T4}, s{S_T4}, 5")
        a(f"v_and_b32 v{T+10}, 31, v1")
        a(f"v_add_u32 v{T+10}, s{S_T4}, v{T+10}")
        a(f"s_lshl_b32 s{S_T4}, s{S_NT}, 7")
        a(f"v_add_u32 v{T+11}, s{S_T4}, v{T+10}")
        a(f"v_lshlrev_b32 v{T+11}, 1, v{T+11}")
        a(f"buffer_load_ushort v{T+22}, v{T+11}, s[{SRD_T}:{SRD_T+3}], 0 offen")
        a(f"s_mov_b32 s{S_T3}, s{S_KK}")
        for sg in range(3):
            a(f"s_mul_i32 s{S_T4}, s{S_T3}, {64*3456}")
            a(f"s_add_u32 s{S_T4}, s{S_T4}, s{S_SW}")
            for q in range(4):
                a(f"s_add_u32 m0, s{S_M0A}, {sg*32768 + 16384 + q*4096}")
                a(f"s_add_u32 s{S_T2}, s{S_T4}, {q*16*3456}")
                a(f"buffer_load_dwordx4 v{self.V_OFFW}, s[{SRD_W}:{SRD_W+3}], s{S_T2} offen lds")
            a(f"s_add_u32 s{S_T3}, s{S_T3}, 1")
            a(f"s_cmp_eq_u32 s{S_T3}, 10")
            a(f"s_cselect_b32 s{S_T3}, 0, s{S_T3}")
        self.V_T = 148
        a(f"s_branch L_p4s_done")
        a.put("L_p4s_compute")
        self.g1_setup_compute()
        a.put("L_p4s_done")

    def p4(self):
        a = self.a
        a(f"s_cmp_ge_u32 s{S_GI}, 28")
        a(f"s_cbranch_scc1 L_p4_done")
        self.aux_A = self.ld_aux
        self.st1 = 15 if "p4s" in self.opt else None
        a(f"s_cmp_lt_u32 s{S_W}, 4")
        a(f"s_cbranch_scc1 L_p4_compute")
        self.V_T = 16
        for sg in range(3):
            a(f"s_lshl_b32 s{S_T4}, s{S_KK}, 7")
            a(f"s_add_u32 s{S_T4}, s{S_T4}, s{S_SA}")
            for q in range(4):
                a(f"s_add_u32 m0, s{S_M0A}, {sg*32768 + q*4096}")
                a(f"s_add_u32 s{S_T2}, s{S_T4}, {q*32*1280}")
                a(f"buffer_load_dwordx4 v{self.V_OFFA}, s[{SRD_A}:{SRD_A+3}], s{S_T2} offen {self.aux_A} lds")
            a(f"s_add_u32 s{S_KK}, s{S_KK}, 1")
            a(f"s_cmp_eq_u32 s{S_KK}, 10")
            a(f"s_cselect_b32 s{S_KK}, 0, s{S_KK}")
        a(f"s_mov_b32 s{S_SLOT}, {3*32768}")
        self.kk_wrap = 0
        self.b1_hook = True
        self.g1_loader(3456, "p4", "part")
        self.b1_hook = False
        self.V_T = 148
        a(f"s_branch L_p4_done")
        a.put("L_p4_compute")
        self.g1_compute("T", "p4", presetup=True)
        if "p4s" in self.opt: self.stamp(16)
        self.p4_epi()
        if "p4s" in self.opt: self.stamp(17)
        a.put("L_p4_done")

    def code_warm(self):
        a = self.a
        a(f"s_getpc_b64 s[{SRD_T}:{SRD_T+1}]")
        a.put("L_pc_here")
        a(f"s_sub_u32 s{SRD_T}, s{SRD_T}, L_pc_here-{NAME}")
        a(f"s_subb_u32 s{SRD_T+1}, s{SRD_T+1}, 0")
        a(f"s_mov_b32 s{SRD_T+2}, L_end-{NAME}")
        a(f"s_mov_b32 s{SRD_T+3}, 0x20000")
        a(f"v_lshlrev_b32 v254, 7, v0")
        for k in range(self.code_rounds):
            a(f"s_mov_b32 s{S_T0}, {32768*k}")
            a(f"buffer_load_dword v255, v254, s[{SRD_T}:{SRD_T+3}], s{S_T0} offen")

    def epoch_update(self):
        a = self.a
        a(f"s_or_b32 s{S_T0}, s2, s{S_W}")
        a(f"s_cmp_lg_u32 s{S_T0}, 0")
        a(f"s_cbranch_scc1 L_noepoch")
        a(f"v_mov_b32 v2, {OFF_EPOCH}")
        a(f"v_mov_b32 v3, s{S_TAG}")
        a(f"s_mov_b64 exec, 1")
        a(f"buffer_store_dword v3, v2, s[{SRD_F}:{SRD_F+3}], 0 offen sc1")
        a(f"s_mov_b64 exec, -1")
        a.put("L_noepoch")

    def epilogue_stamps(self):
        if getattr(self, "freeze", False): self.stamps = True
        if not self.stamps: return
        a = self.a
        if "dbg" in self.opt:
            a(f"s_or_b32 s{S_T0}, s2, s{S_W}")
            a(f"s_cmp_lg_u32 s{S_T0}, 0")
            a(f"s_cbranch_scc1 L_nodbg")
            self.srd(SRD_T, S_DBG, 0, 256)
            a(f"s_memrealtime s[100:101]")
            a(f"s_waitcnt lgkmcnt(0)")
            a(f"s_sub_u32 s{S_STAMP+15}, s100, s88")
            a(f"s_add_u32 s{S_STAMP+15}, s{S_STAMP+15}, s{S_STAMP}")
            a(f"v_mov_b32 v3, 0")
            a(f"s_mov_b64 exec, 1")
            for i in range(16):
                a(f"s_sub_u32 s{S_T1}, s{S_STAMP+i}, s{S_STAMP}")
                a(f"v_mov_b32 v2, s{S_T1}")
                a(f"buffer_store_dword v2, v3, s[{SRD_T}:{SRD_T+3}], 0 offen offset:{4*i}")
                a(f"s_nop 1")
            a(f"s_mov_b64 exec, -1")
            a.put("L_nodbg")
        a(f"s_waitcnt lgkmcnt(0)")
        a(f"s_lshl_b32 s{S_T0}, s2, 3")
        a(f"s_add_u32 s{S_T0}, s{S_T0}, s{S_W}")
        a(f"s_lshl_b32 s{S_T0}, s{S_T0}, 7")
        a(f"s_add_u32 s{S_T0}, s{S_T0}, 0x80000")
        a(f"v_mov_b32 v3, s{S_T0}")
        a(f"s_mov_b64 exec, 1")
        a(f"s_memrealtime s[100:101]")
        a(f"s_waitcnt lgkmcnt(0)")
        a(f"s_sub_u32 s{S_T1}, s100, s88")
        a(f"v_mov_b32 v2, s{S_T1}")
        a(f"buffer_store_dword v2, v3, s[{SRD_F}:{SRD_F+3}], 0 offen offset:{4*31}")
        a(f"v_mov_b32 v2, s88")
        a(f"buffer_store_dword v2, v3, s[{SRD_F}:{SRD_F+3}], 0 offen offset:{4*30}")
        for i in range(self.nstamp):
            a(f"s_sub_u32 s{S_T1}, s{S_STAMP+i}, s{S_STAMP}")
            a(f"v_mov_b32 v2, s{S_T1}")
            a(f"buffer_store_dword v2, v3, s[{SRD_F}:{SRD_F+3}], 0 offen offset:{4*i}")
            a(f"s_nop 1")
        a(f"s_mov_b64 exec, -1")

    def build(self):
        a = self.a
        self.prologue()
        self.p1()
        self.p1_signal()
        if self.stop_after != "p1":
            self.p2()
            if self.stop_after != "p2":
                self.V_S = 66
                self.group_barrier(0, "gb23", S_QB, S_HEAD, hook=self.hook23)
                self.stamp(9)
                self.g2(3)
                self.stamp(10)
                if self.stop_after != "p3":
                    self.group_barrier(1, "gb34", hook=self.hook34, local=True)
                    self.stamp(11)
                    self.p4()
                    self.stamp(12)
                    if self.stop_after != "p4":
                        self.group_barrier(2, "gb45", hook=self.hook45, local=True)
                        self.stamp(13)
                        self.g2(5)
            a(f"s_waitcnt vmcnt(0)")
            self.stamp(14)
        self.epoch_update()
        self.epilogue_stamps()
        a(f"s_waitcnt vmcnt(0)")
        a.put("L_end")
        a("s_endpgm")
        return a

import struct
def f32(x):
    return struct.unpack("<I", struct.pack("<f", x))[0]

HEADER = open("sequential_preLN__mha_block__dense_activation_squared_relu__prompt.s.ref").read().split("; Override launch geometry")[0]

def wrap(body, lds=163840, vgpr=256):
    s = HEADER
    s += f"; @launch grid=(256,1,1) block=(512,1,1) lds={lds}\n"
    s += '.amdgcn_target "amdgcn-amd-amdhsa--gfx950"\n.text\n'
    s += f".globl {NAME}\n.p2align 8\n.type {NAME},@function\n{NAME}:\n"
    s += body
    s += f"""
.section .rodata,"a"
.p2align 6
.amdhsa_kernel {NAME}
  .amdhsa_next_free_vgpr {vgpr}
  .amdhsa_next_free_sgpr 102
  .amdhsa_accum_offset {vgpr}
  .amdhsa_group_segment_fixed_size 0
  .amdhsa_kernarg_size 88
  .amdhsa_user_sgpr_count 2
  .amdhsa_user_sgpr_kernarg_segment_ptr 1
  .amdhsa_system_sgpr_workgroup_id_x 1
.end_amdhsa_kernel
"""
    return s

if __name__ == "__main__":
    import argparse
    ap = argparse.ArgumentParser()
    ap.add_argument("-o", default="out.s")
    ap.add_argument("--stop", default=None)
    ap.add_argument("--stamps", action="store_true")
    ap.add_argument("--opt", default="")
    ap.add_argument("--plow", default=None)
    args = ap.parse_args()
    g = Gen(stop_after=args.stop, stamps=args.stamps, opt=[o for o in args.opt.split(',') if o])
    if "low2" in g.opt: g.low_tiles = 2
    if "low3" in g.opt: g.low_tiles = 3
    if args.plow is not None: g.prio_low = tuple(int(x) for x in args.plow.split(",") if x)
    a = g.build()
    rep = check(a.L)
    for r in rep: print(r)
    open(args.o, "w").write(wrap(a.text()))
    print("wrote", args.o, len(a.L), "lines;", len(rep), "hazards")
```

```python
import sys, math
sys.path.insert(0, "gen")
from asmlib import Asm, vr, sr, check

NAME = "sequential_preLN__mha_block__dense_activation_squared_relu__prompt_kernel"

OFF_EPOCH = 0
OFF_ALL   = 0x1000
OFF_GB    = 0x50000
OFF_MB1   = 65536
OFF_GR    = 0x68000
OFF_PST   = 0xC0000
OFF_Q     = 0x100000
OFF_KV    = 0x400000
OFF_O     = 0xA00000
OFF_H     = 0xD00000
OFF_R     = 0x1000000
OFF_WOP   = 0x1700000
OFF_W2P   = 0x1800000
SZ_Q = 32*64*1280
SZ_KV = 32*64*2560
SZ_O = 32*20*4096
SZ_H = 2048*1280
SZ_R = 32*54*4096
SZ_WOP = 20*40*1024
SZ_W2P = 54*40*1024

S_KA = 0; S_WG = 2; S_W = 3
S_X = 4; S_WQKV = 6; S_WO = 8; S_W1 = 12; S_B1 = 14; S_W2 = 16; S_B2 = 18; S_OUT = 20; S_DBG = 22; S_WS = 24
S_TAG = 26; S_GX = 27
SRD_A = 28; SRD_W = 32; SRD_O = 36; SRD_F = 40; SRD_T = 44
S_GI = 48
S_MT = 49; S_NT = 50; S_KK = 51; S_CNT = 52; S_SLOT = 53
S_SA = 54; S_SW = 55; S_T0 = 56; S_T1 = 57; S_T2 = 58; S_T3 = 59; S_T4 = 60; S_T5 = 61
S_M0A = 62; S_WM = 63; S_WN = 64; S_DELTA = 65; S_ONES = 66; S_ROT4 = 67; S_RLW = 68; S_RSLOT = 69; S_HEAD = 66; S_QB = 67
S_STAMP = 70
S_SAVE = 90
S_OOB = 53
S_XCC = 10; S_FAST = 11
SRD_P = 96

LDS_STATS = 0
ST_PX, ST_PQ, ST_PC, ST_AA, ST_BB, ST_CS, ST_B1 = 0, 4096, 8192, 9216, 9728, 10240, 10752
LDS_RL = 32768

class Gen:
    def __init__(self, stop_after=None, stamps=False, opt=()):
        self.opt = set(opt)
        self.a = Asm()
        self.stop_after = stop_after
        self.stamps = stamps
        self.nstamp = 0
        self.code_rounds = 2
        self.evtag = 'u'
        self.kk_wrap = 2
        global LDS_STATS, LDS_RL
        if "ns5" not in self.opt:
            self.NSLOT = 4; LDS_STATS = 131072; LDS_RL = 131072 + 12288
        else:
            self.NSLOT = 5; LDS_STATS = 0; LDS_RL = 32768
        self.fast_aux = "nt" if "fnt" in self.opt else ("sc0" if "fsc0" in self.opt else ("sc0 nt" if "fsc0nt" in self.opt else ""))
        self.opt_g2 = "3" if "g2s3" in self.opt else ("5" if "g2s5" in self.opt else "")
        self.ld_aux = "" if "plainld" in self.opt else "sc1"

    def srd(self, dst, base_s, off, size):
        a = self.a
        if off:
            a(f"s_add_u32 s{dst}, s{base_s}, {hex(off)}")
            a(f"s_addc_u32 s{dst+1}, s{base_s+1}, 0")
        else:
            a(f"s_mov_b32 s{dst}, s{base_s}")
            a(f"s_mov_b32 s{dst+1}, s{base_s+1}")
        a(f"s_mov_b32 s{dst+2}, {hex(size)}")
        a(f"s_mov_b32 s{dst+3}, 0x20000")

    def csel(self, dst, x, y):
        self.a(f"s_mov_b32 s{dst}, {y}")
        self.a(f"s_cselect_b32 s{dst}, {x}, s{dst}")

    def withT(self, T, fn, *args, **kw):
        old = self.V_T; self.V_T = T
        r = fn(*args, **kw)
        self.V_T = old
        return r

    def srd_twin(self, base_s, off, size):
        a = self.a
        self.srd(SRD_O, base_s, off, size)
        a(f"s_mov_b32 s{SRD_P}, s{SRD_O}")
        a(f"s_mov_b32 s{SRD_P+1}, s{SRD_O+1}")
        a(f"s_mov_b32 s{SRD_P+3}, 0x20000")
        a(f"s_cmp_eq_u32 s{S_FAST}, 1")
        a(f"s_cselect_b32 s{SRD_P+2}, s{SRD_O+2}, 0")
        a(f"s_cselect_b32 s{SRD_O+2}, 0, s{SRD_O+2}")
    def store_twin(self, op, data, vaddr, soff, extra=""):
        a = self.a
        a(f"{op} {data}, v{vaddr}, s[{SRD_O}:{SRD_O+3}], {soff} offen {extra} sc1")
        a(f"{op} {data}, v{vaddr}, s[{SRD_P}:{SRD_P+3}], {soff} offen {extra} {self.fast_aux}")

    def set_exec(self, mask):
        mask = int(str(mask), 0) & 0xFFFFFFFFFFFFFFFF
        if mask == 0xFFFFFFFFFFFFFFFF: self.a("s_mov_b64 exec, -1")
        elif mask < 0x80000000: self.a(f"s_mov_b64 exec, {hex(mask)}")
        else:
            self.a(f"s_mov_b32 exec_lo, {hex(mask & 0xffffffff)}")
            self.a(f"s_mov_b32 exec_hi, {hex(mask >> 32)}")

    def stamp(self, i=None):
        if not self.stamps: return
        if i is None: return
        self.nstamp = max(self.nstamp, i + 1)
        self.a(f"s_memtime s[100:101]")
        self.a(f"s_waitcnt lgkmcnt(0)")
        self.a(f"s_mov_b32 s{S_STAMP+i}, s100")

    def prologue(self):
        a = self.a
        a(f"s_cmp_ge_u32 s2, 256")
        a(f"s_cbranch_scc1 L_end")
        self.stamp(0)
        if self.stamps: a(f"s_memrealtime s[88:89]")
        a(f"s_load_dwordx16 s[4:19], s[0:1], 0")
        a(f"s_load_dwordx4 s[20:23], s[0:1], 64")
        a(f"s_load_dwordx2 s[24:25], s[0:1], 80")
        a(f"v_lshrrev_b32 v2, 6, v0")
        a(f"v_and_b32 v1, 63, v0")
        a(f"v_readfirstlane_b32 s{S_W}, v2")
        a(f"s_and_b32 s{S_GX}, s2, 7")
        a(f"s_lshr_b32 s{S_GI}, s2, 3")
        a(f"s_mov_b32 s{S_ONES}, 0x3f803f80")
        a(f"s_lshr_b32 s{S_WM}, s{S_W}, 2")
        a(f"s_and_b32 s{S_WN}, s{S_W}, 3")

    def finish_tag(self):
        a = self.a
        a(f"s_waitcnt lgkmcnt(0)")
        a(f"s_mul_i32 s{S_TAG}, s{S_TAG}, 0x9E3779B1")
        a(f"s_add_u32 s{S_TAG}, s{S_TAG}, 0x7F4A7C15")

    V_OFFA = 2; V_OFFW = 3
    V_AA = 2
    V_AWA = 6; V_AWB = 7
    V_AW2A = 0; V_AW2B = 1
    V_CSA = 8
    V_CSD = 12
    V_FR = 16
    V_ACC = 80
    V_T = 148
    V_S = 136
    POLLW = 0
    V_LA = 4
    V_LS = 8
    V_LD = 20
    V_LU = 40
    NSLOT = 5

    def g1_setup_loader(self, WS):
        a = self.a
        T = self.V_T
        a(f"s_sub_u32 s{S_T4}, s{S_W}, 4")
        a(f"v_lshrrev_b32 v{T}, 4, v1")
        a(f"s_lshl_b32 s{S_T0}, s{S_T4}, 2")
        a(f"v_add_u32 v{T+1}, s{S_T0}, v{T}")
        a(f"v_and_b32 v{T+1}, 7, v{T+1}")
        a(f"v_and_b32 v{T+2}, 7, v1")
        a(f"v_xor_b32 v{T+1}, v{T+1}, v{T+2}")
        a(f"v_lshlrev_b32 v{T+1}, 4, v{T+1}")
        a(f"v_lshrrev_b32 v{T+2}, 3, v1")
        a(f"v_mul_u32_u24 v{T+2}, 1280, v{T+2}")
        a(f"v_add_u32 v{self.V_OFFA}, v{T+1}, v{T+2}")
        a(f"v_lshlrev_b32 v{T+1}, 2, v{T}")
        a(f"v_and_b32 v{T+2}, 15, v1")
        a(f"v_xor_b32 v{T+1}, v{T+1}, v{T+2}")
        a(f"v_lshlrev_b32 v{T+1}, 4, v{T+1}")
        a(f"v_mul_u32_u24 v{T+2}, {WS}, v{T}")
        a(f"v_add_u32 v{self.V_OFFW}, v{T+1}, v{T+2}")
        a(f"s_lshl_b32 s{S_T0}, s{S_MT}, 7")
        a(f"s_lshl_b32 s{S_T1}, s{S_T4}, 3")
        a(f"s_add_u32 s{S_T0}, s{S_T0}, s{S_T1}")
        a(f"s_mul_i32 s{S_SA}, s{S_T0}, 1280")
        a(f"s_mul_i32 s{S_T0}, s{S_T4}, {4*WS}")
        a(f"s_lshl_b32 s{S_T1}, s{S_NT}, 8")
        a(f"s_add_u32 s{S_SW}, s{S_T0}, s{S_T1}")
        a(f"s_lshl_b32 s{S_M0A}, s{S_T4}, 10")
        a(f"s_mov_b32 s{S_SLOT}, 0")

    def g1_dma1(self, WS, q):
        a = self.a
        if q == 0:
            a(f"s_lshl_b32 s{S_T2}, s{S_KK}, 7")
            a(f"s_add_u32 s{S_T2}, s{S_T2}, s{S_SA}")
            a(f"s_add_u32 m0, s{S_SLOT}, s{S_M0A}")
            a(f"s_mul_i32 s{S_T3}, s{S_KK}, {64*WS}")
        elif q == 4:
            a(f"s_add_u32 s{S_T2}, s{S_T3}, s{S_SW}")
            a(f"s_add_u32 m0, m0, 4096")
            a(f"s_nop 0")
        else:
            a(f"s_add_u32 m0, m0, 4096")
            a(f"s_add_u32 s{S_T2}, s{S_T2}, {32*1280 if q < 4 else 16*WS}")
        if q < 4:
            a(f"buffer_load_dwordx4 v{self.V_OFFA}, s[{SRD_A}:{SRD_A+3}], s{S_T2} offen {self.aux_A} lds")
        else:
            a(f"buffer_load_dwordx4 v{self.V_OFFW}, s[{SRD_W}:{SRD_W+3}], s{S_T2} offen lds")
        if q == 7:
            a(f"s_add_u32 s{S_KK}, s{S_KK}, 1")
            a(f"s_cmp_eq_u32 s{S_KK}, 10")
            a(f"s_cselect_b32 s{S_KK}, {self.kk_wrap}, s{S_KK}")
            a(f"s_add_u32 s{S_SLOT}, s{S_SLOT}, 32768")
            a(f"s_cmp_eq_u32 s{S_SLOT}, {self.NSLOT*32768}")
            a(f"s_cselect_b32 s{S_SLOT}, 0, s{S_SLOT}")

    def g1_dma_stage(self, WS):
        for q in range(8): self.g1_dma1(WS, q)

    def slot_next(self):
        a = self.a
        a(f"s_add_u32 s{S_RSLOT}, s{S_RSLOT}, 1")
        a(f"s_cmp_eq_u32 s{S_RSLOT}, {self.NSLOT}")
        a(f"s_cselect_b32 s{S_RSLOT}, 0, s{S_RSLOT}")
        a(f"s_cmp_eq_u32 s{S_RSLOT}, {self.NSLOT-1}")
        self.csel(S_DELTA, hex((-(self.NSLOT-1)*32768) & 0xffffffff), 32768)

    def g1_loader(self, WS, tag, mode):
        a = self.a
        T = self.V_T
        pre = self.NSLOT - 1
        nx = 1 if mode == "gran" else 4
        if mode == "gran":
            for q in range(8):
                self.g1_dma1(WS, q)
            a(f"s_waitcnt vmcnt(16)")
            if "p1s" in self.opt: self.stamp(18)
            a(f"s_barrier")
            if pre == 4:
                for q in range(8):
                    self.g1_dma1(WS, q)
            self.tag_ready()
        else:
            a(f"s_waitcnt vmcnt(8)")
            a(f"s_barrier")
            if pre == 4:
                for q in range(8):
                    self.g1_dma1(WS, q)
                a(f"s_waitcnt vmcnt(8)")
            else:
                a(f"s_waitcnt vmcnt(4)")
        a(f"s_mov_b32 s{S_CNT}, 0")
        L1 = f"L_{tag}_lloop"
        a.put(L1)
        a(f"s_add_u32 s{S_CNT}, s{S_CNT}, 1")
        a(f"s_waitcnt vmcnt({8*(pre-2)})")
        a(f"s_barrier")
        for q in range(8):
            if "nodma" not in self.opt: self.g1_dma1(WS, q)
        a(f"s_cmp_lt_u32 s{S_CNT}, {10-pre}")
        a(f"s_cbranch_scc1 {L1}")
        a(f"s_sub_u32 s{S_T4}, s{S_W}, 4")
        a(f"s_lshl_b32 s{S_T0}, s{S_T4}, 5")
        a(f"v_and_b32 v{T}, 31, v1")
        a(f"v_add_u32 v{T}, s{S_T0}, v{T}")
        a(f"s_lshl_b32 s{S_T1}, s{S_MT}, 7")
        a(f"v_add_u32 v{T+1}, s{S_T1}, v{T}")
        if mode == "gran":
            a(f"v_lshlrev_b32 v{T+1}, 4, v{T+1}")
            a(f"v_add_u32 v{T+1}, {hex(OFF_GR)}, v{T+1}")
            a(f"buffer_load_dwordx4 v[{T+4}:{T+7}], v{T+1}, s[{SRD_F}:{SRD_F+3}], 0 offen sc1")
        else:
            a(f"v_lshlrev_b32 v{T+1}, 7, v{T+1}")
            a(f"v_lshrrev_b32 v{T+2}, 5, v1")
            a(f"v_lshl_add_u32 v{T+1}, v{T+2}, 6, v{T+1}")
            a(f"v_add_u32 v{T+1}, {hex(OFF_PST)}, v{T+1}")
            for q in range(4):
                a(f"buffer_load_dwordx4 v[{T+4+4*q}:{T+7+4*q}], v{T+1}, s[{SRD_F}:{SRD_F+3}], 0 offen offset:{16*q} {self.ld_aux}")
        late = 0
        if pre == 4:
            a(f"s_waitcnt vmcnt({16+nx})")
            a(f"s_barrier")
        a(f"s_waitcnt vmcnt({8+nx})")
        a(f"s_barrier")
        rl = 0
        if mode == "gran":
            self.withT(T + 24, self.relayout_load)
            rl = 4
        a(f"s_waitcnt vmcnt({nx+rl})")
        a(f"s_barrier")
        if mode != "gran" and "now2rest" not in self.opt:
            self.g2_wsetup(5, SRD_T, S_SW, T + 24)
            for s_ in range(5):
                for t in range(3):
                    self.g2_wload1(5, 3, s_, t, SRD_T, S_SW, T + 24)
            late = 15
        a(f"s_barrier")
        a(f"s_waitcnt vmcnt({late+rl})")
        if mode == "gran":
            Lp = f"L_{tag}_gpoll"; Lo = f"L_{tag}_gok"
            a(f"s_mov_b32 s{S_T0}, 0")
            a.put(Lp)
            a(f"v_cmp_ne_u32 vcc, s{S_TAG}, v{T+6}")
            a(f"v_cmp_ne_u32 s[{S_SAVE}:{S_SAVE+1}], s{S_TAG}, v{T+7}")
            a(f"s_nop 1")
            a(f"s_or_b64 vcc, vcc, s[{S_SAVE}:{S_SAVE+1}]")
            a(f"s_cbranch_vccz {Lo}")
            a(f"s_add_u32 s{S_T0}, s{S_T0}, 1")
            a(f"s_cmp_ge_u32 s{S_T0}, 0x40000")
            a(f"s_cbranch_scc1 {Lo}")
            a(f"buffer_load_dwordx4 v[{T+4}:{T+7}], v{T+1}, s[{SRD_F}:{SRD_F+3}], 0 offen sc1")
            a(f"s_waitcnt vmcnt(0)")
            a(f"s_branch {Lp}")
            a.put(Lo)
            A_, B_ = T+4, T+5
        else:
            for q in range(1, 4):
                for i in range(4):
                    a(f"v_add_f32 v{T+4+i}, v{T+4+i}, v{T+4+4*q+i}")
            a(f"v_add_f32 v{T+4}, v{T+4}, v{T+6}")
            a(f"v_add_f32 v{T+5}, v{T+5}, v{T+7}")
            a(f"v_mov_b32 v{T+6}, v{T+4}")
            a(f"v_mov_b32 v{T+7}, v{T+5}")
            a(f"s_nop 1")
            a(f"v_permlane32_swap_b32 v{T+6}, v{T+4}")
            a(f"v_permlane32_swap_b32 v{T+7}, v{T+5}")
            a(f"s_nop 1")
            a(f"v_add_f32 v{T+4}, v{T+4}, v{T+6}")
            a(f"v_add_f32 v{T+5}, v{T+5}, v{T+7}")
            self.ab_from_sums(T+4, T+5, T+8)
            A_, B_ = T+9, T+8
        a(f"v_lshlrev_b32 v{T}, 2, v{T}")
        a(f"v_add_u32 v{T}, {LDS_STATS}, v{T}")
        a(f"ds_write_b32 v{T}, v{A_} offset:{ST_AA}")
        a(f"ds_write_b32 v{T}, v{B_} offset:{ST_BB}")
        if getattr(self, "b1_hook", False):
            a(f"v_lshlrev_b32 v{T+22}, 16, v{T+22}")
            a(f"ds_write_b32 v{T}, v{T+22} offset:{ST_B1}")
        a(f"s_waitcnt lgkmcnt(0)")
        a(f"s_barrier")

    def ab_from_sums(self, sx, sq, o):
        a = self.a
        a(f"v_mul_f32 v{o}, {hex(f32(1.0/640))}, v{sx}")
        a(f"v_mul_f32 v{o+1}, {hex(f32(1.0/640))}, v{sq}")
        a(f"v_fma_f32 v{o+1}, -v{o}, v{o}, v{o+1}")
        a(f"v_max_f32 v{o+1}, 0, v{o+1}")
        a(f"v_add_f32 v{o+1}, {hex(f32(1e-5))}, v{o+1}")
        a(f"v_rsq_f32 v{o+1}, v{o+1}")
        a(f"s_nop 0")
        a(f"v_mul_f32 v{o}, v{o}, v{o+1}")
        a(f"v_sub_f32 v{o}, 0, v{o}")

    V_WRM = 252
    S_WRM = 62; S_WRMD = 54
    def p1_l2warm(self):
        a = self.a
        T = self.V_T; V = self.V_WRM
        LW = "L_warm_w"; LJ = "L_warm_j"
        a(f"s_bitcmp1_b32 s{S_W}, 0")
        a(f"s_cbranch_scc1 {LW}")
        self.srd(SRD_T, S_X, 0, 2048*1280)
        a(f"s_and_b32 s{S_T0}, s{S_GX}, 3")
        a(f"s_lshl_b32 s{S_T0}, s{S_T0}, 9")
        a(f"s_lshl_b32 s{S_T1}, s{S_GI}, 4")
        a(f"s_add_u32 s{S_T0}, s{S_T0}, s{S_T1}")
        a(f"v_add_u32 v{T}, s{S_T0}, v1")
        a(f"v_mul_u32_u24 v{V}, 1280, v{T}")
        a(f"v_cmp_gt_u32 vcc, 16, v1")
        a(f"s_mov_b32 s{self.S_WRMD}, 128")
        a(f"s_branch {LJ}a")
        a.put(LW)
        self.srd(SRD_T, S_WQKV, 0, 640*3840)
        a(f"v_lshrrev_b32 v{T}, 4, v1")
        a(f"s_lshl_b32 s{S_T0}, s{S_GI}, 1")
        a(f"v_add_u32 v{T}, s{S_T0}, v{T}")
        a(f"v_mul_u32_u24 v{V}, 3840, v{T}")
        a(f"v_and_b32 v{T+1}, 15, v1")
        a(f"v_lshl_add_u32 v{V}, v{T+1}, 7, v{V}")
        a(f"s_lshr_b32 s{S_T0}, s{S_GX}, 2")
        a(f"s_lshl_b32 s{S_T0}, s{S_T0}, 11")
        a(f"v_add_u32 v{V}, s{S_T0}, v{V}")
        a(f"v_cmp_gt_u32 vcc, 32, v1")
        a(f"s_mov_b32 s{self.S_WRMD}, {64*3840}")
        a.put(LJ + "a")
        a(f"s_cmp_ge_u32 s{S_W}, 2")
        a(f"s_cselect_b64 s[{S_SAVE}:{S_SAVE+1}], 0, vcc")
        a(f"v_mov_b32 v{T+1}, 0x7f000000")
        a(f"s_nop 0")
        a(f"v_cndmask_b32 v{V}, v{T+1}, v{V}, s[{S_SAVE}:{S_SAVE+1}]")
        a(f"s_mul_i32 s{self.S_WRM}, s{self.S_WRMD}, 3")
        for c in range(3):
            self.warm1()

    def warm1(self):
        a = self.a
        a(f"buffer_load_dword v253, v{self.V_WRM}, s[{SRD_T}:{SRD_T+3}], s{self.S_WRM} offen")
        a(f"s_add_u32 s{self.S_WRM}, s{self.S_WRM}, s{self.S_WRMD}")

    def w1_l2warm_keepT(self):
        self.w1_l2warm()

    def w1_l2warm(self):
        a = self.a
        V = self.A_ALL + 1
        self.srd(SRD_O, S_W1, 0, 640*3456)
        a(f"s_mul_i32 s{S_T0}, s{S_GI}, 540")
        a(f"s_lshl_b32 s{S_T1}, s{S_W}, 6")
        a(f"s_add_u32 s{S_T0}, s{S_T0}, s{S_T1}")
        a(f"v_add_u32 v{V}, s{S_T0}, v1")
        a(f"v_lshlrev_b32 v{V}, 7, v{V}")
        a(f"buffer_load_dword v{V+1}, v{V}, s[{SRD_O}:{SRD_O+3}], 0 offen")
        L = f"L_w1w_skip{self.evtag}"
        a(f"s_cmp_lg_u32 s{S_W}, 0")
        a(f"s_cbranch_scc1 {L}")
        self.set_exec((1 << 28) - 1)
        a(f"s_mov_b32 s{S_T1}, {512*128}")
        a(f"buffer_load_dword v{V+1}, v{V}, s[{SRD_O}:{SRD_O+3}], s{S_T1} offen")
        a(f"s_mov_b64 exec, -1")
        a(f"v_lshlrev_b32 v{V+2}, 7, v1")
        self.srd(SRD_O, S_B1, 0, 3456)
        a(f"buffer_load_dword v{V+1}, v{V+2}, s[{SRD_O}:{SRD_O+3}], 0 offen")
        self.srd(SRD_O, S_B2, 0, 1280)
        a(f"buffer_load_dword v{V+1}, v{V+2}, s[{SRD_O}:{SRD_O+3}], 0 offen")
        a.put(L)

    def dst_l2warm(self):
        a = self.a
        V = self.A_ALL + 1
        L = f"L_dstw_skip{self.evtag}"
        a(f"s_cmp_eq_u32 s{S_FAST}, 0")
        a(f"s_cbranch_scc1 {L}")
        self.srd(SRD_O, S_WS, 0, 0x1B00000)
        a(f"s_lshl_b32 s{S_T0}, s{S_W}, 6")
        a(f"v_add_u32 v{V}, s{S_T0}, v1")
        a(f"s_mul_i32 s{S_T0}, s{S_GX}, 2560")
        a(f"s_mul_i32 s{S_T1}, s{S_GI}, 80")
        a(f"s_add_u32 s{S_T0}, s{S_T0}, s{S_T1}")
        a(f"s_add_u32 s{S_T0}, s{S_T0}, {OFF_H//128}")
        a(f"s_mul_i32 s{S_T1}, s{S_GX}, 6912")
        a(f"s_mul_i32 s{S_T2}, s{S_GI}, 216")
        a(f"s_add_u32 s{S_T1}, s{S_T1}, s{S_T2}")
        a(f"s_add_u32 s{S_T1}, s{S_T1}, {OFF_R//128 - 80}")
        a(f"s_lshl_b32 s{S_T2}, s{S_GX}, 8")
        a(f"s_lshl_b32 s{S_T3}, s{S_GI}, 3")
        a(f"s_add_u32 s{S_T2}, s{S_T2}, s{S_T3}")
        a(f"s_add_u32 s{S_T2}, s{S_T2}, {OFF_PST//128 - 296}")
        a(f"v_mov_b32 v{V+2}, s{S_T2}")
        a(f"v_mov_b32 v{V+1}, s{S_T1}")
        a(f"v_cmp_gt_u32 vcc, 296, v{V}")
        a(f"s_nop 1")
        a(f"v_cndmask_b32 v{V+2}, v{V+2}, v{V+1}, vcc")
        a(f"v_mov_b32 v{V+1}, s{S_T0}")
        a(f"v_cmp_gt_u32 vcc, 80, v{V}")
        a(f"s_nop 1")
        a(f"v_cndmask_b32 v{V+2}, v{V+2}, v{V+1}, vcc")
        a(f"v_add_u32 v{V+2}, v{V+2}, v{V}")
        a(f"v_lshlrev_b32 v{V+2}, 7, v{V+2}")
        a(f"v_cmp_gt_u32 vcc, 304, v{V}")
        a(f"s_and_saveexec_b64 s[{S_SAVE}:{S_SAVE+1}], vcc")
        a(f"s_cbranch_execz {L}x")
        a(f"buffer_load_dword v{V+1}, v{V+2}, s[{SRD_O}:{SRD_O+3}], 0 offen")
        a.put(L + "x")
        a(f"s_mov_b64 exec, -1")
        a.put(L)

    def wp_l2warm(self):
        a = self.a
        V = self.A_ALL + 1
        a(f"s_cmp_lt_u32 s{S_W}, 4")
        self.csel(S_T0, hex(OFF_WOP), hex(OFF_W2P))
        a(f"s_add_u32 s{SRD_O}, s{S_WS}, s{S_T0}")
        a(f"s_addc_u32 s{SRD_O+1}, s{S_WS+1}, 0")
        a(f"s_mov_b32 s{SRD_O+2}, {SZ_WOP}")
        a(f"s_mov_b32 s{SRD_O+3}, 0x20000")
        a(f"s_and_b32 s{S_T0}, s{S_W}, 3")
        a(f"s_lshl_b32 s{S_T0}, s{S_T0}, 6")
        a(f"v_add_u32 v{V}, s{S_T0}, v1")
        a(f"v_cmp_gt_u32 vcc, 200, v{V}")
        a(f"s_mul_i32 s{S_T0}, s{S_GI}, 200")
        a(f"v_add_u32 v{V}, s{S_T0}, v{V}")
        a(f"v_lshlrev_b32 v{V}, 7, v{V}")
        a(f"s_and_saveexec_b64 s[{S_SAVE}:{S_SAVE+1}], vcc")
        a(f"s_cbranch_execz L_wpw_x{self.evtag}")
        a(f"buffer_load_dword v{V+1}, v{V}, s[{SRD_O}:{SRD_O+3}], 0 offen")
        a.put(f"L_wpw_x{self.evtag}")
        a(f"s_mov_b64 exec, -1")

    def xstats_publish(self):
        a = self.a
        T = self.V_T
        self.srd(SRD_O, S_X, 0, 2048*1280)
        a(f"s_lshl_b32 s{S_T0}, s2, 3")
        a(f"s_lshl_b32 s{S_T1}, s{S_W}, 1")
        a(f"s_add_u32 s{S_T0}, s{S_T0}, s{S_T1}")
        a(f"v_lshrrev_b32 v{T}, 5, v1")
        a(f"v_add_u32 v{T}, s{S_T0}, v{T}")
        a(f"v_mul_u32_u24 v{T+1}, 1280, v{T}")
        a(f"v_and_b32 v{T+2}, 31, v1")
        a(f"v_lshl_add_u32 v{T+1}, v{T+2}, 3, v{T+1}")
        D = T + 4
        for j in range(5):
            a(f"buffer_load_dwordx2 v[{D+2*j}:{D+2*j+1}], v{T+1}, s[{SRD_O}:{SRD_O+3}], 0 offen offset:{256*j}")
        return D

    def xstats_finish(self, D):
        a = self.a
        T = self.V_T
        S = T + 16
        a(f"v_mov_b32 v{S}, 0"); a(f"v_mov_b32 v{S+1}, 0")
        a(f"s_waitcnt vmcnt(0)")
        for r in range(10):
            a(f"v_lshlrev_b32 v{S+2}, 16, v{D+r}")
            a(f"v_and_b32 v{S+3}, 0xffff0000, v{D+r}")
            a(f"v_add_f32 v{S}, v{S}, v{S+2}")
            a(f"v_fmac_f32 v{S+1}, v{S+2}, v{S+2}")
            a(f"v_add_f32 v{S}, v{S}, v{S+3}")
            a(f"v_fmac_f32 v{S+1}, v{S+3}, v{S+3}")
        for ctl in ("row_shr:1", "row_shr:2", "row_shr:4", "row_shr:8"):
            a(f"s_nop 1")
            a(f"v_add_f32_dpp v{S}, v{S}, v{S} {ctl} row_mask:0xf bank_mask:0xf bound_ctrl:0")
            a(f"v_add_f32_dpp v{S+1}, v{S+1}, v{S+1} {ctl} row_mask:0xf bank_mask:0xf bound_ctrl:0")
        a(f"s_nop 1")
        a(f"v_add_f32_dpp v{S}, v{S}, v{S} row_bcast:15 row_mask:0xa bank_mask:0xf")
        a(f"v_add_f32_dpp v{S+1}, v{S+1}, v{S+1} row_bcast:15 row_mask:0xa bank_mask:0xf")
        a(f"s_nop 1")
        self.ab_from_sums(S, S+1, S+5)
        a(f"v_mov_b32 v{S+8}, v{S+6}")
        a(f"v_mov_b32 v{S+9}, v{S+5}")
        self.tag_ready()
        a(f"v_mov_b32 v{S+10}, s{S_TAG}")
        a(f"v_mov_b32 v{S+11}, s{S_TAG}")
        a(f"v_lshlrev_b32 v{T}, 4, v{T}")
        a(f"v_add_u32 v{T}, {hex(OFF_GR)}, v{T}")
        a(f"s_mov_b32 exec_lo, 0x80000000")
        a(f"s_mov_b32 exec_hi, 0x80000000")
        a(f"buffer_store_dwordx4 v[{S+8}:{S+11}], v{T}, s[{SRD_F}:{SRD_F+3}], 0 offen sc1")
        a(f"s_mov_b64 exec, -1")

    def tag_ready(self):
        a = self.a
        a(f"s_waitcnt lgkmcnt(0)")
        a(f"s_getreg_b32 s{S_XCC}, hwreg(HW_REG_XCC_ID, 0, 4)")
        a(f"s_mov_b32 s{S_FAST}, 0")
        a(f"s_mul_i32 s{S_TAG}, s{S_TAG}, 0x9E3779B1")
        a(f"s_add_u32 s{S_TAG}, s{S_TAG}, 0x7F4A7C15")

    def g1_setup_compute(self):
        a = self.a
        T = self.V_FR
        a(f"s_lshr_b32 s{S_WM}, s{S_W}, 1")
        a(f"s_and_b32 s{S_WN}, s{S_W}, 1")
        a(f"v_and_b32 v{T}, 31, v1")
        a(f"s_lshl_b32 s{S_T0}, s{S_WM}, 6")
        a(f"v_add_u32 v{T+1}, s{S_T0}, v{T}")
        a(f"v_lshlrev_b32 v{T+1}, 7, v{T+1}")
        a(f"v_bfe_u32 v{T+2}, v{T}, 1, 3")
        a(f"v_lshrrev_b32 v{T+3}, 5, v1")
        a(f"v_xor_b32 v{T+2}, v{T+2}, v{T+3}")
        for j in range(4):
            a(f"v_xor_b32 v{self.V_AA+j}, {2*j}, v{T+2}")
            a(f"v_lshlrev_b32 v{self.V_AA+j}, 4, v{self.V_AA+j}")
            a(f"v_add_u32 v{self.V_AA+j}, v{self.V_AA+j}, v{T+1}")
        a(f"v_and_b32 v{T+4}, 15, v1")
        a(f"v_lshrrev_b32 v{T+5}, 2, v{T+4}")
        a(f"v_lshlrev_b32 v{T+6}, 3, v{T+3}")
        a(f"v_add_u32 v{T+6}, v{T+6}, v{T+5}")
        a(f"v_lshlrev_b32 v{T+6}, 8, v{T+6}")
        a(f"v_bfe_u32 v{T+7}, v1, 4, 1")
        a(f"v_lshlrev_b32 v{T+7}, 1, v{T+7}")
        a(f"v_bfe_u32 v{T+8}, v1, 1, 1")
        a(f"v_add_u32 v{T+7}, v{T+7}, v{T+8}")
        a(f"s_lshl_b32 s{S_T0}, s{S_WN}, 3")
        a(f"s_lshl_b32 s{S_T1}, s{S_WM}, 2")
        a(f"s_add_u32 s{S_T0}, s{S_T0}, s{S_T1}")
        a(f"v_add_u32 v{T+7}, s{S_T0}, v{T+7}")
        a(f"v_lshlrev_b32 v{T+5}, 2, v{T+5}")
        a(f"v_xor_b32 v{T+7}, v{T+7}, v{T+5}")
        a(f"v_lshlrev_b32 v{T+7}, 4, v{T+7}")
        a(f"v_and_b32 v{T+8}, 1, v1")
        a(f"v_lshlrev_b32 v{T+8}, 3, v{T+8}")
        a(f"v_add_u32 v{T+6}, v{T+6}, v{T+7}")
        a(f"v_add_u32 v{T+6}, v{T+6}, v{T+8}")
        a(f"v_add_u32 v{self.V_AWA}, 16384, v{T+6}")
        a(f"v_xor_b32 v{self.V_AWB}, 64, v{self.V_AWA}")
        a(f"v_and_b32 v{T}, 15, v1")
        a(f"v_bfe_u32 v{T+1}, v1, 4, 1")
        a(f"v_cmp_eq_u32 vcc, v{T}, v{T+1}")
        a(f"v_mov_b32 v{T+2}, 0x3f803f80")
        a(f"s_nop 1")
        a(f"v_cndmask_b32 v{self.V_CSA}, 0, v{T+2}, vcc")
        for r in range(1, 4):
            a(f"v_mov_b32 v{self.V_CSA+r}, v{self.V_CSA}")
        for r in range(4):
            a(f"v_mov_b32 v{self.V_CSD+r}, 0")
        for r in range(64):
            a(f"v_mov_b32 v{self.V_ACC+r}, 0")

    def g1_read1(self, j, q):
        if "noreads" in self.opt: return
        a = self.a
        F = self.V_FR + 16*j
        if q == 0: a(f"ds_read_b128 v[{F}:{F+3}], v{self.V_AA+j}")
        elif q == 1: a(f"ds_read_b128 v[{F+4}:{F+7}], v{self.V_AA+j} offset:4096")
        else:
            ad = (self.V_AWA if q == 2 else self.V_AWB) if j != 3 else (self.V_AW2A if q == 2 else self.V_AW2B)
            R = F + 8 + 4*(q-2)
            a(f"ds_read_b64_tr_b16 v[{R}:{R+1}], v{ad} offset:{4096*j}")
            a(f"ds_read_b64_tr_b16 v[{R+2}:{R+3}], v{ad} offset:{4096*j+1024}")

    def g1_mfma1(self, j, orient, tt, q):
        if "nomfma" in self.opt: return
        a = self.a
        F = self.V_FR + 16*j
        X = f"v[{F+4*tt}:{F+4*tt+3}]"; W = f"v[{F+8+4*q}:{F+11+4*q}]"
        A = self.V_ACC + 16*(2*tt+q)
        D = f"v[{A}:{A+15}]"
        if orient == "T": a(f"v_mfma_f32_32x32x16_bf16 {D}, {W}, {X}, {D}")
        else:             a(f"v_mfma_f32_32x32x16_bf16 {D}, {X}, {W}, {D}")

    def g1_colsum(self, j):
        if "nostats" in self.opt: return
        F = self.V_FR + 16*j; D = self.V_CSD
        self.a(f"v_mfma_f32_16x16x32_bf16 v[{D}:{D+3}], v[{self.V_CSA}:{self.V_CSA+3}], v[{F+8}:{F+11}], v[{D}:{D+3}]")

    def g1_adv(self):
        a = self.a
        for r in list(range(self.V_AA, self.V_AA+4)) + [self.V_AWA, self.V_AWB]:
            a(f"v_add_u32 v{r}, s{S_DELTA}, v{r}")

    def g1_cstep(self, j, orient, rset, fill=((), (), (), ())):
        a = self.a
        order = (2, 0, 1, 3)
        cp = getattr(self, "cprof", False)
        if cp: a(f"s_memtime s[{72+4*j}:{73+4*j}]")
        a(f"s_waitcnt lgkmcnt(12)")
        if cp: a(f"s_memtime s[{74+4*j}:{75+4*j}]")
        for k, (tt, q) in enumerate(((0, 0), (1, 0), (0, 1), (1, 1))):
            self.g1_mfma1(j, orient, tt, q)
            if k == 0: self.g1_colsum(j)
            self.g1_read1(rset, order[k])
            for f in fill[k]: a(f)

    def g1_compute(self, orient, tag, presetup=False):
        a = self.a
        if not presetup: self.g1_setup_compute()
        AA = self.V_AA
        a(f"v_mov_b32 v{self.V_AW2A}, v{self.V_AWA}")
        a(f"v_mov_b32 v{self.V_AW2B}, v{self.V_AWB}")
        a(f"s_barrier")
        self.stamp(self.st1)
        for j in range(3):
            for q in (2, 0, 1, 3): self.g1_read1(j, q)
        DA, DB = S_DELTA, S_T5
        a(f"s_mov_b32 s{S_CNT}, 0")
        a(f"s_mov_b32 s{S_RSLOT}, 1")
        a(f"s_mov_b32 s{DA}, 32768")
        a(f"v_add_u32 v{AA}, s{DA}, v{AA}")
        a(f"v_add_u32 v{AA+1}, s{DA}, v{AA+1}")
        wrap = hex((-(self.NSLOT-1)*32768) & 0xffffffff)
        L1 = f"L_{tag}_cloop"
        a(f".p2align 5")
        a.put(L1)
        self.g1_cstep(0, orient, 3, ((f"v_add_u32 v{AA+2}, s{DA}, v{AA+2}",), (f"v_add_u32 v{self.V_AWA}, s{DA}, v{self.V_AWA}",),
                                     (f"v_add_u32 v{self.V_AWB}, s{DA}, v{self.V_AWB}",), ()))
        a(f"s_barrier")
        self.g1_cstep(1, orient, 0, ((f"v_add_u32 v{AA+3}, s{DA}, v{AA+3}", f"s_cmp_eq_u32 s{S_RSLOT}, {self.NSLOT-1}"),
                                     (f"s_mov_b32 s{DB}, 32768", f"s_cselect_b32 s{DB}, {wrap}, s{DB}"),
                                     (f"v_mov_b32 v{self.V_AW2A}, v{self.V_AWA}", f"s_cselect_b32 s{S_RSLOT}, -1, s{S_RSLOT}"),
                                     (f"v_mov_b32 v{self.V_AW2B}, v{self.V_AWB}", f"s_add_u32 s{S_RSLOT}, s{S_RSLOT}, 1")))
        wf = ()
        if getattr(self, "warm_fill", False):
            wf = (f"s_cmp_eq_u32 s{S_CNT}, 3", f"s_cselect_b32 s{self.S_WRMD}, s{self.S_WRM}, s{S_OOB}", f"buffer_load_dword v253, v{self.V_WRM}, s[{SRD_T}:{SRD_T+3}], s{self.S_WRMD} offen")
        self.g1_cstep(2, orient, 1, ((f"v_add_u32 v{AA}, s{DB}, v{AA}",), (f"s_add_u32 s{S_CNT}, s{S_CNT}, 1",), wf, ()))
        self.g1_cstep(3, orient, 2, ((f"v_add_u32 v{AA+1}, s{DB}, v{AA+1}",), (f"s_mov_b32 s{DA}, s{DB}",), (f"s_cmp_lt_u32 s{S_CNT}, 10",), ()))
        a(f"s_cbranch_scc1 {L1}")
        a(f"s_waitcnt lgkmcnt(0)")
        a(f"v_mbcnt_lo_u32_b32 v1, -1, 0")
        a(f"v_mbcnt_hi_u32_b32 v1, -1, v1")
        T = self.V_FR
        a(f"s_lshl_b32 s{S_T0}, s{S_WN}, 8")
        a(f"s_lshl_b32 s{S_T1}, s{S_WM}, 7")
        a(f"s_add_u32 s{S_T0}, s{S_T0}, s{S_T1}")
        a(f"s_add_u32 s{S_T0}, s{S_T0}, {LDS_STATS+ST_CS}")
        a(f"v_lshlrev_b32 v{T}, 2, v1")
        a(f"v_add_u32 v{T}, s{S_T0}, v{T}")
        a(f"s_nop 4")
        a(f"s_mov_b64 exec, 0xffff")
        a(f"ds_write_b32 v{T}, v{self.V_CSD}")
        a(f"ds_write_b32 v{T}, v{self.V_CSD+1} offset:64")
        a(f"s_mov_b64 exec, -1")
        a(f"s_waitcnt lgkmcnt(0)")
        a(f"s_barrier")

    def magic_div5(self, dst, src):
        self.a(f"v_mul_u32_u24 v{dst}, 52429, v{src}")
        self.a(f"v_lshrrev_b32 v{dst}, 18, v{dst}")
    def magic_div20(self, dst, src):
        self.a(f"v_mul_u32_u24 v{dst}, 52429, v{src}")
        self.a(f"v_lshrrev_b32 v{dst}, 20, v{dst}")

    def epi_T_common(self):
        a = self.a
        T = self.V_T; CSR = self.V_FR
        a(f"v_and_b32 v{T}, 31, v1")
        a(f"s_lshl_b32 s{S_T0}, s{S_WM}, 6")
        a(f"v_add_u32 v{T+1}, s{S_T0}, v{T}")
        a(f"v_lshlrev_b32 v{T+1}, 2, v{T+1}")
        a(f"v_add_u32 v{T+1}, {LDS_STATS}, v{T+1}")
        a(f"ds_read_b32 v{T+2}, v{T+1} offset:{ST_AA}")
        a(f"ds_read_b32 v{T+3}, v{T+1} offset:{ST_BB}")
        a(f"ds_read_b32 v{T+4}, v{T+1} offset:{ST_AA+128}")
        a(f"ds_read_b32 v{T+5}, v{T+1} offset:{ST_BB+128}")
        a(f"v_lshrrev_b32 v{T+6}, 5, v1")
        a(f"s_lshl_b32 s{S_T0}, s{S_WN}, 8")
        a(f"s_lshl_b32 s{S_T1}, s{S_WM}, 7")
        a(f"s_add_u32 s{S_T0}, s{S_T0}, s{S_T1}")
        a(f"s_add_u32 s{S_T0}, s{S_T0}, {LDS_STATS+ST_CS}")
        a(f"v_lshlrev_b32 v{T+7}, 4, v{T+6}")
        a(f"v_add_u32 v{T+7}, s{S_T0}, v{T+7}")
        a(f"v_xor_b32 v{T+1}, 128, v{T+7}")
        for g in range(4):
            a(f"ds_read_b128 v[{CSR+4*g}:{CSR+4*g+3}], v{T+7} offset:{32*g}")
        for g in range(4):
            a(f"ds_read_b128 v[{CSR+16+4*g}:{CSR+16+4*g+3}], v{T+1} offset:{32*g}")

    def p1_epi_T(self):
        a = self.a
        T = self.V_T; A = self.V_ACC; CSR = self.V_FR
        self.epi_T_common()
        a(f"s_cmp_lt_u32 s{S_NT}, 5")
        a(f"s_cselect_b32 s{S_T0}, {hex(f32(math.log2(math.e)/math.sqrt(20.0)))}, 1.0")
        self.csel(S_T1, 81920, 163840)
        self.csel(S_T2, 1280, 2560)
        a(f"s_cselect_b32 s{S_T3}, 0, 5")
        self.csel(S_T4, hex(OFF_Q), hex(OFF_KV))
        self.csel(S_T5, hex(SZ_Q), hex(SZ_KV))
        a(f"s_add_u32 s{SRD_O}, s{S_WS}, s{S_T4}")
        a(f"s_addc_u32 s{SRD_O+1}, s{S_WS+1}, 0")
        a(f"s_mov_b32 s{SRD_O+2}, s{S_T5}")
        a(f"s_mov_b32 s{SRD_O+3}, 0x20000")
        a(f"s_sub_u32 s{S_T3}, s{S_NT}, s{S_T3}")
        a(f"s_lshl_b32 s{S_T3}, s{S_T3}, 5")
        a(f"s_lshl_b32 s{S_T4}, s{S_WN}, 4")
        a(f"s_add_u32 s{S_T3}, s{S_T3}, s{S_T4}")
        a(f"s_lshl_b32 s{S_T4}, s{S_WM}, 3")
        AD = T + 8
        for q in range(2):
            for g in range(4):
                if q == 0:
                    a(f"s_add_u32 s{S_T5}, s{S_T3}, s{S_T4}")
                else:
                    a(f"s_xor_b32 s{S_T5}, s{S_T4}, 8")
                    a(f"s_add_u32 s{S_T5}, s{S_T5}, s{S_T3}")
                a(f"s_add_u32 s{S_T5}, s{S_T5}, {2*g}")
                a(f"v_add_u32 v{T+16}, s{S_T5}, v{T+6}")
                self.magic_div5(T+17, T+16)
                a(f"v_mul_u32_u24 v{T+18}, 5, v{T+17}")
                a(f"v_sub_u32 v{T+18}, v{T+16}, v{T+18}")
                a(f"v_mul_lo_u32 v{T+17}, v{T+17}, s{S_T1}")
                a(f"v_lshlrev_b32 v{T+18}, 8, v{T+18}")
                a(f"v_add_u32 v{T+17}, v{T+17}, v{T+18}")
                a(f"v_lshl_add_u32 v{AD+4*q+g}, v{T}, 3, v{T+17}")
        a(f"s_lshl_b32 s{S_T4}, s{S_MT}, 2")
        a(f"s_lshl_b32 s{S_T5}, s{S_WM}, 1")
        a(f"s_add_u32 s{S_T4}, s{S_T4}, s{S_T5}")
        a(f"s_mul_i32 s{S_T4}, s{S_T4}, s{S_T2}")
        a(f"s_add_u32 s{S_T5}, s{S_T4}, s{S_T2}")
        a(f"s_waitcnt lgkmcnt(0)")
        for tt in range(2):
            a(f"v_mul_f32 v{T+2+2*tt}, s{S_T0}, v{T+2+2*tt}")
            a(f"v_mul_f32 v{T+3+2*tt}, s{S_T0}, v{T+3+2*tt}")
        for tt in range(2):
            for q in range(2):
                for g in range(4):
                    for i in range(4):
                        r = A + 16*(2*tt+q) + 4*g + i
                        a(f"v_mul_f32 v{r}, v{T+2+2*tt}, v{r}")
                        a(f"v_fmac_f32 v{r}, v{T+3+2*tt}, v{CSR+16*q+4*g+i}")
                    r = A + 16*(2*tt+q) + 4*g
                    a(f"v_cvt_pk_bf16_f32 v{r}, v{r}, v{r+1}")
                    a(f"v_cvt_pk_bf16_f32 v{r+1}, v{r+2}, v{r+3}")
                    a(f"buffer_store_dwordx2 v[{r}:{r+1}], v{AD+4*q+g}, s[{SRD_O}:{SRD_O+3}], s{S_T4+tt} offen sc1")

    def p1_epi_N(self):
        a = self.a
        T = self.V_T; A = self.V_ACC
        AB = self.V_FR; BB = self.V_FR + 16
        a(f"v_and_b32 v{T}, 31, v1")
        a(f"v_lshrrev_b32 v{T+6}, 5, v1")
        a(f"s_lshl_b32 s{S_T0}, s{S_WM}, 8")
        a(f"v_lshlrev_b32 v{T+4}, 4, v{T+6}")
        a(f"v_add_u32 v{T+4}, s{S_T0}, v{T+4}")
        a(f"v_add_u32 v{T+4}, {LDS_STATS}, v{T+4}")
        a(f"s_mov_b32 s{S_T2}, 163840")
        for q in range(2):
            a(f"s_xor_b32 s{S_T0}, s{S_WM}, {q}")
            a(f"s_lshl_b32 s{S_T0}, s{S_T0}, 5")
            a(f"s_lshl_b32 s{S_T1}, s{S_WN}, 6")
            a(f"s_add_u32 s{S_T0}, s{S_T0}, s{S_T1}")
            a(f"v_add_u32 v{T+1}, s{S_T0}, v{T}")
            a(f"v_lshlrev_b32 v{T+2}, 2, v{T+1}")
            a(f"v_add_u32 v{T+2}, {LDS_STATS+ST_CS}, v{T+2}")
            a(f"ds_read_b32 v{T+10+q}, v{T+2}")
            a(f"s_sub_u32 s{S_T1}, s{S_NT}, 10")
            a(f"s_lshl_b32 s{S_T1}, s{S_T1}, 7")
            a(f"v_add_u32 v{T+7}, s{S_T1}, v{T+1}")
            self.magic_div20(T+8, T+7)
            a(f"v_mul_u32_u24 v{T+9}, 20, v{T+8}")
            a(f"v_sub_u32 v{T+9}, v{T+7}, v{T+9}")
            a(f"v_mul_lo_u32 v{T+8}, v{T+8}, s{S_T2}")
            a(f"v_lshlrev_b32 v{T+9}, 4, v{T+9}")
            a(f"v_add_u32 v{T+8}, v{T+8}, v{T+9}")
            a(f"v_mul_u32_u24 v{T+9}, 320, v{T+6}")
            a(f"v_add_u32 v{T+8}, v{T+8}, v{T+9}")
            a(f"v_add_u32 v{T+12+q}, 1280, v{T+8}")
        self.srd(SRD_O, S_WS, OFF_KV, SZ_KV)
        a(f"s_lshl_b32 s{S_T4}, s{S_MT}, 2")
        a(f"s_lshl_b32 s{S_T5}, s{S_WM}, 1")
        a(f"s_add_u32 s{S_T4}, s{S_T4}, s{S_T5}")
        a(f"s_mul_i32 s{S_T4}, s{S_T4}, 2560")
        a(f"s_add_u32 s{S_T5}, s{S_T4}, 2560")
        for tt in range(2):
            for g in range(4):
                a(f"ds_read_b128 v[{AB+4*g}:{AB+4*g+3}], v{T+4} offset:{ST_AA + 128*tt + 32*g}")
                a(f"ds_read_b128 v[{BB+4*g}:{BB+4*g+3}], v{T+4} offset:{ST_BB + 128*tt + 32*g}")
            a(f"s_waitcnt lgkmcnt(0)")
            for q in range(2):
                for r in range(16):
                    R = A + 16*(2*tt+q) + r
                    a(f"v_mul_f32 v{R}, v{AB+r}, v{R}")
                    a(f"v_fmac_f32 v{R}, v{BB+r}, v{T+10+q}")
                for st in range(2):
                    R = A + 16*(2*tt+q) + 8*st
                    for z in range(4):
                        a(f"v_cvt_pk_bf16_f32 v{R+z}, v{R+2*z}, v{R+2*z+1}")
                    a(f"buffer_store_dwordx4 v[{R}:{R+3}], v{T+12+q}, s[{SRD_O}:{SRD_O+3}], s{S_T4+tt} offen offset:{640*st} sc1")

    def relayout_unit(self):
        pass

    def rl_unit(self):
        a = self.a
        a(f"s_lshl_b32 s{S_T0}, s2, 2")
        a(f"s_and_b32 s{S_T5}, s{S_W}, 3")
        a(f"s_add_u32 s{S_T0}, s{S_T0}, s{S_T5}")

    def rl_src(self, srd):
        a = self.a
        self.rl_unit()
        a(f"s_cmp_lt_u32 s{S_T0}, 540")
        a(f"s_cselect_b32 s{S_T1}, 0, 540")
        a(f"s_cselect_b32 s{srd}, s{S_W2}, s{S_WO}")
        a(f"s_cselect_b32 s{srd+1}, s{S_W2+1}, s{S_WO+1}")
        self.csel(srd+2, 1728*1280, 640*1280)
        a(f"s_mov_b32 s{srd+3}, 0x20000")
        a(f"s_sub_u32 s{S_T1}, s{S_T0}, s{S_T1}")
        a(f"s_mul_hi_u32 s{S_T2}, s{S_T1}, {hex((2**32+9)//10)}")
        a(f"s_mul_i32 s{S_T3}, s{S_T2}, 10")
        a(f"s_sub_u32 s{S_T3}, s{S_T1}, s{S_T3}")
        a(f"s_mul_i32 s{S_T2}, s{S_T2}, {32*1280}")
        a(f"s_lshl_b32 s{S_T3}, s{S_T3}, 7")
        a(f"s_add_u32 s{S_T2}, s{S_T2}, s{S_T3}")
        a(f"s_cmp_ge_u32 s{S_T0}, 740")
        a(f"s_cselect_b32 s{S_T2}, 0x70000000, s{S_T2}")

    def relayout_load(self):
        a = self.a
        T = self.V_T
        self.rl_src(SRD_T)
        a(f"v_lshrrev_b32 v{T}, 3, v1")
        a(f"v_mul_u32_u24 v{T}, 1280, v{T}")
        a(f"v_and_b32 v{T+1}, 7, v1")
        a(f"v_lshl_add_u32 v{T}, v{T+1}, 4, v{T}")
        a(f"s_lshl_b32 s{S_T3}, s{S_T5}, 12")
        a(f"s_add_u32 m0, s{S_T3}, {LDS_RL}")
        for jj in range(4):
            a(f"s_nop 0")
            a(f"buffer_load_dwordx4 v{T}, s[{SRD_T}:{SRD_T+3}], s{S_T2} offen lds")
            if jj < 3:
                a(f"s_add_u32 m0, m0, 1024")
                a(f"s_add_u32 s{S_T2}, s{S_T2}, {8*1280}")

    def relayout_warm_setup(self):
        a = self.a
        V = self.V_WRM
        self.rl_src(SRD_T)
        a(f"s_mov_b32 s{self.S_WRM}, s{S_T2}")
        a(f"s_mov_b32 s{S_OOB}, 0x70000000")
        a(f"v_mul_u32_u24 v{V}, 1280, v1")
        a(f"v_cmp_gt_u32 vcc, 32, v1")
        a(f"v_mov_b32 v{V-1}, 0x7f000000")
        a(f"s_nop 0")
        a(f"v_cndmask_b32 v{V}, v{V-1}, v{V}, vcc")

    def relayout_store(self):
        a = self.a
        T = self.V_T
        Lskip = "L_rl_skip2"
        self.rl_unit()
        a(f"s_cmp_ge_u32 s{S_T0}, 740")
        a(f"s_cbranch_scc1 {Lskip}")
        a(f"s_cmp_lt_u32 s{S_T0}, 540")
        a(f"s_cselect_b32 s{S_T1}, 0, 540")
        self.csel(S_T4, hex(OFF_W2P), hex(OFF_WOP))
        self.csel(S_T3, hex(SZ_W2P), hex(SZ_WOP))
        a(f"s_mov_b32 s{SRD_T+2}, s{S_T3}")
        a(f"s_sub_u32 s{S_T1}, s{S_T0}, s{S_T1}")
        a(f"s_add_u32 s{SRD_T}, s{S_WS}, s{S_T4}")
        a(f"s_addc_u32 s{SRD_T+1}, s{S_WS+1}, 0")
        a(f"s_mov_b32 s{SRD_T+3}, 0x20000")
        a(f"s_mul_hi_u32 s{S_T2}, s{S_T1}, {hex((2**32+9)//10)}")
        a(f"s_mul_i32 s{S_T3}, s{S_T2}, 10")
        a(f"s_sub_u32 s{S_T3}, s{S_T1}, s{S_T3}")
        a(f"s_mul_i32 s{S_T2}, s{S_T2}, 40")
        a(f"s_lshl_b32 s{S_T3}, s{S_T3}, 2")
        a(f"s_add_u32 s{S_T2}, s{S_T2}, s{S_T3}")
        a(f"s_lshl_b32 s{S_T2}, s{S_T2}, 10")
        a(f"v_lshrrev_b32 v{T}, 4, v1")
        a(f"v_lshlrev_b32 v{T}, 3, v{T}")
        a(f"v_bfe_u32 v{T+1}, v1, 2, 2")
        a(f"v_add_u32 v{T}, v{T}, v{T+1}")
        a(f"v_lshlrev_b32 v{T}, 7, v{T}")
        a(f"v_and_b32 v{T+1}, 3, v1")
        a(f"v_lshl_add_u32 v{T}, v{T+1}, 3, v{T}")
        a(f"s_lshl_b32 s{S_T3}, s{S_T5}, 12")
        a(f"s_add_u32 s{S_T3}, s{S_T3}, {LDS_RL}")
        a(f"v_add_u32 v{T}, s{S_T3}, v{T}")
        a(f"v_lshlrev_b32 v{T+1}, 4, v1")
        O = T + 4
        for tq in range(4):
            a(f"ds_read_b64_tr_b16 v[{O+4*tq}:{O+4*tq+1}], v{T} offset:{32*tq}")
            a(f"ds_read_b64_tr_b16 v[{O+4*tq+2}:{O+4*tq+3}], v{T} offset:{32*tq+512}")
        a(f"s_waitcnt lgkmcnt(0)")
        for tq in range(4):
            a(f"buffer_store_dwordx4 v[{O+4*tq}:{O+4*tq+3}], v{T+1}, s[{SRD_T}:{SRD_T+3}], s{S_T2} offen offset:{1024*tq} sc1")
        a.put(Lskip)

    def p1(self):
        a = self.a
        a(f"s_and_b32 s{S_T0}, s{S_GX}, 3")
        a(f"s_lshl_b32 s{S_T0}, s{S_T0}, 2")
        a(f"s_and_b32 s{S_T1}, s{S_GI}, 3")
        a(f"s_add_u32 s{S_MT}, s{S_T0}, s{S_T1}")
        a(f"s_lshr_b32 s{S_T0}, s{S_GX}, 2")
        a(f"s_lshl_b32 s{S_T0}, s{S_T0}, 3")
        a(f"s_lshr_b32 s{S_T2}, s{S_GI}, 2")
        a(f"s_add_u32 s{S_NT}, s{S_T0}, s{S_T2}")
        a(f"s_lshl_b32 s{S_T1}, s{S_T1}, 1")
        a(f"s_add_u32 s{S_RLW}, s{S_T1}, s{S_T2}")
        a(f"s_and_b32 s{S_RLW}, s{S_RLW}, 7")
        a(f"s_mov_b32 s{S_KK}, 0")
        self.aux_A = ""
        self.st1 = 1
        a(f"s_cmp_lt_u32 s{S_W}, 4")
        a(f"s_cbranch_scc1 L_p1_compute")
        self.g1_setup_loader(3840)
        a(f"s_waitcnt lgkmcnt(0)")
        if "p1s" in self.opt: self.stamp(15)
        self.srd(SRD_A, S_X, 0, 2048*1280)
        self.srd(SRD_W, S_WQKV, 0, 640*3840)
        a(f"s_load_dword s{S_TAG}, s[{S_WS}:{S_WS+1}], {OFF_EPOCH}")
        a(f"s_cmp_ge_u32 s{S_NT}, 15")
        a(f"s_cbranch_scc1 L_p1_lnull")
        self.g1_dma_stage(3840)
        if "p1s" in self.opt: self.stamp(16)
        self.g1_dma_stage(3840)
        if "norot" not in self.opt: a(f"s_add_u32 s{S_KK}, s{S_RLW}, 2")
        self.srd(SRD_F, S_WS, 0, 0x100000)
        if "p1s" in self.opt: self.stamp(17)
        self.g1_loader(3840, "p1", "gran")
        a(f"s_branch L_p1_lj")
        a.put("L_p1_lnull")
        self.srd(SRD_F, S_WS, 0, 0x100000)
        self.tag_ready()
        self.relayout_load()
        a.put("L_p1_lj")
        a(f"s_waitcnt vmcnt(0)")
        self.relayout_store()
        a(f"s_branch L_p1_done")
        a.put("L_p1_compute")
        if "nowarm" not in self.opt: self.code_warm()
        a(f"s_waitcnt lgkmcnt(0)")
        a(f"s_load_dword s{S_TAG}, s[{S_WS}:{S_WS+1}], {OFF_EPOCH}")
        self.srd(SRD_F, S_WS, 0, 0x100000)
        D = self.xstats_publish()
        self.relayout_warm_setup()
        self.xstats_finish(D)
        a(f"s_cmp_ge_u32 s{S_NT}, 15")
        a(f"s_cbranch_scc1 L_p1_done")
        a(f"s_cmp_ge_u32 s{S_NT}, 10")
        a(f"s_cbranch_scc1 L_p1_N")
        self.warm_fill = True
        self.g1_compute("T", "p1T")
        self.stamp(2)
        self.p1_epi_T()
        a(f"s_branch L_p1_done")
        a.put("L_p1_N")
        self.g1_compute("N", "p1N")
        self.warm_fill = False
        self.stamp(2)
        self.p1_epi_N()
        a.put("L_p1_done")
        self.stamp(3)
        a(f"s_waitcnt vmcnt(0)")
        self.stamp(4)

    def poll(self, addr_regs, masks, tagname):
        a = self.a
        T = self.V_S - 8
        L = f"L_{tagname}_poll"; Lo = f"L_{tagname}_pollok"
        a(f"s_mov_b32 s{S_T0}, 0")
        a.put(L)
        for k, (ar, mk) in enumerate(zip(addr_regs, masks)):
            self.set_exec(mk)
            a(f"buffer_load_dword v{T+20+k}, v{ar}, s[{SRD_F}:{SRD_F+3}], 0 offen sc1")
        a(f"s_waitcnt vmcnt(0)")
        a(f"s_mov_b64 s[{S_SAVE}:{S_SAVE+1}], 0")
        for k, (ar, mk) in enumerate(zip(addr_regs, masks)):
            self.set_exec(mk)
            a(f"v_cmp_ne_u32 vcc, s{S_TAG}, v{T+20+k}")
            a(f"s_or_b64 s[{S_SAVE}:{S_SAVE+1}], s[{S_SAVE}:{S_SAVE+1}], vcc")
        a(f"s_mov_b64 exec, -1")
        a(f"s_cmp_eq_u64 s[{S_SAVE}:{S_SAVE+1}], 0")
        a(f"s_cbranch_scc1 {Lo}")
        a(f"s_add_u32 s{S_T0}, s{S_T0}, 1")
        a(f"s_cmp_lt_u32 s{S_T0}, 0x40000")
        a(f"s_cbranch_scc1 {L}")
        a.put(Lo)

    def p1_signal(self):
        a = self.a
        T = self.V_S
        a(f"s_waitcnt vmcnt(0) lgkmcnt(0)")
        a(f"s_barrier")
        Ls = "L_p1sig_skip"
        a(f"s_cmp_lg_u32 s{S_W}, {self.POLLW}")
        a(f"s_cbranch_scc1 {Ls}")
        a(f"v_lshrrev_b32 v{T}, 3, v1")
        a(f"v_and_b32 v{T+1}, 7, v1")
        Ln = "L_p1sig_null"; Lj = "L_p1sig_join"
        a(f"s_cmp_eq_u32 s{S_NT}, 15")
        a(f"s_cbranch_scc1 {Ln}")
        a(f"s_cmp_ge_u32 s{S_NT}, 10")
        a(f"s_cselect_b32 s{S_T0}, 10, 5")
        a(f"s_cmp_lt_u32 s{S_NT}, 5")
        a(f"s_cselect_b32 s{S_T0}, 0, s{S_T0}")
        a(f"s_sub_u32 s{S_T0}, s{S_NT}, s{S_T0}")
        a(f"s_lshl_b32 s{S_T0}, s{S_T0}, 7")
        a(f"s_mul_i32 s{S_T1}, s{S_T0}, 52429")
        a(f"s_lshr_b32 s{S_T1}, s{S_T1}, 20")
        a(f"s_add_u32 s{S_T2}, s{S_T0}, 127")
        a(f"s_mul_i32 s{S_T2}, s{S_T2}, 52429")
        a(f"s_lshr_b32 s{S_T2}, s{S_T2}, 20")
        a(f"s_min_u32 s{S_T2}, s{S_T2}, 31")
        a(f"v_add_u32 v{T+2}, s{S_T1}, v{T}")
        a(f"v_cmp_ge_u32 vcc, s{S_T2}, v{T+2}")
        a(f"s_mov_b64 s[{S_SAVE}:{S_SAVE+1}], vcc")
        a(f"s_cmp_lt_u32 s{S_NT}, 5")
        a(f"s_cbranch_scc0 {Lj}")
        a(f"s_lshr_b32 s{S_T3}, s{S_MT}, 1")
        a(f"v_cmp_eq_u32 vcc, s{S_T3}, v{T+1}")
        a(f"s_and_b64 s[{S_SAVE}:{S_SAVE+1}], s[{S_SAVE}:{S_SAVE+1}], vcc")
        a(f"s_branch {Lj}")
        a.put(Ln)
        a(f"v_lshlrev_b32 v{T+2}, 4, v{T}")
        a(f"v_add_u32 v{T+2}, s{S_MT}, v{T+2}")
        a(f"v_cmp_gt_u32 vcc, 2, v{T}")
        a(f"s_mov_b64 s[{S_SAVE}:{S_SAVE+1}], vcc")
        a.put(Lj)
        a(f"v_and_b32 v{T+4}, 3, v{T+2}")
        a(f"v_lshl_add_u32 v{T+4}, v{T+1}, 2, v{T+4}")
        a(f"v_lshrrev_b32 v{T+2}, 2, v{T+2}")
        a(f"v_lshl_add_u32 v{T+2}, v{T+4}, 3, v{T+2}")
        a(f"v_lshlrev_b32 v{T+2}, 10, v{T+2}")
        a(f"s_lshl_b32 s{S_T0}, s2, 2")
        a(f"s_add_u32 s{S_T0}, s{S_T0}, {OFF_MB1}")
        a(f"v_add_u32 v{T+2}, s{S_T0}, v{T+2}")
        a(f"v_mov_b32 v{T+3}, s{S_TAG}")
        a(f"s_mov_b64 exec, s[{S_SAVE}:{S_SAVE+1}]")
        a(f"buffer_store_dword v{T+3}, v{T+2}, s[{SRD_F}:{SRD_F+3}], 0 offen sc1")
        a(f"s_mov_b64 exec, 1")
        a(f"s_lshl_b32 s{S_T0}, s2, 2")
        a(f"s_add_u32 s{S_T0}, s{S_T0}, {OFF_ALL}")
        a(f"v_mov_b32 v{T+5}, s{S_T0}")
        a(f"s_add_u32 s{S_T1}, s{S_TAG}, s{S_XCC}")
        a(f"v_mov_b32 v{T+6}, s{S_T1}")
        a(f"buffer_store_dword v{T+6}, v{T+5}, s[{SRD_F}:{SRD_F+3}], 0 offen sc1")
        a(f"s_mov_b64 exec, -1")
        a.put(Ls)

    def finish_tag_once(self):
        a = self.a
        a(f"s_mul_i32 s{S_TAG}, s{S_TAG}, 0x9E3779B1")
        a(f"s_add_u32 s{S_TAG}, s{S_TAG}, 0x7F4A7C15")

    def p2_wait(self):
        a = self.a
        T = self.V_S
        Ls = "L_p2w_skip"
        a(f"s_cmp_lg_u32 s{S_W}, {self.POLLW}")
        a(f"s_cbranch_scc1 {Ls}")
        a(f"s_mul_i32 s{S_T1}, s{S_HEAD}, 20")
        a(f"v_bfe_u32 v{T}, v1, 4, 1")
        a(f"v_mul_u32_u24 v{T}, 19, v{T}")
        a(f"v_add_u32 v{T}, s{S_T1}, v{T}")
        a(f"v_lshrrev_b32 v{T}, 7, v{T}")
        a(f"v_lshrrev_b32 v{T+1}, 5, v1")
        a(f"v_mul_u32_u24 v{T+1}, 5, v{T+1}")
        a(f"v_add_u32 v{T+2}, v{T}, v{T+1}")
        a(f"v_add_u32 v{T+2}, 5, v{T+2}")
        a(f"v_and_b32 v{T+3}, 15, v1")
        self.vprod(T+4, T+3, T+2, T+10)
        a(f"v_bfe_u32 v{T}, v1, 1, 1")
        a(f"v_mul_u32_u24 v{T}, 19, v{T}")
        a(f"v_add_u32 v{T}, s{S_T1}, v{T}")
        a(f"v_lshrrev_b32 v{T+2}, 7, v{T}")
        a(f"v_and_b32 v{T+3}, 1, v1")
        a(f"s_lshl_b32 s{S_T2}, s{S_QB}, 1")
        a(f"v_add_u32 v{T+3}, s{S_T2}, v{T+3}")
        a(f"v_cmp_eq_u32 vcc, 4, v1")
        a(f"s_and_b32 s{S_T2}, s{S_HEAD}, 15")
        a(f"v_mov_b32 v{T+6}, s{S_T2}")
        a(f"v_mov_b32 v{T+7}, 15")
        a(f"v_cndmask_b32 v{T+3}, v{T+3}, v{T+6}, vcc")
        a(f"v_cndmask_b32 v{T+2}, v{T+2}, v{T+7}, vcc")
        self.vprod(T+5, T+3, T+2, T+10)
        a(f"s_lshl_b32 s{S_T2}, s2, 10")
        a(f"s_add_u32 s{S_T2}, s{S_T2}, {OFF_MB1}")
        for r in (T+4, T+5):
            a(f"v_lshlrev_b32 v{r}, 2, v{r}")
            a(f"v_add_u32 v{r}, s{S_T2}, v{r}")
        self.poll([T+4, T+5], ["-1", "0x1f"], "p2w")
        a.put(Ls)
        a(f"s_barrier")

    def vprod(self, dst, mt, nt, tmp):
        a = self.a
        a(f"v_and_b32 v{dst}, 3, v{mt}")
        a(f"v_and_b32 v{tmp}, 7, v{nt}")
        a(f"v_lshl_add_u32 v{dst}, v{tmp}, 2, v{dst}")
        a(f"v_lshlrev_b32 v{dst}, 3, v{dst}")
        a(f"v_lshrrev_b32 v{tmp}, 2, v{mt}")
        a(f"v_add_u32 v{dst}, v{dst}, v{tmp}")
        a(f"v_lshrrev_b32 v{tmp}, 3, v{nt}")
        a(f"v_lshl_add_u32 v{dst}, v{tmp}, 2, v{dst}")

    def group_barrier(self, phase, tagname, tgt=None, slot=None, hook=None, local=False):
        a = self.a
        T = self.V_S
        gs = (tagname in self.opt)
        a(f"s_waitcnt vmcnt(0) lgkmcnt(0)")
        if gs: self.stamp(15)
        a(f"s_barrier")
        if gs: self.stamp(16)
        Ls = f"L_{tagname}_gskip"
        a(f"s_cmp_lg_u32 s{S_W}, {self.POLLW}")
        a(f"s_cbranch_scc1 {Ls}0")
        tgt = S_GX if tgt is None else tgt
        slot = S_GI if slot is None else slot
        a(f"v_lshlrev_b32 v{T}, 3, v1")
        a(f"v_add_u32 v{T}, s{tgt}, v{T}")
        a(f"v_lshlrev_b32 v{T}, 7, v{T}")
        a(f"s_lshl_b32 s{S_T1}, s{slot}, 2")
        a(f"s_add_u32 s{S_T1}, s{S_T1}, {OFF_GB + phase*256*128}")
        a(f"v_add_u32 v{T}, s{S_T1}, v{T}")
        a(f"v_mov_b32 v{T+1}, s{S_TAG}")
        self.set_exec(0xffffffff)
        if local:
            a(f"s_cmp_eq_u32 s{S_FAST}, 1")
            a(f"s_cbranch_scc1 {Ls}f")
            a(f"buffer_store_dword v{T+1}, v{T}, s[{SRD_F}:{SRD_F+3}], 0 offen sc1")
            a(f"s_branch {Ls}g")
            a.put(Ls + "f")
            a(f"buffer_store_dword v{T+1}, v{T}, s[{SRD_F}:{SRD_F+3}], 0 offen")
            a.put(Ls + "g")
        else:
            a(f"buffer_store_dword v{T+1}, v{T}, s[{SRD_F}:{SRD_F+3}], 0 offen sc1")
        a(f"s_mov_b64 exec, -1")
        a.put(Ls + "0")
        if hook: hook()
        if gs: self.stamp(17)
        a(f"s_cmp_lg_u32 s{S_W}, {self.POLLW}")
        a(f"s_cbranch_scc1 {Ls}")
        a(f"s_lshl_b32 s{S_T0}, s2, 7")
        a(f"s_add_u32 s{S_T0}, s{S_T0}, {OFF_GB + phase*256*128}")
        a(f"v_lshlrev_b32 v{T+2}, 2, v1")
        a(f"v_add_u32 v{T+2}, s{S_T0}, v{T+2}")
        self.poll([T+2], ["0xffffffff"], tagname)
        a.put(Ls)
        a(f"s_barrier")

    A_QA = 4; A_QB = 12
    A_K = 20
    A_V1 = 36; A_V2 = 40
    A_SA = 44; A_SB = 60; A_P = 76; A_OA = 84; A_OB = 100; A_AK = 116; A_AV = 117; A_DV = 118; A_ALLA = 119; A_T = 120; A_ALL = 132
    S_VMASK = 92
    S_NEXTB = 94; S_DSO = 95; S_LOW = 65; S_NEXTM = 69
    p2_nu = 4
    low_tiles = 1
    S_D = [6, 7, 8, 9, 16, 17]
    S_WOI = [51, 53]
    S_WOBK = 62
    S_WOM = 68
    low_pos = (3, 10, 18, 29)
    warm_slots = {'dst': 48, 'w1': 50}
    def p2_unrolled(self):
        a = self.a
        D = self.S_D
        def kv():
            a(f"s_mov_b32 m0, s{self.S_DSO}")
            a(f"s_nop 0")
            a(f"buffer_load_dwordx4 v{self.A_DV}, s[{SRD_A}:{SRD_A+3}], s{self.S_DSO} offen sc1 lds")
            a(f"s_add_u32 s{self.S_DSO}, s{self.S_DSO}, 4096")
        def w2(g):
            R = 144 + 4*g
            a(f"buffer_load_dwordx4 v[{R}:{R+3}], v{self.A_ALLA}, s[{SRD_W}:{SRD_W+3}], s{S_SW} offen {self.ld_aux}")
            a(f"s_add_u32 s{S_SW}, s{S_SW}, s{D[g % 6]}")
        def wo(idx):
            a(f"s_mov_b32 m0, s{self.S_WOB}")
            a(f"s_add_u32 s{self.S_WOB}, s{self.S_WOB}, s{self.S_WOI[1 if idx == 4 else 0]}")
            if idx >= 10:
                a(f"s_cmp_lt_u32 s{S_W}, 4")
                a(f"s_cbranch_scc1 L_wo_sk{idx}")
            a(f"buffer_load_dwordx4 v{self.A_DV}, s[{SRD_T}:{SRD_T+3}], s{self.S_WOS} offen {self.ld_aux} lds")
            if idx >= 10: a.put(f"L_wo_sk{idx}")
            a(f"s_add_u32 s{self.S_WOS}, s{self.S_WOS}, s{D[idx % 6]}")
        slot_ops = {}
        def put(x, k_, arg=None): slot_ops.setdefault(x, []).append((k_, arg))
        for i in range(5): put(8 + i, "kv")
        for i in range(6): put(24 + i, "kv")
        free = [x for x in range(13, 40) if x not in range(24, 30)]
        dbl = set(free[1::3][:7])
        g = 0
        for x in free:
            put(x, "w2", g); g += 1
            if x in dbl:
                put(x, "w2", g); g += 1
        assert g == 28, g
        for i in range(15): put(40 + i//2, "wo", i)
        for k_, x in self.warm_slots.items(): put(x, k_)
        def cnt(lo, hi):
            return sum(1 for x in range(lo, hi) for k_, _ in slot_ops.get(x, []) if k_ in ("kv", "w2", "wo"))
        lowpos = set(self.low_pos)
        noprio = "noprio" in self.opt
        if not noprio:
            a(f"s_setprio 1")
            self.p2_setprio(2, "init")
        a(f"s_nop 7"); a(f"s_nop 3")
        base = 0
        for t in range(32):
            if t == 16:
                a(f"v_add_u32 v{self.A_AK}, {16*2560}, v{self.A_AK}")
                a(f"v_add_u32 v{self.A_AV}, {16*2560}, v{self.A_AV}")
                base = 16
            if t in (4, 12, 20):
                vm = 0 if t == 4 else (cnt(13, 24) if t == 12 else cnt(30, 40))
                a(f"s_waitcnt vmcnt({vm})")
                if t == 4:
                    self.p2_check_all()
                    self.g2_wsetup(5, SRD_W, S_SW, self.A_ALLA)
                    self.p2_w2_consts()
                a(f"s_barrier")
                if not noprio: self.p2_setprio(2, f"h{t}")
                if t == 20: self.wo_setup2()
            if t in lowpos and not noprio: self.p2_setprio(0, f"l{t}")
            for st in (0, 1):
                self.p2_sub(st, t - base)
                for k_, arg in slot_ops.get(2*t + st, []):
                    self.evtag = "u"
                    if k_ == "kv": kv()
                    elif k_ == "w2":
                        if "evnow2" not in self.opt: w2(arg)
                    elif k_ == "wo":
                        if "evnowo" not in self.opt: wo(arg)
                    elif k_ == "dst":
                        if "nodstw" not in self.opt: self.dst_l2warm()
                    elif k_ == "w1":
                        if "now1w" not in self.opt: self.w1_l2warm()
                    elif k_ == "wp":
                        if "nowpw" not in self.opt: self.wp_l2warm()

    def p2_w2_consts(self):
        a = self.a
        D = self.S_D
        incB = [1024, 162816]*3
        incA = [161792, 1024, 1024]*2
        a(f"s_cmp_lt_u32 s{S_W}, 4")
        for k in range(6):
            x, y = incB[k], incA[k]
            if x == y: a(f"s_mov_b32 s{D[k]}, {x}")
            else: self.csel(D[k], x, y)
        a(f"s_cselect_b32 s{S_T0}, 0, {5*163840 - 161792}")
        a(f"s_add_u32 s{S_SW}, s{S_SW}, s{S_T0}")

    def wo_setup2(self):
        a = self.a
        D = self.S_D
        self.g2_wsetup(3, SRD_T, self.S_WOS, self.A_DV)
        self.wo_lds_base(self.S_WOB)
        a(f"s_mov_b32 s{self.S_WOBK}, s{self.S_WOB}")
        a(f"s_cmp_eq_u32 s{S_W}, 3")
        a(f"s_cselect_b32 s{self.S_WOB2}, {128000-5120}, s{self.S_WOB}")
        a(f"s_mov_b32 s{self.S_WOI[0]}, 1024")
        a(f"s_cselect_b32 s{self.S_WOI[1]}, {128000 - (46080 + 4096)}, s{self.S_WOI[0]}")
        incB = [1024, 162816]*3
        incA = [1024, 1024, 161792]*2
        a(f"s_cmp_lt_u32 s{S_W}, 4")
        for k in range(6):
            x, y = incB[k], incA[k]
            if x == y: a(f"s_mov_b32 s{D[k]}, {x}")
            else: self.csel(D[k], x, y)


    def p2_kreads(self, kb, toff):
        a = self.a
        K = self.A_K + 8*kb
        a(f"ds_read_b64 v[{K}:{K+1}], v{self.A_AK} offset:{toff}")
        a(f"ds_read_b64 v[{K+2}:{K+3}], v{self.A_AK} offset:{toff+256}")
        a(f"ds_read_b64 v[{K+4}:{K+5}], v{self.A_AK} offset:{toff+1024}")
    def p2_vread(self, which, toff):
        a = self.a
        R = self.A_V1 if which == 0 else self.A_V2
        a(f"s_mov_b64 exec, s[{self.S_VMASK}:{self.S_VMASK+1}]")
        a(f"ds_read_b128 v[{R}:{R+3}], v{self.A_AV} offset:{toff+640*which}")
        a(f"s_mov_b64 exec, -1")
    def p2_smfma(self, which, S, kb, Q):
        a = self.a
        K = self.A_K + 8*kb
        if which == 0:
            a(f"v_mfma_f32_32x32x16_bf16 v[{S}:{S+15}], v[{K}:{K+3}], v[{Q}:{Q+3}], 0")
        else:
            a(f"v_mfma_f32_32x32x16_bf16 v[{S}:{S+15}], v[{K+4}:{K+7}], v[{Q+4}:{Q+7}], v[{S}:{S+15}]")

    A_V2B = 128
    def p2_sub(self, stream, u):
        a = self.a
        P = self.A_P
        p = u & 1
        V2 = (self.A_V2, self.A_V2B)
        Sc, Sn = (self.A_SA, self.A_SB) if stream == 0 else (self.A_SB, self.A_SA)
        Oc, Op = (self.A_OA, self.A_OB) if stream == 0 else (self.A_OB, self.A_OA)
        Qn = self.A_QB if stream == 0 else self.A_QA
        kb = p if stream == 0 else 1 - p
        v2 = V2[1-p] if stream == 0 else V2[p]
        ex = lambda i: a(f"v_exp_f32 v{Sc+i}, v{Sc+i}")
        cv = lambda k: a(f"v_cvt_pk_bf16_f32 v{P+k}, v{Sc+2*k}, v{Sc+2*k+1}")
        cvp = lambda k: a(f"v_cvt_pk_bf16_f32 v{P+k}, v{Sn+2*k}, v{Sn+2*k+1}")
        var = getattr(self, "sub_variant", None) or "v1"
        tn = (u+1)*2560
        def rdV():
            a(f"s_mov_b64 exec, s[{self.S_VMASK}:{self.S_VMASK+1}]")
            a(f"ds_read_b128 v[{self.A_V1}:{self.A_V1+3}], v{self.A_AV} offset:{tn}")
            R = V2[1-p]
            a(f"ds_read_b128 v[{R}:{R+3}], v{self.A_AV} offset:{tn+640}")
            a(f"s_mov_b64 exec, -1")
        def rdK(i):
            K = self.A_K + 8*p; toff = (u+2)*2560
            if i == 0: a(f"ds_read_b64 v[{K}:{K+1}], v{self.A_AK} offset:{toff}")
            if i == 1: a(f"ds_read_b64 v[{K+2}:{K+3}], v{self.A_AK} offset:{toff+256}")
            if i == 2: a(f"ds_read_b64 v[{K+4}:{K+5}], v{self.A_AK} offset:{toff+1024}")
        m1 = lambda: self.p2_smfma(0, Sn, kb, Qn)
        m2 = lambda: self.p2_smfma(1, Sn, kb, Qn)
        m4 = lambda: a(f"v_mfma_f32_32x32x16_bf16 v[{Op}:{Op+15}], v[{v2}:{v2+3}], v[{P+4}:{P+7}], v[{Op}:{Op+15}]")
        m3 = lambda: a(f"v_mfma_f32_32x32x16_bf16 v[{Oc}:{Oc+15}], v[{self.A_V1}:{self.A_V1+3}], v[{P}:{P+3}], v[{Oc}:{Oc+15}]")
        wt = lambda: a(f"s_waitcnt lgkmcnt(0)")
        if var == "pure":
            ex(0); cvp(6); ex(1); ex(2); cvp(7); ex(3); m1(); ex(4); cv(0); ex(5); ex(6); cv(1); ex(7); m2()
            ex(8); cv(2); ex(9); ex(10); cv(3); ex(11); m4(); ex(12); cv(4); ex(13); ex(14); cv(5); ex(15); m3()
        elif var == "v0":
            ex(0); cvp(6); ex(1); ex(2); cvp(7); ex(3); m1(); ex(4); cv(0); ex(5); ex(6); cv(1); ex(7); m2()
            ex(8); cv(2); ex(9); ex(10); cv(3); ex(11); m4(); ex(12); cv(4); ex(13); ex(14); cv(5); ex(15)
            if stream == 0: wt()
            m3()
            if stream == 1:
                rdV(); rdK(0); rdK(1); rdK(2)
        elif var == "v1":
            ex(0); cvp(6); ex(1); ex(2); cvp(7); ex(3); m1()
            if stream == 1: rdK(0)
            ex(4); cv(0); ex(5); ex(6); cv(1); ex(7); m2()
            if stream == 1: rdK(1)
            ex(8); cv(2); ex(9); ex(10); cv(3); ex(11); m4()
            if stream == 1: rdK(2)
            ex(12); cv(4); ex(13); ex(14); cv(5); ex(15)
            if stream == 0: wt()
            m3()
            if stream == 1: rdV()
        elif var == "v2":
            ex(0); cvp(6); ex(1); ex(2); cvp(7); ex(3); m1()
            if stream == 1: rdK(1)
            ex(4); cv(0); ex(5); ex(6); cv(1); ex(7); m2()
            if stream == 1: rdK(2)
            ex(8); cv(2); ex(9); ex(10); cv(3); ex(11); m4()
            if stream == 0: rdK(0)
            ex(12); cv(4); ex(13); ex(14); cv(5); ex(15)
            if stream == 0: a(f"s_waitcnt lgkmcnt(1)")
            m3()
            if stream == 1: rdV()
        elif var == "v3":
            ex(0); cvp(6); ex(1); ex(2); cvp(7); ex(3); m1()
            if stream == 1: rdK(0)
            ex(4); cv(0); ex(5); ex(6); cv(1); ex(7); m2()
            if stream == 1: rdK(1)
            ex(8); cv(2); ex(9); ex(10); cv(3); ex(11); m4()
            if stream == 1: rdK(2)
            ex(12); cv(4); ex(13); ex(14); cv(5); ex(15)
            if stream == 0: wt()
            m3()
            if stream == 1:
                a(f"ds_read_b128 v[{self.A_V1}:{self.A_V1+3}], v{self.A_AV} offset:{tn}")
                R = V2[1-p]
                a(f"ds_read_b128 v[{R}:{R+3}], v{self.A_AV} offset:{tn+640}")

    def prio_reg(self, stream):
        return self._prio[stream]

    def p2_check_all(self):
        a = self.a
        X = self.A_ALL; T = self.A_T
        L = "L_p2_all"; Lo = "L_p2_allok"
        a(f"s_mov_b32 s{S_T0}, 0")
        a.put(L)
        for r in range(4):
            a(f"v_subrev_u32 v{T+r}, s{S_TAG}, v{X+r}")
        a(f"v_cmp_le_u32 vcc, 16, v{T}")
        for r in range(1, 4):
            a(f"v_cmp_le_u32 s[{S_SAVE}:{S_SAVE+1}], 16, v{T+r}")
            a(f"s_nop 0")
            a(f"s_or_b64 vcc, vcc, s[{S_SAVE}:{S_SAVE+1}]")
        a(f"s_cbranch_vccz {Lo}")
        a(f"s_add_u32 s{S_T0}, s{S_T0}, 1")
        a(f"s_cmp_ge_u32 s{S_T0}, 0x40000")
        a(f"s_cbranch_scc1 {Lo}")
        a(f"buffer_load_dwordx4 v[{X}:{X+3}], v{self.A_ALLA}, s[{SRD_F}:{SRD_F+3}], 0 offen sc1")
        a(f"s_waitcnt vmcnt(0)")
        a(f"s_branch {L}")
        a.put(Lo)
        a(f"s_and_b32 s{S_T1}, s{S_GX}, 3")
        for r in range(1, 4):
            a(f"s_cmp_eq_u32 s{S_T1}, {r}")
            a(f"s_cselect_b64 s[{S_SAVE}:{S_SAVE+1}], -1, 0")
            a(f"v_cndmask_b32 v{T}, v{T}, v{T+r}, s[{S_SAVE}:{S_SAVE+1}]")
        a(f"v_cmp_ne_u32 vcc, s{S_XCC}, v{T}")
        a(f"s_mov_b32 s{S_T2}, 0x55555555")
        a(f"s_lshr_b32 s{S_T1}, s{S_GX}, 2")
        a(f"s_lshl_b32 s{S_T2}, s{S_T2}, s{S_T1}")
        a(f"s_and_b32 s{S_T3}, vcc_lo, s{S_T2}")
        a(f"s_and_b32 s{S_T4}, vcc_hi, s{S_T2}")
        a(f"s_or_b32 s{S_T3}, s{S_T3}, s{S_T4}")
        a(f"s_cmp_eq_u32 s{S_T3}, 0")
        a(f"s_cselect_b32 s{S_FAST}, {0 if 'nofast' in self.opt else 1}, 0")

    prio_low = (0, 2, 4, 7)
    def p2_setprio(self, lvl, tag):
        a = self.a
        L = f"L_p2_pr{tag}"
        a(f"s_cmp_ge_u32 s{S_W}, 4")
        a(f"s_cbranch_scc1 {L}")
        a(f"s_setprio {lvl}")
        a.put(L)

    def p2_dma(self, n):
        a = self.a
        for i in range(n):
            a(f"s_mov_b32 m0, s{self.S_DSO}")
            a(f"s_nop 0")
            a(f"buffer_load_dwordx4 v{self.A_DV}, s[{SRD_A}:{SRD_A+3}], s{self.S_DSO} offen sc1 lds")
            a(f"s_add_u32 s{self.S_DSO}, s{self.S_DSO}, 4096")

    def p2_setup(self):
        a = self.a
        T = self.A_T
        a(f"s_lshl_b32 s{S_HEAD}, s{S_GX}, 2")
        a(f"s_and_b32 s{S_T0}, s{S_GI}, 3")
        a(f"s_add_u32 s{S_HEAD}, s{S_HEAD}, s{S_T0}")
        a(f"s_lshr_b32 s{S_QB}, s{S_GI}, 2")
        a(f"s_mul_i32 s{S_T0}, s{S_HEAD}, 163840")
        a(f"s_add_u32 s{S_T0}, s{S_T0}, {hex(OFF_KV)}")
        a(f"s_add_u32 s{SRD_A}, s{S_WS}, s{S_T0}")
        a(f"s_addc_u32 s{SRD_A+1}, s{S_WS+1}, 0")
        a(f"s_mov_b32 s{SRD_A+2}, 163840")
        a(f"s_mov_b32 s{SRD_A+3}, 0x20000")
        a(f"s_lshl_b32 s{S_T0}, s{S_HEAD}, 6")
        a(f"s_lshl_b32 s{S_T1}, s{S_QB}, 3")
        a(f"s_add_u32 s{S_T0}, s{S_T0}, s{S_T1}")
        a(f"s_and_b32 s{S_T1}, s{S_W}, 3")
        a(f"s_lshl_b32 s{S_T1}, s{S_T1}, 1")
        a(f"s_add_u32 s{S_T0}, s{S_T0}, s{S_T1}")
        a(f"s_mul_i32 s{S_T0}, s{S_T0}, 1280")
        a(f"s_add_u32 s{S_T0}, s{S_T0}, {hex(OFF_Q)}")
        a(f"s_add_u32 s{SRD_W}, s{S_WS}, s{S_T0}")
        a(f"s_addc_u32 s{SRD_W+1}, s{S_WS+1}, 0")
        a(f"s_mov_b32 s{SRD_W+2}, 2560")
        a(f"s_mov_b32 s{SRD_W+3}, 0x20000")
        a(f"v_and_b32 v{T}, 31, v1")
        a(f"v_lshrrev_b32 v{T+1}, 5, v1")
        a(f"v_lshlrev_b32 v{T+2}, 3, v{T}")
        a(f"v_lshl_add_u32 v{T+4}, v{T+1}, 9, v{T+2}")
        a(f"v_lshlrev_b32 v{T+3}, 12, v{T+1}")
        a(f"v_add_u32 v{T+3}, v{T+3}, v{T+2}")
        a(f"v_lshlrev_b32 v{self.A_DV}, 4, v1")
        a(f"v_add_u32 v{self.A_ALLA}, {OFF_ALL}, v{self.A_DV}")
        a(f"s_lshr_b32 s{S_T0}, s{S_W}, 2")
        a(f"s_mul_i32 s{S_T0}, s{S_T0}, 81920")
        a(f"s_and_b32 s{S_T1}, s{S_W}, 3")
        a(f"s_lshl_b32 s{S_T1}, s{S_T1}, 10")
        a(f"s_add_u32 s{self.S_DSO}, s{S_T0}, s{S_T1}")
        for Q in (self.A_QA, self.A_QB):
            a(f"v_mov_b32 v{Q+6}, 0"); a(f"v_mov_b32 v{Q+7}, 0")
        for kb in range(2):
            a(f"v_mov_b32 v{self.A_K+8*kb+6}, 0"); a(f"v_mov_b32 v{self.A_K+8*kb+7}, 0")
        a(f"v_cmp_eq_u32 vcc, 20, v{T}")
        a(f"v_mov_b32 v{T+5}, 0x3f803f80")
        a(f"v_mul_u32_u24 v{T+6}, 320, v{T+1}")
        a(f"v_cndmask_b32 v{self.A_V1}, 0, v{T+5}, vcc")
        for r in range(1, 8):
            a(f"v_mov_b32 v{self.A_V1+r}, v{self.A_V1}")
        for r in range(4):
            a(f"v_mov_b32 v{self.A_V2B+r}, v{self.A_V1}")
        a(f"v_lshl_add_u32 v{self.A_AV}, v{T}, 4, v{T+6}")
        a(f"v_add_u32 v{self.A_AV}, 1280, v{self.A_AV}")
        a(f"v_add_u32 v{self.A_AK}, s{S_T0}, v{T+4}")
        a(f"v_add_u32 v{self.A_AV}, s{S_T0}, v{self.A_AV}")
        a(f"s_mov_b32 s{self.S_VMASK}, 0xfffff")
        a(f"s_mov_b32 s{self.S_VMASK+1}, 0xfffff")
        for r in range(16):
            a(f"v_mov_b32 v{self.A_OA+r}, 0"); a(f"v_mov_b32 v{self.A_OB+r}, 0")
        for r in range(8):
            a(f"v_mov_b32 v{self.A_P+r}, 0")
        for r in range(12, 16):
            a(f"v_mov_b32 v{self.A_SB+r}, 0")

    def p2(self):
        a = self.a
        T = self.A_T
        self.p2_setup()
        self.stamp(5)
        self.p2_wait()
        self.stamp(6)
        self.p2_dma(2)
        for qi, Q in enumerate((self.A_QA, self.A_QB)):
            a(f"buffer_load_dwordx2 v[{Q}:{Q+1}], v{T+4}, s[{SRD_W}:{SRD_W+3}], 0 offen offset:{1280*qi} sc1")
            a(f"buffer_load_dwordx2 v[{Q+2}:{Q+3}], v{T+4}, s[{SRD_W}:{SRD_W+3}], 0 offen offset:{1280*qi+256} sc1")
            a(f"buffer_load_dwordx2 v[{Q+4}:{Q+5}], v{T+3}, s[{SRD_W}:{SRD_W+3}], 0 offen offset:{1280*qi+1024} sc1")
        self.p2_dma(2)
        a(f"buffer_load_dwordx4 v[{self.A_ALL}:{self.A_ALL+3}], v{self.A_ALLA}, s[{SRD_F}:{SRD_F+3}], 0 offen sc1")
        self.p2_dma(4)
        a(f"s_waitcnt vmcnt(5)")
        a(f"s_barrier")
        self.stamp(7)
        self.p2_dma(1)
        self.p2_kreads(0, 0)
        self.p2_kreads(1, 2560)
        self.p2_vread(0, 0)
        self.p2_vread(1, 0)
        a(f"s_waitcnt lgkmcnt(0)")
        self.p2_smfma(0, self.A_SA, 0, self.A_QA); self.p2_smfma(1, self.A_SA, 0, self.A_QA)
        self.p2_unrolled()
        a.put("L_p2_done")
        a(f"s_setprio 0")
        P = self.A_P; SBr = self.A_SB
        a(f"s_waitcnt lgkmcnt(0)")
        a(f"v_cvt_pk_bf16_f32 v{P+6}, v{SBr+12}, v{SBr+13}")
        a(f"v_cvt_pk_bf16_f32 v{P+7}, v{SBr+14}, v{SBr+15}")
        a(f"s_nop 1")
        a(f"v_mfma_f32_32x32x16_bf16 v[{self.A_OB}:{self.A_OB+15}], v[{self.A_V2B}:{self.A_V2B+3}], v[{P+4}:{P+7}], v[{self.A_OB}:{self.A_OB+15}]")
        self.stamp(8)
        self.p2_epilogue()

    def p2_epilogue(self):
        a = self.a
        T = self.A_T
        a(f"s_mov_b32 s{self.S_SLOWDONE}, {1 if 'noslow' in self.opt else 0}")
        a(f"s_mov_b32 s{self.S_BIG}, {hex(f32(2.0**60))}")
        if "forceslow" in self.opt: a(f"s_mov_b32 s{self.S_BIG}, 0")
        a(f"s_nop 7"); a(f"s_nop 3")
        a(f"s_barrier")
        a(f"s_and_b32 s{S_T0}, s{S_W}, 3")
        a(f"s_lshr_b32 s{S_T1}, s{S_W}, 2")
        a(f"s_lshl_b32 s{S_T0}, s{S_T0}, 1")
        a(f"s_add_u32 s{S_T2}, s{S_T0}, s{S_T1}")
        a(f"s_xor_b32 s{S_T3}, s{S_T2}, 1")
        a(f"s_mul_i32 s{S_T2}, s{S_T2}, 3072")
        a(f"s_mul_i32 s{S_T3}, s{S_T3}, 3072")
        a(f"s_add_u32 s{S_T2}, s{S_T2}, 51200")
        a(f"s_add_u32 s{S_T3}, s{S_T3}, 51200")
        a(f"v_lshlrev_b32 v{T}, 4, v1")
        a(f"v_add_u32 v{T+1}, s{S_T2}, v{T}")
        a(f"v_add_u32 v{T+2}, s{S_T3}, v{T}")
        Lk1 = "L_p2e_k1"; Lj = "L_p2e_j"
        a(f"s_cmp_eq_u32 s{S_T1}, 1")
        a(f"s_cbranch_scc1 {Lk1}")
        for g in range(3):
            a(f"ds_write_b128 v{T+1}, v[{self.A_OB+4*g}:{self.A_OB+4*g+3}] offset:{1024*g}")
        a(f"s_branch {Lj}")
        a.put(Lk1)
        for g in range(3):
            a(f"ds_write_b128 v{T+1}, v[{self.A_OA+4*g}:{self.A_OA+4*g+3}] offset:{1024*g}")
        for r in range(12):
            a(f"v_mov_b32 v{self.A_OA+r}, v{self.A_OB+r}")
        a.put(Lj)
        a(f"s_waitcnt lgkmcnt(0)")
        a(f"s_barrier")
        O = self.A_OA; X = self.A_SA
        for g in range(3):
            a(f"ds_read_b128 v[{X+4*g}:{X+4*g+3}], v{T+2} offset:{1024*g}")
        a(f"s_waitcnt lgkmcnt(0)")
        for r in range(12):
            a(f"v_add_f32 v{O+r}, v{O+r}, v{X+r}")
        a.put("L_p2_fin")
        a(f"v_mov_b32 v{T}, v{O+8}")
        a(f"v_mov_b32 v{T+1}, v{O+8}")
        a(f"s_nop 1")
        a(f"v_permlane32_swap_b32 v{T}, v{T+1}")
        a(f"v_mul_f32 v{T+3}, 0, v{O}")
        for r in list(range(1, 8)):
            a(f"v_fmac_f32 v{T+3}, 0, v{O+r}")
        a(f"v_mov_b32 v{T+4}, 0")
        for r in range(8, 12):
            a(f"v_fmac_f32 v{T+4}, 0, v{O+r}")
        a(f"v_cmp_le_f32 vcc, {hex(f32(2.0**-60))}, v{T+1}")
        a(f"v_cmp_ge_f32 s[{S_SAVE}:{S_SAVE+1}], s{self.S_BIG}, v{T+1}")
        a(f"s_nop 0")
        a(f"s_and_b64 vcc, vcc, s[{S_SAVE}:{S_SAVE+1}]")
        a(f"v_cmp_eq_f32 s[{S_SAVE}:{S_SAVE+1}], 0, v{T+3}")
        a(f"s_nop 0")
        a(f"s_and_b64 vcc, vcc, s[{S_SAVE}:{S_SAVE+1}]")
        a(f"v_cmp_eq_f32 s[{S_SAVE}:{S_SAVE+1}], 0, v{T+4}")
        a(f"s_nop 0")
        a(f"s_or_b32 s{S_SAVE+1}, s{S_SAVE+1}, -1")
        a(f"s_and_b64 vcc, vcc, s[{S_SAVE}:{S_SAVE+1}]")
        a(f"s_or_b32 vcc_lo, vcc_lo, 0")
        a(f"s_cmp_eq_u32 s{self.S_SLOWDONE}, 1")
        a(f"s_cbranch_scc1 L_p2_ok")
        a(f"s_cmp_eq_u64 vcc, -1")
        a(f"s_cbranch_scc0 L_p2_slow")
        a.put("L_p2_ok")
        a(f"v_rcp_f32 v{T+2}, v{T+1}")
        a(f"s_nop 0")
        for r in range(12):
            a(f"v_mul_f32 v{O+r}, v{T+2}, v{O+r}")
        for g in range(3):
            a(f"v_cvt_pk_bf16_f32 v{O+4*g}, v{O+4*g}, v{O+4*g+1}")
            a(f"v_cvt_pk_bf16_f32 v{O+4*g+1}, v{O+4*g+2}, v{O+4*g+3}")
        self.srd(SRD_O, S_WS, OFF_O, SZ_O)
        a(f"s_and_b32 s{S_T2}, s{S_W}, 3")
        a(f"s_lshr_b32 s{S_T3}, s{S_W}, 2")
        a(f"s_lshl_b32 s{S_T0}, s{S_QB}, 2")
        a(f"s_add_u32 s{S_T0}, s{S_T0}, s{S_T2}")
        a(f"s_mul_i32 s{S_T0}, s{S_T0}, 81920")
        a(f"s_lshl_b32 s{S_T1}, s{S_T3}, 11")
        a(f"s_add_u32 s{S_T0}, s{S_T0}, s{S_T1}")
        a(f"v_bfe_u32 v{T+3}, v1, 4, 1")
        a(f"v_lshlrev_b32 v{T+3}, 10, v{T+3}")
        a(f"v_and_b32 v{T+4}, 15, v1")
        a(f"v_lshl_add_u32 v{T+3}, v{T+4}, 4, v{T+3}")
        a(f"v_lshrrev_b32 v{T+5}, 5, v1")
        a(f"s_mul_i32 s{S_T1}, s{S_HEAD}, 20")
        for g in range(3):
            a(f"v_lshlrev_b32 v{T+6}, 2, v{T+5}")
            a(f"s_add_u32 s{S_T2}, s{S_T1}, {8*g}")
            a(f"v_add_u32 v{T+6}, s{S_T2}, v{T+6}")
            a(f"v_lshrrev_b32 v{T+7}, 5, v{T+6}")
            a(f"v_lshlrev_b32 v{T+7}, 12, v{T+7}")
            a(f"v_bfe_u32 v{T+8}, v{T+6}, 3, 2")
            a(f"v_lshl_add_u32 v{T+7}, v{T+8}, 8, v{T+7}")
            a(f"v_and_b32 v{T+8}, 7, v{T+6}")
            a(f"v_lshl_add_u32 v{T+7}, v{T+8}, 1, v{T+7}")
            a(f"v_add_u32 v{T+7}, v{T+7}, v{T+3}")
            if g == 2: self.set_exec(0xffffffff)
            a(f"buffer_store_dwordx2 v[{O+4*g}:{O+4*g+1}], v{T+7}, s[{SRD_O}:{SRD_O+3}], s{S_T0} offen sc1")
            if g == 2: a(f"s_mov_b64 exec, -1")
        a(f"s_branch L_p2_end")
        self.p2_slow()
        a.put("L_p2_end")

    S_SLOWDONE = 94; S_BIG = 95
    def p2_slow(self):
        a = self.a
        T = self.A_T; O = self.A_OA; S = self.A_SA; P = self.A_P
        K = self.A_K; Q = self.A_QA
        a.put("L_p2_slow")
        a(f"s_cmp_lt_u32 s{S_W}, 4")
        a(f"s_cbranch_scc1 L_p2s_q")
        for r in range(8):
            a(f"v_mov_b32 v{Q+r}, v{self.A_QB+r}")
        a.put("L_p2s_q")
        a(f"v_and_b32 v{T}, 31, v1")
        a(f"v_lshrrev_b32 v{T+1}, 5, v1")
        a(f"v_lshlrev_b32 v{T+2}, 3, v{T}")
        a(f"v_lshl_add_u32 v{T+3}, v{T+1}, 9, v{T+2}")
        a(f"v_mul_u32_u24 v{T+4}, 320, v{T+1}")
        a(f"v_lshl_add_u32 v{T+4}, v{T}, 4, v{T+4}")
        a(f"v_mov_b32 v{T+5}, 0xff800000")
        def loadk():
            a(f"buffer_load_dwordx2 v[{K}:{K+1}], v{T+3}, s[{SRD_A}:{SRD_A+3}], s{S_T1} offen sc1")
            a(f"buffer_load_dwordx2 v[{K+2}:{K+3}], v{T+3}, s[{SRD_A}:{SRD_A+3}], s{S_T1} offen offset:256 sc1")
            a(f"buffer_load_dwordx2 v[{K+4}:{K+5}], v{T+2}, s[{SRD_A}:{SRD_A+3}], s{S_T1} offen offset:1024 sc1")
        def smm():
            a(f"v_mfma_f32_32x32x16_bf16 v[{S}:{S+15}], v[{K}:{K+3}], v[{Q}:{Q+3}], 0")
            a(f"v_mfma_f32_32x32x16_bf16 v[{S}:{S+15}], v[{K+4}:{K+7}], v[{Q+4}:{Q+7}], v[{S}:{S+15}]")
            a(f"s_nop 7"); a(f"s_nop 7")
        a(f"s_mov_b32 s{S_T1}, 0")
        a.put("L_p2s_1")
        loadk()
        a(f"s_waitcnt vmcnt(0)")
        smm()
        for r in range(16):
            a(f"v_max_f32 v{T+5}, v{T+5}, v{S+r}")
        a(f"s_add_u32 s{S_T1}, s{S_T1}, 2560")
        a(f"s_cmp_lt_u32 s{S_T1}, 163840")
        a(f"s_cbranch_scc1 L_p2s_1")
        a(f"v_mov_b32 v{T+6}, v{T+5}")
        a(f"s_nop 1")
        a(f"v_permlane32_swap_b32 v{T+6}, v{T+5}")
        a(f"s_nop 1")
        a(f"v_max_f32 v{T+5}, v{T+5}, v{T+6}")
        for r in range(16):
            a(f"v_mov_b32 v{O+r}, 0")
        a(f"s_mov_b32 s{S_T1}, 0")
        a.put("L_p2s_2")
        loadk()
        a(f"s_mov_b64 exec, s[{self.S_VMASK}:{self.S_VMASK+1}]")
        a(f"buffer_load_dwordx4 v[{self.A_V1}:{self.A_V1+3}], v{T+4}, s[{SRD_A}:{SRD_A+3}], s{S_T1} offen offset:1280 sc1")
        a(f"buffer_load_dwordx4 v[{self.A_V2}:{self.A_V2+3}], v{T+4}, s[{SRD_A}:{SRD_A+3}], s{S_T1} offen offset:1920 sc1")
        a(f"s_mov_b64 exec, -1")
        a(f"s_waitcnt vmcnt(0)")
        smm()
        for r in range(16):
            a(f"v_sub_f32 v{S+r}, v{S+r}, v{T+5}")
        for r in range(16):
            a(f"v_exp_f32 v{S+r}, v{S+r}")
        a(f"s_nop 0")
        for k in range(8):
            a(f"v_cvt_pk_bf16_f32 v{P+k}, v{S+2*k}, v{S+2*k+1}")
        a(f"s_nop 1")
        a(f"v_mfma_f32_32x32x16_bf16 v[{O}:{O+15}], v[{self.A_V1}:{self.A_V1+3}], v[{P}:{P+3}], v[{O}:{O+15}]")
        a(f"v_mfma_f32_32x32x16_bf16 v[{O}:{O+15}], v[{self.A_V2}:{self.A_V2+3}], v[{P+4}:{P+7}], v[{O}:{O+15}]")
        a(f"s_add_u32 s{S_T1}, s{S_T1}, 2560")
        a(f"s_cmp_lt_u32 s{S_T1}, 163840")
        a(f"s_cbranch_scc1 L_p2s_2")
        a(f"s_nop 7"); a(f"s_nop 7")
        a(f"s_mov_b32 s{self.S_SLOWDONE}, 1")
        a(f"s_branch L_p2_fin")

    G_ACC = 4
    G_ACT = 52
    G_AM = 84
    G_DV = 2
    G_SA = 3
    S_RB = 49; S_J = 50
    def g2_wbase(self, phase, NT):
        return 88 if (phase == 3 or NT == 3) else 144

    def g2_wsetup(self, phase, srd, sreg, vreg):
        a = self.a
        if phase == 3: self.srd(srd, S_WS, OFF_WOP, SZ_WOP)
        else: self.srd(srd, S_WS, OFF_W2P, SZ_W2P)
        a(f"s_and_b32 s{S_T0}, s{S_W}, 3")
        a(f"s_mul_i32 s{S_T1}, s{S_T0}, 40")
        a(f"s_and_b32 s{S_T2}, s{S_GI}, 7")
        a(f"s_mul_i32 s{S_T2}, s{S_T2}, 5")
        a(f"s_add_u32 s{S_T1}, s{S_T1}, s{S_T2}")
        a(f"s_cmp_lt_u32 s{S_W}, 4")
        a(f"s_cselect_b32 s{S_T2}, 3, 0")
        a(f"s_add_u32 s{S_T1}, s{S_T1}, s{S_T2}")
        a(f"s_lshl_b32 s{sreg}, s{S_T1}, 10")
        a(f"v_lshlrev_b32 v{vreg}, 4, v1")

    def g2_wload1(self, phase, NT, step, t, srd, sreg, vreg):
        a = self.a
        R = self.g2_wbase(phase, NT) + 4*(step*NT + t)
        off = step*4*40*1024 + t*1024
        a(f"s_add_u32 s{S_T2}, s{sreg}, {off}")
        a(f"buffer_load_dwordx4 v[{R}:{R+3}], v{vreg}, s[{srd}:{srd+3}], s{S_T2} offen {self.ld_aux}")

    def g2_wloads_byclass(self, phase, listA, listB, srd, sreg, vreg, tag):
        a = self.a
        LA = f"L_{tag}_A"; LJ = f"L_{tag}_J"
        a(f"s_cmp_ge_u32 s{S_W}, 4")
        a(f"s_cbranch_scc1 {LA}")
        for (st, t) in listB: self.g2_wload1(phase, 2, st, t, srd, sreg, vreg)
        a(f"s_branch {LJ}")
        a.put(LA)
        for (st, t) in listA: self.g2_wload1(phase, 3, st, t, srd, sreg, vreg)
        a.put(LJ)

    def g2_adma(self, stage):
        a = self.a
        slot = (stage % 4) * 32768
        for q in range(4):
            a(f"s_add_u32 m0, s{S_M0A}, {slot + q*8192}")
            a(f"s_add_u32 s{S_T2}, s{S_M0A}, {stage*32768 + q*8192}")
            a(f"buffer_load_dwordx4 v{self.G_DV}, s[{SRD_A}:{SRD_A+3}], s{S_T2} offen {self.ld_aux} lds")

    def g2_reads(self, stage, u, st):
        a = self.a
        slot = stage % 4
        hi = slot >= 2
        if hi != self.g2_hi:
            for m in range(4):
                if hi: a(f"v_add_u32 v{self.G_AM+m}, 0x10000, v{self.G_AM+m}")
                else:  a(f"v_subrev_u32 v{self.G_AM+m}, 0x10000, v{self.G_AM+m}")
            self.g2_hi = hi
        off = (slot % 2) * 32768 + u*16384
        for m in range(4):
            R = self.G_ACT + 16*st + 4*m
            a(f"ds_read_b128 v[{R}:{R+3}], v{self.G_AM+m} offset:{off}")

    def g2_mfma(self, phase, NT, step, st):
        a = self.a
        for t in range(NT):
            W = self.g2_wbase(phase, NT) + 4*(step*NT + t)
            for m in range(4):
                A = self.G_ACC + 4*(m*3 + t)
                X = self.G_ACT + 16*st + 4*m
                a(f"v_mfma_f32_16x16x32_bf16 v[{A}:{A+3}], v[{W}:{W+3}], v[{X}:{X+3}], v[{A}:{A+3}]")

    def g2_main(self, phase, NT, nsteps):
        a = self.a
        NSTG = (nsteps + 1) // 2
        pre = min(3, NSTG)
        self.g2_hi = False
        for sg in range(pre):
            self.g2_adma(sg)
        a(f"s_waitcnt vmcnt({4*pre})")
        E = self.G_ACT; A = self.G_ACC
        for t in range(NT):
            for half in range(2):
                R = E + 2*t + half
                a(f"v_lshlrev_b32 v{A+4*t+2*half}, 16, v{R}")
                a(f"v_and_b32 v{A+4*t+2*half+1}, 0xffff0000, v{R}")
                if phase == 5:
                    R2 = E + 6 + 2*t + half
                    a(f"v_lshlrev_b32 v{E+14}, 16, v{R2}")
                    a(f"v_and_b32 v{E+15}, 0xffff0000, v{R2}")
                    a(f"v_add_f32 v{A+4*t+2*half}, v{A+4*t+2*half}, v{E+14}")
                    a(f"v_add_f32 v{A+4*t+2*half+1}, v{A+4*t+2*half+1}, v{E+15}")
        if self.g2st: self.stamp(self.g2st)
        a(f"s_waitcnt vmcnt({4*(pre-1)})")
        a(f"s_barrier")
        if self.g2st: self.stamp(self.g2st+1)
        self.g2_reads(0, 0, 0)
        for sg in range(NSTG):
            two = (2*sg + 1) < nsteps
            if sg + 1 < NSTG:
                out = 4 * max(0, min(NSTG, sg + pre) - (sg + 2))
                a(f"s_waitcnt vmcnt({out})")
                a(f"s_barrier")
            if two:
                self.g2_reads(sg, 1, 1)
                a(f"s_waitcnt lgkmcnt(4)")
            else:
                a(f"s_waitcnt lgkmcnt(0)")
            self.g2_mfma(phase, NT, 2*sg, 0)
            if sg + pre < NSTG:
                self.g2_adma(sg + pre)
            if two:
                if sg + 1 < NSTG:
                    self.g2_reads(sg+1, 0, 0)
                    a(f"s_waitcnt lgkmcnt(4)")
                else:
                    a(f"s_waitcnt lgkmcnt(0)")
                self.g2_mfma(phase, NT, 2*sg+1, 1)

    def g2_reduce(self, NT):
        a = self.a
        T = self.G_ACT
        cls = 0 if NT == 3 else 1
        a(f"s_and_b32 s{S_T1}, s{S_W}, 3")
        for m in range(1, 4):
            a(f"s_add_u32 s{S_T2}, s{S_T1}, {m}")
            a(f"s_and_b32 s{S_T2}, s{S_T2}, 3")
            a(f"s_mul_i32 s{S_T2}, s{S_T2}, 9216")
            a(f"s_add_u32 s{S_T2}, s{S_T2}, {cls*36864 + (m-1)*3072}")
            a(f"v_add_u32 v{T+m}, s{S_T2}, v{self.G_DV}")
        a(f"s_mul_i32 s{S_T2}, s{S_T1}, 9216")
        a(f"s_add_u32 s{S_T2}, s{S_T2}, {cls*36864}")
        a(f"v_add_u32 v{T}, s{S_T2}, v{self.G_DV}")
        a(f"s_barrier")
        for m in range(1, 4):
            for t in range(NT):
                A = self.G_ACC + 4*(m*3 + t)
                a(f"ds_write_b128 v{T+m}, v[{A}:{A+3}] offset:{t*1024}")
        a(f"s_waitcnt lgkmcnt(0)")
        a(f"s_barrier")
        for rel in range(3):
            for t in range(NT):
                A = self.G_ACC + 4*((rel+1)*3 + t)
                a(f"ds_read_b128 v[{A}:{A+3}], v{T} offset:{rel*3072 + t*1024}")
        a(f"s_waitcnt lgkmcnt(0)")
        for t in range(NT):
            for i in range(4):
                A = self.G_ACC + 4*t + i
                a(f"v_add_f32 v{A}, v{A}, v{A+12}")
                a(f"v_add_f32 v{A+24}, v{A+24}, v{A+36}")
            for i in range(4):
                A = self.G_ACC + 4*t + i
                a(f"v_add_f32 v{A}, v{A}, v{A+24}")

    def g2_setup(self, phase):
        a = self.a
        a(f"s_lshr_b32 s{S_T0}, s{S_GI}, 3")
        a(f"s_lshl_b32 s{S_T1}, s{S_GX}, 2")
        a(f"s_add_u32 s{self.S_RB}, s{S_T0}, s{S_T1}")
        a(f"s_and_b32 s{self.S_J}, s{S_GI}, 7")
        if phase == 3: off, per = OFF_O, 81920
        else: off, per = OFF_R, 54*4096
        a(f"s_mul_i32 s{S_T0}, s{self.S_RB}, {per}")
        a(f"s_add_u32 s{S_T0}, s{S_T0}, {hex(off)}")
        a(f"s_add_u32 s{SRD_A}, s{S_WS}, s{S_T0}")
        a(f"s_addc_u32 s{SRD_A+1}, s{S_WS+1}, 0")
        a(f"s_mov_b32 s{SRD_A+2}, {per}")
        a(f"s_mov_b32 s{SRD_A+3}, 0x20000")
        a(f"s_lshl_b32 s{S_M0A}, s{S_W}, 10")
        a(f"v_lshlrev_b32 v{self.G_DV}, 4, v1")
        a(f"s_and_b32 s{S_T0}, s{S_W}, 3")
        for m in range(4):
            a(f"s_add_u32 s{S_T1}, s{S_T0}, {m}")
            a(f"s_and_b32 s{S_T1}, s{S_T1}, 3")
            a(f"s_lshl_b32 s{S_T1}, s{S_T1}, 10")
            a(f"s_lshl_b32 s{S_T2}, s{S_T0}, 12")
            a(f"s_add_u32 s{S_T1}, s{S_T1}, s{S_T2}")
            a(f"v_add_u32 v{self.G_AM+m}, s{S_T1}, v{self.G_DV}")
        E = self.G_ACT
        a(f"s_lshl_b32 s{S_T0}, s{self.S_RB}, 6")
        a(f"s_and_b32 s{S_T1}, s{S_W}, 3")
        a(f"s_lshl_b32 s{S_T1}, s{S_T1}, 4")
        a(f"s_add_u32 s{S_T0}, s{S_T0}, s{S_T1}")
        a(f"v_and_b32 v{self.G_SA}, 15, v1")
        a(f"v_add_u32 v{self.G_SA}, s{S_T0}, v{self.G_SA}")
        a(f"v_mul_u32_u24 v{self.G_SA}, 1280, v{self.G_SA}")
        a(f"s_mul_i32 s{S_T0}, s{self.S_J}, 160")
        a(f"s_cmp_lt_u32 s{S_W}, 4")
        a(f"s_cselect_b32 s{S_T1}, 96, 0")
        a(f"s_add_u32 s{S_T0}, s{S_T0}, s{S_T1}")
        a(f"v_lshrrev_b32 v{E+12}, 4, v1")
        a(f"v_lshlrev_b32 v{E+12}, 3, v{E+12}")
        a(f"v_add_u32 v{E+12}, s{S_T0}, v{E+12}")
        a(f"v_add_u32 v{self.G_SA}, v{self.G_SA}, v{E+12}")
        if phase == 3:
            self.srd(SRD_T, S_X, 0, 2048*1280); aux_r = ""
        else:
            self.srd(SRD_T, S_WS, OFF_H, SZ_H); aux_r = self.ld_aux
        for t in range(3):
            a(f"buffer_load_dwordx2 v[{E+2*t}:{E+2*t+1}], v{self.G_SA}, s[{SRD_T}:{SRD_T+3}], 0 offen offset:{32*t} {aux_r}")
        if phase == 5:
            self.srd(SRD_T, S_B2, 0, 1280)
            for t in range(3):
                a(f"buffer_load_dwordx2 v[{E+6+2*t}:{E+7+2*t}], v{E+12}, s[{SRD_T}:{SRD_T+3}], 0 offen offset:{32*t}")
        for r in range(12, 48):
            a(f"v_mov_b32 v{self.G_ACC+r}, 0")

    def g2_epi(self, phase, NT):
        a = self.a
        T = self.G_ACT; A = self.G_ACC
        if phase == 3:
            self.srd_twin(S_WS, OFF_H, SZ_H)
        else:
            self.srd(SRD_O, S_OUT, 0, 2048*1280)
        for t in range(NT):
            a(f"v_cvt_pk_bf16_f32 v{A+4*t}, v{A+4*t}, v{A+4*t+1}")
            a(f"v_cvt_pk_bf16_f32 v{A+4*t+1}, v{A+4*t+2}, v{A+4*t+3}")
            if phase == 3: self.store_twin("buffer_store_dwordx2", f"v[{A+4*t}:{A+4*t+1}]", self.G_SA, "0", f"offset:{32*t}")
            else: a(f"buffer_store_dwordx2 v[{A+4*t}:{A+4*t+1}], v{self.G_SA}, s[{SRD_O}:{SRD_O+3}], 0 offen offset:{32*t}")
        if phase == 3:
            S = T + 22
            a(f"v_mov_b32 v{S}, 0"); a(f"v_mov_b32 v{S+1}, 0")
            for t in range(NT):
                for half in range(2):
                    R = A + 4*t + half
                    a(f"v_lshlrev_b32 v{T+20}, 16, v{R}")
                    a(f"v_and_b32 v{T+21}, 0xffff0000, v{R}")
                    a(f"v_add_f32 v{S}, v{S}, v{T+20}")
                    a(f"v_fmac_f32 v{S+1}, v{T+20}, v{T+20}")
                    a(f"v_add_f32 v{S}, v{S}, v{T+21}")
                    a(f"v_fmac_f32 v{S+1}, v{T+21}, v{T+21}")
            for op in ("v_permlane32_swap_b32", "v_permlane16_swap_b32"):
                a(f"v_mov_b32 v{S+2}, v{S}")
                a(f"v_mov_b32 v{S+3}, v{S+1}")
                a(f"s_nop 1")
                a(f"{op} v{S+2}, v{S}")
                a(f"{op} v{S+3}, v{S+1}")
                a(f"s_nop 1")
                a(f"v_add_f32 v{S}, v{S}, v{S+2}")
                a(f"v_add_f32 v{S+1}, v{S+1}, v{S+3}")
            a(f"s_lshl_b32 s{S_T0}, s{self.S_RB}, 6")
            a(f"s_and_b32 s{S_T1}, s{S_W}, 3")
            a(f"s_lshl_b32 s{S_T1}, s{S_T1}, 4")
            a(f"s_add_u32 s{S_T0}, s{S_T0}, s{S_T1}")
            a(f"v_and_b32 v{S+2}, 15, v1")
            a(f"v_add_u32 v{S+2}, s{S_T0}, v{S+2}")
            a(f"v_lshlrev_b32 v{S+2}, 7, v{S+2}")
            a(f"s_lshl_b32 s{S_T0}, s{self.S_J}, 4")
            a(f"s_add_u32 s{S_T0}, s{S_T0}, {hex(8 if NT == 2 else 0)}")
            a(f"v_add_u32 v{S+2}, s{S_T0}, v{S+2}")
            self.srd_twin(S_WS, OFF_PST, 2048*128)
            a(f"s_mov_b64 exec, 0xffff")
            self.store_twin("buffer_store_dwordx2", f"v[{S}:{S+1}]", S+2, "0")
            a(f"s_mov_b64 exec, -1")

    def g2(self, phase):
        a = self.a
        nsteps = 5 if phase == 3 else 14
        self.g2st = 15 if (str(phase) in self.opt_g2) else None
        L1 = f"L_g2p{phase}_n1"; Lj = f"L_g2p{phase}_j"
        a(f"s_cmp_lt_u32 s{S_W}, 4")
        a(f"s_cbranch_scc1 {L1}")
        for NT in (3, 2):
            self.g2_main(phase, NT, nsteps)
            if self.g2st: self.stamp(self.g2st+2)
            a(f"s_nop 7")
            self.g2_reduce(NT)
            if self.g2st: self.stamp(self.g2st+3)
            self.g2_epi(phase, NT)
            if NT == 3:
                a(f"s_branch {Lj}")
                a.put(L1)
        a.put(Lj)

    def hook23(self):
        a = self.a
        a(f"v_lshlrev_b32 v{self.G_DV}, 4, v1")
        self.wo_from_lds()
        self.g2_setup(3)
    def hook34(self):
        a = self.a
        a(f"s_cmp_lt_u32 s{S_GI}, 28")
        a(f"s_cbranch_scc1 L_h34_skip")
        self.prefetch_w2_rest()
        a.put("L_h34_skip")
        self.p4_setup()
    def hook45(self):
        self.g2_setup(5)

    def wo_lds_base(self, dst):
        a = self.a
        a(f"s_sub_u32 s{S_T3}, s{S_W}, 4")
        a(f"s_mul_i32 s{S_T3}, s{S_T3}, 15360")
        a(f"s_cmp_eq_u32 s{S_W}, 7")
        a(f"s_cselect_b32 s{S_T3}, 81920, s{S_T3}")
        a(f"s_mul_i32 s{S_T4}, s{S_W}, 10240")
        a(f"s_add_u32 s{S_T4}, s{S_T4}, 97280")
        a(f"s_cmp_eq_u32 s{S_W}, 3")
        a(f"s_cselect_b32 s{S_T4}, 46080, s{S_T4}")
        a(f"s_cmp_lt_u32 s{S_W}, 4")
        a(f"s_cselect_b32 s{dst}, s{S_T4}, s{S_T3}")

    def wo_frag_off(self, NT, idx):
        return idx * 1024

    def wo_dma(self, lo, hi):
        a = self.a
        LA = f"L_wod{lo}_A"; LJ = f"L_wod{lo}_J"
        a(f"s_cmp_ge_u32 s{S_W}, 4")
        a(f"s_cbranch_scc1 {LA}")
        for NT, lab in ((2, None), (3, LA)):
            if lab:
                a(f"s_branch {LJ}")
                a.put(lab)
            for idx in range(lo, min(hi, 5*NT)):
                st, t = divmod(idx, NT)
                base = self.S_WOB if not (NT == 2 and idx >= 5) else self.S_WOB2
                a(f"s_add_u32 m0, s{base}, {idx*1024}")
                a(f"s_add_u32 s{S_T2}, s{self.S_WOS}, {st*4*40*1024 + t*1024}")
                a(f"buffer_load_dwordx4 v{self.A_DV}, s[{SRD_T}:{SRD_T+3}], s{S_T2} offen {self.ld_aux} lds")
        a.put(LJ)

    def wo_dma_cls(self, NT, lo, hi):
        a = self.a
        for idx in range(lo, min(hi, 5*NT)):
            st, t = divmod(idx, NT)
            base = self.S_WOB if not (NT == 2 and idx >= 5) else self.S_WOB2
            a(f"s_add_u32 m0, s{base}, {idx*1024}")
            a(f"s_add_u32 s{S_T2}, s{self.S_WOS}, {st*4*40*1024 + t*1024}")
            a(f"buffer_load_dwordx4 v{self.A_DV}, s[{SRD_T}:{SRD_T+3}], s{S_T2} offen {self.ld_aux} lds")

    S_WOB = 63; S_WOB2 = 64; S_WOS = 54
    def wo_setup(self):
        a = self.a
        self.g2_wsetup(3, SRD_T, self.S_WOS, self.A_DV)
        self.wo_lds_base(self.S_WOB)
        a(f"s_cmp_eq_u32 s{S_W}, 3")
        a(f"s_cselect_b32 s{self.S_WOB2}, {128000-5120}, s{self.S_WOB}")

    def wo_from_lds(self):
        a = self.a
        LA = "L_wol_A"; LJ = "L_wol_J"
        a(f"v_add_u32 v{self.G_AM}, s{self.S_WOBK}, v{self.G_DV}")
        a(f"v_add_u32 v{self.G_AM+1}, s{self.S_WOB2}, v{self.G_DV}")
        a(f"s_cmp_ge_u32 s{S_W}, 4")
        a(f"s_cbranch_scc1 {LA}")
        for NT, lab in ((2, None), (3, LA)):
            if lab:
                a(f"s_branch {LJ}")
                a.put(lab)
            for idx in range(5*NT):
                R = 88 + 4*idx
                ad = self.G_AM if not (NT == 2 and idx >= 5) else self.G_AM + 1
                a(f"ds_read_b128 v[{R}:{R+3}], v{ad} offset:{idx*1024}")
        a.put(LJ)
        a(f"s_waitcnt lgkmcnt(0)")

    def prefetch_wo(self):
        self.g2_wsetup(3, SRD_W, S_SW, 2)
        self.g2_wloads_byclass(3, [(s_, t) for s_ in range(5) for t in range(3)], [(s_, t) for s_ in range(5) for t in range(2)], SRD_W, S_SW, 2, "pfwo")
    def prefetch_w2_rest(self):
        self.g2_wsetup(5, SRD_W, S_SW, 2)
        self.g2_wloads_byclass(5, [(s_, t) for s_ in range(5) for t in range(3)], [], SRD_W, S_SW, 2, "pfw2")

    def p4_epi(self):
        a = self.a
        self.V_T = 2
        T = self.V_T; A = self.V_ACC; CSR = self.V_FR
        B1R = self.V_FR + 32
        a(f"s_cmp_eq_u32 s{S_NT}, 13")
        a(f"s_cselect_b32 s{S_T0}, s{S_WN}, 0")
        a(f"s_cmp_eq_u32 s{S_T0}, 1")
        a(f"s_cbranch_scc1 L_p4_skip")
        self.epi_T_common()
        for g in range(4):
            a(f"ds_read_b128 v[{B1R+4*g}:{B1R+4*g+3}], v{T+7} offset:{ST_B1-ST_CS+32*g}")
        for g in range(4):
            a(f"ds_read_b128 v[{B1R+16+4*g}:{B1R+16+4*g+3}], v{T+1} offset:{ST_B1-ST_CS+32*g}")
        if "rsc1" in self.opt: self.srd(SRD_O, S_WS, OFF_R, SZ_R)
        else: self.srd_twin(S_WS, OFF_R, SZ_R)
        a(f"s_lshl_b32 s{S_T0}, s{S_MT}, 1")
        a(f"s_add_u32 s{S_T0}, s{S_T0}, s{S_WM}")
        a(f"s_mul_i32 s{S_T0}, s{S_T0}, {54*4096}")
        a(f"s_lshl_b32 s{S_T1}, s{S_NT}, 2")
        a(f"s_lshl_b32 s{S_T2}, s{S_WN}, 1")
        a(f"s_add_u32 s{S_T1}, s{S_T1}, s{S_T2}")
        a(f"s_add_u32 s{S_T2}, s{S_T1}, s{S_WM}")
        a(f"s_xor_b32 s{S_T3}, s{S_WM}, 1")
        a(f"s_add_u32 s{S_T3}, s{S_T1}, s{S_T3}")
        a(f"s_lshl_b32 s{S_T2}, s{S_T2}, 12")
        a(f"s_lshl_b32 s{S_T3}, s{S_T3}, 12")
        a(f"s_add_u32 s{S_T4}, s{S_T0}, s{S_T2}")
        a(f"s_add_u32 s{S_T5}, s{S_T0}, s{S_T3}")
        a(f"v_bfe_u32 v{T+8}, v1, 4, 1")
        a(f"v_lshlrev_b32 v{T+8}, 10, v{T+8}")
        a(f"v_and_b32 v{T+9}, 15, v1")
        a(f"v_lshl_add_u32 v{T+8}, v{T+9}, 4, v{T+8}")
        a(f"v_lshl_add_u32 v{T+8}, v{T+6}, 8, v{T+8}")
        a(f"s_waitcnt lgkmcnt(0)")
        for tt in range(2):
            for q in range(2):
                for gp in range(2):
                    for g in (2*gp, 2*gp+1):
                        for i in range(4):
                            r = A + 16*(2*tt+q) + 4*g + i
                            a(f"v_fma_f32 v{r}, v{T+2+2*tt}, v{r}, v{B1R+16*q+4*g+i}")
                            a(f"v_fmac_f32 v{r}, v{T+3+2*tt}, v{CSR+16*q+4*g+i}")
                            a(f"v_max_f32 v{r}, 0, v{r}")
                            a(f"v_mul_f32 v{r}, v{r}, v{r}")
                    r = A + 16*(2*tt+q) + 8*gp
                    a(f"v_cvt_pk_bf16_f32 v{r}, v{r}, v{r+1}")
                    a(f"v_cvt_pk_bf16_f32 v{r+1}, v{r+2}, v{r+3}")
                    a(f"v_cvt_pk_bf16_f32 v{r+2}, v{r+4}, v{r+5}")
                    a(f"v_cvt_pk_bf16_f32 v{r+3}, v{r+6}, v{r+7}")
                    a(f"s_nop 1")
                    a(f"v_permlane32_swap_b32 v{r}, v{r+2}")
                    a(f"v_permlane32_swap_b32 v{r+1}, v{r+3}")
                    if "rsc1" in self.opt:
                        a(f"buffer_store_dwordx4 v[{r}:{r+3}], v{T+8}, s[{SRD_O}:{SRD_O+3}], s{S_T4+q} offen offset:{2048*tt + 512*gp} sc1")
                    else:
                        self.store_twin("buffer_store_dwordx4", f"v[{r}:{r+3}]", T+8, f"s{S_T4+q}", f"offset:{2048*tt + 512*gp}")
        a.put("L_p4_skip")
        self.V_T = 148

    def p4_setup(self):
        a = self.a
        a(f"s_cmp_ge_u32 s{S_GI}, 28")
        a(f"s_cbranch_scc1 L_p4s_done")
        a(f"s_cmp_ge_u32 s{S_GI}, 14")
        a(f"s_cselect_b32 s{S_T0}, 1, 0")
        a(f"s_cselect_b32 s{S_T1}, 14, 0")
        a(f"s_sub_u32 s{S_NT}, s{S_GI}, s{S_T1}")
        a(f"s_lshl_b32 s{S_MT}, s{S_GX}, 1")
        a(f"s_add_u32 s{S_MT}, s{S_MT}, s{S_T0}")
        a(f"s_cmp_ge_u32 s{S_NT}, 10")
        a(f"s_cselect_b32 s{S_T0}, 10, 0")
        a(f"s_sub_u32 s{S_KK}, s{S_NT}, s{S_T0}")
        if "p4norot" in self.opt: a(f"s_mov_b32 s{S_KK}, 0")
        a(f"s_cmp_lt_u32 s{S_W}, 4")
        a(f"s_cbranch_scc1 L_p4s_compute")
        self.V_T = 16
        self.g1_setup_loader(3456)
        self.srd(SRD_A, S_WS, OFF_H, SZ_H)
        self.srd(SRD_W, S_W1, 0, 640*3456)
        T = self.V_T
        self.srd(SRD_T, S_B1, 0, 1728*2)
        a(f"s_sub_u32 s{S_T4}, s{S_W}, 4")
        a(f"s_lshl_b32 s{S_T4}, s{S_T4}, 5")
        a(f"v_and_b32 v{T+10}, 31, v1")
        a(f"v_add_u32 v{T+10}, s{S_T4}, v{T+10}")
        a(f"s_lshl_b32 s{S_T4}, s{S_NT}, 7")
        a(f"v_add_u32 v{T+11}, s{S_T4}, v{T+10}")
        a(f"v_lshlrev_b32 v{T+11}, 1, v{T+11}")
        a(f"buffer_load_ushort v{T+22}, v{T+11}, s[{SRD_T}:{SRD_T+3}], 0 offen")
        a(f"s_mov_b32 s{S_T3}, s{S_KK}")
        for sg in range(3):
            a(f"s_mul_i32 s{S_T4}, s{S_T3}, {64*3456}")
            a(f"s_add_u32 s{S_T4}, s{S_T4}, s{S_SW}")
            for q in range(4):
                a(f"s_add_u32 m0, s{S_M0A}, {sg*32768 + 16384 + q*4096}")
                a(f"s_add_u32 s{S_T2}, s{S_T4}, {q*16*3456}")
                a(f"buffer_load_dwordx4 v{self.V_OFFW}, s[{SRD_W}:{SRD_W+3}], s{S_T2} offen lds")
            a(f"s_add_u32 s{S_T3}, s{S_T3}, 1")
            a(f"s_cmp_eq_u32 s{S_T3}, 10")
            a(f"s_cselect_b32 s{S_T3}, 0, s{S_T3}")
        self.V_T = 148
        a(f"s_branch L_p4s_done")
        a.put("L_p4s_compute")
        self.g1_setup_compute()
        a.put("L_p4s_done")

    def p4(self):
        a = self.a
        a(f"s_cmp_ge_u32 s{S_GI}, 28")
        a(f"s_cbranch_scc1 L_p4_done")
        self.aux_A = self.ld_aux
        self.st1 = 15 if "p4s" in self.opt else None
        a(f"s_cmp_lt_u32 s{S_W}, 4")
        a(f"s_cbranch_scc1 L_p4_compute")
        self.V_T = 16
        for sg in range(3):
            a(f"s_lshl_b32 s{S_T4}, s{S_KK}, 7")
            a(f"s_add_u32 s{S_T4}, s{S_T4}, s{S_SA}")
            for q in range(4):
                a(f"s_add_u32 m0, s{S_M0A}, {sg*32768 + q*4096}")
                a(f"s_add_u32 s{S_T2}, s{S_T4}, {q*32*1280}")
                a(f"buffer_load_dwordx4 v{self.V_OFFA}, s[{SRD_A}:{SRD_A+3}], s{S_T2} offen {self.aux_A} lds")
            a(f"s_add_u32 s{S_KK}, s{S_KK}, 1")
            a(f"s_cmp_eq_u32 s{S_KK}, 10")
            a(f"s_cselect_b32 s{S_KK}, 0, s{S_KK}")
        a(f"s_mov_b32 s{S_SLOT}, {3*32768}")
        self.kk_wrap = 0
        self.b1_hook = True
        self.g1_loader(3456, "p4", "part")
        self.b1_hook = False
        self.V_T = 148
        a(f"s_branch L_p4_done")
        a.put("L_p4_compute")
        self.g1_compute("T", "p4", presetup=True)
        if "p4s" in self.opt: self.stamp(16)
        self.p4_epi()
        if "p4s" in self.opt: self.stamp(17)
        a.put("L_p4_done")

    def code_warm(self):
        a = self.a
        a(f"s_getpc_b64 s[{SRD_T}:{SRD_T+1}]")
        a.put("L_pc_here")
        a(f"s_sub_u32 s{SRD_T}, s{SRD_T}, L_pc_here-{NAME}")
        a(f"s_subb_u32 s{SRD_T+1}, s{SRD_T+1}, 0")
        a(f"s_mov_b32 s{SRD_T+2}, L_end-{NAME}")
        a(f"s_mov_b32 s{SRD_T+3}, 0x20000")
        a(f"v_lshlrev_b32 v254, 7, v0")
        for k in range(self.code_rounds):
            a(f"s_mov_b32 s{S_T0}, {32768*k}")
            a(f"buffer_load_dword v255, v254, s[{SRD_T}:{SRD_T+3}], s{S_T0} offen")

    def epoch_update(self):
        a = self.a
        a(f"s_or_b32 s{S_T0}, s2, s{S_W}")
        a(f"s_cmp_lg_u32 s{S_T0}, 0")
        a(f"s_cbranch_scc1 L_noepoch")
        a(f"v_mov_b32 v2, {OFF_EPOCH}")
        a(f"v_mov_b32 v3, s{S_TAG}")
        a(f"s_mov_b64 exec, 1")
        a(f"buffer_store_dword v3, v2, s[{SRD_F}:{SRD_F+3}], 0 offen sc1")
        a(f"s_mov_b64 exec, -1")
        a.put("L_noepoch")

    def epilogue_stamps(self):
        if getattr(self, "freeze", False): self.stamps = True
        if not self.stamps: return
        a = self.a
        if "dbg" in self.opt:
            a(f"s_or_b32 s{S_T0}, s2, s{S_W}")
            a(f"s_cmp_lg_u32 s{S_T0}, 0")
            a(f"s_cbranch_scc1 L_nodbg")
            self.srd(SRD_T, S_DBG, 0, 256)
            a(f"s_memrealtime s[100:101]")
            a(f"s_waitcnt lgkmcnt(0)")
            a(f"s_sub_u32 s{S_STAMP+15}, s100, s88")
            a(f"s_add_u32 s{S_STAMP+15}, s{S_STAMP+15}, s{S_STAMP}")
            a(f"v_mov_b32 v3, 0")
            a(f"s_mov_b64 exec, 1")
            for i in range(16):
                a(f"s_sub_u32 s{S_T1}, s{S_STAMP+i}, s{S_STAMP}")
                a(f"v_mov_b32 v2, s{S_T1}")
                a(f"buffer_store_dword v2, v3, s[{SRD_T}:{SRD_T+3}], 0 offen offset:{4*i}")
                a(f"s_nop 1")
            a(f"s_mov_b64 exec, -1")
            a.put("L_nodbg")
        a(f"s_waitcnt lgkmcnt(0)")
        a(f"s_lshl_b32 s{S_T0}, s2, 3")
        a(f"s_add_u32 s{S_T0}, s{S_T0}, s{S_W}")
        a(f"s_lshl_b32 s{S_T0}, s{S_T0}, 7")
        a(f"s_add_u32 s{S_T0}, s{S_T0}, 0x80000")
        a(f"v_mov_b32 v3, s{S_T0}")
        a(f"s_mov_b64 exec, 1")
        a(f"s_memrealtime s[100:101]")
        a(f"s_waitcnt lgkmcnt(0)")
        a(f"s_sub_u32 s{S_T1}, s100, s88")
        a(f"v_mov_b32 v2, s{S_T1}")
        a(f"buffer_store_dword v2, v3, s[{SRD_F}:{SRD_F+3}], 0 offen offset:{4*31}")
        a(f"v_mov_b32 v2, s88")
        a(f"buffer_store_dword v2, v3, s[{SRD_F}:{SRD_F+3}], 0 offen offset:{4*30}")
        for i in range(self.nstamp):
            a(f"s_sub_u32 s{S_T1}, s{S_STAMP+i}, s{S_STAMP}")
            a(f"v_mov_b32 v2, s{S_T1}")
            a(f"buffer_store_dword v2, v3, s[{SRD_F}:{SRD_F+3}], 0 offen offset:{4*i}")
            a(f"s_nop 1")
        a(f"s_mov_b64 exec, -1")

    def build(self):
        a = self.a
        self.prologue()
        self.p1()
        self.p1_signal()
        if self.stop_after != "p1":
            self.p2()
            if self.stop_after != "p2":
                self.V_S = 66
                self.group_barrier(0, "gb23", S_QB, S_HEAD, hook=self.hook23)
                self.stamp(9)
                self.g2(3)
                self.stamp(10)
                if self.stop_after != "p3":
                    self.group_barrier(1, "gb34", hook=self.hook34, local=True)
                    self.stamp(11)
                    self.p4()
                    self.stamp(12)
                    if self.stop_after != "p4":
                        self.group_barrier(2, "gb45", hook=self.hook45, local=True)
                        self.stamp(13)
                        self.g2(5)
            a(f"s_waitcnt vmcnt(0)")
            self.stamp(14)
        self.epoch_update()
        self.epilogue_stamps()
        a(f"s_waitcnt vmcnt(0)")
        a.put("L_end")
        a("s_endpgm")
        return a

import struct
def f32(x):
    return struct.unpack("<I", struct.pack("<f", x))[0]

HEADER = open("sequential_preLN__mha_block__dense_activation_squared_relu__prompt.s.ref").read().split("; Override launch geometry")[0]

def wrap(body, lds=163840, vgpr=256):
    s = HEADER
    s += f"; @launch grid=(256,1,1) block=(512,1,1) lds={lds}\n"
    s += '.amdgcn_target "amdgcn-amd-amdhsa--gfx950"\n.text\n'
    s += f".globl {NAME}\n.p2align 8\n.type {NAME},@function\n{NAME}:\n"
    s += body
    s += f"""
.section .rodata,"a"
.p2align 6
.amdhsa_kernel {NAME}
  .amdhsa_next_free_vgpr {vgpr}
  .amdhsa_next_free_sgpr 102
  .amdhsa_accum_offset {vgpr}
  .amdhsa_group_segment_fixed_size 0
  .amdhsa_kernarg_size 88
  .amdhsa_user_sgpr_count 2
  .amdhsa_user_sgpr_kernarg_segment_ptr 1
  .amdhsa_system_sgpr_workgroup_id_x 1
.end_amdhsa_kernel
"""
    return s

if __name__ == "__main__":
    import argparse
    ap = argparse.ArgumentParser()
    ap.add_argument("-o", default="out.s")
    ap.add_argument("--stop", default=None)
    ap.add_argument("--stamps", action="store_true")
    ap.add_argument("--opt", default="")
    ap.add_argument("--plow", default=None)
    args = ap.parse_args()
    g = Gen(stop_after=args.stop, stamps=args.stamps, opt=[o for o in args.opt.split(',') if o])
    if "ws1" in g.opt: g.warm_slots = {'dst': 48, 'w1': 52}
    if "ws2" in g.opt: g.warm_slots = {'w1': 48, 'dst': 52}
    if "ws3" in g.opt: g.warm_slots = {'w1': 48, 'dst': 49, 'wp': 50}
    if "ws0" in g.opt: g.warm_slots = {}
    if "low2" in g.opt: g.low_tiles = 2
    if "low3" in g.opt: g.low_tiles = 3
    if args.plow is not None: g.prio_low = tuple(int(x) for x in args.plow.split(",") if x)
    a = g.build()
    rep = check(a.L)
    for r in rep: print(r)
    open(args.o, "w").write(wrap(a.text()))
    print("wrote", args.o, len(a.L), "lines;", len(rep), "hazards")
```

```python
import sys, math
sys.path.insert(0, "gen")
from asmlib import Asm, vr, sr, check

NAME = "sequential_preLN__mha_block__dense_activation_squared_relu__prompt_kernel"

OFF_EPOCH = 0
OFF_ALL   = 0x1000
OFF_GB    = 0x50000
OFF_MB1   = 65536
OFF_GR    = 0x68000
OFF_PST   = 0xC0000
OFF_Q     = 0x100000
OFF_KV    = 0x400000
OFF_O     = 0xA00000
OFF_H     = 0xD00000
OFF_R     = 0x1000000
OFF_WOP   = 0x1700000
OFF_W2P   = 0x1800000
SZ_Q = 32*64*1280
SZ_KV = 32*64*2560
SZ_O = 32*20*4096
SZ_H = 2048*1280
SZ_R = 32*54*4096
SZ_WOP = 20*40*1024
SZ_W2P = 54*40*1024

S_KA = 0; S_WG = 2; S_W = 3
S_X = 4; S_WQKV = 6; S_WO = 8; S_W1 = 12; S_B1 = 14; S_W2 = 16; S_B2 = 18; S_OUT = 20; S_DBG = 22; S_WS = 24
S_TAG = 26; S_GX = 27
SRD_A = 28; SRD_W = 32; SRD_O = 36; SRD_F = 40; SRD_T = 44
S_GI = 48
S_MT = 49; S_NT = 50; S_KK = 51; S_CNT = 52; S_SLOT = 53
S_SA = 54; S_SW = 55; S_T0 = 56; S_T1 = 57; S_T2 = 58; S_T3 = 59; S_T4 = 60; S_T5 = 61
S_M0A = 62; S_WM = 63; S_WN = 64; S_DELTA = 65; S_ONES = 66; S_ROT4 = 67; S_RLW = 68; S_RSLOT = 69; S_HEAD = 66; S_QB = 67
S_STAMP = 70
S_SAVE = 90
S_OOB = 53
S_XCC = 10; S_FAST = 11
SRD_P = 96

LDS_STATS = 0
ST_PX, ST_PQ, ST_PC, ST_AA, ST_BB, ST_CS, ST_B1 = 0, 4096, 8192, 9216, 9728, 10240, 10752
LDS_RL = 32768

class Gen:
    def __init__(self, stop_after=None, stamps=False, opt=()):
        self.opt = set(opt)
        self.a = Asm()
        self.stop_after = stop_after
        self.stamps = stamps
        self.nstamp = 0
        self.code_rounds = 2
        self.out_aux = 'nt' if 'outnt' in self.opt else ('sc1' if 'outsc1' in self.opt else '')
        self.evtag = 'u'
        self.kk_wrap = 2
        global LDS_STATS, LDS_RL
        if "ns5" not in self.opt:
            self.NSLOT = 4; LDS_STATS = 131072; LDS_RL = 131072 + 12288
        else:
            self.NSLOT = 5; LDS_STATS = 0; LDS_RL = 32768
        self.fast_aux = "nt" if "fnt" in self.opt else ("sc0" if "fsc0" in self.opt else ("sc0 nt" if "fsc0nt" in self.opt else ""))
        self.opt_g2 = "3" if "g2s3" in self.opt else ("5" if "g2s5" in self.opt else "")
        self.ld_aux = "" if "plainld" in self.opt else "sc1"

    def srd(self, dst, base_s, off, size):
        a = self.a
        if off:
            a(f"s_add_u32 s{dst}, s{base_s}, {hex(off)}")
            a(f"s_addc_u32 s{dst+1}, s{base_s+1}, 0")
        else:
            a(f"s_mov_b32 s{dst}, s{base_s}")
            a(f"s_mov_b32 s{dst+1}, s{base_s+1}")
        a(f"s_mov_b32 s{dst+2}, {hex(size)}")
        a(f"s_mov_b32 s{dst+3}, 0x20000")

    def csel(self, dst, x, y):
        self.a(f"s_mov_b32 s{dst}, {y}")
        self.a(f"s_cselect_b32 s{dst}, {x}, s{dst}")

    def withT(self, T, fn, *args, **kw):
        old = self.V_T; self.V_T = T
        r = fn(*args, **kw)
        self.V_T = old
        return r

    def srd_twin(self, base_s, off, size):
        a = self.a
        self.srd(SRD_O, base_s, off, size)
        a(f"s_mov_b32 s{SRD_P}, s{SRD_O}")
        a(f"s_mov_b32 s{SRD_P+1}, s{SRD_O+1}")
        a(f"s_mov_b32 s{SRD_P+3}, 0x20000")
        a(f"s_cmp_eq_u32 s{S_FAST}, 1")
        a(f"s_cselect_b32 s{SRD_P+2}, s{SRD_O+2}, 0")
        a(f"s_cselect_b32 s{SRD_O+2}, 0, s{SRD_O+2}")
    def store_twin(self, op, data, vaddr, soff, extra=""):
        a = self.a
        a(f"{op} {data}, v{vaddr}, s[{SRD_O}:{SRD_O+3}], {soff} offen {extra} sc1")
        a(f"{op} {data}, v{vaddr}, s[{SRD_P}:{SRD_P+3}], {soff} offen {extra} {self.fast_aux}")

    def set_exec(self, mask):
        mask = int(str(mask), 0) & 0xFFFFFFFFFFFFFFFF
        if mask == 0xFFFFFFFFFFFFFFFF: self.a("s_mov_b64 exec, -1")
        elif mask < 0x80000000: self.a(f"s_mov_b64 exec, {hex(mask)}")
        else:
            self.a(f"s_mov_b32 exec_lo, {hex(mask & 0xffffffff)}")
            self.a(f"s_mov_b32 exec_hi, {hex(mask >> 32)}")

    def stamp(self, i=None):
        if not self.stamps: return
        if i is None: return
        self.nstamp = max(self.nstamp, i + 1)
        self.a(f"s_memtime s[100:101]")
        self.a(f"s_waitcnt lgkmcnt(0)")
        self.a(f"s_mov_b32 s{S_STAMP+i}, s100")

    def prologue(self):
        a = self.a
        a(f"s_cmp_ge_u32 s2, 256")
        a(f"s_cbranch_scc1 L_end")
        self.stamp(0)
        if self.stamps: a(f"s_memrealtime s[88:89]")
        a(f"s_load_dwordx16 s[4:19], s[0:1], 0")
        a(f"s_load_dwordx4 s[20:23], s[0:1], 64")
        a(f"s_load_dwordx2 s[24:25], s[0:1], 80")
        a(f"v_lshrrev_b32 v2, 6, v0")
        a(f"v_and_b32 v1, 63, v0")
        a(f"v_readfirstlane_b32 s{S_W}, v2")
        a(f"s_and_b32 s{S_GX}, s2, 7")
        a(f"s_lshr_b32 s{S_GI}, s2, 3")
        a(f"s_mov_b32 s{S_ONES}, 0x3f803f80")
        a(f"s_lshr_b32 s{S_WM}, s{S_W}, 2")
        a(f"s_and_b32 s{S_WN}, s{S_W}, 3")

    def finish_tag(self):
        a = self.a
        a(f"s_waitcnt lgkmcnt(0)")
        a(f"s_mul_i32 s{S_TAG}, s{S_TAG}, 0x9E3779B1")
        a(f"s_add_u32 s{S_TAG}, s{S_TAG}, 0x7F4A7C15")

    V_OFFA = 2; V_OFFW = 3
    V_AA = 2
    V_AWA = 6; V_AWB = 7
    V_AW2A = 0; V_AW2B = 1
    V_CSA = 8
    V_CSD = 12
    V_FR = 16
    V_ACC = 80
    V_T = 148
    V_S = 136
    POLLW = 0
    V_LA = 4
    V_LS = 8
    V_LD = 20
    V_LU = 40
    NSLOT = 5

    def g1_setup_loader(self, WS):
        a = self.a
        T = self.V_T
        a(f"s_sub_u32 s{S_T4}, s{S_W}, 4")
        a(f"v_lshrrev_b32 v{T}, 4, v1")
        a(f"s_lshl_b32 s{S_T0}, s{S_T4}, 2")
        a(f"v_add_u32 v{T+1}, s{S_T0}, v{T}")
        a(f"v_and_b32 v{T+1}, 7, v{T+1}")
        a(f"v_and_b32 v{T+2}, 7, v1")
        a(f"v_xor_b32 v{T+1}, v{T+1}, v{T+2}")
        a(f"v_lshlrev_b32 v{T+1}, 4, v{T+1}")
        a(f"v_lshrrev_b32 v{T+2}, 3, v1")
        a(f"v_mul_u32_u24 v{T+2}, 1280, v{T+2}")
        a(f"v_add_u32 v{self.V_OFFA}, v{T+1}, v{T+2}")
        a(f"v_lshlrev_b32 v{T+1}, 2, v{T}")
        a(f"v_and_b32 v{T+2}, 15, v1")
        a(f"v_xor_b32 v{T+1}, v{T+1}, v{T+2}")
        a(f"v_lshlrev_b32 v{T+1}, 4, v{T+1}")
        a(f"v_mul_u32_u24 v{T+2}, {WS}, v{T}")
        a(f"v_add_u32 v{self.V_OFFW}, v{T+1}, v{T+2}")
        a(f"s_lshl_b32 s{S_T0}, s{S_MT}, 7")
        a(f"s_lshl_b32 s{S_T1}, s{S_T4}, 3")
        a(f"s_add_u32 s{S_T0}, s{S_T0}, s{S_T1}")
        a(f"s_mul_i32 s{S_SA}, s{S_T0}, 1280")
        a(f"s_mul_i32 s{S_T0}, s{S_T4}, {4*WS}")
        a(f"s_lshl_b32 s{S_T1}, s{S_NT}, 8")
        a(f"s_add_u32 s{S_SW}, s{S_T0}, s{S_T1}")
        a(f"s_lshl_b32 s{S_M0A}, s{S_T4}, 10")
        a(f"s_mov_b32 s{S_SLOT}, 0")

    def g1_dma1(self, WS, q):
        a = self.a
        if q == 0:
            a(f"s_lshl_b32 s{S_T2}, s{S_KK}, 7")
            a(f"s_add_u32 s{S_T2}, s{S_T2}, s{S_SA}")
            a(f"s_add_u32 m0, s{S_SLOT}, s{S_M0A}")
            a(f"s_mul_i32 s{S_T3}, s{S_KK}, {64*WS}")
        elif q == 4:
            a(f"s_add_u32 s{S_T2}, s{S_T3}, s{S_SW}")
            a(f"s_add_u32 m0, m0, 4096")
            a(f"s_nop 0")
        else:
            a(f"s_add_u32 m0, m0, 4096")
            a(f"s_add_u32 s{S_T2}, s{S_T2}, {32*1280 if q < 4 else 16*WS}")
        if q < 4:
            a(f"buffer_load_dwordx4 v{self.V_OFFA}, s[{SRD_A}:{SRD_A+3}], s{S_T2} offen {self.aux_A} lds")
        else:
            a(f"buffer_load_dwordx4 v{self.V_OFFW}, s[{SRD_W}:{SRD_W+3}], s{S_T2} offen lds")
        if q == 7:
            a(f"s_add_u32 s{S_KK}, s{S_KK}, 1")
            a(f"s_cmp_eq_u32 s{S_KK}, 10")
            a(f"s_cselect_b32 s{S_KK}, {self.kk_wrap}, s{S_KK}")
            a(f"s_add_u32 s{S_SLOT}, s{S_SLOT}, 32768")
            a(f"s_cmp_eq_u32 s{S_SLOT}, {self.NSLOT*32768}")
            a(f"s_cselect_b32 s{S_SLOT}, 0, s{S_SLOT}")

    def g1_dma_stage(self, WS):
        for q in range(8): self.g1_dma1(WS, q)

    def slot_next(self):
        a = self.a
        a(f"s_add_u32 s{S_RSLOT}, s{S_RSLOT}, 1")
        a(f"s_cmp_eq_u32 s{S_RSLOT}, {self.NSLOT}")
        a(f"s_cselect_b32 s{S_RSLOT}, 0, s{S_RSLOT}")
        a(f"s_cmp_eq_u32 s{S_RSLOT}, {self.NSLOT-1}")
        self.csel(S_DELTA, hex((-(self.NSLOT-1)*32768) & 0xffffffff), 32768)

    def g1_loader(self, WS, tag, mode):
        a = self.a
        T = self.V_T
        pre = self.NSLOT - 1
        nx = 1 if mode == "gran" else 4
        if mode == "gran":
            for q in range(8):
                self.g1_dma1(WS, q)
            a(f"s_waitcnt vmcnt(16)")
            if "p1s" in self.opt: self.stamp(18)
            a(f"s_barrier")
            if pre == 4:
                for q in range(8):
                    self.g1_dma1(WS, q)
            self.tag_ready()
        else:
            a(f"s_waitcnt vmcnt(8)")
            a(f"s_barrier")
            if pre == 4:
                for q in range(8):
                    self.g1_dma1(WS, q)
                a(f"s_waitcnt vmcnt(8)")
            else:
                a(f"s_waitcnt vmcnt(4)")
        a(f"s_mov_b32 s{S_CNT}, 0")
        L1 = f"L_{tag}_lloop"
        a.put(L1)
        a(f"s_add_u32 s{S_CNT}, s{S_CNT}, 1")
        a(f"s_waitcnt vmcnt({8*(pre-2)})")
        a(f"s_barrier")
        for q in range(8):
            if "nodma" not in self.opt: self.g1_dma1(WS, q)
        a(f"s_cmp_lt_u32 s{S_CNT}, {10-pre}")
        a(f"s_cbranch_scc1 {L1}")
        a(f"s_sub_u32 s{S_T4}, s{S_W}, 4")
        a(f"s_lshl_b32 s{S_T0}, s{S_T4}, 5")
        a(f"v_and_b32 v{T}, 31, v1")
        a(f"v_add_u32 v{T}, s{S_T0}, v{T}")
        a(f"s_lshl_b32 s{S_T1}, s{S_MT}, 7")
        a(f"v_add_u32 v{T+1}, s{S_T1}, v{T}")
        if mode == "gran":
            a(f"v_lshlrev_b32 v{T+1}, 4, v{T+1}")
            a(f"v_add_u32 v{T+1}, {hex(OFF_GR)}, v{T+1}")
            a(f"buffer_load_dwordx4 v[{T+4}:{T+7}], v{T+1}, s[{SRD_F}:{SRD_F+3}], 0 offen sc1")
        else:
            a(f"v_lshlrev_b32 v{T+1}, 7, v{T+1}")
            a(f"v_lshrrev_b32 v{T+2}, 5, v1")
            a(f"v_lshl_add_u32 v{T+1}, v{T+2}, 6, v{T+1}")
            a(f"v_add_u32 v{T+1}, {hex(OFF_PST)}, v{T+1}")
            for q in range(4):
                a(f"buffer_load_dwordx4 v[{T+4+4*q}:{T+7+4*q}], v{T+1}, s[{SRD_F}:{SRD_F+3}], 0 offen offset:{16*q} {self.ld_aux}")
        late = 0
        if pre == 4:
            a(f"s_waitcnt vmcnt({16+nx})")
            a(f"s_barrier")
        a(f"s_waitcnt vmcnt({8+nx})")
        a(f"s_barrier")
        rl = 0
        if mode == "gran":
            self.withT(T + 24, self.relayout_load)
            rl = 4
        a(f"s_waitcnt vmcnt({nx+rl})")
        a(f"s_barrier")
        if mode != "gran" and "now2rest" not in self.opt:
            self.g2_wsetup(5, SRD_T, S_SW, T + 24)
            for s_ in range(5):
                for t in range(3):
                    self.g2_wload1(5, 3, s_, t, SRD_T, S_SW, T + 24)
            late = 15
        a(f"s_barrier")
        a(f"s_waitcnt vmcnt({late+rl})")
        if mode == "gran":
            Lp = f"L_{tag}_gpoll"; Lo = f"L_{tag}_gok"
            a(f"s_mov_b32 s{S_T0}, 0")
            a.put(Lp)
            a(f"v_cmp_ne_u32 vcc, s{S_TAG}, v{T+6}")
            a(f"v_cmp_ne_u32 s[{S_SAVE}:{S_SAVE+1}], s{S_TAG}, v{T+7}")
            a(f"s_nop 1")
            a(f"s_or_b64 vcc, vcc, s[{S_SAVE}:{S_SAVE+1}]")
            a(f"s_cbranch_vccz {Lo}")
            a(f"s_add_u32 s{S_T0}, s{S_T0}, 1")
            a(f"s_cmp_ge_u32 s{S_T0}, 0x40000")
            a(f"s_cbranch_scc1 {Lo}")
            a(f"buffer_load_dwordx4 v[{T+4}:{T+7}], v{T+1}, s[{SRD_F}:{SRD_F+3}], 0 offen sc1")
            a(f"s_waitcnt vmcnt(0)")
            a(f"s_branch {Lp}")
            a.put(Lo)
            A_, B_ = T+4, T+5
        else:
            for q in range(1, 4):
                for i in range(4):
                    a(f"v_add_f32 v{T+4+i}, v{T+4+i}, v{T+4+4*q+i}")
            a(f"v_add_f32 v{T+4}, v{T+4}, v{T+6}")
            a(f"v_add_f32 v{T+5}, v{T+5}, v{T+7}")
            a(f"v_mov_b32 v{T+6}, v{T+4}")
            a(f"v_mov_b32 v{T+7}, v{T+5}")
            a(f"s_nop 1")
            a(f"v_permlane32_swap_b32 v{T+6}, v{T+4}")
            a(f"v_permlane32_swap_b32 v{T+7}, v{T+5}")
            a(f"s_nop 1")
            a(f"v_add_f32 v{T+4}, v{T+4}, v{T+6}")
            a(f"v_add_f32 v{T+5}, v{T+5}, v{T+7}")
            self.ab_from_sums(T+4, T+5, T+8)
            A_, B_ = T+9, T+8
        a(f"v_lshlrev_b32 v{T}, 2, v{T}")
        a(f"v_add_u32 v{T}, {LDS_STATS}, v{T}")
        a(f"ds_write_b32 v{T}, v{A_} offset:{ST_AA}")
        a(f"ds_write_b32 v{T}, v{B_} offset:{ST_BB}")
        if getattr(self, "b1_hook", False):
            a(f"v_lshlrev_b32 v{T+22}, 16, v{T+22}")
            a(f"ds_write_b32 v{T}, v{T+22} offset:{ST_B1}")
        a(f"s_waitcnt lgkmcnt(0)")
        a(f"s_barrier")

    def ab_from_sums(self, sx, sq, o):
        a = self.a
        a(f"v_mul_f32 v{o}, {hex(f32(1.0/640))}, v{sx}")
        a(f"v_mul_f32 v{o+1}, {hex(f32(1.0/640))}, v{sq}")
        a(f"v_fma_f32 v{o+1}, -v{o}, v{o}, v{o+1}")
        a(f"v_max_f32 v{o+1}, 0, v{o+1}")
        a(f"v_add_f32 v{o+1}, {hex(f32(1e-5))}, v{o+1}")
        a(f"v_rsq_f32 v{o+1}, v{o+1}")
        a(f"s_nop 0")
        a(f"v_mul_f32 v{o}, v{o}, v{o+1}")
        a(f"v_sub_f32 v{o}, 0, v{o}")

    V_WRM = 252
    S_WRM = 62; S_WRMD = 54
    def p1_l2warm(self):
        a = self.a
        T = self.V_T; V = self.V_WRM
        LW = "L_warm_w"; LJ = "L_warm_j"
        a(f"s_bitcmp1_b32 s{S_W}, 0")
        a(f"s_cbranch_scc1 {LW}")
        self.srd(SRD_T, S_X, 0, 2048*1280)
        a(f"s_and_b32 s{S_T0}, s{S_GX}, 3")
        a(f"s_lshl_b32 s{S_T0}, s{S_T0}, 9")
        a(f"s_lshl_b32 s{S_T1}, s{S_GI}, 4")
        a(f"s_add_u32 s{S_T0}, s{S_T0}, s{S_T1}")
        a(f"v_add_u32 v{T}, s{S_T0}, v1")
        a(f"v_mul_u32_u24 v{V}, 1280, v{T}")
        a(f"v_cmp_gt_u32 vcc, 16, v1")
        a(f"s_mov_b32 s{self.S_WRMD}, 128")
        a(f"s_branch {LJ}a")
        a.put(LW)
        self.srd(SRD_T, S_WQKV, 0, 640*3840)
        a(f"v_lshrrev_b32 v{T}, 4, v1")
        a(f"s_lshl_b32 s{S_T0}, s{S_GI}, 1")
        a(f"v_add_u32 v{T}, s{S_T0}, v{T}")
        a(f"v_mul_u32_u24 v{V}, 3840, v{T}")
        a(f"v_and_b32 v{T+1}, 15, v1")
        a(f"v_lshl_add_u32 v{V}, v{T+1}, 7, v{V}")
        a(f"s_lshr_b32 s{S_T0}, s{S_GX}, 2")
        a(f"s_lshl_b32 s{S_T0}, s{S_T0}, 11")
        a(f"v_add_u32 v{V}, s{S_T0}, v{V}")
        a(f"v_cmp_gt_u32 vcc, 32, v1")
        a(f"s_mov_b32 s{self.S_WRMD}, {64*3840}")
        a.put(LJ + "a")
        a(f"s_cmp_ge_u32 s{S_W}, 2")
        a(f"s_cselect_b64 s[{S_SAVE}:{S_SAVE+1}], 0, vcc")
        a(f"v_mov_b32 v{T+1}, 0x7f000000")
        a(f"s_nop 0")
        a(f"v_cndmask_b32 v{V}, v{T+1}, v{V}, s[{S_SAVE}:{S_SAVE+1}]")
        a(f"s_mul_i32 s{self.S_WRM}, s{self.S_WRMD}, 3")
        for c in range(3):
            self.warm1()

    def warm1(self):
        a = self.a
        a(f"buffer_load_dword v253, v{self.V_WRM}, s[{SRD_T}:{SRD_T+3}], s{self.S_WRM} offen")
        a(f"s_add_u32 s{self.S_WRM}, s{self.S_WRM}, s{self.S_WRMD}")

    def w1_l2warm_keepT(self):
        self.w1_l2warm()

    def w1_l2warm(self):
        a = self.a
        V = self.A_ALL + 1
        self.srd(SRD_O, S_W1, 0, 640*3456)
        a(f"s_mul_i32 s{S_T0}, s{S_GI}, 540")
        a(f"s_lshl_b32 s{S_T1}, s{S_W}, 6")
        a(f"s_add_u32 s{S_T0}, s{S_T0}, s{S_T1}")
        a(f"v_add_u32 v{V}, s{S_T0}, v1")
        a(f"v_lshlrev_b32 v{V}, 7, v{V}")
        a(f"buffer_load_dword v{V+1}, v{V}, s[{SRD_O}:{SRD_O+3}], 0 offen")
        L = f"L_w1w_skip{self.evtag}"
        a(f"s_cmp_lg_u32 s{S_W}, 0")
        a(f"s_cbranch_scc1 {L}")
        self.set_exec((1 << 28) - 1)
        a(f"s_mov_b32 s{S_T1}, {512*128}")
        a(f"buffer_load_dword v{V+1}, v{V}, s[{SRD_O}:{SRD_O+3}], s{S_T1} offen")
        a(f"s_mov_b64 exec, -1")
        a(f"v_lshlrev_b32 v{V+2}, 7, v1")
        self.srd(SRD_O, S_B1, 0, 3456)
        a(f"buffer_load_dword v{V+1}, v{V+2}, s[{SRD_O}:{SRD_O+3}], 0 offen")
        self.srd(SRD_O, S_B2, 0, 1280)
        a(f"buffer_load_dword v{V+1}, v{V+2}, s[{SRD_O}:{SRD_O+3}], 0 offen")
        a.put(L)

    def dst_l2warm(self):
        a = self.a
        V = self.A_ALL + 1
        L = f"L_dstw_skip{self.evtag}"
        a(f"s_cmp_eq_u32 s{S_FAST}, 0")
        a(f"s_cbranch_scc1 {L}")
        self.srd(SRD_O, S_WS, 0, 0x1B00000)
        a(f"s_lshl_b32 s{S_T0}, s{S_W}, 6")
        a(f"v_add_u32 v{V}, s{S_T0}, v1")
        a(f"s_mul_i32 s{S_T0}, s{S_GX}, 2560")
        a(f"s_mul_i32 s{S_T1}, s{S_GI}, 80")
        a(f"s_add_u32 s{S_T0}, s{S_T0}, s{S_T1}")
        a(f"s_add_u32 s{S_T0}, s{S_T0}, {OFF_H//128}")
        a(f"s_mul_i32 s{S_T1}, s{S_GX}, 6912")
        a(f"s_mul_i32 s{S_T2}, s{S_GI}, 216")
        a(f"s_add_u32 s{S_T1}, s{S_T1}, s{S_T2}")
        a(f"s_add_u32 s{S_T1}, s{S_T1}, {OFF_R//128 - 80}")
        a(f"s_lshl_b32 s{S_T2}, s{S_GX}, 8")
        a(f"s_lshl_b32 s{S_T3}, s{S_GI}, 3")
        a(f"s_add_u32 s{S_T2}, s{S_T2}, s{S_T3}")
        a(f"s_add_u32 s{S_T2}, s{S_T2}, {OFF_PST//128 - 296}")
        a(f"v_mov_b32 v{V+2}, s{S_T2}")
        a(f"v_mov_b32 v{V+1}, s{S_T1}")
        a(f"v_cmp_gt_u32 vcc, 296, v{V}")
        a(f"s_nop 1")
        a(f"v_cndmask_b32 v{V+2}, v{V+2}, v{V+1}, vcc")
        a(f"v_mov_b32 v{V+1}, s{S_T0}")
        a(f"v_cmp_gt_u32 vcc, 80, v{V}")
        a(f"s_nop 1")
        a(f"v_cndmask_b32 v{V+2}, v{V+2}, v{V+1}, vcc")
        a(f"v_add_u32 v{V+2}, v{V+2}, v{V}")
        a(f"v_lshlrev_b32 v{V+2}, 7, v{V+2}")
        a(f"v_cmp_gt_u32 vcc, 304, v{V}")
        a(f"s_and_saveexec_b64 s[{S_SAVE}:{S_SAVE+1}], vcc")
        a(f"s_cbranch_execz {L}x")
        a(f"buffer_load_dword v{V+1}, v{V+2}, s[{SRD_O}:{SRD_O+3}], 0 offen")
        a.put(L + "x")
        a(f"s_mov_b64 exec, -1")
        a.put(L)

    def wp_l2warm(self):
        a = self.a
        V = self.A_ALL + 1
        a(f"s_cmp_lt_u32 s{S_W}, 4")
        self.csel(S_T0, hex(OFF_WOP), hex(OFF_W2P))
        a(f"s_add_u32 s{SRD_O}, s{S_WS}, s{S_T0}")
        a(f"s_addc_u32 s{SRD_O+1}, s{S_WS+1}, 0")
        a(f"s_mov_b32 s{SRD_O+2}, {SZ_WOP}")
        a(f"s_mov_b32 s{SRD_O+3}, 0x20000")
        a(f"s_and_b32 s{S_T0}, s{S_W}, 3")
        a(f"s_lshl_b32 s{S_T0}, s{S_T0}, 6")
        a(f"v_add_u32 v{V}, s{S_T0}, v1")
        a(f"v_cmp_gt_u32 vcc, 200, v{V}")
        a(f"s_mul_i32 s{S_T0}, s{S_GI}, 200")
        a(f"v_add_u32 v{V}, s{S_T0}, v{V}")
        a(f"v_lshlrev_b32 v{V}, 7, v{V}")
        a(f"s_and_saveexec_b64 s[{S_SAVE}:{S_SAVE+1}], vcc")
        a(f"s_cbranch_execz L_wpw_x{self.evtag}")
        a(f"buffer_load_dword v{V+1}, v{V}, s[{SRD_O}:{SRD_O+3}], 0 offen")
        a.put(f"L_wpw_x{self.evtag}")
        a(f"s_mov_b64 exec, -1")

    def xstats_publish(self):
        a = self.a
        T = self.V_T
        self.srd(SRD_O, S_X, 0, 2048*1280)
        a(f"s_lshl_b32 s{S_T0}, s2, 3")
        a(f"s_lshl_b32 s{S_T1}, s{S_W}, 1")
        a(f"s_add_u32 s{S_T0}, s{S_T0}, s{S_T1}")
        a(f"v_lshrrev_b32 v{T}, 5, v1")
        a(f"v_add_u32 v{T}, s{S_T0}, v{T}")
        a(f"v_mul_u32_u24 v{T+1}, 1280, v{T}")
        a(f"v_and_b32 v{T+2}, 31, v1")
        a(f"v_lshl_add_u32 v{T+1}, v{T+2}, 3, v{T+1}")
        D = T + 4
        for j in range(5):
            a(f"buffer_load_dwordx2 v[{D+2*j}:{D+2*j+1}], v{T+1}, s[{SRD_O}:{SRD_O+3}], 0 offen offset:{256*j}")
        return D

    def xstats_finish(self, D):
        a = self.a
        T = self.V_T
        S = T + 16
        a(f"v_mov_b32 v{S}, 0"); a(f"v_mov_b32 v{S+1}, 0")
        a(f"s_waitcnt vmcnt(0)")
        for r in range(10):
            a(f"v_lshlrev_b32 v{S+2}, 16, v{D+r}")
            a(f"v_and_b32 v{S+3}, 0xffff0000, v{D+r}")
            a(f"v_add_f32 v{S}, v{S}, v{S+2}")
            a(f"v_fmac_f32 v{S+1}, v{S+2}, v{S+2}")
            a(f"v_add_f32 v{S}, v{S}, v{S+3}")
            a(f"v_fmac_f32 v{S+1}, v{S+3}, v{S+3}")
        for ctl in ("row_shr:1", "row_shr:2", "row_shr:4", "row_shr:8"):
            a(f"s_nop 1")
            a(f"v_add_f32_dpp v{S}, v{S}, v{S} {ctl} row_mask:0xf bank_mask:0xf bound_ctrl:0")
            a(f"v_add_f32_dpp v{S+1}, v{S+1}, v{S+1} {ctl} row_mask:0xf bank_mask:0xf bound_ctrl:0")
        a(f"s_nop 1")
        a(f"v_add_f32_dpp v{S}, v{S}, v{S} row_bcast:15 row_mask:0xa bank_mask:0xf")
        a(f"v_add_f32_dpp v{S+1}, v{S+1}, v{S+1} row_bcast:15 row_mask:0xa bank_mask:0xf")
        a(f"s_nop 1")
        self.ab_from_sums(S, S+1, S+5)
        a(f"v_mov_b32 v{S+8}, v{S+6}")
        a(f"v_mov_b32 v{S+9}, v{S+5}")
        self.tag_ready()
        a(f"v_mov_b32 v{S+10}, s{S_TAG}")
        a(f"v_mov_b32 v{S+11}, s{S_TAG}")
        a(f"v_lshlrev_b32 v{T}, 4, v{T}")
        a(f"v_add_u32 v{T}, {hex(OFF_GR)}, v{T}")
        a(f"s_mov_b32 exec_lo, 0x80000000")
        a(f"s_mov_b32 exec_hi, 0x80000000")
        a(f"buffer_store_dwordx4 v[{S+8}:{S+11}], v{T}, s[{SRD_F}:{SRD_F+3}], 0 offen sc1")
        a(f"s_mov_b64 exec, -1")

    def tag_ready(self):
        a = self.a
        a(f"s_waitcnt lgkmcnt(0)")
        a(f"s_getreg_b32 s{S_XCC}, hwreg(HW_REG_XCC_ID, 0, 4)")
        a(f"s_mov_b32 s{S_FAST}, 0")
        a(f"s_mul_i32 s{S_TAG}, s{S_TAG}, 0x9E3779B1")
        a(f"s_add_u32 s{S_TAG}, s{S_TAG}, 0x7F4A7C15")

    def g1_setup_compute(self):
        a = self.a
        T = self.V_FR
        a(f"s_lshr_b32 s{S_WM}, s{S_W}, 1")
        a(f"s_and_b32 s{S_WN}, s{S_W}, 1")
        a(f"v_and_b32 v{T}, 31, v1")
        a(f"s_lshl_b32 s{S_T0}, s{S_WM}, 6")
        a(f"v_add_u32 v{T+1}, s{S_T0}, v{T}")
        a(f"v_lshlrev_b32 v{T+1}, 7, v{T+1}")
        a(f"v_bfe_u32 v{T+2}, v{T}, 1, 3")
        a(f"v_lshrrev_b32 v{T+3}, 5, v1")
        a(f"v_xor_b32 v{T+2}, v{T+2}, v{T+3}")
        for j in range(4):
            a(f"v_xor_b32 v{self.V_AA+j}, {2*j}, v{T+2}")
            a(f"v_lshlrev_b32 v{self.V_AA+j}, 4, v{self.V_AA+j}")
            a(f"v_add_u32 v{self.V_AA+j}, v{self.V_AA+j}, v{T+1}")
        a(f"v_and_b32 v{T+4}, 15, v1")
        a(f"v_lshrrev_b32 v{T+5}, 2, v{T+4}")
        a(f"v_lshlrev_b32 v{T+6}, 3, v{T+3}")
        a(f"v_add_u32 v{T+6}, v{T+6}, v{T+5}")
        a(f"v_lshlrev_b32 v{T+6}, 8, v{T+6}")
        a(f"v_bfe_u32 v{T+7}, v1, 4, 1")
        a(f"v_lshlrev_b32 v{T+7}, 1, v{T+7}")
        a(f"v_bfe_u32 v{T+8}, v1, 1, 1")
        a(f"v_add_u32 v{T+7}, v{T+7}, v{T+8}")
        a(f"s_lshl_b32 s{S_T0}, s{S_WN}, 3")
        a(f"s_lshl_b32 s{S_T1}, s{S_WM}, 2")
        a(f"s_add_u32 s{S_T0}, s{S_T0}, s{S_T1}")
        a(f"v_add_u32 v{T+7}, s{S_T0}, v{T+7}")
        a(f"v_lshlrev_b32 v{T+5}, 2, v{T+5}")
        a(f"v_xor_b32 v{T+7}, v{T+7}, v{T+5}")
        a(f"v_lshlrev_b32 v{T+7}, 4, v{T+7}")
        a(f"v_and_b32 v{T+8}, 1, v1")
        a(f"v_lshlrev_b32 v{T+8}, 3, v{T+8}")
        a(f"v_add_u32 v{T+6}, v{T+6}, v{T+7}")
        a(f"v_add_u32 v{T+6}, v{T+6}, v{T+8}")
        a(f"v_add_u32 v{self.V_AWA}, 16384, v{T+6}")
        a(f"v_xor_b32 v{self.V_AWB}, 64, v{self.V_AWA}")
        a(f"v_and_b32 v{T}, 15, v1")
        a(f"v_bfe_u32 v{T+1}, v1, 4, 1")
        a(f"v_cmp_eq_u32 vcc, v{T}, v{T+1}")
        a(f"v_mov_b32 v{T+2}, 0x3f803f80")
        a(f"s_nop 1")
        a(f"v_cndmask_b32 v{self.V_CSA}, 0, v{T+2}, vcc")
        for r in range(1, 4):
            a(f"v_mov_b32 v{self.V_CSA+r}, v{self.V_CSA}")
        for r in range(4):
            a(f"v_mov_b32 v{self.V_CSD+r}, 0")
        for r in range(64):
            a(f"v_mov_b32 v{self.V_ACC+r}, 0")

    def g1_read1(self, j, q):
        if "noreads" in self.opt: return
        a = self.a
        F = self.V_FR + 16*j
        if q == 0: a(f"ds_read_b128 v[{F}:{F+3}], v{self.V_AA+j}")
        elif q == 1: a(f"ds_read_b128 v[{F+4}:{F+7}], v{self.V_AA+j} offset:4096")
        else:
            ad = (self.V_AWA if q == 2 else self.V_AWB) if j != 3 else (self.V_AW2A if q == 2 else self.V_AW2B)
            R = F + 8 + 4*(q-2)
            a(f"ds_read_b64_tr_b16 v[{R}:{R+1}], v{ad} offset:{4096*j}")
            a(f"ds_read_b64_tr_b16 v[{R+2}:{R+3}], v{ad} offset:{4096*j+1024}")

    def g1_mfma1(self, j, orient, tt, q):
        if "nomfma" in self.opt: return
        a = self.a
        F = self.V_FR + 16*j
        X = f"v[{F+4*tt}:{F+4*tt+3}]"; W = f"v[{F+8+4*q}:{F+11+4*q}]"
        A = self.V_ACC + 16*(2*tt+q)
        D = f"v[{A}:{A+15}]"
        if orient == "T": a(f"v_mfma_f32_32x32x16_bf16 {D}, {W}, {X}, {D}")
        else:             a(f"v_mfma_f32_32x32x16_bf16 {D}, {X}, {W}, {D}")

    def g1_colsum(self, j):
        if "nostats" in self.opt: return
        F = self.V_FR + 16*j; D = self.V_CSD
        self.a(f"v_mfma_f32_16x16x32_bf16 v[{D}:{D+3}], v[{self.V_CSA}:{self.V_CSA+3}], v[{F+8}:{F+11}], v[{D}:{D+3}]")

    def g1_adv(self):
        a = self.a
        for r in list(range(self.V_AA, self.V_AA+4)) + [self.V_AWA, self.V_AWB]:
            a(f"v_add_u32 v{r}, s{S_DELTA}, v{r}")

    def g1_cstep(self, j, orient, rset, fill=((), (), (), ())):
        a = self.a
        order = (2, 0, 1, 3)
        cp = getattr(self, "cprof", False)
        if cp: a(f"s_memtime s[{72+4*j}:{73+4*j}]")
        a(f"s_waitcnt lgkmcnt(12)")
        if cp: a(f"s_memtime s[{74+4*j}:{75+4*j}]")
        for k, (tt, q) in enumerate(((0, 0), (1, 0), (0, 1), (1, 1))):
            self.g1_mfma1(j, orient, tt, q)
            if k == 0: self.g1_colsum(j)
            self.g1_read1(rset, order[k])
            for f in fill[k]: a(f)

    def g1_compute(self, orient, tag, presetup=False):
        a = self.a
        if not presetup: self.g1_setup_compute()
        AA = self.V_AA
        a(f"v_mov_b32 v{self.V_AW2A}, v{self.V_AWA}")
        a(f"v_mov_b32 v{self.V_AW2B}, v{self.V_AWB}")
        a(f"s_barrier")
        self.stamp(self.st1)
        for j in range(3):
            for q in (2, 0, 1, 3): self.g1_read1(j, q)
        DA, DB = S_DELTA, S_T5
        a(f"s_mov_b32 s{S_CNT}, 0")
        a(f"s_mov_b32 s{S_RSLOT}, 1")
        a(f"s_mov_b32 s{DA}, 32768")
        a(f"v_add_u32 v{AA}, s{DA}, v{AA}")
        a(f"v_add_u32 v{AA+1}, s{DA}, v{AA+1}")
        wrap = hex((-(self.NSLOT-1)*32768) & 0xffffffff)
        L1 = f"L_{tag}_cloop"
        a(f".p2align 5")
        a.put(L1)
        self.g1_cstep(0, orient, 3, ((f"v_add_u32 v{AA+2}, s{DA}, v{AA+2}",), (f"v_add_u32 v{self.V_AWA}, s{DA}, v{self.V_AWA}",),
                                     (f"v_add_u32 v{self.V_AWB}, s{DA}, v{self.V_AWB}",), ()))
        a(f"s_barrier")
        self.g1_cstep(1, orient, 0, ((f"v_add_u32 v{AA+3}, s{DA}, v{AA+3}", f"s_cmp_eq_u32 s{S_RSLOT}, {self.NSLOT-1}"),
                                     (f"s_mov_b32 s{DB}, 32768", f"s_cselect_b32 s{DB}, {wrap}, s{DB}"),
                                     (f"v_mov_b32 v{self.V_AW2A}, v{self.V_AWA}", f"s_cselect_b32 s{S_RSLOT}, -1, s{S_RSLOT}"),
                                     (f"v_mov_b32 v{self.V_AW2B}, v{self.V_AWB}", f"s_add_u32 s{S_RSLOT}, s{S_RSLOT}, 1")))
        wf = ()
        if getattr(self, "warm_fill", False):
            wf = (f"s_cmp_eq_u32 s{S_CNT}, 3", f"s_cselect_b32 s{self.S_WRMD}, s{self.S_WRM}, s{S_OOB}", f"buffer_load_dword v253, v{self.V_WRM}, s[{SRD_T}:{SRD_T+3}], s{self.S_WRMD} offen")
        self.g1_cstep(2, orient, 1, ((f"v_add_u32 v{AA}, s{DB}, v{AA}",), (f"s_add_u32 s{S_CNT}, s{S_CNT}, 1",), wf, ()))
        self.g1_cstep(3, orient, 2, ((f"v_add_u32 v{AA+1}, s{DB}, v{AA+1}",), (f"s_mov_b32 s{DA}, s{DB}",), (f"s_cmp_lt_u32 s{S_CNT}, 10",), ()))
        a(f"s_cbranch_scc1 {L1}")
        a(f"s_waitcnt lgkmcnt(0)")
        a(f"v_mbcnt_lo_u32_b32 v1, -1, 0")
        a(f"v_mbcnt_hi_u32_b32 v1, -1, v1")
        T = self.V_FR
        a(f"s_lshl_b32 s{S_T0}, s{S_WN}, 8")
        a(f"s_lshl_b32 s{S_T1}, s{S_WM}, 7")
        a(f"s_add_u32 s{S_T0}, s{S_T0}, s{S_T1}")
        a(f"s_add_u32 s{S_T0}, s{S_T0}, {LDS_STATS+ST_CS}")
        a(f"v_lshlrev_b32 v{T}, 2, v1")
        a(f"v_add_u32 v{T}, s{S_T0}, v{T}")
        a(f"s_nop 4")
        a(f"s_mov_b64 exec, 0xffff")
        a(f"ds_write_b32 v{T}, v{self.V_CSD}")
        a(f"ds_write_b32 v{T}, v{self.V_CSD+1} offset:64")
        a(f"s_mov_b64 exec, -1")
        a(f"s_waitcnt lgkmcnt(0)")
        a(f"s_barrier")

    def magic_div5(self, dst, src):
        self.a(f"v_mul_u32_u24 v{dst}, 52429, v{src}")
        self.a(f"v_lshrrev_b32 v{dst}, 18, v{dst}")
    def magic_div20(self, dst, src):
        self.a(f"v_mul_u32_u24 v{dst}, 52429, v{src}")
        self.a(f"v_lshrrev_b32 v{dst}, 20, v{dst}")

    def epi_T_common(self):
        a = self.a
        T = self.V_T; CSR = self.V_FR
        a(f"v_and_b32 v{T}, 31, v1")
        a(f"s_lshl_b32 s{S_T0}, s{S_WM}, 6")
        a(f"v_add_u32 v{T+1}, s{S_T0}, v{T}")
        a(f"v_lshlrev_b32 v{T+1}, 2, v{T+1}")
        a(f"v_add_u32 v{T+1}, {LDS_STATS}, v{T+1}")
        a(f"ds_read_b32 v{T+2}, v{T+1} offset:{ST_AA}")
        a(f"ds_read_b32 v{T+3}, v{T+1} offset:{ST_BB}")
        a(f"ds_read_b32 v{T+4}, v{T+1} offset:{ST_AA+128}")
        a(f"ds_read_b32 v{T+5}, v{T+1} offset:{ST_BB+128}")
        a(f"v_lshrrev_b32 v{T+6}, 5, v1")
        a(f"s_lshl_b32 s{S_T0}, s{S_WN}, 8")
        a(f"s_lshl_b32 s{S_T1}, s{S_WM}, 7")
        a(f"s_add_u32 s{S_T0}, s{S_T0}, s{S_T1}")
        a(f"s_add_u32 s{S_T0}, s{S_T0}, {LDS_STATS+ST_CS}")
        a(f"v_lshlrev_b32 v{T+7}, 4, v{T+6}")
        a(f"v_add_u32 v{T+7}, s{S_T0}, v{T+7}")
        a(f"v_xor_b32 v{T+1}, 128, v{T+7}")
        for g in range(4):
            a(f"ds_read_b128 v[{CSR+4*g}:{CSR+4*g+3}], v{T+7} offset:{32*g}")
        for g in range(4):
            a(f"ds_read_b128 v[{CSR+16+4*g}:{CSR+16+4*g+3}], v{T+1} offset:{32*g}")

    def p1_epi_T(self):
        a = self.a
        T = self.V_T; A = self.V_ACC; CSR = self.V_FR
        self.epi_T_common()
        a(f"s_cmp_lt_u32 s{S_NT}, 5")
        a(f"s_cselect_b32 s{S_T0}, {hex(f32(math.log2(math.e)/math.sqrt(20.0)))}, 1.0")
        self.csel(S_T1, 81920, 163840)
        self.csel(S_T2, 1280, 2560)
        a(f"s_cselect_b32 s{S_T3}, 0, 5")
        self.csel(S_T4, hex(OFF_Q), hex(OFF_KV))
        self.csel(S_T5, hex(SZ_Q), hex(SZ_KV))
        a(f"s_add_u32 s{SRD_O}, s{S_WS}, s{S_T4}")
        a(f"s_addc_u32 s{SRD_O+1}, s{S_WS+1}, 0")
        a(f"s_mov_b32 s{SRD_O+2}, s{S_T5}")
        a(f"s_mov_b32 s{SRD_O+3}, 0x20000")
        a(f"s_sub_u32 s{S_T3}, s{S_NT}, s{S_T3}")
        a(f"s_lshl_b32 s{S_T3}, s{S_T3}, 5")
        a(f"s_lshl_b32 s{S_T4}, s{S_WN}, 4")
        a(f"s_add_u32 s{S_T3}, s{S_T3}, s{S_T4}")
        a(f"s_lshl_b32 s{S_T4}, s{S_WM}, 3")
        AD = T + 8
        for q in range(2):
            for g in range(4):
                if q == 0:
                    a(f"s_add_u32 s{S_T5}, s{S_T3}, s{S_T4}")
                else:
                    a(f"s_xor_b32 s{S_T5}, s{S_T4}, 8")
                    a(f"s_add_u32 s{S_T5}, s{S_T5}, s{S_T3}")
                a(f"s_add_u32 s{S_T5}, s{S_T5}, {2*g}")
                a(f"v_add_u32 v{T+16}, s{S_T5}, v{T+6}")
                self.magic_div5(T+17, T+16)
                a(f"v_mul_u32_u24 v{T+18}, 5, v{T+17}")
                a(f"v_sub_u32 v{T+18}, v{T+16}, v{T+18}")
                a(f"v_mul_lo_u32 v{T+17}, v{T+17}, s{S_T1}")
                a(f"v_lshlrev_b32 v{T+18}, 8, v{T+18}")
                a(f"v_add_u32 v{T+17}, v{T+17}, v{T+18}")
                a(f"v_lshl_add_u32 v{AD+4*q+g}, v{T}, 3, v{T+17}")
        a(f"s_lshl_b32 s{S_T4}, s{S_MT}, 2")
        a(f"s_lshl_b32 s{S_T5}, s{S_WM}, 1")
        a(f"s_add_u32 s{S_T4}, s{S_T4}, s{S_T5}")
        a(f"s_mul_i32 s{S_T4}, s{S_T4}, s{S_T2}")
        a(f"s_add_u32 s{S_T5}, s{S_T4}, s{S_T2}")
        a(f"s_waitcnt lgkmcnt(0)")
        for tt in range(2):
            a(f"v_mul_f32 v{T+2+2*tt}, s{S_T0}, v{T+2+2*tt}")
            a(f"v_mul_f32 v{T+3+2*tt}, s{S_T0}, v{T+3+2*tt}")
        for tt in range(2):
            for q in range(2):
                for g in range(4):
                    for i in range(4):
                        r = A + 16*(2*tt+q) + 4*g + i
                        a(f"v_mul_f32 v{r}, v{T+2+2*tt}, v{r}")
                        a(f"v_fmac_f32 v{r}, v{T+3+2*tt}, v{CSR+16*q+4*g+i}")
                    r = A + 16*(2*tt+q) + 4*g
                    a(f"v_cvt_pk_bf16_f32 v{r}, v{r}, v{r+1}")
                    a(f"v_cvt_pk_bf16_f32 v{r+1}, v{r+2}, v{r+3}")
                    a(f"buffer_store_dwordx2 v[{r}:{r+1}], v{AD+4*q+g}, s[{SRD_O}:{SRD_O+3}], s{S_T4+tt} offen sc1")

    def p1_epi_N(self):
        a = self.a
        T = self.V_T; A = self.V_ACC
        AB = self.V_FR; BB = self.V_FR + 16
        a(f"v_and_b32 v{T}, 31, v1")
        a(f"v_lshrrev_b32 v{T+6}, 5, v1")
        a(f"s_lshl_b32 s{S_T0}, s{S_WM}, 8")
        a(f"v_lshlrev_b32 v{T+4}, 4, v{T+6}")
        a(f"v_add_u32 v{T+4}, s{S_T0}, v{T+4}")
        a(f"v_add_u32 v{T+4}, {LDS_STATS}, v{T+4}")
        a(f"s_mov_b32 s{S_T2}, 163840")
        for q in range(2):
            a(f"s_xor_b32 s{S_T0}, s{S_WM}, {q}")
            a(f"s_lshl_b32 s{S_T0}, s{S_T0}, 5")
            a(f"s_lshl_b32 s{S_T1}, s{S_WN}, 6")
            a(f"s_add_u32 s{S_T0}, s{S_T0}, s{S_T1}")
            a(f"v_add_u32 v{T+1}, s{S_T0}, v{T}")
            a(f"v_lshlrev_b32 v{T+2}, 2, v{T+1}")
            a(f"v_add_u32 v{T+2}, {LDS_STATS+ST_CS}, v{T+2}")
            a(f"ds_read_b32 v{T+10+q}, v{T+2}")
            a(f"s_sub_u32 s{S_T1}, s{S_NT}, 10")
            a(f"s_lshl_b32 s{S_T1}, s{S_T1}, 7")
            a(f"v_add_u32 v{T+7}, s{S_T1}, v{T+1}")
            self.magic_div20(T+8, T+7)
            a(f"v_mul_u32_u24 v{T+9}, 20, v{T+8}")
            a(f"v_sub_u32 v{T+9}, v{T+7}, v{T+9}")
            a(f"v_mul_lo_u32 v{T+8}, v{T+8}, s{S_T2}")
            a(f"v_lshlrev_b32 v{T+9}, 4, v{T+9}")
            a(f"v_add_u32 v{T+8}, v{T+8}, v{T+9}")
            a(f"v_mul_u32_u24 v{T+9}, 320, v{T+6}")
            a(f"v_add_u32 v{T+8}, v{T+8}, v{T+9}")
            a(f"v_add_u32 v{T+12+q}, 1280, v{T+8}")
        self.srd(SRD_O, S_WS, OFF_KV, SZ_KV)
        a(f"s_lshl_b32 s{S_T4}, s{S_MT}, 2")
        a(f"s_lshl_b32 s{S_T5}, s{S_WM}, 1")
        a(f"s_add_u32 s{S_T4}, s{S_T4}, s{S_T5}")
        a(f"s_mul_i32 s{S_T4}, s{S_T4}, 2560")
        a(f"s_add_u32 s{S_T5}, s{S_T4}, 2560")
        for tt in range(2):
            for g in range(4):
                a(f"ds_read_b128 v[{AB+4*g}:{AB+4*g+3}], v{T+4} offset:{ST_AA + 128*tt + 32*g}")
                a(f"ds_read_b128 v[{BB+4*g}:{BB+4*g+3}], v{T+4} offset:{ST_BB + 128*tt + 32*g}")
            a(f"s_waitcnt lgkmcnt(0)")
            for q in range(2):
                for r in range(16):
                    R = A + 16*(2*tt+q) + r
                    a(f"v_mul_f32 v{R}, v{AB+r}, v{R}")
                    a(f"v_fmac_f32 v{R}, v{BB+r}, v{T+10+q}")
                for st in range(2):
                    R = A + 16*(2*tt+q) + 8*st
                    for z in range(4):
                        a(f"v_cvt_pk_bf16_f32 v{R+z}, v{R+2*z}, v{R+2*z+1}")
                    a(f"buffer_store_dwordx4 v[{R}:{R+3}], v{T+12+q}, s[{SRD_O}:{SRD_O+3}], s{S_T4+tt} offen offset:{640*st} sc1")

    def relayout_unit(self):
        pass

    def rl_unit(self):
        a = self.a
        a(f"s_lshl_b32 s{S_T0}, s2, 2")
        a(f"s_and_b32 s{S_T5}, s{S_W}, 3")
        a(f"s_add_u32 s{S_T0}, s{S_T0}, s{S_T5}")

    def rl_src(self, srd):
        a = self.a
        self.rl_unit()
        a(f"s_cmp_lt_u32 s{S_T0}, 540")
        a(f"s_cselect_b32 s{S_T1}, 0, 540")
        a(f"s_cselect_b32 s{srd}, s{S_W2}, s{S_WO}")
        a(f"s_cselect_b32 s{srd+1}, s{S_W2+1}, s{S_WO+1}")
        self.csel(srd+2, 1728*1280, 640*1280)
        a(f"s_mov_b32 s{srd+3}, 0x20000")
        a(f"s_sub_u32 s{S_T1}, s{S_T0}, s{S_T1}")
        a(f"s_mul_hi_u32 s{S_T2}, s{S_T1}, {hex((2**32+9)//10)}")
        a(f"s_mul_i32 s{S_T3}, s{S_T2}, 10")
        a(f"s_sub_u32 s{S_T3}, s{S_T1}, s{S_T3}")
        a(f"s_mul_i32 s{S_T2}, s{S_T2}, {32*1280}")
        a(f"s_lshl_b32 s{S_T3}, s{S_T3}, 7")
        a(f"s_add_u32 s{S_T2}, s{S_T2}, s{S_T3}")
        a(f"s_cmp_ge_u32 s{S_T0}, 740")
        a(f"s_cselect_b32 s{S_T2}, 0x70000000, s{S_T2}")

    def relayout_load(self):
        a = self.a
        T = self.V_T
        self.rl_src(SRD_T)
        a(f"v_lshrrev_b32 v{T}, 3, v1")
        a(f"v_mul_u32_u24 v{T}, 1280, v{T}")
        a(f"v_and_b32 v{T+1}, 7, v1")
        a(f"v_lshl_add_u32 v{T}, v{T+1}, 4, v{T}")
        a(f"s_lshl_b32 s{S_T3}, s{S_T5}, 12")
        a(f"s_add_u32 m0, s{S_T3}, {LDS_RL}")
        for jj in range(4):
            a(f"s_nop 0")
            a(f"buffer_load_dwordx4 v{T}, s[{SRD_T}:{SRD_T+3}], s{S_T2} offen lds")
            if jj < 3:
                a(f"s_add_u32 m0, m0, 1024")
                a(f"s_add_u32 s{S_T2}, s{S_T2}, {8*1280}")

    def relayout_warm_setup(self):
        a = self.a
        V = self.V_WRM
        self.rl_src(SRD_T)
        a(f"s_mov_b32 s{self.S_WRM}, s{S_T2}")
        a(f"s_mov_b32 s{S_OOB}, 0x70000000")
        a(f"v_mul_u32_u24 v{V}, 1280, v1")
        a(f"v_cmp_gt_u32 vcc, 32, v1")
        a(f"v_mov_b32 v{V-1}, 0x7f000000")
        a(f"s_nop 0")
        a(f"v_cndmask_b32 v{V}, v{V-1}, v{V}, vcc")

    def relayout_store(self):
        a = self.a
        T = self.V_T
        Lskip = "L_rl_skip2"
        self.rl_unit()
        a(f"s_cmp_ge_u32 s{S_T0}, 740")
        a(f"s_cbranch_scc1 {Lskip}")
        a(f"s_cmp_lt_u32 s{S_T0}, 540")
        a(f"s_cselect_b32 s{S_T1}, 0, 540")
        self.csel(S_T4, hex(OFF_W2P), hex(OFF_WOP))
        self.csel(S_T3, hex(SZ_W2P), hex(SZ_WOP))
        a(f"s_mov_b32 s{SRD_T+2}, s{S_T3}")
        a(f"s_sub_u32 s{S_T1}, s{S_T0}, s{S_T1}")
        a(f"s_add_u32 s{SRD_T}, s{S_WS}, s{S_T4}")
        a(f"s_addc_u32 s{SRD_T+1}, s{S_WS+1}, 0")
        a(f"s_mov_b32 s{SRD_T+3}, 0x20000")
        a(f"s_mul_hi_u32 s{S_T2}, s{S_T1}, {hex((2**32+9)//10)}")
        a(f"s_mul_i32 s{S_T3}, s{S_T2}, 10")
        a(f"s_sub_u32 s{S_T3}, s{S_T1}, s{S_T3}")
        a(f"s_mul_i32 s{S_T2}, s{S_T2}, 40")
        a(f"s_lshl_b32 s{S_T3}, s{S_T3}, 2")
        a(f"s_add_u32 s{S_T2}, s{S_T2}, s{S_T3}")
        a(f"s_lshl_b32 s{S_T2}, s{S_T2}, 10")
        a(f"v_lshrrev_b32 v{T}, 4, v1")
        a(f"v_lshlrev_b32 v{T}, 3, v{T}")
        a(f"v_bfe_u32 v{T+1}, v1, 2, 2")
        a(f"v_add_u32 v{T}, v{T}, v{T+1}")
        a(f"v_lshlrev_b32 v{T}, 7, v{T}")
        a(f"v_and_b32 v{T+1}, 3, v1")
        a(f"v_lshl_add_u32 v{T}, v{T+1}, 3, v{T}")
        a(f"s_lshl_b32 s{S_T3}, s{S_T5}, 12")
        a(f"s_add_u32 s{S_T3}, s{S_T3}, {LDS_RL}")
        a(f"v_add_u32 v{T}, s{S_T3}, v{T}")
        a(f"v_lshlrev_b32 v{T+1}, 4, v1")
        O = T + 4
        for tq in range(4):
            a(f"ds_read_b64_tr_b16 v[{O+4*tq}:{O+4*tq+1}], v{T} offset:{32*tq}")
            a(f"ds_read_b64_tr_b16 v[{O+4*tq+2}:{O+4*tq+3}], v{T} offset:{32*tq+512}")
        a(f"s_waitcnt lgkmcnt(0)")
        for tq in range(4):
            a(f"buffer_store_dwordx4 v[{O+4*tq}:{O+4*tq+3}], v{T+1}, s[{SRD_T}:{SRD_T+3}], s{S_T2} offen offset:{1024*tq} sc1")
        a.put(Lskip)

    def p1(self):
        a = self.a
        a(f"s_and_b32 s{S_T0}, s{S_GX}, 3")
        a(f"s_lshl_b32 s{S_T0}, s{S_T0}, 2")
        a(f"s_and_b32 s{S_T1}, s{S_GI}, 3")
        a(f"s_add_u32 s{S_MT}, s{S_T0}, s{S_T1}")
        a(f"s_lshr_b32 s{S_T0}, s{S_GX}, 2")
        a(f"s_lshl_b32 s{S_T0}, s{S_T0}, 3")
        a(f"s_lshr_b32 s{S_T2}, s{S_GI}, 2")
        a(f"s_add_u32 s{S_NT}, s{S_T0}, s{S_T2}")
        a(f"s_lshl_b32 s{S_T1}, s{S_T1}, 1")
        a(f"s_add_u32 s{S_RLW}, s{S_T1}, s{S_T2}")
        a(f"s_and_b32 s{S_RLW}, s{S_RLW}, 7")
        a(f"s_mov_b32 s{S_KK}, 0")
        self.aux_A = ""
        self.st1 = 1
        a(f"s_cmp_lt_u32 s{S_W}, 4")
        a(f"s_cbranch_scc1 L_p1_compute")
        self.g1_setup_loader(3840)
        a(f"s_waitcnt lgkmcnt(0)")
        if "p1s" in self.opt: self.stamp(15)
        self.srd(SRD_A, S_X, 0, 2048*1280)
        self.srd(SRD_W, S_WQKV, 0, 640*3840)
        a(f"s_load_dword s{S_TAG}, s[{S_WS}:{S_WS+1}], {OFF_EPOCH}")
        a(f"s_cmp_ge_u32 s{S_NT}, 15")
        a(f"s_cbranch_scc1 L_p1_lnull")
        self.g1_dma_stage(3840)
        if "p1s" in self.opt: self.stamp(16)
        self.g1_dma_stage(3840)
        if "norot" not in self.opt: a(f"s_add_u32 s{S_KK}, s{S_RLW}, 2")
        self.srd(SRD_F, S_WS, 0, 0x100000)
        if "p1s" in self.opt: self.stamp(17)
        self.g1_loader(3840, "p1", "gran")
        a(f"s_branch L_p1_lj")
        a.put("L_p1_lnull")
        self.srd(SRD_F, S_WS, 0, 0x100000)
        self.tag_ready()
        self.relayout_load()
        a.put("L_p1_lj")
        a(f"s_waitcnt vmcnt(0)")
        self.relayout_store()
        a(f"s_branch L_p1_done")
        a.put("L_p1_compute")
        if "nowarm" not in self.opt: self.code_warm()
        a(f"s_waitcnt lgkmcnt(0)")
        a(f"s_load_dword s{S_TAG}, s[{S_WS}:{S_WS+1}], {OFF_EPOCH}")
        self.srd(SRD_F, S_WS, 0, 0x100000)
        D = self.xstats_publish()
        self.relayout_warm_setup()
        self.xstats_finish(D)
        a(f"s_cmp_ge_u32 s{S_NT}, 15")
        a(f"s_cbranch_scc1 L_p1_done")
        a(f"s_cmp_ge_u32 s{S_NT}, 10")
        a(f"s_cbranch_scc1 L_p1_N")
        self.warm_fill = True
        self.g1_compute("T", "p1T")
        self.stamp(2)
        self.p1_epi_T()
        a(f"s_branch L_p1_done")
        a.put("L_p1_N")
        self.g1_compute("N", "p1N")
        self.warm_fill = False
        self.stamp(2)
        self.p1_epi_N()
        a.put("L_p1_done")
        self.stamp(3)
        a(f"s_waitcnt vmcnt(0)")
        self.stamp(4)

    def poll(self, addr_regs, masks, tagname):
        a = self.a
        T = self.V_S - 8
        L = f"L_{tagname}_poll"; Lo = f"L_{tagname}_pollok"
        a(f"s_mov_b32 s{S_T0}, 0")
        a.put(L)
        for k, (ar, mk) in enumerate(zip(addr_regs, masks)):
            self.set_exec(mk)
            a(f"buffer_load_dword v{T+20+k}, v{ar}, s[{SRD_F}:{SRD_F+3}], 0 offen sc1")
        a(f"s_waitcnt vmcnt(0)")
        a(f"s_mov_b64 s[{S_SAVE}:{S_SAVE+1}], 0")
        for k, (ar, mk) in enumerate(zip(addr_regs, masks)):
            self.set_exec(mk)
            a(f"v_cmp_ne_u32 vcc, s{S_TAG}, v{T+20+k}")
            a(f"s_or_b64 s[{S_SAVE}:{S_SAVE+1}], s[{S_SAVE}:{S_SAVE+1}], vcc")
        a(f"s_mov_b64 exec, -1")
        a(f"s_cmp_eq_u64 s[{S_SAVE}:{S_SAVE+1}], 0")
        a(f"s_cbranch_scc1 {Lo}")
        a(f"s_add_u32 s{S_T0}, s{S_T0}, 1")
        a(f"s_cmp_lt_u32 s{S_T0}, 0x40000")
        a(f"s_cbranch_scc1 {L}")
        a.put(Lo)

    def p1_signal(self):
        a = self.a
        T = self.V_S
        a(f"s_waitcnt vmcnt(0) lgkmcnt(0)")
        a(f"s_barrier")
        Ls = "L_p1sig_skip"
        a(f"s_cmp_lg_u32 s{S_W}, {self.POLLW}")
        a(f"s_cbranch_scc1 {Ls}")
        a(f"v_lshrrev_b32 v{T}, 3, v1")
        a(f"v_and_b32 v{T+1}, 7, v1")
        Ln = "L_p1sig_null"; Lj = "L_p1sig_join"
        a(f"s_cmp_eq_u32 s{S_NT}, 15")
        a(f"s_cbranch_scc1 {Ln}")
        a(f"s_cmp_ge_u32 s{S_NT}, 10")
        a(f"s_cselect_b32 s{S_T0}, 10, 5")
        a(f"s_cmp_lt_u32 s{S_NT}, 5")
        a(f"s_cselect_b32 s{S_T0}, 0, s{S_T0}")
        a(f"s_sub_u32 s{S_T0}, s{S_NT}, s{S_T0}")
        a(f"s_lshl_b32 s{S_T0}, s{S_T0}, 7")
        a(f"s_mul_i32 s{S_T1}, s{S_T0}, 52429")
        a(f"s_lshr_b32 s{S_T1}, s{S_T1}, 20")
        a(f"s_add_u32 s{S_T2}, s{S_T0}, 127")
        a(f"s_mul_i32 s{S_T2}, s{S_T2}, 52429")
        a(f"s_lshr_b32 s{S_T2}, s{S_T2}, 20")
        a(f"s_min_u32 s{S_T2}, s{S_T2}, 31")
        a(f"v_add_u32 v{T+2}, s{S_T1}, v{T}")
        a(f"v_cmp_ge_u32 vcc, s{S_T2}, v{T+2}")
        a(f"s_mov_b64 s[{S_SAVE}:{S_SAVE+1}], vcc")
        a(f"s_cmp_lt_u32 s{S_NT}, 5")
        a(f"s_cbranch_scc0 {Lj}")
        a(f"s_lshr_b32 s{S_T3}, s{S_MT}, 1")
        a(f"v_cmp_eq_u32 vcc, s{S_T3}, v{T+1}")
        a(f"s_and_b64 s[{S_SAVE}:{S_SAVE+1}], s[{S_SAVE}:{S_SAVE+1}], vcc")
        a(f"s_branch {Lj}")
        a.put(Ln)
        a(f"v_lshlrev_b32 v{T+2}, 4, v{T}")
        a(f"v_add_u32 v{T+2}, s{S_MT}, v{T+2}")
        a(f"v_cmp_gt_u32 vcc, 2, v{T}")
        a(f"s_mov_b64 s[{S_SAVE}:{S_SAVE+1}], vcc")
        a.put(Lj)
        a(f"v_and_b32 v{T+4}, 3, v{T+2}")
        a(f"v_lshl_add_u32 v{T+4}, v{T+1}, 2, v{T+4}")
        a(f"v_lshrrev_b32 v{T+2}, 2, v{T+2}")
        a(f"v_lshl_add_u32 v{T+2}, v{T+4}, 3, v{T+2}")
        a(f"v_lshlrev_b32 v{T+2}, 10, v{T+2}")
        a(f"s_lshl_b32 s{S_T0}, s2, 2")
        a(f"s_add_u32 s{S_T0}, s{S_T0}, {OFF_MB1}")
        a(f"v_add_u32 v{T+2}, s{S_T0}, v{T+2}")
        a(f"v_mov_b32 v{T+3}, s{S_TAG}")
        a(f"s_mov_b64 exec, s[{S_SAVE}:{S_SAVE+1}]")
        a(f"buffer_store_dword v{T+3}, v{T+2}, s[{SRD_F}:{SRD_F+3}], 0 offen sc1")
        a(f"s_mov_b64 exec, 1")
        a(f"s_lshl_b32 s{S_T0}, s2, 2")
        a(f"s_add_u32 s{S_T0}, s{S_T0}, {OFF_ALL}")
        a(f"v_mov_b32 v{T+5}, s{S_T0}")
        a(f"s_add_u32 s{S_T1}, s{S_TAG}, s{S_XCC}")
        a(f"v_mov_b32 v{T+6}, s{S_T1}")
        a(f"buffer_store_dword v{T+6}, v{T+5}, s[{SRD_F}:{SRD_F+3}], 0 offen sc1")
        a(f"s_mov_b64 exec, -1")
        a.put(Ls)

    def finish_tag_once(self):
        a = self.a
        a(f"s_mul_i32 s{S_TAG}, s{S_TAG}, 0x9E3779B1")
        a(f"s_add_u32 s{S_TAG}, s{S_TAG}, 0x7F4A7C15")

    def p2_wait(self):
        a = self.a
        T = self.V_S
        Ls = "L_p2w_skip"
        a(f"s_cmp_lg_u32 s{S_W}, {self.POLLW}")
        a(f"s_cbranch_scc1 {Ls}")
        a(f"s_mul_i32 s{S_T1}, s{S_HEAD}, 20")
        a(f"v_bfe_u32 v{T}, v1, 4, 1")
        a(f"v_mul_u32_u24 v{T}, 19, v{T}")
        a(f"v_add_u32 v{T}, s{S_T1}, v{T}")
        a(f"v_lshrrev_b32 v{T}, 7, v{T}")
        a(f"v_lshrrev_b32 v{T+1}, 5, v1")
        a(f"v_mul_u32_u24 v{T+1}, 5, v{T+1}")
        a(f"v_add_u32 v{T+2}, v{T}, v{T+1}")
        a(f"v_add_u32 v{T+2}, 5, v{T+2}")
        a(f"v_and_b32 v{T+3}, 15, v1")
        self.vprod(T+4, T+3, T+2, T+10)
        a(f"v_bfe_u32 v{T}, v1, 1, 1")
        a(f"v_mul_u32_u24 v{T}, 19, v{T}")
        a(f"v_add_u32 v{T}, s{S_T1}, v{T}")
        a(f"v_lshrrev_b32 v{T+2}, 7, v{T}")
        a(f"v_and_b32 v{T+3}, 1, v1")
        a(f"s_lshl_b32 s{S_T2}, s{S_QB}, 1")
        a(f"v_add_u32 v{T+3}, s{S_T2}, v{T+3}")
        a(f"v_cmp_eq_u32 vcc, 4, v1")
        a(f"s_and_b32 s{S_T2}, s{S_HEAD}, 15")
        a(f"v_mov_b32 v{T+6}, s{S_T2}")
        a(f"v_mov_b32 v{T+7}, 15")
        a(f"v_cndmask_b32 v{T+3}, v{T+3}, v{T+6}, vcc")
        a(f"v_cndmask_b32 v{T+2}, v{T+2}, v{T+7}, vcc")
        self.vprod(T+5, T+3, T+2, T+10)
        a(f"s_lshl_b32 s{S_T2}, s2, 10")
        a(f"s_add_u32 s{S_T2}, s{S_T2}, {OFF_MB1}")
        for r in (T+4, T+5):
            a(f"v_lshlrev_b32 v{r}, 2, v{r}")
            a(f"v_add_u32 v{r}, s{S_T2}, v{r}")
        self.poll([T+4, T+5], ["-1", "0x1f"], "p2w")
        a.put(Ls)
        a(f"s_barrier")

    def vprod(self, dst, mt, nt, tmp):
        a = self.a
        a(f"v_and_b32 v{dst}, 3, v{mt}")
        a(f"v_and_b32 v{tmp}, 7, v{nt}")
        a(f"v_lshl_add_u32 v{dst}, v{tmp}, 2, v{dst}")
        a(f"v_lshlrev_b32 v{dst}, 3, v{dst}")
        a(f"v_lshrrev_b32 v{tmp}, 2, v{mt}")
        a(f"v_add_u32 v{dst}, v{dst}, v{tmp}")
        a(f"v_lshrrev_b32 v{tmp}, 3, v{nt}")
        a(f"v_lshl_add_u32 v{dst}, v{tmp}, 2, v{dst}")

    def group_barrier(self, phase, tagname, tgt=None, slot=None, hook=None, local=False):
        a = self.a
        T = self.V_S
        gs = (tagname in self.opt)
        a(f"s_waitcnt vmcnt(0) lgkmcnt(0)")
        if gs: self.stamp(15)
        a(f"s_barrier")
        if gs: self.stamp(16)
        Ls = f"L_{tagname}_gskip"
        a(f"s_cmp_lg_u32 s{S_W}, {self.POLLW}")
        a(f"s_cbranch_scc1 {Ls}0")
        tgt = S_GX if tgt is None else tgt
        slot = S_GI if slot is None else slot
        a(f"v_lshlrev_b32 v{T}, 3, v1")
        a(f"v_add_u32 v{T}, s{tgt}, v{T}")
        a(f"v_lshlrev_b32 v{T}, 7, v{T}")
        a(f"s_lshl_b32 s{S_T1}, s{slot}, 2")
        a(f"s_add_u32 s{S_T1}, s{S_T1}, {OFF_GB + phase*256*128}")
        a(f"v_add_u32 v{T}, s{S_T1}, v{T}")
        a(f"v_mov_b32 v{T+1}, s{S_TAG}")
        self.set_exec(0xffffffff)
        if local:
            a(f"s_cmp_eq_u32 s{S_FAST}, 1")
            a(f"s_cbranch_scc1 {Ls}f")
            a(f"buffer_store_dword v{T+1}, v{T}, s[{SRD_F}:{SRD_F+3}], 0 offen sc1")
            a(f"s_branch {Ls}g")
            a.put(Ls + "f")
            a(f"buffer_store_dword v{T+1}, v{T}, s[{SRD_F}:{SRD_F+3}], 0 offen")
            a.put(Ls + "g")
        else:
            a(f"buffer_store_dword v{T+1}, v{T}, s[{SRD_F}:{SRD_F+3}], 0 offen sc1")
        a(f"s_mov_b64 exec, -1")
        a.put(Ls + "0")
        if hook: hook()
        if gs: self.stamp(17)
        a(f"s_cmp_lg_u32 s{S_W}, {self.POLLW}")
        a(f"s_cbranch_scc1 {Ls}")
        a(f"s_lshl_b32 s{S_T0}, s2, 7")
        a(f"s_add_u32 s{S_T0}, s{S_T0}, {OFF_GB + phase*256*128}")
        a(f"v_lshlrev_b32 v{T+2}, 2, v1")
        a(f"v_add_u32 v{T+2}, s{S_T0}, v{T+2}")
        self.poll([T+2], ["0xffffffff"], tagname)
        a.put(Ls)
        a(f"s_barrier")

    A_QA = 4; A_QB = 12
    A_K = 20
    A_V1 = 36; A_V2 = 40
    A_SA = 44; A_SB = 60; A_P = 76; A_OA = 84; A_OB = 100; A_AK = 116; A_AV = 117; A_DV = 118; A_ALLA = 119; A_T = 120; A_ALL = 132
    S_VMASK = 92
    S_NEXTB = 94; S_DSO = 95; S_LOW = 65; S_NEXTM = 69
    p2_nu = 4
    low_tiles = 1
    S_D = [6, 7, 8, 9, 16, 17]
    S_WOI = [51, 53]
    S_WOBK = 62
    S_WOM = 68
    low_pos = (3, 10, 18, 29)
    warm_slots = {'dst': 48, 'w1': 50}
    def p2_unrolled(self):
        a = self.a
        D = self.S_D
        def kv():
            a(f"s_mov_b32 m0, s{self.S_DSO}")
            a(f"s_nop 0")
            a(f"buffer_load_dwordx4 v{self.A_DV}, s[{SRD_A}:{SRD_A+3}], s{self.S_DSO} offen sc1 lds")
            a(f"s_add_u32 s{self.S_DSO}, s{self.S_DSO}, 4096")
        def w2(g):
            R = 144 + 4*g
            a(f"buffer_load_dwordx4 v[{R}:{R+3}], v{self.A_ALLA}, s[{SRD_W}:{SRD_W+3}], s{S_SW} offen {self.ld_aux}")
            a(f"s_add_u32 s{S_SW}, s{S_SW}, s{D[g % 6]}")
        def wo(idx):
            a(f"s_mov_b32 m0, s{self.S_WOB}")
            a(f"s_add_u32 s{self.S_WOB}, s{self.S_WOB}, s{self.S_WOI[1 if idx == 4 else 0]}")
            if idx >= 10:
                a(f"s_cmp_lt_u32 s{S_W}, 4")
                a(f"s_cbranch_scc1 L_wo_sk{idx}")
            a(f"buffer_load_dwordx4 v{self.A_DV}, s[{SRD_T}:{SRD_T+3}], s{self.S_WOS} offen {self.ld_aux} lds")
            if idx >= 10: a.put(f"L_wo_sk{idx}")
            a(f"s_add_u32 s{self.S_WOS}, s{self.S_WOS}, s{D[idx % 6]}")
        slot_ops = {}
        def put(x, k_, arg=None): slot_ops.setdefault(x, []).append((k_, arg))
        for i in range(5): put(8 + i, "kv")
        for i in range(6): put(24 + i, "kv")
        free = [x for x in range(13, 40) if x not in range(24, 30)]
        dbl = set(free[1::3][:7])
        g = 0
        for x in free:
            put(x, "w2", g); g += 1
            if x in dbl:
                put(x, "w2", g); g += 1
        assert g == 28, g
        for i in range(15): put(40 + i//2, "wo", i)
        for k_, x in self.warm_slots.items(): put(x, k_)
        def cnt(lo, hi):
            return sum(1 for x in range(lo, hi) for k_, _ in slot_ops.get(x, []) if k_ in ("kv", "w2", "wo"))
        lowpos = set(self.low_pos)
        noprio = "noprio" in self.opt
        if not noprio:
            a(f"s_setprio 1")
            self.p2_setprio(2, "init")
        a(f"s_nop 7"); a(f"s_nop 3")
        base = 0
        for t in range(32):
            if t == 16:
                a(f"v_add_u32 v{self.A_AK}, {16*2560}, v{self.A_AK}")
                a(f"v_add_u32 v{self.A_AV}, {16*2560}, v{self.A_AV}")
                base = 16
            if t in (4, 12, 20):
                vm = 0 if t == 4 else (cnt(13, 24) if t == 12 else cnt(30, 40))
                a(f"s_waitcnt vmcnt({vm})")
                if t == 4:
                    self.p2_check_all()
                    self.g2_wsetup(5, SRD_W, S_SW, self.A_ALLA)
                    self.p2_w2_consts()
                a(f"s_barrier")
                if not noprio: self.p2_setprio(2, f"h{t}")
                if t == 20: self.wo_setup2()
            if t in lowpos and not noprio: self.p2_setprio(0, f"l{t}")
            for st in (0, 1):
                self.p2_sub(st, t - base)
                for k_, arg in slot_ops.get(2*t + st, []):
                    self.evtag = "u"
                    if k_ == "kv": kv()
                    elif k_ == "w2":
                        if "evnow2" not in self.opt: w2(arg)
                    elif k_ == "wo":
                        if "evnowo" not in self.opt: wo(arg)
                    elif k_ == "dst":
                        if "nodstw" not in self.opt: self.dst_l2warm()
                    elif k_ == "w1":
                        if "now1w" not in self.opt: self.w1_l2warm()
                    elif k_ == "wp":
                        if "nowpw" not in self.opt: self.wp_l2warm()

    def p2_w2_consts(self):
        a = self.a
        D = self.S_D
        incB = [1024, 162816]*3
        incA = [161792, 1024, 1024]*2
        a(f"s_cmp_lt_u32 s{S_W}, 4")
        for k in range(6):
            x, y = incB[k], incA[k]
            if x == y: a(f"s_mov_b32 s{D[k]}, {x}")
            else: self.csel(D[k], x, y)
        a(f"s_cselect_b32 s{S_T0}, 0, {5*163840 - 161792}")
        a(f"s_add_u32 s{S_SW}, s{S_SW}, s{S_T0}")

    def wo_setup2(self):
        a = self.a
        D = self.S_D
        self.g2_wsetup(3, SRD_T, self.S_WOS, self.A_DV)
        self.wo_lds_base(self.S_WOB)
        a(f"s_mov_b32 s{self.S_WOBK}, s{self.S_WOB}")
        a(f"s_cmp_eq_u32 s{S_W}, 3")
        a(f"s_cselect_b32 s{self.S_WOB2}, {128000-5120}, s{self.S_WOB}")
        a(f"s_mov_b32 s{self.S_WOI[0]}, 1024")
        a(f"s_cselect_b32 s{self.S_WOI[1]}, {128000 - (46080 + 4096)}, s{self.S_WOI[0]}")
        incB = [1024, 162816]*3
        incA = [1024, 1024, 161792]*2
        a(f"s_cmp_lt_u32 s{S_W}, 4")
        for k in range(6):
            x, y = incB[k], incA[k]
            if x == y: a(f"s_mov_b32 s{D[k]}, {x}")
            else: self.csel(D[k], x, y)


    def p2_kreads(self, kb, toff):
        a = self.a
        K = self.A_K + 8*kb
        a(f"ds_read_b64 v[{K}:{K+1}], v{self.A_AK} offset:{toff}")
        a(f"ds_read_b64 v[{K+2}:{K+3}], v{self.A_AK} offset:{toff+256}")
        a(f"ds_read_b64 v[{K+4}:{K+5}], v{self.A_AK} offset:{toff+1024}")
    def p2_vread(self, which, toff):
        a = self.a
        R = self.A_V1 if which == 0 else self.A_V2
        a(f"s_mov_b64 exec, s[{self.S_VMASK}:{self.S_VMASK+1}]")
        a(f"ds_read_b128 v[{R}:{R+3}], v{self.A_AV} offset:{toff+640*which}")
        a(f"s_mov_b64 exec, -1")
    def p2_smfma(self, which, S, kb, Q):
        a = self.a
        K = self.A_K + 8*kb
        if which == 0:
            a(f"v_mfma_f32_32x32x16_bf16 v[{S}:{S+15}], v[{K}:{K+3}], v[{Q}:{Q+3}], 0")
        else:
            a(f"v_mfma_f32_32x32x16_bf16 v[{S}:{S+15}], v[{K+4}:{K+7}], v[{Q+4}:{Q+7}], v[{S}:{S+15}]")

    A_V2B = 128
    def p2_sub(self, stream, u):
        a = self.a
        P = self.A_P
        p = u & 1
        V2 = (self.A_V2, self.A_V2B)
        Sc, Sn = (self.A_SA, self.A_SB) if stream == 0 else (self.A_SB, self.A_SA)
        Oc, Op = (self.A_OA, self.A_OB) if stream == 0 else (self.A_OB, self.A_OA)
        Qn = self.A_QB if stream == 0 else self.A_QA
        kb = p if stream == 0 else 1 - p
        v2 = V2[1-p] if stream == 0 else V2[p]
        ex = lambda i: a(f"v_exp_f32 v{Sc+i}, v{Sc+i}")
        cv = lambda k: a(f"v_cvt_pk_bf16_f32 v{P+k}, v{Sc+2*k}, v{Sc+2*k+1}")
        cvp = lambda k: a(f"v_cvt_pk_bf16_f32 v{P+k}, v{Sn+2*k}, v{Sn+2*k+1}")
        var = getattr(self, "sub_variant", None) or "v1"
        tn = (u+1)*2560
        def rdV():
            a(f"s_mov_b64 exec, s[{self.S_VMASK}:{self.S_VMASK+1}]")
            a(f"ds_read_b128 v[{self.A_V1}:{self.A_V1+3}], v{self.A_AV} offset:{tn}")
            R = V2[1-p]
            a(f"ds_read_b128 v[{R}:{R+3}], v{self.A_AV} offset:{tn+640}")
            a(f"s_mov_b64 exec, -1")
        def rdK(i):
            K = self.A_K + 8*p; toff = (u+2)*2560
            if i == 0: a(f"ds_read_b64 v[{K}:{K+1}], v{self.A_AK} offset:{toff}")
            if i == 1: a(f"ds_read_b64 v[{K+2}:{K+3}], v{self.A_AK} offset:{toff+256}")
            if i == 2: a(f"ds_read_b64 v[{K+4}:{K+5}], v{self.A_AK} offset:{toff+1024}")
        m1 = lambda: self.p2_smfma(0, Sn, kb, Qn)
        m2 = lambda: self.p2_smfma(1, Sn, kb, Qn)
        m4 = lambda: a(f"v_mfma_f32_32x32x16_bf16 v[{Op}:{Op+15}], v[{v2}:{v2+3}], v[{P+4}:{P+7}], v[{Op}:{Op+15}]")
        m3 = lambda: a(f"v_mfma_f32_32x32x16_bf16 v[{Oc}:{Oc+15}], v[{self.A_V1}:{self.A_V1+3}], v[{P}:{P+3}], v[{Oc}:{Oc+15}]")
        wt = lambda: a(f"s_waitcnt lgkmcnt(0)")
        if var == "pure":
            ex(0); cvp(6); ex(1); ex(2); cvp(7); ex(3); m1(); ex(4); cv(0); ex(5); ex(6); cv(1); ex(7); m2()
            ex(8); cv(2); ex(9); ex(10); cv(3); ex(11); m4(); ex(12); cv(4); ex(13); ex(14); cv(5); ex(15); m3()
        elif var == "v0":
            ex(0); cvp(6); ex(1); ex(2); cvp(7); ex(3); m1(); ex(4); cv(0); ex(5); ex(6); cv(1); ex(7); m2()
            ex(8); cv(2); ex(9); ex(10); cv(3); ex(11); m4(); ex(12); cv(4); ex(13); ex(14); cv(5); ex(15)
            if stream == 0: wt()
            m3()
            if stream == 1:
                rdV(); rdK(0); rdK(1); rdK(2)
        elif var == "v1":
            ex(0); cvp(6); ex(1); ex(2); cvp(7); ex(3); m1()
            if stream == 1: rdK(0)
            ex(4); cv(0); ex(5); ex(6); cv(1); ex(7); m2()
            if stream == 1: rdK(1)
            ex(8); cv(2); ex(9); ex(10); cv(3); ex(11); m4()
            if stream == 1: rdK(2)
            ex(12); cv(4); ex(13); ex(14); cv(5); ex(15)
            if stream == 0: wt()
            m3()
            if stream == 1: rdV()
        elif var == "v2":
            ex(0); cvp(6); ex(1); ex(2); cvp(7); ex(3); m1()
            if stream == 1: rdK(1)
            ex(4); cv(0); ex(5); ex(6); cv(1); ex(7); m2()
            if stream == 1: rdK(2)
            ex(8); cv(2); ex(9); ex(10); cv(3); ex(11); m4()
            if stream == 0: rdK(0)
            ex(12); cv(4); ex(13); ex(14); cv(5); ex(15)
            if stream == 0: a(f"s_waitcnt lgkmcnt(1)")
            m3()
            if stream == 1: rdV()
        elif var == "v3":
            ex(0); cvp(6); ex(1); ex(2); cvp(7); ex(3); m1()
            if stream == 1: rdK(0)
            ex(4); cv(0); ex(5); ex(6); cv(1); ex(7); m2()
            if stream == 1: rdK(1)
            ex(8); cv(2); ex(9); ex(10); cv(3); ex(11); m4()
            if stream == 1: rdK(2)
            ex(12); cv(4); ex(13); ex(14); cv(5); ex(15)
            if stream == 0: wt()
            m3()
            if stream == 1:
                a(f"ds_read_b128 v[{self.A_V1}:{self.A_V1+3}], v{self.A_AV} offset:{tn}")
                R = V2[1-p]
                a(f"ds_read_b128 v[{R}:{R+3}], v{self.A_AV} offset:{tn+640}")

    def prio_reg(self, stream):
        return self._prio[stream]

    def p2_check_all(self):
        a = self.a
        X = self.A_ALL; T = self.A_T
        L = "L_p2_all"; Lo = "L_p2_allok"
        a(f"s_mov_b32 s{S_T0}, 0")
        a.put(L)
        for r in range(4):
            a(f"v_subrev_u32 v{T+r}, s{S_TAG}, v{X+r}")
        a(f"v_cmp_le_u32 vcc, 16, v{T}")
        for r in range(1, 4):
            a(f"v_cmp_le_u32 s[{S_SAVE}:{S_SAVE+1}], 16, v{T+r}")
            a(f"s_nop 0")
            a(f"s_or_b64 vcc, vcc, s[{S_SAVE}:{S_SAVE+1}]")
        a(f"s_cbranch_vccz {Lo}")
        a(f"s_add_u32 s{S_T0}, s{S_T0}, 1")
        a(f"s_cmp_ge_u32 s{S_T0}, 0x40000")
        a(f"s_cbranch_scc1 {Lo}")
        a(f"buffer_load_dwordx4 v[{X}:{X+3}], v{self.A_ALLA}, s[{SRD_F}:{SRD_F+3}], 0 offen sc1")
        a(f"s_waitcnt vmcnt(0)")
        a(f"s_branch {L}")
        a.put(Lo)
        a(f"s_and_b32 s{S_T1}, s{S_GX}, 3")
        for r in range(1, 4):
            a(f"s_cmp_eq_u32 s{S_T1}, {r}")
            a(f"s_cselect_b64 s[{S_SAVE}:{S_SAVE+1}], -1, 0")
            a(f"v_cndmask_b32 v{T}, v{T}, v{T+r}, s[{S_SAVE}:{S_SAVE+1}]")
        a(f"v_cmp_ne_u32 vcc, s{S_XCC}, v{T}")
        a(f"s_mov_b32 s{S_T2}, 0x55555555")
        a(f"s_lshr_b32 s{S_T1}, s{S_GX}, 2")
        a(f"s_lshl_b32 s{S_T2}, s{S_T2}, s{S_T1}")
        a(f"s_and_b32 s{S_T3}, vcc_lo, s{S_T2}")
        a(f"s_and_b32 s{S_T4}, vcc_hi, s{S_T2}")
        a(f"s_or_b32 s{S_T3}, s{S_T3}, s{S_T4}")
        a(f"s_cmp_eq_u32 s{S_T3}, 0")
        a(f"s_cselect_b32 s{S_FAST}, {0 if 'nofast' in self.opt else 1}, 0")

    prio_low = (0, 2, 4, 7)
    def p2_setprio(self, lvl, tag):
        a = self.a
        L = f"L_p2_pr{tag}"
        a(f"s_cmp_ge_u32 s{S_W}, 4")
        a(f"s_cbranch_scc1 {L}")
        a(f"s_setprio {lvl}")
        a.put(L)

    def p2_dma(self, n):
        a = self.a
        for i in range(n):
            a(f"s_mov_b32 m0, s{self.S_DSO}")
            a(f"s_nop 0")
            a(f"buffer_load_dwordx4 v{self.A_DV}, s[{SRD_A}:{SRD_A+3}], s{self.S_DSO} offen sc1 lds")
            a(f"s_add_u32 s{self.S_DSO}, s{self.S_DSO}, 4096")

    def p2_setup(self):
        a = self.a
        T = self.A_T
        a(f"s_lshl_b32 s{S_HEAD}, s{S_GX}, 2")
        a(f"s_and_b32 s{S_T0}, s{S_GI}, 3")
        a(f"s_add_u32 s{S_HEAD}, s{S_HEAD}, s{S_T0}")
        a(f"s_lshr_b32 s{S_QB}, s{S_GI}, 2")
        a(f"s_mul_i32 s{S_T0}, s{S_HEAD}, 163840")
        a(f"s_add_u32 s{S_T0}, s{S_T0}, {hex(OFF_KV)}")
        a(f"s_add_u32 s{SRD_A}, s{S_WS}, s{S_T0}")
        a(f"s_addc_u32 s{SRD_A+1}, s{S_WS+1}, 0")
        a(f"s_mov_b32 s{SRD_A+2}, 163840")
        a(f"s_mov_b32 s{SRD_A+3}, 0x20000")
        a(f"s_lshl_b32 s{S_T0}, s{S_HEAD}, 6")
        a(f"s_lshl_b32 s{S_T1}, s{S_QB}, 3")
        a(f"s_add_u32 s{S_T0}, s{S_T0}, s{S_T1}")
        a(f"s_and_b32 s{S_T1}, s{S_W}, 3")
        a(f"s_lshl_b32 s{S_T1}, s{S_T1}, 1")
        a(f"s_add_u32 s{S_T0}, s{S_T0}, s{S_T1}")
        a(f"s_mul_i32 s{S_T0}, s{S_T0}, 1280")
        a(f"s_add_u32 s{S_T0}, s{S_T0}, {hex(OFF_Q)}")
        a(f"s_add_u32 s{SRD_W}, s{S_WS}, s{S_T0}")
        a(f"s_addc_u32 s{SRD_W+1}, s{S_WS+1}, 0")
        a(f"s_mov_b32 s{SRD_W+2}, 2560")
        a(f"s_mov_b32 s{SRD_W+3}, 0x20000")
        a(f"v_and_b32 v{T}, 31, v1")
        a(f"v_lshrrev_b32 v{T+1}, 5, v1")
        a(f"v_lshlrev_b32 v{T+2}, 3, v{T}")
        a(f"v_lshl_add_u32 v{T+4}, v{T+1}, 9, v{T+2}")
        a(f"v_lshlrev_b32 v{T+3}, 12, v{T+1}")
        a(f"v_add_u32 v{T+3}, v{T+3}, v{T+2}")
        a(f"v_lshlrev_b32 v{self.A_DV}, 4, v1")
        a(f"v_add_u32 v{self.A_ALLA}, {OFF_ALL}, v{self.A_DV}")
        a(f"s_lshr_b32 s{S_T0}, s{S_W}, 2")
        a(f"s_mul_i32 s{S_T0}, s{S_T0}, 81920")
        a(f"s_and_b32 s{S_T1}, s{S_W}, 3")
        a(f"s_lshl_b32 s{S_T1}, s{S_T1}, 10")
        a(f"s_add_u32 s{self.S_DSO}, s{S_T0}, s{S_T1}")
        for Q in (self.A_QA, self.A_QB):
            a(f"v_mov_b32 v{Q+6}, 0"); a(f"v_mov_b32 v{Q+7}, 0")
        for kb in range(2):
            a(f"v_mov_b32 v{self.A_K+8*kb+6}, 0"); a(f"v_mov_b32 v{self.A_K+8*kb+7}, 0")
        a(f"v_cmp_eq_u32 vcc, 20, v{T}")
        a(f"v_mov_b32 v{T+5}, 0x3f803f80")
        a(f"v_mul_u32_u24 v{T+6}, 320, v{T+1}")
        a(f"v_cndmask_b32 v{self.A_V1}, 0, v{T+5}, vcc")
        for r in range(1, 8):
            a(f"v_mov_b32 v{self.A_V1+r}, v{self.A_V1}")
        for r in range(4):
            a(f"v_mov_b32 v{self.A_V2B+r}, v{self.A_V1}")
        a(f"v_lshl_add_u32 v{self.A_AV}, v{T}, 4, v{T+6}")
        a(f"v_add_u32 v{self.A_AV}, 1280, v{self.A_AV}")
        a(f"v_add_u32 v{self.A_AK}, s{S_T0}, v{T+4}")
        a(f"v_add_u32 v{self.A_AV}, s{S_T0}, v{self.A_AV}")
        a(f"s_mov_b32 s{self.S_VMASK}, 0xfffff")
        a(f"s_mov_b32 s{self.S_VMASK+1}, 0xfffff")
        for r in range(16):
            a(f"v_mov_b32 v{self.A_OA+r}, 0"); a(f"v_mov_b32 v{self.A_OB+r}, 0")
        for r in range(8):
            a(f"v_mov_b32 v{self.A_P+r}, 0")
        for r in range(12, 16):
            a(f"v_mov_b32 v{self.A_SB+r}, 0")

    def p2(self):
        a = self.a
        T = self.A_T
        self.p2_setup()
        self.stamp(5)
        self.p2_wait()
        self.stamp(6)
        self.p2_dma(2)
        for qi, Q in enumerate((self.A_QA, self.A_QB)):
            a(f"buffer_load_dwordx2 v[{Q}:{Q+1}], v{T+4}, s[{SRD_W}:{SRD_W+3}], 0 offen offset:{1280*qi} sc1")
            a(f"buffer_load_dwordx2 v[{Q+2}:{Q+3}], v{T+4}, s[{SRD_W}:{SRD_W+3}], 0 offen offset:{1280*qi+256} sc1")
            a(f"buffer_load_dwordx2 v[{Q+4}:{Q+5}], v{T+3}, s[{SRD_W}:{SRD_W+3}], 0 offen offset:{1280*qi+1024} sc1")
        self.p2_dma(2)
        a(f"buffer_load_dwordx4 v[{self.A_ALL}:{self.A_ALL+3}], v{self.A_ALLA}, s[{SRD_F}:{SRD_F+3}], 0 offen sc1")
        self.p2_dma(4)
        a(f"s_waitcnt vmcnt(5)")
        a(f"s_barrier")
        self.stamp(7)
        self.p2_dma(1)
        self.p2_kreads(0, 0)
        self.p2_kreads(1, 2560)
        self.p2_vread(0, 0)
        self.p2_vread(1, 0)
        a(f"s_waitcnt lgkmcnt(0)")
        self.p2_smfma(0, self.A_SA, 0, self.A_QA); self.p2_smfma(1, self.A_SA, 0, self.A_QA)
        self.p2_unrolled()
        a.put("L_p2_done")
        a(f"s_setprio 0")
        P = self.A_P; SBr = self.A_SB
        a(f"s_waitcnt lgkmcnt(0)")
        a(f"v_cvt_pk_bf16_f32 v{P+6}, v{SBr+12}, v{SBr+13}")
        a(f"v_cvt_pk_bf16_f32 v{P+7}, v{SBr+14}, v{SBr+15}")
        a(f"s_nop 1")
        a(f"v_mfma_f32_32x32x16_bf16 v[{self.A_OB}:{self.A_OB+15}], v[{self.A_V2B}:{self.A_V2B+3}], v[{P+4}:{P+7}], v[{self.A_OB}:{self.A_OB+15}]")
        self.stamp(8)
        self.p2_epilogue()

    def p2_epilogue(self):
        a = self.a
        T = self.A_T
        a(f"s_mov_b32 s{self.S_SLOWDONE}, {1 if 'noslow' in self.opt else 0}")
        a(f"s_mov_b32 s{self.S_BIG}, {hex(f32(2.0**60))}")
        if "forceslow" in self.opt: a(f"s_mov_b32 s{self.S_BIG}, 0")
        a(f"s_nop 7"); a(f"s_nop 3")
        a(f"s_barrier")
        a(f"s_and_b32 s{S_T0}, s{S_W}, 3")
        a(f"s_lshr_b32 s{S_T1}, s{S_W}, 2")
        a(f"s_lshl_b32 s{S_T0}, s{S_T0}, 1")
        a(f"s_add_u32 s{S_T2}, s{S_T0}, s{S_T1}")
        a(f"s_xor_b32 s{S_T3}, s{S_T2}, 1")
        a(f"s_mul_i32 s{S_T2}, s{S_T2}, 3072")
        a(f"s_mul_i32 s{S_T3}, s{S_T3}, 3072")
        a(f"s_add_u32 s{S_T2}, s{S_T2}, 51200")
        a(f"s_add_u32 s{S_T3}, s{S_T3}, 51200")
        a(f"v_lshlrev_b32 v{T}, 4, v1")
        a(f"v_add_u32 v{T+1}, s{S_T2}, v{T}")
        a(f"v_add_u32 v{T+2}, s{S_T3}, v{T}")
        Lk1 = "L_p2e_k1"; Lj = "L_p2e_j"
        a(f"s_cmp_eq_u32 s{S_T1}, 1")
        a(f"s_cbranch_scc1 {Lk1}")
        for g in range(3):
            a(f"ds_write_b128 v{T+1}, v[{self.A_OB+4*g}:{self.A_OB+4*g+3}] offset:{1024*g}")
        a(f"s_branch {Lj}")
        a.put(Lk1)
        for g in range(3):
            a(f"ds_write_b128 v{T+1}, v[{self.A_OA+4*g}:{self.A_OA+4*g+3}] offset:{1024*g}")
        for r in range(12):
            a(f"v_mov_b32 v{self.A_OA+r}, v{self.A_OB+r}")
        a.put(Lj)
        a(f"s_waitcnt lgkmcnt(0)")
        a(f"s_barrier")
        O = self.A_OA; X = self.A_SA
        for g in range(3):
            a(f"ds_read_b128 v[{X+4*g}:{X+4*g+3}], v{T+2} offset:{1024*g}")
        a(f"s_waitcnt lgkmcnt(0)")
        for r in range(12):
            a(f"v_add_f32 v{O+r}, v{O+r}, v{X+r}")
        a.put("L_p2_fin")
        a(f"v_mov_b32 v{T}, v{O+8}")
        a(f"v_mov_b32 v{T+1}, v{O+8}")
        a(f"s_nop 1")
        a(f"v_permlane32_swap_b32 v{T}, v{T+1}")
        a(f"v_mul_f32 v{T+3}, 0, v{O}")
        for r in list(range(1, 8)):
            a(f"v_fmac_f32 v{T+3}, 0, v{O+r}")
        a(f"v_mov_b32 v{T+4}, 0")
        for r in range(8, 12):
            a(f"v_fmac_f32 v{T+4}, 0, v{O+r}")
        a(f"v_cmp_le_f32 vcc, {hex(f32(2.0**-60))}, v{T+1}")
        a(f"v_cmp_ge_f32 s[{S_SAVE}:{S_SAVE+1}], s{self.S_BIG}, v{T+1}")
        a(f"s_nop 0")
        a(f"s_and_b64 vcc, vcc, s[{S_SAVE}:{S_SAVE+1}]")
        a(f"v_cmp_eq_f32 s[{S_SAVE}:{S_SAVE+1}], 0, v{T+3}")
        a(f"s_nop 0")
        a(f"s_and_b64 vcc, vcc, s[{S_SAVE}:{S_SAVE+1}]")
        a(f"v_cmp_eq_f32 s[{S_SAVE}:{S_SAVE+1}], 0, v{T+4}")
        a(f"s_nop 0")
        a(f"s_or_b32 s{S_SAVE+1}, s{S_SAVE+1}, -1")
        a(f"s_and_b64 vcc, vcc, s[{S_SAVE}:{S_SAVE+1}]")
        a(f"s_or_b32 vcc_lo, vcc_lo, 0")
        a(f"s_cmp_eq_u32 s{self.S_SLOWDONE}, 1")
        a(f"s_cbranch_scc1 L_p2_ok")
        a(f"s_cmp_eq_u64 vcc, -1")
        a(f"s_cbranch_scc0 L_p2_slow")
        a.put("L_p2_ok")
        a(f"v_rcp_f32 v{T+2}, v{T+1}")
        a(f"s_nop 0")
        for r in range(12):
            a(f"v_mul_f32 v{O+r}, v{T+2}, v{O+r}")
        for g in range(3):
            a(f"v_cvt_pk_bf16_f32 v{O+4*g}, v{O+4*g}, v{O+4*g+1}")
            a(f"v_cvt_pk_bf16_f32 v{O+4*g+1}, v{O+4*g+2}, v{O+4*g+3}")
        self.srd(SRD_O, S_WS, OFF_O, SZ_O)
        a(f"s_and_b32 s{S_T2}, s{S_W}, 3")
        a(f"s_lshr_b32 s{S_T3}, s{S_W}, 2")
        a(f"s_lshl_b32 s{S_T0}, s{S_QB}, 2")
        a(f"s_add_u32 s{S_T0}, s{S_T0}, s{S_T2}")
        a(f"s_mul_i32 s{S_T0}, s{S_T0}, 81920")
        a(f"s_lshl_b32 s{S_T1}, s{S_T3}, 11")
        a(f"s_add_u32 s{S_T0}, s{S_T0}, s{S_T1}")
        a(f"v_bfe_u32 v{T+3}, v1, 4, 1")
        a(f"v_lshlrev_b32 v{T+3}, 10, v{T+3}")
        a(f"v_and_b32 v{T+4}, 15, v1")
        a(f"v_lshl_add_u32 v{T+3}, v{T+4}, 4, v{T+3}")
        a(f"v_lshrrev_b32 v{T+5}, 5, v1")
        a(f"s_mul_i32 s{S_T1}, s{S_HEAD}, 20")
        for g in range(3):
            a(f"v_lshlrev_b32 v{T+6}, 2, v{T+5}")
            a(f"s_add_u32 s{S_T2}, s{S_T1}, {8*g}")
            a(f"v_add_u32 v{T+6}, s{S_T2}, v{T+6}")
            a(f"v_lshrrev_b32 v{T+7}, 5, v{T+6}")
            a(f"v_lshlrev_b32 v{T+7}, 12, v{T+7}")
            a(f"v_bfe_u32 v{T+8}, v{T+6}, 3, 2")
            a(f"v_lshl_add_u32 v{T+7}, v{T+8}, 8, v{T+7}")
            a(f"v_and_b32 v{T+8}, 7, v{T+6}")
            a(f"v_lshl_add_u32 v{T+7}, v{T+8}, 1, v{T+7}")
            a(f"v_add_u32 v{T+7}, v{T+7}, v{T+3}")
            if g == 2: self.set_exec(0xffffffff)
            a(f"buffer_store_dwordx2 v[{O+4*g}:{O+4*g+1}], v{T+7}, s[{SRD_O}:{SRD_O+3}], s{S_T0} offen sc1")
            if g == 2: a(f"s_mov_b64 exec, -1")
        a(f"s_branch L_p2_end")
        self.p2_slow()
        a.put("L_p2_end")

    S_SLOWDONE = 94; S_BIG = 95
    def p2_slow(self):
        a = self.a
        T = self.A_T; O = self.A_OA; S = self.A_SA; P = self.A_P
        K = self.A_K; Q = self.A_QA
        a.put("L_p2_slow")
        a(f"s_cmp_lt_u32 s{S_W}, 4")
        a(f"s_cbranch_scc1 L_p2s_q")
        for r in range(8):
            a(f"v_mov_b32 v{Q+r}, v{self.A_QB+r}")
        a.put("L_p2s_q")
        a(f"v_and_b32 v{T}, 31, v1")
        a(f"v_lshrrev_b32 v{T+1}, 5, v1")
        a(f"v_lshlrev_b32 v{T+2}, 3, v{T}")
        a(f"v_lshl_add_u32 v{T+3}, v{T+1}, 9, v{T+2}")
        a(f"v_mul_u32_u24 v{T+4}, 320, v{T+1}")
        a(f"v_lshl_add_u32 v{T+4}, v{T}, 4, v{T+4}")
        a(f"v_mov_b32 v{T+5}, 0xff800000")
        def loadk():
            a(f"buffer_load_dwordx2 v[{K}:{K+1}], v{T+3}, s[{SRD_A}:{SRD_A+3}], s{S_T1} offen sc1")
            a(f"buffer_load_dwordx2 v[{K+2}:{K+3}], v{T+3}, s[{SRD_A}:{SRD_A+3}], s{S_T1} offen offset:256 sc1")
            a(f"buffer_load_dwordx2 v[{K+4}:{K+5}], v{T+2}, s[{SRD_A}:{SRD_A+3}], s{S_T1} offen offset:1024 sc1")
        def smm():
            a(f"v_mfma_f32_32x32x16_bf16 v[{S}:{S+15}], v[{K}:{K+3}], v[{Q}:{Q+3}], 0")
            a(f"v_mfma_f32_32x32x16_bf16 v[{S}:{S+15}], v[{K+4}:{K+7}], v[{Q+4}:{Q+7}], v[{S}:{S+15}]")
            a(f"s_nop 7"); a(f"s_nop 7")
        a(f"s_mov_b32 s{S_T1}, 0")
        a.put("L_p2s_1")
        loadk()
        a(f"s_waitcnt vmcnt(0)")
        smm()
        for r in range(16):
            a(f"v_max_f32 v{T+5}, v{T+5}, v{S+r}")
        a(f"s_add_u32 s{S_T1}, s{S_T1}, 2560")
        a(f"s_cmp_lt_u32 s{S_T1}, 163840")
        a(f"s_cbranch_scc1 L_p2s_1")
        a(f"v_mov_b32 v{T+6}, v{T+5}")
        a(f"s_nop 1")
        a(f"v_permlane32_swap_b32 v{T+6}, v{T+5}")
        a(f"s_nop 1")
        a(f"v_max_f32 v{T+5}, v{T+5}, v{T+6}")
        for r in range(16):
            a(f"v_mov_b32 v{O+r}, 0")
        a(f"s_mov_b32 s{S_T1}, 0")
        a.put("L_p2s_2")
        loadk()
        a(f"s_mov_b64 exec, s[{self.S_VMASK}:{self.S_VMASK+1}]")
        a(f"buffer_load_dwordx4 v[{self.A_V1}:{self.A_V1+3}], v{T+4}, s[{SRD_A}:{SRD_A+3}], s{S_T1} offen offset:1280 sc1")
        a(f"buffer_load_dwordx4 v[{self.A_V2}:{self.A_V2+3}], v{T+4}, s[{SRD_A}:{SRD_A+3}], s{S_T1} offen offset:1920 sc1")
        a(f"s_mov_b64 exec, -1")
        a(f"s_waitcnt vmcnt(0)")
        smm()
        for r in range(16):
            a(f"v_sub_f32 v{S+r}, v{S+r}, v{T+5}")
        for r in range(16):
            a(f"v_exp_f32 v{S+r}, v{S+r}")
        a(f"s_nop 0")
        for k in range(8):
            a(f"v_cvt_pk_bf16_f32 v{P+k}, v{S+2*k}, v{S+2*k+1}")
        a(f"s_nop 1")
        a(f"v_mfma_f32_32x32x16_bf16 v[{O}:{O+15}], v[{self.A_V1}:{self.A_V1+3}], v[{P}:{P+3}], v[{O}:{O+15}]")
        a(f"v_mfma_f32_32x32x16_bf16 v[{O}:{O+15}], v[{self.A_V2}:{self.A_V2+3}], v[{P+4}:{P+7}], v[{O}:{O+15}]")
        a(f"s_add_u32 s{S_T1}, s{S_T1}, 2560")
        a(f"s_cmp_lt_u32 s{S_T1}, 163840")
        a(f"s_cbranch_scc1 L_p2s_2")
        a(f"s_nop 7"); a(f"s_nop 7")
        a(f"s_mov_b32 s{self.S_SLOWDONE}, 1")
        a(f"s_branch L_p2_fin")

    G_ACC = 4
    G_ACT = 52
    G_AM = 84
    G_DV = 2
    G_SA = 3
    S_RB = 49; S_J = 50
    def g2_wbase(self, phase, NT):
        return 88 if (phase == 3 or NT == 3) else 144

    def g2_wsetup(self, phase, srd, sreg, vreg):
        a = self.a
        if phase == 3: self.srd(srd, S_WS, OFF_WOP, SZ_WOP)
        else: self.srd(srd, S_WS, OFF_W2P, SZ_W2P)
        a(f"s_and_b32 s{S_T0}, s{S_W}, 3")
        a(f"s_mul_i32 s{S_T1}, s{S_T0}, 40")
        a(f"s_and_b32 s{S_T2}, s{S_GI}, 7")
        a(f"s_mul_i32 s{S_T2}, s{S_T2}, 5")
        a(f"s_add_u32 s{S_T1}, s{S_T1}, s{S_T2}")
        a(f"s_cmp_lt_u32 s{S_W}, 4")
        a(f"s_cselect_b32 s{S_T2}, 3, 0")
        a(f"s_add_u32 s{S_T1}, s{S_T1}, s{S_T2}")
        a(f"s_lshl_b32 s{sreg}, s{S_T1}, 10")
        a(f"v_lshlrev_b32 v{vreg}, 4, v1")

    def g2_wload1(self, phase, NT, step, t, srd, sreg, vreg):
        a = self.a
        R = self.g2_wbase(phase, NT) + 4*(step*NT + t)
        off = step*4*40*1024 + t*1024
        a(f"s_add_u32 s{S_T2}, s{sreg}, {off}")
        a(f"buffer_load_dwordx4 v[{R}:{R+3}], v{vreg}, s[{srd}:{srd+3}], s{S_T2} offen {self.ld_aux}")

    def g2_wloads_byclass(self, phase, listA, listB, srd, sreg, vreg, tag):
        a = self.a
        LA = f"L_{tag}_A"; LJ = f"L_{tag}_J"
        a(f"s_cmp_ge_u32 s{S_W}, 4")
        a(f"s_cbranch_scc1 {LA}")
        for (st, t) in listB: self.g2_wload1(phase, 2, st, t, srd, sreg, vreg)
        a(f"s_branch {LJ}")
        a.put(LA)
        for (st, t) in listA: self.g2_wload1(phase, 3, st, t, srd, sreg, vreg)
        a.put(LJ)

    def g2_adma(self, stage):
        a = self.a
        slot = (stage % 4) * 32768
        for q in range(4):
            a(f"s_add_u32 m0, s{S_M0A}, {slot + q*8192}")
            a(f"s_add_u32 s{S_T2}, s{S_M0A}, {stage*32768 + q*8192}")
            a(f"buffer_load_dwordx4 v{self.G_DV}, s[{SRD_A}:{SRD_A+3}], s{S_T2} offen {self.ld_aux} lds")

    def g2_reads(self, stage, u, st):
        a = self.a
        slot = stage % 4
        hi = slot >= 2
        if hi != self.g2_hi:
            for m in range(4):
                if hi: a(f"v_add_u32 v{self.G_AM+m}, 0x10000, v{self.G_AM+m}")
                else:  a(f"v_subrev_u32 v{self.G_AM+m}, 0x10000, v{self.G_AM+m}")
            self.g2_hi = hi
        off = (slot % 2) * 32768 + u*16384
        for m in range(4):
            R = self.G_ACT + 16*st + 4*m
            a(f"ds_read_b128 v[{R}:{R+3}], v{self.G_AM+m} offset:{off}")

    def g2_mfma(self, phase, NT, step, st):
        a = self.a
        for t in range(NT):
            W = self.g2_wbase(phase, NT) + 4*(step*NT + t)
            for m in range(4):
                A = self.G_ACC + 4*(m*3 + t)
                X = self.G_ACT + 16*st + 4*m
                a(f"v_mfma_f32_16x16x32_bf16 v[{A}:{A+3}], v[{W}:{W+3}], v[{X}:{X+3}], v[{A}:{A+3}]")

    def g2_main(self, phase, NT, nsteps):
        a = self.a
        NSTG = (nsteps + 1) // 2
        pre = min(3, NSTG)
        self.g2_hi = False
        for sg in range(pre):
            self.g2_adma(sg)
        a(f"s_waitcnt vmcnt({4*pre})")
        E = self.G_ACT; A = self.G_ACC
        for t in range(NT):
            for half in range(2):
                R = E + 2*t + half
                a(f"v_lshlrev_b32 v{A+4*t+2*half}, 16, v{R}")
                a(f"v_and_b32 v{A+4*t+2*half+1}, 0xffff0000, v{R}")
                if phase == 5:
                    R2 = E + 6 + 2*t + half
                    a(f"v_lshlrev_b32 v{E+14}, 16, v{R2}")
                    a(f"v_and_b32 v{E+15}, 0xffff0000, v{R2}")
                    a(f"v_add_f32 v{A+4*t+2*half}, v{A+4*t+2*half}, v{E+14}")
                    a(f"v_add_f32 v{A+4*t+2*half+1}, v{A+4*t+2*half+1}, v{E+15}")
        if self.g2st: self.stamp(self.g2st)
        a(f"s_waitcnt vmcnt({4*(pre-1)})")
        a(f"s_barrier")
        if self.g2st: self.stamp(self.g2st+1)
        self.g2_reads(0, 0, 0)
        for sg in range(NSTG):
            two = (2*sg + 1) < nsteps
            if sg + 1 < NSTG:
                out = 4 * max(0, min(NSTG, sg + pre) - (sg + 2))
                a(f"s_waitcnt vmcnt({out})")
                a(f"s_barrier")
            if two:
                self.g2_reads(sg, 1, 1)
                a(f"s_waitcnt lgkmcnt(4)")
            else:
                a(f"s_waitcnt lgkmcnt(0)")
            self.g2_mfma(phase, NT, 2*sg, 0)
            if sg + pre < NSTG:
                self.g2_adma(sg + pre)
            if two:
                if sg + 1 < NSTG:
                    self.g2_reads(sg+1, 0, 0)
                    a(f"s_waitcnt lgkmcnt(4)")
                else:
                    a(f"s_waitcnt lgkmcnt(0)")
                self.g2_mfma(phase, NT, 2*sg+1, 1)

    def g2_reduce(self, NT):
        a = self.a
        T = self.G_ACT
        cls = 0 if NT == 3 else 1
        a(f"s_and_b32 s{S_T1}, s{S_W}, 3")
        for m in range(1, 4):
            a(f"s_add_u32 s{S_T2}, s{S_T1}, {m}")
            a(f"s_and_b32 s{S_T2}, s{S_T2}, 3")
            a(f"s_mul_i32 s{S_T2}, s{S_T2}, 9216")
            a(f"s_add_u32 s{S_T2}, s{S_T2}, {cls*36864 + (m-1)*3072}")
            a(f"v_add_u32 v{T+m}, s{S_T2}, v{self.G_DV}")
        a(f"s_mul_i32 s{S_T2}, s{S_T1}, 9216")
        a(f"s_add_u32 s{S_T2}, s{S_T2}, {cls*36864}")
        a(f"v_add_u32 v{T}, s{S_T2}, v{self.G_DV}")
        a(f"s_barrier")
        for m in range(1, 4):
            for t in range(NT):
                A = self.G_ACC + 4*(m*3 + t)
                a(f"ds_write_b128 v{T+m}, v[{A}:{A+3}] offset:{t*1024}")
        a(f"s_waitcnt lgkmcnt(0)")
        a(f"s_barrier")
        for rel in range(3):
            for t in range(NT):
                A = self.G_ACC + 4*((rel+1)*3 + t)
                a(f"ds_read_b128 v[{A}:{A+3}], v{T} offset:{rel*3072 + t*1024}")
        a(f"s_waitcnt lgkmcnt(0)")
        for t in range(NT):
            for i in range(4):
                A = self.G_ACC + 4*t + i
                a(f"v_add_f32 v{A}, v{A}, v{A+12}")
                a(f"v_add_f32 v{A+24}, v{A+24}, v{A+36}")
            for i in range(4):
                A = self.G_ACC + 4*t + i
                a(f"v_add_f32 v{A}, v{A}, v{A+24}")

    def g2_setup(self, phase):
        a = self.a
        a(f"s_lshr_b32 s{S_T0}, s{S_GI}, 3")
        a(f"s_lshl_b32 s{S_T1}, s{S_GX}, 2")
        a(f"s_add_u32 s{self.S_RB}, s{S_T0}, s{S_T1}")
        a(f"s_and_b32 s{self.S_J}, s{S_GI}, 7")
        if phase == 3: off, per = OFF_O, 81920
        else: off, per = OFF_R, 54*4096
        a(f"s_mul_i32 s{S_T0}, s{self.S_RB}, {per}")
        a(f"s_add_u32 s{S_T0}, s{S_T0}, {hex(off)}")
        a(f"s_add_u32 s{SRD_A}, s{S_WS}, s{S_T0}")
        a(f"s_addc_u32 s{SRD_A+1}, s{S_WS+1}, 0")
        a(f"s_mov_b32 s{SRD_A+2}, {per}")
        a(f"s_mov_b32 s{SRD_A+3}, 0x20000")
        a(f"s_lshl_b32 s{S_M0A}, s{S_W}, 10")
        a(f"v_lshlrev_b32 v{self.G_DV}, 4, v1")
        a(f"s_and_b32 s{S_T0}, s{S_W}, 3")
        for m in range(4):
            a(f"s_add_u32 s{S_T1}, s{S_T0}, {m}")
            a(f"s_and_b32 s{S_T1}, s{S_T1}, 3")
            a(f"s_lshl_b32 s{S_T1}, s{S_T1}, 10")
            a(f"s_lshl_b32 s{S_T2}, s{S_T0}, 12")
            a(f"s_add_u32 s{S_T1}, s{S_T1}, s{S_T2}")
            a(f"v_add_u32 v{self.G_AM+m}, s{S_T1}, v{self.G_DV}")
        E = self.G_ACT
        a(f"s_lshl_b32 s{S_T0}, s{self.S_RB}, 6")
        a(f"s_and_b32 s{S_T1}, s{S_W}, 3")
        a(f"s_lshl_b32 s{S_T1}, s{S_T1}, 4")
        a(f"s_add_u32 s{S_T0}, s{S_T0}, s{S_T1}")
        a(f"v_and_b32 v{self.G_SA}, 15, v1")
        a(f"v_add_u32 v{self.G_SA}, s{S_T0}, v{self.G_SA}")
        a(f"v_mul_u32_u24 v{self.G_SA}, 1280, v{self.G_SA}")
        a(f"s_mul_i32 s{S_T0}, s{self.S_J}, 160")
        a(f"s_cmp_lt_u32 s{S_W}, 4")
        a(f"s_cselect_b32 s{S_T1}, 96, 0")
        a(f"s_add_u32 s{S_T0}, s{S_T0}, s{S_T1}")
        a(f"v_lshrrev_b32 v{E+12}, 4, v1")
        a(f"v_lshlrev_b32 v{E+12}, 3, v{E+12}")
        a(f"v_add_u32 v{E+12}, s{S_T0}, v{E+12}")
        a(f"v_add_u32 v{self.G_SA}, v{self.G_SA}, v{E+12}")
        if phase == 3:
            self.srd(SRD_T, S_X, 0, 2048*1280); aux_r = ""
        else:
            self.srd(SRD_T, S_WS, OFF_H, SZ_H); aux_r = self.ld_aux
        for t in range(3):
            a(f"buffer_load_dwordx2 v[{E+2*t}:{E+2*t+1}], v{self.G_SA}, s[{SRD_T}:{SRD_T+3}], 0 offen offset:{32*t} {aux_r}")
        if phase == 5:
            self.srd(SRD_T, S_B2, 0, 1280)
            for t in range(3):
                a(f"buffer_load_dwordx2 v[{E+6+2*t}:{E+7+2*t}], v{E+12}, s[{SRD_T}:{SRD_T+3}], 0 offen offset:{32*t}")
        for r in range(12, 48):
            a(f"v_mov_b32 v{self.G_ACC+r}, 0")

    def g2_epi(self, phase, NT):
        a = self.a
        T = self.G_ACT; A = self.G_ACC
        if phase == 3:
            self.srd_twin(S_WS, OFF_H, SZ_H)
        else:
            self.srd(SRD_O, S_OUT, 0, 2048*1280)
        for t in range(NT):
            a(f"v_cvt_pk_bf16_f32 v{A+4*t}, v{A+4*t}, v{A+4*t+1}")
            a(f"v_cvt_pk_bf16_f32 v{A+4*t+1}, v{A+4*t+2}, v{A+4*t+3}")
            if phase == 3: self.store_twin("buffer_store_dwordx2", f"v[{A+4*t}:{A+4*t+1}]", self.G_SA, "0", f"offset:{32*t}")
            else: a(f"buffer_store_dwordx2 v[{A+4*t}:{A+4*t+1}], v{self.G_SA}, s[{SRD_O}:{SRD_O+3}], 0 offen offset:{32*t} {self.out_aux}")
        if phase == 3:
            S = T + 22
            a(f"v_mov_b32 v{S}, 0"); a(f"v_mov_b32 v{S+1}, 0")
            for t in range(NT):
                for half in range(2):
                    R = A + 4*t + half
                    a(f"v_lshlrev_b32 v{T+20}, 16, v{R}")
                    a(f"v_and_b32 v{T+21}, 0xffff0000, v{R}")
                    a(f"v_add_f32 v{S}, v{S}, v{T+20}")
                    a(f"v_fmac_f32 v{S+1}, v{T+20}, v{T+20}")
                    a(f"v_add_f32 v{S}, v{S}, v{T+21}")
                    a(f"v_fmac_f32 v{S+1}, v{T+21}, v{T+21}")
            for op in ("v_permlane32_swap_b32", "v_permlane16_swap_b32"):
                a(f"v_mov_b32 v{S+2}, v{S}")
                a(f"v_mov_b32 v{S+3}, v{S+1}")
                a(f"s_nop 1")
                a(f"{op} v{S+2}, v{S}")
                a(f"{op} v{S+3}, v{S+1}")
                a(f"s_nop 1")
                a(f"v_add_f32 v{S}, v{S}, v{S+2}")
                a(f"v_add_f32 v{S+1}, v{S+1}, v{S+3}")
            a(f"s_lshl_b32 s{S_T0}, s{self.S_RB}, 6")
            a(f"s_and_b32 s{S_T1}, s{S_W}, 3")
            a(f"s_lshl_b32 s{S_T1}, s{S_T1}, 4")
            a(f"s_add_u32 s{S_T0}, s{S_T0}, s{S_T1}")
            a(f"v_and_b32 v{S+2}, 15, v1")
            a(f"v_add_u32 v{S+2}, s{S_T0}, v{S+2}")
            a(f"v_lshlrev_b32 v{S+2}, 7, v{S+2}")
            a(f"s_lshl_b32 s{S_T0}, s{self.S_J}, 4")
            a(f"s_add_u32 s{S_T0}, s{S_T0}, {hex(8 if NT == 2 else 0)}")
            a(f"v_add_u32 v{S+2}, s{S_T0}, v{S+2}")
            self.srd_twin(S_WS, OFF_PST, 2048*128)
            a(f"s_mov_b64 exec, 0xffff")
            self.store_twin("buffer_store_dwordx2", f"v[{S}:{S+1}]", S+2, "0")
            a(f"s_mov_b64 exec, -1")

    def g2(self, phase):
        a = self.a
        nsteps = 5 if phase == 3 else 14
        self.g2st = 15 if (str(phase) in self.opt_g2) else None
        L1 = f"L_g2p{phase}_n1"; Lj = f"L_g2p{phase}_j"
        a(f"s_cmp_lt_u32 s{S_W}, 4")
        a(f"s_cbranch_scc1 {L1}")
        for NT in (3, 2):
            self.g2_main(phase, NT, nsteps)
            if self.g2st: self.stamp(self.g2st+2)
            a(f"s_nop 7")
            self.g2_reduce(NT)
            if self.g2st: self.stamp(self.g2st+3)
            self.g2_epi(phase, NT)
            if NT == 3:
                a(f"s_branch {Lj}")
                a.put(L1)
        a.put(Lj)

    def hook23(self):
        a = self.a
        a(f"v_lshlrev_b32 v{self.G_DV}, 4, v1")
        self.wo_from_lds()
        self.g2_setup(3)
    def hook34(self):
        a = self.a
        a(f"s_cmp_lt_u32 s{S_GI}, 28")
        a(f"s_cbranch_scc1 L_h34_skip")
        self.prefetch_w2_rest()
        a.put("L_h34_skip")
        self.p4_setup()
    def hook45(self):
        self.g2_setup(5)
        if "wbl2" in self.opt:
            a = self.a
            a(f"s_cmp_lg_u32 s{S_GI}, 31")
            a(f"s_cbranch_scc1 L_wbl2_skip")
            a(f"s_cmp_lg_u32 s{S_W}, 1")
            a(f"s_cbranch_scc1 L_wbl2_skip")
            a(f"buffer_wbl2 sc1")
            a.put("L_wbl2_skip")

    def wo_lds_base(self, dst):
        a = self.a
        a(f"s_sub_u32 s{S_T3}, s{S_W}, 4")
        a(f"s_mul_i32 s{S_T3}, s{S_T3}, 15360")
        a(f"s_cmp_eq_u32 s{S_W}, 7")
        a(f"s_cselect_b32 s{S_T3}, 81920, s{S_T3}")
        a(f"s_mul_i32 s{S_T4}, s{S_W}, 10240")
        a(f"s_add_u32 s{S_T4}, s{S_T4}, 97280")
        a(f"s_cmp_eq_u32 s{S_W}, 3")
        a(f"s_cselect_b32 s{S_T4}, 46080, s{S_T4}")
        a(f"s_cmp_lt_u32 s{S_W}, 4")
        a(f"s_cselect_b32 s{dst}, s{S_T4}, s{S_T3}")

    def wo_frag_off(self, NT, idx):
        return idx * 1024

    def wo_dma(self, lo, hi):
        a = self.a
        LA = f"L_wod{lo}_A"; LJ = f"L_wod{lo}_J"
        a(f"s_cmp_ge_u32 s{S_W}, 4")
        a(f"s_cbranch_scc1 {LA}")
        for NT, lab in ((2, None), (3, LA)):
            if lab:
                a(f"s_branch {LJ}")
                a.put(lab)
            for idx in range(lo, min(hi, 5*NT)):
                st, t = divmod(idx, NT)
                base = self.S_WOB if not (NT == 2 and idx >= 5) else self.S_WOB2
                a(f"s_add_u32 m0, s{base}, {idx*1024}")
                a(f"s_add_u32 s{S_T2}, s{self.S_WOS}, {st*4*40*1024 + t*1024}")
                a(f"buffer_load_dwordx4 v{self.A_DV}, s[{SRD_T}:{SRD_T+3}], s{S_T2} offen {self.ld_aux} lds")
        a.put(LJ)

    def wo_dma_cls(self, NT, lo, hi):
        a = self.a
        for idx in range(lo, min(hi, 5*NT)):
            st, t = divmod(idx, NT)
            base = self.S_WOB if not (NT == 2 and idx >= 5) else self.S_WOB2
            a(f"s_add_u32 m0, s{base}, {idx*1024}")
            a(f"s_add_u32 s{S_T2}, s{self.S_WOS}, {st*4*40*1024 + t*1024}")
            a(f"buffer_load_dwordx4 v{self.A_DV}, s[{SRD_T}:{SRD_T+3}], s{S_T2} offen {self.ld_aux} lds")

    S_WOB = 63; S_WOB2 = 64; S_WOS = 54
    def wo_setup(self):
        a = self.a
        self.g2_wsetup(3, SRD_T, self.S_WOS, self.A_DV)
        self.wo_lds_base(self.S_WOB)
        a(f"s_cmp_eq_u32 s{S_W}, 3")
        a(f"s_cselect_b32 s{self.S_WOB2}, {128000-5120}, s{self.S_WOB}")

    def wo_from_lds(self):
        a = self.a
        LA = "L_wol_A"; LJ = "L_wol_J"
        a(f"v_add_u32 v{self.G_AM}, s{self.S_WOBK}, v{self.G_DV}")
        a(f"v_add_u32 v{self.G_AM+1}, s{self.S_WOB2}, v{self.G_DV}")
        a(f"s_cmp_ge_u32 s{S_W}, 4")
        a(f"s_cbranch_scc1 {LA}")
        for NT, lab in ((2, None), (3, LA)):
            if lab:
                a(f"s_branch {LJ}")
                a.put(lab)
            for idx in range(5*NT):
                R = 88 + 4*idx
                ad = self.G_AM if not (NT == 2 and idx >= 5) else self.G_AM + 1
                a(f"ds_read_b128 v[{R}:{R+3}], v{ad} offset:{idx*1024}")
        a.put(LJ)
        a(f"s_waitcnt lgkmcnt(0)")

    def prefetch_wo(self):
        self.g2_wsetup(3, SRD_W, S_SW, 2)
        self.g2_wloads_byclass(3, [(s_, t) for s_ in range(5) for t in range(3)], [(s_, t) for s_ in range(5) for t in range(2)], SRD_W, S_SW, 2, "pfwo")
    def prefetch_w2_rest(self):
        self.g2_wsetup(5, SRD_W, S_SW, 2)
        self.g2_wloads_byclass(5, [(s_, t) for s_ in range(5) for t in range(3)], [], SRD_W, S_SW, 2, "pfw2")

    def p4_epi(self):
        a = self.a
        self.V_T = 2
        T = self.V_T; A = self.V_ACC; CSR = self.V_FR
        B1R = self.V_FR + 32
        a(f"s_cmp_eq_u32 s{S_NT}, 13")
        a(f"s_cselect_b32 s{S_T0}, s{S_WN}, 0")
        a(f"s_cmp_eq_u32 s{S_T0}, 1")
        a(f"s_cbranch_scc1 L_p4_skip")
        self.epi_T_common()
        for g in range(4):
            a(f"ds_read_b128 v[{B1R+4*g}:{B1R+4*g+3}], v{T+7} offset:{ST_B1-ST_CS+32*g}")
        for g in range(4):
            a(f"ds_read_b128 v[{B1R+16+4*g}:{B1R+16+4*g+3}], v{T+1} offset:{ST_B1-ST_CS+32*g}")
        if "rsc1" in self.opt: self.srd(SRD_O, S_WS, OFF_R, SZ_R)
        else: self.srd_twin(S_WS, OFF_R, SZ_R)
        a(f"s_lshl_b32 s{S_T0}, s{S_MT}, 1")
        a(f"s_add_u32 s{S_T0}, s{S_T0}, s{S_WM}")
        a(f"s_mul_i32 s{S_T0}, s{S_T0}, {54*4096}")
        a(f"s_lshl_b32 s{S_T1}, s{S_NT}, 2")
        a(f"s_lshl_b32 s{S_T2}, s{S_WN}, 1")
        a(f"s_add_u32 s{S_T1}, s{S_T1}, s{S_T2}")
        a(f"s_add_u32 s{S_T2}, s{S_T1}, s{S_WM}")
        a(f"s_xor_b32 s{S_T3}, s{S_WM}, 1")
        a(f"s_add_u32 s{S_T3}, s{S_T1}, s{S_T3}")
        a(f"s_lshl_b32 s{S_T2}, s{S_T2}, 12")
        a(f"s_lshl_b32 s{S_T3}, s{S_T3}, 12")
        a(f"s_add_u32 s{S_T4}, s{S_T0}, s{S_T2}")
        a(f"s_add_u32 s{S_T5}, s{S_T0}, s{S_T3}")
        a(f"v_bfe_u32 v{T+8}, v1, 4, 1")
        a(f"v_lshlrev_b32 v{T+8}, 10, v{T+8}")
        a(f"v_and_b32 v{T+9}, 15, v1")
        a(f"v_lshl_add_u32 v{T+8}, v{T+9}, 4, v{T+8}")
        a(f"v_lshl_add_u32 v{T+8}, v{T+6}, 8, v{T+8}")
        a(f"s_waitcnt lgkmcnt(0)")
        for tt in range(2):
            for q in range(2):
                for gp in range(2):
                    for g in (2*gp, 2*gp+1):
                        for i in range(4):
                            r = A + 16*(2*tt+q) + 4*g + i
                            a(f"v_fma_f32 v{r}, v{T+2+2*tt}, v{r}, v{B1R+16*q+4*g+i}")
                            a(f"v_fmac_f32 v{r}, v{T+3+2*tt}, v{CSR+16*q+4*g+i}")
                            a(f"v_max_f32 v{r}, 0, v{r}")
                            a(f"v_mul_f32 v{r}, v{r}, v{r}")
                    r = A + 16*(2*tt+q) + 8*gp
                    a(f"v_cvt_pk_bf16_f32 v{r}, v{r}, v{r+1}")
                    a(f"v_cvt_pk_bf16_f32 v{r+1}, v{r+2}, v{r+3}")
                    a(f"v_cvt_pk_bf16_f32 v{r+2}, v{r+4}, v{r+5}")
                    a(f"v_cvt_pk_bf16_f32 v{r+3}, v{r+6}, v{r+7}")
                    a(f"s_nop 1")
                    a(f"v_permlane32_swap_b32 v{r}, v{r+2}")
                    a(f"v_permlane32_swap_b32 v{r+1}, v{r+3}")
                    if "rsc1" in self.opt:
                        a(f"buffer_store_dwordx4 v[{r}:{r+3}], v{T+8}, s[{SRD_O}:{SRD_O+3}], s{S_T4+q} offen offset:{2048*tt + 512*gp} sc1")
                    else:
                        self.store_twin("buffer_store_dwordx4", f"v[{r}:{r+3}]", T+8, f"s{S_T4+q}", f"offset:{2048*tt + 512*gp}")
        a.put("L_p4_skip")
        self.V_T = 148

    def p4_setup(self):
        a = self.a
        a(f"s_cmp_ge_u32 s{S_GI}, 28")
        a(f"s_cbranch_scc1 L_p4s_done")
        a(f"s_cmp_ge_u32 s{S_GI}, 14")
        a(f"s_cselect_b32 s{S_T0}, 1, 0")
        a(f"s_cselect_b32 s{S_T1}, 14, 0")
        a(f"s_sub_u32 s{S_NT}, s{S_GI}, s{S_T1}")
        a(f"s_lshl_b32 s{S_MT}, s{S_GX}, 1")
        a(f"s_add_u32 s{S_MT}, s{S_MT}, s{S_T0}")
        a(f"s_cmp_ge_u32 s{S_NT}, 10")
        a(f"s_cselect_b32 s{S_T0}, 10, 0")
        a(f"s_sub_u32 s{S_KK}, s{S_NT}, s{S_T0}")
        if "p4norot" in self.opt: a(f"s_mov_b32 s{S_KK}, 0")
        a(f"s_cmp_lt_u32 s{S_W}, 4")
        a(f"s_cbranch_scc1 L_p4s_compute")
        self.V_T = 16
        self.g1_setup_loader(3456)
        self.srd(SRD_A, S_WS, OFF_H, SZ_H)
        self.srd(SRD_W, S_W1, 0, 640*3456)
        T = self.V_T
        self.srd(SRD_T, S_B1, 0, 1728*2)
        a(f"s_sub_u32 s{S_T4}, s{S_W}, 4")
        a(f"s_lshl_b32 s{S_T4}, s{S_T4}, 5")
        a(f"v_and_b32 v{T+10}, 31, v1")
        a(f"v_add_u32 v{T+10}, s{S_T4}, v{T+10}")
        a(f"s_lshl_b32 s{S_T4}, s{S_NT}, 7")
        a(f"v_add_u32 v{T+11}, s{S_T4}, v{T+10}")
        a(f"v_lshlrev_b32 v{T+11}, 1, v{T+11}")
        a(f"buffer_load_ushort v{T+22}, v{T+11}, s[{SRD_T}:{SRD_T+3}], 0 offen")
        a(f"s_mov_b32 s{S_T3}, s{S_KK}")
        for sg in range(3):
            a(f"s_mul_i32 s{S_T4}, s{S_T3}, {64*3456}")
            a(f"s_add_u32 s{S_T4}, s{S_T4}, s{S_SW}")
            for q in range(4):
                a(f"s_add_u32 m0, s{S_M0A}, {sg*32768 + 16384 + q*4096}")
                a(f"s_add_u32 s{S_T2}, s{S_T4}, {q*16*3456}")
                a(f"buffer_load_dwordx4 v{self.V_OFFW}, s[{SRD_W}:{SRD_W+3}], s{S_T2} offen lds")
            a(f"s_add_u32 s{S_T3}, s{S_T3}, 1")
            a(f"s_cmp_eq_u32 s{S_T3}, 10")
            a(f"s_cselect_b32 s{S_T3}, 0, s{S_T3}")
        self.V_T = 148
        a(f"s_branch L_p4s_done")
        a.put("L_p4s_compute")
        self.g1_setup_compute()
        a.put("L_p4s_done")

    def p4(self):
        a = self.a
        a(f"s_cmp_ge_u32 s{S_GI}, 28")
        a(f"s_cbranch_scc1 L_p4_done")
        self.aux_A = self.ld_aux
        self.st1 = 15 if "p4s" in self.opt else None
        a(f"s_cmp_lt_u32 s{S_W}, 4")
        a(f"s_cbranch_scc1 L_p4_compute")
        self.V_T = 16
        for sg in range(3):
            a(f"s_lshl_b32 s{S_T4}, s{S_KK}, 7")
            a(f"s_add_u32 s{S_T4}, s{S_T4}, s{S_SA}")
            for q in range(4):
                a(f"s_add_u32 m0, s{S_M0A}, {sg*32768 + q*4096}")
                a(f"s_add_u32 s{S_T2}, s{S_T4}, {q*32*1280}")
                a(f"buffer_load_dwordx4 v{self.V_OFFA}, s[{SRD_A}:{SRD_A+3}], s{S_T2} offen {self.aux_A} lds")
            a(f"s_add_u32 s{S_KK}, s{S_KK}, 1")
            a(f"s_cmp_eq_u32 s{S_KK}, 10")
            a(f"s_cselect_b32 s{S_KK}, 0, s{S_KK}")
        a(f"s_mov_b32 s{S_SLOT}, {3*32768}")
        self.kk_wrap = 0
        self.b1_hook = True
        self.g1_loader(3456, "p4", "part")
        self.b1_hook = False
        self.V_T = 148
        a(f"s_branch L_p4_done")
        a.put("L_p4_compute")
        self.g1_compute("T", "p4", presetup=True)
        if "p4s" in self.opt: self.stamp(16)
        self.p4_epi()
        if "p4s" in self.opt: self.stamp(17)
        a.put("L_p4_done")

    def code_warm(self):
        a = self.a
        a(f"s_getpc_b64 s[{SRD_T}:{SRD_T+1}]")
        a.put("L_pc_here")
        a(f"s_sub_u32 s{SRD_T}, s{SRD_T}, L_pc_here-{NAME}")
        a(f"s_subb_u32 s{SRD_T+1}, s{SRD_T+1}, 0")
        a(f"s_mov_b32 s{SRD_T+2}, L_end-{NAME}")
        a(f"s_mov_b32 s{SRD_T+3}, 0x20000")
        a(f"v_lshlrev_b32 v254, 7, v0")
        for k in range(self.code_rounds):
            a(f"s_mov_b32 s{S_T0}, {32768*k}")
            a(f"buffer_load_dword v255, v254, s[{SRD_T}:{SRD_T+3}], s{S_T0} offen")

    def epoch_update(self):
        a = self.a
        a(f"s_or_b32 s{S_T0}, s2, s{S_W}")
        a(f"s_cmp_lg_u32 s{S_T0}, 0")
        a(f"s_cbranch_scc1 L_noepoch")
        a(f"v_mov_b32 v2, {OFF_EPOCH}")
        a(f"v_mov_b32 v3, s{S_TAG}")
        a(f"s_mov_b64 exec, 1")
        a(f"buffer_store_dword v3, v2, s[{SRD_F}:{SRD_F+3}], 0 offen sc1")
        a(f"s_mov_b64 exec, -1")
        a.put("L_noepoch")

    def epilogue_stamps(self):
        if getattr(self, "freeze", False): self.stamps = True
        if not self.stamps: return
        a = self.a
        if "dbg" in self.opt:
            a(f"s_or_b32 s{S_T0}, s2, s{S_W}")
            a(f"s_cmp_lg_u32 s{S_T0}, 0")
            a(f"s_cbranch_scc1 L_nodbg")
            self.srd(SRD_T, S_DBG, 0, 256)
            a(f"s_memrealtime s[100:101]")
            a(f"s_waitcnt lgkmcnt(0)")
            a(f"s_sub_u32 s{S_STAMP+15}, s100, s88")
            a(f"s_add_u32 s{S_STAMP+15}, s{S_STAMP+15}, s{S_STAMP}")
            a(f"v_mov_b32 v3, 0")
            a(f"s_mov_b64 exec, 1")
            for i in range(16):
                a(f"s_sub_u32 s{S_T1}, s{S_STAMP+i}, s{S_STAMP}")
                a(f"v_mov_b32 v2, s{S_T1}")
                a(f"buffer_store_dword v2, v3, s[{SRD_T}:{SRD_T+3}], 0 offen offset:{4*i}")
                a(f"s_nop 1")
            a(f"s_mov_b64 exec, -1")
            a.put("L_nodbg")
        a(f"s_waitcnt lgkmcnt(0)")
        a(f"s_lshl_b32 s{S_T0}, s2, 3")
        a(f"s_add_u32 s{S_T0}, s{S_T0}, s{S_W}")
        a(f"s_lshl_b32 s{S_T0}, s{S_T0}, 7")
        a(f"s_add_u32 s{S_T0}, s{S_T0}, 0x80000")
        a(f"v_mov_b32 v3, s{S_T0}")
        a(f"s_mov_b64 exec, 1")
        a(f"s_memrealtime s[100:101]")
        a(f"s_waitcnt lgkmcnt(0)")
        a(f"s_sub_u32 s{S_T1}, s100, s88")
        a(f"v_mov_b32 v2, s{S_T1}")
        a(f"buffer_store_dword v2, v3, s[{SRD_F}:{SRD_F+3}], 0 offen offset:{4*31}")
        a(f"v_mov_b32 v2, s88")
        a(f"buffer_store_dword v2, v3, s[{SRD_F}:{SRD_F+3}], 0 offen offset:{4*30}")
        for i in range(self.nstamp):
            a(f"s_sub_u32 s{S_T1}, s{S_STAMP+i}, s{S_STAMP}")
            a(f"v_mov_b32 v2, s{S_T1}")
            a(f"buffer_store_dword v2, v3, s[{SRD_F}:{SRD_F+3}], 0 offen offset:{4*i}")
            a(f"s_nop 1")
        a(f"s_mov_b64 exec, -1")

    def build(self):
        a = self.a
        self.prologue()
        self.p1()
        self.p1_signal()
        if self.stop_after != "p1":
            self.p2()
            if self.stop_after != "p2":
                self.V_S = 66
                self.group_barrier(0, "gb23", S_QB, S_HEAD, hook=self.hook23)
                self.stamp(9)
                self.g2(3)
                self.stamp(10)
                if self.stop_after != "p3":
                    self.group_barrier(1, "gb34", hook=self.hook34, local=True)
                    self.stamp(11)
                    self.p4()
                    self.stamp(12)
                    if self.stop_after != "p4":
                        self.group_barrier(2, "gb45", hook=self.hook45, local=True)
                        self.stamp(13)
                        self.g2(5)
            a(f"s_waitcnt vmcnt(0)")
            self.stamp(14)
        if "delay" in self.opt:
            for i in range(4): a("s_sleep 127")
        self.epoch_update()
        self.epilogue_stamps()
        a(f"s_waitcnt vmcnt(0)")
        a.put("L_end")
        a("s_endpgm")
        return a

import struct
def f32(x):
    return struct.unpack("<I", struct.pack("<f", x))[0]

HEADER = open("sequential_preLN__mha_block__dense_activation_squared_relu__prompt.s.ref").read().split("; Override launch geometry")[0]

def wrap(body, lds=163840, vgpr=256):
    s = HEADER
    s += f"; @launch grid=(256,1,1) block=(512,1,1) lds={lds}\n"
    s += '.amdgcn_target "amdgcn-amd-amdhsa--gfx950"\n.text\n'
    s += f".globl {NAME}\n.p2align 8\n.type {NAME},@function\n{NAME}:\n"
    s += body
    s += f"""
.section .rodata,"a"
.p2align 6
.amdhsa_kernel {NAME}
  .amdhsa_next_free_vgpr {vgpr}
  .amdhsa_next_free_sgpr 102
  .amdhsa_accum_offset {vgpr}
  .amdhsa_group_segment_fixed_size 0
  .amdhsa_kernarg_size 88
  .amdhsa_user_sgpr_count 2
  .amdhsa_user_sgpr_kernarg_segment_ptr 1
  .amdhsa_system_sgpr_workgroup_id_x 1
.end_amdhsa_kernel
"""
    return s

if __name__ == "__main__":
    import argparse
    ap = argparse.ArgumentParser()
    ap.add_argument("-o", default="out.s")
    ap.add_argument("--stop", default=None)
    ap.add_argument("--stamps", action="store_true")
    ap.add_argument("--opt", default="")
    ap.add_argument("--plow", default=None)
    args = ap.parse_args()
    g = Gen(stop_after=args.stop, stamps=args.stamps, opt=[o for o in args.opt.split(',') if o])
    if "ws1" in g.opt: g.warm_slots = {'dst': 48, 'w1': 52}
    if "ws2" in g.opt: g.warm_slots = {'w1': 48, 'dst': 52}
    if "ws3" in g.opt: g.warm_slots = {'w1': 48, 'dst': 49, 'wp': 50}
    if "ws0" in g.opt: g.warm_slots = {}
    if "low2" in g.opt: g.low_tiles = 2
    if "low3" in g.opt: g.low_tiles = 3
    if args.plow is not None: g.prio_low = tuple(int(x) for x in args.plow.split(",") if x)
    a = g.build()
    rep = check(a.L)
    for r in rep: print(r)
    open(args.o, "w").write(wrap(a.text()))
    print("wrote", args.o, len(a.L), "lines;", len(rep), "hazards")
```

```python
import sys, math
sys.path.insert(0, "gen")
from asmlib import Asm, vr, sr, check

NAME = "sequential_preLN__mha_block__dense_activation_squared_relu__prompt_kernel"

OFF_EPOCH = 0
OFF_ALL   = 0x1000
OFF_GB    = 0x50000
OFF_MB1   = 65536
OFF_GR    = 0x68000
OFF_PST   = 0xC0000
OFF_Q     = 0x100000
OFF_KV    = 0x400000
OFF_O     = 0xA00000
OFF_H     = 0xD00000
OFF_R     = 0x1000000
OFF_WOP   = 0x1700000
OFF_W2P   = 0x1800000
SZ_Q = 32*64*1280
SZ_KV = 32*64*2560
SZ_O = 32*20*4096
SZ_H = 2048*1280
SZ_R = 32*54*4096
SZ_WOP = 20*40*1024
SZ_W2P = 54*40*1024

S_KA = 0; S_WG = 2; S_W = 3
S_X = 4; S_WQKV = 6; S_WO = 8; S_W1 = 12; S_B1 = 14; S_W2 = 16; S_B2 = 18; S_OUT = 20; S_DBG = 22; S_WS = 24
S_TAG = 26; S_GX = 27
SRD_A = 28; SRD_W = 32; SRD_O = 36; SRD_F = 40; SRD_T = 44
S_GI = 48
S_MT = 49; S_NT = 50; S_KK = 51; S_CNT = 52; S_SLOT = 53
S_SA = 54; S_SW = 55; S_T0 = 56; S_T1 = 57; S_T2 = 58; S_T3 = 59; S_T4 = 60; S_T5 = 61
S_M0A = 62; S_WM = 63; S_WN = 64; S_DELTA = 65; S_ONES = 66; S_ROT4 = 67; S_RLW = 68; S_RSLOT = 69; S_HEAD = 66; S_QB = 67
S_STAMP = 70
S_SAVE = 90
S_OOB = 53
S_XCC = 10; S_FAST = 11
SRD_P = 96

LDS_STATS = 0
ST_PX, ST_PQ, ST_PC, ST_AA, ST_BB, ST_CS, ST_B1 = 0, 4096, 8192, 9216, 9728, 10240, 10752
LDS_RL = 32768

class Gen:
    def __init__(self, stop_after=None, stamps=False, opt=()):
        self.opt = set(opt)
        self.a = Asm()
        self.stop_after = stop_after
        self.stamps = stamps
        self.nstamp = 0
        self.code_rounds = 2
        self.out_aux = 'nt' if 'outnt' in self.opt else ('sc1' if 'outsc1' in self.opt else '')
        self.evtag = 'u'
        self.kk_wrap = 2
        global LDS_STATS, LDS_RL
        if "ns5" not in self.opt:
            self.NSLOT = 4; LDS_STATS = 131072; LDS_RL = 131072 + 12288
        else:
            self.NSLOT = 5; LDS_STATS = 0; LDS_RL = 32768
        self.fast_aux = "nt" if "fnt" in self.opt else ("sc0" if "fsc0" in self.opt else ("sc0 nt" if "fsc0nt" in self.opt else ""))
        self.opt_g2 = "3" if "g2s3" in self.opt else ("5" if "g2s5" in self.opt else "")
        self.ld_aux = "" if "plainld" in self.opt else "sc1"

    def srd(self, dst, base_s, off, size):
        a = self.a
        if off:
            a(f"s_add_u32 s{dst}, s{base_s}, {hex(off)}")
            a(f"s_addc_u32 s{dst+1}, s{base_s+1}, 0")
        else:
            a(f"s_mov_b32 s{dst}, s{base_s}")
            a(f"s_mov_b32 s{dst+1}, s{base_s+1}")
        a(f"s_mov_b32 s{dst+2}, {hex(size)}")
        a(f"s_mov_b32 s{dst+3}, 0x20000")

    def csel(self, dst, x, y):
        self.a(f"s_mov_b32 s{dst}, {y}")
        self.a(f"s_cselect_b32 s{dst}, {x}, s{dst}")

    def withT(self, T, fn, *args, **kw):
        old = self.V_T; self.V_T = T
        r = fn(*args, **kw)
        self.V_T = old
        return r

    def srd_twin(self, base_s, off, size):
        a = self.a
        self.srd(SRD_O, base_s, off, size)
        a(f"s_mov_b32 s{SRD_P}, s{SRD_O}")
        a(f"s_mov_b32 s{SRD_P+1}, s{SRD_O+1}")
        a(f"s_mov_b32 s{SRD_P+3}, 0x20000")
        a(f"s_cmp_eq_u32 s{S_FAST}, 1")
        a(f"s_cselect_b32 s{SRD_P+2}, s{SRD_O+2}, 0")
        a(f"s_cselect_b32 s{SRD_O+2}, 0, s{SRD_O+2}")
    def store_twin(self, op, data, vaddr, soff, extra=""):
        a = self.a
        a(f"{op} {data}, v{vaddr}, s[{SRD_O}:{SRD_O+3}], {soff} offen {extra} sc1")
        a(f"{op} {data}, v{vaddr}, s[{SRD_P}:{SRD_P+3}], {soff} offen {extra} {self.fast_aux}")

    def set_exec(self, mask):
        mask = int(str(mask), 0) & 0xFFFFFFFFFFFFFFFF
        if mask == 0xFFFFFFFFFFFFFFFF: self.a("s_mov_b64 exec, -1")
        elif mask < 0x80000000: self.a(f"s_mov_b64 exec, {hex(mask)}")
        else:
            self.a(f"s_mov_b32 exec_lo, {hex(mask & 0xffffffff)}")
            self.a(f"s_mov_b32 exec_hi, {hex(mask >> 32)}")

    def stamp(self, i=None):
        if not self.stamps: return
        if i is None: return
        self.nstamp = max(self.nstamp, i + 1)
        self.a(f"s_memtime s[100:101]")
        self.a(f"s_waitcnt lgkmcnt(0)")
        self.a(f"s_mov_b32 s{S_STAMP+i}, s100")

    def prologue(self):
        a = self.a
        a(f"s_cmp_ge_u32 s2, 256")
        a(f"s_cbranch_scc1 L_end")
        self.stamp(0)
        if self.stamps: a(f"s_memrealtime s[88:89]")
        a(f"s_load_dwordx16 s[4:19], s[0:1], 0")
        a(f"s_load_dwordx4 s[20:23], s[0:1], 64")
        a(f"s_load_dwordx2 s[24:25], s[0:1], 80")
        a(f"v_lshrrev_b32 v2, 6, v0")
        a(f"v_and_b32 v1, 63, v0")
        a(f"v_readfirstlane_b32 s{S_W}, v2")
        a(f"s_and_b32 s{S_GX}, s2, 7")
        a(f"s_lshr_b32 s{S_GI}, s2, 3")
        a(f"v_mov_b32 v{self.V_S+2}, 0")
        a(f"v_mov_b32 v{self.V_S+5}, 0")
        a(f"v_mov_b32 v{self.V_S+20}, 0")
        a(f"v_mov_b32 v{self.V_S+21}, 0")
        a(f"s_lshr_b32 s{S_WM}, s{S_W}, 2")
        a(f"s_and_b32 s{S_WN}, s{S_W}, 3")

    def finish_tag(self):
        a = self.a
        a(f"s_waitcnt lgkmcnt(0)")
        a(f"s_mul_i32 s{S_TAG}, s{S_TAG}, 0x9E3779B1")
        a(f"s_add_u32 s{S_TAG}, s{S_TAG}, 0x7F4A7C15")

    V_OFFA = 2; V_OFFW = 3
    V_AA = 2
    V_AWA = 6; V_AWB = 7
    V_AW2A = 0; V_AW2B = 1
    V_CSA = 8
    V_CSD = 12
    V_FR = 16
    V_ACC = 80
    V_T = 148
    V_S = 152
    POLLW = 0
    SIGW = 7
    V_LA = 4
    V_LS = 8
    V_LD = 20
    V_LU = 40
    NSLOT = 5

    def g1_setup_loader(self, WS):
        a = self.a
        T = self.V_T
        a(f"s_sub_u32 s{S_T4}, s{S_W}, 4")
        a(f"v_lshrrev_b32 v{T}, 4, v1")
        a(f"s_lshl_b32 s{S_T0}, s{S_T4}, 2")
        a(f"v_add_u32 v{T+1}, s{S_T0}, v{T}")
        a(f"v_and_b32 v{T+1}, 7, v{T+1}")
        a(f"v_and_b32 v{T+2}, 7, v1")
        a(f"v_xor_b32 v{T+1}, v{T+1}, v{T+2}")
        a(f"v_lshlrev_b32 v{T+1}, 4, v{T+1}")
        a(f"v_lshrrev_b32 v{T+2}, 3, v1")
        a(f"v_mul_u32_u24 v{T+2}, 1280, v{T+2}")
        a(f"v_add_u32 v{self.V_OFFA}, v{T+1}, v{T+2}")
        a(f"v_lshlrev_b32 v{T+1}, 2, v{T}")
        a(f"v_and_b32 v{T+2}, 15, v1")
        a(f"v_xor_b32 v{T+1}, v{T+1}, v{T+2}")
        a(f"v_lshlrev_b32 v{T+1}, 4, v{T+1}")
        a(f"v_mul_u32_u24 v{T+2}, {WS}, v{T}")
        a(f"v_add_u32 v{self.V_OFFW}, v{T+1}, v{T+2}")
        a(f"s_lshl_b32 s{S_T0}, s{S_MT}, 7")
        a(f"s_lshl_b32 s{S_T1}, s{S_T4}, 3")
        a(f"s_add_u32 s{S_T0}, s{S_T0}, s{S_T1}")
        a(f"s_mul_i32 s{S_SA}, s{S_T0}, 1280")
        a(f"s_mul_i32 s{S_T0}, s{S_T4}, {4*WS}")
        a(f"s_lshl_b32 s{S_T1}, s{S_NT}, 8")
        a(f"s_add_u32 s{S_SW}, s{S_T0}, s{S_T1}")
        a(f"s_lshl_b32 s{S_M0A}, s{S_T4}, 10")
        a(f"s_mov_b32 s{S_SLOT}, 0")

    def g1_dma1(self, WS, q):
        a = self.a
        if q == 0:
            a(f"s_lshl_b32 s{S_T2}, s{S_KK}, 7")
            a(f"s_add_u32 s{S_T2}, s{S_T2}, s{S_SA}")
            a(f"s_add_u32 m0, s{S_SLOT}, s{S_M0A}")
            a(f"s_mul_i32 s{S_T3}, s{S_KK}, {64*WS}")
        elif q == 4:
            a(f"s_add_u32 s{S_T2}, s{S_T3}, s{S_SW}")
            a(f"s_add_u32 m0, m0, 4096")
            a(f"s_nop 0")
        else:
            a(f"s_add_u32 m0, m0, 4096")
            a(f"s_add_u32 s{S_T2}, s{S_T2}, {32*1280 if q < 4 else 16*WS}")
        if q < 4:
            a(f"buffer_load_dwordx4 v{self.V_OFFA}, s[{SRD_A}:{SRD_A+3}], s{S_T2} offen {self.aux_A} lds")
        else:
            a(f"buffer_load_dwordx4 v{self.V_OFFW}, s[{SRD_W}:{SRD_W+3}], s{S_T2} offen lds")
        if q == 7:
            a(f"s_add_u32 s{S_KK}, s{S_KK}, 1")
            a(f"s_cmp_eq_u32 s{S_KK}, 10")
            a(f"s_cselect_b32 s{S_KK}, {self.kk_wrap}, s{S_KK}")
            a(f"s_add_u32 s{S_SLOT}, s{S_SLOT}, 32768")
            a(f"s_cmp_eq_u32 s{S_SLOT}, {self.NSLOT*32768}")
            a(f"s_cselect_b32 s{S_SLOT}, 0, s{S_SLOT}")

    def g1_dma_stage(self, WS):
        for q in range(8): self.g1_dma1(WS, q)

    def slot_next(self):
        a = self.a
        a(f"s_add_u32 s{S_RSLOT}, s{S_RSLOT}, 1")
        a(f"s_cmp_eq_u32 s{S_RSLOT}, {self.NSLOT}")
        a(f"s_cselect_b32 s{S_RSLOT}, 0, s{S_RSLOT}")
        a(f"s_cmp_eq_u32 s{S_RSLOT}, {self.NSLOT-1}")
        self.csel(S_DELTA, hex((-(self.NSLOT-1)*32768) & 0xffffffff), 32768)

    def g1_loader(self, WS, tag, mode):
        a = self.a
        T = self.V_T
        pre = self.NSLOT - 1
        nx = 1 if mode == "gran" else 4
        if mode == "gran":
            for q in range(8):
                self.g1_dma1(WS, q)
            a(f"s_waitcnt vmcnt(16)")
            if "p1s" in self.opt: self.stamp(18)
            a(f"s_barrier")
            if pre == 4:
                for q in range(8):
                    self.g1_dma1(WS, q)
            self.tag_ready()
        else:
            a(f"s_waitcnt vmcnt(8)")
            a(f"s_barrier")
            if pre == 4:
                for q in range(8):
                    self.g1_dma1(WS, q)
                a(f"s_waitcnt vmcnt(8)")
            else:
                a(f"s_waitcnt vmcnt(4)")
        a(f"s_mov_b32 s{S_CNT}, 0")
        L1 = f"L_{tag}_lloop"
        a.put(L1)
        a(f"s_add_u32 s{S_CNT}, s{S_CNT}, 1")
        a(f"s_waitcnt vmcnt({8*(pre-2)})")
        a(f"s_barrier")
        for q in range(8):
            if "nodma" not in self.opt: self.g1_dma1(WS, q)
        a(f"s_cmp_lt_u32 s{S_CNT}, {10-pre}")
        a(f"s_cbranch_scc1 {L1}")
        a(f"s_sub_u32 s{S_T4}, s{S_W}, 4")
        a(f"s_lshl_b32 s{S_T0}, s{S_T4}, 5")
        a(f"v_and_b32 v{T}, 31, v1")
        a(f"v_add_u32 v{T}, s{S_T0}, v{T}")
        a(f"s_lshl_b32 s{S_T1}, s{S_MT}, 7")
        a(f"v_add_u32 v{T+1}, s{S_T1}, v{T}")
        if mode == "gran":
            a(f"v_lshlrev_b32 v{T+1}, 4, v{T+1}")
            a(f"v_add_u32 v{T+1}, {hex(OFF_GR)}, v{T+1}")
            a(f"buffer_load_dwordx4 v[{T+4}:{T+7}], v{T+1}, s[{SRD_F}:{SRD_F+3}], 0 offen sc1")
        else:
            a(f"v_lshlrev_b32 v{T+1}, 7, v{T+1}")
            a(f"v_lshrrev_b32 v{T+2}, 5, v1")
            a(f"v_lshl_add_u32 v{T+1}, v{T+2}, 6, v{T+1}")
            a(f"v_add_u32 v{T+1}, {hex(OFF_PST)}, v{T+1}")
            for q in range(4):
                a(f"buffer_load_dwordx4 v[{T+4+4*q}:{T+7+4*q}], v{T+1}, s[{SRD_F}:{SRD_F+3}], 0 offen offset:{16*q} {self.ld_aux}")
        late = 0
        if pre == 4:
            a(f"s_waitcnt vmcnt({16+nx})")
            a(f"s_barrier")
        a(f"s_waitcnt vmcnt({8+nx})")
        a(f"s_barrier")
        rl = 0
        if mode == "gran":
            self.withT(T + 24, self.relayout_load)
            rl = 4
        a(f"s_waitcnt vmcnt({nx+rl})")
        a(f"s_barrier")
        if mode != "gran" and "now2rest" not in self.opt:
            self.g2_wsetup(5, SRD_T, S_SW, T + 24)
            for s_ in range(5):
                for t in range(3):
                    self.g2_wload1(5, 3, s_, t, SRD_T, S_SW, T + 24)
            late = 15
        a(f"s_barrier")
        a(f"s_waitcnt vmcnt({late+rl})")
        if mode == "gran":
            Lp = f"L_{tag}_gpoll"; Lo = f"L_{tag}_gok"
            a(f"s_mov_b32 s{S_T0}, 0")
            a.put(Lp)
            a(f"v_cmp_ne_u32 vcc, s{S_TAG}, v{T+6}")
            a(f"v_cmp_ne_u32 s[{S_SAVE}:{S_SAVE+1}], s{S_TAG}, v{T+7}")
            a(f"s_nop 1")
            a(f"s_or_b64 vcc, vcc, s[{S_SAVE}:{S_SAVE+1}]")
            a(f"s_cbranch_vccz {Lo}")
            a(f"s_add_u32 s{S_T0}, s{S_T0}, 1")
            a(f"s_cmp_ge_u32 s{S_T0}, 0x40000")
            a(f"s_cbranch_scc1 {Lo}")
            a(f"buffer_load_dwordx4 v[{T+4}:{T+7}], v{T+1}, s[{SRD_F}:{SRD_F+3}], 0 offen sc1")
            a(f"s_waitcnt vmcnt(0)")
            a(f"s_branch {Lp}")
            a.put(Lo)
            A_, B_ = T+4, T+5
        else:
            for q in range(1, 4):
                for i in range(4):
                    a(f"v_add_f32 v{T+4+i}, v{T+4+i}, v{T+4+4*q+i}")
            a(f"v_add_f32 v{T+4}, v{T+4}, v{T+6}")
            a(f"v_add_f32 v{T+5}, v{T+5}, v{T+7}")
            a(f"v_mov_b32 v{T+6}, v{T+4}")
            a(f"v_mov_b32 v{T+7}, v{T+5}")
            a(f"s_nop 1")
            a(f"v_permlane32_swap_b32 v{T+6}, v{T+4}")
            a(f"v_permlane32_swap_b32 v{T+7}, v{T+5}")
            a(f"s_nop 1")
            a(f"v_add_f32 v{T+4}, v{T+4}, v{T+6}")
            a(f"v_add_f32 v{T+5}, v{T+5}, v{T+7}")
            self.ab_from_sums(T+4, T+5, T+8)
            A_, B_ = T+9, T+8
        a(f"v_lshlrev_b32 v{T}, 2, v{T}")
        a(f"v_add_u32 v{T}, {LDS_STATS}, v{T}")
        a(f"ds_write_b32 v{T}, v{A_} offset:{ST_AA}")
        a(f"ds_write_b32 v{T}, v{B_} offset:{ST_BB}")
        if getattr(self, "b1_hook", False):
            a(f"v_lshlrev_b32 v{T+22}, 16, v{T+22}")
            a(f"ds_write_b32 v{T}, v{T+22} offset:{ST_B1}")
        a(f"s_waitcnt lgkmcnt(0)")
        a(f"s_barrier")

    def ab_from_sums(self, sx, sq, o):
        a = self.a
        a(f"v_mul_f32 v{o}, {hex(f32(1.0/640))}, v{sx}")
        a(f"v_mul_f32 v{o+1}, {hex(f32(1.0/640))}, v{sq}")
        a(f"v_fma_f32 v{o+1}, -v{o}, v{o}, v{o+1}")
        a(f"v_max_f32 v{o+1}, 0, v{o+1}")
        a(f"v_add_f32 v{o+1}, {hex(f32(1e-5))}, v{o+1}")
        a(f"v_rsq_f32 v{o+1}, v{o+1}")
        a(f"s_nop 0")
        a(f"v_mul_f32 v{o}, v{o}, v{o+1}")
        a(f"v_sub_f32 v{o}, 0, v{o}")

    V_WRM = 252
    S_WRM = 62; S_WRMD = 54
    def p1_l2warm(self):
        a = self.a
        T = self.V_T; V = self.V_WRM
        LW = "L_warm_w"; LJ = "L_warm_j"
        a(f"s_bitcmp1_b32 s{S_W}, 0")
        a(f"s_cbranch_scc1 {LW}")
        self.srd(SRD_T, S_X, 0, 2048*1280)
        a(f"s_and_b32 s{S_T0}, s{S_GX}, 3")
        a(f"s_lshl_b32 s{S_T0}, s{S_T0}, 9")
        a(f"s_lshl_b32 s{S_T1}, s{S_GI}, 4")
        a(f"s_add_u32 s{S_T0}, s{S_T0}, s{S_T1}")
        a(f"v_add_u32 v{T}, s{S_T0}, v1")
        a(f"v_mul_u32_u24 v{V}, 1280, v{T}")
        a(f"v_cmp_gt_u32 vcc, 16, v1")
        a(f"s_mov_b32 s{self.S_WRMD}, 128")
        a(f"s_branch {LJ}a")
        a.put(LW)
        self.srd(SRD_T, S_WQKV, 0, 640*3840)
        a(f"v_lshrrev_b32 v{T}, 4, v1")
        a(f"s_lshl_b32 s{S_T0}, s{S_GI}, 1")
        a(f"v_add_u32 v{T}, s{S_T0}, v{T}")
        a(f"v_mul_u32_u24 v{V}, 3840, v{T}")
        a(f"v_and_b32 v{T+1}, 15, v1")
        a(f"v_lshl_add_u32 v{V}, v{T+1}, 7, v{V}")
        a(f"s_lshr_b32 s{S_T0}, s{S_GX}, 2")
        a(f"s_lshl_b32 s{S_T0}, s{S_T0}, 11")
        a(f"v_add_u32 v{V}, s{S_T0}, v{V}")
        a(f"v_cmp_gt_u32 vcc, 32, v1")
        a(f"s_mov_b32 s{self.S_WRMD}, {64*3840}")
        a.put(LJ + "a")
        a(f"s_cmp_ge_u32 s{S_W}, 2")
        a(f"s_cselect_b64 s[{S_SAVE}:{S_SAVE+1}], 0, vcc")
        a(f"v_mov_b32 v{T+1}, 0x7f000000")
        a(f"s_nop 0")
        a(f"v_cndmask_b32 v{V}, v{T+1}, v{V}, s[{S_SAVE}:{S_SAVE+1}]")
        a(f"s_mul_i32 s{self.S_WRM}, s{self.S_WRMD}, 3")
        for c in range(3):
            self.warm1()

    def warm1(self):
        a = self.a
        a(f"buffer_load_dword v253, v{self.V_WRM}, s[{SRD_T}:{SRD_T+3}], s{self.S_WRM} offen")
        a(f"s_add_u32 s{self.S_WRM}, s{self.S_WRM}, s{self.S_WRMD}")

    def w1_l2warm_keepT(self):
        self.w1_l2warm()

    def w1_l2warm(self):
        a = self.a
        V = self.A_ALL + 1
        self.srd(SRD_O, S_W1, 0, 640*3456)
        a(f"s_mul_i32 s{S_T0}, s{S_GI}, 540")
        a(f"s_lshl_b32 s{S_T1}, s{S_W}, 6")
        a(f"s_add_u32 s{S_T0}, s{S_T0}, s{S_T1}")
        a(f"v_add_u32 v{V}, s{S_T0}, v1")
        a(f"v_lshlrev_b32 v{V}, 7, v{V}")
        a(f"buffer_load_dword v{V+1}, v{V}, s[{SRD_O}:{SRD_O+3}], 0 offen")
        L = f"L_w1w_skip{self.evtag}"
        a(f"s_cmp_lg_u32 s{S_W}, 0")
        a(f"s_cbranch_scc1 {L}")
        self.set_exec((1 << 28) - 1)
        a(f"s_mov_b32 s{S_T1}, {512*128}")
        a(f"buffer_load_dword v{V+1}, v{V}, s[{SRD_O}:{SRD_O+3}], s{S_T1} offen")
        a(f"s_mov_b64 exec, -1")
        a(f"v_lshlrev_b32 v{V+2}, 7, v1")
        self.srd(SRD_O, S_B1, 0, 3456)
        a(f"buffer_load_dword v{V+1}, v{V+2}, s[{SRD_O}:{SRD_O+3}], 0 offen")
        self.srd(SRD_O, S_B2, 0, 1280)
        a(f"buffer_load_dword v{V+1}, v{V+2}, s[{SRD_O}:{SRD_O+3}], 0 offen")
        a.put(L)

    def dst_l2warm(self):
        a = self.a
        V = self.A_ALL + 1
        L = f"L_dstw_skip{self.evtag}"
        a(f"s_cmp_eq_u32 s{S_FAST}, 0")
        a(f"s_cbranch_scc1 {L}")
        self.srd(SRD_O, S_WS, 0, 0x1B00000)
        a(f"s_lshl_b32 s{S_T0}, s{S_W}, 6")
        a(f"v_add_u32 v{V}, s{S_T0}, v1")
        a(f"s_mul_i32 s{S_T0}, s{S_GX}, 2560")
        a(f"s_mul_i32 s{S_T1}, s{S_GI}, 80")
        a(f"s_add_u32 s{S_T0}, s{S_T0}, s{S_T1}")
        a(f"s_add_u32 s{S_T0}, s{S_T0}, {OFF_H//128}")
        a(f"s_mul_i32 s{S_T1}, s{S_GX}, 6912")
        a(f"s_mul_i32 s{S_T2}, s{S_GI}, 216")
        a(f"s_add_u32 s{S_T1}, s{S_T1}, s{S_T2}")
        a(f"s_add_u32 s{S_T1}, s{S_T1}, {OFF_R//128 - 80}")
        a(f"s_lshl_b32 s{S_T2}, s{S_GX}, 8")
        a(f"s_lshl_b32 s{S_T3}, s{S_GI}, 3")
        a(f"s_add_u32 s{S_T2}, s{S_T2}, s{S_T3}")
        a(f"s_add_u32 s{S_T2}, s{S_T2}, {OFF_PST//128 - 296}")
        a(f"v_mov_b32 v{V+2}, s{S_T2}")
        a(f"v_mov_b32 v{V+1}, s{S_T1}")
        a(f"v_cmp_gt_u32 vcc, 296, v{V}")
        a(f"s_nop 1")
        a(f"v_cndmask_b32 v{V+2}, v{V+2}, v{V+1}, vcc")
        a(f"v_mov_b32 v{V+1}, s{S_T0}")
        a(f"v_cmp_gt_u32 vcc, 80, v{V}")
        a(f"s_nop 1")
        a(f"v_cndmask_b32 v{V+2}, v{V+2}, v{V+1}, vcc")
        a(f"v_add_u32 v{V+2}, v{V+2}, v{V}")
        a(f"v_lshlrev_b32 v{V+2}, 7, v{V+2}")
        a(f"v_cmp_gt_u32 vcc, 304, v{V}")
        a(f"s_and_saveexec_b64 s[{S_SAVE}:{S_SAVE+1}], vcc")
        a(f"s_cbranch_execz {L}x")
        a(f"buffer_load_dword v{V+1}, v{V+2}, s[{SRD_O}:{SRD_O+3}], 0 offen")
        a.put(L + "x")
        a(f"s_mov_b64 exec, -1")
        a.put(L)

    def wp_l2warm(self):
        a = self.a
        V = self.A_ALL + 1
        a(f"s_cmp_lt_u32 s{S_W}, 4")
        self.csel(S_T0, hex(OFF_WOP), hex(OFF_W2P))
        a(f"s_add_u32 s{SRD_O}, s{S_WS}, s{S_T0}")
        a(f"s_addc_u32 s{SRD_O+1}, s{S_WS+1}, 0")
        a(f"s_mov_b32 s{SRD_O+2}, {SZ_WOP}")
        a(f"s_mov_b32 s{SRD_O+3}, 0x20000")
        a(f"s_and_b32 s{S_T0}, s{S_W}, 3")
        a(f"s_lshl_b32 s{S_T0}, s{S_T0}, 6")
        a(f"v_add_u32 v{V}, s{S_T0}, v1")
        a(f"v_cmp_gt_u32 vcc, 200, v{V}")
        a(f"s_mul_i32 s{S_T0}, s{S_GI}, 200")
        a(f"v_add_u32 v{V}, s{S_T0}, v{V}")
        a(f"v_lshlrev_b32 v{V}, 7, v{V}")
        a(f"s_and_saveexec_b64 s[{S_SAVE}:{S_SAVE+1}], vcc")
        a(f"s_cbranch_execz L_wpw_x{self.evtag}")
        a(f"buffer_load_dword v{V+1}, v{V}, s[{SRD_O}:{SRD_O+3}], 0 offen")
        a.put(f"L_wpw_x{self.evtag}")
        a(f"s_mov_b64 exec, -1")

    def xstats_publish(self):
        a = self.a
        T = self.V_T
        self.srd(SRD_O, S_X, 0, 2048*1280)
        a(f"s_lshl_b32 s{S_T0}, s2, 3")
        a(f"s_lshl_b32 s{S_T1}, s{S_W}, 1")
        a(f"s_add_u32 s{S_T0}, s{S_T0}, s{S_T1}")
        a(f"v_lshrrev_b32 v{T}, 5, v1")
        a(f"v_add_u32 v{T}, s{S_T0}, v{T}")
        a(f"v_mul_u32_u24 v{T+1}, 1280, v{T}")
        a(f"v_and_b32 v{T+2}, 31, v1")
        a(f"v_lshl_add_u32 v{T+1}, v{T+2}, 3, v{T+1}")
        D = T + 4
        for j in range(5):
            a(f"buffer_load_dwordx2 v[{D+2*j}:{D+2*j+1}], v{T+1}, s[{SRD_O}:{SRD_O+3}], 0 offen offset:{256*j}")
        return D

    def xstats_finish(self, D):
        a = self.a
        T = self.V_T
        S = T + 16
        a(f"v_mov_b32 v{S}, 0"); a(f"v_mov_b32 v{S+1}, 0")
        a(f"s_waitcnt vmcnt(0)")
        for r in range(10):
            a(f"v_lshlrev_b32 v{S+2}, 16, v{D+r}")
            a(f"v_and_b32 v{S+3}, 0xffff0000, v{D+r}")
            a(f"v_add_f32 v{S}, v{S}, v{S+2}")
            a(f"v_fmac_f32 v{S+1}, v{S+2}, v{S+2}")
            a(f"v_add_f32 v{S}, v{S}, v{S+3}")
            a(f"v_fmac_f32 v{S+1}, v{S+3}, v{S+3}")
        for ctl in ("row_shr:1", "row_shr:2", "row_shr:4", "row_shr:8"):
            a(f"s_nop 1")
            a(f"v_add_f32_dpp v{S}, v{S}, v{S} {ctl} row_mask:0xf bank_mask:0xf bound_ctrl:0")
            a(f"v_add_f32_dpp v{S+1}, v{S+1}, v{S+1} {ctl} row_mask:0xf bank_mask:0xf bound_ctrl:0")
        a(f"s_nop 1")
        a(f"v_add_f32_dpp v{S}, v{S}, v{S} row_bcast:15 row_mask:0xa bank_mask:0xf")
        a(f"v_add_f32_dpp v{S+1}, v{S+1}, v{S+1} row_bcast:15 row_mask:0xa bank_mask:0xf")
        a(f"s_nop 1")
        self.ab_from_sums(S, S+1, S+5)
        a(f"v_mov_b32 v{S+8}, v{S+6}")
        a(f"v_mov_b32 v{S+9}, v{S+5}")
        self.tag_ready()
        a(f"v_mov_b32 v{S+10}, s{S_TAG}")
        a(f"v_mov_b32 v{S+11}, s{S_TAG}")
        a(f"v_lshlrev_b32 v{T}, 4, v{T}")
        a(f"v_add_u32 v{T}, {hex(OFF_GR)}, v{T}")
        a(f"s_mov_b32 exec_lo, 0x80000000")
        a(f"s_mov_b32 exec_hi, 0x80000000")
        a(f"buffer_store_dwordx4 v[{S+8}:{S+11}], v{T}, s[{SRD_F}:{SRD_F+3}], 0 offen sc1")
        a(f"s_mov_b64 exec, -1")

    def tag_ready(self):
        a = self.a
        a(f"s_waitcnt lgkmcnt(0)")
        a(f"s_getreg_b32 s{S_XCC}, hwreg(HW_REG_XCC_ID, 0, 4)")
        a(f"s_mov_b32 s{S_FAST}, 0")
        a(f"s_mul_i32 s{S_TAG}, s{S_TAG}, 0x9E3779B1")
        a(f"s_add_u32 s{S_TAG}, s{S_TAG}, 0x7F4A7C15")

    def g1_setup_compute(self):
        a = self.a
        T = self.V_FR
        a(f"s_lshr_b32 s{S_WM}, s{S_W}, 1")
        a(f"s_and_b32 s{S_WN}, s{S_W}, 1")
        a(f"v_and_b32 v{T}, 31, v1")
        a(f"s_lshl_b32 s{S_T0}, s{S_WM}, 6")
        a(f"v_add_u32 v{T+1}, s{S_T0}, v{T}")
        a(f"v_lshlrev_b32 v{T+1}, 7, v{T+1}")
        a(f"v_bfe_u32 v{T+2}, v{T}, 1, 3")
        a(f"v_lshrrev_b32 v{T+3}, 5, v1")
        a(f"v_xor_b32 v{T+2}, v{T+2}, v{T+3}")
        for j in range(4):
            a(f"v_xor_b32 v{self.V_AA+j}, {2*j}, v{T+2}")
            a(f"v_lshlrev_b32 v{self.V_AA+j}, 4, v{self.V_AA+j}")
            a(f"v_add_u32 v{self.V_AA+j}, v{self.V_AA+j}, v{T+1}")
        a(f"v_and_b32 v{T+4}, 15, v1")
        a(f"v_lshrrev_b32 v{T+5}, 2, v{T+4}")
        a(f"v_lshlrev_b32 v{T+6}, 3, v{T+3}")
        a(f"v_add_u32 v{T+6}, v{T+6}, v{T+5}")
        a(f"v_lshlrev_b32 v{T+6}, 8, v{T+6}")
        a(f"v_bfe_u32 v{T+7}, v1, 4, 1")
        a(f"v_lshlrev_b32 v{T+7}, 1, v{T+7}")
        a(f"v_bfe_u32 v{T+8}, v1, 1, 1")
        a(f"v_add_u32 v{T+7}, v{T+7}, v{T+8}")
        a(f"s_lshl_b32 s{S_T0}, s{S_WN}, 3")
        a(f"s_lshl_b32 s{S_T1}, s{S_WM}, 2")
        a(f"s_add_u32 s{S_T0}, s{S_T0}, s{S_T1}")
        a(f"v_add_u32 v{T+7}, s{S_T0}, v{T+7}")
        a(f"v_lshlrev_b32 v{T+5}, 2, v{T+5}")
        a(f"v_xor_b32 v{T+7}, v{T+7}, v{T+5}")
        a(f"v_lshlrev_b32 v{T+7}, 4, v{T+7}")
        a(f"v_and_b32 v{T+8}, 1, v1")
        a(f"v_lshlrev_b32 v{T+8}, 3, v{T+8}")
        a(f"v_add_u32 v{T+6}, v{T+6}, v{T+7}")
        a(f"v_add_u32 v{T+6}, v{T+6}, v{T+8}")
        a(f"v_add_u32 v{self.V_AWA}, 16384, v{T+6}")
        a(f"v_xor_b32 v{self.V_AWB}, 64, v{self.V_AWA}")
        a(f"v_and_b32 v{T}, 15, v1")
        a(f"v_bfe_u32 v{T+1}, v1, 4, 1")
        a(f"v_cmp_eq_u32 vcc, v{T}, v{T+1}")
        a(f"v_mov_b32 v{T+2}, 0x3f803f80")
        a(f"s_nop 1")
        a(f"v_cndmask_b32 v{self.V_CSA}, 0, v{T+2}, vcc")
        for r in range(1, 4):
            a(f"v_mov_b32 v{self.V_CSA+r}, v{self.V_CSA}")
        for r in range(4):
            a(f"v_mov_b32 v{self.V_CSD+r}, 0")
        for r in range(64):
            a(f"v_mov_b32 v{self.V_ACC+r}, 0")

    def g1_read1(self, j, q):
        if "noreads" in self.opt: return
        a = self.a
        F = self.V_FR + 16*j
        if q == 0: a(f"ds_read_b128 v[{F}:{F+3}], v{self.V_AA+j}")
        elif q == 1: a(f"ds_read_b128 v[{F+4}:{F+7}], v{self.V_AA+j} offset:4096")
        else:
            ad = (self.V_AWA if q == 2 else self.V_AWB) if j != 3 else (self.V_AW2A if q == 2 else self.V_AW2B)
            R = F + 8 + 4*(q-2)
            a(f"ds_read_b64_tr_b16 v[{R}:{R+1}], v{ad} offset:{4096*j}")
            a(f"ds_read_b64_tr_b16 v[{R+2}:{R+3}], v{ad} offset:{4096*j+1024}")

    def g1_mfma1(self, j, orient, tt, q):
        if "nomfma" in self.opt: return
        a = self.a
        F = self.V_FR + 16*j
        X = f"v[{F+4*tt}:{F+4*tt+3}]"; W = f"v[{F+8+4*q}:{F+11+4*q}]"
        A = self.V_ACC + 16*(2*tt+q)
        D = f"v[{A}:{A+15}]"
        if orient == "T": a(f"v_mfma_f32_32x32x16_bf16 {D}, {W}, {X}, {D}")
        else:             a(f"v_mfma_f32_32x32x16_bf16 {D}, {X}, {W}, {D}")

    def g1_colsum(self, j):
        if "nostats" in self.opt: return
        F = self.V_FR + 16*j; D = self.V_CSD
        self.a(f"v_mfma_f32_16x16x32_bf16 v[{D}:{D+3}], v[{self.V_CSA}:{self.V_CSA+3}], v[{F+8}:{F+11}], v[{D}:{D+3}]")

    def g1_adv(self):
        a = self.a
        for r in list(range(self.V_AA, self.V_AA+4)) + [self.V_AWA, self.V_AWB]:
            a(f"v_add_u32 v{r}, s{S_DELTA}, v{r}")

    def g1_cstep(self, j, orient, rset, fill=((), (), (), ())):
        a = self.a
        order = (2, 0, 1, 3)
        cp = getattr(self, "cprof", False)
        if cp: a(f"s_memtime s[{72+4*j}:{73+4*j}]")
        a(f"s_waitcnt lgkmcnt(12)")
        if cp: a(f"s_memtime s[{74+4*j}:{75+4*j}]")
        for k, (tt, q) in enumerate(((0, 0), (1, 0), (0, 1), (1, 1))):
            self.g1_mfma1(j, orient, tt, q)
            if k == 0: self.g1_colsum(j)
            self.g1_read1(rset, order[k])
            for f in fill[k]: a(f)

    def g1_compute(self, orient, tag, presetup=False):
        a = self.a
        if not presetup: self.g1_setup_compute()
        AA = self.V_AA
        a(f"v_mov_b32 v{self.V_AW2A}, v{self.V_AWA}")
        a(f"v_mov_b32 v{self.V_AW2B}, v{self.V_AWB}")
        a(f"s_barrier")
        self.stamp(self.st1)
        for j in range(3):
            for q in (2, 0, 1, 3): self.g1_read1(j, q)
        DA, DB = S_DELTA, S_T5
        a(f"s_mov_b32 s{S_CNT}, 0")
        a(f"s_mov_b32 s{S_RSLOT}, 1")
        a(f"s_mov_b32 s{DA}, 32768")
        a(f"v_add_u32 v{AA}, s{DA}, v{AA}")
        a(f"v_add_u32 v{AA+1}, s{DA}, v{AA+1}")
        wrap = hex((-(self.NSLOT-1)*32768) & 0xffffffff)
        L1 = f"L_{tag}_cloop"
        a(f".p2align 5")
        a.put(L1)
        self.g1_cstep(0, orient, 3, ((f"v_add_u32 v{AA+2}, s{DA}, v{AA+2}",), (f"v_add_u32 v{self.V_AWA}, s{DA}, v{self.V_AWA}",),
                                     (f"v_add_u32 v{self.V_AWB}, s{DA}, v{self.V_AWB}",), ()))
        a(f"s_barrier")
        self.g1_cstep(1, orient, 0, ((f"v_add_u32 v{AA+3}, s{DA}, v{AA+3}", f"s_cmp_eq_u32 s{S_RSLOT}, {self.NSLOT-1}"),
                                     (f"s_mov_b32 s{DB}, 32768", f"s_cselect_b32 s{DB}, {wrap}, s{DB}"),
                                     (f"v_mov_b32 v{self.V_AW2A}, v{self.V_AWA}", f"s_cselect_b32 s{S_RSLOT}, -1, s{S_RSLOT}"),
                                     (f"v_mov_b32 v{self.V_AW2B}, v{self.V_AWB}", f"s_add_u32 s{S_RSLOT}, s{S_RSLOT}, 1")))
        wf = ()
        if getattr(self, "warm_fill", False):
            wf = (f"s_cmp_eq_u32 s{S_CNT}, 3", f"s_cselect_b32 s{self.S_WRMD}, s{self.S_WRM}, s{S_OOB}", f"buffer_load_dword v253, v{self.V_WRM}, s[{SRD_T}:{SRD_T+3}], s{self.S_WRMD} offen")
        self.g1_cstep(2, orient, 1, ((f"v_add_u32 v{AA}, s{DB}, v{AA}",), (f"s_add_u32 s{S_CNT}, s{S_CNT}, 1",), wf, ()))
        self.g1_cstep(3, orient, 2, ((f"v_add_u32 v{AA+1}, s{DB}, v{AA+1}",), (f"s_mov_b32 s{DA}, s{DB}",), (f"s_cmp_lt_u32 s{S_CNT}, 10",), ()))
        a(f"s_cbranch_scc1 {L1}")
        a(f"s_waitcnt lgkmcnt(0)")
        a(f"v_mbcnt_lo_u32_b32 v1, -1, 0")
        a(f"v_mbcnt_hi_u32_b32 v1, -1, v1")
        T = self.V_FR
        a(f"s_lshl_b32 s{S_T0}, s{S_WN}, 8")
        a(f"s_lshl_b32 s{S_T1}, s{S_WM}, 7")
        a(f"s_add_u32 s{S_T0}, s{S_T0}, s{S_T1}")
        a(f"s_add_u32 s{S_T0}, s{S_T0}, {LDS_STATS+ST_CS}")
        a(f"v_lshlrev_b32 v{T}, 2, v1")
        a(f"v_add_u32 v{T}, s{S_T0}, v{T}")
        a(f"s_nop 4")
        a(f"s_mov_b64 exec, 0xffff")
        a(f"ds_write_b32 v{T}, v{self.V_CSD}")
        a(f"ds_write_b32 v{T}, v{self.V_CSD+1} offset:64")
        a(f"s_mov_b64 exec, -1")
        a(f"s_waitcnt lgkmcnt(0)")
        a(f"s_barrier")

    def magic_div5(self, dst, src):
        self.a(f"v_mul_u32_u24 v{dst}, 52429, v{src}")
        self.a(f"v_lshrrev_b32 v{dst}, 18, v{dst}")
    def magic_div20(self, dst, src):
        self.a(f"v_mul_u32_u24 v{dst}, 52429, v{src}")
        self.a(f"v_lshrrev_b32 v{dst}, 20, v{dst}")

    def epi_T_common(self):
        a = self.a
        T = self.V_T; CSR = self.V_FR
        a(f"v_and_b32 v{T}, 31, v1")
        a(f"s_lshl_b32 s{S_T0}, s{S_WM}, 6")
        a(f"v_add_u32 v{T+1}, s{S_T0}, v{T}")
        a(f"v_lshlrev_b32 v{T+1}, 2, v{T+1}")
        a(f"v_add_u32 v{T+1}, {LDS_STATS}, v{T+1}")
        a(f"ds_read_b32 v{T+2}, v{T+1} offset:{ST_AA}")
        a(f"ds_read_b32 v{T+3}, v{T+1} offset:{ST_BB}")
        a(f"ds_read_b32 v{T+4}, v{T+1} offset:{ST_AA+128}")
        a(f"ds_read_b32 v{T+5}, v{T+1} offset:{ST_BB+128}")
        a(f"v_lshrrev_b32 v{T+6}, 5, v1")
        a(f"s_lshl_b32 s{S_T0}, s{S_WN}, 8")
        a(f"s_lshl_b32 s{S_T1}, s{S_WM}, 7")
        a(f"s_add_u32 s{S_T0}, s{S_T0}, s{S_T1}")
        a(f"s_add_u32 s{S_T0}, s{S_T0}, {LDS_STATS+ST_CS}")
        a(f"v_lshlrev_b32 v{T+7}, 4, v{T+6}")
        a(f"v_add_u32 v{T+7}, s{S_T0}, v{T+7}")
        a(f"v_xor_b32 v{T+1}, 128, v{T+7}")
        for g in range(4):
            a(f"ds_read_b128 v[{CSR+4*g}:{CSR+4*g+3}], v{T+7} offset:{32*g}")
        for g in range(4):
            a(f"ds_read_b128 v[{CSR+16+4*g}:{CSR+16+4*g+3}], v{T+1} offset:{32*g}")

    E_AD = 160; E_LA = 168; E_LC = 169
    S_ESC = 6; S_EO = 7
    def wmwn(self):
        a = self.a
        a(f"s_lshr_b32 s{S_WM}, s{S_W}, 1")
        a(f"s_and_b32 s{S_WN}, s{S_W}, 1")

    def p1_epi_T_pre(self):
        a = self.a
        T = self.V_T + 24
        self.wmwn()
        a(f"v_and_b32 v{T}, 31, v1")
        a(f"v_lshrrev_b32 v{T+6}, 5, v1")
        a(f"s_lshl_b32 s{S_T0}, s{S_WM}, 6")
        a(f"v_add_u32 v{T+1}, s{S_T0}, v{T}")
        a(f"v_lshlrev_b32 v{T+1}, 2, v{T+1}")
        a(f"v_add_u32 v{self.E_LA}, {LDS_STATS}, v{T+1}")
        a(f"s_lshl_b32 s{S_T0}, s{S_WN}, 8")
        a(f"s_lshl_b32 s{S_T1}, s{S_WM}, 7")
        a(f"s_add_u32 s{S_T0}, s{S_T0}, s{S_T1}")
        a(f"s_add_u32 s{S_T0}, s{S_T0}, {LDS_STATS+ST_CS}")
        a(f"v_lshlrev_b32 v{T+7}, 4, v{T+6}")
        a(f"v_add_u32 v{self.E_LC}, s{S_T0}, v{T+7}")
        a(f"v_xor_b32 v{self.E_LC+1}, 128, v{self.E_LC}")
        a(f"s_cmp_lt_u32 s{S_NT}, 5")
        a(f"s_cselect_b32 s{self.S_ESC}, {hex(f32(math.log2(math.e)/math.sqrt(20.0)))}, 1.0")
        self.csel(S_T1, 81920, 163840)
        self.csel(S_T2, 1280, 2560)
        a(f"s_cselect_b32 s{S_T3}, 0, 5")
        self.csel(S_T4, hex(OFF_Q), hex(OFF_KV))
        self.csel(S_T5, hex(SZ_Q), hex(SZ_KV))
        a(f"s_add_u32 s{SRD_O}, s{S_WS}, s{S_T4}")
        a(f"s_addc_u32 s{SRD_O+1}, s{S_WS+1}, 0")
        a(f"s_mov_b32 s{SRD_O+2}, s{S_T5}")
        a(f"s_mov_b32 s{SRD_O+3}, 0x20000")
        a(f"s_sub_u32 s{S_T3}, s{S_NT}, s{S_T3}")
        a(f"s_lshl_b32 s{S_T3}, s{S_T3}, 5")
        a(f"s_lshl_b32 s{S_T4}, s{S_WN}, 4")
        a(f"s_add_u32 s{S_T3}, s{S_T3}, s{S_T4}")
        a(f"s_lshl_b32 s{S_T4}, s{S_WM}, 3")
        for q in range(2):
            for g in range(4):
                if q == 0:
                    a(f"s_add_u32 s{S_T5}, s{S_T3}, s{S_T4}")
                else:
                    a(f"s_xor_b32 s{S_T5}, s{S_T4}, 8")
                    a(f"s_add_u32 s{S_T5}, s{S_T5}, s{S_T3}")
                a(f"s_add_u32 s{S_T5}, s{S_T5}, {2*g}")
                a(f"v_add_u32 v{T+8}, s{S_T5}, v{T+6}")
                self.magic_div5(T+9, T+8)
                a(f"v_mul_u32_u24 v{T+10}, 5, v{T+9}")
                a(f"v_sub_u32 v{T+10}, v{T+8}, v{T+10}")
                a(f"v_mul_lo_u32 v{T+9}, v{T+9}, s{S_T1}")
                a(f"v_lshlrev_b32 v{T+10}, 8, v{T+10}")
                a(f"v_add_u32 v{T+9}, v{T+9}, v{T+10}")
                a(f"v_lshl_add_u32 v{self.E_AD+4*q+g}, v{T}, 3, v{T+9}")
        a(f"s_lshl_b32 s{S_T4}, s{S_MT}, 2")
        a(f"s_lshl_b32 s{S_T5}, s{S_WM}, 1")
        a(f"s_add_u32 s{S_T4}, s{S_T4}, s{S_T5}")
        a(f"s_mul_i32 s{self.S_EO}, s{S_T4}, s{S_T2}")
        a(f"s_add_u32 s{self.S_EO+1}, s{self.S_EO}, s{S_T2}")

    def p1_epi_T(self):
        a = self.a
        T = self.V_T; A = self.V_ACC; CSR = self.V_FR
        a(f"ds_read_b32 v{T+2}, v{self.E_LA} offset:{ST_AA}")
        a(f"ds_read_b32 v{T+3}, v{self.E_LA} offset:{ST_BB}")
        a(f"ds_read_b32 v{T+4}, v{self.E_LA} offset:{ST_AA+128}")
        a(f"ds_read_b32 v{T+5}, v{self.E_LA} offset:{ST_BB+128}")
        for q in range(2):
            for g in range(4):
                a(f"ds_read_b128 v[{CSR+16*q+4*g}:{CSR+16*q+4*g+3}], v{self.E_LC+q} offset:{32*g}")
        a(f"s_waitcnt lgkmcnt(8)")
        for r in range(4):
            a(f"v_mul_f32 v{T+2+r}, s{self.S_ESC}, v{T+2+r}")
        a(f"s_waitcnt lgkmcnt(0)")
        for tt in range(2):
            ab = f"v[{T+2+2*tt}:{T+3+2*tt}]"
            for q in range(2):
                for g in range(4):
                    for i in (0, 2):
                        r = A + 16*(2*tt+q) + 4*g + i
                        c = CSR + 16*q + 4*g + i
                        a(f"v_pk_mul_f32 v[{r}:{r+1}], v[{r}:{r+1}], {ab} op_sel:[0,0] op_sel_hi:[1,0]")
                        a(f"v_pk_fma_f32 v[{r}:{r+1}], v[{c}:{c+1}], {ab}, v[{r}:{r+1}] op_sel:[0,1,0] op_sel_hi:[1,1,1]")
                    r = A + 16*(2*tt+q) + 4*g
                    a(f"v_cvt_pk_bf16_f32 v{r}, v{r}, v{r+1}")
                    a(f"v_cvt_pk_bf16_f32 v{r+1}, v{r+2}, v{r+3}")
                    a(f"buffer_store_dwordx2 v[{r}:{r+1}], v{self.E_AD+4*q+g}, s[{SRD_O}:{SRD_O+3}], s{self.S_EO+tt} offen sc1")

    def p1_epi_N_pre(self):
        a = self.a
        T = self.V_T + 24
        self.wmwn()
        a(f"v_and_b32 v{T}, 31, v1")
        a(f"v_lshrrev_b32 v{T+6}, 5, v1")
        a(f"s_lshl_b32 s{S_T0}, s{S_WM}, 8")
        a(f"v_lshlrev_b32 v{T+4}, 4, v{T+6}")
        a(f"v_add_u32 v{T+4}, s{S_T0}, v{T+4}")
        a(f"v_add_u32 v{self.E_LA}, {LDS_STATS}, v{T+4}")
        a(f"s_mov_b32 s{S_T2}, 163840")
        for q in range(2):
            a(f"s_xor_b32 s{S_T0}, s{S_WM}, {q}")
            a(f"s_lshl_b32 s{S_T0}, s{S_T0}, 5")
            a(f"s_lshl_b32 s{S_T1}, s{S_WN}, 6")
            a(f"s_add_u32 s{S_T0}, s{S_T0}, s{S_T1}")
            a(f"v_add_u32 v{T+1}, s{S_T0}, v{T}")
            a(f"v_lshlrev_b32 v{T+2}, 2, v{T+1}")
            a(f"v_add_u32 v{self.E_LC+q}, {LDS_STATS+ST_CS}, v{T+2}")
            a(f"s_sub_u32 s{S_T1}, s{S_NT}, 10")
            a(f"s_lshl_b32 s{S_T1}, s{S_T1}, 7")
            a(f"v_add_u32 v{T+7}, s{S_T1}, v{T+1}")
            self.magic_div20(T+8, T+7)
            a(f"v_mul_u32_u24 v{T+9}, 20, v{T+8}")
            a(f"v_sub_u32 v{T+9}, v{T+7}, v{T+9}")
            a(f"v_mul_lo_u32 v{T+8}, v{T+8}, s{S_T2}")
            a(f"v_lshlrev_b32 v{T+9}, 4, v{T+9}")
            a(f"v_add_u32 v{T+8}, v{T+8}, v{T+9}")
            a(f"v_mul_u32_u24 v{T+9}, 320, v{T+6}")
            a(f"v_add_u32 v{T+8}, v{T+8}, v{T+9}")
            a(f"v_add_u32 v{self.E_AD+q}, 1280, v{T+8}")
        self.srd(SRD_O, S_WS, OFF_KV, SZ_KV)
        a(f"s_lshl_b32 s{S_T4}, s{S_MT}, 2")
        a(f"s_lshl_b32 s{S_T5}, s{S_WM}, 1")
        a(f"s_add_u32 s{S_T4}, s{S_T4}, s{S_T5}")
        a(f"s_mul_i32 s{self.S_EO}, s{S_T4}, 2560")
        a(f"s_add_u32 s{self.S_EO+1}, s{self.S_EO}, 2560")

    def p1_epi_N(self):
        a = self.a
        T = self.V_T; A = self.V_ACC
        ABs = (self.V_FR, self.V_FR + 32)
        a(f"ds_read_b32 v{T+10}, v{self.E_LC}")
        a(f"ds_read_b32 v{T+11}, v{self.E_LC+1}")
        for tt in range(2):
            AB = ABs[tt]; BB = AB + 16
            for g in range(4):
                a(f"ds_read_b128 v[{AB+4*g}:{AB+4*g+3}], v{self.E_LA} offset:{ST_AA + 128*tt + 32*g}")
                a(f"ds_read_b128 v[{BB+4*g}:{BB+4*g+3}], v{self.E_LA} offset:{ST_BB + 128*tt + 32*g}")
        cs = f"v[{T+10}:{T+11}]"
        for tt in range(2):
            AB = ABs[tt]; BB = AB + 16
            a(f"s_waitcnt lgkmcnt({8 if tt == 0 else 0})")
            for q in range(2):
                for r in range(0, 16, 2):
                    R = A + 16*(2*tt+q) + r
                    a(f"v_pk_mul_f32 v[{R}:{R+1}], v[{R}:{R+1}], v[{AB+r}:{AB+r+1}]")
                    a(f"v_pk_fma_f32 v[{R}:{R+1}], v[{BB+r}:{BB+r+1}], {cs}, v[{R}:{R+1}] op_sel:[0,{q},0] op_sel_hi:[1,{q},1]")
                for st in range(2):
                    R = A + 16*(2*tt+q) + 8*st
                    for z in range(4):
                        a(f"v_cvt_pk_bf16_f32 v{R+z}, v{R+2*z}, v{R+2*z+1}")
                    a(f"buffer_store_dwordx4 v[{R}:{R+3}], v{self.E_AD+q}, s[{SRD_O}:{SRD_O+3}], s{self.S_EO+tt} offen offset:{640*st} sc1")

    def relayout_unit(self):
        pass

    def rl_unit(self):
        a = self.a
        a(f"s_lshl_b32 s{S_T0}, s2, 2")
        a(f"s_and_b32 s{S_T5}, s{S_W}, 3")
        a(f"s_add_u32 s{S_T0}, s{S_T0}, s{S_T5}")

    def rl_src(self, srd):
        a = self.a
        self.rl_unit()
        a(f"s_cmp_lt_u32 s{S_T0}, 540")
        a(f"s_cselect_b32 s{S_T1}, 0, 540")
        a(f"s_cselect_b32 s{srd}, s{S_W2}, s{S_WO}")
        a(f"s_cselect_b32 s{srd+1}, s{S_W2+1}, s{S_WO+1}")
        self.csel(srd+2, 1728*1280, 640*1280)
        a(f"s_mov_b32 s{srd+3}, 0x20000")
        a(f"s_sub_u32 s{S_T1}, s{S_T0}, s{S_T1}")
        a(f"s_mul_hi_u32 s{S_T2}, s{S_T1}, {hex((2**32+9)//10)}")
        a(f"s_mul_i32 s{S_T3}, s{S_T2}, 10")
        a(f"s_sub_u32 s{S_T3}, s{S_T1}, s{S_T3}")
        a(f"s_mul_i32 s{S_T2}, s{S_T2}, {32*1280}")
        a(f"s_lshl_b32 s{S_T3}, s{S_T3}, 7")
        a(f"s_add_u32 s{S_T2}, s{S_T2}, s{S_T3}")
        a(f"s_cmp_ge_u32 s{S_T0}, 740")
        a(f"s_cselect_b32 s{S_T2}, 0x70000000, s{S_T2}")

    def relayout_load(self):
        a = self.a
        T = self.V_T
        self.rl_src(SRD_T)
        a(f"v_lshrrev_b32 v{T}, 3, v1")
        a(f"v_mul_u32_u24 v{T}, 1280, v{T}")
        a(f"v_and_b32 v{T+1}, 7, v1")
        a(f"v_lshl_add_u32 v{T}, v{T+1}, 4, v{T}")
        a(f"s_lshl_b32 s{S_T3}, s{S_T5}, 12")
        a(f"s_add_u32 m0, s{S_T3}, {LDS_RL}")
        for jj in range(4):
            a(f"s_nop 0")
            a(f"buffer_load_dwordx4 v{T}, s[{SRD_T}:{SRD_T+3}], s{S_T2} offen lds")
            if jj < 3:
                a(f"s_add_u32 m0, m0, 1024")
                a(f"s_add_u32 s{S_T2}, s{S_T2}, {8*1280}")

    def relayout_warm_setup(self):
        a = self.a
        V = self.V_WRM
        self.rl_src(SRD_T)
        a(f"s_mov_b32 s{self.S_WRM}, s{S_T2}")
        a(f"s_mov_b32 s{S_OOB}, 0x70000000")
        a(f"v_mul_u32_u24 v{V}, 1280, v1")
        a(f"v_cmp_gt_u32 vcc, 32, v1")
        a(f"v_mov_b32 v{V-1}, 0x7f000000")
        a(f"s_nop 0")
        a(f"v_cndmask_b32 v{V}, v{V-1}, v{V}, vcc")

    def relayout_store(self):
        a = self.a
        T = self.V_T
        Lskip = "L_rl_skip2"
        self.rl_unit()
        a(f"s_cmp_ge_u32 s{S_T0}, 740")
        a(f"s_cbranch_scc1 {Lskip}")
        a(f"s_cmp_lt_u32 s{S_T0}, 540")
        a(f"s_cselect_b32 s{S_T1}, 0, 540")
        self.csel(S_T4, hex(OFF_W2P), hex(OFF_WOP))
        self.csel(S_T3, hex(SZ_W2P), hex(SZ_WOP))
        a(f"s_mov_b32 s{SRD_T+2}, s{S_T3}")
        a(f"s_sub_u32 s{S_T1}, s{S_T0}, s{S_T1}")
        a(f"s_add_u32 s{SRD_T}, s{S_WS}, s{S_T4}")
        a(f"s_addc_u32 s{SRD_T+1}, s{S_WS+1}, 0")
        a(f"s_mov_b32 s{SRD_T+3}, 0x20000")
        a(f"s_mul_hi_u32 s{S_T2}, s{S_T1}, {hex((2**32+9)//10)}")
        a(f"s_mul_i32 s{S_T3}, s{S_T2}, 10")
        a(f"s_sub_u32 s{S_T3}, s{S_T1}, s{S_T3}")
        a(f"s_mul_i32 s{S_T2}, s{S_T2}, 40")
        a(f"s_lshl_b32 s{S_T3}, s{S_T3}, 2")
        a(f"s_add_u32 s{S_T2}, s{S_T2}, s{S_T3}")
        a(f"s_lshl_b32 s{S_T2}, s{S_T2}, 10")
        a(f"v_lshrrev_b32 v{T}, 4, v1")
        a(f"v_lshlrev_b32 v{T}, 3, v{T}")
        a(f"v_bfe_u32 v{T+1}, v1, 2, 2")
        a(f"v_add_u32 v{T}, v{T}, v{T+1}")
        a(f"v_lshlrev_b32 v{T}, 7, v{T}")
        a(f"v_and_b32 v{T+1}, 3, v1")
        a(f"v_lshl_add_u32 v{T}, v{T+1}, 3, v{T}")
        a(f"s_lshl_b32 s{S_T3}, s{S_T5}, 12")
        a(f"s_add_u32 s{S_T3}, s{S_T3}, {LDS_RL}")
        a(f"v_add_u32 v{T}, s{S_T3}, v{T}")
        a(f"v_lshlrev_b32 v{T+1}, 4, v1")
        O = T + 4
        for tq in range(4):
            a(f"ds_read_b64_tr_b16 v[{O+4*tq}:{O+4*tq+1}], v{T} offset:{32*tq}")
            a(f"ds_read_b64_tr_b16 v[{O+4*tq+2}:{O+4*tq+3}], v{T} offset:{32*tq+512}")
        a(f"s_waitcnt lgkmcnt(0)")
        for tq in range(4):
            a(f"buffer_store_dwordx4 v[{O+4*tq}:{O+4*tq+3}], v{T+1}, s[{SRD_T}:{SRD_T+3}], s{S_T2} offen offset:{1024*tq} sc1")
        a.put(Lskip)

    def p1(self):
        a = self.a
        a(f"s_and_b32 s{S_T0}, s{S_GX}, 3")
        a(f"s_lshl_b32 s{S_T0}, s{S_T0}, 2")
        a(f"s_and_b32 s{S_T1}, s{S_GI}, 3")
        a(f"s_add_u32 s{S_MT}, s{S_T0}, s{S_T1}")
        a(f"s_lshr_b32 s{S_T0}, s{S_GX}, 2")
        a(f"s_lshl_b32 s{S_T0}, s{S_T0}, 3")
        a(f"s_lshr_b32 s{S_T2}, s{S_GI}, 2")
        a(f"s_add_u32 s{S_NT}, s{S_T0}, s{S_T2}")
        a(f"s_lshl_b32 s{S_T1}, s{S_T1}, 1")
        a(f"s_add_u32 s{S_RLW}, s{S_T1}, s{S_T2}")
        a(f"s_and_b32 s{S_RLW}, s{S_RLW}, 7")
        a(f"s_mov_b32 s{S_KK}, 0")
        self.aux_A = ""
        self.st1 = 1
        a(f"s_cmp_lt_u32 s{S_W}, 4")
        a(f"s_cbranch_scc1 L_p1_compute")
        self.g1_setup_loader(3840)
        a(f"s_waitcnt lgkmcnt(0)")
        if "p1s" in self.opt: self.stamp(15)
        self.srd(SRD_A, S_X, 0, 2048*1280)
        self.srd(SRD_W, S_WQKV, 0, 640*3840)
        a(f"s_load_dword s{S_TAG}, s[{S_WS}:{S_WS+1}], {OFF_EPOCH}")
        a(f"s_cmp_ge_u32 s{S_NT}, 15")
        a(f"s_cbranch_scc1 L_p1_lnull")
        self.g1_dma_stage(3840)
        if "p1s" in self.opt: self.stamp(16)
        self.g1_dma_stage(3840)
        if "norot" not in self.opt: a(f"s_add_u32 s{S_KK}, s{S_RLW}, 2")
        self.srd(SRD_F, S_WS, 0, 0x100000)
        if "p1s" in self.opt: self.stamp(17)
        self.g1_loader(3840, "p1", "gran")
        a(f"s_branch L_p1_lj")
        a.put("L_p1_lnull")
        self.srd(SRD_F, S_WS, 0, 0x100000)
        self.tag_ready()
        self.relayout_load()
        a.put("L_p1_lj")
        a(f"s_waitcnt vmcnt(0)")
        self.relayout_store()
        a(f"s_branch L_p1_done")
        a.put("L_p1_compute")
        if "nowarm" not in self.opt: self.code_warm()
        a(f"s_waitcnt lgkmcnt(0)")
        a(f"s_load_dword s{S_TAG}, s[{S_WS}:{S_WS+1}], {OFF_EPOCH}")
        self.srd(SRD_F, S_WS, 0, 0x100000)
        D = self.xstats_publish()
        self.relayout_warm_setup()
        self.xstats_finish(D)
        a(f"s_cmp_ge_u32 s{S_NT}, 15")
        a(f"s_cbranch_scc1 L_p1_done")
        a(f"s_cmp_ge_u32 s{S_NT}, 10")
        a(f"s_cbranch_scc1 L_p1_N")
        self.warm_fill = True
        self.p1_epi_T_pre()
        self.g1_compute("T", "p1T")
        self.stamp(2)
        self.p1_epi_T()
        a(f"s_branch L_p1_done")
        a.put("L_p1_N")
        self.p1_epi_N_pre()
        self.g1_compute("N", "p1N")
        self.warm_fill = False
        self.stamp(2)
        self.p1_epi_N()
        a.put("L_p1_done")
        self.stamp(3)

    def poll(self, addr_regs, masks, tagname):
        a = self.a
        T = self.V_S - 8
        L = f"L_{tagname}_poll"; Lo = f"L_{tagname}_pollok"
        a(f"s_mov_b32 s{S_T0}, 0")
        a.put(L)
        for k, (ar, mk) in enumerate(zip(addr_regs, masks)):
            self.set_exec(mk)
            a(f"buffer_load_dword v{T+20+k}, v{ar}, s[{SRD_F}:{SRD_F+3}], 0 offen sc1")
        a(f"s_waitcnt vmcnt(0)")
        a(f"s_mov_b64 s[{S_SAVE}:{S_SAVE+1}], 0")
        for k, (ar, mk) in enumerate(zip(addr_regs, masks)):
            self.set_exec(mk)
            a(f"v_cmp_ne_u32 vcc, s{S_TAG}, v{T+20+k}")
            a(f"s_or_b64 s[{S_SAVE}:{S_SAVE+1}], s[{S_SAVE}:{S_SAVE+1}], vcc")
        a(f"s_mov_b64 exec, -1")
        a(f"s_cmp_eq_u64 s[{S_SAVE}:{S_SAVE+1}], 0")
        a(f"s_cbranch_scc1 {Lo}")
        a(f"s_add_u32 s{S_T0}, s{S_T0}, 1")
        a(f"s_cmp_lt_u32 s{S_T0}, 0x40000")
        a(f"s_cbranch_scc1 {L}")
        a.put(Lo)

    def p1_signal(self):
        a = self.a
        T = self.V_S
        Ls = "L_p1sig_skip"
        a(f"s_cmp_lg_u32 s{S_W}, {self.SIGW}")
        a(f"s_cbranch_scc1 {Ls}p")
        a(f"v_lshrrev_b32 v{T}, 3, v1")
        a(f"v_and_b32 v{T+1}, 7, v1")
        Ln = "L_p1sig_null"; Lj = "L_p1sig_join"
        a(f"s_cmp_eq_u32 s{S_NT}, 15")
        a(f"s_cbranch_scc1 {Ln}")
        a(f"s_cmp_ge_u32 s{S_NT}, 10")
        a(f"s_cselect_b32 s{S_T0}, 10, 5")
        a(f"s_cmp_lt_u32 s{S_NT}, 5")
        a(f"s_cselect_b32 s{S_T0}, 0, s{S_T0}")
        a(f"s_sub_u32 s{S_T0}, s{S_NT}, s{S_T0}")
        a(f"s_lshl_b32 s{S_T0}, s{S_T0}, 7")
        a(f"s_mul_i32 s{S_T1}, s{S_T0}, 52429")
        a(f"s_lshr_b32 s{S_T1}, s{S_T1}, 20")
        a(f"s_add_u32 s{S_T2}, s{S_T0}, 127")
        a(f"s_mul_i32 s{S_T2}, s{S_T2}, 52429")
        a(f"s_lshr_b32 s{S_T2}, s{S_T2}, 20")
        a(f"s_min_u32 s{S_T2}, s{S_T2}, 31")
        a(f"v_add_u32 v{T+2}, s{S_T1}, v{T}")
        a(f"v_cmp_ge_u32 vcc, s{S_T2}, v{T+2}")
        a(f"s_mov_b64 s[{S_SAVE}:{S_SAVE+1}], vcc")
        a(f"s_cmp_lt_u32 s{S_NT}, 5")
        a(f"s_cbranch_scc0 {Lj}")
        a(f"s_lshr_b32 s{S_T3}, s{S_MT}, 1")
        a(f"v_cmp_eq_u32 vcc, s{S_T3}, v{T+1}")
        a(f"s_and_b64 s[{S_SAVE}:{S_SAVE+1}], s[{S_SAVE}:{S_SAVE+1}], vcc")
        a(f"s_branch {Lj}")
        a.put(Ln)
        a(f"v_lshlrev_b32 v{T+2}, 4, v{T}")
        a(f"v_add_u32 v{T+2}, s{S_MT}, v{T+2}")
        a(f"v_cmp_gt_u32 vcc, 2, v{T}")
        a(f"s_mov_b64 s[{S_SAVE}:{S_SAVE+1}], vcc")
        a.put(Lj)
        a(f"v_and_b32 v{T+4}, 3, v{T+2}")
        a(f"v_lshl_add_u32 v{T+4}, v{T+1}, 2, v{T+4}")
        a(f"v_lshrrev_b32 v{T+2}, 2, v{T+2}")
        a(f"v_lshl_add_u32 v{T+2}, v{T+4}, 3, v{T+2}")
        a(f"v_lshlrev_b32 v{T+2}, 10, v{T+2}")
        a(f"s_lshl_b32 s{S_T0}, s2, 2")
        a(f"s_add_u32 s{S_T0}, s{S_T0}, {OFF_MB1}")
        a(f"v_add_u32 v{T+2}, s{S_T0}, v{T+2}")
        a(f"v_mov_b32 v{T+3}, s{S_TAG}")
        a(f"s_lshl_b32 s{S_T0}, s2, 2")
        a(f"s_add_u32 s{S_T0}, s{S_T0}, {OFF_ALL}")
        a(f"v_mov_b32 v{T+5}, s{S_T0}")
        a(f"s_add_u32 s{S_T1}, s{S_TAG}, s{S_XCC}")
        a(f"v_mov_b32 v{T+6}, s{S_T1}")
        a.put(Ls + "p")
        a(f"s_waitcnt vmcnt(0) lgkmcnt(0)")
        self.stamp(4)
        a(f"s_barrier")
        a(f"s_cmp_lg_u32 s{S_W}, {self.SIGW}")
        a(f"s_cbranch_scc1 {Ls}")
        a(f"s_mov_b64 exec, s[{S_SAVE}:{S_SAVE+1}]")
        a(f"buffer_store_dword v{T+3}, v{T+2}, s[{SRD_F}:{SRD_F+3}], 0 offen sc1")
        a(f"s_mov_b64 exec, 1")
        a(f"buffer_store_dword v{T+6}, v{T+5}, s[{SRD_F}:{SRD_F+3}], 0 offen sc1")
        a(f"s_mov_b64 exec, -1")
        a.put(Ls)

    def finish_tag_once(self):
        a = self.a
        a(f"s_mul_i32 s{S_TAG}, s{S_TAG}, 0x9E3779B1")
        a(f"s_add_u32 s{S_TAG}, s{S_TAG}, 0x7F4A7C15")

    def p2_wait_prep(self):
        a = self.a
        T = self.V_S + 16
        Ls = "L_p2w_skip"
        a(f"s_cmp_lg_u32 s{S_W}, {self.POLLW}")
        a(f"s_cbranch_scc1 {Ls}")
        a(f"s_mul_i32 s{S_T1}, s{S_HEAD}, 20")
        a(f"v_bfe_u32 v{T}, v1, 4, 1")
        a(f"v_mul_u32_u24 v{T}, 19, v{T}")
        a(f"v_add_u32 v{T}, s{S_T1}, v{T}")
        a(f"v_lshrrev_b32 v{T}, 7, v{T}")
        a(f"v_lshrrev_b32 v{T+1}, 5, v1")
        a(f"v_mul_u32_u24 v{T+1}, 5, v{T+1}")
        a(f"v_add_u32 v{T+2}, v{T}, v{T+1}")
        a(f"v_add_u32 v{T+2}, 5, v{T+2}")
        a(f"v_and_b32 v{T+3}, 15, v1")
        self.vprod(T+4, T+3, T+2, T+10)
        a(f"v_bfe_u32 v{T}, v1, 1, 1")
        a(f"v_mul_u32_u24 v{T}, 19, v{T}")
        a(f"v_add_u32 v{T}, s{S_T1}, v{T}")
        a(f"v_lshrrev_b32 v{T+2}, 7, v{T}")
        a(f"v_and_b32 v{T+3}, 1, v1")
        a(f"s_lshl_b32 s{S_T2}, s{S_QB}, 1")
        a(f"v_add_u32 v{T+3}, s{S_T2}, v{T+3}")
        a(f"v_cmp_eq_u32 vcc, 4, v1")
        a(f"s_and_b32 s{S_T2}, s{S_HEAD}, 15")
        a(f"v_mov_b32 v{T+6}, s{S_T2}")
        a(f"v_mov_b32 v{T+7}, 15")
        a(f"v_cndmask_b32 v{T+3}, v{T+3}, v{T+6}, vcc")
        a(f"v_cndmask_b32 v{T+2}, v{T+2}, v{T+7}, vcc")
        self.vprod(T+5, T+3, T+2, T+10)
        a(f"s_lshl_b32 s{S_T2}, s2, 10")
        a(f"s_add_u32 s{S_T2}, s{S_T2}, {OFF_MB1}")
        for r in (T+4, T+5):
            a(f"v_lshlrev_b32 v{r}, 2, v{r}")
            a(f"v_add_u32 v{r}, s{S_T2}, v{r}")
        a.put(Ls)

    def p2_wait(self):
        a = self.a
        T = self.V_S + 16
        Ls = "L_p2w_skip2"
        a(f"s_cmp_lg_u32 s{S_W}, {self.POLLW}")
        a(f"s_cbranch_scc1 {Ls}")
        self.V_S += 16
        self.poll([T+4, T+5], ["-1", "0x1f"], "p2w")
        self.V_S -= 16
        a.put(Ls)
        a(f"s_barrier")

    def vprod(self, dst, mt, nt, tmp):
        a = self.a
        a(f"v_and_b32 v{dst}, 3, v{mt}")
        a(f"v_and_b32 v{tmp}, 7, v{nt}")
        a(f"v_lshl_add_u32 v{dst}, v{tmp}, 2, v{dst}")
        a(f"v_lshlrev_b32 v{dst}, 3, v{dst}")
        a(f"v_lshrrev_b32 v{tmp}, 2, v{mt}")
        a(f"v_add_u32 v{dst}, v{dst}, v{tmp}")
        a(f"v_lshrrev_b32 v{tmp}, 3, v{nt}")
        a(f"v_lshl_add_u32 v{dst}, v{tmp}, 2, v{dst}")

    def group_barrier(self, phase, tagname, tgt=None, slot=None, hook=None, local=False):
        a = self.a
        T = self.V_S
        gs = (tagname in self.opt)
        Ls = f"L_{tagname}_gskip"
        tgt = S_GX if tgt is None else tgt
        slot = S_GI if slot is None else slot
        a(f"v_lshlrev_b32 v{T}, 3, v1")
        a(f"v_add_u32 v{T}, s{tgt}, v{T}")
        a(f"v_lshlrev_b32 v{T}, 7, v{T}")
        a(f"s_lshl_b32 s{S_T1}, s{slot}, 2")
        a(f"s_add_u32 s{S_T1}, s{S_T1}, {OFF_GB + phase*256*128}")
        a(f"v_add_u32 v{T}, s{S_T1}, v{T}")
        a(f"v_mov_b32 v{T+1}, s{S_TAG}")
        a(f"s_waitcnt vmcnt(0) lgkmcnt(0)")
        if gs: self.stamp(15)
        a(f"s_barrier")
        if gs: self.stamp(16)
        a(f"s_cmp_lg_u32 s{S_W}, {self.POLLW}")
        a(f"s_cbranch_scc1 {Ls}0")
        self.set_exec(0xffffffff)
        if local:
            a(f"s_cmp_eq_u32 s{S_FAST}, 1")
            a(f"s_cbranch_scc1 {Ls}f")
            a(f"buffer_store_dword v{T+1}, v{T}, s[{SRD_F}:{SRD_F+3}], 0 offen sc1")
            a(f"s_branch {Ls}g")
            a.put(Ls + "f")
            a(f"buffer_store_dword v{T+1}, v{T}, s[{SRD_F}:{SRD_F+3}], 0 offen")
            a.put(Ls + "g")
        else:
            a(f"buffer_store_dword v{T+1}, v{T}, s[{SRD_F}:{SRD_F+3}], 0 offen sc1")
        a(f"s_mov_b64 exec, -1")
        a.put(Ls + "0")
        if hook: hook()
        if gs: self.stamp(17)
        a(f"s_cmp_lg_u32 s{S_W}, {self.POLLW}")
        a(f"s_cbranch_scc1 {Ls}")
        a(f"s_lshl_b32 s{S_T0}, s2, 7")
        a(f"s_add_u32 s{S_T0}, s{S_T0}, {OFF_GB + phase*256*128}")
        a(f"v_lshlrev_b32 v{T+2}, 2, v1")
        a(f"v_add_u32 v{T+2}, s{S_T0}, v{T+2}")
        self.poll([T+2], ["0xffffffff"], tagname)
        a.put(Ls)
        a(f"s_barrier")

    A_QA = 4; A_QB = 12
    A_K = 20
    A_V1 = 36; A_V2 = 40
    A_SA = 44; A_SB = 60; A_P = 76; A_OA = 84; A_OB = 100; A_AK = 116; A_AV = 117; A_DV = 118; A_ALLA = 119; A_T = 120; A_ALL = 132
    S_VMASK = 92
    S_NEXTB = 94; S_DSO = 95; S_LOW = 65; S_NEXTM = 69
    p2_nu = 4
    low_tiles = 1
    S_D = [6, 7, 8, 9, 16, 17]
    S_WOI = [51, 53]
    S_WOBK = 62
    S_WOM = 68
    low_pos = (3, 10, 18, 29)
    warm_slots = {'dst': 48, 'w1': 50}
    def p2_unrolled(self):
        a = self.a
        D = self.S_D
        def kv():
            a(f"s_mov_b32 m0, s{self.S_DSO}")
            a(f"s_nop 0")
            a(f"buffer_load_dwordx4 v{self.A_DV}, s[{SRD_A}:{SRD_A+3}], s{self.S_DSO} offen sc1 lds")
            a(f"s_add_u32 s{self.S_DSO}, s{self.S_DSO}, 4096")
        def w2(g):
            R = 144 + 4*g
            a(f"buffer_load_dwordx4 v[{R}:{R+3}], v{self.A_ALLA}, s[{SRD_W}:{SRD_W+3}], s{S_SW} offen {self.ld_aux}")
            a(f"s_add_u32 s{S_SW}, s{S_SW}, s{D[g % 6]}")
        def wo(idx):
            a(f"s_mov_b32 m0, s{self.S_WOB}")
            a(f"s_add_u32 s{self.S_WOB}, s{self.S_WOB}, s{self.S_WOI[1 if idx == 4 else 0]}")
            if idx >= 10:
                a(f"s_cmp_lt_u32 s{S_W}, 4")
                a(f"s_cbranch_scc1 L_wo_sk{idx}")
            a(f"buffer_load_dwordx4 v{self.A_DV}, s[{SRD_T}:{SRD_T+3}], s{self.S_WOS} offen {self.ld_aux} lds")
            if idx >= 10: a.put(f"L_wo_sk{idx}")
            a(f"s_add_u32 s{self.S_WOS}, s{self.S_WOS}, s{D[idx % 6]}")
        slot_ops = {}
        def put(x, k_, arg=None): slot_ops.setdefault(x, []).append((k_, arg))
        for i in range(5): put(8 + i, "kv")
        for i in range(6): put(24 + i, "kv")
        free = [x for x in range(13, 40) if x not in range(24, 30)]
        dbl = set(free[1::3][:7])
        g = 0
        for x in free:
            put(x, "w2", g); g += 1
            if x in dbl:
                put(x, "w2", g); g += 1
        assert g == 28, g
        for i in range(15): put(40 + i//2, "wo", i)
        for k_, x in self.warm_slots.items(): put(x, k_)
        def cnt(lo, hi):
            return sum(1 for x in range(lo, hi) for k_, _ in slot_ops.get(x, []) if k_ in ("kv", "w2", "wo"))
        lowpos = set(self.low_pos)
        noprio = "noprio" in self.opt
        if not noprio:
            a(f"s_setprio 1")
            self.p2_setprio(2, "init")
        a(f"s_nop 7"); a(f"s_nop 3")
        base = 0
        for t in range(32):
            if t == 16:
                a(f"v_add_u32 v{self.A_AK}, {16*2560}, v{self.A_AK}")
                a(f"v_add_u32 v{self.A_AV}, {16*2560}, v{self.A_AV}")
                base = 16
            if t in (4, 12, 20):
                vm = 0 if t == 4 else (cnt(13, 24) if t == 12 else cnt(30, 40))
                a(f"s_waitcnt vmcnt({vm})")
                if t == 4:
                    self.p2_check_all()
                    self.g2_wsetup(5, SRD_W, S_SW, self.A_ALLA)
                    self.p2_w2_consts()
                a(f"s_barrier")
                if not noprio: self.p2_setprio(2, f"h{t}")
                if t == 20: self.wo_setup2()
            if t in lowpos and not noprio: self.p2_setprio(0, f"l{t}")
            for st in (0, 1):
                self.p2_sub(st, t - base)
                for k_, arg in slot_ops.get(2*t + st, []):
                    self.evtag = "u"
                    if k_ == "kv": kv()
                    elif k_ == "w2":
                        if "evnow2" not in self.opt: w2(arg)
                    elif k_ == "wo":
                        if "evnowo" not in self.opt: wo(arg)
                    elif k_ == "dst":
                        if "nodstw" not in self.opt: self.dst_l2warm()
                    elif k_ == "w1":
                        if "now1w" not in self.opt: self.w1_l2warm()
                    elif k_ == "wp":
                        if "nowpw" not in self.opt: self.wp_l2warm()

    def p2_w2_consts(self):
        a = self.a
        D = self.S_D
        incB = [1024, 162816]*3
        incA = [161792, 1024, 1024]*2
        a(f"s_cmp_lt_u32 s{S_W}, 4")
        for k in range(6):
            x, y = incB[k], incA[k]
            if x == y: a(f"s_mov_b32 s{D[k]}, {x}")
            else: self.csel(D[k], x, y)
        a(f"s_cselect_b32 s{S_T0}, 0, {5*163840 - 161792}")
        a(f"s_add_u32 s{S_SW}, s{S_SW}, s{S_T0}")

    def wo_setup2(self):
        a = self.a
        D = self.S_D
        self.g2_wsetup(3, SRD_T, self.S_WOS, self.A_DV)
        self.wo_lds_base(self.S_WOB)
        a(f"s_mov_b32 s{self.S_WOBK}, s{self.S_WOB}")
        a(f"s_cmp_eq_u32 s{S_W}, 3")
        a(f"s_cselect_b32 s{self.S_WOB2}, {128000-5120}, s{self.S_WOB}")
        a(f"s_mov_b32 s{self.S_WOI[0]}, 1024")
        a(f"s_cselect_b32 s{self.S_WOI[1]}, {128000 - (46080 + 4096)}, s{self.S_WOI[0]}")
        incB = [1024, 162816]*3
        incA = [1024, 1024, 161792]*2
        a(f"s_cmp_lt_u32 s{S_W}, 4")
        for k in range(6):
            x, y = incB[k], incA[k]
            if x == y: a(f"s_mov_b32 s{D[k]}, {x}")
            else: self.csel(D[k], x, y)


    def p2_kreads(self, kb, toff):
        a = self.a
        K = self.A_K + 8*kb
        a(f"ds_read_b64 v[{K}:{K+1}], v{self.A_AK} offset:{toff}")
        a(f"ds_read_b64 v[{K+2}:{K+3}], v{self.A_AK} offset:{toff+256}")
        a(f"ds_read_b64 v[{K+4}:{K+5}], v{self.A_AK} offset:{toff+1024}")
    def p2_vread(self, which, toff):
        a = self.a
        R = self.A_V1 if which == 0 else self.A_V2
        a(f"s_mov_b64 exec, s[{self.S_VMASK}:{self.S_VMASK+1}]")
        a(f"ds_read_b128 v[{R}:{R+3}], v{self.A_AV} offset:{toff+640*which}")
        a(f"s_mov_b64 exec, -1")
    def p2_smfma(self, which, S, kb, Q):
        a = self.a
        K = self.A_K + 8*kb
        if which == 0:
            a(f"v_mfma_f32_32x32x16_bf16 v[{S}:{S+15}], v[{K}:{K+3}], v[{Q}:{Q+3}], 0")
        else:
            a(f"v_mfma_f32_32x32x16_bf16 v[{S}:{S+15}], v[{K+4}:{K+7}], v[{Q+4}:{Q+7}], v[{S}:{S+15}]")

    A_V2B = 128
    def p2_sub(self, stream, u):
        a = self.a
        P = self.A_P
        p = u & 1
        V2 = (self.A_V2, self.A_V2B)
        Sc, Sn = (self.A_SA, self.A_SB) if stream == 0 else (self.A_SB, self.A_SA)
        Oc, Op = (self.A_OA, self.A_OB) if stream == 0 else (self.A_OB, self.A_OA)
        Qn = self.A_QB if stream == 0 else self.A_QA
        kb = p if stream == 0 else 1 - p
        v2 = V2[1-p] if stream == 0 else V2[p]
        ex = lambda i: a(f"v_exp_f32 v{Sc+i}, v{Sc+i}")
        cv = lambda k: a(f"v_cvt_pk_bf16_f32 v{P+k}, v{Sc+2*k}, v{Sc+2*k+1}")
        cvp = lambda k: a(f"v_cvt_pk_bf16_f32 v{P+k}, v{Sn+2*k}, v{Sn+2*k+1}")
        var = getattr(self, "sub_variant", None) or "v1"
        tn = (u+1)*2560
        def rdV():
            a(f"s_mov_b64 exec, s[{self.S_VMASK}:{self.S_VMASK+1}]")
            a(f"ds_read_b128 v[{self.A_V1}:{self.A_V1+3}], v{self.A_AV} offset:{tn}")
            R = V2[1-p]
            a(f"ds_read_b128 v[{R}:{R+3}], v{self.A_AV} offset:{tn+640}")
            a(f"s_mov_b64 exec, -1")
        def rdK(i):
            K = self.A_K + 8*p; toff = (u+2)*2560
            if i == 0: a(f"ds_read_b64 v[{K}:{K+1}], v{self.A_AK} offset:{toff}")
            if i == 1: a(f"ds_read_b64 v[{K+2}:{K+3}], v{self.A_AK} offset:{toff+256}")
            if i == 2: a(f"ds_read_b64 v[{K+4}:{K+5}], v{self.A_AK} offset:{toff+1024}")
        m1 = lambda: self.p2_smfma(0, Sn, kb, Qn)
        m2 = lambda: self.p2_smfma(1, Sn, kb, Qn)
        m4 = lambda: a(f"v_mfma_f32_32x32x16_bf16 v[{Op}:{Op+15}], v[{v2}:{v2+3}], v[{P+4}:{P+7}], v[{Op}:{Op+15}]")
        m3 = lambda: a(f"v_mfma_f32_32x32x16_bf16 v[{Oc}:{Oc+15}], v[{self.A_V1}:{self.A_V1+3}], v[{P}:{P+3}], v[{Oc}:{Oc+15}]")
        wt = lambda: a(f"s_waitcnt lgkmcnt(0)")
        if var == "pure":
            ex(0); cvp(6); ex(1); ex(2); cvp(7); ex(3); m1(); ex(4); cv(0); ex(5); ex(6); cv(1); ex(7); m2()
            ex(8); cv(2); ex(9); ex(10); cv(3); ex(11); m4(); ex(12); cv(4); ex(13); ex(14); cv(5); ex(15); m3()
        elif var == "v0":
            ex(0); cvp(6); ex(1); ex(2); cvp(7); ex(3); m1(); ex(4); cv(0); ex(5); ex(6); cv(1); ex(7); m2()
            ex(8); cv(2); ex(9); ex(10); cv(3); ex(11); m4(); ex(12); cv(4); ex(13); ex(14); cv(5); ex(15)
            if stream == 0: wt()
            m3()
            if stream == 1:
                rdV(); rdK(0); rdK(1); rdK(2)
        elif var == "v1":
            ex(0); cvp(6); ex(1); ex(2); cvp(7); ex(3); m1()
            if stream == 1: rdK(0)
            ex(4); cv(0); ex(5); ex(6); cv(1); ex(7); m2()
            if stream == 1: rdK(1)
            ex(8); cv(2); ex(9); ex(10); cv(3); ex(11); m4()
            if stream == 1: rdK(2)
            ex(12); cv(4); ex(13); ex(14); cv(5); ex(15)
            if stream == 0: wt()
            m3()
            if stream == 1: rdV()
        elif var == "v2":
            ex(0); cvp(6); ex(1); ex(2); cvp(7); ex(3); m1()
            if stream == 1: rdK(1)
            ex(4); cv(0); ex(5); ex(6); cv(1); ex(7); m2()
            if stream == 1: rdK(2)
            ex(8); cv(2); ex(9); ex(10); cv(3); ex(11); m4()
            if stream == 0: rdK(0)
            ex(12); cv(4); ex(13); ex(14); cv(5); ex(15)
            if stream == 0: a(f"s_waitcnt lgkmcnt(1)")
            m3()
            if stream == 1: rdV()
        elif var == "v3":
            ex(0); cvp(6); ex(1); ex(2); cvp(7); ex(3); m1()
            if stream == 1: rdK(0)
            ex(4); cv(0); ex(5); ex(6); cv(1); ex(7); m2()
            if stream == 1: rdK(1)
            ex(8); cv(2); ex(9); ex(10); cv(3); ex(11); m4()
            if stream == 1: rdK(2)
            ex(12); cv(4); ex(13); ex(14); cv(5); ex(15)
            if stream == 0: wt()
            m3()
            if stream == 1:
                a(f"ds_read_b128 v[{self.A_V1}:{self.A_V1+3}], v{self.A_AV} offset:{tn}")
                R = V2[1-p]
                a(f"ds_read_b128 v[{R}:{R+3}], v{self.A_AV} offset:{tn+640}")

    def prio_reg(self, stream):
        return self._prio[stream]

    def p2_check_all(self):
        a = self.a
        X = self.A_ALL; T = self.A_T
        L = "L_p2_all"; Lo = "L_p2_allok"
        a(f"s_mov_b32 s{S_T0}, 0")
        a.put(L)
        for r in range(4):
            a(f"v_subrev_u32 v{T+r}, s{S_TAG}, v{X+r}")
        a(f"v_cmp_le_u32 vcc, 16, v{T}")
        for r in range(1, 4):
            a(f"v_cmp_le_u32 s[{S_SAVE}:{S_SAVE+1}], 16, v{T+r}")
            a(f"s_nop 0")
            a(f"s_or_b64 vcc, vcc, s[{S_SAVE}:{S_SAVE+1}]")
        a(f"s_cbranch_vccz {Lo}")
        a(f"s_add_u32 s{S_T0}, s{S_T0}, 1")
        a(f"s_cmp_ge_u32 s{S_T0}, 0x40000")
        a(f"s_cbranch_scc1 {Lo}")
        a(f"buffer_load_dwordx4 v[{X}:{X+3}], v{self.A_ALLA}, s[{SRD_F}:{SRD_F+3}], 0 offen sc1")
        a(f"s_waitcnt vmcnt(0)")
        a(f"s_branch {L}")
        a.put(Lo)
        a(f"s_and_b32 s{S_T1}, s{S_GX}, 3")
        for r in range(1, 4):
            a(f"s_cmp_eq_u32 s{S_T1}, {r}")
            a(f"s_cselect_b64 s[{S_SAVE}:{S_SAVE+1}], -1, 0")
            a(f"v_cndmask_b32 v{T}, v{T}, v{T+r}, s[{S_SAVE}:{S_SAVE+1}]")
        a(f"v_cmp_ne_u32 vcc, s{S_XCC}, v{T}")
        a(f"s_mov_b32 s{S_T2}, 0x55555555")
        a(f"s_lshr_b32 s{S_T1}, s{S_GX}, 2")
        a(f"s_lshl_b32 s{S_T2}, s{S_T2}, s{S_T1}")
        a(f"s_and_b32 s{S_T3}, vcc_lo, s{S_T2}")
        a(f"s_and_b32 s{S_T4}, vcc_hi, s{S_T2}")
        a(f"s_or_b32 s{S_T3}, s{S_T3}, s{S_T4}")
        a(f"s_cmp_eq_u32 s{S_T3}, 0")
        a(f"s_cselect_b32 s{S_FAST}, {0 if 'nofast' in self.opt else 1}, 0")

    prio_low = (0, 2, 4, 7)
    def p2_setprio(self, lvl, tag):
        a = self.a
        L = f"L_p2_pr{tag}"
        a(f"s_cmp_ge_u32 s{S_W}, 4")
        a(f"s_cbranch_scc1 {L}")
        a(f"s_setprio {lvl}")
        a.put(L)

    def p2_dma(self, n):
        a = self.a
        for i in range(n):
            a(f"s_mov_b32 m0, s{self.S_DSO}")
            a(f"s_nop 0")
            a(f"buffer_load_dwordx4 v{self.A_DV}, s[{SRD_A}:{SRD_A+3}], s{self.S_DSO} offen sc1 lds")
            a(f"s_add_u32 s{self.S_DSO}, s{self.S_DSO}, 4096")

    def p2_setup(self):
        a = self.a
        T = self.A_T
        a(f"s_lshl_b32 s{S_HEAD}, s{S_GX}, 2")
        a(f"s_and_b32 s{S_T0}, s{S_GI}, 3")
        a(f"s_add_u32 s{S_HEAD}, s{S_HEAD}, s{S_T0}")
        a(f"s_lshr_b32 s{S_QB}, s{S_GI}, 2")
        a(f"s_mul_i32 s{S_T0}, s{S_HEAD}, 163840")
        a(f"s_add_u32 s{S_T0}, s{S_T0}, {hex(OFF_KV)}")
        a(f"s_add_u32 s{SRD_A}, s{S_WS}, s{S_T0}")
        a(f"s_addc_u32 s{SRD_A+1}, s{S_WS+1}, 0")
        a(f"s_mov_b32 s{SRD_A+2}, 163840")
        a(f"s_mov_b32 s{SRD_A+3}, 0x20000")
        a(f"s_lshl_b32 s{S_T0}, s{S_HEAD}, 6")
        a(f"s_lshl_b32 s{S_T1}, s{S_QB}, 3")
        a(f"s_add_u32 s{S_T0}, s{S_T0}, s{S_T1}")
        a(f"s_and_b32 s{S_T1}, s{S_W}, 3")
        a(f"s_lshl_b32 s{S_T1}, s{S_T1}, 1")
        a(f"s_add_u32 s{S_T0}, s{S_T0}, s{S_T1}")
        a(f"s_mul_i32 s{S_T0}, s{S_T0}, 1280")
        a(f"s_add_u32 s{S_T0}, s{S_T0}, {hex(OFF_Q)}")
        a(f"s_add_u32 s{SRD_W}, s{S_WS}, s{S_T0}")
        a(f"s_addc_u32 s{SRD_W+1}, s{S_WS+1}, 0")
        a(f"s_mov_b32 s{SRD_W+2}, 2560")
        a(f"s_mov_b32 s{SRD_W+3}, 0x20000")
        a(f"v_and_b32 v{T}, 31, v1")
        a(f"v_lshrrev_b32 v{T+1}, 5, v1")
        a(f"v_lshlrev_b32 v{T+2}, 3, v{T}")
        a(f"v_lshl_add_u32 v{T+4}, v{T+1}, 9, v{T+2}")
        a(f"v_lshlrev_b32 v{T+3}, 12, v{T+1}")
        a(f"v_add_u32 v{T+3}, v{T+3}, v{T+2}")
        a(f"v_lshlrev_b32 v{self.A_DV}, 4, v1")
        a(f"v_add_u32 v{self.A_ALLA}, {OFF_ALL}, v{self.A_DV}")
        a(f"s_lshr_b32 s{S_T0}, s{S_W}, 2")
        a(f"s_mul_i32 s{S_T0}, s{S_T0}, 81920")
        a(f"s_and_b32 s{S_T1}, s{S_W}, 3")
        a(f"s_lshl_b32 s{S_T1}, s{S_T1}, 10")
        a(f"s_add_u32 s{self.S_DSO}, s{S_T0}, s{S_T1}")
        for Q in (self.A_QA, self.A_QB):
            a(f"v_mov_b32 v{Q+6}, 0"); a(f"v_mov_b32 v{Q+7}, 0")
        for kb in range(2):
            a(f"v_mov_b32 v{self.A_K+8*kb+6}, 0"); a(f"v_mov_b32 v{self.A_K+8*kb+7}, 0")
        a(f"v_cmp_eq_u32 vcc, 20, v{T}")
        a(f"v_mov_b32 v{T+5}, 0x3f803f80")
        a(f"v_mul_u32_u24 v{T+6}, 320, v{T+1}")
        a(f"v_cndmask_b32 v{self.A_V1}, 0, v{T+5}, vcc")
        for r in range(1, 8):
            a(f"v_mov_b32 v{self.A_V1+r}, v{self.A_V1}")
        for r in range(4):
            a(f"v_mov_b32 v{self.A_V2B+r}, v{self.A_V1}")
        a(f"v_lshl_add_u32 v{self.A_AV}, v{T}, 4, v{T+6}")
        a(f"v_add_u32 v{self.A_AV}, 1280, v{self.A_AV}")
        a(f"v_add_u32 v{self.A_AK}, s{S_T0}, v{T+4}")
        a(f"v_add_u32 v{self.A_AV}, s{S_T0}, v{self.A_AV}")
        a(f"s_mov_b32 s{self.S_VMASK}, 0xfffff")
        a(f"s_mov_b32 s{self.S_VMASK+1}, 0xfffff")
        for r in range(16):
            a(f"v_mov_b32 v{self.A_OA+r}, 0"); a(f"v_mov_b32 v{self.A_OB+r}, 0")
        for r in range(8):
            a(f"v_mov_b32 v{self.A_P+r}, 0")
        for r in range(12, 16):
            a(f"v_mov_b32 v{self.A_SB+r}, 0")
        a(f"s_and_b32 s{S_T2}, s{S_W}, 3")
        a(f"s_lshr_b32 s{S_T3}, s{S_W}, 2")
        a(f"s_lshl_b32 s{S_T0}, s{S_QB}, 2")
        a(f"s_add_u32 s{S_T0}, s{S_T0}, s{S_T2}")
        a(f"s_mul_i32 s{S_T0}, s{S_T0}, 81920")
        a(f"s_lshl_b32 s{S_T1}, s{S_T3}, 11")
        a(f"s_add_u32 s{S_CNT}, s{S_T0}, s{S_T1}")
        a(f"v_bfe_u32 v{T+3+4}, v1, 4, 1")
        a(f"v_lshlrev_b32 v{T+7}, 10, v{T+7}")
        a(f"v_and_b32 v{T+6}, 15, v1")
        a(f"v_lshl_add_u32 v{T+7}, v{T+6}, 4, v{T+7}")
        a(f"s_mul_i32 s{S_T1}, s{S_HEAD}, 20")
        for g in range(3):
            D_ = self.A_OAD + g
            a(f"v_lshlrev_b32 v{T+6}, 2, v{T+1}")
            a(f"s_add_u32 s{S_T2}, s{S_T1}, {8*g}")
            a(f"v_add_u32 v{T+6}, s{S_T2}, v{T+6}")
            a(f"v_lshrrev_b32 v{D_}, 5, v{T+6}")
            a(f"v_lshlrev_b32 v{D_}, 12, v{D_}")
            a(f"v_bfe_u32 v{T+5}, v{T+6}, 3, 2")
            a(f"v_lshl_add_u32 v{D_}, v{T+5}, 8, v{D_}")
            a(f"v_and_b32 v{T+5}, 7, v{T+6}")
            a(f"v_lshl_add_u32 v{D_}, v{T+5}, 1, v{D_}")
            a(f"v_add_u32 v{D_}, v{D_}, v{T+7}")

    A_OAD = 140
    def p2(self):
        a = self.a
        T = self.A_T
        self.stamp(5)
        self.p2_wait()
        self.stamp(6)
        self.p2_dma(2)
        for qi, Q in enumerate((self.A_QA, self.A_QB)):
            a(f"buffer_load_dwordx2 v[{Q}:{Q+1}], v{T+4}, s[{SRD_W}:{SRD_W+3}], 0 offen offset:{1280*qi} sc1")
            a(f"buffer_load_dwordx2 v[{Q+2}:{Q+3}], v{T+4}, s[{SRD_W}:{SRD_W+3}], 0 offen offset:{1280*qi+256} sc1")
            a(f"buffer_load_dwordx2 v[{Q+4}:{Q+5}], v{T+3}, s[{SRD_W}:{SRD_W+3}], 0 offen offset:{1280*qi+1024} sc1")
        self.p2_dma(2)
        a(f"buffer_load_dwordx4 v[{self.A_ALL}:{self.A_ALL+3}], v{self.A_ALLA}, s[{SRD_F}:{SRD_F+3}], 0 offen sc1")
        self.p2_dma(4)
        a(f"s_waitcnt vmcnt(5)")
        a(f"s_barrier")
        self.stamp(7)
        self.p2_dma(1)
        self.p2_kreads(0, 0)
        self.p2_kreads(1, 2560)
        self.p2_vread(0, 0)
        self.p2_vread(1, 0)
        a(f"s_waitcnt lgkmcnt(0)")
        self.p2_smfma(0, self.A_SA, 0, self.A_QA); self.p2_smfma(1, self.A_SA, 0, self.A_QA)
        self.p2_unrolled()
        a.put("L_p2_done")
        a(f"s_setprio 0")
        P = self.A_P; SBr = self.A_SB
        a(f"s_waitcnt lgkmcnt(0)")
        a(f"v_cvt_pk_bf16_f32 v{P+6}, v{SBr+12}, v{SBr+13}")
        a(f"v_cvt_pk_bf16_f32 v{P+7}, v{SBr+14}, v{SBr+15}")
        a(f"s_nop 1")
        a(f"v_mfma_f32_32x32x16_bf16 v[{self.A_OB}:{self.A_OB+15}], v[{self.A_V2B}:{self.A_V2B+3}], v[{P+4}:{P+7}], v[{self.A_OB}:{self.A_OB+15}]")
        self.stamp(8)
        self.p2_epilogue()

    def p2_epilogue(self):
        a = self.a
        T = self.A_T
        self.srd(SRD_O, S_WS, OFF_O, SZ_O)
        a(f"s_mov_b32 s{self.S_SLOWDONE}, {1 if 'noslow' in self.opt else 0}")
        a(f"s_mov_b32 s{self.S_BIG}, {hex(f32(2.0**60))}")
        if "forceslow" in self.opt: a(f"s_mov_b32 s{self.S_BIG}, 0")
        a(f"s_nop 7"); a(f"s_nop 3")
        a(f"s_barrier")
        a(f"s_and_b32 s{S_T0}, s{S_W}, 3")
        a(f"s_lshr_b32 s{S_T1}, s{S_W}, 2")
        a(f"s_lshl_b32 s{S_T0}, s{S_T0}, 1")
        a(f"s_add_u32 s{S_T2}, s{S_T0}, s{S_T1}")
        a(f"s_xor_b32 s{S_T3}, s{S_T2}, 1")
        a(f"s_mul_i32 s{S_T2}, s{S_T2}, 3072")
        a(f"s_mul_i32 s{S_T3}, s{S_T3}, 3072")
        a(f"s_add_u32 s{S_T2}, s{S_T2}, 51200")
        a(f"s_add_u32 s{S_T3}, s{S_T3}, 51200")
        a(f"v_lshlrev_b32 v{T}, 4, v1")
        a(f"v_add_u32 v{T+1}, s{S_T2}, v{T}")
        a(f"v_add_u32 v{T+2}, s{S_T3}, v{T}")
        Lk1 = "L_p2e_k1"; Lj = "L_p2e_j"
        a(f"s_cmp_eq_u32 s{S_T1}, 1")
        a(f"s_cbranch_scc1 {Lk1}")
        for g in range(3):
            a(f"ds_write_b128 v{T+1}, v[{self.A_OB+4*g}:{self.A_OB+4*g+3}] offset:{1024*g}")
        a(f"s_branch {Lj}")
        a.put(Lk1)
        for g in range(3):
            a(f"ds_write_b128 v{T+1}, v[{self.A_OA+4*g}:{self.A_OA+4*g+3}] offset:{1024*g}")
        for r in range(12):
            a(f"v_mov_b32 v{self.A_OA+r}, v{self.A_OB+r}")
        a.put(Lj)
        a(f"s_waitcnt lgkmcnt(0)")
        a(f"s_barrier")
        O = self.A_OA; X = self.A_SA
        for g in range(3):
            a(f"ds_read_b128 v[{X+4*g}:{X+4*g+3}], v{T+2} offset:{1024*g}")
        a(f"s_waitcnt lgkmcnt(0)")
        for r in range(12):
            a(f"v_add_f32 v{O+r}, v{O+r}, v{X+r}")
        a.put("L_p2_fin")
        a(f"v_mov_b32 v{T}, v{O+8}")
        a(f"v_mov_b32 v{T+1}, v{O+8}")
        a(f"s_nop 1")
        a(f"v_permlane32_swap_b32 v{T}, v{T+1}")
        a(f"v_mul_f32 v{T+3}, 0, v{O}")
        for r in list(range(1, 8)):
            a(f"v_fmac_f32 v{T+3}, 0, v{O+r}")
        a(f"v_mov_b32 v{T+4}, 0")
        for r in range(8, 12):
            a(f"v_fmac_f32 v{T+4}, 0, v{O+r}")
        a(f"v_cmp_le_f32 vcc, {hex(f32(2.0**-60))}, v{T+1}")
        a(f"v_cmp_ge_f32 s[{S_SAVE}:{S_SAVE+1}], s{self.S_BIG}, v{T+1}")
        a(f"s_nop 0")
        a(f"s_and_b64 vcc, vcc, s[{S_SAVE}:{S_SAVE+1}]")
        a(f"v_cmp_eq_f32 s[{S_SAVE}:{S_SAVE+1}], 0, v{T+3}")
        a(f"s_nop 0")
        a(f"s_and_b64 vcc, vcc, s[{S_SAVE}:{S_SAVE+1}]")
        a(f"v_cmp_eq_f32 s[{S_SAVE}:{S_SAVE+1}], 0, v{T+4}")
        a(f"s_nop 0")
        a(f"s_or_b32 s{S_SAVE+1}, s{S_SAVE+1}, -1")
        a(f"s_and_b64 vcc, vcc, s[{S_SAVE}:{S_SAVE+1}]")
        a(f"s_or_b32 vcc_lo, vcc_lo, 0")
        a(f"s_cmp_eq_u32 s{self.S_SLOWDONE}, 1")
        a(f"s_cbranch_scc1 L_p2_ok")
        a(f"s_cmp_eq_u64 vcc, -1")
        a(f"s_cbranch_scc0 L_p2_slow")
        a.put("L_p2_ok")
        a(f"v_rcp_f32 v{T+2}, v{T+1}")
        a(f"s_nop 0")
        for r in range(12):
            a(f"v_mul_f32 v{O+r}, v{T+2}, v{O+r}")
        for g in range(3):
            a(f"v_cvt_pk_bf16_f32 v{O+4*g}, v{O+4*g}, v{O+4*g+1}")
            a(f"v_cvt_pk_bf16_f32 v{O+4*g+1}, v{O+4*g+2}, v{O+4*g+3}")
        for g in range(3):
            if g == 2: self.set_exec(0xffffffff)
            a(f"buffer_store_dwordx2 v[{O+4*g}:{O+4*g+1}], v{self.A_OAD+g}, s[{SRD_O}:{SRD_O+3}], s{S_CNT} offen sc1")
            if g == 2: a(f"s_mov_b64 exec, -1")
        a(f"s_branch L_p2_end")
        self.p2_slow()
        a.put("L_p2_end")

    S_SLOWDONE = 94; S_BIG = 95
    def p2_slow(self):
        a = self.a
        T = self.A_T; O = self.A_OA; S = self.A_SA; P = self.A_P
        K = self.A_K; Q = self.A_QA
        a.put("L_p2_slow")
        a(f"s_cmp_lt_u32 s{S_W}, 4")
        a(f"s_cbranch_scc1 L_p2s_q")
        for r in range(8):
            a(f"v_mov_b32 v{Q+r}, v{self.A_QB+r}")
        a.put("L_p2s_q")
        a(f"v_and_b32 v{T}, 31, v1")
        a(f"v_lshrrev_b32 v{T+1}, 5, v1")
        a(f"v_lshlrev_b32 v{T+2}, 3, v{T}")
        a(f"v_lshl_add_u32 v{T+3}, v{T+1}, 9, v{T+2}")
        a(f"v_mul_u32_u24 v{T+4}, 320, v{T+1}")
        a(f"v_lshl_add_u32 v{T+4}, v{T}, 4, v{T+4}")
        a(f"v_mov_b32 v{T+5}, 0xff800000")
        def loadk():
            a(f"buffer_load_dwordx2 v[{K}:{K+1}], v{T+3}, s[{SRD_A}:{SRD_A+3}], s{S_T1} offen sc1")
            a(f"buffer_load_dwordx2 v[{K+2}:{K+3}], v{T+3}, s[{SRD_A}:{SRD_A+3}], s{S_T1} offen offset:256 sc1")
            a(f"buffer_load_dwordx2 v[{K+4}:{K+5}], v{T+2}, s[{SRD_A}:{SRD_A+3}], s{S_T1} offen offset:1024 sc1")
        def smm():
            a(f"v_mfma_f32_32x32x16_bf16 v[{S}:{S+15}], v[{K}:{K+3}], v[{Q}:{Q+3}], 0")
            a(f"v_mfma_f32_32x32x16_bf16 v[{S}:{S+15}], v[{K+4}:{K+7}], v[{Q+4}:{Q+7}], v[{S}:{S+15}]")
            a(f"s_nop 7"); a(f"s_nop 7")
        a(f"s_mov_b32 s{S_T1}, 0")
        a.put("L_p2s_1")
        loadk()
        a(f"s_waitcnt vmcnt(0)")
        smm()
        for r in range(16):
            a(f"v_max_f32 v{T+5}, v{T+5}, v{S+r}")
        a(f"s_add_u32 s{S_T1}, s{S_T1}, 2560")
        a(f"s_cmp_lt_u32 s{S_T1}, 163840")
        a(f"s_cbranch_scc1 L_p2s_1")
        a(f"v_mov_b32 v{T+6}, v{T+5}")
        a(f"s_nop 1")
        a(f"v_permlane32_swap_b32 v{T+6}, v{T+5}")
        a(f"s_nop 1")
        a(f"v_max_f32 v{T+5}, v{T+5}, v{T+6}")
        for r in range(16):
            a(f"v_mov_b32 v{O+r}, 0")
        a(f"s_mov_b32 s{S_T1}, 0")
        a.put("L_p2s_2")
        loadk()
        a(f"s_mov_b64 exec, s[{self.S_VMASK}:{self.S_VMASK+1}]")
        a(f"buffer_load_dwordx4 v[{self.A_V1}:{self.A_V1+3}], v{T+4}, s[{SRD_A}:{SRD_A+3}], s{S_T1} offen offset:1280 sc1")
        a(f"buffer_load_dwordx4 v[{self.A_V2}:{self.A_V2+3}], v{T+4}, s[{SRD_A}:{SRD_A+3}], s{S_T1} offen offset:1920 sc1")
        a(f"s_mov_b64 exec, -1")
        a(f"s_waitcnt vmcnt(0)")
        smm()
        for r in range(16):
            a(f"v_sub_f32 v{S+r}, v{S+r}, v{T+5}")
        for r in range(16):
            a(f"v_exp_f32 v{S+r}, v{S+r}")
        a(f"s_nop 0")
        for k in range(8):
            a(f"v_cvt_pk_bf16_f32 v{P+k}, v{S+2*k}, v{S+2*k+1}")
        a(f"s_nop 1")
        a(f"v_mfma_f32_32x32x16_bf16 v[{O}:{O+15}], v[{self.A_V1}:{self.A_V1+3}], v[{P}:{P+3}], v[{O}:{O+15}]")
        a(f"v_mfma_f32_32x32x16_bf16 v[{O}:{O+15}], v[{self.A_V2}:{self.A_V2+3}], v[{P+4}:{P+7}], v[{O}:{O+15}]")
        a(f"s_add_u32 s{S_T1}, s{S_T1}, 2560")
        a(f"s_cmp_lt_u32 s{S_T1}, 163840")
        a(f"s_cbranch_scc1 L_p2s_2")
        a(f"s_nop 7"); a(f"s_nop 7")
        a(f"s_mov_b32 s{self.S_SLOWDONE}, 1")
        a(f"s_branch L_p2_fin")

    G_ACC = 4
    G_ACT = 52
    G_AM = 84
    G_DV = 2
    G_SA = 3
    S_RB = 49; S_J = 50
    def g2_wbase(self, phase, NT):
        return 88 if (phase == 3 or NT == 3) else 144

    def g2_wsetup(self, phase, srd, sreg, vreg):
        a = self.a
        if phase == 3: self.srd(srd, S_WS, OFF_WOP, SZ_WOP)
        else: self.srd(srd, S_WS, OFF_W2P, SZ_W2P)
        a(f"s_and_b32 s{S_T0}, s{S_W}, 3")
        a(f"s_mul_i32 s{S_T1}, s{S_T0}, 40")
        a(f"s_and_b32 s{S_T2}, s{S_GI}, 7")
        a(f"s_mul_i32 s{S_T2}, s{S_T2}, 5")
        a(f"s_add_u32 s{S_T1}, s{S_T1}, s{S_T2}")
        a(f"s_cmp_lt_u32 s{S_W}, 4")
        a(f"s_cselect_b32 s{S_T2}, 3, 0")
        a(f"s_add_u32 s{S_T1}, s{S_T1}, s{S_T2}")
        a(f"s_lshl_b32 s{sreg}, s{S_T1}, 10")
        a(f"v_lshlrev_b32 v{vreg}, 4, v1")

    def g2_wload1(self, phase, NT, step, t, srd, sreg, vreg):
        a = self.a
        R = self.g2_wbase(phase, NT) + 4*(step*NT + t)
        off = step*4*40*1024 + t*1024
        a(f"s_add_u32 s{S_T2}, s{sreg}, {off}")
        a(f"buffer_load_dwordx4 v[{R}:{R+3}], v{vreg}, s[{srd}:{srd+3}], s{S_T2} offen {self.ld_aux}")

    def g2_wloads_byclass(self, phase, listA, listB, srd, sreg, vreg, tag):
        a = self.a
        LA = f"L_{tag}_A"; LJ = f"L_{tag}_J"
        a(f"s_cmp_ge_u32 s{S_W}, 4")
        a(f"s_cbranch_scc1 {LA}")
        for (st, t) in listB: self.g2_wload1(phase, 2, st, t, srd, sreg, vreg)
        a(f"s_branch {LJ}")
        a.put(LA)
        for (st, t) in listA: self.g2_wload1(phase, 3, st, t, srd, sreg, vreg)
        a.put(LJ)

    def g2_adma(self, stage):
        a = self.a
        slot = (stage % 4) * 32768
        for q in range(4):
            a(f"s_add_u32 m0, s{S_M0A}, {slot + q*8192}")
            a(f"s_add_u32 s{S_T2}, s{S_M0A}, {stage*32768 + q*8192}")
            a(f"buffer_load_dwordx4 v{self.G_DV}, s[{SRD_A}:{SRD_A+3}], s{S_T2} offen {self.ld_aux} lds")

    def g2_reads(self, stage, u, st):
        a = self.a
        slot = stage % 4
        hi = slot >= 2
        if hi != self.g2_hi:
            for m in range(4):
                if hi: a(f"v_add_u32 v{self.G_AM+m}, 0x10000, v{self.G_AM+m}")
                else:  a(f"v_subrev_u32 v{self.G_AM+m}, 0x10000, v{self.G_AM+m}")
            self.g2_hi = hi
        off = (slot % 2) * 32768 + u*16384
        for m in range(4):
            R = self.G_ACT + 16*st + 4*m
            a(f"ds_read_b128 v[{R}:{R+3}], v{self.G_AM+m} offset:{off}")

    def g2_mfma(self, phase, NT, step, st):
        a = self.a
        for t in range(NT):
            W = self.g2_wbase(phase, NT) + 4*(step*NT + t)
            for m in range(4):
                A = self.G_ACC + 4*(m*3 + t)
                X = self.G_ACT + 16*st + 4*m
                a(f"v_mfma_f32_16x16x32_bf16 v[{A}:{A+3}], v[{W}:{W+3}], v[{X}:{X+3}], v[{A}:{A+3}]")

    def g2_main(self, phase, NT, nsteps):
        a = self.a
        NSTG = (nsteps + 1) // 2
        pre = min(3, NSTG)
        self.g2_hi = False
        if NT == 3 and "nog2prio" not in self.opt: a(f"s_setprio 1")
        self.g2_adma(0); self.g2_adma(1)
        a(f"s_waitcnt vmcnt(8)")
        E = self.G_ACT; A = self.G_ACC
        for t in range(NT):
            for half in range(2):
                R = E + 2*t + half
                a(f"v_lshlrev_b32 v{A+4*t+2*half}, 16, v{R}")
                a(f"v_and_b32 v{A+4*t+2*half+1}, 0xffff0000, v{R}")
                if phase == 5:
                    R2 = E + 6 + 2*t + half
                    a(f"v_lshlrev_b32 v{E+14}, 16, v{R2}")
                    a(f"v_and_b32 v{E+15}, 0xffff0000, v{R2}")
                    a(f"v_add_f32 v{A+4*t+2*half}, v{A+4*t+2*half}, v{E+14}")
                    a(f"v_add_f32 v{A+4*t+2*half+1}, v{A+4*t+2*half+1}, v{E+15}")
        self.g2_adma(2)
        if self.g2st: self.stamp(self.g2st)
        a(f"s_waitcnt vmcnt(10)")
        a(f"s_barrier")
        if self.g2st: self.stamp(self.g2st+1)
        self.g2_reads(0, 0, 0)
        for sg in range(NSTG):
            two = (2*sg + 1) < nsteps
            if sg == 0:
                a(f"s_waitcnt lgkmcnt(0)")
                self.g2_mfma(phase, NT, 0, 0)
            if sg + 1 < NSTG:
                out = 4 * max(0, min(NSTG, sg + pre) - (sg + 2))
                a(f"s_waitcnt vmcnt({out})")
                a(f"s_barrier")
            if two:
                self.g2_reads(sg, 1, 1)
                if sg > 0: a(f"s_waitcnt lgkmcnt(4)")
            elif sg > 0:
                a(f"s_waitcnt lgkmcnt(0)")
            if sg > 0: self.g2_mfma(phase, NT, 2*sg, 0)
            if sg + pre < NSTG:
                self.g2_adma(sg + pre)
            if two:
                if sg + 1 < NSTG:
                    self.g2_reads(sg+1, 0, 0)
                    a(f"s_waitcnt lgkmcnt(4)")
                else:
                    a(f"s_waitcnt lgkmcnt(0)")
                self.g2_mfma(phase, NT, 2*sg+1, 1)

    def g2_reduce(self, NT):
        a = self.a
        T = self.G_ACT
        cls = 0 if NT == 3 else 1
        a(f"s_and_b32 s{S_T1}, s{S_W}, 3")
        for m in range(1, 4):
            a(f"s_add_u32 s{S_T2}, s{S_T1}, {m}")
            a(f"s_and_b32 s{S_T2}, s{S_T2}, 3")
            a(f"s_mul_i32 s{S_T2}, s{S_T2}, 9216")
            a(f"s_add_u32 s{S_T2}, s{S_T2}, {cls*36864 + (m-1)*3072}")
            a(f"v_add_u32 v{T+m}, s{S_T2}, v{self.G_DV}")
        a(f"s_mul_i32 s{S_T2}, s{S_T1}, 9216")
        a(f"s_add_u32 s{S_T2}, s{S_T2}, {cls*36864}")
        a(f"v_add_u32 v{T}, s{S_T2}, v{self.G_DV}")
        a(f"s_barrier")
        for m in range(1, 4):
            for t in range(NT):
                A = self.G_ACC + 4*(m*3 + t)
                a(f"ds_write_b128 v{T+m}, v[{A}:{A+3}] offset:{t*1024}")
        a(f"s_waitcnt lgkmcnt(0)")
        a(f"s_barrier")
        for rel in range(3):
            for t in range(NT):
                A = self.G_ACC + 4*((rel+1)*3 + t)
                a(f"ds_read_b128 v[{A}:{A+3}], v{T} offset:{rel*3072 + t*1024}")
        a(f"s_waitcnt lgkmcnt(0)")
        for t in range(NT):
            for i in range(4):
                A = self.G_ACC + 4*t + i
                a(f"v_add_f32 v{A}, v{A}, v{A+12}")
                a(f"v_add_f32 v{A+24}, v{A+24}, v{A+36}")
            for i in range(4):
                A = self.G_ACC + 4*t + i
                a(f"v_add_f32 v{A}, v{A}, v{A+24}")

    def g2_setup(self, phase):
        a = self.a
        a(f"s_lshr_b32 s{S_T0}, s{S_GI}, 3")
        a(f"s_lshl_b32 s{S_T1}, s{S_GX}, 2")
        a(f"s_add_u32 s{self.S_RB}, s{S_T0}, s{S_T1}")
        a(f"s_and_b32 s{self.S_J}, s{S_GI}, 7")
        if phase == 3: off, per = OFF_O, 81920
        else: off, per = OFF_R, 54*4096
        a(f"s_mul_i32 s{S_T0}, s{self.S_RB}, {per}")
        a(f"s_add_u32 s{S_T0}, s{S_T0}, {hex(off)}")
        a(f"s_add_u32 s{SRD_A}, s{S_WS}, s{S_T0}")
        a(f"s_addc_u32 s{SRD_A+1}, s{S_WS+1}, 0")
        a(f"s_mov_b32 s{SRD_A+2}, {per}")
        a(f"s_mov_b32 s{SRD_A+3}, 0x20000")
        a(f"s_lshl_b32 s{S_M0A}, s{S_W}, 10")
        a(f"v_lshlrev_b32 v{self.G_DV}, 4, v1")
        a(f"s_and_b32 s{S_T0}, s{S_W}, 3")
        for m in range(4):
            a(f"s_add_u32 s{S_T1}, s{S_T0}, {m}")
            a(f"s_and_b32 s{S_T1}, s{S_T1}, 3")
            a(f"s_lshl_b32 s{S_T1}, s{S_T1}, 10")
            a(f"s_lshl_b32 s{S_T2}, s{S_T0}, 12")
            a(f"s_add_u32 s{S_T1}, s{S_T1}, s{S_T2}")
            a(f"v_add_u32 v{self.G_AM+m}, s{S_T1}, v{self.G_DV}")
        E = self.G_ACT
        a(f"s_lshl_b32 s{S_T0}, s{self.S_RB}, 6")
        a(f"s_and_b32 s{S_T1}, s{S_W}, 3")
        a(f"s_lshl_b32 s{S_T1}, s{S_T1}, 4")
        a(f"s_add_u32 s{S_T0}, s{S_T0}, s{S_T1}")
        a(f"v_and_b32 v{self.G_SA}, 15, v1")
        a(f"v_add_u32 v{self.G_SA}, s{S_T0}, v{self.G_SA}")
        a(f"v_mul_u32_u24 v{self.G_SA}, 1280, v{self.G_SA}")
        a(f"s_mul_i32 s{S_T0}, s{self.S_J}, 160")
        a(f"s_cmp_lt_u32 s{S_W}, 4")
        a(f"s_cselect_b32 s{S_T1}, 96, 0")
        a(f"s_add_u32 s{S_T0}, s{S_T0}, s{S_T1}")
        a(f"v_lshrrev_b32 v{E+12}, 4, v1")
        a(f"v_lshlrev_b32 v{E+12}, 3, v{E+12}")
        a(f"v_add_u32 v{E+12}, s{S_T0}, v{E+12}")
        a(f"v_add_u32 v{self.G_SA}, v{self.G_SA}, v{E+12}")
        if phase == 3:
            self.srd(SRD_T, S_X, 0, 2048*1280); aux_r = ""
        else:
            self.srd(SRD_T, S_WS, OFF_H, SZ_H); aux_r = self.ld_aux
        for t in range(3):
            a(f"buffer_load_dwordx2 v[{E+2*t}:{E+2*t+1}], v{self.G_SA}, s[{SRD_T}:{SRD_T+3}], 0 offen offset:{32*t} {aux_r}")
        if phase == 5:
            self.srd(SRD_T, S_B2, 0, 1280)
            for t in range(3):
                a(f"buffer_load_dwordx2 v[{E+6+2*t}:{E+7+2*t}], v{E+12}, s[{SRD_T}:{SRD_T+3}], 0 offen offset:{32*t}")
        for r in range(12, 48):
            a(f"v_mov_b32 v{self.G_ACC+r}, 0")

    def g2_epi(self, phase, NT):
        a = self.a
        T = self.G_ACT; A = self.G_ACC
        if phase == 3:
            self.srd_twin(S_WS, OFF_H, SZ_H)
        else:
            self.srd(SRD_O, S_OUT, 0, 2048*1280)
        for t in range(NT):
            a(f"v_cvt_pk_bf16_f32 v{A+4*t}, v{A+4*t}, v{A+4*t+1}")
            a(f"v_cvt_pk_bf16_f32 v{A+4*t+1}, v{A+4*t+2}, v{A+4*t+3}")
            if phase == 3: self.store_twin("buffer_store_dwordx2", f"v[{A+4*t}:{A+4*t+1}]", self.G_SA, "0", f"offset:{32*t}")
            else: a(f"buffer_store_dwordx2 v[{A+4*t}:{A+4*t+1}], v{self.G_SA}, s[{SRD_O}:{SRD_O+3}], 0 offen offset:{32*t} {self.out_aux}")
        if phase == 3:
            S = T + 22
            a(f"v_mov_b32 v{S}, 0"); a(f"v_mov_b32 v{S+1}, 0")
            for t in range(NT):
                for half in range(2):
                    R = A + 4*t + half
                    a(f"v_lshlrev_b32 v{T+20}, 16, v{R}")
                    a(f"v_and_b32 v{T+21}, 0xffff0000, v{R}")
                    a(f"v_add_f32 v{S}, v{S}, v{T+20}")
                    a(f"v_fmac_f32 v{S+1}, v{T+20}, v{T+20}")
                    a(f"v_add_f32 v{S}, v{S}, v{T+21}")
                    a(f"v_fmac_f32 v{S+1}, v{T+21}, v{T+21}")
            for op in ("v_permlane32_swap_b32", "v_permlane16_swap_b32"):
                a(f"v_mov_b32 v{S+2}, v{S}")
                a(f"v_mov_b32 v{S+3}, v{S+1}")
                a(f"s_nop 1")
                a(f"{op} v{S+2}, v{S}")
                a(f"{op} v{S+3}, v{S+1}")
                a(f"s_nop 1")
                a(f"v_add_f32 v{S}, v{S}, v{S+2}")
                a(f"v_add_f32 v{S+1}, v{S+1}, v{S+3}")
            a(f"s_lshl_b32 s{S_T0}, s{self.S_RB}, 6")
            a(f"s_and_b32 s{S_T1}, s{S_W}, 3")
            a(f"s_lshl_b32 s{S_T1}, s{S_T1}, 4")
            a(f"s_add_u32 s{S_T0}, s{S_T0}, s{S_T1}")
            a(f"v_and_b32 v{S+2}, 15, v1")
            a(f"v_add_u32 v{S+2}, s{S_T0}, v{S+2}")
            a(f"v_lshlrev_b32 v{S+2}, 7, v{S+2}")
            a(f"s_lshl_b32 s{S_T0}, s{self.S_J}, 4")
            a(f"s_add_u32 s{S_T0}, s{S_T0}, {hex(8 if NT == 2 else 0)}")
            a(f"v_add_u32 v{S+2}, s{S_T0}, v{S+2}")
            self.srd_twin(S_WS, OFF_PST, 2048*128)
            a(f"s_mov_b64 exec, 0xffff")
            self.store_twin("buffer_store_dwordx2", f"v[{S}:{S+1}]", S+2, "0")
            a(f"s_mov_b64 exec, -1")

    def g2(self, phase):
        a = self.a
        nsteps = 5 if phase == 3 else 14
        self.g2st = 15 if (str(phase) in self.opt_g2) else None
        L1 = f"L_g2p{phase}_n1"; Lj = f"L_g2p{phase}_j"
        a(f"s_cmp_lt_u32 s{S_W}, 4")
        a(f"s_cbranch_scc1 {L1}")
        for NT in (3, 2):
            self.g2_main(phase, NT, nsteps)
            if self.g2st: self.stamp(self.g2st+2)
            if NT == 3: a(f"s_setprio 0")
            a(f"s_nop 7")
            self.g2_reduce(NT)
            if self.g2st: self.stamp(self.g2st+3)
            self.g2_epi(phase, NT)
            if NT == 3:
                a(f"s_branch {Lj}")
                a.put(L1)
        a.put(Lj)

    def hook23(self):
        a = self.a
        a(f"v_lshlrev_b32 v{self.G_DV}, 4, v1")
        self.wo_from_lds()
        self.g2_setup(3)
    def hook34(self):
        a = self.a
        a(f"s_cmp_lt_u32 s{S_GI}, 28")
        a(f"s_cbranch_scc1 L_h34_skip")
        self.prefetch_w2_rest()
        a.put("L_h34_skip")
        self.p4_setup()
    def hook45(self):
        self.g2_setup(5)
        if "wbl2" in self.opt:
            a = self.a
            a(f"s_cmp_lg_u32 s{S_GI}, 31")
            a(f"s_cbranch_scc1 L_wbl2_skip")
            a(f"s_cmp_lg_u32 s{S_W}, 1")
            a(f"s_cbranch_scc1 L_wbl2_skip")
            a(f"buffer_wbl2 sc1")
            a.put("L_wbl2_skip")

    def wo_lds_base(self, dst):
        a = self.a
        a(f"s_sub_u32 s{S_T3}, s{S_W}, 4")
        a(f"s_mul_i32 s{S_T3}, s{S_T3}, 15360")
        a(f"s_cmp_eq_u32 s{S_W}, 7")
        a(f"s_cselect_b32 s{S_T3}, 81920, s{S_T3}")
        a(f"s_mul_i32 s{S_T4}, s{S_W}, 10240")
        a(f"s_add_u32 s{S_T4}, s{S_T4}, 97280")
        a(f"s_cmp_eq_u32 s{S_W}, 3")
        a(f"s_cselect_b32 s{S_T4}, 46080, s{S_T4}")
        a(f"s_cmp_lt_u32 s{S_W}, 4")
        a(f"s_cselect_b32 s{dst}, s{S_T4}, s{S_T3}")

    def wo_frag_off(self, NT, idx):
        return idx * 1024

    def wo_dma(self, lo, hi):
        a = self.a
        LA = f"L_wod{lo}_A"; LJ = f"L_wod{lo}_J"
        a(f"s_cmp_ge_u32 s{S_W}, 4")
        a(f"s_cbranch_scc1 {LA}")
        for NT, lab in ((2, None), (3, LA)):
            if lab:
                a(f"s_branch {LJ}")
                a.put(lab)
            for idx in range(lo, min(hi, 5*NT)):
                st, t = divmod(idx, NT)
                base = self.S_WOB if not (NT == 2 and idx >= 5) else self.S_WOB2
                a(f"s_add_u32 m0, s{base}, {idx*1024}")
                a(f"s_add_u32 s{S_T2}, s{self.S_WOS}, {st*4*40*1024 + t*1024}")
                a(f"buffer_load_dwordx4 v{self.A_DV}, s[{SRD_T}:{SRD_T+3}], s{S_T2} offen {self.ld_aux} lds")
        a.put(LJ)

    def wo_dma_cls(self, NT, lo, hi):
        a = self.a
        for idx in range(lo, min(hi, 5*NT)):
            st, t = divmod(idx, NT)
            base = self.S_WOB if not (NT == 2 and idx >= 5) else self.S_WOB2
            a(f"s_add_u32 m0, s{base}, {idx*1024}")
            a(f"s_add_u32 s{S_T2}, s{self.S_WOS}, {st*4*40*1024 + t*1024}")
            a(f"buffer_load_dwordx4 v{self.A_DV}, s[{SRD_T}:{SRD_T+3}], s{S_T2} offen {self.ld_aux} lds")

    S_WOB = 63; S_WOB2 = 64; S_WOS = 54
    def wo_setup(self):
        a = self.a
        self.g2_wsetup(3, SRD_T, self.S_WOS, self.A_DV)
        self.wo_lds_base(self.S_WOB)
        a(f"s_cmp_eq_u32 s{S_W}, 3")
        a(f"s_cselect_b32 s{self.S_WOB2}, {128000-5120}, s{self.S_WOB}")

    def wo_from_lds(self):
        a = self.a
        LA = "L_wol_A"; LJ = "L_wol_J"
        a(f"v_add_u32 v{self.G_AM}, s{self.S_WOBK}, v{self.G_DV}")
        a(f"v_add_u32 v{self.G_AM+1}, s{self.S_WOB2}, v{self.G_DV}")
        a(f"s_cmp_ge_u32 s{S_W}, 4")
        a(f"s_cbranch_scc1 {LA}")
        for NT, lab in ((2, None), (3, LA)):
            if lab:
                a(f"s_branch {LJ}")
                a.put(lab)
            for idx in range(5*NT):
                R = 88 + 4*idx
                ad = self.G_AM if not (NT == 2 and idx >= 5) else self.G_AM + 1
                a(f"ds_read_b128 v[{R}:{R+3}], v{ad} offset:{idx*1024}")
        a.put(LJ)
        a(f"s_waitcnt lgkmcnt(0)")

    def prefetch_wo(self):
        self.g2_wsetup(3, SRD_W, S_SW, 2)
        self.g2_wloads_byclass(3, [(s_, t) for s_ in range(5) for t in range(3)], [(s_, t) for s_ in range(5) for t in range(2)], SRD_W, S_SW, 2, "pfwo")
    def prefetch_w2_rest(self):
        self.g2_wsetup(5, SRD_W, S_SW, 2)
        self.g2_wloads_byclass(5, [(s_, t) for s_ in range(5) for t in range(3)], [], SRD_W, S_SW, 2, "pfw2")

    def p4_epi(self):
        a = self.a
        self.V_T = 2
        T = self.V_T; A = self.V_ACC; CSR = self.V_FR
        B1R = self.V_FR + 32
        a(f"s_cmp_eq_u32 s{S_NT}, 13")
        a(f"s_cselect_b32 s{S_T0}, s{S_WN}, 0")
        a(f"s_cmp_eq_u32 s{S_T0}, 1")
        a(f"s_cbranch_scc1 L_p4_skip")
        self.epi_T_common()
        for g in range(4):
            a(f"ds_read_b128 v[{B1R+4*g}:{B1R+4*g+3}], v{T+7} offset:{ST_B1-ST_CS+32*g}")
        for g in range(4):
            a(f"ds_read_b128 v[{B1R+16+4*g}:{B1R+16+4*g+3}], v{T+1} offset:{ST_B1-ST_CS+32*g}")
        if "rsc1" in self.opt: self.srd(SRD_O, S_WS, OFF_R, SZ_R)
        else: self.srd_twin(S_WS, OFF_R, SZ_R)
        a(f"s_lshl_b32 s{S_T0}, s{S_MT}, 1")
        a(f"s_add_u32 s{S_T0}, s{S_T0}, s{S_WM}")
        a(f"s_mul_i32 s{S_T0}, s{S_T0}, {54*4096}")
        a(f"s_lshl_b32 s{S_T1}, s{S_NT}, 2")
        a(f"s_lshl_b32 s{S_T2}, s{S_WN}, 1")
        a(f"s_add_u32 s{S_T1}, s{S_T1}, s{S_T2}")
        a(f"s_add_u32 s{S_T2}, s{S_T1}, s{S_WM}")
        a(f"s_xor_b32 s{S_T3}, s{S_WM}, 1")
        a(f"s_add_u32 s{S_T3}, s{S_T1}, s{S_T3}")
        a(f"s_lshl_b32 s{S_T2}, s{S_T2}, 12")
        a(f"s_lshl_b32 s{S_T3}, s{S_T3}, 12")
        a(f"s_add_u32 s{S_T4}, s{S_T0}, s{S_T2}")
        a(f"s_add_u32 s{S_T5}, s{S_T0}, s{S_T3}")
        a(f"v_bfe_u32 v{T+8}, v1, 4, 1")
        a(f"v_lshlrev_b32 v{T+8}, 10, v{T+8}")
        a(f"v_and_b32 v{T+9}, 15, v1")
        a(f"v_lshl_add_u32 v{T+8}, v{T+9}, 4, v{T+8}")
        a(f"v_lshl_add_u32 v{T+8}, v{T+6}, 8, v{T+8}")
        a(f"s_waitcnt lgkmcnt(0)")
        for tt in range(2):
            for q in range(2):
                for gp in range(2):
                    ab = f"v[{T+2+2*tt}:{T+3+2*tt}]"
                    for g in (2*gp, 2*gp+1):
                        for i in (0, 2):
                            r = A + 16*(2*tt+q) + 4*g + i
                            c = CSR + 16*q + 4*g + i; b1 = B1R + 16*q + 4*g + i
                            a(f"v_pk_fma_f32 v[{r}:{r+1}], v[{r}:{r+1}], {ab}, v[{b1}:{b1+1}] op_sel:[0,0,0] op_sel_hi:[1,0,1]")
                            a(f"v_pk_fma_f32 v[{r}:{r+1}], v[{c}:{c+1}], {ab}, v[{r}:{r+1}] op_sel:[0,1,0] op_sel_hi:[1,1,1]")
                            a(f"v_max_f32 v{r}, 0, v{r}")
                            a(f"v_max_f32 v{r+1}, 0, v{r+1}")
                            a(f"v_pk_mul_f32 v[{r}:{r+1}], v[{r}:{r+1}], v[{r}:{r+1}]")
                    r = A + 16*(2*tt+q) + 8*gp
                    a(f"v_cvt_pk_bf16_f32 v{r}, v{r}, v{r+1}")
                    a(f"v_cvt_pk_bf16_f32 v{r+1}, v{r+2}, v{r+3}")
                    a(f"v_cvt_pk_bf16_f32 v{r+2}, v{r+4}, v{r+5}")
                    a(f"v_cvt_pk_bf16_f32 v{r+3}, v{r+6}, v{r+7}")
                    a(f"s_nop 1")
                    a(f"v_permlane32_swap_b32 v{r}, v{r+2}")
                    a(f"v_permlane32_swap_b32 v{r+1}, v{r+3}")
                    if "rsc1" in self.opt:
                        a(f"buffer_store_dwordx4 v[{r}:{r+3}], v{T+8}, s[{SRD_O}:{SRD_O+3}], s{S_T4+q} offen offset:{2048*tt + 512*gp} sc1")
                    else:
                        self.store_twin("buffer_store_dwordx4", f"v[{r}:{r+3}]", T+8, f"s{S_T4+q}", f"offset:{2048*tt + 512*gp}")
        a.put("L_p4_skip")
        self.V_T = 148

    def p4_setup(self):
        a = self.a
        a(f"s_cmp_ge_u32 s{S_GI}, 28")
        a(f"s_cbranch_scc1 L_p4s_done")
        a(f"s_cmp_ge_u32 s{S_GI}, 14")
        a(f"s_cselect_b32 s{S_T0}, 1, 0")
        a(f"s_cselect_b32 s{S_T1}, 14, 0")
        a(f"s_sub_u32 s{S_NT}, s{S_GI}, s{S_T1}")
        a(f"s_lshl_b32 s{S_MT}, s{S_GX}, 1")
        a(f"s_add_u32 s{S_MT}, s{S_MT}, s{S_T0}")
        a(f"s_cmp_ge_u32 s{S_NT}, 10")
        a(f"s_cselect_b32 s{S_T0}, 10, 0")
        a(f"s_sub_u32 s{S_KK}, s{S_NT}, s{S_T0}")
        if "p4norot" in self.opt: a(f"s_mov_b32 s{S_KK}, 0")
        a(f"s_cmp_lt_u32 s{S_W}, 4")
        a(f"s_cbranch_scc1 L_p4s_compute")
        self.V_T = 16
        self.g1_setup_loader(3456)
        self.srd(SRD_A, S_WS, OFF_H, SZ_H)
        self.srd(SRD_W, S_W1, 0, 640*3456)
        T = self.V_T
        self.srd(SRD_T, S_B1, 0, 1728*2)
        a(f"s_sub_u32 s{S_T4}, s{S_W}, 4")
        a(f"s_lshl_b32 s{S_T4}, s{S_T4}, 5")
        a(f"v_and_b32 v{T+10}, 31, v1")
        a(f"v_add_u32 v{T+10}, s{S_T4}, v{T+10}")
        a(f"s_lshl_b32 s{S_T4}, s{S_NT}, 7")
        a(f"v_add_u32 v{T+11}, s{S_T4}, v{T+10}")
        a(f"v_lshlrev_b32 v{T+11}, 1, v{T+11}")
        a(f"buffer_load_ushort v{T+22}, v{T+11}, s[{SRD_T}:{SRD_T+3}], 0 offen")
        a(f"s_mov_b32 s{S_T3}, s{S_KK}")
        for sg in range(3):
            a(f"s_mul_i32 s{S_T4}, s{S_T3}, {64*3456}")
            a(f"s_add_u32 s{S_T4}, s{S_T4}, s{S_SW}")
            for q in range(4):
                a(f"s_add_u32 m0, s{S_M0A}, {sg*32768 + 16384 + q*4096}")
                a(f"s_add_u32 s{S_T2}, s{S_T4}, {q*16*3456}")
                a(f"buffer_load_dwordx4 v{self.V_OFFW}, s[{SRD_W}:{SRD_W+3}], s{S_T2} offen lds")
            a(f"s_add_u32 s{S_T3}, s{S_T3}, 1")
            a(f"s_cmp_eq_u32 s{S_T3}, 10")
            a(f"s_cselect_b32 s{S_T3}, 0, s{S_T3}")
        self.V_T = 148
        a(f"s_branch L_p4s_done")
        a.put("L_p4s_compute")
        self.g1_setup_compute()
        a.put("L_p4s_done")

    def p4(self):
        a = self.a
        a(f"s_cmp_ge_u32 s{S_GI}, 28")
        a(f"s_cbranch_scc1 L_p4_done")
        self.aux_A = self.ld_aux
        self.st1 = 15 if "p4s" in self.opt else None
        a(f"s_cmp_lt_u32 s{S_W}, 4")
        a(f"s_cbranch_scc1 L_p4_compute")
        self.V_T = 16
        for sg in range(3):
            a(f"s_lshl_b32 s{S_T4}, s{S_KK}, 7")
            a(f"s_add_u32 s{S_T4}, s{S_T4}, s{S_SA}")
            for q in range(4):
                a(f"s_add_u32 m0, s{S_M0A}, {sg*32768 + q*4096}")
                a(f"s_add_u32 s{S_T2}, s{S_T4}, {q*32*1280}")
                a(f"buffer_load_dwordx4 v{self.V_OFFA}, s[{SRD_A}:{SRD_A+3}], s{S_T2} offen {self.aux_A} lds")
            a(f"s_add_u32 s{S_KK}, s{S_KK}, 1")
            a(f"s_cmp_eq_u32 s{S_KK}, 10")
            a(f"s_cselect_b32 s{S_KK}, 0, s{S_KK}")
        a(f"s_mov_b32 s{S_SLOT}, {3*32768}")
        self.kk_wrap = 0
        self.b1_hook = True
        self.g1_loader(3456, "p4", "part")
        self.b1_hook = False
        self.V_T = 148
        a(f"s_branch L_p4_done")
        a.put("L_p4_compute")
        self.g1_compute("T", "p4", presetup=True)
        if "p4s" in self.opt: self.stamp(16)
        self.p4_epi()
        if "p4s" in self.opt: self.stamp(17)
        a.put("L_p4_done")

    def code_warm(self):
        a = self.a
        a(f"s_getpc_b64 s[{SRD_T}:{SRD_T+1}]")
        a.put("L_pc_here")
        a(f"s_sub_u32 s{SRD_T}, s{SRD_T}, L_pc_here-{NAME}")
        a(f"s_subb_u32 s{SRD_T+1}, s{SRD_T+1}, 0")
        a(f"s_mov_b32 s{SRD_T+2}, L_end-{NAME}")
        a(f"s_mov_b32 s{SRD_T+3}, 0x20000")
        a(f"v_lshlrev_b32 v254, 7, v0")
        for k in range(self.code_rounds):
            a(f"s_mov_b32 s{S_T0}, {32768*k}")
            a(f"buffer_load_dword v255, v254, s[{SRD_T}:{SRD_T+3}], s{S_T0} offen")

    def epoch_update(self):
        a = self.a
        a(f"s_or_b32 s{S_T0}, s2, s{S_W}")
        a(f"s_cmp_lg_u32 s{S_T0}, 0")
        a(f"s_cbranch_scc1 L_noepoch")
        a(f"v_mov_b32 v2, {OFF_EPOCH}")
        a(f"v_mov_b32 v3, s{S_TAG}")
        a(f"s_mov_b64 exec, 1")
        a(f"buffer_store_dword v3, v2, s[{SRD_F}:{SRD_F+3}], 0 offen sc1")
        a(f"s_mov_b64 exec, -1")
        a.put("L_noepoch")

    def epilogue_stamps(self):
        if getattr(self, "freeze", False): self.stamps = True
        if not self.stamps: return
        a = self.a
        if "dbg" in self.opt:
            a(f"s_or_b32 s{S_T0}, s2, s{S_W}")
            a(f"s_cmp_lg_u32 s{S_T0}, 0")
            a(f"s_cbranch_scc1 L_nodbg")
            self.srd(SRD_T, S_DBG, 0, 256)
            a(f"s_memrealtime s[100:101]")
            a(f"s_waitcnt lgkmcnt(0)")
            a(f"s_sub_u32 s{S_STAMP+15}, s100, s88")
            a(f"s_add_u32 s{S_STAMP+15}, s{S_STAMP+15}, s{S_STAMP}")
            a(f"v_mov_b32 v3, 0")
            a(f"s_mov_b64 exec, 1")
            for i in range(16):
                a(f"s_sub_u32 s{S_T1}, s{S_STAMP+i}, s{S_STAMP}")
                a(f"v_mov_b32 v2, s{S_T1}")
                a(f"buffer_store_dword v2, v3, s[{SRD_T}:{SRD_T+3}], 0 offen offset:{4*i}")
                a(f"s_nop 1")
            a(f"s_mov_b64 exec, -1")
            a.put("L_nodbg")
        a(f"s_waitcnt lgkmcnt(0)")
        a(f"s_lshl_b32 s{S_T0}, s2, 3")
        a(f"s_add_u32 s{S_T0}, s{S_T0}, s{S_W}")
        a(f"s_lshl_b32 s{S_T0}, s{S_T0}, 7")
        a(f"s_add_u32 s{S_T0}, s{S_T0}, 0x80000")
        a(f"v_mov_b32 v3, s{S_T0}")
        a(f"s_mov_b64 exec, 1")
        a(f"s_memrealtime s[100:101]")
        a(f"s_waitcnt lgkmcnt(0)")
        a(f"s_sub_u32 s{S_T1}, s100, s88")
        a(f"v_mov_b32 v2, s{S_T1}")
        a(f"buffer_store_dword v2, v3, s[{SRD_F}:{SRD_F+3}], 0 offen offset:{4*31}")
        a(f"v_mov_b32 v2, s88")
        a(f"buffer_store_dword v2, v3, s[{SRD_F}:{SRD_F+3}], 0 offen offset:{4*30}")
        for i in range(self.nstamp):
            a(f"s_sub_u32 s{S_T1}, s{S_STAMP+i}, s{S_STAMP}")
            a(f"v_mov_b32 v2, s{S_T1}")
            a(f"buffer_store_dword v2, v3, s[{SRD_F}:{SRD_F+3}], 0 offen offset:{4*i}")
            a(f"s_nop 1")
        a(f"s_mov_b64 exec, -1")

    def build(self):
        a = self.a
        self.prologue()
        self.p1()
        self.p2_setup()
        self.p2_wait_prep()
        self.p1_signal()
        if self.stop_after != "p1":
            self.p2()
            if self.stop_after != "p2":
                self.V_S = 66
                self.group_barrier(0, "gb23", S_QB, S_HEAD, hook=self.hook23)
                self.stamp(9)
                self.g2(3)
                self.stamp(10)
                if self.stop_after != "p3":
                    self.group_barrier(1, "gb34", hook=self.hook34, local=True)
                    self.stamp(11)
                    self.p4()
                    self.stamp(12)
                    if self.stop_after != "p4":
                        self.group_barrier(2, "gb45", hook=self.hook45, local=True)
                        self.stamp(13)
                        self.g2(5)
            a(f"s_waitcnt vmcnt(0)")
            self.stamp(14)
        if "delay" in self.opt:
            for i in range(4): a("s_sleep 127")
        self.epoch_update()
        self.epilogue_stamps()
        a(f"s_waitcnt vmcnt(0)")
        a.put("L_end")
        a("s_endpgm")
        return a

import struct
def f32(x):
    return struct.unpack("<I", struct.pack("<f", x))[0]

HEADER = open("sequential_preLN__mha_block__dense_activation_squared_relu__prompt.s.ref").read().split("; Override launch geometry")[0]

def wrap(body, lds=163840, vgpr=256):
    s = HEADER
    s += f"; @launch grid=(256,1,1) block=(512,1,1) lds={lds}\n"
    s += '.amdgcn_target "amdgcn-amd-amdhsa--gfx950"\n.text\n'
    s += f".globl {NAME}\n.p2align 8\n.type {NAME},@function\n{NAME}:\n"
    s += body
    s += f"""
.section .rodata,"a"
.p2align 6
.amdhsa_kernel {NAME}
  .amdhsa_next_free_vgpr {vgpr}
  .amdhsa_next_free_sgpr 102
  .amdhsa_accum_offset {vgpr}
  .amdhsa_group_segment_fixed_size 0
  .amdhsa_kernarg_size 88
  .amdhsa_user_sgpr_count 2
  .amdhsa_user_sgpr_kernarg_segment_ptr 1
  .amdhsa_system_sgpr_workgroup_id_x 1
.end_amdhsa_kernel
"""
    return s

if __name__ == "__main__":
    import argparse
    ap = argparse.ArgumentParser()
    ap.add_argument("-o", default="out.s")
    ap.add_argument("--stop", default=None)
    ap.add_argument("--stamps", action="store_true")
    ap.add_argument("--opt", default="")
    ap.add_argument("--plow", default=None)
    args = ap.parse_args()
    g = Gen(stop_after=args.stop, stamps=args.stamps, opt=[o for o in args.opt.split(',') if o])
    if "ws1" in g.opt: g.warm_slots = {'dst': 48, 'w1': 52}
    if "ws2" in g.opt: g.warm_slots = {'w1': 48, 'dst': 52}
    if "ws3" in g.opt: g.warm_slots = {'w1': 48, 'dst': 49, 'wp': 50}
    if "ws0" in g.opt: g.warm_slots = {}
    if "low2" in g.opt: g.low_tiles = 2
    if "low3" in g.opt: g.low_tiles = 3
    if args.plow is not None: g.prio_low = tuple(int(x) for x in args.plow.split(",") if x)
    a = g.build()
    rep = check(a.L)
    for r in rep: print(r)
    open(args.o, "w").write(wrap(a.text()))
    print("wrote", args.o, len(a.L), "lines;", len(rep), "hazards")
```

```python
import sys, math
sys.path.insert(0, "gen")
from asmlib import Asm, vr, sr, check

NAME = "sequential_preLN__mha_block__dense_activation_squared_relu__prompt_kernel"

OFF_EPOCH = 0
OFF_ALL   = 0x1000
OFF_GB    = 0x50000
OFF_MB1   = 65536
OFF_GR    = 0x68000
OFF_PST   = 0xC0000
OFF_Q     = 0x100000
OFF_KV    = 0x400000
OFF_O     = 0xA00000
OFF_H     = 0xD00000
OFF_R     = 0x1000000
OFF_WOP   = 0x1700000
OFF_W2P   = 0x1800000
SZ_Q = 32*64*1280
SZ_KV = 32*64*2560
SZ_O = 32*20*4096
SZ_H = 2048*1280
SZ_R = 32*54*4096
SZ_WOP = 20*40*1024
SZ_W2P = 54*40*1024

S_KA = 0; S_WG = 2; S_W = 3
S_X = 4; S_WQKV = 6; S_WO = 8; S_W1 = 12; S_B1 = 14; S_W2 = 16; S_B2 = 18; S_OUT = 20; S_DBG = 22; S_WS = 24
S_TAG = 26; S_GX = 27
SRD_A = 28; SRD_W = 32; SRD_O = 36; SRD_F = 40; SRD_T = 44
S_GI = 48
S_MT = 49; S_NT = 50; S_KK = 51; S_CNT = 52; S_SLOT = 53
S_SA = 54; S_SW = 55; S_T0 = 56; S_T1 = 57; S_T2 = 58; S_T3 = 59; S_T4 = 60; S_T5 = 61
S_M0A = 62; S_WM = 63; S_WN = 64; S_DELTA = 65; S_ONES = 66; S_ROT4 = 67; S_RLW = 68; S_RSLOT = 69; S_HEAD = 66; S_QB = 67
S_STAMP = 70
S_SAVE = 90
S_OOB = 53
S_XCC = 10; S_FAST = 11
SRD_P = 96

LDS_STATS = 0
ST_PX, ST_PQ, ST_PC, ST_AA, ST_BB, ST_CS, ST_B1 = 0, 4096, 8192, 9216, 9728, 10240, 10752
LDS_RL = 32768

class Gen:
    def __init__(self, stop_after=None, stamps=False, opt=()):
        self.opt = set(opt)
        self.a = Asm()
        self.stop_after = stop_after
        self.stamps = stamps
        self.nstamp = 0
        self.code_rounds = 2
        self.out_aux = 'nt' if 'outnt' in self.opt else ('sc1' if 'outsc1' in self.opt else '')
        self.evtag = 'u'
        self.kk_wrap = 2
        global LDS_STATS, LDS_RL
        if "ns5" not in self.opt:
            self.NSLOT = 4; LDS_STATS = 131072; LDS_RL = 131072 + 12288
        else:
            self.NSLOT = 5; LDS_STATS = 0; LDS_RL = 32768
        self.fast_aux = "nt" if "fnt" in self.opt else ("sc0" if "fsc0" in self.opt else ("sc0 nt" if "fsc0nt" in self.opt else ""))
        self.opt_g2 = "3" if "g2s3" in self.opt else ("5" if "g2s5" in self.opt else "")
        self.ld_aux = "" if "plainld" in self.opt else "sc1"

    def srd(self, dst, base_s, off, size):
        a = self.a
        if off:
            a(f"s_add_u32 s{dst}, s{base_s}, {hex(off)}")
            a(f"s_addc_u32 s{dst+1}, s{base_s+1}, 0")
        else:
            a(f"s_mov_b32 s{dst}, s{base_s}")
            a(f"s_mov_b32 s{dst+1}, s{base_s+1}")
        a(f"s_mov_b32 s{dst+2}, {hex(size)}")
        a(f"s_mov_b32 s{dst+3}, 0x20000")

    def csel(self, dst, x, y):
        self.a(f"s_mov_b32 s{dst}, {y}")
        self.a(f"s_cselect_b32 s{dst}, {x}, s{dst}")

    def withT(self, T, fn, *args, **kw):
        old = self.V_T; self.V_T = T
        r = fn(*args, **kw)
        self.V_T = old
        return r

    def srd_twin(self, base_s, off, size):
        a = self.a
        self.srd(SRD_O, base_s, off, size)
        a(f"s_mov_b32 s{SRD_P}, s{SRD_O}")
        a(f"s_mov_b32 s{SRD_P+1}, s{SRD_O+1}")
        a(f"s_mov_b32 s{SRD_P+3}, 0x20000")
        a(f"s_cmp_eq_u32 s{S_FAST}, 1")
        a(f"s_cselect_b32 s{SRD_P+2}, s{SRD_O+2}, 0")
        a(f"s_cselect_b32 s{SRD_O+2}, 0, s{SRD_O+2}")
    def store_twin(self, op, data, vaddr, soff, extra=""):
        a = self.a
        a(f"{op} {data}, v{vaddr}, s[{SRD_O}:{SRD_O+3}], {soff} offen {extra} sc1")
        a(f"{op} {data}, v{vaddr}, s[{SRD_P}:{SRD_P+3}], {soff} offen {extra} {self.fast_aux}")

    def set_exec(self, mask):
        mask = int(str(mask), 0) & 0xFFFFFFFFFFFFFFFF
        if mask == 0xFFFFFFFFFFFFFFFF: self.a("s_mov_b64 exec, -1")
        elif mask < 0x80000000: self.a(f"s_mov_b64 exec, {hex(mask)}")
        else:
            self.a(f"s_mov_b32 exec_lo, {hex(mask & 0xffffffff)}")
            self.a(f"s_mov_b32 exec_hi, {hex(mask >> 32)}")

    def stamp(self, i=None):
        if not self.stamps: return
        if i is None: return
        self.nstamp = max(self.nstamp, i + 1)
        self.a(f"s_memtime s[100:101]")
        self.a(f"s_waitcnt lgkmcnt(0)")
        self.a(f"s_mov_b32 s{S_STAMP+i}, s100")

    def prologue(self):
        a = self.a
        a(f"s_cmp_ge_u32 s2, 256")
        a(f"s_cbranch_scc1 L_end")
        self.stamp(0)
        if self.stamps: a(f"s_memrealtime s[88:89]")
        a(f"s_load_dwordx16 s[4:19], s[0:1], 0")
        a(f"s_load_dwordx4 s[20:23], s[0:1], 64")
        a(f"s_load_dwordx2 s[24:25], s[0:1], 80")
        if "nowarm" not in self.opt: self.code_warm()
        a(f"v_lshrrev_b32 v2, 6, v0")
        a(f"v_and_b32 v1, 63, v0")
        a(f"v_readfirstlane_b32 s{S_W}, v2")
        a(f"s_and_b32 s{S_GX}, s2, 7")
        a(f"s_lshr_b32 s{S_GI}, s2, 3")
        a(f"v_mov_b32 v{self.V_S+2}, 0")
        a(f"v_mov_b32 v{self.V_S+5}, 0")
        a(f"v_mov_b32 v{self.V_S+20}, 0")
        a(f"v_mov_b32 v{self.V_S+21}, 0")
        a(f"s_lshr_b32 s{S_WM}, s{S_W}, 2")
        a(f"s_and_b32 s{S_WN}, s{S_W}, 3")

    def finish_tag(self):
        a = self.a
        a(f"s_waitcnt lgkmcnt(0)")
        a(f"s_mul_i32 s{S_TAG}, s{S_TAG}, 0x9E3779B1")
        a(f"s_add_u32 s{S_TAG}, s{S_TAG}, 0x7F4A7C15")

    V_OFFA = 2; V_OFFW = 3
    V_AA = 2
    V_AWA = 6; V_AWB = 7
    V_AW2A = 0; V_AW2B = 1
    V_CSA = 8
    V_CSD = 12
    V_FR = 16
    V_ACC = 80
    V_T = 148
    V_S = 152
    POLLW = 0
    SIGW = 7
    V_LA = 4
    V_LS = 8
    V_LD = 20
    V_LU = 40
    NSLOT = 5

    def g1_setup_loader(self, WS):
        a = self.a
        T = self.V_T
        a(f"s_sub_u32 s{S_T4}, s{S_W}, 4")
        a(f"v_lshrrev_b32 v{T}, 4, v1")
        a(f"s_lshl_b32 s{S_T0}, s{S_T4}, 2")
        a(f"v_add_u32 v{T+1}, s{S_T0}, v{T}")
        a(f"v_and_b32 v{T+1}, 7, v{T+1}")
        a(f"v_and_b32 v{T+2}, 7, v1")
        a(f"v_xor_b32 v{T+1}, v{T+1}, v{T+2}")
        a(f"v_lshlrev_b32 v{T+1}, 4, v{T+1}")
        a(f"v_lshrrev_b32 v{T+2}, 3, v1")
        a(f"v_mul_u32_u24 v{T+2}, 1280, v{T+2}")
        a(f"v_add_u32 v{self.V_OFFA}, v{T+1}, v{T+2}")
        a(f"v_lshlrev_b32 v{T+1}, 2, v{T}")
        a(f"v_and_b32 v{T+2}, 15, v1")
        a(f"v_xor_b32 v{T+1}, v{T+1}, v{T+2}")
        a(f"v_lshlrev_b32 v{T+1}, 4, v{T+1}")
        a(f"v_mul_u32_u24 v{T+2}, {WS}, v{T}")
        a(f"v_add_u32 v{self.V_OFFW}, v{T+1}, v{T+2}")
        a(f"s_lshl_b32 s{S_T0}, s{S_MT}, 7")
        a(f"s_lshl_b32 s{S_T1}, s{S_T4}, 3")
        a(f"s_add_u32 s{S_T0}, s{S_T0}, s{S_T1}")
        a(f"s_mul_i32 s{S_SA}, s{S_T0}, 1280")
        a(f"s_mul_i32 s{S_T0}, s{S_T4}, {4*WS}")
        a(f"s_lshl_b32 s{S_T1}, s{S_NT}, 8")
        a(f"s_add_u32 s{S_SW}, s{S_T0}, s{S_T1}")
        a(f"s_lshl_b32 s{S_M0A}, s{S_T4}, 10")
        a(f"s_mov_b32 s{S_SLOT}, 0")

    def g1_dma1(self, WS, q):
        a = self.a
        if q == 0:
            a(f"s_lshl_b32 s{S_T2}, s{S_KK}, 7")
            a(f"s_add_u32 s{S_T2}, s{S_T2}, s{S_SA}")
            a(f"s_add_u32 m0, s{S_SLOT}, s{S_M0A}")
            a(f"s_mul_i32 s{S_T3}, s{S_KK}, {64*WS}")
        elif q == 4:
            a(f"s_add_u32 s{S_T2}, s{S_T3}, s{S_SW}")
            a(f"s_add_u32 m0, m0, 4096")
            a(f"s_nop 0")
        else:
            a(f"s_add_u32 m0, m0, 4096")
            a(f"s_add_u32 s{S_T2}, s{S_T2}, {32*1280 if q < 4 else 16*WS}")
        if q < 4:
            a(f"buffer_load_dwordx4 v{self.V_OFFA}, s[{SRD_A}:{SRD_A+3}], s{S_T2} offen {self.aux_A} lds")
        else:
            a(f"buffer_load_dwordx4 v{self.V_OFFW}, s[{SRD_W}:{SRD_W+3}], s{S_T2} offen lds")
        if q == 7:
            a(f"s_add_u32 s{S_KK}, s{S_KK}, 1")
            a(f"s_cmp_eq_u32 s{S_KK}, 10")
            a(f"s_cselect_b32 s{S_KK}, {self.kk_wrap}, s{S_KK}")
            a(f"s_add_u32 s{S_SLOT}, s{S_SLOT}, 32768")
            a(f"s_cmp_eq_u32 s{S_SLOT}, {self.NSLOT*32768}")
            a(f"s_cselect_b32 s{S_SLOT}, 0, s{S_SLOT}")

    def g1_dma_stage(self, WS):
        for q in range(8): self.g1_dma1(WS, q)

    def slot_next(self):
        a = self.a
        a(f"s_add_u32 s{S_RSLOT}, s{S_RSLOT}, 1")
        a(f"s_cmp_eq_u32 s{S_RSLOT}, {self.NSLOT}")
        a(f"s_cselect_b32 s{S_RSLOT}, 0, s{S_RSLOT}")
        a(f"s_cmp_eq_u32 s{S_RSLOT}, {self.NSLOT-1}")
        self.csel(S_DELTA, hex((-(self.NSLOT-1)*32768) & 0xffffffff), 32768)

    def g1_loader(self, WS, tag, mode):
        a = self.a
        T = self.V_T
        pre = self.NSLOT - 1
        nx = 1 if mode == "gran" else 4
        if mode == "gran":
            for q in range(8):
                self.g1_dma1(WS, q)
            a(f"s_waitcnt vmcnt(16)")
            if "p1s" in self.opt: self.stamp(18)
            a(f"s_barrier")
            if pre == 4:
                for q in range(8):
                    self.g1_dma1(WS, q)
            self.tag_ready()
        else:
            a(f"s_waitcnt vmcnt(8)")
            a(f"s_barrier")
            if pre == 4:
                for q in range(8):
                    self.g1_dma1(WS, q)
                a(f"s_waitcnt vmcnt(8)")
            else:
                a(f"s_waitcnt vmcnt(4)")
        a(f"s_mov_b32 s{S_CNT}, 0")
        L1 = f"L_{tag}_lloop"
        a.put(L1)
        a(f"s_add_u32 s{S_CNT}, s{S_CNT}, 1")
        a(f"s_waitcnt vmcnt({8*(pre-2)})")
        a(f"s_barrier")
        for q in range(8):
            if "nodma" not in self.opt: self.g1_dma1(WS, q)
        a(f"s_cmp_lt_u32 s{S_CNT}, {10-pre}")
        a(f"s_cbranch_scc1 {L1}")
        a(f"s_sub_u32 s{S_T4}, s{S_W}, 4")
        a(f"s_lshl_b32 s{S_T0}, s{S_T4}, 5")
        a(f"v_and_b32 v{T}, 31, v1")
        a(f"v_add_u32 v{T}, s{S_T0}, v{T}")
        a(f"s_lshl_b32 s{S_T1}, s{S_MT}, 7")
        a(f"v_add_u32 v{T+1}, s{S_T1}, v{T}")
        if mode == "gran":
            a(f"v_lshlrev_b32 v{T+1}, 4, v{T+1}")
            a(f"v_add_u32 v{T+1}, {hex(OFF_GR)}, v{T+1}")
            a(f"buffer_load_dwordx4 v[{T+4}:{T+7}], v{T+1}, s[{SRD_F}:{SRD_F+3}], 0 offen sc1")
        else:
            a(f"v_lshlrev_b32 v{T+1}, 7, v{T+1}")
            a(f"v_lshrrev_b32 v{T+2}, 5, v1")
            a(f"v_lshl_add_u32 v{T+1}, v{T+2}, 6, v{T+1}")
            a(f"v_add_u32 v{T+1}, {hex(OFF_PST)}, v{T+1}")
            for q in range(4):
                a(f"buffer_load_dwordx4 v[{T+4+4*q}:{T+7+4*q}], v{T+1}, s[{SRD_F}:{SRD_F+3}], 0 offen offset:{16*q} {self.ld_aux}")
        late = 0
        if pre == 4:
            a(f"s_waitcnt vmcnt({16+nx})")
            a(f"s_barrier")
        a(f"s_waitcnt vmcnt({8+nx})")
        a(f"s_barrier")
        rl = 0
        if mode == "gran":
            self.withT(T + 24, self.relayout_load)
            rl = 4
        a(f"s_waitcnt vmcnt({nx+rl})")
        a(f"s_barrier")
        if mode != "gran" and "now2rest" not in self.opt:
            self.g2_wsetup(5, SRD_T, S_SW, T + 24)
            for s_ in range(5):
                for t in range(3):
                    self.g2_wload1(5, 3, s_, t, SRD_T, S_SW, T + 24)
            late = 15
        a(f"s_barrier")
        a(f"s_waitcnt vmcnt({late+rl})")
        if mode == "gran":
            Lp = f"L_{tag}_gpoll"; Lo = f"L_{tag}_gok"
            a(f"s_mov_b32 s{S_T0}, 0")
            a.put(Lp)
            a(f"v_cmp_ne_u32 vcc, s{S_TAG}, v{T+6}")
            a(f"v_cmp_ne_u32 s[{S_SAVE}:{S_SAVE+1}], s{S_TAG}, v{T+7}")
            a(f"s_nop 1")
            a(f"s_or_b64 vcc, vcc, s[{S_SAVE}:{S_SAVE+1}]")
            a(f"s_cbranch_vccz {Lo}")
            a(f"s_add_u32 s{S_T0}, s{S_T0}, 1")
            a(f"s_cmp_ge_u32 s{S_T0}, 0x40000")
            a(f"s_cbranch_scc1 {Lo}")
            a(f"buffer_load_dwordx4 v[{T+4}:{T+7}], v{T+1}, s[{SRD_F}:{SRD_F+3}], 0 offen sc1")
            a(f"s_waitcnt vmcnt(0)")
            a(f"s_branch {Lp}")
            a.put(Lo)
            A_, B_ = T+4, T+5
        else:
            for q in range(1, 4):
                for i in range(4):
                    a(f"v_add_f32 v{T+4+i}, v{T+4+i}, v{T+4+4*q+i}")
            a(f"v_add_f32 v{T+4}, v{T+4}, v{T+6}")
            a(f"v_add_f32 v{T+5}, v{T+5}, v{T+7}")
            a(f"v_mov_b32 v{T+6}, v{T+4}")
            a(f"v_mov_b32 v{T+7}, v{T+5}")
            a(f"s_nop 1")
            a(f"v_permlane32_swap_b32 v{T+6}, v{T+4}")
            a(f"v_permlane32_swap_b32 v{T+7}, v{T+5}")
            a(f"s_nop 1")
            a(f"v_add_f32 v{T+4}, v{T+4}, v{T+6}")
            a(f"v_add_f32 v{T+5}, v{T+5}, v{T+7}")
            self.ab_from_sums(T+4, T+5, T+8)
            A_, B_ = T+9, T+8
        a(f"v_lshlrev_b32 v{T}, 2, v{T}")
        a(f"v_add_u32 v{T}, {LDS_STATS}, v{T}")
        a(f"ds_write_b32 v{T}, v{A_} offset:{ST_AA}")
        a(f"ds_write_b32 v{T}, v{B_} offset:{ST_BB}")
        if getattr(self, "b1_hook", False):
            a(f"v_lshlrev_b32 v{T+22}, 16, v{T+22}")
            a(f"ds_write_b32 v{T}, v{T+22} offset:{ST_B1}")
        a(f"s_waitcnt lgkmcnt(0)")
        a(f"s_barrier")

    def ab_from_sums(self, sx, sq, o):
        a = self.a
        a(f"v_mul_f32 v{o}, {hex(f32(1.0/640))}, v{sx}")
        a(f"v_mul_f32 v{o+1}, {hex(f32(1.0/640))}, v{sq}")
        a(f"v_fma_f32 v{o+1}, -v{o}, v{o}, v{o+1}")
        a(f"v_max_f32 v{o+1}, 0, v{o+1}")
        a(f"v_add_f32 v{o+1}, {hex(f32(1e-5))}, v{o+1}")
        a(f"v_rsq_f32 v{o+1}, v{o+1}")
        a(f"s_nop 0")
        a(f"v_mul_f32 v{o}, v{o}, v{o+1}")
        a(f"v_sub_f32 v{o}, 0, v{o}")

    V_WRM = 252
    S_WRM = 62; S_WRMD = 54
    def p1_l2warm(self):
        a = self.a
        T = self.V_T; V = self.V_WRM
        LW = "L_warm_w"; LJ = "L_warm_j"
        a(f"s_bitcmp1_b32 s{S_W}, 0")
        a(f"s_cbranch_scc1 {LW}")
        self.srd(SRD_T, S_X, 0, 2048*1280)
        a(f"s_and_b32 s{S_T0}, s{S_GX}, 3")
        a(f"s_lshl_b32 s{S_T0}, s{S_T0}, 9")
        a(f"s_lshl_b32 s{S_T1}, s{S_GI}, 4")
        a(f"s_add_u32 s{S_T0}, s{S_T0}, s{S_T1}")
        a(f"v_add_u32 v{T}, s{S_T0}, v1")
        a(f"v_mul_u32_u24 v{V}, 1280, v{T}")
        a(f"v_cmp_gt_u32 vcc, 16, v1")
        a(f"s_mov_b32 s{self.S_WRMD}, 128")
        a(f"s_branch {LJ}a")
        a.put(LW)
        self.srd(SRD_T, S_WQKV, 0, 640*3840)
        a(f"v_lshrrev_b32 v{T}, 4, v1")
        a(f"s_lshl_b32 s{S_T0}, s{S_GI}, 1")
        a(f"v_add_u32 v{T}, s{S_T0}, v{T}")
        a(f"v_mul_u32_u24 v{V}, 3840, v{T}")
        a(f"v_and_b32 v{T+1}, 15, v1")
        a(f"v_lshl_add_u32 v{V}, v{T+1}, 7, v{V}")
        a(f"s_lshr_b32 s{S_T0}, s{S_GX}, 2")
        a(f"s_lshl_b32 s{S_T0}, s{S_T0}, 11")
        a(f"v_add_u32 v{V}, s{S_T0}, v{V}")
        a(f"v_cmp_gt_u32 vcc, 32, v1")
        a(f"s_mov_b32 s{self.S_WRMD}, {64*3840}")
        a.put(LJ + "a")
        a(f"s_cmp_ge_u32 s{S_W}, 2")
        a(f"s_cselect_b64 s[{S_SAVE}:{S_SAVE+1}], 0, vcc")
        a(f"v_mov_b32 v{T+1}, 0x7f000000")
        a(f"s_nop 0")
        a(f"v_cndmask_b32 v{V}, v{T+1}, v{V}, s[{S_SAVE}:{S_SAVE+1}]")
        a(f"s_mul_i32 s{self.S_WRM}, s{self.S_WRMD}, 3")
        for c in range(3):
            self.warm1()

    def warm1(self):
        a = self.a
        a(f"buffer_load_dword v253, v{self.V_WRM}, s[{SRD_T}:{SRD_T+3}], s{self.S_WRM} offen")
        a(f"s_add_u32 s{self.S_WRM}, s{self.S_WRM}, s{self.S_WRMD}")

    def w1_l2warm_keepT(self):
        self.w1_l2warm()

    def w1_l2warm(self):
        a = self.a
        V = self.A_ALL + 1
        self.srd(SRD_O, S_W1, 0, 640*3456)
        a(f"s_mul_i32 s{S_T0}, s{S_GI}, 540")
        a(f"s_lshl_b32 s{S_T1}, s{S_W}, 6")
        a(f"s_add_u32 s{S_T0}, s{S_T0}, s{S_T1}")
        a(f"v_add_u32 v{V}, s{S_T0}, v1")
        a(f"v_lshlrev_b32 v{V}, 7, v{V}")
        a(f"buffer_load_dword v{V+1}, v{V}, s[{SRD_O}:{SRD_O+3}], 0 offen")
        L = f"L_w1w_skip{self.evtag}"
        a(f"s_cmp_lg_u32 s{S_W}, 0")
        a(f"s_cbranch_scc1 {L}")
        self.set_exec((1 << 28) - 1)
        a(f"s_mov_b32 s{S_T1}, {512*128}")
        a(f"buffer_load_dword v{V+1}, v{V}, s[{SRD_O}:{SRD_O+3}], s{S_T1} offen")
        a(f"s_mov_b64 exec, -1")
        a(f"v_lshlrev_b32 v{V+2}, 7, v1")
        self.srd(SRD_O, S_B1, 0, 3456)
        a(f"buffer_load_dword v{V+1}, v{V+2}, s[{SRD_O}:{SRD_O+3}], 0 offen")
        self.srd(SRD_O, S_B2, 0, 1280)
        a(f"buffer_load_dword v{V+1}, v{V+2}, s[{SRD_O}:{SRD_O+3}], 0 offen")
        a.put(L)

    def dst_l2warm(self):
        a = self.a
        V = self.A_ALL + 1
        L = f"L_dstw_skip{self.evtag}"
        a(f"s_cmp_eq_u32 s{S_FAST}, 0")
        a(f"s_cbranch_scc1 {L}")
        self.srd(SRD_O, S_WS, 0, 0x1B00000)
        a(f"s_lshl_b32 s{S_T0}, s{S_W}, 6")
        a(f"v_add_u32 v{V}, s{S_T0}, v1")
        a(f"s_mul_i32 s{S_T0}, s{S_GX}, 2560")
        a(f"s_mul_i32 s{S_T1}, s{S_GI}, 80")
        a(f"s_add_u32 s{S_T0}, s{S_T0}, s{S_T1}")
        a(f"s_add_u32 s{S_T0}, s{S_T0}, {OFF_H//128}")
        a(f"s_mul_i32 s{S_T1}, s{S_GX}, 6912")
        a(f"s_mul_i32 s{S_T2}, s{S_GI}, 216")
        a(f"s_add_u32 s{S_T1}, s{S_T1}, s{S_T2}")
        a(f"s_add_u32 s{S_T1}, s{S_T1}, {OFF_R//128 - 80}")
        a(f"s_lshl_b32 s{S_T2}, s{S_GX}, 8")
        a(f"s_lshl_b32 s{S_T3}, s{S_GI}, 3")
        a(f"s_add_u32 s{S_T2}, s{S_T2}, s{S_T3}")
        a(f"s_add_u32 s{S_T2}, s{S_T2}, {OFF_PST//128 - 296}")
        a(f"v_mov_b32 v{V+2}, s{S_T2}")
        a(f"v_mov_b32 v{V+1}, s{S_T1}")
        a(f"v_cmp_gt_u32 vcc, 296, v{V}")
        a(f"s_nop 1")
        a(f"v_cndmask_b32 v{V+2}, v{V+2}, v{V+1}, vcc")
        a(f"v_mov_b32 v{V+1}, s{S_T0}")
        a(f"v_cmp_gt_u32 vcc, 80, v{V}")
        a(f"s_nop 1")
        a(f"v_cndmask_b32 v{V+2}, v{V+2}, v{V+1}, vcc")
        a(f"v_add_u32 v{V+2}, v{V+2}, v{V}")
        a(f"v_lshlrev_b32 v{V+2}, 7, v{V+2}")
        a(f"v_cmp_gt_u32 vcc, 304, v{V}")
        a(f"s_and_saveexec_b64 s[{S_SAVE}:{S_SAVE+1}], vcc")
        a(f"s_cbranch_execz {L}x")
        a(f"buffer_load_dword v{V+1}, v{V+2}, s[{SRD_O}:{SRD_O+3}], 0 offen")
        a.put(L + "x")
        a(f"s_mov_b64 exec, -1")
        a.put(L)

    def wp_l2warm(self):
        a = self.a
        V = self.A_ALL + 1
        a(f"s_cmp_lt_u32 s{S_W}, 4")
        self.csel(S_T0, hex(OFF_WOP), hex(OFF_W2P))
        a(f"s_add_u32 s{SRD_O}, s{S_WS}, s{S_T0}")
        a(f"s_addc_u32 s{SRD_O+1}, s{S_WS+1}, 0")
        a(f"s_mov_b32 s{SRD_O+2}, {SZ_WOP}")
        a(f"s_mov_b32 s{SRD_O+3}, 0x20000")
        a(f"s_and_b32 s{S_T0}, s{S_W}, 3")
        a(f"s_lshl_b32 s{S_T0}, s{S_T0}, 6")
        a(f"v_add_u32 v{V}, s{S_T0}, v1")
        a(f"v_cmp_gt_u32 vcc, 200, v{V}")
        a(f"s_mul_i32 s{S_T0}, s{S_GI}, 200")
        a(f"v_add_u32 v{V}, s{S_T0}, v{V}")
        a(f"v_lshlrev_b32 v{V}, 7, v{V}")
        a(f"s_and_saveexec_b64 s[{S_SAVE}:{S_SAVE+1}], vcc")
        a(f"s_cbranch_execz L_wpw_x{self.evtag}")
        a(f"buffer_load_dword v{V+1}, v{V}, s[{SRD_O}:{SRD_O+3}], 0 offen")
        a.put(f"L_wpw_x{self.evtag}")
        a(f"s_mov_b64 exec, -1")

    def xstats_publish(self):
        a = self.a
        T = self.V_T
        self.srd(SRD_O, S_X, 0, 2048*1280)
        a(f"s_lshl_b32 s{S_T0}, s2, 3")
        a(f"s_lshl_b32 s{S_T1}, s{S_W}, 1")
        a(f"s_add_u32 s{S_T0}, s{S_T0}, s{S_T1}")
        a(f"v_lshrrev_b32 v{T}, 5, v1")
        a(f"v_add_u32 v{T}, s{S_T0}, v{T}")
        a(f"v_mul_u32_u24 v{T+1}, 1280, v{T}")
        a(f"v_and_b32 v{T+2}, 31, v1")
        a(f"v_lshl_add_u32 v{T+1}, v{T+2}, 3, v{T+1}")
        D = T + 4
        for j in range(5):
            a(f"buffer_load_dwordx2 v[{D+2*j}:{D+2*j+1}], v{T+1}, s[{SRD_O}:{SRD_O+3}], 0 offen offset:{256*j}")
        return D

    def xstats_finish(self, D):
        a = self.a
        T = self.V_T
        S = T + 16
        a(f"v_mov_b32 v{S}, 0"); a(f"v_mov_b32 v{S+1}, 0")
        a(f"s_waitcnt vmcnt(0)")
        for r in range(10):
            a(f"v_lshlrev_b32 v{S+2}, 16, v{D+r}")
            a(f"v_and_b32 v{S+3}, 0xffff0000, v{D+r}")
            a(f"v_add_f32 v{S}, v{S}, v{S+2}")
            a(f"v_fmac_f32 v{S+1}, v{S+2}, v{S+2}")
            a(f"v_add_f32 v{S}, v{S}, v{S+3}")
            a(f"v_fmac_f32 v{S+1}, v{S+3}, v{S+3}")
        for ctl in ("row_shr:1", "row_shr:2", "row_shr:4", "row_shr:8"):
            a(f"s_nop 1")
            a(f"v_add_f32_dpp v{S}, v{S}, v{S} {ctl} row_mask:0xf bank_mask:0xf bound_ctrl:0")
            a(f"v_add_f32_dpp v{S+1}, v{S+1}, v{S+1} {ctl} row_mask:0xf bank_mask:0xf bound_ctrl:0")
        a(f"s_nop 1")
        a(f"v_add_f32_dpp v{S}, v{S}, v{S} row_bcast:15 row_mask:0xa bank_mask:0xf")
        a(f"v_add_f32_dpp v{S+1}, v{S+1}, v{S+1} row_bcast:15 row_mask:0xa bank_mask:0xf")
        a(f"s_nop 1")
        self.ab_from_sums(S, S+1, S+5)
        a(f"v_mov_b32 v{S+8}, v{S+6}")
        a(f"v_mov_b32 v{S+9}, v{S+5}")
        self.tag_ready()
        a(f"v_mov_b32 v{S+10}, s{S_TAG}")
        a(f"v_mov_b32 v{S+11}, s{S_TAG}")
        a(f"v_lshlrev_b32 v{T}, 4, v{T}")
        a(f"v_add_u32 v{T}, {hex(OFF_GR)}, v{T}")
        a(f"s_mov_b32 exec_lo, 0x80000000")
        a(f"s_mov_b32 exec_hi, 0x80000000")
        a(f"buffer_store_dwordx4 v[{S+8}:{S+11}], v{T}, s[{SRD_F}:{SRD_F+3}], 0 offen sc1")
        a(f"s_mov_b64 exec, -1")

    def tag_ready(self):
        a = self.a
        a(f"s_waitcnt lgkmcnt(0)")
        a(f"s_getreg_b32 s{S_XCC}, hwreg(HW_REG_XCC_ID, 0, 4)")
        a(f"s_mov_b32 s{S_FAST}, 0")
        a(f"s_mul_i32 s{S_TAG}, s{S_TAG}, 0x9E3779B1")
        a(f"s_add_u32 s{S_TAG}, s{S_TAG}, 0x7F4A7C15")

    def g1_setup_compute(self):
        a = self.a
        T = self.V_FR
        a(f"s_lshr_b32 s{S_WM}, s{S_W}, 1")
        a(f"s_and_b32 s{S_WN}, s{S_W}, 1")
        a(f"v_and_b32 v{T}, 31, v1")
        a(f"s_lshl_b32 s{S_T0}, s{S_WM}, 6")
        a(f"v_add_u32 v{T+1}, s{S_T0}, v{T}")
        a(f"v_lshlrev_b32 v{T+1}, 7, v{T+1}")
        a(f"v_bfe_u32 v{T+2}, v{T}, 1, 3")
        a(f"v_lshrrev_b32 v{T+3}, 5, v1")
        a(f"v_xor_b32 v{T+2}, v{T+2}, v{T+3}")
        for j in range(4):
            a(f"v_xor_b32 v{self.V_AA+j}, {2*j}, v{T+2}")
            a(f"v_lshlrev_b32 v{self.V_AA+j}, 4, v{self.V_AA+j}")
            a(f"v_add_u32 v{self.V_AA+j}, v{self.V_AA+j}, v{T+1}")
        a(f"v_and_b32 v{T+4}, 15, v1")
        a(f"v_lshrrev_b32 v{T+5}, 2, v{T+4}")
        a(f"v_lshlrev_b32 v{T+6}, 3, v{T+3}")
        a(f"v_add_u32 v{T+6}, v{T+6}, v{T+5}")
        a(f"v_lshlrev_b32 v{T+6}, 8, v{T+6}")
        a(f"v_bfe_u32 v{T+7}, v1, 4, 1")
        a(f"v_lshlrev_b32 v{T+7}, 1, v{T+7}")
        a(f"v_bfe_u32 v{T+8}, v1, 1, 1")
        a(f"v_add_u32 v{T+7}, v{T+7}, v{T+8}")
        a(f"s_lshl_b32 s{S_T0}, s{S_WN}, 3")
        a(f"s_lshl_b32 s{S_T1}, s{S_WM}, 2")
        a(f"s_add_u32 s{S_T0}, s{S_T0}, s{S_T1}")
        a(f"v_add_u32 v{T+7}, s{S_T0}, v{T+7}")
        a(f"v_lshlrev_b32 v{T+5}, 2, v{T+5}")
        a(f"v_xor_b32 v{T+7}, v{T+7}, v{T+5}")
        a(f"v_lshlrev_b32 v{T+7}, 4, v{T+7}")
        a(f"v_and_b32 v{T+8}, 1, v1")
        a(f"v_lshlrev_b32 v{T+8}, 3, v{T+8}")
        a(f"v_add_u32 v{T+6}, v{T+6}, v{T+7}")
        a(f"v_add_u32 v{T+6}, v{T+6}, v{T+8}")
        a(f"v_add_u32 v{self.V_AWA}, 16384, v{T+6}")
        a(f"v_xor_b32 v{self.V_AWB}, 64, v{self.V_AWA}")
        a(f"v_and_b32 v{T}, 15, v1")
        a(f"v_bfe_u32 v{T+1}, v1, 4, 1")
        a(f"v_cmp_eq_u32 vcc, v{T}, v{T+1}")
        a(f"v_mov_b32 v{T+2}, 0x3f803f80")
        a(f"s_nop 1")
        a(f"v_cndmask_b32 v{self.V_CSA}, 0, v{T+2}, vcc")
        for r in range(1, 4):
            a(f"v_mov_b32 v{self.V_CSA+r}, v{self.V_CSA}")
        for r in range(4):
            a(f"v_mov_b32 v{self.V_CSD+r}, 0")
        for r in range(64):
            a(f"v_mov_b32 v{self.V_ACC+r}, 0")

    def g1_read1(self, j, q):
        if "noreads" in self.opt: return
        a = self.a
        F = self.V_FR + 16*j
        if q == 0: a(f"ds_read_b128 v[{F}:{F+3}], v{self.V_AA+j}")
        elif q == 1: a(f"ds_read_b128 v[{F+4}:{F+7}], v{self.V_AA+j} offset:4096")
        else:
            ad = (self.V_AWA if q == 2 else self.V_AWB) if j != 3 else (self.V_AW2A if q == 2 else self.V_AW2B)
            R = F + 8 + 4*(q-2)
            a(f"ds_read_b64_tr_b16 v[{R}:{R+1}], v{ad} offset:{4096*j}")
            a(f"ds_read_b64_tr_b16 v[{R+2}:{R+3}], v{ad} offset:{4096*j+1024}")

    def g1_mfma1(self, j, orient, tt, q):
        if "nomfma" in self.opt: return
        a = self.a
        F = self.V_FR + 16*j
        X = f"v[{F+4*tt}:{F+4*tt+3}]"; W = f"v[{F+8+4*q}:{F+11+4*q}]"
        A = self.V_ACC + 16*(2*tt+q)
        D = f"v[{A}:{A+15}]"
        if orient == "T": a(f"v_mfma_f32_32x32x16_bf16 {D}, {W}, {X}, {D}")
        else:             a(f"v_mfma_f32_32x32x16_bf16 {D}, {X}, {W}, {D}")

    def g1_colsum(self, j):
        if "nostats" in self.opt: return
        F = self.V_FR + 16*j; D = self.V_CSD
        self.a(f"v_mfma_f32_16x16x32_bf16 v[{D}:{D+3}], v[{self.V_CSA}:{self.V_CSA+3}], v[{F+8}:{F+11}], v[{D}:{D+3}]")

    def g1_adv(self):
        a = self.a
        for r in list(range(self.V_AA, self.V_AA+4)) + [self.V_AWA, self.V_AWB]:
            a(f"v_add_u32 v{r}, s{S_DELTA}, v{r}")

    def g1_cstep(self, j, orient, rset, fill=((), (), (), ())):
        a = self.a
        order = (2, 0, 1, 3)
        cp = getattr(self, "cprof", False)
        if cp: a(f"s_memtime s[{72+4*j}:{73+4*j}]")
        a(f"s_waitcnt lgkmcnt(12)")
        if cp: a(f"s_memtime s[{74+4*j}:{75+4*j}]")
        for k, (tt, q) in enumerate(((0, 0), (1, 0), (0, 1), (1, 1))):
            self.g1_mfma1(j, orient, tt, q)
            if k == 0: self.g1_colsum(j)
            self.g1_read1(rset, order[k])
            for f in fill[k]: a(f)

    def g1_compute(self, orient, tag, presetup=False):
        a = self.a
        if not presetup: self.g1_setup_compute()
        AA = self.V_AA
        a(f"v_mov_b32 v{self.V_AW2A}, v{self.V_AWA}")
        a(f"v_mov_b32 v{self.V_AW2B}, v{self.V_AWB}")
        a(f"s_barrier")
        self.stamp(self.st1)
        for j in range(3):
            for q in (2, 0, 1, 3): self.g1_read1(j, q)
        DA, DB = S_DELTA, S_T5
        a(f"s_mov_b32 s{S_CNT}, 0")
        a(f"s_mov_b32 s{S_RSLOT}, 1")
        a(f"s_mov_b32 s{DA}, 32768")
        a(f"v_add_u32 v{AA}, s{DA}, v{AA}")
        a(f"v_add_u32 v{AA+1}, s{DA}, v{AA+1}")
        wrap = hex((-(self.NSLOT-1)*32768) & 0xffffffff)
        L1 = f"L_{tag}_cloop"
        a(f".p2align 5")
        a.put(L1)
        self.g1_cstep(0, orient, 3, ((f"v_add_u32 v{AA+2}, s{DA}, v{AA+2}",), (f"v_add_u32 v{self.V_AWA}, s{DA}, v{self.V_AWA}",),
                                     (f"v_add_u32 v{self.V_AWB}, s{DA}, v{self.V_AWB}",), ()))
        a(f"s_barrier")
        self.g1_cstep(1, orient, 0, ((f"v_add_u32 v{AA+3}, s{DA}, v{AA+3}", f"s_cmp_eq_u32 s{S_RSLOT}, {self.NSLOT-1}"),
                                     (f"s_mov_b32 s{DB}, 32768", f"s_cselect_b32 s{DB}, {wrap}, s{DB}"),
                                     (f"v_mov_b32 v{self.V_AW2A}, v{self.V_AWA}", f"s_cselect_b32 s{S_RSLOT}, -1, s{S_RSLOT}"),
                                     (f"v_mov_b32 v{self.V_AW2B}, v{self.V_AWB}", f"s_add_u32 s{S_RSLOT}, s{S_RSLOT}, 1")))
        wf = ()
        if getattr(self, "warm_fill", False):
            wf = (f"s_cmp_eq_u32 s{S_CNT}, 3", f"s_cselect_b32 s{self.S_WRMD}, s{self.S_WRM}, s{S_OOB}", f"buffer_load_dword v253, v{self.V_WRM}, s[{SRD_T}:{SRD_T+3}], s{self.S_WRMD} offen")
        self.g1_cstep(2, orient, 1, ((f"v_add_u32 v{AA}, s{DB}, v{AA}",), (f"s_add_u32 s{S_CNT}, s{S_CNT}, 1",), wf, ()))
        self.g1_cstep(3, orient, 2, ((f"v_add_u32 v{AA+1}, s{DB}, v{AA+1}",), (f"s_mov_b32 s{DA}, s{DB}",), (f"s_cmp_lt_u32 s{S_CNT}, 10",), ()))
        a(f"s_cbranch_scc1 {L1}")
        a(f"s_waitcnt lgkmcnt(0)")
        a(f"v_mbcnt_lo_u32_b32 v1, -1, 0")
        a(f"v_mbcnt_hi_u32_b32 v1, -1, v1")
        T = self.V_FR
        a(f"s_lshl_b32 s{S_T0}, s{S_WN}, 8")
        a(f"s_lshl_b32 s{S_T1}, s{S_WM}, 7")
        a(f"s_add_u32 s{S_T0}, s{S_T0}, s{S_T1}")
        a(f"s_add_u32 s{S_T0}, s{S_T0}, {LDS_STATS+ST_CS}")
        a(f"v_lshlrev_b32 v{T}, 2, v1")
        a(f"v_add_u32 v{T}, s{S_T0}, v{T}")
        a(f"s_nop 4")
        a(f"s_mov_b64 exec, 0xffff")
        a(f"ds_write_b32 v{T}, v{self.V_CSD}")
        a(f"ds_write_b32 v{T}, v{self.V_CSD+1} offset:64")
        a(f"s_mov_b64 exec, -1")
        a(f"s_waitcnt lgkmcnt(0)")
        a(f"s_barrier")

    def magic_div5(self, dst, src):
        self.a(f"v_mul_u32_u24 v{dst}, 52429, v{src}")
        self.a(f"v_lshrrev_b32 v{dst}, 18, v{dst}")
    def magic_div20(self, dst, src):
        self.a(f"v_mul_u32_u24 v{dst}, 52429, v{src}")
        self.a(f"v_lshrrev_b32 v{dst}, 20, v{dst}")

    def epi_T_common(self):
        a = self.a
        T = self.V_T; CSR = self.V_FR
        a(f"v_and_b32 v{T}, 31, v1")
        a(f"s_lshl_b32 s{S_T0}, s{S_WM}, 6")
        a(f"v_add_u32 v{T+1}, s{S_T0}, v{T}")
        a(f"v_lshlrev_b32 v{T+1}, 2, v{T+1}")
        a(f"v_add_u32 v{T+1}, {LDS_STATS}, v{T+1}")
        a(f"ds_read_b32 v{T+2}, v{T+1} offset:{ST_AA}")
        a(f"ds_read_b32 v{T+3}, v{T+1} offset:{ST_BB}")
        a(f"ds_read_b32 v{T+4}, v{T+1} offset:{ST_AA+128}")
        a(f"ds_read_b32 v{T+5}, v{T+1} offset:{ST_BB+128}")
        a(f"v_lshrrev_b32 v{T+6}, 5, v1")
        a(f"s_lshl_b32 s{S_T0}, s{S_WN}, 8")
        a(f"s_lshl_b32 s{S_T1}, s{S_WM}, 7")
        a(f"s_add_u32 s{S_T0}, s{S_T0}, s{S_T1}")
        a(f"s_add_u32 s{S_T0}, s{S_T0}, {LDS_STATS+ST_CS}")
        a(f"v_lshlrev_b32 v{T+7}, 4, v{T+6}")
        a(f"v_add_u32 v{T+7}, s{S_T0}, v{T+7}")
        a(f"v_xor_b32 v{T+1}, 128, v{T+7}")
        for g in range(4):
            a(f"ds_read_b128 v[{CSR+4*g}:{CSR+4*g+3}], v{T+7} offset:{32*g}")
        for g in range(4):
            a(f"ds_read_b128 v[{CSR+16+4*g}:{CSR+16+4*g+3}], v{T+1} offset:{32*g}")

    E_AD = 160; E_LA = 168; E_LC = 169
    S_ESC = 6; S_EO = 7
    def wmwn(self):
        a = self.a
        a(f"s_lshr_b32 s{S_WM}, s{S_W}, 1")
        a(f"s_and_b32 s{S_WN}, s{S_W}, 1")

    def p1_epi_T_pre(self):
        a = self.a
        T = self.V_T + 24
        self.wmwn()
        a(f"v_and_b32 v{T}, 31, v1")
        a(f"v_lshrrev_b32 v{T+6}, 5, v1")
        a(f"s_lshl_b32 s{S_T0}, s{S_WM}, 6")
        a(f"v_add_u32 v{T+1}, s{S_T0}, v{T}")
        a(f"v_lshlrev_b32 v{T+1}, 2, v{T+1}")
        a(f"v_add_u32 v{self.E_LA}, {LDS_STATS}, v{T+1}")
        a(f"s_lshl_b32 s{S_T0}, s{S_WN}, 8")
        a(f"s_lshl_b32 s{S_T1}, s{S_WM}, 7")
        a(f"s_add_u32 s{S_T0}, s{S_T0}, s{S_T1}")
        a(f"s_add_u32 s{S_T0}, s{S_T0}, {LDS_STATS+ST_CS}")
        a(f"v_lshlrev_b32 v{T+7}, 4, v{T+6}")
        a(f"v_add_u32 v{self.E_LC}, s{S_T0}, v{T+7}")
        a(f"v_xor_b32 v{self.E_LC+1}, 128, v{self.E_LC}")
        a(f"s_cmp_lt_u32 s{S_NT}, 5")
        a(f"s_cselect_b32 s{self.S_ESC}, {hex(f32(math.log2(math.e)/math.sqrt(20.0)))}, 1.0")
        self.csel(S_T1, 81920, 163840)
        self.csel(S_T2, 1280, 2560)
        a(f"s_cselect_b32 s{S_T3}, 0, 5")
        self.csel(S_T4, hex(OFF_Q), hex(OFF_KV))
        self.csel(S_T5, hex(SZ_Q), hex(SZ_KV))
        a(f"s_add_u32 s{SRD_O}, s{S_WS}, s{S_T4}")
        a(f"s_addc_u32 s{SRD_O+1}, s{S_WS+1}, 0")
        a(f"s_mov_b32 s{SRD_O+2}, s{S_T5}")
        a(f"s_mov_b32 s{SRD_O+3}, 0x20000")
        a(f"s_sub_u32 s{S_T3}, s{S_NT}, s{S_T3}")
        a(f"s_lshl_b32 s{S_T3}, s{S_T3}, 5")
        a(f"s_lshl_b32 s{S_T4}, s{S_WN}, 4")
        a(f"s_add_u32 s{S_T3}, s{S_T3}, s{S_T4}")
        a(f"s_lshl_b32 s{S_T4}, s{S_WM}, 3")
        for q in range(2):
            for g in range(4):
                if q == 0:
                    a(f"s_add_u32 s{S_T5}, s{S_T3}, s{S_T4}")
                else:
                    a(f"s_xor_b32 s{S_T5}, s{S_T4}, 8")
                    a(f"s_add_u32 s{S_T5}, s{S_T5}, s{S_T3}")
                a(f"s_add_u32 s{S_T5}, s{S_T5}, {2*g}")
                a(f"v_add_u32 v{T+8}, s{S_T5}, v{T+6}")
                self.magic_div5(T+9, T+8)
                a(f"v_mul_u32_u24 v{T+10}, 5, v{T+9}")
                a(f"v_sub_u32 v{T+10}, v{T+8}, v{T+10}")
                a(f"v_mul_lo_u32 v{T+9}, v{T+9}, s{S_T1}")
                a(f"v_lshlrev_b32 v{T+10}, 8, v{T+10}")
                a(f"v_add_u32 v{T+9}, v{T+9}, v{T+10}")
                a(f"v_lshl_add_u32 v{self.E_AD+4*q+g}, v{T}, 3, v{T+9}")
        a(f"s_lshl_b32 s{S_T4}, s{S_MT}, 2")
        a(f"s_lshl_b32 s{S_T5}, s{S_WM}, 1")
        a(f"s_add_u32 s{S_T4}, s{S_T4}, s{S_T5}")
        a(f"s_mul_i32 s{self.S_EO}, s{S_T4}, s{S_T2}")
        a(f"s_add_u32 s{self.S_EO+1}, s{self.S_EO}, s{S_T2}")

    def p1_epi_T(self):
        a = self.a
        T = self.V_T; A = self.V_ACC; CSR = self.V_FR
        a(f"ds_read_b32 v{T+2}, v{self.E_LA} offset:{ST_AA}")
        a(f"ds_read_b32 v{T+3}, v{self.E_LA} offset:{ST_BB}")
        a(f"ds_read_b32 v{T+4}, v{self.E_LA} offset:{ST_AA+128}")
        a(f"ds_read_b32 v{T+5}, v{self.E_LA} offset:{ST_BB+128}")
        for q in range(2):
            for g in range(4):
                a(f"ds_read_b128 v[{CSR+16*q+4*g}:{CSR+16*q+4*g+3}], v{self.E_LC+q} offset:{32*g}")
        a(f"s_waitcnt lgkmcnt(8)")
        for r in range(4):
            a(f"v_mul_f32 v{T+2+r}, s{self.S_ESC}, v{T+2+r}")
        a(f"s_waitcnt lgkmcnt(0)")
        for tt in range(2):
            ab = f"v[{T+2+2*tt}:{T+3+2*tt}]"
            for q in range(2):
                for g in range(4):
                    for i in (0, 2):
                        r = A + 16*(2*tt+q) + 4*g + i
                        c = CSR + 16*q + 4*g + i
                        a(f"v_pk_mul_f32 v[{r}:{r+1}], v[{r}:{r+1}], {ab} op_sel:[0,0] op_sel_hi:[1,0]")
                        a(f"v_pk_fma_f32 v[{r}:{r+1}], v[{c}:{c+1}], {ab}, v[{r}:{r+1}] op_sel:[0,1,0] op_sel_hi:[1,1,1]")
                    r = A + 16*(2*tt+q) + 4*g
                    a(f"v_cvt_pk_bf16_f32 v{r}, v{r}, v{r+1}")
                    a(f"v_cvt_pk_bf16_f32 v{r+1}, v{r+2}, v{r+3}")
                    a(f"buffer_store_dwordx2 v[{r}:{r+1}], v{self.E_AD+4*q+g}, s[{SRD_O}:{SRD_O+3}], s{self.S_EO+tt} offen sc1")

    def p1_epi_N_pre(self):
        a = self.a
        T = self.V_T + 24
        self.wmwn()
        a(f"v_and_b32 v{T}, 31, v1")
        a(f"v_lshrrev_b32 v{T+6}, 5, v1")
        a(f"s_lshl_b32 s{S_T0}, s{S_WM}, 8")
        a(f"v_lshlrev_b32 v{T+4}, 4, v{T+6}")
        a(f"v_add_u32 v{T+4}, s{S_T0}, v{T+4}")
        a(f"v_add_u32 v{self.E_LA}, {LDS_STATS}, v{T+4}")
        a(f"s_mov_b32 s{S_T2}, 163840")
        for q in range(2):
            a(f"s_xor_b32 s{S_T0}, s{S_WM}, {q}")
            a(f"s_lshl_b32 s{S_T0}, s{S_T0}, 5")
            a(f"s_lshl_b32 s{S_T1}, s{S_WN}, 6")
            a(f"s_add_u32 s{S_T0}, s{S_T0}, s{S_T1}")
            a(f"v_add_u32 v{T+1}, s{S_T0}, v{T}")
            a(f"v_lshlrev_b32 v{T+2}, 2, v{T+1}")
            a(f"v_add_u32 v{self.E_LC+q}, {LDS_STATS+ST_CS}, v{T+2}")
            a(f"s_sub_u32 s{S_T1}, s{S_NT}, 10")
            a(f"s_lshl_b32 s{S_T1}, s{S_T1}, 7")
            a(f"v_add_u32 v{T+7}, s{S_T1}, v{T+1}")
            self.magic_div20(T+8, T+7)
            a(f"v_mul_u32_u24 v{T+9}, 20, v{T+8}")
            a(f"v_sub_u32 v{T+9}, v{T+7}, v{T+9}")
            a(f"v_mul_lo_u32 v{T+8}, v{T+8}, s{S_T2}")
            a(f"v_lshlrev_b32 v{T+9}, 4, v{T+9}")
            a(f"v_add_u32 v{T+8}, v{T+8}, v{T+9}")
            a(f"v_mul_u32_u24 v{T+9}, 320, v{T+6}")
            a(f"v_add_u32 v{T+8}, v{T+8}, v{T+9}")
            a(f"v_add_u32 v{self.E_AD+q}, 1280, v{T+8}")
        self.srd(SRD_O, S_WS, OFF_KV, SZ_KV)
        a(f"s_lshl_b32 s{S_T4}, s{S_MT}, 2")
        a(f"s_lshl_b32 s{S_T5}, s{S_WM}, 1")
        a(f"s_add_u32 s{S_T4}, s{S_T4}, s{S_T5}")
        a(f"s_mul_i32 s{self.S_EO}, s{S_T4}, 2560")
        a(f"s_add_u32 s{self.S_EO+1}, s{self.S_EO}, 2560")

    def p1_epi_N(self):
        a = self.a
        T = self.V_T; A = self.V_ACC
        ABs = (self.V_FR, self.V_FR + 32)
        a(f"ds_read_b32 v{T+10}, v{self.E_LC}")
        a(f"ds_read_b32 v{T+11}, v{self.E_LC+1}")
        for tt in range(2):
            AB = ABs[tt]; BB = AB + 16
            for g in range(4):
                a(f"ds_read_b128 v[{AB+4*g}:{AB+4*g+3}], v{self.E_LA} offset:{ST_AA + 128*tt + 32*g}")
                a(f"ds_read_b128 v[{BB+4*g}:{BB+4*g+3}], v{self.E_LA} offset:{ST_BB + 128*tt + 32*g}")
        cs = f"v[{T+10}:{T+11}]"
        for tt in range(2):
            AB = ABs[tt]; BB = AB + 16
            a(f"s_waitcnt lgkmcnt({8 if tt == 0 else 0})")
            for q in range(2):
                for r in range(0, 16, 2):
                    R = A + 16*(2*tt+q) + r
                    a(f"v_pk_mul_f32 v[{R}:{R+1}], v[{R}:{R+1}], v[{AB+r}:{AB+r+1}]")
                    a(f"v_pk_fma_f32 v[{R}:{R+1}], v[{BB+r}:{BB+r+1}], {cs}, v[{R}:{R+1}] op_sel:[0,{q},0] op_sel_hi:[1,{q},1]")
                for st in range(2):
                    R = A + 16*(2*tt+q) + 8*st
                    for z in range(4):
                        a(f"v_cvt_pk_bf16_f32 v{R+z}, v{R+2*z}, v{R+2*z+1}")
                    a(f"buffer_store_dwordx4 v[{R}:{R+3}], v{self.E_AD+q}, s[{SRD_O}:{SRD_O+3}], s{self.S_EO+tt} offen offset:{640*st} sc1")

    def relayout_unit(self):
        pass

    def rl_unit(self):
        a = self.a
        a(f"s_lshl_b32 s{S_T0}, s2, 2")
        a(f"s_and_b32 s{S_T5}, s{S_W}, 3")
        a(f"s_add_u32 s{S_T0}, s{S_T0}, s{S_T5}")

    def rl_src(self, srd):
        a = self.a
        self.rl_unit()
        a(f"s_cmp_lt_u32 s{S_T0}, 540")
        a(f"s_cselect_b32 s{S_T1}, 0, 540")
        a(f"s_cselect_b32 s{srd}, s{S_W2}, s{S_WO}")
        a(f"s_cselect_b32 s{srd+1}, s{S_W2+1}, s{S_WO+1}")
        self.csel(srd+2, 1728*1280, 640*1280)
        a(f"s_mov_b32 s{srd+3}, 0x20000")
        a(f"s_sub_u32 s{S_T1}, s{S_T0}, s{S_T1}")
        a(f"s_mul_hi_u32 s{S_T2}, s{S_T1}, {hex((2**32+9)//10)}")
        a(f"s_mul_i32 s{S_T3}, s{S_T2}, 10")
        a(f"s_sub_u32 s{S_T3}, s{S_T1}, s{S_T3}")
        a(f"s_mul_i32 s{S_T2}, s{S_T2}, {32*1280}")
        a(f"s_lshl_b32 s{S_T3}, s{S_T3}, 7")
        a(f"s_add_u32 s{S_T2}, s{S_T2}, s{S_T3}")
        a(f"s_cmp_ge_u32 s{S_T0}, 740")
        a(f"s_cselect_b32 s{S_T2}, 0x70000000, s{S_T2}")

    def relayout_load(self):
        a = self.a
        T = self.V_T
        self.rl_src(SRD_T)
        a(f"v_lshrrev_b32 v{T}, 3, v1")
        a(f"v_mul_u32_u24 v{T}, 1280, v{T}")
        a(f"v_and_b32 v{T+1}, 7, v1")
        a(f"v_lshl_add_u32 v{T}, v{T+1}, 4, v{T}")
        a(f"s_lshl_b32 s{S_T3}, s{S_T5}, 12")
        a(f"s_add_u32 m0, s{S_T3}, {LDS_RL}")
        for jj in range(4):
            a(f"s_nop 0")
            a(f"buffer_load_dwordx4 v{T}, s[{SRD_T}:{SRD_T+3}], s{S_T2} offen lds")
            if jj < 3:
                a(f"s_add_u32 m0, m0, 1024")
                a(f"s_add_u32 s{S_T2}, s{S_T2}, {8*1280}")

    def relayout_warm_setup(self):
        a = self.a
        V = self.V_WRM
        self.rl_src(SRD_T)
        a(f"s_mov_b32 s{self.S_WRM}, s{S_T2}")
        a(f"s_mov_b32 s{S_OOB}, 0x70000000")
        a(f"v_mul_u32_u24 v{V}, 1280, v1")
        a(f"v_cmp_gt_u32 vcc, 32, v1")
        a(f"v_mov_b32 v{V-1}, 0x7f000000")
        a(f"s_nop 0")
        a(f"v_cndmask_b32 v{V}, v{V-1}, v{V}, vcc")

    def relayout_store(self):
        a = self.a
        T = self.V_T
        Lskip = "L_rl_skip2"
        self.rl_unit()
        a(f"s_cmp_ge_u32 s{S_T0}, 740")
        a(f"s_cbranch_scc1 {Lskip}")
        a(f"s_cmp_lt_u32 s{S_T0}, 540")
        a(f"s_cselect_b32 s{S_T1}, 0, 540")
        self.csel(S_T4, hex(OFF_W2P), hex(OFF_WOP))
        self.csel(S_T3, hex(SZ_W2P), hex(SZ_WOP))
        a(f"s_mov_b32 s{SRD_T+2}, s{S_T3}")
        a(f"s_sub_u32 s{S_T1}, s{S_T0}, s{S_T1}")
        a(f"s_add_u32 s{SRD_T}, s{S_WS}, s{S_T4}")
        a(f"s_addc_u32 s{SRD_T+1}, s{S_WS+1}, 0")
        a(f"s_mov_b32 s{SRD_T+3}, 0x20000")
        a(f"s_mul_hi_u32 s{S_T2}, s{S_T1}, {hex((2**32+9)//10)}")
        a(f"s_mul_i32 s{S_T3}, s{S_T2}, 10")
        a(f"s_sub_u32 s{S_T3}, s{S_T1}, s{S_T3}")
        a(f"s_mul_i32 s{S_T2}, s{S_T2}, 40")
        a(f"s_lshl_b32 s{S_T3}, s{S_T3}, 2")
        a(f"s_add_u32 s{S_T2}, s{S_T2}, s{S_T3}")
        a(f"s_lshl_b32 s{S_T2}, s{S_T2}, 10")
        a(f"v_lshrrev_b32 v{T}, 4, v1")
        a(f"v_lshlrev_b32 v{T}, 3, v{T}")
        a(f"v_bfe_u32 v{T+1}, v1, 2, 2")
        a(f"v_add_u32 v{T}, v{T}, v{T+1}")
        a(f"v_lshlrev_b32 v{T}, 7, v{T}")
        a(f"v_and_b32 v{T+1}, 3, v1")
        a(f"v_lshl_add_u32 v{T}, v{T+1}, 3, v{T}")
        a(f"s_lshl_b32 s{S_T3}, s{S_T5}, 12")
        a(f"s_add_u32 s{S_T3}, s{S_T3}, {LDS_RL}")
        a(f"v_add_u32 v{T}, s{S_T3}, v{T}")
        a(f"v_lshlrev_b32 v{T+1}, 4, v1")
        O = T + 4
        for tq in range(4):
            a(f"ds_read_b64_tr_b16 v[{O+4*tq}:{O+4*tq+1}], v{T} offset:{32*tq}")
            a(f"ds_read_b64_tr_b16 v[{O+4*tq+2}:{O+4*tq+3}], v{T} offset:{32*tq+512}")
        a(f"s_waitcnt lgkmcnt(0)")
        for tq in range(4):
            a(f"buffer_store_dwordx4 v[{O+4*tq}:{O+4*tq+3}], v{T+1}, s[{SRD_T}:{SRD_T+3}], s{S_T2} offen offset:{1024*tq} sc1")
        a.put(Lskip)

    def p1(self):
        a = self.a
        a(f"s_and_b32 s{S_T0}, s{S_GX}, 3")
        a(f"s_lshl_b32 s{S_T0}, s{S_T0}, 2")
        a(f"s_and_b32 s{S_T1}, s{S_GI}, 3")
        a(f"s_add_u32 s{S_MT}, s{S_T0}, s{S_T1}")
        a(f"s_lshr_b32 s{S_T0}, s{S_GX}, 2")
        a(f"s_lshl_b32 s{S_T0}, s{S_T0}, 3")
        a(f"s_lshr_b32 s{S_T2}, s{S_GI}, 2")
        a(f"s_add_u32 s{S_NT}, s{S_T0}, s{S_T2}")
        a(f"s_lshl_b32 s{S_T1}, s{S_T1}, 1")
        a(f"s_add_u32 s{S_RLW}, s{S_T1}, s{S_T2}")
        a(f"s_and_b32 s{S_RLW}, s{S_RLW}, 7")
        a(f"s_mov_b32 s{S_KK}, 0")
        self.aux_A = ""
        self.st1 = 1
        a(f"s_cmp_lt_u32 s{S_W}, 4")
        a(f"s_cbranch_scc1 L_p1_compute")
        self.g1_setup_loader(3840)
        a(f"s_waitcnt lgkmcnt(0)")
        if "p1s" in self.opt: self.stamp(15)
        self.srd(SRD_A, S_X, 0, 2048*1280)
        self.srd(SRD_W, S_WQKV, 0, 640*3840)
        a(f"s_load_dword s{S_TAG}, s[{S_WS}:{S_WS+1}], {OFF_EPOCH}")
        a(f"s_cmp_ge_u32 s{S_NT}, 15")
        a(f"s_cbranch_scc1 L_p1_lnull")
        self.g1_dma_stage(3840)
        if "p1s" in self.opt: self.stamp(16)
        self.g1_dma_stage(3840)
        if "norot" not in self.opt: a(f"s_add_u32 s{S_KK}, s{S_RLW}, 2")
        self.srd(SRD_F, S_WS, 0, 0x100000)
        if "p1s" in self.opt: self.stamp(17)
        self.g1_loader(3840, "p1", "gran")
        a(f"s_branch L_p1_lj")
        a.put("L_p1_lnull")
        self.srd(SRD_F, S_WS, 0, 0x100000)
        self.tag_ready()
        self.relayout_load()
        a.put("L_p1_lj")
        a(f"s_waitcnt vmcnt(0)")
        self.relayout_store()
        a(f"s_branch L_p1_done")
        a.put("L_p1_compute")
        a(f"s_waitcnt lgkmcnt(0)")
        a(f"s_load_dword s{S_TAG}, s[{S_WS}:{S_WS+1}], {OFF_EPOCH}")
        self.srd(SRD_F, S_WS, 0, 0x100000)
        D = self.xstats_publish()
        self.relayout_warm_setup()
        self.xstats_finish(D)
        a(f"s_cmp_ge_u32 s{S_NT}, 15")
        a(f"s_cbranch_scc1 L_p1_done")
        a(f"s_cmp_ge_u32 s{S_NT}, 10")
        a(f"s_cbranch_scc1 L_p1_N")
        self.warm_fill = True
        self.p1_epi_T_pre()
        self.g1_compute("T", "p1T")
        self.stamp(2)
        self.p1_epi_T()
        a(f"s_branch L_p1_done")
        a.put("L_p1_N")
        self.p1_epi_N_pre()
        self.g1_compute("N", "p1N")
        self.warm_fill = False
        self.stamp(2)
        self.p1_epi_N()
        a.put("L_p1_done")
        self.stamp(3)

    def poll(self, addr_regs, masks, tagname):
        a = self.a
        T = self.V_S - 8
        L = f"L_{tagname}_poll"; Lo = f"L_{tagname}_pollok"
        a(f"s_mov_b32 s{S_T0}, 0")
        a.put(L)
        for k, (ar, mk) in enumerate(zip(addr_regs, masks)):
            self.set_exec(mk)
            a(f"buffer_load_dword v{T+20+k}, v{ar}, s[{SRD_F}:{SRD_F+3}], 0 offen sc1")
        a(f"s_waitcnt vmcnt(0)")
        a(f"s_mov_b64 s[{S_SAVE}:{S_SAVE+1}], 0")
        for k, (ar, mk) in enumerate(zip(addr_regs, masks)):
            self.set_exec(mk)
            a(f"v_cmp_ne_u32 vcc, s{S_TAG}, v{T+20+k}")
            a(f"s_or_b64 s[{S_SAVE}:{S_SAVE+1}], s[{S_SAVE}:{S_SAVE+1}], vcc")
        a(f"s_mov_b64 exec, -1")
        a(f"s_cmp_eq_u64 s[{S_SAVE}:{S_SAVE+1}], 0")
        a(f"s_cbranch_scc1 {Lo}")
        a(f"s_add_u32 s{S_T0}, s{S_T0}, 1")
        a(f"s_cmp_lt_u32 s{S_T0}, 0x40000")
        a(f"s_cbranch_scc1 {L}")
        a.put(Lo)

    def p1_signal(self):
        a = self.a
        T = self.V_S
        Ls = "L_p1sig_skip"
        a(f"s_cmp_lg_u32 s{S_W}, {self.SIGW}")
        a(f"s_cbranch_scc1 {Ls}p")
        a(f"v_lshrrev_b32 v{T}, 3, v1")
        a(f"v_and_b32 v{T+1}, 7, v1")
        Ln = "L_p1sig_null"; Lj = "L_p1sig_join"
        a(f"s_cmp_eq_u32 s{S_NT}, 15")
        a(f"s_cbranch_scc1 {Ln}")
        a(f"s_cmp_ge_u32 s{S_NT}, 10")
        a(f"s_cselect_b32 s{S_T0}, 10, 5")
        a(f"s_cmp_lt_u32 s{S_NT}, 5")
        a(f"s_cselect_b32 s{S_T0}, 0, s{S_T0}")
        a(f"s_sub_u32 s{S_T0}, s{S_NT}, s{S_T0}")
        a(f"s_lshl_b32 s{S_T0}, s{S_T0}, 7")
        a(f"s_mul_i32 s{S_T1}, s{S_T0}, 52429")
        a(f"s_lshr_b32 s{S_T1}, s{S_T1}, 20")
        a(f"s_add_u32 s{S_T2}, s{S_T0}, 127")
        a(f"s_mul_i32 s{S_T2}, s{S_T2}, 52429")
        a(f"s_lshr_b32 s{S_T2}, s{S_T2}, 20")
        a(f"s_min_u32 s{S_T2}, s{S_T2}, 31")
        a(f"v_add_u32 v{T+2}, s{S_T1}, v{T}")
        a(f"v_cmp_ge_u32 vcc, s{S_T2}, v{T+2}")
        a(f"s_mov_b64 s[{S_SAVE}:{S_SAVE+1}], vcc")
        a(f"s_cmp_lt_u32 s{S_NT}, 5")
        a(f"s_cbranch_scc0 {Lj}")
        a(f"s_lshr_b32 s{S_T3}, s{S_MT}, 1")
        a(f"v_cmp_eq_u32 vcc, s{S_T3}, v{T+1}")
        a(f"s_and_b64 s[{S_SAVE}:{S_SAVE+1}], s[{S_SAVE}:{S_SAVE+1}], vcc")
        a(f"s_branch {Lj}")
        a.put(Ln)
        a(f"v_lshlrev_b32 v{T+2}, 4, v{T}")
        a(f"v_add_u32 v{T+2}, s{S_MT}, v{T+2}")
        a(f"v_cmp_gt_u32 vcc, 2, v{T}")
        a(f"s_mov_b64 s[{S_SAVE}:{S_SAVE+1}], vcc")
        a.put(Lj)
        a(f"v_and_b32 v{T+4}, 3, v{T+2}")
        a(f"v_lshl_add_u32 v{T+4}, v{T+1}, 2, v{T+4}")
        a(f"v_lshrrev_b32 v{T+2}, 2, v{T+2}")
        a(f"v_lshl_add_u32 v{T+2}, v{T+4}, 3, v{T+2}")
        a(f"v_lshlrev_b32 v{T+2}, 10, v{T+2}")
        a(f"s_lshl_b32 s{S_T0}, s2, 2")
        a(f"s_add_u32 s{S_T0}, s{S_T0}, {OFF_MB1}")
        a(f"v_add_u32 v{T+2}, s{S_T0}, v{T+2}")
        a(f"v_mov_b32 v{T+3}, s{S_TAG}")
        a(f"s_lshl_b32 s{S_T0}, s2, 2")
        a(f"s_add_u32 s{S_T0}, s{S_T0}, {OFF_ALL}")
        a(f"v_mov_b32 v{T+5}, s{S_T0}")
        a(f"s_add_u32 s{S_T1}, s{S_TAG}, s{S_XCC}")
        a(f"v_mov_b32 v{T+6}, s{S_T1}")
        a.put(Ls + "p")
        a(f"s_waitcnt vmcnt(0) lgkmcnt(0)")
        self.stamp(4)
        a(f"s_barrier")
        a(f"s_cmp_lg_u32 s{S_W}, {self.SIGW}")
        a(f"s_cbranch_scc1 {Ls}")
        a(f"s_mov_b64 exec, s[{S_SAVE}:{S_SAVE+1}]")
        a(f"buffer_store_dword v{T+3}, v{T+2}, s[{SRD_F}:{SRD_F+3}], 0 offen sc1")
        a(f"s_mov_b64 exec, 1")
        a(f"buffer_store_dword v{T+6}, v{T+5}, s[{SRD_F}:{SRD_F+3}], 0 offen sc1")
        a(f"s_mov_b64 exec, -1")
        a.put(Ls)

    def finish_tag_once(self):
        a = self.a
        a(f"s_mul_i32 s{S_TAG}, s{S_TAG}, 0x9E3779B1")
        a(f"s_add_u32 s{S_TAG}, s{S_TAG}, 0x7F4A7C15")

    def p2_wait_prep(self):
        a = self.a
        T = self.V_S + 16
        Ls = "L_p2w_skip"
        a(f"s_cmp_lg_u32 s{S_W}, {self.POLLW}")
        a(f"s_cbranch_scc1 {Ls}")
        a(f"s_mul_i32 s{S_T1}, s{S_HEAD}, 20")
        a(f"v_bfe_u32 v{T}, v1, 4, 1")
        a(f"v_mul_u32_u24 v{T}, 19, v{T}")
        a(f"v_add_u32 v{T}, s{S_T1}, v{T}")
        a(f"v_lshrrev_b32 v{T}, 7, v{T}")
        a(f"v_lshrrev_b32 v{T+1}, 5, v1")
        a(f"v_mul_u32_u24 v{T+1}, 5, v{T+1}")
        a(f"v_add_u32 v{T+2}, v{T}, v{T+1}")
        a(f"v_add_u32 v{T+2}, 5, v{T+2}")
        a(f"v_and_b32 v{T+3}, 15, v1")
        self.vprod(T+4, T+3, T+2, T+10)
        a(f"v_bfe_u32 v{T}, v1, 1, 1")
        a(f"v_mul_u32_u24 v{T}, 19, v{T}")
        a(f"v_add_u32 v{T}, s{S_T1}, v{T}")
        a(f"v_lshrrev_b32 v{T+2}, 7, v{T}")
        a(f"v_and_b32 v{T+3}, 1, v1")
        a(f"s_lshl_b32 s{S_T2}, s{S_QB}, 1")
        a(f"v_add_u32 v{T+3}, s{S_T2}, v{T+3}")
        a(f"v_cmp_eq_u32 vcc, 4, v1")
        a(f"s_and_b32 s{S_T2}, s{S_HEAD}, 15")
        a(f"v_mov_b32 v{T+6}, s{S_T2}")
        a(f"v_mov_b32 v{T+7}, 15")
        a(f"v_cndmask_b32 v{T+3}, v{T+3}, v{T+6}, vcc")
        a(f"v_cndmask_b32 v{T+2}, v{T+2}, v{T+7}, vcc")
        self.vprod(T+5, T+3, T+2, T+10)
        a(f"s_lshl_b32 s{S_T2}, s2, 10")
        a(f"s_add_u32 s{S_T2}, s{S_T2}, {OFF_MB1}")
        for r in (T+4, T+5):
            a(f"v_lshlrev_b32 v{r}, 2, v{r}")
            a(f"v_add_u32 v{r}, s{S_T2}, v{r}")
        a.put(Ls)

    def p2_wait(self):
        a = self.a
        T = self.V_S + 16
        Ls = "L_p2w_skip2"
        a(f"s_cmp_lg_u32 s{S_W}, {self.POLLW}")
        a(f"s_cbranch_scc1 {Ls}")
        self.V_S += 16
        self.poll([T+4, T+5], ["-1", "0x1f"], "p2w")
        self.V_S -= 16
        a.put(Ls)
        a(f"s_barrier")

    def vprod(self, dst, mt, nt, tmp):
        a = self.a
        a(f"v_and_b32 v{dst}, 3, v{mt}")
        a(f"v_and_b32 v{tmp}, 7, v{nt}")
        a(f"v_lshl_add_u32 v{dst}, v{tmp}, 2, v{dst}")
        a(f"v_lshlrev_b32 v{dst}, 3, v{dst}")
        a(f"v_lshrrev_b32 v{tmp}, 2, v{mt}")
        a(f"v_add_u32 v{dst}, v{dst}, v{tmp}")
        a(f"v_lshrrev_b32 v{tmp}, 3, v{nt}")
        a(f"v_lshl_add_u32 v{dst}, v{tmp}, 2, v{dst}")

    def group_barrier(self, phase, tagname, tgt=None, slot=None, hook=None, local=False):
        a = self.a
        T = self.V_S
        gs = (tagname in self.opt)
        Ls = f"L_{tagname}_gskip"
        tgt = S_GX if tgt is None else tgt
        slot = S_GI if slot is None else slot
        a(f"v_lshlrev_b32 v{T}, 3, v1")
        a(f"v_add_u32 v{T}, s{tgt}, v{T}")
        a(f"v_lshlrev_b32 v{T}, 7, v{T}")
        a(f"s_lshl_b32 s{S_T1}, s{slot}, 2")
        a(f"s_add_u32 s{S_T1}, s{S_T1}, {OFF_GB + phase*256*128}")
        a(f"v_add_u32 v{T}, s{S_T1}, v{T}")
        a(f"v_mov_b32 v{T+1}, s{S_TAG}")
        a(f"s_waitcnt vmcnt(0) lgkmcnt(0)")
        if gs: self.stamp(15)
        a(f"s_barrier")
        if gs: self.stamp(16)
        a(f"s_cmp_lg_u32 s{S_W}, {self.POLLW}")
        a(f"s_cbranch_scc1 {Ls}0")
        self.set_exec(0xffffffff)
        if local:
            a(f"s_cmp_eq_u32 s{S_FAST}, 1")
            a(f"s_cbranch_scc1 {Ls}f")
            a(f"buffer_store_dword v{T+1}, v{T}, s[{SRD_F}:{SRD_F+3}], 0 offen sc1")
            a(f"s_branch {Ls}g")
            a.put(Ls + "f")
            a(f"buffer_store_dword v{T+1}, v{T}, s[{SRD_F}:{SRD_F+3}], 0 offen")
            a.put(Ls + "g")
        else:
            a(f"buffer_store_dword v{T+1}, v{T}, s[{SRD_F}:{SRD_F+3}], 0 offen sc1")
        a(f"s_mov_b64 exec, -1")
        a.put(Ls + "0")
        if hook: hook()
        if gs: self.stamp(17)
        a(f"s_cmp_lg_u32 s{S_W}, {self.POLLW}")
        a(f"s_cbranch_scc1 {Ls}")
        a(f"s_lshl_b32 s{S_T0}, s2, 7")
        a(f"s_add_u32 s{S_T0}, s{S_T0}, {OFF_GB + phase*256*128}")
        a(f"v_lshlrev_b32 v{T+2}, 2, v1")
        a(f"v_add_u32 v{T+2}, s{S_T0}, v{T+2}")
        self.poll([T+2], ["0xffffffff"], tagname)
        a.put(Ls)
        a(f"s_barrier")

    A_QA = 4; A_QB = 12
    A_K = 20
    A_V1 = 36; A_V2 = 40
    A_SA = 44; A_SB = 60; A_P = 76; A_OA = 84; A_OB = 100; A_AK = 116; A_AV = 117; A_DV = 118; A_ALLA = 119; A_T = 120; A_ALL = 132
    S_VMASK = 92
    S_NEXTB = 94; S_DSO = 95; S_LOW = 65; S_NEXTM = 69
    p2_nu = 4
    low_tiles = 1
    S_D = [6, 7, 8, 9, 16, 17]
    S_WOI = [51, 53]
    S_WOBK = 62
    S_WOM = 68
    low_pos = (3, 10, 18, 29)
    warm_slots = {'dst': 48, 'w1': 50}
    def p2_unrolled(self):
        a = self.a
        D = self.S_D
        def kv():
            a(f"s_mov_b32 m0, s{self.S_DSO}")
            a(f"s_nop 0")
            a(f"buffer_load_dwordx4 v{self.A_DV}, s[{SRD_A}:{SRD_A+3}], s{self.S_DSO} offen sc1 lds")
            a(f"s_add_u32 s{self.S_DSO}, s{self.S_DSO}, 4096")
        def w2(g):
            R = 144 + 4*g
            a(f"buffer_load_dwordx4 v[{R}:{R+3}], v{self.A_ALLA}, s[{SRD_W}:{SRD_W+3}], s{S_SW} offen {self.ld_aux}")
            a(f"s_add_u32 s{S_SW}, s{S_SW}, s{D[g % 6]}")
        def wo(idx):
            a(f"s_mov_b32 m0, s{self.S_WOB}")
            a(f"s_add_u32 s{self.S_WOB}, s{self.S_WOB}, s{self.S_WOI[1 if idx == 4 else 0]}")
            if idx >= 10:
                a(f"s_cmp_lt_u32 s{S_W}, 4")
                a(f"s_cbranch_scc1 L_wo_sk{idx}")
            a(f"buffer_load_dwordx4 v{self.A_DV}, s[{SRD_T}:{SRD_T+3}], s{self.S_WOS} offen {self.ld_aux} lds")
            if idx >= 10: a.put(f"L_wo_sk{idx}")
            a(f"s_add_u32 s{self.S_WOS}, s{self.S_WOS}, s{D[idx % 6]}")
        slot_ops = {}
        def put(x, k_, arg=None): slot_ops.setdefault(x, []).append((k_, arg))
        for i in range(5): put(8 + i, "kv")
        for i in range(6): put(24 + i, "kv")
        free = [x for x in range(13, 40) if x not in range(24, 30)]
        dbl = set(free[1::3][:7])
        g = 0
        for x in free:
            put(x, "w2", g); g += 1
            if x in dbl:
                put(x, "w2", g); g += 1
        assert g == 28, g
        for i in range(15): put(40 + i//2, "wo", i)
        for k_, x in self.warm_slots.items(): put(x, k_)
        def cnt(lo, hi):
            return sum(1 for x in range(lo, hi) for k_, _ in slot_ops.get(x, []) if k_ in ("kv", "w2", "wo"))
        lowpos = set(self.low_pos)
        noprio = "noprio" in self.opt
        if not noprio:
            a(f"s_setprio 1")
            self.p2_setprio(2, "init")
        a(f"s_nop 7"); a(f"s_nop 3")
        base = 0
        for t in range(32):
            if t == 16:
                a(f"v_add_u32 v{self.A_AK}, {16*2560}, v{self.A_AK}")
                a(f"v_add_u32 v{self.A_AV}, {16*2560}, v{self.A_AV}")
                base = 16
            if t in (4, 12, 20):
                vm = 0 if t == 4 else (cnt(13, 24) if t == 12 else cnt(30, 40))
                a(f"s_waitcnt vmcnt({vm})")
                if t == 4:
                    self.p2_check_all()
                    self.g2_wsetup(5, SRD_W, S_SW, self.A_ALLA)
                    self.p2_w2_consts()
                a(f"s_barrier")
                if not noprio: self.p2_setprio(2, f"h{t}")
                if t == 20: self.wo_setup2()
            if t in lowpos and not noprio: self.p2_setprio(0, f"l{t}")
            for st in (0, 1):
                self.p2_sub(st, t - base)
                for k_, arg in slot_ops.get(2*t + st, []):
                    self.evtag = "u"
                    if k_ == "kv": kv()
                    elif k_ == "w2":
                        if "evnow2" not in self.opt: w2(arg)
                    elif k_ == "wo":
                        if "evnowo" not in self.opt: wo(arg)
                    elif k_ == "dst":
                        if "nodstw" not in self.opt: self.dst_l2warm()
                    elif k_ == "w1":
                        if "now1w" not in self.opt: self.w1_l2warm()
                    elif k_ == "wp":
                        if "nowpw" not in self.opt: self.wp_l2warm()

    def p2_w2_consts(self):
        a = self.a
        D = self.S_D
        incB = [1024, 162816]*3
        incA = [161792, 1024, 1024]*2
        a(f"s_cmp_lt_u32 s{S_W}, 4")
        for k in range(6):
            x, y = incB[k], incA[k]
            if x == y: a(f"s_mov_b32 s{D[k]}, {x}")
            else: self.csel(D[k], x, y)
        a(f"s_cselect_b32 s{S_T0}, 0, {5*163840 - 161792}")
        a(f"s_add_u32 s{S_SW}, s{S_SW}, s{S_T0}")

    def wo_setup2(self):
        a = self.a
        D = self.S_D
        self.g2_wsetup(3, SRD_T, self.S_WOS, self.A_DV)
        self.wo_lds_base(self.S_WOB)
        a(f"s_mov_b32 s{self.S_WOBK}, s{self.S_WOB}")
        a(f"s_cmp_eq_u32 s{S_W}, 3")
        a(f"s_cselect_b32 s{self.S_WOB2}, {128000-5120}, s{self.S_WOB}")
        a(f"s_mov_b32 s{self.S_WOI[0]}, 1024")
        a(f"s_cselect_b32 s{self.S_WOI[1]}, {128000 - (46080 + 4096)}, s{self.S_WOI[0]}")
        incB = [1024, 162816]*3
        incA = [1024, 1024, 161792]*2
        a(f"s_cmp_lt_u32 s{S_W}, 4")
        for k in range(6):
            x, y = incB[k], incA[k]
            if x == y: a(f"s_mov_b32 s{D[k]}, {x}")
            else: self.csel(D[k], x, y)


    def p2_kreads(self, kb, toff):
        a = self.a
        K = self.A_K + 8*kb
        a(f"ds_read_b64 v[{K}:{K+1}], v{self.A_AK} offset:{toff}")
        a(f"ds_read_b64 v[{K+2}:{K+3}], v{self.A_AK} offset:{toff+256}")
        a(f"ds_read_b64 v[{K+4}:{K+5}], v{self.A_AK} offset:{toff+1024}")
    def p2_vread(self, which, toff):
        a = self.a
        R = self.A_V1 if which == 0 else self.A_V2
        a(f"s_mov_b64 exec, s[{self.S_VMASK}:{self.S_VMASK+1}]")
        a(f"ds_read_b128 v[{R}:{R+3}], v{self.A_AV} offset:{toff+640*which}")
        a(f"s_mov_b64 exec, -1")
    def p2_smfma(self, which, S, kb, Q):
        a = self.a
        K = self.A_K + 8*kb
        if which == 0:
            a(f"v_mfma_f32_32x32x16_bf16 v[{S}:{S+15}], v[{K}:{K+3}], v[{Q}:{Q+3}], 0")
        else:
            a(f"v_mfma_f32_32x32x16_bf16 v[{S}:{S+15}], v[{K+4}:{K+7}], v[{Q+4}:{Q+7}], v[{S}:{S+15}]")

    A_V2B = 128
    def p2_sub(self, stream, u):
        a = self.a
        P = self.A_P
        p = u & 1
        V2 = (self.A_V2, self.A_V2B)
        Sc, Sn = (self.A_SA, self.A_SB) if stream == 0 else (self.A_SB, self.A_SA)
        Oc, Op = (self.A_OA, self.A_OB) if stream == 0 else (self.A_OB, self.A_OA)
        Qn = self.A_QB if stream == 0 else self.A_QA
        kb = p if stream == 0 else 1 - p
        v2 = V2[1-p] if stream == 0 else V2[p]
        ex = lambda i: a(f"v_exp_f32 v{Sc+i}, v{Sc+i}")
        cv = lambda k: a(f"v_cvt_pk_bf16_f32 v{P+k}, v{Sc+2*k}, v{Sc+2*k+1}")
        cvp = lambda k: a(f"v_cvt_pk_bf16_f32 v{P+k}, v{Sn+2*k}, v{Sn+2*k+1}")
        var = getattr(self, "sub_variant", None) or "v1"
        tn = (u+1)*2560
        def rdV():
            a(f"s_mov_b64 exec, s[{self.S_VMASK}:{self.S_VMASK+1}]")
            a(f"ds_read_b128 v[{self.A_V1}:{self.A_V1+3}], v{self.A_AV} offset:{tn}")
            R = V2[1-p]
            a(f"ds_read_b128 v[{R}:{R+3}], v{self.A_AV} offset:{tn+640}")
            a(f"s_mov_b64 exec, -1")
        def rdK(i):
            K = self.A_K + 8*p; toff = (u+2)*2560
            if i == 0: a(f"ds_read_b64 v[{K}:{K+1}], v{self.A_AK} offset:{toff}")
            if i == 1: a(f"ds_read_b64 v[{K+2}:{K+3}], v{self.A_AK} offset:{toff+256}")
            if i == 2: a(f"ds_read_b64 v[{K+4}:{K+5}], v{self.A_AK} offset:{toff+1024}")
        m1 = lambda: self.p2_smfma(0, Sn, kb, Qn)
        m2 = lambda: self.p2_smfma(1, Sn, kb, Qn)
        m4 = lambda: a(f"v_mfma_f32_32x32x16_bf16 v[{Op}:{Op+15}], v[{v2}:{v2+3}], v[{P+4}:{P+7}], v[{Op}:{Op+15}]")
        m3 = lambda: a(f"v_mfma_f32_32x32x16_bf16 v[{Oc}:{Oc+15}], v[{self.A_V1}:{self.A_V1+3}], v[{P}:{P+3}], v[{Oc}:{Oc+15}]")
        wt = lambda: a(f"s_waitcnt lgkmcnt(0)")
        if var == "pure":
            ex(0); cvp(6); ex(1); ex(2); cvp(7); ex(3); m1(); ex(4); cv(0); ex(5); ex(6); cv(1); ex(7); m2()
            ex(8); cv(2); ex(9); ex(10); cv(3); ex(11); m4(); ex(12); cv(4); ex(13); ex(14); cv(5); ex(15); m3()
        elif var == "v0":
            ex(0); cvp(6); ex(1); ex(2); cvp(7); ex(3); m1(); ex(4); cv(0); ex(5); ex(6); cv(1); ex(7); m2()
            ex(8); cv(2); ex(9); ex(10); cv(3); ex(11); m4(); ex(12); cv(4); ex(13); ex(14); cv(5); ex(15)
            if stream == 0: wt()
            m3()
            if stream == 1:
                rdV(); rdK(0); rdK(1); rdK(2)
        elif var == "v1":
            ex(0); cvp(6); ex(1); ex(2); cvp(7); ex(3); m1()
            if stream == 1: rdK(0)
            ex(4); cv(0); ex(5); ex(6); cv(1); ex(7); m2()
            if stream == 1: rdK(1)
            ex(8); cv(2); ex(9); ex(10); cv(3); ex(11); m4()
            if stream == 1: rdK(2)
            ex(12); cv(4); ex(13); ex(14); cv(5); ex(15)
            if stream == 0: wt()
            m3()
            if stream == 1: rdV()
        elif var == "v2":
            ex(0); cvp(6); ex(1); ex(2); cvp(7); ex(3); m1()
            if stream == 1: rdK(1)
            ex(4); cv(0); ex(5); ex(6); cv(1); ex(7); m2()
            if stream == 1: rdK(2)
            ex(8); cv(2); ex(9); ex(10); cv(3); ex(11); m4()
            if stream == 0: rdK(0)
            ex(12); cv(4); ex(13); ex(14); cv(5); ex(15)
            if stream == 0: a(f"s_waitcnt lgkmcnt(1)")
            m3()
            if stream == 1: rdV()
        elif var == "v3":
            ex(0); cvp(6); ex(1); ex(2); cvp(7); ex(3); m1()
            if stream == 1: rdK(0)
            ex(4); cv(0); ex(5); ex(6); cv(1); ex(7); m2()
            if stream == 1: rdK(1)
            ex(8); cv(2); ex(9); ex(10); cv(3); ex(11); m4()
            if stream == 1: rdK(2)
            ex(12); cv(4); ex(13); ex(14); cv(5); ex(15)
            if stream == 0: wt()
            m3()
            if stream == 1:
                a(f"ds_read_b128 v[{self.A_V1}:{self.A_V1+3}], v{self.A_AV} offset:{tn}")
                R = V2[1-p]
                a(f"ds_read_b128 v[{R}:{R+3}], v{self.A_AV} offset:{tn+640}")

    def prio_reg(self, stream):
        return self._prio[stream]

    def p2_check_all(self):
        a = self.a
        X = self.A_ALL; T = self.A_T
        L = "L_p2_all"; Lo = "L_p2_allok"
        a(f"s_mov_b32 s{S_T0}, 0")
        a.put(L)
        for r in range(4):
            a(f"v_subrev_u32 v{T+r}, s{S_TAG}, v{X+r}")
        a(f"v_cmp_le_u32 vcc, 16, v{T}")
        for r in range(1, 4):
            a(f"v_cmp_le_u32 s[{S_SAVE}:{S_SAVE+1}], 16, v{T+r}")
            a(f"s_nop 0")
            a(f"s_or_b64 vcc, vcc, s[{S_SAVE}:{S_SAVE+1}]")
        a(f"s_cbranch_vccz {Lo}")
        a(f"s_add_u32 s{S_T0}, s{S_T0}, 1")
        a(f"s_cmp_ge_u32 s{S_T0}, 0x40000")
        a(f"s_cbranch_scc1 {Lo}")
        a(f"buffer_load_dwordx4 v[{X}:{X+3}], v{self.A_ALLA}, s[{SRD_F}:{SRD_F+3}], 0 offen sc1")
        a(f"s_waitcnt vmcnt(0)")
        a(f"s_branch {L}")
        a.put(Lo)
        a(f"s_and_b32 s{S_T1}, s{S_GX}, 3")
        for r in range(1, 4):
            a(f"s_cmp_eq_u32 s{S_T1}, {r}")
            a(f"s_cselect_b64 s[{S_SAVE}:{S_SAVE+1}], -1, 0")
            a(f"v_cndmask_b32 v{T}, v{T}, v{T+r}, s[{S_SAVE}:{S_SAVE+1}]")
        a(f"v_cmp_ne_u32 vcc, s{S_XCC}, v{T}")
        a(f"s_mov_b32 s{S_T2}, 0x55555555")
        a(f"s_lshr_b32 s{S_T1}, s{S_GX}, 2")
        a(f"s_lshl_b32 s{S_T2}, s{S_T2}, s{S_T1}")
        a(f"s_and_b32 s{S_T3}, vcc_lo, s{S_T2}")
        a(f"s_and_b32 s{S_T4}, vcc_hi, s{S_T2}")
        a(f"s_or_b32 s{S_T3}, s{S_T3}, s{S_T4}")
        a(f"s_cmp_eq_u32 s{S_T3}, 0")
        a(f"s_cselect_b32 s{S_FAST}, {0 if 'nofast' in self.opt else 1}, 0")

    prio_low = (0, 2, 4, 7)
    def p2_setprio(self, lvl, tag):
        a = self.a
        L = f"L_p2_pr{tag}"
        a(f"s_cmp_ge_u32 s{S_W}, 4")
        a(f"s_cbranch_scc1 {L}")
        a(f"s_setprio {lvl}")
        a.put(L)

    def p2_dma(self, n):
        a = self.a
        for i in range(n):
            a(f"s_mov_b32 m0, s{self.S_DSO}")
            a(f"s_nop 0")
            a(f"buffer_load_dwordx4 v{self.A_DV}, s[{SRD_A}:{SRD_A+3}], s{self.S_DSO} offen sc1 lds")
            a(f"s_add_u32 s{self.S_DSO}, s{self.S_DSO}, 4096")

    def p2_setup(self):
        a = self.a
        T = self.A_T
        a(f"s_lshl_b32 s{S_HEAD}, s{S_GX}, 2")
        a(f"s_and_b32 s{S_T0}, s{S_GI}, 3")
        a(f"s_add_u32 s{S_HEAD}, s{S_HEAD}, s{S_T0}")
        a(f"s_lshr_b32 s{S_QB}, s{S_GI}, 2")
        a(f"s_mul_i32 s{S_T0}, s{S_HEAD}, 163840")
        a(f"s_add_u32 s{S_T0}, s{S_T0}, {hex(OFF_KV)}")
        a(f"s_add_u32 s{SRD_A}, s{S_WS}, s{S_T0}")
        a(f"s_addc_u32 s{SRD_A+1}, s{S_WS+1}, 0")
        a(f"s_mov_b32 s{SRD_A+2}, 163840")
        a(f"s_mov_b32 s{SRD_A+3}, 0x20000")
        a(f"s_lshl_b32 s{S_T0}, s{S_HEAD}, 6")
        a(f"s_lshl_b32 s{S_T1}, s{S_QB}, 3")
        a(f"s_add_u32 s{S_T0}, s{S_T0}, s{S_T1}")
        a(f"s_and_b32 s{S_T1}, s{S_W}, 3")
        a(f"s_lshl_b32 s{S_T1}, s{S_T1}, 1")
        a(f"s_add_u32 s{S_T0}, s{S_T0}, s{S_T1}")
        a(f"s_mul_i32 s{S_T0}, s{S_T0}, 1280")
        a(f"s_add_u32 s{S_T0}, s{S_T0}, {hex(OFF_Q)}")
        a(f"s_add_u32 s{SRD_W}, s{S_WS}, s{S_T0}")
        a(f"s_addc_u32 s{SRD_W+1}, s{S_WS+1}, 0")
        a(f"s_mov_b32 s{SRD_W+2}, 2560")
        a(f"s_mov_b32 s{SRD_W+3}, 0x20000")
        a(f"v_and_b32 v{T}, 31, v1")
        a(f"v_lshrrev_b32 v{T+1}, 5, v1")
        a(f"v_lshlrev_b32 v{T+2}, 3, v{T}")
        a(f"v_lshl_add_u32 v{T+4}, v{T+1}, 9, v{T+2}")
        a(f"v_lshlrev_b32 v{T+3}, 12, v{T+1}")
        a(f"v_add_u32 v{T+3}, v{T+3}, v{T+2}")
        a(f"v_lshlrev_b32 v{self.A_DV}, 4, v1")
        a(f"v_add_u32 v{self.A_ALLA}, {OFF_ALL}, v{self.A_DV}")
        a(f"s_lshr_b32 s{S_T0}, s{S_W}, 2")
        a(f"s_mul_i32 s{S_T0}, s{S_T0}, 81920")
        a(f"s_and_b32 s{S_T1}, s{S_W}, 3")
        a(f"s_lshl_b32 s{S_T1}, s{S_T1}, 10")
        a(f"s_add_u32 s{self.S_DSO}, s{S_T0}, s{S_T1}")
        for Q in (self.A_QA, self.A_QB):
            a(f"v_mov_b32 v{Q+6}, 0"); a(f"v_mov_b32 v{Q+7}, 0")
        for kb in range(2):
            a(f"v_mov_b32 v{self.A_K+8*kb+6}, 0"); a(f"v_mov_b32 v{self.A_K+8*kb+7}, 0")
        a(f"v_cmp_eq_u32 vcc, 20, v{T}")
        a(f"v_mov_b32 v{T+5}, 0x3f803f80")
        a(f"v_mul_u32_u24 v{T+6}, 320, v{T+1}")
        a(f"v_cndmask_b32 v{self.A_V1}, 0, v{T+5}, vcc")
        for r in range(1, 8):
            a(f"v_mov_b32 v{self.A_V1+r}, v{self.A_V1}")
        for r in range(4):
            a(f"v_mov_b32 v{self.A_V2B+r}, v{self.A_V1}")
        a(f"v_lshl_add_u32 v{self.A_AV}, v{T}, 4, v{T+6}")
        a(f"v_add_u32 v{self.A_AV}, 1280, v{self.A_AV}")
        a(f"v_add_u32 v{self.A_AK}, s{S_T0}, v{T+4}")
        a(f"v_add_u32 v{self.A_AV}, s{S_T0}, v{self.A_AV}")
        a(f"s_mov_b32 s{self.S_VMASK}, 0xfffff")
        a(f"s_mov_b32 s{self.S_VMASK+1}, 0xfffff")
        for r in range(16):
            a(f"v_mov_b32 v{self.A_OA+r}, 0"); a(f"v_mov_b32 v{self.A_OB+r}, 0")
        for r in range(8):
            a(f"v_mov_b32 v{self.A_P+r}, 0")
        for r in range(12, 16):
            a(f"v_mov_b32 v{self.A_SB+r}, 0")
        a(f"s_and_b32 s{S_T2}, s{S_W}, 3")
        a(f"s_lshr_b32 s{S_T3}, s{S_W}, 2")
        a(f"s_lshl_b32 s{S_T0}, s{S_QB}, 2")
        a(f"s_add_u32 s{S_T0}, s{S_T0}, s{S_T2}")
        a(f"s_mul_i32 s{S_T0}, s{S_T0}, 81920")
        a(f"s_lshl_b32 s{S_T1}, s{S_T3}, 11")
        a(f"s_add_u32 s{S_CNT}, s{S_T0}, s{S_T1}")
        a(f"v_bfe_u32 v{T+3+4}, v1, 4, 1")
        a(f"v_lshlrev_b32 v{T+7}, 10, v{T+7}")
        a(f"v_and_b32 v{T+6}, 15, v1")
        a(f"v_lshl_add_u32 v{T+7}, v{T+6}, 4, v{T+7}")
        a(f"s_mul_i32 s{S_T1}, s{S_HEAD}, 20")
        for g in range(3):
            D_ = self.A_OAD + g
            a(f"v_lshlrev_b32 v{T+6}, 2, v{T+1}")
            a(f"s_add_u32 s{S_T2}, s{S_T1}, {8*g}")
            a(f"v_add_u32 v{T+6}, s{S_T2}, v{T+6}")
            a(f"v_lshrrev_b32 v{D_}, 5, v{T+6}")
            a(f"v_lshlrev_b32 v{D_}, 12, v{D_}")
            a(f"v_bfe_u32 v{T+5}, v{T+6}, 3, 2")
            a(f"v_lshl_add_u32 v{D_}, v{T+5}, 8, v{D_}")
            a(f"v_and_b32 v{T+5}, 7, v{T+6}")
            a(f"v_lshl_add_u32 v{D_}, v{T+5}, 1, v{D_}")
            a(f"v_add_u32 v{D_}, v{D_}, v{T+7}")

    A_OAD = 140
    def p2(self):
        a = self.a
        T = self.A_T
        self.stamp(5)
        self.p2_wait()
        self.stamp(6)
        self.p2_dma(2)
        for qi, Q in enumerate((self.A_QA, self.A_QB)):
            a(f"buffer_load_dwordx2 v[{Q}:{Q+1}], v{T+4}, s[{SRD_W}:{SRD_W+3}], 0 offen offset:{1280*qi} sc1")
            a(f"buffer_load_dwordx2 v[{Q+2}:{Q+3}], v{T+4}, s[{SRD_W}:{SRD_W+3}], 0 offen offset:{1280*qi+256} sc1")
            a(f"buffer_load_dwordx2 v[{Q+4}:{Q+5}], v{T+3}, s[{SRD_W}:{SRD_W+3}], 0 offen offset:{1280*qi+1024} sc1")
        self.p2_dma(2)
        a(f"buffer_load_dwordx4 v[{self.A_ALL}:{self.A_ALL+3}], v{self.A_ALLA}, s[{SRD_F}:{SRD_F+3}], 0 offen sc1")
        self.p2_dma(4)
        a(f"s_waitcnt vmcnt(5)")
        a(f"s_barrier")
        self.stamp(7)
        self.p2_dma(1)
        self.p2_kreads(0, 0)
        self.p2_kreads(1, 2560)
        self.p2_vread(0, 0)
        self.p2_vread(1, 0)
        a(f"s_waitcnt lgkmcnt(0)")
        self.p2_smfma(0, self.A_SA, 0, self.A_QA); self.p2_smfma(1, self.A_SA, 0, self.A_QA)
        self.p2_unrolled()
        a.put("L_p2_done")
        a(f"s_setprio 0")
        P = self.A_P; SBr = self.A_SB
        a(f"s_waitcnt lgkmcnt(0)")
        a(f"v_cvt_pk_bf16_f32 v{P+6}, v{SBr+12}, v{SBr+13}")
        a(f"v_cvt_pk_bf16_f32 v{P+7}, v{SBr+14}, v{SBr+15}")
        a(f"s_nop 1")
        a(f"v_mfma_f32_32x32x16_bf16 v[{self.A_OB}:{self.A_OB+15}], v[{self.A_V2B}:{self.A_V2B+3}], v[{P+4}:{P+7}], v[{self.A_OB}:{self.A_OB+15}]")
        self.stamp(8)
        self.p2_epilogue()

    def p2_epilogue(self):
        a = self.a
        T = self.A_T
        self.srd(SRD_O, S_WS, OFF_O, SZ_O)
        a(f"s_mov_b32 s{self.S_SLOWDONE}, {1 if 'noslow' in self.opt else 0}")
        a(f"s_mov_b32 s{self.S_BIG}, {hex(f32(2.0**60))}")
        if "forceslow" in self.opt: a(f"s_mov_b32 s{self.S_BIG}, 0")
        a(f"s_nop 7"); a(f"s_nop 3")
        a(f"s_barrier")
        a(f"s_and_b32 s{S_T0}, s{S_W}, 3")
        a(f"s_lshr_b32 s{S_T1}, s{S_W}, 2")
        a(f"s_lshl_b32 s{S_T0}, s{S_T0}, 1")
        a(f"s_add_u32 s{S_T2}, s{S_T0}, s{S_T1}")
        a(f"s_xor_b32 s{S_T3}, s{S_T2}, 1")
        a(f"s_mul_i32 s{S_T2}, s{S_T2}, 3072")
        a(f"s_mul_i32 s{S_T3}, s{S_T3}, 3072")
        a(f"s_add_u32 s{S_T2}, s{S_T2}, 51200")
        a(f"s_add_u32 s{S_T3}, s{S_T3}, 51200")
        a(f"v_lshlrev_b32 v{T}, 4, v1")
        a(f"v_add_u32 v{T+1}, s{S_T2}, v{T}")
        a(f"v_add_u32 v{T+2}, s{S_T3}, v{T}")
        Lk1 = "L_p2e_k1"; Lj = "L_p2e_j"
        a(f"s_cmp_eq_u32 s{S_T1}, 1")
        a(f"s_cbranch_scc1 {Lk1}")
        for g in range(3):
            a(f"ds_write_b128 v{T+1}, v[{self.A_OB+4*g}:{self.A_OB+4*g+3}] offset:{1024*g}")
        a(f"s_branch {Lj}")
        a.put(Lk1)
        for g in range(3):
            a(f"ds_write_b128 v{T+1}, v[{self.A_OA+4*g}:{self.A_OA+4*g+3}] offset:{1024*g}")
        for r in range(12):
            a(f"v_mov_b32 v{self.A_OA+r}, v{self.A_OB+r}")
        a.put(Lj)
        a(f"s_waitcnt lgkmcnt(0)")
        a(f"s_barrier")
        O = self.A_OA; X = self.A_SA
        for g in range(3):
            a(f"ds_read_b128 v[{X+4*g}:{X+4*g+3}], v{T+2} offset:{1024*g}")
        a(f"s_waitcnt lgkmcnt(0)")
        for r in range(12):
            a(f"v_add_f32 v{O+r}, v{O+r}, v{X+r}")
        a.put("L_p2_fin")
        a(f"v_mov_b32 v{T}, v{O+8}")
        a(f"v_mov_b32 v{T+1}, v{O+8}")
        a(f"s_nop 1")
        a(f"v_permlane32_swap_b32 v{T}, v{T+1}")
        a(f"v_mul_f32 v{T+3}, 0, v{O}")
        for r in list(range(1, 8)):
            a(f"v_fmac_f32 v{T+3}, 0, v{O+r}")
        a(f"v_mov_b32 v{T+4}, 0")
        for r in range(8, 12):
            a(f"v_fmac_f32 v{T+4}, 0, v{O+r}")
        a(f"v_cmp_le_f32 vcc, {hex(f32(2.0**-60))}, v{T+1}")
        a(f"v_cmp_ge_f32 s[{S_SAVE}:{S_SAVE+1}], s{self.S_BIG}, v{T+1}")
        a(f"s_nop 0")
        a(f"s_and_b64 vcc, vcc, s[{S_SAVE}:{S_SAVE+1}]")
        a(f"v_cmp_eq_f32 s[{S_SAVE}:{S_SAVE+1}], 0, v{T+3}")
        a(f"s_nop 0")
        a(f"s_and_b64 vcc, vcc, s[{S_SAVE}:{S_SAVE+1}]")
        a(f"v_cmp_eq_f32 s[{S_SAVE}:{S_SAVE+1}], 0, v{T+4}")
        a(f"s_nop 0")
        a(f"s_or_b32 s{S_SAVE+1}, s{S_SAVE+1}, -1")
        a(f"s_and_b64 vcc, vcc, s[{S_SAVE}:{S_SAVE+1}]")
        a(f"s_or_b32 vcc_lo, vcc_lo, 0")
        a(f"s_cmp_eq_u32 s{self.S_SLOWDONE}, 1")
        a(f"s_cbranch_scc1 L_p2_ok")
        a(f"s_cmp_eq_u64 vcc, -1")
        a(f"s_cbranch_scc0 L_p2_slow")
        a.put("L_p2_ok")
        a(f"v_rcp_f32 v{T+2}, v{T+1}")
        a(f"s_nop 0")
        for r in range(12):
            a(f"v_mul_f32 v{O+r}, v{T+2}, v{O+r}")
        for g in range(3):
            a(f"v_cvt_pk_bf16_f32 v{O+4*g}, v{O+4*g}, v{O+4*g+1}")
            a(f"v_cvt_pk_bf16_f32 v{O+4*g+1}, v{O+4*g+2}, v{O+4*g+3}")
        for g in range(3):
            if g == 2: self.set_exec(0xffffffff)
            a(f"buffer_store_dwordx2 v[{O+4*g}:{O+4*g+1}], v{self.A_OAD+g}, s[{SRD_O}:{SRD_O+3}], s{S_CNT} offen sc1")
            if g == 2: a(f"s_mov_b64 exec, -1")
        a(f"s_branch L_p2_end")
        self.p2_slow()
        a.put("L_p2_end")

    S_SLOWDONE = 94; S_BIG = 95
    def p2_slow(self):
        a = self.a
        T = self.A_T; O = self.A_OA; S = self.A_SA; P = self.A_P
        K = self.A_K; Q = self.A_QA
        a.put("L_p2_slow")
        a(f"s_cmp_lt_u32 s{S_W}, 4")
        a(f"s_cbranch_scc1 L_p2s_q")
        for r in range(8):
            a(f"v_mov_b32 v{Q+r}, v{self.A_QB+r}")
        a.put("L_p2s_q")
        a(f"v_and_b32 v{T}, 31, v1")
        a(f"v_lshrrev_b32 v{T+1}, 5, v1")
        a(f"v_lshlrev_b32 v{T+2}, 3, v{T}")
        a(f"v_lshl_add_u32 v{T+3}, v{T+1}, 9, v{T+2}")
        a(f"v_mul_u32_u24 v{T+4}, 320, v{T+1}")
        a(f"v_lshl_add_u32 v{T+4}, v{T}, 4, v{T+4}")
        a(f"v_mov_b32 v{T+5}, 0xff800000")
        def loadk():
            a(f"buffer_load_dwordx2 v[{K}:{K+1}], v{T+3}, s[{SRD_A}:{SRD_A+3}], s{S_T1} offen sc1")
            a(f"buffer_load_dwordx2 v[{K+2}:{K+3}], v{T+3}, s[{SRD_A}:{SRD_A+3}], s{S_T1} offen offset:256 sc1")
            a(f"buffer_load_dwordx2 v[{K+4}:{K+5}], v{T+2}, s[{SRD_A}:{SRD_A+3}], s{S_T1} offen offset:1024 sc1")
        def smm():
            a(f"v_mfma_f32_32x32x16_bf16 v[{S}:{S+15}], v[{K}:{K+3}], v[{Q}:{Q+3}], 0")
            a(f"v_mfma_f32_32x32x16_bf16 v[{S}:{S+15}], v[{K+4}:{K+7}], v[{Q+4}:{Q+7}], v[{S}:{S+15}]")
            a(f"s_nop 7"); a(f"s_nop 7")
        a(f"s_mov_b32 s{S_T1}, 0")
        a.put("L_p2s_1")
        loadk()
        a(f"s_waitcnt vmcnt(0)")
        smm()
        for r in range(16):
            a(f"v_max_f32 v{T+5}, v{T+5}, v{S+r}")
        a(f"s_add_u32 s{S_T1}, s{S_T1}, 2560")
        a(f"s_cmp_lt_u32 s{S_T1}, 163840")
        a(f"s_cbranch_scc1 L_p2s_1")
        a(f"v_mov_b32 v{T+6}, v{T+5}")
        a(f"s_nop 1")
        a(f"v_permlane32_swap_b32 v{T+6}, v{T+5}")
        a(f"s_nop 1")
        a(f"v_max_f32 v{T+5}, v{T+5}, v{T+6}")
        for r in range(16):
            a(f"v_mov_b32 v{O+r}, 0")
        a(f"s_mov_b32 s{S_T1}, 0")
        a.put("L_p2s_2")
        loadk()
        a(f"s_mov_b64 exec, s[{self.S_VMASK}:{self.S_VMASK+1}]")
        a(f"buffer_load_dwordx4 v[{self.A_V1}:{self.A_V1+3}], v{T+4}, s[{SRD_A}:{SRD_A+3}], s{S_T1} offen offset:1280 sc1")
        a(f"buffer_load_dwordx4 v[{self.A_V2}:{self.A_V2+3}], v{T+4}, s[{SRD_A}:{SRD_A+3}], s{S_T1} offen offset:1920 sc1")
        a(f"s_mov_b64 exec, -1")
        a(f"s_waitcnt vmcnt(0)")
        smm()
        for r in range(16):
            a(f"v_sub_f32 v{S+r}, v{S+r}, v{T+5}")
        for r in range(16):
            a(f"v_exp_f32 v{S+r}, v{S+r}")
        a(f"s_nop 0")
        for k in range(8):
            a(f"v_cvt_pk_bf16_f32 v{P+k}, v{S+2*k}, v{S+2*k+1}")
        a(f"s_nop 1")
        a(f"v_mfma_f32_32x32x16_bf16 v[{O}:{O+15}], v[{self.A_V1}:{self.A_V1+3}], v[{P}:{P+3}], v[{O}:{O+15}]")
        a(f"v_mfma_f32_32x32x16_bf16 v[{O}:{O+15}], v[{self.A_V2}:{self.A_V2+3}], v[{P+4}:{P+7}], v[{O}:{O+15}]")
        a(f"s_add_u32 s{S_T1}, s{S_T1}, 2560")
        a(f"s_cmp_lt_u32 s{S_T1}, 163840")
        a(f"s_cbranch_scc1 L_p2s_2")
        a(f"s_nop 7"); a(f"s_nop 7")
        a(f"s_mov_b32 s{self.S_SLOWDONE}, 1")
        a(f"s_branch L_p2_fin")

    G_ACC = 4
    G_ACT = 52
    G_AM = 84
    G_DV = 2
    G_SA = 3
    S_RB = 49; S_J = 50
    def g2_wbase(self, phase, NT):
        return 88 if (phase == 3 or NT == 3) else 144

    def g2_wsetup(self, phase, srd, sreg, vreg):
        a = self.a
        if phase == 3: self.srd(srd, S_WS, OFF_WOP, SZ_WOP)
        else: self.srd(srd, S_WS, OFF_W2P, SZ_W2P)
        a(f"s_and_b32 s{S_T0}, s{S_W}, 3")
        a(f"s_mul_i32 s{S_T1}, s{S_T0}, 40")
        a(f"s_and_b32 s{S_T2}, s{S_GI}, 7")
        a(f"s_mul_i32 s{S_T2}, s{S_T2}, 5")
        a(f"s_add_u32 s{S_T1}, s{S_T1}, s{S_T2}")
        a(f"s_cmp_lt_u32 s{S_W}, 4")
        a(f"s_cselect_b32 s{S_T2}, 3, 0")
        a(f"s_add_u32 s{S_T1}, s{S_T1}, s{S_T2}")
        a(f"s_lshl_b32 s{sreg}, s{S_T1}, 10")
        a(f"v_lshlrev_b32 v{vreg}, 4, v1")

    def g2_wload1(self, phase, NT, step, t, srd, sreg, vreg):
        a = self.a
        R = self.g2_wbase(phase, NT) + 4*(step*NT + t)
        off = step*4*40*1024 + t*1024
        a(f"s_add_u32 s{S_T2}, s{sreg}, {off}")
        a(f"buffer_load_dwordx4 v[{R}:{R+3}], v{vreg}, s[{srd}:{srd+3}], s{S_T2} offen {self.ld_aux}")

    def g2_wloads_byclass(self, phase, listA, listB, srd, sreg, vreg, tag):
        a = self.a
        LA = f"L_{tag}_A"; LJ = f"L_{tag}_J"
        a(f"s_cmp_ge_u32 s{S_W}, 4")
        a(f"s_cbranch_scc1 {LA}")
        for (st, t) in listB: self.g2_wload1(phase, 2, st, t, srd, sreg, vreg)
        a(f"s_branch {LJ}")
        a.put(LA)
        for (st, t) in listA: self.g2_wload1(phase, 3, st, t, srd, sreg, vreg)
        a.put(LJ)

    def g2_adma(self, stage):
        a = self.a
        slot = (stage % 4) * 32768
        for q in range(4):
            a(f"s_add_u32 m0, s{S_M0A}, {slot + q*8192}")
            a(f"s_add_u32 s{S_T2}, s{S_M0A}, {stage*32768 + q*8192}")
            a(f"buffer_load_dwordx4 v{self.G_DV}, s[{SRD_A}:{SRD_A+3}], s{S_T2} offen {self.ld_aux} lds")

    def g2_reads(self, stage, u, st):
        a = self.a
        slot = stage % 4
        hi = slot >= 2
        if hi != self.g2_hi:
            for m in range(4):
                if hi: a(f"v_add_u32 v{self.G_AM+m}, 0x10000, v{self.G_AM+m}")
                else:  a(f"v_subrev_u32 v{self.G_AM+m}, 0x10000, v{self.G_AM+m}")
            self.g2_hi = hi
        off = (slot % 2) * 32768 + u*16384
        for m in range(4):
            R = self.G_ACT + 16*st + 4*m
            a(f"ds_read_b128 v[{R}:{R+3}], v{self.G_AM+m} offset:{off}")

    def g2_mfma(self, phase, NT, step, st):
        a = self.a
        for t in range(NT):
            W = self.g2_wbase(phase, NT) + 4*(step*NT + t)
            for m in range(4):
                A = self.G_ACC + 4*(m*3 + t)
                X = self.G_ACT + 16*st + 4*m
                a(f"v_mfma_f32_16x16x32_bf16 v[{A}:{A+3}], v[{W}:{W+3}], v[{X}:{X+3}], v[{A}:{A+3}]")

    def g2_main(self, phase, NT, nsteps):
        a = self.a
        NSTG = (nsteps + 1) // 2
        pre = min(3, NSTG)
        self.g2_hi = False
        if NT == 3 and "nog2prio" not in self.opt: a(f"s_setprio 1")
        self.g2_adma(0); self.g2_adma(1)
        a(f"s_waitcnt vmcnt(8)")
        E = self.G_ACT; A = self.G_ACC
        for t in range(NT):
            for half in range(2):
                R = E + 2*t + half
                a(f"v_lshlrev_b32 v{A+4*t+2*half}, 16, v{R}")
                a(f"v_and_b32 v{A+4*t+2*half+1}, 0xffff0000, v{R}")
                if phase == 5:
                    R2 = E + 6 + 2*t + half
                    a(f"v_lshlrev_b32 v{E+14}, 16, v{R2}")
                    a(f"v_and_b32 v{E+15}, 0xffff0000, v{R2}")
                    a(f"v_add_f32 v{A+4*t+2*half}, v{A+4*t+2*half}, v{E+14}")
                    a(f"v_add_f32 v{A+4*t+2*half+1}, v{A+4*t+2*half+1}, v{E+15}")
        self.g2_adma(2)
        if self.g2st: self.stamp(self.g2st)
        a(f"s_waitcnt vmcnt(10)")
        a(f"s_barrier")
        if self.g2st: self.stamp(self.g2st+1)
        self.g2_reads(0, 0, 0)
        for sg in range(NSTG):
            two = (2*sg + 1) < nsteps
            if sg == 0:
                a(f"s_waitcnt lgkmcnt(0)")
                self.g2_mfma(phase, NT, 0, 0)
            if sg + 1 < NSTG:
                out = 4 * max(0, min(NSTG, sg + pre) - (sg + 2))
                a(f"s_waitcnt vmcnt({out})")
                a(f"s_barrier")
            if two:
                self.g2_reads(sg, 1, 1)
                if sg > 0: a(f"s_waitcnt lgkmcnt(4)")
            elif sg > 0:
                a(f"s_waitcnt lgkmcnt(0)")
            if sg > 0: self.g2_mfma(phase, NT, 2*sg, 0)
            if sg + pre < NSTG:
                self.g2_adma(sg + pre)
            if two:
                if sg + 1 < NSTG:
                    self.g2_reads(sg+1, 0, 0)
                    a(f"s_waitcnt lgkmcnt(4)")
                else:
                    a(f"s_waitcnt lgkmcnt(0)")
                self.g2_mfma(phase, NT, 2*sg+1, 1)

    def g2_reduce(self, NT):
        a = self.a
        T = self.G_ACT
        cls = 0 if NT == 3 else 1
        a(f"s_and_b32 s{S_T1}, s{S_W}, 3")
        for m in range(1, 4):
            a(f"s_add_u32 s{S_T2}, s{S_T1}, {m}")
            a(f"s_and_b32 s{S_T2}, s{S_T2}, 3")
            a(f"s_mul_i32 s{S_T2}, s{S_T2}, 9216")
            a(f"s_add_u32 s{S_T2}, s{S_T2}, {cls*36864 + (m-1)*3072}")
            a(f"v_add_u32 v{T+m}, s{S_T2}, v{self.G_DV}")
        a(f"s_mul_i32 s{S_T2}, s{S_T1}, 9216")
        a(f"s_add_u32 s{S_T2}, s{S_T2}, {cls*36864}")
        a(f"v_add_u32 v{T}, s{S_T2}, v{self.G_DV}")
        a(f"s_barrier")
        for m in range(1, 4):
            for t in range(NT):
                A = self.G_ACC + 4*(m*3 + t)
                a(f"ds_write_b128 v{T+m}, v[{A}:{A+3}] offset:{t*1024}")
        a(f"s_waitcnt lgkmcnt(0)")
        a(f"s_barrier")
        for rel in range(3):
            for t in range(NT):
                A = self.G_ACC + 4*((rel+1)*3 + t)
                a(f"ds_read_b128 v[{A}:{A+3}], v{T} offset:{rel*3072 + t*1024}")
        a(f"s_waitcnt lgkmcnt(0)")
        for t in range(NT):
            for i in range(4):
                A = self.G_ACC + 4*t + i
                a(f"v_add_f32 v{A}, v{A}, v{A+12}")
                a(f"v_add_f32 v{A+24}, v{A+24}, v{A+36}")
            for i in range(4):
                A = self.G_ACC + 4*t + i
                a(f"v_add_f32 v{A}, v{A}, v{A+24}")

    def g2_setup(self, phase):
        a = self.a
        a(f"s_lshr_b32 s{S_T0}, s{S_GI}, 3")
        a(f"s_lshl_b32 s{S_T1}, s{S_GX}, 2")
        a(f"s_add_u32 s{self.S_RB}, s{S_T0}, s{S_T1}")
        a(f"s_and_b32 s{self.S_J}, s{S_GI}, 7")
        if phase == 3: off, per = OFF_O, 81920
        else: off, per = OFF_R, 54*4096
        a(f"s_mul_i32 s{S_T0}, s{self.S_RB}, {per}")
        a(f"s_add_u32 s{S_T0}, s{S_T0}, {hex(off)}")
        a(f"s_add_u32 s{SRD_A}, s{S_WS}, s{S_T0}")
        a(f"s_addc_u32 s{SRD_A+1}, s{S_WS+1}, 0")
        a(f"s_mov_b32 s{SRD_A+2}, {per}")
        a(f"s_mov_b32 s{SRD_A+3}, 0x20000")
        a(f"s_lshl_b32 s{S_M0A}, s{S_W}, 10")
        a(f"v_lshlrev_b32 v{self.G_DV}, 4, v1")
        a(f"s_and_b32 s{S_T0}, s{S_W}, 3")
        for m in range(4):
            a(f"s_add_u32 s{S_T1}, s{S_T0}, {m}")
            a(f"s_and_b32 s{S_T1}, s{S_T1}, 3")
            a(f"s_lshl_b32 s{S_T1}, s{S_T1}, 10")
            a(f"s_lshl_b32 s{S_T2}, s{S_T0}, 12")
            a(f"s_add_u32 s{S_T1}, s{S_T1}, s{S_T2}")
            a(f"v_add_u32 v{self.G_AM+m}, s{S_T1}, v{self.G_DV}")
        E = self.G_ACT
        a(f"s_lshl_b32 s{S_T0}, s{self.S_RB}, 6")
        a(f"s_and_b32 s{S_T1}, s{S_W}, 3")
        a(f"s_lshl_b32 s{S_T1}, s{S_T1}, 4")
        a(f"s_add_u32 s{S_T0}, s{S_T0}, s{S_T1}")
        a(f"v_and_b32 v{self.G_SA}, 15, v1")
        a(f"v_add_u32 v{self.G_SA}, s{S_T0}, v{self.G_SA}")
        a(f"v_mul_u32_u24 v{self.G_SA}, 1280, v{self.G_SA}")
        a(f"s_mul_i32 s{S_T0}, s{self.S_J}, 160")
        a(f"s_cmp_lt_u32 s{S_W}, 4")
        a(f"s_cselect_b32 s{S_T1}, 96, 0")
        a(f"s_add_u32 s{S_T0}, s{S_T0}, s{S_T1}")
        a(f"v_lshrrev_b32 v{E+12}, 4, v1")
        a(f"v_lshlrev_b32 v{E+12}, 3, v{E+12}")
        a(f"v_add_u32 v{E+12}, s{S_T0}, v{E+12}")
        a(f"v_add_u32 v{self.G_SA}, v{self.G_SA}, v{E+12}")
        if phase == 3:
            self.srd(SRD_T, S_X, 0, 2048*1280); aux_r = ""
        else:
            self.srd(SRD_T, S_WS, OFF_H, SZ_H); aux_r = self.ld_aux
        for t in range(3):
            a(f"buffer_load_dwordx2 v[{E+2*t}:{E+2*t+1}], v{self.G_SA}, s[{SRD_T}:{SRD_T+3}], 0 offen offset:{32*t} {aux_r}")
        if phase == 5:
            self.srd(SRD_T, S_B2, 0, 1280)
            for t in range(3):
                a(f"buffer_load_dwordx2 v[{E+6+2*t}:{E+7+2*t}], v{E+12}, s[{SRD_T}:{SRD_T+3}], 0 offen offset:{32*t}")
        for r in range(12, 48):
            a(f"v_mov_b32 v{self.G_ACC+r}, 0")

    def g2_epi(self, phase, NT):
        a = self.a
        T = self.G_ACT; A = self.G_ACC
        if phase == 3:
            self.srd_twin(S_WS, OFF_H, SZ_H)
        else:
            self.srd(SRD_O, S_OUT, 0, 2048*1280)
        for t in range(NT):
            a(f"v_cvt_pk_bf16_f32 v{A+4*t}, v{A+4*t}, v{A+4*t+1}")
            a(f"v_cvt_pk_bf16_f32 v{A+4*t+1}, v{A+4*t+2}, v{A+4*t+3}")
            if phase == 3: self.store_twin("buffer_store_dwordx2", f"v[{A+4*t}:{A+4*t+1}]", self.G_SA, "0", f"offset:{32*t}")
            else: a(f"buffer_store_dwordx2 v[{A+4*t}:{A+4*t+1}], v{self.G_SA}, s[{SRD_O}:{SRD_O+3}], 0 offen offset:{32*t} {self.out_aux}")
        if phase == 3:
            S = T + 22
            a(f"v_mov_b32 v{S}, 0"); a(f"v_mov_b32 v{S+1}, 0")
            for t in range(NT):
                for half in range(2):
                    R = A + 4*t + half
                    a(f"v_lshlrev_b32 v{T+20}, 16, v{R}")
                    a(f"v_and_b32 v{T+21}, 0xffff0000, v{R}")
                    a(f"v_add_f32 v{S}, v{S}, v{T+20}")
                    a(f"v_fmac_f32 v{S+1}, v{T+20}, v{T+20}")
                    a(f"v_add_f32 v{S}, v{S}, v{T+21}")
                    a(f"v_fmac_f32 v{S+1}, v{T+21}, v{T+21}")
            for op in ("v_permlane32_swap_b32", "v_permlane16_swap_b32"):
                a(f"v_mov_b32 v{S+2}, v{S}")
                a(f"v_mov_b32 v{S+3}, v{S+1}")
                a(f"s_nop 1")
                a(f"{op} v{S+2}, v{S}")
                a(f"{op} v{S+3}, v{S+1}")
                a(f"s_nop 1")
                a(f"v_add_f32 v{S}, v{S}, v{S+2}")
                a(f"v_add_f32 v{S+1}, v{S+1}, v{S+3}")
            a(f"s_lshl_b32 s{S_T0}, s{self.S_RB}, 6")
            a(f"s_and_b32 s{S_T1}, s{S_W}, 3")
            a(f"s_lshl_b32 s{S_T1}, s{S_T1}, 4")
            a(f"s_add_u32 s{S_T0}, s{S_T0}, s{S_T1}")
            a(f"v_and_b32 v{S+2}, 15, v1")
            a(f"v_add_u32 v{S+2}, s{S_T0}, v{S+2}")
            a(f"v_lshlrev_b32 v{S+2}, 7, v{S+2}")
            a(f"s_lshl_b32 s{S_T0}, s{self.S_J}, 4")
            a(f"s_add_u32 s{S_T0}, s{S_T0}, {hex(8 if NT == 2 else 0)}")
            a(f"v_add_u32 v{S+2}, s{S_T0}, v{S+2}")
            self.srd_twin(S_WS, OFF_PST, 2048*128)
            a(f"s_mov_b64 exec, 0xffff")
            self.store_twin("buffer_store_dwordx2", f"v[{S}:{S+1}]", S+2, "0")
            a(f"s_mov_b64 exec, -1")

    def g2(self, phase):
        a = self.a
        nsteps = 5 if phase == 3 else 14
        self.g2st = 15 if (str(phase) in self.opt_g2) else None
        L1 = f"L_g2p{phase}_n1"; Lj = f"L_g2p{phase}_j"
        a(f"s_cmp_lt_u32 s{S_W}, 4")
        a(f"s_cbranch_scc1 {L1}")
        for NT in (3, 2):
            self.g2_main(phase, NT, nsteps)
            if self.g2st: self.stamp(self.g2st+2)
            if NT == 3: a(f"s_setprio 0")
            a(f"s_nop 7")
            self.g2_reduce(NT)
            if self.g2st: self.stamp(self.g2st+3)
            self.g2_epi(phase, NT)
            if NT == 3:
                a(f"s_branch {Lj}")
                a.put(L1)
        a.put(Lj)

    def hook23(self):
        a = self.a
        a(f"v_lshlrev_b32 v{self.G_DV}, 4, v1")
        self.wo_from_lds()
        self.g2_setup(3)
    def hook34(self):
        a = self.a
        a(f"s_cmp_lt_u32 s{S_GI}, 28")
        a(f"s_cbranch_scc1 L_h34_skip")
        self.prefetch_w2_rest()
        a.put("L_h34_skip")
        self.p4_setup()
    def hook45(self):
        self.g2_setup(5)
        if "wbl2" in self.opt:
            a = self.a
            a(f"s_cmp_lg_u32 s{S_GI}, 31")
            a(f"s_cbranch_scc1 L_wbl2_skip")
            a(f"s_cmp_lg_u32 s{S_W}, 1")
            a(f"s_cbranch_scc1 L_wbl2_skip")
            a(f"buffer_wbl2 sc1")
            a.put("L_wbl2_skip")

    def wo_lds_base(self, dst):
        a = self.a
        a(f"s_sub_u32 s{S_T3}, s{S_W}, 4")
        a(f"s_mul_i32 s{S_T3}, s{S_T3}, 15360")
        a(f"s_cmp_eq_u32 s{S_W}, 7")
        a(f"s_cselect_b32 s{S_T3}, 81920, s{S_T3}")
        a(f"s_mul_i32 s{S_T4}, s{S_W}, 10240")
        a(f"s_add_u32 s{S_T4}, s{S_T4}, 97280")
        a(f"s_cmp_eq_u32 s{S_W}, 3")
        a(f"s_cselect_b32 s{S_T4}, 46080, s{S_T4}")
        a(f"s_cmp_lt_u32 s{S_W}, 4")
        a(f"s_cselect_b32 s{dst}, s{S_T4}, s{S_T3}")

    def wo_frag_off(self, NT, idx):
        return idx * 1024

    def wo_dma(self, lo, hi):
        a = self.a
        LA = f"L_wod{lo}_A"; LJ = f"L_wod{lo}_J"
        a(f"s_cmp_ge_u32 s{S_W}, 4")
        a(f"s_cbranch_scc1 {LA}")
        for NT, lab in ((2, None), (3, LA)):
            if lab:
                a(f"s_branch {LJ}")
                a.put(lab)
            for idx in range(lo, min(hi, 5*NT)):
                st, t = divmod(idx, NT)
                base = self.S_WOB if not (NT == 2 and idx >= 5) else self.S_WOB2
                a(f"s_add_u32 m0, s{base}, {idx*1024}")
                a(f"s_add_u32 s{S_T2}, s{self.S_WOS}, {st*4*40*1024 + t*1024}")
                a(f"buffer_load_dwordx4 v{self.A_DV}, s[{SRD_T}:{SRD_T+3}], s{S_T2} offen {self.ld_aux} lds")
        a.put(LJ)

    def wo_dma_cls(self, NT, lo, hi):
        a = self.a
        for idx in range(lo, min(hi, 5*NT)):
            st, t = divmod(idx, NT)
            base = self.S_WOB if not (NT == 2 and idx >= 5) else self.S_WOB2
            a(f"s_add_u32 m0, s{base}, {idx*1024}")
            a(f"s_add_u32 s{S_T2}, s{self.S_WOS}, {st*4*40*1024 + t*1024}")
            a(f"buffer_load_dwordx4 v{self.A_DV}, s[{SRD_T}:{SRD_T+3}], s{S_T2} offen {self.ld_aux} lds")

    S_WOB = 63; S_WOB2 = 64; S_WOS = 54
    def wo_setup(self):
        a = self.a
        self.g2_wsetup(3, SRD_T, self.S_WOS, self.A_DV)
        self.wo_lds_base(self.S_WOB)
        a(f"s_cmp_eq_u32 s{S_W}, 3")
        a(f"s_cselect_b32 s{self.S_WOB2}, {128000-5120}, s{self.S_WOB}")

    def wo_from_lds(self):
        a = self.a
        LA = "L_wol_A"; LJ = "L_wol_J"
        a(f"v_add_u32 v{self.G_AM}, s{self.S_WOBK}, v{self.G_DV}")
        a(f"v_add_u32 v{self.G_AM+1}, s{self.S_WOB2}, v{self.G_DV}")
        a(f"s_cmp_ge_u32 s{S_W}, 4")
        a(f"s_cbranch_scc1 {LA}")
        for NT, lab in ((2, None), (3, LA)):
            if lab:
                a(f"s_branch {LJ}")
                a.put(lab)
            for idx in range(5*NT):
                R = 88 + 4*idx
                ad = self.G_AM if not (NT == 2 and idx >= 5) else self.G_AM + 1
                a(f"ds_read_b128 v[{R}:{R+3}], v{ad} offset:{idx*1024}")
        a.put(LJ)
        a(f"s_waitcnt lgkmcnt(0)")

    def prefetch_wo(self):
        self.g2_wsetup(3, SRD_W, S_SW, 2)
        self.g2_wloads_byclass(3, [(s_, t) for s_ in range(5) for t in range(3)], [(s_, t) for s_ in range(5) for t in range(2)], SRD_W, S_SW, 2, "pfwo")
    def prefetch_w2_rest(self):
        self.g2_wsetup(5, SRD_W, S_SW, 2)
        self.g2_wloads_byclass(5, [(s_, t) for s_ in range(5) for t in range(3)], [], SRD_W, S_SW, 2, "pfw2")

    def p4_epi(self):
        a = self.a
        self.V_T = 2
        T = self.V_T; A = self.V_ACC; CSR = self.V_FR
        B1R = self.V_FR + 32
        a(f"s_cmp_eq_u32 s{S_NT}, 13")
        a(f"s_cselect_b32 s{S_T0}, s{S_WN}, 0")
        a(f"s_cmp_eq_u32 s{S_T0}, 1")
        a(f"s_cbranch_scc1 L_p4_skip")
        self.epi_T_common()
        for g in range(4):
            a(f"ds_read_b128 v[{B1R+4*g}:{B1R+4*g+3}], v{T+7} offset:{ST_B1-ST_CS+32*g}")
        for g in range(4):
            a(f"ds_read_b128 v[{B1R+16+4*g}:{B1R+16+4*g+3}], v{T+1} offset:{ST_B1-ST_CS+32*g}")
        if "rsc1" in self.opt: self.srd(SRD_O, S_WS, OFF_R, SZ_R)
        else: self.srd_twin(S_WS, OFF_R, SZ_R)
        a(f"s_lshl_b32 s{S_T0}, s{S_MT}, 1")
        a(f"s_add_u32 s{S_T0}, s{S_T0}, s{S_WM}")
        a(f"s_mul_i32 s{S_T0}, s{S_T0}, {54*4096}")
        a(f"s_lshl_b32 s{S_T1}, s{S_NT}, 2")
        a(f"s_lshl_b32 s{S_T2}, s{S_WN}, 1")
        a(f"s_add_u32 s{S_T1}, s{S_T1}, s{S_T2}")
        a(f"s_add_u32 s{S_T2}, s{S_T1}, s{S_WM}")
        a(f"s_xor_b32 s{S_T3}, s{S_WM}, 1")
        a(f"s_add_u32 s{S_T3}, s{S_T1}, s{S_T3}")
        a(f"s_lshl_b32 s{S_T2}, s{S_T2}, 12")
        a(f"s_lshl_b32 s{S_T3}, s{S_T3}, 12")
        a(f"s_add_u32 s{S_T4}, s{S_T0}, s{S_T2}")
        a(f"s_add_u32 s{S_T5}, s{S_T0}, s{S_T3}")
        a(f"v_bfe_u32 v{T+8}, v1, 4, 1")
        a(f"v_lshlrev_b32 v{T+8}, 10, v{T+8}")
        a(f"v_and_b32 v{T+9}, 15, v1")
        a(f"v_lshl_add_u32 v{T+8}, v{T+9}, 4, v{T+8}")
        a(f"v_lshl_add_u32 v{T+8}, v{T+6}, 8, v{T+8}")
        a(f"s_waitcnt lgkmcnt(0)")
        for tt in range(2):
            for q in range(2):
                for gp in range(2):
                    ab = f"v[{T+2+2*tt}:{T+3+2*tt}]"
                    for g in (2*gp, 2*gp+1):
                        for i in (0, 2):
                            r = A + 16*(2*tt+q) + 4*g + i
                            c = CSR + 16*q + 4*g + i; b1 = B1R + 16*q + 4*g + i
                            a(f"v_pk_fma_f32 v[{r}:{r+1}], v[{r}:{r+1}], {ab}, v[{b1}:{b1+1}] op_sel:[0,0,0] op_sel_hi:[1,0,1]")
                            a(f"v_pk_fma_f32 v[{r}:{r+1}], v[{c}:{c+1}], {ab}, v[{r}:{r+1}] op_sel:[0,1,0] op_sel_hi:[1,1,1]")
                            a(f"v_max_f32 v{r}, 0, v{r}")
                            a(f"v_max_f32 v{r+1}, 0, v{r+1}")
                            a(f"v_pk_mul_f32 v[{r}:{r+1}], v[{r}:{r+1}], v[{r}:{r+1}]")
                    r = A + 16*(2*tt+q) + 8*gp
                    a(f"v_cvt_pk_bf16_f32 v{r}, v{r}, v{r+1}")
                    a(f"v_cvt_pk_bf16_f32 v{r+1}, v{r+2}, v{r+3}")
                    a(f"v_cvt_pk_bf16_f32 v{r+2}, v{r+4}, v{r+5}")
                    a(f"v_cvt_pk_bf16_f32 v{r+3}, v{r+6}, v{r+7}")
                    a(f"s_nop 1")
                    a(f"v_permlane32_swap_b32 v{r}, v{r+2}")
                    a(f"v_permlane32_swap_b32 v{r+1}, v{r+3}")
                    if "rsc1" in self.opt:
                        a(f"buffer_store_dwordx4 v[{r}:{r+3}], v{T+8}, s[{SRD_O}:{SRD_O+3}], s{S_T4+q} offen offset:{2048*tt + 512*gp} sc1")
                    else:
                        self.store_twin("buffer_store_dwordx4", f"v[{r}:{r+3}]", T+8, f"s{S_T4+q}", f"offset:{2048*tt + 512*gp}")
        a.put("L_p4_skip")
        self.V_T = 148

    def p4_setup(self):
        a = self.a
        a(f"s_cmp_ge_u32 s{S_GI}, 28")
        a(f"s_cbranch_scc1 L_p4s_done")
        a(f"s_cmp_ge_u32 s{S_GI}, 14")
        a(f"s_cselect_b32 s{S_T0}, 1, 0")
        a(f"s_cselect_b32 s{S_T1}, 14, 0")
        a(f"s_sub_u32 s{S_NT}, s{S_GI}, s{S_T1}")
        a(f"s_lshl_b32 s{S_MT}, s{S_GX}, 1")
        a(f"s_add_u32 s{S_MT}, s{S_MT}, s{S_T0}")
        a(f"s_cmp_ge_u32 s{S_NT}, 10")
        a(f"s_cselect_b32 s{S_T0}, 10, 0")
        a(f"s_sub_u32 s{S_KK}, s{S_NT}, s{S_T0}")
        if "p4norot" in self.opt: a(f"s_mov_b32 s{S_KK}, 0")
        a(f"s_cmp_lt_u32 s{S_W}, 4")
        a(f"s_cbranch_scc1 L_p4s_compute")
        self.V_T = 16
        self.g1_setup_loader(3456)
        self.srd(SRD_A, S_WS, OFF_H, SZ_H)
        self.srd(SRD_W, S_W1, 0, 640*3456)
        T = self.V_T
        self.srd(SRD_T, S_B1, 0, 1728*2)
        a(f"s_sub_u32 s{S_T4}, s{S_W}, 4")
        a(f"s_lshl_b32 s{S_T4}, s{S_T4}, 5")
        a(f"v_and_b32 v{T+10}, 31, v1")
        a(f"v_add_u32 v{T+10}, s{S_T4}, v{T+10}")
        a(f"s_lshl_b32 s{S_T4}, s{S_NT}, 7")
        a(f"v_add_u32 v{T+11}, s{S_T4}, v{T+10}")
        a(f"v_lshlrev_b32 v{T+11}, 1, v{T+11}")
        a(f"buffer_load_ushort v{T+22}, v{T+11}, s[{SRD_T}:{SRD_T+3}], 0 offen")
        a(f"s_mov_b32 s{S_T3}, s{S_KK}")
        for sg in range(3):
            a(f"s_mul_i32 s{S_T4}, s{S_T3}, {64*3456}")
            a(f"s_add_u32 s{S_T4}, s{S_T4}, s{S_SW}")
            for q in range(4):
                a(f"s_add_u32 m0, s{S_M0A}, {sg*32768 + 16384 + q*4096}")
                a(f"s_add_u32 s{S_T2}, s{S_T4}, {q*16*3456}")
                a(f"buffer_load_dwordx4 v{self.V_OFFW}, s[{SRD_W}:{SRD_W+3}], s{S_T2} offen lds")
            a(f"s_add_u32 s{S_T3}, s{S_T3}, 1")
            a(f"s_cmp_eq_u32 s{S_T3}, 10")
            a(f"s_cselect_b32 s{S_T3}, 0, s{S_T3}")
        self.V_T = 148
        a(f"s_branch L_p4s_done")
        a.put("L_p4s_compute")
        self.g1_setup_compute()
        a.put("L_p4s_done")

    def p4(self):
        a = self.a
        a(f"s_cmp_ge_u32 s{S_GI}, 28")
        a(f"s_cbranch_scc1 L_p4_done")
        self.aux_A = self.ld_aux
        self.st1 = 15 if "p4s" in self.opt else None
        a(f"s_cmp_lt_u32 s{S_W}, 4")
        a(f"s_cbranch_scc1 L_p4_compute")
        self.V_T = 16
        for sg in range(3):
            a(f"s_lshl_b32 s{S_T4}, s{S_KK}, 7")
            a(f"s_add_u32 s{S_T4}, s{S_T4}, s{S_SA}")
            for q in range(4):
                a(f"s_add_u32 m0, s{S_M0A}, {sg*32768 + q*4096}")
                a(f"s_add_u32 s{S_T2}, s{S_T4}, {q*32*1280}")
                a(f"buffer_load_dwordx4 v{self.V_OFFA}, s[{SRD_A}:{SRD_A+3}], s{S_T2} offen {self.aux_A} lds")
            a(f"s_add_u32 s{S_KK}, s{S_KK}, 1")
            a(f"s_cmp_eq_u32 s{S_KK}, 10")
            a(f"s_cselect_b32 s{S_KK}, 0, s{S_KK}")
        a(f"s_mov_b32 s{S_SLOT}, {3*32768}")
        self.kk_wrap = 0
        self.b1_hook = True
        self.g1_loader(3456, "p4", "part")
        self.b1_hook = False
        self.V_T = 148
        a(f"s_branch L_p4_done")
        a.put("L_p4_compute")
        self.g1_compute("T", "p4", presetup=True)
        if "p4s" in self.opt: self.stamp(16)
        self.p4_epi()
        if "p4s" in self.opt: self.stamp(17)
        a.put("L_p4_done")

    def code_warm(self):
        a = self.a
        a(f"s_getpc_b64 s[{SRD_T}:{SRD_T+1}]")
        a.put("L_pc_here")
        a(f"s_sub_u32 s{SRD_T}, s{SRD_T}, L_pc_here-{NAME}")
        a(f"s_subb_u32 s{SRD_T+1}, s{SRD_T+1}, 0")
        a(f"s_mov_b32 s{SRD_T+2}, L_end-{NAME}")
        a(f"s_mov_b32 s{SRD_T+3}, 0x20000")
        a(f"v_lshlrev_b32 v254, 7, v0")
        a(f"buffer_load_dword v255, v254, s[{SRD_T}:{SRD_T+3}], 0 offen")

    def epoch_update(self):
        a = self.a
        a(f"s_or_b32 s{S_T0}, s2, s{S_W}")
        a(f"s_cmp_lg_u32 s{S_T0}, 0")
        a(f"s_cbranch_scc1 L_noepoch")
        a(f"v_mov_b32 v2, {OFF_EPOCH}")
        a(f"v_mov_b32 v3, s{S_TAG}")
        a(f"s_mov_b64 exec, 1")
        a(f"buffer_store_dword v3, v2, s[{SRD_F}:{SRD_F+3}], 0 offen sc1")
        a(f"s_mov_b64 exec, -1")
        a.put("L_noepoch")

    def epilogue_stamps(self):
        if getattr(self, "freeze", False): self.stamps = True
        if not self.stamps: return
        a = self.a
        if "dbg" in self.opt:
            a(f"s_or_b32 s{S_T0}, s2, s{S_W}")
            a(f"s_cmp_lg_u32 s{S_T0}, 0")
            a(f"s_cbranch_scc1 L_nodbg")
            self.srd(SRD_T, S_DBG, 0, 256)
            a(f"s_memrealtime s[100:101]")
            a(f"s_waitcnt lgkmcnt(0)")
            a(f"s_sub_u32 s{S_STAMP+15}, s100, s88")
            a(f"s_add_u32 s{S_STAMP+15}, s{S_STAMP+15}, s{S_STAMP}")
            a(f"v_mov_b32 v3, 0")
            a(f"s_mov_b64 exec, 1")
            for i in range(16):
                a(f"s_sub_u32 s{S_T1}, s{S_STAMP+i}, s{S_STAMP}")
                a(f"v_mov_b32 v2, s{S_T1}")
                a(f"buffer_store_dword v2, v3, s[{SRD_T}:{SRD_T+3}], 0 offen offset:{4*i}")
                a(f"s_nop 1")
            a(f"s_mov_b64 exec, -1")
            a.put("L_nodbg")
        a(f"s_waitcnt lgkmcnt(0)")
        a(f"s_lshl_b32 s{S_T0}, s2, 3")
        a(f"s_add_u32 s{S_T0}, s{S_T0}, s{S_W}")
        a(f"s_lshl_b32 s{S_T0}, s{S_T0}, 7")
        a(f"s_add_u32 s{S_T0}, s{S_T0}, 0x80000")
        a(f"v_mov_b32 v3, s{S_T0}")
        a(f"s_mov_b64 exec, 1")
        a(f"s_memrealtime s[100:101]")
        a(f"s_waitcnt lgkmcnt(0)")
        a(f"s_sub_u32 s{S_T1}, s100, s88")
        a(f"v_mov_b32 v2, s{S_T1}")
        a(f"buffer_store_dword v2, v3, s[{SRD_F}:{SRD_F+3}], 0 offen offset:{4*31}")
        a(f"v_mov_b32 v2, s88")
        a(f"buffer_store_dword v2, v3, s[{SRD_F}:{SRD_F+3}], 0 offen offset:{4*30}")
        for i in range(self.nstamp):
            a(f"s_sub_u32 s{S_T1}, s{S_STAMP+i}, s{S_STAMP}")
            a(f"v_mov_b32 v2, s{S_T1}")
            a(f"buffer_store_dword v2, v3, s[{SRD_F}:{SRD_F+3}], 0 offen offset:{4*i}")
            a(f"s_nop 1")
        a(f"s_mov_b64 exec, -1")

    def build(self):
        a = self.a
        self.prologue()
        self.p1()
        self.p2_setup()
        self.p2_wait_prep()
        self.p1_signal()
        if self.stop_after != "p1":
            self.p2()
            if self.stop_after != "p2":
                self.V_S = 66
                self.group_barrier(0, "gb23", S_QB, S_HEAD, hook=self.hook23)
                self.stamp(9)
                self.g2(3)
                self.stamp(10)
                if self.stop_after != "p3":
                    self.group_barrier(1, "gb34", hook=self.hook34, local=True)
                    self.stamp(11)
                    self.p4()
                    self.stamp(12)
                    if self.stop_after != "p4":
                        self.group_barrier(2, "gb45", hook=self.hook45, local=True)
                        self.stamp(13)
                        self.g2(5)
            a(f"s_waitcnt vmcnt(0)")
            self.stamp(14)
        if "delay" in self.opt:
            for i in range(4): a("s_sleep 127")
        self.epoch_update()
        self.epilogue_stamps()
        a(f"s_waitcnt vmcnt(0)")
        a.put("L_end")
        a("s_endpgm")
        return a

import struct
def f32(x):
    return struct.unpack("<I", struct.pack("<f", x))[0]

HEADER = open("sequential_preLN__mha_block__dense_activation_squared_relu__prompt.s.ref").read().split("; Override launch geometry")[0]

def wrap(body, lds=163840, vgpr=256):
    s = HEADER
    s += f"; @launch grid=(256,1,1) block=(512,1,1) lds={lds}\n"
    s += '.amdgcn_target "amdgcn-amd-amdhsa--gfx950"\n.text\n'
    s += f".globl {NAME}\n.p2align 8\n.type {NAME},@function\n{NAME}:\n"
    s += body
    s += f"""
.section .rodata,"a"
.p2align 6
.amdhsa_kernel {NAME}
  .amdhsa_next_free_vgpr {vgpr}
  .amdhsa_next_free_sgpr 102
  .amdhsa_accum_offset {vgpr}
  .amdhsa_group_segment_fixed_size 0
  .amdhsa_kernarg_size 88
  .amdhsa_user_sgpr_count 2
  .amdhsa_user_sgpr_kernarg_segment_ptr 1
  .amdhsa_system_sgpr_workgroup_id_x 1
.end_amdhsa_kernel
"""
    return s

if __name__ == "__main__":
    import argparse
    ap = argparse.ArgumentParser()
    ap.add_argument("-o", default="out.s")
    ap.add_argument("--stop", default=None)
    ap.add_argument("--stamps", action="store_true")
    ap.add_argument("--opt", default="")
    ap.add_argument("--plow", default=None)
    args = ap.parse_args()
    g = Gen(stop_after=args.stop, stamps=args.stamps, opt=[o for o in args.opt.split(',') if o])
    if "ws1" in g.opt: g.warm_slots = {'dst': 48, 'w1': 52}
    if "ws2" in g.opt: g.warm_slots = {'w1': 48, 'dst': 52}
    if "ws3" in g.opt: g.warm_slots = {'w1': 48, 'dst': 49, 'wp': 50}
    if "ws0" in g.opt: g.warm_slots = {}
    if "low2" in g.opt: g.low_tiles = 2
    if "low3" in g.opt: g.low_tiles = 3
    if args.plow is not None: g.prio_low = tuple(int(x) for x in args.plow.split(",") if x)
    a = g.build()
    rep = check(a.L)
    for r in rep: print(r)
    open(args.o, "w").write(wrap(a.text()))
    print("wrote", args.o, len(a.L), "lines;", len(rep), "hazards")
```

```python
import sys, math
sys.path.insert(0, "gen")
from asmlib import Asm, vr, sr, check

NAME = "sequential_preLN__mha_block__dense_activation_squared_relu__prompt_kernel"

OFF_EPOCH = 0
OFF_ALL   = 0x1000
OFF_GB    = 0x50000
OFF_MB1   = 65536
OFF_GR    = 0x68000
OFF_CS1   = 0x70000
OFF_PST   = 0xC0000
OFF_Q     = 0x100000
OFF_KV    = 0x400000
OFF_O     = 0xA00000
OFF_H     = 0xD00000
OFF_R     = 0x1000000
OFF_WOP   = 0x1700000
OFF_W2P   = 0x1800000
SZ_Q = 32*64*1280
SZ_KV = 32*64*2560
SZ_O = 32*20*4096
SZ_H = 2048*1280
SZ_R = 32*54*4096
SZ_WOP = 20*40*1024
SZ_W2P = 54*40*1024

S_KA = 0; S_WG = 2; S_W = 3
S_X = 4; S_WQKV = 6; S_WO = 8; S_W1 = 12; S_B1 = 14; S_W2 = 16; S_B2 = 18; S_OUT = 20; S_DBG = 22; S_WS = 24
S_TAG = 26; S_GX = 27
SRD_A = 28; SRD_W = 32; SRD_O = 36; SRD_F = 40; SRD_T = 44
S_GI = 48
S_MT = 49; S_NT = 50; S_KK = 51; S_CNT = 52; S_SLOT = 53
S_SA = 54; S_SW = 55; S_T0 = 56; S_T1 = 57; S_T2 = 58; S_T3 = 59; S_T4 = 60; S_T5 = 61
S_M0A = 62; S_WM = 63; S_WN = 64; S_DELTA = 65; S_ONES = 66; S_ROT4 = 67; S_RLW = 68; S_RSLOT = 69; S_HEAD = 66; S_QB = 67
S_STAMP = 70
S_SAVE = 90
S_OOB = 53
S_XCC = 10; S_FAST = 11
SRD_P = 96

LDS_STATS = 0
ST_PX, ST_PQ, ST_PC, ST_AA, ST_BB, ST_CS, ST_B1 = 0, 4096, 8192, 9216, 9728, 10240, 10752
LDS_RL = 32768

class Gen:
    def __init__(self, stop_after=None, stamps=False, opt=()):
        self.opt = set(opt)
        self.a = Asm()
        self.stop_after = stop_after
        self.stamps = stamps
        self.nstamp = 0
        self.code_rounds = 2
        self.linA = False
        self.tlb_step = 0x80000 if 'tlb512k' in self.opt else 0x200000
        self.out_aux = 'nt' if 'outnt' in self.opt else ('sc1' if 'outsc1' in self.opt else '')
        self.evtag = 'u'
        self.kk_wrap = 2
        global LDS_STATS, LDS_RL
        if "ns5" not in self.opt:
            self.NSLOT = 4; LDS_STATS = 131072; LDS_RL = 131072 + 12288
        else:
            self.NSLOT = 5; LDS_STATS = 0; LDS_RL = 32768
        self.fast_aux = "nt" if "fnt" in self.opt else ("sc0" if "fsc0" in self.opt else ("sc0 nt" if "fsc0nt" in self.opt else ""))
        self.opt_g2 = "3" if "g2s3" in self.opt else ("5" if "g2s5" in self.opt else "")
        self.ld_aux = "" if "plainld" in self.opt else "sc1"

    def srd(self, dst, base_s, off, size):
        a = self.a
        if off:
            a(f"s_add_u32 s{dst}, s{base_s}, {hex(off)}")
            a(f"s_addc_u32 s{dst+1}, s{base_s+1}, 0")
        else:
            a(f"s_mov_b32 s{dst}, s{base_s}")
            a(f"s_mov_b32 s{dst+1}, s{base_s+1}")
        a(f"s_mov_b32 s{dst+2}, {hex(size)}")
        a(f"s_mov_b32 s{dst+3}, 0x20000")

    def csel(self, dst, x, y):
        self.a(f"s_mov_b32 s{dst}, {y}")
        self.a(f"s_cselect_b32 s{dst}, {x}, s{dst}")

    def withT(self, T, fn, *args, **kw):
        old = self.V_T; self.V_T = T
        r = fn(*args, **kw)
        self.V_T = old
        return r

    def srd_twin(self, base_s, off, size):
        a = self.a
        self.srd(SRD_O, base_s, off, size)
        a(f"s_mov_b32 s{SRD_P}, s{SRD_O}")
        a(f"s_mov_b32 s{SRD_P+1}, s{SRD_O+1}")
        a(f"s_mov_b32 s{SRD_P+3}, 0x20000")
        a(f"s_cmp_eq_u32 s{S_FAST}, 1")
        a(f"s_cselect_b32 s{SRD_P+2}, s{SRD_O+2}, 0")
        a(f"s_cselect_b32 s{SRD_O+2}, 0, s{SRD_O+2}")
    def store_twin(self, op, data, vaddr, soff, extra=""):
        a = self.a
        a(f"{op} {data}, v{vaddr}, s[{SRD_O}:{SRD_O+3}], {soff} offen {extra} sc1")
        a(f"{op} {data}, v{vaddr}, s[{SRD_P}:{SRD_P+3}], {soff} offen {extra} {self.fast_aux}")

    def set_exec(self, mask):
        mask = int(str(mask), 0) & 0xFFFFFFFFFFFFFFFF
        if mask == 0xFFFFFFFFFFFFFFFF: self.a("s_mov_b64 exec, -1")
        elif mask < 0x80000000: self.a(f"s_mov_b64 exec, {hex(mask)}")
        else:
            self.a(f"s_mov_b32 exec_lo, {hex(mask & 0xffffffff)}")
            self.a(f"s_mov_b32 exec_hi, {hex(mask >> 32)}")

    def stamp(self, i=None):
        if not self.stamps: return
        if i is None: return
        self.nstamp = max(self.nstamp, i + 1)
        self.a(f"s_memtime s[100:101]")
        self.a(f"s_waitcnt lgkmcnt(0)")
        self.a(f"s_mov_b32 s{S_STAMP+i}, s100")

    def prologue(self):
        a = self.a
        a(f"s_cmp_ge_u32 s2, 256")
        a(f"s_cbranch_scc1 L_end")
        self.stamp(0)
        if self.stamps: a(f"s_memrealtime s[88:89]")
        a(f"s_load_dwordx16 s[4:19], s[0:1], 0")
        a(f"s_load_dwordx4 s[20:23], s[0:1], 64")
        a(f"s_load_dwordx2 s[24:25], s[0:1], 80")
        if "nowarm" not in self.opt: self.code_warm()
        a(f"v_lshrrev_b32 v2, 6, v0")
        a(f"v_and_b32 v1, 63, v0")
        a(f"v_readfirstlane_b32 s{S_W}, v2")
        a(f"s_and_b32 s{S_GX}, s2, 7")
        a(f"s_lshr_b32 s{S_GI}, s2, 3")
        a(f"v_mov_b32 v{self.V_S+2}, 0")
        a(f"v_mov_b32 v{self.V_S+5}, 0")
        a(f"v_mov_b32 v{self.V_S+20}, 0")
        a(f"v_mov_b32 v{self.V_S+21}, 0")
        a(f"s_lshr_b32 s{S_WM}, s{S_W}, 2")
        a(f"s_and_b32 s{S_WN}, s{S_W}, 3")

    def finish_tag(self):
        a = self.a
        a(f"s_waitcnt lgkmcnt(0)")
        a(f"s_mul_i32 s{S_TAG}, s{S_TAG}, 0x9E3779B1")
        a(f"s_add_u32 s{S_TAG}, s{S_TAG}, 0x7F4A7C15")

    V_OFFA = 2; V_OFFW = 3
    V_AA = 2
    V_AWA = 6; V_AWB = 7
    V_AW2A = 0; V_AW2B = 1
    V_CSA = 8
    V_CSD = 12
    V_FR = 16
    V_ACC = 80
    V_T = 148
    V_S = 152
    POLLW = 0
    SIGW = 7
    V_LA = 4
    V_LS = 8
    V_LD = 20
    V_LU = 40
    NSLOT = 5

    def g1_setup_loader(self, WS):
        a = self.a
        T = self.V_T
        a(f"s_sub_u32 s{S_T4}, s{S_W}, 4")
        a(f"v_lshrrev_b32 v{T}, 4, v1")
        a(f"s_lshl_b32 s{S_T0}, s{S_T4}, 2")
        a(f"v_add_u32 v{T+1}, s{S_T0}, v{T}")
        a(f"v_and_b32 v{T+1}, 7, v{T+1}")
        a(f"v_and_b32 v{T+2}, 7, v1")
        a(f"v_xor_b32 v{T+1}, v{T+1}, v{T+2}")
        a(f"v_lshlrev_b32 v{T+1}, 4, v{T+1}")
        a(f"v_lshrrev_b32 v{T+2}, 3, v1")
        a(f"v_mul_u32_u24 v{T+2}, 1280, v{T+2}")
        a(f"v_add_u32 v{self.V_OFFA}, v{T+1}, v{T+2}")
        a(f"v_lshlrev_b32 v{T+1}, 2, v{T}")
        a(f"v_and_b32 v{T+2}, 15, v1")
        a(f"v_xor_b32 v{T+1}, v{T+1}, v{T+2}")
        a(f"v_lshlrev_b32 v{T+1}, 4, v{T+1}")
        a(f"v_mul_u32_u24 v{T+2}, {WS}, v{T}")
        a(f"v_add_u32 v{self.V_OFFW}, v{T+1}, v{T+2}")
        a(f"s_lshl_b32 s{S_T0}, s{S_MT}, 7")
        a(f"s_lshl_b32 s{S_T1}, s{S_T4}, 3")
        a(f"s_add_u32 s{S_T0}, s{S_T0}, s{S_T1}")
        a(f"s_mul_i32 s{S_SA}, s{S_T0}, 1280")
        a(f"s_mul_i32 s{S_T0}, s{S_T4}, {4*WS}")
        a(f"s_lshl_b32 s{S_T1}, s{S_NT}, 8")
        a(f"s_add_u32 s{S_SW}, s{S_T0}, s{S_T1}")
        a(f"s_lshl_b32 s{S_M0A}, s{S_T4}, 10")
        a(f"s_mov_b32 s{S_SLOT}, 0")

    def g1_linearA(self):
        a = self.a
        a(f"v_lshlrev_b32 v{self.V_OFFA}, 4, v1")
        a(f"s_mul_i32 s{S_SA}, s{S_MT}, 163840")
        a(f"s_add_u32 s{S_SA}, s{S_SA}, s{S_M0A}")

    def g1_dma1(self, WS, q):
        a = self.a
        if q == 0:
            a(f"s_lshl_b32 s{S_T2}, s{S_KK}, {14 if self.linA else 7}")
            a(f"s_add_u32 s{S_T2}, s{S_T2}, s{S_SA}")
            a(f"s_add_u32 m0, s{S_SLOT}, s{S_M0A}")
            a(f"s_mul_i32 s{S_T3}, s{S_KK}, {64*WS}")
        elif q == 4:
            a(f"s_add_u32 s{S_T2}, s{S_T3}, s{S_SW}")
            a(f"s_add_u32 m0, m0, 4096")
            a(f"s_nop 0")
        else:
            a(f"s_add_u32 m0, m0, 4096")
            a(f"s_add_u32 s{S_T2}, s{S_T2}, {(4096 if self.linA else 32*1280) if q < 4 else 16*WS}")
        if q < 4:
            a(f"buffer_load_dwordx4 v{self.V_OFFA}, s[{SRD_A}:{SRD_A+3}], s{S_T2} offen {self.aux_A} lds")
        else:
            a(f"buffer_load_dwordx4 v{self.V_OFFW}, s[{SRD_W}:{SRD_W+3}], s{S_T2} offen lds")
        if q == 7:
            a(f"s_add_u32 s{S_KK}, s{S_KK}, 1")
            a(f"s_cmp_eq_u32 s{S_KK}, 10")
            a(f"s_cselect_b32 s{S_KK}, {self.kk_wrap}, s{S_KK}")
            a(f"s_add_u32 s{S_SLOT}, s{S_SLOT}, 32768")
            a(f"s_cmp_eq_u32 s{S_SLOT}, {self.NSLOT*32768}")
            a(f"s_cselect_b32 s{S_SLOT}, 0, s{S_SLOT}")

    def g1_dma_stage(self, WS):
        for q in range(8): self.g1_dma1(WS, q)

    def slot_next(self):
        a = self.a
        a(f"s_add_u32 s{S_RSLOT}, s{S_RSLOT}, 1")
        a(f"s_cmp_eq_u32 s{S_RSLOT}, {self.NSLOT}")
        a(f"s_cselect_b32 s{S_RSLOT}, 0, s{S_RSLOT}")
        a(f"s_cmp_eq_u32 s{S_RSLOT}, {self.NSLOT-1}")
        self.csel(S_DELTA, hex((-(self.NSLOT-1)*32768) & 0xffffffff), 32768)

    def g1_loader(self, WS, tag, mode):
        a = self.a
        T = self.V_T
        pre = self.NSLOT - 1
        nx = 1 if mode == "gran" else 4
        if mode == "gran":
            for q in range(8):
                self.g1_dma1(WS, q)
            a(f"s_waitcnt vmcnt(16)")
            if "p1s" in self.opt: self.stamp(18)
            a(f"s_barrier")
            if pre == 4:
                for q in range(8):
                    self.g1_dma1(WS, q)
            self.tag_ready()
        else:
            a(f"s_waitcnt vmcnt(8)")
            a(f"s_barrier")
            if pre == 4:
                for q in range(8):
                    self.g1_dma1(WS, q)
                a(f"s_waitcnt vmcnt(8)")
            else:
                a(f"s_waitcnt vmcnt(4)")
        a(f"s_mov_b32 s{S_CNT}, 0")
        L1 = f"L_{tag}_lloop"
        a.put(L1)
        a(f"s_add_u32 s{S_CNT}, s{S_CNT}, 1")
        a(f"s_waitcnt vmcnt({8*(pre-2)})")
        a(f"s_barrier")
        for q in range(8):
            if "nodma" not in self.opt: self.g1_dma1(WS, q)
        a(f"s_cmp_lt_u32 s{S_CNT}, {10-pre}")
        a(f"s_cbranch_scc1 {L1}")
        a(f"s_sub_u32 s{S_T4}, s{S_W}, 4")
        a(f"s_lshl_b32 s{S_T0}, s{S_T4}, 5")
        a(f"v_and_b32 v{T}, 31, v1")
        a(f"v_add_u32 v{T}, s{S_T0}, v{T}")
        a(f"s_lshl_b32 s{S_T1}, s{S_MT}, 7")
        a(f"v_add_u32 v{T+1}, s{S_T1}, v{T}")
        if mode == "gran":
            a(f"v_lshlrev_b32 v{T+1}, 4, v{T+1}")
            a(f"v_add_u32 v{T+1}, {hex(OFF_GR)}, v{T+1}")
            a(f"buffer_load_dwordx4 v[{T+4}:{T+7}], v{T+1}, s[{SRD_F}:{SRD_F+3}], 0 offen sc1")
        else:
            a(f"v_lshlrev_b32 v{T+1}, 7, v{T+1}")
            a(f"v_lshrrev_b32 v{T+2}, 5, v1")
            a(f"v_lshl_add_u32 v{T+1}, v{T+2}, 6, v{T+1}")
            a(f"v_add_u32 v{T+1}, {hex(OFF_PST)}, v{T+1}")
            for q in range(4):
                a(f"buffer_load_dwordx4 v[{T+4+4*q}:{T+7+4*q}], v{T+1}, s[{SRD_F}:{SRD_F+3}], 0 offen offset:{16*q} {self.ld_aux}")
        late = 0
        if pre == 4:
            a(f"s_waitcnt vmcnt({16+nx})")
            a(f"s_barrier")
        a(f"s_waitcnt vmcnt({8+nx})")
        a(f"s_barrier")
        rl = 0
        if mode == "gran":
            self.withT(T + 24, self.relayout_load)
            rl = 4
        a(f"s_waitcnt vmcnt({nx+rl})")
        a(f"s_barrier")
        if mode != "gran" and "now2rest" not in self.opt:
            self.g2_wsetup(5, SRD_T, S_SW, T + 24)
            for s_ in range(5):
                for t in range(3):
                    self.g2_wload1(5, 3, s_, t, SRD_T, S_SW, T + 24)
            late = 15
        a(f"s_barrier")
        a(f"s_waitcnt vmcnt({late+rl})")
        if mode == "gran":
            Lp = f"L_{tag}_gpoll"; Lo = f"L_{tag}_gok"
            a(f"s_mov_b32 s{S_T0}, 0")
            a.put(Lp)
            a(f"v_cmp_ne_u32 vcc, s{S_TAG}, v{T+6}")
            a(f"v_cmp_ne_u32 s[{S_SAVE}:{S_SAVE+1}], s{S_TAG}, v{T+7}")
            a(f"s_nop 1")
            a(f"s_or_b64 vcc, vcc, s[{S_SAVE}:{S_SAVE+1}]")
            a(f"s_cbranch_vccz {Lo}")
            a(f"s_add_u32 s{S_T0}, s{S_T0}, 1")
            a(f"s_cmp_ge_u32 s{S_T0}, 0x40000")
            a(f"s_cbranch_scc1 {Lo}")
            a(f"buffer_load_dwordx4 v[{T+4}:{T+7}], v{T+1}, s[{SRD_F}:{SRD_F+3}], 0 offen sc1")
            a(f"s_waitcnt vmcnt(0)")
            a(f"s_branch {Lp}")
            a.put(Lo)
            A_, B_ = T+4, T+5
        else:
            for q in range(1, 4):
                for i in range(4):
                    a(f"v_add_f32 v{T+4+i}, v{T+4+i}, v{T+4+4*q+i}")
            a(f"v_add_f32 v{T+4}, v{T+4}, v{T+6}")
            a(f"v_add_f32 v{T+5}, v{T+5}, v{T+7}")
            a(f"v_mov_b32 v{T+6}, v{T+4}")
            a(f"v_mov_b32 v{T+7}, v{T+5}")
            a(f"s_nop 1")
            a(f"v_permlane32_swap_b32 v{T+6}, v{T+4}")
            a(f"v_permlane32_swap_b32 v{T+7}, v{T+5}")
            a(f"s_nop 1")
            a(f"v_add_f32 v{T+4}, v{T+4}, v{T+6}")
            a(f"v_add_f32 v{T+5}, v{T+5}, v{T+7}")
            self.ab_from_sums(T+4, T+5, T+8)
            A_, B_ = T+9, T+8
        a(f"v_lshlrev_b32 v{T}, 2, v{T}")
        a(f"v_add_u32 v{T}, {LDS_STATS}, v{T}")
        a(f"ds_write_b32 v{T}, v{A_} offset:{ST_AA}")
        a(f"ds_write_b32 v{T}, v{B_} offset:{ST_BB}")
        if getattr(self, "b1_hook", False):
            a(f"v_lshlrev_b32 v{T+22}, 16, v{T+22}")
            a(f"ds_write_b32 v{T}, v{T+22} offset:{ST_B1}")
            a(f"ds_write_b32 v{T}, v{T+23} offset:{ST_CS}")
        a(f"s_waitcnt lgkmcnt(0)")
        a(f"s_barrier")

    def ab_from_sums(self, sx, sq, o):
        a = self.a
        a(f"v_mul_f32 v{o}, {hex(f32(1.0/640))}, v{sx}")
        a(f"v_mul_f32 v{o+1}, {hex(f32(1.0/640))}, v{sq}")
        a(f"v_fma_f32 v{o+1}, -v{o}, v{o}, v{o+1}")
        a(f"v_max_f32 v{o+1}, 0, v{o+1}")
        a(f"v_add_f32 v{o+1}, {hex(f32(1e-5))}, v{o+1}")
        a(f"v_rsq_f32 v{o+1}, v{o+1}")
        a(f"s_nop 0")
        a(f"v_mul_f32 v{o}, v{o}, v{o+1}")
        a(f"v_sub_f32 v{o}, 0, v{o}")

    V_WRM = 252
    S_WRM = 62; S_WRMD = 54
    def p1_l2warm(self):
        a = self.a
        T = self.V_T; V = self.V_WRM
        LW = "L_warm_w"; LJ = "L_warm_j"
        a(f"s_bitcmp1_b32 s{S_W}, 0")
        a(f"s_cbranch_scc1 {LW}")
        self.srd(SRD_T, S_X, 0, 2048*1280)
        a(f"s_and_b32 s{S_T0}, s{S_GX}, 3")
        a(f"s_lshl_b32 s{S_T0}, s{S_T0}, 9")
        a(f"s_lshl_b32 s{S_T1}, s{S_GI}, 4")
        a(f"s_add_u32 s{S_T0}, s{S_T0}, s{S_T1}")
        a(f"v_add_u32 v{T}, s{S_T0}, v1")
        a(f"v_mul_u32_u24 v{V}, 1280, v{T}")
        a(f"v_cmp_gt_u32 vcc, 16, v1")
        a(f"s_mov_b32 s{self.S_WRMD}, 128")
        a(f"s_branch {LJ}a")
        a.put(LW)
        self.srd(SRD_T, S_WQKV, 0, 640*3840)
        a(f"v_lshrrev_b32 v{T}, 4, v1")
        a(f"s_lshl_b32 s{S_T0}, s{S_GI}, 1")
        a(f"v_add_u32 v{T}, s{S_T0}, v{T}")
        a(f"v_mul_u32_u24 v{V}, 3840, v{T}")
        a(f"v_and_b32 v{T+1}, 15, v1")
        a(f"v_lshl_add_u32 v{V}, v{T+1}, 7, v{V}")
        a(f"s_lshr_b32 s{S_T0}, s{S_GX}, 2")
        a(f"s_lshl_b32 s{S_T0}, s{S_T0}, 11")
        a(f"v_add_u32 v{V}, s{S_T0}, v{V}")
        a(f"v_cmp_gt_u32 vcc, 32, v1")
        a(f"s_mov_b32 s{self.S_WRMD}, {64*3840}")
        a.put(LJ + "a")
        a(f"s_cmp_ge_u32 s{S_W}, 2")
        a(f"s_cselect_b64 s[{S_SAVE}:{S_SAVE+1}], 0, vcc")
        a(f"v_mov_b32 v{T+1}, 0x7f000000")
        a(f"s_nop 0")
        a(f"v_cndmask_b32 v{V}, v{T+1}, v{V}, s[{S_SAVE}:{S_SAVE+1}]")
        a(f"s_mul_i32 s{self.S_WRM}, s{self.S_WRMD}, 3")
        for c in range(3):
            self.warm1()

    def warm1(self):
        a = self.a
        a(f"buffer_load_dword v253, v{self.V_WRM}, s[{SRD_T}:{SRD_T+3}], s{self.S_WRM} offen")
        a(f"s_add_u32 s{self.S_WRM}, s{self.S_WRM}, s{self.S_WRMD}")

    def w1_l2warm_keepT(self):
        self.w1_l2warm()

    def w1_l2warm(self):
        a = self.a
        V = self.A_ALL + 1
        self.srd(SRD_O, S_W1, 0, 640*3456)
        a(f"s_mul_i32 s{S_T0}, s{S_GI}, 540")
        a(f"s_lshl_b32 s{S_T1}, s{S_W}, 6")
        a(f"s_add_u32 s{S_T0}, s{S_T0}, s{S_T1}")
        a(f"v_add_u32 v{V}, s{S_T0}, v1")
        a(f"v_lshlrev_b32 v{V}, 7, v{V}")
        a(f"buffer_load_dword v{V+1}, v{V}, s[{SRD_O}:{SRD_O+3}], 0 offen")
        L = f"L_w1w_skip{self.evtag}"
        a(f"s_cmp_lg_u32 s{S_W}, 0")
        a(f"s_cbranch_scc1 {L}")
        self.set_exec((1 << 28) - 1)
        a(f"s_mov_b32 s{S_T1}, {512*128}")
        a(f"buffer_load_dword v{V+1}, v{V}, s[{SRD_O}:{SRD_O+3}], s{S_T1} offen")
        a(f"s_mov_b64 exec, -1")
        a(f"v_lshlrev_b32 v{V+2}, 7, v1")
        self.srd(SRD_O, S_B1, 0, 3456)
        a(f"buffer_load_dword v{V+1}, v{V+2}, s[{SRD_O}:{SRD_O+3}], 0 offen")
        self.srd(SRD_O, S_B2, 0, 1280)
        a(f"buffer_load_dword v{V+1}, v{V+2}, s[{SRD_O}:{SRD_O+3}], 0 offen")
        a.put(L)

    def dst_l2warm(self):
        a = self.a
        V = self.A_ALL + 1
        L = f"L_dstw_skip{self.evtag}"
        a(f"s_cmp_eq_u32 s{S_FAST}, 0")
        a(f"s_cbranch_scc1 {L}")
        self.srd(SRD_O, S_WS, 0, 0x1B00000)
        a(f"s_lshl_b32 s{S_T0}, s{S_W}, 6")
        a(f"v_add_u32 v{V}, s{S_T0}, v1")
        a(f"s_mul_i32 s{S_T0}, s{S_GX}, 2560")
        a(f"s_mul_i32 s{S_T1}, s{S_GI}, 80")
        a(f"s_add_u32 s{S_T0}, s{S_T0}, s{S_T1}")
        a(f"s_add_u32 s{S_T0}, s{S_T0}, {OFF_H//128}")
        a(f"s_mul_i32 s{S_T1}, s{S_GX}, 6912")
        a(f"s_mul_i32 s{S_T2}, s{S_GI}, 216")
        a(f"s_add_u32 s{S_T1}, s{S_T1}, s{S_T2}")
        a(f"s_add_u32 s{S_T1}, s{S_T1}, {OFF_R//128 - 80}")
        a(f"s_lshl_b32 s{S_T2}, s{S_GX}, 8")
        a(f"s_lshl_b32 s{S_T3}, s{S_GI}, 3")
        a(f"s_add_u32 s{S_T2}, s{S_T2}, s{S_T3}")
        a(f"s_add_u32 s{S_T2}, s{S_T2}, {OFF_PST//128 - 296}")
        a(f"v_mov_b32 v{V+2}, s{S_T2}")
        a(f"v_mov_b32 v{V+1}, s{S_T1}")
        a(f"v_cmp_gt_u32 vcc, 296, v{V}")
        a(f"s_nop 1")
        a(f"v_cndmask_b32 v{V+2}, v{V+2}, v{V+1}, vcc")
        a(f"v_mov_b32 v{V+1}, s{S_T0}")
        a(f"v_cmp_gt_u32 vcc, 80, v{V}")
        a(f"s_nop 1")
        a(f"v_cndmask_b32 v{V+2}, v{V+2}, v{V+1}, vcc")
        a(f"v_add_u32 v{V+2}, v{V+2}, v{V}")
        a(f"v_lshlrev_b32 v{V+2}, 7, v{V+2}")
        a(f"v_cmp_gt_u32 vcc, 304, v{V}")
        a(f"s_and_saveexec_b64 s[{S_SAVE}:{S_SAVE+1}], vcc")
        a(f"s_cbranch_execz {L}x")
        a(f"buffer_load_dword v{V+1}, v{V+2}, s[{SRD_O}:{SRD_O+3}], 0 offen")
        a.put(L + "x")
        a(f"s_mov_b64 exec, -1")
        a.put(L)

    def wp_l2warm(self):
        a = self.a
        V = self.A_ALL + 1
        a(f"s_cmp_lt_u32 s{S_W}, 4")
        self.csel(S_T0, hex(OFF_WOP), hex(OFF_W2P))
        a(f"s_add_u32 s{SRD_O}, s{S_WS}, s{S_T0}")
        a(f"s_addc_u32 s{SRD_O+1}, s{S_WS+1}, 0")
        a(f"s_mov_b32 s{SRD_O+2}, {SZ_WOP}")
        a(f"s_mov_b32 s{SRD_O+3}, 0x20000")
        a(f"s_and_b32 s{S_T0}, s{S_W}, 3")
        a(f"s_lshl_b32 s{S_T0}, s{S_T0}, 6")
        a(f"v_add_u32 v{V}, s{S_T0}, v1")
        a(f"v_cmp_gt_u32 vcc, 200, v{V}")
        a(f"s_mul_i32 s{S_T0}, s{S_GI}, 200")
        a(f"v_add_u32 v{V}, s{S_T0}, v{V}")
        a(f"v_lshlrev_b32 v{V}, 7, v{V}")
        a(f"s_and_saveexec_b64 s[{S_SAVE}:{S_SAVE+1}], vcc")
        a(f"s_cbranch_execz L_wpw_x{self.evtag}")
        a(f"buffer_load_dword v{V+1}, v{V}, s[{SRD_O}:{SRD_O+3}], 0 offen")
        a.put(f"L_wpw_x{self.evtag}")
        a(f"s_mov_b64 exec, -1")

    def tlb_warm(self):
        a = self.a
        L1 = "L_tlb1"; L2 = "L_tlb2"; L3 = "L_tlb3"; LJ = "L_tlbj"
        step = self.tlb_step
        a(f"v_mul_u32_u24 v252, {step >> 8}, v1")
        a(f"v_lshlrev_b32 v252, 8, v252")
        a(f"s_cmp_eq_u32 s{S_W}, 1")
        a(f"s_cbranch_scc1 {L1}")
        a(f"s_cmp_eq_u32 s{S_W}, 2")
        a(f"s_cbranch_scc1 {L2}")
        a(f"s_cmp_eq_u32 s{S_W}, 3")
        a(f"s_cbranch_scc1 {L3}")
        self.srd(SRD_T, S_WS, 0x100000, 0x1A00000)
        a(f"s_branch {LJ}")
        a.put(L1)
        self.srd(SRD_T, S_OUT, 0, 2048*1280)
        a(f"s_branch {LJ}")
        a.put(L2)
        self.srd(SRD_T, S_W1, 0, 640*3456)
        a(f"s_branch {LJ}")
        a.put(L3)
        self.srd(SRD_T, S_WS, 0, 0x100000)
        a.put(LJ)
        a(f"buffer_load_dword v253, v252, s[{SRD_T}:{SRD_T+3}], 0 offen")

    def null_job(self):
        a = self.a
        T = 16
        self.srd(SRD_T, S_W1, 0, 640*3456)
        a(f"s_lshl_b32 s{S_T0}, s{S_W}, 6")
        a(f"v_add_u32 v{T}, s{S_T0}, v1")
        a(f"v_mul_u32_u24 v{T+1}, 19419, v{T}")
        a(f"v_lshrrev_b32 v{T+1}, 20, v{T+1}")
        a(f"v_mul_u32_u24 v{T+2}, 54, v{T+1}")
        a(f"v_sub_u32 v{T+2}, v{T}, v{T+2}")
        a(f"v_mul_u32_u24 v{T+3}, 3456, v{T+1}")
        a(f"v_lshl_add_u32 v{T+3}, v{T+2}, 2, v{T+3}")
        a(f"s_mul_i32 s{S_T0}, s{S_MT}, 216")
        a(f"v_add_u32 v{T+3}, s{S_T0}, v{T+3}")
        a(f"v_cmp_gt_u32 vcc, 9, v{T+1}")
        a(f"v_mov_b32 v{T+4}, 0x7f000000")
        a(f"s_nop 0")
        a(f"v_cndmask_b32 v{T+3}, v{T+4}, v{T+3}, vcc")
        a(f"v_mov_b32 v{T+6}, 0"); a(f"v_mov_b32 v{T+7}, 0")
        a(f"s_mov_b32 s{S_T1}, 0")
        a.put("L_nj_loop")
        for k in range(24):
            a(f"s_add_u32 s{S_T2}, s{S_T1}, {k*9*3456}")
            a(f"buffer_load_dword v{T+8+k}, v{T+3}, s[{SRD_T}:{SRD_T+3}], s{S_T2} offen")
        for k in range(24):
            a(f"s_waitcnt vmcnt({23-k})")
            a(f"v_lshlrev_b32 v{T+32}, 16, v{T+8+k}")
            a(f"v_and_b32 v{T+33}, 0xffff0000, v{T+8+k}")
            a(f"v_add_f32 v{T+6}, v{T+6}, v{T+32}")
            a(f"v_add_f32 v{T+7}, v{T+7}, v{T+33}")
        a(f"s_add_u32 s{S_T1}, s{S_T1}, {24*9*3456}")
        a(f"s_cmp_lt_u32 s{S_T1}, {72*9*3456}")
        a(f"s_cbranch_scc1 L_nj_loop")
        a(f"v_lshlrev_b32 v{T+4}, 3, v{T}")
        a(f"ds_write_b64 v{T+4}, v[{T+6}:{T+7}]")
        a(f"s_waitcnt lgkmcnt(0)")
        a(f"s_barrier")
        a(f"s_cmp_lg_u32 s{S_W}, 0")
        a(f"s_cbranch_scc1 L_nj_done")
        a(f"v_lshlrev_b32 v{T+4}, 3, v1")
        for g in range(9):
            a(f"ds_read_b64 v[{T+8+2*g}:{T+9+2*g}], v{T+4} offset:{g*54*8}")
        a(f"s_waitcnt lgkmcnt(0)")
        for g in range(1, 9):
            a(f"v_add_f32 v{T+8}, v{T+8}, v{T+8+2*g}")
            a(f"v_add_f32 v{T+9}, v{T+9}, v{T+9+2*g}")
        a(f"s_mul_i32 s{S_T0}, s{S_MT}, 432")
        a(f"s_add_u32 s{S_T0}, s{S_T0}, {hex(OFF_CS1)}")
        a(f"v_add_u32 v{T+4}, s{S_T0}, v{T+4}")
        self.set_exec((1 << 54) - 1)
        a(f"buffer_store_dwordx2 v[{T+8}:{T+9}], v{T+4}, s[{SRD_F}:{SRD_F+3}], 0 offen sc1")
        a(f"s_mov_b64 exec, -1")
        a.put("L_nj_done")

    def xstats_publish(self):
        a = self.a
        T = self.V_T
        self.srd(SRD_O, S_X, 0, 2048*1280)
        a(f"s_lshl_b32 s{S_T0}, s2, 3")
        a(f"s_lshl_b32 s{S_T1}, s{S_W}, 1")
        a(f"s_add_u32 s{S_T0}, s{S_T0}, s{S_T1}")
        a(f"v_lshrrev_b32 v{T}, 5, v1")
        a(f"v_add_u32 v{T}, s{S_T0}, v{T}")
        a(f"v_mul_u32_u24 v{T+1}, 1280, v{T}")
        a(f"v_and_b32 v{T+2}, 31, v1")
        a(f"v_lshl_add_u32 v{T+1}, v{T+2}, 3, v{T+1}")
        D = T + 4
        for j in range(5):
            a(f"buffer_load_dwordx2 v[{D+2*j}:{D+2*j+1}], v{T+1}, s[{SRD_O}:{SRD_O+3}], 0 offen offset:{256*j}")
        return D

    def xstats_finish(self, D):
        a = self.a
        T = self.V_T
        S = T + 16
        a(f"v_mov_b32 v{S}, 0"); a(f"v_mov_b32 v{S+1}, 0")
        a(f"s_waitcnt vmcnt(0)")
        for r in range(10):
            a(f"v_lshlrev_b32 v{S+2}, 16, v{D+r}")
            a(f"v_and_b32 v{S+3}, 0xffff0000, v{D+r}")
            a(f"v_add_f32 v{S}, v{S}, v{S+2}")
            a(f"v_fmac_f32 v{S+1}, v{S+2}, v{S+2}")
            a(f"v_add_f32 v{S}, v{S}, v{S+3}")
            a(f"v_fmac_f32 v{S+1}, v{S+3}, v{S+3}")
        for ctl in ("row_shr:1", "row_shr:2", "row_shr:4", "row_shr:8"):
            a(f"s_nop 1")
            a(f"v_add_f32_dpp v{S}, v{S}, v{S} {ctl} row_mask:0xf bank_mask:0xf bound_ctrl:0")
            a(f"v_add_f32_dpp v{S+1}, v{S+1}, v{S+1} {ctl} row_mask:0xf bank_mask:0xf bound_ctrl:0")
        a(f"s_nop 1")
        a(f"v_add_f32_dpp v{S}, v{S}, v{S} row_bcast:15 row_mask:0xa bank_mask:0xf")
        a(f"v_add_f32_dpp v{S+1}, v{S+1}, v{S+1} row_bcast:15 row_mask:0xa bank_mask:0xf")
        a(f"s_nop 1")
        self.ab_from_sums(S, S+1, S+5)
        a(f"v_mov_b32 v{S+8}, v{S+6}")
        a(f"v_mov_b32 v{S+9}, v{S+5}")
        self.tag_ready()
        a(f"v_mov_b32 v{S+10}, s{S_TAG}")
        a(f"v_mov_b32 v{S+11}, s{S_TAG}")
        a(f"v_lshlrev_b32 v{T}, 4, v{T}")
        a(f"v_add_u32 v{T}, {hex(OFF_GR)}, v{T}")
        a(f"s_mov_b32 exec_lo, 0x80000000")
        a(f"s_mov_b32 exec_hi, 0x80000000")
        a(f"buffer_store_dwordx4 v[{S+8}:{S+11}], v{T}, s[{SRD_F}:{SRD_F+3}], 0 offen sc1")
        a(f"s_mov_b64 exec, -1")

    def tag_ready(self):
        a = self.a
        a(f"s_waitcnt lgkmcnt(0)")
        a(f"s_getreg_b32 s{S_XCC}, hwreg(HW_REG_XCC_ID, 0, 4)")
        a(f"s_mov_b32 s{S_FAST}, 0")
        a(f"s_mul_i32 s{S_TAG}, s{S_TAG}, 0x9E3779B1")
        a(f"s_add_u32 s{S_TAG}, s{S_TAG}, 0x7F4A7C15")

    def g1_setup_compute(self):
        a = self.a
        T = self.V_FR
        a(f"s_lshr_b32 s{S_WM}, s{S_W}, 1")
        a(f"s_and_b32 s{S_WN}, s{S_W}, 1")
        a(f"v_and_b32 v{T}, 31, v1")
        a(f"s_lshl_b32 s{S_T0}, s{S_WM}, 6")
        a(f"v_add_u32 v{T+1}, s{S_T0}, v{T}")
        a(f"v_lshlrev_b32 v{T+1}, 7, v{T+1}")
        a(f"v_bfe_u32 v{T+2}, v{T}, 1, 3")
        a(f"v_lshrrev_b32 v{T+3}, 5, v1")
        a(f"v_xor_b32 v{T+2}, v{T+2}, v{T+3}")
        for j in range(4):
            a(f"v_xor_b32 v{self.V_AA+j}, {2*j}, v{T+2}")
            a(f"v_lshlrev_b32 v{self.V_AA+j}, 4, v{self.V_AA+j}")
            a(f"v_add_u32 v{self.V_AA+j}, v{self.V_AA+j}, v{T+1}")
        a(f"v_and_b32 v{T+4}, 15, v1")
        a(f"v_lshrrev_b32 v{T+5}, 2, v{T+4}")
        a(f"v_lshlrev_b32 v{T+6}, 3, v{T+3}")
        a(f"v_add_u32 v{T+6}, v{T+6}, v{T+5}")
        a(f"v_lshlrev_b32 v{T+6}, 8, v{T+6}")
        a(f"v_bfe_u32 v{T+7}, v1, 4, 1")
        a(f"v_lshlrev_b32 v{T+7}, 1, v{T+7}")
        a(f"v_bfe_u32 v{T+8}, v1, 1, 1")
        a(f"v_add_u32 v{T+7}, v{T+7}, v{T+8}")
        a(f"s_lshl_b32 s{S_T0}, s{S_WN}, 3")
        a(f"s_lshl_b32 s{S_T1}, s{S_WM}, 2")
        a(f"s_add_u32 s{S_T0}, s{S_T0}, s{S_T1}")
        a(f"v_add_u32 v{T+7}, s{S_T0}, v{T+7}")
        a(f"v_lshlrev_b32 v{T+5}, 2, v{T+5}")
        a(f"v_xor_b32 v{T+7}, v{T+7}, v{T+5}")
        a(f"v_lshlrev_b32 v{T+7}, 4, v{T+7}")
        a(f"v_and_b32 v{T+8}, 1, v1")
        a(f"v_lshlrev_b32 v{T+8}, 3, v{T+8}")
        a(f"v_add_u32 v{T+6}, v{T+6}, v{T+7}")
        a(f"v_add_u32 v{T+6}, v{T+6}, v{T+8}")
        a(f"v_add_u32 v{self.V_AWA}, 16384, v{T+6}")
        a(f"v_xor_b32 v{self.V_AWB}, 64, v{self.V_AWA}")
        a(f"v_and_b32 v{T}, 15, v1")
        a(f"v_bfe_u32 v{T+1}, v1, 4, 1")
        a(f"v_cmp_eq_u32 vcc, v{T}, v{T+1}")
        a(f"v_mov_b32 v{T+2}, 0x3f803f80")
        a(f"s_nop 1")
        a(f"v_cndmask_b32 v{self.V_CSA}, 0, v{T+2}, vcc")
        for r in range(1, 4):
            a(f"v_mov_b32 v{self.V_CSA+r}, v{self.V_CSA}")
        for r in range(4):
            a(f"v_mov_b32 v{self.V_CSD+r}, 0")
        for r in range(64):
            a(f"v_mov_b32 v{self.V_ACC+r}, 0")

    def g1_read1(self, j, q):
        if "noreads" in self.opt: return
        a = self.a
        F = self.V_FR + 16*j
        if q == 0: a(f"ds_read_b128 v[{F}:{F+3}], v{self.V_AA+j}")
        elif q == 1: a(f"ds_read_b128 v[{F+4}:{F+7}], v{self.V_AA+j} offset:4096")
        else:
            ad = (self.V_AWA if q == 2 else self.V_AWB) if j != 3 else (self.V_AW2A if q == 2 else self.V_AW2B)
            R = F + 8 + 4*(q-2)
            a(f"ds_read_b64_tr_b16 v[{R}:{R+1}], v{ad} offset:{4096*j}")
            a(f"ds_read_b64_tr_b16 v[{R+2}:{R+3}], v{ad} offset:{4096*j+1024}")

    def g1_mfma1(self, j, orient, tt, q):
        if "nomfma" in self.opt: return
        a = self.a
        F = self.V_FR + 16*j
        X = f"v[{F+4*tt}:{F+4*tt+3}]"; W = f"v[{F+8+4*q}:{F+11+4*q}]"
        A = self.V_ACC + 16*(2*tt+q)
        D = f"v[{A}:{A+15}]"
        if orient == "T": a(f"v_mfma_f32_32x32x16_bf16 {D}, {W}, {X}, {D}")
        else:             a(f"v_mfma_f32_32x32x16_bf16 {D}, {X}, {W}, {D}")

    def g1_colsum(self, j):
        if "nostats" in self.opt or getattr(self, "nocs", False): return
        F = self.V_FR + 16*j; D = self.V_CSD
        self.a(f"v_mfma_f32_16x16x32_bf16 v[{D}:{D+3}], v[{self.V_CSA}:{self.V_CSA+3}], v[{F+8}:{F+11}], v[{D}:{D+3}]")

    def g1_adv(self):
        a = self.a
        for r in list(range(self.V_AA, self.V_AA+4)) + [self.V_AWA, self.V_AWB]:
            a(f"v_add_u32 v{r}, s{S_DELTA}, v{r}")

    def g1_cstep(self, j, orient, rset, fill=((), (), (), ())):
        a = self.a
        order = (2, 0, 1, 3)
        cp = getattr(self, "cprof", False)
        if cp: a(f"s_memtime s[{72+4*j}:{73+4*j}]")
        a(f"s_waitcnt lgkmcnt(12)")
        if cp: a(f"s_memtime s[{74+4*j}:{75+4*j}]")
        for k, (tt, q) in enumerate(((0, 0), (1, 0), (0, 1), (1, 1))):
            self.g1_mfma1(j, orient, tt, q)
            if k == 0: self.g1_colsum(j)
            self.g1_read1(rset, order[k])
            for f in fill[k]: a(f)

    def g1_compute(self, orient, tag, presetup=False):
        a = self.a
        if not presetup: self.g1_setup_compute()
        AA = self.V_AA
        a(f"v_mov_b32 v{self.V_AW2A}, v{self.V_AWA}")
        a(f"v_mov_b32 v{self.V_AW2B}, v{self.V_AWB}")
        a(f"s_barrier")
        self.stamp(self.st1)
        for j in range(3):
            for q in (2, 0, 1, 3): self.g1_read1(j, q)
        DA, DB = S_DELTA, S_T5
        a(f"s_mov_b32 s{S_CNT}, 0")
        a(f"s_mov_b32 s{S_RSLOT}, 1")
        a(f"s_mov_b32 s{DA}, 32768")
        a(f"v_add_u32 v{AA}, s{DA}, v{AA}")
        a(f"v_add_u32 v{AA+1}, s{DA}, v{AA+1}")
        wrap = hex((-(self.NSLOT-1)*32768) & 0xffffffff)
        L1 = f"L_{tag}_cloop"
        a(f".p2align 5")
        a.put(L1)
        self.g1_cstep(0, orient, 3, ((f"v_add_u32 v{AA+2}, s{DA}, v{AA+2}",), (f"v_add_u32 v{self.V_AWA}, s{DA}, v{self.V_AWA}",),
                                     (f"v_add_u32 v{self.V_AWB}, s{DA}, v{self.V_AWB}",), ()))
        a(f"s_barrier")
        self.g1_cstep(1, orient, 0, ((f"v_add_u32 v{AA+3}, s{DA}, v{AA+3}", f"s_cmp_eq_u32 s{S_RSLOT}, {self.NSLOT-1}"),
                                     (f"s_mov_b32 s{DB}, 32768", f"s_cselect_b32 s{DB}, {wrap}, s{DB}"),
                                     (f"v_mov_b32 v{self.V_AW2A}, v{self.V_AWA}", f"s_cselect_b32 s{S_RSLOT}, -1, s{S_RSLOT}"),
                                     (f"v_mov_b32 v{self.V_AW2B}, v{self.V_AWB}", f"s_add_u32 s{S_RSLOT}, s{S_RSLOT}, 1")))
        wf = ()
        if getattr(self, "warm_fill", False):
            wf = (f"s_cmp_eq_u32 s{S_CNT}, 3", f"s_cselect_b32 s{self.S_WRMD}, s{self.S_WRM}, s{S_OOB}", f"buffer_load_dword v253, v{self.V_WRM}, s[{SRD_T}:{SRD_T+3}], s{self.S_WRMD} offen")
        self.g1_cstep(2, orient, 1, ((f"v_add_u32 v{AA}, s{DB}, v{AA}",), (f"s_add_u32 s{S_CNT}, s{S_CNT}, 1",), wf, ()))
        self.g1_cstep(3, orient, 2, ((f"v_add_u32 v{AA+1}, s{DB}, v{AA+1}",), (f"s_mov_b32 s{DA}, s{DB}",), (f"s_cmp_lt_u32 s{S_CNT}, 10",), ()))
        a(f"s_cbranch_scc1 {L1}")
        a(f"s_waitcnt lgkmcnt(0)")
        a(f"v_mbcnt_lo_u32_b32 v1, -1, 0")
        a(f"v_mbcnt_hi_u32_b32 v1, -1, v1")
        T = self.V_FR
        a(f"s_lshl_b32 s{S_T0}, s{S_WN}, 8")
        a(f"s_lshl_b32 s{S_T1}, s{S_WM}, 7")
        a(f"s_add_u32 s{S_T0}, s{S_T0}, s{S_T1}")
        a(f"s_add_u32 s{S_T0}, s{S_T0}, {LDS_STATS+ST_CS}")
        a(f"v_lshlrev_b32 v{T}, 2, v1")
        a(f"v_add_u32 v{T}, s{S_T0}, v{T}")
        if not getattr(self, "nocs", False):
            a(f"s_nop 4")
            a(f"s_mov_b64 exec, 0xffff")
            a(f"ds_write_b32 v{T}, v{self.V_CSD}")
            a(f"ds_write_b32 v{T}, v{self.V_CSD+1} offset:64")
            a(f"s_mov_b64 exec, -1")
            a(f"s_waitcnt lgkmcnt(0)")
        a(f"s_barrier")

    def magic_div5(self, dst, src):
        self.a(f"v_mul_u32_u24 v{dst}, 52429, v{src}")
        self.a(f"v_lshrrev_b32 v{dst}, 18, v{dst}")
    def magic_div20(self, dst, src):
        self.a(f"v_mul_u32_u24 v{dst}, 52429, v{src}")
        self.a(f"v_lshrrev_b32 v{dst}, 20, v{dst}")

    def epi_T_common(self):
        a = self.a
        T = self.V_T; CSR = self.V_FR
        a(f"v_and_b32 v{T}, 31, v1")
        a(f"s_lshl_b32 s{S_T0}, s{S_WM}, 6")
        a(f"v_add_u32 v{T+1}, s{S_T0}, v{T}")
        a(f"v_lshlrev_b32 v{T+1}, 2, v{T+1}")
        a(f"v_add_u32 v{T+1}, {LDS_STATS}, v{T+1}")
        a(f"ds_read_b32 v{T+2}, v{T+1} offset:{ST_AA}")
        a(f"ds_read_b32 v{T+3}, v{T+1} offset:{ST_BB}")
        a(f"ds_read_b32 v{T+4}, v{T+1} offset:{ST_AA+128}")
        a(f"ds_read_b32 v{T+5}, v{T+1} offset:{ST_BB+128}")
        a(f"v_lshrrev_b32 v{T+6}, 5, v1")
        a(f"s_lshl_b32 s{S_T0}, s{S_WN}, 8")
        a(f"s_lshl_b32 s{S_T1}, s{S_WM}, 7")
        a(f"s_add_u32 s{S_T0}, s{S_T0}, s{S_T1}")
        a(f"s_add_u32 s{S_T0}, s{S_T0}, {LDS_STATS+ST_CS}")
        a(f"v_lshlrev_b32 v{T+7}, 4, v{T+6}")
        a(f"v_add_u32 v{T+7}, s{S_T0}, v{T+7}")
        a(f"v_xor_b32 v{T+1}, 128, v{T+7}")
        for g in range(4):
            a(f"ds_read_b128 v[{CSR+4*g}:{CSR+4*g+3}], v{T+7} offset:{32*g}")
        for g in range(4):
            a(f"ds_read_b128 v[{CSR+16+4*g}:{CSR+16+4*g+3}], v{T+1} offset:{32*g}")

    E_AD = 160; E_LA = 168; E_LC = 169
    S_ESC = 6; S_EO = 7
    def wmwn(self):
        a = self.a
        a(f"s_lshr_b32 s{S_WM}, s{S_W}, 1")
        a(f"s_and_b32 s{S_WN}, s{S_W}, 1")

    def p1_epi_T_pre(self):
        a = self.a
        T = self.V_T + 24
        self.wmwn()
        a(f"v_and_b32 v{T}, 31, v1")
        a(f"v_lshrrev_b32 v{T+6}, 5, v1")
        a(f"s_lshl_b32 s{S_T0}, s{S_WM}, 6")
        a(f"v_add_u32 v{T+1}, s{S_T0}, v{T}")
        a(f"v_lshlrev_b32 v{T+1}, 2, v{T+1}")
        a(f"v_add_u32 v{self.E_LA}, {LDS_STATS}, v{T+1}")
        a(f"s_lshl_b32 s{S_T0}, s{S_WN}, 8")
        a(f"s_lshl_b32 s{S_T1}, s{S_WM}, 7")
        a(f"s_add_u32 s{S_T0}, s{S_T0}, s{S_T1}")
        a(f"s_add_u32 s{S_T0}, s{S_T0}, {LDS_STATS+ST_CS}")
        a(f"v_lshlrev_b32 v{T+7}, 4, v{T+6}")
        a(f"v_add_u32 v{self.E_LC}, s{S_T0}, v{T+7}")
        a(f"v_xor_b32 v{self.E_LC+1}, 128, v{self.E_LC}")
        a(f"s_cmp_lt_u32 s{S_NT}, 5")
        a(f"s_cselect_b32 s{self.S_ESC}, {hex(f32(math.log2(math.e)/math.sqrt(20.0)))}, 1.0")
        self.csel(S_T1, 81920, 163840)
        self.csel(S_T2, 1280, 2560)
        a(f"s_cselect_b32 s{S_T3}, 0, 5")
        self.csel(S_T4, hex(OFF_Q), hex(OFF_KV))
        self.csel(S_T5, hex(SZ_Q), hex(SZ_KV))
        a(f"s_add_u32 s{SRD_O}, s{S_WS}, s{S_T4}")
        a(f"s_addc_u32 s{SRD_O+1}, s{S_WS+1}, 0")
        a(f"s_mov_b32 s{SRD_O+2}, s{S_T5}")
        a(f"s_mov_b32 s{SRD_O+3}, 0x20000")
        a(f"s_sub_u32 s{S_T3}, s{S_NT}, s{S_T3}")
        a(f"s_lshl_b32 s{S_T3}, s{S_T3}, 5")
        a(f"s_lshl_b32 s{S_T4}, s{S_WN}, 4")
        a(f"s_add_u32 s{S_T3}, s{S_T3}, s{S_T4}")
        a(f"s_lshl_b32 s{S_T4}, s{S_WM}, 3")
        for q in range(2):
            for g in range(4):
                if q == 0:
                    a(f"s_add_u32 s{S_T5}, s{S_T3}, s{S_T4}")
                else:
                    a(f"s_xor_b32 s{S_T5}, s{S_T4}, 8")
                    a(f"s_add_u32 s{S_T5}, s{S_T5}, s{S_T3}")
                a(f"s_add_u32 s{S_T5}, s{S_T5}, {2*g}")
                a(f"v_add_u32 v{T+8}, s{S_T5}, v{T+6}")
                self.magic_div5(T+9, T+8)
                a(f"v_mul_u32_u24 v{T+10}, 5, v{T+9}")
                a(f"v_sub_u32 v{T+10}, v{T+8}, v{T+10}")
                a(f"v_mul_lo_u32 v{T+9}, v{T+9}, s{S_T1}")
                a(f"v_lshlrev_b32 v{T+10}, 8, v{T+10}")
                a(f"v_add_u32 v{T+9}, v{T+9}, v{T+10}")
                a(f"v_lshl_add_u32 v{self.E_AD+4*q+g}, v{T}, 3, v{T+9}")
        a(f"s_lshl_b32 s{S_T4}, s{S_MT}, 2")
        a(f"s_lshl_b32 s{S_T5}, s{S_WM}, 1")
        a(f"s_add_u32 s{S_T4}, s{S_T4}, s{S_T5}")
        a(f"s_mul_i32 s{self.S_EO}, s{S_T4}, s{S_T2}")
        a(f"s_add_u32 s{self.S_EO+1}, s{self.S_EO}, s{S_T2}")

    def p1_epi_T(self):
        a = self.a
        T = self.V_T; A = self.V_ACC; CSR = self.V_FR
        a(f"ds_read_b32 v{T+2}, v{self.E_LA} offset:{ST_AA}")
        a(f"ds_read_b32 v{T+3}, v{self.E_LA} offset:{ST_BB}")
        a(f"ds_read_b32 v{T+4}, v{self.E_LA} offset:{ST_AA+128}")
        a(f"ds_read_b32 v{T+5}, v{self.E_LA} offset:{ST_BB+128}")
        for q in range(2):
            for g in range(4):
                a(f"ds_read_b128 v[{CSR+16*q+4*g}:{CSR+16*q+4*g+3}], v{self.E_LC+q} offset:{32*g}")
        a(f"s_waitcnt lgkmcnt(8)")
        for r in range(4):
            a(f"v_mul_f32 v{T+2+r}, s{self.S_ESC}, v{T+2+r}")
        a(f"s_waitcnt lgkmcnt(0)")
        for tt in range(2):
            ab = f"v[{T+2+2*tt}:{T+3+2*tt}]"
            for q in range(2):
                for g in range(4):
                    for i in (0, 2):
                        r = A + 16*(2*tt+q) + 4*g + i
                        c = CSR + 16*q + 4*g + i
                        a(f"v_pk_mul_f32 v[{r}:{r+1}], v[{r}:{r+1}], {ab} op_sel:[0,0] op_sel_hi:[1,0]")
                        a(f"v_pk_fma_f32 v[{r}:{r+1}], v[{c}:{c+1}], {ab}, v[{r}:{r+1}] op_sel:[0,1,0] op_sel_hi:[1,1,1]")
                    r = A + 16*(2*tt+q) + 4*g
                    a(f"v_cvt_pk_bf16_f32 v{r}, v{r}, v{r+1}")
                    a(f"v_cvt_pk_bf16_f32 v{r+1}, v{r+2}, v{r+3}")
                    a(f"buffer_store_dwordx2 v[{r}:{r+1}], v{self.E_AD+4*q+g}, s[{SRD_O}:{SRD_O+3}], s{self.S_EO+tt} offen sc1")

    def p1_epi_N_pre(self):
        a = self.a
        T = self.V_T + 24
        self.wmwn()
        a(f"v_and_b32 v{T}, 31, v1")
        a(f"v_lshrrev_b32 v{T+6}, 5, v1")
        a(f"s_lshl_b32 s{S_T0}, s{S_WM}, 8")
        a(f"v_lshlrev_b32 v{T+4}, 4, v{T+6}")
        a(f"v_add_u32 v{T+4}, s{S_T0}, v{T+4}")
        a(f"v_add_u32 v{self.E_LA}, {LDS_STATS}, v{T+4}")
        a(f"s_mov_b32 s{S_T2}, 163840")
        for q in range(2):
            a(f"s_xor_b32 s{S_T0}, s{S_WM}, {q}")
            a(f"s_lshl_b32 s{S_T0}, s{S_T0}, 5")
            a(f"s_lshl_b32 s{S_T1}, s{S_WN}, 6")
            a(f"s_add_u32 s{S_T0}, s{S_T0}, s{S_T1}")
            a(f"v_add_u32 v{T+1}, s{S_T0}, v{T}")
            a(f"v_lshlrev_b32 v{T+2}, 2, v{T+1}")
            a(f"v_add_u32 v{self.E_LC+q}, {LDS_STATS+ST_CS}, v{T+2}")
            a(f"s_sub_u32 s{S_T1}, s{S_NT}, 10")
            a(f"s_lshl_b32 s{S_T1}, s{S_T1}, 7")
            a(f"v_add_u32 v{T+7}, s{S_T1}, v{T+1}")
            self.magic_div20(T+8, T+7)
            a(f"v_mul_u32_u24 v{T+9}, 20, v{T+8}")
            a(f"v_sub_u32 v{T+9}, v{T+7}, v{T+9}")
            a(f"v_mul_lo_u32 v{T+8}, v{T+8}, s{S_T2}")
            a(f"v_lshlrev_b32 v{T+9}, 4, v{T+9}")
            a(f"v_add_u32 v{T+8}, v{T+8}, v{T+9}")
            a(f"v_mul_u32_u24 v{T+9}, 320, v{T+6}")
            a(f"v_add_u32 v{T+8}, v{T+8}, v{T+9}")
            a(f"v_add_u32 v{self.E_AD+q}, 1280, v{T+8}")
        self.srd(SRD_O, S_WS, OFF_KV, SZ_KV)
        a(f"s_lshl_b32 s{S_T4}, s{S_MT}, 2")
        a(f"s_lshl_b32 s{S_T5}, s{S_WM}, 1")
        a(f"s_add_u32 s{S_T4}, s{S_T4}, s{S_T5}")
        a(f"s_mul_i32 s{self.S_EO}, s{S_T4}, 2560")
        a(f"s_add_u32 s{self.S_EO+1}, s{self.S_EO}, 2560")

    def p1_epi_N(self):
        a = self.a
        T = self.V_T; A = self.V_ACC
        ABs = (self.V_FR, self.V_FR + 32)
        a(f"ds_read_b32 v{T+10}, v{self.E_LC}")
        a(f"ds_read_b32 v{T+11}, v{self.E_LC+1}")
        for tt in range(2):
            AB = ABs[tt]; BB = AB + 16
            for g in range(4):
                a(f"ds_read_b128 v[{AB+4*g}:{AB+4*g+3}], v{self.E_LA} offset:{ST_AA + 128*tt + 32*g}")
                a(f"ds_read_b128 v[{BB+4*g}:{BB+4*g+3}], v{self.E_LA} offset:{ST_BB + 128*tt + 32*g}")
        cs = f"v[{T+10}:{T+11}]"
        for tt in range(2):
            AB = ABs[tt]; BB = AB + 16
            a(f"s_waitcnt lgkmcnt({8 if tt == 0 else 0})")
            for q in range(2):
                for r in range(0, 16, 2):
                    R = A + 16*(2*tt+q) + r
                    a(f"v_pk_mul_f32 v[{R}:{R+1}], v[{R}:{R+1}], v[{AB+r}:{AB+r+1}]")
                    a(f"v_pk_fma_f32 v[{R}:{R+1}], v[{BB+r}:{BB+r+1}], {cs}, v[{R}:{R+1}] op_sel:[0,{q},0] op_sel_hi:[1,{q},1]")
                for st in range(2):
                    R = A + 16*(2*tt+q) + 8*st
                    for z in range(4):
                        a(f"v_cvt_pk_bf16_f32 v{R+z}, v{R+2*z}, v{R+2*z+1}")
                    a(f"buffer_store_dwordx4 v[{R}:{R+3}], v{self.E_AD+q}, s[{SRD_O}:{SRD_O+3}], s{self.S_EO+tt} offen offset:{640*st} sc1")

    def relayout_unit(self):
        pass

    def rl_unit(self):
        a = self.a
        a(f"s_lshl_b32 s{S_T0}, s2, 2")
        a(f"s_and_b32 s{S_T5}, s{S_W}, 3")
        a(f"s_add_u32 s{S_T0}, s{S_T0}, s{S_T5}")

    def rl_src(self, srd):
        a = self.a
        self.rl_unit()
        a(f"s_cmp_lt_u32 s{S_T0}, 540")
        a(f"s_cselect_b32 s{S_T1}, 0, 540")
        a(f"s_cselect_b32 s{srd}, s{S_W2}, s{S_WO}")
        a(f"s_cselect_b32 s{srd+1}, s{S_W2+1}, s{S_WO+1}")
        self.csel(srd+2, 1728*1280, 640*1280)
        a(f"s_mov_b32 s{srd+3}, 0x20000")
        a(f"s_sub_u32 s{S_T1}, s{S_T0}, s{S_T1}")
        a(f"s_mul_hi_u32 s{S_T2}, s{S_T1}, {hex((2**32+9)//10)}")
        a(f"s_mul_i32 s{S_T3}, s{S_T2}, 10")
        a(f"s_sub_u32 s{S_T3}, s{S_T1}, s{S_T3}")
        a(f"s_mul_i32 s{S_T2}, s{S_T2}, {32*1280}")
        a(f"s_lshl_b32 s{S_T3}, s{S_T3}, 7")
        a(f"s_add_u32 s{S_T2}, s{S_T2}, s{S_T3}")
        a(f"s_cmp_ge_u32 s{S_T0}, 740")
        a(f"s_cselect_b32 s{S_T2}, 0x70000000, s{S_T2}")

    def relayout_load(self):
        a = self.a
        T = self.V_T
        self.rl_src(SRD_T)
        a(f"v_lshrrev_b32 v{T}, 3, v1")
        a(f"v_mul_u32_u24 v{T}, 1280, v{T}")
        a(f"v_and_b32 v{T+1}, 7, v1")
        a(f"v_lshl_add_u32 v{T}, v{T+1}, 4, v{T}")
        a(f"s_lshl_b32 s{S_T3}, s{S_T5}, 12")
        a(f"s_add_u32 m0, s{S_T3}, {LDS_RL}")
        for jj in range(4):
            a(f"s_nop 0")
            a(f"buffer_load_dwordx4 v{T}, s[{SRD_T}:{SRD_T+3}], s{S_T2} offen lds")
            if jj < 3:
                a(f"s_add_u32 m0, m0, 1024")
                a(f"s_add_u32 s{S_T2}, s{S_T2}, {8*1280}")

    def relayout_warm_setup(self):
        a = self.a
        V = self.V_WRM
        self.rl_src(SRD_T)
        a(f"s_mov_b32 s{self.S_WRM}, s{S_T2}")
        a(f"s_mov_b32 s{S_OOB}, 0x70000000")
        a(f"v_mul_u32_u24 v{V}, 1280, v1")
        a(f"v_cmp_gt_u32 vcc, 32, v1")
        a(f"v_mov_b32 v{V-1}, 0x7f000000")
        a(f"s_nop 0")
        a(f"v_cndmask_b32 v{V}, v{V-1}, v{V}, vcc")

    def relayout_store(self):
        a = self.a
        T = self.V_T
        Lskip = "L_rl_skip2"
        self.rl_unit()
        a(f"s_cmp_ge_u32 s{S_T0}, 740")
        a(f"s_cbranch_scc1 {Lskip}")
        a(f"s_cmp_lt_u32 s{S_T0}, 540")
        a(f"s_cselect_b32 s{S_T1}, 0, 540")
        self.csel(S_T4, hex(OFF_W2P), hex(OFF_WOP))
        self.csel(S_T3, hex(SZ_W2P), hex(SZ_WOP))
        a(f"s_mov_b32 s{SRD_T+2}, s{S_T3}")
        a(f"s_sub_u32 s{S_T1}, s{S_T0}, s{S_T1}")
        a(f"s_add_u32 s{SRD_T}, s{S_WS}, s{S_T4}")
        a(f"s_addc_u32 s{SRD_T+1}, s{S_WS+1}, 0")
        a(f"s_mov_b32 s{SRD_T+3}, 0x20000")
        a(f"s_mul_hi_u32 s{S_T2}, s{S_T1}, {hex((2**32+9)//10)}")
        a(f"s_mul_i32 s{S_T3}, s{S_T2}, 10")
        a(f"s_sub_u32 s{S_T3}, s{S_T1}, s{S_T3}")
        a(f"s_mul_i32 s{S_T2}, s{S_T2}, 40")
        a(f"s_lshl_b32 s{S_T3}, s{S_T3}, 2")
        a(f"s_add_u32 s{S_T2}, s{S_T2}, s{S_T3}")
        a(f"s_lshl_b32 s{S_T2}, s{S_T2}, 10")
        a(f"v_lshrrev_b32 v{T}, 4, v1")
        a(f"v_lshlrev_b32 v{T}, 3, v{T}")
        a(f"v_bfe_u32 v{T+1}, v1, 2, 2")
        a(f"v_add_u32 v{T}, v{T}, v{T+1}")
        a(f"v_lshlrev_b32 v{T}, 7, v{T}")
        a(f"v_and_b32 v{T+1}, 3, v1")
        a(f"v_lshl_add_u32 v{T}, v{T+1}, 3, v{T}")
        a(f"s_lshl_b32 s{S_T3}, s{S_T5}, 12")
        a(f"s_add_u32 s{S_T3}, s{S_T3}, {LDS_RL}")
        a(f"v_add_u32 v{T}, s{S_T3}, v{T}")
        a(f"v_lshlrev_b32 v{T+1}, 4, v1")
        O = T + 4
        for tq in range(4):
            a(f"ds_read_b64_tr_b16 v[{O+4*tq}:{O+4*tq+1}], v{T} offset:{32*tq}")
            a(f"ds_read_b64_tr_b16 v[{O+4*tq+2}:{O+4*tq+3}], v{T} offset:{32*tq+512}")
        a(f"s_waitcnt lgkmcnt(0)")
        for tq in range(4):
            a(f"buffer_store_dwordx4 v[{O+4*tq}:{O+4*tq+3}], v{T+1}, s[{SRD_T}:{SRD_T+3}], s{S_T2} offen offset:{1024*tq} sc1")
        a.put(Lskip)

    def p1(self):
        a = self.a
        a(f"s_and_b32 s{S_T0}, s{S_GX}, 3")
        a(f"s_lshl_b32 s{S_T0}, s{S_T0}, 2")
        a(f"s_and_b32 s{S_T1}, s{S_GI}, 3")
        a(f"s_add_u32 s{S_MT}, s{S_T0}, s{S_T1}")
        a(f"s_lshr_b32 s{S_T0}, s{S_GX}, 2")
        a(f"s_lshl_b32 s{S_T0}, s{S_T0}, 3")
        a(f"s_lshr_b32 s{S_T2}, s{S_GI}, 2")
        a(f"s_add_u32 s{S_NT}, s{S_T0}, s{S_T2}")
        a(f"s_lshl_b32 s{S_T1}, s{S_T1}, 1")
        a(f"s_add_u32 s{S_RLW}, s{S_T1}, s{S_T2}")
        a(f"s_and_b32 s{S_RLW}, s{S_RLW}, 7")
        a(f"s_mov_b32 s{S_KK}, 0")
        self.aux_A = ""
        self.st1 = 1
        a(f"s_cmp_lt_u32 s{S_W}, 4")
        a(f"s_cbranch_scc1 L_p1_compute")
        self.g1_setup_loader(3840)
        a(f"s_waitcnt lgkmcnt(0)")
        if "p1s" in self.opt: self.stamp(15)
        self.srd(SRD_A, S_X, 0, 2048*1280)
        self.srd(SRD_W, S_WQKV, 0, 640*3840)
        a(f"s_load_dword s{S_TAG}, s[{S_WS}:{S_WS+1}], {OFF_EPOCH}")
        a(f"s_cmp_ge_u32 s{S_NT}, 15")
        a(f"s_cbranch_scc1 L_p1_lnull")
        self.g1_dma_stage(3840)
        if "p1s" in self.opt: self.stamp(16)
        self.g1_dma_stage(3840)
        if "norot" not in self.opt: a(f"s_add_u32 s{S_KK}, s{S_RLW}, 2")
        self.srd(SRD_F, S_WS, 0, 0x100000)
        if "p1s" in self.opt: self.stamp(17)
        self.g1_loader(3840, "p1", "gran")
        a(f"s_branch L_p1_lj")
        a.put("L_p1_lnull")
        self.srd(SRD_F, S_WS, 0, 0x100000)
        self.tag_ready()
        self.relayout_load()
        a.put("L_p1_lj")
        a(f"s_waitcnt vmcnt(0)")
        self.relayout_store()
        a(f"s_cmp_ge_u32 s{S_NT}, 15")
        a(f"s_cbranch_scc1 L_p1_nulljob")
        a(f"s_branch L_p1_done")
        a.put("L_p1_compute")
        a(f"s_waitcnt lgkmcnt(0)")
        a(f"s_load_dword s{S_TAG}, s[{S_WS}:{S_WS+1}], {OFF_EPOCH}")
        self.srd(SRD_F, S_WS, 0, 0x100000)
        if "tlbw" in self.opt: self.tlb_warm()
        D = self.xstats_publish()
        self.relayout_warm_setup()
        self.xstats_finish(D)
        a(f"s_cmp_ge_u32 s{S_NT}, 15")
        a(f"s_cbranch_scc1 L_p1_nulljob")
        a(f"s_cmp_ge_u32 s{S_NT}, 10")
        a(f"s_cbranch_scc1 L_p1_N")
        self.warm_fill = True
        self.p1_epi_T_pre()
        self.g1_compute("T", "p1T")
        self.stamp(2)
        self.p1_epi_T()
        a(f"s_branch L_p1_done")
        a.put("L_p1_N")
        self.p1_epi_N_pre()
        self.g1_compute("N", "p1N")
        self.warm_fill = False
        self.stamp(2)
        self.p1_epi_N()
        a(f"s_branch L_p1_done")
        a.put("L_p1_nulljob")
        self.null_job()
        a.put("L_p1_done")
        self.stamp(3)

    def poll(self, addr_regs, masks, tagname):
        a = self.a
        T = self.V_S - 8
        L = f"L_{tagname}_poll"; Lo = f"L_{tagname}_pollok"
        a(f"s_mov_b32 s{S_T0}, 0")
        a.put(L)
        for k, (ar, mk) in enumerate(zip(addr_regs, masks)):
            self.set_exec(mk)
            a(f"buffer_load_dword v{T+20+k}, v{ar}, s[{SRD_F}:{SRD_F+3}], 0 offen sc1")
        a(f"s_waitcnt vmcnt(0)")
        a(f"s_mov_b64 s[{S_SAVE}:{S_SAVE+1}], 0")
        for k, (ar, mk) in enumerate(zip(addr_regs, masks)):
            self.set_exec(mk)
            a(f"v_cmp_ne_u32 vcc, s{S_TAG}, v{T+20+k}")
            a(f"s_or_b64 s[{S_SAVE}:{S_SAVE+1}], s[{S_SAVE}:{S_SAVE+1}], vcc")
        a(f"s_mov_b64 exec, -1")
        a(f"s_cmp_eq_u64 s[{S_SAVE}:{S_SAVE+1}], 0")
        a(f"s_cbranch_scc1 {Lo}")
        a(f"s_add_u32 s{S_T0}, s{S_T0}, 1")
        a(f"s_cmp_lt_u32 s{S_T0}, 0x40000")
        a(f"s_cbranch_scc1 {L}")
        a.put(Lo)

    def p1_signal(self):
        a = self.a
        T = self.V_S
        Ls = "L_p1sig_skip"
        a(f"s_cmp_lg_u32 s{S_W}, {self.SIGW}")
        a(f"s_cbranch_scc1 {Ls}p")
        a(f"v_lshrrev_b32 v{T}, 3, v1")
        a(f"v_and_b32 v{T+1}, 7, v1")
        Ln = "L_p1sig_null"; Lj = "L_p1sig_join"
        a(f"s_cmp_eq_u32 s{S_NT}, 15")
        a(f"s_cbranch_scc1 {Ln}")
        a(f"s_cmp_ge_u32 s{S_NT}, 10")
        a(f"s_cselect_b32 s{S_T0}, 10, 5")
        a(f"s_cmp_lt_u32 s{S_NT}, 5")
        a(f"s_cselect_b32 s{S_T0}, 0, s{S_T0}")
        a(f"s_sub_u32 s{S_T0}, s{S_NT}, s{S_T0}")
        a(f"s_lshl_b32 s{S_T0}, s{S_T0}, 7")
        a(f"s_mul_i32 s{S_T1}, s{S_T0}, 52429")
        a(f"s_lshr_b32 s{S_T1}, s{S_T1}, 20")
        a(f"s_add_u32 s{S_T2}, s{S_T0}, 127")
        a(f"s_mul_i32 s{S_T2}, s{S_T2}, 52429")
        a(f"s_lshr_b32 s{S_T2}, s{S_T2}, 20")
        a(f"s_min_u32 s{S_T2}, s{S_T2}, 31")
        a(f"v_add_u32 v{T+2}, s{S_T1}, v{T}")
        a(f"v_cmp_ge_u32 vcc, s{S_T2}, v{T+2}")
        a(f"s_mov_b64 s[{S_SAVE}:{S_SAVE+1}], vcc")
        a(f"s_cmp_lt_u32 s{S_NT}, 5")
        a(f"s_cbranch_scc0 {Lj}")
        a(f"s_lshr_b32 s{S_T3}, s{S_MT}, 1")
        a(f"v_cmp_eq_u32 vcc, s{S_T3}, v{T+1}")
        a(f"s_and_b64 s[{S_SAVE}:{S_SAVE+1}], s[{S_SAVE}:{S_SAVE+1}], vcc")
        a(f"s_branch {Lj}")
        a.put(Ln)
        a(f"v_lshlrev_b32 v{T+2}, 4, v{T}")
        a(f"v_add_u32 v{T+2}, s{S_MT}, v{T+2}")
        a(f"v_cmp_gt_u32 vcc, 2, v{T}")
        a(f"s_mov_b64 s[{S_SAVE}:{S_SAVE+1}], vcc")
        a.put(Lj)
        a(f"v_and_b32 v{T+4}, 3, v{T+2}")
        a(f"v_lshl_add_u32 v{T+4}, v{T+1}, 2, v{T+4}")
        a(f"v_lshrrev_b32 v{T+2}, 2, v{T+2}")
        a(f"v_lshl_add_u32 v{T+2}, v{T+4}, 3, v{T+2}")
        a(f"v_lshlrev_b32 v{T+2}, 10, v{T+2}")
        a(f"s_lshl_b32 s{S_T0}, s2, 2")
        a(f"s_add_u32 s{S_T0}, s{S_T0}, {OFF_MB1}")
        a(f"v_add_u32 v{T+2}, s{S_T0}, v{T+2}")
        a(f"v_mov_b32 v{T+3}, s{S_TAG}")
        a(f"s_lshl_b32 s{S_T0}, s2, 2")
        a(f"s_add_u32 s{S_T0}, s{S_T0}, {OFF_ALL}")
        a(f"v_mov_b32 v{T+5}, s{S_T0}")
        a(f"s_add_u32 s{S_T1}, s{S_TAG}, s{S_XCC}")
        a(f"v_mov_b32 v{T+6}, s{S_T1}")
        a.put(Ls + "p")
        a(f"s_waitcnt vmcnt(0) lgkmcnt(0)")
        self.stamp(4)
        a(f"s_barrier")
        a(f"s_cmp_lg_u32 s{S_W}, {self.SIGW}")
        a(f"s_cbranch_scc1 {Ls}")
        a(f"s_mov_b64 exec, s[{S_SAVE}:{S_SAVE+1}]")
        a(f"buffer_store_dword v{T+3}, v{T+2}, s[{SRD_F}:{SRD_F+3}], 0 offen sc1")
        a(f"s_mov_b64 exec, 1")
        a(f"buffer_store_dword v{T+6}, v{T+5}, s[{SRD_F}:{SRD_F+3}], 0 offen sc1")
        a(f"s_mov_b64 exec, -1")
        a.put(Ls)

    def finish_tag_once(self):
        a = self.a
        a(f"s_mul_i32 s{S_TAG}, s{S_TAG}, 0x9E3779B1")
        a(f"s_add_u32 s{S_TAG}, s{S_TAG}, 0x7F4A7C15")

    def p2_wait_prep(self):
        a = self.a
        T = self.V_S + 16
        Ls = "L_p2w_skip"
        a(f"s_cmp_lg_u32 s{S_W}, {self.POLLW}")
        a(f"s_cbranch_scc1 {Ls}")
        a(f"s_mul_i32 s{S_T1}, s{S_HEAD}, 20")
        a(f"v_bfe_u32 v{T}, v1, 4, 1")
        a(f"v_mul_u32_u24 v{T}, 19, v{T}")
        a(f"v_add_u32 v{T}, s{S_T1}, v{T}")
        a(f"v_lshrrev_b32 v{T}, 7, v{T}")
        a(f"v_lshrrev_b32 v{T+1}, 5, v1")
        a(f"v_mul_u32_u24 v{T+1}, 5, v{T+1}")
        a(f"v_add_u32 v{T+2}, v{T}, v{T+1}")
        a(f"v_add_u32 v{T+2}, 5, v{T+2}")
        a(f"v_and_b32 v{T+3}, 15, v1")
        self.vprod(T+4, T+3, T+2, T+10)
        a(f"v_bfe_u32 v{T}, v1, 1, 1")
        a(f"v_mul_u32_u24 v{T}, 19, v{T}")
        a(f"v_add_u32 v{T}, s{S_T1}, v{T}")
        a(f"v_lshrrev_b32 v{T+2}, 7, v{T}")
        a(f"v_and_b32 v{T+3}, 1, v1")
        a(f"s_lshl_b32 s{S_T2}, s{S_QB}, 1")
        a(f"v_add_u32 v{T+3}, s{S_T2}, v{T+3}")
        a(f"v_cmp_eq_u32 vcc, 4, v1")
        a(f"s_and_b32 s{S_T2}, s{S_HEAD}, 15")
        a(f"v_mov_b32 v{T+6}, s{S_T2}")
        a(f"v_mov_b32 v{T+7}, 15")
        a(f"v_cndmask_b32 v{T+3}, v{T+3}, v{T+6}, vcc")
        a(f"v_cndmask_b32 v{T+2}, v{T+2}, v{T+7}, vcc")
        self.vprod(T+5, T+3, T+2, T+10)
        a(f"s_lshl_b32 s{S_T2}, s2, 10")
        a(f"s_add_u32 s{S_T2}, s{S_T2}, {OFF_MB1}")
        for r in (T+4, T+5):
            a(f"v_lshlrev_b32 v{r}, 2, v{r}")
            a(f"v_add_u32 v{r}, s{S_T2}, v{r}")
        a.put(Ls)

    def p2_wait(self):
        a = self.a
        T = self.V_S + 16
        Ls = "L_p2w_skip2"
        a(f"s_cmp_lg_u32 s{S_W}, {self.POLLW}")
        a(f"s_cbranch_scc1 {Ls}")
        self.V_S += 16
        self.poll([T+4, T+5], ["-1", "0x1f"], "p2w")
        self.V_S -= 16
        a.put(Ls)
        a(f"s_barrier")

    def vprod(self, dst, mt, nt, tmp):
        a = self.a
        a(f"v_and_b32 v{dst}, 3, v{mt}")
        a(f"v_and_b32 v{tmp}, 7, v{nt}")
        a(f"v_lshl_add_u32 v{dst}, v{tmp}, 2, v{dst}")
        a(f"v_lshlrev_b32 v{dst}, 3, v{dst}")
        a(f"v_lshrrev_b32 v{tmp}, 2, v{mt}")
        a(f"v_add_u32 v{dst}, v{dst}, v{tmp}")
        a(f"v_lshrrev_b32 v{tmp}, 3, v{nt}")
        a(f"v_lshl_add_u32 v{dst}, v{tmp}, 2, v{dst}")

    def group_barrier(self, phase, tagname, tgt=None, slot=None, hook=None, local=False):
        a = self.a
        T = self.V_S
        gs = (tagname in self.opt)
        Ls = f"L_{tagname}_gskip"
        tgt = S_GX if tgt is None else tgt
        slot = S_GI if slot is None else slot
        a(f"v_lshlrev_b32 v{T}, 3, v1")
        a(f"v_add_u32 v{T}, s{tgt}, v{T}")
        a(f"v_lshlrev_b32 v{T}, 7, v{T}")
        a(f"s_lshl_b32 s{S_T1}, s{slot}, 2")
        a(f"s_add_u32 s{S_T1}, s{S_T1}, {OFF_GB + phase*256*128}")
        a(f"v_add_u32 v{T}, s{S_T1}, v{T}")
        a(f"v_mov_b32 v{T+1}, s{S_TAG}")
        a(f"s_waitcnt vmcnt(0) lgkmcnt(0)")
        if gs: self.stamp(15)
        a(f"s_barrier")
        if gs: self.stamp(16)
        a(f"s_cmp_lg_u32 s{S_W}, {self.POLLW}")
        a(f"s_cbranch_scc1 {Ls}0")
        self.set_exec(0xffffffff)
        if local:
            a(f"s_cmp_eq_u32 s{S_FAST}, 1")
            a(f"s_cbranch_scc1 {Ls}f")
            a(f"buffer_store_dword v{T+1}, v{T}, s[{SRD_F}:{SRD_F+3}], 0 offen sc1")
            a(f"s_branch {Ls}g")
            a.put(Ls + "f")
            a(f"buffer_store_dword v{T+1}, v{T}, s[{SRD_F}:{SRD_F+3}], 0 offen")
            a.put(Ls + "g")
        else:
            a(f"buffer_store_dword v{T+1}, v{T}, s[{SRD_F}:{SRD_F+3}], 0 offen sc1")
        a(f"s_mov_b64 exec, -1")
        a.put(Ls + "0")
        if hook: hook()
        if gs: self.stamp(17)
        a(f"s_cmp_lg_u32 s{S_W}, {self.POLLW}")
        a(f"s_cbranch_scc1 {Ls}")
        a(f"s_lshl_b32 s{S_T0}, s2, 7")
        a(f"s_add_u32 s{S_T0}, s{S_T0}, {OFF_GB + phase*256*128}")
        a(f"v_lshlrev_b32 v{T+2}, 2, v1")
        a(f"v_add_u32 v{T+2}, s{S_T0}, v{T+2}")
        self.poll([T+2], ["0xffffffff"], tagname)
        a.put(Ls)
        a(f"s_barrier")

    A_QA = 4; A_QB = 12
    A_K = 20
    A_V1 = 36; A_V2 = 40
    A_SA = 44; A_SB = 60; A_P = 76; A_OA = 84; A_OB = 100; A_AK = 116; A_AV = 117; A_DV = 118; A_ALLA = 119; A_T = 120; A_ALL = 132
    S_VMASK = 92
    S_NEXTB = 94; S_DSO = 95; S_LOW = 65; S_NEXTM = 69
    p2_nu = 4
    low_tiles = 1
    S_D = [6, 7, 8, 9, 16, 17]
    S_WOI = [51, 53]
    S_WOBK = 62
    S_WOM = 68
    low_pos = (3, 10, 18, 29)
    warm_slots = {'dst': 48, 'w1': 50}
    def p2_unrolled(self):
        a = self.a
        D = self.S_D
        def kv():
            a(f"s_mov_b32 m0, s{self.S_DSO}")
            a(f"s_nop 0")
            a(f"buffer_load_dwordx4 v{self.A_DV}, s[{SRD_A}:{SRD_A+3}], s{self.S_DSO} offen sc1 lds")
            a(f"s_add_u32 s{self.S_DSO}, s{self.S_DSO}, 4096")
        def w2(g):
            R = 144 + 4*g
            a(f"buffer_load_dwordx4 v[{R}:{R+3}], v{self.A_ALLA}, s[{SRD_W}:{SRD_W+3}], s{S_SW} offen {self.ld_aux}")
            a(f"s_add_u32 s{S_SW}, s{S_SW}, s{D[g % 6]}")
        def wo(idx):
            a(f"s_mov_b32 m0, s{self.S_WOB}")
            a(f"s_add_u32 s{self.S_WOB}, s{self.S_WOB}, s{self.S_WOI[1 if idx == 4 else 0]}")
            if idx >= 10:
                a(f"s_cmp_lt_u32 s{S_W}, 4")
                a(f"s_cbranch_scc1 L_wo_sk{idx}")
            a(f"buffer_load_dwordx4 v{self.A_DV}, s[{SRD_T}:{SRD_T+3}], s{self.S_WOS} offen {self.ld_aux} lds")
            if idx >= 10: a.put(f"L_wo_sk{idx}")
            a(f"s_add_u32 s{self.S_WOS}, s{self.S_WOS}, s{D[idx % 6]}")
        slot_ops = {}
        def put(x, k_, arg=None): slot_ops.setdefault(x, []).append((k_, arg))
        for i in range(5): put(8 + i, "kv")
        for i in range(6): put(24 + i, "kv")
        free = [x for x in range(13, 40) if x not in range(24, 30)]
        dbl = set(free[1::3][:7])
        g = 0
        for x in free:
            put(x, "w2", g); g += 1
            if x in dbl:
                put(x, "w2", g); g += 1
        assert g == 28, g
        for i in range(15): put(40 + i//2, "wo", i)
        for k_, x in self.warm_slots.items(): put(x, k_)
        def cnt(lo, hi):
            return sum(1 for x in range(lo, hi) for k_, _ in slot_ops.get(x, []) if k_ in ("kv", "w2", "wo"))
        lowpos = set(self.low_pos)
        noprio = "noprio" in self.opt
        if not noprio:
            a(f"s_setprio 1")
            self.p2_setprio(2, "init")
        a(f"s_nop 7"); a(f"s_nop 3")
        base = 0
        for t in range(32):
            if t == 16:
                a(f"v_add_u32 v{self.A_AK}, {16*2560}, v{self.A_AK}")
                a(f"v_add_u32 v{self.A_AV}, {16*2560}, v{self.A_AV}")
                base = 16
            if t in (4, 12, 20):
                vm = 0 if t == 4 else (cnt(13, 24) if t == 12 else cnt(30, 40))
                a(f"s_waitcnt vmcnt({vm})")
                if t == 4:
                    self.p2_check_all()
                    self.g2_wsetup(5, SRD_W, S_SW, self.A_ALLA)
                    self.p2_w2_consts()
                a(f"s_barrier")
                if not noprio: self.p2_setprio(2, f"h{t}")
                if t == 20: self.wo_setup2()
            if t in lowpos and not noprio: self.p2_setprio(0, f"l{t}")
            for st in (0, 1):
                self.p2_sub(st, t - base)
                for k_, arg in slot_ops.get(2*t + st, []):
                    self.evtag = "u"
                    if k_ == "kv": kv()
                    elif k_ == "w2":
                        if "evnow2" not in self.opt: w2(arg)
                    elif k_ == "wo":
                        if "evnowo" not in self.opt: wo(arg)
                    elif k_ == "dst":
                        if "nodstw" not in self.opt: self.dst_l2warm()
                    elif k_ == "w1":
                        if "now1w" not in self.opt: self.w1_l2warm()
                    elif k_ == "wp":
                        if "nowpw" not in self.opt: self.wp_l2warm()

    def p2_w2_consts(self):
        a = self.a
        D = self.S_D
        incB = [1024, 162816]*3
        incA = [161792, 1024, 1024]*2
        a(f"s_cmp_lt_u32 s{S_W}, 4")
        for k in range(6):
            x, y = incB[k], incA[k]
            if x == y: a(f"s_mov_b32 s{D[k]}, {x}")
            else: self.csel(D[k], x, y)
        a(f"s_cselect_b32 s{S_T0}, 0, {5*163840 - 161792}")
        a(f"s_add_u32 s{S_SW}, s{S_SW}, s{S_T0}")

    def wo_setup2(self):
        a = self.a
        D = self.S_D
        self.g2_wsetup(3, SRD_T, self.S_WOS, self.A_DV)
        self.wo_lds_base(self.S_WOB)
        a(f"s_mov_b32 s{self.S_WOBK}, s{self.S_WOB}")
        a(f"s_cmp_eq_u32 s{S_W}, 3")
        a(f"s_cselect_b32 s{self.S_WOB2}, {128000-5120}, s{self.S_WOB}")
        a(f"s_mov_b32 s{self.S_WOI[0]}, 1024")
        a(f"s_cselect_b32 s{self.S_WOI[1]}, {128000 - (46080 + 4096)}, s{self.S_WOI[0]}")
        incB = [1024, 162816]*3
        incA = [1024, 1024, 161792]*2
        a(f"s_cmp_lt_u32 s{S_W}, 4")
        for k in range(6):
            x, y = incB[k], incA[k]
            if x == y: a(f"s_mov_b32 s{D[k]}, {x}")
            else: self.csel(D[k], x, y)


    def p2_kreads(self, kb, toff):
        a = self.a
        K = self.A_K + 8*kb
        a(f"ds_read_b64 v[{K}:{K+1}], v{self.A_AK} offset:{toff}")
        a(f"ds_read_b64 v[{K+2}:{K+3}], v{self.A_AK} offset:{toff+256}")
        a(f"ds_read_b64 v[{K+4}:{K+5}], v{self.A_AK} offset:{toff+1024}")
    def p2_vread(self, which, toff):
        a = self.a
        R = self.A_V1 if which == 0 else self.A_V2
        a(f"s_mov_b64 exec, s[{self.S_VMASK}:{self.S_VMASK+1}]")
        a(f"ds_read_b128 v[{R}:{R+3}], v{self.A_AV} offset:{toff+640*which}")
        a(f"s_mov_b64 exec, -1")
    def p2_smfma(self, which, S, kb, Q):
        a = self.a
        K = self.A_K + 8*kb
        if which == 0:
            a(f"v_mfma_f32_32x32x16_bf16 v[{S}:{S+15}], v[{K}:{K+3}], v[{Q}:{Q+3}], 0")
        else:
            a(f"v_mfma_f32_32x32x16_bf16 v[{S}:{S+15}], v[{K+4}:{K+7}], v[{Q+4}:{Q+7}], v[{S}:{S+15}]")

    A_V2B = 128
    def p2_sub(self, stream, u):
        a = self.a
        P = self.A_P
        p = u & 1
        V2 = (self.A_V2, self.A_V2B)
        Sc, Sn = (self.A_SA, self.A_SB) if stream == 0 else (self.A_SB, self.A_SA)
        Oc, Op = (self.A_OA, self.A_OB) if stream == 0 else (self.A_OB, self.A_OA)
        Qn = self.A_QB if stream == 0 else self.A_QA
        kb = p if stream == 0 else 1 - p
        v2 = V2[1-p] if stream == 0 else V2[p]
        ex = lambda i: a(f"v_exp_f32 v{Sc+i}, v{Sc+i}")
        cv = lambda k: a(f"v_cvt_pk_bf16_f32 v{P+k}, v{Sc+2*k}, v{Sc+2*k+1}")
        cvp = lambda k: a(f"v_cvt_pk_bf16_f32 v{P+k}, v{Sn+2*k}, v{Sn+2*k+1}")
        var = getattr(self, "sub_variant", None) or "v1"
        tn = (u+1)*2560
        def rdV():
            a(f"s_mov_b64 exec, s[{self.S_VMASK}:{self.S_VMASK+1}]")
            a(f"ds_read_b128 v[{self.A_V1}:{self.A_V1+3}], v{self.A_AV} offset:{tn}")
            R = V2[1-p]
            a(f"ds_read_b128 v[{R}:{R+3}], v{self.A_AV} offset:{tn+640}")
            a(f"s_mov_b64 exec, -1")
        def rdK(i):
            K = self.A_K + 8*p; toff = (u+2)*2560
            if i == 0: a(f"ds_read_b64 v[{K}:{K+1}], v{self.A_AK} offset:{toff}")
            if i == 1: a(f"ds_read_b64 v[{K+2}:{K+3}], v{self.A_AK} offset:{toff+256}")
            if i == 2: a(f"ds_read_b64 v[{K+4}:{K+5}], v{self.A_AK} offset:{toff+1024}")
        m1 = lambda: self.p2_smfma(0, Sn, kb, Qn)
        m2 = lambda: self.p2_smfma(1, Sn, kb, Qn)
        m4 = lambda: a(f"v_mfma_f32_32x32x16_bf16 v[{Op}:{Op+15}], v[{v2}:{v2+3}], v[{P+4}:{P+7}], v[{Op}:{Op+15}]")
        m3 = lambda: a(f"v_mfma_f32_32x32x16_bf16 v[{Oc}:{Oc+15}], v[{self.A_V1}:{self.A_V1+3}], v[{P}:{P+3}], v[{Oc}:{Oc+15}]")
        wt = lambda: a(f"s_waitcnt lgkmcnt(0)")
        if var == "pure":
            ex(0); cvp(6); ex(1); ex(2); cvp(7); ex(3); m1(); ex(4); cv(0); ex(5); ex(6); cv(1); ex(7); m2()
            ex(8); cv(2); ex(9); ex(10); cv(3); ex(11); m4(); ex(12); cv(4); ex(13); ex(14); cv(5); ex(15); m3()
        elif var == "v0":
            ex(0); cvp(6); ex(1); ex(2); cvp(7); ex(3); m1(); ex(4); cv(0); ex(5); ex(6); cv(1); ex(7); m2()
            ex(8); cv(2); ex(9); ex(10); cv(3); ex(11); m4(); ex(12); cv(4); ex(13); ex(14); cv(5); ex(15)
            if stream == 0: wt()
            m3()
            if stream == 1:
                rdV(); rdK(0); rdK(1); rdK(2)
        elif var == "v1":
            ex(0); cvp(6); ex(1); ex(2); cvp(7); ex(3); m1()
            if stream == 1: rdK(0)
            ex(4); cv(0); ex(5); ex(6); cv(1); ex(7); m2()
            if stream == 1: rdK(1)
            ex(8); cv(2); ex(9); ex(10); cv(3); ex(11); m4()
            if stream == 1: rdK(2)
            ex(12); cv(4); ex(13); ex(14); cv(5); ex(15)
            if stream == 0: wt()
            m3()
            if stream == 1: rdV()
        elif var == "v2":
            ex(0); cvp(6); ex(1); ex(2); cvp(7); ex(3); m1()
            if stream == 1: rdK(1)
            ex(4); cv(0); ex(5); ex(6); cv(1); ex(7); m2()
            if stream == 1: rdK(2)
            ex(8); cv(2); ex(9); ex(10); cv(3); ex(11); m4()
            if stream == 0: rdK(0)
            ex(12); cv(4); ex(13); ex(14); cv(5); ex(15)
            if stream == 0: a(f"s_waitcnt lgkmcnt(1)")
            m3()
            if stream == 1: rdV()
        elif var == "v3":
            ex(0); cvp(6); ex(1); ex(2); cvp(7); ex(3); m1()
            if stream == 1: rdK(0)
            ex(4); cv(0); ex(5); ex(6); cv(1); ex(7); m2()
            if stream == 1: rdK(1)
            ex(8); cv(2); ex(9); ex(10); cv(3); ex(11); m4()
            if stream == 1: rdK(2)
            ex(12); cv(4); ex(13); ex(14); cv(5); ex(15)
            if stream == 0: wt()
            m3()
            if stream == 1:
                a(f"ds_read_b128 v[{self.A_V1}:{self.A_V1+3}], v{self.A_AV} offset:{tn}")
                R = V2[1-p]
                a(f"ds_read_b128 v[{R}:{R+3}], v{self.A_AV} offset:{tn+640}")

    def prio_reg(self, stream):
        return self._prio[stream]

    def p2_check_all(self):
        a = self.a
        X = self.A_ALL; T = self.A_T
        L = "L_p2_all"; Lo = "L_p2_allok"
        a(f"s_mov_b32 s{S_T0}, 0")
        a.put(L)
        for r in range(4):
            a(f"v_subrev_u32 v{T+r}, s{S_TAG}, v{X+r}")
        a(f"v_cmp_le_u32 vcc, 16, v{T}")
        for r in range(1, 4):
            a(f"v_cmp_le_u32 s[{S_SAVE}:{S_SAVE+1}], 16, v{T+r}")
            a(f"s_nop 0")
            a(f"s_or_b64 vcc, vcc, s[{S_SAVE}:{S_SAVE+1}]")
        a(f"s_cbranch_vccz {Lo}")
        a(f"s_add_u32 s{S_T0}, s{S_T0}, 1")
        a(f"s_cmp_ge_u32 s{S_T0}, 0x40000")
        a(f"s_cbranch_scc1 {Lo}")
        a(f"buffer_load_dwordx4 v[{X}:{X+3}], v{self.A_ALLA}, s[{SRD_F}:{SRD_F+3}], 0 offen sc1")
        a(f"s_waitcnt vmcnt(0)")
        a(f"s_branch {L}")
        a.put(Lo)
        a(f"s_and_b32 s{S_T1}, s{S_GX}, 3")
        for r in range(1, 4):
            a(f"s_cmp_eq_u32 s{S_T1}, {r}")
            a(f"s_cselect_b64 s[{S_SAVE}:{S_SAVE+1}], -1, 0")
            a(f"v_cndmask_b32 v{T}, v{T}, v{T+r}, s[{S_SAVE}:{S_SAVE+1}]")
        a(f"v_cmp_ne_u32 vcc, s{S_XCC}, v{T}")
        a(f"s_mov_b32 s{S_T2}, 0x55555555")
        a(f"s_lshr_b32 s{S_T1}, s{S_GX}, 2")
        a(f"s_lshl_b32 s{S_T2}, s{S_T2}, s{S_T1}")
        a(f"s_and_b32 s{S_T3}, vcc_lo, s{S_T2}")
        a(f"s_and_b32 s{S_T4}, vcc_hi, s{S_T2}")
        a(f"s_or_b32 s{S_T3}, s{S_T3}, s{S_T4}")
        a(f"s_cmp_eq_u32 s{S_T3}, 0")
        a(f"s_cselect_b32 s{S_FAST}, {0 if 'nofast' in self.opt else 1}, 0")

    prio_low = (0, 2, 4, 7)
    def p2_setprio(self, lvl, tag):
        a = self.a
        L = f"L_p2_pr{tag}"
        a(f"s_cmp_ge_u32 s{S_W}, 4")
        a(f"s_cbranch_scc1 {L}")
        a(f"s_setprio {lvl}")
        a.put(L)

    def p2_dma(self, n):
        a = self.a
        for i in range(n):
            a(f"s_mov_b32 m0, s{self.S_DSO}")
            a(f"s_nop 0")
            a(f"buffer_load_dwordx4 v{self.A_DV}, s[{SRD_A}:{SRD_A+3}], s{self.S_DSO} offen sc1 lds")
            a(f"s_add_u32 s{self.S_DSO}, s{self.S_DSO}, 4096")

    def p2_setup(self):
        a = self.a
        T = self.A_T
        a(f"s_lshl_b32 s{S_HEAD}, s{S_GX}, 2")
        a(f"s_and_b32 s{S_T0}, s{S_GI}, 3")
        a(f"s_add_u32 s{S_HEAD}, s{S_HEAD}, s{S_T0}")
        a(f"s_lshr_b32 s{S_QB}, s{S_GI}, 2")
        a(f"s_mul_i32 s{S_T0}, s{S_HEAD}, 163840")
        a(f"s_add_u32 s{S_T0}, s{S_T0}, {hex(OFF_KV)}")
        a(f"s_add_u32 s{SRD_A}, s{S_WS}, s{S_T0}")
        a(f"s_addc_u32 s{SRD_A+1}, s{S_WS+1}, 0")
        a(f"s_mov_b32 s{SRD_A+2}, 163840")
        a(f"s_mov_b32 s{SRD_A+3}, 0x20000")
        a(f"s_lshl_b32 s{S_T0}, s{S_HEAD}, 6")
        a(f"s_lshl_b32 s{S_T1}, s{S_QB}, 3")
        a(f"s_add_u32 s{S_T0}, s{S_T0}, s{S_T1}")
        a(f"s_and_b32 s{S_T1}, s{S_W}, 3")
        a(f"s_lshl_b32 s{S_T1}, s{S_T1}, 1")
        a(f"s_add_u32 s{S_T0}, s{S_T0}, s{S_T1}")
        a(f"s_mul_i32 s{S_T0}, s{S_T0}, 1280")
        a(f"s_add_u32 s{S_T0}, s{S_T0}, {hex(OFF_Q)}")
        a(f"s_add_u32 s{SRD_W}, s{S_WS}, s{S_T0}")
        a(f"s_addc_u32 s{SRD_W+1}, s{S_WS+1}, 0")
        a(f"s_mov_b32 s{SRD_W+2}, 2560")
        a(f"s_mov_b32 s{SRD_W+3}, 0x20000")
        a(f"v_and_b32 v{T}, 31, v1")
        a(f"v_lshrrev_b32 v{T+1}, 5, v1")
        a(f"v_lshlrev_b32 v{T+2}, 3, v{T}")
        a(f"v_lshl_add_u32 v{T+4}, v{T+1}, 9, v{T+2}")
        a(f"v_lshlrev_b32 v{T+3}, 12, v{T+1}")
        a(f"v_add_u32 v{T+3}, v{T+3}, v{T+2}")
        a(f"v_lshlrev_b32 v{self.A_DV}, 4, v1")
        a(f"v_add_u32 v{self.A_ALLA}, {OFF_ALL}, v{self.A_DV}")
        a(f"s_lshr_b32 s{S_T0}, s{S_W}, 2")
        a(f"s_mul_i32 s{S_T0}, s{S_T0}, 81920")
        a(f"s_and_b32 s{S_T1}, s{S_W}, 3")
        a(f"s_lshl_b32 s{S_T1}, s{S_T1}, 10")
        a(f"s_add_u32 s{self.S_DSO}, s{S_T0}, s{S_T1}")
        for Q in (self.A_QA, self.A_QB):
            a(f"v_mov_b32 v{Q+6}, 0"); a(f"v_mov_b32 v{Q+7}, 0")
        for kb in range(2):
            a(f"v_mov_b32 v{self.A_K+8*kb+6}, 0"); a(f"v_mov_b32 v{self.A_K+8*kb+7}, 0")
        a(f"v_cmp_eq_u32 vcc, 20, v{T}")
        a(f"v_mov_b32 v{T+5}, 0x3f803f80")
        a(f"v_mul_u32_u24 v{T+6}, 320, v{T+1}")
        a(f"v_cndmask_b32 v{self.A_V1}, 0, v{T+5}, vcc")
        for r in range(1, 8):
            a(f"v_mov_b32 v{self.A_V1+r}, v{self.A_V1}")
        for r in range(4):
            a(f"v_mov_b32 v{self.A_V2B+r}, v{self.A_V1}")
        a(f"v_lshl_add_u32 v{self.A_AV}, v{T}, 4, v{T+6}")
        a(f"v_add_u32 v{self.A_AV}, 1280, v{self.A_AV}")
        a(f"v_add_u32 v{self.A_AK}, s{S_T0}, v{T+4}")
        a(f"v_add_u32 v{self.A_AV}, s{S_T0}, v{self.A_AV}")
        a(f"s_mov_b32 s{self.S_VMASK}, 0xfffff")
        a(f"s_mov_b32 s{self.S_VMASK+1}, 0xfffff")
        for r in range(16):
            a(f"v_mov_b32 v{self.A_OA+r}, 0"); a(f"v_mov_b32 v{self.A_OB+r}, 0")
        for r in range(8):
            a(f"v_mov_b32 v{self.A_P+r}, 0")
        for r in range(12, 16):
            a(f"v_mov_b32 v{self.A_SB+r}, 0")
        a(f"s_and_b32 s{S_T2}, s{S_W}, 3")
        a(f"s_lshr_b32 s{S_T3}, s{S_W}, 2")
        a(f"s_lshl_b32 s{S_T0}, s{S_QB}, 2")
        a(f"s_add_u32 s{S_T0}, s{S_T0}, s{S_T2}")
        a(f"s_mul_i32 s{S_T0}, s{S_T0}, 81920")
        a(f"s_lshl_b32 s{S_T1}, s{S_T3}, 11")
        a(f"s_add_u32 s{S_CNT}, s{S_T0}, s{S_T1}")
        a(f"v_bfe_u32 v{T+3+4}, v1, 4, 1")
        a(f"v_lshlrev_b32 v{T+7}, 10, v{T+7}")
        a(f"v_and_b32 v{T+6}, 15, v1")
        a(f"v_lshl_add_u32 v{T+7}, v{T+6}, 4, v{T+7}")
        a(f"s_mul_i32 s{S_T1}, s{S_HEAD}, 20")
        for g in range(3):
            D_ = self.A_OAD + g
            a(f"v_lshlrev_b32 v{T+6}, 2, v{T+1}")
            a(f"s_add_u32 s{S_T2}, s{S_T1}, {8*g}")
            a(f"v_add_u32 v{T+6}, s{S_T2}, v{T+6}")
            a(f"v_lshrrev_b32 v{D_}, 5, v{T+6}")
            a(f"v_lshlrev_b32 v{D_}, 12, v{D_}")
            a(f"v_bfe_u32 v{T+5}, v{T+6}, 3, 2")
            a(f"v_lshl_add_u32 v{D_}, v{T+5}, 8, v{D_}")
            a(f"v_and_b32 v{T+5}, 7, v{T+6}")
            a(f"v_lshl_add_u32 v{D_}, v{T+5}, 1, v{D_}")
            a(f"v_add_u32 v{D_}, v{D_}, v{T+7}")

    A_OAD = 140
    def p2(self):
        a = self.a
        T = self.A_T
        self.stamp(5)
        self.p2_wait()
        self.stamp(6)
        self.p2_dma(2)
        for qi, Q in enumerate((self.A_QA, self.A_QB)):
            a(f"buffer_load_dwordx2 v[{Q}:{Q+1}], v{T+4}, s[{SRD_W}:{SRD_W+3}], 0 offen offset:{1280*qi} sc1")
            a(f"buffer_load_dwordx2 v[{Q+2}:{Q+3}], v{T+4}, s[{SRD_W}:{SRD_W+3}], 0 offen offset:{1280*qi+256} sc1")
            a(f"buffer_load_dwordx2 v[{Q+4}:{Q+5}], v{T+3}, s[{SRD_W}:{SRD_W+3}], 0 offen offset:{1280*qi+1024} sc1")
        self.p2_dma(2)
        a(f"buffer_load_dwordx4 v[{self.A_ALL}:{self.A_ALL+3}], v{self.A_ALLA}, s[{SRD_F}:{SRD_F+3}], 0 offen sc1")
        self.p2_dma(4)
        a(f"s_waitcnt vmcnt(5)")
        a(f"s_barrier")
        self.stamp(7)
        self.p2_dma(1)
        self.p2_kreads(0, 0)
        self.p2_kreads(1, 2560)
        self.p2_vread(0, 0)
        self.p2_vread(1, 0)
        a(f"s_waitcnt lgkmcnt(0)")
        self.p2_smfma(0, self.A_SA, 0, self.A_QA); self.p2_smfma(1, self.A_SA, 0, self.A_QA)
        self.p2_unrolled()
        a.put("L_p2_done")
        a(f"s_setprio 0")
        P = self.A_P; SBr = self.A_SB
        a(f"s_waitcnt lgkmcnt(0)")
        a(f"v_cvt_pk_bf16_f32 v{P+6}, v{SBr+12}, v{SBr+13}")
        a(f"v_cvt_pk_bf16_f32 v{P+7}, v{SBr+14}, v{SBr+15}")
        a(f"s_nop 1")
        a(f"v_mfma_f32_32x32x16_bf16 v[{self.A_OB}:{self.A_OB+15}], v[{self.A_V2B}:{self.A_V2B+3}], v[{P+4}:{P+7}], v[{self.A_OB}:{self.A_OB+15}]")
        self.stamp(8)
        self.p2_epilogue()

    def p2_epilogue(self):
        a = self.a
        T = self.A_T
        self.srd(SRD_O, S_WS, OFF_O, SZ_O)
        a(f"s_mov_b32 s{self.S_SLOWDONE}, {1 if 'noslow' in self.opt else 0}")
        a(f"s_mov_b32 s{self.S_BIG}, {hex(f32(2.0**60))}")
        if "forceslow" in self.opt: a(f"s_mov_b32 s{self.S_BIG}, 0")
        a(f"s_nop 7"); a(f"s_nop 3")
        a(f"s_barrier")
        a(f"s_and_b32 s{S_T0}, s{S_W}, 3")
        a(f"s_lshr_b32 s{S_T1}, s{S_W}, 2")
        a(f"s_lshl_b32 s{S_T0}, s{S_T0}, 1")
        a(f"s_add_u32 s{S_T2}, s{S_T0}, s{S_T1}")
        a(f"s_xor_b32 s{S_T3}, s{S_T2}, 1")
        a(f"s_mul_i32 s{S_T2}, s{S_T2}, 3072")
        a(f"s_mul_i32 s{S_T3}, s{S_T3}, 3072")
        a(f"s_add_u32 s{S_T2}, s{S_T2}, 51200")
        a(f"s_add_u32 s{S_T3}, s{S_T3}, 51200")
        a(f"v_lshlrev_b32 v{T}, 4, v1")
        a(f"v_add_u32 v{T+1}, s{S_T2}, v{T}")
        a(f"v_add_u32 v{T+2}, s{S_T3}, v{T}")
        Lk1 = "L_p2e_k1"; Lj = "L_p2e_j"
        a(f"s_cmp_eq_u32 s{S_T1}, 1")
        a(f"s_cbranch_scc1 {Lk1}")
        for g in range(3):
            a(f"ds_write_b128 v{T+1}, v[{self.A_OB+4*g}:{self.A_OB+4*g+3}] offset:{1024*g}")
        a(f"s_branch {Lj}")
        a.put(Lk1)
        for g in range(3):
            a(f"ds_write_b128 v{T+1}, v[{self.A_OA+4*g}:{self.A_OA+4*g+3}] offset:{1024*g}")
        for r in range(12):
            a(f"v_mov_b32 v{self.A_OA+r}, v{self.A_OB+r}")
        a.put(Lj)
        a(f"s_waitcnt lgkmcnt(0)")
        a(f"s_barrier")
        O = self.A_OA; X = self.A_SA
        for g in range(3):
            a(f"ds_read_b128 v[{X+4*g}:{X+4*g+3}], v{T+2} offset:{1024*g}")
        a(f"s_waitcnt lgkmcnt(0)")
        for r in range(12):
            a(f"v_add_f32 v{O+r}, v{O+r}, v{X+r}")
        a.put("L_p2_fin")
        a(f"v_mov_b32 v{T}, v{O+8}")
        a(f"v_mov_b32 v{T+1}, v{O+8}")
        a(f"s_nop 1")
        a(f"v_permlane32_swap_b32 v{T}, v{T+1}")
        a(f"v_mul_f32 v{T+3}, 0, v{O}")
        for r in list(range(1, 8)):
            a(f"v_fmac_f32 v{T+3}, 0, v{O+r}")
        a(f"v_mov_b32 v{T+4}, 0")
        for r in range(8, 12):
            a(f"v_fmac_f32 v{T+4}, 0, v{O+r}")
        a(f"v_cmp_le_f32 vcc, {hex(f32(2.0**-60))}, v{T+1}")
        a(f"v_cmp_ge_f32 s[{S_SAVE}:{S_SAVE+1}], s{self.S_BIG}, v{T+1}")
        a(f"s_nop 0")
        a(f"s_and_b64 vcc, vcc, s[{S_SAVE}:{S_SAVE+1}]")
        a(f"v_cmp_eq_f32 s[{S_SAVE}:{S_SAVE+1}], 0, v{T+3}")
        a(f"s_nop 0")
        a(f"s_and_b64 vcc, vcc, s[{S_SAVE}:{S_SAVE+1}]")
        a(f"v_cmp_eq_f32 s[{S_SAVE}:{S_SAVE+1}], 0, v{T+4}")
        a(f"s_nop 0")
        a(f"s_or_b32 s{S_SAVE+1}, s{S_SAVE+1}, -1")
        a(f"s_and_b64 vcc, vcc, s[{S_SAVE}:{S_SAVE+1}]")
        a(f"s_or_b32 vcc_lo, vcc_lo, 0")
        a(f"s_cmp_eq_u32 s{self.S_SLOWDONE}, 1")
        a(f"s_cbranch_scc1 L_p2_ok")
        a(f"s_cmp_eq_u64 vcc, -1")
        a(f"s_cbranch_scc0 L_p2_slow")
        a.put("L_p2_ok")
        a(f"v_rcp_f32 v{T+2}, v{T+1}")
        a(f"s_nop 0")
        for r in range(12):
            a(f"v_mul_f32 v{O+r}, v{T+2}, v{O+r}")
        for g in range(3):
            a(f"v_cvt_pk_bf16_f32 v{O+4*g}, v{O+4*g}, v{O+4*g+1}")
            a(f"v_cvt_pk_bf16_f32 v{O+4*g+1}, v{O+4*g+2}, v{O+4*g+3}")
        for g in range(3):
            if g == 2: self.set_exec(0xffffffff)
            a(f"buffer_store_dwordx2 v[{O+4*g}:{O+4*g+1}], v{self.A_OAD+g}, s[{SRD_O}:{SRD_O+3}], s{S_CNT} offen sc1")
            if g == 2: a(f"s_mov_b64 exec, -1")
        a(f"s_branch L_p2_end")
        self.p2_slow()
        a.put("L_p2_end")

    S_SLOWDONE = 94; S_BIG = 95
    def p2_slow(self):
        a = self.a
        T = self.A_T; O = self.A_OA; S = self.A_SA; P = self.A_P
        K = self.A_K; Q = self.A_QA
        a.put("L_p2_slow")
        a(f"s_cmp_lt_u32 s{S_W}, 4")
        a(f"s_cbranch_scc1 L_p2s_q")
        for r in range(8):
            a(f"v_mov_b32 v{Q+r}, v{self.A_QB+r}")
        a.put("L_p2s_q")
        a(f"v_and_b32 v{T}, 31, v1")
        a(f"v_lshrrev_b32 v{T+1}, 5, v1")
        a(f"v_lshlrev_b32 v{T+2}, 3, v{T}")
        a(f"v_lshl_add_u32 v{T+3}, v{T+1}, 9, v{T+2}")
        a(f"v_mul_u32_u24 v{T+4}, 320, v{T+1}")
        a(f"v_lshl_add_u32 v{T+4}, v{T}, 4, v{T+4}")
        a(f"v_mov_b32 v{T+5}, 0xff800000")
        def loadk():
            a(f"buffer_load_dwordx2 v[{K}:{K+1}], v{T+3}, s[{SRD_A}:{SRD_A+3}], s{S_T1} offen sc1")
            a(f"buffer_load_dwordx2 v[{K+2}:{K+3}], v{T+3}, s[{SRD_A}:{SRD_A+3}], s{S_T1} offen offset:256 sc1")
            a(f"buffer_load_dwordx2 v[{K+4}:{K+5}], v{T+2}, s[{SRD_A}:{SRD_A+3}], s{S_T1} offen offset:1024 sc1")
        def smm():
            a(f"v_mfma_f32_32x32x16_bf16 v[{S}:{S+15}], v[{K}:{K+3}], v[{Q}:{Q+3}], 0")
            a(f"v_mfma_f32_32x32x16_bf16 v[{S}:{S+15}], v[{K+4}:{K+7}], v[{Q+4}:{Q+7}], v[{S}:{S+15}]")
            a(f"s_nop 7"); a(f"s_nop 7")
        a(f"s_mov_b32 s{S_T1}, 0")
        a.put("L_p2s_1")
        loadk()
        a(f"s_waitcnt vmcnt(0)")
        smm()
        for r in range(16):
            a(f"v_max_f32 v{T+5}, v{T+5}, v{S+r}")
        a(f"s_add_u32 s{S_T1}, s{S_T1}, 2560")
        a(f"s_cmp_lt_u32 s{S_T1}, 163840")
        a(f"s_cbranch_scc1 L_p2s_1")
        a(f"v_mov_b32 v{T+6}, v{T+5}")
        a(f"s_nop 1")
        a(f"v_permlane32_swap_b32 v{T+6}, v{T+5}")
        a(f"s_nop 1")
        a(f"v_max_f32 v{T+5}, v{T+5}, v{T+6}")
        for r in range(16):
            a(f"v_mov_b32 v{O+r}, 0")
        a(f"s_mov_b32 s{S_T1}, 0")
        a.put("L_p2s_2")
        loadk()
        a(f"s_mov_b64 exec, s[{self.S_VMASK}:{self.S_VMASK+1}]")
        a(f"buffer_load_dwordx4 v[{self.A_V1}:{self.A_V1+3}], v{T+4}, s[{SRD_A}:{SRD_A+3}], s{S_T1} offen offset:1280 sc1")
        a(f"buffer_load_dwordx4 v[{self.A_V2}:{self.A_V2+3}], v{T+4}, s[{SRD_A}:{SRD_A+3}], s{S_T1} offen offset:1920 sc1")
        a(f"s_mov_b64 exec, -1")
        a(f"s_waitcnt vmcnt(0)")
        smm()
        for r in range(16):
            a(f"v_sub_f32 v{S+r}, v{S+r}, v{T+5}")
        for r in range(16):
            a(f"v_exp_f32 v{S+r}, v{S+r}")
        a(f"s_nop 0")
        for k in range(8):
            a(f"v_cvt_pk_bf16_f32 v{P+k}, v{S+2*k}, v{S+2*k+1}")
        a(f"s_nop 1")
        a(f"v_mfma_f32_32x32x16_bf16 v[{O}:{O+15}], v[{self.A_V1}:{self.A_V1+3}], v[{P}:{P+3}], v[{O}:{O+15}]")
        a(f"v_mfma_f32_32x32x16_bf16 v[{O}:{O+15}], v[{self.A_V2}:{self.A_V2+3}], v[{P+4}:{P+7}], v[{O}:{O+15}]")
        a(f"s_add_u32 s{S_T1}, s{S_T1}, 2560")
        a(f"s_cmp_lt_u32 s{S_T1}, 163840")
        a(f"s_cbranch_scc1 L_p2s_2")
        a(f"s_nop 7"); a(f"s_nop 7")
        a(f"s_mov_b32 s{self.S_SLOWDONE}, 1")
        a(f"s_branch L_p2_fin")

    G_ACC = 4
    G_ACT = 52
    G_AM = 84
    G_DV = 2
    G_SA = 3
    S_RB = 49; S_J = 50
    def g2_wbase(self, phase, NT):
        return 88 if (phase == 3 or NT == 3) else 144

    def g2_wsetup(self, phase, srd, sreg, vreg):
        a = self.a
        if phase == 3: self.srd(srd, S_WS, OFF_WOP, SZ_WOP)
        else: self.srd(srd, S_WS, OFF_W2P, SZ_W2P)
        a(f"s_and_b32 s{S_T0}, s{S_W}, 3")
        a(f"s_mul_i32 s{S_T1}, s{S_T0}, 40")
        a(f"s_and_b32 s{S_T2}, s{S_GI}, 7")
        a(f"s_mul_i32 s{S_T2}, s{S_T2}, 5")
        a(f"s_add_u32 s{S_T1}, s{S_T1}, s{S_T2}")
        a(f"s_cmp_lt_u32 s{S_W}, 4")
        a(f"s_cselect_b32 s{S_T2}, 3, 0")
        a(f"s_add_u32 s{S_T1}, s{S_T1}, s{S_T2}")
        a(f"s_lshl_b32 s{sreg}, s{S_T1}, 10")
        a(f"v_lshlrev_b32 v{vreg}, 4, v1")

    def g2_wload1(self, phase, NT, step, t, srd, sreg, vreg):
        a = self.a
        R = self.g2_wbase(phase, NT) + 4*(step*NT + t)
        off = step*4*40*1024 + t*1024
        a(f"s_add_u32 s{S_T2}, s{sreg}, {off}")
        a(f"buffer_load_dwordx4 v[{R}:{R+3}], v{vreg}, s[{srd}:{srd+3}], s{S_T2} offen {self.ld_aux}")

    def g2_wloads_byclass(self, phase, listA, listB, srd, sreg, vreg, tag):
        a = self.a
        LA = f"L_{tag}_A"; LJ = f"L_{tag}_J"
        a(f"s_cmp_ge_u32 s{S_W}, 4")
        a(f"s_cbranch_scc1 {LA}")
        for (st, t) in listB: self.g2_wload1(phase, 2, st, t, srd, sreg, vreg)
        a(f"s_branch {LJ}")
        a.put(LA)
        for (st, t) in listA: self.g2_wload1(phase, 3, st, t, srd, sreg, vreg)
        a.put(LJ)

    def g2_adma(self, stage):
        a = self.a
        slot = (stage % 4) * 32768
        for q in range(4):
            a(f"s_add_u32 m0, s{S_M0A}, {slot + q*8192}")
            a(f"s_add_u32 s{S_T2}, s{S_M0A}, {stage*32768 + q*8192}")
            a(f"buffer_load_dwordx4 v{self.G_DV}, s[{SRD_A}:{SRD_A+3}], s{S_T2} offen {self.ld_aux} lds")

    def g2_reads(self, stage, u, st):
        a = self.a
        slot = stage % 4
        hi = slot >= 2
        if hi != self.g2_hi:
            for m in range(4):
                if hi: a(f"v_add_u32 v{self.G_AM+m}, 0x10000, v{self.G_AM+m}")
                else:  a(f"v_subrev_u32 v{self.G_AM+m}, 0x10000, v{self.G_AM+m}")
            self.g2_hi = hi
        off = (slot % 2) * 32768 + u*16384
        for m in range(4):
            R = self.G_ACT + 16*st + 4*m
            a(f"ds_read_b128 v[{R}:{R+3}], v{self.G_AM+m} offset:{off}")

    def g2_mfma(self, phase, NT, step, st):
        a = self.a
        for t in range(NT):
            W = self.g2_wbase(phase, NT) + 4*(step*NT + t)
            for m in range(4):
                A = self.G_ACC + 4*(m*3 + t)
                X = self.G_ACT + 16*st + 4*m
                a(f"v_mfma_f32_16x16x32_bf16 v[{A}:{A+3}], v[{W}:{W+3}], v[{X}:{X+3}], v[{A}:{A+3}]")

    def g2_main(self, phase, NT, nsteps):
        a = self.a
        NSTG = (nsteps + 1) // 2
        pre = min(3, NSTG)
        self.g2_hi = False
        if NT == 3 and "nog2prio" not in self.opt: a(f"s_setprio 1")
        self.g2_adma(0); self.g2_adma(1)
        a(f"s_waitcnt vmcnt(8)")
        E = self.G_ACT; A = self.G_ACC
        for t in range(NT):
            for half in range(2):
                R = E + 2*t + half
                a(f"v_lshlrev_b32 v{A+4*t+2*half}, 16, v{R}")
                a(f"v_and_b32 v{A+4*t+2*half+1}, 0xffff0000, v{R}")
                if phase == 5:
                    R2 = E + 6 + 2*t + half
                    a(f"v_lshlrev_b32 v{E+14}, 16, v{R2}")
                    a(f"v_and_b32 v{E+15}, 0xffff0000, v{R2}")
                    a(f"v_add_f32 v{A+4*t+2*half}, v{A+4*t+2*half}, v{E+14}")
                    a(f"v_add_f32 v{A+4*t+2*half+1}, v{A+4*t+2*half+1}, v{E+15}")
        self.g2_adma(2)
        if self.g2st: self.stamp(self.g2st)
        a(f"s_waitcnt vmcnt(10)")
        a(f"s_barrier")
        if self.g2st: self.stamp(self.g2st+1)
        self.g2_reads(0, 0, 0)
        for sg in range(NSTG):
            two = (2*sg + 1) < nsteps
            if sg == 0:
                a(f"s_waitcnt lgkmcnt(0)")
                self.g2_mfma(phase, NT, 0, 0)
            if sg + 1 < NSTG:
                out = 4 * max(0, min(NSTG, sg + pre) - (sg + 2))
                a(f"s_waitcnt vmcnt({out})")
                a(f"s_barrier")
            if two:
                self.g2_reads(sg, 1, 1)
                if sg > 0: a(f"s_waitcnt lgkmcnt(4)")
            elif sg > 0:
                a(f"s_waitcnt lgkmcnt(0)")
            if sg > 0: self.g2_mfma(phase, NT, 2*sg, 0)
            if sg + pre < NSTG:
                self.g2_adma(sg + pre)
            if two:
                if sg + 1 < NSTG:
                    self.g2_reads(sg+1, 0, 0)
                    a(f"s_waitcnt lgkmcnt(4)")
                else:
                    a(f"s_waitcnt lgkmcnt(0)")
                self.g2_mfma(phase, NT, 2*sg+1, 1)

    def g2_reduce(self, NT):
        a = self.a
        T = self.G_ACT
        base = 98304 if NT == 3 else 135168
        dstr = NT*1024*3; rstr = NT*1024
        a(f"s_and_b32 s{S_T1}, s{S_W}, 3")
        for m in range(1, 4):
            a(f"s_add_u32 s{S_T2}, s{S_T1}, {m}")
            a(f"s_and_b32 s{S_T2}, s{S_T2}, 3")
            a(f"s_mul_i32 s{S_T2}, s{S_T2}, {dstr}")
            a(f"s_add_u32 s{S_T2}, s{S_T2}, {base + (m-1)*rstr}")
            a(f"v_add_u32 v{T+m}, s{S_T2}, v{self.G_DV}")
        a(f"s_mul_i32 s{S_T2}, s{S_T1}, {dstr}")
        a(f"s_add_u32 s{S_T2}, s{S_T2}, {base}")
        a(f"v_add_u32 v{T}, s{S_T2}, v{self.G_DV}")
        for m in range(1, 4):
            for t in range(NT):
                A = self.G_ACC + 4*(m*3 + t)
                a(f"ds_write_b128 v{T+m}, v[{A}:{A+3}] offset:{t*1024}")
        a(f"s_waitcnt lgkmcnt(0)")
        a(f"s_barrier")
        for rel in range(3):
            for t in range(NT):
                A = self.G_ACC + 4*((rel+1)*3 + t)
                a(f"ds_read_b128 v[{A}:{A+3}], v{T} offset:{rel*rstr + t*1024}")
        a(f"s_waitcnt lgkmcnt(0)")
        for t in range(NT):
            for i in range(4):
                A = self.G_ACC + 4*t + i
                a(f"v_add_f32 v{A}, v{A}, v{A+12}")
                a(f"v_add_f32 v{A+24}, v{A+24}, v{A+36}")
            for i in range(4):
                A = self.G_ACC + 4*t + i
                a(f"v_add_f32 v{A}, v{A}, v{A+24}")

    def h_addr_base(self, B, M, C, tmp):
        a = self.a
        a(f"s_lshl_b32 s{S_T0}, s{self.S_RB}, 6")
        a(f"s_and_b32 s{S_T1}, s{S_W}, 3")
        a(f"s_lshl_b32 s{S_T1}, s{S_T1}, 4")
        a(f"s_add_u32 s{S_T0}, s{S_T0}, s{S_T1}")
        a(f"s_lshr_b32 s{S_T1}, s{S_T0}, 7")
        a(f"s_mul_i32 s{S_T1}, s{S_T1}, 163840")
        a(f"s_and_b32 s{S_T0}, s{S_T0}, 127")
        a(f"v_and_b32 v{tmp}, 15, v1")
        a(f"v_add_u32 v{tmp}, s{S_T0}, v{tmp}")
        a(f"v_bfe_u32 v{M}, v{tmp}, 1, 3")
        a(f"v_lshlrev_b32 v{B}, 7, v{tmp}")
        a(f"v_add_u32 v{B}, s{S_T1}, v{B}")
        a(f"s_mul_i32 s{S_T0}, s{self.S_J}, 80")
        a(f"s_cmp_lt_u32 s{S_W}, 4")
        a(f"s_cselect_b32 s{S_T1}, 48, 0")
        a(f"s_add_u32 s{S_T0}, s{S_T0}, s{S_T1}")
        a(f"v_lshrrev_b32 v{C}, 4, v1")
        a(f"v_lshlrev_b32 v{C}, 2, v{C}")
        a(f"v_add_u32 v{C}, s{S_T0}, v{C}")

    def h_addr(self, dst, t, B, M, C, tmp):
        a = self.a
        a(f"v_add_u32 v{tmp}, {16*t}, v{C}")
        a(f"v_lshrrev_b32 v{dst}, 6, v{tmp}")
        a(f"v_lshlrev_b32 v{dst}, 14, v{dst}")
        a(f"v_add_u32 v{dst}, v{dst}, v{B}")
        a(f"v_bfe_u32 v{tmp+1}, v{tmp}, 3, 3")
        a(f"v_xor_b32 v{tmp+1}, v{tmp+1}, v{M}")
        a(f"v_lshl_add_u32 v{dst}, v{tmp+1}, 4, v{dst}")
        a(f"v_bfe_u32 v{tmp+1}, v{tmp}, 2, 1")
        a(f"v_lshl_add_u32 v{dst}, v{tmp+1}, 3, v{dst}")

    def g2_setup(self, phase):
        a = self.a
        a(f"s_lshr_b32 s{S_T0}, s{S_GI}, 3")
        a(f"s_lshl_b32 s{S_T1}, s{S_GX}, 2")
        a(f"s_add_u32 s{self.S_RB}, s{S_T0}, s{S_T1}")
        a(f"s_and_b32 s{self.S_J}, s{S_GI}, 7")
        if phase == 3: off, per = OFF_O, 81920
        else: off, per = OFF_R, 54*4096
        a(f"s_mul_i32 s{S_T0}, s{self.S_RB}, {per}")
        a(f"s_add_u32 s{S_T0}, s{S_T0}, {hex(off)}")
        a(f"s_add_u32 s{SRD_A}, s{S_WS}, s{S_T0}")
        a(f"s_addc_u32 s{SRD_A+1}, s{S_WS+1}, 0")
        a(f"s_mov_b32 s{SRD_A+2}, {per}")
        a(f"s_mov_b32 s{SRD_A+3}, 0x20000")
        a(f"s_lshl_b32 s{S_M0A}, s{S_W}, 10")
        a(f"v_lshlrev_b32 v{self.G_DV}, 4, v1")
        a(f"s_and_b32 s{S_T0}, s{S_W}, 3")
        for m in range(4):
            a(f"s_add_u32 s{S_T1}, s{S_T0}, {m}")
            a(f"s_and_b32 s{S_T1}, s{S_T1}, 3")
            a(f"s_lshl_b32 s{S_T1}, s{S_T1}, 10")
            a(f"s_lshl_b32 s{S_T2}, s{S_T0}, 12")
            a(f"s_add_u32 s{S_T1}, s{S_T1}, s{S_T2}")
            a(f"v_add_u32 v{self.G_AM+m}, s{S_T1}, v{self.G_DV}")
        E = self.G_ACT
        a(f"s_lshl_b32 s{S_T0}, s{self.S_RB}, 6")
        a(f"s_and_b32 s{S_T1}, s{S_W}, 3")
        a(f"s_lshl_b32 s{S_T1}, s{S_T1}, 4")
        a(f"s_add_u32 s{S_T0}, s{S_T0}, s{S_T1}")
        a(f"v_and_b32 v{self.G_SA}, 15, v1")
        a(f"v_add_u32 v{self.G_SA}, s{S_T0}, v{self.G_SA}")
        a(f"v_mul_u32_u24 v{self.G_SA}, 1280, v{self.G_SA}")
        a(f"s_mul_i32 s{S_T0}, s{self.S_J}, 160")
        a(f"s_cmp_lt_u32 s{S_W}, 4")
        a(f"s_cselect_b32 s{S_T1}, 96, 0")
        a(f"s_add_u32 s{S_T0}, s{S_T0}, s{S_T1}")
        a(f"v_lshrrev_b32 v{E+12}, 4, v1")
        a(f"v_lshlrev_b32 v{E+12}, 3, v{E+12}")
        a(f"v_add_u32 v{E+12}, s{S_T0}, v{E+12}")
        a(f"v_add_u32 v{self.G_SA}, v{self.G_SA}, v{E+12}")
        if phase == 3:
            self.srd(SRD_T, S_X, 0, 2048*1280); aux_r = ""
        else:
            self.srd(SRD_T, S_WS, OFF_H, SZ_H); aux_r = self.ld_aux
        if phase == 3:
            for t in range(3):
                a(f"buffer_load_dwordx2 v[{E+2*t}:{E+2*t+1}], v{self.G_SA}, s[{SRD_T}:{SRD_T+3}], 0 offen offset:{32*t} {aux_r}")
        else:
            self.h_addr_base(E+16, E+17, E+18, E+19)
            for t in range(3):
                self.h_addr(E+20, t, E+16, E+17, E+18, E+21)
                a(f"buffer_load_dwordx2 v[{E+2*t}:{E+2*t+1}], v{E+20}, s[{SRD_T}:{SRD_T+3}], 0 offen {aux_r}")
        if phase == 5:
            self.srd(SRD_T, S_B2, 0, 1280)
            for t in range(3):
                a(f"buffer_load_dwordx2 v[{E+6+2*t}:{E+7+2*t}], v{E+12}, s[{SRD_T}:{SRD_T+3}], 0 offen offset:{32*t}")
        for r in range(12, 48):
            a(f"v_mov_b32 v{self.G_ACC+r}, 0")

    def g2_epi(self, phase, NT):
        a = self.a
        T = self.G_ACT; A = self.G_ACC
        if phase == 3:
            self.srd_twin(S_WS, OFF_H, SZ_H)
        else:
            self.srd(SRD_O, S_OUT, 0, 2048*1280)
        for t in range(NT):
            a(f"v_cvt_pk_bf16_f32 v{A+4*t}, v{A+4*t}, v{A+4*t+1}")
            a(f"v_cvt_pk_bf16_f32 v{A+4*t+1}, v{A+4*t+2}, v{A+4*t+3}")
            if phase == 3:
                if t == 0: self.h_addr_base(T+8, T+9, T+10, T+11)
                self.h_addr(T+12+t, t, T+8, T+9, T+10, T+16)
                self.store_twin("buffer_store_dwordx2", f"v[{A+4*t}:{A+4*t+1}]", T+12+t, "0")
            else: a(f"buffer_store_dwordx2 v[{A+4*t}:{A+4*t+1}], v{self.G_SA}, s[{SRD_O}:{SRD_O+3}], 0 offen offset:{32*t} {self.out_aux}")
        if phase == 3:
            S = T + 22
            a(f"v_mov_b32 v{S}, 0"); a(f"v_mov_b32 v{S+1}, 0")
            for t in range(NT):
                for half in range(2):
                    R = A + 4*t + half
                    a(f"v_lshlrev_b32 v{T+20}, 16, v{R}")
                    a(f"v_and_b32 v{T+21}, 0xffff0000, v{R}")
                    a(f"v_add_f32 v{S}, v{S}, v{T+20}")
                    a(f"v_fmac_f32 v{S+1}, v{T+20}, v{T+20}")
                    a(f"v_add_f32 v{S}, v{S}, v{T+21}")
                    a(f"v_fmac_f32 v{S+1}, v{T+21}, v{T+21}")
            for op in ("v_permlane32_swap_b32", "v_permlane16_swap_b32"):
                a(f"v_mov_b32 v{S+2}, v{S}")
                a(f"v_mov_b32 v{S+3}, v{S+1}")
                a(f"s_nop 1")
                a(f"{op} v{S+2}, v{S}")
                a(f"{op} v{S+3}, v{S+1}")
                a(f"s_nop 1")
                a(f"v_add_f32 v{S}, v{S}, v{S+2}")
                a(f"v_add_f32 v{S+1}, v{S+1}, v{S+3}")
            a(f"s_lshl_b32 s{S_T0}, s{self.S_RB}, 6")
            a(f"s_and_b32 s{S_T1}, s{S_W}, 3")
            a(f"s_lshl_b32 s{S_T1}, s{S_T1}, 4")
            a(f"s_add_u32 s{S_T0}, s{S_T0}, s{S_T1}")
            a(f"v_and_b32 v{S+2}, 15, v1")
            a(f"v_add_u32 v{S+2}, s{S_T0}, v{S+2}")
            a(f"v_lshlrev_b32 v{S+2}, 7, v{S+2}")
            a(f"s_lshl_b32 s{S_T0}, s{self.S_J}, 4")
            a(f"s_add_u32 s{S_T0}, s{S_T0}, {hex(8 if NT == 2 else 0)}")
            a(f"v_add_u32 v{S+2}, s{S_T0}, v{S+2}")
            self.srd_twin(S_WS, OFF_PST, 2048*128)
            a(f"s_mov_b64 exec, 0xffff")
            self.store_twin("buffer_store_dwordx2", f"v[{S}:{S+1}]", S+2, "0")
            a(f"s_mov_b64 exec, -1")

    def g2(self, phase):
        a = self.a
        nsteps = 5 if phase == 3 else 14
        self.g2st = 15 if (str(phase) in self.opt_g2) else None
        L1 = f"L_g2p{phase}_n1"; Lj = f"L_g2p{phase}_j"
        a(f"s_cmp_lt_u32 s{S_W}, 4")
        a(f"s_cbranch_scc1 {L1}")
        for NT in (3, 2):
            self.g2_main(phase, NT, nsteps)
            if self.g2st: self.stamp(self.g2st+2)
            if NT == 3: a(f"s_setprio 0")
            a(f"s_nop 7")
            self.g2_reduce(NT)
            if self.g2st: self.stamp(self.g2st+3)
            self.g2_epi(phase, NT)
            if NT == 3:
                a(f"s_branch {Lj}")
                a.put(L1)
        a.put(Lj)

    def hook23(self):
        a = self.a
        a(f"v_lshlrev_b32 v{self.G_DV}, 4, v1")
        self.wo_from_lds()
        self.g2_setup(3)
    def hook34(self):
        a = self.a
        a(f"s_cmp_lt_u32 s{S_GI}, 28")
        a(f"s_cbranch_scc1 L_h34_skip")
        self.prefetch_w2_rest()
        a.put("L_h34_skip")
        self.p4_setup()
    def hook45(self):
        self.g2_setup(5)
        if "wbl2" in self.opt:
            a = self.a
            a(f"s_cmp_lg_u32 s{S_GI}, 31")
            a(f"s_cbranch_scc1 L_wbl2_skip")
            a(f"s_cmp_lg_u32 s{S_W}, 1")
            a(f"s_cbranch_scc1 L_wbl2_skip")
            a(f"buffer_wbl2 sc1")
            a.put("L_wbl2_skip")

    def wo_lds_base(self, dst):
        a = self.a
        a(f"s_sub_u32 s{S_T3}, s{S_W}, 4")
        a(f"s_mul_i32 s{S_T3}, s{S_T3}, 15360")
        a(f"s_cmp_eq_u32 s{S_W}, 7")
        a(f"s_cselect_b32 s{S_T3}, 81920, s{S_T3}")
        a(f"s_mul_i32 s{S_T4}, s{S_W}, 10240")
        a(f"s_add_u32 s{S_T4}, s{S_T4}, 97280")
        a(f"s_cmp_eq_u32 s{S_W}, 3")
        a(f"s_cselect_b32 s{S_T4}, 46080, s{S_T4}")
        a(f"s_cmp_lt_u32 s{S_W}, 4")
        a(f"s_cselect_b32 s{dst}, s{S_T4}, s{S_T3}")

    def wo_frag_off(self, NT, idx):
        return idx * 1024

    def wo_dma(self, lo, hi):
        a = self.a
        LA = f"L_wod{lo}_A"; LJ = f"L_wod{lo}_J"
        a(f"s_cmp_ge_u32 s{S_W}, 4")
        a(f"s_cbranch_scc1 {LA}")
        for NT, lab in ((2, None), (3, LA)):
            if lab:
                a(f"s_branch {LJ}")
                a.put(lab)
            for idx in range(lo, min(hi, 5*NT)):
                st, t = divmod(idx, NT)
                base = self.S_WOB if not (NT == 2 and idx >= 5) else self.S_WOB2
                a(f"s_add_u32 m0, s{base}, {idx*1024}")
                a(f"s_add_u32 s{S_T2}, s{self.S_WOS}, {st*4*40*1024 + t*1024}")
                a(f"buffer_load_dwordx4 v{self.A_DV}, s[{SRD_T}:{SRD_T+3}], s{S_T2} offen {self.ld_aux} lds")
        a.put(LJ)

    def wo_dma_cls(self, NT, lo, hi):
        a = self.a
        for idx in range(lo, min(hi, 5*NT)):
            st, t = divmod(idx, NT)
            base = self.S_WOB if not (NT == 2 and idx >= 5) else self.S_WOB2
            a(f"s_add_u32 m0, s{base}, {idx*1024}")
            a(f"s_add_u32 s{S_T2}, s{self.S_WOS}, {st*4*40*1024 + t*1024}")
            a(f"buffer_load_dwordx4 v{self.A_DV}, s[{SRD_T}:{SRD_T+3}], s{S_T2} offen {self.ld_aux} lds")

    S_WOB = 63; S_WOB2 = 64; S_WOS = 54
    def wo_setup(self):
        a = self.a
        self.g2_wsetup(3, SRD_T, self.S_WOS, self.A_DV)
        self.wo_lds_base(self.S_WOB)
        a(f"s_cmp_eq_u32 s{S_W}, 3")
        a(f"s_cselect_b32 s{self.S_WOB2}, {128000-5120}, s{self.S_WOB}")

    def wo_from_lds(self):
        a = self.a
        LA = "L_wol_A"; LJ = "L_wol_J"
        a(f"v_add_u32 v{self.G_AM}, s{self.S_WOBK}, v{self.G_DV}")
        a(f"v_add_u32 v{self.G_AM+1}, s{self.S_WOB2}, v{self.G_DV}")
        a(f"s_cmp_ge_u32 s{S_W}, 4")
        a(f"s_cbranch_scc1 {LA}")
        for NT, lab in ((2, None), (3, LA)):
            if lab:
                a(f"s_branch {LJ}")
                a.put(lab)
            for idx in range(5*NT):
                R = 88 + 4*idx
                ad = self.G_AM if not (NT == 2 and idx >= 5) else self.G_AM + 1
                a(f"ds_read_b128 v[{R}:{R+3}], v{ad} offset:{idx*1024}")
        a.put(LJ)
        a(f"s_waitcnt lgkmcnt(0)")

    def prefetch_wo(self):
        self.g2_wsetup(3, SRD_W, S_SW, 2)
        self.g2_wloads_byclass(3, [(s_, t) for s_ in range(5) for t in range(3)], [(s_, t) for s_ in range(5) for t in range(2)], SRD_W, S_SW, 2, "pfwo")
    def prefetch_w2_rest(self):
        self.g2_wsetup(5, SRD_W, S_SW, 2)
        self.g2_wloads_byclass(5, [(s_, t) for s_ in range(5) for t in range(3)], [], SRD_W, S_SW, 2, "pfw2")

    def p4_epi(self):
        a = self.a
        self.V_T = 2
        T = self.V_T; A = self.V_ACC; CSR = self.V_FR
        B1R = self.V_FR + 32
        a(f"s_cmp_eq_u32 s{S_NT}, 13")
        a(f"s_cselect_b32 s{S_T0}, s{S_WN}, 0")
        a(f"s_cmp_eq_u32 s{S_T0}, 1")
        a(f"s_cbranch_scc1 L_p4_skip")
        self.epi_T_common()
        for g in range(4):
            a(f"ds_read_b128 v[{B1R+4*g}:{B1R+4*g+3}], v{T+7} offset:{ST_B1-ST_CS+32*g}")
        for g in range(4):
            a(f"ds_read_b128 v[{B1R+16+4*g}:{B1R+16+4*g+3}], v{T+1} offset:{ST_B1-ST_CS+32*g}")
        if "rsc1" in self.opt: self.srd(SRD_O, S_WS, OFF_R, SZ_R)
        else: self.srd_twin(S_WS, OFF_R, SZ_R)
        a(f"s_lshl_b32 s{S_T0}, s{S_MT}, 1")
        a(f"s_add_u32 s{S_T0}, s{S_T0}, s{S_WM}")
        a(f"s_mul_i32 s{S_T0}, s{S_T0}, {54*4096}")
        a(f"s_lshl_b32 s{S_T1}, s{S_NT}, 2")
        a(f"s_lshl_b32 s{S_T2}, s{S_WN}, 1")
        a(f"s_add_u32 s{S_T1}, s{S_T1}, s{S_T2}")
        a(f"s_add_u32 s{S_T2}, s{S_T1}, s{S_WM}")
        a(f"s_xor_b32 s{S_T3}, s{S_WM}, 1")
        a(f"s_add_u32 s{S_T3}, s{S_T1}, s{S_T3}")
        a(f"s_lshl_b32 s{S_T2}, s{S_T2}, 12")
        a(f"s_lshl_b32 s{S_T3}, s{S_T3}, 12")
        a(f"s_add_u32 s{S_T4}, s{S_T0}, s{S_T2}")
        a(f"s_add_u32 s{S_T5}, s{S_T0}, s{S_T3}")
        a(f"v_bfe_u32 v{T+8}, v1, 4, 1")
        a(f"v_lshlrev_b32 v{T+8}, 10, v{T+8}")
        a(f"v_and_b32 v{T+9}, 15, v1")
        a(f"v_lshl_add_u32 v{T+8}, v{T+9}, 4, v{T+8}")
        a(f"v_lshl_add_u32 v{T+8}, v{T+6}, 8, v{T+8}")
        a(f"s_waitcnt lgkmcnt(0)")
        for tt in range(2):
            for q in range(2):
                for gp in range(2):
                    ab = f"v[{T+2+2*tt}:{T+3+2*tt}]"
                    for g in (2*gp, 2*gp+1):
                        for i in (0, 2):
                            r = A + 16*(2*tt+q) + 4*g + i
                            c = CSR + 16*q + 4*g + i; b1 = B1R + 16*q + 4*g + i
                            a(f"v_pk_fma_f32 v[{r}:{r+1}], v[{r}:{r+1}], {ab}, v[{b1}:{b1+1}] op_sel:[0,0,0] op_sel_hi:[1,0,1]")
                            a(f"v_pk_fma_f32 v[{r}:{r+1}], v[{c}:{c+1}], {ab}, v[{r}:{r+1}] op_sel:[0,1,0] op_sel_hi:[1,1,1]")
                            a(f"v_max_f32 v{r}, 0, v{r}")
                            a(f"v_max_f32 v{r+1}, 0, v{r+1}")
                            a(f"v_pk_mul_f32 v[{r}:{r+1}], v[{r}:{r+1}], v[{r}:{r+1}]")
                    r = A + 16*(2*tt+q) + 8*gp
                    a(f"v_cvt_pk_bf16_f32 v{r}, v{r}, v{r+1}")
                    a(f"v_cvt_pk_bf16_f32 v{r+1}, v{r+2}, v{r+3}")
                    a(f"v_cvt_pk_bf16_f32 v{r+2}, v{r+4}, v{r+5}")
                    a(f"v_cvt_pk_bf16_f32 v{r+3}, v{r+6}, v{r+7}")
                    a(f"s_nop 1")
                    a(f"v_permlane32_swap_b32 v{r}, v{r+2}")
                    a(f"v_permlane32_swap_b32 v{r+1}, v{r+3}")
                    if "rsc1" in self.opt:
                        a(f"buffer_store_dwordx4 v[{r}:{r+3}], v{T+8}, s[{SRD_O}:{SRD_O+3}], s{S_T4+q} offen offset:{2048*tt + 512*gp} sc1")
                    else:
                        self.store_twin("buffer_store_dwordx4", f"v[{r}:{r+3}]", T+8, f"s{S_T4+q}", f"offset:{2048*tt + 512*gp}")
        a.put("L_p4_skip")
        self.V_T = 148

    def p4_setup(self):
        a = self.a
        a(f"s_cmp_ge_u32 s{S_GI}, 28")
        a(f"s_cbranch_scc1 L_p4s_done")
        a(f"s_cmp_ge_u32 s{S_GI}, 14")
        a(f"s_cselect_b32 s{S_T0}, 1, 0")
        a(f"s_cselect_b32 s{S_T1}, 14, 0")
        a(f"s_sub_u32 s{S_NT}, s{S_GI}, s{S_T1}")
        a(f"s_lshl_b32 s{S_MT}, s{S_GX}, 1")
        a(f"s_add_u32 s{S_MT}, s{S_MT}, s{S_T0}")
        a(f"s_cmp_ge_u32 s{S_NT}, 10")
        a(f"s_cselect_b32 s{S_T0}, 10, 0")
        a(f"s_sub_u32 s{S_KK}, s{S_NT}, s{S_T0}")
        if "p4norot" in self.opt: a(f"s_mov_b32 s{S_KK}, 0")
        a(f"s_cmp_lt_u32 s{S_W}, 4")
        a(f"s_cbranch_scc1 L_p4s_compute")
        self.V_T = 16
        self.g1_setup_loader(3456)
        self.g1_linearA()
        self.srd(SRD_A, S_WS, OFF_H, SZ_H)
        self.srd(SRD_W, S_W1, 0, 640*3456)
        T = self.V_T
        self.srd(SRD_T, S_B1, 0, 1728*2)
        a(f"s_sub_u32 s{S_T4}, s{S_W}, 4")
        a(f"s_lshl_b32 s{S_T4}, s{S_T4}, 5")
        a(f"v_and_b32 v{T+10}, 31, v1")
        a(f"v_add_u32 v{T+10}, s{S_T4}, v{T+10}")
        a(f"s_lshl_b32 s{S_T4}, s{S_NT}, 7")
        a(f"v_add_u32 v{T+11}, s{S_T4}, v{T+10}")
        a(f"v_lshlrev_b32 v{T+11}, 1, v{T+11}")
        a(f"buffer_load_ushort v{T+22}, v{T+11}, s[{SRD_T}:{SRD_T+3}], 0 offen")
        a(f"v_lshlrev_b32 v{T+11}, 1, v{T+11}")
        a(f"v_add_u32 v{T+11}, {hex(OFF_CS1)}, v{T+11}")
        a(f"buffer_load_dword v{T+23}, v{T+11}, s[{SRD_F}:{SRD_F+3}], 0 offen {self.ld_aux}")
        a(f"s_mov_b32 s{S_T3}, s{S_KK}")
        for sg in range(3):
            a(f"s_mul_i32 s{S_T4}, s{S_T3}, {64*3456}")
            a(f"s_add_u32 s{S_T4}, s{S_T4}, s{S_SW}")
            for q in range(4):
                a(f"s_add_u32 m0, s{S_M0A}, {sg*32768 + 16384 + q*4096}")
                a(f"s_add_u32 s{S_T2}, s{S_T4}, {q*16*3456}")
                a(f"buffer_load_dwordx4 v{self.V_OFFW}, s[{SRD_W}:{SRD_W+3}], s{S_T2} offen lds")
            a(f"s_add_u32 s{S_T3}, s{S_T3}, 1")
            a(f"s_cmp_eq_u32 s{S_T3}, 10")
            a(f"s_cselect_b32 s{S_T3}, 0, s{S_T3}")
        self.V_T = 148
        a(f"s_branch L_p4s_done")
        a.put("L_p4s_compute")
        self.g1_setup_compute()
        a.put("L_p4s_done")

    def p4(self):
        a = self.a
        a(f"s_cmp_ge_u32 s{S_GI}, 28")
        a(f"s_cbranch_scc1 L_p4_done")
        self.aux_A = self.ld_aux
        self.st1 = 15 if "p4s" in self.opt else None
        a(f"s_cmp_lt_u32 s{S_W}, 4")
        a(f"s_cbranch_scc1 L_p4_compute")
        self.V_T = 16
        for sg in range(3):
            a(f"s_lshl_b32 s{S_T4}, s{S_KK}, 14")
            a(f"s_add_u32 s{S_T4}, s{S_T4}, s{S_SA}")
            for q in range(4):
                a(f"s_add_u32 m0, s{S_M0A}, {sg*32768 + q*4096}")
                a(f"s_add_u32 s{S_T2}, s{S_T4}, {q*4096}")
                a(f"buffer_load_dwordx4 v{self.V_OFFA}, s[{SRD_A}:{SRD_A+3}], s{S_T2} offen {self.aux_A} lds")
            a(f"s_add_u32 s{S_KK}, s{S_KK}, 1")
            a(f"s_cmp_eq_u32 s{S_KK}, 10")
            a(f"s_cselect_b32 s{S_KK}, 0, s{S_KK}")
        a(f"s_mov_b32 s{S_SLOT}, {3*32768}")
        self.kk_wrap = 0
        self.b1_hook = True
        self.linA = True
        self.g1_loader(3456, "p4", "part")
        self.linA = False
        self.b1_hook = False
        self.V_T = 148
        a(f"s_branch L_p4_done")
        a.put("L_p4_compute")
        self.nocs = True
        self.g1_compute("T", "p4", presetup=True)
        self.nocs = False
        if "p4s" in self.opt: self.stamp(16)
        self.p4_epi()
        if "p4s" in self.opt: self.stamp(17)
        a.put("L_p4_done")

    def code_warm(self):
        a = self.a
        a(f"s_getpc_b64 s[{SRD_T}:{SRD_T+1}]")
        a.put("L_pc_here")
        a(f"s_sub_u32 s{SRD_T}, s{SRD_T}, L_pc_here-{NAME}")
        a(f"s_subb_u32 s{SRD_T+1}, s{SRD_T+1}, 0")
        a(f"s_mov_b32 s{SRD_T+2}, L_end-{NAME}")
        a(f"s_mov_b32 s{SRD_T+3}, 0x20000")
        a(f"v_lshlrev_b32 v254, 7, v0")
        a(f"buffer_load_dword v255, v254, s[{SRD_T}:{SRD_T+3}], 0 offen")

    def epoch_update(self):
        a = self.a
        a(f"s_or_b32 s{S_T0}, s2, s{S_W}")
        a(f"s_cmp_lg_u32 s{S_T0}, 0")
        a(f"s_cbranch_scc1 L_noepoch")
        a(f"v_mov_b32 v2, {OFF_EPOCH}")
        a(f"v_mov_b32 v3, s{S_TAG}")
        a(f"s_mov_b64 exec, 1")
        a(f"buffer_store_dword v3, v2, s[{SRD_F}:{SRD_F+3}], 0 offen sc1")
        a(f"s_mov_b64 exec, -1")
        a.put("L_noepoch")

    def epilogue_stamps(self):
        if getattr(self, "freeze", False): self.stamps = True
        if not self.stamps: return
        a = self.a
        if "dbg" in self.opt:
            a(f"s_or_b32 s{S_T0}, s2, s{S_W}")
            a(f"s_cmp_lg_u32 s{S_T0}, 0")
            a(f"s_cbranch_scc1 L_nodbg")
            self.srd(SRD_T, S_DBG, 0, 256)
            a(f"s_memrealtime s[100:101]")
            a(f"s_waitcnt lgkmcnt(0)")
            a(f"s_sub_u32 s{S_STAMP+15}, s100, s88")
            a(f"s_add_u32 s{S_STAMP+15}, s{S_STAMP+15}, s{S_STAMP}")
            a(f"v_mov_b32 v3, 0")
            a(f"s_mov_b64 exec, 1")
            for i in range(16):
                a(f"s_sub_u32 s{S_T1}, s{S_STAMP+i}, s{S_STAMP}")
                a(f"v_mov_b32 v2, s{S_T1}")
                a(f"buffer_store_dword v2, v3, s[{SRD_T}:{SRD_T+3}], 0 offen offset:{4*i}")
                a(f"s_nop 1")
            a(f"s_mov_b64 exec, -1")
            a.put("L_nodbg")
        a(f"s_waitcnt lgkmcnt(0)")
        a(f"s_lshl_b32 s{S_T0}, s2, 3")
        a(f"s_add_u32 s{S_T0}, s{S_T0}, s{S_W}")
        a(f"s_lshl_b32 s{S_T0}, s{S_T0}, 7")
        a(f"s_add_u32 s{S_T0}, s{S_T0}, 0x80000")
        a(f"v_mov_b32 v3, s{S_T0}")
        a(f"s_mov_b64 exec, 1")
        a(f"s_memrealtime s[100:101]")
        a(f"s_waitcnt lgkmcnt(0)")
        a(f"s_sub_u32 s{S_T1}, s100, s88")
        a(f"v_mov_b32 v2, s{S_T1}")
        a(f"buffer_store_dword v2, v3, s[{SRD_F}:{SRD_F+3}], 0 offen offset:{4*31}")
        a(f"v_mov_b32 v2, s88")
        a(f"buffer_store_dword v2, v3, s[{SRD_F}:{SRD_F+3}], 0 offen offset:{4*30}")
        for i in range(self.nstamp):
            a(f"s_sub_u32 s{S_T1}, s{S_STAMP+i}, s{S_STAMP}")
            a(f"v_mov_b32 v2, s{S_T1}")
            a(f"buffer_store_dword v2, v3, s[{SRD_F}:{SRD_F+3}], 0 offen offset:{4*i}")
            a(f"s_nop 1")
        a(f"s_mov_b64 exec, -1")

    def build(self):
        a = self.a
        self.prologue()
        self.p1()
        self.p2_setup()
        self.p2_wait_prep()
        self.p1_signal()
        if self.stop_after != "p1":
            self.p2()
            if self.stop_after != "p2":
                self.V_S = 66
                self.group_barrier(0, "gb23", S_QB, S_HEAD, hook=self.hook23)
                self.stamp(9)
                self.g2(3)
                self.stamp(10)
                if self.stop_after != "p3":
                    self.group_barrier(1, "gb34", hook=self.hook34, local=True)
                    self.stamp(11)
                    self.p4()
                    self.stamp(12)
                    if self.stop_after != "p4":
                        self.group_barrier(2, "gb45", hook=self.hook45, local=True)
                        self.stamp(13)
                        self.g2(5)
            a(f"s_waitcnt vmcnt(0)")
            self.stamp(14)
        if "delay" in self.opt:
            for i in range(4): a("s_sleep 127")
        self.epoch_update()
        self.epilogue_stamps()
        a(f"s_waitcnt vmcnt(0)")
        a.put("L_end")
        a("s_endpgm")
        return a

import struct
def f32(x):
    return struct.unpack("<I", struct.pack("<f", x))[0]

HEADER = open("sequential_preLN__mha_block__dense_activation_squared_relu__prompt.s.ref").read().split("; Override launch geometry")[0]

def wrap(body, lds=163840, vgpr=256):
    s = HEADER
    s += f"; @launch grid=(256,1,1) block=(512,1,1) lds={lds}\n"
    s += '.amdgcn_target "amdgcn-amd-amdhsa--gfx950"\n.text\n'
    s += f".globl {NAME}\n.p2align 8\n.type {NAME},@function\n{NAME}:\n"
    s += body
    s += f"""
.section .rodata,"a"
.p2align 6
.amdhsa_kernel {NAME}
  .amdhsa_next_free_vgpr {vgpr}
  .amdhsa_next_free_sgpr 102
  .amdhsa_accum_offset {vgpr}
  .amdhsa_group_segment_fixed_size 0
  .amdhsa_kernarg_size 88
  .amdhsa_user_sgpr_count 2
  .amdhsa_user_sgpr_kernarg_segment_ptr 1
  .amdhsa_system_sgpr_workgroup_id_x 1
.end_amdhsa_kernel
"""
    return s

if __name__ == "__main__":
    import argparse
    ap = argparse.ArgumentParser()
    ap.add_argument("-o", default="out.s")
    ap.add_argument("--stop", default=None)
    ap.add_argument("--stamps", action="store_true")
    ap.add_argument("--opt", default="")
    ap.add_argument("--plow", default=None)
    ap.add_argument("--lowpos", default=None)
    args = ap.parse_args()
    g = Gen(stop_after=args.stop, stamps=args.stamps, opt=[o for o in args.opt.split(',') if o])
    if args.lowpos is not None: g.low_pos = tuple(int(x) for x in args.lowpos.split(",") if x)
    if "ws1" in g.opt: g.warm_slots = {'dst': 48, 'w1': 52}
    if "ws2" in g.opt: g.warm_slots = {'w1': 48, 'dst': 52}
    if "ws3" in g.opt: g.warm_slots = {'w1': 48, 'dst': 49, 'wp': 50}
    if "ws0" in g.opt: g.warm_slots = {}
    if "low2" in g.opt: g.low_tiles = 2
    if "low3" in g.opt: g.low_tiles = 3
    if args.plow is not None: g.prio_low = tuple(int(x) for x in args.plow.split(",") if x)
    a = g.build()
    rep = check(a.L)
    for r in rep: print(r)
    open(args.o, "w").write(wrap(a.text()))
    print("wrote", args.o, len(a.L), "lines;", len(rep), "hazards")
```

```python
import sys, math
sys.path.insert(0, "gen")
from asmlib import Asm, vr, sr, check

NAME = "sequential_preLN__mha_block__dense_activation_squared_relu__prompt_kernel"

OFF_EPOCH = 0
OFF_ALL   = 0x1000
OFF_GB    = 0x50000
OFF_MB1   = 65536
OFF_GR    = 0x68000
OFF_CS1   = 0x70000
OFF_PST   = 0xC0000
OFF_Q     = 0x100000
OFF_KV    = 0x400000
OFF_O     = 0xA00000
OFF_H     = 0xD00000
OFF_R     = 0x1000000
OFF_WOP   = 0x1700000
OFF_W2P   = 0x1800000
SZ_Q = 32*64*1280
SZ_KV = 32*64*2560
SZ_O = 32*20*4096
SZ_H = 2048*1280
SZ_R = 32*54*4096
SZ_WOP = 20*40*1024
SZ_W2P = 54*40*1024

S_KA = 0; S_WG = 2; S_W = 3
S_X = 4; S_WQKV = 6; S_WO = 8; S_W1 = 12; S_B1 = 14; S_W2 = 16; S_B2 = 18; S_OUT = 20; S_DBG = 22; S_WS = 24
S_TAG = 26; S_GX = 27
SRD_A = 28; SRD_W = 32; SRD_O = 36; SRD_F = 40; SRD_T = 44
S_GI = 48
S_MT = 49; S_NT = 50; S_KK = 51; S_CNT = 52; S_SLOT = 53
S_SA = 54; S_SW = 55; S_T0 = 56; S_T1 = 57; S_T2 = 58; S_T3 = 59; S_T4 = 60; S_T5 = 61
S_M0A = 62; S_WM = 63; S_WN = 64; S_DELTA = 65; S_ONES = 66; S_ROT4 = 67; S_RLW = 68; S_RSLOT = 69; S_HEAD = 66; S_QB = 67
S_STAMP = 70
S_SAVE = 90
S_OOB = 53
S_XCC = 10; S_FAST = 11
SRD_P = 96

LDS_STATS = 0
ST_PX, ST_PQ, ST_PC, ST_AA, ST_BB, ST_CS, ST_B1 = 0, 4096, 8192, 9216, 9728, 10240, 10752
LDS_RL = 32768

class Gen:
    def __init__(self, stop_after=None, stamps=False, opt=()):
        self.opt = set(opt)
        self.a = Asm()
        self.stop_after = stop_after
        self.stamps = stamps
        self.nstamp = 0
        self.code_rounds = 2
        self.linA = False
        self.tlb_step = 0x80000 if 'tlb512k' in self.opt else 0x200000
        self.out_aux = 'nt' if 'outnt' in self.opt else ('sc1' if 'outsc1' in self.opt else '')
        self.evtag = 'u'
        self.kk_wrap = 2
        global LDS_STATS, LDS_RL
        if "ns5" not in self.opt:
            self.NSLOT = 4; LDS_STATS = 131072; LDS_RL = 131072 + 12288
        else:
            self.NSLOT = 5; LDS_STATS = 0; LDS_RL = 32768
        self.fast_aux = "nt" if "fnt" in self.opt else ("sc0" if "fsc0" in self.opt else ("sc0 nt" if "fsc0nt" in self.opt else ""))
        self.opt_g2 = "3" if "g2s3" in self.opt else ("5" if "g2s5" in self.opt else "")
        self.ld_aux = "" if "plainld" in self.opt else "sc1"

    def srd(self, dst, base_s, off, size):
        a = self.a
        if off:
            a(f"s_add_u32 s{dst}, s{base_s}, {hex(off)}")
            a(f"s_addc_u32 s{dst+1}, s{base_s+1}, 0")
        else:
            a(f"s_mov_b32 s{dst}, s{base_s}")
            a(f"s_mov_b32 s{dst+1}, s{base_s+1}")
        a(f"s_mov_b32 s{dst+2}, {hex(size)}")
        a(f"s_mov_b32 s{dst+3}, 0x20000")

    def csel(self, dst, x, y):
        self.a(f"s_mov_b32 s{dst}, {y}")
        self.a(f"s_cselect_b32 s{dst}, {x}, s{dst}")

    def withT(self, T, fn, *args, **kw):
        old = self.V_T; self.V_T = T
        r = fn(*args, **kw)
        self.V_T = old
        return r

    def srd_twin(self, base_s, off, size):
        a = self.a
        self.srd(SRD_O, base_s, off, size)
        a(f"s_mov_b32 s{SRD_P}, s{SRD_O}")
        a(f"s_mov_b32 s{SRD_P+1}, s{SRD_O+1}")
        a(f"s_mov_b32 s{SRD_P+3}, 0x20000")
        a(f"s_cmp_eq_u32 s{S_FAST}, 1")
        a(f"s_cselect_b32 s{SRD_P+2}, s{SRD_O+2}, 0")
        a(f"s_cselect_b32 s{SRD_O+2}, 0, s{SRD_O+2}")
    def store_twin(self, op, data, vaddr, soff, extra=""):
        a = self.a
        a(f"{op} {data}, v{vaddr}, s[{SRD_O}:{SRD_O+3}], {soff} offen {extra} sc1")
        a(f"{op} {data}, v{vaddr}, s[{SRD_P}:{SRD_P+3}], {soff} offen {extra} {self.fast_aux}")

    def set_exec(self, mask):
        mask = int(str(mask), 0) & 0xFFFFFFFFFFFFFFFF
        if mask == 0xFFFFFFFFFFFFFFFF: self.a("s_mov_b64 exec, -1")
        elif mask < 0x80000000: self.a(f"s_mov_b64 exec, {hex(mask)}")
        else:
            self.a(f"s_mov_b32 exec_lo, {hex(mask & 0xffffffff)}")
            self.a(f"s_mov_b32 exec_hi, {hex(mask >> 32)}")

    def stamp(self, i=None):
        if not self.stamps: return
        if i is None: return
        self.nstamp = max(self.nstamp, i + 1)
        self.a(f"s_memtime s[100:101]")
        self.a(f"s_waitcnt lgkmcnt(0)")
        self.a(f"s_mov_b32 s{S_STAMP+i}, s100")

    def prologue(self):
        a = self.a
        a(f"s_cmp_ge_u32 s2, 256")
        a(f"s_cbranch_scc1 L_end")
        if "perm" in self.opt:
            a(f"s_lshr_b32 s3, s2, 3")
            a(f"s_and_b32 s2, s2, 7")
            a(f"s_lshl_b32 s2, s2, 5")
            a(f"s_or_b32 s2, s2, s3")
        self.stamp(0)
        if self.stamps: a(f"s_memrealtime s[88:89]")
        a(f"s_load_dwordx16 s[4:19], s[0:1], 0")
        a(f"s_load_dwordx4 s[20:23], s[0:1], 64")
        a(f"s_load_dwordx2 s[24:25], s[0:1], 80")
        if "nowarm" not in self.opt: self.code_warm()
        a(f"v_lshrrev_b32 v2, 6, v0")
        a(f"v_and_b32 v1, 63, v0")
        a(f"v_readfirstlane_b32 s{S_W}, v2")
        a(f"s_and_b32 s{S_GX}, s2, 7")
        a(f"s_lshr_b32 s{S_GI}, s2, 3")
        a(f"v_mov_b32 v{self.V_S+2}, 0")
        a(f"v_mov_b32 v{self.V_S+5}, 0")
        a(f"v_mov_b32 v{self.V_S+20}, 0")
        a(f"v_mov_b32 v{self.V_S+21}, 0")
        a(f"s_lshr_b32 s{S_WM}, s{S_W}, 2")
        a(f"s_and_b32 s{S_WN}, s{S_W}, 3")

    def finish_tag(self):
        a = self.a
        a(f"s_waitcnt lgkmcnt(0)")
        a(f"s_mul_i32 s{S_TAG}, s{S_TAG}, 0x9E3779B1")
        a(f"s_add_u32 s{S_TAG}, s{S_TAG}, 0x7F4A7C15")

    V_OFFA = 2; V_OFFW = 3
    V_AA = 2
    V_AWA = 6; V_AWB = 7
    V_AW2A = 0; V_AW2B = 1
    V_CSA = 8
    V_CSD = 12
    V_FR = 16
    V_ACC = 80
    V_T = 148
    V_S = 152
    POLLW = 0
    SIGW = 7
    V_LA = 4
    V_LS = 8
    V_LD = 20
    V_LU = 40
    NSLOT = 5

    def g1_setup_loader(self, WS):
        a = self.a
        T = self.V_T
        a(f"s_sub_u32 s{S_T4}, s{S_W}, 4")
        a(f"v_lshrrev_b32 v{T}, 4, v1")
        a(f"s_lshl_b32 s{S_T0}, s{S_T4}, 2")
        a(f"v_add_u32 v{T+1}, s{S_T0}, v{T}")
        a(f"v_and_b32 v{T+1}, 7, v{T+1}")
        a(f"v_and_b32 v{T+2}, 7, v1")
        a(f"v_xor_b32 v{T+1}, v{T+1}, v{T+2}")
        a(f"v_lshlrev_b32 v{T+1}, 4, v{T+1}")
        a(f"v_lshrrev_b32 v{T+2}, 3, v1")
        a(f"v_mul_u32_u24 v{T+2}, 1280, v{T+2}")
        a(f"v_add_u32 v{self.V_OFFA}, v{T+1}, v{T+2}")
        a(f"v_lshlrev_b32 v{T+1}, 2, v{T}")
        a(f"v_and_b32 v{T+2}, 15, v1")
        a(f"v_xor_b32 v{T+1}, v{T+1}, v{T+2}")
        a(f"v_lshlrev_b32 v{T+1}, 4, v{T+1}")
        a(f"v_mul_u32_u24 v{T+2}, {WS}, v{T}")
        a(f"v_add_u32 v{self.V_OFFW}, v{T+1}, v{T+2}")
        a(f"s_lshl_b32 s{S_T0}, s{S_MT}, 7")
        a(f"s_lshl_b32 s{S_T1}, s{S_T4}, 3")
        a(f"s_add_u32 s{S_T0}, s{S_T0}, s{S_T1}")
        a(f"s_mul_i32 s{S_SA}, s{S_T0}, 1280")
        a(f"s_mul_i32 s{S_T0}, s{S_T4}, {4*WS}")
        a(f"s_lshl_b32 s{S_T1}, s{S_NT}, 8")
        a(f"s_add_u32 s{S_SW}, s{S_T0}, s{S_T1}")
        a(f"s_lshl_b32 s{S_M0A}, s{S_T4}, 10")
        a(f"s_mov_b32 s{S_SLOT}, 0")

    def g1_linearA(self):
        a = self.a
        a(f"v_lshlrev_b32 v{self.V_OFFA}, 4, v1")
        a(f"s_mul_i32 s{S_SA}, s{S_MT}, 163840")
        a(f"s_add_u32 s{S_SA}, s{S_SA}, s{S_M0A}")

    def g1_dma1(self, WS, q):
        a = self.a
        if q == 0:
            a(f"s_lshl_b32 s{S_T2}, s{S_KK}, {14 if self.linA else 7}")
            a(f"s_add_u32 s{S_T2}, s{S_T2}, s{S_SA}")
            a(f"s_add_u32 m0, s{S_SLOT}, s{S_M0A}")
            a(f"s_mul_i32 s{S_T3}, s{S_KK}, {64*WS}")
        elif q == 4:
            a(f"s_add_u32 s{S_T2}, s{S_T3}, s{S_SW}")
            a(f"s_add_u32 m0, m0, 4096")
            a(f"s_nop 0")
        else:
            a(f"s_add_u32 m0, m0, 4096")
            a(f"s_add_u32 s{S_T2}, s{S_T2}, {(4096 if self.linA else 32*1280) if q < 4 else 16*WS}")
        if q < 4:
            a(f"buffer_load_dwordx4 v{self.V_OFFA}, s[{SRD_A}:{SRD_A+3}], s{S_T2} offen {self.aux_A} lds")
        else:
            a(f"buffer_load_dwordx4 v{self.V_OFFW}, s[{SRD_W}:{SRD_W+3}], s{S_T2} offen lds")
        if q == 7:
            a(f"s_add_u32 s{S_KK}, s{S_KK}, 1")
            a(f"s_cmp_eq_u32 s{S_KK}, 10")
            a(f"s_cselect_b32 s{S_KK}, {self.kk_wrap}, s{S_KK}")
            a(f"s_add_u32 s{S_SLOT}, s{S_SLOT}, 32768")
            a(f"s_cmp_eq_u32 s{S_SLOT}, {self.NSLOT*32768}")
            a(f"s_cselect_b32 s{S_SLOT}, 0, s{S_SLOT}")

    def g1_dma_stage(self, WS):
        for q in range(8): self.g1_dma1(WS, q)

    def slot_next(self):
        a = self.a
        a(f"s_add_u32 s{S_RSLOT}, s{S_RSLOT}, 1")
        a(f"s_cmp_eq_u32 s{S_RSLOT}, {self.NSLOT}")
        a(f"s_cselect_b32 s{S_RSLOT}, 0, s{S_RSLOT}")
        a(f"s_cmp_eq_u32 s{S_RSLOT}, {self.NSLOT-1}")
        self.csel(S_DELTA, hex((-(self.NSLOT-1)*32768) & 0xffffffff), 32768)

    def g1_loader(self, WS, tag, mode):
        a = self.a
        T = self.V_T
        pre = self.NSLOT - 1
        nx = 1 if mode == "gran" else 4
        if mode == "gran":
            for q in range(8):
                self.g1_dma1(WS, q)
            a(f"s_waitcnt vmcnt(16)")
            if "p1s" in self.opt: self.stamp(18)
            a(f"s_barrier")
            if pre == 4:
                for q in range(8):
                    self.g1_dma1(WS, q)
            self.tag_ready()
        else:
            a(f"s_waitcnt vmcnt(8)")
            a(f"s_barrier")
            if pre == 4:
                for q in range(8):
                    self.g1_dma1(WS, q)
                a(f"s_waitcnt vmcnt(8)")
            else:
                a(f"s_waitcnt vmcnt(4)")
        a(f"s_mov_b32 s{S_CNT}, 0")
        L1 = f"L_{tag}_lloop"
        a.put(L1)
        a(f"s_add_u32 s{S_CNT}, s{S_CNT}, 1")
        a(f"s_waitcnt vmcnt({8*(pre-2)})")
        a(f"s_barrier")
        for q in range(8):
            if "nodma" not in self.opt: self.g1_dma1(WS, q)
        a(f"s_cmp_lt_u32 s{S_CNT}, {10-pre}")
        a(f"s_cbranch_scc1 {L1}")
        a(f"s_sub_u32 s{S_T4}, s{S_W}, 4")
        a(f"s_lshl_b32 s{S_T0}, s{S_T4}, 5")
        a(f"v_and_b32 v{T}, 31, v1")
        a(f"v_add_u32 v{T}, s{S_T0}, v{T}")
        a(f"s_lshl_b32 s{S_T1}, s{S_MT}, 7")
        a(f"v_add_u32 v{T+1}, s{S_T1}, v{T}")
        if mode == "gran":
            a(f"v_lshlrev_b32 v{T+1}, 4, v{T+1}")
            a(f"v_add_u32 v{T+1}, {hex(OFF_GR)}, v{T+1}")
            a(f"buffer_load_dwordx4 v[{T+4}:{T+7}], v{T+1}, s[{SRD_F}:{SRD_F+3}], 0 offen sc1")
        else:
            a(f"v_lshlrev_b32 v{T+1}, 7, v{T+1}")
            a(f"v_lshrrev_b32 v{T+2}, 5, v1")
            a(f"v_lshl_add_u32 v{T+1}, v{T+2}, 6, v{T+1}")
            a(f"v_add_u32 v{T+1}, {hex(OFF_PST)}, v{T+1}")
            for q in range(4):
                a(f"buffer_load_dwordx4 v[{T+4+4*q}:{T+7+4*q}], v{T+1}, s[{SRD_F}:{SRD_F+3}], 0 offen offset:{16*q} {self.ld_aux}")
        late = 0
        if pre == 4:
            a(f"s_waitcnt vmcnt({16+nx})")
            a(f"s_barrier")
        a(f"s_waitcnt vmcnt({8+nx})")
        a(f"s_barrier")
        rl = 0
        if mode == "gran":
            self.withT(T + 24, self.relayout_load)
            rl = 4
        a(f"s_waitcnt vmcnt({nx+rl})")
        a(f"s_barrier")
        if mode != "gran" and "now2rest" not in self.opt:
            self.g2_wsetup(5, SRD_T, S_SW, T + 24)
            for s_ in range(5):
                for t in range(3):
                    self.g2_wload1(5, 3, s_, t, SRD_T, S_SW, T + 24)
            late = 15
        a(f"s_barrier")
        a(f"s_waitcnt vmcnt({late+rl})")
        if mode == "gran":
            Lp = f"L_{tag}_gpoll"; Lo = f"L_{tag}_gok"
            a(f"s_mov_b32 s{S_T0}, 0")
            a.put(Lp)
            a(f"v_cmp_ne_u32 vcc, s{S_TAG}, v{T+6}")
            a(f"v_cmp_ne_u32 s[{S_SAVE}:{S_SAVE+1}], s{S_TAG}, v{T+7}")
            a(f"s_nop 1")
            a(f"s_or_b64 vcc, vcc, s[{S_SAVE}:{S_SAVE+1}]")
            a(f"s_cbranch_vccz {Lo}")
            a(f"s_add_u32 s{S_T0}, s{S_T0}, 1")
            a(f"s_cmp_ge_u32 s{S_T0}, 0x40000")
            a(f"s_cbranch_scc1 {Lo}")
            a(f"buffer_load_dwordx4 v[{T+4}:{T+7}], v{T+1}, s[{SRD_F}:{SRD_F+3}], 0 offen sc1")
            a(f"s_waitcnt vmcnt(0)")
            a(f"s_branch {Lp}")
            a.put(Lo)
            A_, B_ = T+4, T+5
        else:
            for q in range(1, 4):
                for i in range(4):
                    a(f"v_add_f32 v{T+4+i}, v{T+4+i}, v{T+4+4*q+i}")
            a(f"v_add_f32 v{T+4}, v{T+4}, v{T+6}")
            a(f"v_add_f32 v{T+5}, v{T+5}, v{T+7}")
            a(f"v_mov_b32 v{T+6}, v{T+4}")
            a(f"v_mov_b32 v{T+7}, v{T+5}")
            a(f"s_nop 1")
            a(f"v_permlane32_swap_b32 v{T+6}, v{T+4}")
            a(f"v_permlane32_swap_b32 v{T+7}, v{T+5}")
            a(f"s_nop 1")
            a(f"v_add_f32 v{T+4}, v{T+4}, v{T+6}")
            a(f"v_add_f32 v{T+5}, v{T+5}, v{T+7}")
            self.ab_from_sums(T+4, T+5, T+8)
            A_, B_ = T+9, T+8
        a(f"v_lshlrev_b32 v{T}, 2, v{T}")
        a(f"v_add_u32 v{T}, {LDS_STATS}, v{T}")
        a(f"ds_write_b32 v{T}, v{A_} offset:{ST_AA}")
        a(f"ds_write_b32 v{T}, v{B_} offset:{ST_BB}")
        if getattr(self, "b1_hook", False):
            a(f"v_lshlrev_b32 v{T+22}, 16, v{T+22}")
            a(f"ds_write_b32 v{T}, v{T+22} offset:{ST_B1}")
            a(f"ds_write_b32 v{T}, v{T+23} offset:{ST_CS}")
        a(f"s_waitcnt lgkmcnt(0)")
        a(f"s_barrier")

    def ab_from_sums(self, sx, sq, o):
        a = self.a
        a(f"v_mul_f32 v{o}, {hex(f32(1.0/640))}, v{sx}")
        a(f"v_mul_f32 v{o+1}, {hex(f32(1.0/640))}, v{sq}")
        a(f"v_fma_f32 v{o+1}, -v{o}, v{o}, v{o+1}")
        a(f"v_max_f32 v{o+1}, 0, v{o+1}")
        a(f"v_add_f32 v{o+1}, {hex(f32(1e-5))}, v{o+1}")
        a(f"v_rsq_f32 v{o+1}, v{o+1}")
        a(f"s_nop 0")
        a(f"v_mul_f32 v{o}, v{o}, v{o+1}")
        a(f"v_sub_f32 v{o}, 0, v{o}")

    V_WRM = 252
    S_WRM = 62; S_WRMD = 54
    def p1_l2warm(self):
        a = self.a
        T = self.V_T; V = self.V_WRM
        LW = "L_warm_w"; LJ = "L_warm_j"
        a(f"s_bitcmp1_b32 s{S_W}, 0")
        a(f"s_cbranch_scc1 {LW}")
        self.srd(SRD_T, S_X, 0, 2048*1280)
        a(f"s_and_b32 s{S_T0}, s{S_GX}, 3")
        a(f"s_lshl_b32 s{S_T0}, s{S_T0}, 9")
        a(f"s_lshl_b32 s{S_T1}, s{S_GI}, 4")
        a(f"s_add_u32 s{S_T0}, s{S_T0}, s{S_T1}")
        a(f"v_add_u32 v{T}, s{S_T0}, v1")
        a(f"v_mul_u32_u24 v{V}, 1280, v{T}")
        a(f"v_cmp_gt_u32 vcc, 16, v1")
        a(f"s_mov_b32 s{self.S_WRMD}, 128")
        a(f"s_branch {LJ}a")
        a.put(LW)
        self.srd(SRD_T, S_WQKV, 0, 640*3840)
        a(f"v_lshrrev_b32 v{T}, 4, v1")
        a(f"s_lshl_b32 s{S_T0}, s{S_GI}, 1")
        a(f"v_add_u32 v{T}, s{S_T0}, v{T}")
        a(f"v_mul_u32_u24 v{V}, 3840, v{T}")
        a(f"v_and_b32 v{T+1}, 15, v1")
        a(f"v_lshl_add_u32 v{V}, v{T+1}, 7, v{V}")
        a(f"s_lshr_b32 s{S_T0}, s{S_GX}, 2")
        a(f"s_lshl_b32 s{S_T0}, s{S_T0}, 11")
        a(f"v_add_u32 v{V}, s{S_T0}, v{V}")
        a(f"v_cmp_gt_u32 vcc, 32, v1")
        a(f"s_mov_b32 s{self.S_WRMD}, {64*3840}")
        a.put(LJ + "a")
        a(f"s_cmp_ge_u32 s{S_W}, 2")
        a(f"s_cselect_b64 s[{S_SAVE}:{S_SAVE+1}], 0, vcc")
        a(f"v_mov_b32 v{T+1}, 0x7f000000")
        a(f"s_nop 0")
        a(f"v_cndmask_b32 v{V}, v{T+1}, v{V}, s[{S_SAVE}:{S_SAVE+1}]")
        a(f"s_mul_i32 s{self.S_WRM}, s{self.S_WRMD}, 3")
        for c in range(3):
            self.warm1()

    def warm1(self):
        a = self.a
        a(f"buffer_load_dword v253, v{self.V_WRM}, s[{SRD_T}:{SRD_T+3}], s{self.S_WRM} offen")
        a(f"s_add_u32 s{self.S_WRM}, s{self.S_WRM}, s{self.S_WRMD}")

    def w1_l2warm_keepT(self):
        self.w1_l2warm()

    def w1_l2warm(self):
        a = self.a
        V = self.A_ALL + 1
        self.srd(SRD_O, S_W1, 0, 640*3456)
        a(f"s_mul_i32 s{S_T0}, s{S_GI}, 540")
        a(f"s_lshl_b32 s{S_T1}, s{S_W}, 6")
        a(f"s_add_u32 s{S_T0}, s{S_T0}, s{S_T1}")
        a(f"v_add_u32 v{V}, s{S_T0}, v1")
        a(f"v_lshlrev_b32 v{V}, 7, v{V}")
        a(f"buffer_load_dword v{V+1}, v{V}, s[{SRD_O}:{SRD_O+3}], 0 offen")
        L = f"L_w1w_skip{self.evtag}"
        a(f"s_cmp_lg_u32 s{S_W}, 0")
        a(f"s_cbranch_scc1 {L}")
        self.set_exec((1 << 28) - 1)
        a(f"s_mov_b32 s{S_T1}, {512*128}")
        a(f"buffer_load_dword v{V+1}, v{V}, s[{SRD_O}:{SRD_O+3}], s{S_T1} offen")
        a(f"s_mov_b64 exec, -1")
        a(f"v_lshlrev_b32 v{V+2}, 7, v1")
        self.srd(SRD_O, S_B1, 0, 3456)
        a(f"buffer_load_dword v{V+1}, v{V+2}, s[{SRD_O}:{SRD_O+3}], 0 offen")
        self.srd(SRD_O, S_B2, 0, 1280)
        a(f"buffer_load_dword v{V+1}, v{V+2}, s[{SRD_O}:{SRD_O+3}], 0 offen")
        a.put(L)

    def dst_l2warm(self):
        a = self.a
        V = self.A_ALL + 1
        L = f"L_dstw_skip{self.evtag}"
        a(f"s_cmp_eq_u32 s{S_FAST}, 0")
        a(f"s_cbranch_scc1 {L}")
        self.srd(SRD_O, S_WS, 0, 0x1B00000)
        a(f"s_lshl_b32 s{S_T0}, s{S_W}, 6")
        a(f"v_add_u32 v{V}, s{S_T0}, v1")
        a(f"s_mul_i32 s{S_T0}, s{S_GX}, 2560")
        a(f"s_mul_i32 s{S_T1}, s{S_GI}, 80")
        a(f"s_add_u32 s{S_T0}, s{S_T0}, s{S_T1}")
        a(f"s_add_u32 s{S_T0}, s{S_T0}, {OFF_H//128}")
        a(f"s_mul_i32 s{S_T1}, s{S_GX}, 6912")
        a(f"s_mul_i32 s{S_T2}, s{S_GI}, 216")
        a(f"s_add_u32 s{S_T1}, s{S_T1}, s{S_T2}")
        a(f"s_add_u32 s{S_T1}, s{S_T1}, {OFF_R//128 - 80}")
        a(f"s_lshl_b32 s{S_T2}, s{S_GX}, 8")
        a(f"s_lshl_b32 s{S_T3}, s{S_GI}, 3")
        a(f"s_add_u32 s{S_T2}, s{S_T2}, s{S_T3}")
        a(f"s_add_u32 s{S_T2}, s{S_T2}, {OFF_PST//128 - 296}")
        a(f"v_mov_b32 v{V+2}, s{S_T2}")
        a(f"v_mov_b32 v{V+1}, s{S_T1}")
        a(f"v_cmp_gt_u32 vcc, 296, v{V}")
        a(f"s_nop 1")
        a(f"v_cndmask_b32 v{V+2}, v{V+2}, v{V+1}, vcc")
        a(f"v_mov_b32 v{V+1}, s{S_T0}")
        a(f"v_cmp_gt_u32 vcc, 80, v{V}")
        a(f"s_nop 1")
        a(f"v_cndmask_b32 v{V+2}, v{V+2}, v{V+1}, vcc")
        a(f"v_add_u32 v{V+2}, v{V+2}, v{V}")
        a(f"v_lshlrev_b32 v{V+2}, 7, v{V+2}")
        a(f"v_cmp_gt_u32 vcc, 304, v{V}")
        a(f"s_and_saveexec_b64 s[{S_SAVE}:{S_SAVE+1}], vcc")
        a(f"s_cbranch_execz {L}x")
        a(f"buffer_load_dword v{V+1}, v{V+2}, s[{SRD_O}:{SRD_O+3}], 0 offen")
        a.put(L + "x")
        a(f"s_mov_b64 exec, -1")
        a.put(L)

    def wp_l2warm(self):
        a = self.a
        V = self.A_ALL + 1
        a(f"s_cmp_lt_u32 s{S_W}, 4")
        self.csel(S_T0, hex(OFF_WOP), hex(OFF_W2P))
        a(f"s_add_u32 s{SRD_O}, s{S_WS}, s{S_T0}")
        a(f"s_addc_u32 s{SRD_O+1}, s{S_WS+1}, 0")
        a(f"s_mov_b32 s{SRD_O+2}, {SZ_WOP}")
        a(f"s_mov_b32 s{SRD_O+3}, 0x20000")
        a(f"s_and_b32 s{S_T0}, s{S_W}, 3")
        a(f"s_lshl_b32 s{S_T0}, s{S_T0}, 6")
        a(f"v_add_u32 v{V}, s{S_T0}, v1")
        a(f"v_cmp_gt_u32 vcc, 200, v{V}")
        a(f"s_mul_i32 s{S_T0}, s{S_GI}, 200")
        a(f"v_add_u32 v{V}, s{S_T0}, v{V}")
        a(f"v_lshlrev_b32 v{V}, 7, v{V}")
        a(f"s_and_saveexec_b64 s[{S_SAVE}:{S_SAVE+1}], vcc")
        a(f"s_cbranch_execz L_wpw_x{self.evtag}")
        a(f"buffer_load_dword v{V+1}, v{V}, s[{SRD_O}:{SRD_O+3}], 0 offen")
        a.put(f"L_wpw_x{self.evtag}")
        a(f"s_mov_b64 exec, -1")

    def tlb_warm(self):
        a = self.a
        L1 = "L_tlb1"; L2 = "L_tlb2"; L3 = "L_tlb3"; LJ = "L_tlbj"
        step = self.tlb_step
        a(f"v_mul_u32_u24 v252, {step >> 8}, v1")
        a(f"v_lshlrev_b32 v252, 8, v252")
        a(f"s_cmp_eq_u32 s{S_W}, 1")
        a(f"s_cbranch_scc1 {L1}")
        a(f"s_cmp_eq_u32 s{S_W}, 2")
        a(f"s_cbranch_scc1 {L2}")
        a(f"s_cmp_eq_u32 s{S_W}, 3")
        a(f"s_cbranch_scc1 {L3}")
        self.srd(SRD_T, S_WS, 0x100000, 0x1A00000)
        a(f"s_branch {LJ}")
        a.put(L1)
        self.srd(SRD_T, S_OUT, 0, 2048*1280)
        a(f"s_branch {LJ}")
        a.put(L2)
        self.srd(SRD_T, S_W1, 0, 640*3456)
        a(f"s_branch {LJ}")
        a.put(L3)
        self.srd(SRD_T, S_WS, 0, 0x100000)
        a.put(LJ)
        a(f"buffer_load_dword v253, v252, s[{SRD_T}:{SRD_T+3}], 0 offen")

    def null_job(self):
        a = self.a
        T = 16
        self.srd(SRD_T, S_W1, 0, 640*3456)
        a(f"s_lshl_b32 s{S_T0}, s{S_W}, 6")
        a(f"v_add_u32 v{T}, s{S_T0}, v1")
        a(f"v_mul_u32_u24 v{T+1}, 19419, v{T}")
        a(f"v_lshrrev_b32 v{T+1}, 20, v{T+1}")
        a(f"v_mul_u32_u24 v{T+2}, 54, v{T+1}")
        a(f"v_sub_u32 v{T+2}, v{T}, v{T+2}")
        a(f"v_mul_u32_u24 v{T+3}, 3456, v{T+1}")
        a(f"v_lshl_add_u32 v{T+3}, v{T+2}, 2, v{T+3}")
        a(f"s_mul_i32 s{S_T0}, s{S_MT}, 216")
        a(f"v_add_u32 v{T+3}, s{S_T0}, v{T+3}")
        a(f"v_cmp_gt_u32 vcc, 9, v{T+1}")
        a(f"v_mov_b32 v{T+4}, 0x7f000000")
        a(f"s_nop 0")
        a(f"v_cndmask_b32 v{T+3}, v{T+4}, v{T+3}, vcc")
        a(f"v_mov_b32 v{T+6}, 0"); a(f"v_mov_b32 v{T+7}, 0")
        a(f"s_mov_b32 s{S_T1}, 0")
        a.put("L_nj_loop")
        for k in range(24):
            a(f"s_add_u32 s{S_T2}, s{S_T1}, {k*9*3456}")
            a(f"buffer_load_dword v{T+8+k}, v{T+3}, s[{SRD_T}:{SRD_T+3}], s{S_T2} offen")
        for k in range(24):
            a(f"s_waitcnt vmcnt({23-k})")
            a(f"v_lshlrev_b32 v{T+32}, 16, v{T+8+k}")
            a(f"v_and_b32 v{T+33}, 0xffff0000, v{T+8+k}")
            a(f"v_add_f32 v{T+6}, v{T+6}, v{T+32}")
            a(f"v_add_f32 v{T+7}, v{T+7}, v{T+33}")
        a(f"s_add_u32 s{S_T1}, s{S_T1}, {24*9*3456}")
        a(f"s_cmp_lt_u32 s{S_T1}, {72*9*3456}")
        a(f"s_cbranch_scc1 L_nj_loop")
        a(f"v_lshlrev_b32 v{T+4}, 3, v{T}")
        a(f"ds_write_b64 v{T+4}, v[{T+6}:{T+7}]")
        a(f"s_waitcnt lgkmcnt(0)")
        a(f"s_barrier")
        a(f"s_cmp_lg_u32 s{S_W}, 0")
        a(f"s_cbranch_scc1 L_nj_done")
        a(f"v_lshlrev_b32 v{T+4}, 3, v1")
        for g in range(9):
            a(f"ds_read_b64 v[{T+8+2*g}:{T+9+2*g}], v{T+4} offset:{g*54*8}")
        a(f"s_waitcnt lgkmcnt(0)")
        for g in range(1, 9):
            a(f"v_add_f32 v{T+8}, v{T+8}, v{T+8+2*g}")
            a(f"v_add_f32 v{T+9}, v{T+9}, v{T+9+2*g}")
        a(f"s_mul_i32 s{S_T0}, s{S_MT}, 432")
        a(f"s_add_u32 s{S_T0}, s{S_T0}, {hex(OFF_CS1)}")
        a(f"v_add_u32 v{T+4}, s{S_T0}, v{T+4}")
        self.set_exec((1 << 54) - 1)
        a(f"buffer_store_dwordx2 v[{T+8}:{T+9}], v{T+4}, s[{SRD_F}:{SRD_F+3}], 0 offen sc1")
        a(f"s_mov_b64 exec, -1")
        a.put("L_nj_done")

    def p1_l2warm_all(self):
        a = self.a
        T = self.V_T + 40
        LW = "L_wall_w"; LJ = "L_wall_j"
        a(f"s_cmp_lg_u32 s{S_W}, 0")
        a(f"s_cbranch_scc1 {LW}")
        self.srd(SRD_T, S_X, 0, 2048*1280)
        a(f"s_and_b32 s{S_T0}, s{S_GX}, 3")
        a(f"s_lshl_b32 s{S_T0}, s{S_T0}, 9")
        a(f"s_lshl_b32 s{S_T1}, s{S_GI}, 4")
        a(f"s_add_u32 s{S_T0}, s{S_T0}, s{S_T1}")
        a(f"v_and_b32 v{T}, 15, v1")
        a(f"v_add_u32 v{T}, s{S_T0}, v{T}")
        a(f"v_mul_u32_u24 v{T}, 1280, v{T}")
        a(f"v_lshrrev_b32 v{T+1}, 4, v1")
        a(f"v_lshl_add_u32 v{T}, v{T+1}, 7, v{T}")
        a(f"buffer_load_dword v253, v{T}, s[{SRD_T}:{SRD_T+3}], 0 offen")
        a(f"buffer_load_dword v253, v{T}, s[{SRD_T}:{SRD_T+3}], 0 offen offset:512")
        self.set_exec(0xffffffff)
        a(f"buffer_load_dword v253, v{T}, s[{SRD_T}:{SRD_T+3}], 0 offen offset:1024")
        a(f"s_mov_b64 exec, -1")
        a(f"s_branch {LJ}")
        a.put(LW)
        self.srd(SRD_T, S_WQKV, 0, 640*3840)
        a(f"v_lshrrev_b32 v{T}, 5, v1")
        a(f"v_lshlrev_b32 v{T}, 6, v{T}")
        a(f"v_bfe_u32 v{T+1}, v1, 4, 1")
        a(f"v_add_u32 v{T}, v{T}, v{T+1}")
        a(f"s_lshl_b32 s{S_T0}, s{S_GI}, 1")
        a(f"v_add_u32 v{T}, s{S_T0}, v{T}")
        a(f"v_mul_u32_u24 v{T}, 3840, v{T}")
        a(f"v_and_b32 v{T+1}, 15, v1")
        a(f"v_lshl_add_u32 v{T}, v{T+1}, 7, v{T}")
        a(f"s_lshr_b32 s{S_T0}, s{S_GX}, 2")
        a(f"s_lshl_b32 s{S_T0}, s{S_T0}, 11")
        a(f"s_sub_u32 s{S_T1}, s{S_W}, 1")
        a(f"s_mul_i32 s{S_T1}, s{S_T1}, {128*3840}")
        a(f"s_add_u32 s{S_T0}, s{S_T0}, s{S_T1}")
        a(f"buffer_load_dword v253, v{T}, s[{SRD_T}:{SRD_T+3}], s{S_T0} offen")
        a(f"s_add_u32 s{S_T0}, s{S_T0}, {3*128*3840}")
        a(f"buffer_load_dword v253, v{T}, s[{SRD_T}:{SRD_T+3}], s{S_T0} offen")
        a.put(LJ)

    def xstats_publish(self):
        a = self.a
        T = self.V_T
        self.srd(SRD_O, S_X, 0, 2048*1280)
        a(f"s_lshl_b32 s{S_T0}, s2, 3")
        a(f"s_lshl_b32 s{S_T1}, s{S_W}, 1")
        a(f"s_add_u32 s{S_T0}, s{S_T0}, s{S_T1}")
        a(f"v_lshrrev_b32 v{T}, 5, v1")
        a(f"v_add_u32 v{T}, s{S_T0}, v{T}")
        a(f"v_mul_u32_u24 v{T+1}, 1280, v{T}")
        a(f"v_and_b32 v{T+2}, 31, v1")
        a(f"v_lshl_add_u32 v{T+1}, v{T+2}, 3, v{T+1}")
        D = T + 4
        for j in range(5):
            a(f"buffer_load_dwordx2 v[{D+2*j}:{D+2*j+1}], v{T+1}, s[{SRD_O}:{SRD_O+3}], 0 offen offset:{256*j}")
        return D

    def xstats_finish(self, D):
        a = self.a
        T = self.V_T
        S = T + 16
        a(f"v_mov_b32 v{S}, 0"); a(f"v_mov_b32 v{S+1}, 0")
        a(f"s_waitcnt vmcnt(0)")
        for r in range(10):
            a(f"v_lshlrev_b32 v{S+2}, 16, v{D+r}")
            a(f"v_and_b32 v{S+3}, 0xffff0000, v{D+r}")
            a(f"v_add_f32 v{S}, v{S}, v{S+2}")
            a(f"v_fmac_f32 v{S+1}, v{S+2}, v{S+2}")
            a(f"v_add_f32 v{S}, v{S}, v{S+3}")
            a(f"v_fmac_f32 v{S+1}, v{S+3}, v{S+3}")
        for ctl in ("row_shr:1", "row_shr:2", "row_shr:4", "row_shr:8"):
            a(f"s_nop 1")
            a(f"v_add_f32_dpp v{S}, v{S}, v{S} {ctl} row_mask:0xf bank_mask:0xf bound_ctrl:0")
            a(f"v_add_f32_dpp v{S+1}, v{S+1}, v{S+1} {ctl} row_mask:0xf bank_mask:0xf bound_ctrl:0")
        a(f"s_nop 1")
        a(f"v_add_f32_dpp v{S}, v{S}, v{S} row_bcast:15 row_mask:0xa bank_mask:0xf")
        a(f"v_add_f32_dpp v{S+1}, v{S+1}, v{S+1} row_bcast:15 row_mask:0xa bank_mask:0xf")
        a(f"s_nop 1")
        self.ab_from_sums(S, S+1, S+5)
        a(f"v_mov_b32 v{S+8}, v{S+6}")
        a(f"v_mov_b32 v{S+9}, v{S+5}")
        self.tag_ready()
        a(f"v_mov_b32 v{S+10}, s{S_TAG}")
        a(f"v_mov_b32 v{S+11}, s{S_TAG}")
        a(f"v_lshlrev_b32 v{T}, 4, v{T}")
        a(f"v_add_u32 v{T}, {hex(OFF_GR)}, v{T}")
        a(f"s_mov_b32 exec_lo, 0x80000000")
        a(f"s_mov_b32 exec_hi, 0x80000000")
        a(f"buffer_store_dwordx4 v[{S+8}:{S+11}], v{T}, s[{SRD_F}:{SRD_F+3}], 0 offen sc1")
        a(f"s_mov_b64 exec, -1")

    def tag_ready(self):
        a = self.a
        a(f"s_waitcnt lgkmcnt(0)")
        a(f"s_getreg_b32 s{S_XCC}, hwreg(HW_REG_XCC_ID, 0, 4)")
        a(f"s_mov_b32 s{S_FAST}, 0")
        a(f"s_mul_i32 s{S_TAG}, s{S_TAG}, 0x9E3779B1")
        a(f"s_add_u32 s{S_TAG}, s{S_TAG}, 0x7F4A7C15")

    def g1_setup_compute(self):
        a = self.a
        T = self.V_FR
        a(f"s_lshr_b32 s{S_WM}, s{S_W}, 1")
        a(f"s_and_b32 s{S_WN}, s{S_W}, 1")
        a(f"v_and_b32 v{T}, 31, v1")
        a(f"s_lshl_b32 s{S_T0}, s{S_WM}, 6")
        a(f"v_add_u32 v{T+1}, s{S_T0}, v{T}")
        a(f"v_lshlrev_b32 v{T+1}, 7, v{T+1}")
        a(f"v_bfe_u32 v{T+2}, v{T}, 1, 3")
        a(f"v_lshrrev_b32 v{T+3}, 5, v1")
        a(f"v_xor_b32 v{T+2}, v{T+2}, v{T+3}")
        for j in range(4):
            a(f"v_xor_b32 v{self.V_AA+j}, {2*j}, v{T+2}")
            a(f"v_lshlrev_b32 v{self.V_AA+j}, 4, v{self.V_AA+j}")
            a(f"v_add_u32 v{self.V_AA+j}, v{self.V_AA+j}, v{T+1}")
        a(f"v_and_b32 v{T+4}, 15, v1")
        a(f"v_lshrrev_b32 v{T+5}, 2, v{T+4}")
        a(f"v_lshlrev_b32 v{T+6}, 3, v{T+3}")
        a(f"v_add_u32 v{T+6}, v{T+6}, v{T+5}")
        a(f"v_lshlrev_b32 v{T+6}, 8, v{T+6}")
        a(f"v_bfe_u32 v{T+7}, v1, 4, 1")
        a(f"v_lshlrev_b32 v{T+7}, 1, v{T+7}")
        a(f"v_bfe_u32 v{T+8}, v1, 1, 1")
        a(f"v_add_u32 v{T+7}, v{T+7}, v{T+8}")
        a(f"s_lshl_b32 s{S_T0}, s{S_WN}, 3")
        a(f"s_lshl_b32 s{S_T1}, s{S_WM}, 2")
        a(f"s_add_u32 s{S_T0}, s{S_T0}, s{S_T1}")
        a(f"v_add_u32 v{T+7}, s{S_T0}, v{T+7}")
        a(f"v_lshlrev_b32 v{T+5}, 2, v{T+5}")
        a(f"v_xor_b32 v{T+7}, v{T+7}, v{T+5}")
        a(f"v_lshlrev_b32 v{T+7}, 4, v{T+7}")
        a(f"v_and_b32 v{T+8}, 1, v1")
        a(f"v_lshlrev_b32 v{T+8}, 3, v{T+8}")
        a(f"v_add_u32 v{T+6}, v{T+6}, v{T+7}")
        a(f"v_add_u32 v{T+6}, v{T+6}, v{T+8}")
        a(f"v_add_u32 v{self.V_AWA}, 16384, v{T+6}")
        a(f"v_xor_b32 v{self.V_AWB}, 64, v{self.V_AWA}")
        a(f"v_and_b32 v{T}, 15, v1")
        a(f"v_bfe_u32 v{T+1}, v1, 4, 1")
        a(f"v_cmp_eq_u32 vcc, v{T}, v{T+1}")
        a(f"v_mov_b32 v{T+2}, 0x3f803f80")
        a(f"s_nop 1")
        a(f"v_cndmask_b32 v{self.V_CSA}, 0, v{T+2}, vcc")
        for r in range(1, 4):
            a(f"v_mov_b32 v{self.V_CSA+r}, v{self.V_CSA}")
        for r in range(4):
            a(f"v_mov_b32 v{self.V_CSD+r}, 0")
        for r in range(64):
            a(f"v_mov_b32 v{self.V_ACC+r}, 0")

    def g1_read1(self, j, q):
        if "noreads" in self.opt: return
        a = self.a
        F = self.V_FR + 16*j
        if q == 0: a(f"ds_read_b128 v[{F}:{F+3}], v{self.V_AA+j}")
        elif q == 1: a(f"ds_read_b128 v[{F+4}:{F+7}], v{self.V_AA+j} offset:4096")
        else:
            ad = (self.V_AWA if q == 2 else self.V_AWB) if j != 3 else (self.V_AW2A if q == 2 else self.V_AW2B)
            R = F + 8 + 4*(q-2)
            a(f"ds_read_b64_tr_b16 v[{R}:{R+1}], v{ad} offset:{4096*j}")
            a(f"ds_read_b64_tr_b16 v[{R+2}:{R+3}], v{ad} offset:{4096*j+1024}")

    def g1_mfma1(self, j, orient, tt, q):
        if "nomfma" in self.opt: return
        a = self.a
        F = self.V_FR + 16*j
        X = f"v[{F+4*tt}:{F+4*tt+3}]"; W = f"v[{F+8+4*q}:{F+11+4*q}]"
        A = self.V_ACC + 16*(2*tt+q)
        D = f"v[{A}:{A+15}]"
        if orient == "T": a(f"v_mfma_f32_32x32x16_bf16 {D}, {W}, {X}, {D}")
        else:             a(f"v_mfma_f32_32x32x16_bf16 {D}, {X}, {W}, {D}")

    def g1_colsum(self, j):
        if "nostats" in self.opt or getattr(self, "nocs", False): return
        F = self.V_FR + 16*j; D = self.V_CSD
        self.a(f"v_mfma_f32_16x16x32_bf16 v[{D}:{D+3}], v[{self.V_CSA}:{self.V_CSA+3}], v[{F+8}:{F+11}], v[{D}:{D+3}]")

    def g1_adv(self):
        a = self.a
        for r in list(range(self.V_AA, self.V_AA+4)) + [self.V_AWA, self.V_AWB]:
            a(f"v_add_u32 v{r}, s{S_DELTA}, v{r}")

    def g1_cstep(self, j, orient, rset, fill=((), (), (), ())):
        a = self.a
        order = (2, 0, 1, 3)
        cp = getattr(self, "cprof", False)
        if cp: a(f"s_memtime s[{72+4*j}:{73+4*j}]")
        a(f"s_waitcnt lgkmcnt(12)")
        if cp: a(f"s_memtime s[{74+4*j}:{75+4*j}]")
        for k, (tt, q) in enumerate(((0, 0), (1, 0), (0, 1), (1, 1))):
            self.g1_mfma1(j, orient, tt, q)
            if k == 0: self.g1_colsum(j)
            self.g1_read1(rset, order[k])
            for f in fill[k]: a(f)

    def g1_compute(self, orient, tag, presetup=False):
        a = self.a
        if not presetup: self.g1_setup_compute()
        AA = self.V_AA
        a(f"v_mov_b32 v{self.V_AW2A}, v{self.V_AWA}")
        a(f"v_mov_b32 v{self.V_AW2B}, v{self.V_AWB}")
        a(f"s_barrier")
        self.stamp(self.st1)
        for j in range(3):
            for q in (2, 0, 1, 3): self.g1_read1(j, q)
        DA, DB = S_DELTA, S_T5
        a(f"s_mov_b32 s{S_CNT}, 0")
        a(f"s_mov_b32 s{S_RSLOT}, 1")
        a(f"s_mov_b32 s{DA}, 32768")
        a(f"v_add_u32 v{AA}, s{DA}, v{AA}")
        a(f"v_add_u32 v{AA+1}, s{DA}, v{AA+1}")
        wrap = hex((-(self.NSLOT-1)*32768) & 0xffffffff)
        L1 = f"L_{tag}_cloop"
        a(f".p2align 5")
        a.put(L1)
        self.g1_cstep(0, orient, 3, ((f"v_add_u32 v{AA+2}, s{DA}, v{AA+2}",), (f"v_add_u32 v{self.V_AWA}, s{DA}, v{self.V_AWA}",),
                                     (f"v_add_u32 v{self.V_AWB}, s{DA}, v{self.V_AWB}",), ()))
        a(f"s_barrier")
        self.g1_cstep(1, orient, 0, ((f"v_add_u32 v{AA+3}, s{DA}, v{AA+3}", f"s_cmp_eq_u32 s{S_RSLOT}, {self.NSLOT-1}"),
                                     (f"s_mov_b32 s{DB}, 32768", f"s_cselect_b32 s{DB}, {wrap}, s{DB}"),
                                     (f"v_mov_b32 v{self.V_AW2A}, v{self.V_AWA}", f"s_cselect_b32 s{S_RSLOT}, -1, s{S_RSLOT}"),
                                     (f"v_mov_b32 v{self.V_AW2B}, v{self.V_AWB}", f"s_add_u32 s{S_RSLOT}, s{S_RSLOT}, 1")))
        wf = ()
        if getattr(self, "warm_fill", False):
            wf = (f"s_cmp_eq_u32 s{S_CNT}, 3", f"s_cselect_b32 s{self.S_WRMD}, s{self.S_WRM}, s{S_OOB}", f"buffer_load_dword v253, v{self.V_WRM}, s[{SRD_T}:{SRD_T+3}], s{self.S_WRMD} offen")
        self.g1_cstep(2, orient, 1, ((f"v_add_u32 v{AA}, s{DB}, v{AA}",), (f"s_add_u32 s{S_CNT}, s{S_CNT}, 1",), wf, ()))
        self.g1_cstep(3, orient, 2, ((f"v_add_u32 v{AA+1}, s{DB}, v{AA+1}",), (f"s_mov_b32 s{DA}, s{DB}",), (f"s_cmp_lt_u32 s{S_CNT}, 10",), ()))
        a(f"s_cbranch_scc1 {L1}")
        a(f"s_waitcnt lgkmcnt(0)")
        a(f"v_mbcnt_lo_u32_b32 v1, -1, 0")
        a(f"v_mbcnt_hi_u32_b32 v1, -1, v1")
        T = self.V_FR
        a(f"s_lshl_b32 s{S_T0}, s{S_WN}, 8")
        a(f"s_lshl_b32 s{S_T1}, s{S_WM}, 7")
        a(f"s_add_u32 s{S_T0}, s{S_T0}, s{S_T1}")
        a(f"s_add_u32 s{S_T0}, s{S_T0}, {LDS_STATS+ST_CS}")
        a(f"v_lshlrev_b32 v{T}, 2, v1")
        a(f"v_add_u32 v{T}, s{S_T0}, v{T}")
        if not getattr(self, "nocs", False):
            a(f"s_nop 4")
            a(f"s_mov_b64 exec, 0xffff")
            a(f"ds_write_b32 v{T}, v{self.V_CSD}")
            a(f"ds_write_b32 v{T}, v{self.V_CSD+1} offset:64")
            a(f"s_mov_b64 exec, -1")
            a(f"s_waitcnt lgkmcnt(0)")
        a(f"s_barrier")

    def magic_div5(self, dst, src):
        self.a(f"v_mul_u32_u24 v{dst}, 52429, v{src}")
        self.a(f"v_lshrrev_b32 v{dst}, 18, v{dst}")
    def magic_div20(self, dst, src):
        self.a(f"v_mul_u32_u24 v{dst}, 52429, v{src}")
        self.a(f"v_lshrrev_b32 v{dst}, 20, v{dst}")

    def epi_T_common(self):
        a = self.a
        T = self.V_T; CSR = self.V_FR
        a(f"v_and_b32 v{T}, 31, v1")
        a(f"s_lshl_b32 s{S_T0}, s{S_WM}, 6")
        a(f"v_add_u32 v{T+1}, s{S_T0}, v{T}")
        a(f"v_lshlrev_b32 v{T+1}, 2, v{T+1}")
        a(f"v_add_u32 v{T+1}, {LDS_STATS}, v{T+1}")
        a(f"ds_read_b32 v{T+2}, v{T+1} offset:{ST_AA}")
        a(f"ds_read_b32 v{T+3}, v{T+1} offset:{ST_BB}")
        a(f"ds_read_b32 v{T+4}, v{T+1} offset:{ST_AA+128}")
        a(f"ds_read_b32 v{T+5}, v{T+1} offset:{ST_BB+128}")
        a(f"v_lshrrev_b32 v{T+6}, 5, v1")
        a(f"s_lshl_b32 s{S_T0}, s{S_WN}, 8")
        a(f"s_lshl_b32 s{S_T1}, s{S_WM}, 7")
        a(f"s_add_u32 s{S_T0}, s{S_T0}, s{S_T1}")
        a(f"s_add_u32 s{S_T0}, s{S_T0}, {LDS_STATS+ST_CS}")
        a(f"v_lshlrev_b32 v{T+7}, 4, v{T+6}")
        a(f"v_add_u32 v{T+7}, s{S_T0}, v{T+7}")
        a(f"v_xor_b32 v{T+1}, 128, v{T+7}")
        for g in range(4):
            a(f"ds_read_b128 v[{CSR+4*g}:{CSR+4*g+3}], v{T+7} offset:{32*g}")
        for g in range(4):
            a(f"ds_read_b128 v[{CSR+16+4*g}:{CSR+16+4*g+3}], v{T+1} offset:{32*g}")

    E_AD = 160; E_LA = 168; E_LC = 169
    S_ESC = 6; S_EO = 7
    def wmwn(self):
        a = self.a
        a(f"s_lshr_b32 s{S_WM}, s{S_W}, 1")
        a(f"s_and_b32 s{S_WN}, s{S_W}, 1")

    def p1_epi_T_pre(self):
        a = self.a
        T = self.V_T + 24
        self.wmwn()
        a(f"v_and_b32 v{T}, 31, v1")
        a(f"v_lshrrev_b32 v{T+6}, 5, v1")
        a(f"s_lshl_b32 s{S_T0}, s{S_WM}, 6")
        a(f"v_add_u32 v{T+1}, s{S_T0}, v{T}")
        a(f"v_lshlrev_b32 v{T+1}, 2, v{T+1}")
        a(f"v_add_u32 v{self.E_LA}, {LDS_STATS}, v{T+1}")
        a(f"s_lshl_b32 s{S_T0}, s{S_WN}, 8")
        a(f"s_lshl_b32 s{S_T1}, s{S_WM}, 7")
        a(f"s_add_u32 s{S_T0}, s{S_T0}, s{S_T1}")
        a(f"s_add_u32 s{S_T0}, s{S_T0}, {LDS_STATS+ST_CS}")
        a(f"v_lshlrev_b32 v{T+7}, 4, v{T+6}")
        a(f"v_add_u32 v{self.E_LC}, s{S_T0}, v{T+7}")
        a(f"v_xor_b32 v{self.E_LC+1}, 128, v{self.E_LC}")
        a(f"s_cmp_lt_u32 s{S_NT}, 5")
        a(f"s_cselect_b32 s{self.S_ESC}, {hex(f32(math.log2(math.e)/math.sqrt(20.0)))}, 1.0")
        self.csel(S_T1, 81920, 163840)
        self.csel(S_T2, 1280, 2560)
        a(f"s_cselect_b32 s{S_T3}, 0, 5")
        self.csel(S_T4, hex(OFF_Q), hex(OFF_KV))
        self.csel(S_T5, hex(SZ_Q), hex(SZ_KV))
        a(f"s_add_u32 s{SRD_O}, s{S_WS}, s{S_T4}")
        a(f"s_addc_u32 s{SRD_O+1}, s{S_WS+1}, 0")
        a(f"s_mov_b32 s{SRD_O+2}, s{S_T5}")
        a(f"s_mov_b32 s{SRD_O+3}, 0x20000")
        a(f"s_sub_u32 s{S_T3}, s{S_NT}, s{S_T3}")
        a(f"s_lshl_b32 s{S_T3}, s{S_T3}, 5")
        a(f"s_lshl_b32 s{S_T4}, s{S_WN}, 4")
        a(f"s_add_u32 s{S_T3}, s{S_T3}, s{S_T4}")
        a(f"s_lshl_b32 s{S_T4}, s{S_WM}, 3")
        for q in range(2):
            for g in range(4):
                if q == 0:
                    a(f"s_add_u32 s{S_T5}, s{S_T3}, s{S_T4}")
                else:
                    a(f"s_xor_b32 s{S_T5}, s{S_T4}, 8")
                    a(f"s_add_u32 s{S_T5}, s{S_T5}, s{S_T3}")
                a(f"s_add_u32 s{S_T5}, s{S_T5}, {2*g}")
                a(f"v_add_u32 v{T+8}, s{S_T5}, v{T+6}")
                self.magic_div5(T+9, T+8)
                a(f"v_mul_u32_u24 v{T+10}, 5, v{T+9}")
                a(f"v_sub_u32 v{T+10}, v{T+8}, v{T+10}")
                a(f"v_mul_lo_u32 v{T+9}, v{T+9}, s{S_T1}")
                a(f"v_lshlrev_b32 v{T+10}, 8, v{T+10}")
                a(f"v_add_u32 v{T+9}, v{T+9}, v{T+10}")
                a(f"v_lshl_add_u32 v{self.E_AD+4*q+g}, v{T}, 3, v{T+9}")
        a(f"s_lshl_b32 s{S_T4}, s{S_MT}, 2")
        a(f"s_lshl_b32 s{S_T5}, s{S_WM}, 1")
        a(f"s_add_u32 s{S_T4}, s{S_T4}, s{S_T5}")
        a(f"s_mul_i32 s{self.S_EO}, s{S_T4}, s{S_T2}")
        a(f"s_add_u32 s{self.S_EO+1}, s{self.S_EO}, s{S_T2}")

    def p1_epi_T(self):
        a = self.a
        T = self.V_T; A = self.V_ACC; CSR = self.V_FR
        a(f"ds_read_b32 v{T+2}, v{self.E_LA} offset:{ST_AA}")
        a(f"ds_read_b32 v{T+3}, v{self.E_LA} offset:{ST_BB}")
        a(f"ds_read_b32 v{T+4}, v{self.E_LA} offset:{ST_AA+128}")
        a(f"ds_read_b32 v{T+5}, v{self.E_LA} offset:{ST_BB+128}")
        for q in range(2):
            for g in range(4):
                a(f"ds_read_b128 v[{CSR+16*q+4*g}:{CSR+16*q+4*g+3}], v{self.E_LC+q} offset:{32*g}")
        a(f"s_waitcnt lgkmcnt(8)")
        for r in range(4):
            a(f"v_mul_f32 v{T+2+r}, s{self.S_ESC}, v{T+2+r}")
        a(f"s_waitcnt lgkmcnt(0)")
        for tt in range(2):
            ab = f"v[{T+2+2*tt}:{T+3+2*tt}]"
            for q in range(2):
                for g in range(4):
                    for i in (0, 2):
                        r = A + 16*(2*tt+q) + 4*g + i
                        c = CSR + 16*q + 4*g + i
                        a(f"v_pk_mul_f32 v[{r}:{r+1}], v[{r}:{r+1}], {ab} op_sel:[0,0] op_sel_hi:[1,0]")
                        a(f"v_pk_fma_f32 v[{r}:{r+1}], v[{c}:{c+1}], {ab}, v[{r}:{r+1}] op_sel:[0,1,0] op_sel_hi:[1,1,1]")
                    r = A + 16*(2*tt+q) + 4*g
                    a(f"v_cvt_pk_bf16_f32 v{r}, v{r}, v{r+1}")
                    a(f"v_cvt_pk_bf16_f32 v{r+1}, v{r+2}, v{r+3}")
                    a(f"buffer_store_dwordx2 v[{r}:{r+1}], v{self.E_AD+4*q+g}, s[{SRD_O}:{SRD_O+3}], s{self.S_EO+tt} offen sc1")

    def p1_epi_N_pre(self):
        a = self.a
        T = self.V_T + 24
        self.wmwn()
        a(f"v_and_b32 v{T}, 31, v1")
        a(f"v_lshrrev_b32 v{T+6}, 5, v1")
        a(f"s_lshl_b32 s{S_T0}, s{S_WM}, 8")
        a(f"v_lshlrev_b32 v{T+4}, 4, v{T+6}")
        a(f"v_add_u32 v{T+4}, s{S_T0}, v{T+4}")
        a(f"v_add_u32 v{self.E_LA}, {LDS_STATS}, v{T+4}")
        a(f"s_mov_b32 s{S_T2}, 163840")
        for q in range(2):
            a(f"s_xor_b32 s{S_T0}, s{S_WM}, {q}")
            a(f"s_lshl_b32 s{S_T0}, s{S_T0}, 5")
            a(f"s_lshl_b32 s{S_T1}, s{S_WN}, 6")
            a(f"s_add_u32 s{S_T0}, s{S_T0}, s{S_T1}")
            a(f"v_add_u32 v{T+1}, s{S_T0}, v{T}")
            a(f"v_lshlrev_b32 v{T+2}, 2, v{T+1}")
            a(f"v_add_u32 v{self.E_LC+q}, {LDS_STATS+ST_CS}, v{T+2}")
            a(f"s_sub_u32 s{S_T1}, s{S_NT}, 10")
            a(f"s_lshl_b32 s{S_T1}, s{S_T1}, 7")
            a(f"v_add_u32 v{T+7}, s{S_T1}, v{T+1}")
            self.magic_div20(T+8, T+7)
            a(f"v_mul_u32_u24 v{T+9}, 20, v{T+8}")
            a(f"v_sub_u32 v{T+9}, v{T+7}, v{T+9}")
            a(f"v_mul_lo_u32 v{T+8}, v{T+8}, s{S_T2}")
            a(f"v_lshlrev_b32 v{T+9}, 4, v{T+9}")
            a(f"v_add_u32 v{T+8}, v{T+8}, v{T+9}")
            a(f"v_mul_u32_u24 v{T+9}, 320, v{T+6}")
            a(f"v_add_u32 v{T+8}, v{T+8}, v{T+9}")
            a(f"v_add_u32 v{self.E_AD+q}, 1280, v{T+8}")
        self.srd(SRD_O, S_WS, OFF_KV, SZ_KV)
        a(f"s_lshl_b32 s{S_T4}, s{S_MT}, 2")
        a(f"s_lshl_b32 s{S_T5}, s{S_WM}, 1")
        a(f"s_add_u32 s{S_T4}, s{S_T4}, s{S_T5}")
        a(f"s_mul_i32 s{self.S_EO}, s{S_T4}, 2560")
        a(f"s_add_u32 s{self.S_EO+1}, s{self.S_EO}, 2560")

    def p1_epi_N(self):
        a = self.a
        T = self.V_T; A = self.V_ACC
        ABs = (self.V_FR, self.V_FR + 32)
        a(f"ds_read_b32 v{T+10}, v{self.E_LC}")
        a(f"ds_read_b32 v{T+11}, v{self.E_LC+1}")
        for tt in range(2):
            AB = ABs[tt]; BB = AB + 16
            for g in range(4):
                a(f"ds_read_b128 v[{AB+4*g}:{AB+4*g+3}], v{self.E_LA} offset:{ST_AA + 128*tt + 32*g}")
                a(f"ds_read_b128 v[{BB+4*g}:{BB+4*g+3}], v{self.E_LA} offset:{ST_BB + 128*tt + 32*g}")
        cs = f"v[{T+10}:{T+11}]"
        for tt in range(2):
            AB = ABs[tt]; BB = AB + 16
            a(f"s_waitcnt lgkmcnt({8 if tt == 0 else 0})")
            for q in range(2):
                for r in range(0, 16, 2):
                    R = A + 16*(2*tt+q) + r
                    a(f"v_pk_mul_f32 v[{R}:{R+1}], v[{R}:{R+1}], v[{AB+r}:{AB+r+1}]")
                    a(f"v_pk_fma_f32 v[{R}:{R+1}], v[{BB+r}:{BB+r+1}], {cs}, v[{R}:{R+1}] op_sel:[0,{q},0] op_sel_hi:[1,{q},1]")
                for st in range(2):
                    R = A + 16*(2*tt+q) + 8*st
                    for z in range(4):
                        a(f"v_cvt_pk_bf16_f32 v{R+z}, v{R+2*z}, v{R+2*z+1}")
                    a(f"buffer_store_dwordx4 v[{R}:{R+3}], v{self.E_AD+q}, s[{SRD_O}:{SRD_O+3}], s{self.S_EO+tt} offen offset:{640*st} sc1")

    def relayout_unit(self):
        pass

    def rl_unit(self):
        a = self.a
        a(f"s_lshl_b32 s{S_T0}, s2, 2")
        a(f"s_and_b32 s{S_T5}, s{S_W}, 3")
        a(f"s_add_u32 s{S_T0}, s{S_T0}, s{S_T5}")

    def rl_src(self, srd):
        a = self.a
        self.rl_unit()
        a(f"s_cmp_lt_u32 s{S_T0}, 540")
        a(f"s_cselect_b32 s{S_T1}, 0, 540")
        a(f"s_cselect_b32 s{srd}, s{S_W2}, s{S_WO}")
        a(f"s_cselect_b32 s{srd+1}, s{S_W2+1}, s{S_WO+1}")
        self.csel(srd+2, 1728*1280, 640*1280)
        a(f"s_mov_b32 s{srd+3}, 0x20000")
        a(f"s_sub_u32 s{S_T1}, s{S_T0}, s{S_T1}")
        a(f"s_mul_hi_u32 s{S_T2}, s{S_T1}, {hex((2**32+9)//10)}")
        a(f"s_mul_i32 s{S_T3}, s{S_T2}, 10")
        a(f"s_sub_u32 s{S_T3}, s{S_T1}, s{S_T3}")
        a(f"s_mul_i32 s{S_T2}, s{S_T2}, {32*1280}")
        a(f"s_lshl_b32 s{S_T3}, s{S_T3}, 7")
        a(f"s_add_u32 s{S_T2}, s{S_T2}, s{S_T3}")
        a(f"s_cmp_ge_u32 s{S_T0}, 740")
        a(f"s_cselect_b32 s{S_T2}, 0x70000000, s{S_T2}")

    def relayout_load(self):
        a = self.a
        T = self.V_T
        self.rl_src(SRD_T)
        a(f"v_lshrrev_b32 v{T}, 3, v1")
        a(f"v_mul_u32_u24 v{T}, 1280, v{T}")
        a(f"v_and_b32 v{T+1}, 7, v1")
        a(f"v_lshl_add_u32 v{T}, v{T+1}, 4, v{T}")
        a(f"s_lshl_b32 s{S_T3}, s{S_T5}, 12")
        a(f"s_add_u32 m0, s{S_T3}, {LDS_RL}")
        for jj in range(4):
            a(f"s_nop 0")
            a(f"buffer_load_dwordx4 v{T}, s[{SRD_T}:{SRD_T+3}], s{S_T2} offen lds")
            if jj < 3:
                a(f"s_add_u32 m0, m0, 1024")
                a(f"s_add_u32 s{S_T2}, s{S_T2}, {8*1280}")

    def relayout_warm_setup(self):
        a = self.a
        V = self.V_WRM
        self.rl_src(SRD_T)
        a(f"s_mov_b32 s{self.S_WRM}, s{S_T2}")
        a(f"s_mov_b32 s{S_OOB}, 0x70000000")
        a(f"v_mul_u32_u24 v{V}, 1280, v1")
        a(f"v_cmp_gt_u32 vcc, 32, v1")
        a(f"v_mov_b32 v{V-1}, 0x7f000000")
        a(f"s_nop 0")
        a(f"v_cndmask_b32 v{V}, v{V-1}, v{V}, vcc")

    def relayout_store(self):
        a = self.a
        T = self.V_T
        Lskip = "L_rl_skip2"
        self.rl_unit()
        a(f"s_cmp_ge_u32 s{S_T0}, 740")
        a(f"s_cbranch_scc1 {Lskip}")
        a(f"s_cmp_lt_u32 s{S_T0}, 540")
        a(f"s_cselect_b32 s{S_T1}, 0, 540")
        self.csel(S_T4, hex(OFF_W2P), hex(OFF_WOP))
        self.csel(S_T3, hex(SZ_W2P), hex(SZ_WOP))
        a(f"s_mov_b32 s{SRD_T+2}, s{S_T3}")
        a(f"s_sub_u32 s{S_T1}, s{S_T0}, s{S_T1}")
        a(f"s_add_u32 s{SRD_T}, s{S_WS}, s{S_T4}")
        a(f"s_addc_u32 s{SRD_T+1}, s{S_WS+1}, 0")
        a(f"s_mov_b32 s{SRD_T+3}, 0x20000")
        a(f"s_mul_hi_u32 s{S_T2}, s{S_T1}, {hex((2**32+9)//10)}")
        a(f"s_mul_i32 s{S_T3}, s{S_T2}, 10")
        a(f"s_sub_u32 s{S_T3}, s{S_T1}, s{S_T3}")
        a(f"s_mul_i32 s{S_T2}, s{S_T2}, 40")
        a(f"s_lshl_b32 s{S_T3}, s{S_T3}, 2")
        a(f"s_add_u32 s{S_T2}, s{S_T2}, s{S_T3}")
        a(f"s_lshl_b32 s{S_T2}, s{S_T2}, 10")
        a(f"v_lshrrev_b32 v{T}, 4, v1")
        a(f"v_lshlrev_b32 v{T}, 3, v{T}")
        a(f"v_bfe_u32 v{T+1}, v1, 2, 2")
        a(f"v_add_u32 v{T}, v{T}, v{T+1}")
        a(f"v_lshlrev_b32 v{T}, 7, v{T}")
        a(f"v_and_b32 v{T+1}, 3, v1")
        a(f"v_lshl_add_u32 v{T}, v{T+1}, 3, v{T}")
        a(f"s_lshl_b32 s{S_T3}, s{S_T5}, 12")
        a(f"s_add_u32 s{S_T3}, s{S_T3}, {LDS_RL}")
        a(f"v_add_u32 v{T}, s{S_T3}, v{T}")
        a(f"v_lshlrev_b32 v{T+1}, 4, v1")
        O = T + 4
        for tq in range(4):
            a(f"ds_read_b64_tr_b16 v[{O+4*tq}:{O+4*tq+1}], v{T} offset:{32*tq}")
            a(f"ds_read_b64_tr_b16 v[{O+4*tq+2}:{O+4*tq+3}], v{T} offset:{32*tq+512}")
        a(f"s_waitcnt lgkmcnt(0)")
        for tq in range(4):
            a(f"buffer_store_dwordx4 v[{O+4*tq}:{O+4*tq+3}], v{T+1}, s[{SRD_T}:{SRD_T+3}], s{S_T2} offen offset:{1024*tq} sc1")
        a.put(Lskip)

    def p1(self):
        a = self.a
        a(f"s_and_b32 s{S_T0}, s{S_GX}, 3")
        a(f"s_lshl_b32 s{S_T0}, s{S_T0}, 2")
        a(f"s_and_b32 s{S_T1}, s{S_GI}, 3")
        a(f"s_add_u32 s{S_MT}, s{S_T0}, s{S_T1}")
        a(f"s_lshr_b32 s{S_T0}, s{S_GX}, 2")
        a(f"s_lshl_b32 s{S_T0}, s{S_T0}, 3")
        a(f"s_lshr_b32 s{S_T2}, s{S_GI}, 2")
        a(f"s_add_u32 s{S_NT}, s{S_T0}, s{S_T2}")
        a(f"s_lshl_b32 s{S_T1}, s{S_T1}, 1")
        a(f"s_add_u32 s{S_RLW}, s{S_T1}, s{S_T2}")
        a(f"s_and_b32 s{S_RLW}, s{S_RLW}, 7")
        a(f"s_mov_b32 s{S_KK}, 0")
        self.aux_A = ""
        self.st1 = 1
        a(f"s_cmp_lt_u32 s{S_W}, 4")
        a(f"s_cbranch_scc1 L_p1_compute")
        self.g1_setup_loader(3840)
        a(f"s_waitcnt lgkmcnt(0)")
        if "p1s" in self.opt: self.stamp(15)
        self.srd(SRD_A, S_X, 0, 2048*1280)
        self.srd(SRD_W, S_WQKV, 0, 640*3840)
        a(f"s_load_dword s{S_TAG}, s[{S_WS}:{S_WS+1}], {OFF_EPOCH}")
        if "wall" in self.opt: a(f"s_barrier")
        a(f"s_cmp_ge_u32 s{S_NT}, 15")
        a(f"s_cbranch_scc1 L_p1_lnull")
        self.g1_dma_stage(3840)
        if "p1s" in self.opt: self.stamp(16)
        self.g1_dma_stage(3840)
        if "norot" not in self.opt: a(f"s_add_u32 s{S_KK}, s{S_RLW}, 2")
        self.srd(SRD_F, S_WS, 0, 0x100000)
        if "p1s" in self.opt: self.stamp(17)
        self.g1_loader(3840, "p1", "gran")
        a(f"s_branch L_p1_lj")
        a.put("L_p1_lnull")
        self.srd(SRD_F, S_WS, 0, 0x100000)
        self.tag_ready()
        self.relayout_load()
        a.put("L_p1_lj")
        a(f"s_waitcnt vmcnt(0)")
        self.relayout_store()
        a(f"s_cmp_ge_u32 s{S_NT}, 15")
        a(f"s_cbranch_scc1 L_p1_nulljob")
        a(f"s_branch L_p1_done")
        a.put("L_p1_compute")
        a(f"s_waitcnt lgkmcnt(0)")
        a(f"s_load_dword s{S_TAG}, s[{S_WS}:{S_WS+1}], {OFF_EPOCH}")
        self.srd(SRD_F, S_WS, 0, 0x100000)
        if "wall" in self.opt:
            self.p1_l2warm_all()
            a(f"s_barrier")
        if "tlbw" in self.opt: self.tlb_warm()
        D = self.xstats_publish()
        self.relayout_warm_setup()
        self.xstats_finish(D)
        a(f"s_cmp_ge_u32 s{S_NT}, 15")
        a(f"s_cbranch_scc1 L_p1_nulljob")
        a(f"s_cmp_ge_u32 s{S_NT}, 10")
        a(f"s_cbranch_scc1 L_p1_N")
        self.warm_fill = True
        self.p1_epi_T_pre()
        self.g1_compute("T", "p1T")
        self.stamp(2)
        self.p1_epi_T()
        a(f"s_branch L_p1_done")
        a.put("L_p1_N")
        self.p1_epi_N_pre()
        self.g1_compute("N", "p1N")
        self.warm_fill = False
        self.stamp(2)
        self.p1_epi_N()
        a(f"s_branch L_p1_done")
        a.put("L_p1_nulljob")
        self.null_job()
        a.put("L_p1_done")
        self.stamp(3)

    def poll(self, addr_regs, masks, tagname):
        a = self.a
        T = self.V_S - 8
        L = f"L_{tagname}_poll"; Lo = f"L_{tagname}_pollok"
        a(f"s_mov_b32 s{S_T0}, 0")
        a.put(L)
        for k, (ar, mk) in enumerate(zip(addr_regs, masks)):
            self.set_exec(mk)
            a(f"buffer_load_dword v{T+20+k}, v{ar}, s[{SRD_F}:{SRD_F+3}], 0 offen sc1")
        a(f"s_waitcnt vmcnt(0)")
        a(f"s_mov_b64 s[{S_SAVE}:{S_SAVE+1}], 0")
        for k, (ar, mk) in enumerate(zip(addr_regs, masks)):
            self.set_exec(mk)
            a(f"v_cmp_ne_u32 vcc, s{S_TAG}, v{T+20+k}")
            a(f"s_or_b64 s[{S_SAVE}:{S_SAVE+1}], s[{S_SAVE}:{S_SAVE+1}], vcc")
        a(f"s_mov_b64 exec, -1")
        a(f"s_cmp_eq_u64 s[{S_SAVE}:{S_SAVE+1}], 0")
        a(f"s_cbranch_scc1 {Lo}")
        a(f"s_add_u32 s{S_T0}, s{S_T0}, 1")
        a(f"s_cmp_lt_u32 s{S_T0}, 0x40000")
        a(f"s_cbranch_scc1 {L}")
        a.put(Lo)

    def p1_signal(self):
        a = self.a
        T = self.V_S
        Ls = "L_p1sig_skip"
        a(f"s_cmp_lg_u32 s{S_W}, {self.SIGW}")
        a(f"s_cbranch_scc1 {Ls}p")
        a(f"v_lshrrev_b32 v{T}, 3, v1")
        a(f"v_and_b32 v{T+1}, 7, v1")
        Ln = "L_p1sig_null"; Lj = "L_p1sig_join"
        a(f"s_cmp_eq_u32 s{S_NT}, 15")
        a(f"s_cbranch_scc1 {Ln}")
        a(f"s_cmp_ge_u32 s{S_NT}, 10")
        a(f"s_cselect_b32 s{S_T0}, 10, 5")
        a(f"s_cmp_lt_u32 s{S_NT}, 5")
        a(f"s_cselect_b32 s{S_T0}, 0, s{S_T0}")
        a(f"s_sub_u32 s{S_T0}, s{S_NT}, s{S_T0}")
        a(f"s_lshl_b32 s{S_T0}, s{S_T0}, 7")
        a(f"s_mul_i32 s{S_T1}, s{S_T0}, 52429")
        a(f"s_lshr_b32 s{S_T1}, s{S_T1}, 20")
        a(f"s_add_u32 s{S_T2}, s{S_T0}, 127")
        a(f"s_mul_i32 s{S_T2}, s{S_T2}, 52429")
        a(f"s_lshr_b32 s{S_T2}, s{S_T2}, 20")
        a(f"s_min_u32 s{S_T2}, s{S_T2}, 31")
        a(f"v_add_u32 v{T+2}, s{S_T1}, v{T}")
        a(f"v_cmp_ge_u32 vcc, s{S_T2}, v{T+2}")
        a(f"s_mov_b64 s[{S_SAVE}:{S_SAVE+1}], vcc")
        a(f"s_cmp_lt_u32 s{S_NT}, 5")
        a(f"s_cbranch_scc0 {Lj}")
        a(f"s_lshr_b32 s{S_T3}, s{S_MT}, 1")
        a(f"v_cmp_eq_u32 vcc, s{S_T3}, v{T+1}")
        a(f"s_and_b64 s[{S_SAVE}:{S_SAVE+1}], s[{S_SAVE}:{S_SAVE+1}], vcc")
        a(f"s_branch {Lj}")
        a.put(Ln)
        a(f"v_lshlrev_b32 v{T+2}, 4, v{T}")
        a(f"v_add_u32 v{T+2}, s{S_MT}, v{T+2}")
        a(f"v_cmp_gt_u32 vcc, 2, v{T}")
        a(f"s_mov_b64 s[{S_SAVE}:{S_SAVE+1}], vcc")
        a.put(Lj)
        a(f"v_and_b32 v{T+4}, 3, v{T+2}")
        a(f"v_lshl_add_u32 v{T+4}, v{T+1}, 2, v{T+4}")
        a(f"v_lshrrev_b32 v{T+2}, 2, v{T+2}")
        a(f"v_lshl_add_u32 v{T+2}, v{T+4}, 3, v{T+2}")
        a(f"v_lshlrev_b32 v{T+2}, 10, v{T+2}")
        a(f"s_lshl_b32 s{S_T0}, s2, 2")
        a(f"s_add_u32 s{S_T0}, s{S_T0}, {OFF_MB1}")
        a(f"v_add_u32 v{T+2}, s{S_T0}, v{T+2}")
        a(f"v_mov_b32 v{T+3}, s{S_TAG}")
        a(f"s_lshl_b32 s{S_T0}, s2, 2")
        a(f"s_add_u32 s{S_T0}, s{S_T0}, {OFF_ALL}")
        a(f"v_mov_b32 v{T+5}, s{S_T0}")
        a(f"s_add_u32 s{S_T1}, s{S_TAG}, s{S_XCC}")
        a(f"v_mov_b32 v{T+6}, s{S_T1}")
        a.put(Ls + "p")
        a(f"s_waitcnt vmcnt(0) lgkmcnt(0)")
        self.stamp(4)
        a(f"s_barrier")
        a(f"s_cmp_lg_u32 s{S_W}, {self.SIGW}")
        a(f"s_cbranch_scc1 {Ls}")
        a(f"s_mov_b64 exec, s[{S_SAVE}:{S_SAVE+1}]")
        a(f"buffer_store_dword v{T+3}, v{T+2}, s[{SRD_F}:{SRD_F+3}], 0 offen sc1")
        a(f"s_mov_b64 exec, 1")
        a(f"buffer_store_dword v{T+6}, v{T+5}, s[{SRD_F}:{SRD_F+3}], 0 offen sc1")
        a(f"s_mov_b64 exec, -1")
        a.put(Ls)

    def finish_tag_once(self):
        a = self.a
        a(f"s_mul_i32 s{S_TAG}, s{S_TAG}, 0x9E3779B1")
        a(f"s_add_u32 s{S_TAG}, s{S_TAG}, 0x7F4A7C15")

    def p2_wait_prep(self):
        a = self.a
        T = self.V_S + 16
        Ls = "L_p2w_skip"
        a(f"s_cmp_lg_u32 s{S_W}, {self.POLLW}")
        a(f"s_cbranch_scc1 {Ls}")
        a(f"s_mul_i32 s{S_T1}, s{S_HEAD}, 20")
        a(f"v_bfe_u32 v{T}, v1, 4, 1")
        a(f"v_mul_u32_u24 v{T}, 19, v{T}")
        a(f"v_add_u32 v{T}, s{S_T1}, v{T}")
        a(f"v_lshrrev_b32 v{T}, 7, v{T}")
        a(f"v_lshrrev_b32 v{T+1}, 5, v1")
        a(f"v_mul_u32_u24 v{T+1}, 5, v{T+1}")
        a(f"v_add_u32 v{T+2}, v{T}, v{T+1}")
        a(f"v_add_u32 v{T+2}, 5, v{T+2}")
        a(f"v_and_b32 v{T+3}, 15, v1")
        self.vprod(T+4, T+3, T+2, T+10)
        a(f"v_bfe_u32 v{T}, v1, 1, 1")
        a(f"v_mul_u32_u24 v{T}, 19, v{T}")
        a(f"v_add_u32 v{T}, s{S_T1}, v{T}")
        a(f"v_lshrrev_b32 v{T+2}, 7, v{T}")
        a(f"v_and_b32 v{T+3}, 1, v1")
        a(f"s_lshl_b32 s{S_T2}, s{S_QB}, 1")
        a(f"v_add_u32 v{T+3}, s{S_T2}, v{T+3}")
        a(f"v_cmp_eq_u32 vcc, 4, v1")
        a(f"s_and_b32 s{S_T2}, s{S_HEAD}, 15")
        a(f"v_mov_b32 v{T+6}, s{S_T2}")
        a(f"v_mov_b32 v{T+7}, 15")
        a(f"v_cndmask_b32 v{T+3}, v{T+3}, v{T+6}, vcc")
        a(f"v_cndmask_b32 v{T+2}, v{T+2}, v{T+7}, vcc")
        self.vprod(T+5, T+3, T+2, T+10)
        a(f"s_lshl_b32 s{S_T2}, s2, 10")
        a(f"s_add_u32 s{S_T2}, s{S_T2}, {OFF_MB1}")
        for r in (T+4, T+5):
            a(f"v_lshlrev_b32 v{r}, 2, v{r}")
            a(f"v_add_u32 v{r}, s{S_T2}, v{r}")
        a.put(Ls)

    def p2_wait(self):
        a = self.a
        T = self.V_S + 16
        Ls = "L_p2w_skip2"
        a(f"s_cmp_lg_u32 s{S_W}, {self.POLLW}")
        a(f"s_cbranch_scc1 {Ls}")
        self.V_S += 16
        self.poll([T+4, T+5], ["-1", "0x1f"], "p2w")
        self.V_S -= 16
        a.put(Ls)
        a(f"s_barrier")

    def vprod(self, dst, mt, nt, tmp):
        a = self.a
        a(f"v_and_b32 v{dst}, 3, v{mt}")
        a(f"v_and_b32 v{tmp}, 7, v{nt}")
        a(f"v_lshl_add_u32 v{dst}, v{tmp}, 2, v{dst}")
        a(f"v_lshlrev_b32 v{dst}, 3, v{dst}")
        a(f"v_lshrrev_b32 v{tmp}, 2, v{mt}")
        a(f"v_add_u32 v{dst}, v{dst}, v{tmp}")
        a(f"v_lshrrev_b32 v{tmp}, 3, v{nt}")
        a(f"v_lshl_add_u32 v{dst}, v{tmp}, 2, v{dst}")

    def group_barrier(self, phase, tagname, tgt=None, slot=None, hook=None, local=False):
        a = self.a
        T = self.V_S
        gs = (tagname in self.opt)
        Ls = f"L_{tagname}_gskip"
        tgt = S_GX if tgt is None else tgt
        slot = S_GI if slot is None else slot
        a(f"v_lshlrev_b32 v{T}, 3, v1")
        a(f"v_add_u32 v{T}, s{tgt}, v{T}")
        a(f"v_lshlrev_b32 v{T}, 7, v{T}")
        a(f"s_lshl_b32 s{S_T1}, s{slot}, 2")
        a(f"s_add_u32 s{S_T1}, s{S_T1}, {OFF_GB + phase*256*128}")
        a(f"v_add_u32 v{T}, s{S_T1}, v{T}")
        a(f"v_mov_b32 v{T+1}, s{S_TAG}")
        a(f"s_waitcnt vmcnt(0) lgkmcnt(0)")
        if gs: self.stamp(15)
        a(f"s_barrier")
        if gs: self.stamp(16)
        a(f"s_cmp_lg_u32 s{S_W}, {self.POLLW}")
        a(f"s_cbranch_scc1 {Ls}0")
        self.set_exec(0xffffffff)
        if local:
            a(f"s_cmp_eq_u32 s{S_FAST}, 1")
            a(f"s_cbranch_scc1 {Ls}f")
            a(f"buffer_store_dword v{T+1}, v{T}, s[{SRD_F}:{SRD_F+3}], 0 offen sc1")
            a(f"s_branch {Ls}g")
            a.put(Ls + "f")
            a(f"buffer_store_dword v{T+1}, v{T}, s[{SRD_F}:{SRD_F+3}], 0 offen")
            a.put(Ls + "g")
        else:
            a(f"buffer_store_dword v{T+1}, v{T}, s[{SRD_F}:{SRD_F+3}], 0 offen sc1")
        a(f"s_mov_b64 exec, -1")
        a.put(Ls + "0")
        if hook: hook()
        if gs: self.stamp(17)
        a(f"s_cmp_lg_u32 s{S_W}, {self.POLLW}")
        a(f"s_cbranch_scc1 {Ls}")
        a(f"s_lshl_b32 s{S_T0}, s2, 7")
        a(f"s_add_u32 s{S_T0}, s{S_T0}, {OFF_GB + phase*256*128}")
        a(f"v_lshlrev_b32 v{T+2}, 2, v1")
        a(f"v_add_u32 v{T+2}, s{S_T0}, v{T+2}")
        self.poll([T+2], ["0xffffffff"], tagname)
        a.put(Ls)
        a(f"s_barrier")

    A_QA = 4; A_QB = 12
    A_K = 20
    A_V1 = 36; A_V2 = 40
    A_SA = 44; A_SB = 60; A_P = 76; A_OA = 84; A_OB = 100; A_AK = 116; A_AV = 117; A_DV = 118; A_ALLA = 119; A_T = 120; A_ALL = 132
    S_VMASK = 92
    S_NEXTB = 94; S_DSO = 95; S_LOW = 65; S_NEXTM = 69
    p2_nu = 4
    low_tiles = 1
    S_D = [6, 7, 8, 9, 16, 17]
    S_WOI = [51, 53]
    S_WOBK = 62
    S_WOM = 68
    low_pos = (3, 10, 18, 29)
    warm_slots = {'dst': 48, 'w1': 50}
    def p2_unrolled(self):
        a = self.a
        D = self.S_D
        def kv():
            a(f"s_mov_b32 m0, s{self.S_DSO}")
            a(f"s_nop 0")
            a(f"buffer_load_dwordx4 v{self.A_DV}, s[{SRD_A}:{SRD_A+3}], s{self.S_DSO} offen sc1 lds")
            a(f"s_add_u32 s{self.S_DSO}, s{self.S_DSO}, 4096")
        def w2(g):
            R = 144 + 4*g
            a(f"buffer_load_dwordx4 v[{R}:{R+3}], v{self.A_ALLA}, s[{SRD_W}:{SRD_W+3}], s{S_SW} offen {self.ld_aux}")
            a(f"s_add_u32 s{S_SW}, s{S_SW}, s{D[g % 6]}")
        def wo(idx):
            a(f"s_mov_b32 m0, s{self.S_WOB}")
            a(f"s_add_u32 s{self.S_WOB}, s{self.S_WOB}, s{self.S_WOI[1 if idx == 4 else 0]}")
            if idx >= 10:
                a(f"s_cmp_lt_u32 s{S_W}, 4")
                a(f"s_cbranch_scc1 L_wo_sk{idx}")
            a(f"buffer_load_dwordx4 v{self.A_DV}, s[{SRD_T}:{SRD_T+3}], s{self.S_WOS} offen {self.ld_aux} lds")
            if idx >= 10: a.put(f"L_wo_sk{idx}")
            a(f"s_add_u32 s{self.S_WOS}, s{self.S_WOS}, s{D[idx % 6]}")
        slot_ops = {}
        def put(x, k_, arg=None): slot_ops.setdefault(x, []).append((k_, arg))
        for i in range(5): put(8 + i, "kv")
        for i in range(6): put(24 + i, "kv")
        free = [x for x in range(13, 40) if x not in range(24, 30)]
        dbl = set(free[1::3][:7])
        g = 0
        for x in free:
            put(x, "w2", g); g += 1
            if x in dbl:
                put(x, "w2", g); g += 1
        assert g == 28, g
        for i in range(15): put(40 + i//2, "wo", i)
        for k_, x in self.warm_slots.items(): put(x, k_)
        def cnt(lo, hi):
            return sum(1 for x in range(lo, hi) for k_, _ in slot_ops.get(x, []) if k_ in ("kv", "w2", "wo"))
        lowpos = set(self.low_pos)
        noprio = "noprio" in self.opt
        if not noprio:
            a(f"s_setprio 1")
            self.p2_setprio(2, "init")
        a(f"s_nop 7"); a(f"s_nop 3")
        base = 0
        for t in range(32):
            if t == 16:
                a(f"v_add_u32 v{self.A_AK}, {16*2560}, v{self.A_AK}")
                a(f"v_add_u32 v{self.A_AV}, {16*2560}, v{self.A_AV}")
                base = 16
            if t in (4, 12, 20):
                vm = 0 if t == 4 else (cnt(13, 24) if t == 12 else cnt(30, 40))
                a(f"s_waitcnt vmcnt({vm})")
                if t == 4:
                    self.p2_check_all()
                    self.g2_wsetup(5, SRD_W, S_SW, self.A_ALLA)
                    self.p2_w2_consts()
                a(f"s_barrier")
                if not noprio: self.p2_setprio(2, f"h{t}")
                if t == 20: self.wo_setup2()
            if t in lowpos and not noprio: self.p2_setprio(0, f"l{t}")
            for st in (0, 1):
                self.p2_sub(st, t - base)
                for k_, arg in slot_ops.get(2*t + st, []):
                    self.evtag = "u"
                    if k_ == "kv": kv()
                    elif k_ == "w2":
                        if "evnow2" not in self.opt: w2(arg)
                    elif k_ == "wo":
                        if "evnowo" not in self.opt: wo(arg)
                    elif k_ == "dst":
                        if "nodstw" not in self.opt: self.dst_l2warm()
                    elif k_ == "w1":
                        if "now1w" not in self.opt: self.w1_l2warm()
                    elif k_ == "wp":
                        if "nowpw" not in self.opt: self.wp_l2warm()

    def p2_w2_consts(self):
        a = self.a
        D = self.S_D
        incB = [1024, 162816]*3
        incA = [161792, 1024, 1024]*2
        a(f"s_cmp_lt_u32 s{S_W}, 4")
        for k in range(6):
            x, y = incB[k], incA[k]
            if x == y: a(f"s_mov_b32 s{D[k]}, {x}")
            else: self.csel(D[k], x, y)
        a(f"s_cselect_b32 s{S_T0}, 0, {5*163840 - 161792}")
        a(f"s_add_u32 s{S_SW}, s{S_SW}, s{S_T0}")

    def wo_setup2(self):
        a = self.a
        D = self.S_D
        self.g2_wsetup(3, SRD_T, self.S_WOS, self.A_DV)
        self.wo_lds_base(self.S_WOB)
        a(f"s_mov_b32 s{self.S_WOBK}, s{self.S_WOB}")
        a(f"s_cmp_eq_u32 s{S_W}, 3")
        a(f"s_cselect_b32 s{self.S_WOB2}, {128000-5120}, s{self.S_WOB}")
        a(f"s_mov_b32 s{self.S_WOI[0]}, 1024")
        a(f"s_cselect_b32 s{self.S_WOI[1]}, {128000 - (46080 + 4096)}, s{self.S_WOI[0]}")
        incB = [1024, 162816]*3
        incA = [1024, 1024, 161792]*2
        a(f"s_cmp_lt_u32 s{S_W}, 4")
        for k in range(6):
            x, y = incB[k], incA[k]
            if x == y: a(f"s_mov_b32 s{D[k]}, {x}")
            else: self.csel(D[k], x, y)


    def p2_kreads(self, kb, toff):
        a = self.a
        K = self.A_K + 8*kb
        a(f"ds_read_b64 v[{K}:{K+1}], v{self.A_AK} offset:{toff}")
        a(f"ds_read_b64 v[{K+2}:{K+3}], v{self.A_AK} offset:{toff+256}")
        a(f"ds_read_b64 v[{K+4}:{K+5}], v{self.A_AK} offset:{toff+1024}")
    def p2_vread(self, which, toff):
        a = self.a
        R = self.A_V1 if which == 0 else self.A_V2
        a(f"s_mov_b64 exec, s[{self.S_VMASK}:{self.S_VMASK+1}]")
        a(f"ds_read_b128 v[{R}:{R+3}], v{self.A_AV} offset:{toff+640*which}")
        a(f"s_mov_b64 exec, -1")
    def p2_smfma(self, which, S, kb, Q):
        a = self.a
        K = self.A_K + 8*kb
        if which == 0:
            a(f"v_mfma_f32_32x32x16_bf16 v[{S}:{S+15}], v[{K}:{K+3}], v[{Q}:{Q+3}], 0")
        elif "k8" in self.opt:
            a(f"v_mfma_f32_32x32x8bf16_1k v[{S}:{S+15}], v[{K+4}:{K+5}], v[{Q+4}:{Q+5}], v[{S}:{S+15}]")
        else:
            a(f"v_mfma_f32_32x32x16_bf16 v[{S}:{S+15}], v[{K+4}:{K+7}], v[{Q+4}:{Q+7}], v[{S}:{S+15}]")

    A_V2B = 128
    def p2_sub(self, stream, u):
        a = self.a
        P = self.A_P
        p = u & 1
        V2 = (self.A_V2, self.A_V2B)
        Sc, Sn = (self.A_SA, self.A_SB) if stream == 0 else (self.A_SB, self.A_SA)
        Oc, Op = (self.A_OA, self.A_OB) if stream == 0 else (self.A_OB, self.A_OA)
        Qn = self.A_QB if stream == 0 else self.A_QA
        kb = p if stream == 0 else 1 - p
        v2 = V2[1-p] if stream == 0 else V2[p]
        ex = lambda i: a(f"v_exp_f32 v{Sc+i}, v{Sc+i}")
        cv = lambda k: a(f"v_cvt_pk_bf16_f32 v{P+k}, v{Sc+2*k}, v{Sc+2*k+1}")
        cvp = lambda k: a(f"v_cvt_pk_bf16_f32 v{P+k}, v{Sn+2*k}, v{Sn+2*k+1}")
        var = getattr(self, "sub_variant", None) or "v1"
        tn = (u+1)*2560
        def rdV():
            a(f"s_mov_b64 exec, s[{self.S_VMASK}:{self.S_VMASK+1}]")
            a(f"ds_read_b128 v[{self.A_V1}:{self.A_V1+3}], v{self.A_AV} offset:{tn}")
            R = V2[1-p]
            a(f"ds_read_b128 v[{R}:{R+3}], v{self.A_AV} offset:{tn+640}")
            a(f"s_mov_b64 exec, -1")
        def rdK(i):
            K = self.A_K + 8*p; toff = (u+2)*2560
            if i == 0: a(f"ds_read_b64 v[{K}:{K+1}], v{self.A_AK} offset:{toff}")
            if i == 1: a(f"ds_read_b64 v[{K+2}:{K+3}], v{self.A_AK} offset:{toff+256}")
            if i == 2: a(f"ds_read_b64 v[{K+4}:{K+5}], v{self.A_AK} offset:{toff+1024}")
        m1 = lambda: self.p2_smfma(0, Sn, kb, Qn)
        m2 = lambda: self.p2_smfma(1, Sn, kb, Qn)
        m4 = lambda: a(f"v_mfma_f32_32x32x16_bf16 v[{Op}:{Op+15}], v[{v2}:{v2+3}], v[{P+4}:{P+7}], v[{Op}:{Op+15}]")
        m3 = lambda: a(f"v_mfma_f32_32x32x16_bf16 v[{Oc}:{Oc+15}], v[{self.A_V1}:{self.A_V1+3}], v[{P}:{P+3}], v[{Oc}:{Oc+15}]")
        wt = lambda: a(f"s_waitcnt lgkmcnt(0)")
        if var == "pure":
            ex(0); cvp(6); ex(1); ex(2); cvp(7); ex(3); m1(); ex(4); cv(0); ex(5); ex(6); cv(1); ex(7); m2()
            ex(8); cv(2); ex(9); ex(10); cv(3); ex(11); m4(); ex(12); cv(4); ex(13); ex(14); cv(5); ex(15); m3()
        elif var == "v0":
            ex(0); cvp(6); ex(1); ex(2); cvp(7); ex(3); m1(); ex(4); cv(0); ex(5); ex(6); cv(1); ex(7); m2()
            ex(8); cv(2); ex(9); ex(10); cv(3); ex(11); m4(); ex(12); cv(4); ex(13); ex(14); cv(5); ex(15)
            if stream == 0: wt()
            m3()
            if stream == 1:
                rdV(); rdK(0); rdK(1); rdK(2)
        elif var == "v1":
            ex(0); cvp(6); ex(1); ex(2); cvp(7); ex(3); m1()
            if stream == 1: rdK(0)
            ex(4); cv(0); ex(5); ex(6); cv(1); ex(7); m2()
            if stream == 1: rdK(1)
            ex(8); cv(2); ex(9); ex(10); cv(3); ex(11); m4()
            if stream == 1: rdK(2)
            ex(12); cv(4); ex(13); ex(14); cv(5); ex(15)
            if stream == 0: wt()
            m3()
            if stream == 1: rdV()
        elif var == "v2":
            ex(0); cvp(6); ex(1); ex(2); cvp(7); ex(3); m1()
            if stream == 1: rdK(1)
            ex(4); cv(0); ex(5); ex(6); cv(1); ex(7); m2()
            if stream == 1: rdK(2)
            ex(8); cv(2); ex(9); ex(10); cv(3); ex(11); m4()
            if stream == 0: rdK(0)
            ex(12); cv(4); ex(13); ex(14); cv(5); ex(15)
            if stream == 0: a(f"s_waitcnt lgkmcnt(1)")
            m3()
            if stream == 1: rdV()
        elif var == "v3":
            ex(0); cvp(6); ex(1); ex(2); cvp(7); ex(3); m1()
            if stream == 1: rdK(0)
            ex(4); cv(0); ex(5); ex(6); cv(1); ex(7); m2()
            if stream == 1: rdK(1)
            ex(8); cv(2); ex(9); ex(10); cv(3); ex(11); m4()
            if stream == 1: rdK(2)
            ex(12); cv(4); ex(13); ex(14); cv(5); ex(15)
            if stream == 0: wt()
            m3()
            if stream == 1:
                a(f"ds_read_b128 v[{self.A_V1}:{self.A_V1+3}], v{self.A_AV} offset:{tn}")
                R = V2[1-p]
                a(f"ds_read_b128 v[{R}:{R+3}], v{self.A_AV} offset:{tn+640}")

    def prio_reg(self, stream):
        return self._prio[stream]

    def p2_check_all(self):
        a = self.a
        X = self.A_ALL; T = self.A_T
        L = "L_p2_all"; Lo = "L_p2_allok"
        a(f"s_mov_b32 s{S_T0}, 0")
        a.put(L)
        for r in range(4):
            a(f"v_subrev_u32 v{T+r}, s{S_TAG}, v{X+r}")
        a(f"v_cmp_le_u32 vcc, 16, v{T}")
        for r in range(1, 4):
            a(f"v_cmp_le_u32 s[{S_SAVE}:{S_SAVE+1}], 16, v{T+r}")
            a(f"s_nop 0")
            a(f"s_or_b64 vcc, vcc, s[{S_SAVE}:{S_SAVE+1}]")
        a(f"s_cbranch_vccz {Lo}")
        a(f"s_add_u32 s{S_T0}, s{S_T0}, 1")
        a(f"s_cmp_ge_u32 s{S_T0}, 0x40000")
        a(f"s_cbranch_scc1 {Lo}")
        a(f"buffer_load_dwordx4 v[{X}:{X+3}], v{self.A_ALLA}, s[{SRD_F}:{SRD_F+3}], 0 offen sc1")
        a(f"s_waitcnt vmcnt(0)")
        a(f"s_branch {L}")
        a.put(Lo)
        a(f"s_and_b32 s{S_T1}, s{S_GX}, 3")
        for r in range(1, 4):
            a(f"s_cmp_eq_u32 s{S_T1}, {r}")
            a(f"s_cselect_b64 s[{S_SAVE}:{S_SAVE+1}], -1, 0")
            a(f"v_cndmask_b32 v{T}, v{T}, v{T+r}, s[{S_SAVE}:{S_SAVE+1}]")
        a(f"v_cmp_ne_u32 vcc, s{S_XCC}, v{T}")
        a(f"s_mov_b32 s{S_T2}, 0x55555555")
        a(f"s_lshr_b32 s{S_T1}, s{S_GX}, 2")
        a(f"s_lshl_b32 s{S_T2}, s{S_T2}, s{S_T1}")
        a(f"s_and_b32 s{S_T3}, vcc_lo, s{S_T2}")
        a(f"s_and_b32 s{S_T4}, vcc_hi, s{S_T2}")
        a(f"s_or_b32 s{S_T3}, s{S_T3}, s{S_T4}")
        a(f"s_cmp_eq_u32 s{S_T3}, 0")
        a(f"s_cselect_b32 s{S_FAST}, {0 if 'nofast' in self.opt else 1}, 0")

    prio_low = (0, 2, 4, 7)
    def p2_setprio(self, lvl, tag):
        a = self.a
        L = f"L_p2_pr{tag}"
        a(f"s_cmp_ge_u32 s{S_W}, 4")
        a(f"s_cbranch_scc1 {L}")
        a(f"s_setprio {lvl}")
        a.put(L)

    def p2_dma(self, n):
        a = self.a
        for i in range(n):
            a(f"s_mov_b32 m0, s{self.S_DSO}")
            a(f"s_nop 0")
            a(f"buffer_load_dwordx4 v{self.A_DV}, s[{SRD_A}:{SRD_A+3}], s{self.S_DSO} offen sc1 lds")
            a(f"s_add_u32 s{self.S_DSO}, s{self.S_DSO}, 4096")

    def p2_setup(self):
        a = self.a
        T = self.A_T
        a(f"s_lshl_b32 s{S_HEAD}, s{S_GX}, 2")
        a(f"s_and_b32 s{S_T0}, s{S_GI}, 3")
        a(f"s_add_u32 s{S_HEAD}, s{S_HEAD}, s{S_T0}")
        a(f"s_lshr_b32 s{S_QB}, s{S_GI}, 2")
        a(f"s_mul_i32 s{S_T0}, s{S_HEAD}, 163840")
        a(f"s_add_u32 s{S_T0}, s{S_T0}, {hex(OFF_KV)}")
        a(f"s_add_u32 s{SRD_A}, s{S_WS}, s{S_T0}")
        a(f"s_addc_u32 s{SRD_A+1}, s{S_WS+1}, 0")
        a(f"s_mov_b32 s{SRD_A+2}, 163840")
        a(f"s_mov_b32 s{SRD_A+3}, 0x20000")
        a(f"s_lshl_b32 s{S_T0}, s{S_HEAD}, 6")
        a(f"s_lshl_b32 s{S_T1}, s{S_QB}, 3")
        a(f"s_add_u32 s{S_T0}, s{S_T0}, s{S_T1}")
        a(f"s_and_b32 s{S_T1}, s{S_W}, 3")
        a(f"s_lshl_b32 s{S_T1}, s{S_T1}, 1")
        a(f"s_add_u32 s{S_T0}, s{S_T0}, s{S_T1}")
        a(f"s_mul_i32 s{S_T0}, s{S_T0}, 1280")
        a(f"s_add_u32 s{S_T0}, s{S_T0}, {hex(OFF_Q)}")
        a(f"s_add_u32 s{SRD_W}, s{S_WS}, s{S_T0}")
        a(f"s_addc_u32 s{SRD_W+1}, s{S_WS+1}, 0")
        a(f"s_mov_b32 s{SRD_W+2}, 2560")
        a(f"s_mov_b32 s{SRD_W+3}, 0x20000")
        a(f"v_and_b32 v{T}, 31, v1")
        a(f"v_lshrrev_b32 v{T+1}, 5, v1")
        a(f"v_lshlrev_b32 v{T+2}, 3, v{T}")
        a(f"v_lshl_add_u32 v{T+4}, v{T+1}, 9, v{T+2}")
        a(f"v_lshlrev_b32 v{T+3}, 12, v{T+1}")
        a(f"v_add_u32 v{T+3}, v{T+3}, v{T+2}")
        a(f"v_lshlrev_b32 v{self.A_DV}, 4, v1")
        a(f"v_add_u32 v{self.A_ALLA}, {OFF_ALL}, v{self.A_DV}")
        a(f"s_lshr_b32 s{S_T0}, s{S_W}, 2")
        a(f"s_mul_i32 s{S_T0}, s{S_T0}, 81920")
        a(f"s_and_b32 s{S_T1}, s{S_W}, 3")
        a(f"s_lshl_b32 s{S_T1}, s{S_T1}, 10")
        a(f"s_add_u32 s{self.S_DSO}, s{S_T0}, s{S_T1}")
        for Q in (self.A_QA, self.A_QB):
            a(f"v_mov_b32 v{Q+6}, 0"); a(f"v_mov_b32 v{Q+7}, 0")
        for kb in range(2):
            a(f"v_mov_b32 v{self.A_K+8*kb+6}, 0"); a(f"v_mov_b32 v{self.A_K+8*kb+7}, 0")
        a(f"v_cmp_eq_u32 vcc, 20, v{T}")
        a(f"v_mov_b32 v{T+5}, 0x3f803f80")
        a(f"v_mul_u32_u24 v{T+6}, 320, v{T+1}")
        a(f"v_cndmask_b32 v{self.A_V1}, 0, v{T+5}, vcc")
        for r in range(1, 8):
            a(f"v_mov_b32 v{self.A_V1+r}, v{self.A_V1}")
        for r in range(4):
            a(f"v_mov_b32 v{self.A_V2B+r}, v{self.A_V1}")
        a(f"v_lshl_add_u32 v{self.A_AV}, v{T}, 4, v{T+6}")
        a(f"v_add_u32 v{self.A_AV}, 1280, v{self.A_AV}")
        a(f"v_add_u32 v{self.A_AK}, s{S_T0}, v{T+4}")
        a(f"v_add_u32 v{self.A_AV}, s{S_T0}, v{self.A_AV}")
        a(f"s_mov_b32 s{self.S_VMASK}, 0xfffff")
        a(f"s_mov_b32 s{self.S_VMASK+1}, 0xfffff")
        for r in range(16):
            a(f"v_mov_b32 v{self.A_OA+r}, 0"); a(f"v_mov_b32 v{self.A_OB+r}, 0")
        for r in range(8):
            a(f"v_mov_b32 v{self.A_P+r}, 0")
        for r in range(12, 16):
            a(f"v_mov_b32 v{self.A_SB+r}, 0")
        a(f"s_and_b32 s{S_T2}, s{S_W}, 3")
        a(f"s_lshr_b32 s{S_T3}, s{S_W}, 2")
        a(f"s_lshl_b32 s{S_T0}, s{S_QB}, 2")
        a(f"s_add_u32 s{S_T0}, s{S_T0}, s{S_T2}")
        a(f"s_mul_i32 s{S_T0}, s{S_T0}, 81920")
        a(f"s_lshl_b32 s{S_T1}, s{S_T3}, 11")
        a(f"s_add_u32 s{S_CNT}, s{S_T0}, s{S_T1}")
        a(f"v_bfe_u32 v{T+3+4}, v1, 4, 1")
        a(f"v_lshlrev_b32 v{T+7}, 10, v{T+7}")
        a(f"v_and_b32 v{T+6}, 15, v1")
        a(f"v_lshl_add_u32 v{T+7}, v{T+6}, 4, v{T+7}")
        a(f"s_mul_i32 s{S_T1}, s{S_HEAD}, 20")
        for g in range(3):
            D_ = self.A_OAD + g
            a(f"v_lshlrev_b32 v{T+6}, 2, v{T+1}")
            a(f"s_add_u32 s{S_T2}, s{S_T1}, {8*g}")
            a(f"v_add_u32 v{T+6}, s{S_T2}, v{T+6}")
            a(f"v_lshrrev_b32 v{D_}, 5, v{T+6}")
            a(f"v_lshlrev_b32 v{D_}, 12, v{D_}")
            a(f"v_bfe_u32 v{T+5}, v{T+6}, 3, 2")
            a(f"v_lshl_add_u32 v{D_}, v{T+5}, 8, v{D_}")
            a(f"v_and_b32 v{T+5}, 7, v{T+6}")
            a(f"v_lshl_add_u32 v{D_}, v{T+5}, 1, v{D_}")
            a(f"v_add_u32 v{D_}, v{D_}, v{T+7}")

    A_OAD = 140
    def p2(self):
        a = self.a
        T = self.A_T
        self.stamp(5)
        self.p2_wait()
        self.stamp(6)
        self.p2_dma(2)
        for qi, Q in enumerate((self.A_QA, self.A_QB)):
            a(f"buffer_load_dwordx2 v[{Q}:{Q+1}], v{T+4}, s[{SRD_W}:{SRD_W+3}], 0 offen offset:{1280*qi} sc1")
            a(f"buffer_load_dwordx2 v[{Q+2}:{Q+3}], v{T+4}, s[{SRD_W}:{SRD_W+3}], 0 offen offset:{1280*qi+256} sc1")
            a(f"buffer_load_dwordx2 v[{Q+4}:{Q+5}], v{T+3}, s[{SRD_W}:{SRD_W+3}], 0 offen offset:{1280*qi+1024} sc1")
        self.p2_dma(2)
        a(f"buffer_load_dwordx4 v[{self.A_ALL}:{self.A_ALL+3}], v{self.A_ALLA}, s[{SRD_F}:{SRD_F+3}], 0 offen sc1")
        self.p2_dma(4)
        a(f"s_waitcnt vmcnt(5)")
        a(f"s_barrier")
        self.stamp(7)
        self.p2_dma(1)
        self.p2_kreads(0, 0)
        self.p2_kreads(1, 2560)
        self.p2_vread(0, 0)
        self.p2_vread(1, 0)
        a(f"s_waitcnt lgkmcnt(0)")
        self.p2_smfma(0, self.A_SA, 0, self.A_QA); self.p2_smfma(1, self.A_SA, 0, self.A_QA)
        self.p2_unrolled()
        a.put("L_p2_done")
        a(f"s_setprio 0")
        P = self.A_P; SBr = self.A_SB
        a(f"s_waitcnt lgkmcnt(0)")
        a(f"v_cvt_pk_bf16_f32 v{P+6}, v{SBr+12}, v{SBr+13}")
        a(f"v_cvt_pk_bf16_f32 v{P+7}, v{SBr+14}, v{SBr+15}")
        a(f"s_nop 1")
        a(f"v_mfma_f32_32x32x16_bf16 v[{self.A_OB}:{self.A_OB+15}], v[{self.A_V2B}:{self.A_V2B+3}], v[{P+4}:{P+7}], v[{self.A_OB}:{self.A_OB+15}]")
        self.stamp(8)
        self.p2_epilogue()

    def p2_epilogue(self):
        a = self.a
        T = self.A_T
        self.srd(SRD_O, S_WS, OFF_O, SZ_O)
        a(f"s_mov_b32 s{self.S_SLOWDONE}, {1 if 'noslow' in self.opt else 0}")
        a(f"s_mov_b32 s{self.S_BIG}, {hex(f32(2.0**60))}")
        if "forceslow" in self.opt: a(f"s_mov_b32 s{self.S_BIG}, 0")
        a(f"s_nop 7"); a(f"s_nop 3")
        a(f"s_barrier")
        a(f"s_and_b32 s{S_T0}, s{S_W}, 3")
        a(f"s_lshr_b32 s{S_T1}, s{S_W}, 2")
        a(f"s_lshl_b32 s{S_T0}, s{S_T0}, 1")
        a(f"s_add_u32 s{S_T2}, s{S_T0}, s{S_T1}")
        a(f"s_xor_b32 s{S_T3}, s{S_T2}, 1")
        a(f"s_mul_i32 s{S_T2}, s{S_T2}, 3072")
        a(f"s_mul_i32 s{S_T3}, s{S_T3}, 3072")
        a(f"s_add_u32 s{S_T2}, s{S_T2}, 51200")
        a(f"s_add_u32 s{S_T3}, s{S_T3}, 51200")
        a(f"v_lshlrev_b32 v{T}, 4, v1")
        a(f"v_add_u32 v{T+1}, s{S_T2}, v{T}")
        a(f"v_add_u32 v{T+2}, s{S_T3}, v{T}")
        Lk1 = "L_p2e_k1"; Lj = "L_p2e_j"
        a(f"s_cmp_eq_u32 s{S_T1}, 1")
        a(f"s_cbranch_scc1 {Lk1}")
        for g in range(3):
            a(f"ds_write_b128 v{T+1}, v[{self.A_OB+4*g}:{self.A_OB+4*g+3}] offset:{1024*g}")
        a(f"s_branch {Lj}")
        a.put(Lk1)
        for g in range(3):
            a(f"ds_write_b128 v{T+1}, v[{self.A_OA+4*g}:{self.A_OA+4*g+3}] offset:{1024*g}")
        for r in range(12):
            a(f"v_mov_b32 v{self.A_OA+r}, v{self.A_OB+r}")
        a.put(Lj)
        a(f"s_waitcnt lgkmcnt(0)")
        a(f"s_barrier")
        O = self.A_OA; X = self.A_SA
        for g in range(3):
            a(f"ds_read_b128 v[{X+4*g}:{X+4*g+3}], v{T+2} offset:{1024*g}")
        a(f"s_waitcnt lgkmcnt(0)")
        for r in range(12):
            a(f"v_add_f32 v{O+r}, v{O+r}, v{X+r}")
        a.put("L_p2_fin")
        a(f"v_mov_b32 v{T}, v{O+8}")
        a(f"v_mov_b32 v{T+1}, v{O+8}")
        a(f"s_nop 1")
        a(f"v_permlane32_swap_b32 v{T}, v{T+1}")
        a(f"v_mul_f32 v{T+3}, 0, v{O}")
        for r in list(range(1, 8)):
            a(f"v_fmac_f32 v{T+3}, 0, v{O+r}")
        a(f"v_mov_b32 v{T+4}, 0")
        for r in range(8, 12):
            a(f"v_fmac_f32 v{T+4}, 0, v{O+r}")
        a(f"v_cmp_le_f32 vcc, {hex(f32(2.0**-60))}, v{T+1}")
        a(f"v_cmp_ge_f32 s[{S_SAVE}:{S_SAVE+1}], s{self.S_BIG}, v{T+1}")
        a(f"s_nop 0")
        a(f"s_and_b64 vcc, vcc, s[{S_SAVE}:{S_SAVE+1}]")
        a(f"v_cmp_eq_f32 s[{S_SAVE}:{S_SAVE+1}], 0, v{T+3}")
        a(f"s_nop 0")
        a(f"s_and_b64 vcc, vcc, s[{S_SAVE}:{S_SAVE+1}]")
        a(f"v_cmp_eq_f32 s[{S_SAVE}:{S_SAVE+1}], 0, v{T+4}")
        a(f"s_nop 0")
        a(f"s_or_b32 s{S_SAVE+1}, s{S_SAVE+1}, -1")
        a(f"s_and_b64 vcc, vcc, s[{S_SAVE}:{S_SAVE+1}]")
        a(f"s_or_b32 vcc_lo, vcc_lo, 0")
        a(f"s_cmp_eq_u32 s{self.S_SLOWDONE}, 1")
        a(f"s_cbranch_scc1 L_p2_ok")
        a(f"s_cmp_eq_u64 vcc, -1")
        a(f"s_cbranch_scc0 L_p2_slow")
        a.put("L_p2_ok")
        a(f"v_rcp_f32 v{T+2}, v{T+1}")
        a(f"s_nop 0")
        for r in range(12):
            a(f"v_mul_f32 v{O+r}, v{T+2}, v{O+r}")
        for g in range(3):
            a(f"v_cvt_pk_bf16_f32 v{O+4*g}, v{O+4*g}, v{O+4*g+1}")
            a(f"v_cvt_pk_bf16_f32 v{O+4*g+1}, v{O+4*g+2}, v{O+4*g+3}")
        for g in range(3):
            if g == 2: self.set_exec(0xffffffff)
            a(f"buffer_store_dwordx2 v[{O+4*g}:{O+4*g+1}], v{self.A_OAD+g}, s[{SRD_O}:{SRD_O+3}], s{S_CNT} offen sc1")
            if g == 2: a(f"s_mov_b64 exec, -1")
        a(f"s_branch L_p2_end")
        self.p2_slow()
        a.put("L_p2_end")

    S_SLOWDONE = 94; S_BIG = 95
    def p2_slow(self):
        a = self.a
        T = self.A_T; O = self.A_OA; S = self.A_SA; P = self.A_P
        K = self.A_K; Q = self.A_QA
        a.put("L_p2_slow")
        a(f"s_cmp_lt_u32 s{S_W}, 4")
        a(f"s_cbranch_scc1 L_p2s_q")
        for r in range(8):
            a(f"v_mov_b32 v{Q+r}, v{self.A_QB+r}")
        a.put("L_p2s_q")
        a(f"v_and_b32 v{T}, 31, v1")
        a(f"v_lshrrev_b32 v{T+1}, 5, v1")
        a(f"v_lshlrev_b32 v{T+2}, 3, v{T}")
        a(f"v_lshl_add_u32 v{T+3}, v{T+1}, 9, v{T+2}")
        a(f"v_mul_u32_u24 v{T+4}, 320, v{T+1}")
        a(f"v_lshl_add_u32 v{T+4}, v{T}, 4, v{T+4}")
        a(f"v_mov_b32 v{T+5}, 0xff800000")
        def loadk():
            a(f"buffer_load_dwordx2 v[{K}:{K+1}], v{T+3}, s[{SRD_A}:{SRD_A+3}], s{S_T1} offen sc1")
            a(f"buffer_load_dwordx2 v[{K+2}:{K+3}], v{T+3}, s[{SRD_A}:{SRD_A+3}], s{S_T1} offen offset:256 sc1")
            a(f"buffer_load_dwordx2 v[{K+4}:{K+5}], v{T+2}, s[{SRD_A}:{SRD_A+3}], s{S_T1} offen offset:1024 sc1")
        def smm():
            a(f"v_mfma_f32_32x32x16_bf16 v[{S}:{S+15}], v[{K}:{K+3}], v[{Q}:{Q+3}], 0")
            a(f"v_mfma_f32_32x32x16_bf16 v[{S}:{S+15}], v[{K+4}:{K+7}], v[{Q+4}:{Q+7}], v[{S}:{S+15}]")
            a(f"s_nop 7"); a(f"s_nop 7")
        a(f"s_mov_b32 s{S_T1}, 0")
        a.put("L_p2s_1")
        loadk()
        a(f"s_waitcnt vmcnt(0)")
        smm()
        for r in range(16):
            a(f"v_max_f32 v{T+5}, v{T+5}, v{S+r}")
        a(f"s_add_u32 s{S_T1}, s{S_T1}, 2560")
        a(f"s_cmp_lt_u32 s{S_T1}, 163840")
        a(f"s_cbranch_scc1 L_p2s_1")
        a(f"v_mov_b32 v{T+6}, v{T+5}")
        a(f"s_nop 1")
        a(f"v_permlane32_swap_b32 v{T+6}, v{T+5}")
        a(f"s_nop 1")
        a(f"v_max_f32 v{T+5}, v{T+5}, v{T+6}")
        for r in range(16):
            a(f"v_mov_b32 v{O+r}, 0")
        a(f"s_mov_b32 s{S_T1}, 0")
        a.put("L_p2s_2")
        loadk()
        a(f"s_mov_b64 exec, s[{self.S_VMASK}:{self.S_VMASK+1}]")
        a(f"buffer_load_dwordx4 v[{self.A_V1}:{self.A_V1+3}], v{T+4}, s[{SRD_A}:{SRD_A+3}], s{S_T1} offen offset:1280 sc1")
        a(f"buffer_load_dwordx4 v[{self.A_V2}:{self.A_V2+3}], v{T+4}, s[{SRD_A}:{SRD_A+3}], s{S_T1} offen offset:1920 sc1")
        a(f"s_mov_b64 exec, -1")
        a(f"s_waitcnt vmcnt(0)")
        smm()
        for r in range(16):
            a(f"v_sub_f32 v{S+r}, v{S+r}, v{T+5}")
        for r in range(16):
            a(f"v_exp_f32 v{S+r}, v{S+r}")
        a(f"s_nop 0")
        for k in range(8):
            a(f"v_cvt_pk_bf16_f32 v{P+k}, v{S+2*k}, v{S+2*k+1}")
        a(f"s_nop 1")
        a(f"v_mfma_f32_32x32x16_bf16 v[{O}:{O+15}], v[{self.A_V1}:{self.A_V1+3}], v[{P}:{P+3}], v[{O}:{O+15}]")
        a(f"v_mfma_f32_32x32x16_bf16 v[{O}:{O+15}], v[{self.A_V2}:{self.A_V2+3}], v[{P+4}:{P+7}], v[{O}:{O+15}]")
        a(f"s_add_u32 s{S_T1}, s{S_T1}, 2560")
        a(f"s_cmp_lt_u32 s{S_T1}, 163840")
        a(f"s_cbranch_scc1 L_p2s_2")
        a(f"s_nop 7"); a(f"s_nop 7")
        a(f"s_mov_b32 s{self.S_SLOWDONE}, 1")
        a(f"s_branch L_p2_fin")

    G_ACC = 4
    G_ACT = 52
    G_AM = 84
    G_DV = 2
    G_SA = 3
    S_RB = 49; S_J = 50
    def g2_wbase(self, phase, NT):
        return 88 if (phase == 3 or NT == 3) else 144

    def g2_wsetup(self, phase, srd, sreg, vreg):
        a = self.a
        if phase == 3: self.srd(srd, S_WS, OFF_WOP, SZ_WOP)
        else: self.srd(srd, S_WS, OFF_W2P, SZ_W2P)
        a(f"s_and_b32 s{S_T0}, s{S_W}, 3")
        a(f"s_mul_i32 s{S_T1}, s{S_T0}, 40")
        a(f"s_and_b32 s{S_T2}, s{S_GI}, 7")
        a(f"s_mul_i32 s{S_T2}, s{S_T2}, 5")
        a(f"s_add_u32 s{S_T1}, s{S_T1}, s{S_T2}")
        a(f"s_cmp_lt_u32 s{S_W}, 4")
        a(f"s_cselect_b32 s{S_T2}, 3, 0")
        a(f"s_add_u32 s{S_T1}, s{S_T1}, s{S_T2}")
        a(f"s_lshl_b32 s{sreg}, s{S_T1}, 10")
        a(f"v_lshlrev_b32 v{vreg}, 4, v1")

    def g2_wload1(self, phase, NT, step, t, srd, sreg, vreg):
        a = self.a
        R = self.g2_wbase(phase, NT) + 4*(step*NT + t)
        off = step*4*40*1024 + t*1024
        a(f"s_add_u32 s{S_T2}, s{sreg}, {off}")
        a(f"buffer_load_dwordx4 v[{R}:{R+3}], v{vreg}, s[{srd}:{srd+3}], s{S_T2} offen {self.ld_aux}")

    def g2_wloads_byclass(self, phase, listA, listB, srd, sreg, vreg, tag):
        a = self.a
        LA = f"L_{tag}_A"; LJ = f"L_{tag}_J"
        a(f"s_cmp_ge_u32 s{S_W}, 4")
        a(f"s_cbranch_scc1 {LA}")
        for (st, t) in listB: self.g2_wload1(phase, 2, st, t, srd, sreg, vreg)
        a(f"s_branch {LJ}")
        a.put(LA)
        for (st, t) in listA: self.g2_wload1(phase, 3, st, t, srd, sreg, vreg)
        a.put(LJ)

    def g2_adma(self, stage):
        a = self.a
        slot = (stage % 4) * 32768
        for q in range(4):
            a(f"s_add_u32 m0, s{S_M0A}, {slot + q*8192}")
            a(f"s_add_u32 s{S_T2}, s{S_M0A}, {stage*32768 + q*8192}")
            a(f"buffer_load_dwordx4 v{self.G_DV}, s[{SRD_A}:{SRD_A+3}], s{S_T2} offen {self.ld_aux} lds")

    def g2_reads(self, stage, u, st):
        a = self.a
        slot = stage % 4
        hi = slot >= 2
        if hi != self.g2_hi:
            for m in range(4):
                if hi: a(f"v_add_u32 v{self.G_AM+m}, 0x10000, v{self.G_AM+m}")
                else:  a(f"v_subrev_u32 v{self.G_AM+m}, 0x10000, v{self.G_AM+m}")
            self.g2_hi = hi
        off = (slot % 2) * 32768 + u*16384
        for m in range(4):
            R = self.G_ACT + 16*st + 4*m
            a(f"ds_read_b128 v[{R}:{R+3}], v{self.G_AM+m} offset:{off}")

    def g2_mfma(self, phase, NT, step, st):
        a = self.a
        for t in range(NT):
            W = self.g2_wbase(phase, NT) + 4*(step*NT + t)
            for m in range(4):
                A = self.G_ACC + 4*(m*3 + t)
                X = self.G_ACT + 16*st + 4*m
                a(f"v_mfma_f32_16x16x32_bf16 v[{A}:{A+3}], v[{W}:{W+3}], v[{X}:{X+3}], v[{A}:{A+3}]")

    def g2_main(self, phase, NT, nsteps):
        a = self.a
        NSTG = (nsteps + 1) // 2
        pre = min(3, NSTG)
        self.g2_hi = False
        if NT == 3 and "nog2prio" not in self.opt: a(f"s_setprio 1")
        self.g2_adma(0); self.g2_adma(1)
        a(f"s_waitcnt vmcnt(8)")
        E = self.G_ACT; A = self.G_ACC
        for t in range(NT):
            for half in range(2):
                R = E + 2*t + half
                a(f"v_lshlrev_b32 v{A+4*t+2*half}, 16, v{R}")
                a(f"v_and_b32 v{A+4*t+2*half+1}, 0xffff0000, v{R}")
                if phase == 5:
                    R2 = E + 6 + 2*t + half
                    a(f"v_lshlrev_b32 v{E+14}, 16, v{R2}")
                    a(f"v_and_b32 v{E+15}, 0xffff0000, v{R2}")
                    a(f"v_add_f32 v{A+4*t+2*half}, v{A+4*t+2*half}, v{E+14}")
                    a(f"v_add_f32 v{A+4*t+2*half+1}, v{A+4*t+2*half+1}, v{E+15}")
        self.g2_adma(2)
        if self.g2st: self.stamp(self.g2st)
        a(f"s_waitcnt vmcnt(10)")
        a(f"s_barrier")
        if self.g2st: self.stamp(self.g2st+1)
        self.g2_reads(0, 0, 0)
        for sg in range(NSTG):
            two = (2*sg + 1) < nsteps
            if sg == 0:
                a(f"s_waitcnt lgkmcnt(0)")
                self.g2_mfma(phase, NT, 0, 0)
            if sg + 1 < NSTG:
                out = 4 * max(0, min(NSTG, sg + pre) - (sg + 2))
                a(f"s_waitcnt vmcnt({out})")
                a(f"s_barrier")
            if two:
                self.g2_reads(sg, 1, 1)
                if sg > 0: a(f"s_waitcnt lgkmcnt(4)")
            elif sg > 0:
                a(f"s_waitcnt lgkmcnt(0)")
            if sg > 0: self.g2_mfma(phase, NT, 2*sg, 0)
            if sg + pre < NSTG:
                self.g2_adma(sg + pre)
            if two:
                if sg + 1 < NSTG:
                    self.g2_reads(sg+1, 0, 0)
                    a(f"s_waitcnt lgkmcnt(4)")
                else:
                    a(f"s_waitcnt lgkmcnt(0)")
                self.g2_mfma(phase, NT, 2*sg+1, 1)

    def g2_reduce(self, NT):
        a = self.a
        T = self.G_ACT
        base = 98304 if NT == 3 else 135168
        dstr = NT*1024*3; rstr = NT*1024
        a(f"s_and_b32 s{S_T1}, s{S_W}, 3")
        for m in range(1, 4):
            a(f"s_add_u32 s{S_T2}, s{S_T1}, {m}")
            a(f"s_and_b32 s{S_T2}, s{S_T2}, 3")
            a(f"s_mul_i32 s{S_T2}, s{S_T2}, {dstr}")
            a(f"s_add_u32 s{S_T2}, s{S_T2}, {base + (m-1)*rstr}")
            a(f"v_add_u32 v{T+m}, s{S_T2}, v{self.G_DV}")
        a(f"s_mul_i32 s{S_T2}, s{S_T1}, {dstr}")
        a(f"s_add_u32 s{S_T2}, s{S_T2}, {base}")
        a(f"v_add_u32 v{T}, s{S_T2}, v{self.G_DV}")
        for m in range(1, 4):
            for t in range(NT):
                A = self.G_ACC + 4*(m*3 + t)
                a(f"ds_write_b128 v{T+m}, v[{A}:{A+3}] offset:{t*1024}")
        a(f"s_waitcnt lgkmcnt(0)")
        a(f"s_barrier")
        for rel in range(3):
            for t in range(NT):
                A = self.G_ACC + 4*((rel+1)*3 + t)
                a(f"ds_read_b128 v[{A}:{A+3}], v{T} offset:{rel*rstr + t*1024}")
        a(f"s_waitcnt lgkmcnt(0)")
        for t in range(NT):
            for i in range(4):
                A = self.G_ACC + 4*t + i
                a(f"v_add_f32 v{A}, v{A}, v{A+12}")
                a(f"v_add_f32 v{A+24}, v{A+24}, v{A+36}")
            for i in range(4):
                A = self.G_ACC + 4*t + i
                a(f"v_add_f32 v{A}, v{A}, v{A+24}")

    def h_addr_base(self, B, M, C, tmp):
        a = self.a
        a(f"s_lshl_b32 s{S_T0}, s{self.S_RB}, 6")
        a(f"s_and_b32 s{S_T1}, s{S_W}, 3")
        a(f"s_lshl_b32 s{S_T1}, s{S_T1}, 4")
        a(f"s_add_u32 s{S_T0}, s{S_T0}, s{S_T1}")
        a(f"s_lshr_b32 s{S_T1}, s{S_T0}, 7")
        a(f"s_mul_i32 s{S_T1}, s{S_T1}, 163840")
        a(f"s_and_b32 s{S_T0}, s{S_T0}, 127")
        a(f"v_and_b32 v{tmp}, 15, v1")
        a(f"v_add_u32 v{tmp}, s{S_T0}, v{tmp}")
        a(f"v_bfe_u32 v{M}, v{tmp}, 1, 3")
        a(f"v_lshlrev_b32 v{B}, 7, v{tmp}")
        a(f"v_add_u32 v{B}, s{S_T1}, v{B}")
        a(f"s_mul_i32 s{S_T0}, s{self.S_J}, 80")
        a(f"s_cmp_lt_u32 s{S_W}, 4")
        a(f"s_cselect_b32 s{S_T1}, 48, 0")
        a(f"s_add_u32 s{S_T0}, s{S_T0}, s{S_T1}")
        a(f"v_lshrrev_b32 v{C}, 4, v1")
        a(f"v_lshlrev_b32 v{C}, 2, v{C}")
        a(f"v_add_u32 v{C}, s{S_T0}, v{C}")

    def h_addr(self, dst, t, B, M, C, tmp):
        a = self.a
        a(f"v_add_u32 v{tmp}, {16*t}, v{C}")
        a(f"v_lshrrev_b32 v{dst}, 6, v{tmp}")
        a(f"v_lshlrev_b32 v{dst}, 14, v{dst}")
        a(f"v_add_u32 v{dst}, v{dst}, v{B}")
        a(f"v_bfe_u32 v{tmp+1}, v{tmp}, 3, 3")
        a(f"v_xor_b32 v{tmp+1}, v{tmp+1}, v{M}")
        a(f"v_lshl_add_u32 v{dst}, v{tmp+1}, 4, v{dst}")
        a(f"v_bfe_u32 v{tmp+1}, v{tmp}, 2, 1")
        a(f"v_lshl_add_u32 v{dst}, v{tmp+1}, 3, v{dst}")

    def g2_setup(self, phase):
        a = self.a
        a(f"s_lshr_b32 s{S_T0}, s{S_GI}, 3")
        a(f"s_lshl_b32 s{S_T1}, s{S_GX}, 2")
        a(f"s_add_u32 s{self.S_RB}, s{S_T0}, s{S_T1}")
        a(f"s_and_b32 s{self.S_J}, s{S_GI}, 7")
        if phase == 3: off, per = OFF_O, 81920
        else: off, per = OFF_R, 54*4096
        a(f"s_mul_i32 s{S_T0}, s{self.S_RB}, {per}")
        a(f"s_add_u32 s{S_T0}, s{S_T0}, {hex(off)}")
        a(f"s_add_u32 s{SRD_A}, s{S_WS}, s{S_T0}")
        a(f"s_addc_u32 s{SRD_A+1}, s{S_WS+1}, 0")
        a(f"s_mov_b32 s{SRD_A+2}, {per}")
        a(f"s_mov_b32 s{SRD_A+3}, 0x20000")
        a(f"s_lshl_b32 s{S_M0A}, s{S_W}, 10")
        a(f"v_lshlrev_b32 v{self.G_DV}, 4, v1")
        a(f"s_and_b32 s{S_T0}, s{S_W}, 3")
        for m in range(4):
            a(f"s_add_u32 s{S_T1}, s{S_T0}, {m}")
            a(f"s_and_b32 s{S_T1}, s{S_T1}, 3")
            a(f"s_lshl_b32 s{S_T1}, s{S_T1}, 10")
            a(f"s_lshl_b32 s{S_T2}, s{S_T0}, 12")
            a(f"s_add_u32 s{S_T1}, s{S_T1}, s{S_T2}")
            a(f"v_add_u32 v{self.G_AM+m}, s{S_T1}, v{self.G_DV}")
        E = self.G_ACT
        a(f"s_lshl_b32 s{S_T0}, s{self.S_RB}, 6")
        a(f"s_and_b32 s{S_T1}, s{S_W}, 3")
        a(f"s_lshl_b32 s{S_T1}, s{S_T1}, 4")
        a(f"s_add_u32 s{S_T0}, s{S_T0}, s{S_T1}")
        a(f"v_and_b32 v{self.G_SA}, 15, v1")
        a(f"v_add_u32 v{self.G_SA}, s{S_T0}, v{self.G_SA}")
        a(f"v_mul_u32_u24 v{self.G_SA}, 1280, v{self.G_SA}")
        a(f"s_mul_i32 s{S_T0}, s{self.S_J}, 160")
        a(f"s_cmp_lt_u32 s{S_W}, 4")
        a(f"s_cselect_b32 s{S_T1}, 96, 0")
        a(f"s_add_u32 s{S_T0}, s{S_T0}, s{S_T1}")
        a(f"v_lshrrev_b32 v{E+12}, 4, v1")
        a(f"v_lshlrev_b32 v{E+12}, 3, v{E+12}")
        a(f"v_add_u32 v{E+12}, s{S_T0}, v{E+12}")
        a(f"v_add_u32 v{self.G_SA}, v{self.G_SA}, v{E+12}")
        if phase == 3:
            self.srd(SRD_T, S_X, 0, 2048*1280); aux_r = ""
        else:
            self.srd(SRD_T, S_WS, OFF_H, SZ_H); aux_r = self.ld_aux
        if phase == 3:
            for t in range(3):
                a(f"buffer_load_dwordx2 v[{E+2*t}:{E+2*t+1}], v{self.G_SA}, s[{SRD_T}:{SRD_T+3}], 0 offen offset:{32*t} {aux_r}")
        else:
            self.h_addr_base(E+16, E+17, E+18, E+19)
            for t in range(3):
                self.h_addr(E+20, t, E+16, E+17, E+18, E+21)
                a(f"buffer_load_dwordx2 v[{E+2*t}:{E+2*t+1}], v{E+20}, s[{SRD_T}:{SRD_T+3}], 0 offen {aux_r}")
        if phase == 5:
            self.srd(SRD_T, S_B2, 0, 1280)
            for t in range(3):
                a(f"buffer_load_dwordx2 v[{E+6+2*t}:{E+7+2*t}], v{E+12}, s[{SRD_T}:{SRD_T+3}], 0 offen offset:{32*t}")
        for r in range(12, 48):
            a(f"v_mov_b32 v{self.G_ACC+r}, 0")

    def g2_epi(self, phase, NT):
        a = self.a
        T = self.G_ACT; A = self.G_ACC
        if phase == 3:
            self.srd_twin(S_WS, OFF_H, SZ_H)
        else:
            self.srd(SRD_O, S_OUT, 0, 2048*1280)
        for t in range(NT):
            a(f"v_cvt_pk_bf16_f32 v{A+4*t}, v{A+4*t}, v{A+4*t+1}")
            a(f"v_cvt_pk_bf16_f32 v{A+4*t+1}, v{A+4*t+2}, v{A+4*t+3}")
            if phase == 3:
                if t == 0: self.h_addr_base(T+8, T+9, T+10, T+11)
                self.h_addr(T+12+t, t, T+8, T+9, T+10, T+16)
                self.store_twin("buffer_store_dwordx2", f"v[{A+4*t}:{A+4*t+1}]", T+12+t, "0")
            else: a(f"buffer_store_dwordx2 v[{A+4*t}:{A+4*t+1}], v{self.G_SA}, s[{SRD_O}:{SRD_O+3}], 0 offen offset:{32*t} {self.out_aux}")
        if phase == 3:
            S = T + 22
            a(f"v_mov_b32 v{S}, 0"); a(f"v_mov_b32 v{S+1}, 0")
            for t in range(NT):
                for half in range(2):
                    R = A + 4*t + half
                    a(f"v_lshlrev_b32 v{T+20}, 16, v{R}")
                    a(f"v_and_b32 v{T+21}, 0xffff0000, v{R}")
                    a(f"v_add_f32 v{S}, v{S}, v{T+20}")
                    a(f"v_fmac_f32 v{S+1}, v{T+20}, v{T+20}")
                    a(f"v_add_f32 v{S}, v{S}, v{T+21}")
                    a(f"v_fmac_f32 v{S+1}, v{T+21}, v{T+21}")
            for op in ("v_permlane32_swap_b32", "v_permlane16_swap_b32"):
                a(f"v_mov_b32 v{S+2}, v{S}")
                a(f"v_mov_b32 v{S+3}, v{S+1}")
                a(f"s_nop 1")
                a(f"{op} v{S+2}, v{S}")
                a(f"{op} v{S+3}, v{S+1}")
                a(f"s_nop 1")
                a(f"v_add_f32 v{S}, v{S}, v{S+2}")
                a(f"v_add_f32 v{S+1}, v{S+1}, v{S+3}")
            a(f"s_lshl_b32 s{S_T0}, s{self.S_RB}, 6")
            a(f"s_and_b32 s{S_T1}, s{S_W}, 3")
            a(f"s_lshl_b32 s{S_T1}, s{S_T1}, 4")
            a(f"s_add_u32 s{S_T0}, s{S_T0}, s{S_T1}")
            a(f"v_and_b32 v{S+2}, 15, v1")
            a(f"v_add_u32 v{S+2}, s{S_T0}, v{S+2}")
            a(f"v_lshlrev_b32 v{S+2}, 7, v{S+2}")
            a(f"s_lshl_b32 s{S_T0}, s{self.S_J}, 4")
            a(f"s_add_u32 s{S_T0}, s{S_T0}, {hex(8 if NT == 2 else 0)}")
            a(f"v_add_u32 v{S+2}, s{S_T0}, v{S+2}")
            self.srd_twin(S_WS, OFF_PST, 2048*128)
            a(f"s_mov_b64 exec, 0xffff")
            self.store_twin("buffer_store_dwordx2", f"v[{S}:{S+1}]", S+2, "0")
            a(f"s_mov_b64 exec, -1")

    def g2(self, phase):
        a = self.a
        nsteps = 5 if phase == 3 else 14
        self.g2st = 15 if (str(phase) in self.opt_g2) else None
        L1 = f"L_g2p{phase}_n1"; Lj = f"L_g2p{phase}_j"
        a(f"s_cmp_lt_u32 s{S_W}, 4")
        a(f"s_cbranch_scc1 {L1}")
        for NT in (3, 2):
            self.g2_main(phase, NT, nsteps)
            if self.g2st: self.stamp(self.g2st+2)
            if NT == 3: a(f"s_setprio 0")
            a(f"s_nop 7")
            self.g2_reduce(NT)
            if self.g2st: self.stamp(self.g2st+3)
            self.g2_epi(phase, NT)
            if NT == 3:
                a(f"s_branch {Lj}")
                a.put(L1)
        a.put(Lj)

    def hook23(self):
        a = self.a
        a(f"v_lshlrev_b32 v{self.G_DV}, 4, v1")
        self.wo_from_lds()
        self.g2_setup(3)
    def hook34(self):
        a = self.a
        a(f"s_cmp_lt_u32 s{S_GI}, 28")
        a(f"s_cbranch_scc1 L_h34_skip")
        self.prefetch_w2_rest()
        a.put("L_h34_skip")
        self.p4_setup()
    def hook45(self):
        self.g2_setup(5)
        if "wbl2" in self.opt:
            a = self.a
            a(f"s_cmp_lg_u32 s{S_GI}, 31")
            a(f"s_cbranch_scc1 L_wbl2_skip")
            a(f"s_cmp_lg_u32 s{S_W}, 1")
            a(f"s_cbranch_scc1 L_wbl2_skip")
            a(f"buffer_wbl2 sc1")
            a.put("L_wbl2_skip")

    def wo_lds_base(self, dst):
        a = self.a
        a(f"s_sub_u32 s{S_T3}, s{S_W}, 4")
        a(f"s_mul_i32 s{S_T3}, s{S_T3}, 15360")
        a(f"s_cmp_eq_u32 s{S_W}, 7")
        a(f"s_cselect_b32 s{S_T3}, 81920, s{S_T3}")
        a(f"s_mul_i32 s{S_T4}, s{S_W}, 10240")
        a(f"s_add_u32 s{S_T4}, s{S_T4}, 97280")
        a(f"s_cmp_eq_u32 s{S_W}, 3")
        a(f"s_cselect_b32 s{S_T4}, 46080, s{S_T4}")
        a(f"s_cmp_lt_u32 s{S_W}, 4")
        a(f"s_cselect_b32 s{dst}, s{S_T4}, s{S_T3}")

    def wo_frag_off(self, NT, idx):
        return idx * 1024

    def wo_dma(self, lo, hi):
        a = self.a
        LA = f"L_wod{lo}_A"; LJ = f"L_wod{lo}_J"
        a(f"s_cmp_ge_u32 s{S_W}, 4")
        a(f"s_cbranch_scc1 {LA}")
        for NT, lab in ((2, None), (3, LA)):
            if lab:
                a(f"s_branch {LJ}")
                a.put(lab)
            for idx in range(lo, min(hi, 5*NT)):
                st, t = divmod(idx, NT)
                base = self.S_WOB if not (NT == 2 and idx >= 5) else self.S_WOB2
                a(f"s_add_u32 m0, s{base}, {idx*1024}")
                a(f"s_add_u32 s{S_T2}, s{self.S_WOS}, {st*4*40*1024 + t*1024}")
                a(f"buffer_load_dwordx4 v{self.A_DV}, s[{SRD_T}:{SRD_T+3}], s{S_T2} offen {self.ld_aux} lds")
        a.put(LJ)

    def wo_dma_cls(self, NT, lo, hi):
        a = self.a
        for idx in range(lo, min(hi, 5*NT)):
            st, t = divmod(idx, NT)
            base = self.S_WOB if not (NT == 2 and idx >= 5) else self.S_WOB2
            a(f"s_add_u32 m0, s{base}, {idx*1024}")
            a(f"s_add_u32 s{S_T2}, s{self.S_WOS}, {st*4*40*1024 + t*1024}")
            a(f"buffer_load_dwordx4 v{self.A_DV}, s[{SRD_T}:{SRD_T+3}], s{S_T2} offen {self.ld_aux} lds")

    S_WOB = 63; S_WOB2 = 64; S_WOS = 54
    def wo_setup(self):
        a = self.a
        self.g2_wsetup(3, SRD_T, self.S_WOS, self.A_DV)
        self.wo_lds_base(self.S_WOB)
        a(f"s_cmp_eq_u32 s{S_W}, 3")
        a(f"s_cselect_b32 s{self.S_WOB2}, {128000-5120}, s{self.S_WOB}")

    def wo_from_lds(self):
        a = self.a
        LA = "L_wol_A"; LJ = "L_wol_J"
        a(f"v_add_u32 v{self.G_AM}, s{self.S_WOBK}, v{self.G_DV}")
        a(f"v_add_u32 v{self.G_AM+1}, s{self.S_WOB2}, v{self.G_DV}")
        a(f"s_cmp_ge_u32 s{S_W}, 4")
        a(f"s_cbranch_scc1 {LA}")
        for NT, lab in ((2, None), (3, LA)):
            if lab:
                a(f"s_branch {LJ}")
                a.put(lab)
            for idx in range(5*NT):
                R = 88 + 4*idx
                ad = self.G_AM if not (NT == 2 and idx >= 5) else self.G_AM + 1
                a(f"ds_read_b128 v[{R}:{R+3}], v{ad} offset:{idx*1024}")
        a.put(LJ)
        a(f"s_waitcnt lgkmcnt(0)")

    def prefetch_wo(self):
        self.g2_wsetup(3, SRD_W, S_SW, 2)
        self.g2_wloads_byclass(3, [(s_, t) for s_ in range(5) for t in range(3)], [(s_, t) for s_ in range(5) for t in range(2)], SRD_W, S_SW, 2, "pfwo")
    def prefetch_w2_rest(self):
        self.g2_wsetup(5, SRD_W, S_SW, 2)
        self.g2_wloads_byclass(5, [(s_, t) for s_ in range(5) for t in range(3)], [], SRD_W, S_SW, 2, "pfw2")

    def p4_epi(self):
        a = self.a
        self.V_T = 2
        T = self.V_T; A = self.V_ACC; CSR = self.V_FR
        B1R = self.V_FR + 32
        a(f"s_cmp_eq_u32 s{S_NT}, 13")
        a(f"s_cselect_b32 s{S_T0}, s{S_WN}, 0")
        a(f"s_cmp_eq_u32 s{S_T0}, 1")
        a(f"s_cbranch_scc1 L_p4_skip")
        self.epi_T_common()
        for g in range(4):
            a(f"ds_read_b128 v[{B1R+4*g}:{B1R+4*g+3}], v{T+7} offset:{ST_B1-ST_CS+32*g}")
        for g in range(4):
            a(f"ds_read_b128 v[{B1R+16+4*g}:{B1R+16+4*g+3}], v{T+1} offset:{ST_B1-ST_CS+32*g}")
        if "rsc1" in self.opt: self.srd(SRD_O, S_WS, OFF_R, SZ_R)
        else: self.srd_twin(S_WS, OFF_R, SZ_R)
        a(f"s_lshl_b32 s{S_T0}, s{S_MT}, 1")
        a(f"s_add_u32 s{S_T0}, s{S_T0}, s{S_WM}")
        a(f"s_mul_i32 s{S_T0}, s{S_T0}, {54*4096}")
        a(f"s_lshl_b32 s{S_T1}, s{S_NT}, 2")
        a(f"s_lshl_b32 s{S_T2}, s{S_WN}, 1")
        a(f"s_add_u32 s{S_T1}, s{S_T1}, s{S_T2}")
        a(f"s_add_u32 s{S_T2}, s{S_T1}, s{S_WM}")
        a(f"s_xor_b32 s{S_T3}, s{S_WM}, 1")
        a(f"s_add_u32 s{S_T3}, s{S_T1}, s{S_T3}")
        a(f"s_lshl_b32 s{S_T2}, s{S_T2}, 12")
        a(f"s_lshl_b32 s{S_T3}, s{S_T3}, 12")
        a(f"s_add_u32 s{S_T4}, s{S_T0}, s{S_T2}")
        a(f"s_add_u32 s{S_T5}, s{S_T0}, s{S_T3}")
        a(f"v_bfe_u32 v{T+8}, v1, 4, 1")
        a(f"v_lshlrev_b32 v{T+8}, 10, v{T+8}")
        a(f"v_and_b32 v{T+9}, 15, v1")
        a(f"v_lshl_add_u32 v{T+8}, v{T+9}, 4, v{T+8}")
        a(f"v_lshl_add_u32 v{T+8}, v{T+6}, 8, v{T+8}")
        a(f"s_waitcnt lgkmcnt(0)")
        for tt in range(2):
            for q in range(2):
                for gp in range(2):
                    ab = f"v[{T+2+2*tt}:{T+3+2*tt}]"
                    for g in (2*gp, 2*gp+1):
                        for i in (0, 2):
                            r = A + 16*(2*tt+q) + 4*g + i
                            c = CSR + 16*q + 4*g + i; b1 = B1R + 16*q + 4*g + i
                            a(f"v_pk_fma_f32 v[{r}:{r+1}], v[{r}:{r+1}], {ab}, v[{b1}:{b1+1}] op_sel:[0,0,0] op_sel_hi:[1,0,1]")
                            a(f"v_pk_fma_f32 v[{r}:{r+1}], v[{c}:{c+1}], {ab}, v[{r}:{r+1}] op_sel:[0,1,0] op_sel_hi:[1,1,1]")
                            a(f"v_max_f32 v{r}, 0, v{r}")
                            a(f"v_max_f32 v{r+1}, 0, v{r+1}")
                            a(f"v_pk_mul_f32 v[{r}:{r+1}], v[{r}:{r+1}], v[{r}:{r+1}]")
                    r = A + 16*(2*tt+q) + 8*gp
                    a(f"v_cvt_pk_bf16_f32 v{r}, v{r}, v{r+1}")
                    a(f"v_cvt_pk_bf16_f32 v{r+1}, v{r+2}, v{r+3}")
                    a(f"v_cvt_pk_bf16_f32 v{r+2}, v{r+4}, v{r+5}")
                    a(f"v_cvt_pk_bf16_f32 v{r+3}, v{r+6}, v{r+7}")
                    a(f"s_nop 1")
                    a(f"v_permlane32_swap_b32 v{r}, v{r+2}")
                    a(f"v_permlane32_swap_b32 v{r+1}, v{r+3}")
                    if "rsc1" in self.opt:
                        a(f"buffer_store_dwordx4 v[{r}:{r+3}], v{T+8}, s[{SRD_O}:{SRD_O+3}], s{S_T4+q} offen offset:{2048*tt + 512*gp} sc1")
                    else:
                        self.store_twin("buffer_store_dwordx4", f"v[{r}:{r+3}]", T+8, f"s{S_T4+q}", f"offset:{2048*tt + 512*gp}")
        a.put("L_p4_skip")
        self.V_T = 148

    def p4_setup(self):
        a = self.a
        a(f"s_cmp_ge_u32 s{S_GI}, 28")
        a(f"s_cbranch_scc1 L_p4s_done")
        a(f"s_cmp_ge_u32 s{S_GI}, 14")
        a(f"s_cselect_b32 s{S_T0}, 1, 0")
        a(f"s_cselect_b32 s{S_T1}, 14, 0")
        a(f"s_sub_u32 s{S_NT}, s{S_GI}, s{S_T1}")
        a(f"s_lshl_b32 s{S_MT}, s{S_GX}, 1")
        a(f"s_add_u32 s{S_MT}, s{S_MT}, s{S_T0}")
        a(f"s_cmp_ge_u32 s{S_NT}, 10")
        a(f"s_cselect_b32 s{S_T0}, 10, 0")
        a(f"s_sub_u32 s{S_KK}, s{S_NT}, s{S_T0}")
        if "p4norot" in self.opt: a(f"s_mov_b32 s{S_KK}, 0")
        a(f"s_cmp_lt_u32 s{S_W}, 4")
        a(f"s_cbranch_scc1 L_p4s_compute")
        self.V_T = 16
        self.g1_setup_loader(3456)
        self.g1_linearA()
        self.srd(SRD_A, S_WS, OFF_H, SZ_H)
        self.srd(SRD_W, S_W1, 0, 640*3456)
        T = self.V_T
        self.srd(SRD_T, S_B1, 0, 1728*2)
        a(f"s_sub_u32 s{S_T4}, s{S_W}, 4")
        a(f"s_lshl_b32 s{S_T4}, s{S_T4}, 5")
        a(f"v_and_b32 v{T+10}, 31, v1")
        a(f"v_add_u32 v{T+10}, s{S_T4}, v{T+10}")
        a(f"s_lshl_b32 s{S_T4}, s{S_NT}, 7")
        a(f"v_add_u32 v{T+11}, s{S_T4}, v{T+10}")
        a(f"v_lshlrev_b32 v{T+11}, 1, v{T+11}")
        a(f"buffer_load_ushort v{T+22}, v{T+11}, s[{SRD_T}:{SRD_T+3}], 0 offen")
        a(f"v_lshlrev_b32 v{T+11}, 1, v{T+11}")
        a(f"v_add_u32 v{T+11}, {hex(OFF_CS1)}, v{T+11}")
        a(f"buffer_load_dword v{T+23}, v{T+11}, s[{SRD_F}:{SRD_F+3}], 0 offen {self.ld_aux}")
        a(f"s_mov_b32 s{S_T3}, s{S_KK}")
        for sg in range(3):
            a(f"s_mul_i32 s{S_T4}, s{S_T3}, {64*3456}")
            a(f"s_add_u32 s{S_T4}, s{S_T4}, s{S_SW}")
            for q in range(4):
                a(f"s_add_u32 m0, s{S_M0A}, {sg*32768 + 16384 + q*4096}")
                a(f"s_add_u32 s{S_T2}, s{S_T4}, {q*16*3456}")
                a(f"buffer_load_dwordx4 v{self.V_OFFW}, s[{SRD_W}:{SRD_W+3}], s{S_T2} offen lds")
            a(f"s_add_u32 s{S_T3}, s{S_T3}, 1")
            a(f"s_cmp_eq_u32 s{S_T3}, 10")
            a(f"s_cselect_b32 s{S_T3}, 0, s{S_T3}")
        self.V_T = 148
        a(f"s_branch L_p4s_done")
        a.put("L_p4s_compute")
        self.g1_setup_compute()
        a.put("L_p4s_done")

    def p4(self):
        a = self.a
        a(f"s_cmp_ge_u32 s{S_GI}, 28")
        a(f"s_cbranch_scc1 L_p4_done")
        self.aux_A = self.ld_aux
        self.st1 = 15 if "p4s" in self.opt else None
        a(f"s_cmp_lt_u32 s{S_W}, 4")
        a(f"s_cbranch_scc1 L_p4_compute")
        self.V_T = 16
        for sg in range(3):
            a(f"s_lshl_b32 s{S_T4}, s{S_KK}, 14")
            a(f"s_add_u32 s{S_T4}, s{S_T4}, s{S_SA}")
            for q in range(4):
                a(f"s_add_u32 m0, s{S_M0A}, {sg*32768 + q*4096}")
                a(f"s_add_u32 s{S_T2}, s{S_T4}, {q*4096}")
                a(f"buffer_load_dwordx4 v{self.V_OFFA}, s[{SRD_A}:{SRD_A+3}], s{S_T2} offen {self.aux_A} lds")
            a(f"s_add_u32 s{S_KK}, s{S_KK}, 1")
            a(f"s_cmp_eq_u32 s{S_KK}, 10")
            a(f"s_cselect_b32 s{S_KK}, 0, s{S_KK}")
        a(f"s_mov_b32 s{S_SLOT}, {3*32768}")
        self.kk_wrap = 0
        self.b1_hook = True
        self.linA = True
        self.g1_loader(3456, "p4", "part")
        self.linA = False
        self.b1_hook = False
        self.V_T = 148
        a(f"s_branch L_p4_done")
        a.put("L_p4_compute")
        self.nocs = True
        self.g1_compute("T", "p4", presetup=True)
        self.nocs = False
        if "p4s" in self.opt: self.stamp(16)
        self.p4_epi()
        if "p4s" in self.opt: self.stamp(17)
        a.put("L_p4_done")

    def code_warm(self):
        a = self.a
        a(f"s_getpc_b64 s[{SRD_T}:{SRD_T+1}]")
        a.put("L_pc_here")
        a(f"s_sub_u32 s{SRD_T}, s{SRD_T}, L_pc_here-{NAME}")
        a(f"s_subb_u32 s{SRD_T+1}, s{SRD_T+1}, 0")
        a(f"s_mov_b32 s{SRD_T+2}, L_end-{NAME}")
        a(f"s_mov_b32 s{SRD_T+3}, 0x20000")
        a(f"v_lshlrev_b32 v254, 7, v0")
        a(f"buffer_load_dword v255, v254, s[{SRD_T}:{SRD_T+3}], 0 offen")

    def epoch_update(self):
        a = self.a
        a(f"s_or_b32 s{S_T0}, s2, s{S_W}")
        a(f"s_cmp_lg_u32 s{S_T0}, 0")
        a(f"s_cbranch_scc1 L_noepoch")
        a(f"v_mov_b32 v2, {OFF_EPOCH}")
        a(f"v_mov_b32 v3, s{S_TAG}")
        a(f"s_mov_b64 exec, 1")
        a(f"buffer_store_dword v3, v2, s[{SRD_F}:{SRD_F+3}], 0 offen sc1")
        a(f"s_mov_b64 exec, -1")
        a.put("L_noepoch")

    def epilogue_stamps(self):
        if getattr(self, "freeze", False): self.stamps = True
        if not self.stamps: return
        a = self.a
        if "dbg" in self.opt:
            a(f"s_or_b32 s{S_T0}, s2, s{S_W}")
            a(f"s_cmp_lg_u32 s{S_T0}, 0")
            a(f"s_cbranch_scc1 L_nodbg")
            self.srd(SRD_T, S_DBG, 0, 256)
            a(f"s_memrealtime s[100:101]")
            a(f"s_waitcnt lgkmcnt(0)")
            a(f"s_sub_u32 s{S_STAMP+15}, s100, s88")
            a(f"s_add_u32 s{S_STAMP+15}, s{S_STAMP+15}, s{S_STAMP}")
            a(f"v_mov_b32 v3, 0")
            a(f"s_mov_b64 exec, 1")
            for i in range(16):
                a(f"s_sub_u32 s{S_T1}, s{S_STAMP+i}, s{S_STAMP}")
                a(f"v_mov_b32 v2, s{S_T1}")
                a(f"buffer_store_dword v2, v3, s[{SRD_T}:{SRD_T+3}], 0 offen offset:{4*i}")
                a(f"s_nop 1")
            a(f"s_mov_b64 exec, -1")
            a.put("L_nodbg")
        a(f"s_waitcnt lgkmcnt(0)")
        a(f"s_lshl_b32 s{S_T0}, s2, 3")
        a(f"s_add_u32 s{S_T0}, s{S_T0}, s{S_W}")
        a(f"s_lshl_b32 s{S_T0}, s{S_T0}, 7")
        a(f"s_add_u32 s{S_T0}, s{S_T0}, 0x80000")
        a(f"v_mov_b32 v3, s{S_T0}")
        a(f"s_mov_b64 exec, 1")
        a(f"s_memrealtime s[100:101]")
        a(f"s_waitcnt lgkmcnt(0)")
        a(f"s_sub_u32 s{S_T1}, s100, s88")
        a(f"v_mov_b32 v2, s{S_T1}")
        a(f"buffer_store_dword v2, v3, s[{SRD_F}:{SRD_F+3}], 0 offen offset:{4*31}")
        a(f"v_mov_b32 v2, s88")
        a(f"buffer_store_dword v2, v3, s[{SRD_F}:{SRD_F+3}], 0 offen offset:{4*30}")
        for i in range(self.nstamp):
            a(f"s_sub_u32 s{S_T1}, s{S_STAMP+i}, s{S_STAMP}")
            a(f"v_mov_b32 v2, s{S_T1}")
            a(f"buffer_store_dword v2, v3, s[{SRD_F}:{SRD_F+3}], 0 offen offset:{4*i}")
            a(f"s_nop 1")
        a(f"s_mov_b64 exec, -1")

    def build(self):
        a = self.a
        self.prologue()
        self.p1()
        self.p2_setup()
        self.p2_wait_prep()
        self.p1_signal()
        if self.stop_after != "p1":
            self.p2()
            if self.stop_after != "p2":
                self.V_S = 66
                self.group_barrier(0, "gb23", S_QB, S_HEAD, hook=self.hook23)
                self.stamp(9)
                self.g2(3)
                self.stamp(10)
                if self.stop_after != "p3":
                    self.group_barrier(1, "gb34", hook=self.hook34, local=True)
                    self.stamp(11)
                    self.p4()
                    self.stamp(12)
                    if self.stop_after != "p4":
                        self.group_barrier(2, "gb45", hook=self.hook45, local=True)
                        self.stamp(13)
                        self.g2(5)
            a(f"s_waitcnt vmcnt(0)")
            self.stamp(14)
        if "delay" in self.opt:
            for i in range(4): a("s_sleep 127")
        self.epoch_update()
        if "showfast" in self.opt:
            a(f"s_lshl_b32 s{S_T0}, s{S_FAST}, 8")
            a(f"s_or_b32 s{S_T0}, s{S_T0}, s{S_XCC}")
            a(f"s_add_u32 s{S_STAMP+1}, s{S_STAMP}, s{S_T0}")
        self.epilogue_stamps()
        a(f"s_waitcnt vmcnt(0)")
        a.put("L_end")
        a("s_endpgm")
        return a

import struct
def f32(x):
    return struct.unpack("<I", struct.pack("<f", x))[0]

HEADER = open("sequential_preLN__mha_block__dense_activation_squared_relu__prompt.s.ref").read().split("; Override launch geometry")[0]

def wrap(body, lds=163840, vgpr=256):
    s = HEADER
    s += f"; @launch grid=(256,1,1) block=(512,1,1) lds={lds}\n"
    s += '.amdgcn_target "amdgcn-amd-amdhsa--gfx950"\n.text\n'
    s += f".globl {NAME}\n.p2align 8\n.type {NAME},@function\n{NAME}:\n"
    s += body
    s += f"""
.section .rodata,"a"
.p2align 6
.amdhsa_kernel {NAME}
  .amdhsa_next_free_vgpr {vgpr}
  .amdhsa_next_free_sgpr 102
  .amdhsa_accum_offset {vgpr}
  .amdhsa_group_segment_fixed_size 0
  .amdhsa_kernarg_size 88
  .amdhsa_user_sgpr_count 2
  .amdhsa_user_sgpr_kernarg_segment_ptr 1
  .amdhsa_system_sgpr_workgroup_id_x 1
.end_amdhsa_kernel
"""
    return s

if __name__ == "__main__":
    import argparse
    ap = argparse.ArgumentParser()
    ap.add_argument("-o", default="out.s")
    ap.add_argument("--stop", default=None)
    ap.add_argument("--stamps", action="store_true")
    ap.add_argument("--opt", default="")
    ap.add_argument("--plow", default=None)
    ap.add_argument("--lowpos", default=None)
    args = ap.parse_args()
    g = Gen(stop_after=args.stop, stamps=args.stamps, opt=[o for o in args.opt.split(',') if o])
    if args.lowpos is not None: g.low_pos = tuple(int(x) for x in args.lowpos.split(",") if x)
    if "ws1" in g.opt: g.warm_slots = {'dst': 48, 'w1': 52}
    if "ws2" in g.opt: g.warm_slots = {'w1': 48, 'dst': 52}
    if "ws3" in g.opt: g.warm_slots = {'w1': 48, 'dst': 49, 'wp': 50}
    if "ws0" in g.opt: g.warm_slots = {}
    if "low2" in g.opt: g.low_tiles = 2
    if "low3" in g.opt: g.low_tiles = 3
    if args.plow is not None: g.prio_low = tuple(int(x) for x in args.plow.split(",") if x)
    a = g.build()
    rep = check(a.L)
    for r in rep: print(r)
    open(args.o, "w").write(wrap(a.text()))
    print("wrote", args.o, len(a.L), "lines;", len(rep), "hazards")
```

```python
import sys, math
sys.path.insert(0, "gen")
from asmlib import Asm, vr, sr, check

NAME = "sequential_preLN__mha_block__dense_activation_squared_relu__prompt_kernel"

OFF_EPOCH = 0
OFF_ALL   = 0x1000
OFF_GB    = 0x50000
OFF_MB1   = 65536
OFF_GR    = 0x68000
OFF_CS1   = 0x70000
OFF_PST   = 0xC0000
OFF_Q     = 0x100000
OFF_KV    = 0x400000
OFF_O     = 0xA00000
OFF_H     = 0xD00000
OFF_R     = 0x1000000
OFF_WOP   = 0x1700000
OFF_W2P   = 0x1800000
SZ_Q = 32*64*1280
SZ_KV = 32*64*2560
SZ_O = 32*20*4096
SZ_H = 2048*1280
SZ_R = 32*54*4096
SZ_WOP = 20*40*1024
SZ_W2P = 54*40*1024

S_KA = 0; S_WG = 2; S_W = 3
S_X = 4; S_WQKV = 6; S_WO = 8; S_W1 = 12; S_B1 = 14; S_W2 = 16; S_B2 = 18; S_OUT = 20; S_DBG = 22; S_WS = 24
S_TAG = 26; S_GX = 27
SRD_A = 28; SRD_W = 32; SRD_O = 36; SRD_F = 40; SRD_T = 44
S_GI = 48
S_MT = 49; S_NT = 50; S_KK = 51; S_CNT = 52; S_SLOT = 53
S_SA = 54; S_SW = 55; S_T0 = 56; S_T1 = 57; S_T2 = 58; S_T3 = 59; S_T4 = 60; S_T5 = 61
S_M0A = 62; S_WM = 63; S_WN = 64; S_DELTA = 65; S_ONES = 66; S_ROT4 = 67; S_RLW = 68; S_RSLOT = 69; S_HEAD = 66; S_QB = 67
S_STAMP = 70
S_SAVE = 90
S_OOB = 53
S_XCC = 10; S_FAST = 11
SRD_P = 96

LDS_STATS = 0
ST_PX, ST_PQ, ST_PC, ST_AA, ST_BB, ST_CS, ST_B1 = 0, 4096, 8192, 9216, 9728, 10240, 10752
LDS_RL = 32768

class Gen:
    def __init__(self, stop_after=None, stamps=False, opt=()):
        self.opt = set(opt)
        self.a = Asm()
        self.stop_after = stop_after
        self.stamps = stamps
        self.nstamp = 0
        self.code_rounds = 2
        self.linA = False
        self.tlb_step = 0x80000 if 'tlb512k' in self.opt else 0x200000
        self.out_aux = 'nt' if 'outnt' in self.opt else ('sc1' if 'outsc1' in self.opt else '')
        self.evtag = 'u'
        self.kk_wrap = 2
        global LDS_STATS, LDS_RL
        if "ns5" not in self.opt:
            self.NSLOT = 4; LDS_STATS = 131072; LDS_RL = 131072 + 12288
        else:
            self.NSLOT = 5; LDS_STATS = 0; LDS_RL = 32768
        self.fast_aux = "nt" if "fnt" in self.opt else ("sc0" if "fsc0" in self.opt else ("sc0 nt" if "fsc0nt" in self.opt else ""))
        self.opt_g2 = "3" if "g2s3" in self.opt else ("5" if "g2s5" in self.opt else "")
        self.ld_aux = "" if "plainld" in self.opt else "sc1"

    def srd(self, dst, base_s, off, size):
        a = self.a
        if off:
            a(f"s_add_u32 s{dst}, s{base_s}, {hex(off)}")
            a(f"s_addc_u32 s{dst+1}, s{base_s+1}, 0")
        else:
            a(f"s_mov_b32 s{dst}, s{base_s}")
            a(f"s_mov_b32 s{dst+1}, s{base_s+1}")
        a(f"s_mov_b32 s{dst+2}, {hex(size)}")
        a(f"s_mov_b32 s{dst+3}, 0x20000")

    def csel(self, dst, x, y):
        self.a(f"s_mov_b32 s{dst}, {y}")
        self.a(f"s_cselect_b32 s{dst}, {x}, s{dst}")

    def withT(self, T, fn, *args, **kw):
        old = self.V_T; self.V_T = T
        r = fn(*args, **kw)
        self.V_T = old
        return r

    def srd_twin(self, base_s, off, size):
        a = self.a
        self.srd(SRD_O, base_s, off, size)
        a(f"s_mov_b32 s{SRD_P}, s{SRD_O}")
        a(f"s_mov_b32 s{SRD_P+1}, s{SRD_O+1}")
        a(f"s_mov_b32 s{SRD_P+3}, 0x20000")
        a(f"s_cmp_eq_u32 s{S_FAST}, 1")
        a(f"s_cselect_b32 s{SRD_P+2}, s{SRD_O+2}, 0")
        a(f"s_cselect_b32 s{SRD_O+2}, 0, s{SRD_O+2}")
    def store_twin(self, op, data, vaddr, soff, extra=""):
        a = self.a
        a(f"{op} {data}, v{vaddr}, s[{SRD_O}:{SRD_O+3}], {soff} offen {extra} sc1")
        a(f"{op} {data}, v{vaddr}, s[{SRD_P}:{SRD_P+3}], {soff} offen {extra} {self.fast_aux}")

    def set_exec(self, mask):
        mask = int(str(mask), 0) & 0xFFFFFFFFFFFFFFFF
        if mask == 0xFFFFFFFFFFFFFFFF: self.a("s_mov_b64 exec, -1")
        elif mask < 0x80000000: self.a(f"s_mov_b64 exec, {hex(mask)}")
        else:
            self.a(f"s_mov_b32 exec_lo, {hex(mask & 0xffffffff)}")
            self.a(f"s_mov_b32 exec_hi, {hex(mask >> 32)}")

    def stamp(self, i=None):
        if not self.stamps: return
        if i is None: return
        self.nstamp = max(self.nstamp, i + 1)
        self.a(f"s_memtime s[100:101]")
        self.a(f"s_waitcnt lgkmcnt(0)")
        self.a(f"s_mov_b32 s{S_STAMP+i}, s100")

    def prologue(self):
        a = self.a
        a(f"s_cmp_ge_u32 s2, 256")
        a(f"s_cbranch_scc1 L_end")
        if "perm" in self.opt:
            a(f"s_lshr_b32 s3, s2, 3")
            a(f"s_and_b32 s2, s2, 7")
            a(f"s_lshl_b32 s2, s2, 5")
            a(f"s_or_b32 s2, s2, s3")
        self.stamp(0)
        if self.stamps: a(f"s_memrealtime s[88:89]")
        a(f"s_load_dwordx16 s[4:19], s[0:1], 0")
        a(f"s_load_dwordx4 s[20:23], s[0:1], 64")
        a(f"s_load_dwordx2 s[24:25], s[0:1], 80")
        if "nowarm" not in self.opt: self.code_warm()
        a(f"v_lshrrev_b32 v2, 6, v0")
        a(f"v_and_b32 v1, 63, v0")
        a(f"v_readfirstlane_b32 s{S_W}, v2")
        a(f"s_and_b32 s{S_GX}, s2, 7")
        a(f"s_lshr_b32 s{S_GI}, s2, 3")
        a(f"v_mov_b32 v{self.V_S+2}, 0")
        a(f"v_mov_b32 v{self.V_S+5}, 0")
        a(f"v_mov_b32 v{self.V_S+20}, 0")
        a(f"v_mov_b32 v{self.V_S+21}, 0")
        a(f"s_lshr_b32 s{S_WM}, s{S_W}, 2")
        a(f"s_and_b32 s{S_WN}, s{S_W}, 3")

    def finish_tag(self):
        a = self.a
        a(f"s_waitcnt lgkmcnt(0)")
        a(f"s_mul_i32 s{S_TAG}, s{S_TAG}, 0x9E3779B1")
        a(f"s_add_u32 s{S_TAG}, s{S_TAG}, 0x7F4A7C15")

    V_OFFA = 2; V_OFFW = 3
    V_AA = 2
    V_AWA = 6; V_AWB = 7
    V_AW2A = 0; V_AW2B = 1
    V_CSA = 8
    V_CSD = 12
    V_FR = 16
    V_ACC = 80
    V_T = 148
    V_S = 152
    POLLW = 0
    SIGW = 7
    V_LA = 4
    V_LS = 8
    V_LD = 20
    V_LU = 40
    NSLOT = 5

    def g1_setup_loader(self, WS):
        a = self.a
        T = self.V_T
        a(f"s_sub_u32 s{S_T4}, s{S_W}, 4")
        a(f"v_lshrrev_b32 v{T}, 4, v1")
        a(f"s_lshl_b32 s{S_T0}, s{S_T4}, 2")
        a(f"v_add_u32 v{T+1}, s{S_T0}, v{T}")
        a(f"v_and_b32 v{T+1}, 7, v{T+1}")
        a(f"v_and_b32 v{T+2}, 7, v1")
        a(f"v_xor_b32 v{T+1}, v{T+1}, v{T+2}")
        a(f"v_lshlrev_b32 v{T+1}, 4, v{T+1}")
        a(f"v_lshrrev_b32 v{T+2}, 3, v1")
        a(f"v_mul_u32_u24 v{T+2}, 1280, v{T+2}")
        a(f"v_add_u32 v{self.V_OFFA}, v{T+1}, v{T+2}")
        a(f"v_lshlrev_b32 v{T+1}, 2, v{T}")
        a(f"v_and_b32 v{T+2}, 15, v1")
        a(f"v_xor_b32 v{T+1}, v{T+1}, v{T+2}")
        a(f"v_lshlrev_b32 v{T+1}, 4, v{T+1}")
        a(f"v_mul_u32_u24 v{T+2}, {WS}, v{T}")
        a(f"v_add_u32 v{self.V_OFFW}, v{T+1}, v{T+2}")
        a(f"s_lshl_b32 s{S_T0}, s{S_MT}, 7")
        a(f"s_lshl_b32 s{S_T1}, s{S_T4}, 3")
        a(f"s_add_u32 s{S_T0}, s{S_T0}, s{S_T1}")
        a(f"s_mul_i32 s{S_SA}, s{S_T0}, 1280")
        a(f"s_mul_i32 s{S_T0}, s{S_T4}, {4*WS}")
        a(f"s_lshl_b32 s{S_T1}, s{S_NT}, 8")
        a(f"s_add_u32 s{S_SW}, s{S_T0}, s{S_T1}")
        a(f"s_lshl_b32 s{S_M0A}, s{S_T4}, 10")
        a(f"s_mov_b32 s{S_SLOT}, 0")

    def g1_linearA(self):
        a = self.a
        a(f"v_lshlrev_b32 v{self.V_OFFA}, 4, v1")
        a(f"s_mul_i32 s{S_SA}, s{S_MT}, 163840")
        a(f"s_add_u32 s{S_SA}, s{S_SA}, s{S_M0A}")

    def g1_dma1(self, WS, q):
        a = self.a
        if q == 0:
            a(f"s_lshl_b32 s{S_T2}, s{S_KK}, {14 if self.linA else 7}")
            a(f"s_add_u32 s{S_T2}, s{S_T2}, s{S_SA}")
            a(f"s_add_u32 m0, s{S_SLOT}, s{S_M0A}")
            a(f"s_mul_i32 s{S_T3}, s{S_KK}, {64*WS}")
        elif q == 4:
            a(f"s_add_u32 s{S_T2}, s{S_T3}, s{S_SW}")
            a(f"s_add_u32 m0, m0, 4096")
            a(f"s_nop 0")
        else:
            a(f"s_add_u32 m0, m0, 4096")
            a(f"s_add_u32 s{S_T2}, s{S_T2}, {(4096 if self.linA else 32*1280) if q < 4 else 16*WS}")
        if q < 4:
            a(f"buffer_load_dwordx4 v{self.V_OFFA}, s[{SRD_A}:{SRD_A+3}], s{S_T2} offen {self.aux_A} lds")
        else:
            a(f"buffer_load_dwordx4 v{self.V_OFFW}, s[{SRD_W}:{SRD_W+3}], s{S_T2} offen lds")
        if q == 7:
            a(f"s_add_u32 s{S_KK}, s{S_KK}, 1")
            a(f"s_cmp_eq_u32 s{S_KK}, 10")
            a(f"s_cselect_b32 s{S_KK}, {self.kk_wrap}, s{S_KK}")
            a(f"s_add_u32 s{S_SLOT}, s{S_SLOT}, 32768")
            a(f"s_cmp_eq_u32 s{S_SLOT}, {self.NSLOT*32768}")
            a(f"s_cselect_b32 s{S_SLOT}, 0, s{S_SLOT}")

    def g1_dma_stage(self, WS):
        for q in range(8): self.g1_dma1(WS, q)

    def slot_next(self):
        a = self.a
        a(f"s_add_u32 s{S_RSLOT}, s{S_RSLOT}, 1")
        a(f"s_cmp_eq_u32 s{S_RSLOT}, {self.NSLOT}")
        a(f"s_cselect_b32 s{S_RSLOT}, 0, s{S_RSLOT}")
        a(f"s_cmp_eq_u32 s{S_RSLOT}, {self.NSLOT-1}")
        self.csel(S_DELTA, hex((-(self.NSLOT-1)*32768) & 0xffffffff), 32768)

    def g1_loader(self, WS, tag, mode):
        a = self.a
        T = self.V_T
        pre = self.NSLOT - 1
        nx = 1 if mode == "gran" else 4
        if mode == "gran":
            a(f"s_waitcnt vmcnt(16)")
            if "p1s" in self.opt: self.stamp(18)
            a(f"s_barrier")
            if pre == 4:
                for q in range(8):
                    self.g1_dma1(WS, q)
            self.tag_ready()
        else:
            a(f"s_waitcnt vmcnt(8)")
            a(f"s_barrier")
            if pre == 4:
                for q in range(8):
                    self.g1_dma1(WS, q)
                a(f"s_waitcnt vmcnt(8)")
            else:
                a(f"s_waitcnt vmcnt(4)")
        a(f"s_mov_b32 s{S_CNT}, 0")
        L1 = f"L_{tag}_lloop"
        a.put(L1)
        a(f"s_add_u32 s{S_CNT}, s{S_CNT}, 1")
        a(f"s_waitcnt vmcnt({8*(pre-2)})")
        a(f"s_barrier")
        for q in range(8):
            if "nodma" not in self.opt: self.g1_dma1(WS, q)
        a(f"s_cmp_lt_u32 s{S_CNT}, {10-pre}")
        a(f"s_cbranch_scc1 {L1}")
        a(f"s_sub_u32 s{S_T4}, s{S_W}, 4")
        a(f"s_lshl_b32 s{S_T0}, s{S_T4}, 5")
        a(f"v_and_b32 v{T}, 31, v1")
        a(f"v_add_u32 v{T}, s{S_T0}, v{T}")
        a(f"s_lshl_b32 s{S_T1}, s{S_MT}, 7")
        a(f"v_add_u32 v{T+1}, s{S_T1}, v{T}")
        if mode == "gran":
            a(f"v_lshlrev_b32 v{T+1}, 4, v{T+1}")
            a(f"v_add_u32 v{T+1}, {hex(OFF_GR)}, v{T+1}")
            a(f"buffer_load_dwordx4 v[{T+4}:{T+7}], v{T+1}, s[{SRD_F}:{SRD_F+3}], 0 offen sc1")
        else:
            a(f"v_lshlrev_b32 v{T+1}, 7, v{T+1}")
            a(f"v_lshrrev_b32 v{T+2}, 5, v1")
            a(f"v_lshl_add_u32 v{T+1}, v{T+2}, 6, v{T+1}")
            a(f"v_add_u32 v{T+1}, {hex(OFF_PST)}, v{T+1}")
            for q in range(4):
                a(f"buffer_load_dwordx4 v[{T+4+4*q}:{T+7+4*q}], v{T+1}, s[{SRD_F}:{SRD_F+3}], 0 offen offset:{16*q} {self.ld_aux}")
        late = 0
        if pre == 4:
            a(f"s_waitcnt vmcnt({16+nx})")
            a(f"s_barrier")
        a(f"s_waitcnt vmcnt({8+nx})")
        a(f"s_barrier")
        rl = 0
        if mode == "gran":
            self.withT(T + 24, self.relayout_load)
            rl = 4
        a(f"s_waitcnt vmcnt({nx+rl})")
        a(f"s_barrier")
        if mode != "gran" and "now2rest" not in self.opt:
            self.g2_wsetup(5, SRD_T, S_SW, T + 24)
            for s_ in range(5):
                for t in range(3):
                    self.g2_wload1(5, 3, s_, t, SRD_T, S_SW, T + 24)
            late = 15
        a(f"s_barrier")
        a(f"s_waitcnt vmcnt({late+rl})")
        if mode == "gran":
            Lp = f"L_{tag}_gpoll"; Lo = f"L_{tag}_gok"
            a(f"s_mov_b32 s{S_T0}, 0")
            a.put(Lp)
            a(f"v_cmp_ne_u32 vcc, s{S_TAG}, v{T+6}")
            a(f"v_cmp_ne_u32 s[{S_SAVE}:{S_SAVE+1}], s{S_TAG}, v{T+7}")
            a(f"s_nop 1")
            a(f"s_or_b64 vcc, vcc, s[{S_SAVE}:{S_SAVE+1}]")
            a(f"s_cbranch_vccz {Lo}")
            a(f"s_add_u32 s{S_T0}, s{S_T0}, 1")
            a(f"s_cmp_ge_u32 s{S_T0}, 0x40000")
            a(f"s_cbranch_scc1 {Lo}")
            a(f"buffer_load_dwordx4 v[{T+4}:{T+7}], v{T+1}, s[{SRD_F}:{SRD_F+3}], 0 offen sc1")
            a(f"s_waitcnt vmcnt(0)")
            a(f"s_branch {Lp}")
            a.put(Lo)
            A_, B_ = T+4, T+5
        else:
            for q in range(1, 4):
                for i in range(4):
                    a(f"v_add_f32 v{T+4+i}, v{T+4+i}, v{T+4+4*q+i}")
            a(f"v_add_f32 v{T+4}, v{T+4}, v{T+6}")
            a(f"v_add_f32 v{T+5}, v{T+5}, v{T+7}")
            a(f"v_mov_b32 v{T+6}, v{T+4}")
            a(f"v_mov_b32 v{T+7}, v{T+5}")
            a(f"s_nop 1")
            a(f"v_permlane32_swap_b32 v{T+6}, v{T+4}")
            a(f"v_permlane32_swap_b32 v{T+7}, v{T+5}")
            a(f"s_nop 1")
            a(f"v_add_f32 v{T+4}, v{T+4}, v{T+6}")
            a(f"v_add_f32 v{T+5}, v{T+5}, v{T+7}")
            self.ab_from_sums(T+4, T+5, T+8)
            A_, B_ = T+9, T+8
        a(f"v_lshlrev_b32 v{T}, 2, v{T}")
        a(f"v_add_u32 v{T}, {LDS_STATS}, v{T}")
        a(f"ds_write_b32 v{T}, v{A_} offset:{ST_AA}")
        a(f"ds_write_b32 v{T}, v{B_} offset:{ST_BB}")
        if getattr(self, "b1_hook", False):
            a(f"v_lshlrev_b32 v{T+22}, 16, v{T+22}")
            a(f"ds_write_b32 v{T}, v{T+22} offset:{ST_B1}")
            a(f"ds_write_b32 v{T}, v{T+23} offset:{ST_CS}")
        a(f"s_waitcnt lgkmcnt(0)")
        a(f"s_barrier")

    def ab_from_sums(self, sx, sq, o):
        a = self.a
        a(f"v_mul_f32 v{o}, {hex(f32(1.0/640))}, v{sx}")
        a(f"v_mul_f32 v{o+1}, {hex(f32(1.0/640))}, v{sq}")
        a(f"v_fma_f32 v{o+1}, -v{o}, v{o}, v{o+1}")
        a(f"v_max_f32 v{o+1}, 0, v{o+1}")
        a(f"v_add_f32 v{o+1}, {hex(f32(1e-5))}, v{o+1}")
        a(f"v_rsq_f32 v{o+1}, v{o+1}")
        a(f"s_nop 0")
        a(f"v_mul_f32 v{o}, v{o}, v{o+1}")
        a(f"v_sub_f32 v{o}, 0, v{o}")

    V_WRM = 252
    S_WRM = 62; S_WRMD = 54
    def p1_l2warm(self):
        a = self.a
        T = self.V_T; V = self.V_WRM
        LW = "L_warm_w"; LJ = "L_warm_j"
        a(f"s_bitcmp1_b32 s{S_W}, 0")
        a(f"s_cbranch_scc1 {LW}")
        self.srd(SRD_T, S_X, 0, 2048*1280)
        a(f"s_and_b32 s{S_T0}, s{S_GX}, 3")
        a(f"s_lshl_b32 s{S_T0}, s{S_T0}, 9")
        a(f"s_lshl_b32 s{S_T1}, s{S_GI}, 4")
        a(f"s_add_u32 s{S_T0}, s{S_T0}, s{S_T1}")
        a(f"v_add_u32 v{T}, s{S_T0}, v1")
        a(f"v_mul_u32_u24 v{V}, 1280, v{T}")
        a(f"v_cmp_gt_u32 vcc, 16, v1")
        a(f"s_mov_b32 s{self.S_WRMD}, 128")
        a(f"s_branch {LJ}a")
        a.put(LW)
        self.srd(SRD_T, S_WQKV, 0, 640*3840)
        a(f"v_lshrrev_b32 v{T}, 4, v1")
        a(f"s_lshl_b32 s{S_T0}, s{S_GI}, 1")
        a(f"v_add_u32 v{T}, s{S_T0}, v{T}")
        a(f"v_mul_u32_u24 v{V}, 3840, v{T}")
        a(f"v_and_b32 v{T+1}, 15, v1")
        a(f"v_lshl_add_u32 v{V}, v{T+1}, 7, v{V}")
        a(f"s_lshr_b32 s{S_T0}, s{S_GX}, 2")
        a(f"s_lshl_b32 s{S_T0}, s{S_T0}, 11")
        a(f"v_add_u32 v{V}, s{S_T0}, v{V}")
        a(f"v_cmp_gt_u32 vcc, 32, v1")
        a(f"s_mov_b32 s{self.S_WRMD}, {64*3840}")
        a.put(LJ + "a")
        a(f"s_cmp_ge_u32 s{S_W}, 2")
        a(f"s_cselect_b64 s[{S_SAVE}:{S_SAVE+1}], 0, vcc")
        a(f"v_mov_b32 v{T+1}, 0x7f000000")
        a(f"s_nop 0")
        a(f"v_cndmask_b32 v{V}, v{T+1}, v{V}, s[{S_SAVE}:{S_SAVE+1}]")
        a(f"s_mul_i32 s{self.S_WRM}, s{self.S_WRMD}, 3")
        for c in range(3):
            self.warm1()

    def warm1(self):
        a = self.a
        a(f"buffer_load_dword v253, v{self.V_WRM}, s[{SRD_T}:{SRD_T+3}], s{self.S_WRM} offen")
        a(f"s_add_u32 s{self.S_WRM}, s{self.S_WRM}, s{self.S_WRMD}")

    def w1_l2warm_keepT(self):
        self.w1_l2warm()

    def w1_l2warm(self):
        a = self.a
        V = self.A_ALL + 1
        self.srd(SRD_O, S_W1, 0, 640*3456)
        a(f"s_mul_i32 s{S_T0}, s{S_GI}, 540")
        a(f"s_lshl_b32 s{S_T1}, s{S_W}, 6")
        a(f"s_add_u32 s{S_T0}, s{S_T0}, s{S_T1}")
        a(f"v_add_u32 v{V}, s{S_T0}, v1")
        a(f"v_lshlrev_b32 v{V}, 7, v{V}")
        a(f"buffer_load_dword v{V+1}, v{V}, s[{SRD_O}:{SRD_O+3}], 0 offen")
        L = f"L_w1w_skip{self.evtag}"
        a(f"s_cmp_lg_u32 s{S_W}, 0")
        a(f"s_cbranch_scc1 {L}")
        self.set_exec((1 << 28) - 1)
        a(f"s_mov_b32 s{S_T1}, {512*128}")
        a(f"buffer_load_dword v{V+1}, v{V}, s[{SRD_O}:{SRD_O+3}], s{S_T1} offen")
        a(f"s_mov_b64 exec, -1")
        a(f"v_lshlrev_b32 v{V+2}, 7, v1")
        self.srd(SRD_O, S_B1, 0, 3456)
        a(f"buffer_load_dword v{V+1}, v{V+2}, s[{SRD_O}:{SRD_O+3}], 0 offen")
        self.srd(SRD_O, S_B2, 0, 1280)
        a(f"buffer_load_dword v{V+1}, v{V+2}, s[{SRD_O}:{SRD_O+3}], 0 offen")
        a.put(L)

    def dst_l2warm(self):
        a = self.a
        V = self.A_ALL + 1
        L = f"L_dstw_skip{self.evtag}"
        a(f"s_cmp_eq_u32 s{S_FAST}, 0")
        a(f"s_cbranch_scc1 {L}")
        self.srd(SRD_O, S_WS, 0, 0x1B00000)
        a(f"s_lshl_b32 s{S_T0}, s{S_W}, 6")
        a(f"v_add_u32 v{V}, s{S_T0}, v1")
        a(f"s_mul_i32 s{S_T0}, s{S_GX}, 2560")
        a(f"s_mul_i32 s{S_T1}, s{S_GI}, 80")
        a(f"s_add_u32 s{S_T0}, s{S_T0}, s{S_T1}")
        a(f"s_add_u32 s{S_T0}, s{S_T0}, {OFF_H//128}")
        a(f"s_mul_i32 s{S_T1}, s{S_GX}, 6912")
        a(f"s_mul_i32 s{S_T2}, s{S_GI}, 216")
        a(f"s_add_u32 s{S_T1}, s{S_T1}, s{S_T2}")
        a(f"s_add_u32 s{S_T1}, s{S_T1}, {OFF_R//128 - 80}")
        a(f"s_lshl_b32 s{S_T2}, s{S_GX}, 8")
        a(f"s_lshl_b32 s{S_T3}, s{S_GI}, 3")
        a(f"s_add_u32 s{S_T2}, s{S_T2}, s{S_T3}")
        a(f"s_add_u32 s{S_T2}, s{S_T2}, {OFF_PST//128 - 296}")
        a(f"v_mov_b32 v{V+2}, s{S_T2}")
        a(f"v_mov_b32 v{V+1}, s{S_T1}")
        a(f"v_cmp_gt_u32 vcc, 296, v{V}")
        a(f"s_nop 1")
        a(f"v_cndmask_b32 v{V+2}, v{V+2}, v{V+1}, vcc")
        a(f"v_mov_b32 v{V+1}, s{S_T0}")
        a(f"v_cmp_gt_u32 vcc, 80, v{V}")
        a(f"s_nop 1")
        a(f"v_cndmask_b32 v{V+2}, v{V+2}, v{V+1}, vcc")
        a(f"v_add_u32 v{V+2}, v{V+2}, v{V}")
        a(f"v_lshlrev_b32 v{V+2}, 7, v{V+2}")
        a(f"v_cmp_gt_u32 vcc, 304, v{V}")
        a(f"s_and_saveexec_b64 s[{S_SAVE}:{S_SAVE+1}], vcc")
        a(f"s_cbranch_execz {L}x")
        a(f"buffer_load_dword v{V+1}, v{V+2}, s[{SRD_O}:{SRD_O+3}], 0 offen")
        a.put(L + "x")
        a(f"s_mov_b64 exec, -1")
        a.put(L)

    def wp_l2warm(self):
        a = self.a
        V = self.A_ALL + 1
        a(f"s_cmp_lt_u32 s{S_W}, 4")
        self.csel(S_T0, hex(OFF_WOP), hex(OFF_W2P))
        a(f"s_add_u32 s{SRD_O}, s{S_WS}, s{S_T0}")
        a(f"s_addc_u32 s{SRD_O+1}, s{S_WS+1}, 0")
        a(f"s_mov_b32 s{SRD_O+2}, {SZ_WOP}")
        a(f"s_mov_b32 s{SRD_O+3}, 0x20000")
        a(f"s_and_b32 s{S_T0}, s{S_W}, 3")
        a(f"s_lshl_b32 s{S_T0}, s{S_T0}, 6")
        a(f"v_add_u32 v{V}, s{S_T0}, v1")
        a(f"v_cmp_gt_u32 vcc, 200, v{V}")
        a(f"s_mul_i32 s{S_T0}, s{S_GI}, 200")
        a(f"v_add_u32 v{V}, s{S_T0}, v{V}")
        a(f"v_lshlrev_b32 v{V}, 7, v{V}")
        a(f"s_and_saveexec_b64 s[{S_SAVE}:{S_SAVE+1}], vcc")
        a(f"s_cbranch_execz L_wpw_x{self.evtag}")
        a(f"buffer_load_dword v{V+1}, v{V}, s[{SRD_O}:{SRD_O+3}], 0 offen")
        a.put(f"L_wpw_x{self.evtag}")
        a(f"s_mov_b64 exec, -1")

    def tlb_warm(self):
        a = self.a
        L1 = "L_tlb1"; L2 = "L_tlb2"; L3 = "L_tlb3"; LJ = "L_tlbj"
        step = self.tlb_step
        a(f"v_mul_u32_u24 v252, {step >> 8}, v1")
        a(f"v_lshlrev_b32 v252, 8, v252")
        a(f"s_cmp_eq_u32 s{S_W}, 1")
        a(f"s_cbranch_scc1 {L1}")
        a(f"s_cmp_eq_u32 s{S_W}, 2")
        a(f"s_cbranch_scc1 {L2}")
        a(f"s_cmp_eq_u32 s{S_W}, 3")
        a(f"s_cbranch_scc1 {L3}")
        self.srd(SRD_T, S_WS, 0x100000, 0x1A00000)
        a(f"s_branch {LJ}")
        a.put(L1)
        self.srd(SRD_T, S_OUT, 0, 2048*1280)
        a(f"s_branch {LJ}")
        a.put(L2)
        self.srd(SRD_T, S_W1, 0, 640*3456)
        a(f"s_branch {LJ}")
        a.put(L3)
        self.srd(SRD_T, S_WS, 0, 0x100000)
        a.put(LJ)
        a(f"buffer_load_dword v253, v252, s[{SRD_T}:{SRD_T+3}], 0 offen")

    def null_job(self):
        a = self.a
        T = 16
        self.srd(SRD_T, S_W1, 0, 640*3456)
        a(f"s_lshl_b32 s{S_T0}, s{S_W}, 6")
        a(f"v_add_u32 v{T}, s{S_T0}, v1")
        a(f"v_mul_u32_u24 v{T+1}, 19419, v{T}")
        a(f"v_lshrrev_b32 v{T+1}, 20, v{T+1}")
        a(f"v_mul_u32_u24 v{T+2}, 54, v{T+1}")
        a(f"v_sub_u32 v{T+2}, v{T}, v{T+2}")
        a(f"v_mul_u32_u24 v{T+3}, 3456, v{T+1}")
        a(f"v_lshl_add_u32 v{T+3}, v{T+2}, 2, v{T+3}")
        a(f"s_mul_i32 s{S_T0}, s{S_MT}, 216")
        a(f"v_add_u32 v{T+3}, s{S_T0}, v{T+3}")
        a(f"v_cmp_gt_u32 vcc, 9, v{T+1}")
        a(f"v_mov_b32 v{T+4}, 0x7f000000")
        a(f"s_nop 0")
        a(f"v_cndmask_b32 v{T+3}, v{T+4}, v{T+3}, vcc")
        a(f"v_mov_b32 v{T+6}, 0"); a(f"v_mov_b32 v{T+7}, 0")
        a(f"s_mov_b32 s{S_T1}, 0")
        a.put("L_nj_loop")
        for k in range(24):
            a(f"s_add_u32 s{S_T2}, s{S_T1}, {k*9*3456}")
            a(f"buffer_load_dword v{T+8+k}, v{T+3}, s[{SRD_T}:{SRD_T+3}], s{S_T2} offen")
        for k in range(24):
            a(f"s_waitcnt vmcnt({23-k})")
            a(f"v_lshlrev_b32 v{T+32}, 16, v{T+8+k}")
            a(f"v_and_b32 v{T+33}, 0xffff0000, v{T+8+k}")
            a(f"v_add_f32 v{T+6}, v{T+6}, v{T+32}")
            a(f"v_add_f32 v{T+7}, v{T+7}, v{T+33}")
        a(f"s_add_u32 s{S_T1}, s{S_T1}, {24*9*3456}")
        a(f"s_cmp_lt_u32 s{S_T1}, {72*9*3456}")
        a(f"s_cbranch_scc1 L_nj_loop")
        a(f"v_lshlrev_b32 v{T+4}, 3, v{T}")
        a(f"ds_write_b64 v{T+4}, v[{T+6}:{T+7}]")
        a(f"s_waitcnt lgkmcnt(0)")
        a(f"s_barrier")
        a(f"s_cmp_lg_u32 s{S_W}, 0")
        a(f"s_cbranch_scc1 L_nj_done")
        a(f"v_lshlrev_b32 v{T+4}, 3, v1")
        for g in range(9):
            a(f"ds_read_b64 v[{T+8+2*g}:{T+9+2*g}], v{T+4} offset:{g*54*8}")
        a(f"s_waitcnt lgkmcnt(0)")
        for g in range(1, 9):
            a(f"v_add_f32 v{T+8}, v{T+8}, v{T+8+2*g}")
            a(f"v_add_f32 v{T+9}, v{T+9}, v{T+9+2*g}")
        a(f"s_mul_i32 s{S_T0}, s{S_MT}, 432")
        a(f"s_add_u32 s{S_T0}, s{S_T0}, {hex(OFF_CS1)}")
        a(f"v_add_u32 v{T+4}, s{S_T0}, v{T+4}")
        self.set_exec((1 << 54) - 1)
        a(f"buffer_store_dwordx2 v[{T+8}:{T+9}], v{T+4}, s[{SRD_F}:{SRD_F+3}], 0 offen sc1")
        a(f"s_mov_b64 exec, -1")
        a.put("L_nj_done")

    def p1_l2warm_all(self):
        a = self.a
        T = self.V_T + 40
        LW = "L_wall_w"; LJ = "L_wall_j"
        a(f"s_cmp_lg_u32 s{S_W}, 0")
        a(f"s_cbranch_scc1 {LW}")
        self.srd(SRD_T, S_X, 0, 2048*1280)
        a(f"s_and_b32 s{S_T0}, s{S_GX}, 3")
        a(f"s_lshl_b32 s{S_T0}, s{S_T0}, 9")
        a(f"s_lshl_b32 s{S_T1}, s{S_GI}, 4")
        a(f"s_add_u32 s{S_T0}, s{S_T0}, s{S_T1}")
        a(f"v_and_b32 v{T}, 15, v1")
        a(f"v_add_u32 v{T}, s{S_T0}, v{T}")
        a(f"v_mul_u32_u24 v{T}, 1280, v{T}")
        a(f"v_lshrrev_b32 v{T+1}, 4, v1")
        a(f"v_lshl_add_u32 v{T}, v{T+1}, 7, v{T}")
        a(f"buffer_load_dword v253, v{T}, s[{SRD_T}:{SRD_T+3}], 0 offen")
        a(f"buffer_load_dword v253, v{T}, s[{SRD_T}:{SRD_T+3}], 0 offen offset:512")
        self.set_exec(0xffffffff)
        a(f"buffer_load_dword v253, v{T}, s[{SRD_T}:{SRD_T+3}], 0 offen offset:1024")
        a(f"s_mov_b64 exec, -1")
        a(f"s_branch {LJ}")
        a.put(LW)
        self.srd(SRD_T, S_WQKV, 0, 640*3840)
        a(f"v_lshrrev_b32 v{T}, 5, v1")
        a(f"v_lshlrev_b32 v{T}, 6, v{T}")
        a(f"v_bfe_u32 v{T+1}, v1, 4, 1")
        a(f"v_add_u32 v{T}, v{T}, v{T+1}")
        a(f"s_lshl_b32 s{S_T0}, s{S_GI}, 1")
        a(f"v_add_u32 v{T}, s{S_T0}, v{T}")
        a(f"v_mul_u32_u24 v{T}, 3840, v{T}")
        a(f"v_and_b32 v{T+1}, 15, v1")
        a(f"v_lshl_add_u32 v{T}, v{T+1}, 7, v{T}")
        a(f"s_lshr_b32 s{S_T0}, s{S_GX}, 2")
        a(f"s_lshl_b32 s{S_T0}, s{S_T0}, 11")
        a(f"s_sub_u32 s{S_T1}, s{S_W}, 1")
        a(f"s_mul_i32 s{S_T1}, s{S_T1}, {128*3840}")
        a(f"s_add_u32 s{S_T0}, s{S_T0}, s{S_T1}")
        a(f"buffer_load_dword v253, v{T}, s[{SRD_T}:{SRD_T+3}], s{S_T0} offen")
        a(f"s_add_u32 s{S_T0}, s{S_T0}, {3*128*3840}")
        a(f"buffer_load_dword v253, v{T}, s[{SRD_T}:{SRD_T+3}], s{S_T0} offen")
        a.put(LJ)

    def xstats_publish(self):
        a = self.a
        T = self.V_T
        self.srd(SRD_O, S_X, 0, 2048*1280)
        a(f"s_lshl_b32 s{S_T0}, s2, 3")
        a(f"s_lshl_b32 s{S_T1}, s{S_W}, 1")
        a(f"s_add_u32 s{S_T0}, s{S_T0}, s{S_T1}")
        a(f"v_lshrrev_b32 v{T}, 5, v1")
        a(f"v_add_u32 v{T}, s{S_T0}, v{T}")
        a(f"v_mul_u32_u24 v{T+1}, 1280, v{T}")
        a(f"v_and_b32 v{T+2}, 31, v1")
        a(f"v_lshl_add_u32 v{T+1}, v{T+2}, 3, v{T+1}")
        D = T + 4
        for j in range(5):
            a(f"buffer_load_dwordx2 v[{D+2*j}:{D+2*j+1}], v{T+1}, s[{SRD_O}:{SRD_O+3}], 0 offen offset:{256*j}")
        return D

    def xstats_finish(self, D):
        a = self.a
        T = self.V_T
        S = T + 16
        a(f"v_mov_b32 v{S}, 0"); a(f"v_mov_b32 v{S+1}, 0")
        a(f"s_waitcnt vmcnt(0)")
        for r in range(10):
            a(f"v_lshlrev_b32 v{S+2}, 16, v{D+r}")
            a(f"v_and_b32 v{S+3}, 0xffff0000, v{D+r}")
            a(f"v_add_f32 v{S}, v{S}, v{S+2}")
            a(f"v_fmac_f32 v{S+1}, v{S+2}, v{S+2}")
            a(f"v_add_f32 v{S}, v{S}, v{S+3}")
            a(f"v_fmac_f32 v{S+1}, v{S+3}, v{S+3}")
        for ctl in ("row_shr:1", "row_shr:2", "row_shr:4", "row_shr:8"):
            a(f"s_nop 1")
            a(f"v_add_f32_dpp v{S}, v{S}, v{S} {ctl} row_mask:0xf bank_mask:0xf bound_ctrl:0")
            a(f"v_add_f32_dpp v{S+1}, v{S+1}, v{S+1} {ctl} row_mask:0xf bank_mask:0xf bound_ctrl:0")
        a(f"s_nop 1")
        a(f"v_add_f32_dpp v{S}, v{S}, v{S} row_bcast:15 row_mask:0xa bank_mask:0xf")
        a(f"v_add_f32_dpp v{S+1}, v{S+1}, v{S+1} row_bcast:15 row_mask:0xa bank_mask:0xf")
        a(f"s_nop 1")
        self.ab_from_sums(S, S+1, S+5)
        a(f"v_mov_b32 v{S+8}, v{S+6}")
        a(f"v_mov_b32 v{S+9}, v{S+5}")
        self.tag_ready()
        a(f"v_mov_b32 v{S+10}, s{S_TAG}")
        a(f"v_mov_b32 v{S+11}, s{S_TAG}")
        a(f"v_lshlrev_b32 v{T}, 4, v{T}")
        a(f"v_add_u32 v{T}, {hex(OFF_GR)}, v{T}")
        a(f"s_mov_b32 exec_lo, 0x80000000")
        a(f"s_mov_b32 exec_hi, 0x80000000")
        a(f"buffer_store_dwordx4 v[{S+8}:{S+11}], v{T}, s[{SRD_F}:{SRD_F+3}], 0 offen sc1")
        a(f"s_mov_b64 exec, -1")

    def tag_ready(self):
        a = self.a
        a(f"s_waitcnt lgkmcnt(0)")
        a(f"s_getreg_b32 s{S_XCC}, hwreg(HW_REG_XCC_ID, 0, 4)")
        a(f"s_mov_b32 s{S_FAST}, 0")
        a(f"s_mul_i32 s{S_TAG}, s{S_TAG}, 0x9E3779B1")
        a(f"s_add_u32 s{S_TAG}, s{S_TAG}, 0x7F4A7C15")

    def g1_setup_compute(self):
        a = self.a
        T = self.V_FR
        a(f"s_lshr_b32 s{S_WM}, s{S_W}, 1")
        a(f"s_and_b32 s{S_WN}, s{S_W}, 1")
        a(f"v_and_b32 v{T}, 31, v1")
        a(f"s_lshl_b32 s{S_T0}, s{S_WM}, 6")
        a(f"v_add_u32 v{T+1}, s{S_T0}, v{T}")
        a(f"v_lshlrev_b32 v{T+1}, 7, v{T+1}")
        a(f"v_bfe_u32 v{T+2}, v{T}, 1, 3")
        a(f"v_lshrrev_b32 v{T+3}, 5, v1")
        a(f"v_xor_b32 v{T+2}, v{T+2}, v{T+3}")
        for j in range(4):
            a(f"v_xor_b32 v{self.V_AA+j}, {2*j}, v{T+2}")
            a(f"v_lshlrev_b32 v{self.V_AA+j}, 4, v{self.V_AA+j}")
            a(f"v_add_u32 v{self.V_AA+j}, v{self.V_AA+j}, v{T+1}")
        a(f"v_and_b32 v{T+4}, 15, v1")
        a(f"v_lshrrev_b32 v{T+5}, 2, v{T+4}")
        a(f"v_lshlrev_b32 v{T+6}, 3, v{T+3}")
        a(f"v_add_u32 v{T+6}, v{T+6}, v{T+5}")
        a(f"v_lshlrev_b32 v{T+6}, 8, v{T+6}")
        a(f"v_bfe_u32 v{T+7}, v1, 4, 1")
        a(f"v_lshlrev_b32 v{T+7}, 1, v{T+7}")
        a(f"v_bfe_u32 v{T+8}, v1, 1, 1")
        a(f"v_add_u32 v{T+7}, v{T+7}, v{T+8}")
        a(f"s_lshl_b32 s{S_T0}, s{S_WN}, 3")
        a(f"s_lshl_b32 s{S_T1}, s{S_WM}, 2")
        a(f"s_add_u32 s{S_T0}, s{S_T0}, s{S_T1}")
        a(f"v_add_u32 v{T+7}, s{S_T0}, v{T+7}")
        a(f"v_lshlrev_b32 v{T+5}, 2, v{T+5}")
        a(f"v_xor_b32 v{T+7}, v{T+7}, v{T+5}")
        a(f"v_lshlrev_b32 v{T+7}, 4, v{T+7}")
        a(f"v_and_b32 v{T+8}, 1, v1")
        a(f"v_lshlrev_b32 v{T+8}, 3, v{T+8}")
        a(f"v_add_u32 v{T+6}, v{T+6}, v{T+7}")
        a(f"v_add_u32 v{T+6}, v{T+6}, v{T+8}")
        a(f"v_add_u32 v{self.V_AWA}, 16384, v{T+6}")
        a(f"v_xor_b32 v{self.V_AWB}, 64, v{self.V_AWA}")
        a(f"v_and_b32 v{T}, 15, v1")
        a(f"v_bfe_u32 v{T+1}, v1, 4, 1")
        a(f"v_cmp_eq_u32 vcc, v{T}, v{T+1}")
        a(f"v_mov_b32 v{T+2}, 0x3f803f80")
        a(f"s_nop 1")
        a(f"v_cndmask_b32 v{self.V_CSA}, 0, v{T+2}, vcc")
        for r in range(1, 4):
            a(f"v_mov_b32 v{self.V_CSA+r}, v{self.V_CSA}")
        for r in range(4):
            a(f"v_mov_b32 v{self.V_CSD+r}, 0")
        for r in range(64):
            a(f"v_mov_b32 v{self.V_ACC+r}, 0")

    def g1_read1(self, j, q):
        if "noreads" in self.opt: return
        a = self.a
        F = self.V_FR + 16*j
        if q == 0: a(f"ds_read_b128 v[{F}:{F+3}], v{self.V_AA+j}")
        elif q == 1: a(f"ds_read_b128 v[{F+4}:{F+7}], v{self.V_AA+j} offset:4096")
        else:
            ad = (self.V_AWA if q == 2 else self.V_AWB) if j != 3 else (self.V_AW2A if q == 2 else self.V_AW2B)
            R = F + 8 + 4*(q-2)
            a(f"ds_read_b64_tr_b16 v[{R}:{R+1}], v{ad} offset:{4096*j}")
            a(f"ds_read_b64_tr_b16 v[{R+2}:{R+3}], v{ad} offset:{4096*j+1024}")

    def g1_mfma1(self, j, orient, tt, q):
        if "nomfma" in self.opt: return
        a = self.a
        F = self.V_FR + 16*j
        X = f"v[{F+4*tt}:{F+4*tt+3}]"; W = f"v[{F+8+4*q}:{F+11+4*q}]"
        A = self.V_ACC + 16*(2*tt+q)
        D = f"v[{A}:{A+15}]"
        if orient == "T": a(f"v_mfma_f32_32x32x16_bf16 {D}, {W}, {X}, {D}")
        else:             a(f"v_mfma_f32_32x32x16_bf16 {D}, {X}, {W}, {D}")

    def g1_colsum(self, j):
        if "nostats" in self.opt or getattr(self, "nocs", False): return
        F = self.V_FR + 16*j; D = self.V_CSD
        self.a(f"v_mfma_f32_16x16x32_bf16 v[{D}:{D+3}], v[{self.V_CSA}:{self.V_CSA+3}], v[{F+8}:{F+11}], v[{D}:{D+3}]")

    def g1_adv(self):
        a = self.a
        for r in list(range(self.V_AA, self.V_AA+4)) + [self.V_AWA, self.V_AWB]:
            a(f"v_add_u32 v{r}, s{S_DELTA}, v{r}")

    def g1_cstep(self, j, orient, rset, fill=((), (), (), ())):
        a = self.a
        order = (2, 0, 1, 3)
        cp = getattr(self, "cprof", False)
        if cp: a(f"s_memtime s[{72+4*j}:{73+4*j}]")
        a(f"s_waitcnt lgkmcnt(12)")
        if cp: a(f"s_memtime s[{74+4*j}:{75+4*j}]")
        for k, (tt, q) in enumerate(((0, 0), (1, 0), (0, 1), (1, 1))):
            self.g1_mfma1(j, orient, tt, q)
            if k == 0: self.g1_colsum(j)
            self.g1_read1(rset, order[k])
            for f in fill[k]: a(f)

    def g1_compute(self, orient, tag, presetup=False):
        a = self.a
        if not presetup: self.g1_setup_compute()
        AA = self.V_AA
        a(f"v_mov_b32 v{self.V_AW2A}, v{self.V_AWA}")
        a(f"v_mov_b32 v{self.V_AW2B}, v{self.V_AWB}")
        a(f"s_barrier")
        self.stamp(self.st1)
        for j in range(3):
            for q in (2, 0, 1, 3): self.g1_read1(j, q)
        DA, DB = S_DELTA, S_T5
        a(f"s_mov_b32 s{S_CNT}, 0")
        a(f"s_mov_b32 s{S_RSLOT}, 1")
        a(f"s_mov_b32 s{DA}, 32768")
        a(f"v_add_u32 v{AA}, s{DA}, v{AA}")
        a(f"v_add_u32 v{AA+1}, s{DA}, v{AA+1}")
        wrap = hex((-(self.NSLOT-1)*32768) & 0xffffffff)
        L1 = f"L_{tag}_cloop"
        a(f".p2align 5")
        a.put(L1)
        self.g1_cstep(0, orient, 3, ((f"v_add_u32 v{AA+2}, s{DA}, v{AA+2}",), (f"v_add_u32 v{self.V_AWA}, s{DA}, v{self.V_AWA}",),
                                     (f"v_add_u32 v{self.V_AWB}, s{DA}, v{self.V_AWB}",), ()))
        a(f"s_barrier")
        self.g1_cstep(1, orient, 0, ((f"v_add_u32 v{AA+3}, s{DA}, v{AA+3}", f"s_cmp_eq_u32 s{S_RSLOT}, {self.NSLOT-1}"),
                                     (f"s_mov_b32 s{DB}, 32768", f"s_cselect_b32 s{DB}, {wrap}, s{DB}"),
                                     (f"v_mov_b32 v{self.V_AW2A}, v{self.V_AWA}", f"s_cselect_b32 s{S_RSLOT}, -1, s{S_RSLOT}"),
                                     (f"v_mov_b32 v{self.V_AW2B}, v{self.V_AWB}", f"s_add_u32 s{S_RSLOT}, s{S_RSLOT}, 1")))
        wf = ()
        if getattr(self, "warm_fill", False):
            wf = (f"s_cmp_eq_u32 s{S_CNT}, 3", f"s_cselect_b32 s{self.S_WRMD}, s{self.S_WRM}, s{S_OOB}", f"buffer_load_dword v253, v{self.V_WRM}, s[{SRD_T}:{SRD_T+3}], s{self.S_WRMD} offen")
        self.g1_cstep(2, orient, 1, ((f"v_add_u32 v{AA}, s{DB}, v{AA}",), (f"s_add_u32 s{S_CNT}, s{S_CNT}, 1",), wf, ()))
        self.g1_cstep(3, orient, 2, ((f"v_add_u32 v{AA+1}, s{DB}, v{AA+1}",), (f"s_mov_b32 s{DA}, s{DB}",), (f"s_cmp_lt_u32 s{S_CNT}, 10",), ()))
        a(f"s_cbranch_scc1 {L1}")
        a(f"s_waitcnt lgkmcnt(0)")
        a(f"v_mbcnt_lo_u32_b32 v1, -1, 0")
        a(f"v_mbcnt_hi_u32_b32 v1, -1, v1")
        T = self.V_FR
        a(f"s_lshl_b32 s{S_T0}, s{S_WN}, 8")
        a(f"s_lshl_b32 s{S_T1}, s{S_WM}, 7")
        a(f"s_add_u32 s{S_T0}, s{S_T0}, s{S_T1}")
        a(f"s_add_u32 s{S_T0}, s{S_T0}, {LDS_STATS+ST_CS}")
        a(f"v_lshlrev_b32 v{T}, 2, v1")
        a(f"v_add_u32 v{T}, s{S_T0}, v{T}")
        if not getattr(self, "nocs", False):
            a(f"s_nop 4")
            a(f"s_mov_b64 exec, 0xffff")
            a(f"ds_write_b32 v{T}, v{self.V_CSD}")
            a(f"ds_write_b32 v{T}, v{self.V_CSD+1} offset:64")
            a(f"s_mov_b64 exec, -1")
            a(f"s_waitcnt lgkmcnt(0)")
        a(f"s_barrier")

    def magic_div5(self, dst, src):
        self.a(f"v_mul_u32_u24 v{dst}, 52429, v{src}")
        self.a(f"v_lshrrev_b32 v{dst}, 18, v{dst}")
    def magic_div20(self, dst, src):
        self.a(f"v_mul_u32_u24 v{dst}, 52429, v{src}")
        self.a(f"v_lshrrev_b32 v{dst}, 20, v{dst}")

    def epi_T_common(self):
        a = self.a
        T = self.V_T; CSR = self.V_FR
        a(f"v_and_b32 v{T}, 31, v1")
        a(f"s_lshl_b32 s{S_T0}, s{S_WM}, 6")
        a(f"v_add_u32 v{T+1}, s{S_T0}, v{T}")
        a(f"v_lshlrev_b32 v{T+1}, 2, v{T+1}")
        a(f"v_add_u32 v{T+1}, {LDS_STATS}, v{T+1}")
        a(f"ds_read_b32 v{T+2}, v{T+1} offset:{ST_AA}")
        a(f"ds_read_b32 v{T+3}, v{T+1} offset:{ST_BB}")
        a(f"ds_read_b32 v{T+4}, v{T+1} offset:{ST_AA+128}")
        a(f"ds_read_b32 v{T+5}, v{T+1} offset:{ST_BB+128}")
        a(f"v_lshrrev_b32 v{T+6}, 5, v1")
        a(f"s_lshl_b32 s{S_T0}, s{S_WN}, 8")
        a(f"s_lshl_b32 s{S_T1}, s{S_WM}, 7")
        a(f"s_add_u32 s{S_T0}, s{S_T0}, s{S_T1}")
        a(f"s_add_u32 s{S_T0}, s{S_T0}, {LDS_STATS+ST_CS}")
        a(f"v_lshlrev_b32 v{T+7}, 4, v{T+6}")
        a(f"v_add_u32 v{T+7}, s{S_T0}, v{T+7}")
        a(f"v_xor_b32 v{T+1}, 128, v{T+7}")
        for g in range(4):
            a(f"ds_read_b128 v[{CSR+4*g}:{CSR+4*g+3}], v{T+7} offset:{32*g}")
        for g in range(4):
            a(f"ds_read_b128 v[{CSR+16+4*g}:{CSR+16+4*g+3}], v{T+1} offset:{32*g}")

    E_AD = 160; E_LA = 168; E_LC = 169
    S_ESC = 6; S_EO = 7
    def wmwn(self):
        a = self.a
        a(f"s_lshr_b32 s{S_WM}, s{S_W}, 1")
        a(f"s_and_b32 s{S_WN}, s{S_W}, 1")

    def p1_epi_T_pre(self):
        a = self.a
        T = self.V_T + 24
        self.wmwn()
        a(f"v_and_b32 v{T}, 31, v1")
        a(f"v_lshrrev_b32 v{T+6}, 5, v1")
        a(f"s_lshl_b32 s{S_T0}, s{S_WM}, 6")
        a(f"v_add_u32 v{T+1}, s{S_T0}, v{T}")
        a(f"v_lshlrev_b32 v{T+1}, 2, v{T+1}")
        a(f"v_add_u32 v{self.E_LA}, {LDS_STATS}, v{T+1}")
        a(f"s_lshl_b32 s{S_T0}, s{S_WN}, 8")
        a(f"s_lshl_b32 s{S_T1}, s{S_WM}, 7")
        a(f"s_add_u32 s{S_T0}, s{S_T0}, s{S_T1}")
        a(f"s_add_u32 s{S_T0}, s{S_T0}, {LDS_STATS+ST_CS}")
        a(f"v_lshlrev_b32 v{T+7}, 4, v{T+6}")
        a(f"v_add_u32 v{self.E_LC}, s{S_T0}, v{T+7}")
        a(f"v_xor_b32 v{self.E_LC+1}, 128, v{self.E_LC}")
        a(f"s_cmp_lt_u32 s{S_NT}, 5")
        a(f"s_cselect_b32 s{self.S_ESC}, {hex(f32(math.log2(math.e)/math.sqrt(20.0)))}, 1.0")
        self.csel(S_T1, 81920, 163840)
        self.csel(S_T2, 1280, 2560)
        a(f"s_cselect_b32 s{S_T3}, 0, 5")
        self.csel(S_T4, hex(OFF_Q), hex(OFF_KV))
        self.csel(S_T5, hex(SZ_Q), hex(SZ_KV))
        a(f"s_add_u32 s{SRD_O}, s{S_WS}, s{S_T4}")
        a(f"s_addc_u32 s{SRD_O+1}, s{S_WS+1}, 0")
        a(f"s_mov_b32 s{SRD_O+2}, s{S_T5}")
        a(f"s_mov_b32 s{SRD_O+3}, 0x20000")
        a(f"s_sub_u32 s{S_T3}, s{S_NT}, s{S_T3}")
        a(f"s_lshl_b32 s{S_T3}, s{S_T3}, 5")
        a(f"s_lshl_b32 s{S_T4}, s{S_WN}, 4")
        a(f"s_add_u32 s{S_T3}, s{S_T3}, s{S_T4}")
        a(f"s_lshl_b32 s{S_T4}, s{S_WM}, 3")
        for q in range(2):
            for g in range(4):
                if q == 0:
                    a(f"s_add_u32 s{S_T5}, s{S_T3}, s{S_T4}")
                else:
                    a(f"s_xor_b32 s{S_T5}, s{S_T4}, 8")
                    a(f"s_add_u32 s{S_T5}, s{S_T5}, s{S_T3}")
                a(f"s_add_u32 s{S_T5}, s{S_T5}, {2*g}")
                a(f"v_add_u32 v{T+8}, s{S_T5}, v{T+6}")
                self.magic_div5(T+9, T+8)
                a(f"v_mul_u32_u24 v{T+10}, 5, v{T+9}")
                a(f"v_sub_u32 v{T+10}, v{T+8}, v{T+10}")
                a(f"v_mul_lo_u32 v{T+9}, v{T+9}, s{S_T1}")
                a(f"v_lshlrev_b32 v{T+10}, 8, v{T+10}")
                a(f"v_add_u32 v{T+9}, v{T+9}, v{T+10}")
                a(f"v_lshl_add_u32 v{self.E_AD+4*q+g}, v{T}, 3, v{T+9}")
        a(f"s_lshl_b32 s{S_T4}, s{S_MT}, 2")
        a(f"s_lshl_b32 s{S_T5}, s{S_WM}, 1")
        a(f"s_add_u32 s{S_T4}, s{S_T4}, s{S_T5}")
        a(f"s_mul_i32 s{self.S_EO}, s{S_T4}, s{S_T2}")
        a(f"s_add_u32 s{self.S_EO+1}, s{self.S_EO}, s{S_T2}")

    def p1_epi_T(self):
        a = self.a
        T = self.V_T; A = self.V_ACC; CSR = self.V_FR
        a(f"ds_read_b32 v{T+2}, v{self.E_LA} offset:{ST_AA}")
        a(f"ds_read_b32 v{T+3}, v{self.E_LA} offset:{ST_BB}")
        a(f"ds_read_b32 v{T+4}, v{self.E_LA} offset:{ST_AA+128}")
        a(f"ds_read_b32 v{T+5}, v{self.E_LA} offset:{ST_BB+128}")
        for q in range(2):
            for g in range(4):
                a(f"ds_read_b128 v[{CSR+16*q+4*g}:{CSR+16*q+4*g+3}], v{self.E_LC+q} offset:{32*g}")
        a(f"s_waitcnt lgkmcnt(8)")
        for r in range(4):
            a(f"v_mul_f32 v{T+2+r}, s{self.S_ESC}, v{T+2+r}")
        a(f"s_waitcnt lgkmcnt(0)")
        for tt in range(2):
            ab = f"v[{T+2+2*tt}:{T+3+2*tt}]"
            for q in range(2):
                for g in range(4):
                    for i in (0, 2):
                        r = A + 16*(2*tt+q) + 4*g + i
                        c = CSR + 16*q + 4*g + i
                        a(f"v_pk_mul_f32 v[{r}:{r+1}], v[{r}:{r+1}], {ab} op_sel:[0,0] op_sel_hi:[1,0]")
                        a(f"v_pk_fma_f32 v[{r}:{r+1}], v[{c}:{c+1}], {ab}, v[{r}:{r+1}] op_sel:[0,1,0] op_sel_hi:[1,1,1]")
                    r = A + 16*(2*tt+q) + 4*g
                    a(f"v_cvt_pk_bf16_f32 v{r}, v{r}, v{r+1}")
                    a(f"v_cvt_pk_bf16_f32 v{r+1}, v{r+2}, v{r+3}")
                    a(f"buffer_store_dwordx2 v[{r}:{r+1}], v{self.E_AD+4*q+g}, s[{SRD_O}:{SRD_O+3}], s{self.S_EO+tt} offen sc1")

    def p1_epi_N_pre(self):
        a = self.a
        T = self.V_T + 24
        self.wmwn()
        a(f"v_and_b32 v{T}, 31, v1")
        a(f"v_lshrrev_b32 v{T+6}, 5, v1")
        a(f"s_lshl_b32 s{S_T0}, s{S_WM}, 8")
        a(f"v_lshlrev_b32 v{T+4}, 4, v{T+6}")
        a(f"v_add_u32 v{T+4}, s{S_T0}, v{T+4}")
        a(f"v_add_u32 v{self.E_LA}, {LDS_STATS}, v{T+4}")
        a(f"s_mov_b32 s{S_T2}, 163840")
        for q in range(2):
            a(f"s_xor_b32 s{S_T0}, s{S_WM}, {q}")
            a(f"s_lshl_b32 s{S_T0}, s{S_T0}, 5")
            a(f"s_lshl_b32 s{S_T1}, s{S_WN}, 6")
            a(f"s_add_u32 s{S_T0}, s{S_T0}, s{S_T1}")
            a(f"v_add_u32 v{T+1}, s{S_T0}, v{T}")
            a(f"v_lshlrev_b32 v{T+2}, 2, v{T+1}")
            a(f"v_add_u32 v{self.E_LC+q}, {LDS_STATS+ST_CS}, v{T+2}")
            a(f"s_sub_u32 s{S_T1}, s{S_NT}, 10")
            a(f"s_lshl_b32 s{S_T1}, s{S_T1}, 7")
            a(f"v_add_u32 v{T+7}, s{S_T1}, v{T+1}")
            self.magic_div20(T+8, T+7)
            a(f"v_mul_u32_u24 v{T+9}, 20, v{T+8}")
            a(f"v_sub_u32 v{T+9}, v{T+7}, v{T+9}")
            a(f"v_mul_lo_u32 v{T+8}, v{T+8}, s{S_T2}")
            a(f"v_lshlrev_b32 v{T+9}, 4, v{T+9}")
            a(f"v_add_u32 v{T+8}, v{T+8}, v{T+9}")
            a(f"v_mul_u32_u24 v{T+9}, 320, v{T+6}")
            a(f"v_add_u32 v{T+8}, v{T+8}, v{T+9}")
            a(f"v_add_u32 v{self.E_AD+q}, 1280, v{T+8}")
        self.srd(SRD_O, S_WS, OFF_KV, SZ_KV)
        a(f"s_lshl_b32 s{S_T4}, s{S_MT}, 2")
        a(f"s_lshl_b32 s{S_T5}, s{S_WM}, 1")
        a(f"s_add_u32 s{S_T4}, s{S_T4}, s{S_T5}")
        a(f"s_mul_i32 s{self.S_EO}, s{S_T4}, 2560")
        a(f"s_add_u32 s{self.S_EO+1}, s{self.S_EO}, 2560")

    def p1_epi_N(self):
        a = self.a
        T = self.V_T; A = self.V_ACC
        ABs = (self.V_FR, self.V_FR + 32)
        a(f"ds_read_b32 v{T+10}, v{self.E_LC}")
        a(f"ds_read_b32 v{T+11}, v{self.E_LC+1}")
        for tt in range(2):
            AB = ABs[tt]; BB = AB + 16
            for g in range(4):
                a(f"ds_read_b128 v[{AB+4*g}:{AB+4*g+3}], v{self.E_LA} offset:{ST_AA + 128*tt + 32*g}")
                a(f"ds_read_b128 v[{BB+4*g}:{BB+4*g+3}], v{self.E_LA} offset:{ST_BB + 128*tt + 32*g}")
        cs = f"v[{T+10}:{T+11}]"
        for tt in range(2):
            AB = ABs[tt]; BB = AB + 16
            a(f"s_waitcnt lgkmcnt({8 if tt == 0 else 0})")
            for q in range(2):
                for r in range(0, 16, 2):
                    R = A + 16*(2*tt+q) + r
                    a(f"v_pk_mul_f32 v[{R}:{R+1}], v[{R}:{R+1}], v[{AB+r}:{AB+r+1}]")
                    a(f"v_pk_fma_f32 v[{R}:{R+1}], v[{BB+r}:{BB+r+1}], {cs}, v[{R}:{R+1}] op_sel:[0,{q},0] op_sel_hi:[1,{q},1]")
                for st in range(2):
                    R = A + 16*(2*tt+q) + 8*st
                    for z in range(4):
                        a(f"v_cvt_pk_bf16_f32 v{R+z}, v{R+2*z}, v{R+2*z+1}")
                    a(f"buffer_store_dwordx4 v[{R}:{R+3}], v{self.E_AD+q}, s[{SRD_O}:{SRD_O+3}], s{self.S_EO+tt} offen offset:{640*st} sc1")

    def relayout_unit(self):
        pass

    def rl_unit(self):
        a = self.a
        a(f"s_lshl_b32 s{S_T0}, s2, 2")
        a(f"s_and_b32 s{S_T5}, s{S_W}, 3")
        a(f"s_add_u32 s{S_T0}, s{S_T0}, s{S_T5}")

    def rl_src(self, srd):
        a = self.a
        self.rl_unit()
        a(f"s_cmp_lt_u32 s{S_T0}, 540")
        a(f"s_cselect_b32 s{S_T1}, 0, 540")
        a(f"s_cselect_b32 s{srd}, s{S_W2}, s{S_WO}")
        a(f"s_cselect_b32 s{srd+1}, s{S_W2+1}, s{S_WO+1}")
        self.csel(srd+2, 1728*1280, 640*1280)
        a(f"s_mov_b32 s{srd+3}, 0x20000")
        a(f"s_sub_u32 s{S_T1}, s{S_T0}, s{S_T1}")
        a(f"s_mul_hi_u32 s{S_T2}, s{S_T1}, {hex((2**32+9)//10)}")
        a(f"s_mul_i32 s{S_T3}, s{S_T2}, 10")
        a(f"s_sub_u32 s{S_T3}, s{S_T1}, s{S_T3}")
        a(f"s_mul_i32 s{S_T2}, s{S_T2}, {32*1280}")
        a(f"s_lshl_b32 s{S_T3}, s{S_T3}, 7")
        a(f"s_add_u32 s{S_T2}, s{S_T2}, s{S_T3}")
        a(f"s_cmp_ge_u32 s{S_T0}, 740")
        a(f"s_cselect_b32 s{S_T2}, 0x70000000, s{S_T2}")

    def relayout_load(self):
        a = self.a
        T = self.V_T
        self.rl_src(SRD_T)
        a(f"v_lshrrev_b32 v{T}, 3, v1")
        a(f"v_mul_u32_u24 v{T}, 1280, v{T}")
        a(f"v_and_b32 v{T+1}, 7, v1")
        a(f"v_lshl_add_u32 v{T}, v{T+1}, 4, v{T}")
        a(f"s_lshl_b32 s{S_T3}, s{S_T5}, 12")
        a(f"s_add_u32 m0, s{S_T3}, {LDS_RL}")
        for jj in range(4):
            a(f"s_nop 0")
            a(f"buffer_load_dwordx4 v{T}, s[{SRD_T}:{SRD_T+3}], s{S_T2} offen lds")
            if jj < 3:
                a(f"s_add_u32 m0, m0, 1024")
                a(f"s_add_u32 s{S_T2}, s{S_T2}, {8*1280}")

    def relayout_warm_setup(self):
        a = self.a
        V = self.V_WRM
        self.rl_src(SRD_T)
        a(f"s_mov_b32 s{self.S_WRM}, s{S_T2}")
        a(f"s_mov_b32 s{S_OOB}, 0x70000000")
        a(f"v_mul_u32_u24 v{V}, 1280, v1")
        a(f"v_cmp_gt_u32 vcc, 32, v1")
        a(f"v_mov_b32 v{V-1}, 0x7f000000")
        a(f"s_nop 0")
        a(f"v_cndmask_b32 v{V}, v{V-1}, v{V}, vcc")

    def relayout_store(self):
        a = self.a
        T = self.V_T
        Lskip = "L_rl_skip2"
        self.rl_unit()
        a(f"s_cmp_ge_u32 s{S_T0}, 740")
        a(f"s_cbranch_scc1 {Lskip}")
        a(f"s_cmp_lt_u32 s{S_T0}, 540")
        a(f"s_cselect_b32 s{S_T1}, 0, 540")
        self.csel(S_T4, hex(OFF_W2P), hex(OFF_WOP))
        self.csel(S_T3, hex(SZ_W2P), hex(SZ_WOP))
        a(f"s_mov_b32 s{SRD_T+2}, s{S_T3}")
        a(f"s_sub_u32 s{S_T1}, s{S_T0}, s{S_T1}")
        a(f"s_add_u32 s{SRD_T}, s{S_WS}, s{S_T4}")
        a(f"s_addc_u32 s{SRD_T+1}, s{S_WS+1}, 0")
        a(f"s_mov_b32 s{SRD_T+3}, 0x20000")
        a(f"s_mul_hi_u32 s{S_T2}, s{S_T1}, {hex((2**32+9)//10)}")
        a(f"s_mul_i32 s{S_T3}, s{S_T2}, 10")
        a(f"s_sub_u32 s{S_T3}, s{S_T1}, s{S_T3}")
        a(f"s_mul_i32 s{S_T2}, s{S_T2}, 40")
        a(f"s_lshl_b32 s{S_T3}, s{S_T3}, 2")
        a(f"s_add_u32 s{S_T2}, s{S_T2}, s{S_T3}")
        a(f"s_lshl_b32 s{S_T2}, s{S_T2}, 10")
        a(f"v_lshrrev_b32 v{T}, 4, v1")
        a(f"v_lshlrev_b32 v{T}, 3, v{T}")
        a(f"v_bfe_u32 v{T+1}, v1, 2, 2")
        a(f"v_add_u32 v{T}, v{T}, v{T+1}")
        a(f"v_lshlrev_b32 v{T}, 7, v{T}")
        a(f"v_and_b32 v{T+1}, 3, v1")
        a(f"v_lshl_add_u32 v{T}, v{T+1}, 3, v{T}")
        a(f"s_lshl_b32 s{S_T3}, s{S_T5}, 12")
        a(f"s_add_u32 s{S_T3}, s{S_T3}, {LDS_RL}")
        a(f"v_add_u32 v{T}, s{S_T3}, v{T}")
        a(f"v_lshlrev_b32 v{T+1}, 4, v1")
        O = T + 4
        for tq in range(4):
            a(f"ds_read_b64_tr_b16 v[{O+4*tq}:{O+4*tq+1}], v{T} offset:{32*tq}")
            a(f"ds_read_b64_tr_b16 v[{O+4*tq+2}:{O+4*tq+3}], v{T} offset:{32*tq+512}")
        a(f"s_waitcnt lgkmcnt(0)")
        for tq in range(4):
            a(f"buffer_store_dwordx4 v[{O+4*tq}:{O+4*tq+3}], v{T+1}, s[{SRD_T}:{SRD_T+3}], s{S_T2} offen offset:{1024*tq} sc1")
        a.put(Lskip)

    def p1(self):
        a = self.a
        a(f"s_and_b32 s{S_T0}, s{S_GX}, 3")
        a(f"s_lshl_b32 s{S_T0}, s{S_T0}, 2")
        a(f"s_and_b32 s{S_T1}, s{S_GI}, 3")
        a(f"s_add_u32 s{S_MT}, s{S_T0}, s{S_T1}")
        a(f"s_lshr_b32 s{S_T0}, s{S_GX}, 2")
        a(f"s_lshl_b32 s{S_T0}, s{S_T0}, 3")
        a(f"s_lshr_b32 s{S_T2}, s{S_GI}, 2")
        a(f"s_add_u32 s{S_NT}, s{S_T0}, s{S_T2}")
        a(f"s_lshl_b32 s{S_T1}, s{S_T1}, 1")
        a(f"s_add_u32 s{S_RLW}, s{S_T1}, s{S_T2}")
        a(f"s_and_b32 s{S_RLW}, s{S_RLW}, 7")
        a(f"s_mov_b32 s{S_KK}, 0")
        self.aux_A = ""
        self.st1 = 1
        a(f"s_cmp_lt_u32 s{S_W}, 4")
        a(f"s_cbranch_scc1 L_p1_compute")
        self.g1_setup_loader(3840)
        a(f"s_mov_b32 s{SRD_A+2}, {2048*1280}")
        a(f"s_mov_b32 s{SRD_A+3}, 0x20000")
        a(f"s_mov_b32 s{SRD_W+2}, {640*3840}")
        a(f"s_mov_b32 s{SRD_W+3}, 0x20000")
        a(f"s_add_u32 s{S_RLW}, s{S_RLW}, 2")
        a(f"s_mov_b32 s{S_CNT}, 0")
        a(f"s_cmp_ge_u32 s{S_NT}, 15")
        a(f"s_cbranch_scc1 L_p1_lnull0")
        a(f"s_waitcnt lgkmcnt(0)")
        if "p1s" in self.opt: self.stamp(15)
        a(f"s_mov_b32 s{SRD_A}, s{S_X}")
        a(f"s_mov_b32 s{SRD_A+1}, s{S_X+1}")
        a(f"s_mov_b32 s{SRD_W}, s{S_WQKV}")
        a(f"s_mov_b32 s{SRD_W+1}, s{S_WQKV+1}")
        a.put("L_p1_pro")
        self.g1_dma_stage(3840)
        a(f"s_add_u32 s{S_CNT}, s{S_CNT}, 1")
        if "norot" not in self.opt:
            a(f"s_cmp_eq_u32 s{S_CNT}, 2")
            a(f"s_cselect_b32 s{S_KK}, s{S_RLW}, s{S_KK}")
        a(f"s_cmp_lt_u32 s{S_CNT}, 3")
        a(f"s_cbranch_scc1 L_p1_pro")
        if "p1s" in self.opt: self.stamp(16)
        a(f"s_load_dword s{S_TAG}, s[{S_WS}:{S_WS+1}], {OFF_EPOCH}")
        self.srd(SRD_F, S_WS, 0, 0x100000)
        if "p1s" in self.opt: self.stamp(17)
        self.g1_loader(3840, "p1", "gran")
        a(f"s_branch L_p1_lj")
        a.put("L_p1_lnull0")
        a(f"s_waitcnt lgkmcnt(0)")
        a(f"s_load_dword s{S_TAG}, s[{S_WS}:{S_WS+1}], {OFF_EPOCH}")
        a.put("L_p1_lnull")
        self.srd(SRD_F, S_WS, 0, 0x100000)
        self.tag_ready()
        self.relayout_load()
        a.put("L_p1_lj")
        a(f"s_waitcnt vmcnt(0)")
        self.relayout_store()
        a(f"s_cmp_ge_u32 s{S_NT}, 15")
        a(f"s_cbranch_scc1 L_p1_nulljob")
        a(f"s_branch L_p1_done")
        a.put("L_p1_compute")
        a(f"s_waitcnt lgkmcnt(0)")
        a(f"s_load_dword s{S_TAG}, s[{S_WS}:{S_WS+1}], {OFF_EPOCH}")
        self.srd(SRD_F, S_WS, 0, 0x100000)
        if "wall" in self.opt:
            self.p1_l2warm_all()
            a(f"s_barrier")
        if "tlbw" in self.opt: self.tlb_warm()
        D = self.xstats_publish()
        self.relayout_warm_setup()
        self.xstats_finish(D)
        a(f"s_cmp_ge_u32 s{S_NT}, 15")
        a(f"s_cbranch_scc1 L_p1_nulljob")
        a(f"s_cmp_ge_u32 s{S_NT}, 10")
        a(f"s_cbranch_scc1 L_p1_N")
        self.warm_fill = True
        self.p1_epi_T_pre()
        self.g1_compute("T", "p1T")
        self.stamp(2)
        self.p1_epi_T()
        a(f"s_branch L_p1_done")
        a.put("L_p1_N")
        self.p1_epi_N_pre()
        self.g1_compute("N", "p1N")
        self.warm_fill = False
        self.stamp(2)
        self.p1_epi_N()
        a(f"s_branch L_p1_done")
        a.put("L_p1_nulljob")
        self.null_job()
        a.put("L_p1_done")
        self.stamp(3)

    def poll(self, addr_regs, masks, tagname):
        a = self.a
        T = self.V_S - 8
        L = f"L_{tagname}_poll"; Lo = f"L_{tagname}_pollok"
        a(f"s_mov_b32 s{S_T0}, 0")
        a.put(L)
        for k, (ar, mk) in enumerate(zip(addr_regs, masks)):
            self.set_exec(mk)
            a(f"buffer_load_dword v{T+20+k}, v{ar}, s[{SRD_F}:{SRD_F+3}], 0 offen sc1")
        a(f"s_waitcnt vmcnt(0)")
        a(f"s_mov_b64 s[{S_SAVE}:{S_SAVE+1}], 0")
        for k, (ar, mk) in enumerate(zip(addr_regs, masks)):
            self.set_exec(mk)
            a(f"v_cmp_ne_u32 vcc, s{S_TAG}, v{T+20+k}")
            a(f"s_or_b64 s[{S_SAVE}:{S_SAVE+1}], s[{S_SAVE}:{S_SAVE+1}], vcc")
        a(f"s_mov_b64 exec, -1")
        a(f"s_cmp_eq_u64 s[{S_SAVE}:{S_SAVE+1}], 0")
        a(f"s_cbranch_scc1 {Lo}")
        a(f"s_add_u32 s{S_T0}, s{S_T0}, 1")
        a(f"s_cmp_lt_u32 s{S_T0}, 0x40000")
        a(f"s_cbranch_scc1 {L}")
        a.put(Lo)

    def p1_signal(self):
        a = self.a
        T = self.V_S
        Ls = "L_p1sig_skip"
        a(f"s_cmp_lg_u32 s{S_W}, {self.SIGW}")
        a(f"s_cbranch_scc1 {Ls}p")
        a(f"v_lshrrev_b32 v{T}, 3, v1")
        a(f"v_and_b32 v{T+1}, 7, v1")
        Ln = "L_p1sig_null"; Lj = "L_p1sig_join"
        a(f"s_cmp_eq_u32 s{S_NT}, 15")
        a(f"s_cbranch_scc1 {Ln}")
        a(f"s_cmp_ge_u32 s{S_NT}, 10")
        a(f"s_cselect_b32 s{S_T0}, 10, 5")
        a(f"s_cmp_lt_u32 s{S_NT}, 5")
        a(f"s_cselect_b32 s{S_T0}, 0, s{S_T0}")
        a(f"s_sub_u32 s{S_T0}, s{S_NT}, s{S_T0}")
        a(f"s_lshl_b32 s{S_T0}, s{S_T0}, 7")
        a(f"s_mul_i32 s{S_T1}, s{S_T0}, 52429")
        a(f"s_lshr_b32 s{S_T1}, s{S_T1}, 20")
        a(f"s_add_u32 s{S_T2}, s{S_T0}, 127")
        a(f"s_mul_i32 s{S_T2}, s{S_T2}, 52429")
        a(f"s_lshr_b32 s{S_T2}, s{S_T2}, 20")
        a(f"s_min_u32 s{S_T2}, s{S_T2}, 31")
        a(f"v_add_u32 v{T+2}, s{S_T1}, v{T}")
        a(f"v_cmp_ge_u32 vcc, s{S_T2}, v{T+2}")
        a(f"s_mov_b64 s[{S_SAVE}:{S_SAVE+1}], vcc")
        a(f"s_cmp_lt_u32 s{S_NT}, 5")
        a(f"s_cbranch_scc0 {Lj}")
        a(f"s_lshr_b32 s{S_T3}, s{S_MT}, 1")
        a(f"v_cmp_eq_u32 vcc, s{S_T3}, v{T+1}")
        a(f"s_and_b64 s[{S_SAVE}:{S_SAVE+1}], s[{S_SAVE}:{S_SAVE+1}], vcc")
        a(f"s_branch {Lj}")
        a.put(Ln)
        a(f"v_lshlrev_b32 v{T+2}, 4, v{T}")
        a(f"v_add_u32 v{T+2}, s{S_MT}, v{T+2}")
        a(f"v_cmp_gt_u32 vcc, 2, v{T}")
        a(f"s_mov_b64 s[{S_SAVE}:{S_SAVE+1}], vcc")
        a.put(Lj)
        a(f"v_and_b32 v{T+4}, 3, v{T+2}")
        a(f"v_lshl_add_u32 v{T+4}, v{T+1}, 2, v{T+4}")
        a(f"v_lshrrev_b32 v{T+2}, 2, v{T+2}")
        a(f"v_lshl_add_u32 v{T+2}, v{T+4}, 3, v{T+2}")
        a(f"v_lshlrev_b32 v{T+2}, 10, v{T+2}")
        a(f"s_lshl_b32 s{S_T0}, s2, 2")
        a(f"s_add_u32 s{S_T0}, s{S_T0}, {OFF_MB1}")
        a(f"v_add_u32 v{T+2}, s{S_T0}, v{T+2}")
        a(f"v_mov_b32 v{T+3}, s{S_TAG}")
        a(f"s_lshl_b32 s{S_T0}, s2, 2")
        a(f"s_add_u32 s{S_T0}, s{S_T0}, {OFF_ALL}")
        a(f"v_mov_b32 v{T+5}, s{S_T0}")
        a(f"s_add_u32 s{S_T1}, s{S_TAG}, s{S_XCC}")
        a(f"v_mov_b32 v{T+6}, s{S_T1}")
        a.put(Ls + "p")
        a(f"s_waitcnt vmcnt(0) lgkmcnt(0)")
        self.stamp(4)
        a(f"s_barrier")
        a(f"s_cmp_lg_u32 s{S_W}, {self.SIGW}")
        a(f"s_cbranch_scc1 {Ls}")
        a(f"s_mov_b64 exec, s[{S_SAVE}:{S_SAVE+1}]")
        a(f"buffer_store_dword v{T+3}, v{T+2}, s[{SRD_F}:{SRD_F+3}], 0 offen sc1")
        a(f"s_mov_b64 exec, 1")
        a(f"buffer_store_dword v{T+6}, v{T+5}, s[{SRD_F}:{SRD_F+3}], 0 offen sc1")
        a(f"s_mov_b64 exec, -1")
        a.put(Ls)

    def finish_tag_once(self):
        a = self.a
        a(f"s_mul_i32 s{S_TAG}, s{S_TAG}, 0x9E3779B1")
        a(f"s_add_u32 s{S_TAG}, s{S_TAG}, 0x7F4A7C15")

    def p2_wait_prep(self):
        a = self.a
        T = self.V_S + 16
        Ls = "L_p2w_skip"
        a(f"s_cmp_lg_u32 s{S_W}, {self.POLLW}")
        a(f"s_cbranch_scc1 {Ls}")
        a(f"s_mul_i32 s{S_T1}, s{S_HEAD}, 20")
        a(f"v_bfe_u32 v{T}, v1, 4, 1")
        a(f"v_mul_u32_u24 v{T}, 19, v{T}")
        a(f"v_add_u32 v{T}, s{S_T1}, v{T}")
        a(f"v_lshrrev_b32 v{T}, 7, v{T}")
        a(f"v_lshrrev_b32 v{T+1}, 5, v1")
        a(f"v_mul_u32_u24 v{T+1}, 5, v{T+1}")
        a(f"v_add_u32 v{T+2}, v{T}, v{T+1}")
        a(f"v_add_u32 v{T+2}, 5, v{T+2}")
        a(f"v_and_b32 v{T+3}, 15, v1")
        self.vprod(T+4, T+3, T+2, T+10)
        a(f"v_bfe_u32 v{T}, v1, 1, 1")
        a(f"v_mul_u32_u24 v{T}, 19, v{T}")
        a(f"v_add_u32 v{T}, s{S_T1}, v{T}")
        a(f"v_lshrrev_b32 v{T+2}, 7, v{T}")
        a(f"v_and_b32 v{T+3}, 1, v1")
        a(f"s_lshl_b32 s{S_T2}, s{S_QB}, 1")
        a(f"v_add_u32 v{T+3}, s{S_T2}, v{T+3}")
        a(f"v_cmp_eq_u32 vcc, 4, v1")
        a(f"s_and_b32 s{S_T2}, s{S_HEAD}, 15")
        a(f"v_mov_b32 v{T+6}, s{S_T2}")
        a(f"v_mov_b32 v{T+7}, 15")
        a(f"v_cndmask_b32 v{T+3}, v{T+3}, v{T+6}, vcc")
        a(f"v_cndmask_b32 v{T+2}, v{T+2}, v{T+7}, vcc")
        self.vprod(T+5, T+3, T+2, T+10)
        a(f"s_lshl_b32 s{S_T2}, s2, 10")
        a(f"s_add_u32 s{S_T2}, s{S_T2}, {OFF_MB1}")
        for r in (T+4, T+5):
            a(f"v_lshlrev_b32 v{r}, 2, v{r}")
            a(f"v_add_u32 v{r}, s{S_T2}, v{r}")
        a.put(Ls)

    def p2_wait(self):
        a = self.a
        T = self.V_S + 16
        Ls = "L_p2w_skip2"
        a(f"s_cmp_lg_u32 s{S_W}, {self.POLLW}")
        a(f"s_cbranch_scc1 {Ls}")
        self.V_S += 16
        self.poll([T+4, T+5], ["-1", "0x1f"], "p2w")
        self.V_S -= 16
        a.put(Ls)
        a(f"s_barrier")

    def vprod(self, dst, mt, nt, tmp):
        a = self.a
        a(f"v_and_b32 v{dst}, 3, v{mt}")
        a(f"v_and_b32 v{tmp}, 7, v{nt}")
        a(f"v_lshl_add_u32 v{dst}, v{tmp}, 2, v{dst}")
        a(f"v_lshlrev_b32 v{dst}, 3, v{dst}")
        a(f"v_lshrrev_b32 v{tmp}, 2, v{mt}")
        a(f"v_add_u32 v{dst}, v{dst}, v{tmp}")
        a(f"v_lshrrev_b32 v{tmp}, 3, v{nt}")
        a(f"v_lshl_add_u32 v{dst}, v{tmp}, 2, v{dst}")

    def group_barrier(self, phase, tagname, tgt=None, slot=None, hook=None, local=False, early_A=False, pollw=None):
        a = self.a
        T = self.V_S
        gs = (tagname in self.opt)
        Ls = f"L_{tagname}_gskip"
        old_pollw = self.POLLW
        if pollw is not None: self.POLLW = pollw
        if early_A:
            a(f"s_cmp_lt_u32 s{S_W}, 4")
            a(f"s_cbranch_scc1 {Ls}e")
            self.hook_tag = "e"; hook(); self.hook_tag = ""
            a.put(Ls + "e")
        tgt = S_GX if tgt is None else tgt
        slot = S_GI if slot is None else slot
        a(f"v_lshlrev_b32 v{T}, 3, v1")
        a(f"v_add_u32 v{T}, s{tgt}, v{T}")
        a(f"v_lshlrev_b32 v{T}, 7, v{T}")
        a(f"s_lshl_b32 s{S_T1}, s{slot}, 2")
        a(f"s_add_u32 s{S_T1}, s{S_T1}, {OFF_GB + phase*256*128}")
        a(f"v_add_u32 v{T}, s{S_T1}, v{T}")
        a(f"v_mov_b32 v{T+1}, s{S_TAG}")
        a(f"s_waitcnt vmcnt(0) lgkmcnt(0)")
        if gs: self.stamp(15)
        a(f"s_barrier")
        if gs: self.stamp(16)
        a(f"s_cmp_lg_u32 s{S_W}, {self.POLLW}")
        a(f"s_cbranch_scc1 {Ls}0")
        self.set_exec(0xffffffff)
        if local:
            a(f"s_cmp_eq_u32 s{S_FAST}, 1")
            a(f"s_cbranch_scc1 {Ls}f")
            a(f"buffer_store_dword v{T+1}, v{T}, s[{SRD_F}:{SRD_F+3}], 0 offen sc1")
            a(f"s_branch {Ls}g")
            a.put(Ls + "f")
            a(f"buffer_store_dword v{T+1}, v{T}, s[{SRD_F}:{SRD_F+3}], 0 offen")
            a.put(Ls + "g")
        else:
            a(f"buffer_store_dword v{T+1}, v{T}, s[{SRD_F}:{SRD_F+3}], 0 offen sc1")
        a(f"s_mov_b64 exec, -1")
        a.put(Ls + "0")
        if hook and early_A:
            a(f"s_cmp_ge_u32 s{S_W}, 4")
            a(f"s_cbranch_scc1 {Ls}h")
            hook()
            a.put(Ls + "h")
        elif hook: hook()
        if gs: self.stamp(17)
        a(f"s_cmp_lg_u32 s{S_W}, {self.POLLW}")
        a(f"s_cbranch_scc1 {Ls}")
        a(f"s_lshl_b32 s{S_T0}, s2, 7")
        a(f"s_add_u32 s{S_T0}, s{S_T0}, {OFF_GB + phase*256*128}")
        a(f"v_lshlrev_b32 v{T+2}, 2, v1")
        a(f"v_add_u32 v{T+2}, s{S_T0}, v{T+2}")
        self.poll([T+2], ["0xffffffff"], tagname)
        a.put(Ls)
        a(f"s_barrier")
        self.POLLW = old_pollw

    A_QA = 4; A_QB = 12
    A_K = 20
    A_V1 = 36; A_V2 = 40
    A_SA = 44; A_SB = 60; A_P = 76; A_OA = 84; A_OB = 100; A_AK = 116; A_AV = 117; A_DV = 118; A_ALLA = 119; A_T = 120; A_ALL = 132
    S_VMASK = 92
    S_NEXTB = 94; S_DSO = 95; S_LOW = 65; S_NEXTM = 69
    p2_nu = 4
    low_tiles = 1
    S_D = [6, 7, 8, 9, 16, 17]
    S_WOI = [51, 53]
    S_WOBK = 62
    S_WOM = 68
    low_pos = (3, 10, 18, 29)
    warm_slots = {'w1': 48, 'dst': 52}
    def p2_unrolled(self):
        a = self.a
        D = self.S_D
        def kv():
            a(f"s_mov_b32 m0, s{self.S_DSO}")
            a(f"s_nop 0")
            a(f"buffer_load_dwordx4 v{self.A_DV}, s[{SRD_A}:{SRD_A+3}], s{self.S_DSO} offen sc1 lds")
            a(f"s_add_u32 s{self.S_DSO}, s{self.S_DSO}, 4096")
        def w2(g):
            R = 144 + 4*g
            a(f"buffer_load_dwordx4 v[{R}:{R+3}], v{self.A_ALLA}, s[{SRD_W}:{SRD_W+3}], s{S_SW} offen {self.ld_aux}")
            a(f"s_add_u32 s{S_SW}, s{S_SW}, s{D[g % 6]}")
        def wo(idx):
            a(f"s_mov_b32 m0, s{self.S_WOB}")
            a(f"s_add_u32 s{self.S_WOB}, s{self.S_WOB}, s{self.S_WOI[1 if idx == 4 else 0]}")
            if idx >= 10:
                a(f"s_cmp_lt_u32 s{S_W}, 4")
                a(f"s_cbranch_scc1 L_wo_sk{idx}")
            a(f"buffer_load_dwordx4 v{self.A_DV}, s[{SRD_T}:{SRD_T+3}], s{self.S_WOS} offen {self.ld_aux} lds")
            if idx >= 10: a.put(f"L_wo_sk{idx}")
            a(f"s_add_u32 s{self.S_WOS}, s{self.S_WOS}, s{D[idx % 6]}")
        slot_ops = {}
        def put(x, k_, arg=None): slot_ops.setdefault(x, []).append((k_, arg))
        for i in range(5): put(8 + i, "kv")
        for i in range(6): put(24 + i, "kv")
        free = [x for x in range(13, 40) if x not in range(24, 30)]
        dbl = set(free[1::3][:7])
        g = 0
        for x in free:
            put(x, "w2", g); g += 1
            if x in dbl:
                put(x, "w2", g); g += 1
        assert g == 28, g
        for i in range(15): put(40 + i//2, "wo", i)
        for k_, x in self.warm_slots.items(): put(x, k_)
        def cnt(lo, hi):
            return sum(1 for x in range(lo, hi) for k_, _ in slot_ops.get(x, []) if k_ in ("kv", "w2", "wo"))
        lowpos = set(self.low_pos)
        noprio = "noprio" in self.opt
        if not noprio:
            a(f"s_setprio 1")
            self.p2_setprio(2, "init")
        a(f"s_nop 7"); a(f"s_nop 3")
        base = 0
        for t in range(32):
            if t == 16:
                a(f"v_add_u32 v{self.A_AK}, {16*2560}, v{self.A_AK}")
                a(f"v_add_u32 v{self.A_AV}, {16*2560}, v{self.A_AV}")
                base = 16
            if t in (4, 12, 20):
                vm = 0 if t == 4 else (cnt(13, 24) if t == 12 else cnt(30, 40))
                a(f"s_waitcnt vmcnt({vm})")
                if t == 4:
                    self.p2_check_all()
                    self.g2_wsetup(5, SRD_W, S_SW, self.A_ALLA)
                    self.p2_w2_consts()
                a(f"s_barrier")
                if not noprio: self.p2_setprio(2, f"h{t}")
                if t == 20: self.wo_setup2()
            if t in lowpos and not noprio: self.p2_setprio(0, f"l{t}")
            for st in (0, 1):
                self.p2_sub(st, t - base)
                for k_, arg in slot_ops.get(2*t + st, []):
                    self.evtag = "u"
                    if k_ == "kv": kv()
                    elif k_ == "w2":
                        if "evnow2" not in self.opt: w2(arg)
                    elif k_ == "wo":
                        if "evnowo" not in self.opt: wo(arg)
                    elif k_ == "dst":
                        if "nodstw" not in self.opt: self.dst_l2warm()
                    elif k_ == "w1":
                        if "now1w" not in self.opt: self.w1_l2warm()
                    elif k_ == "wp":
                        if "nowpw" not in self.opt: self.wp_l2warm()

    def p2_w2_consts(self):
        a = self.a
        D = self.S_D
        incB = [1024, 162816]*3
        incA = [161792, 1024, 1024]*2
        a(f"s_cmp_lt_u32 s{S_W}, 4")
        for k in range(6):
            x, y = incB[k], incA[k]
            if x == y: a(f"s_mov_b32 s{D[k]}, {x}")
            else: self.csel(D[k], x, y)
        a(f"s_cselect_b32 s{S_T0}, 0, {5*163840 - 161792}")
        a(f"s_add_u32 s{S_SW}, s{S_SW}, s{S_T0}")

    def wo_setup2(self):
        a = self.a
        D = self.S_D
        self.g2_wsetup(3, SRD_T, self.S_WOS, self.A_DV)
        self.wo_lds_base(self.S_WOB)
        a(f"s_mov_b32 s{self.S_WOBK}, s{self.S_WOB}")
        a(f"s_cmp_eq_u32 s{S_W}, 3")
        a(f"s_cselect_b32 s{self.S_WOB2}, {128000-5120}, s{self.S_WOB}")
        a(f"s_mov_b32 s{self.S_WOI[0]}, 1024")
        a(f"s_cselect_b32 s{self.S_WOI[1]}, {128000 - (46080 + 4096)}, s{self.S_WOI[0]}")
        incB = [1024, 162816]*3
        incA = [1024, 1024, 161792]*2
        a(f"s_cmp_lt_u32 s{S_W}, 4")
        for k in range(6):
            x, y = incB[k], incA[k]
            if x == y: a(f"s_mov_b32 s{D[k]}, {x}")
            else: self.csel(D[k], x, y)


    def p2_kreads(self, kb, toff):
        a = self.a
        K = self.A_K + 8*kb
        a(f"ds_read_b64 v[{K}:{K+1}], v{self.A_AK} offset:{toff}")
        a(f"ds_read_b64 v[{K+2}:{K+3}], v{self.A_AK} offset:{toff+256}")
        a(f"ds_read_b64 v[{K+4}:{K+5}], v{self.A_AK} offset:{toff+1024}")
    def p2_vread(self, which, toff):
        a = self.a
        R = self.A_V1 if which == 0 else self.A_V2
        a(f"s_mov_b64 exec, s[{self.S_VMASK}:{self.S_VMASK+1}]")
        a(f"ds_read_b128 v[{R}:{R+3}], v{self.A_AV} offset:{toff+640*which}")
        a(f"s_mov_b64 exec, -1")
    def p2_smfma(self, which, S, kb, Q):
        a = self.a
        K = self.A_K + 8*kb
        if which == 0:
            a(f"v_mfma_f32_32x32x16_bf16 v[{S}:{S+15}], v[{K}:{K+3}], v[{Q}:{Q+3}], 0")
        elif "nok8" not in self.opt:
            a(f"v_mfma_f32_32x32x8bf16_1k v[{S}:{S+15}], v[{K+4}:{K+5}], v[{Q+4}:{Q+5}], v[{S}:{S+15}]")
        else:
            a(f"v_mfma_f32_32x32x16_bf16 v[{S}:{S+15}], v[{K+4}:{K+7}], v[{Q+4}:{Q+7}], v[{S}:{S+15}]")

    A_V2B = 128
    def p2_sub(self, stream, u):
        a = self.a
        P = self.A_P
        p = u & 1
        V2 = (self.A_V2, self.A_V2B)
        Sc, Sn = (self.A_SA, self.A_SB) if stream == 0 else (self.A_SB, self.A_SA)
        Oc, Op = (self.A_OA, self.A_OB) if stream == 0 else (self.A_OB, self.A_OA)
        Qn = self.A_QB if stream == 0 else self.A_QA
        kb = p if stream == 0 else 1 - p
        v2 = V2[1-p] if stream == 0 else V2[p]
        ex = lambda i: a(f"v_exp_f32 v{Sc+i}, v{Sc+i}")
        cv = lambda k: a(f"v_cvt_pk_bf16_f32 v{P+k}, v{Sc+2*k}, v{Sc+2*k+1}")
        cvp = lambda k: a(f"v_cvt_pk_bf16_f32 v{P+k}, v{Sn+2*k}, v{Sn+2*k+1}")
        var = getattr(self, "sub_variant", None) or "v1"
        tn = (u+1)*2560
        def rdV():
            a(f"s_mov_b64 exec, s[{self.S_VMASK}:{self.S_VMASK+1}]")
            a(f"ds_read_b128 v[{self.A_V1}:{self.A_V1+3}], v{self.A_AV} offset:{tn}")
            R = V2[1-p]
            a(f"ds_read_b128 v[{R}:{R+3}], v{self.A_AV} offset:{tn+640}")
            a(f"s_mov_b64 exec, -1")
        def rdK(i):
            K = self.A_K + 8*p; toff = (u+2)*2560
            if i == 0: a(f"ds_read_b64 v[{K}:{K+1}], v{self.A_AK} offset:{toff}")
            if i == 1: a(f"ds_read_b64 v[{K+2}:{K+3}], v{self.A_AK} offset:{toff+256}")
            if i == 2: a(f"ds_read_b64 v[{K+4}:{K+5}], v{self.A_AK} offset:{toff+1024}")
        m1 = lambda: self.p2_smfma(0, Sn, kb, Qn)
        m2 = lambda: self.p2_smfma(1, Sn, kb, Qn)
        m4 = lambda: a(f"v_mfma_f32_32x32x16_bf16 v[{Op}:{Op+15}], v[{v2}:{v2+3}], v[{P+4}:{P+7}], v[{Op}:{Op+15}]")
        m3 = lambda: a(f"v_mfma_f32_32x32x16_bf16 v[{Oc}:{Oc+15}], v[{self.A_V1}:{self.A_V1+3}], v[{P}:{P+3}], v[{Oc}:{Oc+15}]")
        wt = lambda: a(f"s_waitcnt lgkmcnt(0)")
        if var == "pure":
            ex(0); cvp(6); ex(1); ex(2); cvp(7); ex(3); m1(); ex(4); cv(0); ex(5); ex(6); cv(1); ex(7); m2()
            ex(8); cv(2); ex(9); ex(10); cv(3); ex(11); m4(); ex(12); cv(4); ex(13); ex(14); cv(5); ex(15); m3()
        elif var == "v0":
            ex(0); cvp(6); ex(1); ex(2); cvp(7); ex(3); m1(); ex(4); cv(0); ex(5); ex(6); cv(1); ex(7); m2()
            ex(8); cv(2); ex(9); ex(10); cv(3); ex(11); m4(); ex(12); cv(4); ex(13); ex(14); cv(5); ex(15)
            if stream == 0: wt()
            m3()
            if stream == 1:
                rdV(); rdK(0); rdK(1); rdK(2)
        elif var == "v1":
            ex(0); cvp(6); ex(1); ex(2); cvp(7); ex(3); m1()
            if stream == 1: rdK(0)
            ex(4); cv(0); ex(5); ex(6); cv(1); ex(7); m2()
            if stream == 1: rdK(1)
            ex(8); cv(2); ex(9); ex(10); cv(3); ex(11); m4()
            if stream == 1: rdK(2)
            ex(12); cv(4); ex(13); ex(14); cv(5); ex(15)
            if stream == 0: wt()
            m3()
            if stream == 1: rdV()
        elif var == "v2":
            ex(0); cvp(6); ex(1); ex(2); cvp(7); ex(3); m1()
            if stream == 1: rdK(1)
            ex(4); cv(0); ex(5); ex(6); cv(1); ex(7); m2()
            if stream == 1: rdK(2)
            ex(8); cv(2); ex(9); ex(10); cv(3); ex(11); m4()
            if stream == 0: rdK(0)
            ex(12); cv(4); ex(13); ex(14); cv(5); ex(15)
            if stream == 0: a(f"s_waitcnt lgkmcnt(1)")
            m3()
            if stream == 1: rdV()
        elif var == "v3":
            ex(0); cvp(6); ex(1); ex(2); cvp(7); ex(3); m1()
            if stream == 1: rdK(0)
            ex(4); cv(0); ex(5); ex(6); cv(1); ex(7); m2()
            if stream == 1: rdK(1)
            ex(8); cv(2); ex(9); ex(10); cv(3); ex(11); m4()
            if stream == 1: rdK(2)
            ex(12); cv(4); ex(13); ex(14); cv(5); ex(15)
            if stream == 0: wt()
            m3()
            if stream == 1:
                a(f"ds_read_b128 v[{self.A_V1}:{self.A_V1+3}], v{self.A_AV} offset:{tn}")
                R = V2[1-p]
                a(f"ds_read_b128 v[{R}:{R+3}], v{self.A_AV} offset:{tn+640}")

    def prio_reg(self, stream):
        return self._prio[stream]

    def p2_check_all(self):
        a = self.a
        X = self.A_ALL; T = self.A_T
        L = "L_p2_all"; Lo = "L_p2_allok"
        a(f"s_mov_b32 s{S_T0}, 0")
        a.put(L)
        for r in range(4):
            a(f"v_subrev_u32 v{T+r}, s{S_TAG}, v{X+r}")
        a(f"v_cmp_le_u32 vcc, 16, v{T}")
        for r in range(1, 4):
            a(f"v_cmp_le_u32 s[{S_SAVE}:{S_SAVE+1}], 16, v{T+r}")
            a(f"s_nop 0")
            a(f"s_or_b64 vcc, vcc, s[{S_SAVE}:{S_SAVE+1}]")
        a(f"s_cbranch_vccz {Lo}")
        a(f"s_add_u32 s{S_T0}, s{S_T0}, 1")
        a(f"s_cmp_ge_u32 s{S_T0}, 0x40000")
        a(f"s_cbranch_scc1 {Lo}")
        a(f"buffer_load_dwordx4 v[{X}:{X+3}], v{self.A_ALLA}, s[{SRD_F}:{SRD_F+3}], 0 offen sc1")
        a(f"s_waitcnt vmcnt(0)")
        a(f"s_branch {L}")
        a.put(Lo)
        a(f"s_and_b32 s{S_T1}, s{S_GX}, 3")
        for r in range(1, 4):
            a(f"s_cmp_eq_u32 s{S_T1}, {r}")
            a(f"s_cselect_b64 s[{S_SAVE}:{S_SAVE+1}], -1, 0")
            a(f"v_cndmask_b32 v{T}, v{T}, v{T+r}, s[{S_SAVE}:{S_SAVE+1}]")
        a(f"v_cmp_ne_u32 vcc, s{S_XCC}, v{T}")
        a(f"s_mov_b32 s{S_T2}, 0x55555555")
        a(f"s_lshr_b32 s{S_T1}, s{S_GX}, 2")
        a(f"s_lshl_b32 s{S_T2}, s{S_T2}, s{S_T1}")
        a(f"s_and_b32 s{S_T3}, vcc_lo, s{S_T2}")
        a(f"s_and_b32 s{S_T4}, vcc_hi, s{S_T2}")
        a(f"s_or_b32 s{S_T3}, s{S_T3}, s{S_T4}")
        a(f"s_cmp_eq_u32 s{S_T3}, 0")
        a(f"s_cselect_b32 s{S_FAST}, {0 if 'nofast' in self.opt else 1}, 0")

    prio_low = (0, 2, 4, 7)
    def p2_setprio(self, lvl, tag):
        a = self.a
        L = f"L_p2_pr{tag}"
        a(f"s_cmp_ge_u32 s{S_W}, 4")
        a(f"s_cbranch_scc1 {L}")
        a(f"s_setprio {lvl}")
        a.put(L)

    def p2_dma(self, n):
        a = self.a
        for i in range(n):
            a(f"s_mov_b32 m0, s{self.S_DSO}")
            a(f"s_nop 0")
            a(f"buffer_load_dwordx4 v{self.A_DV}, s[{SRD_A}:{SRD_A+3}], s{self.S_DSO} offen sc1 lds")
            a(f"s_add_u32 s{self.S_DSO}, s{self.S_DSO}, 4096")

    def p2_setup(self):
        a = self.a
        T = self.A_T
        a(f"s_lshl_b32 s{S_HEAD}, s{S_GX}, 2")
        a(f"s_and_b32 s{S_T0}, s{S_GI}, 3")
        a(f"s_add_u32 s{S_HEAD}, s{S_HEAD}, s{S_T0}")
        a(f"s_lshr_b32 s{S_QB}, s{S_GI}, 2")
        a(f"s_mul_i32 s{S_T0}, s{S_HEAD}, 163840")
        a(f"s_add_u32 s{S_T0}, s{S_T0}, {hex(OFF_KV)}")
        a(f"s_add_u32 s{SRD_A}, s{S_WS}, s{S_T0}")
        a(f"s_addc_u32 s{SRD_A+1}, s{S_WS+1}, 0")
        a(f"s_mov_b32 s{SRD_A+2}, 163840")
        a(f"s_mov_b32 s{SRD_A+3}, 0x20000")
        a(f"s_lshl_b32 s{S_T0}, s{S_HEAD}, 6")
        a(f"s_lshl_b32 s{S_T1}, s{S_QB}, 3")
        a(f"s_add_u32 s{S_T0}, s{S_T0}, s{S_T1}")
        a(f"s_and_b32 s{S_T1}, s{S_W}, 3")
        a(f"s_lshl_b32 s{S_T1}, s{S_T1}, 1")
        a(f"s_add_u32 s{S_T0}, s{S_T0}, s{S_T1}")
        a(f"s_mul_i32 s{S_T0}, s{S_T0}, 1280")
        a(f"s_add_u32 s{S_T0}, s{S_T0}, {hex(OFF_Q)}")
        a(f"s_add_u32 s{SRD_W}, s{S_WS}, s{S_T0}")
        a(f"s_addc_u32 s{SRD_W+1}, s{S_WS+1}, 0")
        a(f"s_mov_b32 s{SRD_W+2}, 2560")
        a(f"s_mov_b32 s{SRD_W+3}, 0x20000")
        a(f"v_and_b32 v{T}, 31, v1")
        a(f"v_lshrrev_b32 v{T+1}, 5, v1")
        a(f"v_lshlrev_b32 v{T+2}, 3, v{T}")
        a(f"v_lshl_add_u32 v{T+4}, v{T+1}, 9, v{T+2}")
        a(f"v_lshlrev_b32 v{T+3}, 12, v{T+1}")
        a(f"v_add_u32 v{T+3}, v{T+3}, v{T+2}")
        a(f"v_lshlrev_b32 v{self.A_DV}, 4, v1")
        a(f"v_add_u32 v{self.A_ALLA}, {OFF_ALL}, v{self.A_DV}")
        a(f"s_lshr_b32 s{S_T0}, s{S_W}, 2")
        a(f"s_mul_i32 s{S_T0}, s{S_T0}, 81920")
        a(f"s_and_b32 s{S_T1}, s{S_W}, 3")
        a(f"s_lshl_b32 s{S_T1}, s{S_T1}, 10")
        a(f"s_add_u32 s{self.S_DSO}, s{S_T0}, s{S_T1}")
        for Q in (self.A_QA, self.A_QB):
            a(f"v_mov_b32 v{Q+6}, 0"); a(f"v_mov_b32 v{Q+7}, 0")
        for kb in range(2):
            a(f"v_mov_b32 v{self.A_K+8*kb+6}, 0"); a(f"v_mov_b32 v{self.A_K+8*kb+7}, 0")
        a(f"v_cmp_eq_u32 vcc, 20, v{T}")
        a(f"v_mov_b32 v{T+5}, 0x3f803f80")
        a(f"v_mul_u32_u24 v{T+6}, 320, v{T+1}")
        a(f"v_cndmask_b32 v{self.A_V1}, 0, v{T+5}, vcc")
        for r in range(1, 8):
            a(f"v_mov_b32 v{self.A_V1+r}, v{self.A_V1}")
        for r in range(4):
            a(f"v_mov_b32 v{self.A_V2B+r}, v{self.A_V1}")
        a(f"v_lshl_add_u32 v{self.A_AV}, v{T}, 4, v{T+6}")
        a(f"v_add_u32 v{self.A_AV}, 1280, v{self.A_AV}")
        a(f"v_add_u32 v{self.A_AK}, s{S_T0}, v{T+4}")
        a(f"v_add_u32 v{self.A_AV}, s{S_T0}, v{self.A_AV}")
        a(f"s_mov_b32 s{self.S_VMASK}, 0xfffff")
        a(f"s_mov_b32 s{self.S_VMASK+1}, 0xfffff")
        for r in range(16):
            a(f"v_mov_b32 v{self.A_OA+r}, 0"); a(f"v_mov_b32 v{self.A_OB+r}, 0")
        for r in range(8):
            a(f"v_mov_b32 v{self.A_P+r}, 0")
        for r in range(12, 16):
            a(f"v_mov_b32 v{self.A_SB+r}, 0")
        a(f"s_and_b32 s{S_T2}, s{S_W}, 3")
        a(f"s_lshr_b32 s{S_T3}, s{S_W}, 2")
        a(f"s_lshl_b32 s{S_T0}, s{S_QB}, 2")
        a(f"s_add_u32 s{S_T0}, s{S_T0}, s{S_T2}")
        a(f"s_mul_i32 s{S_T0}, s{S_T0}, 81920")
        a(f"s_lshl_b32 s{S_T1}, s{S_T3}, 11")
        a(f"s_add_u32 s{S_CNT}, s{S_T0}, s{S_T1}")
        a(f"v_bfe_u32 v{T+3+4}, v1, 4, 1")
        a(f"v_lshlrev_b32 v{T+7}, 10, v{T+7}")
        a(f"v_and_b32 v{T+6}, 15, v1")
        a(f"v_lshl_add_u32 v{T+7}, v{T+6}, 4, v{T+7}")
        a(f"s_mul_i32 s{S_T1}, s{S_HEAD}, 20")
        for g in range(3):
            D_ = self.A_OAD + g
            a(f"v_lshlrev_b32 v{T+6}, 2, v{T+1}")
            a(f"s_add_u32 s{S_T2}, s{S_T1}, {8*g}")
            a(f"v_add_u32 v{T+6}, s{S_T2}, v{T+6}")
            a(f"v_lshrrev_b32 v{D_}, 5, v{T+6}")
            a(f"v_lshlrev_b32 v{D_}, 12, v{D_}")
            a(f"v_bfe_u32 v{T+5}, v{T+6}, 3, 2")
            a(f"v_lshl_add_u32 v{D_}, v{T+5}, 8, v{D_}")
            a(f"v_and_b32 v{T+5}, 7, v{T+6}")
            a(f"v_lshl_add_u32 v{D_}, v{T+5}, 1, v{D_}")
            a(f"v_add_u32 v{D_}, v{D_}, v{T+7}")

    A_OAD = 140
    def p2(self):
        a = self.a
        T = self.A_T
        self.stamp(5)
        self.p2_wait()
        self.stamp(6)
        self.p2_dma(2)
        for qi, Q in enumerate((self.A_QA, self.A_QB)):
            a(f"buffer_load_dwordx2 v[{Q}:{Q+1}], v{T+4}, s[{SRD_W}:{SRD_W+3}], 0 offen offset:{1280*qi} sc1")
            a(f"buffer_load_dwordx2 v[{Q+2}:{Q+3}], v{T+4}, s[{SRD_W}:{SRD_W+3}], 0 offen offset:{1280*qi+256} sc1")
            a(f"buffer_load_dwordx2 v[{Q+4}:{Q+5}], v{T+3}, s[{SRD_W}:{SRD_W+3}], 0 offen offset:{1280*qi+1024} sc1")
        self.p2_dma(2)
        a(f"buffer_load_dwordx4 v[{self.A_ALL}:{self.A_ALL+3}], v{self.A_ALLA}, s[{SRD_F}:{SRD_F+3}], 0 offen sc1")
        self.p2_dma(4)
        a(f"s_waitcnt vmcnt(5)")
        a(f"s_barrier")
        self.stamp(7)
        self.p2_dma(1)
        self.p2_kreads(0, 0)
        self.p2_kreads(1, 2560)
        self.p2_vread(0, 0)
        self.p2_vread(1, 0)
        a(f"s_waitcnt lgkmcnt(0)")
        self.p2_smfma(0, self.A_SA, 0, self.A_QA); self.p2_smfma(1, self.A_SA, 0, self.A_QA)
        self.p2_unrolled()
        a.put("L_p2_done")
        a(f"s_setprio 0")
        P = self.A_P; SBr = self.A_SB
        a(f"s_waitcnt lgkmcnt(0)")
        a(f"v_cvt_pk_bf16_f32 v{P+6}, v{SBr+12}, v{SBr+13}")
        a(f"v_cvt_pk_bf16_f32 v{P+7}, v{SBr+14}, v{SBr+15}")
        a(f"s_nop 1")
        a(f"v_mfma_f32_32x32x16_bf16 v[{self.A_OB}:{self.A_OB+15}], v[{self.A_V2B}:{self.A_V2B+3}], v[{P+4}:{P+7}], v[{self.A_OB}:{self.A_OB+15}]")
        self.stamp(8)
        self.p2_epilogue()

    def p2_epilogue(self):
        a = self.a
        T = self.A_T
        self.srd(SRD_O, S_WS, OFF_O, SZ_O)
        a(f"s_mov_b32 s{self.S_SLOWDONE}, {1 if 'noslow' in self.opt else 0}")
        a(f"s_mov_b32 s{self.S_BIG}, {hex(f32(2.0**60))}")
        if "forceslow" in self.opt: a(f"s_mov_b32 s{self.S_BIG}, 0")
        a(f"s_nop 7"); a(f"s_nop 3")
        a(f"s_barrier")
        a(f"s_and_b32 s{S_T0}, s{S_W}, 3")
        a(f"s_lshr_b32 s{S_T1}, s{S_W}, 2")
        a(f"s_lshl_b32 s{S_T0}, s{S_T0}, 1")
        a(f"s_add_u32 s{S_T2}, s{S_T0}, s{S_T1}")
        a(f"s_xor_b32 s{S_T3}, s{S_T2}, 1")
        a(f"s_mul_i32 s{S_T2}, s{S_T2}, 3072")
        a(f"s_mul_i32 s{S_T3}, s{S_T3}, 3072")
        a(f"s_add_u32 s{S_T2}, s{S_T2}, 51200")
        a(f"s_add_u32 s{S_T3}, s{S_T3}, 51200")
        a(f"v_lshlrev_b32 v{T}, 4, v1")
        a(f"v_add_u32 v{T+1}, s{S_T2}, v{T}")
        a(f"v_add_u32 v{T+2}, s{S_T3}, v{T}")
        Lk1 = "L_p2e_k1"; Lj = "L_p2e_j"
        a(f"s_cmp_eq_u32 s{S_T1}, 1")
        a(f"s_cbranch_scc1 {Lk1}")
        for g in range(3):
            a(f"ds_write_b128 v{T+1}, v[{self.A_OB+4*g}:{self.A_OB+4*g+3}] offset:{1024*g}")
        a(f"s_branch {Lj}")
        a.put(Lk1)
        for g in range(3):
            a(f"ds_write_b128 v{T+1}, v[{self.A_OA+4*g}:{self.A_OA+4*g+3}] offset:{1024*g}")
        for r in range(12):
            a(f"v_mov_b32 v{self.A_OA+r}, v{self.A_OB+r}")
        a.put(Lj)
        a(f"s_waitcnt lgkmcnt(0)")
        a(f"s_barrier")
        O = self.A_OA; X = self.A_SA
        for g in range(3):
            a(f"ds_read_b128 v[{X+4*g}:{X+4*g+3}], v{T+2} offset:{1024*g}")
        a(f"s_waitcnt lgkmcnt(0)")
        for r in range(12):
            a(f"v_add_f32 v{O+r}, v{O+r}, v{X+r}")
        a.put("L_p2_fin")
        a(f"v_mov_b32 v{T}, v{O+8}")
        a(f"v_mov_b32 v{T+1}, v{O+8}")
        a(f"s_nop 1")
        a(f"v_permlane32_swap_b32 v{T}, v{T+1}")
        a(f"v_mul_f32 v{T+3}, 0, v{O}")
        for r in list(range(1, 8)):
            a(f"v_fmac_f32 v{T+3}, 0, v{O+r}")
        a(f"v_mov_b32 v{T+4}, 0")
        for r in range(8, 12):
            a(f"v_fmac_f32 v{T+4}, 0, v{O+r}")
        a(f"v_cmp_le_f32 vcc, {hex(f32(2.0**-60))}, v{T+1}")
        a(f"v_cmp_ge_f32 s[{S_SAVE}:{S_SAVE+1}], s{self.S_BIG}, v{T+1}")
        a(f"s_nop 0")
        a(f"s_and_b64 vcc, vcc, s[{S_SAVE}:{S_SAVE+1}]")
        a(f"v_cmp_eq_f32 s[{S_SAVE}:{S_SAVE+1}], 0, v{T+3}")
        a(f"s_nop 0")
        a(f"s_and_b64 vcc, vcc, s[{S_SAVE}:{S_SAVE+1}]")
        a(f"v_cmp_eq_f32 s[{S_SAVE}:{S_SAVE+1}], 0, v{T+4}")
        a(f"s_nop 0")
        a(f"s_or_b32 s{S_SAVE+1}, s{S_SAVE+1}, -1")
        a(f"s_and_b64 vcc, vcc, s[{S_SAVE}:{S_SAVE+1}]")
        a(f"s_or_b32 vcc_lo, vcc_lo, 0")
        a(f"s_cmp_eq_u32 s{self.S_SLOWDONE}, 1")
        a(f"s_cbranch_scc1 L_p2_ok")
        a(f"s_cmp_eq_u64 vcc, -1")
        a(f"s_cbranch_scc0 L_p2_slow")
        a.put("L_p2_ok")
        a(f"v_rcp_f32 v{T+2}, v{T+1}")
        a(f"s_nop 0")
        for r in range(12):
            a(f"v_mul_f32 v{O+r}, v{T+2}, v{O+r}")
        for g in range(3):
            a(f"v_cvt_pk_bf16_f32 v{O+4*g}, v{O+4*g}, v{O+4*g+1}")
            a(f"v_cvt_pk_bf16_f32 v{O+4*g+1}, v{O+4*g+2}, v{O+4*g+3}")
        for g in range(3):
            if g == 2: self.set_exec(0xffffffff)
            a(f"buffer_store_dwordx2 v[{O+4*g}:{O+4*g+1}], v{self.A_OAD+g}, s[{SRD_O}:{SRD_O+3}], s{S_CNT} offen sc1")
            if g == 2: a(f"s_mov_b64 exec, -1")
        a(f"s_branch L_p2_end")
        self.p2_slow()
        a.put("L_p2_end")

    S_SLOWDONE = 94; S_BIG = 95
    def p2_slow(self):
        a = self.a
        T = self.A_T; O = self.A_OA; S = self.A_SA; P = self.A_P
        K = self.A_K; Q = self.A_QA
        a.put("L_p2_slow")
        a(f"s_cmp_lt_u32 s{S_W}, 4")
        a(f"s_cbranch_scc1 L_p2s_q")
        for r in range(8):
            a(f"v_mov_b32 v{Q+r}, v{self.A_QB+r}")
        a.put("L_p2s_q")
        a(f"v_and_b32 v{T}, 31, v1")
        a(f"v_lshrrev_b32 v{T+1}, 5, v1")
        a(f"v_lshlrev_b32 v{T+2}, 3, v{T}")
        a(f"v_lshl_add_u32 v{T+3}, v{T+1}, 9, v{T+2}")
        a(f"v_mul_u32_u24 v{T+4}, 320, v{T+1}")
        a(f"v_lshl_add_u32 v{T+4}, v{T}, 4, v{T+4}")
        a(f"v_mov_b32 v{T+5}, 0xff800000")
        def loadk():
            a(f"buffer_load_dwordx2 v[{K}:{K+1}], v{T+3}, s[{SRD_A}:{SRD_A+3}], s{S_T1} offen sc1")
            a(f"buffer_load_dwordx2 v[{K+2}:{K+3}], v{T+3}, s[{SRD_A}:{SRD_A+3}], s{S_T1} offen offset:256 sc1")
            a(f"buffer_load_dwordx2 v[{K+4}:{K+5}], v{T+2}, s[{SRD_A}:{SRD_A+3}], s{S_T1} offen offset:1024 sc1")
        def smm():
            a(f"v_mfma_f32_32x32x16_bf16 v[{S}:{S+15}], v[{K}:{K+3}], v[{Q}:{Q+3}], 0")
            a(f"v_mfma_f32_32x32x16_bf16 v[{S}:{S+15}], v[{K+4}:{K+7}], v[{Q+4}:{Q+7}], v[{S}:{S+15}]")
            a(f"s_nop 7"); a(f"s_nop 7")
        a(f"s_mov_b32 s{S_T1}, 0")
        a.put("L_p2s_1")
        loadk()
        a(f"s_waitcnt vmcnt(0)")
        smm()
        for r in range(16):
            a(f"v_max_f32 v{T+5}, v{T+5}, v{S+r}")
        a(f"s_add_u32 s{S_T1}, s{S_T1}, 2560")
        a(f"s_cmp_lt_u32 s{S_T1}, 163840")
        a(f"s_cbranch_scc1 L_p2s_1")
        a(f"v_mov_b32 v{T+6}, v{T+5}")
        a(f"s_nop 1")
        a(f"v_permlane32_swap_b32 v{T+6}, v{T+5}")
        a(f"s_nop 1")
        a(f"v_max_f32 v{T+5}, v{T+5}, v{T+6}")
        for r in range(16):
            a(f"v_mov_b32 v{O+r}, 0")
        a(f"s_mov_b32 s{S_T1}, 0")
        a.put("L_p2s_2")
        loadk()
        a(f"s_mov_b64 exec, s[{self.S_VMASK}:{self.S_VMASK+1}]")
        a(f"buffer_load_dwordx4 v[{self.A_V1}:{self.A_V1+3}], v{T+4}, s[{SRD_A}:{SRD_A+3}], s{S_T1} offen offset:1280 sc1")
        a(f"buffer_load_dwordx4 v[{self.A_V2}:{self.A_V2+3}], v{T+4}, s[{SRD_A}:{SRD_A+3}], s{S_T1} offen offset:1920 sc1")
        a(f"s_mov_b64 exec, -1")
        a(f"s_waitcnt vmcnt(0)")
        smm()
        for r in range(16):
            a(f"v_sub_f32 v{S+r}, v{S+r}, v{T+5}")
        for r in range(16):
            a(f"v_exp_f32 v{S+r}, v{S+r}")
        a(f"s_nop 0")
        for k in range(8):
            a(f"v_cvt_pk_bf16_f32 v{P+k}, v{S+2*k}, v{S+2*k+1}")
        a(f"s_nop 1")
        a(f"v_mfma_f32_32x32x16_bf16 v[{O}:{O+15}], v[{self.A_V1}:{self.A_V1+3}], v[{P}:{P+3}], v[{O}:{O+15}]")
        a(f"v_mfma_f32_32x32x16_bf16 v[{O}:{O+15}], v[{self.A_V2}:{self.A_V2+3}], v[{P+4}:{P+7}], v[{O}:{O+15}]")
        a(f"s_add_u32 s{S_T1}, s{S_T1}, 2560")
        a(f"s_cmp_lt_u32 s{S_T1}, 163840")
        a(f"s_cbranch_scc1 L_p2s_2")
        a(f"s_nop 7"); a(f"s_nop 7")
        a(f"s_mov_b32 s{self.S_SLOWDONE}, 1")
        a(f"s_branch L_p2_fin")

    G_ACC = 4
    G_ACT = 52
    G_AM = 84
    G_DV = 2
    G_SA = 3
    S_RB = 49; S_J = 50
    def g2_wbase(self, phase, NT):
        return 88 if (phase == 3 or NT == 3) else 144

    def g2_wsetup(self, phase, srd, sreg, vreg):
        a = self.a
        if phase == 3: self.srd(srd, S_WS, OFF_WOP, SZ_WOP)
        else: self.srd(srd, S_WS, OFF_W2P, SZ_W2P)
        a(f"s_and_b32 s{S_T0}, s{S_W}, 3")
        a(f"s_mul_i32 s{S_T1}, s{S_T0}, 40")
        a(f"s_and_b32 s{S_T2}, s{S_GI}, 7")
        a(f"s_mul_i32 s{S_T2}, s{S_T2}, 5")
        a(f"s_add_u32 s{S_T1}, s{S_T1}, s{S_T2}")
        a(f"s_cmp_lt_u32 s{S_W}, 4")
        a(f"s_cselect_b32 s{S_T2}, 3, 0")
        a(f"s_add_u32 s{S_T1}, s{S_T1}, s{S_T2}")
        a(f"s_lshl_b32 s{sreg}, s{S_T1}, 10")
        a(f"v_lshlrev_b32 v{vreg}, 4, v1")

    def g2_wload1(self, phase, NT, step, t, srd, sreg, vreg):
        a = self.a
        R = self.g2_wbase(phase, NT) + 4*(step*NT + t)
        off = step*4*40*1024 + t*1024
        a(f"s_add_u32 s{S_T2}, s{sreg}, {off}")
        a(f"buffer_load_dwordx4 v[{R}:{R+3}], v{vreg}, s[{srd}:{srd+3}], s{S_T2} offen {self.ld_aux}")

    def g2_wloads_byclass(self, phase, listA, listB, srd, sreg, vreg, tag):
        a = self.a
        LA = f"L_{tag}_A"; LJ = f"L_{tag}_J"
        a(f"s_cmp_ge_u32 s{S_W}, 4")
        a(f"s_cbranch_scc1 {LA}")
        for (st, t) in listB: self.g2_wload1(phase, 2, st, t, srd, sreg, vreg)
        a(f"s_branch {LJ}")
        a.put(LA)
        for (st, t) in listA: self.g2_wload1(phase, 3, st, t, srd, sreg, vreg)
        a.put(LJ)

    def g2_adma(self, stage):
        a = self.a
        slot = (stage % 4) * 32768
        for q in range(4):
            a(f"s_add_u32 m0, s{S_M0A}, {slot + q*8192}")
            a(f"s_add_u32 s{S_T2}, s{S_M0A}, {stage*32768 + q*8192}")
            a(f"buffer_load_dwordx4 v{self.G_DV}, s[{SRD_A}:{SRD_A+3}], s{S_T2} offen {self.ld_aux} lds")

    def g2_reads(self, stage, u, st):
        a = self.a
        slot = stage % 4
        hi = slot >= 2
        if hi != self.g2_hi:
            for m in range(4):
                if hi: a(f"v_add_u32 v{self.G_AM+m}, 0x10000, v{self.G_AM+m}")
                else:  a(f"v_subrev_u32 v{self.G_AM+m}, 0x10000, v{self.G_AM+m}")
            self.g2_hi = hi
        off = (slot % 2) * 32768 + u*16384
        for m in range(4):
            R = self.G_ACT + 16*st + 4*m
            a(f"ds_read_b128 v[{R}:{R+3}], v{self.G_AM+m} offset:{off}")

    def g2_mfma(self, phase, NT, step, st):
        a = self.a
        for t in range(NT):
            W = self.g2_wbase(phase, NT) + 4*(step*NT + t)
            for m in range(4):
                A = self.G_ACC + 4*(m*3 + t)
                X = self.G_ACT + 16*st + 4*m
                a(f"v_mfma_f32_16x16x32_bf16 v[{A}:{A+3}], v[{W}:{W+3}], v[{X}:{X+3}], v[{A}:{A+3}]")

    def g2_main(self, phase, NT, nsteps):
        a = self.a
        NSTG = (nsteps + 1) // 2
        pre = min(3, NSTG)
        self.g2_hi = False
        if NT == 3 and "nog2prio" not in self.opt: a(f"s_setprio 1")
        self.g2_adma(0); self.g2_adma(1)
        a(f"s_waitcnt vmcnt(8)")
        E = self.G_ACT; A = self.G_ACC
        for t in range(NT):
            for half in range(2):
                R = E + 2*t + half
                a(f"v_lshlrev_b32 v{A+4*t+2*half}, 16, v{R}")
                a(f"v_and_b32 v{A+4*t+2*half+1}, 0xffff0000, v{R}")
                if phase == 5:
                    R2 = E + 6 + 2*t + half
                    a(f"v_lshlrev_b32 v{E+14}, 16, v{R2}")
                    a(f"v_and_b32 v{E+15}, 0xffff0000, v{R2}")
                    a(f"v_add_f32 v{A+4*t+2*half}, v{A+4*t+2*half}, v{E+14}")
                    a(f"v_add_f32 v{A+4*t+2*half+1}, v{A+4*t+2*half+1}, v{E+15}")
        if self.g2st: self.stamp(self.g2st)
        a(f"s_waitcnt vmcnt(6)")
        a(f"s_barrier")
        if self.g2st: self.stamp(self.g2st+1)
        self.g2_reads(0, 0, 0)
        self.g2_adma(2)
        for sg in range(NSTG):
            two = (2*sg + 1) < nsteps
            if sg == 0:
                a(f"s_waitcnt lgkmcnt(0)")
                self.g2_mfma(phase, NT, 0, 0)
            if sg + 1 < NSTG:
                out = 4 * max(0, min(NSTG, sg + pre) - (sg + 2))
                a(f"s_waitcnt vmcnt({out})")
                a(f"s_barrier")
            if two:
                self.g2_reads(sg, 1, 1)
                if sg > 0: a(f"s_waitcnt lgkmcnt(4)")
            elif sg > 0:
                a(f"s_waitcnt lgkmcnt(0)")
            if sg > 0: self.g2_mfma(phase, NT, 2*sg, 0)
            if sg + pre < NSTG:
                self.g2_adma(sg + pre)
            if two:
                if sg + 1 < NSTG:
                    self.g2_reads(sg+1, 0, 0)
                    a(f"s_waitcnt lgkmcnt(4)")
                else:
                    a(f"s_waitcnt lgkmcnt(0)")
                self.g2_mfma(phase, NT, 2*sg+1, 1)

    def g2_reduce(self, NT):
        a = self.a
        T = self.G_ACT
        base = 98304 if NT == 3 else 135168
        dstr = NT*1024*3; rstr = NT*1024
        a(f"s_and_b32 s{S_T1}, s{S_W}, 3")
        for m in range(1, 4):
            a(f"s_add_u32 s{S_T2}, s{S_T1}, {m}")
            a(f"s_and_b32 s{S_T2}, s{S_T2}, 3")
            a(f"s_mul_i32 s{S_T2}, s{S_T2}, {dstr}")
            a(f"s_add_u32 s{S_T2}, s{S_T2}, {base + (m-1)*rstr}")
            a(f"v_add_u32 v{T+m}, s{S_T2}, v{self.G_DV}")
        a(f"s_mul_i32 s{S_T2}, s{S_T1}, {dstr}")
        a(f"s_add_u32 s{S_T2}, s{S_T2}, {base}")
        a(f"v_add_u32 v{T}, s{S_T2}, v{self.G_DV}")
        for m in range(1, 4):
            for t in range(NT):
                A = self.G_ACC + 4*(m*3 + t)
                a(f"ds_write_b128 v{T+m}, v[{A}:{A+3}] offset:{t*1024}")
        a(f"s_waitcnt lgkmcnt(0)")
        a(f"s_barrier")
        for rel in range(3):
            for t in range(NT):
                A = self.G_ACC + 4*((rel+1)*3 + t)
                a(f"ds_read_b128 v[{A}:{A+3}], v{T} offset:{rel*rstr + t*1024}")
        a(f"s_waitcnt lgkmcnt(0)")
        for t in range(NT):
            for i in range(4):
                A = self.G_ACC + 4*t + i
                a(f"v_add_f32 v{A}, v{A}, v{A+12}")
                a(f"v_add_f32 v{A+24}, v{A+24}, v{A+36}")
            for i in range(4):
                A = self.G_ACC + 4*t + i
                a(f"v_add_f32 v{A}, v{A}, v{A+24}")

    def h_addr_base(self, B, M, C, tmp):
        a = self.a
        a(f"s_lshl_b32 s{S_T0}, s{self.S_RB}, 6")
        a(f"s_and_b32 s{S_T1}, s{S_W}, 3")
        a(f"s_lshl_b32 s{S_T1}, s{S_T1}, 4")
        a(f"s_add_u32 s{S_T0}, s{S_T0}, s{S_T1}")
        a(f"s_lshr_b32 s{S_T1}, s{S_T0}, 7")
        a(f"s_mul_i32 s{S_T1}, s{S_T1}, 163840")
        a(f"s_and_b32 s{S_T0}, s{S_T0}, 127")
        a(f"v_and_b32 v{tmp}, 15, v1")
        a(f"v_add_u32 v{tmp}, s{S_T0}, v{tmp}")
        a(f"v_bfe_u32 v{M}, v{tmp}, 1, 3")
        a(f"v_lshlrev_b32 v{B}, 7, v{tmp}")
        a(f"v_add_u32 v{B}, s{S_T1}, v{B}")
        a(f"s_mul_i32 s{S_T0}, s{self.S_J}, 80")
        a(f"s_cmp_lt_u32 s{S_W}, 4")
        a(f"s_cselect_b32 s{S_T1}, 48, 0")
        a(f"s_add_u32 s{S_T0}, s{S_T0}, s{S_T1}")
        a(f"v_lshrrev_b32 v{C}, 4, v1")
        a(f"v_lshlrev_b32 v{C}, 2, v{C}")
        a(f"v_add_u32 v{C}, s{S_T0}, v{C}")

    def h_addr(self, dst, t, B, M, C, tmp):
        a = self.a
        a(f"v_add_u32 v{tmp}, {16*t}, v{C}")
        a(f"v_lshrrev_b32 v{dst}, 6, v{tmp}")
        a(f"v_lshlrev_b32 v{dst}, 14, v{dst}")
        a(f"v_add_u32 v{dst}, v{dst}, v{B}")
        a(f"v_bfe_u32 v{tmp+1}, v{tmp}, 3, 3")
        a(f"v_xor_b32 v{tmp+1}, v{tmp+1}, v{M}")
        a(f"v_lshl_add_u32 v{dst}, v{tmp+1}, 4, v{dst}")
        a(f"v_bfe_u32 v{tmp+1}, v{tmp}, 2, 1")
        a(f"v_lshl_add_u32 v{dst}, v{tmp+1}, 3, v{dst}")

    def g2_setup(self, phase):
        a = self.a
        a(f"s_lshr_b32 s{S_T0}, s{S_GI}, 3")
        a(f"s_lshl_b32 s{S_T1}, s{S_GX}, 2")
        a(f"s_add_u32 s{self.S_RB}, s{S_T0}, s{S_T1}")
        a(f"s_and_b32 s{self.S_J}, s{S_GI}, 7")
        if phase == 3: off, per = OFF_O, 81920
        else: off, per = OFF_R, 54*4096
        a(f"s_mul_i32 s{S_T0}, s{self.S_RB}, {per}")
        a(f"s_add_u32 s{S_T0}, s{S_T0}, {hex(off)}")
        a(f"s_add_u32 s{SRD_A}, s{S_WS}, s{S_T0}")
        a(f"s_addc_u32 s{SRD_A+1}, s{S_WS+1}, 0")
        a(f"s_mov_b32 s{SRD_A+2}, {per}")
        a(f"s_mov_b32 s{SRD_A+3}, 0x20000")
        a(f"s_lshl_b32 s{S_M0A}, s{S_W}, 10")
        a(f"v_lshlrev_b32 v{self.G_DV}, 4, v1")
        a(f"s_and_b32 s{S_T0}, s{S_W}, 3")
        for m in range(4):
            a(f"s_add_u32 s{S_T1}, s{S_T0}, {m}")
            a(f"s_and_b32 s{S_T1}, s{S_T1}, 3")
            a(f"s_lshl_b32 s{S_T1}, s{S_T1}, 10")
            a(f"s_lshl_b32 s{S_T2}, s{S_T0}, 12")
            a(f"s_add_u32 s{S_T1}, s{S_T1}, s{S_T2}")
            a(f"v_add_u32 v{self.G_AM+m}, s{S_T1}, v{self.G_DV}")
        E = self.G_ACT
        a(f"s_lshl_b32 s{S_T0}, s{self.S_RB}, 6")
        a(f"s_and_b32 s{S_T1}, s{S_W}, 3")
        a(f"s_lshl_b32 s{S_T1}, s{S_T1}, 4")
        a(f"s_add_u32 s{S_T0}, s{S_T0}, s{S_T1}")
        a(f"v_and_b32 v{self.G_SA}, 15, v1")
        a(f"v_add_u32 v{self.G_SA}, s{S_T0}, v{self.G_SA}")
        a(f"v_mul_u32_u24 v{self.G_SA}, 1280, v{self.G_SA}")
        a(f"s_mul_i32 s{S_T0}, s{self.S_J}, 160")
        a(f"s_cmp_lt_u32 s{S_W}, 4")
        a(f"s_cselect_b32 s{S_T1}, 96, 0")
        a(f"s_add_u32 s{S_T0}, s{S_T0}, s{S_T1}")
        a(f"v_lshrrev_b32 v{E+12}, 4, v1")
        a(f"v_lshlrev_b32 v{E+12}, 3, v{E+12}")
        a(f"v_add_u32 v{E+12}, s{S_T0}, v{E+12}")
        a(f"v_add_u32 v{self.G_SA}, v{self.G_SA}, v{E+12}")
        if phase == 3:
            self.srd(SRD_T, S_X, 0, 2048*1280); aux_r = ""
        else:
            self.srd(SRD_T, S_WS, OFF_H, SZ_H); aux_r = self.ld_aux
        if phase == 3:
            for t in range(3):
                a(f"buffer_load_dwordx2 v[{E+2*t}:{E+2*t+1}], v{self.G_SA}, s[{SRD_T}:{SRD_T+3}], 0 offen offset:{32*t} {aux_r}")
        else:
            self.h_addr_base(E+16, E+17, E+18, E+19)
            for t in range(3):
                self.h_addr(E+20, t, E+16, E+17, E+18, E+21)
                a(f"buffer_load_dwordx2 v[{E+2*t}:{E+2*t+1}], v{E+20}, s[{SRD_T}:{SRD_T+3}], 0 offen {aux_r}")
        if phase == 5:
            self.srd(SRD_T, S_B2, 0, 1280)
            for t in range(3):
                a(f"buffer_load_dwordx2 v[{E+6+2*t}:{E+7+2*t}], v{E+12}, s[{SRD_T}:{SRD_T+3}], 0 offen offset:{32*t}")
        for r in range(12, 48):
            a(f"v_mov_b32 v{self.G_ACC+r}, 0")

    def g2_epi(self, phase, NT):
        a = self.a
        T = self.G_ACT; A = self.G_ACC
        if phase == 3:
            self.srd_twin(S_WS, OFF_H, SZ_H)
        else:
            self.srd(SRD_O, S_OUT, 0, 2048*1280)
        for t in range(NT):
            a(f"v_cvt_pk_bf16_f32 v{A+4*t}, v{A+4*t}, v{A+4*t+1}")
            a(f"v_cvt_pk_bf16_f32 v{A+4*t+1}, v{A+4*t+2}, v{A+4*t+3}")
            if phase == 3:
                if t == 0: self.h_addr_base(T+8, T+9, T+10, T+11)
                self.h_addr(T+12+t, t, T+8, T+9, T+10, T+16)
                self.store_twin("buffer_store_dwordx2", f"v[{A+4*t}:{A+4*t+1}]", T+12+t, "0")
            else: a(f"buffer_store_dwordx2 v[{A+4*t}:{A+4*t+1}], v{self.G_SA}, s[{SRD_O}:{SRD_O+3}], 0 offen offset:{32*t} {self.out_aux}")
        if phase == 3:
            S = T + 22
            a(f"v_mov_b32 v{S}, 0"); a(f"v_mov_b32 v{S+1}, 0")
            for t in range(NT):
                for half in range(2):
                    R = A + 4*t + half
                    a(f"v_lshlrev_b32 v{T+20}, 16, v{R}")
                    a(f"v_and_b32 v{T+21}, 0xffff0000, v{R}")
                    a(f"v_add_f32 v{S}, v{S}, v{T+20}")
                    a(f"v_fmac_f32 v{S+1}, v{T+20}, v{T+20}")
                    a(f"v_add_f32 v{S}, v{S}, v{T+21}")
                    a(f"v_fmac_f32 v{S+1}, v{T+21}, v{T+21}")
            for op in ("v_permlane32_swap_b32", "v_permlane16_swap_b32"):
                a(f"v_mov_b32 v{S+2}, v{S}")
                a(f"v_mov_b32 v{S+3}, v{S+1}")
                a(f"s_nop 1")
                a(f"{op} v{S+2}, v{S}")
                a(f"{op} v{S+3}, v{S+1}")
                a(f"s_nop 1")
                a(f"v_add_f32 v{S}, v{S}, v{S+2}")
                a(f"v_add_f32 v{S+1}, v{S+1}, v{S+3}")
            a(f"s_lshl_b32 s{S_T0}, s{self.S_RB}, 6")
            a(f"s_and_b32 s{S_T1}, s{S_W}, 3")
            a(f"s_lshl_b32 s{S_T1}, s{S_T1}, 4")
            a(f"s_add_u32 s{S_T0}, s{S_T0}, s{S_T1}")
            a(f"v_and_b32 v{S+2}, 15, v1")
            a(f"v_add_u32 v{S+2}, s{S_T0}, v{S+2}")
            a(f"v_lshlrev_b32 v{S+2}, 7, v{S+2}")
            a(f"s_lshl_b32 s{S_T0}, s{self.S_J}, 4")
            a(f"s_add_u32 s{S_T0}, s{S_T0}, {hex(8 if NT == 2 else 0)}")
            a(f"v_add_u32 v{S+2}, s{S_T0}, v{S+2}")
            self.srd_twin(S_WS, OFF_PST, 2048*128)
            a(f"s_mov_b64 exec, 0xffff")
            self.store_twin("buffer_store_dwordx2", f"v[{S}:{S+1}]", S+2, "0")
            a(f"s_mov_b64 exec, -1")

    def g2(self, phase):
        a = self.a
        nsteps = 5 if phase == 3 else 14
        self.g2st = 15 if (str(phase) in self.opt_g2) else None
        L1 = f"L_g2p{phase}_n1"; Lj = f"L_g2p{phase}_j"
        a(f"s_cmp_lt_u32 s{S_W}, 4")
        a(f"s_cbranch_scc1 {L1}")
        for NT in (3, 2):
            self.g2_main(phase, NT, nsteps)
            if self.g2st: self.stamp(self.g2st+2)
            if NT == 3: a(f"s_setprio 0")
            a(f"s_nop 7")
            self.g2_reduce(NT)
            if self.g2st: self.stamp(self.g2st+3)
            self.g2_epi(phase, NT)
            if NT == 3:
                a(f"s_branch {Lj}")
                a.put(L1)
        a.put(Lj)

    def hook23(self):
        a = self.a
        a(f"v_lshlrev_b32 v{self.G_DV}, 4, v1")
        self.wo_from_lds()
        self.g2_setup(3)
    def hook34(self):
        a = self.a
        a(f"s_cmp_lt_u32 s{S_GI}, 28")
        a(f"s_cbranch_scc1 L_h34_skip")
        self.prefetch_w2_rest()
        a.put("L_h34_skip")
        self.p4_setup()
    def hook45(self):
        self.g2_setup(5)
        if "wbl2" in self.opt:
            a = self.a
            a(f"s_cmp_lg_u32 s{S_GI}, 31")
            a(f"s_cbranch_scc1 L_wbl2_skip")
            a(f"s_cmp_lg_u32 s{S_W}, 1")
            a(f"s_cbranch_scc1 L_wbl2_skip")
            a(f"buffer_wbl2 sc1")
            a.put("L_wbl2_skip")

    def wo_lds_base(self, dst):
        a = self.a
        a(f"s_sub_u32 s{S_T3}, s{S_W}, 4")
        a(f"s_mul_i32 s{S_T3}, s{S_T3}, 15360")
        a(f"s_cmp_eq_u32 s{S_W}, 7")
        a(f"s_cselect_b32 s{S_T3}, 81920, s{S_T3}")
        a(f"s_mul_i32 s{S_T4}, s{S_W}, 10240")
        a(f"s_add_u32 s{S_T4}, s{S_T4}, 97280")
        a(f"s_cmp_eq_u32 s{S_W}, 3")
        a(f"s_cselect_b32 s{S_T4}, 46080, s{S_T4}")
        a(f"s_cmp_lt_u32 s{S_W}, 4")
        a(f"s_cselect_b32 s{dst}, s{S_T4}, s{S_T3}")

    def wo_frag_off(self, NT, idx):
        return idx * 1024

    def wo_dma(self, lo, hi):
        a = self.a
        LA = f"L_wod{lo}_A"; LJ = f"L_wod{lo}_J"
        a(f"s_cmp_ge_u32 s{S_W}, 4")
        a(f"s_cbranch_scc1 {LA}")
        for NT, lab in ((2, None), (3, LA)):
            if lab:
                a(f"s_branch {LJ}")
                a.put(lab)
            for idx in range(lo, min(hi, 5*NT)):
                st, t = divmod(idx, NT)
                base = self.S_WOB if not (NT == 2 and idx >= 5) else self.S_WOB2
                a(f"s_add_u32 m0, s{base}, {idx*1024}")
                a(f"s_add_u32 s{S_T2}, s{self.S_WOS}, {st*4*40*1024 + t*1024}")
                a(f"buffer_load_dwordx4 v{self.A_DV}, s[{SRD_T}:{SRD_T+3}], s{S_T2} offen {self.ld_aux} lds")
        a.put(LJ)

    def wo_dma_cls(self, NT, lo, hi):
        a = self.a
        for idx in range(lo, min(hi, 5*NT)):
            st, t = divmod(idx, NT)
            base = self.S_WOB if not (NT == 2 and idx >= 5) else self.S_WOB2
            a(f"s_add_u32 m0, s{base}, {idx*1024}")
            a(f"s_add_u32 s{S_T2}, s{self.S_WOS}, {st*4*40*1024 + t*1024}")
            a(f"buffer_load_dwordx4 v{self.A_DV}, s[{SRD_T}:{SRD_T+3}], s{S_T2} offen {self.ld_aux} lds")

    S_WOB = 63; S_WOB2 = 64; S_WOS = 54
    def wo_setup(self):
        a = self.a
        self.g2_wsetup(3, SRD_T, self.S_WOS, self.A_DV)
        self.wo_lds_base(self.S_WOB)
        a(f"s_cmp_eq_u32 s{S_W}, 3")
        a(f"s_cselect_b32 s{self.S_WOB2}, {128000-5120}, s{self.S_WOB}")

    def wo_from_lds(self):
        a = self.a
        LA = "L_wol_A"; LJ = "L_wol_J"
        a(f"v_add_u32 v{self.G_AM}, s{self.S_WOBK}, v{self.G_DV}")
        a(f"v_add_u32 v{self.G_AM+1}, s{self.S_WOB2}, v{self.G_DV}")
        a(f"s_cmp_ge_u32 s{S_W}, 4")
        a(f"s_cbranch_scc1 {LA}")
        for NT, lab in ((2, None), (3, LA)):
            if lab:
                a(f"s_branch {LJ}")
                a.put(lab)
            for idx in range(5*NT):
                R = 88 + 4*idx
                ad = self.G_AM if not (NT == 2 and idx >= 5) else self.G_AM + 1
                a(f"ds_read_b128 v[{R}:{R+3}], v{ad} offset:{idx*1024}")
        a.put(LJ)
        a(f"s_waitcnt lgkmcnt(0)")

    def prefetch_wo(self):
        self.g2_wsetup(3, SRD_W, S_SW, 2)
        self.g2_wloads_byclass(3, [(s_, t) for s_ in range(5) for t in range(3)], [(s_, t) for s_ in range(5) for t in range(2)], SRD_W, S_SW, 2, "pfwo")
    def prefetch_w2_rest(self):
        self.g2_wsetup(5, SRD_W, S_SW, 2)
        self.g2_wloads_byclass(5, [(s_, t) for s_ in range(5) for t in range(3)], [], SRD_W, S_SW, 2, "pfw2")

    def p4_epi(self):
        a = self.a
        self.V_T = 2
        T = self.V_T; A = self.V_ACC; CSR = self.V_FR
        B1R = self.V_FR + 32
        a(f"s_cmp_eq_u32 s{S_NT}, 13")
        a(f"s_cselect_b32 s{S_T0}, s{S_WN}, 0")
        a(f"s_cmp_eq_u32 s{S_T0}, 1")
        a(f"s_cbranch_scc1 L_p4_skip")
        self.epi_T_common()
        for g in range(4):
            a(f"ds_read_b128 v[{B1R+4*g}:{B1R+4*g+3}], v{T+7} offset:{ST_B1-ST_CS+32*g}")
        for g in range(4):
            a(f"ds_read_b128 v[{B1R+16+4*g}:{B1R+16+4*g+3}], v{T+1} offset:{ST_B1-ST_CS+32*g}")
        if "rsc1" in self.opt: self.srd(SRD_O, S_WS, OFF_R, SZ_R)
        else: self.srd_twin(S_WS, OFF_R, SZ_R)
        a(f"s_lshl_b32 s{S_T0}, s{S_MT}, 1")
        a(f"s_add_u32 s{S_T0}, s{S_T0}, s{S_WM}")
        a(f"s_mul_i32 s{S_T0}, s{S_T0}, {54*4096}")
        a(f"s_lshl_b32 s{S_T1}, s{S_NT}, 2")
        a(f"s_lshl_b32 s{S_T2}, s{S_WN}, 1")
        a(f"s_add_u32 s{S_T1}, s{S_T1}, s{S_T2}")
        a(f"s_add_u32 s{S_T2}, s{S_T1}, s{S_WM}")
        a(f"s_xor_b32 s{S_T3}, s{S_WM}, 1")
        a(f"s_add_u32 s{S_T3}, s{S_T1}, s{S_T3}")
        a(f"s_lshl_b32 s{S_T2}, s{S_T2}, 12")
        a(f"s_lshl_b32 s{S_T3}, s{S_T3}, 12")
        a(f"s_add_u32 s{S_T4}, s{S_T0}, s{S_T2}")
        a(f"s_add_u32 s{S_T5}, s{S_T0}, s{S_T3}")
        a(f"v_bfe_u32 v{T+8}, v1, 4, 1")
        a(f"v_lshlrev_b32 v{T+8}, 10, v{T+8}")
        a(f"v_and_b32 v{T+9}, 15, v1")
        a(f"v_lshl_add_u32 v{T+8}, v{T+9}, 4, v{T+8}")
        a(f"v_lshl_add_u32 v{T+8}, v{T+6}, 8, v{T+8}")
        a(f"s_waitcnt lgkmcnt(0)")
        for tt in range(2):
            for q in range(2):
                for gp in range(2):
                    ab = f"v[{T+2+2*tt}:{T+3+2*tt}]"
                    for g in (2*gp, 2*gp+1):
                        for i in (0, 2):
                            r = A + 16*(2*tt+q) + 4*g + i
                            c = CSR + 16*q + 4*g + i; b1 = B1R + 16*q + 4*g + i
                            a(f"v_pk_fma_f32 v[{r}:{r+1}], v[{r}:{r+1}], {ab}, v[{b1}:{b1+1}] op_sel:[0,0,0] op_sel_hi:[1,0,1]")
                            a(f"v_pk_fma_f32 v[{r}:{r+1}], v[{c}:{c+1}], {ab}, v[{r}:{r+1}] op_sel:[0,1,0] op_sel_hi:[1,1,1]")
                            a(f"v_max_f32 v{r}, 0, v{r}")
                            a(f"v_max_f32 v{r+1}, 0, v{r+1}")
                            a(f"v_pk_mul_f32 v[{r}:{r+1}], v[{r}:{r+1}], v[{r}:{r+1}]")
                    r = A + 16*(2*tt+q) + 8*gp
                    a(f"v_cvt_pk_bf16_f32 v{r}, v{r}, v{r+1}")
                    a(f"v_cvt_pk_bf16_f32 v{r+1}, v{r+2}, v{r+3}")
                    a(f"v_cvt_pk_bf16_f32 v{r+2}, v{r+4}, v{r+5}")
                    a(f"v_cvt_pk_bf16_f32 v{r+3}, v{r+6}, v{r+7}")
                    a(f"s_nop 1")
                    a(f"v_permlane32_swap_b32 v{r}, v{r+2}")
                    a(f"v_permlane32_swap_b32 v{r+1}, v{r+3}")
                    if "rsc1" in self.opt:
                        a(f"buffer_store_dwordx4 v[{r}:{r+3}], v{T+8}, s[{SRD_O}:{SRD_O+3}], s{S_T4+q} offen offset:{2048*tt + 512*gp} sc1")
                    else:
                        self.store_twin("buffer_store_dwordx4", f"v[{r}:{r+3}]", T+8, f"s{S_T4+q}", f"offset:{2048*tt + 512*gp}")
        a.put("L_p4_skip")
        self.V_T = 148

    def p4_setup(self):
        a = self.a
        a(f"s_cmp_ge_u32 s{S_GI}, 28")
        a(f"s_cbranch_scc1 L_p4s_done")
        a(f"s_cmp_ge_u32 s{S_GI}, 14")
        a(f"s_cselect_b32 s{S_T0}, 1, 0")
        a(f"s_cselect_b32 s{S_T1}, 14, 0")
        a(f"s_sub_u32 s{S_NT}, s{S_GI}, s{S_T1}")
        a(f"s_lshl_b32 s{S_MT}, s{S_GX}, 1")
        a(f"s_add_u32 s{S_MT}, s{S_MT}, s{S_T0}")
        a(f"s_cmp_ge_u32 s{S_NT}, 10")
        a(f"s_cselect_b32 s{S_T0}, 10, 0")
        a(f"s_sub_u32 s{S_KK}, s{S_NT}, s{S_T0}")
        if "p4norot" in self.opt: a(f"s_mov_b32 s{S_KK}, 0")
        a(f"s_cmp_lt_u32 s{S_W}, 4")
        a(f"s_cbranch_scc1 L_p4s_compute")
        self.V_T = 16
        self.g1_setup_loader(3456)
        self.g1_linearA()
        self.srd(SRD_A, S_WS, OFF_H, SZ_H)
        self.srd(SRD_W, S_W1, 0, 640*3456)
        T = self.V_T
        self.srd(SRD_T, S_B1, 0, 1728*2)
        a(f"s_sub_u32 s{S_T4}, s{S_W}, 4")
        a(f"s_lshl_b32 s{S_T4}, s{S_T4}, 5")
        a(f"v_and_b32 v{T+10}, 31, v1")
        a(f"v_add_u32 v{T+10}, s{S_T4}, v{T+10}")
        a(f"s_lshl_b32 s{S_T4}, s{S_NT}, 7")
        a(f"v_add_u32 v{T+11}, s{S_T4}, v{T+10}")
        a(f"v_lshlrev_b32 v{T+11}, 1, v{T+11}")
        a(f"buffer_load_ushort v{T+22}, v{T+11}, s[{SRD_T}:{SRD_T+3}], 0 offen")
        a(f"v_lshlrev_b32 v{T+11}, 1, v{T+11}")
        a(f"v_add_u32 v{T+11}, {hex(OFF_CS1)}, v{T+11}")
        a(f"buffer_load_dword v{T+23}, v{T+11}, s[{SRD_F}:{SRD_F+3}], 0 offen {self.ld_aux}")
        a(f"s_mov_b32 s{S_T3}, s{S_KK}")
        for sg in range(3):
            a(f"s_mul_i32 s{S_T4}, s{S_T3}, {64*3456}")
            a(f"s_add_u32 s{S_T4}, s{S_T4}, s{S_SW}")
            for q in range(4):
                a(f"s_add_u32 m0, s{S_M0A}, {sg*32768 + 16384 + q*4096}")
                a(f"s_add_u32 s{S_T2}, s{S_T4}, {q*16*3456}")
                a(f"buffer_load_dwordx4 v{self.V_OFFW}, s[{SRD_W}:{SRD_W+3}], s{S_T2} offen lds")
            a(f"s_add_u32 s{S_T3}, s{S_T3}, 1")
            a(f"s_cmp_eq_u32 s{S_T3}, 10")
            a(f"s_cselect_b32 s{S_T3}, 0, s{S_T3}")
        self.V_T = 148
        a(f"s_branch L_p4s_done")
        a.put("L_p4s_compute")
        self.g1_setup_compute()
        a.put("L_p4s_done")

    def p4(self):
        a = self.a
        a(f"s_cmp_ge_u32 s{S_GI}, 28")
        a(f"s_cbranch_scc1 L_p4_done")
        self.aux_A = self.ld_aux
        self.st1 = 15 if "p4s" in self.opt else None
        a(f"s_cmp_lt_u32 s{S_W}, 4")
        a(f"s_cbranch_scc1 L_p4_compute")
        self.V_T = 16
        for sg in range(3):
            a(f"s_lshl_b32 s{S_T4}, s{S_KK}, 14")
            a(f"s_add_u32 s{S_T4}, s{S_T4}, s{S_SA}")
            for q in range(4):
                a(f"s_add_u32 m0, s{S_M0A}, {sg*32768 + q*4096}")
                a(f"s_add_u32 s{S_T2}, s{S_T4}, {q*4096}")
                a(f"buffer_load_dwordx4 v{self.V_OFFA}, s[{SRD_A}:{SRD_A+3}], s{S_T2} offen {self.aux_A} lds")
            a(f"s_add_u32 s{S_KK}, s{S_KK}, 1")
            a(f"s_cmp_eq_u32 s{S_KK}, 10")
            a(f"s_cselect_b32 s{S_KK}, 0, s{S_KK}")
        a(f"s_mov_b32 s{S_SLOT}, {3*32768}")
        self.kk_wrap = 0
        self.b1_hook = True
        self.linA = True
        self.g1_loader(3456, "p4", "part")
        self.linA = False
        self.b1_hook = False
        self.V_T = 148
        a(f"s_branch L_p4_done")
        a.put("L_p4_compute")
        self.nocs = True
        self.g1_compute("T", "p4", presetup=True)
        self.nocs = False
        if "p4s" in self.opt: self.stamp(16)
        self.p4_epi()
        if "p4s" in self.opt: self.stamp(17)
        a.put("L_p4_done")

    def code_warm(self):
        a = self.a
        a(f"s_getpc_b64 s[{SRD_T}:{SRD_T+1}]")
        a.put("L_pc_here")
        a(f"s_sub_u32 s{SRD_T}, s{SRD_T}, L_pc_here-{NAME}")
        a(f"s_subb_u32 s{SRD_T+1}, s{SRD_T+1}, 0")
        a(f"s_mov_b32 s{SRD_T+2}, L_end-{NAME}")
        a(f"s_mov_b32 s{SRD_T+3}, 0x20000")
        a(f"v_lshlrev_b32 v254, 7, v0")
        a(f"buffer_load_dword v255, v254, s[{SRD_T}:{SRD_T+3}], 0 offen")

    def epoch_update(self):
        a = self.a
        a(f"s_or_b32 s{S_T0}, s2, s{S_W}")
        a(f"s_cmp_lg_u32 s{S_T0}, 0")
        a(f"s_cbranch_scc1 L_noepoch")
        a(f"v_mov_b32 v2, {OFF_EPOCH}")
        a(f"v_mov_b32 v3, s{S_TAG}")
        a(f"s_mov_b64 exec, 1")
        a(f"buffer_store_dword v3, v2, s[{SRD_F}:{SRD_F+3}], 0 offen sc1")
        a(f"s_mov_b64 exec, -1")
        a.put("L_noepoch")

    def epilogue_stamps(self):
        if getattr(self, "freeze", False): self.stamps = True
        if not self.stamps: return
        a = self.a
        if "dbg" in self.opt:
            a(f"s_or_b32 s{S_T0}, s2, s{S_W}")
            a(f"s_cmp_lg_u32 s{S_T0}, 0")
            a(f"s_cbranch_scc1 L_nodbg")
            self.srd(SRD_T, S_DBG, 0, 256)
            a(f"s_memrealtime s[100:101]")
            a(f"s_waitcnt lgkmcnt(0)")
            a(f"s_sub_u32 s{S_STAMP+15}, s100, s88")
            a(f"s_add_u32 s{S_STAMP+15}, s{S_STAMP+15}, s{S_STAMP}")
            a(f"v_mov_b32 v3, 0")
            a(f"s_mov_b64 exec, 1")
            for i in range(16):
                a(f"s_sub_u32 s{S_T1}, s{S_STAMP+i}, s{S_STAMP}")
                a(f"v_mov_b32 v2, s{S_T1}")
                a(f"buffer_store_dword v2, v3, s[{SRD_T}:{SRD_T+3}], 0 offen offset:{4*i}")
                a(f"s_nop 1")
            a(f"s_mov_b64 exec, -1")
            a.put("L_nodbg")
        a(f"s_waitcnt lgkmcnt(0)")
        a(f"s_lshl_b32 s{S_T0}, s2, 3")
        a(f"s_add_u32 s{S_T0}, s{S_T0}, s{S_W}")
        a(f"s_lshl_b32 s{S_T0}, s{S_T0}, 7")
        a(f"s_add_u32 s{S_T0}, s{S_T0}, 0x80000")
        a(f"v_mov_b32 v3, s{S_T0}")
        a(f"s_mov_b64 exec, 1")
        a(f"s_memrealtime s[100:101]")
        a(f"s_waitcnt lgkmcnt(0)")
        a(f"s_sub_u32 s{S_T1}, s100, s88")
        a(f"v_mov_b32 v2, s{S_T1}")
        a(f"buffer_store_dword v2, v3, s[{SRD_F}:{SRD_F+3}], 0 offen offset:{4*31}")
        a(f"v_mov_b32 v2, s88")
        a(f"buffer_store_dword v2, v3, s[{SRD_F}:{SRD_F+3}], 0 offen offset:{4*30}")
        for i in range(self.nstamp):
            a(f"s_sub_u32 s{S_T1}, s{S_STAMP+i}, s{S_STAMP}")
            a(f"v_mov_b32 v2, s{S_T1}")
            a(f"buffer_store_dword v2, v3, s[{SRD_F}:{SRD_F+3}], 0 offen offset:{4*i}")
            a(f"s_nop 1")
        a(f"s_mov_b64 exec, -1")

    def build(self):
        a = self.a
        self.prologue()
        self.p1()
        self.p2_setup()
        self.p2_wait_prep()
        self.p1_signal()
        if self.stop_after != "p1":
            self.p2()
            if self.stop_after != "p2":
                self.V_S = 66
                self.group_barrier(0, "gb23", S_QB, S_HEAD, hook=self.hook23)
                self.stamp(9)
                self.g2(3)
                self.stamp(10)
                if self.stop_after != "p3":
                    self.group_barrier(1, "gb34", hook=self.hook34, local=True)
                    self.stamp(11)
                    self.p4()
                    self.stamp(12)
                    if self.stop_after != "p4":
                        self.group_barrier(2, "gb45", hook=self.hook45, local=True, early_A=("early" in self.opt), pollw=(4 if "early" in self.opt else 0))
                        self.stamp(13)
                        self.g2(5)
            a(f"s_waitcnt vmcnt(0)")
            self.stamp(14)
        if "delay" in self.opt:
            for i in range(4): a("s_sleep 127")
        self.epoch_update()
        if "showfast" in self.opt:
            a(f"s_lshl_b32 s{S_T0}, s{S_FAST}, 8")
            a(f"s_or_b32 s{S_T0}, s{S_T0}, s{S_XCC}")
            a(f"s_add_u32 s{S_STAMP+1}, s{S_STAMP}, s{S_T0}")
        self.epilogue_stamps()
        a(f"s_waitcnt vmcnt(0)")
        a.put("L_end")
        a("s_endpgm")
        return a

import struct
def f32(x):
    return struct.unpack("<I", struct.pack("<f", x))[0]

HEADER = open("sequential_preLN__mha_block__dense_activation_squared_relu__prompt.s.ref").read().split("; Override launch geometry")[0]

def wrap(body, lds=163840, vgpr=256):
    s = HEADER
    s += f"; @launch grid=(256,1,1) block=(512,1,1) lds={lds}\n"
    s += '.amdgcn_target "amdgcn-amd-amdhsa--gfx950"\n.text\n'
    s += f".globl {NAME}\n.p2align 8\n.type {NAME},@function\n{NAME}:\n"
    s += body
    s += f"""
.section .rodata,"a"
.p2align 6
.amdhsa_kernel {NAME}
  .amdhsa_next_free_vgpr {vgpr}
  .amdhsa_next_free_sgpr 102
  .amdhsa_accum_offset {vgpr}
  .amdhsa_group_segment_fixed_size 0
  .amdhsa_kernarg_size 88
  .amdhsa_user_sgpr_count 2
  .amdhsa_user_sgpr_kernarg_segment_ptr 1
  .amdhsa_system_sgpr_workgroup_id_x 1
.end_amdhsa_kernel
"""
    return s

if __name__ == "__main__":
    import argparse
    ap = argparse.ArgumentParser()
    ap.add_argument("-o", default="out.s")
    ap.add_argument("--stop", default=None)
    ap.add_argument("--stamps", action="store_true")
    ap.add_argument("--opt", default="")
    ap.add_argument("--plow", default=None)
    ap.add_argument("--lowpos", default=None)
    args = ap.parse_args()
    g = Gen(stop_after=args.stop, stamps=args.stamps, opt=[o for o in args.opt.split(',') if o])
    if args.lowpos is not None: g.low_pos = tuple(int(x) for x in args.lowpos.split(",") if x)
    if "ws1" in g.opt: g.warm_slots = {'dst': 48, 'w1': 52}
    if "ws2" in g.opt: g.warm_slots = {'w1': 48, 'dst': 52}
    if "ws3" in g.opt: g.warm_slots = {'w1': 48, 'dst': 49, 'wp': 50}
    if "ws0" in g.opt: g.warm_slots = {}
    if "low2" in g.opt: g.low_tiles = 2
    if "low3" in g.opt: g.low_tiles = 3
    if args.plow is not None: g.prio_low = tuple(int(x) for x in args.plow.split(",") if x)
    a = g.build()
    rep = check(a.L)
    for r in rep: print(r)
    open(args.o, "w").write(wrap(a.text()))
    print("wrote", args.o, len(a.L), "lines;", len(rep), "hazards")
```

```python
import sys, math
sys.path.insert(0, "gen")
from asmlib import Asm, vr, sr, check

NAME = "sequential_preLN__mha_block__dense_activation_squared_relu__prompt_kernel"

OFF_EPOCH = 0
OFF_ALL   = 0x1000
OFF_GB    = 0x50000
OFF_MB1   = 65536
OFF_GR    = 0x68000
OFF_CS1   = 0x70000
OFF_PST   = 0xC0000
OFF_Q     = 0x100000
OFF_KV    = 0x400000
OFF_O     = 0xA00000
OFF_H     = 0xD00000
OFF_R     = 0x1000000
OFF_WOP   = 0x1700000
OFF_W2P   = 0x1800000
SZ_Q = 32*64*1280
SZ_KV = 32*64*2560
SZ_O = 32*20*4096
SZ_H = 2048*1280
SZ_R = 32*54*4096
SZ_WOP = 20*40*1024
SZ_W2P = 54*40*1024

S_KA = 0; S_WG = 2; S_W = 3
S_X = 4; S_WQKV = 6; S_WO = 8; S_W1 = 12; S_B1 = 14; S_W2 = 16; S_B2 = 18; S_OUT = 20; S_DBG = 22; S_WS = 24
S_TAG = 26; S_GX = 27
SRD_A = 28; SRD_W = 32; SRD_O = 36; SRD_F = 40; SRD_T = 44
S_GI = 48
S_MT = 49; S_NT = 50; S_KK = 51; S_CNT = 52; S_SLOT = 53
S_SA = 54; S_SW = 55; S_T0 = 56; S_T1 = 57; S_T2 = 58; S_T3 = 59; S_T4 = 60; S_T5 = 61
S_M0A = 62; S_WM = 63; S_WN = 64; S_DELTA = 65; S_ONES = 66; S_ROT4 = 67; S_RLW = 68; S_RSLOT = 69; S_HEAD = 66; S_QB = 67
S_STAMP = 70
S_SAVE = 90
S_OOB = 53
S_XCC = 10; S_FAST = 11
SRD_P = 96

LDS_STATS = 0
ST_PX, ST_PQ, ST_PC, ST_AA, ST_BB, ST_CS, ST_B1 = 0, 4096, 8192, 9216, 9728, 10240, 10752
LDS_RL = 32768

class Gen:
    def __init__(self, stop_after=None, stamps=False, opt=()):
        self.opt = set(opt)
        self.a = Asm()
        self.stop_after = stop_after
        self.stamps = stamps
        self.nstamp = 0
        self.code_rounds = 2
        self.linA = False
        self.tlb_step = 0x80000 if 'tlb512k' in self.opt else 0x200000
        self.out_aux = 'nt' if 'outnt' in self.opt else ('sc1' if 'outsc1' in self.opt else '')
        self.evtag = 'u'
        self.kk_wrap = 2
        global LDS_STATS, LDS_RL
        if "ns5" not in self.opt:
            self.NSLOT = 4; LDS_STATS = 131072; LDS_RL = 131072 + 12288
        else:
            self.NSLOT = 5; LDS_STATS = 0; LDS_RL = 32768
        self.fast_aux = "nt" if "fnt" in self.opt else ("sc0" if "fsc0" in self.opt else ("sc0 nt" if "fsc0nt" in self.opt else ""))
        self.opt_g2 = "3" if "g2s3" in self.opt else ("5" if "g2s5" in self.opt else "")
        self.ld_aux = "" if "plainld" in self.opt else "sc1"

    def srd(self, dst, base_s, off, size):
        a = self.a
        if off:
            a(f"s_add_u32 s{dst}, s{base_s}, {hex(off)}")
            a(f"s_addc_u32 s{dst+1}, s{base_s+1}, 0")
        else:
            a(f"s_mov_b32 s{dst}, s{base_s}")
            a(f"s_mov_b32 s{dst+1}, s{base_s+1}")
        a(f"s_mov_b32 s{dst+2}, {hex(size)}")
        a(f"s_mov_b32 s{dst+3}, 0x20000")

    def csel(self, dst, x, y):
        self.a(f"s_mov_b32 s{dst}, {y}")
        self.a(f"s_cselect_b32 s{dst}, {x}, s{dst}")

    def withT(self, T, fn, *args, **kw):
        old = self.V_T; self.V_T = T
        r = fn(*args, **kw)
        self.V_T = old
        return r

    def srd_twin(self, base_s, off, size):
        a = self.a
        self.srd(SRD_O, base_s, off, size)
        a(f"s_mov_b32 s{SRD_P}, s{SRD_O}")
        a(f"s_mov_b32 s{SRD_P+1}, s{SRD_O+1}")
        a(f"s_mov_b32 s{SRD_P+3}, 0x20000")
        a(f"s_cmp_eq_u32 s{S_FAST}, 1")
        a(f"s_cselect_b32 s{SRD_P+2}, s{SRD_O+2}, 0")
        a(f"s_cselect_b32 s{SRD_O+2}, 0, s{SRD_O+2}")
    def store_twin(self, op, data, vaddr, soff, extra=""):
        a = self.a
        a(f"{op} {data}, v{vaddr}, s[{SRD_O}:{SRD_O+3}], {soff} offen {extra} sc1")
        a(f"{op} {data}, v{vaddr}, s[{SRD_P}:{SRD_P+3}], {soff} offen {extra} {self.fast_aux}")

    def set_exec(self, mask):
        mask = int(str(mask), 0) & 0xFFFFFFFFFFFFFFFF
        if mask == 0xFFFFFFFFFFFFFFFF: self.a("s_mov_b64 exec, -1")
        elif mask < 0x80000000: self.a(f"s_mov_b64 exec, {hex(mask)}")
        else:
            self.a(f"s_mov_b32 exec_lo, {hex(mask & 0xffffffff)}")
            self.a(f"s_mov_b32 exec_hi, {hex(mask >> 32)}")

    def stamp(self, i=None):
        if not self.stamps: return
        if i is None: return
        self.nstamp = max(self.nstamp, i + 1)
        self.a(f"s_memtime s[100:101]")
        self.a(f"s_waitcnt lgkmcnt(0)")
        self.a(f"s_mov_b32 s{S_STAMP+i}, s100")

    def prologue(self):
        a = self.a
        a(f"s_cmp_ge_u32 s2, 256")
        a(f"s_cbranch_scc1 L_end")
        if "perm" in self.opt:
            a(f"s_lshr_b32 s3, s2, 3")
            a(f"s_and_b32 s2, s2, 7")
            a(f"s_lshl_b32 s2, s2, 5")
            a(f"s_or_b32 s2, s2, s3")
        self.stamp(0)
        if self.stamps: a(f"s_memrealtime s[88:89]")
        a(f"s_load_dwordx16 s[4:19], s[0:1], 0")
        a(f"s_load_dwordx4 s[20:23], s[0:1], 64")
        a(f"s_load_dwordx2 s[24:25], s[0:1], 80")
        if "nowarm" not in self.opt: self.code_warm()
        a(f"v_lshrrev_b32 v2, 6, v0")
        a(f"v_and_b32 v1, 63, v0")
        a(f"v_readfirstlane_b32 s{S_W}, v2")
        a(f"s_and_b32 s{S_GX}, s2, 7")
        a(f"s_lshr_b32 s{S_GI}, s2, 3")
        a(f"v_mov_b32 v{self.V_S+2}, 0")
        a(f"v_mov_b32 v{self.V_S+5}, 0")
        a(f"v_mov_b32 v{self.V_S+20}, 0")
        a(f"v_mov_b32 v{self.V_S+21}, 0")
        a(f"s_lshr_b32 s{S_WM}, s{S_W}, 2")
        a(f"s_and_b32 s{S_WN}, s{S_W}, 3")

    def finish_tag(self):
        a = self.a
        a(f"s_waitcnt lgkmcnt(0)")
        a(f"s_mul_i32 s{S_TAG}, s{S_TAG}, 0x9E3779B1")
        a(f"s_add_u32 s{S_TAG}, s{S_TAG}, 0x7F4A7C15")

    V_OFFA = 2; V_OFFW = 3
    V_AA = 2
    V_AWA = 6; V_AWB = 7
    V_AW2A = 0; V_AW2B = 1
    V_CSA = 8
    V_CSD = 12
    V_FR = 16
    V_ACC = 80
    V_T = 148
    V_S = 152
    POLLW = 0
    SIGW = 7
    V_LA = 4
    V_LS = 8
    V_LD = 20
    V_LU = 40
    NSLOT = 5

    def g1_setup_loader(self, WS):
        a = self.a
        T = self.V_T
        a(f"s_sub_u32 s{S_T4}, s{S_W}, 4")
        a(f"v_lshrrev_b32 v{T}, 4, v1")
        a(f"s_lshl_b32 s{S_T0}, s{S_T4}, 2")
        a(f"v_add_u32 v{T+1}, s{S_T0}, v{T}")
        a(f"v_and_b32 v{T+1}, 7, v{T+1}")
        a(f"v_and_b32 v{T+2}, 7, v1")
        a(f"v_xor_b32 v{T+1}, v{T+1}, v{T+2}")
        a(f"v_lshlrev_b32 v{T+1}, 4, v{T+1}")
        a(f"v_lshrrev_b32 v{T+2}, 3, v1")
        a(f"v_mul_u32_u24 v{T+2}, 1280, v{T+2}")
        a(f"v_add_u32 v{self.V_OFFA}, v{T+1}, v{T+2}")
        a(f"v_lshlrev_b32 v{T+1}, 2, v{T}")
        a(f"v_and_b32 v{T+2}, 15, v1")
        a(f"v_xor_b32 v{T+1}, v{T+1}, v{T+2}")
        a(f"v_lshlrev_b32 v{T+1}, 4, v{T+1}")
        a(f"v_mul_u32_u24 v{T+2}, {WS}, v{T}")
        a(f"v_add_u32 v{self.V_OFFW}, v{T+1}, v{T+2}")
        a(f"s_lshl_b32 s{S_T0}, s{S_MT}, 7")
        a(f"s_lshl_b32 s{S_T1}, s{S_T4}, 3")
        a(f"s_add_u32 s{S_T0}, s{S_T0}, s{S_T1}")
        a(f"s_mul_i32 s{S_SA}, s{S_T0}, 1280")
        a(f"s_mul_i32 s{S_T0}, s{S_T4}, {4*WS}")
        a(f"s_lshl_b32 s{S_T1}, s{S_NT}, 8")
        a(f"s_add_u32 s{S_SW}, s{S_T0}, s{S_T1}")
        a(f"s_lshl_b32 s{S_M0A}, s{S_T4}, 10")
        a(f"s_mov_b32 s{S_SLOT}, 0")

    def g1_linearA(self):
        a = self.a
        a(f"v_lshlrev_b32 v{self.V_OFFA}, 4, v1")
        a(f"s_mul_i32 s{S_SA}, s{S_MT}, 163840")
        a(f"s_add_u32 s{S_SA}, s{S_SA}, s{S_M0A}")

    def g1_dma1(self, WS, q):
        a = self.a
        if q == 0:
            a(f"s_lshl_b32 s{S_T2}, s{S_KK}, {14 if self.linA else 7}")
            a(f"s_add_u32 s{S_T2}, s{S_T2}, s{S_SA}")
            a(f"s_add_u32 m0, s{S_SLOT}, s{S_M0A}")
            a(f"s_mul_i32 s{S_T3}, s{S_KK}, {64*WS}")
        elif q == 4:
            a(f"s_add_u32 s{S_T2}, s{S_T3}, s{S_SW}")
            a(f"s_add_u32 m0, m0, 4096")
            a(f"s_nop 0")
        else:
            a(f"s_add_u32 m0, m0, 4096")
            a(f"s_add_u32 s{S_T2}, s{S_T2}, {(4096 if self.linA else 32*1280) if q < 4 else 16*WS}")
        if q < 4:
            a(f"buffer_load_dwordx4 v{self.V_OFFA}, s[{SRD_A}:{SRD_A+3}], s{S_T2} offen {self.aux_A} lds")
        else:
            a(f"buffer_load_dwordx4 v{self.V_OFFW}, s[{SRD_W}:{SRD_W+3}], s{S_T2} offen lds")
        if q == 7:
            a(f"s_add_u32 s{S_KK}, s{S_KK}, 1")
            a(f"s_cmp_eq_u32 s{S_KK}, 10")
            a(f"s_cselect_b32 s{S_KK}, {self.kk_wrap}, s{S_KK}")
            a(f"s_add_u32 s{S_SLOT}, s{S_SLOT}, 32768")
            a(f"s_cmp_eq_u32 s{S_SLOT}, {self.NSLOT*32768}")
            a(f"s_cselect_b32 s{S_SLOT}, 0, s{S_SLOT}")

    def g1_dma_stage(self, WS):
        for q in range(8): self.g1_dma1(WS, q)

    def slot_next(self):
        a = self.a
        a(f"s_add_u32 s{S_RSLOT}, s{S_RSLOT}, 1")
        a(f"s_cmp_eq_u32 s{S_RSLOT}, {self.NSLOT}")
        a(f"s_cselect_b32 s{S_RSLOT}, 0, s{S_RSLOT}")
        a(f"s_cmp_eq_u32 s{S_RSLOT}, {self.NSLOT-1}")
        self.csel(S_DELTA, hex((-(self.NSLOT-1)*32768) & 0xffffffff), 32768)

    def g1_loader(self, WS, tag, mode):
        a = self.a
        T = self.V_T
        pre = self.NSLOT - 1
        nx = 1 if mode == "gran" else 4
        if mode == "gran":
            a(f"s_waitcnt vmcnt(16)")
            if "p1s" in self.opt: self.stamp(18)
            a(f"s_barrier")
            if pre == 4:
                for q in range(8):
                    self.g1_dma1(WS, q)
            self.tag_ready()
        else:
            a(f"s_waitcnt vmcnt(8)")
            a(f"s_barrier")
            if pre == 4:
                for q in range(8):
                    self.g1_dma1(WS, q)
                a(f"s_waitcnt vmcnt(8)")
            else:
                a(f"s_waitcnt vmcnt(4)")
        if "ldprio" in self.opt: a(f"s_setprio 2")
        a(f"s_mov_b32 s{S_CNT}, 0")
        L1 = f"L_{tag}_lloop"
        a.put(L1)
        a(f"s_add_u32 s{S_CNT}, s{S_CNT}, 1")
        a(f"s_waitcnt vmcnt({8*(pre-2)})")
        a(f"s_barrier")
        for q in range(8):
            if "nodma" not in self.opt: self.g1_dma1(WS, q)
        a(f"s_cmp_lt_u32 s{S_CNT}, {10-pre}")
        a(f"s_cbranch_scc1 {L1}")
        a(f"s_sub_u32 s{S_T4}, s{S_W}, 4")
        a(f"s_lshl_b32 s{S_T0}, s{S_T4}, 5")
        a(f"v_and_b32 v{T}, 31, v1")
        a(f"v_add_u32 v{T}, s{S_T0}, v{T}")
        a(f"s_lshl_b32 s{S_T1}, s{S_MT}, 7")
        a(f"v_add_u32 v{T+1}, s{S_T1}, v{T}")
        if mode == "gran":
            a(f"v_lshlrev_b32 v{T+1}, 4, v{T+1}")
            a(f"v_add_u32 v{T+1}, {hex(OFF_GR)}, v{T+1}")
            a(f"buffer_load_dwordx4 v[{T+4}:{T+7}], v{T+1}, s[{SRD_F}:{SRD_F+3}], 0 offen sc1")
        else:
            a(f"v_lshlrev_b32 v{T+1}, 7, v{T+1}")
            a(f"v_lshrrev_b32 v{T+2}, 5, v1")
            a(f"v_lshl_add_u32 v{T+1}, v{T+2}, 6, v{T+1}")
            a(f"v_add_u32 v{T+1}, {hex(OFF_PST)}, v{T+1}")
            for q in range(4):
                a(f"buffer_load_dwordx4 v[{T+4+4*q}:{T+7+4*q}], v{T+1}, s[{SRD_F}:{SRD_F+3}], 0 offen offset:{16*q} {self.ld_aux}")
        late = 0
        if pre == 4:
            a(f"s_waitcnt vmcnt({16+nx})")
            a(f"s_barrier")
        a(f"s_waitcnt vmcnt({8+nx})")
        a(f"s_barrier")
        rl = 0
        if mode == "gran":
            self.withT(T + 24, self.relayout_load)
            rl = 4
        a(f"s_waitcnt vmcnt({nx+rl})")
        a(f"s_barrier")
        if mode != "gran" and "now2rest" not in self.opt:
            self.g2_wsetup(5, SRD_T, S_SW, T + 24)
            for s_ in range(5):
                for t in range(3):
                    self.g2_wload1(5, 3, s_, t, SRD_T, S_SW, T + 24)
            late = 15
        a(f"s_barrier")
        a(f"s_waitcnt vmcnt({late+rl})")
        if mode == "gran":
            Lp = f"L_{tag}_gpoll"; Lo = f"L_{tag}_gok"
            a(f"s_mov_b32 s{S_T0}, 0")
            a.put(Lp)
            a(f"v_cmp_ne_u32 vcc, s{S_TAG}, v{T+6}")
            a(f"v_cmp_ne_u32 s[{S_SAVE}:{S_SAVE+1}], s{S_TAG}, v{T+7}")
            a(f"s_nop 1")
            a(f"s_or_b64 vcc, vcc, s[{S_SAVE}:{S_SAVE+1}]")
            a(f"s_cbranch_vccz {Lo}")
            a(f"s_add_u32 s{S_T0}, s{S_T0}, 1")
            a(f"s_cmp_ge_u32 s{S_T0}, 0x40000")
            a(f"s_cbranch_scc1 {Lo}")
            a(f"buffer_load_dwordx4 v[{T+4}:{T+7}], v{T+1}, s[{SRD_F}:{SRD_F+3}], 0 offen sc1")
            a(f"s_waitcnt vmcnt(0)")
            a(f"s_branch {Lp}")
            a.put(Lo)
            A_, B_ = T+4, T+5
        else:
            for q in range(1, 4):
                for i in range(4):
                    a(f"v_add_f32 v{T+4+i}, v{T+4+i}, v{T+4+4*q+i}")
            a(f"v_add_f32 v{T+4}, v{T+4}, v{T+6}")
            a(f"v_add_f32 v{T+5}, v{T+5}, v{T+7}")
            a(f"v_mov_b32 v{T+6}, v{T+4}")
            a(f"v_mov_b32 v{T+7}, v{T+5}")
            a(f"s_nop 1")
            a(f"v_permlane32_swap_b32 v{T+6}, v{T+4}")
            a(f"v_permlane32_swap_b32 v{T+7}, v{T+5}")
            a(f"s_nop 1")
            a(f"v_add_f32 v{T+4}, v{T+4}, v{T+6}")
            a(f"v_add_f32 v{T+5}, v{T+5}, v{T+7}")
            self.ab_from_sums(T+4, T+5, T+8)
            A_, B_ = T+9, T+8
        a(f"v_lshlrev_b32 v{T}, 2, v{T}")
        a(f"v_add_u32 v{T}, {LDS_STATS}, v{T}")
        a(f"ds_write_b32 v{T}, v{A_} offset:{ST_AA}")
        a(f"ds_write_b32 v{T}, v{B_} offset:{ST_BB}")
        if getattr(self, "b1_hook", False):
            a(f"v_lshlrev_b32 v{T+22}, 16, v{T+22}")
            a(f"ds_write_b32 v{T}, v{T+22} offset:{ST_B1}")
            a(f"ds_write_b32 v{T}, v{T+23} offset:{ST_CS}")
        a(f"s_waitcnt lgkmcnt(0)")
        if "ldprio" in self.opt: a(f"s_setprio 0")
        a(f"s_barrier")

    def ab_from_sums(self, sx, sq, o):
        a = self.a
        a(f"v_mul_f32 v{o}, {hex(f32(1.0/640))}, v{sx}")
        a(f"v_mul_f32 v{o+1}, {hex(f32(1.0/640))}, v{sq}")
        a(f"v_fma_f32 v{o+1}, -v{o}, v{o}, v{o+1}")
        a(f"v_max_f32 v{o+1}, 0, v{o+1}")
        a(f"v_add_f32 v{o+1}, {hex(f32(1e-5))}, v{o+1}")
        a(f"v_rsq_f32 v{o+1}, v{o+1}")
        a(f"s_nop 0")
        a(f"v_mul_f32 v{o}, v{o}, v{o+1}")
        a(f"v_sub_f32 v{o}, 0, v{o}")

    V_WRM = 252
    S_WRM = 62; S_WRMD = 54
    def p1_l2warm(self):
        a = self.a
        T = self.V_T; V = self.V_WRM
        LW = "L_warm_w"; LJ = "L_warm_j"
        a(f"s_bitcmp1_b32 s{S_W}, 0")
        a(f"s_cbranch_scc1 {LW}")
        self.srd(SRD_T, S_X, 0, 2048*1280)
        a(f"s_and_b32 s{S_T0}, s{S_GX}, 3")
        a(f"s_lshl_b32 s{S_T0}, s{S_T0}, 9")
        a(f"s_lshl_b32 s{S_T1}, s{S_GI}, 4")
        a(f"s_add_u32 s{S_T0}, s{S_T0}, s{S_T1}")
        a(f"v_add_u32 v{T}, s{S_T0}, v1")
        a(f"v_mul_u32_u24 v{V}, 1280, v{T}")
        a(f"v_cmp_gt_u32 vcc, 16, v1")
        a(f"s_mov_b32 s{self.S_WRMD}, 128")
        a(f"s_branch {LJ}a")
        a.put(LW)
        self.srd(SRD_T, S_WQKV, 0, 640*3840)
        a(f"v_lshrrev_b32 v{T}, 4, v1")
        a(f"s_lshl_b32 s{S_T0}, s{S_GI}, 1")
        a(f"v_add_u32 v{T}, s{S_T0}, v{T}")
        a(f"v_mul_u32_u24 v{V}, 3840, v{T}")
        a(f"v_and_b32 v{T+1}, 15, v1")
        a(f"v_lshl_add_u32 v{V}, v{T+1}, 7, v{V}")
        a(f"s_lshr_b32 s{S_T0}, s{S_GX}, 2")
        a(f"s_lshl_b32 s{S_T0}, s{S_T0}, 11")
        a(f"v_add_u32 v{V}, s{S_T0}, v{V}")
        a(f"v_cmp_gt_u32 vcc, 32, v1")
        a(f"s_mov_b32 s{self.S_WRMD}, {64*3840}")
        a.put(LJ + "a")
        a(f"s_cmp_ge_u32 s{S_W}, 2")
        a(f"s_cselect_b64 s[{S_SAVE}:{S_SAVE+1}], 0, vcc")
        a(f"v_mov_b32 v{T+1}, 0x7f000000")
        a(f"s_nop 0")
        a(f"v_cndmask_b32 v{V}, v{T+1}, v{V}, s[{S_SAVE}:{S_SAVE+1}]")
        a(f"s_mul_i32 s{self.S_WRM}, s{self.S_WRMD}, 3")
        for c in range(3):
            self.warm1()

    def warm1(self):
        a = self.a
        a(f"buffer_load_dword v253, v{self.V_WRM}, s[{SRD_T}:{SRD_T+3}], s{self.S_WRM} offen")
        a(f"s_add_u32 s{self.S_WRM}, s{self.S_WRM}, s{self.S_WRMD}")

    def w1_l2warm_keepT(self):
        self.w1_l2warm()

    def w1_l2warm(self):
        a = self.a
        V = self.A_ALL + 1
        self.srd(SRD_O, S_W1, 0, 640*3456)
        a(f"s_mul_i32 s{S_T0}, s{S_GI}, 540")
        a(f"s_lshl_b32 s{S_T1}, s{S_W}, 6")
        a(f"s_add_u32 s{S_T0}, s{S_T0}, s{S_T1}")
        a(f"v_add_u32 v{V}, s{S_T0}, v1")
        a(f"v_lshlrev_b32 v{V}, 7, v{V}")
        a(f"buffer_load_dword v{V+1}, v{V}, s[{SRD_O}:{SRD_O+3}], 0 offen")
        L = f"L_w1w_skip{self.evtag}"
        a(f"s_cmp_lg_u32 s{S_W}, 0")
        a(f"s_cbranch_scc1 {L}")
        self.set_exec((1 << 28) - 1)
        a(f"s_mov_b32 s{S_T1}, {512*128}")
        a(f"buffer_load_dword v{V+1}, v{V}, s[{SRD_O}:{SRD_O+3}], s{S_T1} offen")
        a(f"s_mov_b64 exec, -1")
        a(f"v_lshlrev_b32 v{V+2}, 7, v1")
        self.srd(SRD_O, S_B1, 0, 3456)
        a(f"buffer_load_dword v{V+1}, v{V+2}, s[{SRD_O}:{SRD_O+3}], 0 offen")
        self.srd(SRD_O, S_B2, 0, 1280)
        a(f"buffer_load_dword v{V+1}, v{V+2}, s[{SRD_O}:{SRD_O+3}], 0 offen")
        a.put(L)

    def dst_l2warm(self):
        a = self.a
        V = self.A_ALL + 1
        L = f"L_dstw_skip{self.evtag}"
        a(f"s_cmp_eq_u32 s{S_FAST}, 0")
        a(f"s_cbranch_scc1 {L}")
        self.srd(SRD_O, S_WS, 0, 0x1B00000)
        a(f"s_lshl_b32 s{S_T0}, s{S_W}, 6")
        a(f"v_add_u32 v{V}, s{S_T0}, v1")
        a(f"s_mul_i32 s{S_T0}, s{S_GX}, 2560")
        a(f"s_mul_i32 s{S_T1}, s{S_GI}, 80")
        a(f"s_add_u32 s{S_T0}, s{S_T0}, s{S_T1}")
        a(f"s_add_u32 s{S_T0}, s{S_T0}, {OFF_H//128}")
        a(f"s_mul_i32 s{S_T1}, s{S_GX}, 6912")
        a(f"s_mul_i32 s{S_T2}, s{S_GI}, 216")
        a(f"s_add_u32 s{S_T1}, s{S_T1}, s{S_T2}")
        a(f"s_add_u32 s{S_T1}, s{S_T1}, {OFF_R//128 - 80}")
        a(f"s_lshl_b32 s{S_T2}, s{S_GX}, 8")
        a(f"s_lshl_b32 s{S_T3}, s{S_GI}, 3")
        a(f"s_add_u32 s{S_T2}, s{S_T2}, s{S_T3}")
        a(f"s_add_u32 s{S_T2}, s{S_T2}, {OFF_PST//128 - 296}")
        a(f"v_mov_b32 v{V+2}, s{S_T2}")
        a(f"v_mov_b32 v{V+1}, s{S_T1}")
        a(f"v_cmp_gt_u32 vcc, 296, v{V}")
        a(f"s_nop 1")
        a(f"v_cndmask_b32 v{V+2}, v{V+2}, v{V+1}, vcc")
        a(f"v_mov_b32 v{V+1}, s{S_T0}")
        a(f"v_cmp_gt_u32 vcc, 80, v{V}")
        a(f"s_nop 1")
        a(f"v_cndmask_b32 v{V+2}, v{V+2}, v{V+1}, vcc")
        a(f"v_add_u32 v{V+2}, v{V+2}, v{V}")
        a(f"v_lshlrev_b32 v{V+2}, 7, v{V+2}")
        a(f"v_cmp_gt_u32 vcc, 304, v{V}")
        a(f"s_and_saveexec_b64 s[{S_SAVE}:{S_SAVE+1}], vcc")
        a(f"s_cbranch_execz {L}x")
        a(f"buffer_load_dword v{V+1}, v{V+2}, s[{SRD_O}:{SRD_O+3}], 0 offen")
        a.put(L + "x")
        a(f"s_mov_b64 exec, -1")
        a.put(L)

    def wp_l2warm(self):
        a = self.a
        V = self.A_ALL + 1
        a(f"s_cmp_lt_u32 s{S_W}, 4")
        self.csel(S_T0, hex(OFF_WOP), hex(OFF_W2P))
        a(f"s_add_u32 s{SRD_O}, s{S_WS}, s{S_T0}")
        a(f"s_addc_u32 s{SRD_O+1}, s{S_WS+1}, 0")
        a(f"s_mov_b32 s{SRD_O+2}, {SZ_WOP}")
        a(f"s_mov_b32 s{SRD_O+3}, 0x20000")
        a(f"s_and_b32 s{S_T0}, s{S_W}, 3")
        a(f"s_lshl_b32 s{S_T0}, s{S_T0}, 6")
        a(f"v_add_u32 v{V}, s{S_T0}, v1")
        a(f"v_cmp_gt_u32 vcc, 200, v{V}")
        a(f"s_mul_i32 s{S_T0}, s{S_GI}, 200")
        a(f"v_add_u32 v{V}, s{S_T0}, v{V}")
        a(f"v_lshlrev_b32 v{V}, 7, v{V}")
        a(f"s_and_saveexec_b64 s[{S_SAVE}:{S_SAVE+1}], vcc")
        a(f"s_cbranch_execz L_wpw_x{self.evtag}")
        a(f"buffer_load_dword v{V+1}, v{V}, s[{SRD_O}:{SRD_O+3}], 0 offen")
        a.put(f"L_wpw_x{self.evtag}")
        a(f"s_mov_b64 exec, -1")

    def tlb_warm(self):
        a = self.a
        L1 = "L_tlb1"; L2 = "L_tlb2"; L3 = "L_tlb3"; LJ = "L_tlbj"
        step = self.tlb_step
        a(f"v_mul_u32_u24 v252, {step >> 8}, v1")
        a(f"v_lshlrev_b32 v252, 8, v252")
        a(f"s_cmp_eq_u32 s{S_W}, 1")
        a(f"s_cbranch_scc1 {L1}")
        a(f"s_cmp_eq_u32 s{S_W}, 2")
        a(f"s_cbranch_scc1 {L2}")
        a(f"s_cmp_eq_u32 s{S_W}, 3")
        a(f"s_cbranch_scc1 {L3}")
        self.srd(SRD_T, S_WS, 0x100000, 0x1A00000)
        a(f"s_branch {LJ}")
        a.put(L1)
        self.srd(SRD_T, S_OUT, 0, 2048*1280)
        a(f"s_branch {LJ}")
        a.put(L2)
        self.srd(SRD_T, S_W1, 0, 640*3456)
        a(f"s_branch {LJ}")
        a.put(L3)
        self.srd(SRD_T, S_WS, 0, 0x100000)
        a.put(LJ)
        a(f"buffer_load_dword v253, v252, s[{SRD_T}:{SRD_T+3}], 0 offen")

    def null_job(self):
        a = self.a
        T = 16
        self.srd(SRD_T, S_W1, 0, 640*3456)
        a(f"s_lshl_b32 s{S_T0}, s{S_W}, 6")
        a(f"v_add_u32 v{T}, s{S_T0}, v1")
        a(f"v_mul_u32_u24 v{T+1}, 19419, v{T}")
        a(f"v_lshrrev_b32 v{T+1}, 20, v{T+1}")
        a(f"v_mul_u32_u24 v{T+2}, 54, v{T+1}")
        a(f"v_sub_u32 v{T+2}, v{T}, v{T+2}")
        a(f"v_mul_u32_u24 v{T+3}, 3456, v{T+1}")
        a(f"v_lshl_add_u32 v{T+3}, v{T+2}, 2, v{T+3}")
        a(f"s_mul_i32 s{S_T0}, s{S_MT}, 216")
        a(f"v_add_u32 v{T+3}, s{S_T0}, v{T+3}")
        a(f"v_cmp_gt_u32 vcc, 9, v{T+1}")
        a(f"v_mov_b32 v{T+4}, 0x7f000000")
        a(f"s_nop 0")
        a(f"v_cndmask_b32 v{T+3}, v{T+4}, v{T+3}, vcc")
        a(f"v_mov_b32 v{T+6}, 0"); a(f"v_mov_b32 v{T+7}, 0")
        a(f"s_mov_b32 s{S_T1}, 0")
        a.put("L_nj_loop")
        for k in range(24):
            a(f"s_add_u32 s{S_T2}, s{S_T1}, {k*9*3456}")
            a(f"buffer_load_dword v{T+8+k}, v{T+3}, s[{SRD_T}:{SRD_T+3}], s{S_T2} offen")
        for k in range(24):
            a(f"s_waitcnt vmcnt({23-k})")
            a(f"v_lshlrev_b32 v{T+32}, 16, v{T+8+k}")
            a(f"v_and_b32 v{T+33}, 0xffff0000, v{T+8+k}")
            a(f"v_add_f32 v{T+6}, v{T+6}, v{T+32}")
            a(f"v_add_f32 v{T+7}, v{T+7}, v{T+33}")
        a(f"s_add_u32 s{S_T1}, s{S_T1}, {24*9*3456}")
        a(f"s_cmp_lt_u32 s{S_T1}, {72*9*3456}")
        a(f"s_cbranch_scc1 L_nj_loop")
        a(f"v_lshlrev_b32 v{T+4}, 3, v{T}")
        a(f"ds_write_b64 v{T+4}, v[{T+6}:{T+7}]")
        a(f"s_waitcnt lgkmcnt(0)")
        a(f"s_barrier")
        a(f"s_cmp_lg_u32 s{S_W}, 0")
        a(f"s_cbranch_scc1 L_nj_done")
        a(f"v_lshlrev_b32 v{T+4}, 3, v1")
        for g in range(9):
            a(f"ds_read_b64 v[{T+8+2*g}:{T+9+2*g}], v{T+4} offset:{g*54*8}")
        a(f"s_waitcnt lgkmcnt(0)")
        for g in range(1, 9):
            a(f"v_add_f32 v{T+8}, v{T+8}, v{T+8+2*g}")
            a(f"v_add_f32 v{T+9}, v{T+9}, v{T+9+2*g}")
        a(f"s_mul_i32 s{S_T0}, s{S_MT}, 432")
        a(f"s_add_u32 s{S_T0}, s{S_T0}, {hex(OFF_CS1)}")
        a(f"v_add_u32 v{T+4}, s{S_T0}, v{T+4}")
        self.set_exec((1 << 54) - 1)
        a(f"buffer_store_dwordx2 v[{T+8}:{T+9}], v{T+4}, s[{SRD_F}:{SRD_F+3}], 0 offen sc1")
        a(f"s_mov_b64 exec, -1")
        a.put("L_nj_done")

    def p1_l2warm_all(self):
        a = self.a
        T = self.V_T + 40
        LW = "L_wall_w"; LJ = "L_wall_j"
        a(f"s_cmp_lg_u32 s{S_W}, 0")
        a(f"s_cbranch_scc1 {LW}")
        self.srd(SRD_T, S_X, 0, 2048*1280)
        a(f"s_and_b32 s{S_T0}, s{S_GX}, 3")
        a(f"s_lshl_b32 s{S_T0}, s{S_T0}, 9")
        a(f"s_lshl_b32 s{S_T1}, s{S_GI}, 4")
        a(f"s_add_u32 s{S_T0}, s{S_T0}, s{S_T1}")
        a(f"v_and_b32 v{T}, 15, v1")
        a(f"v_add_u32 v{T}, s{S_T0}, v{T}")
        a(f"v_mul_u32_u24 v{T}, 1280, v{T}")
        a(f"v_lshrrev_b32 v{T+1}, 4, v1")
        a(f"v_lshl_add_u32 v{T}, v{T+1}, 7, v{T}")
        a(f"buffer_load_dword v253, v{T}, s[{SRD_T}:{SRD_T+3}], 0 offen")
        a(f"buffer_load_dword v253, v{T}, s[{SRD_T}:{SRD_T+3}], 0 offen offset:512")
        self.set_exec(0xffffffff)
        a(f"buffer_load_dword v253, v{T}, s[{SRD_T}:{SRD_T+3}], 0 offen offset:1024")
        a(f"s_mov_b64 exec, -1")
        a(f"s_branch {LJ}")
        a.put(LW)
        self.srd(SRD_T, S_WQKV, 0, 640*3840)
        a(f"v_lshrrev_b32 v{T}, 5, v1")
        a(f"v_lshlrev_b32 v{T}, 6, v{T}")
        a(f"v_bfe_u32 v{T+1}, v1, 4, 1")
        a(f"v_add_u32 v{T}, v{T}, v{T+1}")
        a(f"s_lshl_b32 s{S_T0}, s{S_GI}, 1")
        a(f"v_add_u32 v{T}, s{S_T0}, v{T}")
        a(f"v_mul_u32_u24 v{T}, 3840, v{T}")
        a(f"v_and_b32 v{T+1}, 15, v1")
        a(f"v_lshl_add_u32 v{T}, v{T+1}, 7, v{T}")
        a(f"s_lshr_b32 s{S_T0}, s{S_GX}, 2")
        a(f"s_lshl_b32 s{S_T0}, s{S_T0}, 11")
        a(f"s_sub_u32 s{S_T1}, s{S_W}, 1")
        a(f"s_mul_i32 s{S_T1}, s{S_T1}, {128*3840}")
        a(f"s_add_u32 s{S_T0}, s{S_T0}, s{S_T1}")
        a(f"buffer_load_dword v253, v{T}, s[{SRD_T}:{SRD_T+3}], s{S_T0} offen")
        a(f"s_add_u32 s{S_T0}, s{S_T0}, {3*128*3840}")
        a(f"buffer_load_dword v253, v{T}, s[{SRD_T}:{SRD_T+3}], s{S_T0} offen")
        a.put(LJ)

    def xstats_publish(self):
        a = self.a
        T = self.V_T
        self.srd(SRD_O, S_X, 0, 2048*1280)
        a(f"s_lshl_b32 s{S_T0}, s2, 3")
        a(f"s_lshl_b32 s{S_T1}, s{S_W}, 1")
        a(f"s_add_u32 s{S_T0}, s{S_T0}, s{S_T1}")
        a(f"v_lshrrev_b32 v{T}, 5, v1")
        a(f"v_add_u32 v{T}, s{S_T0}, v{T}")
        a(f"v_mul_u32_u24 v{T+1}, 1280, v{T}")
        a(f"v_and_b32 v{T+2}, 31, v1")
        a(f"v_lshl_add_u32 v{T+1}, v{T+2}, 3, v{T+1}")
        D = T + 4
        for j in range(5):
            a(f"buffer_load_dwordx2 v[{D+2*j}:{D+2*j+1}], v{T+1}, s[{SRD_O}:{SRD_O+3}], 0 offen offset:{256*j}")
        return D

    def xstats_finish(self, D):
        a = self.a
        T = self.V_T
        S = T + 16
        a(f"v_mov_b32 v{S}, 0"); a(f"v_mov_b32 v{S+1}, 0")
        a(f"s_waitcnt vmcnt(0)")
        for r in range(10):
            a(f"v_lshlrev_b32 v{S+2}, 16, v{D+r}")
            a(f"v_and_b32 v{S+3}, 0xffff0000, v{D+r}")
            a(f"v_add_f32 v{S}, v{S}, v{S+2}")
            a(f"v_fmac_f32 v{S+1}, v{S+2}, v{S+2}")
            a(f"v_add_f32 v{S}, v{S}, v{S+3}")
            a(f"v_fmac_f32 v{S+1}, v{S+3}, v{S+3}")
        for ctl in ("row_shr:1", "row_shr:2", "row_shr:4", "row_shr:8"):
            a(f"s_nop 1")
            a(f"v_add_f32_dpp v{S}, v{S}, v{S} {ctl} row_mask:0xf bank_mask:0xf bound_ctrl:0")
            a(f"v_add_f32_dpp v{S+1}, v{S+1}, v{S+1} {ctl} row_mask:0xf bank_mask:0xf bound_ctrl:0")
        a(f"s_nop 1")
        a(f"v_add_f32_dpp v{S}, v{S}, v{S} row_bcast:15 row_mask:0xa bank_mask:0xf")
        a(f"v_add_f32_dpp v{S+1}, v{S+1}, v{S+1} row_bcast:15 row_mask:0xa bank_mask:0xf")
        a(f"s_nop 1")
        self.ab_from_sums(S, S+1, S+5)
        a(f"v_mov_b32 v{S+8}, v{S+6}")
        a(f"v_mov_b32 v{S+9}, v{S+5}")
        self.tag_ready()
        a(f"v_mov_b32 v{S+10}, s{S_TAG}")
        a(f"v_mov_b32 v{S+11}, s{S_TAG}")
        a(f"v_lshlrev_b32 v{T}, 4, v{T}")
        a(f"v_add_u32 v{T}, {hex(OFF_GR)}, v{T}")
        a(f"s_mov_b32 exec_lo, 0x80000000")
        a(f"s_mov_b32 exec_hi, 0x80000000")
        a(f"buffer_store_dwordx4 v[{S+8}:{S+11}], v{T}, s[{SRD_F}:{SRD_F+3}], 0 offen sc1")
        a(f"s_mov_b64 exec, -1")

    def tag_ready(self):
        a = self.a
        a(f"s_waitcnt lgkmcnt(0)")
        a(f"s_getreg_b32 s{S_XCC}, hwreg(HW_REG_XCC_ID, 0, 4)")
        a(f"s_mov_b32 s{S_FAST}, 0")
        a(f"s_mul_i32 s{S_TAG}, s{S_TAG}, 0x9E3779B1")
        a(f"s_add_u32 s{S_TAG}, s{S_TAG}, 0x7F4A7C15")

    def g1_setup_compute(self):
        a = self.a
        T = self.V_FR
        a(f"s_lshr_b32 s{S_WM}, s{S_W}, 1")
        a(f"s_and_b32 s{S_WN}, s{S_W}, 1")
        a(f"v_and_b32 v{T}, 31, v1")
        a(f"s_lshl_b32 s{S_T0}, s{S_WM}, 6")
        a(f"v_add_u32 v{T+1}, s{S_T0}, v{T}")
        a(f"v_lshlrev_b32 v{T+1}, 7, v{T+1}")
        a(f"v_bfe_u32 v{T+2}, v{T}, 1, 3")
        a(f"v_lshrrev_b32 v{T+3}, 5, v1")
        a(f"v_xor_b32 v{T+2}, v{T+2}, v{T+3}")
        for j in range(4):
            a(f"v_xor_b32 v{self.V_AA+j}, {2*j}, v{T+2}")
            a(f"v_lshlrev_b32 v{self.V_AA+j}, 4, v{self.V_AA+j}")
            a(f"v_add_u32 v{self.V_AA+j}, v{self.V_AA+j}, v{T+1}")
        a(f"v_and_b32 v{T+4}, 15, v1")
        a(f"v_lshrrev_b32 v{T+5}, 2, v{T+4}")
        a(f"v_lshlrev_b32 v{T+6}, 3, v{T+3}")
        a(f"v_add_u32 v{T+6}, v{T+6}, v{T+5}")
        a(f"v_lshlrev_b32 v{T+6}, 8, v{T+6}")
        a(f"v_bfe_u32 v{T+7}, v1, 4, 1")
        a(f"v_lshlrev_b32 v{T+7}, 1, v{T+7}")
        a(f"v_bfe_u32 v{T+8}, v1, 1, 1")
        a(f"v_add_u32 v{T+7}, v{T+7}, v{T+8}")
        a(f"s_lshl_b32 s{S_T0}, s{S_WN}, 3")
        a(f"s_lshl_b32 s{S_T1}, s{S_WM}, 2")
        a(f"s_add_u32 s{S_T0}, s{S_T0}, s{S_T1}")
        a(f"v_add_u32 v{T+7}, s{S_T0}, v{T+7}")
        a(f"v_lshlrev_b32 v{T+5}, 2, v{T+5}")
        a(f"v_xor_b32 v{T+7}, v{T+7}, v{T+5}")
        a(f"v_lshlrev_b32 v{T+7}, 4, v{T+7}")
        a(f"v_and_b32 v{T+8}, 1, v1")
        a(f"v_lshlrev_b32 v{T+8}, 3, v{T+8}")
        a(f"v_add_u32 v{T+6}, v{T+6}, v{T+7}")
        a(f"v_add_u32 v{T+6}, v{T+6}, v{T+8}")
        a(f"v_add_u32 v{self.V_AWA}, 16384, v{T+6}")
        a(f"v_xor_b32 v{self.V_AWB}, 64, v{self.V_AWA}")
        a(f"v_and_b32 v{T}, 15, v1")
        a(f"v_bfe_u32 v{T+1}, v1, 4, 1")
        a(f"v_cmp_eq_u32 vcc, v{T}, v{T+1}")
        a(f"v_mov_b32 v{T+2}, 0x3f803f80")
        a(f"s_nop 1")
        a(f"v_cndmask_b32 v{self.V_CSA}, 0, v{T+2}, vcc")
        for r in range(1, 4):
            a(f"v_mov_b32 v{self.V_CSA+r}, v{self.V_CSA}")
        for r in range(4):
            a(f"v_mov_b32 v{self.V_CSD+r}, 0")
        for r in range(64):
            a(f"v_mov_b32 v{self.V_ACC+r}, 0")

    def g1_read1(self, j, q):
        if "noreads" in self.opt: return
        a = self.a
        F = self.V_FR + 16*j
        if q == 0: a(f"ds_read_b128 v[{F}:{F+3}], v{self.V_AA+j}")
        elif q == 1: a(f"ds_read_b128 v[{F+4}:{F+7}], v{self.V_AA+j} offset:4096")
        else:
            ad = (self.V_AWA if q == 2 else self.V_AWB) if j != 3 else (self.V_AW2A if q == 2 else self.V_AW2B)
            R = F + 8 + 4*(q-2)
            a(f"ds_read_b64_tr_b16 v[{R}:{R+1}], v{ad} offset:{4096*j}")
            a(f"ds_read_b64_tr_b16 v[{R+2}:{R+3}], v{ad} offset:{4096*j+1024}")

    def g1_mfma1(self, j, orient, tt, q):
        if "nomfma" in self.opt: return
        a = self.a
        F = self.V_FR + 16*j
        X = f"v[{F+4*tt}:{F+4*tt+3}]"; W = f"v[{F+8+4*q}:{F+11+4*q}]"
        A = self.V_ACC + 16*(2*tt+q)
        D = f"v[{A}:{A+15}]"
        if orient == "T": a(f"v_mfma_f32_32x32x16_bf16 {D}, {W}, {X}, {D}")
        else:             a(f"v_mfma_f32_32x32x16_bf16 {D}, {X}, {W}, {D}")

    def g1_colsum(self, j):
        if "nostats" in self.opt or getattr(self, "nocs", False): return
        F = self.V_FR + 16*j; D = self.V_CSD
        self.a(f"v_mfma_f32_16x16x32_bf16 v[{D}:{D+3}], v[{self.V_CSA}:{self.V_CSA+3}], v[{F+8}:{F+11}], v[{D}:{D+3}]")

    def g1_adv(self):
        a = self.a
        for r in list(range(self.V_AA, self.V_AA+4)) + [self.V_AWA, self.V_AWB]:
            a(f"v_add_u32 v{r}, s{S_DELTA}, v{r}")

    def g1_cstep(self, j, orient, rset, fill=((), (), (), ())):
        a = self.a
        order = (2, 0, 1, 3)
        cp = getattr(self, "cprof", False)
        if cp: a(f"s_memtime s[{72+4*j}:{73+4*j}]")
        a(f"s_waitcnt lgkmcnt(12)")
        if cp: a(f"s_memtime s[{74+4*j}:{75+4*j}]")
        for k, (tt, q) in enumerate(((0, 0), (1, 0), (0, 1), (1, 1))):
            self.g1_mfma1(j, orient, tt, q)
            if k == 0: self.g1_colsum(j)
            self.g1_read1(rset, order[k])
            for f in fill[k]: a(f)

    def g1_compute(self, orient, tag, presetup=False):
        a = self.a
        if not presetup: self.g1_setup_compute()
        AA = self.V_AA
        if "g1prio" in self.opt: a(f"s_setprio 2")
        a(f"v_mov_b32 v{self.V_AW2A}, v{self.V_AWA}")
        a(f"v_mov_b32 v{self.V_AW2B}, v{self.V_AWB}")
        a(f"s_barrier")
        self.stamp(self.st1)
        for j in range(3):
            for q in (2, 0, 1, 3): self.g1_read1(j, q)
        DA, DB = S_DELTA, S_T5
        a(f"s_mov_b32 s{S_CNT}, 0")
        a(f"s_mov_b32 s{S_RSLOT}, 1")
        a(f"s_mov_b32 s{DA}, 32768")
        a(f"v_add_u32 v{AA}, s{DA}, v{AA}")
        a(f"v_add_u32 v{AA+1}, s{DA}, v{AA+1}")
        wrap = hex((-(self.NSLOT-1)*32768) & 0xffffffff)
        L1 = f"L_{tag}_cloop"
        a(f".p2align 5")
        a.put(L1)
        self.g1_cstep(0, orient, 3, ((f"v_add_u32 v{AA+2}, s{DA}, v{AA+2}",), (f"v_add_u32 v{self.V_AWA}, s{DA}, v{self.V_AWA}",),
                                     (f"v_add_u32 v{self.V_AWB}, s{DA}, v{self.V_AWB}",), ()))
        a(f"s_barrier")
        self.g1_cstep(1, orient, 0, ((f"v_add_u32 v{AA+3}, s{DA}, v{AA+3}", f"s_cmp_eq_u32 s{S_RSLOT}, {self.NSLOT-1}"),
                                     (f"s_mov_b32 s{DB}, 32768", f"s_cselect_b32 s{DB}, {wrap}, s{DB}"),
                                     (f"v_mov_b32 v{self.V_AW2A}, v{self.V_AWA}", f"s_cselect_b32 s{S_RSLOT}, -1, s{S_RSLOT}"),
                                     (f"v_mov_b32 v{self.V_AW2B}, v{self.V_AWB}", f"s_add_u32 s{S_RSLOT}, s{S_RSLOT}, 1")))
        wf = ()
        if getattr(self, "warm_fill", False):
            wf = (f"s_cmp_eq_u32 s{S_CNT}, 3", f"s_cselect_b32 s{self.S_WRMD}, s{self.S_WRM}, s{S_OOB}", f"buffer_load_dword v253, v{self.V_WRM}, s[{SRD_T}:{SRD_T+3}], s{self.S_WRMD} offen")
        self.g1_cstep(2, orient, 1, ((f"v_add_u32 v{AA}, s{DB}, v{AA}",), (f"s_add_u32 s{S_CNT}, s{S_CNT}, 1",), wf, ()))
        self.g1_cstep(3, orient, 2, ((f"v_add_u32 v{AA+1}, s{DB}, v{AA+1}",), (f"s_mov_b32 s{DA}, s{DB}",), (f"s_cmp_lt_u32 s{S_CNT}, 10",), ()))
        a(f"s_cbranch_scc1 {L1}")
        a(f"s_waitcnt lgkmcnt(0)")
        if "g1prio" in self.opt: a(f"s_setprio 0")
        a(f"v_mbcnt_lo_u32_b32 v1, -1, 0")
        a(f"v_mbcnt_hi_u32_b32 v1, -1, v1")
        T = self.V_FR
        a(f"s_lshl_b32 s{S_T0}, s{S_WN}, 8")
        a(f"s_lshl_b32 s{S_T1}, s{S_WM}, 7")
        a(f"s_add_u32 s{S_T0}, s{S_T0}, s{S_T1}")
        a(f"s_add_u32 s{S_T0}, s{S_T0}, {LDS_STATS+ST_CS}")
        a(f"v_lshlrev_b32 v{T}, 2, v1")
        a(f"v_add_u32 v{T}, s{S_T0}, v{T}")
        if not getattr(self, "nocs", False):
            a(f"s_nop 4")
            a(f"s_mov_b64 exec, 0xffff")
            a(f"ds_write_b32 v{T}, v{self.V_CSD}")
            a(f"ds_write_b32 v{T}, v{self.V_CSD+1} offset:64")
            a(f"s_mov_b64 exec, -1")
            a(f"s_waitcnt lgkmcnt(0)")
        a(f"s_barrier")

    def magic_div5(self, dst, src):
        self.a(f"v_mul_u32_u24 v{dst}, 52429, v{src}")
        self.a(f"v_lshrrev_b32 v{dst}, 18, v{dst}")
    def magic_div20(self, dst, src):
        self.a(f"v_mul_u32_u24 v{dst}, 52429, v{src}")
        self.a(f"v_lshrrev_b32 v{dst}, 20, v{dst}")

    def epi_T_common(self):
        a = self.a
        T = self.V_T; CSR = self.V_FR
        a(f"v_and_b32 v{T}, 31, v1")
        a(f"s_lshl_b32 s{S_T0}, s{S_WM}, 6")
        a(f"v_add_u32 v{T+1}, s{S_T0}, v{T}")
        a(f"v_lshlrev_b32 v{T+1}, 2, v{T+1}")
        a(f"v_add_u32 v{T+1}, {LDS_STATS}, v{T+1}")
        a(f"ds_read_b32 v{T+2}, v{T+1} offset:{ST_AA}")
        a(f"ds_read_b32 v{T+3}, v{T+1} offset:{ST_BB}")
        a(f"ds_read_b32 v{T+4}, v{T+1} offset:{ST_AA+128}")
        a(f"ds_read_b32 v{T+5}, v{T+1} offset:{ST_BB+128}")
        a(f"v_lshrrev_b32 v{T+6}, 5, v1")
        a(f"s_lshl_b32 s{S_T0}, s{S_WN}, 8")
        a(f"s_lshl_b32 s{S_T1}, s{S_WM}, 7")
        a(f"s_add_u32 s{S_T0}, s{S_T0}, s{S_T1}")
        a(f"s_add_u32 s{S_T0}, s{S_T0}, {LDS_STATS+ST_CS}")
        a(f"v_lshlrev_b32 v{T+7}, 4, v{T+6}")
        a(f"v_add_u32 v{T+7}, s{S_T0}, v{T+7}")
        a(f"v_xor_b32 v{T+1}, 128, v{T+7}")
        for g in range(4):
            a(f"ds_read_b128 v[{CSR+4*g}:{CSR+4*g+3}], v{T+7} offset:{32*g}")
        for g in range(4):
            a(f"ds_read_b128 v[{CSR+16+4*g}:{CSR+16+4*g+3}], v{T+1} offset:{32*g}")

    E_AD = 160; E_LA = 168; E_LC = 169
    S_ESC = 6; S_EO = 7
    def wmwn(self):
        a = self.a
        a(f"s_lshr_b32 s{S_WM}, s{S_W}, 1")
        a(f"s_and_b32 s{S_WN}, s{S_W}, 1")

    def p1_epi_T_pre(self):
        a = self.a
        T = self.V_T + 24
        self.wmwn()
        a(f"v_and_b32 v{T}, 31, v1")
        a(f"v_lshrrev_b32 v{T+6}, 5, v1")
        a(f"s_lshl_b32 s{S_T0}, s{S_WM}, 6")
        a(f"v_add_u32 v{T+1}, s{S_T0}, v{T}")
        a(f"v_lshlrev_b32 v{T+1}, 2, v{T+1}")
        a(f"v_add_u32 v{self.E_LA}, {LDS_STATS}, v{T+1}")
        a(f"s_lshl_b32 s{S_T0}, s{S_WN}, 8")
        a(f"s_lshl_b32 s{S_T1}, s{S_WM}, 7")
        a(f"s_add_u32 s{S_T0}, s{S_T0}, s{S_T1}")
        a(f"s_add_u32 s{S_T0}, s{S_T0}, {LDS_STATS+ST_CS}")
        a(f"v_lshlrev_b32 v{T+7}, 4, v{T+6}")
        a(f"v_add_u32 v{self.E_LC}, s{S_T0}, v{T+7}")
        a(f"v_xor_b32 v{self.E_LC+1}, 128, v{self.E_LC}")
        a(f"s_cmp_lt_u32 s{S_NT}, 5")
        a(f"s_cselect_b32 s{self.S_ESC}, {hex(f32(math.log2(math.e)/math.sqrt(20.0)))}, 1.0")
        self.csel(S_T1, 81920, 163840)
        self.csel(S_T2, 1280, 2560)
        a(f"s_cselect_b32 s{S_T3}, 0, 5")
        self.csel(S_T4, hex(OFF_Q), hex(OFF_KV))
        self.csel(S_T5, hex(SZ_Q), hex(SZ_KV))
        a(f"s_add_u32 s{SRD_O}, s{S_WS}, s{S_T4}")
        a(f"s_addc_u32 s{SRD_O+1}, s{S_WS+1}, 0")
        a(f"s_mov_b32 s{SRD_O+2}, s{S_T5}")
        a(f"s_mov_b32 s{SRD_O+3}, 0x20000")
        a(f"s_sub_u32 s{S_T3}, s{S_NT}, s{S_T3}")
        a(f"s_lshl_b32 s{S_T3}, s{S_T3}, 5")
        a(f"s_lshl_b32 s{S_T4}, s{S_WN}, 4")
        a(f"s_add_u32 s{S_T3}, s{S_T3}, s{S_T4}")
        a(f"s_lshl_b32 s{S_T4}, s{S_WM}, 3")
        for q in range(2):
            for g in range(4):
                if q == 0:
                    a(f"s_add_u32 s{S_T5}, s{S_T3}, s{S_T4}")
                else:
                    a(f"s_xor_b32 s{S_T5}, s{S_T4}, 8")
                    a(f"s_add_u32 s{S_T5}, s{S_T5}, s{S_T3}")
                a(f"s_add_u32 s{S_T5}, s{S_T5}, {2*g}")
                a(f"v_add_u32 v{T+8}, s{S_T5}, v{T+6}")
                self.magic_div5(T+9, T+8)
                a(f"v_mul_u32_u24 v{T+10}, 5, v{T+9}")
                a(f"v_sub_u32 v{T+10}, v{T+8}, v{T+10}")
                a(f"v_mul_lo_u32 v{T+9}, v{T+9}, s{S_T1}")
                a(f"v_lshlrev_b32 v{T+10}, 8, v{T+10}")
                a(f"v_add_u32 v{T+9}, v{T+9}, v{T+10}")
                a(f"v_lshl_add_u32 v{self.E_AD+4*q+g}, v{T}, 3, v{T+9}")
        a(f"s_lshl_b32 s{S_T4}, s{S_MT}, 2")
        a(f"s_lshl_b32 s{S_T5}, s{S_WM}, 1")
        a(f"s_add_u32 s{S_T4}, s{S_T4}, s{S_T5}")
        a(f"s_mul_i32 s{self.S_EO}, s{S_T4}, s{S_T2}")
        a(f"s_add_u32 s{self.S_EO+1}, s{self.S_EO}, s{S_T2}")

    def p1_epi_T(self):
        a = self.a
        T = self.V_T; A = self.V_ACC; CSR = self.V_FR
        a(f"ds_read_b32 v{T+2}, v{self.E_LA} offset:{ST_AA}")
        a(f"ds_read_b32 v{T+3}, v{self.E_LA} offset:{ST_BB}")
        a(f"ds_read_b32 v{T+4}, v{self.E_LA} offset:{ST_AA+128}")
        a(f"ds_read_b32 v{T+5}, v{self.E_LA} offset:{ST_BB+128}")
        for q in range(2):
            for g in range(4):
                a(f"ds_read_b128 v[{CSR+16*q+4*g}:{CSR+16*q+4*g+3}], v{self.E_LC+q} offset:{32*g}")
        a(f"s_waitcnt lgkmcnt(8)")
        for r in range(4):
            a(f"v_mul_f32 v{T+2+r}, s{self.S_ESC}, v{T+2+r}")
        a(f"s_waitcnt lgkmcnt(0)")
        for tt in range(2):
            ab = f"v[{T+2+2*tt}:{T+3+2*tt}]"
            for q in range(2):
                for g in range(4):
                    for i in (0, 2):
                        r = A + 16*(2*tt+q) + 4*g + i
                        c = CSR + 16*q + 4*g + i
                        a(f"v_pk_mul_f32 v[{r}:{r+1}], v[{r}:{r+1}], {ab} op_sel:[0,0] op_sel_hi:[1,0]")
                        a(f"v_pk_fma_f32 v[{r}:{r+1}], v[{c}:{c+1}], {ab}, v[{r}:{r+1}] op_sel:[0,1,0] op_sel_hi:[1,1,1]")
                    r = A + 16*(2*tt+q) + 4*g
                    a(f"v_cvt_pk_bf16_f32 v{r}, v{r}, v{r+1}")
                    a(f"v_cvt_pk_bf16_f32 v{r+1}, v{r+2}, v{r+3}")
                    a(f"buffer_store_dwordx2 v[{r}:{r+1}], v{self.E_AD+4*q+g}, s[{SRD_O}:{SRD_O+3}], s{self.S_EO+tt} offen sc1")

    def p1_epi_N_pre(self):
        a = self.a
        T = self.V_T + 24
        self.wmwn()
        a(f"v_and_b32 v{T}, 31, v1")
        a(f"v_lshrrev_b32 v{T+6}, 5, v1")
        a(f"s_lshl_b32 s{S_T0}, s{S_WM}, 8")
        a(f"v_lshlrev_b32 v{T+4}, 4, v{T+6}")
        a(f"v_add_u32 v{T+4}, s{S_T0}, v{T+4}")
        a(f"v_add_u32 v{self.E_LA}, {LDS_STATS}, v{T+4}")
        a(f"s_mov_b32 s{S_T2}, 163840")
        for q in range(2):
            a(f"s_xor_b32 s{S_T0}, s{S_WM}, {q}")
            a(f"s_lshl_b32 s{S_T0}, s{S_T0}, 5")
            a(f"s_lshl_b32 s{S_T1}, s{S_WN}, 6")
            a(f"s_add_u32 s{S_T0}, s{S_T0}, s{S_T1}")
            a(f"v_add_u32 v{T+1}, s{S_T0}, v{T}")
            a(f"v_lshlrev_b32 v{T+2}, 2, v{T+1}")
            a(f"v_add_u32 v{self.E_LC+q}, {LDS_STATS+ST_CS}, v{T+2}")
            a(f"s_sub_u32 s{S_T1}, s{S_NT}, 10")
            a(f"s_lshl_b32 s{S_T1}, s{S_T1}, 7")
            a(f"v_add_u32 v{T+7}, s{S_T1}, v{T+1}")
            self.magic_div20(T+8, T+7)
            a(f"v_mul_u32_u24 v{T+9}, 20, v{T+8}")
            a(f"v_sub_u32 v{T+9}, v{T+7}, v{T+9}")
            a(f"v_mul_lo_u32 v{T+8}, v{T+8}, s{S_T2}")
            a(f"v_lshlrev_b32 v{T+9}, 4, v{T+9}")
            a(f"v_add_u32 v{T+8}, v{T+8}, v{T+9}")
            a(f"v_mul_u32_u24 v{T+9}, 320, v{T+6}")
            a(f"v_add_u32 v{T+8}, v{T+8}, v{T+9}")
            a(f"v_add_u32 v{self.E_AD+q}, 1280, v{T+8}")
        self.srd(SRD_O, S_WS, OFF_KV, SZ_KV)
        a(f"s_lshl_b32 s{S_T4}, s{S_MT}, 2")
        a(f"s_lshl_b32 s{S_T5}, s{S_WM}, 1")
        a(f"s_add_u32 s{S_T4}, s{S_T4}, s{S_T5}")
        a(f"s_mul_i32 s{self.S_EO}, s{S_T4}, 2560")
        a(f"s_add_u32 s{self.S_EO+1}, s{self.S_EO}, 2560")

    def p1_epi_N(self):
        a = self.a
        T = self.V_T; A = self.V_ACC
        ABs = (self.V_FR, self.V_FR + 32)
        a(f"ds_read_b32 v{T+10}, v{self.E_LC}")
        a(f"ds_read_b32 v{T+11}, v{self.E_LC+1}")
        for tt in range(2):
            AB = ABs[tt]; BB = AB + 16
            for g in range(4):
                a(f"ds_read_b128 v[{AB+4*g}:{AB+4*g+3}], v{self.E_LA} offset:{ST_AA + 128*tt + 32*g}")
                a(f"ds_read_b128 v[{BB+4*g}:{BB+4*g+3}], v{self.E_LA} offset:{ST_BB + 128*tt + 32*g}")
        cs = f"v[{T+10}:{T+11}]"
        for tt in range(2):
            AB = ABs[tt]; BB = AB + 16
            a(f"s_waitcnt lgkmcnt({8 if tt == 0 else 0})")
            for q in range(2):
                for r in range(0, 16, 2):
                    R = A + 16*(2*tt+q) + r
                    a(f"v_pk_mul_f32 v[{R}:{R+1}], v[{R}:{R+1}], v[{AB+r}:{AB+r+1}]")
                    a(f"v_pk_fma_f32 v[{R}:{R+1}], v[{BB+r}:{BB+r+1}], {cs}, v[{R}:{R+1}] op_sel:[0,{q},0] op_sel_hi:[1,{q},1]")
                for st in range(2):
                    R = A + 16*(2*tt+q) + 8*st
                    for z in range(4):
                        a(f"v_cvt_pk_bf16_f32 v{R+z}, v{R+2*z}, v{R+2*z+1}")
                    a(f"buffer_store_dwordx4 v[{R}:{R+3}], v{self.E_AD+q}, s[{SRD_O}:{SRD_O+3}], s{self.S_EO+tt} offen offset:{640*st} sc1")

    def relayout_unit(self):
        pass

    def rl_unit(self):
        a = self.a
        a(f"s_lshl_b32 s{S_T0}, s2, 2")
        a(f"s_and_b32 s{S_T5}, s{S_W}, 3")
        a(f"s_add_u32 s{S_T0}, s{S_T0}, s{S_T5}")

    def rl_src(self, srd):
        a = self.a
        self.rl_unit()
        a(f"s_cmp_lt_u32 s{S_T0}, 540")
        a(f"s_cselect_b32 s{S_T1}, 0, 540")
        a(f"s_cselect_b32 s{srd}, s{S_W2}, s{S_WO}")
        a(f"s_cselect_b32 s{srd+1}, s{S_W2+1}, s{S_WO+1}")
        self.csel(srd+2, 1728*1280, 640*1280)
        a(f"s_mov_b32 s{srd+3}, 0x20000")
        a(f"s_sub_u32 s{S_T1}, s{S_T0}, s{S_T1}")
        a(f"s_mul_hi_u32 s{S_T2}, s{S_T1}, {hex((2**32+9)//10)}")
        a(f"s_mul_i32 s{S_T3}, s{S_T2}, 10")
        a(f"s_sub_u32 s{S_T3}, s{S_T1}, s{S_T3}")
        a(f"s_mul_i32 s{S_T2}, s{S_T2}, {32*1280}")
        a(f"s_lshl_b32 s{S_T3}, s{S_T3}, 7")
        a(f"s_add_u32 s{S_T2}, s{S_T2}, s{S_T3}")
        a(f"s_cmp_ge_u32 s{S_T0}, 740")
        a(f"s_cselect_b32 s{S_T2}, 0x70000000, s{S_T2}")

    def relayout_load(self):
        a = self.a
        T = self.V_T
        self.rl_src(SRD_T)
        a(f"v_lshrrev_b32 v{T}, 3, v1")
        a(f"v_mul_u32_u24 v{T}, 1280, v{T}")
        a(f"v_and_b32 v{T+1}, 7, v1")
        a(f"v_lshl_add_u32 v{T}, v{T+1}, 4, v{T}")
        a(f"s_lshl_b32 s{S_T3}, s{S_T5}, 12")
        a(f"s_add_u32 m0, s{S_T3}, {LDS_RL}")
        for jj in range(4):
            a(f"s_nop 0")
            a(f"buffer_load_dwordx4 v{T}, s[{SRD_T}:{SRD_T+3}], s{S_T2} offen lds")
            if jj < 3:
                a(f"s_add_u32 m0, m0, 1024")
                a(f"s_add_u32 s{S_T2}, s{S_T2}, {8*1280}")

    def relayout_warm_setup(self):
        a = self.a
        V = self.V_WRM
        self.rl_src(SRD_T)
        a(f"s_mov_b32 s{self.S_WRM}, s{S_T2}")
        a(f"s_mov_b32 s{S_OOB}, 0x70000000")
        a(f"v_mul_u32_u24 v{V}, 1280, v1")
        a(f"v_cmp_gt_u32 vcc, 32, v1")
        a(f"v_mov_b32 v{V-1}, 0x7f000000")
        a(f"s_nop 0")
        a(f"v_cndmask_b32 v{V}, v{V-1}, v{V}, vcc")

    def relayout_store(self):
        a = self.a
        T = self.V_T
        Lskip = "L_rl_skip2"
        self.rl_unit()
        a(f"s_cmp_ge_u32 s{S_T0}, 740")
        a(f"s_cbranch_scc1 {Lskip}")
        a(f"s_cmp_lt_u32 s{S_T0}, 540")
        a(f"s_cselect_b32 s{S_T1}, 0, 540")
        self.csel(S_T4, hex(OFF_W2P), hex(OFF_WOP))
        self.csel(S_T3, hex(SZ_W2P), hex(SZ_WOP))
        a(f"s_mov_b32 s{SRD_T+2}, s{S_T3}")
        a(f"s_sub_u32 s{S_T1}, s{S_T0}, s{S_T1}")
        a(f"s_add_u32 s{SRD_T}, s{S_WS}, s{S_T4}")
        a(f"s_addc_u32 s{SRD_T+1}, s{S_WS+1}, 0")
        a(f"s_mov_b32 s{SRD_T+3}, 0x20000")
        a(f"s_mul_hi_u32 s{S_T2}, s{S_T1}, {hex((2**32+9)//10)}")
        a(f"s_mul_i32 s{S_T3}, s{S_T2}, 10")
        a(f"s_sub_u32 s{S_T3}, s{S_T1}, s{S_T3}")
        a(f"s_mul_i32 s{S_T2}, s{S_T2}, 40")
        a(f"s_lshl_b32 s{S_T3}, s{S_T3}, 2")
        a(f"s_add_u32 s{S_T2}, s{S_T2}, s{S_T3}")
        a(f"s_lshl_b32 s{S_T2}, s{S_T2}, 10")
        a(f"v_lshrrev_b32 v{T}, 4, v1")
        a(f"v_lshlrev_b32 v{T}, 3, v{T}")
        a(f"v_bfe_u32 v{T+1}, v1, 2, 2")
        a(f"v_add_u32 v{T}, v{T}, v{T+1}")
        a(f"v_lshlrev_b32 v{T}, 7, v{T}")
        a(f"v_and_b32 v{T+1}, 3, v1")
        a(f"v_lshl_add_u32 v{T}, v{T+1}, 3, v{T}")
        a(f"s_lshl_b32 s{S_T3}, s{S_T5}, 12")
        a(f"s_add_u32 s{S_T3}, s{S_T3}, {LDS_RL}")
        a(f"v_add_u32 v{T}, s{S_T3}, v{T}")
        a(f"v_lshlrev_b32 v{T+1}, 4, v1")
        O = T + 4
        for tq in range(4):
            a(f"ds_read_b64_tr_b16 v[{O+4*tq}:{O+4*tq+1}], v{T} offset:{32*tq}")
            a(f"ds_read_b64_tr_b16 v[{O+4*tq+2}:{O+4*tq+3}], v{T} offset:{32*tq+512}")
        a(f"s_waitcnt lgkmcnt(0)")
        for tq in range(4):
            a(f"buffer_store_dwordx4 v[{O+4*tq}:{O+4*tq+3}], v{T+1}, s[{SRD_T}:{SRD_T+3}], s{S_T2} offen offset:{1024*tq} sc1")
        a.put(Lskip)

    def p1(self):
        a = self.a
        a(f"s_and_b32 s{S_T0}, s{S_GX}, 3")
        a(f"s_lshl_b32 s{S_T0}, s{S_T0}, 2")
        a(f"s_and_b32 s{S_T1}, s{S_GI}, 3")
        a(f"s_add_u32 s{S_MT}, s{S_T0}, s{S_T1}")
        a(f"s_lshr_b32 s{S_T0}, s{S_GX}, 2")
        a(f"s_lshl_b32 s{S_T0}, s{S_T0}, 3")
        a(f"s_lshr_b32 s{S_T2}, s{S_GI}, 2")
        a(f"s_add_u32 s{S_NT}, s{S_T0}, s{S_T2}")
        a(f"s_lshl_b32 s{S_T1}, s{S_T1}, 1")
        a(f"s_add_u32 s{S_RLW}, s{S_T1}, s{S_T2}")
        a(f"s_and_b32 s{S_RLW}, s{S_RLW}, 7")
        a(f"s_mov_b32 s{S_KK}, 0")
        self.aux_A = ""
        self.st1 = 1
        a(f"s_cmp_lt_u32 s{S_W}, 4")
        a(f"s_cbranch_scc1 L_p1_compute")
        self.g1_setup_loader(3840)
        a(f"s_mov_b32 s{SRD_A+2}, {2048*1280}")
        a(f"s_mov_b32 s{SRD_A+3}, 0x20000")
        a(f"s_mov_b32 s{SRD_W+2}, {640*3840}")
        a(f"s_mov_b32 s{SRD_W+3}, 0x20000")
        a(f"s_add_u32 s{S_RLW}, s{S_RLW}, 2")
        a(f"s_mov_b32 s{S_CNT}, 0")
        a(f"s_cmp_ge_u32 s{S_NT}, 15")
        a(f"s_cbranch_scc1 L_p1_lnull0")
        a(f"s_waitcnt lgkmcnt(0)")
        if "p1s" in self.opt: self.stamp(15)
        a(f"s_mov_b32 s{SRD_A}, s{S_X}")
        a(f"s_mov_b32 s{SRD_A+1}, s{S_X+1}")
        a(f"s_mov_b32 s{SRD_W}, s{S_WQKV}")
        a(f"s_mov_b32 s{SRD_W+1}, s{S_WQKV+1}")
        a.put("L_p1_pro")
        self.g1_dma_stage(3840)
        a(f"s_add_u32 s{S_CNT}, s{S_CNT}, 1")
        if "norot" not in self.opt:
            a(f"s_cmp_eq_u32 s{S_CNT}, 2")
            a(f"s_cselect_b32 s{S_KK}, s{S_RLW}, s{S_KK}")
        a(f"s_cmp_lt_u32 s{S_CNT}, 3")
        a(f"s_cbranch_scc1 L_p1_pro")
        if "p1s" in self.opt: self.stamp(16)
        a(f"s_load_dword s{S_TAG}, s[{S_WS}:{S_WS+1}], {OFF_EPOCH}")
        self.srd(SRD_F, S_WS, 0, 0x100000)
        if "p1s" in self.opt: self.stamp(17)
        self.g1_loader(3840, "p1", "gran")
        a(f"s_branch L_p1_lj")
        a.put("L_p1_lnull0")
        a(f"s_waitcnt lgkmcnt(0)")
        a(f"s_load_dword s{S_TAG}, s[{S_WS}:{S_WS+1}], {OFF_EPOCH}")
        a.put("L_p1_lnull")
        self.srd(SRD_F, S_WS, 0, 0x100000)
        self.tag_ready()
        self.relayout_load()
        a.put("L_p1_lj")
        a(f"s_waitcnt vmcnt(0)")
        self.relayout_store()
        a(f"s_cmp_ge_u32 s{S_NT}, 15")
        a(f"s_cbranch_scc1 L_p1_nulljob")
        a(f"s_branch L_p1_done")
        a.put("L_p1_compute")
        a(f"s_waitcnt lgkmcnt(0)")
        a(f"s_load_dword s{S_TAG}, s[{S_WS}:{S_WS+1}], {OFF_EPOCH}")
        self.srd(SRD_F, S_WS, 0, 0x100000)
        if "wall" in self.opt:
            self.p1_l2warm_all()
            a(f"s_barrier")
        if "tlbw" in self.opt: self.tlb_warm()
        D = self.xstats_publish()
        self.relayout_warm_setup()
        self.xstats_finish(D)
        a(f"s_cmp_ge_u32 s{S_NT}, 15")
        a(f"s_cbranch_scc1 L_p1_nulljob")
        a(f"s_cmp_ge_u32 s{S_NT}, 10")
        a(f"s_cbranch_scc1 L_p1_N")
        self.warm_fill = True
        self.p1_epi_T_pre()
        self.g1_compute("T", "p1T")
        self.stamp(2)
        self.p1_epi_T()
        a(f"s_branch L_p1_done")
        a.put("L_p1_N")
        self.p1_epi_N_pre()
        self.g1_compute("N", "p1N")
        self.warm_fill = False
        self.stamp(2)
        self.p1_epi_N()
        a(f"s_branch L_p1_done")
        a.put("L_p1_nulljob")
        self.null_job()
        a.put("L_p1_done")
        self.stamp(3)

    def poll(self, addr_regs, masks, tagname):
        a = self.a
        T = self.V_S - 8
        L = f"L_{tagname}_poll"; Lo = f"L_{tagname}_pollok"
        a(f"s_mov_b32 s{S_T0}, 0")
        a.put(L)
        for k, (ar, mk) in enumerate(zip(addr_regs, masks)):
            self.set_exec(mk)
            a(f"buffer_load_dword v{T+20+k}, v{ar}, s[{SRD_F}:{SRD_F+3}], 0 offen sc1")
        a(f"s_waitcnt vmcnt(0)")
        a(f"s_mov_b64 s[{S_SAVE}:{S_SAVE+1}], 0")
        for k, (ar, mk) in enumerate(zip(addr_regs, masks)):
            self.set_exec(mk)
            a(f"v_cmp_ne_u32 vcc, s{S_TAG}, v{T+20+k}")
            a(f"s_or_b64 s[{S_SAVE}:{S_SAVE+1}], s[{S_SAVE}:{S_SAVE+1}], vcc")
        a(f"s_mov_b64 exec, -1")
        a(f"s_cmp_eq_u64 s[{S_SAVE}:{S_SAVE+1}], 0")
        a(f"s_cbranch_scc1 {Lo}")
        a(f"s_add_u32 s{S_T0}, s{S_T0}, 1")
        a(f"s_cmp_lt_u32 s{S_T0}, 0x40000")
        a(f"s_cbranch_scc1 {L}")
        a.put(Lo)

    def p1_signal(self):
        a = self.a
        T = self.V_S
        Ls = "L_p1sig_skip"
        a(f"s_cmp_lg_u32 s{S_W}, {self.SIGW}")
        a(f"s_cbranch_scc1 {Ls}p")
        a(f"v_lshrrev_b32 v{T}, 3, v1")
        a(f"v_and_b32 v{T+1}, 7, v1")
        Ln = "L_p1sig_null"; Lj = "L_p1sig_join"
        a(f"s_cmp_eq_u32 s{S_NT}, 15")
        a(f"s_cbranch_scc1 {Ln}")
        a(f"s_cmp_ge_u32 s{S_NT}, 10")
        a(f"s_cselect_b32 s{S_T0}, 10, 5")
        a(f"s_cmp_lt_u32 s{S_NT}, 5")
        a(f"s_cselect_b32 s{S_T0}, 0, s{S_T0}")
        a(f"s_sub_u32 s{S_T0}, s{S_NT}, s{S_T0}")
        a(f"s_lshl_b32 s{S_T0}, s{S_T0}, 7")
        a(f"s_mul_i32 s{S_T1}, s{S_T0}, 52429")
        a(f"s_lshr_b32 s{S_T1}, s{S_T1}, 20")
        a(f"s_add_u32 s{S_T2}, s{S_T0}, 127")
        a(f"s_mul_i32 s{S_T2}, s{S_T2}, 52429")
        a(f"s_lshr_b32 s{S_T2}, s{S_T2}, 20")
        a(f"s_min_u32 s{S_T2}, s{S_T2}, 31")
        a(f"v_add_u32 v{T+2}, s{S_T1}, v{T}")
        a(f"v_cmp_ge_u32 vcc, s{S_T2}, v{T+2}")
        a(f"s_mov_b64 s[{S_SAVE}:{S_SAVE+1}], vcc")
        a(f"s_cmp_lt_u32 s{S_NT}, 5")
        a(f"s_cbranch_scc0 {Lj}")
        a(f"s_lshr_b32 s{S_T3}, s{S_MT}, 1")
        a(f"v_cmp_eq_u32 vcc, s{S_T3}, v{T+1}")
        a(f"s_and_b64 s[{S_SAVE}:{S_SAVE+1}], s[{S_SAVE}:{S_SAVE+1}], vcc")
        a(f"s_branch {Lj}")
        a.put(Ln)
        a(f"v_lshlrev_b32 v{T+2}, 4, v{T}")
        a(f"v_add_u32 v{T+2}, s{S_MT}, v{T+2}")
        a(f"v_cmp_gt_u32 vcc, 2, v{T}")
        a(f"s_mov_b64 s[{S_SAVE}:{S_SAVE+1}], vcc")
        a.put(Lj)
        a(f"v_and_b32 v{T+4}, 3, v{T+2}")
        a(f"v_lshl_add_u32 v{T+4}, v{T+1}, 2, v{T+4}")
        a(f"v_lshrrev_b32 v{T+2}, 2, v{T+2}")
        a(f"v_lshl_add_u32 v{T+2}, v{T+4}, 3, v{T+2}")
        a(f"v_lshlrev_b32 v{T+2}, 10, v{T+2}")
        a(f"s_lshl_b32 s{S_T0}, s2, 2")
        a(f"s_add_u32 s{S_T0}, s{S_T0}, {OFF_MB1}")
        a(f"v_add_u32 v{T+2}, s{S_T0}, v{T+2}")
        a(f"v_mov_b32 v{T+3}, s{S_TAG}")
        a(f"s_lshl_b32 s{S_T0}, s2, 2")
        a(f"s_add_u32 s{S_T0}, s{S_T0}, {OFF_ALL}")
        a(f"v_mov_b32 v{T+5}, s{S_T0}")
        a(f"s_add_u32 s{S_T1}, s{S_TAG}, s{S_XCC}")
        a(f"v_mov_b32 v{T+6}, s{S_T1}")
        a.put(Ls + "p")
        a(f"s_waitcnt vmcnt(0) lgkmcnt(0)")
        self.stamp(4)
        a(f"s_barrier")
        a(f"s_cmp_lg_u32 s{S_W}, {self.SIGW}")
        a(f"s_cbranch_scc1 {Ls}")
        a(f"s_mov_b64 exec, s[{S_SAVE}:{S_SAVE+1}]")
        a(f"buffer_store_dword v{T+3}, v{T+2}, s[{SRD_F}:{SRD_F+3}], 0 offen sc1")
        a(f"s_mov_b64 exec, 1")
        a(f"buffer_store_dword v{T+6}, v{T+5}, s[{SRD_F}:{SRD_F+3}], 0 offen sc1")
        a(f"s_mov_b64 exec, -1")
        a.put(Ls)

    def finish_tag_once(self):
        a = self.a
        a(f"s_mul_i32 s{S_TAG}, s{S_TAG}, 0x9E3779B1")
        a(f"s_add_u32 s{S_TAG}, s{S_TAG}, 0x7F4A7C15")

    def p2_wait_prep(self):
        a = self.a
        T = self.V_S + 16
        Ls = "L_p2w_skip"
        a(f"s_cmp_lg_u32 s{S_W}, {self.POLLW}")
        a(f"s_cbranch_scc1 {Ls}")
        a(f"s_mul_i32 s{S_T1}, s{S_HEAD}, 20")
        a(f"v_bfe_u32 v{T}, v1, 4, 1")
        a(f"v_mul_u32_u24 v{T}, 19, v{T}")
        a(f"v_add_u32 v{T}, s{S_T1}, v{T}")
        a(f"v_lshrrev_b32 v{T}, 7, v{T}")
        a(f"v_lshrrev_b32 v{T+1}, 5, v1")
        a(f"v_mul_u32_u24 v{T+1}, 5, v{T+1}")
        a(f"v_add_u32 v{T+2}, v{T}, v{T+1}")
        a(f"v_add_u32 v{T+2}, 5, v{T+2}")
        a(f"v_and_b32 v{T+3}, 15, v1")
        self.vprod(T+4, T+3, T+2, T+10)
        a(f"v_bfe_u32 v{T}, v1, 1, 1")
        a(f"v_mul_u32_u24 v{T}, 19, v{T}")
        a(f"v_add_u32 v{T}, s{S_T1}, v{T}")
        a(f"v_lshrrev_b32 v{T+2}, 7, v{T}")
        a(f"v_and_b32 v{T+3}, 1, v1")
        a(f"s_lshl_b32 s{S_T2}, s{S_QB}, 1")
        a(f"v_add_u32 v{T+3}, s{S_T2}, v{T+3}")
        a(f"v_cmp_eq_u32 vcc, 4, v1")
        a(f"s_and_b32 s{S_T2}, s{S_HEAD}, 15")
        a(f"v_mov_b32 v{T+6}, s{S_T2}")
        a(f"v_mov_b32 v{T+7}, 15")
        a(f"v_cndmask_b32 v{T+3}, v{T+3}, v{T+6}, vcc")
        a(f"v_cndmask_b32 v{T+2}, v{T+2}, v{T+7}, vcc")
        self.vprod(T+5, T+3, T+2, T+10)
        a(f"s_lshl_b32 s{S_T2}, s2, 10")
        a(f"s_add_u32 s{S_T2}, s{S_T2}, {OFF_MB1}")
        for r in (T+4, T+5):
            a(f"v_lshlrev_b32 v{r}, 2, v{r}")
            a(f"v_add_u32 v{r}, s{S_T2}, v{r}")
        a.put(Ls)

    def p2_wait(self):
        a = self.a
        T = self.V_S + 16
        Ls = "L_p2w_skip2"
        a(f"s_cmp_lg_u32 s{S_W}, {self.POLLW}")
        a(f"s_cbranch_scc1 {Ls}")
        self.V_S += 16
        self.poll([T+4, T+5], ["-1", "0x1f"], "p2w")
        self.V_S -= 16
        a.put(Ls)
        a(f"s_barrier")

    def vprod(self, dst, mt, nt, tmp):
        a = self.a
        a(f"v_and_b32 v{dst}, 3, v{mt}")
        a(f"v_and_b32 v{tmp}, 7, v{nt}")
        a(f"v_lshl_add_u32 v{dst}, v{tmp}, 2, v{dst}")
        a(f"v_lshlrev_b32 v{dst}, 3, v{dst}")
        a(f"v_lshrrev_b32 v{tmp}, 2, v{mt}")
        a(f"v_add_u32 v{dst}, v{dst}, v{tmp}")
        a(f"v_lshrrev_b32 v{tmp}, 3, v{nt}")
        a(f"v_lshl_add_u32 v{dst}, v{tmp}, 2, v{dst}")

    def group_barrier(self, phase, tagname, tgt=None, slot=None, hook=None, local=False, early_A=False, pollw=None):
        a = self.a
        T = self.V_S
        gs = (tagname in self.opt)
        Ls = f"L_{tagname}_gskip"
        old_pollw = self.POLLW
        if pollw is not None: self.POLLW = pollw
        if early_A:
            a(f"s_cmp_lt_u32 s{S_W}, 4")
            a(f"s_cbranch_scc1 {Ls}e")
            self.hook_tag = "e"; hook(); self.hook_tag = ""
            a.put(Ls + "e")
        tgt = S_GX if tgt is None else tgt
        slot = S_GI if slot is None else slot
        a(f"v_lshlrev_b32 v{T}, 3, v1")
        a(f"v_add_u32 v{T}, s{tgt}, v{T}")
        a(f"v_lshlrev_b32 v{T}, 7, v{T}")
        a(f"s_lshl_b32 s{S_T1}, s{slot}, 2")
        a(f"s_add_u32 s{S_T1}, s{S_T1}, {OFF_GB + phase*256*128}")
        a(f"v_add_u32 v{T}, s{S_T1}, v{T}")
        a(f"v_mov_b32 v{T+1}, s{S_TAG}")
        a(f"s_waitcnt vmcnt(0) lgkmcnt(0)")
        if gs: self.stamp(15)
        a(f"s_barrier")
        if gs: self.stamp(16)
        a(f"s_cmp_lg_u32 s{S_W}, {self.POLLW}")
        a(f"s_cbranch_scc1 {Ls}0")
        self.set_exec(0xffffffff)
        if local:
            a(f"s_cmp_eq_u32 s{S_FAST}, 1")
            a(f"s_cbranch_scc1 {Ls}f")
            a(f"buffer_store_dword v{T+1}, v{T}, s[{SRD_F}:{SRD_F+3}], 0 offen sc1")
            a(f"s_branch {Ls}g")
            a.put(Ls + "f")
            a(f"buffer_store_dword v{T+1}, v{T}, s[{SRD_F}:{SRD_F+3}], 0 offen")
            a.put(Ls + "g")
        else:
            a(f"buffer_store_dword v{T+1}, v{T}, s[{SRD_F}:{SRD_F+3}], 0 offen sc1")
        a(f"s_mov_b64 exec, -1")
        a.put(Ls + "0")
        if hook and early_A:
            a(f"s_cmp_ge_u32 s{S_W}, 4")
            a(f"s_cbranch_scc1 {Ls}h")
            hook()
            a.put(Ls + "h")
        elif hook: hook()
        if gs: self.stamp(17)
        a(f"s_cmp_lg_u32 s{S_W}, {self.POLLW}")
        a(f"s_cbranch_scc1 {Ls}")
        a(f"s_lshl_b32 s{S_T0}, s2, 7")
        a(f"s_add_u32 s{S_T0}, s{S_T0}, {OFF_GB + phase*256*128}")
        a(f"v_lshlrev_b32 v{T+2}, 2, v1")
        a(f"v_add_u32 v{T+2}, s{S_T0}, v{T+2}")
        self.poll([T+2], ["0xffffffff"], tagname)
        a.put(Ls)
        a(f"s_barrier")
        self.POLLW = old_pollw

    A_QA = 4; A_QB = 12
    A_K = 20
    A_V1 = 36; A_V2 = 40
    A_SA = 44; A_SB = 60; A_P = 76; A_OA = 84; A_OB = 100; A_AK = 116; A_AV = 117; A_DV = 118; A_ALLA = 119; A_T = 120; A_ALL = 132
    S_VMASK = 92
    S_NEXTB = 94; S_DSO = 95; S_LOW = 65; S_NEXTM = 69
    p2_nu = 4
    low_tiles = 1
    S_D = [6, 7, 8, 9, 16, 17]
    S_WOI = [51, 53]
    S_WOBK = 62
    S_WOM = 68
    low_pos = (3, 10, 18, 29)
    warm_slots = {'w1': 48, 'dst': 52}
    def p2_unrolled(self):
        a = self.a
        D = self.S_D
        def kv():
            a(f"s_mov_b32 m0, s{self.S_DSO}")
            a(f"s_nop 0")
            a(f"buffer_load_dwordx4 v{self.A_DV}, s[{SRD_A}:{SRD_A+3}], s{self.S_DSO} offen sc1 lds")
            a(f"s_add_u32 s{self.S_DSO}, s{self.S_DSO}, 4096")
        def w2(g):
            R = 144 + 4*g
            a(f"buffer_load_dwordx4 v[{R}:{R+3}], v{self.A_ALLA}, s[{SRD_W}:{SRD_W+3}], s{S_SW} offen {self.ld_aux}")
            a(f"s_add_u32 s{S_SW}, s{S_SW}, s{D[g % 6]}")
        def wo(idx):
            a(f"s_mov_b32 m0, s{self.S_WOB}")
            a(f"s_add_u32 s{self.S_WOB}, s{self.S_WOB}, s{self.S_WOI[1 if idx == 4 else 0]}")
            if idx >= 10:
                a(f"s_cmp_lt_u32 s{S_W}, 4")
                a(f"s_cbranch_scc1 L_wo_sk{idx}")
            a(f"buffer_load_dwordx4 v{self.A_DV}, s[{SRD_T}:{SRD_T+3}], s{self.S_WOS} offen {self.ld_aux} lds")
            if idx >= 10: a.put(f"L_wo_sk{idx}")
            a(f"s_add_u32 s{self.S_WOS}, s{self.S_WOS}, s{D[idx % 6]}")
        slot_ops = {}
        def put(x, k_, arg=None): slot_ops.setdefault(x, []).append((k_, arg))
        for i in range(5): put(8 + i, "kv")
        for i in range(6): put(24 + i, "kv")
        free = [x for x in range(13, 40) if x not in range(24, 30)]
        dbl = set(free[1::3][:7])
        g = 0
        for x in free:
            put(x, "w2", g); g += 1
            if x in dbl:
                put(x, "w2", g); g += 1
        assert g == 28, g
        for i in range(15): put(40 + i//2, "wo", i)
        for k_, x in self.warm_slots.items(): put(x, k_)
        def cnt(lo, hi):
            return sum(1 for x in range(lo, hi) for k_, _ in slot_ops.get(x, []) if k_ in ("kv", "w2", "wo"))
        lowpos = set(self.low_pos)
        noprio = "noprio" in self.opt
        if not noprio:
            a(f"s_setprio 1")
            self.p2_setprio(2, "init")
        a(f"s_nop 7"); a(f"s_nop 3")
        base = 0
        for t in range(32):
            if t == 16:
                a(f"v_add_u32 v{self.A_AK}, {16*2560}, v{self.A_AK}")
                a(f"v_add_u32 v{self.A_AV}, {16*2560}, v{self.A_AV}")
                base = 16
            if t in (4, 12, 20):
                vm = 0 if t == 4 else (cnt(13, 24) if t == 12 else cnt(30, 40))
                a(f"s_waitcnt vmcnt({vm})")
                if t == 4:
                    self.p2_check_all()
                    self.g2_wsetup(5, SRD_W, S_SW, self.A_ALLA)
                    self.p2_w2_consts()
                a(f"s_barrier")
                if not noprio: self.p2_setprio(2, f"h{t}")
                if t == 20: self.wo_setup2()
            if t in lowpos and not noprio: self.p2_setprio(0, f"l{t}")
            for st in (0, 1):
                self.p2_sub(st, t - base)
                for k_, arg in slot_ops.get(2*t + st, []):
                    self.evtag = "u"
                    if k_ == "kv": kv()
                    elif k_ == "w2":
                        if "evnow2" not in self.opt: w2(arg)
                    elif k_ == "wo":
                        if "evnowo" not in self.opt: wo(arg)
                    elif k_ == "dst":
                        if "nodstw" not in self.opt: self.dst_l2warm()
                    elif k_ == "w1":
                        if "now1w" not in self.opt: self.w1_l2warm()
                    elif k_ == "wp":
                        if "nowpw" not in self.opt: self.wp_l2warm()

    def p2_w2_consts(self):
        a = self.a
        D = self.S_D
        incB = [1024, 162816]*3
        incA = [161792, 1024, 1024]*2
        a(f"s_cmp_lt_u32 s{S_W}, 4")
        for k in range(6):
            x, y = incB[k], incA[k]
            if x == y: a(f"s_mov_b32 s{D[k]}, {x}")
            else: self.csel(D[k], x, y)
        a(f"s_cselect_b32 s{S_T0}, 0, {5*163840 - 161792}")
        a(f"s_add_u32 s{S_SW}, s{S_SW}, s{S_T0}")

    def wo_setup2(self):
        a = self.a
        D = self.S_D
        self.g2_wsetup(3, SRD_T, self.S_WOS, self.A_DV)
        self.wo_lds_base(self.S_WOB)
        a(f"s_mov_b32 s{self.S_WOBK}, s{self.S_WOB}")
        a(f"s_cmp_eq_u32 s{S_W}, 3")
        a(f"s_cselect_b32 s{self.S_WOB2}, {128000-5120}, s{self.S_WOB}")
        a(f"s_mov_b32 s{self.S_WOI[0]}, 1024")
        a(f"s_cselect_b32 s{self.S_WOI[1]}, {128000 - (46080 + 4096)}, s{self.S_WOI[0]}")
        incB = [1024, 162816]*3
        incA = [1024, 1024, 161792]*2
        a(f"s_cmp_lt_u32 s{S_W}, 4")
        for k in range(6):
            x, y = incB[k], incA[k]
            if x == y: a(f"s_mov_b32 s{D[k]}, {x}")
            else: self.csel(D[k], x, y)


    def p2_kreads(self, kb, toff):
        a = self.a
        K = self.A_K + 8*kb
        a(f"ds_read_b64 v[{K}:{K+1}], v{self.A_AK} offset:{toff}")
        a(f"ds_read_b64 v[{K+2}:{K+3}], v{self.A_AK} offset:{toff+256}")
        a(f"ds_read_b64 v[{K+4}:{K+5}], v{self.A_AK} offset:{toff+1024}")
    def p2_vread(self, which, toff):
        a = self.a
        R = self.A_V1 if which == 0 else self.A_V2
        a(f"s_mov_b64 exec, s[{self.S_VMASK}:{self.S_VMASK+1}]")
        a(f"ds_read_b128 v[{R}:{R+3}], v{self.A_AV} offset:{toff+640*which}")
        a(f"s_mov_b64 exec, -1")
    def p2_smfma(self, which, S, kb, Q):
        a = self.a
        K = self.A_K + 8*kb
        if which == 0:
            a(f"v_mfma_f32_32x32x16_bf16 v[{S}:{S+15}], v[{K}:{K+3}], v[{Q}:{Q+3}], 0")
        elif "nok8" not in self.opt:
            a(f"v_mfma_f32_32x32x8bf16_1k v[{S}:{S+15}], v[{K+4}:{K+5}], v[{Q+4}:{Q+5}], v[{S}:{S+15}]")
        else:
            a(f"v_mfma_f32_32x32x16_bf16 v[{S}:{S+15}], v[{K+4}:{K+7}], v[{Q+4}:{Q+7}], v[{S}:{S+15}]")

    A_V2B = 128
    def p2_sub(self, stream, u):
        a = self.a
        P = self.A_P
        p = u & 1
        V2 = (self.A_V2, self.A_V2B)
        Sc, Sn = (self.A_SA, self.A_SB) if stream == 0 else (self.A_SB, self.A_SA)
        Oc, Op = (self.A_OA, self.A_OB) if stream == 0 else (self.A_OB, self.A_OA)
        Qn = self.A_QB if stream == 0 else self.A_QA
        kb = p if stream == 0 else 1 - p
        v2 = V2[1-p] if stream == 0 else V2[p]
        ex = lambda i: a(f"v_exp_f32 v{Sc+i}, v{Sc+i}")
        cv = lambda k: a(f"v_cvt_pk_bf16_f32 v{P+k}, v{Sc+2*k}, v{Sc+2*k+1}")
        cvp = lambda k: a(f"v_cvt_pk_bf16_f32 v{P+k}, v{Sn+2*k}, v{Sn+2*k+1}")
        var = getattr(self, "sub_variant", None) or "v1"
        tn = (u+1)*2560
        def rdV():
            a(f"s_mov_b64 exec, s[{self.S_VMASK}:{self.S_VMASK+1}]")
            a(f"ds_read_b128 v[{self.A_V1}:{self.A_V1+3}], v{self.A_AV} offset:{tn}")
            R = V2[1-p]
            a(f"ds_read_b128 v[{R}:{R+3}], v{self.A_AV} offset:{tn+640}")
            a(f"s_mov_b64 exec, -1")
        def rdK(i):
            K = self.A_K + 8*p; toff = (u+2)*2560
            if i == 0: a(f"ds_read_b64 v[{K}:{K+1}], v{self.A_AK} offset:{toff}")
            if i == 1: a(f"ds_read_b64 v[{K+2}:{K+3}], v{self.A_AK} offset:{toff+256}")
            if i == 2: a(f"ds_read_b64 v[{K+4}:{K+5}], v{self.A_AK} offset:{toff+1024}")
        m1 = lambda: self.p2_smfma(0, Sn, kb, Qn)
        m2 = lambda: self.p2_smfma(1, Sn, kb, Qn)
        m4 = lambda: a(f"v_mfma_f32_32x32x16_bf16 v[{Op}:{Op+15}], v[{v2}:{v2+3}], v[{P+4}:{P+7}], v[{Op}:{Op+15}]")
        m3 = lambda: a(f"v_mfma_f32_32x32x16_bf16 v[{Oc}:{Oc+15}], v[{self.A_V1}:{self.A_V1+3}], v[{P}:{P+3}], v[{Oc}:{Oc+15}]")
        wt = lambda: a(f"s_waitcnt lgkmcnt(0)")
        if var == "pure":
            ex(0); cvp(6); ex(1); ex(2); cvp(7); ex(3); m1(); ex(4); cv(0); ex(5); ex(6); cv(1); ex(7); m2()
            ex(8); cv(2); ex(9); ex(10); cv(3); ex(11); m4(); ex(12); cv(4); ex(13); ex(14); cv(5); ex(15); m3()
        elif var == "v0":
            ex(0); cvp(6); ex(1); ex(2); cvp(7); ex(3); m1(); ex(4); cv(0); ex(5); ex(6); cv(1); ex(7); m2()
            ex(8); cv(2); ex(9); ex(10); cv(3); ex(11); m4(); ex(12); cv(4); ex(13); ex(14); cv(5); ex(15)
            if stream == 0: wt()
            m3()
            if stream == 1:
                rdV(); rdK(0); rdK(1); rdK(2)
        elif var == "v1":
            ex(0); cvp(6); ex(1); ex(2); cvp(7); ex(3); m1()
            if stream == 1: rdK(0)
            ex(4); cv(0); ex(5); ex(6); cv(1); ex(7); m2()
            if stream == 1: rdK(1)
            ex(8); cv(2); ex(9); ex(10); cv(3); ex(11); m4()
            if stream == 1: rdK(2)
            ex(12); cv(4); ex(13); ex(14); cv(5); ex(15)
            if stream == 0: wt()
            m3()
            if stream == 1: rdV()
        elif var == "v2":
            ex(0); cvp(6); ex(1); ex(2); cvp(7); ex(3); m1()
            if stream == 1: rdK(1)
            ex(4); cv(0); ex(5); ex(6); cv(1); ex(7); m2()
            if stream == 1: rdK(2)
            ex(8); cv(2); ex(9); ex(10); cv(3); ex(11); m4()
            if stream == 0: rdK(0)
            ex(12); cv(4); ex(13); ex(14); cv(5); ex(15)
            if stream == 0: a(f"s_waitcnt lgkmcnt(1)")
            m3()
            if stream == 1: rdV()
        elif var == "v3":
            ex(0); cvp(6); ex(1); ex(2); cvp(7); ex(3); m1()
            if stream == 1: rdK(0)
            ex(4); cv(0); ex(5); ex(6); cv(1); ex(7); m2()
            if stream == 1: rdK(1)
            ex(8); cv(2); ex(9); ex(10); cv(3); ex(11); m4()
            if stream == 1: rdK(2)
            ex(12); cv(4); ex(13); ex(14); cv(5); ex(15)
            if stream == 0: wt()
            m3()
            if stream == 1:
                a(f"ds_read_b128 v[{self.A_V1}:{self.A_V1+3}], v{self.A_AV} offset:{tn}")
                R = V2[1-p]
                a(f"ds_read_b128 v[{R}:{R+3}], v{self.A_AV} offset:{tn+640}")

    def prio_reg(self, stream):
        return self._prio[stream]

    def p2_check_all(self):
        a = self.a
        X = self.A_ALL; T = self.A_T
        L = "L_p2_all"; Lo = "L_p2_allok"
        a(f"s_mov_b32 s{S_T0}, 0")
        a.put(L)
        for r in range(4):
            a(f"v_subrev_u32 v{T+r}, s{S_TAG}, v{X+r}")
        a(f"v_cmp_le_u32 vcc, 16, v{T}")
        for r in range(1, 4):
            a(f"v_cmp_le_u32 s[{S_SAVE}:{S_SAVE+1}], 16, v{T+r}")
            a(f"s_nop 0")
            a(f"s_or_b64 vcc, vcc, s[{S_SAVE}:{S_SAVE+1}]")
        a(f"s_cbranch_vccz {Lo}")
        a(f"s_add_u32 s{S_T0}, s{S_T0}, 1")
        a(f"s_cmp_ge_u32 s{S_T0}, 0x40000")
        a(f"s_cbranch_scc1 {Lo}")
        a(f"buffer_load_dwordx4 v[{X}:{X+3}], v{self.A_ALLA}, s[{SRD_F}:{SRD_F+3}], 0 offen sc1")
        a(f"s_waitcnt vmcnt(0)")
        a(f"s_branch {L}")
        a.put(Lo)
        a(f"s_and_b32 s{S_T1}, s{S_GX}, 3")
        for r in range(1, 4):
            a(f"s_cmp_eq_u32 s{S_T1}, {r}")
            a(f"s_cselect_b64 s[{S_SAVE}:{S_SAVE+1}], -1, 0")
            a(f"v_cndmask_b32 v{T}, v{T}, v{T+r}, s[{S_SAVE}:{S_SAVE+1}]")
        a(f"v_cmp_ne_u32 vcc, s{S_XCC}, v{T}")
        a(f"s_mov_b32 s{S_T2}, 0x55555555")
        a(f"s_lshr_b32 s{S_T1}, s{S_GX}, 2")
        a(f"s_lshl_b32 s{S_T2}, s{S_T2}, s{S_T1}")
        a(f"s_and_b32 s{S_T3}, vcc_lo, s{S_T2}")
        a(f"s_and_b32 s{S_T4}, vcc_hi, s{S_T2}")
        a(f"s_or_b32 s{S_T3}, s{S_T3}, s{S_T4}")
        a(f"s_cmp_eq_u32 s{S_T3}, 0")
        a(f"s_cselect_b32 s{S_FAST}, {0 if 'nofast' in self.opt else 1}, 0")

    prio_low = (0, 2, 4, 7)
    def p2_setprio(self, lvl, tag):
        a = self.a
        L = f"L_p2_pr{tag}"
        a(f"s_cmp_ge_u32 s{S_W}, 4")
        a(f"s_cbranch_scc1 {L}")
        a(f"s_setprio {lvl}")
        a.put(L)

    def p2_dma(self, n):
        a = self.a
        for i in range(n):
            a(f"s_mov_b32 m0, s{self.S_DSO}")
            a(f"s_nop 0")
            a(f"buffer_load_dwordx4 v{self.A_DV}, s[{SRD_A}:{SRD_A+3}], s{self.S_DSO} offen sc1 lds")
            a(f"s_add_u32 s{self.S_DSO}, s{self.S_DSO}, 4096")

    def p2_setup(self):
        a = self.a
        T = self.A_T
        a(f"s_lshl_b32 s{S_HEAD}, s{S_GX}, 2")
        a(f"s_and_b32 s{S_T0}, s{S_GI}, 3")
        a(f"s_add_u32 s{S_HEAD}, s{S_HEAD}, s{S_T0}")
        a(f"s_lshr_b32 s{S_QB}, s{S_GI}, 2")
        a(f"s_mul_i32 s{S_T0}, s{S_HEAD}, 163840")
        a(f"s_add_u32 s{S_T0}, s{S_T0}, {hex(OFF_KV)}")
        a(f"s_add_u32 s{SRD_A}, s{S_WS}, s{S_T0}")
        a(f"s_addc_u32 s{SRD_A+1}, s{S_WS+1}, 0")
        a(f"s_mov_b32 s{SRD_A+2}, 163840")
        a(f"s_mov_b32 s{SRD_A+3}, 0x20000")
        a(f"s_lshl_b32 s{S_T0}, s{S_HEAD}, 6")
        a(f"s_lshl_b32 s{S_T1}, s{S_QB}, 3")
        a(f"s_add_u32 s{S_T0}, s{S_T0}, s{S_T1}")
        a(f"s_and_b32 s{S_T1}, s{S_W}, 3")
        a(f"s_lshl_b32 s{S_T1}, s{S_T1}, 1")
        a(f"s_add_u32 s{S_T0}, s{S_T0}, s{S_T1}")
        a(f"s_mul_i32 s{S_T0}, s{S_T0}, 1280")
        a(f"s_add_u32 s{S_T0}, s{S_T0}, {hex(OFF_Q)}")
        a(f"s_add_u32 s{SRD_W}, s{S_WS}, s{S_T0}")
        a(f"s_addc_u32 s{SRD_W+1}, s{S_WS+1}, 0")
        a(f"s_mov_b32 s{SRD_W+2}, 2560")
        a(f"s_mov_b32 s{SRD_W+3}, 0x20000")
        a(f"v_and_b32 v{T}, 31, v1")
        a(f"v_lshrrev_b32 v{T+1}, 5, v1")
        a(f"v_lshlrev_b32 v{T+2}, 3, v{T}")
        a(f"v_lshl_add_u32 v{T+4}, v{T+1}, 9, v{T+2}")
        a(f"v_lshlrev_b32 v{T+3}, 12, v{T+1}")
        a(f"v_add_u32 v{T+3}, v{T+3}, v{T+2}")
        a(f"v_lshlrev_b32 v{self.A_DV}, 4, v1")
        a(f"v_add_u32 v{self.A_ALLA}, {OFF_ALL}, v{self.A_DV}")
        a(f"s_lshr_b32 s{S_T0}, s{S_W}, 2")
        a(f"s_mul_i32 s{S_T0}, s{S_T0}, 81920")
        a(f"s_and_b32 s{S_T1}, s{S_W}, 3")
        a(f"s_lshl_b32 s{S_T1}, s{S_T1}, 10")
        a(f"s_add_u32 s{self.S_DSO}, s{S_T0}, s{S_T1}")
        for Q in (self.A_QA, self.A_QB):
            a(f"v_mov_b32 v{Q+6}, 0"); a(f"v_mov_b32 v{Q+7}, 0")
        for kb in range(2):
            a(f"v_mov_b32 v{self.A_K+8*kb+6}, 0"); a(f"v_mov_b32 v{self.A_K+8*kb+7}, 0")
        a(f"v_cmp_eq_u32 vcc, 20, v{T}")
        a(f"v_mov_b32 v{T+5}, 0x3f803f80")
        a(f"v_mul_u32_u24 v{T+6}, 320, v{T+1}")
        a(f"v_cndmask_b32 v{self.A_V1}, 0, v{T+5}, vcc")
        for r in range(1, 8):
            a(f"v_mov_b32 v{self.A_V1+r}, v{self.A_V1}")
        for r in range(4):
            a(f"v_mov_b32 v{self.A_V2B+r}, v{self.A_V1}")
        a(f"v_lshl_add_u32 v{self.A_AV}, v{T}, 4, v{T+6}")
        a(f"v_add_u32 v{self.A_AV}, 1280, v{self.A_AV}")
        a(f"v_add_u32 v{self.A_AK}, s{S_T0}, v{T+4}")
        a(f"v_add_u32 v{self.A_AV}, s{S_T0}, v{self.A_AV}")
        a(f"s_mov_b32 s{self.S_VMASK}, 0xfffff")
        a(f"s_mov_b32 s{self.S_VMASK+1}, 0xfffff")
        for r in range(16):
            a(f"v_mov_b32 v{self.A_OA+r}, 0"); a(f"v_mov_b32 v{self.A_OB+r}, 0")
        for r in range(8):
            a(f"v_mov_b32 v{self.A_P+r}, 0")
        for r in range(12, 16):
            a(f"v_mov_b32 v{self.A_SB+r}, 0")
        a(f"s_and_b32 s{S_T2}, s{S_W}, 3")
        a(f"s_lshr_b32 s{S_T3}, s{S_W}, 2")
        a(f"s_lshl_b32 s{S_T0}, s{S_QB}, 2")
        a(f"s_add_u32 s{S_T0}, s{S_T0}, s{S_T2}")
        a(f"s_mul_i32 s{S_T0}, s{S_T0}, 81920")
        a(f"s_lshl_b32 s{S_T1}, s{S_T3}, 11")
        a(f"s_add_u32 s{S_CNT}, s{S_T0}, s{S_T1}")
        a(f"v_bfe_u32 v{T+3+4}, v1, 4, 1")
        a(f"v_lshlrev_b32 v{T+7}, 10, v{T+7}")
        a(f"v_and_b32 v{T+6}, 15, v1")
        a(f"v_lshl_add_u32 v{T+7}, v{T+6}, 4, v{T+7}")
        a(f"s_mul_i32 s{S_T1}, s{S_HEAD}, 20")
        for g in range(3):
            D_ = self.A_OAD + g
            a(f"v_lshlrev_b32 v{T+6}, 2, v{T+1}")
            a(f"s_add_u32 s{S_T2}, s{S_T1}, {8*g}")
            a(f"v_add_u32 v{T+6}, s{S_T2}, v{T+6}")
            a(f"v_lshrrev_b32 v{D_}, 5, v{T+6}")
            a(f"v_lshlrev_b32 v{D_}, 12, v{D_}")
            a(f"v_bfe_u32 v{T+5}, v{T+6}, 3, 2")
            a(f"v_lshl_add_u32 v{D_}, v{T+5}, 8, v{D_}")
            a(f"v_and_b32 v{T+5}, 7, v{T+6}")
            a(f"v_lshl_add_u32 v{D_}, v{T+5}, 1, v{D_}")
            a(f"v_add_u32 v{D_}, v{D_}, v{T+7}")

    A_OAD = 140
    def p2(self):
        a = self.a
        T = self.A_T
        self.stamp(5)
        self.p2_wait()
        self.stamp(6)
        self.p2_dma(2)
        for qi, Q in enumerate((self.A_QA, self.A_QB)):
            a(f"buffer_load_dwordx2 v[{Q}:{Q+1}], v{T+4}, s[{SRD_W}:{SRD_W+3}], 0 offen offset:{1280*qi} sc1")
            a(f"buffer_load_dwordx2 v[{Q+2}:{Q+3}], v{T+4}, s[{SRD_W}:{SRD_W+3}], 0 offen offset:{1280*qi+256} sc1")
            a(f"buffer_load_dwordx2 v[{Q+4}:{Q+5}], v{T+3}, s[{SRD_W}:{SRD_W+3}], 0 offen offset:{1280*qi+1024} sc1")
        self.p2_dma(2)
        a(f"buffer_load_dwordx4 v[{self.A_ALL}:{self.A_ALL+3}], v{self.A_ALLA}, s[{SRD_F}:{SRD_F+3}], 0 offen sc1")
        self.p2_dma(4)
        a(f"s_waitcnt vmcnt(5)")
        a(f"s_barrier")
        self.stamp(7)
        self.p2_dma(1)
        self.p2_kreads(0, 0)
        self.p2_kreads(1, 2560)
        self.p2_vread(0, 0)
        self.p2_vread(1, 0)
        a(f"s_waitcnt lgkmcnt(0)")
        self.p2_smfma(0, self.A_SA, 0, self.A_QA); self.p2_smfma(1, self.A_SA, 0, self.A_QA)
        self.p2_unrolled()
        a.put("L_p2_done")
        a(f"s_setprio 0")
        P = self.A_P; SBr = self.A_SB
        a(f"s_waitcnt lgkmcnt(0)")
        a(f"v_cvt_pk_bf16_f32 v{P+6}, v{SBr+12}, v{SBr+13}")
        a(f"v_cvt_pk_bf16_f32 v{P+7}, v{SBr+14}, v{SBr+15}")
        a(f"s_nop 1")
        a(f"v_mfma_f32_32x32x16_bf16 v[{self.A_OB}:{self.A_OB+15}], v[{self.A_V2B}:{self.A_V2B+3}], v[{P+4}:{P+7}], v[{self.A_OB}:{self.A_OB+15}]")
        self.stamp(8)
        self.p2_epilogue()

    def p2_epilogue(self):
        a = self.a
        T = self.A_T
        self.srd(SRD_O, S_WS, OFF_O, SZ_O)
        a(f"s_mov_b32 s{self.S_SLOWDONE}, {1 if 'noslow' in self.opt else 0}")
        a(f"s_mov_b32 s{self.S_BIG}, {hex(f32(2.0**60))}")
        if "forceslow" in self.opt: a(f"s_mov_b32 s{self.S_BIG}, 0")
        a(f"s_nop 7"); a(f"s_nop 3")
        a(f"s_barrier")
        a(f"s_and_b32 s{S_T0}, s{S_W}, 3")
        a(f"s_lshr_b32 s{S_T1}, s{S_W}, 2")
        a(f"s_lshl_b32 s{S_T0}, s{S_T0}, 1")
        a(f"s_add_u32 s{S_T2}, s{S_T0}, s{S_T1}")
        a(f"s_xor_b32 s{S_T3}, s{S_T2}, 1")
        a(f"s_mul_i32 s{S_T2}, s{S_T2}, 3072")
        a(f"s_mul_i32 s{S_T3}, s{S_T3}, 3072")
        a(f"s_add_u32 s{S_T2}, s{S_T2}, 51200")
        a(f"s_add_u32 s{S_T3}, s{S_T3}, 51200")
        a(f"v_lshlrev_b32 v{T}, 4, v1")
        a(f"v_add_u32 v{T+1}, s{S_T2}, v{T}")
        a(f"v_add_u32 v{T+2}, s{S_T3}, v{T}")
        Lk1 = "L_p2e_k1"; Lj = "L_p2e_j"
        a(f"s_cmp_eq_u32 s{S_T1}, 1")
        a(f"s_cbranch_scc1 {Lk1}")
        for g in range(3):
            a(f"ds_write_b128 v{T+1}, v[{self.A_OB+4*g}:{self.A_OB+4*g+3}] offset:{1024*g}")
        a(f"s_branch {Lj}")
        a.put(Lk1)
        for g in range(3):
            a(f"ds_write_b128 v{T+1}, v[{self.A_OA+4*g}:{self.A_OA+4*g+3}] offset:{1024*g}")
        for r in range(12):
            a(f"v_mov_b32 v{self.A_OA+r}, v{self.A_OB+r}")
        a.put(Lj)
        a(f"s_waitcnt lgkmcnt(0)")
        a(f"s_barrier")
        O = self.A_OA; X = self.A_SA
        for g in range(3):
            a(f"ds_read_b128 v[{X+4*g}:{X+4*g+3}], v{T+2} offset:{1024*g}")
        a(f"s_waitcnt lgkmcnt(0)")
        for r in range(12):
            a(f"v_add_f32 v{O+r}, v{O+r}, v{X+r}")
        a.put("L_p2_fin")
        a(f"v_mov_b32 v{T}, v{O+8}")
        a(f"v_mov_b32 v{T+1}, v{O+8}")
        a(f"s_nop 1")
        a(f"v_permlane32_swap_b32 v{T}, v{T+1}")
        a(f"v_mul_f32 v{T+3}, 0, v{O}")
        for r in list(range(1, 8)):
            a(f"v_fmac_f32 v{T+3}, 0, v{O+r}")
        a(f"v_mov_b32 v{T+4}, 0")
        for r in range(8, 12):
            a(f"v_fmac_f32 v{T+4}, 0, v{O+r}")
        a(f"v_cmp_le_f32 vcc, {hex(f32(2.0**-60))}, v{T+1}")
        a(f"v_cmp_ge_f32 s[{S_SAVE}:{S_SAVE+1}], s{self.S_BIG}, v{T+1}")
        a(f"s_nop 0")
        a(f"s_and_b64 vcc, vcc, s[{S_SAVE}:{S_SAVE+1}]")
        a(f"v_cmp_eq_f32 s[{S_SAVE}:{S_SAVE+1}], 0, v{T+3}")
        a(f"s_nop 0")
        a(f"s_and_b64 vcc, vcc, s[{S_SAVE}:{S_SAVE+1}]")
        a(f"v_cmp_eq_f32 s[{S_SAVE}:{S_SAVE+1}], 0, v{T+4}")
        a(f"s_nop 0")
        a(f"s_or_b32 s{S_SAVE+1}, s{S_SAVE+1}, -1")
        a(f"s_and_b64 vcc, vcc, s[{S_SAVE}:{S_SAVE+1}]")
        a(f"s_or_b32 vcc_lo, vcc_lo, 0")
        a(f"s_cmp_eq_u32 s{self.S_SLOWDONE}, 1")
        a(f"s_cbranch_scc1 L_p2_ok")
        a(f"s_cmp_eq_u64 vcc, -1")
        a(f"s_cbranch_scc0 L_p2_slow")
        a.put("L_p2_ok")
        a(f"v_rcp_f32 v{T+2}, v{T+1}")
        a(f"s_nop 0")
        for r in range(12):
            a(f"v_mul_f32 v{O+r}, v{T+2}, v{O+r}")
        for g in range(3):
            a(f"v_cvt_pk_bf16_f32 v{O+4*g}, v{O+4*g}, v{O+4*g+1}")
            a(f"v_cvt_pk_bf16_f32 v{O+4*g+1}, v{O+4*g+2}, v{O+4*g+3}")
        for g in range(3):
            if g == 2: self.set_exec(0xffffffff)
            a(f"buffer_store_dwordx2 v[{O+4*g}:{O+4*g+1}], v{self.A_OAD+g}, s[{SRD_O}:{SRD_O+3}], s{S_CNT} offen sc1")
            if g == 2: a(f"s_mov_b64 exec, -1")
        a(f"s_branch L_p2_end")
        self.p2_slow()
        a.put("L_p2_end")

    S_SLOWDONE = 94; S_BIG = 95
    def p2_slow(self):
        a = self.a
        T = self.A_T; O = self.A_OA; S = self.A_SA; P = self.A_P
        K = self.A_K; Q = self.A_QA
        a("; exact fallback: two passes over K/V with the true row max (taken when the unshifted sums are out of range)")
        a.put("L_p2_slow")
        a(f"s_cmp_lt_u32 s{S_W}, 4")
        a(f"s_cbranch_scc1 L_p2s_q")
        for r in range(8):
            a(f"v_mov_b32 v{Q+r}, v{self.A_QB+r}")
        a.put("L_p2s_q")
        a(f"v_and_b32 v{T}, 31, v1")
        a(f"v_lshrrev_b32 v{T+1}, 5, v1")
        a(f"v_lshlrev_b32 v{T+2}, 3, v{T}")
        a(f"v_lshl_add_u32 v{T+3}, v{T+1}, 9, v{T+2}")
        a(f"v_mul_u32_u24 v{T+4}, 320, v{T+1}")
        a(f"v_lshl_add_u32 v{T+4}, v{T}, 4, v{T+4}")
        a(f"v_mov_b32 v{T+5}, 0xff800000")
        def loadk():
            a(f"buffer_load_dwordx2 v[{K}:{K+1}], v{T+3}, s[{SRD_A}:{SRD_A+3}], s{S_T1} offen sc1")
            a(f"buffer_load_dwordx2 v[{K+2}:{K+3}], v{T+3}, s[{SRD_A}:{SRD_A+3}], s{S_T1} offen offset:256 sc1")
            a(f"buffer_load_dwordx2 v[{K+4}:{K+5}], v{T+2}, s[{SRD_A}:{SRD_A+3}], s{S_T1} offen offset:1024 sc1")
        def smm():
            a(f"v_mfma_f32_32x32x16_bf16 v[{S}:{S+15}], v[{K}:{K+3}], v[{Q}:{Q+3}], 0")
            a(f"v_mfma_f32_32x32x16_bf16 v[{S}:{S+15}], v[{K+4}:{K+7}], v[{Q+4}:{Q+7}], v[{S}:{S+15}]")
            a(f"s_nop 7"); a(f"s_nop 7")
        a(f"s_mov_b32 s{S_T1}, 0")
        a.put("L_p2s_1")
        loadk()
        a(f"s_waitcnt vmcnt(0)")
        smm()
        for r in range(16):
            a(f"v_max_f32 v{T+5}, v{T+5}, v{S+r}")
        a(f"s_add_u32 s{S_T1}, s{S_T1}, 2560")
        a(f"s_cmp_lt_u32 s{S_T1}, 163840")
        a(f"s_cbranch_scc1 L_p2s_1")
        a(f"v_mov_b32 v{T+6}, v{T+5}")
        a(f"s_nop 1")
        a(f"v_permlane32_swap_b32 v{T+6}, v{T+5}")
        a(f"s_nop 1")
        a(f"v_max_f32 v{T+5}, v{T+5}, v{T+6}")
        for r in range(16):
            a(f"v_mov_b32 v{O+r}, 0")
        a(f"s_mov_b32 s{S_T1}, 0")
        a.put("L_p2s_2")
        loadk()
        a(f"s_mov_b64 exec, s[{self.S_VMASK}:{self.S_VMASK+1}]")
        a(f"buffer_load_dwordx4 v[{self.A_V1}:{self.A_V1+3}], v{T+4}, s[{SRD_A}:{SRD_A+3}], s{S_T1} offen offset:1280 sc1")
        a(f"buffer_load_dwordx4 v[{self.A_V2}:{self.A_V2+3}], v{T+4}, s[{SRD_A}:{SRD_A+3}], s{S_T1} offen offset:1920 sc1")
        a(f"s_mov_b64 exec, -1")
        a(f"s_waitcnt vmcnt(0)")
        smm()
        for r in range(16):
            a(f"v_sub_f32 v{S+r}, v{S+r}, v{T+5}")
        for r in range(16):
            a(f"v_exp_f32 v{S+r}, v{S+r}")
        a(f"s_nop 0")
        for k in range(8):
            a(f"v_cvt_pk_bf16_f32 v{P+k}, v{S+2*k}, v{S+2*k+1}")
        a(f"s_nop 1")
        a(f"v_mfma_f32_32x32x16_bf16 v[{O}:{O+15}], v[{self.A_V1}:{self.A_V1+3}], v[{P}:{P+3}], v[{O}:{O+15}]")
        a(f"v_mfma_f32_32x32x16_bf16 v[{O}:{O+15}], v[{self.A_V2}:{self.A_V2+3}], v[{P+4}:{P+7}], v[{O}:{O+15}]")
        a(f"s_add_u32 s{S_T1}, s{S_T1}, 2560")
        a(f"s_cmp_lt_u32 s{S_T1}, 163840")
        a(f"s_cbranch_scc1 L_p2s_2")
        a(f"s_nop 7"); a(f"s_nop 7")
        a(f"s_mov_b32 s{self.S_SLOWDONE}, 1")
        a(f"s_branch L_p2_fin")

    G_ACC = 4
    G_ACT = 52
    G_AM = 84
    G_DV = 2
    G_SA = 3
    S_RB = 49; S_J = 50
    def g2_wbase(self, phase, NT):
        return 88 if (phase == 3 or NT == 3) else 144

    def g2_wsetup(self, phase, srd, sreg, vreg):
        a = self.a
        if phase == 3: self.srd(srd, S_WS, OFF_WOP, SZ_WOP)
        else: self.srd(srd, S_WS, OFF_W2P, SZ_W2P)
        a(f"s_and_b32 s{S_T0}, s{S_W}, 3")
        a(f"s_mul_i32 s{S_T1}, s{S_T0}, 40")
        a(f"s_and_b32 s{S_T2}, s{S_GI}, 7")
        a(f"s_mul_i32 s{S_T2}, s{S_T2}, 5")
        a(f"s_add_u32 s{S_T1}, s{S_T1}, s{S_T2}")
        a(f"s_cmp_lt_u32 s{S_W}, 4")
        a(f"s_cselect_b32 s{S_T2}, 3, 0")
        a(f"s_add_u32 s{S_T1}, s{S_T1}, s{S_T2}")
        a(f"s_lshl_b32 s{sreg}, s{S_T1}, 10")
        a(f"v_lshlrev_b32 v{vreg}, 4, v1")

    def g2_wload1(self, phase, NT, step, t, srd, sreg, vreg):
        a = self.a
        R = self.g2_wbase(phase, NT) + 4*(step*NT + t)
        off = step*4*40*1024 + t*1024
        a(f"s_add_u32 s{S_T2}, s{sreg}, {off}")
        a(f"buffer_load_dwordx4 v[{R}:{R+3}], v{vreg}, s[{srd}:{srd+3}], s{S_T2} offen {self.ld_aux}")

    def g2_wloads_byclass(self, phase, listA, listB, srd, sreg, vreg, tag):
        a = self.a
        LA = f"L_{tag}_A"; LJ = f"L_{tag}_J"
        a(f"s_cmp_ge_u32 s{S_W}, 4")
        a(f"s_cbranch_scc1 {LA}")
        for (st, t) in listB: self.g2_wload1(phase, 2, st, t, srd, sreg, vreg)
        a(f"s_branch {LJ}")
        a.put(LA)
        for (st, t) in listA: self.g2_wload1(phase, 3, st, t, srd, sreg, vreg)
        a.put(LJ)

    def g2_adma(self, stage):
        a = self.a
        slot = (stage % 4) * 32768
        for q in range(4):
            a(f"s_add_u32 m0, s{S_M0A}, {slot + q*8192}")
            a(f"s_add_u32 s{S_T2}, s{S_M0A}, {stage*32768 + q*8192}")
            a(f"buffer_load_dwordx4 v{self.G_DV}, s[{SRD_A}:{SRD_A+3}], s{S_T2} offen {self.ld_aux} lds")

    def g2_reads(self, stage, u, st):
        a = self.a
        slot = stage % 4
        hi = slot >= 2
        if hi != self.g2_hi:
            for m in range(4):
                if hi: a(f"v_add_u32 v{self.G_AM+m}, 0x10000, v{self.G_AM+m}")
                else:  a(f"v_subrev_u32 v{self.G_AM+m}, 0x10000, v{self.G_AM+m}")
            self.g2_hi = hi
        off = (slot % 2) * 32768 + u*16384
        for m in range(4):
            R = self.G_ACT + 16*st + 4*m
            a(f"ds_read_b128 v[{R}:{R+3}], v{self.G_AM+m} offset:{off}")

    def g2_mfma(self, phase, NT, step, st):
        a = self.a
        for t in range(NT):
            W = self.g2_wbase(phase, NT) + 4*(step*NT + t)
            for m in range(4):
                A = self.G_ACC + 4*(m*3 + t)
                X = self.G_ACT + 16*st + 4*m
                a(f"v_mfma_f32_16x16x32_bf16 v[{A}:{A+3}], v[{W}:{W+3}], v[{X}:{X+3}], v[{A}:{A+3}]")

    def g2_main(self, phase, NT, nsteps):
        a = self.a
        NSTG = (nsteps + 1) // 2
        pre = min(3, NSTG)
        self.g2_hi = False
        if NT == 3 and "nog2prio" not in self.opt: a(f"s_setprio 1")
        self.g2_adma(0); self.g2_adma(1)
        a(f"s_waitcnt vmcnt(8)")
        E = self.G_ACT; A = self.G_ACC
        for t in range(NT):
            for half in range(2):
                R = E + 2*t + half
                a(f"v_lshlrev_b32 v{A+4*t+2*half}, 16, v{R}")
                a(f"v_and_b32 v{A+4*t+2*half+1}, 0xffff0000, v{R}")
                if phase == 5:
                    R2 = E + 6 + 2*t + half
                    a(f"v_lshlrev_b32 v{E+14}, 16, v{R2}")
                    a(f"v_and_b32 v{E+15}, 0xffff0000, v{R2}")
                    a(f"v_add_f32 v{A+4*t+2*half}, v{A+4*t+2*half}, v{E+14}")
                    a(f"v_add_f32 v{A+4*t+2*half+1}, v{A+4*t+2*half+1}, v{E+15}")
        if self.g2st: self.stamp(self.g2st)
        a(f"s_waitcnt vmcnt(6)")
        a(f"s_barrier")
        if self.g2st: self.stamp(self.g2st+1)
        self.g2_reads(0, 0, 0)
        self.g2_adma(2)
        for sg in range(NSTG):
            two = (2*sg + 1) < nsteps
            if sg == 0:
                a(f"s_waitcnt lgkmcnt(0)")
                self.g2_mfma(phase, NT, 0, 0)
            if sg + 1 < NSTG:
                out = 4 * max(0, min(NSTG, sg + pre) - (sg + 2))
                a(f"s_waitcnt vmcnt({out})")
                a(f"s_barrier")
            if two:
                self.g2_reads(sg, 1, 1)
                if sg > 0: a(f"s_waitcnt lgkmcnt(4)")
            elif sg > 0:
                a(f"s_waitcnt lgkmcnt(0)")
            if sg > 0: self.g2_mfma(phase, NT, 2*sg, 0)
            if sg + pre < NSTG:
                self.g2_adma(sg + pre)
            if two:
                if sg + 1 < NSTG:
                    self.g2_reads(sg+1, 0, 0)
                    a(f"s_waitcnt lgkmcnt(4)")
                else:
                    a(f"s_waitcnt lgkmcnt(0)")
                self.g2_mfma(phase, NT, 2*sg+1, 1)

    def g2_reduce(self, NT):
        a = self.a
        T = self.G_ACT
        base = 98304 if NT == 3 else 135168
        dstr = NT*1024*3; rstr = NT*1024
        a(f"s_and_b32 s{S_T1}, s{S_W}, 3")
        for m in range(1, 4):
            a(f"s_add_u32 s{S_T2}, s{S_T1}, {m}")
            a(f"s_and_b32 s{S_T2}, s{S_T2}, 3")
            a(f"s_mul_i32 s{S_T2}, s{S_T2}, {dstr}")
            a(f"s_add_u32 s{S_T2}, s{S_T2}, {base + (m-1)*rstr}")
            a(f"v_add_u32 v{T+m}, s{S_T2}, v{self.G_DV}")
        a(f"s_mul_i32 s{S_T2}, s{S_T1}, {dstr}")
        a(f"s_add_u32 s{S_T2}, s{S_T2}, {base}")
        a(f"v_add_u32 v{T}, s{S_T2}, v{self.G_DV}")
        for m in range(1, 4):
            for t in range(NT):
                A = self.G_ACC + 4*(m*3 + t)
                a(f"ds_write_b128 v{T+m}, v[{A}:{A+3}] offset:{t*1024}")
        a(f"s_waitcnt lgkmcnt(0)")
        a(f"s_barrier")
        for rel in range(3):
            for t in range(NT):
                A = self.G_ACC + 4*((rel+1)*3 + t)
                a(f"ds_read_b128 v[{A}:{A+3}], v{T} offset:{rel*rstr + t*1024}")
        a(f"s_waitcnt lgkmcnt(0)")
        for t in range(NT):
            for i in range(4):
                A = self.G_ACC + 4*t + i
                a(f"v_add_f32 v{A}, v{A}, v{A+12}")
                a(f"v_add_f32 v{A+24}, v{A+24}, v{A+36}")
            for i in range(4):
                A = self.G_ACC + 4*t + i
                a(f"v_add_f32 v{A}, v{A}, v{A+24}")

    def h_addr_base(self, B, M, C, tmp):
        a = self.a
        a(f"s_lshl_b32 s{S_T0}, s{self.S_RB}, 6")
        a(f"s_and_b32 s{S_T1}, s{S_W}, 3")
        a(f"s_lshl_b32 s{S_T1}, s{S_T1}, 4")
        a(f"s_add_u32 s{S_T0}, s{S_T0}, s{S_T1}")
        a(f"s_lshr_b32 s{S_T1}, s{S_T0}, 7")
        a(f"s_mul_i32 s{S_T1}, s{S_T1}, 163840")
        a(f"s_and_b32 s{S_T0}, s{S_T0}, 127")
        a(f"v_and_b32 v{tmp}, 15, v1")
        a(f"v_add_u32 v{tmp}, s{S_T0}, v{tmp}")
        a(f"v_bfe_u32 v{M}, v{tmp}, 1, 3")
        a(f"v_lshlrev_b32 v{B}, 7, v{tmp}")
        a(f"v_add_u32 v{B}, s{S_T1}, v{B}")
        a(f"s_mul_i32 s{S_T0}, s{self.S_J}, 80")
        a(f"s_cmp_lt_u32 s{S_W}, 4")
        a(f"s_cselect_b32 s{S_T1}, 48, 0")
        a(f"s_add_u32 s{S_T0}, s{S_T0}, s{S_T1}")
        a(f"v_lshrrev_b32 v{C}, 4, v1")
        a(f"v_lshlrev_b32 v{C}, 2, v{C}")
        a(f"v_add_u32 v{C}, s{S_T0}, v{C}")

    def h_addr(self, dst, t, B, M, C, tmp):
        a = self.a
        a(f"v_add_u32 v{tmp}, {16*t}, v{C}")
        a(f"v_lshrrev_b32 v{dst}, 6, v{tmp}")
        a(f"v_lshlrev_b32 v{dst}, 14, v{dst}")
        a(f"v_add_u32 v{dst}, v{dst}, v{B}")
        a(f"v_bfe_u32 v{tmp+1}, v{tmp}, 3, 3")
        a(f"v_xor_b32 v{tmp+1}, v{tmp+1}, v{M}")
        a(f"v_lshl_add_u32 v{dst}, v{tmp+1}, 4, v{dst}")
        a(f"v_bfe_u32 v{tmp+1}, v{tmp}, 2, 1")
        a(f"v_lshl_add_u32 v{dst}, v{tmp+1}, 3, v{dst}")

    def g2_setup(self, phase):
        a = self.a
        a(f"s_lshr_b32 s{S_T0}, s{S_GI}, 3")
        a(f"s_lshl_b32 s{S_T1}, s{S_GX}, 2")
        a(f"s_add_u32 s{self.S_RB}, s{S_T0}, s{S_T1}")
        a(f"s_and_b32 s{self.S_J}, s{S_GI}, 7")
        if phase == 3: off, per = OFF_O, 81920
        else: off, per = OFF_R, 54*4096
        a(f"s_mul_i32 s{S_T0}, s{self.S_RB}, {per}")
        a(f"s_add_u32 s{S_T0}, s{S_T0}, {hex(off)}")
        a(f"s_add_u32 s{SRD_A}, s{S_WS}, s{S_T0}")
        a(f"s_addc_u32 s{SRD_A+1}, s{S_WS+1}, 0")
        a(f"s_mov_b32 s{SRD_A+2}, {per}")
        a(f"s_mov_b32 s{SRD_A+3}, 0x20000")
        a(f"s_lshl_b32 s{S_M0A}, s{S_W}, 10")
        a(f"v_lshlrev_b32 v{self.G_DV}, 4, v1")
        a(f"s_and_b32 s{S_T0}, s{S_W}, 3")
        for m in range(4):
            a(f"s_add_u32 s{S_T1}, s{S_T0}, {m}")
            a(f"s_and_b32 s{S_T1}, s{S_T1}, 3")
            a(f"s_lshl_b32 s{S_T1}, s{S_T1}, 10")
            a(f"s_lshl_b32 s{S_T2}, s{S_T0}, 12")
            a(f"s_add_u32 s{S_T1}, s{S_T1}, s{S_T2}")
            a(f"v_add_u32 v{self.G_AM+m}, s{S_T1}, v{self.G_DV}")
        E = self.G_ACT
        a(f"s_lshl_b32 s{S_T0}, s{self.S_RB}, 6")
        a(f"s_and_b32 s{S_T1}, s{S_W}, 3")
        a(f"s_lshl_b32 s{S_T1}, s{S_T1}, 4")
        a(f"s_add_u32 s{S_T0}, s{S_T0}, s{S_T1}")
        a(f"v_and_b32 v{self.G_SA}, 15, v1")
        a(f"v_add_u32 v{self.G_SA}, s{S_T0}, v{self.G_SA}")
        a(f"v_mul_u32_u24 v{self.G_SA}, 1280, v{self.G_SA}")
        a(f"s_mul_i32 s{S_T0}, s{self.S_J}, 160")
        a(f"s_cmp_lt_u32 s{S_W}, 4")
        a(f"s_cselect_b32 s{S_T1}, 96, 0")
        a(f"s_add_u32 s{S_T0}, s{S_T0}, s{S_T1}")
        a(f"v_lshrrev_b32 v{E+12}, 4, v1")
        a(f"v_lshlrev_b32 v{E+12}, 3, v{E+12}")
        a(f"v_add_u32 v{E+12}, s{S_T0}, v{E+12}")
        a(f"v_add_u32 v{self.G_SA}, v{self.G_SA}, v{E+12}")
        if phase == 3:
            self.srd(SRD_T, S_X, 0, 2048*1280); aux_r = ""
        else:
            self.srd(SRD_T, S_WS, OFF_H, SZ_H); aux_r = self.ld_aux
        if phase == 3:
            for t in range(3):
                a(f"buffer_load_dwordx2 v[{E+2*t}:{E+2*t+1}], v{self.G_SA}, s[{SRD_T}:{SRD_T+3}], 0 offen offset:{32*t} {aux_r}")
        else:
            self.h_addr_base(E+16, E+17, E+18, E+19)
            for t in range(3):
                self.h_addr(E+20, t, E+16, E+17, E+18, E+21)
                a(f"buffer_load_dwordx2 v[{E+2*t}:{E+2*t+1}], v{E+20}, s[{SRD_T}:{SRD_T+3}], 0 offen {aux_r}")
        if phase == 5:
            self.srd(SRD_T, S_B2, 0, 1280)
            for t in range(3):
                a(f"buffer_load_dwordx2 v[{E+6+2*t}:{E+7+2*t}], v{E+12}, s[{SRD_T}:{SRD_T+3}], 0 offen offset:{32*t}")
        for r in range(12, 48):
            a(f"v_mov_b32 v{self.G_ACC+r}, 0")

    def g2_epi(self, phase, NT):
        a = self.a
        T = self.G_ACT; A = self.G_ACC
        if phase == 3:
            self.srd_twin(S_WS, OFF_H, SZ_H)
        else:
            self.srd(SRD_O, S_OUT, 0, 2048*1280)
        for t in range(NT):
            a(f"v_cvt_pk_bf16_f32 v{A+4*t}, v{A+4*t}, v{A+4*t+1}")
            a(f"v_cvt_pk_bf16_f32 v{A+4*t+1}, v{A+4*t+2}, v{A+4*t+3}")
            if phase == 3:
                if t == 0: self.h_addr_base(T+8, T+9, T+10, T+11)
                self.h_addr(T+12+t, t, T+8, T+9, T+10, T+16)
                self.store_twin("buffer_store_dwordx2", f"v[{A+4*t}:{A+4*t+1}]", T+12+t, "0")
            else: a(f"buffer_store_dwordx2 v[{A+4*t}:{A+4*t+1}], v{self.G_SA}, s[{SRD_O}:{SRD_O+3}], 0 offen offset:{32*t} {self.out_aux}")
        if phase == 3:
            S = T + 22
            a(f"v_mov_b32 v{S}, 0"); a(f"v_mov_b32 v{S+1}, 0")
            for t in range(NT):
                for half in range(2):
                    R = A + 4*t + half
                    a(f"v_lshlrev_b32 v{T+20}, 16, v{R}")
                    a(f"v_and_b32 v{T+21}, 0xffff0000, v{R}")
                    a(f"v_add_f32 v{S}, v{S}, v{T+20}")
                    a(f"v_fmac_f32 v{S+1}, v{T+20}, v{T+20}")
                    a(f"v_add_f32 v{S}, v{S}, v{T+21}")
                    a(f"v_fmac_f32 v{S+1}, v{T+21}, v{T+21}")
            for op in ("v_permlane32_swap_b32", "v_permlane16_swap_b32"):
                a(f"v_mov_b32 v{S+2}, v{S}")
                a(f"v_mov_b32 v{S+3}, v{S+1}")
                a(f"s_nop 1")
                a(f"{op} v{S+2}, v{S}")
                a(f"{op} v{S+3}, v{S+1}")
                a(f"s_nop 1")
                a(f"v_add_f32 v{S}, v{S}, v{S+2}")
                a(f"v_add_f32 v{S+1}, v{S+1}, v{S+3}")
            a(f"s_lshl_b32 s{S_T0}, s{self.S_RB}, 6")
            a(f"s_and_b32 s{S_T1}, s{S_W}, 3")
            a(f"s_lshl_b32 s{S_T1}, s{S_T1}, 4")
            a(f"s_add_u32 s{S_T0}, s{S_T0}, s{S_T1}")
            a(f"v_and_b32 v{S+2}, 15, v1")
            a(f"v_add_u32 v{S+2}, s{S_T0}, v{S+2}")
            a(f"v_lshlrev_b32 v{S+2}, 7, v{S+2}")
            a(f"s_lshl_b32 s{S_T0}, s{self.S_J}, 4")
            a(f"s_add_u32 s{S_T0}, s{S_T0}, {hex(8 if NT == 2 else 0)}")
            a(f"v_add_u32 v{S+2}, s{S_T0}, v{S+2}")
            self.srd_twin(S_WS, OFF_PST, 2048*128)
            a(f"s_mov_b64 exec, 0xffff")
            self.store_twin("buffer_store_dwordx2", f"v[{S}:{S+1}]", S+2, "0")
            a(f"s_mov_b64 exec, -1")

    def g2(self, phase):
        a = self.a
        nsteps = 5 if phase == 3 else 14
        self.g2st = 15 if (str(phase) in self.opt_g2) else None
        L1 = f"L_g2p{phase}_n1"; Lj = f"L_g2p{phase}_j"
        a(f"s_cmp_lt_u32 s{S_W}, 4")
        a(f"s_cbranch_scc1 {L1}")
        for NT in (3, 2):
            self.g2_main(phase, NT, nsteps)
            if self.g2st: self.stamp(self.g2st+2)
            if NT == 3: a(f"s_setprio 0")
            a(f"s_nop 7")
            self.g2_reduce(NT)
            if self.g2st: self.stamp(self.g2st+3)
            self.g2_epi(phase, NT)
            if NT == 3:
                a(f"s_branch {Lj}")
                a.put(L1)
        a.put(Lj)

    def hook23(self):
        a = self.a
        a(f"v_lshlrev_b32 v{self.G_DV}, 4, v1")
        self.wo_from_lds()
        self.g2_setup(3)
    def hook34(self):
        a = self.a
        a(f"s_cmp_lt_u32 s{S_GI}, 28")
        a(f"s_cbranch_scc1 L_h34_skip")
        self.prefetch_w2_rest()
        a.put("L_h34_skip")
        self.p4_setup()
    def hook45(self):
        self.g2_setup(5)
        if "wbl2" in self.opt:
            a = self.a
            a(f"s_cmp_lg_u32 s{S_GI}, 31")
            a(f"s_cbranch_scc1 L_wbl2_skip")
            a(f"s_cmp_lg_u32 s{S_W}, 1")
            a(f"s_cbranch_scc1 L_wbl2_skip")
            a(f"buffer_wbl2 sc1")
            a.put("L_wbl2_skip")

    def wo_lds_base(self, dst):
        a = self.a
        a(f"s_sub_u32 s{S_T3}, s{S_W}, 4")
        a(f"s_mul_i32 s{S_T3}, s{S_T3}, 15360")
        a(f"s_cmp_eq_u32 s{S_W}, 7")
        a(f"s_cselect_b32 s{S_T3}, 81920, s{S_T3}")
        a(f"s_mul_i32 s{S_T4}, s{S_W}, 10240")
        a(f"s_add_u32 s{S_T4}, s{S_T4}, 97280")
        a(f"s_cmp_eq_u32 s{S_W}, 3")
        a(f"s_cselect_b32 s{S_T4}, 46080, s{S_T4}")
        a(f"s_cmp_lt_u32 s{S_W}, 4")
        a(f"s_cselect_b32 s{dst}, s{S_T4}, s{S_T3}")

    def wo_frag_off(self, NT, idx):
        return idx * 1024

    def wo_dma(self, lo, hi):
        a = self.a
        LA = f"L_wod{lo}_A"; LJ = f"L_wod{lo}_J"
        a(f"s_cmp_ge_u32 s{S_W}, 4")
        a(f"s_cbranch_scc1 {LA}")
        for NT, lab in ((2, None), (3, LA)):
            if lab:
                a(f"s_branch {LJ}")
                a.put(lab)
            for idx in range(lo, min(hi, 5*NT)):
                st, t = divmod(idx, NT)
                base = self.S_WOB if not (NT == 2 and idx >= 5) else self.S_WOB2
                a(f"s_add_u32 m0, s{base}, {idx*1024}")
                a(f"s_add_u32 s{S_T2}, s{self.S_WOS}, {st*4*40*1024 + t*1024}")
                a(f"buffer_load_dwordx4 v{self.A_DV}, s[{SRD_T}:{SRD_T+3}], s{S_T2} offen {self.ld_aux} lds")
        a.put(LJ)

    def wo_dma_cls(self, NT, lo, hi):
        a = self.a
        for idx in range(lo, min(hi, 5*NT)):
            st, t = divmod(idx, NT)
            base = self.S_WOB if not (NT == 2 and idx >= 5) else self.S_WOB2
            a(f"s_add_u32 m0, s{base}, {idx*1024}")
            a(f"s_add_u32 s{S_T2}, s{self.S_WOS}, {st*4*40*1024 + t*1024}")
            a(f"buffer_load_dwordx4 v{self.A_DV}, s[{SRD_T}:{SRD_T+3}], s{S_T2} offen {self.ld_aux} lds")

    S_WOB = 63; S_WOB2 = 64; S_WOS = 54
    def wo_setup(self):
        a = self.a
        self.g2_wsetup(3, SRD_T, self.S_WOS, self.A_DV)
        self.wo_lds_base(self.S_WOB)
        a(f"s_cmp_eq_u32 s{S_W}, 3")
        a(f"s_cselect_b32 s{self.S_WOB2}, {128000-5120}, s{self.S_WOB}")

    def wo_from_lds(self):
        a = self.a
        LA = "L_wol_A"; LJ = "L_wol_J"
        a(f"v_add_u32 v{self.G_AM}, s{self.S_WOBK}, v{self.G_DV}")
        a(f"v_add_u32 v{self.G_AM+1}, s{self.S_WOB2}, v{self.G_DV}")
        a(f"s_cmp_ge_u32 s{S_W}, 4")
        a(f"s_cbranch_scc1 {LA}")
        for NT, lab in ((2, None), (3, LA)):
            if lab:
                a(f"s_branch {LJ}")
                a.put(lab)
            for idx in range(5*NT):
                R = 88 + 4*idx
                ad = self.G_AM if not (NT == 2 and idx >= 5) else self.G_AM + 1
                a(f"ds_read_b128 v[{R}:{R+3}], v{ad} offset:{idx*1024}")
        a.put(LJ)
        a(f"s_waitcnt lgkmcnt(0)")

    def prefetch_wo(self):
        self.g2_wsetup(3, SRD_W, S_SW, 2)
        self.g2_wloads_byclass(3, [(s_, t) for s_ in range(5) for t in range(3)], [(s_, t) for s_ in range(5) for t in range(2)], SRD_W, S_SW, 2, "pfwo")
    def prefetch_w2_rest(self):
        self.g2_wsetup(5, SRD_W, S_SW, 2)
        self.g2_wloads_byclass(5, [(s_, t) for s_ in range(5) for t in range(3)], [], SRD_W, S_SW, 2, "pfw2")

    def p4_epi(self):
        a = self.a
        self.V_T = 2
        T = self.V_T; A = self.V_ACC; CSR = self.V_FR
        B1R = self.V_FR + 32
        a(f"s_cmp_eq_u32 s{S_NT}, 13")
        a(f"s_cselect_b32 s{S_T0}, s{S_WN}, 0")
        a(f"s_cmp_eq_u32 s{S_T0}, 1")
        a(f"s_cbranch_scc1 L_p4_skip")
        self.epi_T_common()
        for g in range(4):
            a(f"ds_read_b128 v[{B1R+4*g}:{B1R+4*g+3}], v{T+7} offset:{ST_B1-ST_CS+32*g}")
        for g in range(4):
            a(f"ds_read_b128 v[{B1R+16+4*g}:{B1R+16+4*g+3}], v{T+1} offset:{ST_B1-ST_CS+32*g}")
        if "rsc1" in self.opt: self.srd(SRD_O, S_WS, OFF_R, SZ_R)
        else: self.srd_twin(S_WS, OFF_R, SZ_R)
        a(f"s_lshl_b32 s{S_T0}, s{S_MT}, 1")
        a(f"s_add_u32 s{S_T0}, s{S_T0}, s{S_WM}")
        a(f"s_mul_i32 s{S_T0}, s{S_T0}, {54*4096}")
        a(f"s_lshl_b32 s{S_T1}, s{S_NT}, 2")
        a(f"s_lshl_b32 s{S_T2}, s{S_WN}, 1")
        a(f"s_add_u32 s{S_T1}, s{S_T1}, s{S_T2}")
        a(f"s_add_u32 s{S_T2}, s{S_T1}, s{S_WM}")
        a(f"s_xor_b32 s{S_T3}, s{S_WM}, 1")
        a(f"s_add_u32 s{S_T3}, s{S_T1}, s{S_T3}")
        a(f"s_lshl_b32 s{S_T2}, s{S_T2}, 12")
        a(f"s_lshl_b32 s{S_T3}, s{S_T3}, 12")
        a(f"s_add_u32 s{S_T4}, s{S_T0}, s{S_T2}")
        a(f"s_add_u32 s{S_T5}, s{S_T0}, s{S_T3}")
        a(f"v_bfe_u32 v{T+8}, v1, 4, 1")
        a(f"v_lshlrev_b32 v{T+8}, 10, v{T+8}")
        a(f"v_and_b32 v{T+9}, 15, v1")
        a(f"v_lshl_add_u32 v{T+8}, v{T+9}, 4, v{T+8}")
        a(f"v_lshl_add_u32 v{T+8}, v{T+6}, 8, v{T+8}")
        a(f"s_waitcnt lgkmcnt(0)")
        for tt in range(2):
            for q in range(2):
                for gp in range(2):
                    ab = f"v[{T+2+2*tt}:{T+3+2*tt}]"
                    for g in (2*gp, 2*gp+1):
                        for i in (0, 2):
                            r = A + 16*(2*tt+q) + 4*g + i
                            c = CSR + 16*q + 4*g + i; b1 = B1R + 16*q + 4*g + i
                            a(f"v_pk_fma_f32 v[{r}:{r+1}], v[{r}:{r+1}], {ab}, v[{b1}:{b1+1}] op_sel:[0,0,0] op_sel_hi:[1,0,1]")
                            a(f"v_pk_fma_f32 v[{r}:{r+1}], v[{c}:{c+1}], {ab}, v[{r}:{r+1}] op_sel:[0,1,0] op_sel_hi:[1,1,1]")
                            a(f"v_max_f32 v{r}, 0, v{r}")
                            a(f"v_max_f32 v{r+1}, 0, v{r+1}")
                            a(f"v_pk_mul_f32 v[{r}:{r+1}], v[{r}:{r+1}], v[{r}:{r+1}]")
                    r = A + 16*(2*tt+q) + 8*gp
                    a(f"v_cvt_pk_bf16_f32 v{r}, v{r}, v{r+1}")
                    a(f"v_cvt_pk_bf16_f32 v{r+1}, v{r+2}, v{r+3}")
                    a(f"v_cvt_pk_bf16_f32 v{r+2}, v{r+4}, v{r+5}")
                    a(f"v_cvt_pk_bf16_f32 v{r+3}, v{r+6}, v{r+7}")
                    a(f"s_nop 1")
                    a(f"v_permlane32_swap_b32 v{r}, v{r+2}")
                    a(f"v_permlane32_swap_b32 v{r+1}, v{r+3}")
                    if "rsc1" in self.opt:
                        a(f"buffer_store_dwordx4 v[{r}:{r+3}], v{T+8}, s[{SRD_O}:{SRD_O+3}], s{S_T4+q} offen offset:{2048*tt + 512*gp} sc1")
                    else:
                        self.store_twin("buffer_store_dwordx4", f"v[{r}:{r+3}]", T+8, f"s{S_T4+q}", f"offset:{2048*tt + 512*gp}")
        a.put("L_p4_skip")
        self.V_T = 148

    def p4_setup(self):
        a = self.a
        a(f"s_cmp_ge_u32 s{S_GI}, 28")
        a(f"s_cbranch_scc1 L_p4s_done")
        a(f"s_cmp_ge_u32 s{S_GI}, 14")
        a(f"s_cselect_b32 s{S_T0}, 1, 0")
        a(f"s_cselect_b32 s{S_T1}, 14, 0")
        a(f"s_sub_u32 s{S_NT}, s{S_GI}, s{S_T1}")
        a(f"s_lshl_b32 s{S_MT}, s{S_GX}, 1")
        a(f"s_add_u32 s{S_MT}, s{S_MT}, s{S_T0}")
        a(f"s_cmp_ge_u32 s{S_NT}, 10")
        a(f"s_cselect_b32 s{S_T0}, 10, 0")
        a(f"s_sub_u32 s{S_KK}, s{S_NT}, s{S_T0}")
        if "p4norot" in self.opt: a(f"s_mov_b32 s{S_KK}, 0")
        a(f"s_cmp_lt_u32 s{S_W}, 4")
        a(f"s_cbranch_scc1 L_p4s_compute")
        self.V_T = 16
        self.g1_setup_loader(3456)
        self.g1_linearA()
        self.srd(SRD_A, S_WS, OFF_H, SZ_H)
        self.srd(SRD_W, S_W1, 0, 640*3456)
        T = self.V_T
        self.srd(SRD_T, S_B1, 0, 1728*2)
        a(f"s_sub_u32 s{S_T4}, s{S_W}, 4")
        a(f"s_lshl_b32 s{S_T4}, s{S_T4}, 5")
        a(f"v_and_b32 v{T+10}, 31, v1")
        a(f"v_add_u32 v{T+10}, s{S_T4}, v{T+10}")
        a(f"s_lshl_b32 s{S_T4}, s{S_NT}, 7")
        a(f"v_add_u32 v{T+11}, s{S_T4}, v{T+10}")
        a(f"v_lshlrev_b32 v{T+11}, 1, v{T+11}")
        a(f"buffer_load_ushort v{T+22}, v{T+11}, s[{SRD_T}:{SRD_T+3}], 0 offen")
        a(f"v_lshlrev_b32 v{T+11}, 1, v{T+11}")
        a(f"v_add_u32 v{T+11}, {hex(OFF_CS1)}, v{T+11}")
        a(f"buffer_load_dword v{T+23}, v{T+11}, s[{SRD_F}:{SRD_F+3}], 0 offen {self.ld_aux}")
        a(f"s_mov_b32 s{S_T3}, s{S_KK}")
        for sg in range(3):
            a(f"s_mul_i32 s{S_T4}, s{S_T3}, {64*3456}")
            a(f"s_add_u32 s{S_T4}, s{S_T4}, s{S_SW}")
            for q in range(4):
                a(f"s_add_u32 m0, s{S_M0A}, {sg*32768 + 16384 + q*4096}")
                a(f"s_add_u32 s{S_T2}, s{S_T4}, {q*16*3456}")
                a(f"buffer_load_dwordx4 v{self.V_OFFW}, s[{SRD_W}:{SRD_W+3}], s{S_T2} offen lds")
            a(f"s_add_u32 s{S_T3}, s{S_T3}, 1")
            a(f"s_cmp_eq_u32 s{S_T3}, 10")
            a(f"s_cselect_b32 s{S_T3}, 0, s{S_T3}")
        self.V_T = 148
        a(f"s_branch L_p4s_done")
        a.put("L_p4s_compute")
        self.g1_setup_compute()
        a.put("L_p4s_done")

    def p4(self):
        a = self.a
        a(f"s_cmp_ge_u32 s{S_GI}, 28")
        a(f"s_cbranch_scc1 L_p4_done")
        self.aux_A = self.ld_aux
        self.st1 = 15 if "p4s" in self.opt else None
        a(f"s_cmp_lt_u32 s{S_W}, 4")
        a(f"s_cbranch_scc1 L_p4_compute")
        self.V_T = 16
        for sg in range(3):
            a(f"s_lshl_b32 s{S_T4}, s{S_KK}, 14")
            a(f"s_add_u32 s{S_T4}, s{S_T4}, s{S_SA}")
            for q in range(4):
                a(f"s_add_u32 m0, s{S_M0A}, {sg*32768 + q*4096}")
                a(f"s_add_u32 s{S_T2}, s{S_T4}, {q*4096}")
                a(f"buffer_load_dwordx4 v{self.V_OFFA}, s[{SRD_A}:{SRD_A+3}], s{S_T2} offen {self.aux_A} lds")
            a(f"s_add_u32 s{S_KK}, s{S_KK}, 1")
            a(f"s_cmp_eq_u32 s{S_KK}, 10")
            a(f"s_cselect_b32 s{S_KK}, 0, s{S_KK}")
        a(f"s_mov_b32 s{S_SLOT}, {3*32768}")
        self.kk_wrap = 0
        self.b1_hook = True
        self.linA = True
        self.g1_loader(3456, "p4", "part")
        self.linA = False
        self.b1_hook = False
        self.V_T = 148
        a(f"s_branch L_p4_done")
        a.put("L_p4_compute")
        self.nocs = True
        self.g1_compute("T", "p4", presetup=True)
        self.nocs = False
        if "p4s" in self.opt: self.stamp(16)
        self.p4_epi()
        if "p4s" in self.opt: self.stamp(17)
        a.put("L_p4_done")

    def code_warm(self):
        a = self.a
        a(f"s_getpc_b64 s[{SRD_T}:{SRD_T+1}]")
        a.put("L_pc_here")
        a(f"s_sub_u32 s{SRD_T}, s{SRD_T}, L_pc_here-{NAME}")
        a(f"s_subb_u32 s{SRD_T+1}, s{SRD_T+1}, 0")
        a(f"s_mov_b32 s{SRD_T+2}, L_end-{NAME}")
        a(f"s_mov_b32 s{SRD_T+3}, 0x20000")
        a(f"v_lshlrev_b32 v254, 7, v0")
        a(f"buffer_load_dword v255, v254, s[{SRD_T}:{SRD_T+3}], 0 offen")

    def epoch_update(self):
        a = self.a
        a(f"s_or_b32 s{S_T0}, s2, s{S_W}")
        a(f"s_cmp_lg_u32 s{S_T0}, 0")
        a(f"s_cbranch_scc1 L_noepoch")
        a(f"v_mov_b32 v2, {OFF_EPOCH}")
        a(f"v_mov_b32 v3, s{S_TAG}")
        a(f"s_mov_b64 exec, 1")
        a(f"buffer_store_dword v3, v2, s[{SRD_F}:{SRD_F+3}], 0 offen sc1")
        a(f"s_mov_b64 exec, -1")
        a.put("L_noepoch")

    def epilogue_stamps(self):
        if getattr(self, "freeze", False): self.stamps = True
        if not self.stamps: return
        a = self.a
        if "dbg" in self.opt:
            a(f"s_or_b32 s{S_T0}, s2, s{S_W}")
            a(f"s_cmp_lg_u32 s{S_T0}, 0")
            a(f"s_cbranch_scc1 L_nodbg")
            self.srd(SRD_T, S_DBG, 0, 256)
            a(f"s_memrealtime s[100:101]")
            a(f"s_waitcnt lgkmcnt(0)")
            a(f"s_sub_u32 s{S_STAMP+15}, s100, s88")
            a(f"s_add_u32 s{S_STAMP+15}, s{S_STAMP+15}, s{S_STAMP}")
            a(f"v_mov_b32 v3, 0")
            a(f"s_mov_b64 exec, 1")
            for i in range(16):
                a(f"s_sub_u32 s{S_T1}, s{S_STAMP+i}, s{S_STAMP}")
                a(f"v_mov_b32 v2, s{S_T1}")
                a(f"buffer_store_dword v2, v3, s[{SRD_T}:{SRD_T+3}], 0 offen offset:{4*i}")
                a(f"s_nop 1")
            a(f"s_mov_b64 exec, -1")
            a.put("L_nodbg")
        a(f"s_waitcnt lgkmcnt(0)")
        a(f"s_lshl_b32 s{S_T0}, s2, 3")
        a(f"s_add_u32 s{S_T0}, s{S_T0}, s{S_W}")
        a(f"s_lshl_b32 s{S_T0}, s{S_T0}, 7")
        a(f"s_add_u32 s{S_T0}, s{S_T0}, 0x80000")
        a(f"v_mov_b32 v3, s{S_T0}")
        a(f"s_mov_b64 exec, 1")
        a(f"s_memrealtime s[100:101]")
        a(f"s_waitcnt lgkmcnt(0)")
        a(f"s_sub_u32 s{S_T1}, s100, s88")
        a(f"v_mov_b32 v2, s{S_T1}")
        a(f"buffer_store_dword v2, v3, s[{SRD_F}:{SRD_F+3}], 0 offen offset:{4*31}")
        a(f"v_mov_b32 v2, s88")
        a(f"buffer_store_dword v2, v3, s[{SRD_F}:{SRD_F+3}], 0 offen offset:{4*30}")
        for i in range(self.nstamp):
            a(f"s_sub_u32 s{S_T1}, s{S_STAMP+i}, s{S_STAMP}")
            a(f"v_mov_b32 v2, s{S_T1}")
            a(f"buffer_store_dword v2, v3, s[{SRD_F}:{SRD_F+3}], 0 offen offset:{4*i}")
            a(f"s_nop 1")
        a(f"s_mov_b64 exec, -1")

    def build(self):
        a = self.a
        self.prologue()
        self.p1()
        self.p2_setup()
        self.p2_wait_prep()
        self.p1_signal()
        if self.stop_after != "p1":
            a("; ===== P2: attention =====")
            self.p2()
            if self.stop_after != "p2":
                self.V_S = 66
                self.group_barrier(0, "gb23", S_QB, S_HEAD, hook=self.hook23)
                self.stamp(9)
                self.g2(3)
                self.stamp(10)
                if self.stop_after != "p3":
                    self.group_barrier(1, "gb34", hook=self.hook34, local=True)
                    self.stamp(11)
                    self.p4()
                    self.stamp(12)
                    if self.stop_after != "p4":
                        self.group_barrier(2, "gb45", hook=self.hook45, local=True, early_A=("early" in self.opt), pollw=(4 if "early" in self.opt else 0))
                        self.stamp(13)
                        self.g2(5)
            a(f"s_waitcnt vmcnt(0)")
            self.stamp(14)
        if "delay" in self.opt:
            for i in range(4): a("s_sleep 127")
        self.epoch_update()
        if "showfast" in self.opt:
            a(f"s_lshl_b32 s{S_T0}, s{S_FAST}, 8")
            a(f"s_or_b32 s{S_T0}, s{S_T0}, s{S_XCC}")
            a(f"s_add_u32 s{S_STAMP+1}, s{S_STAMP}, s{S_T0}")
        self.epilogue_stamps()
        a(f"s_waitcnt vmcnt(0)")
        a.put("L_end")
        a("s_endpgm")
        return a

import struct
def f32(x):
    return struct.unpack("<I", struct.pack("<f", x))[0]

HEADER = open("sequential_preLN__mha_block__dense_activation_squared_relu__prompt.s.ref").read().split("; Override launch geometry")[0]

DOC = '; ---------------------------------------------------------------------------------------------\n; Single persistent launch, 256 workgroups x 8 waves (one workgroup per CU), five phases:\n;   P2  attention, one (head, 256-query block) per workgroup, S^T = K Q^T, P = exp2(S), O^T = V^T P^T\n;       tile with the true row max (two-pass loop at L_p2_slow).\n; Hand-offs between workgroups go through d_ws with tagged flags (tag = hash of the epoch word found in d_ws);\n; that all 32 workgroups of a row group sit on one XCD.\n; ---------------------------------------------------------------------------------------------\n'

def wrap(body, lds=163840, vgpr=256):
    s = HEADER
    s += f"; @launch grid=(256,1,1) block=(512,1,1) lds={lds}\n"
    s += DOC
    s += '.amdgcn_target "amdgcn-amd-amdhsa--gfx950"\n.text\n'
    s += f".globl {NAME}\n.p2align 8\n.type {NAME},@function\n{NAME}:\n"
    s += body
    s += f"""
.section .rodata,"a"
.p2align 6
.amdhsa_kernel {NAME}
  .amdhsa_next_free_vgpr {vgpr}
  .amdhsa_next_free_sgpr 102
  .amdhsa_accum_offset {vgpr}
  .amdhsa_group_segment_fixed_size 0
  .amdhsa_kernarg_size 88
  .amdhsa_user_sgpr_count 2
  .amdhsa_user_sgpr_kernarg_segment_ptr 1
  .amdhsa_system_sgpr_workgroup_id_x 1
.end_amdhsa_kernel
"""
    return s

if __name__ == "__main__":
    import argparse
    ap = argparse.ArgumentParser()
    ap.add_argument("-o", default="out.s")
    ap.add_argument("--stop", default=None)
    ap.add_argument("--stamps", action="store_true")
    ap.add_argument("--opt", default="")
    ap.add_argument("--plow", default=None)
    ap.add_argument("--lowpos", default=None)
    args = ap.parse_args()
    g = Gen(stop_after=args.stop, stamps=args.stamps, opt=[o for o in args.opt.split(',') if o])
    if args.lowpos is not None: g.low_pos = tuple(int(x) for x in args.lowpos.split(",") if x)
    if "ws1" in g.opt: g.warm_slots = {'dst': 48, 'w1': 52}
    if "ws2" in g.opt: g.warm_slots = {'w1': 48, 'dst': 52}
    if "ws3" in g.opt: g.warm_slots = {'w1': 48, 'dst': 49, 'wp': 50}
    if "ws0" in g.opt: g.warm_slots = {}
    if "low2" in g.opt: g.low_tiles = 2
    if "low3" in g.opt: g.low_tiles = 3
    if args.plow is not None: g.prio_low = tuple(int(x) for x in args.plow.split(",") if x)
    a = g.build()
    rep = check(a.L)
    for r in rep: print(r)
    open(args.o, "w").write(wrap(a.text()))
    print("wrote", args.o, len(a.L), "lines;", len(rep), "hazards")
```
